```python
import torch

def _softmax(x, axis=-1):
    return torch.softmax(x, dim=axis)
def _gelu(x):
    return torch.nn.functional.gelu(x, approximate="tanh")
def _silu(x):
    return torch.nn.functional.silu(x)
def _sigmoid(x):
    return torch.sigmoid(x)
def _layernorm(x, axis=-1, eps=1e-5):
    m = x.mean(dim=axis, keepdim=True)
    v = x.var(dim=axis, keepdim=True, unbiased=False)
    return (x - m) / torch.sqrt(v + eps)
def _scatter_add(tgt, idx, src, axis=0):
    return tgt.clone().index_add_(axis, idx, src)
def _segment_sum(src, seg, n):
    out = torch.zeros((n,) + src.shape[1:], dtype=src.dtype)
    return out.index_add_(0, seg, src)
def _pad(x, pw):
    flat = tuple(v for pair in reversed(pw) for v in pair)
    return torch.nn.functional.pad(x, flat)

kernel_name = 'gather_scatter__molecular_angular_gemnet__graph'

def setup_inputs():

    _w = (lambda a: (lambda t: t.to(torch.bfloat16) if t.is_floating_point() else t)(torch.as_tensor(a)))
    N, deg, De, L = 25000, 16, 16, 2
    E = N * deg
    T = E * deg
    NR = 8
    dist = torch.rand(E).to(float)
    angle = (torch.rand(T) * torch.pi).to(float)
    centers = torch.linspace(0.0, 1.0, NR).to(float)
    ang_freq = torch.arange(1, L + 1).to(float)
    return {
        "m": _w((lambda *s: torch.randn(*s, dtype=torch.bfloat16) * 0.05)(E, De)),
        "idx_in": _w((lambda lo, hi, *s: torch.randint(lo, hi, s))(0, E, T).to(torch.int64)),
        "idx_out": _w((lambda lo, hi, *s: torch.randint(lo, hi, s))(0, E, T).to(torch.int64)),
        "dist": _w(dist),
        "angle": _w(angle),
        "centers": _w(centers),
        "ang_freq": _w(ang_freq),
        "w_rbf": _w((lambda *s: torch.randn(*s, dtype=torch.bfloat16) * 0.2)(NR, De)),
        "w_sbf": _w((lambda *s: torch.randn(*s, dtype=torch.bfloat16) * 0.2)(NR * L, De)),
        "w_down": _w((lambda *s: torch.randn(*s, dtype=torch.bfloat16) * 0.2)(De, De)),
        "w_up": _w((lambda *s: torch.randn(*s, dtype=torch.bfloat16) * 0.2)(De, De)),
    }

def reference(m, idx_in, idx_out, dist, angle, centers, ang_freq, w_rbf, w_sbf, w_down, w_up):
    E, De = m.shape[0], m.shape[1]
    NR = centers.shape[0]
    L = ang_freq.shape[0]
    rbf = torch.exp(-10.0 * (dist[:, None] - centers[None, :]) ** 2)
    cbf = torch.cos(ang_freq[None, :] * angle[:, None])
    rbf_t = rbf[idx_out]
    sbf = torch.reshape(rbf_t[:, :, None] * cbf[:, None, :], (-1, NR * L))
    x = (m[idx_in] @ w_down) * (sbf @ w_sbf)
    agg = _segment_sum(x, idx_out, E)
    return m + (agg @ w_up) * (rbf @ w_rbf)
```

```python
import re

TRANS = ("v_exp_f32", "v_log_f32", "v_rcp_f32", "v_rsq_f32", "v_sqrt_f32", "v_sin_f32", "v_cos_f32")

def regs_of(tok):
    tok = tok.strip()
    tok = tok.lstrip("-")
    m = re.fullmatch(r"([vs])(\d+)", tok)
    if m:
        return {(m.group(1), int(m.group(2)))}
    m = re.fullmatch(r"([vs])\[(\d+):(\d+)\]", tok)
    if m:
        return {(m.group(1), i) for i in range(int(m.group(2)), int(m.group(3)) + 1)}
    if tok == "vcc":
        return {("s", "vcc_lo"), ("s", "vcc_hi")}
    if tok in ("vcc_lo", "vcc_hi"):
        return {("s", tok)}
    if tok == "exec":
        return {("s", "exec")}
    return set()

class Ins:
    def __init__(self, text):
        self.text = text
        body = text.split(";")[0].strip()
        parts = body.split(None, 1)
        self.op = parts[0]
        rest = parts[1] if len(parts) > 1 else ""
        ops = [o.strip() for o in rest.split(",")]
        toks = []
        self.mods = ""
        for i, o in enumerate(ops):
            if " " in o:
                a, b = o.split(None, 1)
                toks.append(a)
                self.mods += " " + b
            else:
                toks.append(o)
        self.toks = toks
        op = self.op
        self.is_valu = op.startswith("v_") and not op.startswith("v_mfma")
        self.is_mfma = op.startswith("v_mfma")
        self.is_ds = op.startswith("ds_")
        self.is_vmem = op.startswith("buffer_") or op.startswith("global_")
        self.is_salu = op.startswith("s_")
        self.is_dpp = "_dpp" in op
        self.is_trans = any(op.startswith(t) for t in TRANS)
        self.dst = set()
        self.src = set()
        R = [regs_of(t) for t in toks]
        if self.is_valu or self.is_mfma:
            nd = 2 if ("_co_" in op) else 1
            for r in R[:nd]:
                self.dst |= r
            for r in R[nd:]:
                self.src |= r
            if op.startswith("v_cmpx"):
                self.dst |= {("s", "exec")}
            if op.startswith("v_fmac") or op.startswith("v_permlane"):
                self.src |= R[0]
            if op.startswith("v_permlane"):
                self.dst |= R[1]
            if self.is_mfma:
                self.srcC = R[3]
                self.srcAB = R[1] | R[2]
        elif self.is_ds:
            if op.startswith("ds_read") or "_rtn" in op or op.startswith("ds_bpermute"):
                self.dst = R[0]
                for r in R[1:]:
                    self.src |= r
            else:
                for r in R:
                    self.src |= r
        elif self.is_vmem:
            if "_load" in op:
                self.dst = R[0]
                for r in R[1:]:
                    self.src |= r
            else:
                for r in R:
                    self.src |= r
                self.data = R[0] if op.startswith("buffer_") else R[1]
        elif self.is_salu:
            if op.startswith("s_cmp") or op.startswith("s_cbranch") or op in ("s_branch", "s_waitcnt", "s_nop", "s_barrier", "s_endpgm", "s_setprio"):
                for r in R:
                    self.src |= r
            else:
                if R:
                    self.dst = R[0]
                for r in R[1:]:
                    self.src |= r
        self.states = 1
        if op == "s_nop":
            self.states = int(toks[0], 0) + 1

def isv(r): return r[0] == "v"
def iss(r): return r[0] == "s"

def need(p, c):
    n = 0
    pv = {r for r in p.dst if isv(r)}
    ps = {r for r in p.dst if iss(r)}
    if p.is_valu:
        if ps and c.is_valu and (ps - {("s", "exec")}) & c.src:
            n = max(n, 2)
            if c.op.startswith("v_readlane") or c.op.startswith("v_writelane"):
                n = max(n, 4)
        if ps and c.is_vmem and ps & c.src:
            n = max(n, 5)
        if c.is_dpp and pv & c.src:
            n = max(n, 2)
        if ("s", "exec") in ps:
            if c.is_dpp: n = max(n, 5)
            if c.is_mfma or c.op.startswith("v_readlane") or c.op.startswith("v_readfirstlane") or c.op.startswith("v_permlane"):
                n = max(n, 4)
        if (c.op.startswith("v_readlane") or c.op.startswith("v_readfirstlane")) and pv & c.src:
            n = max(n, 1)
        if p.is_trans and c.is_valu and not c.is_trans and pv & c.src:
            n = max(n, 1)
        if p.is_trans and c.is_mfma and pv & c.src:
            n = max(n, 2)
        if ("dst_sel:WORD" in p.mods or "dst_sel:BYTE" in p.mods or "op_sel" in p.mods) and c.is_valu and pv & (c.src | c.dst):
            n = max(n, 1)
        if c.is_mfma and pv & c.src:
            n = max(n, 2)
        if c.op.startswith("v_permlane") and pv & (c.src | c.dst):
            n = max(n, 2)
    if p.is_mfma:
        if c.is_mfma:
            if pv & c.srcAB: n = max(n, 8)
            if pv & c.srcC and pv != c.srcC: n = max(n, 6)
            if pv & c.srcC and p.op != c.op: n = max(n, 6)
            if pv & c.dst and not (pv & c.srcC): n = max(n, 8)
        elif c.is_valu:
            if pv & (c.src | c.dst): n = max(n, 8)
            if p.srcC & c.dst: n = max(n, 3)
        elif c.is_ds or c.is_vmem:
            if pv & (c.src | c.dst): n = max(n, 8)
    if p.is_vmem and "_store" in p.op and ("x4" in p.op or "x3" in p.op):
        if p.data & c.dst:
            n = max(n, 2 if c.is_valu else 1)
    return n

def check_seq(seq, where, errs):
    for i, c in enumerate(seq):
        dist = 0
        for j in range(i - 1, -1, -1):
            p = seq[j]
            if dist >= 10:
                break
            n = need(p, c)
            if n > dist:
                errs.add(f"{where}: need {n} states, have {dist}: [{p.text.strip()}] -> [{c.text.strip()}]")
            dist += p.states

class Asm:
    def __init__(self):
        self.lines = []
    def __call__(self, s):
        for l in s.strip("\n").split("\n"):
            self.lines.append(l)
    def label(self, l):
        self.lines.append(l + ":")
    def text(self):
        return "\n".join(self.lines) + "\n"
    def check(self):
        items = []
        for l in self.lines:
            b = l.split(";")[0].strip()
            if not b or b.startswith("."):
                items.append(("dir", b)); continue
            if b.endswith(":"):
                items.append(("label", b[:-1])); continue
            items.append(("ins", Ins(l)))
        errs = set()
        run = []
        for k, x in items:
            if k == "ins":
                run.append(x)
                if x.op in ("s_branch", "s_endpgm"):
                    check_seq(run, "linear", errs); run = []
        check_seq(run, "linear", errs)
        labels = {x: i for i, (k, x) in enumerate(items) if k == "label"}
        for i, (k, x) in enumerate(items):
            if k == "ins" and (x.op.startswith("s_cbranch") or x.op == "s_branch"):
                tgt = x.toks[0]
                tail = []
                j = i
                while j >= 0 and len(tail) < 14:
                    kk, xx = items[j]
                    if kk == "ins":
                        if j != i and xx.op in ("s_branch", "s_endpgm"): break
                        tail.insert(0, xx)
                    j -= 1
                head = []
                j = labels[tgt]
                while j < len(items) and len(head) < 14:
                    kk, xx = items[j]
                    if kk == "ins":
                        head.append(xx)
                        if xx.op in ("s_branch", "s_endpgm"): break
                    j += 1
                check_seq(tail + head, "edge->" + tgt, errs)
        return sorted(errs)
```

```python
import sys, os
sys.path.insert(0, os.path.dirname(__file__))
from asmlib import Asm

NAME = "gather_scatter__molecular_angular_gemnet__graph"
E = 400000
NCH, CH = 250, 25600
EB = 1568
K = 6
MJ, MK = 2739138, 59232
TABOFF = 0x2800000
CAROFF = 0x3000000
CARCAP = 9216
CARLIST = CARCAP * 8
OPT = dict(itcap=64, ld_nt=1, st_nt=0, mtouch=1)
for a in sys.argv[2:]:
    k, v = a.split("=")
    OPT[k] = int(v)

def v(i, n=1):
    return f"v{i}" if n == 1 else f"v[{i}:{i+n-1}]"
def s(i, n=1):
    return f"s{i}" if n == 1 else f"s[{i}:{i+n-1}]"

def srd(a, d, lo, hi, add, size):
    if add is None:
        a(f"  s_mov_b32 s{d}, s{lo}\n  s_mov_b32 s{d+1}, s{hi}")
    else:
        a(f"  s_add_u32 s{d}, s{lo}, {add}\n  s_addc_u32 s{d+1}, s{hi}, 0")
    a(f"  s_mov_b32 s{d+2}, {size}\n  s_mov_b32 s{d+3}, 0x20000")

P1_CNT, P1_SENT, P1_TMP, P1_REC = 0, 6144, 6160, 6272
P1_LDS = P1_REC + CH * 6

def gen_p1(a):
    O, I, A, R = 8, 36, 64, 80
    T = 108
    nt = " nt" if OPT["ld_nt"] else ""
    a(".p2align 8")
    a.label("bin_kernel")
    a(f"""
  s_cmp_ge_u32 s2, {NCH}
  s_cbranch_scc1 L_bin_end
  s_load_dwordx2 s[4:5], s[0:1], 0
  s_load_dwordx4 s[8:11], s[0:1], 8
  s_load_dwordx2 s[6:7], s[0:1], 32
  s_load_dwordx2 s[12:13], s[0:1], 104
  v_lshlrev_b32 v1, 4, v0
  v_lshlrev_b32 v2, 3, v0
  v_lshlrev_b32 v3, 2, v0
  v_lshlrev_b32 v4, 1, v0
  v_lshlrev_b32 v5, 7, v0
  s_mul_i32 s14, s2, {CH*4}
  s_mul_i32 s15, s2, {CH*2}
  s_mul_i32 s52, s2, {CH*6}
  s_lshl_b32 s53, s2, 5""")
    for q in range(1, 7):
        a(f"  s_mov_b32 s{39+q}, {q*16384}\n  s_mov_b32 s{45+q}, {q*8192}")
    a("  s_waitcnt lgkmcnt(0)")
    srd(a, 20, 10, 11, "s14", CH * 4)
    srd(a, 16, 8, 9, "s14", CH * 4)
    so4 = lambda q: "0" if q == 0 else f"s{39+q}"
    so2 = lambda q: "0" if q == 0 else f"s{45+q}"
    for q in range(6):
        a(f"  buffer_load_dwordx4 {v(O+4*q,4)}, v1, s[20:23], {so4(q)} offen{nt}")
        a(f"  buffer_load_dwordx4 {v(I+4*q,4)}, v1, s[16:19], {so4(q)} offen{nt}")
    a(f"  buffer_load_dword {v(O+24)}, v3, s[20:23], {so4(6)} offen{nt}")
    a(f"  buffer_load_dword {v(I+24)}, v3, s[16:19], {so4(6)} offen{nt}")
    srd(a, 24, 6, 7, "s15", CH * 2)
    srd(a, 28, 4, 5, "s15", CH * 2)
    for q in range(6):
        a(f"  buffer_load_dwordx2 {v(A+2*q,2)}, v2, s[24:27], {so2(q)} offen{nt}")
    a(f"  buffer_load_ushort {v(A+12)}, v4, s[24:27], {so2(6)} offen{nt}")
    ntail = 7
    if OPT["mtouch"]:
        a(f"  buffer_load_dword v6, v5, s[28:31], 0 offen")
        ntail = 8
    srd(a, 32, 12, 13, "s52", CH * 6)
    srd(a, 36, 12, 13, TABOFF, 256 * 8192)
    a(f"""
  v_mov_b32 {v(T)}, 0
  v_mov_b32 {v(T+1)}, 0
  v_mov_b32 {v(T+2)}, 0
  v_mov_b32 {v(T+3)}, 0
  v_mov_b32 v7, 1
  ds_write_b128 v1, {v(T,4)}
  v_lshrrev_b32 {v(T+4)}, 6, v0
  s_mov_b32 s54, {MJ}
  s_mov_b32 s55, {MK}
  s_mov_b32 s56, {-EB & 0xffffffff}
  v_readfirstlane_b32 s57, {v(T+4)}
  s_waitcnt lgkmcnt(0)
  s_barrier""")
    def hist(idx):
        n = len(idx)
        for x, i in enumerate(idx): a(f"  v_mul_hi_u32_u24 {v(T+x)}, s54, {v(O+i)}")
        for x, i in enumerate(idx): a(f"  v_mul_hi_u32_u24 {v(T+4+x)}, s55, {v(I+i)}")
        for x, i in enumerate(idx): a(f"  v_mad_i32_i24 {v(T+8+x)}, {v(T+x)}, s56, {v(O+i)}")
        for x, i in enumerate(idx): a(f"  v_lshl_add_u32 {v(O+i)}, {v(T+4+x)}, 8, {v(T+x)}")
        for x, i in enumerate(idx): a(f"  v_lshlrev_b32 {v(O+i)}, 2, {v(O+i)}")
        for x, i in enumerate(idx): a(f"  ds_add_rtn_u32 {v(R+i)}, {v(O+i)}, v7")
        for x, i in enumerate(idx): a(f"  v_lshl_or_b32 {v(I+i)}, {v(T+8+x)}, 20, {v(I+i)}")
        for x, i in enumerate(idx): a(f"  v_or_b32 {v(I+i)}, 0x80000000, {v(I+i)}")
    for q in range(7):
        a(f"  s_waitcnt vmcnt({ntail + 14 - 2*(q+1)})")
        hist(list(range(4*q, 4*q+4)) if q < 6 else [24])
    a(f"""
  s_waitcnt lgkmcnt(0)
  s_barrier
  s_cmp_ge_u32 s57, {K}
  s_cbranch_scc1 L_bin_s1
  ds_read_b128 {v(T,4)}, v1
  v_and_b32 {v(T+8)}, 63, v0
  s_waitcnt lgkmcnt(0)
  v_add_u32 {v(T+1)}, {v(T)}, {v(T+1)}
  v_add_u32 {v(T+2)}, {v(T+1)}, {v(T+2)}
  v_add_u32 {v(T+3)}, {v(T+2)}, {v(T+3)}
  v_mov_b32 {v(T+4)}, {v(T+3)}""")
    X = v(T+4)
    for sh in (1, 2, 4, 8):
        a(f"  s_nop 1\n  v_add_u32_dpp {X}, {X}, {X} row_shr:{sh} row_mask:0xf bank_mask:0xf bound_ctrl:0")
    a(f"  s_nop 1\n  v_add_u32_dpp {X}, {X}, {X} row_bcast:15 row_mask:0xa bank_mask:0xf")
    a(f"  s_nop 1\n  v_add_u32_dpp {X}, {X}, {X} row_bcast:31 row_mask:0xc bank_mask:0xf")
    a(f"""
  v_cmp_lt_u32 vcc, s57, {v(T+8)}
  v_readlane_b32 s58, {X}, 63
  v_lshlrev_b32 {v(T+9)}, 2, {v(T+8)}
  s_and_b32 vcc_lo, vcc_lo, 0xff
  s_mov_b32 vcc_hi, 0
  v_mov_b32 {v(T+10)}, s58
  s_mov_b64 exec, vcc
  ds_add_u32 {v(T+9)}, {v(T+10)} offset:{P1_TMP}
  s_mov_b64 exec, -1
  s_waitcnt lgkmcnt(0)""")
    a.label("L_bin_s1")
    a(f"""
  s_barrier
  s_cmp_ge_u32 s57, {K}
  s_cbranch_scc1 L_bin_s2
  s_lshl_b32 s58, s57, 2
  v_mov_b32 {v(T+9)}, s58
  ds_read_b32 {v(T+9)}, {v(T+9)} offset:{P1_TMP}
  v_sub_u32 {X}, {X}, {v(T+3)}
  v_mov_b32 {v(T+10)}, {CH}
  v_mov_b32 {v(T+11)}, 0
  s_waitcnt lgkmcnt(0)
  v_add_u32 {v(T+4)}, {X}, {v(T+9)}
  v_add_u32 {v(T+5)}, {v(T+4)}, {v(T)}
  v_add_u32 {v(T+6)}, {v(T+4)}, {v(T+1)}
  v_add_u32 {v(T+7)}, {v(T+4)}, {v(T+2)}
  ds_write_b128 v1, {v(T+4,4)}
  ds_write_b32 {v(T+11)}, {v(T+10)} offset:{P1_SENT}
  s_waitcnt lgkmcnt(0)""")
    a.label("L_bin_s2")
    a("  s_barrier")
    for i in range(25):
        a(f"  ds_read_b32 {v(O+i)}, {v(O+i)}")
    a(f"  v_mov_b32 v2, 6\n  v_mov_b32 v3, 2")
    for g in range(0, 25, 5):
        idx = list(range(g, g+5))
        a("  s_waitcnt lgkmcnt(10)")
        for i in idx: a(f"  v_add_u32 {v(O+i)}, {v(O+i)}, {v(R+i)}")
        for i in idx: a(f"  v_mad_u32_u24 {v(O+i)}, {v(O+i)}, v2, v3")
        for i in idx: a(f"  v_and_b32 {v(R+i)}, -4, {v(O+i)}")
        for i in idx: a(f"  ds_write_b32 {v(R+i)}, {v(I+i)} offset:{P1_REC}")
    for i in range(25): a(f"  v_and_b32 {v(R+i)}, 2, {v(O+i)}")
    for i in range(25): a(f"  v_lshl_add_u32 {v(O+i)}, {v(R+i)}, 1, {v(O+i)}")
    a(f"  s_waitcnt vmcnt({1 if OPT['mtouch'] else 0})")
    for q in range(13):
        a(f"  v_and_b32 {v(A+q)}, 0x7fff7fff, {v(A+q)}")
    for i in range(25):
        op = "ds_write_b16_d16_hi" if (i & 1) else "ds_write_b16"
        a(f"  {op} {v(O+i)}, {v(A + i//2)} offset:{P1_REC-2}")
    a("  s_waitcnt lgkmcnt(0)\n  s_barrier")
    a(f"  v_add_u32 v2, {P1_REC+4*16384}, v1\n  v_add_u32 v3, {P1_REC+8*16384}, v1\n  v_add_u32 v4, {P1_REC}, v1")
    for r in range(10):
        base = ("v4", "v2", "v3")[r // 4]
        a(f"  ds_read_b128 {v(8+4*r,4)}, {base} offset:{(r%4)*16384}")
    for q in range(7, 10):
        a(f"  s_mov_b32 s{39+q}, {q*16384}")
    snt = " nt" if OPT["st_nt"] else ""
    for r in range(10):
        a(f"  s_waitcnt lgkmcnt({9-r})")
        a(f"  buffer_store_dwordx4 {v(8+4*r,4)}, v1, s[32:35], {so4(r)} offen{snt}")
    a(f"""
  s_cmp_lt_u32 s57, 12
  s_cbranch_scc1 L_bin_end
  v_and_b32 {v(T+12)}, 0xff, v0
  v_lshlrev_b32 {v(T+13)}, 2, {v(T+12)}
  v_lshlrev_b32 {v(T+12)}, 13, {v(T+12)}""")
    for k in range(K):
        a(f"  ds_read_b32 {v(T+k)}, {v(T+13)} offset:{k*1024}")
        a(f"  ds_read_b32 {v(T+6+k)}, {v(T+13)} offset:{k*1024+4}")
    a("  s_waitcnt lgkmcnt(0)")
    for k in range(K):
        a(f"  v_sub_u32 {v(T+6+k)}, {v(T+6+k)}, {v(T+k)}")
    for k in range(K):
        a(f"  v_lshl_or_b32 {v(T+k)}, {v(T+6+k)}, 16, {v(T+k)}")
    a(f"""
  buffer_store_dwordx4 {v(T,4)}, {v(T+12)}, s[36:39], s53 offen
  buffer_store_dwordx2 {v(T+4,2)}, {v(T+12)}, s[36:39], s53 offen offset:16""")
    a.label("L_bin_end")
    a("  s_endpgm")

TS = 264
BUFSZ = 200 * TS
S_OFF = 2 * BUFSZ
CTL = S_OFF + 8192
P2_LDS = 114688
D = 5
NT = 25

class RA:
    def __init__(self, start): self.n = start
    def __call__(self, k=1, al=1):
        self.n = (self.n + al - 1) // al * al
        r = self.n; self.n += k
        return r

def gen_p2(a):
    ra = RA(1)
    vSlot, vHalf, vFreq, vSst, vSrd, vI6, vI1, vI4 = (ra() for _ in range(8))
    vRd, vCntA, vOne, vOOB, vCarOff, vCarIdx, v264, vMsk, vCtlN = (ra() for _ in range(9))
    vZ = ra(2, 2)
    Q = ra(6, 4)
    sA, nA, cb, rem, rtot, vA6, vB6, vR0, vRT4 = (ra() for _ in range(9))
    vCnt = ra()
    Wa = ra(4, 4); Wb = ra(4, 4)
    RING = [ra(4, 4) for _ in range(D)]
    Da = ra(4, 4); Db = ra(4, 4); P = ra(4, 4); Sf = ra(4, 4)
    ACC = [ra(4, 4) for _ in range(NT)]
    REC = [ra(2, 4 if i == 0 else 2) for i in range(17)]
    RP = [ra(2, 2), ra(2, 2)]
    T = ra(10, 2)
    WS0 = ra(2, 2); WS1 = ra(2, 2); WR = ra(2, 2); WUP = ra(2, 2); CEN = ra(2)
    CC = [ra() for _ in range(D)]; SA = [ra() for _ in range(D)]
    TA = [ra(), ra()]; RK = [ra(), ra()]
    assert ra.n <= 256, ra.n
    NV = ra.n
    sM = 4; sREC = 8; sCAR = 12; sTAB = 16; sOUT = 20; sDIST = 24; sMW = 28
    sJ, sW, sIt, sThr, sIns, sCarW, sCarR, sDid, sCin, sX, sFl, sEb = range(32, 44)
    sCnt = [44, 45]
    sMk = [76, 78]; sT = 80
    rare = []

    a(".p2align 8")
    a.label(NAME + "_kernel")
    a(f"""
  s_cmp_ge_u32 s2, 256
  s_cbranch_scc1 L_end
  s_load_dwordx16 s[48:63], s[0:1], 0
  s_load_dwordx8 s[64:71], s[0:1], 64
  s_load_dwordx2 s[72:73], s[0:1], 104
  s_and_b32 s{sJ}, s2, 7
  s_lshl_b32 s{sJ}, s{sJ}, 5
  s_lshr_b32 s{sX}, s2, 3
  s_add_u32 s{sJ}, s{sJ}, s{sX}
  v_lshrrev_b32 {v(T)}, 6, v0
  v_and_b32 {v(T+1)}, 63, v0
  v_and_b32 {v(vSlot)}, 31, v0
  v_readfirstlane_b32 s{sW}, {v(T)}
  v_and_b32 {v(T+2)}, 15, v0
  v_bfe_u32 {v(T+3)}, v0, 5, 1
  v_lshlrev_b32 {v(vHalf)}, 4, {v(T+3)}
  v_lshl_add_u32 {v(cb)}, {v(T)}, 5, {v(vHalf)}
  v_add_u32 {v(cb)}, {v(cb)}, {v(T+2)}
  v_lshlrev_b32 {v(T+4)}, 5, {v(cb)}
  s_lshl_b32 s{sX}, s{sJ}, 13
  s_add_u32 s{sX}, s{sX}, {TABOFF}
  s_mul_i32 s{sFl}, s{sJ}, {2*CARLIST}
  s_add_u32 s{sFl}, s{sFl}, {CAROFF}
  s_waitcnt lgkmcnt(0)""")
    srd(a, sTAB, 72, 73, f"s{sX}", NCH * 32)
    a(f"""
  buffer_load_dwordx4 {v(Q,4)}, {v(T+4)}, {s(sTAB,4)}, 0 offen
  buffer_load_dwordx2 {v(Q+4,2)}, {v(T+4)}, {s(sTAB,4)}, 0 offen offset:16""")
    srd(a, sM, 48, 49, None, E * 32)
    srd(a, sREC, 72, 73, None, NCH * CH * 6)
    srd(a, sCAR, 72, 73, f"s{sFl}", 2 * CARLIST)
    srd(a, sDIST, 54, 55, None, E * 2)
    a(f"""
  s_mul_i32 s{sEb}, s{sJ}, {EB}
  s_mul_i32 s{sX}, s{sW}, 200
  s_add_u32 s{sFl}, s{sEb}, {EB}
  s_add_u32 s{sEb}, s{sEb}, s{sX}
  s_add_u32 s{sX}, s{sEb}, 200
  s_min_u32 s{sX}, s{sX}, s{sFl}
  s_min_u32 s{sX}, s{sX}, {E}
  s_lshl_b32 s{sX}, s{sX}, 5""")
    srd(a, sOUT, 70, 71, None, f"s{sX}")
    srd(a, sMW, 48, 49, None, f"s{sX}")
    ST = ACC[0]
    g4 = T + 5
    a(f"""
  v_lshlrev_b32 {v(T+6)}, 1, {v(T+2)}
  v_lshl_add_u32 {v(T+7)}, {v(T+3)}, 8, {v(T+6)}
  v_bfe_u32 {v(g4)}, v0, 4, 2""")
    for r in range(8):
        a(f"  global_load_ushort {v(ST+r)}, {v(T+7)}, s[66:67] offset:{r*32}")
    a(f"""
  v_lshl_add_u32 {v(T+7)}, {v(g4)}, 7, {v(T+6)}
  v_lshl_add_u32 {v(T+8)}, {v(g4)}, 6, {v(T+6)}
  v_lshlrev_b32 {v(T+9)}, 2, {v(g4)}
  v_lshlrev_b32 {v(T+6)}, 1, {v(T+3)}""")
    for r in range(4):
        a(f"  global_load_ushort {v(ST+8+r)}, {v(T+7)}, s[64:65] offset:{r*32}")
    for r in range(4):
        a(f"  global_load_ushort {v(ST+12+r)}, {v(T+7)}, s[68:69] offset:{r*32}")
    for r in range(2):
        a(f"  global_load_ushort {v(ST+16+r)}, {v(T+8)}, s[62:63] offset:{r*32}")
    a(f"  global_load_dword {v(ST+18)}, {v(T+9)}, s[58:59]")
    a(f"  global_load_ushort {v(ST+19)}, {v(T+6)}, s[60:61]")
    a(f"""
  v_mov_b32 {v(Da)}, 0
  v_mov_b32 {v(Da+1)}, 0
  v_mov_b32 {v(Da+2)}, 0
  v_mov_b32 {v(Da+3)}, 0
  v_lshlrev_b32 {v(Db)}, 4, v0
  v_add_u32 {v(Db+1)}, {7*8192}, {v(Db)}""")
    for r in range(14):
        a(f"  ds_write_b128 {v(Db + r//7)}, {v(Da,4)} offset:{(r%7)*8192}")
    a(f"""
  v_mov_b32 {v(vZ)}, 0
  v_mov_b32 {v(vZ+1)}, 0
  v_mov_b32 {v(vOne)}, 1
  v_mov_b32 {v(vOOB)}, 0x80000000
  v_mov_b32 {v(v264)}, {TS}
  v_mov_b32 {v(vMsk)}, 0x7ffffffc
  v_mul_u32_u24 {v(vI6)}, 6, {v(vSlot)}
  v_add_u32 {v(vI1)}, 1, {v(vSlot)}
  v_lshlrev_b32 {v(vI4)}, 2, {v(vI1)}
  v_sub_u32 {v(vCarIdx)}, 511, v0
  v_lshlrev_b32 {v(vCarOff)}, 3, {v(vCarIdx)}
  s_lshl_b32 s{sX}, s{sW}, 10
  s_add_u32 s{sX}, s{sX}, {S_OFF}
  v_lshl_add_u32 {v(vSrd)}, {v(T+1)}, 4, s{sX}
  v_bfe_u32 {v(T+6)}, v0, 2, 2
  v_lshlrev_b32 {v(vSst)}, 8, {v(T+6)}
  v_lshl_add_u32 {v(vSst)}, {v(T+3)}, 7, {v(vSst)}
  v_bfe_u32 {v(T+6)}, v0, 4, 1
  v_lshl_add_u32 {v(vSst)}, {v(T+6)}, 3, {v(vSst)}
  v_and_b32 {v(T+6)}, 3, v0
  v_lshl_add_u32 {v(vSst)}, {v(T+6)}, 1, {v(vSst)}
  v_add_u32 {v(vSst)}, s{sX}, {v(vSst)}
  s_mul_i32 s{sX}, s{sW}, {NT*TS}
  s_add_u32 s{sX}, s{sX}, {BUFSZ}
  v_lshl_add_u32 {v(vRd)}, {v(vSlot)}, 3, s{sX}
  v_min_u32 {v(T+6)}, {NT-1}, {v(T+1)}
  v_mad_u32_u24 {v(vCntA)}, {v(T+6)}, {v(v264)}, s{sX}
  v_mov_b32 {v(T+6)}, {CH}
  v_mul_u32_u24 {v(cb)}, {v(cb)}, {v(T+6)}
  v_mov_b32 {v(sA)}, 0
  v_mov_b32 {v(nA)}, 0
  v_mov_b32 {v(rtot)}, 0
  v_mov_b32 {v(vCtlN)}, {CTL}
  s_mov_b32 s{sIt}, -1
  s_mov_b32 s{sThr}, 0
  s_mov_b32 s{sIns}, 0
  s_mov_b32 s{sCarW}, 0
  s_mov_b32 s{sCarR}, {CARLIST}
  s_mov_b32 s{sDid}, 0""")

    def state_update():
        a(f"""
  v_sub_u32 {v(rem)}, {v(rem)}, {v(rtot)}
  v_lshrrev_b32 {v(T)}, 16, {v(Q)}
  v_and_b32 {v(T+1)}, 0xffff, {v(Q)}
  v_min_u32 {v(vR0)}, 32, {v(nA)}
  v_cmp_ge_u32 vcc, 32, {v(nA)}
  v_sub_u32 {v(T+2)}, 32, {v(vR0)}
  v_min_u32 {v(T+2)}, {v(T)}, {v(T+2)}
  v_add_u32 {v(vA6)}, {v(cb)}, {v(sA)}
  v_mul_u32_u24 {v(vA6)}, 6, {v(vA6)}
  v_add_u32 {v(vB6)}, {v(cb)}, {v(T+1)}
  v_mul_u32_u24 {v(vB6)}, 6, {v(vB6)}
  v_mad_i32_i24 {v(vB6)}, {v(vR0)}, -6, {v(vB6)}
  v_add_u32 {v(rtot)}, {v(vR0)}, {v(T+2)}
  v_lshlrev_b32 {v(vRT4)}, 2, {v(rtot)}
  v_add_u32 {v(sA)}, 32, {v(sA)}
  v_subrev_u32 {v(nA)}, 32, {v(nA)}
  v_add_u32 {v(T+1)}, {v(T+1)}, {v(T+2)}
  v_sub_u32 {v(T)}, {v(T)}, {v(T+2)}
  v_cndmask_b32 {v(sA)}, {v(sA)}, {v(T+1)}, vcc
  v_cndmask_b32 {v(nA)}, {v(nA)}, {v(T)}, vcc""")
        for i in range(K - 1):
            a(f"  v_cndmask_b32 {v(Q+i)}, {v(Q+i)}, {v(Q+i+1)}, vcc")
        a(f"  v_cndmask_b32 {v(Q+K-1)}, {v(Q+K-1)}, {v(vZ)}, vcc")

    def rec_load(u, t0):
        bc = f"row_newbcast:{u} row_mask:0xf bank_mask:0xf"
        a(f"""
  v_sub_co_u32_dpp {v(t0)}, vcc, {v(vR0)}, {v(vI1)} {bc}
  v_add_u32_dpp {v(t0)}, {v(vA6)}, {v(vI6)} {bc}
  v_add_u32_dpp {v(t0+1)}, {v(vB6)}, {v(vI6)} {bc}
  v_cndmask_b32 {v(t0)}, {v(t0)}, {v(t0+1)}, vcc
  v_sub_u32_dpp {v(t0+1)}, {v(vRT4)}, {v(vI4)} {bc}
  v_bfi_b32 {v(t0)}, {v(vMsk)}, {v(t0)}, {v(t0+1)}
  buffer_load_dwordx2 {v(REC[u],2)}, {v(t0)}, {s(sREC,4)}, 0 offen""")

    def ins1(u, t0, thr):
        p = u & 1
        a(f"""
  v_min_i32 {v(t0)}, {v(REC[u])}, {v(REC[u]+1)}
  v_cmp_gt_i32 {s(sMk[p],2)}, {thr}, {v(t0)}
  v_bfe_u32 {v(t0)}, {v(t0)}, 23, 8
  v_mad_u32_u24 {v(TA[p])}, {v(t0)}, {v(v264)}, s{sIns}
  s_mov_b64 exec, {s(sMk[p],2)}
  ds_add_rtn_u32 {v(RK[p])}, {v(TA[p])}, {v(vOne)}
  s_mov_b64 exec, -1""")

    def ins2(u, tag):
        p = u & 1
        lab = f"{tag}_{u}"
        a(f"""
  s_mov_b64 exec, {s(sMk[p],2)}
  v_cmp_lt_u32 vcc, 31, {v(RK[p])}
  v_lshl_add_u32 {v(TA[p])}, {v(RK[p])}, 3, {v(TA[p])}
  s_cbranch_vccnz L_rare_{lab}""")
        a.label(f"L_back_{lab}")
        a(f"""
  ds_write_b64 {v(TA[p])}, {v(REC[u],2)} offset:8
  s_mov_b64 exec, -1""")
        rare.append((lab, u, p))

    a("  s_waitcnt vmcnt(20)")
    a(f"  v_lshrrev_b32 {v(rem)}, 16, {v(Q)}")
    for i in range(1, K):
        a(f"  v_lshrrev_b32 {v(T)}, 16, {v(Q+i)}\n  v_add_u32 {v(rem)}, {v(rem)}, {v(T)}")
    state_update()
    for u in range(16):
        rec_load(u, T + 4 + 2 * (u & 1))
    a("  s_waitcnt vmcnt(16)")
    a(f"  v_bfe_u32 {v(T)}, v0, 4, 1\n  v_cmp_eq_u32 vcc, 1, {v(T)}")
    for r in range(4):
        a(f"  v_lshl_or_b32 {v(ST+2*r)}, {v(ST+2*r+1)}, 16, {v(ST+2*r)}")
    for r in range(4):
        a(f"  v_cndmask_b32 {v(Wa+r)}, {v(ST+2*r)}, {v(vZ)}, vcc")
        a(f"  v_cndmask_b32 {v(Wb+r)}, {v(vZ)}, {v(ST+2*r)}, vcc")
    a(f"""
  v_lshl_or_b32 {v(WS0)}, {v(ST+10)}, 16, {v(ST+8)}
  v_lshl_or_b32 {v(WS1)}, {v(ST+11)}, 16, {v(ST+9)}
  v_lshl_or_b32 {v(WUP)}, {v(ST+13)}, 16, {v(ST+12)}
  v_lshl_or_b32 {v(WUP+1)}, {v(ST+15)}, 16, {v(ST+14)}
  v_lshl_or_b32 {v(WR)}, {v(ST+17)}, 16, {v(ST+16)}
  v_mov_b32 {v(WS0+1)}, 0
  v_mov_b32 {v(WS1+1)}, 0
  v_mov_b32 {v(WR+1)}, 0
  v_lshlrev_b32 {v(CEN)}, 16, {v(ST+18)}
  v_and_b32 {v(CEN+1)}, 0xffff0000, {v(ST+18)}
  v_lshlrev_b32 {v(vFreq)}, 16, {v(ST+19)}""")
    for t in range(NT):
        for r in range(4): a(f"  v_mov_b32 {v(ACC[t]+r)}, 0")
    for q in range(D):
        for r in range(4): a(f"  v_mov_b32 {v(RING[q]+r)}, 0")
        a(f"  v_mov_b32 {v(CC[q])}, 0\n  v_mov_b32 {v(SA[q])}, {v(vSst)}")
    state_update()
    a("  s_waitcnt lgkmcnt(0)\n  s_barrier")
    a(f"  ds_write_b32 {v(vCtlN)}, {v(vOne)} offset:4")
    for u in range(17):
        if u < 16:
            a(f"  s_waitcnt vmcnt({15 if u == 0 else 14})")
            ins1(u, T, "0")
        if u > 0:
            a(f"  s_waitcnt lgkmcnt(0)" if u == 16 else "  s_waitcnt lgkmcnt(0)")
            ins2(u - 1, "pro")
            rec_load(u - 1, T + 4)
    a("  s_branch L_turn")

    INS0 = 4
    order = []
    for t in range(NT):
        if t == 0: order.append(("car", 16))
        u2 = t - INS0 - 1
        if 0 <= u2 < 16: order.append(("rec", u2))
        order.append(("W", t))
        order.append(("g", t))
    ops = [x for x in order if x[0] != "W"]
    def younger(target, at):
        n = len(order); i = order.index(target); cnt = 0
        j = (i + 1) % n
        while j != at:
            if order[j][0] != "W": cnt += 1
            j = (j + 1) % n
        return cnt

    def cstage_head(q):
        a(f"""
  ds_write_b16 {v(SA[q])}, {v(CC[q])}
  ds_read_b128 {v(Sf,4)}, {v(vSrd)}
  ds_write_b16 {v(SA[q])}, {v(vZ)}""")
    def cstage_m1(q):
        a(f"""
  v_mfma_f32_16x16x32_bf16 {v(Da,4)}, {v(RING[q],4)}, {v(Wa,4)}, 0
  v_mfma_f32_16x16x32_bf16 {v(Db,4)}, {v(RING[q],4)}, {v(Wb,4)}, 0""")
    def cstage_cvt():
        a(f"""
  v_cvt_pk_bf16_f32 {v(P)}, {v(Da)}, {v(Da+1)}
  v_cvt_pk_bf16_f32 {v(P+1)}, {v(Da+2)}, {v(Da+3)}
  v_cvt_pk_bf16_f32 {v(P+2)}, {v(Db)}, {v(Db+1)}
  v_cvt_pk_bf16_f32 {v(P+3)}, {v(Db+2)}, {v(Db+3)}""")
    def cstage_m2(tc):
        a(f"  v_mfma_f32_16x16x32_bf16 {v(ACC[tc],4)}, {v(P,4)}, {v(Sf,4)}, {v(ACC[tc],4)}")

    a(".p2align 6")
    a.label("L_loop")
    for t in range(NT):
        q = t % D; tc = (t - D) % NT
        rp = RP[t & 1]; rn = RP[(t + 1) & 1]
        a(f"  ; ---- step {t}")
        a("  s_waitcnt lgkmcnt(0)")
        cstage_head(q)
        if t < NT - 1:
            a(f"  ds_read_b64 {v(rn,2)}, {v(vRd)} offset:{(t+1)*TS+8}")
            a(f"  v_readlane_b32 s{sCnt[(t+1)&1]}, {v(vCnt)}, {t+1}")
        if t == 0:
            a(f"""
  v_cmp_gt_u32 vcc, s{sCin}, {v(vCarIdx)}
  s_add_u32 s{sX}, s{sIt}, 2
  s_and_b32 s{sX}, s{sX}, 3
  s_lshl_b32 s{sX}, s{sX}, 3
  s_add_u32 s{sX}, s{sX}, {CTL}
  v_cndmask_b32 {v(T)}, {v(vOOB)}, {v(vCarOff)}, vcc
  buffer_load_dwordx2 {v(REC[16],2)}, {v(T)}, {s(sCAR,4)}, s{sCarR} offen sc1
  v_mov_b32 {v(T+1)}, s{sX}
  v_cmp_lt_u32 vcc, 0, {v(rem)}
  ds_write_b64 {v(T+1)}, {v(vZ,2)}
  ds_write_b32 {v(vCntA)}, {v(vZ)}
  s_or_b32 s{sX}, vcc_lo, vcc_hi
  s_or_b32 s{sX}, s{sX}, s{sCin}
  s_cbranch_scc0 L_noflag
  ds_write_b32 {v(vCtlN)}, {v(vOne)} offset:4""")
            a.label("L_noflag")
        if t == 1:
            a(f"  s_cmp_lg_u32 s{sThr}, 0\n  s_cbranch_scc1 L_nostate")
            state_update()
            a.label("L_nostate")
        u1 = t - INS0; u2 = u1 - 1
        if 0 <= u2 < 17:
            ins2(u2, "lp")
            if u2 < 16: rec_load(u2, T + 4)
        if 0 <= u1 < 17:
            pos = order.index(("W", t))
            if u1 < 16:
                n_first = (15 - u1) + sum(1 for x in order[:pos] if x[0] != "W")
                n = min(younger(("rec", u1), pos), n_first)
            else:
                n = younger(("car", 16), pos)
            a(f"  s_waitcnt vmcnt({min(n, 63)})")
            ins1(u1, T, f"s{sThr}" if u1 < 16 else "0")
        if t == INS0 + 18:
            a(f"  s_cmp_lg_u32 s{sThr}, 0\n  s_cbranch_scc1 L_slow")
            a.label("L_slow_back")
        n = younger(("g", tc), order.index(("W", t)))
        a(f"  s_waitcnt vmcnt({n})")
        cstage_m1(q)
        w, off, af, e = T, T + 1, T + 2, T + 3
        a(f"""
  v_min_i32 {v(w)}, {v(rp)}, {v(rp+1)}
  v_cmp_gt_i32 vcc, 0, {v(rp)}
  v_and_b32 {v(off)}, 0x7ffff, {v(w)}
  v_lshl_add_u32 {v(off)}, {v(off)}, 5, {v(vHalf)}
  v_cndmask_b32_sdwa {v(af)}, {v(rp)}, {v(rp+1)}, vcc dst_sel:WORD_1 dst_unused:UNUSED_PAD src0_sel:WORD_1 src1_sel:WORD_0
  v_cmp_gt_u32 vcc, s{sCnt[t&1]}, {v(vSlot)}
  v_bfe_u32 {v(e)}, {v(w)}, 20, 3
  v_mul_f32 {v(af)}, {v(af)}, {v(vFreq)}
  v_cndmask_b32 {v(off)}, {v(vOOB)}, {v(off)}, vcc
  buffer_load_dwordx4 {v(RING[q],4)}, {v(off)}, {s(sM,4)}, 0 offen""")
        cstage_cvt()
        a(f"""
  v_cvt_pk_bf16_f32 {v(af)}, 0, {v(af)}
  v_mul_f32 {v(af)}, 0.15915494, {v(af)}
  s_waitcnt lgkmcnt({2 if t < NT-1 else 1})""")
        cstage_m2(tc)
        a(f"""
  v_fract_f32 {v(af)}, {v(af)}
  v_cos_f32 {v(af)}, {v(af)}
  v_lshl_add_u32 {v(SA[q])}, {v(e)}, 4, {v(vSst)}
  v_cvt_pk_bf16_f32 {v(CC[q])}, {v(af)}, {v(af)}""")
    a.label("L_turn")
    a(f"""
  s_cmp_eq_u32 s{sDid}, 0
  s_cbranch_scc1 L_nodrain
  s_waitcnt vmcnt(0)
  s_mov_b32 s{sDid}, 0""")
    a.label("L_nodrain")
    a(f"""
  v_mov_b32 {v(T)}, {v(vCtlN)}
  s_add_u32 s{sIt}, s{sIt}, 1
  s_add_u32 s{sX}, s{sIt}, 1
  s_and_b32 s{sX}, s{sX}, 3
  s_lshl_b32 s{sX}, s{sX}, 3
  s_add_u32 s{sX}, s{sX}, {CTL}
  v_mov_b32 {v(vCtlN)}, s{sX}
  s_sub_u32 s{sX}, s{sIns}, {BUFSZ}
  s_add_u32 s{sX}, s{sX}, s{sIns}
  v_add_u32 {v(vRd)}, s{sX}, {v(vRd)}
  v_add_u32 {v(vCntA)}, s{sX}, {v(vCntA)}
  s_sub_u32 s{sIns}, {BUFSZ}, s{sIns}
  s_mov_b32 s{sCarR}, s{sCarW}
  s_sub_u32 s{sCarW}, {CARLIST}, s{sCarW}
  s_waitcnt lgkmcnt(0)
  s_barrier
  ds_read_b64 {v(T+2,2)}, {v(T)}
  ds_read_b32 {v(vCnt)}, {v(vCntA)}
  ds_read_b64 {v(RP[0],2)}, {v(vRd)} offset:8
  s_waitcnt lgkmcnt(1)
  v_readfirstlane_b32 s{sCin}, {v(T+2)}
  v_readfirstlane_b32 s{sFl}, {v(T+3)}
  v_readlane_b32 s{sCnt[0]}, {v(vCnt)}, 0
  s_cmp_gt_u32 s{sCin}, 512
  s_cselect_b32 s{sThr}, 0x80000000, 0
  s_min_u32 s{sCin}, s{sCin}, {CARCAP}
  s_cmp_lt_u32 s{sIt}, {OPT['itcap']}
  s_cselect_b32 s{sFl}, s{sFl}, 0
  s_cmp_lg_u32 s{sFl}, 0
  s_cbranch_scc1 L_loop""")

    MR = REC[0]
    DI = Q
    assert vRT4 - Q + 1 >= 13
    a(f"""
  v_and_b32 {v(T)}, 63, v0
  v_lshlrev_b32 {v(vI6)}, 4, {v(T)}
  v_and_b32 {v(T+1)}, 15, v0
  v_lshlrev_b32 {v(T+2)}, 1, {v(T+1)}
  s_lshl_b32 s{sX}, s{sEb}, 1
  s_lshl_b32 s{sEb}, s{sEb}, 5
  s_add_u32 s{sFl}, s{sEb}, 4096""")
    for p in range(13):
        a(f"  buffer_load_ushort {v(DI+p)}, {v(T+2)}, {s(sDIST,4)}, s{sX} offen offset:{p*32}")
    for r in range(7):
        a(f"  buffer_load_dwordx4 {v(MR+4*r,4)}, {v(vI6)}, {s(sMW,4)}, s{sEb if r < 4 else sFl} offen offset:{(r%4)*1024}")
    for q in range(D):
        cstage_head(q)
        a(f"  s_waitcnt vmcnt({20 + D - 1 - q})")
        cstage_m1(q)
        a("  s_nop 6")
        cstage_cvt()
        a("  s_waitcnt lgkmcnt(0)\n  s_nop 0")
        cstage_m2(NT - D + q)
    a(f"""
  s_mul_i32 s{sX}, s{sW}, 6656
  v_bfe_u32 {v(T+3)}, v0, 4, 2
  v_lshlrev_b32 {v(T+3)}, 3, {v(T+3)}
  v_lshl_add_u32 {v(vI1)}, {v(T+1)}, 5, {v(T+3)}
  v_add_u32 {v(vI1)}, s{sX}, {v(vI1)}
  v_add_u32 {v(vI4)}, s{sX}, {v(vI6)}
  s_mov_b32 s{sX}, 0xc1200000
  s_mov_b32 s{sCin}, 0x3fb8aa3b
  s_waitcnt vmcnt(7)""")
    G0, G1, RR, U = RING[0], RING[1], RING[2], RING[3]
    RB = RP[0]; AG = RP[1]; X = RING[4]
    a(f"  v_mov_b32 {v(RB+1)}, 0")
    a0, a1 = T, T + 1
    def rnd():
        a(f"""
  v_cvt_pk_bf16_f32 {v(a1)}, {v(a0)}, {v(a1)}
  v_lshlrev_b32 {v(a0)}, 16, {v(a1)}
  v_and_b32 {v(a1)}, 0xffff0000, {v(a1)}""")
    for p in range(13):
        t0 = ACC[2*p]; t1 = ACC[2*p+1] if 2*p+1 < NT else ACC[2*p-1]
        a(f"""
  v_lshlrev_b32 {v(a1)}, 16, {v(DI+p)}
  v_sub_f32 {v(a0)}, {v(a1)}, {v(CEN)}
  v_sub_f32 {v(a1)}, {v(a1)}, {v(CEN+1)}""")
        rnd()
        a(f"  v_mul_f32 {v(a0)}, {v(a0)}, {v(a0)}\n  v_mul_f32 {v(a1)}, {v(a1)}, {v(a1)}")
        rnd()
        a(f"  v_mul_f32 {v(a0)}, s{sX}, {v(a0)}\n  v_mul_f32 {v(a1)}, s{sX}, {v(a1)}")
        rnd()
        a(f"""
  v_mul_f32 {v(a0)}, s{sCin}, {v(a0)}
  v_mul_f32 {v(a1)}, s{sCin}, {v(a1)}
  v_exp_f32 {v(a0)}, {v(a0)}
  v_exp_f32 {v(a1)}, {v(a1)}""")
        a(f"  v_mov_b32 {v(X)}, {v(t0)}")
        a(f"  v_cvt_pk_bf16_f32 {v(RB)}, {v(a0)}, {v(a1)}")
        for r in range(1, 4): a(f"  v_mov_b32 {v(X+r)}, {v(t0+r)}")
        a(f"""
  v_mfma_f32_16x16x16_bf16 {v(G0,4)}, {v(WS0,2)}, {v(RB,2)}, 0
  v_mfma_f32_16x16x16_bf16 {v(G1,4)}, {v(WS1,2)}, {v(RB,2)}, 0
  v_mfma_f32_16x16x16_bf16 {v(RR,4)}, {v(WR,2)}, {v(RB,2)}, 0""")
        for r in range(4): a(f"  v_mov_b32_dpp {v(t0+r)}, {v(t1+r)} row_ror:8 row_mask:0xf bank_mask:0xc")
        for r in range(4): a(f"  v_mov_b32_dpp {v(t1+r)}, {v(X+r)} row_ror:8 row_mask:0xf bank_mask:0x3")
        for r in range(4): a(f"  v_mul_f32 {v(t0+r)}, {v(t0+r)}, {v(G0+r)}")
        for r in range(4): a(f"  v_fmac_f32 {v(t0+r)}, {v(t1+r)}, {v(G1+r)}")
        a(f"""
  v_cvt_pk_bf16_f32 {v(AG)}, {v(t0)}, {v(t0+1)}
  v_cvt_pk_bf16_f32 {v(AG+1)}, {v(t0+2)}, {v(t0+3)}
  s_nop 1
  v_mfma_f32_16x16x16_bf16 {v(U,4)}, {v(WUP,2)}, {v(AG,2)}, 0
  s_nop 7""")
        for r in range(4): a(f"  v_mul_f32 {v(U+r)}, {v(U+r)}, {v(RR+r)}")
        a(f"""
  v_cvt_pk_bf16_f32 {v(T+2)}, {v(U)}, {v(U+1)}
  v_cvt_pk_bf16_f32 {v(T+3)}, {v(U+2)}, {v(U+3)}
  ds_write_b64 {v(vI1)}, {v(T+2,2)} offset:{p*512}""")
    Y = ACC[0]
    for r in range(7):
        a(f"  ds_read_b128 {v(Y+4*r,4)}, {v(vI4)} offset:{r*1024}")
    a(f"  s_add_u32 s{sFl}, s{sEb}, 4096")
    for r in range(7):
        a(f"  s_waitcnt vmcnt({6}) lgkmcnt({6-r})")
        for x in range(4):
            m_, y_ = MR + 4*r + x, Y + 4*r + x
            a(f"""
  v_lshlrev_b32 {v(T)}, 16, {v(m_)}
  v_and_b32 {v(T+1)}, 0xffff0000, {v(m_)}
  v_lshlrev_b32 {v(T+2)}, 16, {v(y_)}
  v_and_b32 {v(T+3)}, 0xffff0000, {v(y_)}
  v_add_f32 {v(T)}, {v(T)}, {v(T+2)}
  v_add_f32 {v(T+1)}, {v(T+1)}, {v(T+3)}
  v_cvt_pk_bf16_f32 {v(y_)}, {v(T)}, {v(T+1)}""")
        a(f"  buffer_store_dwordx4 {v(Y+4*r,4)}, {v(vI6)}, {s(sOUT,4)}, s{sEb if r < 4 else sFl} offen offset:{(r%4)*1024}")
    a.label("L_end")
    a("  s_endpgm")

    a.label("L_slow")
    a(f"  s_mov_b32 s{sX}, 512")
    a.label("L_slow_loop")
    a(f"""
  v_add_u32 {v(T+1)}, s{sX}, {v(vCarIdx)}
  v_cmp_gt_u32 vcc, s{sCin}, {v(T+1)}
  v_lshlrev_b32 {v(T+1)}, 3, {v(T+1)}
  s_nop 0
  v_cndmask_b32 {v(T+1)}, {v(vOOB)}, {v(T+1)}, vcc
  buffer_load_dwordx2 {v(REC[16],2)}, {v(T+1)}, {s(sCAR,4)}, s{sCarR} offen sc1
  s_waitcnt vmcnt(0)""")
    ins1(16, T, "0")
    a("  s_waitcnt lgkmcnt(0)")
    ins2(16, "sl")
    a(f"""
  s_add_u32 s{sX}, s{sX}, 512
  s_cmp_lt_u32 s{sX}, s{sCin}
  s_cbranch_scc1 L_slow_loop
  s_branch L_slow_back""")
    for lab, u, p in rare:
        a.label(f"L_rare_{lab}")
        a(f"""
  s_mov_b64 {s(sT,2)}, exec
  s_mov_b64 exec, vcc
  ds_add_rtn_u32 {v(RK[p])}, {v(vCtlN)}, {v(vOne)}
  s_mov_b32 s{sDid}, 1
  s_waitcnt lgkmcnt(0)
  v_lshlrev_b32 {v(RK[p])}, 3, {v(RK[p])}
  buffer_store_dwordx2 {v(REC[u],2)}, {v(RK[p])}, {s(sCAR,4)}, s{sCarW} offen
  s_andn2_b64 exec, {s(sT,2)}, vcc
  s_branch L_back_{lab}""")
    return NV

def kd(name, nv, ns):
    nv4 = (nv + 3) // 4 * 4
    return f""".amdhsa_kernel {name}
  .amdhsa_next_free_vgpr {nv}
  .amdhsa_next_free_sgpr {ns}
  .amdhsa_accum_offset {nv4}
  .amdhsa_group_segment_fixed_size 0
  .amdhsa_kernarg_size 112
  .amdhsa_user_sgpr_count 2
  .amdhsa_user_sgpr_kernarg_segment_ptr 1
  .amdhsa_system_sgpr_workgroup_id_x 1
  .amdhsa_float_denorm_mode_32 3
.end_amdhsa_kernel
"""

def main():
    out = sys.argv[1]
    ref = open(f"cdna_kernels/{NAME}.s.ref").read().split("\n")
    head = [l for l in ref if l.startswith(";") and "@launch" not in l and "Override" not in l and "grid=ceil" not in l and not l.startswith("    ")]
    a = Asm()
    a(".amdgcn_target \"amdgcn-amd-amdhsa--gfx950\"\n.text")
    a(f".globl bin_kernel\n.type bin_kernel,@function\n.globl {NAME}_kernel\n.type {NAME}_kernel,@function")
    gen_p1(a)
    nv = gen_p2(a)
    errs = a.check()
    for e in errs: print("HAZARD", e)
    txt = "\n".join(head) + "\n"
    txt += f"; @launch kernel=bin_kernel grid=({NCH},1,1) block=(1024,1,1) lds={P1_LDS}\n"
    txt += f"; @launch kernel={NAME}_kernel grid=(256,1,1) block=(512,1,1) lds={P2_LDS}\n"
    txt += a.text()
    txt += ".section .rodata,\"a\"\n.p2align 6\n" + kd("bin_kernel", 128, 64) + ".p2align 6\n" + kd(NAME + "_kernel", nv, 88)
    open(out, "w").write(txt)
    print("vgprs p2:", nv, "lines:", len(a.lines), "hazards:", len(errs))

main()
```

```python
import sys, os
sys.path.insert(0, os.path.dirname(__file__))
from asmlib import Asm

NAME = "gather_scatter__molecular_angular_gemnet__graph"
E = 400000
NCH, CH = 250, 25600
EB = 1568
K = 6
MJ = 2739138
TABOFF = 0x2800000
CAROFF = 0x3000000
CARCAP = 9216
CARLIST = CARCAP * 8
STAMPOFF = 0x6000000
OPT = dict(stamp=0, itcap=64, ld_nt=1, st_pol=0, mtouch=0, la=3, apre=3, wmain=78000, b5=368000, ins0=4,
           abl_mfma=0, abl_s=0, abl_cos=0, abl_g=0)
for a in sys.argv[2:]:
    k, v = a.split("=")
    assert k in OPT, k
    OPT[k] = int(v)
MK = -(-(1 << 32) // OPT["wmain"])
assert (399999 * MK) >> 32 <= 5

def v(i, n=1):
    return f"v{i}" if n == 1 else f"v[{i}:{i+n-1}]"
def s(i, n=1):
    return f"s{i}" if n == 1 else f"s[{i}:{i+n-1}]"

def stamp(a, vreg, lane, op="s_memtime"):
    if not OPT["stamp"]: return
    a(f"  {op} s[88:89]\n  s_waitcnt lgkmcnt(0)\n  v_writelane_b32 v{vreg}, s88, {lane}")
def stamp_out(a, vreg, wslo, nwaves, base, tmp):
    if not OPT["stamp"]: return
    a(f"  s_mul_i32 s88, s2, {nwaves*256}\n  s_add_u32 s88, s88, {base}")
    srd(a, 92, wslo, wslo+1, "s88", nwaves*256)
    a(f"  v_lshlrev_b32 v{tmp}, 2, v0\n  buffer_store_dword v{vreg}, v{tmp}, s[92:95], 0 offen")

def srd(a, d, lo, hi, add, size):
    if add is None:
        a(f"  s_mov_b32 s{d}, s{lo}\n  s_mov_b32 s{d+1}, s{hi}")
    else:
        a(f"  s_add_u32 s{d}, s{lo}, {add}\n  s_addc_u32 s{d+1}, s{hi}, 0")
    a(f"  s_mov_b32 s{d+2}, {size}\n  s_mov_b32 s{d+3}, 0x20000")

P1_CNT, P1_SENT, P1_TMP, P1_REC = 0, 6144, 6160, 6272
P1_LDS = P1_REC + CH * 6

def gen_p1(a):
    O, I, A, R = 8, 36, 64, 80
    T = 108
    nt = " nt" if OPT["ld_nt"] else ""
    a(".p2align 8")
    a.label("bin_kernel")
    a(f"""
  s_cmp_ge_u32 s2, {NCH}
  s_cbranch_scc1 L_bin_end
  s_load_dwordx4 s[8:11], s[0:1], 8
  s_load_dwordx2 s[4:5], s[0:1], 0
  s_load_dwordx2 s[6:7], s[0:1], 32
  s_load_dwordx2 s[12:13], s[0:1], 104
  v_lshlrev_b32 v1, 4, v0
  v_mov_b64 {v(T,2)}, 0
  v_mov_b64 {v(T+2,2)}, 0
  s_mul_i32 s14, s2, {CH*4}
  s_mov_b32 s40, 16384
  ds_write_b128 v1, {v(T,4)}
  s_waitcnt lgkmcnt(0)""")
    stamp(a, 127, 0); stamp(a, 127, 62, "s_memrealtime")
    srd(a, 20, 10, 11, "s14", CH * 4)
    srd(a, 16, 8, 9, "s14", CH * 4)
    so4 = lambda q: "0" if q == 0 else f"s{39+q}"
    so2 = lambda q: "0" if q == 0 else f"s{49+q}"
    vm = []
    def ld_pair(q):
        if q < 6:
            a(f"  buffer_load_dwordx4 {v(O+4*q,4)}, v1, s[20:23], {so4(q)} offen{nt}")
            a(f"  buffer_load_dwordx4 {v(I+4*q,4)}, v1, s[16:19], {so4(q)} offen{nt}")
        else:
            a(f"  buffer_load_dword {v(O+24)}, v3, s[20:23], {so4(6)} offen{nt}")
            a(f"  buffer_load_dword {v(I+24)}, v3, s[16:19], {so4(6)} offen{nt}")
        vm.extend([("o", q), ("p", q)])
    def ld_ang(q):
        if q < 6: a(f"  buffer_load_dwordx2 {v(A+2*q,2)}, v2, s[24:27], {so2(q)} offen{nt}")
        else: a(f"  buffer_load_ushort {v(A+12)}, v4, s[24:27], {so2(6)} offen{nt}")
        vm.append(("a", q))
    def wait_for(x):
        a(f"  s_waitcnt vmcnt({len(vm) - 1 - vm.index(x)})")
    ld_pair(0); ld_pair(1)
    a("  s_barrier")
    for q in range(2, 10): a(f"  s_mov_b32 s{39+q}, {q*16384}")
    LA = OPT["la"]
    for q in range(2, LA): ld_pair(q)
    a(f"""
  v_lshlrev_b32 v2, 3, v0
  v_lshlrev_b32 v3, 2, v0
  v_lshlrev_b32 v4, 1, v0
  v_lshlrev_b32 v5, 7, v0
  v_mov_b32 v7, 1
  v_lshrrev_b32 {v(T+4)}, 6, v0
  s_mul_i32 s15, s2, {CH*2}
  s_mul_i32 s62, s2, {CH*6}
  s_lshl_b32 s63, s2, 5
  s_mov_b32 s56, {MJ}
  s_mov_b32 s57, {MK}
  s_mov_b32 s58, {-EB & 0xffffffff}
  s_mov_b32 s59, {OPT['b5']}
  v_readfirstlane_b32 s60, {v(T+4)}""")
    for q in range(1, 7): a(f"  s_mov_b32 s{49+q}, {q*8192}")
    srd(a, 24, 6, 7, "s15", CH * 2)
    srd(a, 28, 4, 5, "s15", CH * 2)
    srd(a, 32, 12, 13, "s62", CH * 6)
    srd(a, 36, 12, 13, TABOFF, 256 * 8192)
    def hist(idx):
        for x, i in enumerate(idx): a(f"  v_cmp_le_u32 {s(64+2*x,2)}, s59, {v(I+i)}")
        for x, i in enumerate(idx): a(f"  v_mul_hi_u32_u24 {v(T+x)}, s56, {v(O+i)}")
        for x, i in enumerate(idx): a(f"  v_mul_hi_u32_u24 {v(T+4+x)}, s57, {v(I+i)}")
        for x, i in enumerate(idx): a(f"  v_cndmask_b32 {v(T+4+x)}, {v(T+4+x)}, 5, {s(64+2*x,2)}")
        for x, i in enumerate(idx): a(f"  v_mad_i32_i24 {v(T+8+x)}, {v(T+x)}, s58, {v(O+i)}")
        for x, i in enumerate(idx): a(f"  v_lshl_add_u32 {v(O+i)}, {v(T+4+x)}, 8, {v(T+x)}")
        for x, i in enumerate(idx): a(f"  v_lshlrev_b32 {v(O+i)}, 2, {v(O+i)}")
        for x, i in enumerate(idx): a(f"  ds_add_rtn_u32 {v(R+i)}, {v(O+i)}, v7")
        for x, i in enumerate(idx): a(f"  v_lshl_or_b32 {v(I+i)}, {v(T+8+x)}, 20, {v(I+i)}")
        for x, i in enumerate(idx): a(f"  v_or_b32 {v(I+i)}, 0x80000000, {v(I+i)}")
    na = 0
    for q in range(7):
        wait_for(("p", q))
        if q in (0, 6): stamp(a, 127, 1 if q == 0 else 2)
        if q + LA < 7: ld_pair(q + LA)
        else:
            for _ in range(2):
                if na < OPT["apre"]: ld_ang(na); na += 1
        hist(list(range(4*q, 4*q+4)) if q < 6 else [24])
    stamp(a, 127, 3)
    a(f"""
  s_waitcnt lgkmcnt(0)
  s_barrier
  s_cmp_ge_u32 s60, {K}
  s_cbranch_scc1 L_bin_s1
  ds_read_b128 {v(T,4)}, v1
  v_and_b32 {v(T+8)}, 63, v0
  s_waitcnt lgkmcnt(0)
  v_add_u32 {v(T+1)}, {v(T)}, {v(T+1)}
  v_add_u32 {v(T+2)}, {v(T+1)}, {v(T+2)}
  v_add_u32 {v(T+3)}, {v(T+2)}, {v(T+3)}
  v_mov_b32 {v(T+4)}, {v(T+3)}""")
    X = v(T+4)
    for sh in (1, 2, 4, 8):
        a(f"  s_nop 1\n  v_add_u32_dpp {X}, {X}, {X} row_shr:{sh} row_mask:0xf bank_mask:0xf bound_ctrl:0")
    a(f"  s_nop 1\n  v_add_u32_dpp {X}, {X}, {X} row_bcast:15 row_mask:0xa bank_mask:0xf")
    a(f"  s_nop 1\n  v_add_u32_dpp {X}, {X}, {X} row_bcast:31 row_mask:0xc bank_mask:0xf")
    a(f"""
  v_cmp_lt_u32 vcc, s60, {v(T+8)}
  v_readlane_b32 s61, {X}, 63
  v_lshlrev_b32 {v(T+9)}, 2, {v(T+8)}
  s_and_b32 vcc_lo, vcc_lo, 0xff
  s_mov_b32 vcc_hi, 0
  v_mov_b32 {v(T+10)}, s61
  s_mov_b64 exec, vcc
  ds_add_u32 {v(T+9)}, {v(T+10)} offset:{P1_TMP}
  s_mov_b64 exec, -1
  s_waitcnt lgkmcnt(0)""")
    a.label("L_bin_s1")
    a(f"""
  s_barrier
  s_cmp_ge_u32 s60, {K}
  s_cbranch_scc1 L_bin_s2
  s_lshl_b32 s61, s60, 2
  v_mov_b32 {v(T+9)}, s61
  ds_read_b32 {v(T+9)}, {v(T+9)} offset:{P1_TMP}
  v_sub_u32 {X}, {X}, {v(T+3)}
  v_mov_b32 {v(T+10)}, {CH}
  v_mov_b32 {v(T+11)}, 0
  s_waitcnt lgkmcnt(0)
  v_add_u32 {v(T+4)}, {X}, {v(T+9)}
  v_add_u32 {v(T+5)}, {v(T+4)}, {v(T)}
  v_add_u32 {v(T+6)}, {v(T+4)}, {v(T+1)}
  v_add_u32 {v(T+7)}, {v(T+4)}, {v(T+2)}
  ds_write_b128 v1, {v(T+4,4)}
  ds_write_b32 {v(T+11)}, {v(T+10)} offset:{P1_SENT}
  s_waitcnt lgkmcnt(0)""")
    a.label("L_bin_s2")
    a("  s_barrier")
    stamp(a, 127, 4)
    while na < 7: ld_ang(na); na += 1
    if OPT["mtouch"]:
        a(f"  buffer_load_dword v6, v5, s[28:31], 0 offen"); vm.append(("m", 0))
    for i in range(25):
        a(f"  ds_read_b32 {v(O+i)}, {v(O+i)}")
    a(f"  v_mov_b32 v2, 6\n  v_mov_b32 v3, 2")
    for g in range(0, 25, 5):
        idx = list(range(g, g+5))
        a("  s_waitcnt lgkmcnt(10)")
        for i in idx: a(f"  v_add_u32 {v(O+i)}, {v(O+i)}, {v(R+i)}")
        for i in idx: a(f"  v_mad_u32_u24 {v(O+i)}, {v(O+i)}, v2, v3")
        for i in idx: a(f"  v_and_b32 {v(R+i)}, -4, {v(O+i)}")
        for i in idx: a(f"  ds_write_b32 {v(R+i)}, {v(I+i)} offset:{P1_REC}")
    for i in range(25): a(f"  v_and_b32 {v(R+i)}, 2, {v(O+i)}")
    for i in range(25): a(f"  v_lshl_add_u32 {v(O+i)}, {v(R+i)}, 1, {v(O+i)}")
    stamp(a, 127, 5)
    for q in range(7):
        wait_for(("a", q))
        for r in range(2 if q < 6 else 1):
            a(f"  v_and_b32 {v(A+2*q+r)}, 0x7fff7fff, {v(A+2*q+r)}")
        for i in range(4*q, min(4*q+4, 25)):
            op = "ds_write_b16_d16_hi" if (i & 1) else "ds_write_b16"
            a(f"  {op} {v(O+i)}, {v(A + i//2)} offset:{P1_REC-2}")
    stamp(a, 127, 6)
    a(f"  v_add_u32 v2, {P1_REC+4*16384}, v1\n  v_add_u32 v3, {P1_REC+8*16384}, v1\n  v_add_u32 v4, {P1_REC}, v1")
    a("  s_waitcnt lgkmcnt(0)\n  s_barrier")
    stamp(a, 127, 7)
    for r in range(10):
        base = ("v4", "v2", "v3")[r // 4]
        a(f"  ds_read_b128 {v(8+4*r,4)}, {base} offset:{(r%4)*16384}")
    spol = ("", " nt", " sc1", " sc0 sc1", " sc0")[OPT["st_pol"]]
    for r in range(10):
        a(f"  s_waitcnt lgkmcnt({9-r})")
        a(f"  buffer_store_dwordx4 {v(8+4*r,4)}, v1, s[32:35], {so4(r)} offen{spol}")
    stamp(a, 127, 8)
    if OPT["stamp"]: a("  s_waitcnt vmcnt(0)")
    stamp(a, 127, 9); stamp(a, 127, 63, "s_memrealtime")
    stamp_out(a, 127, 12, 16, STAMPOFF, 126)
    a(f"""
  s_cmp_lt_u32 s60, 12
  s_cbranch_scc1 L_bin_end
  v_and_b32 {v(T+12)}, 0xff, v0
  v_lshlrev_b32 {v(T+13)}, 2, {v(T+12)}
  v_lshlrev_b32 {v(T+12)}, 13, {v(T+12)}""")
    for k in range(K):
        a(f"  ds_read_b32 {v(T+k)}, {v(T+13)} offset:{k*1024}")
        a(f"  ds_read_b32 {v(T+6+k)}, {v(T+13)} offset:{k*1024+4}")
    a("  s_waitcnt lgkmcnt(0)")
    for k in range(K):
        a(f"  v_sub_u32 {v(T+6+k)}, {v(T+6+k)}, {v(T+k)}")
    for k in range(K):
        a(f"  v_lshl_or_b32 {v(T+k)}, {v(T+6+k)}, 16, {v(T+k)}")
    a(f"""
  buffer_store_dwordx4 {v(T,4)}, {v(T+12)}, s[36:39], s63 offen{spol}
  buffer_store_dwordx2 {v(T+4,2)}, {v(T+12)}, s[36:39], s63 offen offset:16{spol}""")
    a.label("L_bin_end")
    a("  s_endpgm")

TS = 264
BUFSZ = 200 * TS
S_OFF = 2 * BUFSZ
CTL = S_OFF + 8192
RB_OFF = CTL + 128
P2_LDS = RB_OFF + 8 * 3584
D = 5
NT = 25

class RA:
    def __init__(self, start): self.n = start
    def __call__(self, k=1, al=1):
        self.n = (self.n + al - 1) // al * al
        r = self.n; self.n += k
        return r

def gen_p2(a):
    ra = RA(1)
    vSlot, vHalf, vFreq, vSst, vSrd, vI6, vI1, vI4 = (ra() for _ in range(8))
    vRd, vCntA, vOne, vOOB, vCarOff, vCarIdx, v264, vMsk, vCtlN = (ra() for _ in range(9))
    vZ = ra(2, 2)
    Q = ra(6, 4)
    sA, nA, cb, rem, rtot, vA6, vB6, vR0, vRT4 = (ra() for _ in range(9))
    vCnt = ra()
    Wa = ra(4, 4); Wb = ra(4, 4)
    RING = [ra(4, 4) for _ in range(D)]
    Da = ra(4, 4); Db = ra(4, 4); P = ra(4, 4); Sf = ra(4, 4)
    ACC = [ra(4, 4) for _ in range(NT)]
    REC = [ra(2, 4 if i == 0 else 2) for i in range(17)]
    RP = [ra(2, 2), ra(2, 2)]
    T = ra(10, 2)
    WS0 = ra(2, 2); WS1 = ra(2, 2); WR = ra(2, 2); WUP = ra(2, 2)
    CC = [ra() for _ in range(D)]; SA = [ra() for _ in range(D)]
    TA = [ra(), ra()]; RK = [ra(), ra()]
    vMoff = ra()
    assert ra.n <= 252, ra.n
    NV = ra.n
    POOL = RING[0]
    assert Sf + 4 - POOL == 36
    sM = 4; sREC = 8; sCAR = 12; sTAB = 16; sOUT = 20; sDIST = 24; sMW = 28
    sJ, sW, sIt, sThr, sIns, sCarW, sCarR, sDid, sCin, sX, sFl, sEb = range(32, 44)
    sCnt = [44, 45]
    sWS = 46
    sMk = [80, 82]; sT = 84; sMv = 86; sEb2 = 87
    rare = []

    a(".p2align 8")
    a.label(NAME + "_kernel")
    a(f"""
  s_cmp_ge_u32 s2, 256
  s_cbranch_scc1 L_end
  s_load_dwordx2 s[46:47], s[0:1], 104
  s_load_dwordx16 s[48:63], s[0:1], 0
  s_load_dwordx8 s[64:71], s[0:1], 64
  s_and_b32 s{sJ}, s2, 7
  s_lshl_b32 s{sJ}, s{sJ}, 5
  s_lshr_b32 s{sX}, s2, 3
  s_add_u32 s{sJ}, s{sJ}, s{sX}
  v_lshrrev_b32 {v(T)}, 6, v0
  v_and_b32 {v(T+1)}, 63, v0
  v_and_b32 {v(vSlot)}, 31, v0
  v_readfirstlane_b32 s{sW}, {v(T)}
  v_and_b32 {v(T+2)}, 15, v0
  v_bfe_u32 {v(T+3)}, v0, 5, 1
  v_lshlrev_b32 {v(vHalf)}, 4, {v(T+3)}
  v_lshl_add_u32 {v(cb)}, {v(T)}, 5, {v(vHalf)}
  v_add_u32 {v(cb)}, {v(cb)}, {v(T+2)}
  v_lshlrev_b32 {v(T+4)}, 5, {v(cb)}
  s_lshl_b32 s{sX}, s{sJ}, 13
  s_add_u32 s{sX}, s{sX}, {TABOFF}
  s_mul_i32 s{sFl}, s{sJ}, {2*CARLIST}
  s_add_u32 s{sFl}, s{sFl}, {CAROFF}
  s_waitcnt lgkmcnt(0)""")
    stamp(a, 252, 0); stamp(a, 252, 62, "s_memrealtime")
    srd(a, sTAB, sWS, sWS+1, f"s{sX}", NCH * 32)
    a(f"""
  buffer_load_dwordx4 {v(Q,4)}, {v(T+4)}, {s(sTAB,4)}, 0 offen
  buffer_load_dwordx2 {v(Q+4,2)}, {v(T+4)}, {s(sTAB,4)}, 0 offen offset:16""")
    srd(a, sM, 48, 49, None, E * 32)
    srd(a, sREC, sWS, sWS+1, None, NCH * CH * 6)
    srd(a, sCAR, sWS, sWS+1, f"s{sFl}", 2 * CARLIST)
    srd(a, sDIST, 54, 55, None, E * 2)
    a(f"""
  s_mul_i32 s{sEb}, s{sJ}, {EB}
  s_mul_i32 s{sX}, s{sW}, 200
  s_add_u32 s{sFl}, s{sEb}, {EB}
  s_add_u32 s{sEb}, s{sEb}, s{sX}
  s_add_u32 s{sX}, s{sEb}, 200
  s_min_u32 s{sX}, s{sX}, s{sFl}
  s_min_u32 s{sX}, s{sX}, {E}
  s_lshl_b32 s{sX}, s{sX}, 5""")
    srd(a, sOUT, 70, 71, None, f"s{sX}")
    srd(a, sMW, 48, 49, None, f"s{sX}")
    ST = ACC[0]
    DI = ST + 20
    g4 = T + 5
    a(f"""
  v_lshlrev_b32 {v(T+6)}, 1, {v(T+2)}
  v_lshl_add_u32 {v(T+7)}, {v(T+3)}, 8, {v(T+6)}
  v_bfe_u32 {v(g4)}, v0, 4, 2
  s_lshl_b32 s{sX}, s{sEb}, 1
  s_lshl_b32 s{sEb}, s{sEb}, 5
  s_add_u32 s{sEb2}, s{sEb}, 4096
  v_lshlrev_b32 {v(T+9)}, 2, {v(g4)}""")
    a(f"  global_load_dword {v(ST+18)}, {v(T+9)}, s[58:59]")
    for p in range(13):
        a(f"  buffer_load_ushort {v(DI+p)}, {v(T+6)}, {s(sDIST,4)}, s{sX} offen offset:{p*32}")
    for r in range(8):
        a(f"  global_load_ushort {v(ST+r)}, {v(T+7)}, s[66:67] offset:{r*32}")
    a(f"""
  v_lshl_add_u32 {v(T+7)}, {v(g4)}, 7, {v(T+6)}
  v_lshl_add_u32 {v(T+8)}, {v(g4)}, 6, {v(T+6)}
  v_lshlrev_b32 {v(T+6)}, 1, {v(T+3)}""")
    for r in range(4):
        a(f"  global_load_ushort {v(ST+8+r)}, {v(T+7)}, s[64:65] offset:{r*32}")
    for r in range(4):
        a(f"  global_load_ushort {v(ST+12+r)}, {v(T+7)}, s[68:69] offset:{r*32}")
    for r in range(2):
        a(f"  global_load_ushort {v(ST+16+r)}, {v(T+8)}, s[62:63] offset:{r*32}")
    a(f"  global_load_ushort {v(ST+19)}, {v(T+6)}, s[60:61]")
    NW = 33
    a(f"""
  v_mov_b64 {v(vZ,2)}, 0
  v_mov_b64 {v(Da,2)}, 0
  v_mov_b64 {v(Da+2,2)}, 0
  v_mov_b32 {v(v264)}, {TS}
  v_min_u32 {v(T+6)}, 399, v0
  v_mul_u32_u24 {v(T+6)}, {v(T+6)}, {v(v264)}
  ds_write_b32 {v(T+6)}, {v(vZ)}
  s_lshl_b32 s{sX}, s{sW}, 10
  s_add_u32 s{sX}, s{sX}, {S_OFF}
  v_lshl_add_u32 {v(vSrd)}, {v(T+1)}, 4, s{sX}
  ds_write_b128 {v(vSrd)}, {v(Da,4)}
  v_mov_b32 {v(vCtlN)}, {CTL}
  v_and_b32 {v(T+6)}, 7, v0
  v_lshl_add_u32 {v(T+6)}, {v(T+6)}, 2, {v(vCtlN)}
  ds_write_b32 {v(T+6)}, {v(vZ)}
  v_mov_b32 {v(vOne)}, 1
  v_mov_b32 {v(vOOB)}, 0x80000000
  v_mov_b32 {v(vMsk)}, 0x7ffffffc
  v_mul_u32_u24 {v(vI6)}, 6, {v(vSlot)}
  v_add_u32 {v(vI1)}, 1, {v(vSlot)}
  v_lshlrev_b32 {v(vI4)}, 2, {v(vI1)}
  v_sub_u32 {v(vCarIdx)}, 511, v0
  v_lshlrev_b32 {v(vCarOff)}, 3, {v(vCarIdx)}
  v_bfe_u32 {v(T+6)}, v0, 2, 2
  v_lshlrev_b32 {v(vSst)}, 8, {v(T+6)}
  v_lshl_add_u32 {v(vSst)}, {v(T+3)}, 7, {v(vSst)}
  v_bfe_u32 {v(T+6)}, v0, 4, 1
  v_lshl_add_u32 {v(vSst)}, {v(T+6)}, 3, {v(vSst)}
  v_and_b32 {v(T+6)}, 3, v0
  v_lshl_add_u32 {v(vSst)}, {v(T+6)}, 1, {v(vSst)}
  v_add_u32 {v(vSst)}, s{sX}, {v(vSst)}
  s_mul_i32 s{sX}, s{sW}, {NT*TS}
  s_add_u32 s{sX}, s{sX}, {BUFSZ}
  v_lshl_add_u32 {v(vRd)}, {v(vSlot)}, 3, s{sX}
  v_min_u32 {v(T+6)}, {NT-1}, {v(T+1)}
  v_mad_u32_u24 {v(vCntA)}, {v(T+6)}, {v(v264)}, s{sX}
  v_lshlrev_b32 {v(T+6)}, 3, {v(g4)}
  v_lshl_add_u32 {v(vMoff)}, {v(T+2)}, 5, {v(T+6)}
  v_mov_b32 {v(T+6)}, {CH}
  v_mul_u32_u24 {v(cb)}, {v(cb)}, {v(T+6)}
  v_mov_b32 {v(sA)}, 0
  v_mov_b32 {v(nA)}, 0
  v_mov_b32 {v(rtot)}, 0
  s_mul_i32 s{sX}, s{sW}, 3584
  s_add_u32 s{sX}, s{sX}, {RB_OFF}
  v_lshl_add_u32 {v(T+9)}, {v(T+1)}, 3, s{sX}
  s_mov_b32 s{sIt}, -1
  s_mov_b32 s{sThr}, 0
  s_mov_b32 s{sIns}, 0
  s_mov_b32 s{sCarW}, 0
  s_mov_b32 s{sCarR}, {CARLIST}
  s_mov_b32 s{sDid}, 0
  s_mov_b32 s{sMv}, 0""")

    def state_update():
        a(f"""
  v_sub_u32 {v(rem)}, {v(rem)}, {v(rtot)}
  v_lshrrev_b32 {v(T)}, 16, {v(Q)}
  v_and_b32 {v(T+1)}, 0xffff, {v(Q)}
  v_min_u32 {v(vR0)}, 32, {v(nA)}
  v_cmp_ge_u32 vcc, 32, {v(nA)}
  v_sub_u32 {v(T+2)}, 32, {v(vR0)}
  v_min_u32 {v(T+2)}, {v(T)}, {v(T+2)}
  v_add_u32 {v(vA6)}, {v(cb)}, {v(sA)}
  v_mul_u32_u24 {v(vA6)}, 6, {v(vA6)}
  v_add_u32 {v(vB6)}, {v(cb)}, {v(T+1)}
  v_mul_u32_u24 {v(vB6)}, 6, {v(vB6)}
  v_mad_i32_i24 {v(vB6)}, {v(vR0)}, -6, {v(vB6)}
  v_add_u32 {v(rtot)}, {v(vR0)}, {v(T+2)}
  v_lshlrev_b32 {v(vRT4)}, 2, {v(rtot)}
  v_add_u32 {v(sA)}, 32, {v(sA)}
  v_subrev_u32 {v(nA)}, 32, {v(nA)}
  v_add_u32 {v(T+1)}, {v(T+1)}, {v(T+2)}
  v_sub_u32 {v(T)}, {v(T)}, {v(T+2)}
  v_cndmask_b32 {v(sA)}, {v(sA)}, {v(T+1)}, vcc
  v_cndmask_b32 {v(nA)}, {v(nA)}, {v(T)}, vcc""")
        for i in range(K - 1):
            a(f"  v_cndmask_b32 {v(Q+i)}, {v(Q+i)}, {v(Q+i+1)}, vcc")
        a(f"  v_cndmask_b32 {v(Q+K-1)}, {v(Q+K-1)}, {v(vZ)}, vcc")

    def rec_load(u, t0):
        bc = f"row_newbcast:{u} row_mask:0xf bank_mask:0xf"
        a(f"""
  v_sub_co_u32_dpp {v(t0)}, vcc, {v(vR0)}, {v(vI1)} {bc}
  v_add_u32_dpp {v(t0)}, {v(vA6)}, {v(vI6)} {bc}
  v_add_u32_dpp {v(t0+1)}, {v(vB6)}, {v(vI6)} {bc}
  v_cndmask_b32 {v(t0)}, {v(t0)}, {v(t0+1)}, vcc
  v_sub_u32_dpp {v(t0+1)}, {v(vRT4)}, {v(vI4)} {bc}
  v_bfi_b32 {v(t0)}, {v(vMsk)}, {v(t0)}, {v(t0+1)}
  buffer_load_dwordx2 {v(REC[u],2)}, {v(t0)}, {s(sREC,4)}, 0 offen""")

    def ins1(u, thr, ta, rk, mk):
        a(f"""
  v_min_i32 {v(ta)}, {v(REC[u])}, {v(REC[u]+1)}
  v_cmp_gt_i32 {s(mk,2)}, {thr}, {v(ta)}
  v_bfe_u32 {v(ta)}, {v(ta)}, 23, 8
  v_mad_u32_u24 {v(ta)}, {v(ta)}, {v(v264)}, s{sIns}
  s_mov_b64 exec, {s(mk,2)}
  ds_add_rtn_u32 {v(rk)}, {v(ta)}, {v(vOne)}
  s_mov_b64 exec, -1""")

    def ins2(u, tag, ta, rk, mk):
        lab = f"{tag}_{u}"
        a(f"""
  s_mov_b64 exec, {s(mk,2)}
  v_cmp_lt_u32 vcc, 31, {v(rk)}
  v_lshl_add_u32 {v(ta)}, {v(rk)}, 3, {v(ta)}
  s_cbranch_vccnz L_rare_{lab}""")
        a.label(f"L_back_{lab}")
        a(f"""
  ds_write_b64 {v(ta)}, {v(REC[u],2)} offset:8
  s_mov_b64 exec, -1""")
        rare.append((lab, u, rk))

    stamp(a, 252, 14)
    a(f"  s_waitcnt vmcnt({NW})")
    stamp(a, 252, 1)
    a(f"  v_lshrrev_b32 {v(rem)}, 16, {v(Q)}")
    for i in range(1, K):
        a(f"  v_lshrrev_b32 {v(T)}, 16, {v(Q+i)}\n  v_add_u32 {v(rem)}, {v(rem)}, {v(T)}")
    state_update()
    for u in range(16):
        rec_load(u, T + 4 + 2 * (u & 1))
    state_update()
    stamp(a, 252, 12)
    a(f"  s_waitcnt vmcnt({16 + NW - 14})")
    CEN = T + 4
    a(f"""
  v_lshlrev_b32 {v(CEN)}, 16, {v(ST+18)}
  v_and_b32 {v(CEN+1)}, 0xffff0000, {v(ST+18)}
  s_mov_b32 s72, 0xc1200000
  s_mov_b32 s73, 0xc1200000
  s_mov_b32 s74, 0x3fb8aa3b
  s_mov_b32 s75, 0x3fb8aa3b
  v_mov_b32 {v(DI+13)}, 0""")
    for p0 in range(0, 13, 4):
        ps = list(range(p0, min(p0 + 4, 13)))
        tt = {p: POOL + 2 * (p - p0) for p in ps}
        def rnd():
            for p in ps: a(f"  v_cvt_pk_bf16_f32 {v(tt[p])}, 0, {v(tt[p])}\n  v_cvt_pk_bf16_f32 {v(tt[p]+1)}, 0, {v(tt[p]+1)}")
        for p in ps: a(f"  v_lshlrev_b32 {v(tt[p])}, 16, {v(DI+p)}")
        for p in ps: a(f"  v_pk_add_f32 {v(tt[p],2)}, {v(tt[p],2)}, {v(CEN,2)} op_sel_hi:[0,1] neg_lo:[0,1] neg_hi:[0,1]")
        if len(ps) == 1: a("  s_nop 0")
        rnd()
        for p in ps: a(f"  v_pk_mul_f32 {v(tt[p],2)}, {v(tt[p],2)}, {v(tt[p],2)}")
        rnd()
        for p in ps: a(f"  v_pk_mul_f32 {v(tt[p],2)}, {v(tt[p],2)}, s[72:73]")
        rnd()
        for p in ps: a(f"  v_pk_mul_f32 {v(tt[p],2)}, {v(tt[p],2)}, s[74:75]")
        for p in ps: a(f"  v_exp_f32 {v(tt[p])}, {v(tt[p])}\n  v_exp_f32 {v(tt[p]+1)}, {v(tt[p]+1)}")
        if len(ps) == 1: a("  s_nop 0")
        for p in ps: a(f"  v_cvt_pk_bf16_f32 {v(DI+p)}, {v(tt[p])}, {v(tt[p]+1)}")
    for h in range(7):
        a(f"  ds_write_b64 {v(T+9)}, {v(DI+2*h,2)} offset:{h*512}")
    stamp(a, 252, 13)
    a("  s_waitcnt vmcnt(16)")
    a(f"  v_bfe_u32 {v(T)}, v0, 4, 1\n  v_cmp_eq_u32 vcc, 1, {v(T)}")
    for r in range(4):
        a(f"  v_lshl_or_b32 {v(ST+2*r)}, {v(ST+2*r+1)}, 16, {v(ST+2*r)}")
    for r in range(4):
        a(f"  v_cndmask_b32 {v(Wa+r)}, {v(ST+2*r)}, {v(vZ)}, vcc")
        a(f"  v_cndmask_b32 {v(Wb+r)}, {v(vZ)}, {v(ST+2*r)}, vcc")
    a(f"""
  v_lshl_or_b32 {v(WS0)}, {v(ST+10)}, 16, {v(ST+8)}
  v_lshl_or_b32 {v(WS1)}, {v(ST+11)}, 16, {v(ST+9)}
  v_lshl_or_b32 {v(WUP)}, {v(ST+13)}, 16, {v(ST+12)}
  v_lshl_or_b32 {v(WUP+1)}, {v(ST+15)}, 16, {v(ST+14)}
  v_lshl_or_b32 {v(WR)}, {v(ST+17)}, 16, {v(ST+16)}
  v_mov_b32 {v(WS0+1)}, 0
  v_mov_b32 {v(WS1+1)}, 0
  v_mov_b32 {v(WR+1)}, 0
  v_lshlrev_b32 {v(vFreq)}, 16, {v(ST+19)}""")
    a("  s_waitcnt lgkmcnt(0)\n  s_barrier")
    stamp(a, 252, 2)
    a(f"  ds_write_b32 {v(vCtlN)}, {v(vOne)} offset:4")
    for u in range(16):
        a(f"  s_waitcnt vmcnt({15 - u})")
        if u == 0: stamp(a, 252, 3)
        ins1(u, "0", POOL + 2*u, POOL + 2*u + 1, 48 + 2*u)
    stamp(a, 252, 8)
    for t in range(NT):
        a(f"  v_mov_b64 {v(ACC[t],2)}, 0\n  v_mov_b64 {v(ACC[t]+2,2)}, 0")
    a("  s_waitcnt lgkmcnt(0)")
    stamp(a, 252, 9)
    for u in range(16):
        ins2(u, "pro", POOL + 2*u, POOL + 2*u + 1, 48 + 2*u)
    stamp(a, 252, 10)
    for u in range(16):
        rec_load(u, T + 4 + 2 * (u & 1))
    stamp(a, 252, 11)
    for q in range(D):
        a(f"  v_mov_b64 {v(RING[q],2)}, 0\n  v_mov_b64 {v(RING[q]+2,2)}, 0")
        a(f"  v_mov_b32 {v(CC[q])}, 0\n  v_mov_b32 {v(SA[q])}, {v(vSst)}")
    a("  s_waitcnt vmcnt(16)\n  s_branch L_turn2")

    INS0 = OPT["ins0"]
    def cstage_head(q):
        if OPT["abl_s"]: return
        a(f"""
  ds_write_b16 {v(SA[q])}, {v(CC[q])}
  ds_read_b128 {v(Sf,4)}, {v(vSrd)}
  ds_write_b16 {v(SA[q])}, {v(vZ)}""")
    def cstage_m1(q):
        if OPT["abl_mfma"]: return
        a(f"""
  v_mfma_f32_16x16x32_bf16 {v(Da,4)}, {v(RING[q],4)}, {v(Wa,4)}, 0
  v_mfma_f32_16x16x32_bf16 {v(Db,4)}, {v(RING[q],4)}, {v(Wb,4)}, 0""")
    def cstage_cvt():
        if OPT["abl_mfma"]: return
        a(f"""
  v_cvt_pk_bf16_f32 {v(P)}, {v(Da)}, {v(Da+1)}
  v_cvt_pk_bf16_f32 {v(P+1)}, {v(Da+2)}, {v(Da+3)}
  v_cvt_pk_bf16_f32 {v(P+2)}, {v(Db)}, {v(Db+1)}
  v_cvt_pk_bf16_f32 {v(P+3)}, {v(Db+2)}, {v(Db+3)}""")
    def cstage_m2(tc):
        if OPT["abl_mfma"]: return
        a(f"  v_mfma_f32_16x16x32_bf16 {v(ACC[tc],4)}, {v(P,4)}, {v(Sf,4)}, {v(ACC[tc],4)}")
    MR = REC[0]
    def m_load(p):
        a(f"  buffer_load_dwordx2 {v(MR+2*p,2)}, {v(vMoff)}, {s(sMW,4)}, s{sEb if p < 8 else sEb2} offen offset:{(p%8)*512}")

    def body(full):
        tag = "lp" if full else "ln"
        order = []
        for t in range(NT):
            if full:
                if t == 0: order.append(("car", 16))
                u2 = t - INS0 - 1
                if 0 <= u2 < 16: order.append(("rec", u2))
            elif t < 13: order.append(("m", t))
            order.append(("W", t))
            order.append(("g", t))
        tail = [x for x in order[order.index(("g", NT - D)):] if x[0] != "W"]
        assert tail == [("g", t) for t in range(NT - D, NT)], tail
        def younger(target, at):
            n = len(order); i = order.index(target); cnt = 0
            j = (i + 1) % n
            while j != at:
                if order[j][0] != "W": cnt += 1
                j = (j + 1) % n
            return cnt
        for t in range(NT):
            q = t % D; tc = (t - D) % NT
            rp = RP[t & 1]; rn = RP[(t + 1) & 1]
            a(f"  ; ---- step {t}")
            a("  s_waitcnt lgkmcnt(0)")
            cstage_head(q)
            if t < NT - 1:
                a(f"  ds_read_b64 {v(rn,2)}, {v(vRd)} offset:{(t+1)*TS+8}")
                a(f"  v_readlane_b32 s{sCnt[(t+1)&1]}, {v(vCnt)}, {t+1}")
            if t == 0:
                a(f"""
  v_cmp_gt_u32 vcc, s{sCin}, {v(vCarIdx)}
  s_add_u32 s{sX}, s{sIt}, 2
  s_and_b32 s{sX}, s{sX}, 3
  s_lshl_b32 s{sX}, s{sX}, 3
  s_add_u32 s{sX}, s{sX}, {CTL}
  v_mov_b32 {v(T+1)}, s{sX}
  ds_write_b64 {v(T+1)}, {v(vZ,2)}
  ds_write_b32 {v(vCntA)}, {v(vZ)}
  s_mov_b32 s{sMv}, {0 if full else 1}""")
                if full:
                    a(f"""
  v_cndmask_b32 {v(T)}, {v(vOOB)}, {v(vCarOff)}, vcc
  buffer_load_dwordx2 {v(REC[16],2)}, {v(T)}, {s(sCAR,4)}, s{sCarR} offen sc1
  ds_write_b32 {v(vCtlN)}, {v(vOne)} offset:4""")
            if full:
                if t == 1:
                    a(f"  s_cmp_lg_u32 s{sThr}, 0\n  s_cbranch_scc1 L_nostate")
                    state_update()
                    a.label("L_nostate")
                u1 = t - INS0; u2 = u1 - 1
                if 0 <= u2 < 17:
                    ins2(u2, "lp", TA[u2 & 1], RK[u2 & 1], sMk[u2 & 1])
                    if u2 < 16: rec_load(u2, T + 4)
                if 0 <= u1 < 17:
                    pos = order.index(("W", t))
                    if u1 < 16:
                        n_first = (15 - u1) + sum(1 for x in order[:pos] if x[0] != "W")
                        n = min(younger(("rec", u1), pos), n_first)
                    else:
                        n = younger(("car", 16), pos)
                    a(f"  s_waitcnt vmcnt({min(n, 62)})")
                    ins1(u1, f"s{sThr}" if u1 < 16 else "0", TA[u1 & 1], RK[u1 & 1], sMk[u1 & 1])
                if t == INS0 + 18:
                    a(f"  s_cmp_gt_u32 s{sCin}, 512\n  s_cbranch_scc1 L_slow")
                    a.label("L_slow_back")
            elif t < 13:
                m_load(t)
            n = younger(("g", tc), order.index(("W", t)))
            a(f"  s_waitcnt vmcnt({n})")
            cstage_m1(q)
            w, off, af, e = T, T + 1, T + 2, T + 3
            a(f"""
  v_min_i32 {v(w)}, {v(rp)}, {v(rp+1)}
  v_cmp_gt_i32 vcc, 0, {v(rp)}
  v_and_b32 {v(off)}, 0x7ffff, {v(w)}
  v_lshl_add_u32 {v(off)}, {v(off)}, 5, {v(vHalf)}
  v_cndmask_b32_sdwa {v(af)}, {v(rp)}, {v(rp+1)}, vcc dst_sel:WORD_1 dst_unused:UNUSED_PAD src0_sel:WORD_1 src1_sel:WORD_0
  v_cmp_gt_u32 vcc, s{sCnt[t&1]}, {v(vSlot)}
  v_bfe_u32 {v(e)}, {v(w)}, 20, 3
  v_mul_f32 {v(af)}, {v(af)}, {v(vFreq)}
  v_cndmask_b32 {v(off)}, {v(vOOB)}, {v(off)}, vcc
  buffer_load_dwordx4 {v(RING[q],4)}, {v(vOOB if OPT["abl_g"] else off)}, {s(sM,4)}, 0 offen""")
            cstage_cvt()
            a(f"""
  v_cndmask_b32 {v(af)}, {v(vZ)}, {v(af)}, vcc
  v_cvt_pk_bf16_f32 {v(af)}, 0, {v(af)}
  s_waitcnt lgkmcnt({2 if t < NT-1 else 1})""")
            cstage_m2(tc)
            if not OPT["abl_cos"]: a(f"""
  v_mul_f32 {v(af)}, 0.15915494, {v(af)}
  v_fract_f32 {v(af)}, {v(af)}
  v_cos_f32 {v(af)}, {v(af)}
  v_lshl_add_u32 {v(SA[q])}, {v(e)}, 4, {v(vSst)}
  v_cvt_pk_bf16_f32 {v(CC[q])}, {v(af)}, {v(af)}""")

    a(".p2align 6")
    a.label("L_lean")
    body(False)
    a("  s_branch L_turn2")
    a(".p2align 6")
    a.label("L_loop")
    body(True)
    a(f"  s_waitcnt vmcnt({NT - (INS0 + 17)})")
    a.label("L_turn2")
    a(f"""
  v_mov_b32 {v(T)}, {v(vCtlN)}
  s_add_u32 s{sIt}, s{sIt}, 1
  s_add_u32 s{sX}, s{sIt}, 1
  s_and_b32 s{sX}, s{sX}, 3
  s_lshl_b32 s{sX}, s{sX}, 3
  s_add_u32 s{sX}, s{sX}, {CTL}
  v_mov_b32 {v(vCtlN)}, s{sX}
  s_sub_u32 s{sX}, s{sIns}, {BUFSZ}
  s_add_u32 s{sX}, s{sX}, s{sIns}
  v_add_u32 {v(vRd)}, s{sX}, {v(vRd)}
  v_add_u32 {v(vCntA)}, s{sX}, {v(vCntA)}
  s_sub_u32 s{sIns}, {BUFSZ}, s{sIns}
  s_mov_b32 s{sCarR}, s{sCarW}
  s_sub_u32 s{sCarW}, {CARLIST}, s{sCarW}
  v_cmp_lt_u32 vcc, 0, {v(rem)}
  s_waitcnt lgkmcnt(0)""")
    if OPT["stamp"]:
        a(f"  s_lshl_b32 s90, s{sIt}, 1\n  s_add_u32 s90, s90, 16\n  s_min_u32 m0, s90, 58")
        stamp(a, 252, "m0")
        a("  s_add_u32 m0, m0, 1")
    a("  s_barrier")
    stamp(a, 252, "m0")
    a(f"""
  ds_read_b64 {v(T+2,2)}, {v(T)}
  ds_read_b32 {v(vCnt)}, {v(vCntA)}
  ds_read_b64 {v(RP[0],2)}, {v(vRd)} offset:8
  s_or_b32 s{sX}, vcc_lo, vcc_hi
  s_cselect_b32 s{sThr}, 0, 0x80000000
  s_waitcnt lgkmcnt(1)
  v_readfirstlane_b32 s{sCin}, {v(T+2)}
  v_readfirstlane_b32 s{sFl}, {v(T+3)}
  v_readlane_b32 s{sCnt[0]}, {v(vCnt)}, 0
  s_cmp_gt_u32 s{sCin}, 512
  s_cselect_b32 s{sThr}, 0x80000000, s{sThr}
  s_min_u32 s{sCin}, s{sCin}, {CARCAP}
  s_cmp_lt_u32 s{sIt}, {OPT['itcap']}
  s_cselect_b32 s{sFl}, s{sFl}, 0
  s_cmp_eq_u32 s{sFl}, 0
  s_cbranch_scc1 L_epi
  s_or_b32 s{sX}, s{sX}, s{sCin}
  s_cbranch_scc1 L_loop
  s_branch L_lean""")

    a.label("L_epi")
    RBv = Q
    assert vRT4 - Q + 1 >= 14
    a(f"""
  v_and_b32 {v(T)}, 63, v0
  s_mul_i32 s{sX}, s{sW}, 3584
  s_add_u32 s{sX}, s{sX}, {RB_OFF}
  v_lshl_add_u32 {v(T+1)}, {v(T)}, 3, s{sX}
  v_lshlrev_b32 {v(vI6)}, 4, {v(T)}
  s_mul_i32 s{sX}, s{sW}, 6656
  v_add_u32 {v(vI1)}, s{sX}, {v(vMoff)}
  v_add_u32 {v(vI4)}, s{sX}, {v(vI6)}""")
    for h in range(7):
        a(f"  ds_read_b64 {v(RBv+2*h,2)}, {v(T+1)} offset:{h*512}")
    a(f"  s_cmp_lg_u32 s{sMv}, 0\n  s_cbranch_scc1 L_havem")
    for p in range(13): m_load(p)
    a.label("L_havem")
    for q in range(D):
        cstage_head(q)
        a(f"  s_waitcnt vmcnt({D - 1 - q})")
        cstage_m1(q)
        a("  s_nop 6")
        cstage_cvt()
        a("  s_waitcnt lgkmcnt(0)\n  s_nop 0")
        cstage_m2(NT - D + q)
    stamp(a, 252, 4)
    XS0, XS1, XR = Wa, Wa + 2, Wb
    a(f"""
  v_mov_b32 {v(XS0)}, 0
  v_mov_b32 {v(XS0+1)}, {v(WS0)}
  v_mov_b32 {v(XS1)}, 0
  v_mov_b32 {v(XS1+1)}, {v(WS1)}
  v_mov_b32 {v(XR)}, 0
  v_mov_b32 {v(XR+1)}, {v(WR)}
  s_nop 1""")
    G0 = [POOL, POOL + 4]; G1 = [POOL + 8, POOL + 12]; RR = [POOL + 16, POOL + 20, POOL + 24]; U = [POOL + 28, POOL + 32]
    AGG = T + 4; AG = RP[1]
    def s1(p):
        b = RBv + (p & ~1)
        w0, w1, wr = (WS0, WS1, WR) if p % 2 == 0 else (XS0, XS1, XR)
        a(f"""
  v_mfma_f32_16x16x16_bf16 {v(G0[p%2],4)}, {v(w0,2)}, {v(b,2)}, 0
  v_mfma_f32_16x16x16_bf16 {v(G1[p%2],4)}, {v(w1,2)}, {v(b,2)}, 0
  v_mfma_f32_16x16x16_bf16 {v(RR[p%3],4)}, {v(wr,2)}, {v(b,2)}, 0""")
    def s2(p):
        t0 = ACC[2*p]; t1 = ACC[2*p+1] if 2*p+1 < NT else ACC[2*p]
        g0, g1 = G0[p%2], G1[p%2]
        for r in range(4): a(f"  v_mul_f32 {v(AGG+r)}, {v(t0+r)}, {v(g0+r)}")
        for r in range(4): a(f"  v_mul_f32_dpp {v(AGG+r)}, {v(t1+r)}, {v(g0+r)} row_ror:8 row_mask:0xf bank_mask:0xc")
        for r in range(4): a(f"  v_fmac_f32_dpp {v(AGG+r)}, {v(t0+r)}, {v(g1+r)} row_ror:8 row_mask:0xf bank_mask:0x3")
        for r in range(4): a(f"  v_fmac_f32_dpp {v(AGG+r)}, {v(t1+r)}, {v(g1+r)} quad_perm:[0,1,2,3] row_mask:0xf bank_mask:0xc")
        a(f"""
  v_cvt_pk_bf16_f32 {v(AG)}, {v(AGG)}, {v(AGG+1)}
  v_cvt_pk_bf16_f32 {v(AG+1)}, {v(AGG+2)}, {v(AGG+3)}""")
    def s2m(p):
        a(f"  v_mfma_f32_16x16x16_bf16 {v(U[p%2],4)}, {v(WUP,2)}, {v(AG,2)}, 0")
    def s3a(p):
        x = ACC[2*p]
        a(f"""
  v_lshlrev_b32 {v(x)}, 16, {v(MR+2*p)}
  v_and_b32 {v(x+1)}, 0xffff0000, {v(MR+2*p)}
  v_lshlrev_b32 {v(x+2)}, 16, {v(MR+2*p+1)}
  v_and_b32 {v(x+3)}, 0xffff0000, {v(MR+2*p+1)}""")
    def s3b(p):
        x = ACC[2*p]; u = U[p%2]; r = RR[p%3]
        a(f"""
  v_pk_fma_f32 {v(x,2)}, {v(u,2)}, {v(r,2)}, {v(x,2)}
  v_pk_fma_f32 {v(x+2,2)}, {v(u+2,2)}, {v(r+2,2)}, {v(x+2,2)}
  v_cvt_pk_bf16_f32 {v(x)}, {v(x)}, {v(x+1)}
  v_cvt_pk_bf16_f32 {v(x+1)}, {v(x+2)}, {v(x+3)}
  ds_write_b64 {v(vI1)}, {v(x,2)} offset:{p*512}""")
    s1(0)
    a("  s_nop 4")
    for p in range(14):
        if p + 1 < 13: s1(p + 1)
        if p < 13:
            s2(p)
            s3a(p)
            s2m(p)
        else:
            a("  s_nop 3")
        if p > 0: s3b(p - 1)
    stamp(a, 252, 5)
    Y = POOL
    for r in range(7):
        a(f"  ds_read_b128 {v(Y+4*r,4)}, {v(vI4)} offset:{r*1024}")
    for r in range(7):
        a(f"  s_waitcnt lgkmcnt({6-r})")
        a(f"  buffer_store_dwordx4 {v(Y+4*r,4)}, {v(vI6)}, {s(sOUT,4)}, s{sEb if r < 4 else sEb2} offen offset:{(r%4)*1024}")
    stamp(a, 252, 6)
    if OPT["stamp"]: a("  s_waitcnt vmcnt(0)")
    stamp(a, 252, 7); stamp(a, 252, 63, "s_memrealtime")
    if OPT["stamp"]: a(f"  v_writelane_b32 v252, s{sIt}, 61")
    stamp_out(a, 252, sWS, 8, STAMPOFF + 0x200000, 253)
    a.label("L_end")
    a("  s_endpgm")

    a.label("L_slow")
    a(f"  s_mov_b32 s{sX}, 512")
    a.label("L_slow_loop")
    a(f"""
  v_add_u32 {v(T+1)}, s{sX}, {v(vCarIdx)}
  v_cmp_gt_u32 vcc, s{sCin}, {v(T+1)}
  v_lshlrev_b32 {v(T+1)}, 3, {v(T+1)}
  s_nop 0
  v_cndmask_b32 {v(T+1)}, {v(vOOB)}, {v(T+1)}, vcc
  buffer_load_dwordx2 {v(REC[16],2)}, {v(T+1)}, {s(sCAR,4)}, s{sCarR} offen sc1
  s_waitcnt vmcnt(0)""")
    ins1(16, "0", TA[0], RK[0], sMk[0])
    a("  s_waitcnt lgkmcnt(0)")
    ins2(16, "sl", TA[0], RK[0], sMk[0])
    a(f"""
  s_add_u32 s{sX}, s{sX}, 512
  s_cmp_lt_u32 s{sX}, s{sCin}
  s_cbranch_scc1 L_slow_loop
  s_waitcnt vmcnt(0)
  s_branch L_slow_back""")
    for lab, u, rk in rare:
        a.label(f"L_rare_{lab}")
        a(f"""
  s_mov_b64 {s(sT,2)}, exec
  s_mov_b64 exec, vcc
  ds_add_rtn_u32 {v(rk)}, {v(vCtlN)}, {v(vOne)}
  s_waitcnt lgkmcnt(0)
  v_lshlrev_b32 {v(rk)}, 3, {v(rk)}
  buffer_store_dwordx2 {v(REC[u],2)}, {v(rk)}, {s(sCAR,4)}, s{sCarW} offen
  s_andn2_b64 exec, {s(sT,2)}, vcc
  s_branch L_back_{lab}""")
    return NV

def kd(name, nv, ns):
    nv4 = (nv + 3) // 4 * 4
    return f""".amdhsa_kernel {name}
  .amdhsa_next_free_vgpr {nv}
  .amdhsa_next_free_sgpr {ns}
  .amdhsa_accum_offset {nv4}
  .amdhsa_group_segment_fixed_size 0
  .amdhsa_kernarg_size 112
  .amdhsa_user_sgpr_count 2
  .amdhsa_user_sgpr_kernarg_segment_ptr 1
  .amdhsa_system_sgpr_workgroup_id_x 1
  .amdhsa_float_denorm_mode_32 3
.end_amdhsa_kernel
"""

def main():
    out = sys.argv[1]
    ref = open(f"cdna_kernels/{NAME}.s.ref").read().split("\n")
    head = [l for l in ref if l.startswith(";") and "@launch" not in l and "Override" not in l and "grid=ceil" not in l]
    a = Asm()
    a(".amdgcn_target \"amdgcn-amd-amdhsa--gfx950\"\n.text")
    a(f".globl bin_kernel\n.type bin_kernel,@function\n.globl {NAME}_kernel\n.type {NAME}_kernel,@function")
    gen_p1(a)
    nv = gen_p2(a)
    errs = a.check()
    for e in errs: print("HAZARD", e)
    txt = "\n".join(head) + "\n"
    txt += f"; @launch kernel=bin_kernel grid=({NCH},1,1) block=(1024,1,1) lds={P1_LDS}\n"
    txt += f"; @launch kernel={NAME}_kernel grid=(256,1,1) block=(512,1,1) lds={P2_LDS}\n"
    txt += a.text()
    txt += ".section .rodata,\"a\"\n.p2align 6\n" + kd("bin_kernel", 128, 96) + ".p2align 6\n" + kd(NAME + "_kernel", 256 if OPT["stamp"] else nv, 96)
    open(out, "w").write(txt)
    print("vgprs p2:", nv, "lines:", len(a.lines), "hazards:", len(errs))

main()
```

```python
import sys, os
sys.path.insert(0, os.path.dirname(__file__))
from asmlib import Asm

NAME = "gather_scatter__molecular_angular_gemnet__graph"
E = 400000
NCH, CH = 250, 25600
EB = 1568
K = 6
MJ = 2739138
TABOFF = 0x2800000
CAROFF = 0x3000000
CARCAP = 9216
CARLIST = CARCAP * 8
STAMPOFF = 0x6000000
OPT = dict(stamp=0, itcap=64, ld_nt=7, st_pol=0, mtouch=0, la=3, apre=3, wmain=78000, b5=368000, ins0=4,
           abl_mfma=0, abl_s=0, abl_cos=0, abl_g=0)
for a in sys.argv[2:]:
    k, v = a.split("=")
    assert k in OPT, k
    OPT[k] = int(v)
MK = -(-(1 << 32) // OPT["wmain"])
assert (399999 * MK) >> 32 <= 5

def v(i, n=1):
    return f"v{i}" if n == 1 else f"v[{i}:{i+n-1}]"
def s(i, n=1):
    return f"s{i}" if n == 1 else f"s[{i}:{i+n-1}]"

def stamp(a, vreg, lane, op="s_memtime"):
    if not OPT["stamp"]: return
    a(f"  {op} s[88:89]\n  s_waitcnt lgkmcnt(0)\n  v_writelane_b32 v{vreg}, s88, {lane}")
def stamp_out(a, vreg, wslo, nwaves, base, tmp):
    if not OPT["stamp"]: return
    a(f"  s_mul_i32 s88, s2, {nwaves*256}\n  s_add_u32 s88, s88, {base}")
    srd(a, 92, wslo, wslo+1, "s88", nwaves*256)
    a(f"  v_lshlrev_b32 v{tmp}, 2, v0\n  buffer_store_dword v{vreg}, v{tmp}, s[92:95], 0 offen")

def srd(a, d, lo, hi, add, size):
    if add is None:
        a(f"  s_mov_b32 s{d}, s{lo}\n  s_mov_b32 s{d+1}, s{hi}")
    else:
        a(f"  s_add_u32 s{d}, s{lo}, {add}\n  s_addc_u32 s{d+1}, s{hi}, 0")
    a(f"  s_mov_b32 s{d+2}, {size}\n  s_mov_b32 s{d+3}, 0x20000")

P1_CNT, P1_SENT, P1_TMP, P1_REC = 0, 6144, 6160, 6272
P1_LDS = P1_REC + CH * 6

def gen_p1(a):
    O, I, A, R = 8, 36, 64, 80
    T = 108
    nto, nti, nta = (" nt" if OPT["ld_nt"] >> b & 1 else "" for b in range(3))
    a(".p2align 8")
    a.label("bin_kernel")
    a(f"""
  s_cmp_ge_u32 s2, {NCH}
  s_cbranch_scc1 L_bin_end
  s_load_dwordx4 s[8:11], s[0:1], 8
  s_load_dwordx2 s[4:5], s[0:1], 0
  s_load_dwordx2 s[6:7], s[0:1], 32
  s_load_dwordx2 s[12:13], s[0:1], 104
  v_lshlrev_b32 v1, 4, v0
  v_mov_b64 {v(T,2)}, 0
  v_mov_b64 {v(T+2,2)}, 0
  s_mul_i32 s14, s2, {CH*4}
  s_mov_b32 s40, 16384
  ds_write_b128 v1, {v(T,4)}
  s_waitcnt lgkmcnt(0)""")
    stamp(a, 127, 0); stamp(a, 127, 62, "s_memrealtime")
    srd(a, 20, 10, 11, "s14", CH * 4)
    srd(a, 16, 8, 9, "s14", CH * 4)
    so4 = lambda q: "0" if q == 0 else f"s{39+q}"
    so2 = lambda q: "0" if q == 0 else f"s{49+q}"
    vm = []
    def ld_pair(q):
        if q < 6:
            a(f"  buffer_load_dwordx4 {v(O+4*q,4)}, v1, s[20:23], {so4(q)} offen{nto}")
            a(f"  buffer_load_dwordx4 {v(I+4*q,4)}, v1, s[16:19], {so4(q)} offen{nti}")
        else:
            a(f"  buffer_load_dword {v(O+24)}, v3, s[20:23], {so4(6)} offen{nto}")
            a(f"  buffer_load_dword {v(I+24)}, v3, s[16:19], {so4(6)} offen{nti}")
        vm.extend([("o", q), ("p", q)])
    def ld_ang(q):
        if q < 6: a(f"  buffer_load_dwordx2 {v(A+2*q,2)}, v2, s[24:27], {so2(q)} offen{nta}")
        else: a(f"  buffer_load_ushort {v(A+12)}, v4, s[24:27], {so2(6)} offen{nta}")
        vm.append(("a", q))
    def wait_for(x):
        a(f"  s_waitcnt vmcnt({len(vm) - 1 - vm.index(x)})")
    ld_pair(0); ld_pair(1)
    a("  s_barrier")
    for q in range(2, 10): a(f"  s_mov_b32 s{39+q}, {q*16384}")
    LA = OPT["la"]
    for q in range(2, LA): ld_pair(q)
    a(f"""
  v_lshlrev_b32 v2, 3, v0
  v_lshlrev_b32 v3, 2, v0
  v_lshlrev_b32 v4, 1, v0
  v_lshlrev_b32 v5, 7, v0
  v_mov_b32 v7, 1
  v_lshrrev_b32 {v(T+4)}, 6, v0
  s_mul_i32 s15, s2, {CH*2}
  s_mul_i32 s62, s2, {CH*6}
  s_lshl_b32 s63, s2, 5
  s_mov_b32 s56, {MJ}
  s_mov_b32 s57, {MK}
  s_mov_b32 s58, {-EB & 0xffffffff}
  s_mov_b32 s59, {OPT['b5']}
  v_readfirstlane_b32 s60, {v(T+4)}""")
    for q in range(1, 7): a(f"  s_mov_b32 s{49+q}, {q*8192}")
    srd(a, 24, 6, 7, "s15", CH * 2)
    srd(a, 28, 4, 5, "s15", CH * 2)
    srd(a, 32, 12, 13, "s62", CH * 6)
    srd(a, 36, 12, 13, TABOFF, 256 * 8192)
    def hist(idx):
        for x, i in enumerate(idx): a(f"  v_cmp_le_u32 {s(64+2*x,2)}, s59, {v(I+i)}")
        for x, i in enumerate(idx): a(f"  v_mul_hi_u32_u24 {v(T+x)}, s56, {v(O+i)}")
        for x, i in enumerate(idx): a(f"  v_mul_hi_u32_u24 {v(T+4+x)}, s57, {v(I+i)}")
        for x, i in enumerate(idx): a(f"  v_cndmask_b32 {v(T+4+x)}, {v(T+4+x)}, 5, {s(64+2*x,2)}")
        for x, i in enumerate(idx): a(f"  v_mad_i32_i24 {v(T+8+x)}, {v(T+x)}, s58, {v(O+i)}")
        for x, i in enumerate(idx): a(f"  v_lshl_add_u32 {v(O+i)}, {v(T+4+x)}, 8, {v(T+x)}")
        for x, i in enumerate(idx): a(f"  v_lshlrev_b32 {v(O+i)}, 2, {v(O+i)}")
        for x, i in enumerate(idx): a(f"  ds_add_rtn_u32 {v(R+i)}, {v(O+i)}, v7")
        for x, i in enumerate(idx): a(f"  v_lshl_or_b32 {v(I+i)}, {v(T+8+x)}, 20, {v(I+i)}")
        for x, i in enumerate(idx): a(f"  v_or_b32 {v(I+i)}, 0x80000000, {v(I+i)}")
    na = 0
    for q in range(7):
        wait_for(("p", q))
        if q in (0, 6): stamp(a, 127, 1 if q == 0 else 2)
        if q + LA < 7: ld_pair(q + LA)
        else:
            for _ in range(2):
                if na < OPT["apre"]: ld_ang(na); na += 1
        hist(list(range(4*q, 4*q+4)) if q < 6 else [24])
    stamp(a, 127, 3)
    a(f"""
  s_waitcnt lgkmcnt(0)
  s_barrier
  s_cmp_ge_u32 s60, {K}
  s_cbranch_scc1 L_bin_s1
  ds_read_b128 {v(T,4)}, v1
  v_and_b32 {v(T+8)}, 63, v0
  s_waitcnt lgkmcnt(0)
  v_add_u32 {v(T+1)}, {v(T)}, {v(T+1)}
  v_add_u32 {v(T+2)}, {v(T+1)}, {v(T+2)}
  v_add_u32 {v(T+3)}, {v(T+2)}, {v(T+3)}
  v_mov_b32 {v(T+4)}, {v(T+3)}""")
    X = v(T+4)
    for sh in (1, 2, 4, 8):
        a(f"  s_nop 1\n  v_add_u32_dpp {X}, {X}, {X} row_shr:{sh} row_mask:0xf bank_mask:0xf bound_ctrl:0")
    a(f"  s_nop 1\n  v_add_u32_dpp {X}, {X}, {X} row_bcast:15 row_mask:0xa bank_mask:0xf")
    a(f"  s_nop 1\n  v_add_u32_dpp {X}, {X}, {X} row_bcast:31 row_mask:0xc bank_mask:0xf")
    a(f"""
  v_cmp_lt_u32 vcc, s60, {v(T+8)}
  v_readlane_b32 s61, {X}, 63
  v_lshlrev_b32 {v(T+9)}, 2, {v(T+8)}
  s_and_b32 vcc_lo, vcc_lo, 0xff
  s_mov_b32 vcc_hi, 0
  v_mov_b32 {v(T+10)}, s61
  s_mov_b64 exec, vcc
  ds_add_u32 {v(T+9)}, {v(T+10)} offset:{P1_TMP}
  s_mov_b64 exec, -1
  s_waitcnt lgkmcnt(0)""")
    a.label("L_bin_s1")
    a(f"""
  s_barrier
  s_cmp_ge_u32 s60, {K}
  s_cbranch_scc1 L_bin_s2
  s_lshl_b32 s61, s60, 2
  v_mov_b32 {v(T+9)}, s61
  ds_read_b32 {v(T+9)}, {v(T+9)} offset:{P1_TMP}
  v_sub_u32 {X}, {X}, {v(T+3)}
  v_mov_b32 {v(T+10)}, {CH}
  v_mov_b32 {v(T+11)}, 0
  s_waitcnt lgkmcnt(0)
  v_add_u32 {v(T+4)}, {X}, {v(T+9)}
  v_add_u32 {v(T+5)}, {v(T+4)}, {v(T)}
  v_add_u32 {v(T+6)}, {v(T+4)}, {v(T+1)}
  v_add_u32 {v(T+7)}, {v(T+4)}, {v(T+2)}
  ds_write_b128 v1, {v(T+4,4)}
  ds_write_b32 {v(T+11)}, {v(T+10)} offset:{P1_SENT}
  s_waitcnt lgkmcnt(0)""")
    a.label("L_bin_s2")
    a("  s_barrier")
    stamp(a, 127, 4)
    while na < 7: ld_ang(na); na += 1
    if OPT["mtouch"]:
        a(f"  buffer_load_dword v6, v5, s[28:31], 0 offen"); vm.append(("m", 0))
    for i in range(25):
        a(f"  ds_read_b32 {v(O+i)}, {v(O+i)}")
    a(f"  v_mov_b32 v2, 6\n  v_mov_b32 v3, 2")
    for g in range(0, 25, 5):
        idx = list(range(g, g+5))
        a("  s_waitcnt lgkmcnt(10)")
        for i in idx: a(f"  v_add_u32 {v(O+i)}, {v(O+i)}, {v(R+i)}")
        for i in idx: a(f"  v_mad_u32_u24 {v(O+i)}, {v(O+i)}, v2, v3")
        for i in idx: a(f"  v_and_b32 {v(R+i)}, -4, {v(O+i)}")
        for i in idx: a(f"  ds_write_b32 {v(R+i)}, {v(I+i)} offset:{P1_REC}")
    for i in range(25): a(f"  v_and_b32 {v(R+i)}, 2, {v(O+i)}")
    for i in range(25): a(f"  v_lshl_add_u32 {v(O+i)}, {v(R+i)}, 1, {v(O+i)}")
    stamp(a, 127, 5)
    for q in range(7):
        wait_for(("a", q))
        for r in range(2 if q < 6 else 1):
            a(f"  v_and_b32 {v(A+2*q+r)}, 0x7fff7fff, {v(A+2*q+r)}")
        for i in range(4*q, min(4*q+4, 25)):
            op = "ds_write_b16_d16_hi" if (i & 1) else "ds_write_b16"
            a(f"  {op} {v(O+i)}, {v(A + i//2)} offset:{P1_REC-2}")
    stamp(a, 127, 6)
    a(f"  v_add_u32 v2, {P1_REC+4*16384}, v1\n  v_add_u32 v3, {P1_REC+8*16384}, v1\n  v_add_u32 v4, {P1_REC}, v1")
    a("  s_waitcnt lgkmcnt(0)\n  s_barrier")
    stamp(a, 127, 7)
    for r in range(10):
        base = ("v4", "v2", "v3")[r // 4]
        a(f"  ds_read_b128 {v(8+4*r,4)}, {base} offset:{(r%4)*16384}")
    spol = ("", " nt", " sc1", " sc0 sc1", " sc0")[OPT["st_pol"]]
    for r in range(10):
        a(f"  s_waitcnt lgkmcnt({9-r})")
        a(f"  buffer_store_dwordx4 {v(8+4*r,4)}, v1, s[32:35], {so4(r)} offen{spol}")
    stamp(a, 127, 8)
    if OPT["stamp"]: a("  s_waitcnt vmcnt(0)")
    stamp(a, 127, 9); stamp(a, 127, 63, "s_memrealtime")
    stamp_out(a, 127, 12, 16, STAMPOFF, 126)
    a(f"""
  s_cmp_lt_u32 s60, 12
  s_cbranch_scc1 L_bin_end
  v_and_b32 {v(T+12)}, 0xff, v0
  v_lshlrev_b32 {v(T+13)}, 2, {v(T+12)}
  v_lshlrev_b32 {v(T+12)}, 13, {v(T+12)}""")
    for k in range(K):
        a(f"  ds_read_b32 {v(T+k)}, {v(T+13)} offset:{k*1024}")
        a(f"  ds_read_b32 {v(T+6+k)}, {v(T+13)} offset:{k*1024+4}")
    a("  s_waitcnt lgkmcnt(0)")
    for k in range(K):
        a(f"  v_sub_u32 {v(T+6+k)}, {v(T+6+k)}, {v(T+k)}")
    for k in range(K):
        a(f"  v_lshl_or_b32 {v(T+k)}, {v(T+6+k)}, 16, {v(T+k)}")
    a(f"""
  buffer_store_dwordx4 {v(T,4)}, {v(T+12)}, s[36:39], s63 offen{spol}
  buffer_store_dwordx2 {v(T+4,2)}, {v(T+12)}, s[36:39], s63 offen offset:16{spol}""")
    a.label("L_bin_end")
    a("  s_endpgm")

TS = 264
BUFSZ = 200 * TS
S_OFF = 2 * BUFSZ
CTL = S_OFF + 8192
RB_OFF = CTL + 128
P2_LDS = RB_OFF + 8 * 3584
D = 5
NT = 25

class RA:
    def __init__(self, start): self.n = start
    def __call__(self, k=1, al=1):
        self.n = (self.n + al - 1) // al * al
        r = self.n; self.n += k
        return r

def gen_p2(a):
    ra = RA(1)
    vSlot, vHalf, vFreq, vSst, vSrd, vI6, vI1, vI4 = (ra() for _ in range(8))
    vRd, vCntA, vOne, vOOB, vCarOff, vCarIdx, v264, vMsk, vCtlN = (ra() for _ in range(9))
    vZ = ra(2, 2)
    Q = ra(6, 4)
    sA, nA, cb, rem, rtot, vA6, vB6, vR0, vRT4 = (ra() for _ in range(9))
    vCnt = ra()
    Wa = ra(4, 4); Wb = ra(4, 4)
    RING = [ra(4, 4) for _ in range(D)]
    Da = ra(4, 4); Db = ra(4, 4); P = ra(4, 4); Sf = ra(4, 4)
    ACC = [ra(4, 4) for _ in range(NT)]
    REC = [ra(2, 4 if i == 0 else 2) for i in range(17)]
    RP = [ra(2, 2), ra(2, 2)]
    T = ra(10, 2)
    WS0 = ra(2, 2); WS1 = ra(2, 2); WR = ra(2, 2); WUP = ra(2, 2)
    CC = [ra() for _ in range(D)]; SA = [ra() for _ in range(D)]
    TA = [ra(), ra()]; RK = [ra(), ra()]
    vMoff = ra()
    assert ra.n <= 252, ra.n
    NV = ra.n
    POOL = RING[0]
    assert Sf + 4 - POOL == 36
    sM = 4; sREC = 8; sCAR = 12; sTAB = 16; sOUT = 20; sDIST = 24; sMW = 28
    sJ, sW, sIt, sThr, sIns, sCarW, sCarR, sDid, sCin, sX, sFl, sEb = range(32, 44)
    sCnt = [44, 45]
    sWS = 46
    sMk = [80, 82]; sT = 84; sMv = 86; sEb2 = 87
    rare = []

    a(".p2align 8")
    a.label(NAME + "_kernel")
    a(f"""
  s_cmp_ge_u32 s2, 256
  s_cbranch_scc1 L_end
  s_load_dwordx2 s[46:47], s[0:1], 104
  s_load_dwordx16 s[48:63], s[0:1], 0
  s_load_dwordx8 s[64:71], s[0:1], 64
  s_and_b32 s{sJ}, s2, 7
  s_lshl_b32 s{sJ}, s{sJ}, 5
  s_lshr_b32 s{sX}, s2, 3
  s_add_u32 s{sJ}, s{sJ}, s{sX}
  v_lshrrev_b32 {v(T)}, 6, v0
  v_and_b32 {v(T+1)}, 63, v0
  v_and_b32 {v(vSlot)}, 31, v0
  v_readfirstlane_b32 s{sW}, {v(T)}
  v_and_b32 {v(T+2)}, 15, v0
  v_bfe_u32 {v(T+3)}, v0, 5, 1
  v_lshlrev_b32 {v(vHalf)}, 4, {v(T+3)}
  v_lshl_add_u32 {v(cb)}, {v(T)}, 5, {v(vHalf)}
  v_add_u32 {v(cb)}, {v(cb)}, {v(T+2)}
  v_lshlrev_b32 {v(T+4)}, 5, {v(cb)}
  s_lshl_b32 s{sX}, s{sJ}, 13
  s_add_u32 s{sX}, s{sX}, {TABOFF}
  s_mul_i32 s{sFl}, s{sJ}, {2*CARLIST}
  s_add_u32 s{sFl}, s{sFl}, {CAROFF}
  s_waitcnt lgkmcnt(0)""")
    stamp(a, 252, 0); stamp(a, 252, 62, "s_memrealtime")
    srd(a, sTAB, sWS, sWS+1, f"s{sX}", NCH * 32)
    a(f"""
  buffer_load_dwordx4 {v(Q,4)}, {v(T+4)}, {s(sTAB,4)}, 0 offen
  buffer_load_dwordx2 {v(Q+4,2)}, {v(T+4)}, {s(sTAB,4)}, 0 offen offset:16""")
    srd(a, sM, 48, 49, None, E * 32)
    srd(a, sREC, sWS, sWS+1, None, NCH * CH * 6)
    srd(a, sCAR, sWS, sWS+1, f"s{sFl}", 2 * CARLIST)
    srd(a, sDIST, 54, 55, None, E * 2)
    a(f"""
  s_mul_i32 s{sEb}, s{sJ}, {EB}
  s_mul_i32 s{sX}, s{sW}, 200
  s_add_u32 s{sFl}, s{sEb}, {EB}
  s_add_u32 s{sEb}, s{sEb}, s{sX}
  s_add_u32 s{sX}, s{sEb}, 200
  s_min_u32 s{sX}, s{sX}, s{sFl}
  s_min_u32 s{sX}, s{sX}, {E}
  s_lshl_b32 s{sX}, s{sX}, 5""")
    srd(a, sOUT, 70, 71, None, f"s{sX}")
    srd(a, sMW, 48, 49, None, f"s{sX}")
    ST = ACC[0]
    DI = ST + 20
    g4 = T + 5
    a(f"""
  v_lshlrev_b32 {v(T+6)}, 1, {v(T+2)}
  v_lshl_add_u32 {v(T+7)}, {v(T+3)}, 8, {v(T+6)}
  v_bfe_u32 {v(g4)}, v0, 4, 2
  s_lshl_b32 s{sX}, s{sEb}, 1
  s_lshl_b32 s{sEb}, s{sEb}, 5
  s_add_u32 s{sEb2}, s{sEb}, 4096
  v_lshlrev_b32 {v(T+9)}, 2, {v(g4)}""")
    a(f"  global_load_dword {v(ST+18)}, {v(T+9)}, s[58:59]")
    for p in range(13):
        a(f"  buffer_load_ushort {v(DI+p)}, {v(T+6)}, {s(sDIST,4)}, s{sX} offen offset:{p*32}")
    for r in range(8):
        a(f"  global_load_ushort {v(ST+r)}, {v(T+7)}, s[66:67] offset:{r*32}")
    a(f"""
  v_lshl_add_u32 {v(T+7)}, {v(g4)}, 7, {v(T+6)}
  v_lshl_add_u32 {v(T+8)}, {v(g4)}, 6, {v(T+6)}
  v_lshlrev_b32 {v(T+6)}, 1, {v(T+3)}""")
    for r in range(4):
        a(f"  global_load_ushort {v(ST+8+r)}, {v(T+7)}, s[64:65] offset:{r*32}")
    for r in range(4):
        a(f"  global_load_ushort {v(ST+12+r)}, {v(T+7)}, s[68:69] offset:{r*32}")
    for r in range(2):
        a(f"  global_load_ushort {v(ST+16+r)}, {v(T+8)}, s[62:63] offset:{r*32}")
    a(f"  global_load_ushort {v(ST+19)}, {v(T+6)}, s[60:61]")
    NW = 33
    a(f"""
  v_mov_b64 {v(vZ,2)}, 0
  v_mov_b64 {v(Da,2)}, 0
  v_mov_b64 {v(Da+2,2)}, 0
  v_mov_b32 {v(v264)}, {TS}
  v_min_u32 {v(T+6)}, 399, v0
  v_mul_u32_u24 {v(T+6)}, {v(T+6)}, {v(v264)}
  ds_write_b32 {v(T+6)}, {v(vZ)}
  s_lshl_b32 s{sX}, s{sW}, 10
  s_add_u32 s{sX}, s{sX}, {S_OFF}
  v_lshl_add_u32 {v(vSrd)}, {v(T+1)}, 4, s{sX}
  ds_write_b128 {v(vSrd)}, {v(Da,4)}
  v_mov_b32 {v(vCtlN)}, {CTL}
  v_and_b32 {v(T+6)}, 7, v0
  v_lshl_add_u32 {v(T+6)}, {v(T+6)}, 2, {v(vCtlN)}
  ds_write_b32 {v(T+6)}, {v(vZ)}
  v_mov_b32 {v(vOne)}, 1
  v_mov_b32 {v(vOOB)}, 0x80000000
  v_mov_b32 {v(vMsk)}, 0x7ffffffc
  v_mul_u32_u24 {v(vI6)}, 6, {v(vSlot)}
  v_add_u32 {v(vI1)}, 1, {v(vSlot)}
  v_lshlrev_b32 {v(vI4)}, 2, {v(vI1)}
  v_sub_u32 {v(vCarIdx)}, 511, v0
  v_lshlrev_b32 {v(vCarOff)}, 3, {v(vCarIdx)}
  v_bfe_u32 {v(T+6)}, v0, 2, 2
  v_lshlrev_b32 {v(vSst)}, 8, {v(T+6)}
  v_lshl_add_u32 {v(vSst)}, {v(T+3)}, 7, {v(vSst)}
  v_bfe_u32 {v(T+6)}, v0, 4, 1
  v_lshl_add_u32 {v(vSst)}, {v(T+6)}, 3, {v(vSst)}
  v_and_b32 {v(T+6)}, 3, v0
  v_lshl_add_u32 {v(vSst)}, {v(T+6)}, 1, {v(vSst)}
  v_add_u32 {v(vSst)}, s{sX}, {v(vSst)}
  s_mul_i32 s{sX}, s{sW}, {NT*TS}
  s_add_u32 s{sX}, s{sX}, {BUFSZ}
  v_lshl_add_u32 {v(vRd)}, {v(vSlot)}, 3, s{sX}
  v_min_u32 {v(T+6)}, {NT-1}, {v(T+1)}
  v_mad_u32_u24 {v(vCntA)}, {v(T+6)}, {v(v264)}, s{sX}
  v_lshlrev_b32 {v(T+6)}, 3, {v(g4)}
  v_lshl_add_u32 {v(vMoff)}, {v(T+2)}, 5, {v(T+6)}
  v_mov_b32 {v(T+6)}, {CH}
  v_mul_u32_u24 {v(cb)}, {v(cb)}, {v(T+6)}
  v_mov_b32 {v(sA)}, 0
  v_mov_b32 {v(nA)}, 0
  v_mov_b32 {v(rtot)}, 0
  s_mul_i32 s{sX}, s{sW}, 3584
  s_add_u32 s{sX}, s{sX}, {RB_OFF}
  v_lshl_add_u32 {v(T+9)}, {v(T+1)}, 3, s{sX}
  s_mov_b32 s{sIt}, -1
  s_mov_b32 s{sThr}, 0
  s_mov_b32 s{sIns}, 0
  s_mov_b32 s{sCarW}, 0
  s_mov_b32 s{sCarR}, {CARLIST}
  s_mov_b32 s{sDid}, 0
  s_mov_b32 s{sMv}, 0""")

    def state_update():
        a(f"""
  v_sub_u32 {v(rem)}, {v(rem)}, {v(rtot)}
  v_lshrrev_b32 {v(T)}, 16, {v(Q)}
  v_and_b32 {v(T+1)}, 0xffff, {v(Q)}
  v_min_u32 {v(vR0)}, 32, {v(nA)}
  v_cmp_ge_u32 vcc, 32, {v(nA)}
  v_sub_u32 {v(T+2)}, 32, {v(vR0)}
  v_min_u32 {v(T+2)}, {v(T)}, {v(T+2)}
  v_add_u32 {v(vA6)}, {v(cb)}, {v(sA)}
  v_mul_u32_u24 {v(vA6)}, 6, {v(vA6)}
  v_add_u32 {v(vB6)}, {v(cb)}, {v(T+1)}
  v_mul_u32_u24 {v(vB6)}, 6, {v(vB6)}
  v_mad_i32_i24 {v(vB6)}, {v(vR0)}, -6, {v(vB6)}
  v_add_u32 {v(rtot)}, {v(vR0)}, {v(T+2)}
  v_lshlrev_b32 {v(vRT4)}, 2, {v(rtot)}
  v_add_u32 {v(sA)}, 32, {v(sA)}
  v_subrev_u32 {v(nA)}, 32, {v(nA)}
  v_add_u32 {v(T+1)}, {v(T+1)}, {v(T+2)}
  v_sub_u32 {v(T)}, {v(T)}, {v(T+2)}
  v_cndmask_b32 {v(sA)}, {v(sA)}, {v(T+1)}, vcc
  v_cndmask_b32 {v(nA)}, {v(nA)}, {v(T)}, vcc""")
        for i in range(K - 1):
            a(f"  v_cndmask_b32 {v(Q+i)}, {v(Q+i)}, {v(Q+i+1)}, vcc")
        a(f"  v_cndmask_b32 {v(Q+K-1)}, {v(Q+K-1)}, {v(vZ)}, vcc")

    def rec_load(u, t0):
        bc = f"row_newbcast:{u} row_mask:0xf bank_mask:0xf"
        a(f"""
  v_sub_co_u32_dpp {v(t0)}, vcc, {v(vR0)}, {v(vI1)} {bc}
  v_add_u32_dpp {v(t0)}, {v(vA6)}, {v(vI6)} {bc}
  v_add_u32_dpp {v(t0+1)}, {v(vB6)}, {v(vI6)} {bc}
  v_cndmask_b32 {v(t0)}, {v(t0)}, {v(t0+1)}, vcc
  v_sub_u32_dpp {v(t0+1)}, {v(vRT4)}, {v(vI4)} {bc}
  v_bfi_b32 {v(t0)}, {v(vMsk)}, {v(t0)}, {v(t0+1)}
  buffer_load_dwordx2 {v(REC[u],2)}, {v(t0)}, {s(sREC,4)}, 0 offen""")

    def ins1(u, thr, ta, rk, mk):
        a(f"""
  v_min_i32 {v(ta)}, {v(REC[u])}, {v(REC[u]+1)}
  v_cmp_gt_i32 {s(mk,2)}, {thr}, {v(ta)}
  v_bfe_u32 {v(ta)}, {v(ta)}, 23, 8
  v_mad_u32_u24 {v(ta)}, {v(ta)}, {v(v264)}, s{sIns}
  s_mov_b64 exec, {s(mk,2)}
  ds_add_rtn_u32 {v(rk)}, {v(ta)}, {v(vOne)}
  s_mov_b64 exec, -1""")

    def ins2(u, tag, ta, rk, mk):
        lab = f"{tag}_{u}"
        a(f"""
  s_mov_b64 exec, {s(mk,2)}
  v_cmp_lt_u32 vcc, 31, {v(rk)}
  v_lshl_add_u32 {v(ta)}, {v(rk)}, 3, {v(ta)}
  s_cbranch_vccnz L_rare_{lab}""")
        a.label(f"L_back_{lab}")
        a(f"""
  ds_write_b64 {v(ta)}, {v(REC[u],2)} offset:8
  s_mov_b64 exec, -1""")
        rare.append((lab, u, rk))

    stamp(a, 252, 14)
    a(f"  s_waitcnt vmcnt({NW})")
    stamp(a, 252, 1)
    a(f"  v_lshrrev_b32 {v(rem)}, 16, {v(Q)}")
    for i in range(1, K):
        a(f"  v_lshrrev_b32 {v(T)}, 16, {v(Q+i)}\n  v_add_u32 {v(rem)}, {v(rem)}, {v(T)}")
    state_update()
    for u in range(16):
        rec_load(u, T + 4 + 2 * (u & 1))
    state_update()
    stamp(a, 252, 12)
    a(f"  s_waitcnt vmcnt({16 + NW - 14})")
    CEN = T + 4
    a(f"""
  v_lshlrev_b32 {v(CEN)}, 16, {v(ST+18)}
  v_and_b32 {v(CEN+1)}, 0xffff0000, {v(ST+18)}
  s_mov_b32 s72, 0xc1200000
  s_mov_b32 s73, 0xc1200000
  s_mov_b32 s74, 0x3fb8aa3b
  s_mov_b32 s75, 0x3fb8aa3b
  v_mov_b32 {v(DI+13)}, 0""")
    for p0 in range(0, 13, 4):
        ps = list(range(p0, min(p0 + 4, 13)))
        tt = {p: POOL + 2 * (p - p0) for p in ps}
        def rnd():
            for p in ps: a(f"  v_cvt_pk_bf16_f32 {v(tt[p])}, 0, {v(tt[p])}\n  v_cvt_pk_bf16_f32 {v(tt[p]+1)}, 0, {v(tt[p]+1)}")
        for p in ps: a(f"  v_lshlrev_b32 {v(tt[p])}, 16, {v(DI+p)}")
        for p in ps: a(f"  v_pk_add_f32 {v(tt[p],2)}, {v(tt[p],2)}, {v(CEN,2)} op_sel_hi:[0,1] neg_lo:[0,1] neg_hi:[0,1]")
        if len(ps) == 1: a("  s_nop 0")
        rnd()
        for p in ps: a(f"  v_pk_mul_f32 {v(tt[p],2)}, {v(tt[p],2)}, {v(tt[p],2)}")
        rnd()
        for p in ps: a(f"  v_pk_mul_f32 {v(tt[p],2)}, {v(tt[p],2)}, s[72:73]")
        rnd()
        for p in ps: a(f"  v_pk_mul_f32 {v(tt[p],2)}, {v(tt[p],2)}, s[74:75]")
        for p in ps: a(f"  v_exp_f32 {v(tt[p])}, {v(tt[p])}\n  v_exp_f32 {v(tt[p]+1)}, {v(tt[p]+1)}")
        if len(ps) == 1: a("  s_nop 0")
        for p in ps: a(f"  v_cvt_pk_bf16_f32 {v(DI+p)}, {v(tt[p])}, {v(tt[p]+1)}")
    for h in range(7):
        a(f"  ds_write_b64 {v(T+9)}, {v(DI+2*h,2)} offset:{h*512}")
    stamp(a, 252, 13)
    a("  s_waitcnt vmcnt(16)")
    a(f"  v_bfe_u32 {v(T)}, v0, 4, 1\n  v_cmp_eq_u32 vcc, 1, {v(T)}")
    for r in range(4):
        a(f"  v_lshl_or_b32 {v(ST+2*r)}, {v(ST+2*r+1)}, 16, {v(ST+2*r)}")
    for r in range(4):
        a(f"  v_cndmask_b32 {v(Wa+r)}, {v(ST+2*r)}, {v(vZ)}, vcc")
        a(f"  v_cndmask_b32 {v(Wb+r)}, {v(vZ)}, {v(ST+2*r)}, vcc")
    a(f"""
  v_lshl_or_b32 {v(WS0)}, {v(ST+10)}, 16, {v(ST+8)}
  v_lshl_or_b32 {v(WS1)}, {v(ST+11)}, 16, {v(ST+9)}
  v_lshl_or_b32 {v(WUP)}, {v(ST+13)}, 16, {v(ST+12)}
  v_lshl_or_b32 {v(WUP+1)}, {v(ST+15)}, 16, {v(ST+14)}
  v_lshl_or_b32 {v(WR)}, {v(ST+17)}, 16, {v(ST+16)}
  v_mov_b32 {v(WS0+1)}, 0
  v_mov_b32 {v(WS1+1)}, 0
  v_mov_b32 {v(WR+1)}, 0
  v_lshlrev_b32 {v(vFreq)}, 16, {v(ST+19)}""")
    a("  s_waitcnt lgkmcnt(0)\n  s_barrier")
    stamp(a, 252, 2)
    a(f"  ds_write_b32 {v(vCtlN)}, {v(vOne)} offset:4")
    for u in range(16):
        a(f"  s_waitcnt vmcnt({15 - u})")
        if u == 0: stamp(a, 252, 3)
        ins1(u, "0", POOL + 2*u, POOL + 2*u + 1, 48 + 2*u)
    stamp(a, 252, 8)
    for t in range(NT):
        a(f"  v_mov_b64 {v(ACC[t],2)}, 0\n  v_mov_b64 {v(ACC[t]+2,2)}, 0")
    a("  s_waitcnt lgkmcnt(0)")
    stamp(a, 252, 9)
    for u in range(16):
        ins2(u, "pro", POOL + 2*u, POOL + 2*u + 1, 48 + 2*u)
    stamp(a, 252, 10)
    for u in range(16):
        rec_load(u, T + 4 + 2 * (u & 1))
    stamp(a, 252, 11)
    for q in range(D):
        a(f"  v_mov_b64 {v(RING[q],2)}, 0\n  v_mov_b64 {v(RING[q]+2,2)}, 0")
        a(f"  v_mov_b32 {v(CC[q])}, 0\n  v_mov_b32 {v(SA[q])}, {v(vSst)}")
    a("  s_waitcnt vmcnt(16)\n  s_branch L_turn2")

    INS0 = OPT["ins0"]
    def cstage_head(q):
        if OPT["abl_s"]: return
        a(f"""
  ds_write_b16 {v(SA[q])}, {v(CC[q])}
  ds_read_b128 {v(Sf,4)}, {v(vSrd)}
  ds_write_b16 {v(SA[q])}, {v(vZ)}""")
    def cstage_m1(q):
        if OPT["abl_mfma"]: return
        a(f"""
  v_mfma_f32_16x16x32_bf16 {v(Da,4)}, {v(RING[q],4)}, {v(Wa,4)}, 0
  v_mfma_f32_16x16x32_bf16 {v(Db,4)}, {v(RING[q],4)}, {v(Wb,4)}, 0""")
    def cstage_cvt():
        if OPT["abl_mfma"]: return
        a(f"""
  v_cvt_pk_bf16_f32 {v(P)}, {v(Da)}, {v(Da+1)}
  v_cvt_pk_bf16_f32 {v(P+1)}, {v(Da+2)}, {v(Da+3)}
  v_cvt_pk_bf16_f32 {v(P+2)}, {v(Db)}, {v(Db+1)}
  v_cvt_pk_bf16_f32 {v(P+3)}, {v(Db+2)}, {v(Db+3)}""")
    def cstage_m2(tc):
        if OPT["abl_mfma"]: return
        a(f"  v_mfma_f32_16x16x32_bf16 {v(ACC[tc],4)}, {v(P,4)}, {v(Sf,4)}, {v(ACC[tc],4)}")
    MR = REC[0]
    def m_load(p):
        a(f"  buffer_load_dwordx2 {v(MR+2*p,2)}, {v(vMoff)}, {s(sMW,4)}, s{sEb if p < 8 else sEb2} offen offset:{(p%8)*512}")

    def body(full):
        tag = "lp" if full else "ln"
        order = []
        for t in range(NT):
            if full:
                if t == 0: order.append(("car", 16))
                u2 = t - INS0 - 1
                if 0 <= u2 < 16: order.append(("rec", u2))
            elif t < 13: order.append(("m", t))
            order.append(("W", t))
            order.append(("g", t))
        tail = [x for x in order[order.index(("g", NT - D)):] if x[0] != "W"]
        assert tail == [("g", t) for t in range(NT - D, NT)], tail
        def younger(target, at):
            n = len(order); i = order.index(target); cnt = 0
            j = (i + 1) % n
            while j != at:
                if order[j][0] != "W": cnt += 1
                j = (j + 1) % n
            return cnt
        for t in range(NT):
            q = t % D; tc = (t - D) % NT
            rp = RP[t & 1]; rn = RP[(t + 1) & 1]
            a(f"  ; ---- step {t}")
            a("  s_waitcnt lgkmcnt(0)")
            cstage_head(q)
            if t < NT - 1:
                a(f"  ds_read_b64 {v(rn,2)}, {v(vRd)} offset:{(t+1)*TS+8}")
                a(f"  v_readlane_b32 s{sCnt[(t+1)&1]}, {v(vCnt)}, {t+1}")
            if t == 0:
                a(f"""
  v_cmp_gt_u32 vcc, s{sCin}, {v(vCarIdx)}
  s_add_u32 s{sX}, s{sIt}, 2
  s_and_b32 s{sX}, s{sX}, 3
  s_lshl_b32 s{sX}, s{sX}, 3
  s_add_u32 s{sX}, s{sX}, {CTL}
  v_mov_b32 {v(T+1)}, s{sX}
  ds_write_b64 {v(T+1)}, {v(vZ,2)}
  ds_write_b32 {v(vCntA)}, {v(vZ)}
  s_mov_b32 s{sMv}, {0 if full else 1}""")
                if full:
                    a(f"""
  v_cndmask_b32 {v(T)}, {v(vOOB)}, {v(vCarOff)}, vcc
  buffer_load_dwordx2 {v(REC[16],2)}, {v(T)}, {s(sCAR,4)}, s{sCarR} offen sc1
  ds_write_b32 {v(vCtlN)}, {v(vOne)} offset:4""")
            if full:
                if t == 1:
                    a(f"  s_cmp_lg_u32 s{sThr}, 0\n  s_cbranch_scc1 L_nostate")
                    state_update()
                    a.label("L_nostate")
                u1 = t - INS0; u2 = u1 - 1
                if 0 <= u2 < 17:
                    ins2(u2, "lp", TA[u2 & 1], RK[u2 & 1], sMk[u2 & 1])
                    if u2 < 16: rec_load(u2, T + 4)
                if 0 <= u1 < 17:
                    pos = order.index(("W", t))
                    if u1 < 16:
                        n_first = (15 - u1) + sum(1 for x in order[:pos] if x[0] != "W")
                        n = min(younger(("rec", u1), pos), n_first)
                    else:
                        n = younger(("car", 16), pos)
                    a(f"  s_waitcnt vmcnt({min(n, 62)})")
                    ins1(u1, f"s{sThr}" if u1 < 16 else "0", TA[u1 & 1], RK[u1 & 1], sMk[u1 & 1])
                if t == INS0 + 18:
                    a(f"  s_cmp_gt_u32 s{sCin}, 512\n  s_cbranch_scc1 L_slow")
                    a.label("L_slow_back")
            elif t < 13:
                m_load(t)
            n = younger(("g", tc), order.index(("W", t)))
            a(f"  s_waitcnt vmcnt({n})")
            cstage_m1(q)
            w, off, af, e = T, T + 1, T + 2, T + 3
            a(f"""
  v_min_i32 {v(w)}, {v(rp)}, {v(rp+1)}
  v_cmp_gt_i32 vcc, 0, {v(rp)}
  v_and_b32 {v(off)}, 0x7ffff, {v(w)}
  v_lshl_add_u32 {v(off)}, {v(off)}, 5, {v(vHalf)}
  v_cndmask_b32_sdwa {v(af)}, {v(rp)}, {v(rp+1)}, vcc dst_sel:WORD_1 dst_unused:UNUSED_PAD src0_sel:WORD_1 src1_sel:WORD_0
  v_cmp_gt_u32 vcc, s{sCnt[t&1]}, {v(vSlot)}
  v_bfe_u32 {v(e)}, {v(w)}, 20, 3
  v_mul_f32 {v(af)}, {v(af)}, {v(vFreq)}
  v_cndmask_b32 {v(off)}, {v(vOOB)}, {v(off)}, vcc
  buffer_load_dwordx4 {v(RING[q],4)}, {v(vOOB if OPT["abl_g"] else off)}, {s(sM,4)}, 0 offen""")
            cstage_cvt()
            a(f"""
  v_cndmask_b32 {v(af)}, {v(vZ)}, {v(af)}, vcc
  v_cvt_pk_bf16_f32 {v(af)}, 0, {v(af)}
  s_waitcnt lgkmcnt({2 if t < NT-1 else 1})""")
            cstage_m2(tc)
            if not OPT["abl_cos"]: a(f"""
  v_mul_f32 {v(af)}, 0.15915494, {v(af)}
  v_fract_f32 {v(af)}, {v(af)}
  v_cos_f32 {v(af)}, {v(af)}
  v_lshl_add_u32 {v(SA[q])}, {v(e)}, 4, {v(vSst)}
  v_cvt_pk_bf16_f32 {v(CC[q])}, {v(af)}, {v(af)}""")

    a(".p2align 6")
    a.label("L_lean")
    body(False)
    a("  s_branch L_turn2")
    a(".p2align 6")
    a.label("L_loop")
    body(True)
    a(f"  s_waitcnt vmcnt({NT - (INS0 + 17)})")
    a.label("L_turn2")
    a(f"""
  v_mov_b32 {v(T)}, {v(vCtlN)}
  s_add_u32 s{sIt}, s{sIt}, 1
  s_add_u32 s{sX}, s{sIt}, 1
  s_and_b32 s{sX}, s{sX}, 3
  s_lshl_b32 s{sX}, s{sX}, 3
  s_add_u32 s{sX}, s{sX}, {CTL}
  v_mov_b32 {v(vCtlN)}, s{sX}
  s_sub_u32 s{sX}, s{sIns}, {BUFSZ}
  s_add_u32 s{sX}, s{sX}, s{sIns}
  v_add_u32 {v(vRd)}, s{sX}, {v(vRd)}
  v_add_u32 {v(vCntA)}, s{sX}, {v(vCntA)}
  s_sub_u32 s{sIns}, {BUFSZ}, s{sIns}
  s_mov_b32 s{sCarR}, s{sCarW}
  s_sub_u32 s{sCarW}, {CARLIST}, s{sCarW}
  v_cmp_lt_u32 vcc, 0, {v(rem)}
  s_waitcnt lgkmcnt(0)""")
    if OPT["stamp"]:
        a(f"  s_lshl_b32 s90, s{sIt}, 1\n  s_add_u32 s90, s90, 16\n  s_min_u32 m0, s90, 58")
        stamp(a, 252, "m0")
        a("  s_add_u32 m0, m0, 1")
    a("  s_barrier")
    stamp(a, 252, "m0")
    a(f"""
  ds_read_b64 {v(T+2,2)}, {v(T)}
  ds_read_b32 {v(vCnt)}, {v(vCntA)}
  ds_read_b64 {v(RP[0],2)}, {v(vRd)} offset:8
  s_or_b32 s{sX}, vcc_lo, vcc_hi
  s_cselect_b32 s{sThr}, 0, 0x80000000
  s_waitcnt lgkmcnt(1)
  v_readfirstlane_b32 s{sCin}, {v(T+2)}
  v_readfirstlane_b32 s{sFl}, {v(T+3)}
  v_readlane_b32 s{sCnt[0]}, {v(vCnt)}, 0
  s_cmp_gt_u32 s{sCin}, 512
  s_cselect_b32 s{sThr}, 0x80000000, s{sThr}
  s_min_u32 s{sCin}, s{sCin}, {CARCAP}
  s_cmp_lt_u32 s{sIt}, {OPT['itcap']}
  s_cselect_b32 s{sFl}, s{sFl}, 0
  s_cmp_eq_u32 s{sFl}, 0
  s_cbranch_scc1 L_epi
  s_or_b32 s{sX}, s{sX}, s{sCin}
  s_cbranch_scc1 L_loop
  s_branch L_lean""")

    a.label("L_epi")
    RBv = Q
    assert vRT4 - Q + 1 >= 14
    a(f"""
  v_and_b32 {v(T)}, 63, v0
  s_mul_i32 s{sX}, s{sW}, 3584
  s_add_u32 s{sX}, s{sX}, {RB_OFF}
  v_lshl_add_u32 {v(T+1)}, {v(T)}, 3, s{sX}
  v_lshlrev_b32 {v(vI6)}, 4, {v(T)}
  s_mul_i32 s{sX}, s{sW}, 6656
  v_add_u32 {v(vI1)}, s{sX}, {v(vMoff)}
  v_add_u32 {v(vI4)}, s{sX}, {v(vI6)}""")
    for h in range(7):
        a(f"  ds_read_b64 {v(RBv+2*h,2)}, {v(T+1)} offset:{h*512}")
    a(f"  s_cmp_lg_u32 s{sMv}, 0\n  s_cbranch_scc1 L_havem")
    for p in range(13): m_load(p)
    a.label("L_havem")
    for q in range(D):
        cstage_head(q)
        a(f"  s_waitcnt vmcnt({D - 1 - q})")
        cstage_m1(q)
        a("  s_nop 6")
        cstage_cvt()
        a("  s_waitcnt lgkmcnt(0)\n  s_nop 0")
        cstage_m2(NT - D + q)
    stamp(a, 252, 4)
    XS0, XS1, XR = Wa, Wa + 2, Wb
    a(f"""
  v_mov_b32 {v(XS0)}, 0
  v_mov_b32 {v(XS0+1)}, {v(WS0)}
  v_mov_b32 {v(XS1)}, 0
  v_mov_b32 {v(XS1+1)}, {v(WS1)}
  v_mov_b32 {v(XR)}, 0
  v_mov_b32 {v(XR+1)}, {v(WR)}
  s_nop 1""")
    G0 = [POOL, POOL + 4]; G1 = [POOL + 8, POOL + 12]; RR = [POOL + 16, POOL + 20, POOL + 24]; U = [POOL + 28, POOL + 32]
    AGG = T + 4; AG = RP[1]
    def s1(p):
        b = RBv + (p & ~1)
        w0, w1, wr = (WS0, WS1, WR) if p % 2 == 0 else (XS0, XS1, XR)
        a(f"""
  v_mfma_f32_16x16x16_bf16 {v(G0[p%2],4)}, {v(w0,2)}, {v(b,2)}, 0
  v_mfma_f32_16x16x16_bf16 {v(G1[p%2],4)}, {v(w1,2)}, {v(b,2)}, 0
  v_mfma_f32_16x16x16_bf16 {v(RR[p%3],4)}, {v(wr,2)}, {v(b,2)}, 0""")
    def s2(p):
        t0 = ACC[2*p]; t1 = ACC[2*p+1] if 2*p+1 < NT else ACC[2*p]
        g0, g1 = G0[p%2], G1[p%2]
        for r in range(4): a(f"  v_mul_f32 {v(AGG+r)}, {v(t0+r)}, {v(g0+r)}")
        for r in range(4): a(f"  v_mul_f32_dpp {v(AGG+r)}, {v(t1+r)}, {v(g0+r)} row_ror:8 row_mask:0xf bank_mask:0xc")
        for r in range(4): a(f"  v_fmac_f32_dpp {v(AGG+r)}, {v(t0+r)}, {v(g1+r)} row_ror:8 row_mask:0xf bank_mask:0x3")
        for r in range(4): a(f"  v_fmac_f32_dpp {v(AGG+r)}, {v(t1+r)}, {v(g1+r)} quad_perm:[0,1,2,3] row_mask:0xf bank_mask:0xc")
        a(f"""
  v_cvt_pk_bf16_f32 {v(AG)}, {v(AGG)}, {v(AGG+1)}
  v_cvt_pk_bf16_f32 {v(AG+1)}, {v(AGG+2)}, {v(AGG+3)}""")
    def s2m(p):
        a(f"  v_mfma_f32_16x16x16_bf16 {v(U[p%2],4)}, {v(WUP,2)}, {v(AG,2)}, 0")
    def s3a(p):
        x = ACC[2*p]
        a(f"""
  v_lshlrev_b32 {v(x)}, 16, {v(MR+2*p)}
  v_and_b32 {v(x+1)}, 0xffff0000, {v(MR+2*p)}
  v_lshlrev_b32 {v(x+2)}, 16, {v(MR+2*p+1)}
  v_and_b32 {v(x+3)}, 0xffff0000, {v(MR+2*p+1)}""")
    def s3b(p):
        x = ACC[2*p]; u = U[p%2]; r = RR[p%3]
        a(f"""
  v_pk_fma_f32 {v(x,2)}, {v(u,2)}, {v(r,2)}, {v(x,2)}
  v_pk_fma_f32 {v(x+2,2)}, {v(u+2,2)}, {v(r+2,2)}, {v(x+2,2)}
  v_cvt_pk_bf16_f32 {v(x)}, {v(x)}, {v(x+1)}
  v_cvt_pk_bf16_f32 {v(x+1)}, {v(x+2)}, {v(x+3)}
  ds_write_b64 {v(vI1)}, {v(x,2)} offset:{p*512}""")
    s1(0)
    a("  s_nop 4")
    for p in range(14):
        if p + 1 < 13: s1(p + 1)
        if p < 13:
            s2(p)
            s3a(p)
            s2m(p)
        else:
            a("  s_nop 3")
        if p > 0: s3b(p - 1)
    stamp(a, 252, 5)
    Y = POOL
    for r in range(7):
        a(f"  ds_read_b128 {v(Y+4*r,4)}, {v(vI4)} offset:{r*1024}")
    for r in range(7):
        a(f"  s_waitcnt lgkmcnt({6-r})")
        a(f"  buffer_store_dwordx4 {v(Y+4*r,4)}, {v(vI6)}, {s(sOUT,4)}, s{sEb if r < 4 else sEb2} offen offset:{(r%4)*1024}")
    stamp(a, 252, 6)
    if OPT["stamp"]: a("  s_waitcnt vmcnt(0)")
    stamp(a, 252, 7); stamp(a, 252, 63, "s_memrealtime")
    if OPT["stamp"]: a(f"  v_writelane_b32 v252, s{sIt}, 61")
    stamp_out(a, 252, sWS, 8, STAMPOFF + 0x200000, 253)
    a.label("L_end")
    a("  s_endpgm")

    a.label("L_slow")
    a(f"  s_mov_b32 s{sX}, 512")
    a.label("L_slow_loop")
    a(f"""
  v_add_u32 {v(T+1)}, s{sX}, {v(vCarIdx)}
  v_cmp_gt_u32 vcc, s{sCin}, {v(T+1)}
  v_lshlrev_b32 {v(T+1)}, 3, {v(T+1)}
  s_nop 0
  v_cndmask_b32 {v(T+1)}, {v(vOOB)}, {v(T+1)}, vcc
  buffer_load_dwordx2 {v(REC[16],2)}, {v(T+1)}, {s(sCAR,4)}, s{sCarR} offen sc1
  s_waitcnt vmcnt(0)""")
    ins1(16, "0", TA[0], RK[0], sMk[0])
    a("  s_waitcnt lgkmcnt(0)")
    ins2(16, "sl", TA[0], RK[0], sMk[0])
    a(f"""
  s_add_u32 s{sX}, s{sX}, 512
  s_cmp_lt_u32 s{sX}, s{sCin}
  s_cbranch_scc1 L_slow_loop
  s_waitcnt vmcnt(0)
  s_branch L_slow_back""")
    for lab, u, rk in rare:
        a.label(f"L_rare_{lab}")
        a(f"""
  s_mov_b64 {s(sT,2)}, exec
  s_mov_b64 exec, vcc
  ds_add_rtn_u32 {v(rk)}, {v(vCtlN)}, {v(vOne)}
  s_waitcnt lgkmcnt(0)
  v_lshlrev_b32 {v(rk)}, 3, {v(rk)}
  buffer_store_dwordx2 {v(REC[u],2)}, {v(rk)}, {s(sCAR,4)}, s{sCarW} offen
  s_andn2_b64 exec, {s(sT,2)}, vcc
  s_branch L_back_{lab}""")
    return NV

def kd(name, nv, ns):
    nv4 = (nv + 3) // 4 * 4
    return f""".amdhsa_kernel {name}
  .amdhsa_next_free_vgpr {nv}
  .amdhsa_next_free_sgpr {ns}
  .amdhsa_accum_offset {nv4}
  .amdhsa_group_segment_fixed_size 0
  .amdhsa_kernarg_size 112
  .amdhsa_user_sgpr_count 2
  .amdhsa_user_sgpr_kernarg_segment_ptr 1
  .amdhsa_system_sgpr_workgroup_id_x 1
  .amdhsa_float_denorm_mode_32 3
.end_amdhsa_kernel
"""

def main():
    out = sys.argv[1]
    ref = open(f"cdna_kernels/{NAME}.s.ref").read().split("\n")
    head = [l for l in ref if l.startswith(";") and "@launch" not in l and "Override" not in l and "grid=ceil" not in l]
    a = Asm()
    a(".amdgcn_target \"amdgcn-amd-amdhsa--gfx950\"\n.text")
    a(f".globl bin_kernel\n.type bin_kernel,@function\n.globl {NAME}_kernel\n.type {NAME}_kernel,@function")
    gen_p1(a)
    nv = gen_p2(a)
    errs = a.check()
    for e in errs: print("HAZARD", e)
    txt = "\n".join(head) + "\n"
    txt += f"; @launch kernel=bin_kernel grid=({NCH},1,1) block=(1024,1,1) lds={P1_LDS}\n"
    txt += f"; @launch kernel={NAME}_kernel grid=(256,1,1) block=(512,1,1) lds={P2_LDS}\n"
    txt += a.text()
    txt += ".section .rodata,\"a\"\n.p2align 6\n" + kd("bin_kernel", 128, 96) + ".p2align 6\n" + kd(NAME + "_kernel", 256 if OPT["stamp"] else nv, 96)
    open(out, "w").write(txt)
    print("vgprs p2:", nv, "lines:", len(a.lines), "hazards:", len(errs))

main()
```

```python
import sys, os
sys.path.insert(0, os.path.dirname(__file__))
from asmlib import Asm

NAME = "gather_scatter__molecular_angular_gemnet__graph"
E = 400000
NCH, CH = 250, 25600
EB = 1568
K = 6
MJ = 2739138
TABOFF = 0x2800000
CAROFF = 0x3000000
CARCAP = 9216
CARLIST = CARCAP * 8
STAMPOFF = 0x6000000
OPT = dict(stamp=0, itcap=64, ld_nt=7, st_pol=0, mtouch=0, la=3, apre=3, wmain=78000, b5=368000, ins0=4,
           abl_mfma=0, abl_s=0, abl_cos=0, abl_g=0)
for a in sys.argv[2:]:
    k, v = a.split("=")
    assert k in OPT, k
    OPT[k] = int(v)
MK = -(-(1 << 32) // OPT["wmain"])
assert (399999 * MK) >> 32 <= 5

def v(i, n=1):
    return f"v{i}" if n == 1 else f"v[{i}:{i+n-1}]"
def s(i, n=1):
    return f"s{i}" if n == 1 else f"s[{i}:{i+n-1}]"

def stamp(a, vreg, lane, op="s_memtime"):
    if not OPT["stamp"]: return
    if OPT["stamp"] == 2:
        mp = {127: {62: (0, 1), 1: (1, 0), 4: (2, 0), 7: (3, 0), 63: (4, 0)}, 252: {62: (0, 1), 2: (1, 0), 11: (2, 0), 4: (3, 0), 63: (4, 0)}}[vreg]
        if lane not in mp: return
        l, inv = mp[lane]
        a(f"  s_memrealtime s[88:89]\n  s_waitcnt lgkmcnt(0)")
        if inv: a("  s_not_b32 s88, s88")
        a(f"  v_writelane_b32 v{vreg}, s88, {l}")
        return
    a(f"  {op} s[88:89]\n  s_waitcnt lgkmcnt(0)\n  v_writelane_b32 v{vreg}, s88, {lane}")
def stamp_out(a, vreg, wslo, nwaves, base, tmp):
    if not OPT["stamp"]: return
    if OPT["stamp"] == 2:
        back = 512 if vreg == 127 else 32
        a(f"""
  s_load_dwordx2 s[90:91], s[0:1], 96
  s_waitcnt lgkmcnt(0)
  s_add_u32 s92, s90, {back}
  s_addc_u32 s93, s91, 0
  s_mov_b32 s94, 20
  s_mov_b32 s95, 0x20000
  v_lshlrev_b32 v{tmp}, 2, v0
  buffer_atomic_umax v{vreg}, v{tmp}, s[92:95], 0 offen""")
        return
    a(f"  s_mul_i32 s88, s2, {nwaves*256}\n  s_add_u32 s88, s88, {base}")
    srd(a, 92, wslo, wslo+1, "s88", nwaves*256)
    a(f"  v_lshlrev_b32 v{tmp}, 2, v0\n  buffer_store_dword v{vreg}, v{tmp}, s[92:95], 0 offen")

def srd(a, d, lo, hi, add, size):
    if add is None:
        a(f"  s_mov_b32 s{d}, s{lo}\n  s_mov_b32 s{d+1}, s{hi}")
    else:
        a(f"  s_add_u32 s{d}, s{lo}, {add}\n  s_addc_u32 s{d+1}, s{hi}, 0")
    a(f"  s_mov_b32 s{d+2}, {size}\n  s_mov_b32 s{d+3}, 0x20000")

P1_CNT, P1_SENT, P1_TMP, P1_REC = 0, 6144, 6160, 6272
P1_LDS = P1_REC + CH * 6

def gen_p1(a):
    O, I, A, R = 8, 36, 64, 80
    T = 108
    nto, nti, nta = (" nt" if OPT["ld_nt"] >> b & 1 else "" for b in range(3))
    a(".p2align 8")
    a.label("bin_kernel")
    a(f"""
  s_cmp_ge_u32 s2, {NCH}
  s_cbranch_scc1 L_bin_end
  s_load_dwordx4 s[8:11], s[0:1], 8
  s_load_dwordx2 s[4:5], s[0:1], 0
  s_load_dwordx2 s[6:7], s[0:1], 32
  s_load_dwordx2 s[12:13], s[0:1], 104
  v_lshlrev_b32 v1, 4, v0
  v_mov_b64 {v(T,2)}, 0
  v_mov_b64 {v(T+2,2)}, 0
  s_mul_i32 s14, s2, {CH*4}
  s_mov_b32 s40, 16384
  ds_write_b128 v1, {v(T,4)}
  s_waitcnt lgkmcnt(0)""")
    stamp(a, 127, 0); stamp(a, 127, 62, "s_memrealtime")
    srd(a, 20, 10, 11, "s14", CH * 4)
    srd(a, 16, 8, 9, "s14", CH * 4)
    so4 = lambda q: "0" if q == 0 else f"s{39+q}"
    so2 = lambda q: "0" if q == 0 else f"s{49+q}"
    vm = []
    def ld_pair(q):
        if q < 6:
            a(f"  buffer_load_dwordx4 {v(O+4*q,4)}, v1, s[20:23], {so4(q)} offen{nto}")
            a(f"  buffer_load_dwordx4 {v(I+4*q,4)}, v1, s[16:19], {so4(q)} offen{nti}")
        else:
            a(f"  buffer_load_dword {v(O+24)}, v3, s[20:23], {so4(6)} offen{nto}")
            a(f"  buffer_load_dword {v(I+24)}, v3, s[16:19], {so4(6)} offen{nti}")
        vm.extend([("o", q), ("p", q)])
    def ld_ang(q):
        if q < 6: a(f"  buffer_load_dwordx2 {v(A+2*q,2)}, v2, s[24:27], {so2(q)} offen{nta}")
        else: a(f"  buffer_load_ushort {v(A+12)}, v4, s[24:27], {so2(6)} offen{nta}")
        vm.append(("a", q))
    def wait_for(x):
        a(f"  s_waitcnt vmcnt({len(vm) - 1 - vm.index(x)})")
    ld_pair(0); ld_pair(1)
    a("  s_barrier")
    for q in range(2, 10): a(f"  s_mov_b32 s{39+q}, {q*16384}")
    LA = OPT["la"]
    for q in range(2, LA): ld_pair(q)
    a(f"""
  v_lshlrev_b32 v2, 3, v0
  v_lshlrev_b32 v3, 2, v0
  v_lshlrev_b32 v4, 1, v0
  v_lshlrev_b32 v5, 7, v0
  v_mov_b32 v7, 1
  v_lshrrev_b32 {v(T+4)}, 6, v0
  s_mul_i32 s15, s2, {CH*2}
  s_mul_i32 s62, s2, {CH*6}
  s_lshl_b32 s63, s2, 5
  s_mov_b32 s56, {MJ}
  s_mov_b32 s57, {MK}
  s_mov_b32 s58, {-EB & 0xffffffff}
  s_mov_b32 s59, {OPT['b5']}
  v_readfirstlane_b32 s60, {v(T+4)}""")
    for q in range(1, 7): a(f"  s_mov_b32 s{49+q}, {q*8192}")
    srd(a, 24, 6, 7, "s15", CH * 2)
    srd(a, 28, 4, 5, "s15", CH * 2)
    srd(a, 32, 12, 13, "s62", CH * 6)
    srd(a, 36, 12, 13, TABOFF, 256 * 8192)
    def hist(idx):
        for x, i in enumerate(idx): a(f"  v_cmp_le_u32 {s(64+2*x,2)}, s59, {v(I+i)}")
        for x, i in enumerate(idx): a(f"  v_mul_hi_u32_u24 {v(T+x)}, s56, {v(O+i)}")
        for x, i in enumerate(idx): a(f"  v_mul_hi_u32_u24 {v(T+4+x)}, s57, {v(I+i)}")
        for x, i in enumerate(idx): a(f"  v_cndmask_b32 {v(T+4+x)}, {v(T+4+x)}, 5, {s(64+2*x,2)}")
        for x, i in enumerate(idx): a(f"  v_mad_i32_i24 {v(T+8+x)}, {v(T+x)}, s58, {v(O+i)}")
        for x, i in enumerate(idx): a(f"  v_lshl_add_u32 {v(O+i)}, {v(T+4+x)}, 8, {v(T+x)}")
        for x, i in enumerate(idx): a(f"  v_lshlrev_b32 {v(O+i)}, 2, {v(O+i)}")
        for x, i in enumerate(idx): a(f"  ds_add_rtn_u32 {v(R+i)}, {v(O+i)}, v7")
        for x, i in enumerate(idx): a(f"  v_lshl_or_b32 {v(I+i)}, {v(T+8+x)}, 20, {v(I+i)}")
        for x, i in enumerate(idx): a(f"  v_or_b32 {v(I+i)}, 0x80000000, {v(I+i)}")
    na = 0
    for q in range(7):
        wait_for(("p", q))
        if q in (0, 6): stamp(a, 127, 1 if q == 0 else 2)
        if q + LA < 7: ld_pair(q + LA)
        else:
            for _ in range(2):
                if na < OPT["apre"]: ld_ang(na); na += 1
        hist(list(range(4*q, 4*q+4)) if q < 6 else [24])
    stamp(a, 127, 3)
    a(f"""
  s_waitcnt lgkmcnt(0)
  s_barrier
  s_cmp_ge_u32 s60, {K}
  s_cbranch_scc1 L_bin_s1
  ds_read_b128 {v(T,4)}, v1
  v_and_b32 {v(T+8)}, 63, v0
  s_waitcnt lgkmcnt(0)
  v_add_u32 {v(T+1)}, {v(T)}, {v(T+1)}
  v_add_u32 {v(T+2)}, {v(T+1)}, {v(T+2)}
  v_add_u32 {v(T+3)}, {v(T+2)}, {v(T+3)}
  v_mov_b32 {v(T+4)}, {v(T+3)}""")
    X = v(T+4)
    for sh in (1, 2, 4, 8):
        a(f"  s_nop 1\n  v_add_u32_dpp {X}, {X}, {X} row_shr:{sh} row_mask:0xf bank_mask:0xf bound_ctrl:0")
    a(f"  s_nop 1\n  v_add_u32_dpp {X}, {X}, {X} row_bcast:15 row_mask:0xa bank_mask:0xf")
    a(f"  s_nop 1\n  v_add_u32_dpp {X}, {X}, {X} row_bcast:31 row_mask:0xc bank_mask:0xf")
    a(f"""
  v_cmp_lt_u32 vcc, s60, {v(T+8)}
  v_readlane_b32 s61, {X}, 63
  v_lshlrev_b32 {v(T+9)}, 2, {v(T+8)}
  s_and_b32 vcc_lo, vcc_lo, 0xff
  s_mov_b32 vcc_hi, 0
  v_mov_b32 {v(T+10)}, s61
  s_mov_b64 exec, vcc
  ds_add_u32 {v(T+9)}, {v(T+10)} offset:{P1_TMP}
  s_mov_b64 exec, -1
  s_waitcnt lgkmcnt(0)""")
    a.label("L_bin_s1")
    a(f"""
  s_barrier
  s_cmp_ge_u32 s60, {K}
  s_cbranch_scc1 L_bin_s2
  s_lshl_b32 s61, s60, 2
  v_mov_b32 {v(T+9)}, s61
  ds_read_b32 {v(T+9)}, {v(T+9)} offset:{P1_TMP}
  v_sub_u32 {X}, {X}, {v(T+3)}
  v_mov_b32 {v(T+10)}, {CH}
  v_mov_b32 {v(T+11)}, 0
  s_waitcnt lgkmcnt(0)
  v_add_u32 {v(T+4)}, {X}, {v(T+9)}
  v_add_u32 {v(T+5)}, {v(T+4)}, {v(T)}
  v_add_u32 {v(T+6)}, {v(T+4)}, {v(T+1)}
  v_add_u32 {v(T+7)}, {v(T+4)}, {v(T+2)}
  ds_write_b128 v1, {v(T+4,4)}
  ds_write_b32 {v(T+11)}, {v(T+10)} offset:{P1_SENT}
  s_waitcnt lgkmcnt(0)""")
    a.label("L_bin_s2")
    a("  s_barrier")
    stamp(a, 127, 4)
    while na < 7: ld_ang(na); na += 1
    if OPT["mtouch"]:
        a(f"  buffer_load_dword v6, v5, s[28:31], 0 offen"); vm.append(("m", 0))
    for i in range(25):
        a(f"  ds_read_b32 {v(O+i)}, {v(O+i)}")
    a(f"  v_mov_b32 v2, 6\n  v_mov_b32 v3, 2")
    for g in range(0, 25, 5):
        idx = list(range(g, g+5))
        a("  s_waitcnt lgkmcnt(10)")
        for i in idx: a(f"  v_add_u32 {v(O+i)}, {v(O+i)}, {v(R+i)}")
        for i in idx: a(f"  v_mad_u32_u24 {v(O+i)}, {v(O+i)}, v2, v3")
        for i in idx: a(f"  v_and_b32 {v(R+i)}, -4, {v(O+i)}")
        for i in idx: a(f"  ds_write_b32 {v(R+i)}, {v(I+i)} offset:{P1_REC}")
    for i in range(25): a(f"  v_and_b32 {v(R+i)}, 2, {v(O+i)}")
    for i in range(25): a(f"  v_lshl_add_u32 {v(O+i)}, {v(R+i)}, 1, {v(O+i)}")
    stamp(a, 127, 5)
    for q in range(7):
        wait_for(("a", q))
        for r in range(2 if q < 6 else 1):
            a(f"  v_and_b32 {v(A+2*q+r)}, 0x7fff7fff, {v(A+2*q+r)}")
        for i in range(4*q, min(4*q+4, 25)):
            op = "ds_write_b16_d16_hi" if (i & 1) else "ds_write_b16"
            a(f"  {op} {v(O+i)}, {v(A + i//2)} offset:{P1_REC-2}")
    stamp(a, 127, 6)
    a(f"  v_add_u32 v2, {P1_REC+4*16384}, v1\n  v_add_u32 v3, {P1_REC+8*16384}, v1\n  v_add_u32 v4, {P1_REC}, v1")
    a("  s_waitcnt lgkmcnt(0)\n  s_barrier")
    stamp(a, 127, 7)
    for r in range(10):
        base = ("v4", "v2", "v3")[r // 4]
        a(f"  ds_read_b128 {v(8+4*r,4)}, {base} offset:{(r%4)*16384}")
    spol = ("", " nt", " sc1", " sc0 sc1", " sc0")[OPT["st_pol"]]
    for r in range(10):
        a(f"  s_waitcnt lgkmcnt({9-r})")
        a(f"  buffer_store_dwordx4 {v(8+4*r,4)}, v1, s[32:35], {so4(r)} offen{spol}")
    stamp(a, 127, 8)
    if OPT["stamp"]: a("  s_waitcnt vmcnt(0)")
    stamp(a, 127, 9); stamp(a, 127, 63, "s_memrealtime")
    stamp_out(a, 127, 12, 16, STAMPOFF, 126)
    a(f"""
  s_cmp_lt_u32 s60, 12
  s_cbranch_scc1 L_bin_end
  v_and_b32 {v(T+12)}, 0xff, v0
  v_lshlrev_b32 {v(T+13)}, 2, {v(T+12)}
  v_lshlrev_b32 {v(T+12)}, 13, {v(T+12)}""")
    for k in range(K):
        a(f"  ds_read_b32 {v(T+k)}, {v(T+13)} offset:{k*1024}")
        a(f"  ds_read_b32 {v(T+6+k)}, {v(T+13)} offset:{k*1024+4}")
    a("  s_waitcnt lgkmcnt(0)")
    for k in range(K):
        a(f"  v_sub_u32 {v(T+6+k)}, {v(T+6+k)}, {v(T+k)}")
    for k in range(K):
        a(f"  v_lshl_or_b32 {v(T+k)}, {v(T+6+k)}, 16, {v(T+k)}")
    a(f"""
  buffer_store_dwordx4 {v(T,4)}, {v(T+12)}, s[36:39], s63 offen{spol}
  buffer_store_dwordx2 {v(T+4,2)}, {v(T+12)}, s[36:39], s63 offen offset:16{spol}""")
    a.label("L_bin_end")
    a("  s_endpgm")

TS = 264
BUFSZ = 200 * TS
S_OFF = 2 * BUFSZ
CTL = S_OFF + 8192
RB_OFF = CTL + 128
P2_LDS = RB_OFF + 8 * 3584
D = 5
NT = 25

class RA:
    def __init__(self, start): self.n = start
    def __call__(self, k=1, al=1):
        self.n = (self.n + al - 1) // al * al
        r = self.n; self.n += k
        return r

def gen_p2(a):
    ra = RA(1)
    vSlot, vHalf, vFreq, vSst, vSrd, vI6, vI1, vI4 = (ra() for _ in range(8))
    vRd, vCntA, vOne, vOOB, vCarOff, vCarIdx, v264, vMsk, vCtlN = (ra() for _ in range(9))
    vZ = ra(2, 2)
    Q = ra(6, 4)
    sA, nA, cb, rem, rtot, vA6, vB6, vR0, vRT4 = (ra() for _ in range(9))
    vCnt = ra()
    Wa = ra(4, 4); Wb = ra(4, 4)
    RING = [ra(4, 4) for _ in range(D)]
    Da = ra(4, 4); Db = ra(4, 4); P = ra(4, 4); Sf = ra(4, 4)
    ACC = [ra(4, 4) for _ in range(NT)]
    REC = [ra(2, 4 if i == 0 else 2) for i in range(17)]
    RP = [ra(2, 2), ra(2, 2)]
    T = ra(10, 2)
    WS0 = ra(2, 2); WS1 = ra(2, 2); WR = ra(2, 2); WUP = ra(2, 2)
    CC = [ra() for _ in range(D)]; SA = [ra() for _ in range(D)]
    TA = [ra(), ra()]; RK = [ra(), ra()]
    vMoff = ra()
    assert ra.n <= 252, ra.n
    NV = ra.n
    POOL = RING[0]
    assert Sf + 4 - POOL == 36
    sM = 4; sREC = 8; sCAR = 12; sTAB = 16; sOUT = 20; sDIST = 24; sMW = 28
    sJ, sW, sIt, sThr, sIns, sCarW, sCarR, sDid, sCin, sX, sFl, sEb = range(32, 44)
    sCnt = [44, 45]
    sWS = 46
    sMk = [80, 82]; sT = 84; sMv = 86; sEb2 = 87
    rare = []

    a(".p2align 8")
    a.label(NAME + "_kernel")
    a(f"""
  s_cmp_ge_u32 s2, 256
  s_cbranch_scc1 L_end
  s_load_dwordx2 s[46:47], s[0:1], 104
  s_load_dwordx16 s[48:63], s[0:1], 0
  s_load_dwordx8 s[64:71], s[0:1], 64
  s_and_b32 s{sJ}, s2, 7
  s_lshl_b32 s{sJ}, s{sJ}, 5
  s_lshr_b32 s{sX}, s2, 3
  s_add_u32 s{sJ}, s{sJ}, s{sX}
  v_lshrrev_b32 {v(T)}, 6, v0
  v_and_b32 {v(T+1)}, 63, v0
  v_and_b32 {v(vSlot)}, 31, v0
  v_readfirstlane_b32 s{sW}, {v(T)}
  v_and_b32 {v(T+2)}, 15, v0
  v_bfe_u32 {v(T+3)}, v0, 5, 1
  v_lshlrev_b32 {v(vHalf)}, 4, {v(T+3)}
  v_lshl_add_u32 {v(cb)}, {v(T)}, 5, {v(vHalf)}
  v_add_u32 {v(cb)}, {v(cb)}, {v(T+2)}
  v_lshlrev_b32 {v(T+4)}, 5, {v(cb)}
  s_lshl_b32 s{sX}, s{sJ}, 13
  s_add_u32 s{sX}, s{sX}, {TABOFF}
  s_mul_i32 s{sFl}, s{sJ}, {2*CARLIST}
  s_add_u32 s{sFl}, s{sFl}, {CAROFF}
  s_waitcnt lgkmcnt(0)""")
    stamp(a, 252, 0); stamp(a, 252, 62, "s_memrealtime")
    srd(a, sTAB, sWS, sWS+1, f"s{sX}", NCH * 32)
    a(f"""
  buffer_load_dwordx4 {v(Q,4)}, {v(T+4)}, {s(sTAB,4)}, 0 offen
  buffer_load_dwordx2 {v(Q+4,2)}, {v(T+4)}, {s(sTAB,4)}, 0 offen offset:16""")
    srd(a, sM, 48, 49, None, E * 32)
    srd(a, sREC, sWS, sWS+1, None, NCH * CH * 6)
    srd(a, sCAR, sWS, sWS+1, f"s{sFl}", 2 * CARLIST)
    srd(a, sDIST, 54, 55, None, E * 2)
    a(f"""
  s_mul_i32 s{sEb}, s{sJ}, {EB}
  s_mul_i32 s{sX}, s{sW}, 200
  s_add_u32 s{sFl}, s{sEb}, {EB}
  s_add_u32 s{sEb}, s{sEb}, s{sX}
  s_add_u32 s{sX}, s{sEb}, 200
  s_min_u32 s{sX}, s{sX}, s{sFl}
  s_min_u32 s{sX}, s{sX}, {E}
  s_lshl_b32 s{sX}, s{sX}, 5""")
    srd(a, sOUT, 70, 71, None, f"s{sX}")
    srd(a, sMW, 48, 49, None, f"s{sX}")
    ST = ACC[0]
    DI = ST + 20
    g4 = T + 5
    a(f"""
  v_lshlrev_b32 {v(T+6)}, 1, {v(T+2)}
  v_lshl_add_u32 {v(T+7)}, {v(T+3)}, 8, {v(T+6)}
  v_bfe_u32 {v(g4)}, v0, 4, 2
  s_lshl_b32 s{sX}, s{sEb}, 1
  s_lshl_b32 s{sEb}, s{sEb}, 5
  s_add_u32 s{sEb2}, s{sEb}, 4096
  v_lshlrev_b32 {v(T+9)}, 2, {v(g4)}""")
    a(f"  global_load_dword {v(ST+18)}, {v(T+9)}, s[58:59]")
    for p in range(13):
        a(f"  buffer_load_ushort {v(DI+p)}, {v(T+6)}, {s(sDIST,4)}, s{sX} offen offset:{p*32}")
    for r in range(8):
        a(f"  global_load_ushort {v(ST+r)}, {v(T+7)}, s[66:67] offset:{r*32}")
    a(f"""
  v_lshl_add_u32 {v(T+7)}, {v(g4)}, 7, {v(T+6)}
  v_lshl_add_u32 {v(T+8)}, {v(g4)}, 6, {v(T+6)}
  v_lshlrev_b32 {v(T+6)}, 1, {v(T+3)}""")
    for r in range(4):
        a(f"  global_load_ushort {v(ST+8+r)}, {v(T+7)}, s[64:65] offset:{r*32}")
    for r in range(4):
        a(f"  global_load_ushort {v(ST+12+r)}, {v(T+7)}, s[68:69] offset:{r*32}")
    for r in range(2):
        a(f"  global_load_ushort {v(ST+16+r)}, {v(T+8)}, s[62:63] offset:{r*32}")
    a(f"  global_load_ushort {v(ST+19)}, {v(T+6)}, s[60:61]")
    NW = 33
    a(f"""
  v_mov_b64 {v(vZ,2)}, 0
  v_mov_b64 {v(Da,2)}, 0
  v_mov_b64 {v(Da+2,2)}, 0
  v_mov_b32 {v(v264)}, {TS}
  v_min_u32 {v(T+6)}, 399, v0
  v_mul_u32_u24 {v(T+6)}, {v(T+6)}, {v(v264)}
  ds_write_b32 {v(T+6)}, {v(vZ)}
  s_lshl_b32 s{sX}, s{sW}, 10
  s_add_u32 s{sX}, s{sX}, {S_OFF}
  v_lshl_add_u32 {v(vSrd)}, {v(T+1)}, 4, s{sX}
  ds_write_b128 {v(vSrd)}, {v(Da,4)}
  v_mov_b32 {v(vCtlN)}, {CTL}
  v_and_b32 {v(T+6)}, 7, v0
  v_lshl_add_u32 {v(T+6)}, {v(T+6)}, 2, {v(vCtlN)}
  ds_write_b32 {v(T+6)}, {v(vZ)}
  v_mov_b32 {v(vOne)}, 1
  v_mov_b32 {v(vOOB)}, 0x80000000
  v_mov_b32 {v(vMsk)}, 0x7ffffffc
  v_mul_u32_u24 {v(vI6)}, 6, {v(vSlot)}
  v_add_u32 {v(vI1)}, 1, {v(vSlot)}
  v_lshlrev_b32 {v(vI4)}, 2, {v(vI1)}
  v_sub_u32 {v(vCarIdx)}, 511, v0
  v_lshlrev_b32 {v(vCarOff)}, 3, {v(vCarIdx)}
  v_bfe_u32 {v(T+6)}, v0, 2, 2
  v_lshlrev_b32 {v(vSst)}, 8, {v(T+6)}
  v_lshl_add_u32 {v(vSst)}, {v(T+3)}, 7, {v(vSst)}
  v_bfe_u32 {v(T+6)}, v0, 4, 1
  v_lshl_add_u32 {v(vSst)}, {v(T+6)}, 3, {v(vSst)}
  v_and_b32 {v(T+6)}, 3, v0
  v_lshl_add_u32 {v(vSst)}, {v(T+6)}, 1, {v(vSst)}
  v_add_u32 {v(vSst)}, s{sX}, {v(vSst)}
  s_mul_i32 s{sX}, s{sW}, {NT*TS}
  s_add_u32 s{sX}, s{sX}, {BUFSZ}
  v_lshl_add_u32 {v(vRd)}, {v(vSlot)}, 3, s{sX}
  v_min_u32 {v(T+6)}, {NT-1}, {v(T+1)}
  v_mad_u32_u24 {v(vCntA)}, {v(T+6)}, {v(v264)}, s{sX}
  v_lshlrev_b32 {v(T+6)}, 3, {v(g4)}
  v_lshl_add_u32 {v(vMoff)}, {v(T+2)}, 5, {v(T+6)}
  v_mov_b32 {v(T+6)}, {CH}
  v_mul_u32_u24 {v(cb)}, {v(cb)}, {v(T+6)}
  v_mov_b32 {v(sA)}, 0
  v_mov_b32 {v(nA)}, 0
  v_mov_b32 {v(rtot)}, 0
  s_mul_i32 s{sX}, s{sW}, 3584
  s_add_u32 s{sX}, s{sX}, {RB_OFF}
  v_lshl_add_u32 {v(T+9)}, {v(T+1)}, 3, s{sX}
  s_mov_b32 s{sIt}, -1
  s_mov_b32 s{sThr}, 0
  s_mov_b32 s{sIns}, 0
  s_mov_b32 s{sCarW}, 0
  s_mov_b32 s{sCarR}, {CARLIST}
  s_mov_b32 s{sDid}, 0
  s_mov_b32 s{sMv}, 0""")

    def state_update():
        a(f"""
  v_sub_u32 {v(rem)}, {v(rem)}, {v(rtot)}
  v_lshrrev_b32 {v(T)}, 16, {v(Q)}
  v_and_b32 {v(T+1)}, 0xffff, {v(Q)}
  v_min_u32 {v(vR0)}, 32, {v(nA)}
  v_cmp_ge_u32 vcc, 32, {v(nA)}
  v_sub_u32 {v(T+2)}, 32, {v(vR0)}
  v_min_u32 {v(T+2)}, {v(T)}, {v(T+2)}
  v_add_u32 {v(vA6)}, {v(cb)}, {v(sA)}
  v_mul_u32_u24 {v(vA6)}, 6, {v(vA6)}
  v_add_u32 {v(vB6)}, {v(cb)}, {v(T+1)}
  v_mul_u32_u24 {v(vB6)}, 6, {v(vB6)}
  v_mad_i32_i24 {v(vB6)}, {v(vR0)}, -6, {v(vB6)}
  v_add_u32 {v(rtot)}, {v(vR0)}, {v(T+2)}
  v_lshlrev_b32 {v(vRT4)}, 2, {v(rtot)}
  v_add_u32 {v(sA)}, 32, {v(sA)}
  v_subrev_u32 {v(nA)}, 32, {v(nA)}
  v_add_u32 {v(T+1)}, {v(T+1)}, {v(T+2)}
  v_sub_u32 {v(T)}, {v(T)}, {v(T+2)}
  v_cndmask_b32 {v(sA)}, {v(sA)}, {v(T+1)}, vcc
  v_cndmask_b32 {v(nA)}, {v(nA)}, {v(T)}, vcc""")
        for i in range(K - 1):
            a(f"  v_cndmask_b32 {v(Q+i)}, {v(Q+i)}, {v(Q+i+1)}, vcc")
        a(f"  v_cndmask_b32 {v(Q+K-1)}, {v(Q+K-1)}, {v(vZ)}, vcc")

    def rec_load(u, t0):
        bc = f"row_newbcast:{u} row_mask:0xf bank_mask:0xf"
        a(f"""
  v_sub_co_u32_dpp {v(t0)}, vcc, {v(vR0)}, {v(vI1)} {bc}
  v_add_u32_dpp {v(t0)}, {v(vA6)}, {v(vI6)} {bc}
  v_add_u32_dpp {v(t0+1)}, {v(vB6)}, {v(vI6)} {bc}
  v_cndmask_b32 {v(t0)}, {v(t0)}, {v(t0+1)}, vcc
  v_sub_u32_dpp {v(t0+1)}, {v(vRT4)}, {v(vI4)} {bc}
  v_bfi_b32 {v(t0)}, {v(vMsk)}, {v(t0)}, {v(t0+1)}
  buffer_load_dwordx2 {v(REC[u],2)}, {v(t0)}, {s(sREC,4)}, 0 offen""")

    def ins1(u, thr, ta, rk, mk):
        a(f"""
  v_min_i32 {v(ta)}, {v(REC[u])}, {v(REC[u]+1)}
  v_cmp_gt_i32 {s(mk,2)}, {thr}, {v(ta)}
  v_bfe_u32 {v(ta)}, {v(ta)}, 23, 8
  v_mad_u32_u24 {v(ta)}, {v(ta)}, {v(v264)}, s{sIns}
  s_mov_b64 exec, {s(mk,2)}
  ds_add_rtn_u32 {v(rk)}, {v(ta)}, {v(vOne)}
  s_mov_b64 exec, -1""")

    def ins2(u, tag, ta, rk, mk):
        lab = f"{tag}_{u}"
        a(f"""
  s_mov_b64 exec, {s(mk,2)}
  v_cmp_lt_u32 vcc, 31, {v(rk)}
  v_lshl_add_u32 {v(ta)}, {v(rk)}, 3, {v(ta)}
  s_cbranch_vccnz L_rare_{lab}""")
        a.label(f"L_back_{lab}")
        a(f"""
  ds_write_b64 {v(ta)}, {v(REC[u],2)} offset:8
  s_mov_b64 exec, -1""")
        rare.append((lab, u, rk))

    stamp(a, 252, 14)
    a(f"  s_waitcnt vmcnt({NW})")
    stamp(a, 252, 1)
    a(f"  v_lshrrev_b32 {v(rem)}, 16, {v(Q)}")
    for i in range(1, K):
        a(f"  v_lshrrev_b32 {v(T)}, 16, {v(Q+i)}\n  v_add_u32 {v(rem)}, {v(rem)}, {v(T)}")
    state_update()
    for u in range(16):
        rec_load(u, T + 4 + 2 * (u & 1))
    state_update()
    stamp(a, 252, 12)
    a(f"  s_waitcnt vmcnt({16 + NW - 14})")
    CEN = T + 4
    a(f"""
  v_lshlrev_b32 {v(CEN)}, 16, {v(ST+18)}
  v_and_b32 {v(CEN+1)}, 0xffff0000, {v(ST+18)}
  s_mov_b32 s72, 0xc1200000
  s_mov_b32 s73, 0xc1200000
  s_mov_b32 s74, 0x3fb8aa3b
  s_mov_b32 s75, 0x3fb8aa3b
  v_mov_b32 {v(DI+13)}, 0""")
    for p0 in range(0, 13, 4):
        ps = list(range(p0, min(p0 + 4, 13)))
        tt = {p: POOL + 2 * (p - p0) for p in ps}
        def rnd():
            for p in ps: a(f"  v_cvt_pk_bf16_f32 {v(tt[p])}, 0, {v(tt[p])}\n  v_cvt_pk_bf16_f32 {v(tt[p]+1)}, 0, {v(tt[p]+1)}")
        for p in ps: a(f"  v_lshlrev_b32 {v(tt[p])}, 16, {v(DI+p)}")
        for p in ps: a(f"  v_pk_add_f32 {v(tt[p],2)}, {v(tt[p],2)}, {v(CEN,2)} op_sel_hi:[0,1] neg_lo:[0,1] neg_hi:[0,1]")
        if len(ps) == 1: a("  s_nop 0")
        rnd()
        for p in ps: a(f"  v_pk_mul_f32 {v(tt[p],2)}, {v(tt[p],2)}, {v(tt[p],2)}")
        rnd()
        for p in ps: a(f"  v_pk_mul_f32 {v(tt[p],2)}, {v(tt[p],2)}, s[72:73]")
        rnd()
        for p in ps: a(f"  v_pk_mul_f32 {v(tt[p],2)}, {v(tt[p],2)}, s[74:75]")
        for p in ps: a(f"  v_exp_f32 {v(tt[p])}, {v(tt[p])}\n  v_exp_f32 {v(tt[p]+1)}, {v(tt[p]+1)}")
        if len(ps) == 1: a("  s_nop 0")
        for p in ps: a(f"  v_cvt_pk_bf16_f32 {v(DI+p)}, {v(tt[p])}, {v(tt[p]+1)}")
    for h in range(7):
        a(f"  ds_write_b64 {v(T+9)}, {v(DI+2*h,2)} offset:{h*512}")
    stamp(a, 252, 13)
    a("  s_waitcnt vmcnt(16)")
    a(f"  v_bfe_u32 {v(T)}, v0, 4, 1\n  v_cmp_eq_u32 vcc, 1, {v(T)}")
    for r in range(4):
        a(f"  v_lshl_or_b32 {v(ST+2*r)}, {v(ST+2*r+1)}, 16, {v(ST+2*r)}")
    for r in range(4):
        a(f"  v_cndmask_b32 {v(Wa+r)}, {v(ST+2*r)}, {v(vZ)}, vcc")
        a(f"  v_cndmask_b32 {v(Wb+r)}, {v(vZ)}, {v(ST+2*r)}, vcc")
    a(f"""
  v_lshl_or_b32 {v(WS0)}, {v(ST+10)}, 16, {v(ST+8)}
  v_lshl_or_b32 {v(WS1)}, {v(ST+11)}, 16, {v(ST+9)}
  v_lshl_or_b32 {v(WUP)}, {v(ST+13)}, 16, {v(ST+12)}
  v_lshl_or_b32 {v(WUP+1)}, {v(ST+15)}, 16, {v(ST+14)}
  v_lshl_or_b32 {v(WR)}, {v(ST+17)}, 16, {v(ST+16)}
  v_mov_b32 {v(WS0+1)}, 0
  v_mov_b32 {v(WS1+1)}, 0
  v_mov_b32 {v(WR+1)}, 0
  v_lshlrev_b32 {v(vFreq)}, 16, {v(ST+19)}""")
    a("  s_waitcnt lgkmcnt(0)\n  s_barrier")
    stamp(a, 252, 2)
    a(f"  ds_write_b32 {v(vCtlN)}, {v(vOne)} offset:4")
    for u in range(16):
        a(f"  s_waitcnt vmcnt({15 - u})")
        if u == 0: stamp(a, 252, 3)
        ins1(u, "0", POOL + 2*u, POOL + 2*u + 1, 48 + 2*u)
    stamp(a, 252, 8)
    for t in range(NT):
        a(f"  v_mov_b64 {v(ACC[t],2)}, 0\n  v_mov_b64 {v(ACC[t]+2,2)}, 0")
    a("  s_waitcnt lgkmcnt(0)")
    stamp(a, 252, 9)
    for u in range(16):
        ins2(u, "pro", POOL + 2*u, POOL + 2*u + 1, 48 + 2*u)
    stamp(a, 252, 10)
    for u in range(16):
        rec_load(u, T + 4 + 2 * (u & 1))
    stamp(a, 252, 11)
    for q in range(D):
        a(f"  v_mov_b64 {v(RING[q],2)}, 0\n  v_mov_b64 {v(RING[q]+2,2)}, 0")
        a(f"  v_mov_b32 {v(CC[q])}, 0\n  v_mov_b32 {v(SA[q])}, {v(vSst)}")
    a("  s_waitcnt vmcnt(16)\n  s_branch L_turn2")

    INS0 = OPT["ins0"]
    def cstage_head(q):
        if OPT["abl_s"]: return
        a(f"""
  ds_write_b16 {v(SA[q])}, {v(CC[q])}
  ds_read_b128 {v(Sf,4)}, {v(vSrd)}
  ds_write_b16 {v(SA[q])}, {v(vZ)}""")
    def cstage_m1(q):
        if OPT["abl_mfma"]: return
        a(f"""
  v_mfma_f32_16x16x32_bf16 {v(Da,4)}, {v(RING[q],4)}, {v(Wa,4)}, 0
  v_mfma_f32_16x16x32_bf16 {v(Db,4)}, {v(RING[q],4)}, {v(Wb,4)}, 0""")
    def cstage_cvt():
        if OPT["abl_mfma"]: return
        a(f"""
  v_cvt_pk_bf16_f32 {v(P)}, {v(Da)}, {v(Da+1)}
  v_cvt_pk_bf16_f32 {v(P+1)}, {v(Da+2)}, {v(Da+3)}
  v_cvt_pk_bf16_f32 {v(P+2)}, {v(Db)}, {v(Db+1)}
  v_cvt_pk_bf16_f32 {v(P+3)}, {v(Db+2)}, {v(Db+3)}""")
    def cstage_m2(tc):
        if OPT["abl_mfma"]: return
        a(f"  v_mfma_f32_16x16x32_bf16 {v(ACC[tc],4)}, {v(P,4)}, {v(Sf,4)}, {v(ACC[tc],4)}")
    MR = REC[0]
    def m_load(p):
        a(f"  buffer_load_dwordx2 {v(MR+2*p,2)}, {v(vMoff)}, {s(sMW,4)}, s{sEb if p < 8 else sEb2} offen offset:{(p%8)*512}")

    def body(full):
        tag = "lp" if full else "ln"
        order = []
        for t in range(NT):
            if full:
                if t == 0: order.append(("car", 16))
                u2 = t - INS0 - 1
                if 0 <= u2 < 16: order.append(("rec", u2))
            elif t < 13: order.append(("m", t))
            order.append(("W", t))
            order.append(("g", t))
        tail = [x for x in order[order.index(("g", NT - D)):] if x[0] != "W"]
        assert tail == [("g", t) for t in range(NT - D, NT)], tail
        def younger(target, at):
            n = len(order); i = order.index(target); cnt = 0
            j = (i + 1) % n
            while j != at:
                if order[j][0] != "W": cnt += 1
                j = (j + 1) % n
            return cnt
        for t in range(NT):
            q = t % D; tc = (t - D) % NT
            rp = RP[t & 1]; rn = RP[(t + 1) & 1]
            a(f"  ; ---- step {t}")
            a("  s_waitcnt lgkmcnt(0)")
            cstage_head(q)
            if t < NT - 1:
                a(f"  ds_read_b64 {v(rn,2)}, {v(vRd)} offset:{(t+1)*TS+8}")
                a(f"  v_readlane_b32 s{sCnt[(t+1)&1]}, {v(vCnt)}, {t+1}")
            if t == 0:
                a(f"""
  v_cmp_gt_u32 vcc, s{sCin}, {v(vCarIdx)}
  s_add_u32 s{sX}, s{sIt}, 2
  s_and_b32 s{sX}, s{sX}, 3
  s_lshl_b32 s{sX}, s{sX}, 3
  s_add_u32 s{sX}, s{sX}, {CTL}
  v_mov_b32 {v(T+1)}, s{sX}
  ds_write_b64 {v(T+1)}, {v(vZ,2)}
  ds_write_b32 {v(vCntA)}, {v(vZ)}
  s_mov_b32 s{sMv}, {0 if full else 1}""")
                if full:
                    a(f"""
  v_cndmask_b32 {v(T)}, {v(vOOB)}, {v(vCarOff)}, vcc
  buffer_load_dwordx2 {v(REC[16],2)}, {v(T)}, {s(sCAR,4)}, s{sCarR} offen sc1
  ds_write_b32 {v(vCtlN)}, {v(vOne)} offset:4""")
            if full:
                if t == 1:
                    a(f"  s_cmp_lg_u32 s{sThr}, 0\n  s_cbranch_scc1 L_nostate")
                    state_update()
                    a.label("L_nostate")
                u1 = t - INS0; u2 = u1 - 1
                if 0 <= u2 < 17:
                    ins2(u2, "lp", TA[u2 & 1], RK[u2 & 1], sMk[u2 & 1])
                    if u2 < 16: rec_load(u2, T + 4)
                if 0 <= u1 < 17:
                    pos = order.index(("W", t))
                    if u1 < 16:
                        n_first = (15 - u1) + sum(1 for x in order[:pos] if x[0] != "W")
                        n = min(younger(("rec", u1), pos), n_first)
                    else:
                        n = younger(("car", 16), pos)
                    a(f"  s_waitcnt vmcnt({min(n, 62)})")
                    ins1(u1, f"s{sThr}" if u1 < 16 else "0", TA[u1 & 1], RK[u1 & 1], sMk[u1 & 1])
                if t == INS0 + 18:
                    a(f"  s_cmp_gt_u32 s{sCin}, 512\n  s_cbranch_scc1 L_slow")
                    a.label("L_slow_back")
            elif t < 13:
                m_load(t)
            n = younger(("g", tc), order.index(("W", t)))
            a(f"  s_waitcnt vmcnt({n})")
            cstage_m1(q)
            w, off, af, e = T, T + 1, T + 2, T + 3
            a(f"""
  v_min_i32 {v(w)}, {v(rp)}, {v(rp+1)}
  v_cmp_gt_i32 vcc, 0, {v(rp)}
  v_and_b32 {v(off)}, 0x7ffff, {v(w)}
  v_lshl_add_u32 {v(off)}, {v(off)}, 5, {v(vHalf)}
  v_cndmask_b32_sdwa {v(af)}, {v(rp)}, {v(rp+1)}, vcc dst_sel:WORD_1 dst_unused:UNUSED_PAD src0_sel:WORD_1 src1_sel:WORD_0
  v_cmp_gt_u32 vcc, s{sCnt[t&1]}, {v(vSlot)}
  v_bfe_u32 {v(e)}, {v(w)}, 20, 3
  v_mul_f32 {v(af)}, {v(af)}, {v(vFreq)}
  v_cndmask_b32 {v(off)}, {v(vOOB)}, {v(off)}, vcc
  buffer_load_dwordx4 {v(RING[q],4)}, {v(vOOB if OPT["abl_g"] else off)}, {s(sM,4)}, 0 offen""")
            cstage_cvt()
            a(f"""
  v_cndmask_b32 {v(af)}, {v(vZ)}, {v(af)}, vcc
  v_cvt_pk_bf16_f32 {v(af)}, 0, {v(af)}
  s_waitcnt lgkmcnt({2 if t < NT-1 else 1})""")
            cstage_m2(tc)
            if not OPT["abl_cos"]: a(f"""
  v_mul_f32 {v(af)}, 0.15915494, {v(af)}
  v_fract_f32 {v(af)}, {v(af)}
  v_cos_f32 {v(af)}, {v(af)}
  v_lshl_add_u32 {v(SA[q])}, {v(e)}, 4, {v(vSst)}
  v_cvt_pk_bf16_f32 {v(CC[q])}, {v(af)}, {v(af)}""")

    a(".p2align 6")
    a.label("L_lean")
    body(False)
    a("  s_branch L_turn2")
    a(".p2align 6")
    a.label("L_loop")
    body(True)
    a(f"  s_waitcnt vmcnt({NT - (INS0 + 17)})")
    a.label("L_turn2")
    a(f"""
  v_mov_b32 {v(T)}, {v(vCtlN)}
  s_add_u32 s{sIt}, s{sIt}, 1
  s_add_u32 s{sX}, s{sIt}, 1
  s_and_b32 s{sX}, s{sX}, 3
  s_lshl_b32 s{sX}, s{sX}, 3
  s_add_u32 s{sX}, s{sX}, {CTL}
  v_mov_b32 {v(vCtlN)}, s{sX}
  s_sub_u32 s{sX}, s{sIns}, {BUFSZ}
  s_add_u32 s{sX}, s{sX}, s{sIns}
  v_add_u32 {v(vRd)}, s{sX}, {v(vRd)}
  v_add_u32 {v(vCntA)}, s{sX}, {v(vCntA)}
  s_sub_u32 s{sIns}, {BUFSZ}, s{sIns}
  s_mov_b32 s{sCarR}, s{sCarW}
  s_sub_u32 s{sCarW}, {CARLIST}, s{sCarW}
  v_cmp_lt_u32 vcc, 0, {v(rem)}
  s_waitcnt lgkmcnt(0)""")
    if OPT["stamp"] == 1:
        a(f"  s_lshl_b32 s90, s{sIt}, 1\n  s_add_u32 s90, s90, 16\n  s_min_u32 m0, s90, 58")
        stamp(a, 252, "m0")
        a("  s_add_u32 m0, m0, 1")
    a("  s_barrier")
    stamp(a, 252, "m0")
    a(f"""
  ds_read_b64 {v(T+2,2)}, {v(T)}
  ds_read_b32 {v(vCnt)}, {v(vCntA)}
  ds_read_b64 {v(RP[0],2)}, {v(vRd)} offset:8
  s_or_b32 s{sX}, vcc_lo, vcc_hi
  s_cselect_b32 s{sThr}, 0, 0x80000000
  s_waitcnt lgkmcnt(1)
  v_readfirstlane_b32 s{sCin}, {v(T+2)}
  v_readfirstlane_b32 s{sFl}, {v(T+3)}
  v_readlane_b32 s{sCnt[0]}, {v(vCnt)}, 0
  s_cmp_gt_u32 s{sCin}, 512
  s_cselect_b32 s{sThr}, 0x80000000, s{sThr}
  s_min_u32 s{sCin}, s{sCin}, {CARCAP}
  s_cmp_lt_u32 s{sIt}, {OPT['itcap']}
  s_cselect_b32 s{sFl}, s{sFl}, 0
  s_cmp_eq_u32 s{sFl}, 0
  s_cbranch_scc1 L_epi
  s_or_b32 s{sX}, s{sX}, s{sCin}
  s_cbranch_scc1 L_loop
  s_branch L_lean""")

    a.label("L_epi")
    RBv = Q
    assert vRT4 - Q + 1 >= 14
    a(f"""
  v_and_b32 {v(T)}, 63, v0
  s_mul_i32 s{sX}, s{sW}, 3584
  s_add_u32 s{sX}, s{sX}, {RB_OFF}
  v_lshl_add_u32 {v(T+1)}, {v(T)}, 3, s{sX}
  v_lshlrev_b32 {v(vI6)}, 4, {v(T)}
  s_mul_i32 s{sX}, s{sW}, 6656
  v_add_u32 {v(vI1)}, s{sX}, {v(vMoff)}
  v_add_u32 {v(vI4)}, s{sX}, {v(vI6)}""")
    for h in range(7):
        a(f"  ds_read_b64 {v(RBv+2*h,2)}, {v(T+1)} offset:{h*512}")
    a(f"  s_cmp_lg_u32 s{sMv}, 0\n  s_cbranch_scc1 L_havem")
    for p in range(13): m_load(p)
    a.label("L_havem")
    for q in range(D):
        cstage_head(q)
        a(f"  s_waitcnt vmcnt({D - 1 - q})")
        cstage_m1(q)
        a("  s_nop 6")
        cstage_cvt()
        a("  s_waitcnt lgkmcnt(0)\n  s_nop 0")
        cstage_m2(NT - D + q)
    stamp(a, 252, 4)
    XS0, XS1, XR = Wa, Wa + 2, Wb
    a(f"""
  v_mov_b32 {v(XS0)}, 0
  v_mov_b32 {v(XS0+1)}, {v(WS0)}
  v_mov_b32 {v(XS1)}, 0
  v_mov_b32 {v(XS1+1)}, {v(WS1)}
  v_mov_b32 {v(XR)}, 0
  v_mov_b32 {v(XR+1)}, {v(WR)}
  s_nop 1""")
    G0 = [POOL, POOL + 4]; G1 = [POOL + 8, POOL + 12]; RR = [POOL + 16, POOL + 20, POOL + 24]; U = [POOL + 28, POOL + 32]
    AGG = T + 4; AG = RP[1]
    def s1(p):
        b = RBv + (p & ~1)
        w0, w1, wr = (WS0, WS1, WR) if p % 2 == 0 else (XS0, XS1, XR)
        a(f"""
  v_mfma_f32_16x16x16_bf16 {v(G0[p%2],4)}, {v(w0,2)}, {v(b,2)}, 0
  v_mfma_f32_16x16x16_bf16 {v(G1[p%2],4)}, {v(w1,2)}, {v(b,2)}, 0
  v_mfma_f32_16x16x16_bf16 {v(RR[p%3],4)}, {v(wr,2)}, {v(b,2)}, 0""")
    def s2(p):
        t0 = ACC[2*p]; t1 = ACC[2*p+1] if 2*p+1 < NT else ACC[2*p]
        g0, g1 = G0[p%2], G1[p%2]
        for r in range(4): a(f"  v_mul_f32 {v(AGG+r)}, {v(t0+r)}, {v(g0+r)}")
        for r in range(4): a(f"  v_mul_f32_dpp {v(AGG+r)}, {v(t1+r)}, {v(g0+r)} row_ror:8 row_mask:0xf bank_mask:0xc")
        for r in range(4): a(f"  v_fmac_f32_dpp {v(AGG+r)}, {v(t0+r)}, {v(g1+r)} row_ror:8 row_mask:0xf bank_mask:0x3")
        for r in range(4): a(f"  v_fmac_f32_dpp {v(AGG+r)}, {v(t1+r)}, {v(g1+r)} quad_perm:[0,1,2,3] row_mask:0xf bank_mask:0xc")
        a(f"""
  v_cvt_pk_bf16_f32 {v(AG)}, {v(AGG)}, {v(AGG+1)}
  v_cvt_pk_bf16_f32 {v(AG+1)}, {v(AGG+2)}, {v(AGG+3)}""")
    def s2m(p):
        a(f"  v_mfma_f32_16x16x16_bf16 {v(U[p%2],4)}, {v(WUP,2)}, {v(AG,2)}, 0")
    def s3a(p):
        x = ACC[2*p]
        a(f"""
  v_lshlrev_b32 {v(x)}, 16, {v(MR+2*p)}
  v_and_b32 {v(x+1)}, 0xffff0000, {v(MR+2*p)}
  v_lshlrev_b32 {v(x+2)}, 16, {v(MR+2*p+1)}
  v_and_b32 {v(x+3)}, 0xffff0000, {v(MR+2*p+1)}""")
    def s3b(p):
        x = ACC[2*p]; u = U[p%2]; r = RR[p%3]
        a(f"""
  v_pk_fma_f32 {v(x,2)}, {v(u,2)}, {v(r,2)}, {v(x,2)}
  v_pk_fma_f32 {v(x+2,2)}, {v(u+2,2)}, {v(r+2,2)}, {v(x+2,2)}
  v_cvt_pk_bf16_f32 {v(x)}, {v(x)}, {v(x+1)}
  v_cvt_pk_bf16_f32 {v(x+1)}, {v(x+2)}, {v(x+3)}
  ds_write_b64 {v(vI1)}, {v(x,2)} offset:{p*512}""")
    s1(0)
    a("  s_nop 4")
    for p in range(14):
        if p + 1 < 13: s1(p + 1)
        if p < 13:
            s2(p)
            s3a(p)
            s2m(p)
        else:
            a("  s_nop 3")
        if p > 0: s3b(p - 1)
    stamp(a, 252, 5)
    Y = POOL
    for r in range(7):
        a(f"  ds_read_b128 {v(Y+4*r,4)}, {v(vI4)} offset:{r*1024}")
    for r in range(7):
        a(f"  s_waitcnt lgkmcnt({6-r})")
        a(f"  buffer_store_dwordx4 {v(Y+4*r,4)}, {v(vI6)}, {s(sOUT,4)}, s{sEb if r < 4 else sEb2} offen offset:{(r%4)*1024}")
    stamp(a, 252, 6)
    if OPT["stamp"]: a("  s_waitcnt vmcnt(0)")
    stamp(a, 252, 7); stamp(a, 252, 63, "s_memrealtime")
    if OPT["stamp"]: a(f"  v_writelane_b32 v252, s{sIt}, 61")
    stamp_out(a, 252, sWS, 8, STAMPOFF + 0x200000, 253)
    a.label("L_end")
    a("  s_endpgm")

    a.label("L_slow")
    a(f"  s_mov_b32 s{sX}, 512")
    a.label("L_slow_loop")
    a(f"""
  v_add_u32 {v(T+1)}, s{sX}, {v(vCarIdx)}
  v_cmp_gt_u32 vcc, s{sCin}, {v(T+1)}
  v_lshlrev_b32 {v(T+1)}, 3, {v(T+1)}
  s_nop 0
  v_cndmask_b32 {v(T+1)}, {v(vOOB)}, {v(T+1)}, vcc
  buffer_load_dwordx2 {v(REC[16],2)}, {v(T+1)}, {s(sCAR,4)}, s{sCarR} offen sc1
  s_waitcnt vmcnt(0)""")
    ins1(16, "0", TA[0], RK[0], sMk[0])
    a("  s_waitcnt lgkmcnt(0)")
    ins2(16, "sl", TA[0], RK[0], sMk[0])
    a(f"""
  s_add_u32 s{sX}, s{sX}, 512
  s_cmp_lt_u32 s{sX}, s{sCin}
  s_cbranch_scc1 L_slow_loop
  s_waitcnt vmcnt(0)
  s_branch L_slow_back""")
    for lab, u, rk in rare:
        a.label(f"L_rare_{lab}")
        a(f"""
  s_mov_b64 {s(sT,2)}, exec
  s_mov_b64 exec, vcc
  ds_add_rtn_u32 {v(rk)}, {v(vCtlN)}, {v(vOne)}
  s_waitcnt lgkmcnt(0)
  v_lshlrev_b32 {v(rk)}, 3, {v(rk)}
  buffer_store_dwordx2 {v(REC[u],2)}, {v(rk)}, {s(sCAR,4)}, s{sCarW} offen
  s_andn2_b64 exec, {s(sT,2)}, vcc
  s_branch L_back_{lab}""")
    return NV

def kd(name, nv, ns):
    nv4 = (nv + 3) // 4 * 4
    return f""".amdhsa_kernel {name}
  .amdhsa_next_free_vgpr {nv}
  .amdhsa_next_free_sgpr {ns}
  .amdhsa_accum_offset {nv4}
  .amdhsa_group_segment_fixed_size 0
  .amdhsa_kernarg_size 112
  .amdhsa_user_sgpr_count 2
  .amdhsa_user_sgpr_kernarg_segment_ptr 1
  .amdhsa_system_sgpr_workgroup_id_x 1
  .amdhsa_float_denorm_mode_32 3
.end_amdhsa_kernel
"""

def main():
    out = sys.argv[1]
    ref = open(f"cdna_kernels/{NAME}.s.ref").read().split("\n")
    head = [l for l in ref if l.startswith(";") and "@launch" not in l and "Override" not in l and "grid=ceil" not in l]
    a = Asm()
    a(".amdgcn_target \"amdgcn-amd-amdhsa--gfx950\"\n.text")
    a(f".globl bin_kernel\n.type bin_kernel,@function\n.globl {NAME}_kernel\n.type {NAME}_kernel,@function")
    gen_p1(a)
    nv = gen_p2(a)
    errs = a.check()
    for e in errs: print("HAZARD", e)
    txt = "\n".join(head) + "\n"
    txt += f"; @launch kernel=bin_kernel grid=({NCH},1,1) block=(1024,1,1) lds={P1_LDS}\n"
    txt += f"; @launch kernel={NAME}_kernel grid=(256,1,1) block=(512,1,1) lds={P2_LDS}\n"
    txt += a.text()
    txt += ".section .rodata,\"a\"\n.p2align 6\n" + kd("bin_kernel", 128, 96) + ".p2align 6\n" + kd(NAME + "_kernel", 256 if OPT["stamp"] else nv, 96)
    open(out, "w").write(txt)
    print("vgprs p2:", nv, "lines:", len(a.lines), "hazards:", len(errs))

main()
```

```python
import sys, os
sys.path.insert(0, os.path.dirname(__file__))
from asmlib import Asm

NAME = "gather_scatter__molecular_angular_gemnet__graph"
E = 400000
NCH, CH = 250, 25600
EB = 1568
K = 6
MJ = 2739138
TABOFF = 0x2800000
CAROFF = 0x3000000
CARCAP = 9216
CARLIST = CARCAP * 8
STAMPOFF = 0x6000000
OPT = dict(pf0=0, prio=0, rec_pol=0, stamp=0, itcap=64, ld_nt=7, st_pol=0, mtouch=0, la=3, apre=3, wmain=78000, b5=368000, ins0=4,
           abl_mfma=0, abl_s=0, abl_cos=0, abl_g=0)
for a in sys.argv[2:]:
    k, v = a.split("=")
    assert k in OPT, k
    OPT[k] = int(v)
MK = -(-(1 << 32) // OPT["wmain"])
assert (399999 * MK) >> 32 <= 5

RPOL = ('', ' nt', ' sc1', ' sc0 sc1')[OPT['rec_pol']]

def v(i, n=1):
    return f"v{i}" if n == 1 else f"v[{i}:{i+n-1}]"
def s(i, n=1):
    return f"s{i}" if n == 1 else f"s[{i}:{i+n-1}]"

def stamp(a, vreg, lane, op="s_memtime"):
    if not OPT["stamp"]: return
    if OPT["stamp"] == 2:
        mp = {127: {62: (0, 1), 1: (1, 0), 4: (2, 0), 7: (3, 0), 63: (4, 0)}, 252: {62: (0, 1), 2: (1, 0), 11: (2, 0), 4: (3, 0), 63: (4, 0)}}[vreg]
        if lane not in mp: return
        l, inv = mp[lane]
        a(f"  s_memrealtime s[88:89]\n  s_waitcnt lgkmcnt(0)")
        if inv: a("  s_not_b32 s88, s88")
        a(f"  v_writelane_b32 v{vreg}, s88, {l}")
        return
    a(f"  {op} s[88:89]\n  s_waitcnt lgkmcnt(0)\n  v_writelane_b32 v{vreg}, s88, {lane}")
def stamp_out(a, vreg, wslo, nwaves, base, tmp):
    if not OPT["stamp"]: return
    if OPT["stamp"] == 2:
        back = 512 if vreg == 127 else 32
        a(f"""
  s_load_dwordx2 s[90:91], s[0:1], 96
  s_waitcnt lgkmcnt(0)
  s_add_u32 s92, s90, {back}
  s_addc_u32 s93, s91, 0
  s_mov_b32 s94, 20
  s_mov_b32 s95, 0x20000
  v_lshlrev_b32 v{tmp}, 2, v0
  buffer_atomic_umax v{vreg}, v{tmp}, s[92:95], 0 offen""")
        return
    a(f"  s_mul_i32 s88, s2, {nwaves*256}\n  s_add_u32 s88, s88, {base}")
    srd(a, 92, wslo, wslo+1, "s88", nwaves*256)
    a(f"  v_lshlrev_b32 v{tmp}, 2, v0\n  buffer_store_dword v{vreg}, v{tmp}, s[92:95], 0 offen")

def srd(a, d, lo, hi, add, size):
    if add is None:
        a(f"  s_mov_b32 s{d}, s{lo}\n  s_mov_b32 s{d+1}, s{hi}")
    else:
        a(f"  s_add_u32 s{d}, s{lo}, {add}\n  s_addc_u32 s{d+1}, s{hi}, 0")
    a(f"  s_mov_b32 s{d+2}, {size}\n  s_mov_b32 s{d+3}, 0x20000")

P1_CNT, P1_SENT, P1_TMP, P1_REC = 0, 6144, 6160, 6272
P1_LDS = P1_REC + CH * 6

def gen_p1(a):
    O, I, A, R = 8, 36, 64, 80
    T = 108
    nto, nti, nta = (" nt" if OPT["ld_nt"] >> b & 1 else "" for b in range(3))
    a(".p2align 8")
    a.label("bin_kernel")
    a(f"""
  s_cmp_ge_u32 s2, {NCH}
  s_cbranch_scc1 L_bin_end
  s_load_dwordx4 s[8:11], s[0:1], 8
  s_load_dwordx2 s[4:5], s[0:1], 0
  s_load_dwordx2 s[6:7], s[0:1], 32
  s_load_dwordx2 s[12:13], s[0:1], 104
  v_lshlrev_b32 v1, 4, v0
  v_mov_b64 {v(T,2)}, 0
  v_mov_b64 {v(T+2,2)}, 0
  s_mul_i32 s14, s2, {CH*4}
  s_mov_b32 s40, 16384
  ds_write_b128 v1, {v(T,4)}
  s_waitcnt lgkmcnt(0)""")
    stamp(a, 127, 0); stamp(a, 127, 62, "s_memrealtime")
    srd(a, 20, 10, 11, "s14", CH * 4)
    srd(a, 16, 8, 9, "s14", CH * 4)
    so4 = lambda q: "0" if q == 0 else f"s{39+q}"
    so2 = lambda q: "0" if q == 0 else f"s{49+q}"
    vm = []
    def ld_pair(q):
        if q < 6:
            a(f"  buffer_load_dwordx4 {v(O+4*q,4)}, v1, s[20:23], {so4(q)} offen{nto}")
            a(f"  buffer_load_dwordx4 {v(I+4*q,4)}, v1, s[16:19], {so4(q)} offen{nti}")
        else:
            a(f"  buffer_load_dword {v(O+24)}, v3, s[20:23], {so4(6)} offen{nto}")
            a(f"  buffer_load_dword {v(I+24)}, v3, s[16:19], {so4(6)} offen{nti}")
        vm.extend([("o", q), ("p", q)])
    def ld_ang(q):
        if q < 6: a(f"  buffer_load_dwordx2 {v(A+2*q,2)}, v2, s[24:27], {so2(q)} offen{nta}")
        else: a(f"  buffer_load_ushort {v(A+12)}, v4, s[24:27], {so2(6)} offen{nta}")
        vm.append(("a", q))
    def wait_for(x):
        a(f"  s_waitcnt vmcnt({len(vm) - 1 - vm.index(x)})")
    ld_pair(0); ld_pair(1)
    a("  s_barrier")
    for q in range(2, 10): a(f"  s_mov_b32 s{39+q}, {q*16384}")
    LA = OPT["la"]
    for q in range(2, LA): ld_pair(q)
    a(f"""
  v_lshlrev_b32 v2, 3, v0
  v_lshlrev_b32 v3, 2, v0
  v_lshlrev_b32 v4, 1, v0
  v_lshlrev_b32 v5, 7, v0
  v_mov_b32 v7, 1
  v_lshrrev_b32 {v(T+4)}, 6, v0
  s_mul_i32 s15, s2, {CH*2}
  s_mul_i32 s62, s2, {CH*6}
  s_lshl_b32 s63, s2, 5
  s_mov_b32 s56, {MJ}
  s_mov_b32 s57, {MK}
  s_mov_b32 s58, {-EB & 0xffffffff}
  s_mov_b32 s59, {OPT['b5']}
  v_readfirstlane_b32 s60, {v(T+4)}""")
    for q in range(1, 7): a(f"  s_mov_b32 s{49+q}, {q*8192}")
    srd(a, 24, 6, 7, "s15", CH * 2)
    srd(a, 28, 4, 5, "s15", CH * 2)
    srd(a, 32, 12, 13, "s62", CH * 6)
    srd(a, 36, 12, 13, TABOFF, 256 * 8192)
    def hist(idx):
        for x, i in enumerate(idx): a(f"  v_cmp_le_u32 {s(64+2*x,2)}, s59, {v(I+i)}")
        for x, i in enumerate(idx): a(f"  v_mul_hi_u32_u24 {v(T+x)}, s56, {v(O+i)}")
        for x, i in enumerate(idx): a(f"  v_mul_hi_u32_u24 {v(T+4+x)}, s57, {v(I+i)}")
        for x, i in enumerate(idx): a(f"  v_cndmask_b32 {v(T+4+x)}, {v(T+4+x)}, 5, {s(64+2*x,2)}")
        for x, i in enumerate(idx): a(f"  v_mad_i32_i24 {v(T+8+x)}, {v(T+x)}, s58, {v(O+i)}")
        for x, i in enumerate(idx): a(f"  v_lshl_add_u32 {v(O+i)}, {v(T+4+x)}, 8, {v(T+x)}")
        for x, i in enumerate(idx): a(f"  v_lshlrev_b32 {v(O+i)}, 2, {v(O+i)}")
        for x, i in enumerate(idx): a(f"  ds_add_rtn_u32 {v(R+i)}, {v(O+i)}, v7")
        for x, i in enumerate(idx): a(f"  v_lshl_or_b32 {v(I+i)}, {v(T+8+x)}, 20, {v(I+i)}")
        for x, i in enumerate(idx): a(f"  v_or_b32 {v(I+i)}, 0x80000000, {v(I+i)}")
    na = 0
    for q in range(7):
        wait_for(("p", q))
        if q in (0, 6): stamp(a, 127, 1 if q == 0 else 2)
        if q + LA < 7: ld_pair(q + LA)
        else:
            for _ in range(2):
                if na < OPT["apre"]: ld_ang(na); na += 1
        hist(list(range(4*q, 4*q+4)) if q < 6 else [24])
    stamp(a, 127, 3)
    a(f"""
  s_waitcnt lgkmcnt(0)
  s_barrier
  s_cmp_ge_u32 s60, {K}
  s_cbranch_scc1 L_bin_s1
  ds_read_b128 {v(T,4)}, v1
  v_and_b32 {v(T+8)}, 63, v0
  s_waitcnt lgkmcnt(0)
  v_add_u32 {v(T+1)}, {v(T)}, {v(T+1)}
  v_add_u32 {v(T+2)}, {v(T+1)}, {v(T+2)}
  v_add_u32 {v(T+3)}, {v(T+2)}, {v(T+3)}
  v_mov_b32 {v(T+4)}, {v(T+3)}""")
    X = v(T+4)
    for sh in (1, 2, 4, 8):
        a(f"  s_nop 1\n  v_add_u32_dpp {X}, {X}, {X} row_shr:{sh} row_mask:0xf bank_mask:0xf bound_ctrl:0")
    a(f"  s_nop 1\n  v_add_u32_dpp {X}, {X}, {X} row_bcast:15 row_mask:0xa bank_mask:0xf")
    a(f"  s_nop 1\n  v_add_u32_dpp {X}, {X}, {X} row_bcast:31 row_mask:0xc bank_mask:0xf")
    a(f"""
  v_cmp_lt_u32 vcc, s60, {v(T+8)}
  v_readlane_b32 s61, {X}, 63
  v_lshlrev_b32 {v(T+9)}, 2, {v(T+8)}
  s_and_b32 vcc_lo, vcc_lo, 0xff
  s_mov_b32 vcc_hi, 0
  v_mov_b32 {v(T+10)}, s61
  s_mov_b64 exec, vcc
  ds_add_u32 {v(T+9)}, {v(T+10)} offset:{P1_TMP}
  s_mov_b64 exec, -1
  s_waitcnt lgkmcnt(0)""")
    a.label("L_bin_s1")
    a(f"""
  s_barrier
  s_cmp_ge_u32 s60, {K}
  s_cbranch_scc1 L_bin_s2
  s_lshl_b32 s61, s60, 2
  v_mov_b32 {v(T+9)}, s61
  ds_read_b32 {v(T+9)}, {v(T+9)} offset:{P1_TMP}
  v_sub_u32 {X}, {X}, {v(T+3)}
  v_mov_b32 {v(T+10)}, {CH}
  v_mov_b32 {v(T+11)}, 0
  s_waitcnt lgkmcnt(0)
  v_add_u32 {v(T+4)}, {X}, {v(T+9)}
  v_add_u32 {v(T+5)}, {v(T+4)}, {v(T)}
  v_add_u32 {v(T+6)}, {v(T+4)}, {v(T+1)}
  v_add_u32 {v(T+7)}, {v(T+4)}, {v(T+2)}
  ds_write_b128 v1, {v(T+4,4)}
  ds_write_b32 {v(T+11)}, {v(T+10)} offset:{P1_SENT}
  s_waitcnt lgkmcnt(0)""")
    a.label("L_bin_s2")
    a("  s_barrier")
    stamp(a, 127, 4)
    while na < 7: ld_ang(na); na += 1
    if OPT["mtouch"]:
        a(f"  buffer_load_dword v6, v5, s[28:31], 0 offen"); vm.append(("m", 0))
    for i in range(25):
        a(f"  ds_read_b32 {v(O+i)}, {v(O+i)}")
    a(f"  v_mov_b32 v2, 6\n  v_mov_b32 v3, 2")
    for g in range(0, 25, 5):
        idx = list(range(g, g+5))
        a("  s_waitcnt lgkmcnt(10)")
        for i in idx: a(f"  v_add_u32 {v(O+i)}, {v(O+i)}, {v(R+i)}")
        for i in idx: a(f"  v_mad_u32_u24 {v(O+i)}, {v(O+i)}, v2, v3")
        for i in idx: a(f"  v_and_b32 {v(R+i)}, -4, {v(O+i)}")
        for i in idx: a(f"  ds_write_b32 {v(R+i)}, {v(I+i)} offset:{P1_REC}")
    for i in range(25): a(f"  v_and_b32 {v(R+i)}, 2, {v(O+i)}")
    for i in range(25): a(f"  v_lshl_add_u32 {v(O+i)}, {v(R+i)}, 1, {v(O+i)}")
    stamp(a, 127, 5)
    for q in range(7):
        wait_for(("a", q))
        for r in range(2 if q < 6 else 1):
            a(f"  v_and_b32 {v(A+2*q+r)}, 0x7fff7fff, {v(A+2*q+r)}")
        for i in range(4*q, min(4*q+4, 25)):
            op = "ds_write_b16_d16_hi" if (i & 1) else "ds_write_b16"
            a(f"  {op} {v(O+i)}, {v(A + i//2)} offset:{P1_REC-2}")
    stamp(a, 127, 6)
    a(f"  v_add_u32 v2, {P1_REC+4*16384}, v1\n  v_add_u32 v3, {P1_REC+8*16384}, v1\n  v_add_u32 v4, {P1_REC}, v1")
    a("  s_waitcnt lgkmcnt(0)\n  s_barrier")
    stamp(a, 127, 7)
    for r in range(10):
        base = ("v4", "v2", "v3")[r // 4]
        a(f"  ds_read_b128 {v(8+4*r,4)}, {base} offset:{(r%4)*16384}")
    spol = ("", " nt", " sc1", " sc0 sc1", " sc0")[OPT["st_pol"]]
    for r in range(10):
        a(f"  s_waitcnt lgkmcnt({9-r})")
        a(f"  buffer_store_dwordx4 {v(8+4*r,4)}, v1, s[32:35], {so4(r)} offen{spol}")
    stamp(a, 127, 8)
    if OPT["stamp"]: a("  s_waitcnt vmcnt(0)")
    stamp(a, 127, 9); stamp(a, 127, 63, "s_memrealtime")
    stamp_out(a, 127, 12, 16, STAMPOFF, 126)
    a(f"""
  s_cmp_lt_u32 s60, 12
  s_cbranch_scc1 L_bin_end
  v_and_b32 {v(T+12)}, 0xff, v0
  v_lshlrev_b32 {v(T+13)}, 2, {v(T+12)}
  v_lshlrev_b32 {v(T+12)}, 13, {v(T+12)}""")
    for k in range(K):
        a(f"  ds_read_b32 {v(T+k)}, {v(T+13)} offset:{k*1024}")
        a(f"  ds_read_b32 {v(T+6+k)}, {v(T+13)} offset:{k*1024+4}")
    a("  s_waitcnt lgkmcnt(0)")
    for k in range(K):
        a(f"  v_sub_u32 {v(T+6+k)}, {v(T+6+k)}, {v(T+k)}")
    for k in range(K):
        a(f"  v_lshl_or_b32 {v(T+k)}, {v(T+6+k)}, 16, {v(T+k)}")
    a(f"""
  buffer_store_dwordx4 {v(T,4)}, {v(T+12)}, s[36:39], s63 offen{spol}
  buffer_store_dwordx2 {v(T+4,2)}, {v(T+12)}, s[36:39], s63 offen offset:16{spol}""")
    a.label("L_bin_end")
    a("  s_endpgm")

TS = 264
BUFSZ = 200 * TS
S_OFF = 2 * BUFSZ
CTL = S_OFF + 8192
RB_OFF = CTL + 128
P2_LDS = RB_OFF + 8 * 3584
D = 5
NT = 25

class RA:
    def __init__(self, start): self.n = start
    def __call__(self, k=1, al=1):
        self.n = (self.n + al - 1) // al * al
        r = self.n; self.n += k
        return r

def gen_p2(a):
    ra = RA(1)
    vSlot, vHalf, vFreq, vSst, vSrd, vI6, vI1, vI4 = (ra() for _ in range(8))
    vRd, vCntA, vOne, vOOB, vCarOff, vCarIdx, v264, vMsk, vCtlN = (ra() for _ in range(9))
    vZ = ra(2, 2)
    Q = ra(6, 4)
    sA, nA, cb, rem, rtot, vA6, vB6, vR0, vRT4 = (ra() for _ in range(9))
    vCnt = ra()
    Wa = ra(4, 4); Wb = ra(4, 4)
    RING = [ra(4, 4) for _ in range(D)]
    Da = ra(4, 4); Db = ra(4, 4); P = ra(4, 4); Sf = ra(4, 4)
    ACC = [ra(4, 4) for _ in range(NT)]
    REC = [ra(2, 4 if i == 0 else 2) for i in range(17)]
    RP = [ra(2, 2), ra(2, 2)]
    T = ra(10, 2)
    TA = [ra(), ra()]; RK = [ra(), ra()]
    WS0 = ra(2, 2); WS1 = ra(2, 2); WR = ra(2, 2); WUP = ra(2, 2)
    CC = [ra() for _ in range(D)]; SA = [ra() for _ in range(D)]
    assert ra.n <= 252, ra.n
    NV = ra.n
    sM = 4; sREC = 8; sCAR = 12; sTAB = 16; sOUT = 20; sDIST = 24; sMW = 28
    sJ, sW, sIt, sThr, sIns, sCarW, sCarR, sRb, sCin, sX, sFl, sEb = range(32, 44)
    sCnt = [44, 45]
    sWS = 46
    sPM = 72
    sMk = [72, 74]; sT = 76; sC10 = 78; sCl2 = 80
    sEb2 = 3
    rare = []

    a(".p2align 8")
    a.label(NAME + "_kernel")
    a(f"""
  s_cmp_ge_u32 s2, 256
  s_cbranch_scc1 L_end
  s_load_dwordx2 s[46:47], s[0:1], 104
  s_load_dwordx16 s[48:63], s[0:1], 0
  s_load_dwordx8 s[64:71], s[0:1], 64
  s_and_b32 s{sJ}, s2, 7
  s_lshl_b32 s{sJ}, s{sJ}, 5
  s_lshr_b32 s{sX}, s2, 3
  s_add_u32 s{sJ}, s{sJ}, s{sX}
  v_lshrrev_b32 {v(T)}, 6, v0
  v_and_b32 {v(T+2)}, 15, v0
  v_bfe_u32 {v(T+3)}, v0, 5, 1
  v_readfirstlane_b32 s{sW}, {v(T)}
  v_lshlrev_b32 {v(vHalf)}, 4, {v(T+3)}
  v_lshl_add_u32 {v(cb)}, {v(T)}, 5, {v(vHalf)}
  v_add_u32 {v(cb)}, {v(cb)}, {v(T+2)}
  v_lshlrev_b32 {v(T+4)}, 5, {v(cb)}
  s_lshl_b32 s{sX}, s{sJ}, 13
  s_add_u32 s{sX}, s{sX}, {TABOFF}
  s_mov_b32 s{sTAB+2}, {NCH*32}
  s_mov_b32 s{sTAB+3}, 0x20000
  v_and_b32 {v(T+1)}, 63, v0
  v_and_b32 {v(vSlot)}, 31, v0
  v_mov_b64 {v(vZ,2)}, 0
  v_mov_b32 {v(v264)}, {TS}
  v_min_u32 {v(T+6)}, 399, v0
  v_mul_u32_u24 {v(T+6)}, {v(T+6)}, {v(v264)}
  s_waitcnt lgkmcnt(0)""")
    stamp(a, 252, 0); stamp(a, 252, 62, "s_memrealtime")
    a(f"""
  s_add_u32 s{sTAB}, s{sWS}, s{sX}
  s_addc_u32 s{sTAB+1}, s{sWS+1}, 0
  buffer_load_dwordx4 {v(Q,4)}, {v(T+4)}, {s(sTAB,4)}, 0 offen
  buffer_load_dwordx2 {v(Q+4,2)}, {v(T+4)}, {s(sTAB,4)}, 0 offen offset:16
  s_load_dword s{sCin}, s[60:61], 0
  v_lshlrev_b32 {v(T+8)}, 1, {v(T+2)}
  v_lshl_add_u32 {v(T+8)}, {v(T+3)}, 8, {v(T+8)}
  v_lshl_add_u32 {v(T+8)}, {v(T)}, 5, {v(T+8)}
  global_load_ushort {v(T+9)}, {v(T+8)}, s[66:67]
  ds_write_b32 {v(T+6)}, {v(vZ)}
  v_mov_b32 {v(vCtlN)}, {CTL}
  v_and_b32 {v(T+6)}, 7, v0
  v_lshl_add_u32 {v(T+6)}, {v(T+6)}, 2, {v(vCtlN)}
  ds_write_b32 {v(T+6)}, {v(vZ)}""")
    for q in range(D):
        a(f"  v_mov_b64 {v(RING[q],2)}, 0\n  v_mov_b64 {v(RING[q]+2,2)}, 0")
    a(f"""
  s_lshl_b32 s{sX}, s{sW}, 10
  s_add_u32 s{sX}, s{sX}, {S_OFF}
  v_lshl_add_u32 {v(vSrd)}, {v(T+1)}, 4, s{sX}
  ds_write_b128 {v(vSrd)}, {v(RING[0],4)}
  v_bfe_u32 {v(T+6)}, v0, 2, 2
  v_lshlrev_b32 {v(vSst)}, 8, {v(T+6)}
  v_lshl_add_u32 {v(vSst)}, {v(T+3)}, 7, {v(vSst)}
  v_bfe_u32 {v(T+6)}, v0, 4, 1
  v_lshl_add_u32 {v(vSst)}, {v(T+6)}, 3, {v(vSst)}
  v_and_b32 {v(T+6)}, 3, v0
  v_lshl_add_u32 {v(vSst)}, {v(T+6)}, 1, {v(vSst)}
  v_add_u32 {v(vSst)}, s{sX}, {v(vSst)}
  v_mov_b32 {v(vOne)}, 1
  v_mov_b32 {v(vOOB)}, 0x80000000
  v_mov_b32 {v(vMsk)}, 0x7ffffffc
  v_mul_u32_u24 {v(vI6)}, 6, {v(vSlot)}
  v_add_u32 {v(vI1)}, 1, {v(vSlot)}
  v_lshlrev_b32 {v(vI4)}, 2, {v(vI1)}
  v_mov_b32 {v(T+6)}, {CH}
  v_mul_u32_u24 {v(cb)}, {v(cb)}, {v(T+6)}
  v_mov_b32 {v(sA)}, 0
  v_mov_b32 {v(nA)}, 0
  v_mov_b32 {v(rtot)}, 0
  s_mul_i32 s{sX}, s{sW}, {NT*TS}
  s_add_u32 s{sX}, s{sX}, {BUFSZ}
  v_lshl_add_u32 {v(vRd)}, {v(vSlot)}, 3, s{sX}
  v_min_u32 {v(T+6)}, {NT-1}, {v(T+1)}
  v_mad_u32_u24 {v(vCntA)}, {v(T+6)}, {v(v264)}, s{sX}
  v_sub_u32 {v(vCarIdx)}, 511, v0
  v_lshlrev_b32 {v(vCarOff)}, 3, {v(vCarIdx)}
  v_lshlrev_b32 {v(TA[0])}, 4, {v(T+1)}
  v_add_u32 {v(TA[0])}, {RB_OFF}, {v(TA[0])}
  v_lshl_add_u32 {v(T+8)}, {v(T)}, 1, {v(TA[0])}
  v_cmp_eq_u32 vcc, 1, {v(T+3)}
  s_mul_i32 s{sFl}, s{sJ}, {2*CARLIST}
  s_add_u32 s{sFl}, s{sFl}, {CAROFF}
  s_waitcnt lgkmcnt(0)
  s_lshl_b32 s{sX}, s{sCin}, 16
  s_and_b32 s{sCin}, s{sCin}, 0xffff0000
  v_mov_b32 {v(vFreq)}, s{sX}
  v_mov_b32 {v(T+6)}, s{sCin}
  v_cndmask_b32 {v(vFreq)}, {v(vFreq)}, {v(T+6)}, vcc""")
    srd(a, sREC, sWS, sWS+1, None, NCH * CH * 6)
    srd(a, sM, 48, 49, None, E * 32)
    srd(a, sCAR, sWS, sWS+1, f"s{sFl}", 2 * CARLIST)
    srd(a, sDIST, 54, 55, None, E * 2)
    a(f"""
  s_mul_i32 s{sEb}, s{sJ}, {EB}
  s_mul_i32 s{sX}, s{sW}, 200
  s_add_u32 s{sFl}, s{sEb}, {EB}
  s_add_u32 s{sEb}, s{sEb}, s{sX}
  s_add_u32 s{sX}, s{sEb}, 200
  s_min_u32 s{sX}, s{sX}, s{sFl}
  s_min_u32 s{sX}, s{sX}, {E}
  s_lshl_b32 s{sX}, s{sX}, 5""")
    srd(a, sOUT, 70, 71, None, f"s{sX}")
    srd(a, sMW, 48, 49, None, f"s{sX}")
    a(f"""
  s_lshl_b32 s{sEb}, s{sEb}, 5
  s_add_u32 s{sEb2}, s{sEb}, 4096
  s_mov_b32 s{sIt}, -1
  s_mov_b32 s{sIns}, 0
  s_mov_b32 s{sCarW}, 0
  s_mov_b32 s{sCarR}, {CARLIST}
  s_mul_i32 s{sRb}, s{sW}, 11
  s_lshr_b32 s{sRb}, s{sRb}, 5
  s_add_u32 s{sRb}, s{sRb}, 1""")
    if OPT["prio"]:
        a(f"  s_cmp_lt_u32 s{sW}, 4\n  s_cbranch_scc1 L_noprio\n  s_setprio {OPT['prio']}")
        a.label("L_noprio")
    NZ1 = 10
    for t in range(NZ1):
        a(f"  v_mov_b64 {v(ACC[t],2)}, 0\n  v_mov_b64 {v(ACC[t]+2,2)}, 0")

    def state_update():
        a(f"""
  v_sub_u32 {v(rem)}, {v(rem)}, {v(rtot)}
  v_lshrrev_b32 {v(T)}, 16, {v(Q)}
  v_and_b32 {v(T+1)}, 0xffff, {v(Q)}
  v_min_u32 {v(vR0)}, 32, {v(nA)}
  v_cmp_ge_u32 vcc, 32, {v(nA)}
  v_sub_u32 {v(T+2)}, 32, {v(vR0)}
  v_add_u32 {v(vB6)}, {v(cb)}, {v(T+1)}
  v_min_u32 {v(T+2)}, {v(T)}, {v(T+2)}
  v_mul_u32_u24 {v(vB6)}, 6, {v(vB6)}
  v_add_u32 {v(rtot)}, {v(vR0)}, {v(T+2)}
  v_mad_i32_i24 {v(vB6)}, {v(vR0)}, -6, {v(vB6)}
  v_lshlrev_b32 {v(vRT4)}, 2, {v(rtot)}
  v_add_u32 {v(vA6)}, {v(cb)}, {v(sA)}
  v_mul_u32_u24 {v(vA6)}, 6, {v(vA6)}""")
    def state_update2():
        a(f"""
  v_add_u32 {v(sA)}, 32, {v(sA)}
  v_subrev_u32 {v(nA)}, 32, {v(nA)}
  v_add_u32 {v(T+1)}, {v(T+1)}, {v(T+2)}
  v_sub_u32 {v(T)}, {v(T)}, {v(T+2)}
  v_cndmask_b32 {v(sA)}, {v(sA)}, {v(T+1)}, vcc
  v_cndmask_b32 {v(nA)}, {v(nA)}, {v(T)}, vcc""")
        for i in range(K - 1):
            a(f"  v_cndmask_b32 {v(Q+i)}, {v(Q+i)}, {v(Q+i+1)}, vcc")
        a(f"  v_cndmask_b32 {v(Q+K-1)}, {v(Q+K-1)}, {v(vZ)}, vcc")
    def set_flag(tag):
        a(f"""
  v_cmp_lt_u32 vcc, 0, {v(rem)}
  s_cbranch_vccz L_noflag_{tag}
  ds_write_b32 {v(vCtlN)}, {v(vOne)} offset:4""")
        a.label(f"L_noflag_{tag}")

    bc = lambda u: f"row_newbcast:{u} row_mask:0xf bank_mask:0xf"
    def rec_load(u, t0):
        a(f"""
  v_sub_co_u32_dpp {v(t0)}, vcc, {v(vR0)}, {v(vI1)} {bc(u)}
  v_add_u32_dpp {v(t0)}, {v(vA6)}, {v(vI6)} {bc(u)}
  v_add_u32_dpp {v(t0+1)}, {v(vB6)}, {v(vI6)} {bc(u)}
  v_cndmask_b32 {v(t0)}, {v(t0)}, {v(t0+1)}, vcc
  v_sub_u32_dpp {v(t0+1)}, {v(vRT4)}, {v(vI4)} {bc(u)}
  v_bfi_b32 {v(t0)}, {v(vMsk)}, {v(t0)}, {v(t0+1)}
  buffer_load_dwordx2 {v(REC[u],2)}, {v(t0)}, {s(sREC,4)}, 0 offen{RPOL}""")

    def ins1(u, thr, ta, rk, mk):
        a(f"""
  v_min_i32 {v(ta)}, {v(REC[u])}, {v(REC[u]+1)}
  v_cmp_gt_i32 {s(mk,2)}, {thr}, {v(ta)}
  v_bfe_u32 {v(ta)}, {v(ta)}, 23, 8
  v_mad_u32_u24 {v(ta)}, {v(ta)}, {v(v264)}, s{sIns}
  s_mov_b64 exec, {s(mk,2)}
  ds_add_rtn_u32 {v(rk)}, {v(ta)}, {v(vOne)}
  s_mov_b64 exec, -1""")

    def ins2(u, tag, ta, rk, mk, tmp=None, addr=True):
        lab = f"{tag}_{u}"
        a(f"  s_mov_b64 exec, {s(mk,2)}\n  v_cmp_lt_u32 vcc, 31, {v(rk)}")
        if addr: a(f"  v_lshl_add_u32 {v(ta)}, {v(rk)}, 3, {v(ta)}")
        a(f"  s_cbranch_vccnz L_rare_{lab}")
        a.label(f"L_back_{lab}")
        a(f"""
  ds_write_b64 {v(ta)}, {v(REC[u],2)} offset:8
  s_mov_b64 exec, -1""")
        rare.append((lab, u, rk if tmp is None else tmp, mk))

    stamp(a, 252, 14)
    a(f"  s_waitcnt vmcnt(0)")
    stamp(a, 252, 1)
    a(f"  v_lshrrev_b32 {v(rem)}, 16, {v(Q)}")
    a(f"  ds_write_b16 {v(T+8)}, {v(T+9)}")
    state_update()
    for u in range(0, 16, 2):
        a(f"""
  v_add_u32_dpp {v(T+4)}, {v(vB6)}, {v(vI6)} {bc(u)}
  v_sub_u32_dpp {v(T+5)}, {v(vRT4)}, {v(vI4)} {bc(u)}
  v_add_u32_dpp {v(T+6)}, {v(vB6)}, {v(vI6)} {bc(u+1)}
  v_sub_u32_dpp {v(T+7)}, {v(vRT4)}, {v(vI4)} {bc(u+1)}
  v_bfi_b32 {v(T+4)}, {v(vMsk)}, {v(T+4)}, {v(T+5)}
  v_bfi_b32 {v(T+6)}, {v(vMsk)}, {v(T+6)}, {v(T+7)}
  buffer_load_dwordx2 {v(REC[u],2)}, {v(T+4)}, {s(sREC,4)}, 0 offen{RPOL}
  buffer_load_dwordx2 {v(REC[u+1],2)}, {v(T+6)}, {s(sREC,4)}, 0 offen{RPOL}""")
    NPF = 0
    if OPT["pf0"]:
        share = (OPT["wmain"] // 4 + 31) // 32
        a(f"""
  s_lshr_b32 s{sX}, s2, 3
  s_mul_i32 s{sX}, s{sX}, {share*128}
  v_lshlrev_b32 {v(T+4)}, 7, v0
  v_cmp_gt_u32 {s(sT,2)}, {share - 512}, v0
  buffer_load_dword {v(RK[0])}, {v(T+4)}, {s(sM,4)}, s{sX} offen
  s_add_u32 s{sX}, s{sX}, 65536
  v_cndmask_b32 {v(T+4)}, {v(vOOB)}, {v(T+4)}, {s(sT,2)}
  buffer_load_dword {v(RK[0])}, {v(T+4)}, {s(sM,4)}, s{sX} offen""".replace(f"{share - 512}, v0", f"{v(RK[1])}, v0").replace("  v_cmp_gt_u32", f"  v_mov_b32 {v(RK[1])}, {share-512}\n  v_cmp_gt_u32"))
        NPF = 2
    a("  s_waitcnt lgkmcnt(0)\n  s_barrier")
    a(f"  ds_read_b128 {v(Wb,4)}, {v(TA[0])}")
    stamp(a, 252, 12)
    for i in range(1, K):
        a(f"  v_lshrrev_b32 {v(T+4)}, 16, {v(Q+i)}\n  v_add_u32 {v(rem)}, {v(rem)}, {v(T+4)}")
    state_update2()
    state_update()
    state_update2()
    set_flag("pro")
    for t in range(NZ1, NT):
        a(f"  v_mov_b64 {v(ACC[t],2)}, 0\n  v_mov_b64 {v(ACC[t]+2,2)}, 0")
    for q in range(D):
        a(f"  v_mov_b32 {v(CC[q])}, 0\n  v_mov_b32 {v(SA[q])}, {v(vSst)}")
    a(f"  v_bfe_u32 {v(T)}, v0, 4, 1\n  v_cmp_eq_u32 vcc, 1, {v(T)}\n  s_waitcnt lgkmcnt(0)\n  s_nop 0")
    for r in range(4):
        a(f"  v_cndmask_b32 {v(Wa+r)}, {v(Wb+r)}, {v(vZ)}, vcc")
        a(f"  v_cndmask_b32 {v(Wb+r)}, {v(vZ)}, {v(Wb+r)}, vcc")
    stamp(a, 252, 13)
    PTA = lambda u: Da + u
    PRK = lambda u: RING[0] + u
    PMK = lambda u: sPM + 2 * (u % 8)
    slowg = []
    def pro_ins1(g):
        us = range(4*g, 4*g+4)
        a(f"  s_waitcnt vmcnt({NPF + 12 - 4*g})")
        for u in us: a(f"  v_min_i32 {v(PTA(u))}, {v(REC[u])}, {v(REC[u]+1)}")
        for u in us: a(f"  v_cmp_gt_i32 {s(PMK(u),2)}, 0, {v(PTA(u))}")
        for u in us: a(f"  v_bfe_u32 {v(PTA(u))}, {v(PTA(u))}, 23, 8")
        for u in us: a(f"  v_mul_u32_u24 {v(PTA(u))}, {v(PTA(u))}, {v(v264)}")
        for u in us: a(f"  s_mov_b64 exec, {s(PMK(u),2)}\n  ds_add_rtn_u32 {v(PRK(u))}, {v(PTA(u))}, {v(vOne)}")
        a("  s_mov_b64 exec, -1")
    def pro_ins2(g):
        us = list(range(4*g, 4*g+4))
        a(f"""
  v_max3_u32 {v(T)}, {v(PRK(us[0]))}, {v(PRK(us[1]))}, {v(PRK(us[2]))}
  v_max_u32 {v(T)}, {v(T)}, {v(PRK(us[3]))}
  v_cmp_lt_u32 vcc, 31, {v(T)}
  s_cbranch_vccz L_pfast_{g}
  v_cmp_lt_u32 vcc, 63, {v(T)}
  s_cbranch_vccnz L_pslow_{g}""")
        a.label(f"L_pback_{g}")
        for x, u in enumerate(us): a(f"  v_subrev_u32 {v(T+4+x)}, 31, {v(PRK(u))}")
        for x, u in enumerate(us): a(f"  s_mov_b64 exec, {s(PMK(u),2)}\n  ds_max_i32 {v(PTA(u))}, {v(T+4+x)} offset:{BUFSZ}")
        a(f"  s_mov_b64 exec, -1\n  ds_write_b32 {v(vCtlN)}, {v(vOne)} offset:4")
        for x, u in enumerate(us): a(f"  v_lshrrev_b32 {v(T+4+x)}, 5, {v(PRK(u))}")
        for x, u in enumerate(us): a(f"  v_mad_u32_u24 {v(PTA(u))}, {v(T+4+x)}, s{sThr}, {v(PTA(u))}")
        a.label(f"L_pfast_{g}")
        for u in us: a(f"  v_lshl_add_u32 {v(PTA(u))}, {v(PRK(u))}, 3, {v(PTA(u))}")
        for u in us: a(f"  s_mov_b64 exec, {s(PMK(u),2)}\n  ds_write_b64 {v(PTA(u))}, {v(REC[u],2)} offset:8")
        a("  s_mov_b64 exec, -1")
        slowg.append(g)
    a(f"  s_mov_b32 s{sThr}, {BUFSZ - 256}")
    pro_ins1(0)
    stamp(a, 252, 3)
    pro_ins1(1)
    a("  s_waitcnt lgkmcnt(0)")
    pro_ins2(0); pro_ins1(2); pro_ins2(1); pro_ins1(3)
    stamp(a, 252, 8)
    a("  s_waitcnt lgkmcnt(0)")
    pro_ins2(2); pro_ins2(3)
    stamp(a, 252, 11)
    a("  s_branch L_turn2")

    INS0 = OPT["ins0"]
    def cstage_head(q):
        if OPT["abl_s"]: return
        a(f"""
  ds_write_b16 {v(SA[q])}, {v(CC[q])}
  ds_read_b128 {v(Sf,4)}, {v(vSrd)}
  ds_write_b16 {v(SA[q])}, {v(vZ)}""")
    def cstage_m1(q):
        if OPT["abl_mfma"]: return
        a(f"""
  v_mfma_f32_16x16x32_bf16 {v(Da,4)}, {v(RING[q],4)}, {v(Wa,4)}, 0
  v_mfma_f32_16x16x32_bf16 {v(Db,4)}, {v(RING[q],4)}, {v(Wb,4)}, 0""")
    def cstage_cvt():
        if OPT["abl_mfma"]: return
        a(f"""
  v_cvt_pk_bf16_f32 {v(P)}, {v(Da)}, {v(Da+1)}
  v_cvt_pk_bf16_f32 {v(P+1)}, {v(Da+2)}, {v(Da+3)}
  v_cvt_pk_bf16_f32 {v(P+2)}, {v(Db)}, {v(Db+1)}
  v_cvt_pk_bf16_f32 {v(P+3)}, {v(Db+2)}, {v(Db+3)}""")
    def cstage_m2(tc):
        if OPT["abl_mfma"]: return
        a(f"  v_mfma_f32_16x16x32_bf16 {v(ACC[tc],4)}, {v(P,4)}, {v(Sf,4)}, {v(ACC[tc],4)}")
    def step_top(t):
        a(f"  ; ---- step {t}")
        a("  s_waitcnt lgkmcnt(0)")
        cstage_head(t % D)
        if t < NT - 1:
            a(f"  ds_read_b64 {v(RP[(t+1)&1],2)}, {v(vRd)} offset:{(t+1)*TS+8}")
            a(f"  v_readlane_b32 s{sCnt[(t+1)&1]}, {v(vCnt)}, {t+1}")
    def step_main(t, n):
        q = t % D; tc = (t - D) % NT
        rp = RP[t & 1]
        a(f"  s_waitcnt vmcnt({n})")
        cstage_m1(q)
        w, off, af, e = T, T + 1, T + 2, T + 3
        a(f"""
  v_min_i32 {v(w)}, {v(rp)}, {v(rp+1)}
  v_cmp_gt_i32 vcc, 0, {v(rp)}
  v_and_b32 {v(off)}, 0x7ffff, {v(w)}
  v_lshl_add_u32 {v(off)}, {v(off)}, 5, {v(vHalf)}
  v_cndmask_b32_sdwa {v(af)}, {v(rp)}, {v(rp+1)}, vcc dst_sel:WORD_1 dst_unused:UNUSED_PAD src0_sel:WORD_1 src1_sel:WORD_0
  v_cmp_gt_u32 vcc, s{sCnt[t&1]}, {v(vSlot)}
  v_bfe_u32 {v(e)}, {v(w)}, 20, 3
  v_mul_f32 {v(af)}, {v(af)}, {v(vFreq)}
  v_cndmask_b32 {v(off)}, {v(vOOB)}, {v(off)}, vcc
  buffer_load_dwordx4 {v(RING[q],4)}, {v(vOOB if OPT["abl_g"] else off)}, {s(sM,4)}, 0 offen""")
        cstage_cvt()
        a(f"""
  v_cndmask_b32 {v(af)}, {v(vZ)}, {v(af)}, vcc
  v_cvt_pk_bf16_f32 {v(af)}, 0, {v(af)}
  s_waitcnt lgkmcnt({2 if t < NT-1 else 1})""")
        cstage_m2(tc)
        if not OPT["abl_cos"]: a(f"""
  v_mul_f32 {v(af)}, 0.15915494, {v(af)}
  v_fract_f32 {v(af)}, {v(af)}
  v_cos_f32 {v(af)}, {v(af)}
  v_lshl_add_u32 {v(SA[q])}, {v(e)}, 4, {v(vSst)}
  v_cvt_pk_bf16_f32 {v(CC[q])}, {v(af)}, {v(af)}""")

    order = []
    for t in range(NT):
        if t == 0: order.append(("car", 16))
        u2 = t - INS0 - 1
        if 0 <= u2 < 16: order.append(("rec", u2))
        order.append(("W", t))
        order.append(("g", t))
    tail = [x for x in order[order.index(("g", NT - D)):] if x[0] != "W"]
    assert tail == [("g", t) for t in range(NT - D, NT)], tail
    def younger(target, at):
        n = len(order); i = order.index(target); cnt = 0
        j = (i + 1) % n
        while j != at:
            if order[j][0] != "W": cnt += 1
            j = (j + 1) % n
        return cnt
    first = []
    for x in order:
        if x[0] == "W" and x[1] < 4: first += [("f", 4 * x[1] + i) for i in range(4)]
        first.append(x)
    def younger_first(u, t):
        i = first.index(("f", u)); j = first.index(("W", t))
        return sum(1 for x in first[i+1:j] if x[0] != "W")
    RBH = 1
    a(".p2align 6")
    a.label("L_loop")
    for t in range(NT):
        step_top(t)
        if t == 0:
            a(f"""
  v_cmp_gt_u32 vcc, s{sCin}, {v(vCarIdx)}
  s_add_u32 s{sX}, s{sIt}, 2
  s_and_b32 s{sX}, s{sX}, 3
  s_lshl_b32 s{sX}, s{sX}, 3
  s_add_u32 s{sX}, s{sX}, {CTL}
  v_mov_b32 {v(T+1)}, s{sX}
  ds_write_b64 {v(T+1)}, {v(vZ,2)}
  ds_write_b32 {v(vCntA)}, {v(vZ)}
  v_cndmask_b32 {v(T)}, {v(vOOB)}, {v(vCarOff)}, vcc
  buffer_load_dwordx2 {v(REC[16],2)}, {v(T)}, {s(sCAR,4)}, s{sCarR} offen sc1""")
        if t < 4:
            a(f"  s_cmp_eq_u32 s{sIt}, 0\n  s_cbranch_scc1 L_first_{t}")
            a.label(f"L_first_back_{t}")
        if t == INS0:
            a(f"  s_cmp_lg_u32 s{sThr}, 0\n  s_cbranch_scc1 L_nostate")
            state_update(); state_update2()
            a.label("L_nostate")
            set_flag("lp")
        u1 = t - INS0; u2 = u1 - 1
        if 0 <= u2 < 17:
            ins2(u2, "lp", TA[u2 & 1], RK[u2 & 1], sMk[u2 & 1])
            if u2 < 16: rec_load(u2, T + 4)
        if 0 <= u1 < 17:
            pos = order.index(("W", t))
            if u1 < 16: n = min(younger(("rec", u1), pos), younger_first(u1, t))
            else: n = younger(("car", 16), pos)
            a(f"  s_waitcnt vmcnt({min(n, 62)})")
            ins1(u1, f"s{sThr}" if u1 < 16 else "0", TA[u1 & 1], RK[u1 & 1], sMk[u1 & 1])
        if t == INS0 + 18:
            a(f"  s_cmp_gt_u32 s{sCin}, 512\n  s_cbranch_scc1 L_slow")
            a.label("L_slow_back")
        if t == RBH:
            a(f"  s_cmp_eq_u32 s{sRb}, s{sIt}\n  s_cbranch_scc1 L_rbf")
            a.label("L_rbf_back1")
        step_main(t, younger(("g", (t - D) % NT), order.index(("W", t))))
    assert INS0 >= 4 and RBH < NT
    a(f"  s_waitcnt vmcnt({NT - (INS0 + 17)})")
    a.label("L_turn2")
    a(f"""
  v_mov_b32 {v(T)}, {v(vCtlN)}
  s_add_u32 s{sIt}, s{sIt}, 1
  s_add_u32 s{sX}, s{sIt}, 1
  s_and_b32 s{sX}, s{sX}, 3
  s_lshl_b32 s{sX}, s{sX}, 3
  s_add_u32 s{sX}, s{sX}, {CTL}
  v_mov_b32 {v(vCtlN)}, s{sX}
  s_sub_u32 s{sX}, s{sIns}, {BUFSZ}
  s_add_u32 s{sX}, s{sX}, s{sIns}
  v_add_u32 {v(vRd)}, s{sX}, {v(vRd)}
  v_add_u32 {v(vCntA)}, s{sX}, {v(vCntA)}
  s_sub_u32 s{sIns}, {BUFSZ}, s{sIns}
  s_mov_b32 s{sCarR}, s{sCarW}
  s_sub_u32 s{sCarW}, {CARLIST}, s{sCarW}
  s_waitcnt lgkmcnt(0)""")
    if OPT["stamp"] == 1:
        a(f"  s_lshl_b32 s90, s{sIt}, 1\n  s_add_u32 s90, s90, 16\n  s_min_u32 m0, s90, 58")
        stamp(a, 252, "m0")
        a("  s_add_u32 m0, m0, 1")
    a("  s_barrier")
    stamp(a, 252, "m0")
    a(f"""
  ds_read_b64 {v(T+2,2)}, {v(T)}
  ds_read_b32 {v(vCnt)}, {v(vCntA)}
  ds_read_b64 {v(RP[0],2)}, {v(vRd)} offset:8
  s_waitcnt lgkmcnt(1)
  v_readfirstlane_b32 s{sCin}, {v(T+2)}
  v_readfirstlane_b32 s{sFl}, {v(T+3)}
  v_readlane_b32 s{sCnt[0]}, {v(vCnt)}, 0
  s_cmp_gt_u32 s{sCin}, 512
  s_cselect_b32 s{sThr}, 0x80000000, 0
  s_min_u32 s{sCin}, s{sCin}, {CARCAP}
  s_or_b32 s{sFl}, s{sFl}, s{sCin}
  s_cmp_lt_u32 s{sIt}, {OPT['itcap']}
  s_cselect_b32 s{sFl}, s{sFl}, 0
  s_cmp_lg_u32 s{sFl}, 0
  s_cbranch_scc1 L_loop
  s_cmp_ge_u32 s{sRb}, s{sIt}
  s_mov_b32 s{sRb}, -1
  s_cbranch_scc1 L_rbf""")
    a.label("L_rbf_back2")

    RBv = Q
    assert vRT4 - Q + 1 >= 14
    R0 = REC[0]
    G0, G1, RR, U = R0, R0 + 4, R0 + 8, R0 + 12
    XS0, XS1, XR, AG = R0 + 16, R0 + 18, R0 + 20, R0 + 22
    MS = [R0 + 24 + 2 * i for i in range(5)]
    vMoff, vLin, vOw, vOr = vCarOff, vI6, vI1, vI4
    a(f"""
  v_and_b32 {v(T)}, 63, v0
  s_mul_i32 s{sX}, s{sW}, 3584
  s_add_u32 s{sX}, s{sX}, {RB_OFF}
  v_lshl_add_u32 {v(T+1)}, {v(T)}, 3, s{sX}
  v_lshlrev_b32 {v(vLin)}, 4, {v(T)}
  v_bfe_u32 {v(T+2)}, v0, 4, 2
  v_and_b32 {v(T+3)}, 15, v0
  v_lshlrev_b32 {v(T+2)}, 3, {v(T+2)}
  v_lshl_add_u32 {v(vMoff)}, {v(T+3)}, 5, {v(T+2)}
  s_mul_i32 s{sX}, s{sW}, 6400
  s_add_u32 s{sX}, s{sX}, s{sIns}
  s_add_u32 s{sX}, s{sX}, 15
  s_and_b32 s{sX}, s{sX}, -16
  v_add_u32 {v(vOw)}, s{sX}, {v(vMoff)}
  v_add_u32 {v(vOr)}, s{sX}, {v(vLin)}
  v_cmp_gt_u32 {s(sT,2)}, 8, {v(T+3)}""")
    for h in range(7):
        a(f"  ds_read_b64 {v(RBv+2*h,2)}, {v(T+1)} offset:{h*512}")
    fo = [("g", t - NT) for t in range(NT - D, NT)]
    def fwait(x): return len(fo) - 1 - fo.index(x)
    def s1(p):
        b = RBv + (p & ~1)
        w0, w1 = (WS0, WS1) if p % 2 == 0 else (XS0, XS1)
        a(f"""
  v_mfma_f32_16x16x16_bf16 {v(G0,4)}, {v(w0,2)}, {v(b,2)}, 0
  v_mfma_f32_16x16x16_bf16 {v(G1,4)}, {v(w1,2)}, {v(b,2)}, 0""")
    def s2(p):
        t0 = ACC[2*p]; t1 = ACC[2*p+1] if 2*p+1 < NT else ACC[2*p]
        for r in range(4): a(f"  v_mul_f32 {v(U+r)}, {v(t0+r)}, {v(G0+r)}")
        for r in range(4): a(f"  v_mul_f32_dpp {v(U+r)}, {v(t1+r)}, {v(G0+r)} row_ror:8 row_mask:0xf bank_mask:0xc")
        for r in range(4): a(f"  v_fmac_f32_dpp {v(U+r)}, {v(t0+r)}, {v(G1+r)} row_ror:8 row_mask:0xf bank_mask:0x3")
        for r in range(4): a(f"  v_fmac_f32_dpp {v(U+r)}, {v(t1+r)}, {v(G1+r)} quad_perm:[0,1,2,3] row_mask:0xf bank_mask:0xc")
        a(f"""
  v_cvt_pk_bf16_f32 {v(AG)}, {v(U)}, {v(U+1)}
  v_cvt_pk_bf16_f32 {v(AG+1)}, {v(U+2)}, {v(U+3)}
  v_mfma_f32_16x16x16_bf16 {v(RR,4)}, {v(WR if p % 2 == 0 else XR,2)}, {v(RBv + (p & ~1),2)}, 0""")
        if p + 1 < 13: s1(p + 1)
        else: a("  s_nop 0")
        a(f"  v_mfma_f32_16x16x16_bf16 {v(U,4)}, {v(WUP,2)}, {v(AG,2)}, 0")
    def s3(p):
        x = ACC[2*p]; m_ = MS[p % 5]
        a(f"""
  s_waitcnt vmcnt({fwait(("m", p))})
  v_lshlrev_b32 {v(x)}, 16, {v(m_)}
  v_and_b32 {v(x+1)}, 0xffff0000, {v(m_)}
  v_lshlrev_b32 {v(x+2)}, 16, {v(m_+1)}
  v_and_b32 {v(x+3)}, 0xffff0000, {v(m_+1)}""")
        if p == 12: a("  s_nop 2")
        a(f"""
  v_pk_fma_f32 {v(x,2)}, {v(U,2)}, {v(RR,2)}, {v(x,2)}
  v_pk_fma_f32 {v(x+2,2)}, {v(U+2,2)}, {v(RR+2,2)}, {v(x+2,2)}
  v_cvt_pk_bf16_f32 {v(x)}, {v(x)}, {v(x+1)}
  v_cvt_pk_bf16_f32 {v(x+1)}, {v(x+2)}, {v(x+3)}""")
        if p == 12: a(f"  s_mov_b64 exec, {s(sT,2)}")
        a(f"  ds_write_b64 {v(vOw)}, {v(x,2)} offset:{p*512}")
        if p == 12: a(f"  s_mov_b64 exec, -1")
        if p % 2 == 1 or p == 12:
            r = p // 2
            a(f"  ds_read_b128 {v(ACC[4*r+1 if r < 6 else 23],4)}, {v(vOr)} offset:{r*1024}")
    def s4(r):
        a(f"  buffer_store_dwordx4 {v(ACC[4*r+1 if r < 6 else 23],4)}, {v(vLin)}, {s(sOUT,4)}, s{sEb if r < 4 else sEb2} offen offset:{(r%4)*1024}")
        fo.append(("st", r))
    for t in range(NT + D + 2):
        if t < NT + D: step_top(t)
        else: a(f"  ; ---- tail {t}\n  s_waitcnt lgkmcnt(0)")
        if t == NT: stamp(a, 252, 4)
        if t == NT + D: stamp(a, 252, 5)
        if t == 1:
            a(f"""
  v_mov_b32 {v(XS0)}, 0
  v_mov_b32 {v(XS0+1)}, {v(WS0)}
  v_mov_b32 {v(XS1)}, 0
  v_mov_b32 {v(XS1+1)}, {v(WS1)}
  v_mov_b32 {v(XR)}, 0
  v_mov_b32 {v(XR+1)}, {v(WR)}""")
        if t == 5: s1(0)
        ts2 = {2*p+7 if p < 12 else 30: p for p in range(13)}
        if t - 2 in ts2 and (ts2[t-2] % 2 == 1): s4(ts2[t-2] // 2)
        if t - 1 in ts2: s3(ts2[t-1])
        if t in ts2: s2(ts2[t])
        if t % 2 == 1 and t // 2 < 13:
            p = t // 2
            a(f"  buffer_load_dwordx2 {v(MS[p%5],2)}, {v(vMoff)}, {s(sMW,4)}, s{sEb if p < 8 else sEb2} offen offset:{(p%8)*512}")
            fo.append(("m", p))
        if t < NT:
            step_main(t, fwait(("g", t - D)))
            fo.append(("g", t))
        elif t < NT + D:
            a(f"  s_waitcnt vmcnt({fwait(('g', t - D))})")
            cstage_m1(t % D)
            a("  s_nop 6")
            cstage_cvt()
            a("  s_waitcnt lgkmcnt(0)\n  s_nop 0")
            cstage_m2(t - D)
            a("  s_nop 3")
    a("  s_waitcnt lgkmcnt(0)")
    s4(6)
    stamp(a, 252, 6)
    if OPT["stamp"]: a("  s_waitcnt vmcnt(0)")
    stamp(a, 252, 7); stamp(a, 252, 63, "s_memrealtime")
    if OPT["stamp"] == 1: a(f"  v_writelane_b32 v252, s{sIt}, 61")
    stamp_out(a, 252, sWS, 8, STAMPOFF + 0x200000, 253)
    a.label("L_end")
    a("  s_endpgm")

    for t in range(4):
        a.label(f"L_first_{t}")
        for u in range(4*t, 4*t+4): rec_load(u, T + 4 + 2 * (u & 1))
        a(f"  s_branch L_first_back_{t}")
    for g in slowg:
        a.label(f"L_pslow_{g}")
        for u in range(4*g, 4*g+4):
            a(f"""
  s_mov_b64 exec, {s(PMK(u),2)}
  v_cmp_lt_u32 vcc, 63, {v(PRK(u))}
  s_cbranch_vccz L_pskip_{u}
  s_andn2_b64 {s(PMK(u),2)}, {s(PMK(u),2)}, vcc
  s_mov_b64 exec, vcc
  ds_add_rtn_u32 {v(T+1)}, {v(vCtlN)}, {v(vOne)}
  s_waitcnt lgkmcnt(0)
  v_lshlrev_b32 {v(T+1)}, 3, {v(T+1)}
  buffer_store_dwordx2 {v(REC[u],2)}, {v(T+1)}, {s(sCAR,4)}, s{sCarW} offen
  s_waitcnt vmcnt(0)""")
            a.label(f"L_pskip_{u}")
        a(f"  s_mov_b64 exec, -1\n  s_branch L_pback_{g}")
    a.label("L_slow")
    a(f"  s_mov_b32 s{sX}, 512")
    a.label("L_slow_loop")
    a(f"""
  v_add_u32 {v(T+1)}, s{sX}, {v(vCarIdx)}
  v_cmp_gt_u32 vcc, s{sCin}, {v(T+1)}
  v_lshlrev_b32 {v(T+1)}, 3, {v(T+1)}
  s_nop 0
  v_cndmask_b32 {v(T+1)}, {v(vOOB)}, {v(T+1)}, vcc
  buffer_load_dwordx2 {v(REC[16],2)}, {v(T+1)}, {s(sCAR,4)}, s{sCarR} offen sc1
  s_waitcnt vmcnt(0)""")
    ins1(16, "0", TA[0], RK[0], sMk[0])
    a("  s_waitcnt lgkmcnt(0)")
    ins2(16, "sl", TA[0], RK[0], sMk[0])
    a(f"""
  s_add_u32 s{sX}, s{sX}, 512
  s_cmp_lt_u32 s{sX}, s{sCin}
  s_cbranch_scc1 L_slow_loop
  s_waitcnt vmcnt(0)
  s_branch L_slow_back""")
    a.label("L_rbf")
    DI = [Da + p for p in range(12)] + [T + 10, T + 11]
    H = T
    assert RK[1] == T + 13
    a(f"""
  v_and_b32 {v(H+8)}, 63, v0
  s_lshr_b32 s{sX}, s{sEb}, 4
  v_lshlrev_b32 {v(H+9)}, 3, {v(H+8)}
  v_lshlrev_b32 {v(H+8)}, 2, {v(H+8)}
  s_load_dwordx4 {s(84,4)}, s[58:59], 0
  buffer_load_dwordx2 {v(H,2)}, {v(H+9)}, {s(sDIST,4)}, s{sX} offen
  global_load_dwordx2 {v(H+2,2)}, {v(H+9)}, s[64:65]
  global_load_dwordx2 {v(H+4,2)}, {v(H+9)}, s[68:69]
  global_load_dword {v(H+6)}, {v(H+8)}, s[62:63]
  s_mov_b32 s{sC10}, 0xc1200000
  s_mov_b32 s{sC10+1}, 0xc1200000
  s_mov_b32 s{sCl2}, 0x3fb8aa3b
  s_mov_b32 s{sCl2+1}, 0x3fb8aa3b
  s_mul_i32 s{sX}, s{sW}, 3584
  s_add_u32 s{sX}, s{sX}, {RB_OFF}
  v_add_u32 {v(H+9)}, s{sX}, {v(H+9)}
  v_add_u32 {v(H+8)}, s{sX}, {v(H+8)}
  v_and_b32 {v(Da)}, 15, v0
  v_bfe_u32 {v(Da+1)}, v0, 4, 2
  v_lshl_add_u32 {v(H+7)}, {v(Da)}, 1, s{sX}
  v_lshl_add_u32 {v(Da+2)}, {v(Da+1)}, 7, {v(H+7)}
  v_lshl_add_u32 {v(Da+3)}, {v(Da+1)}, 6, {v(H+7)}
  s_waitcnt lgkmcnt(0)
  v_mov_b32 {v(H+13)}, s84
  v_cmp_eq_u32 vcc, 1, {v(Da+1)}
  v_mov_b32 {v(H+12)}, s85
  v_cmp_eq_u32 {s(sT,2)}, 2, {v(Da+1)}
  v_cndmask_b32 {v(H+13)}, {v(H+13)}, {v(H+12)}, vcc
  v_mov_b32 {v(H+12)}, s86
  v_cmp_eq_u32 vcc, 3, {v(Da+1)}
  v_cndmask_b32 {v(H+13)}, {v(H+13)}, {v(H+12)}, {s(sT,2)}
  v_mov_b32 {v(H+12)}, s87
  v_cndmask_b32 {v(H+13)}, {v(H+13)}, {v(H+12)}, vcc
  v_lshlrev_b32 {v(H+12)}, 16, {v(H+13)}
  v_and_b32 {v(H+13)}, 0xffff0000, {v(H+13)}
  s_waitcnt vmcnt(0)
  ds_write_b64 {v(H+9)}, {v(H,2)}
  ds_write_b64 {v(H+9)}, {v(H+2,2)} offset:512
  ds_write_b64 {v(H+9)}, {v(H+4,2)} offset:1024
  ds_write_b32 {v(H+8)}, {v(H+6)} offset:1536
  ds_read_u16 {v(WS0)}, {v(Da+2)} offset:512
  ds_read_u16 {v(WS1)}, {v(Da+2)} offset:{512+32}
  ds_read_u16 {v(WS0+1)}, {v(Da+2)} offset:{512+64}
  ds_read_u16 {v(WS1+1)}, {v(Da+2)} offset:{512+96}
  ds_read_u16 {v(WUP)}, {v(Da+2)} offset:1024
  ds_read_u16 {v(H)}, {v(Da+2)} offset:{1024+32}
  ds_read_u16 {v(WUP+1)}, {v(Da+2)} offset:{1024+64}
  ds_read_u16 {v(H+1)}, {v(Da+2)} offset:{1024+96}
  ds_read_u16 {v(WR)}, {v(Da+3)} offset:1536
  ds_read_u16 {v(WR+1)}, {v(Da+3)} offset:{1536+32}""")
    for p in range(13):
        a(f"  ds_read_u16 {v(DI[p])}, {v(H+7)} offset:{p*32}")
    a(f"""
  s_waitcnt lgkmcnt(0)
  v_lshl_or_b32 {v(WS0)}, {v(WS0+1)}, 16, {v(WS0)}
  v_lshl_or_b32 {v(WS1)}, {v(WS1+1)}, 16, {v(WS1)}
  v_lshl_or_b32 {v(WUP)}, {v(H)}, 16, {v(WUP)}
  v_lshl_or_b32 {v(WUP+1)}, {v(H+1)}, 16, {v(WUP+1)}
  v_lshl_or_b32 {v(WR)}, {v(WR+1)}, 16, {v(WR)}
  v_mov_b32 {v(WS0+1)}, 0
  v_mov_b32 {v(WS1+1)}, 0
  v_mov_b32 {v(WR+1)}, 0
  v_mov_b32 {v(DI[13])}, 0""")
    CEN = H + 12
    for ps in ([0,1,2,3], [4,5,6,7], [8,9,10], [11,12]):
        p0 = ps[0]
        tt = {p: H + 2 * (p - p0) for p in ps}
        def rnd():
            for p in ps: a(f"  v_cvt_pk_bf16_f32 {v(tt[p])}, 0, {v(tt[p])}\n  v_cvt_pk_bf16_f32 {v(tt[p]+1)}, 0, {v(tt[p]+1)}")
        for p in ps: a(f"  v_lshlrev_b32 {v(tt[p])}, 16, {v(DI[p])}")
        for p in ps: a(f"  v_pk_add_f32 {v(tt[p],2)}, {v(tt[p],2)}, {v(CEN,2)} op_sel_hi:[0,1] neg_lo:[0,1] neg_hi:[0,1]")
        rnd()
        for p in ps: a(f"  v_pk_mul_f32 {v(tt[p],2)}, {v(tt[p],2)}, {v(tt[p],2)}")
        rnd()
        for p in ps: a(f"  v_pk_mul_f32 {v(tt[p],2)}, {v(tt[p],2)}, {s(sC10,2)}")
        rnd()
        for p in ps: a(f"  v_pk_mul_f32 {v(tt[p],2)}, {v(tt[p],2)}, {s(sCl2,2)}")
        for p in ps: a(f"  v_exp_f32 {v(tt[p])}, {v(tt[p])}\n  v_exp_f32 {v(tt[p]+1)}, {v(tt[p]+1)}")
        for p in ps: a(f"  v_cvt_pk_bf16_f32 {v(DI[p])}, {v(tt[p])}, {v(tt[p]+1)}")
    for h in range(7):
        a(f"  ds_write_b64 {v(H+9)}, {v(DI[2*h],2)} offset:{h*512}")
    a(f"""
  s_waitcnt lgkmcnt(0)
  s_cmp_eq_u32 s{sRb}, -1
  s_cbranch_scc1 L_rbf_back2
  s_branch L_rbf_back1""")
    for lab, u, tmp, mk in rare:
        a.label(f"L_rare_{lab}")
        a(f"""
  s_mov_b64 exec, vcc
  ds_add_rtn_u32 {v(tmp)}, {v(vCtlN)}, {v(vOne)}
  s_waitcnt lgkmcnt(0)
  v_lshlrev_b32 {v(tmp)}, 3, {v(tmp)}
  buffer_store_dwordx2 {v(REC[u],2)}, {v(tmp)}, {s(sCAR,4)}, s{sCarW} offen
  s_andn2_b64 exec, {s(mk,2)}, vcc
  s_branch L_back_{lab}""")
    return NV

def kd(name, nv, ns):
    nv4 = (nv + 3) // 4 * 4
    return f""".amdhsa_kernel {name}
  .amdhsa_next_free_vgpr {nv}
  .amdhsa_next_free_sgpr {ns}
  .amdhsa_accum_offset {nv4}
  .amdhsa_group_segment_fixed_size 0
  .amdhsa_kernarg_size 112
  .amdhsa_user_sgpr_count 2
  .amdhsa_user_sgpr_kernarg_segment_ptr 1
  .amdhsa_system_sgpr_workgroup_id_x 1
  .amdhsa_float_denorm_mode_32 3
.end_amdhsa_kernel
"""

def main():
    out = sys.argv[1]
    ref = open(f"cdna_kernels/{NAME}.s.ref").read().split("\n")
    head = [l for l in ref if l.startswith(";") and "@launch" not in l and "Override" not in l and "grid=ceil" not in l]
    a = Asm()
    a(".amdgcn_target \"amdgcn-amd-amdhsa--gfx950\"\n.text")
    a(f".globl bin_kernel\n.type bin_kernel,@function\n.globl {NAME}_kernel\n.type {NAME}_kernel,@function")
    gen_p1(a)
    nv = gen_p2(a)
    errs = a.check()
    for e in errs: print("HAZARD", e)
    txt = "\n".join(head) + "\n"
    txt += f"; @launch kernel=bin_kernel grid=({NCH},1,1) block=(1024,1,1) lds={P1_LDS}\n"
    txt += f"; @launch kernel={NAME}_kernel grid=(256,1,1) block=(512,1,1) lds={P2_LDS}\n"
    txt += a.text()
    txt += ".section .rodata,\"a\"\n.p2align 6\n" + kd("bin_kernel", 128, 96) + ".p2align 6\n" + kd(NAME + "_kernel", 256 if OPT["stamp"] else nv, 96)
    open(out, "w").write(txt)
    print("vgprs p2:", nv, "lines:", len(a.lines), "hazards:", len(errs))

main()
```

```python
import sys, os
sys.path.insert(0, os.path.dirname(__file__))
from asmlib import Asm

NAME = "gather_scatter__molecular_angular_gemnet__graph"
E = 400000
NCH, CH = 250, 25600
EB = 1568
K = 6
MJ = 2739138
TABOFF = 0x2800000
CAROFF = 0x3000000
CARCAP = 9216
CARLIST = CARCAP * 8
STAMPOFF = 0x6000000
FLGOFF = 0x2c00000
OPT = dict(mode=0, nap=8, list=1, nb=4, n1=0, n2=7, n3=4, sig=1, arr=10, spin=60000, rec_pol=2, stamp=0, itcap=64, ld_nt=7, st_pol=0, mtouch=1, la=4, apre=4, wmain=78000, b5=368000, ins0=4,
           abl_mfma=0, abl_s=0, abl_cos=0, abl_g=0)
for a in sys.argv[2:]:
    k, v = a.split("=")
    assert k in OPT, k
    OPT[k] = int(v)
MK = -(-(1 << 32) // OPT["wmain"])
assert (399999 * MK) >> 32 <= 5

RPOL = ('', ' nt', ' sc1', ' sc0 sc1')[OPT['rec_pol']]

def v(i, n=1):
    return f"v{i}" if n == 1 else f"v[{i}:{i+n-1}]"
def s(i, n=1):
    return f"s{i}" if n == 1 else f"s[{i}:{i+n-1}]"

def stamp(a, vreg, lane, op="s_memtime"):
    if not OPT["stamp"]: return
    if OPT["stamp"] == 2:
        mp = {127: {62: (0, 1), 1: (1, 0), 4: (2, 0), 7: (3, 0), 63: (4, 0)}, 252: {62: (0, 1), 2: (1, 0), 11: (2, 0), 4: (3, 0), 63: (4, 0)}}[vreg]
        if lane not in mp: return
        l, inv = mp[lane]
        a(f"  s_memrealtime s[88:89]\n  s_waitcnt lgkmcnt(0)")
        if inv: a("  s_not_b32 s88, s88")
        a(f"  v_writelane_b32 v{vreg}, s88, {l}")
        return
    a(f"  {op} s[88:89]\n  s_waitcnt lgkmcnt(0)\n  v_writelane_b32 v{vreg}, s88, {lane}")
def stamp_out(a, vreg, wslo, nwaves, base, tmp):
    if not OPT["stamp"]: return
    if OPT["stamp"] == 2:
        back = 512 if vreg == 127 else 32
        a(f"""
  s_load_dwordx2 s[90:91], s[0:1], 96
  s_waitcnt lgkmcnt(0)
  s_add_u32 s92, s90, {back}
  s_addc_u32 s93, s91, 0
  s_mov_b32 s94, 20
  s_mov_b32 s95, 0x20000
  v_lshlrev_b32 v{tmp}, 2, v0
  buffer_atomic_umax v{vreg}, v{tmp}, s[92:95], 0 offen""")
        return
    a(f"  s_mul_i32 s88, s2, {nwaves*256}\n  s_add_u32 s88, s88, {base}")
    srd(a, 92, wslo, wslo+1, "s88", nwaves*256)
    a(f"  v_lshlrev_b32 v{tmp}, 2, v0\n  buffer_store_dword v{vreg}, v{tmp}, s[92:95], 0 offen")

def srd(a, d, lo, hi, add, size):
    if add is None:
        a(f"  s_mov_b32 s{d}, s{lo}\n  s_mov_b32 s{d+1}, s{hi}")
    else:
        a(f"  s_add_u32 s{d}, s{lo}, {add}\n  s_addc_u32 s{d+1}, s{hi}, 0")
    a(f"  s_mov_b32 s{d+2}, {size}\n  s_mov_b32 s{d+3}, 0x20000")

P1_CNT, P1_SENT, P1_TMP, P1_REC = 0, 6144, 6160, 6272
P1_LDS = P1_REC + CH * 6

TS = 264
BUFSZ = 200 * TS
S_OFF = 2 * BUFSZ
CTL = S_OFF + 8192
RB_OFF = CTL + 128
P2_LDS = RB_OFF + 8 * 3584
D = 5
NT = 25

class RA:
    def __init__(self, start): self.n = start
    def __call__(self, k=1, al=1):
        self.n = (self.n + al - 1) // al * al
        r = self.n; self.n += k
        return r

def gen_p2(a):
    ra = RA(1)
    vSlot, vHalf, vFreq, vSst, vSrd, vI6, vI1, vI4 = (ra() for _ in range(8))
    vRd, vCntA, vOne, vOOB, vCarOff, vCarIdx, v264, vMsk, vCtlN = (ra() for _ in range(9))
    vZ = ra(2, 2)
    Q = ra(6, 4)
    sA, nA, cb, rem, rtot, vA6, vB6, vR0, vRT4 = (ra() for _ in range(9))
    vCnt = ra()
    Wa = ra(4, 4); Wb = ra(4, 4)
    RING = [ra(4, 4) for _ in range(D)]
    Da = ra(4, 4); Db = ra(4, 4); P = ra(4, 4); Sf = ra(4, 4)
    ACC = [ra(4, 4) for _ in range(NT)]
    REC = [ra(2, 4 if i == 0 else 2) for i in range(17)]
    RP = [ra(2, 2), ra(2, 2)]
    T = ra(10, 2)
    TA = [ra(), ra()]; RK = [ra(), ra()]
    WS0 = ra(2, 2); WS1 = ra(2, 2); WR = ra(2, 2); WUP = ra(2, 2)
    CC = [ra() for _ in range(D)]; SA = [ra() for _ in range(D)]
    assert ra.n <= 252, ra.n
    NV = ra.n
    sM = 4; sREC = 8; sCAR = 12; sTAB = 16; sOUT = 20; sDIST = 24; sMW = 28
    sJ, sW, sIt, sThr, sIns, sCarW, sCarR, sRb, sCin, sX, sFl, sEb = range(32, 44)
    sCnt = [44, 45]
    sWS = 46
    sPM = 72
    sMk = [72, 74]; sT = 76; sC10 = 78; sCl2 = 80
    sEb2 = 3
    rare = []

    O, I, R, A = 36, 88, 140, 192
    PT = 218
    vL16, vL8, vL4, vL128, vSix, vTwo, vFlg, vDum, vTab, vWo = range(234, 244)
    assert Wa == 36 and T == PT and NV <= 250
    sIO, sII, sAN, sMT, sTW, sDBG = 4, 8, 12, 16, 20, 24
    sFLG, sRW = 92, 96
    sMJ, sMK, sNEB, sB5, sO4, sO2 = range(80, 86)
    sY, sSo = 100, 101
    nto, nti, nta = (" nt" if OPT["ld_nt"] >> b & 1 else "" for b in range(3))
    NR = 13
    nrec = lambda q: 4 if q < 12 else 2
    vm = []
    def ld_pair(q):
        if q < 12:
            a(f"  buffer_load_dwordx4 {v(O+4*q,4)}, {v(vL16)}, {s(sIO,4)}, s{sO4} offen{nto}")
            a(f"  buffer_load_dwordx4 {v(I+4*q,4)}, {v(vL16)}, {s(sII,4)}, s{sO4} offen{nti}")
            a(f"  s_add_u32 s{sO4}, s{sO4}, 8192")
        else:
            a(f"  buffer_load_dwordx2 {v(O+48,2)}, {v(vL8)}, {s(sIO,4)}, s{sO4} offen{nto}")
            a(f"  buffer_load_dwordx2 {v(I+48,2)}, {v(vL8)}, {s(sII,4)}, s{sO4} offen{nti}")
        vm.extend([("o", q), ("p", q)])
    def ld_ang(q):
        if q < 12:
            a(f"  buffer_load_dwordx2 {v(A+2*q,2)}, {v(vL8)}, {s(sAN,4)}, s{sO2} offen{nta}")
            a(f"  s_add_u32 s{sO2}, s{sO2}, 4096")
        else: a(f"  buffer_load_dword {v(A+24)}, {v(vL4)}, {s(sAN,4)}, s{sO2} offen{nta}")
        vm.append(("a", q))
    def wait_for(x):
        a(f"  s_waitcnt vmcnt({len(vm) - 1 - vm.index(x)})")
    def poll(tag, load, cond, nap=4):
        a(f"  s_mov_b32 s{sY}, {OPT['spin']}")
        a.label(f"L_poll_{tag}")
        a(load)
        a("  s_waitcnt vmcnt(0)")
        a(cond)
        a(f"""
  s_cbranch_vccz L_polled_{tag}
  s_sleep {nap}
  s_sub_u32 s{sY}, s{sY}, 1
  s_cbranch_scc0 L_poll_{tag}""")
        a.label(f"L_polled_{tag}")

    a(".p2align 8")
    a.label(NAME + "_kernel")
    a(f"""
  s_cmp_ge_u32 s2, 256
  s_cbranch_scc1 L_end
  s_load_dwordx16 s[48:63], s[0:1], 0
  s_load_dwordx4 s[44:47], s[0:1], 96
  s_load_dwordx8 s[64:71], s[0:1], 64
  v_lshlrev_b32 {v(vL16)}, 4, v0
  v_mov_b64 {v(PT,2)}, 0
  v_mov_b64 {v(PT+2,2)}, 0
  s_min_u32 s{sY}, s2, {NCH-1}
  s_mul_i32 s{sX}, s{sY}, {CH*4}
  s_cmp_lt_u32 s2, {NCH}
  s_cselect_b32 s{sFl}, {CH*2}, 0
  s_lshl_b32 s{sCin}, s{sFl}, 1
  s_mov_b32 s{sO4}, 0
  s_mov_b32 s{sO2}, 0
  ds_write_b128 {v(vL16)}, {v(PT,4)}
  s_waitcnt lgkmcnt(0)""")
    stamp(a, 252, 0); stamp(a, 252, 62, "s_memrealtime")
    srd(a, sIO, 52, 53, f"s{sX}", f"s{sCin}")
    srd(a, sII, 50, 51, f"s{sX}", f"s{sCin}")
    ld_pair(0); ld_pair(1)
    a("  s_barrier")
    LA = OPT["la"]
    for q in range(2, LA): ld_pair(q)
    a(f"  s_lshr_b32 s{sX}, s{sX}, 1")
    srd(a, sAN, 56, 57, f"s{sX}", f"s{sFl}")
    srd(a, sMT, 48, 49, f"s{sX}", f"s{sFl}")
    a(f"  s_mul_i32 s{sX}, s{sY}, {CH*6}\n  s_mul_i32 s{sFl}, s{sFl}, 3")
    srd(a, sRW, sWS, sWS+1, f"s{sX}", f"s{sFl}")
    srd(a, sTW, sWS, sWS+1, TABOFF, 256 * 8192)
    srd(a, sFLG, sWS, sWS+1, FLGOFF, 8192)
    srd(a, sDBG, 44, 45, None, 256)
    a(f"""
  s_lshl_b32 s{sX}, s2, 2
  v_lshl_add_u32 {v(vFlg)}, v0, 10, s{sX}
  s_cmp_lt_u32 s2, {NCH}
  s_cselect_b32 s{sX}, 0, 4
  v_mov_b32 {v(vDum)}, s{sX}
  buffer_store_dword {v(vDum)}, {v(vFlg)}, {s(sFLG,4)}, 0 offen sc1
  s_lshl_b32 s{sX}, s{sX}, 20
  v_or_b32 {v(vFlg)}, s{sX}, {v(vFlg)}
  s_load_dword s{sCin}, s[60:61], 0
  v_lshlrev_b32 {v(vL8)}, 3, v0
  v_lshlrev_b32 {v(vL4)}, 2, v0
  v_lshlrev_b32 {v(vL128)}, 7, v0
  v_mov_b32 {v(vSix)}, 6
  v_mov_b32 {v(vTwo)}, 2
  s_mov_b32 s{sMJ}, {MJ}
  s_mov_b32 s{sMK}, {MK}
  s_mov_b32 s{sNEB}, {-EB & 0xffffffff}
  s_mov_b32 s{sB5}, {OPT['b5']}
  s_and_b32 s{sJ}, s2, 7
  s_lshl_b32 s{sJ}, s{sJ}, 5
  s_lshr_b32 s{sX}, s2, 3
  s_add_u32 s{sJ}, s{sJ}, s{sX}
  v_lshrrev_b32 {v(T)}, 6, v0
  v_and_b32 {v(T+2)}, 15, v0
  v_bfe_u32 {v(T+3)}, v0, 5, 1
  v_readfirstlane_b32 s{sW}, {v(T)}
  v_lshlrev_b32 {v(vHalf)}, 4, {v(T+3)}
  v_lshl_add_u32 {v(cb)}, {v(T)}, 5, {v(vHalf)}
  v_add_u32 {v(cb)}, {v(cb)}, {v(T+2)}
  v_lshlrev_b32 {v(vTab)}, 13, {v(cb)}
  v_and_b32 {v(T+1)}, 63, v0
  v_and_b32 {v(vSlot)}, 31, v0
  v_mov_b64 {v(vZ,2)}, 0
  v_mov_b32 {v(v264)}, {TS}
  v_lshlrev_b32 {v(vWo)}, 1, {v(T+2)}
  v_lshl_add_u32 {v(vWo)}, {v(T+3)}, 8, {v(vWo)}
  v_lshl_add_u32 {v(vWo)}, {v(T)}, 5, {v(vWo)}
  v_mov_b32 {v(vCtlN)}, {CTL}
  s_lshl_b32 s{sX}, s{sW}, 10
  s_add_u32 s{sX}, s{sX}, {S_OFF}
  v_lshl_add_u32 {v(vSrd)}, {v(T+1)}, 4, s{sX}
  v_bfe_u32 {v(T+6)}, v0, 2, 2
  v_lshlrev_b32 {v(vSst)}, 8, {v(T+6)}
  v_lshl_add_u32 {v(vSst)}, {v(T+3)}, 7, {v(vSst)}
  v_bfe_u32 {v(T+6)}, v0, 4, 1
  v_lshl_add_u32 {v(vSst)}, {v(T+6)}, 3, {v(vSst)}
  v_and_b32 {v(T+6)}, 3, v0
  v_lshl_add_u32 {v(vSst)}, {v(T+6)}, 1, {v(vSst)}
  v_add_u32 {v(vSst)}, s{sX}, {v(vSst)}
  v_mov_b32 {v(vOne)}, 1
  v_mov_b32 {v(vOOB)}, 0x80000000
  v_mov_b32 {v(vMsk)}, 0x7ffffffc
  v_mul_u32_u24 {v(vI6)}, 6, {v(vSlot)}
  v_add_u32 {v(vI1)}, 1, {v(vSlot)}
  v_lshlrev_b32 {v(vI4)}, 2, {v(vI1)}
  v_mov_b32 {v(T+6)}, {CH}
  v_mul_u32_u24 {v(cb)}, {v(cb)}, {v(T+6)}
  v_mov_b32 {v(sA)}, 0
  v_mov_b32 {v(nA)}, 0
  v_mov_b32 {v(rtot)}, 0
  s_mul_i32 s{sX}, s{sW}, {NT*TS}
  s_add_u32 s{sX}, s{sX}, {BUFSZ}
  v_lshl_add_u32 {v(vRd)}, {v(vSlot)}, 3, s{sX}
  v_min_u32 {v(T+6)}, {NT-1}, {v(T+1)}
  v_mad_u32_u24 {v(vCntA)}, {v(T+6)}, {v(v264)}, s{sX}
  v_sub_u32 {v(vCarIdx)}, 511, v0
  v_lshlrev_b32 {v(vCarOff)}, 3, {v(vCarIdx)}
  v_cmp_eq_u32 vcc, 1, {v(T+3)}
  s_waitcnt lgkmcnt(0)
  s_lshl_b32 s{sX}, s{sCin}, 16
  s_and_b32 s{sCin}, s{sCin}, 0xffff0000
  v_mov_b32 {v(vFreq)}, s{sX}
  v_mov_b32 {v(T+6)}, s{sCin}
  v_cndmask_b32 {v(vFreq)}, {v(vFreq)}, {v(T+6)}, vcc
  s_mov_b32 s{sIt}, -1
  s_mov_b32 s{sIns}, 0
  s_mov_b32 s{sCarW}, 0
  s_mov_b32 s{sCarR}, {CARLIST}
  s_mul_i32 s{sRb}, s{sW}, 11
  s_lshr_b32 s{sRb}, s{sRb}, 5
  s_add_u32 s{sRb}, s{sRb}, 1
  s_cmp_ge_u32 s2, {NCH}
  s_cbranch_scc1 L_nochunk1""")
    vm.append(("flg", 0))
    arrive = f"""
  s_and_b32 s{sY}, s2, 15
  s_lshl_b32 s{sY}, s{sY}, 4
  v_lshlrev_b32 {v(PT)}, 8, v0
  buffer_atomic_add {v(vOne)}, {v(PT)}, {s(sDBG,4)}, s{sY} offen"""
    def hist(idx):
        for x, i in enumerate(idx): a(f"  v_cmp_le_u32 {s(72+2*x,2)}, s{sB5}, {v(I+i)}")
        for x, i in enumerate(idx): a(f"  v_mul_hi_u32_u24 {v(PT+x)}, s{sMJ}, {v(O+i)}")
        for x, i in enumerate(idx): a(f"  v_mul_hi_u32_u24 {v(PT+4+x)}, s{sMK}, {v(I+i)}")
        for x, i in enumerate(idx): a(f"  v_cndmask_b32 {v(PT+4+x)}, {v(PT+4+x)}, 5, {s(72+2*x,2)}")
        for x, i in enumerate(idx): a(f"  v_mad_i32_i24 {v(PT+8+x)}, {v(PT+x)}, s{sNEB}, {v(O+i)}")
        for x, i in enumerate(idx): a(f"  v_lshl_add_u32 {v(O+i)}, {v(PT+4+x)}, 8, {v(PT+x)}")
        for x, i in enumerate(idx): a(f"  v_lshlrev_b32 {v(O+i)}, 2, {v(O+i)}")
        for x, i in enumerate(idx): a(f"  ds_add_rtn_u32 {v(R+i)}, {v(O+i)}, {v(vOne)}")
        for x, i in enumerate(idx): a(f"  v_lshl_or_b32 {v(I+i)}, {v(PT+8+x)}, 20, {v(I+i)}")
        for x, i in enumerate(idx): a(f"  v_or_b32 {v(I+i)}, 0x80000000, {v(I+i)}")
    na = 0
    for q in range(NR):
        wait_for(("p", q))
        if q == 0: stamp(a, 252, 40)
        if q == LA:
            a(arrive); vm.append(("arr", 0))
        if q + LA < NR: ld_pair(q + LA)
        else:
            for _ in range(2):
                if na < OPT["apre"]: ld_ang(na); na += 1
        hist(list(range(4*q, 4*q + nrec(q))))
    stamp(a, 252, 41)
    X = v(PT+4)
    a(f"""
  s_waitcnt lgkmcnt(0)
  s_barrier
  s_cmp_ge_u32 s{sW}, {K}
  s_cbranch_scc1 L_bin_s1
  ds_read_b128 {v(PT,4)}, {v(vL16)}
  v_and_b32 {v(PT+8)}, 63, v0
  s_waitcnt lgkmcnt(0)
  v_add_u32 {v(PT+1)}, {v(PT)}, {v(PT+1)}
  v_add_u32 {v(PT+2)}, {v(PT+1)}, {v(PT+2)}
  v_add_u32 {v(PT+3)}, {v(PT+2)}, {v(PT+3)}
  v_mov_b32 {v(PT+4)}, {v(PT+3)}""")
    for sh in (1, 2, 4, 8):
        a(f"  s_nop 1\n  v_add_u32_dpp {X}, {X}, {X} row_shr:{sh} row_mask:0xf bank_mask:0xf bound_ctrl:0")
    a(f"  s_nop 1\n  v_add_u32_dpp {X}, {X}, {X} row_bcast:15 row_mask:0xa bank_mask:0xf")
    a(f"  s_nop 1\n  v_add_u32_dpp {X}, {X}, {X} row_bcast:31 row_mask:0xc bank_mask:0xf")
    a(f"""
  v_cmp_lt_u32 vcc, s{sW}, {v(PT+8)}
  v_readlane_b32 s{sY}, {X}, 63
  v_lshlrev_b32 {v(PT+9)}, 2, {v(PT+8)}
  s_and_b32 vcc_lo, vcc_lo, 0xff
  s_mov_b32 vcc_hi, 0
  v_mov_b32 {v(PT+10)}, s{sY}
  s_mov_b64 exec, vcc
  ds_add_u32 {v(PT+9)}, {v(PT+10)} offset:{P1_TMP}
  s_mov_b64 exec, -1
  s_waitcnt lgkmcnt(0)""")
    a.label("L_bin_s1")
    a(f"""
  s_barrier
  s_cmp_ge_u32 s{sW}, {K}
  s_cbranch_scc1 L_bin_s2
  s_lshl_b32 s{sY}, s{sW}, 2
  v_mov_b32 {v(PT+9)}, s{sY}
  ds_read_b32 {v(PT+9)}, {v(PT+9)} offset:{P1_TMP}
  v_sub_u32 {X}, {X}, {v(PT+3)}
  v_mov_b32 {v(PT+10)}, {CH}
  s_waitcnt lgkmcnt(0)
  v_add_u32 {v(PT+4)}, {X}, {v(PT+9)}
  v_add_u32 {v(PT+5)}, {v(PT+4)}, {v(PT)}
  v_add_u32 {v(PT+6)}, {v(PT+4)}, {v(PT+1)}
  v_add_u32 {v(PT+7)}, {v(PT+4)}, {v(PT+2)}
  ds_write_b128 {v(vL16)}, {v(PT+4,4)}
  ds_write_b32 {v(vZ)}, {v(PT+10)} offset:{P1_SENT}
  s_waitcnt lgkmcnt(0)""")
    a.label("L_bin_s2")
    a("  s_barrier")
    stamp(a, 252, 42)
    a(f"""
  v_lshrrev_b32 {v(PT+12)}, 1, v0
  v_and_b32 {v(PT+13)}, 1, v0
  v_lshlrev_b32 {v(PT+12)}, 2, {v(PT+12)}
  v_lshl_add_u32 {v(PT+13)}, {v(PT+13)}, 12, {v(PT+12)}
  s_lshl_b32 s{sY}, s2, 13""")
    for k in range(4):
        a(f"  ds_read_b32 {v(PT+k)}, {v(PT+13)} offset:{k*1024}")
        a(f"  ds_read_b32 {v(PT+6+k)}, {v(PT+13)} offset:{k*1024+4}")
    a("  s_waitcnt lgkmcnt(0)")
    for k in range(4): a(f"  v_sub_u32 {v(PT+6+k)}, {v(PT+6+k)}, {v(PT+k)}")
    for k in range(4): a(f"  v_lshl_or_b32 {v(PT+k)}, {v(PT+6+k)}, 16, {v(PT+k)}")
    a(f"  buffer_store_dwordx4 {v(PT,4)}, {v(vL16)}, {s(sTW,4)}, s{sY} offen sc1")
    vm.append(("tab", 0))
    mark = len(vm)
    while na < NR: ld_ang(na); na += 1
    if OPT["mtouch"]:
        a(f"  buffer_load_dword v244, {v(vL128)}, {s(sMT,4)}, 0 offen"); vm.append(("m", 0))
    NRD = 15
    for i in range(NRD): a(f"  ds_read_b32 {v(O+i)}, {v(O+i)}")
    def scat(g):
        idx = list(range(5*g, 5*g+5))
        a("  s_waitcnt lgkmcnt(10)")
        for i in idx:
            if i + NRD < 50: a(f"  ds_read_b32 {v(O+i+NRD)}, {v(O+i+NRD)}")
        for i in idx: a(f"  v_add_u32 {v(O+i)}, {v(O+i)}, {v(R+i)}")
        for i in idx: a(f"  v_mad_u32_u24 {v(O+i)}, {v(O+i)}, {v(vSix)}, {v(vTwo)}")
        for i in idx: a(f"  v_and_b32 {v(R+i)}, -4, {v(O+i)}")
        for i in idx: a(f"  ds_write_b32 {v(R+i)}, {v(I+i)} offset:{P1_REC}")
        for i in idx: a(f"  v_and_b32 {v(I+i)}, 2, {v(O+i)}")
        for i in idx: a(f"  v_lshl_add_u32 {v(O+i)}, {v(I+i)}, 1, {v(O+i)}")
    for g in range(OPT["arr"]): scat(g)
    lda = f"  buffer_load_dword {v(PT+1)}, {v(PT)}, {s(sDBG,4)}, 0 offen sc1"
    cda = f"  v_cmp_gt_u32 vcc, 16, {v(PT+1)}"
    ada = f"""
  s_lshl_b32 s{sX}, s{sW}, 16
  v_and_b32 {v(PT)}, 15, v0
  v_lshl_add_u32 {v(PT)}, {v(PT)}, 4, s{sX}"""
    a(ada)
    a(f"  s_waitcnt vmcnt({len(vm) - mark})\n  s_barrier")
    a(lda)
    vm.append(("lda", 0))
    a(f"  buffer_store_dword {v(vOne)}, {v(vFlg)}, {s(sFLG,4)}, 0 offen sc1")
    vm.append(("flg", 1))
    for g in range(OPT["arr"], 10): scat(g)
    stamp(a, 252, 43)
    for q in range(NR):
        wait_for(("a", q))
        for r in range(nrec(q) // 2): a(f"  v_and_b32 {v(A+2*q+r)}, 0x7fff7fff, {v(A+2*q+r)}")
        for i in range(4*q, 4*q + nrec(q)):
            op = "ds_write_b16_d16_hi" if (i & 1) else "ds_write_b16"
            a(f"  {op} {v(O+i)}, {v(A + i//2)} offset:{P1_REC-2}")
    stamp(a, 252, 44)
    a(f"  s_cmp_lg_u32 s{sW}, 0\n  s_cbranch_scc1 L_polled_a")
    wait_for(("lda", 0))
    a(cda)
    a("  s_cbranch_vccz L_polled_a\n  s_branch L_wait_a")
    a.label("L_nochunk1")
    a("  s_waitcnt vmcnt(0)")
    a(arrive)
    a(ada)
    a(f"  s_cmp_lg_u32 s{sW}, 0\n  s_cbranch_scc1 L_polled_a")
    a.label("L_wait_a")
    poll("a", lda, cda, 64)
    a(f"""
  s_lshl_b32 s{sX}, s{sW}, 16
  v_and_b32 {v(RK[0])}, 63, v0
  v_lshl_add_u32 {v(RK[0])}, {v(RK[0])}, 4, s{sX}
  s_and_b32 s{sCin}, s2, 7
  s_lshl_b32 s{sCin}, s{sCin}, 10""")
    FP = Da
    def flag_load(dst, off): return f"  buffer_load_dwordx4 {v(dst,4)}, {v(off)}, {s(sFLG,4)}, s{sCin if dst == FP else sX} offen sc1"
    def flag_cond(dst, stage): return f"""
  v_min3_u32 {v(dst)}, {v(dst)}, {v(dst+1)}, {v(dst+2)}
  v_min_u32 {v(dst)}, {v(dst)}, {v(dst+3)}
  v_cmp_gt_u32 vcc, {stage}, {v(dst)}"""
    a(f"""
  s_lshl_b32 s{sX}, s{sJ}, 5
  s_add_u32 s{sX}, s{sX}, {TABOFF}""")
    srd(a, sTAB, sWS, sWS+1, f"s{sX}", (NCH - 1) * 8192 + 32)

    def state_update():
        a(f"""
  v_sub_u32 {v(rem)}, {v(rem)}, {v(rtot)}
  v_lshrrev_b32 {v(T)}, 16, {v(Q)}
  v_and_b32 {v(T+1)}, 0xffff, {v(Q)}
  v_min_u32 {v(vR0)}, 32, {v(nA)}
  v_cmp_ge_u32 vcc, 32, {v(nA)}
  v_sub_u32 {v(T+2)}, 32, {v(vR0)}
  v_add_u32 {v(vB6)}, {v(cb)}, {v(T+1)}
  v_min_u32 {v(T+2)}, {v(T)}, {v(T+2)}
  v_mul_u32_u24 {v(vB6)}, 6, {v(vB6)}
  v_add_u32 {v(rtot)}, {v(vR0)}, {v(T+2)}
  v_mad_i32_i24 {v(vB6)}, {v(vR0)}, -6, {v(vB6)}
  v_lshlrev_b32 {v(vRT4)}, 2, {v(rtot)}
  v_add_u32 {v(vA6)}, {v(cb)}, {v(sA)}
  v_mul_u32_u24 {v(vA6)}, 6, {v(vA6)}""")
    def state_update2():
        a(f"""
  v_add_u32 {v(sA)}, 32, {v(sA)}
  v_subrev_u32 {v(nA)}, 32, {v(nA)}
  v_add_u32 {v(T+1)}, {v(T+1)}, {v(T+2)}
  v_sub_u32 {v(T)}, {v(T)}, {v(T+2)}
  v_cndmask_b32 {v(sA)}, {v(sA)}, {v(T+1)}, vcc
  v_cndmask_b32 {v(nA)}, {v(nA)}, {v(T)}, vcc""")
        for i in range(K - 1):
            a(f"  v_cndmask_b32 {v(Q+i)}, {v(Q+i)}, {v(Q+i+1)}, vcc")
        a(f"  v_cndmask_b32 {v(Q+K-1)}, {v(Q+K-1)}, {v(vZ)}, vcc")
    def set_flag(tag):
        a(f"""
  v_cmp_lt_u32 vcc, 0, {v(rem)}
  s_cbranch_vccz L_noflag_{tag}
  ds_write_b32 {v(vCtlN)}, {v(vOne)} offset:4""")
        a.label(f"L_noflag_{tag}")

    bc = lambda u: f"row_newbcast:{u} row_mask:0xf bank_mask:0xf"
    def rec_load(u, t0):
        a(f"""
  v_sub_co_u32_dpp {v(t0)}, vcc, {v(vR0)}, {v(vI1)} {bc(u)}
  v_add_u32_dpp {v(t0)}, {v(vA6)}, {v(vI6)} {bc(u)}
  v_add_u32_dpp {v(t0+1)}, {v(vB6)}, {v(vI6)} {bc(u)}
  v_cndmask_b32 {v(t0)}, {v(t0)}, {v(t0+1)}, vcc
  v_sub_u32_dpp {v(t0+1)}, {v(vRT4)}, {v(vI4)} {bc(u)}
  v_bfi_b32 {v(t0)}, {v(vMsk)}, {v(t0)}, {v(t0+1)}
  buffer_load_dwordx2 {v(REC[u],2)}, {v(t0)}, {s(sREC,4)}, 0 offen{RPOL}""")

    def ins1(u, thr, ta, rk, mk):
        a(f"""
  v_min_i32 {v(ta)}, {v(REC[u])}, {v(REC[u]+1)}
  v_cmp_gt_i32 {s(mk,2)}, {thr}, {v(ta)}
  v_bfe_u32 {v(ta)}, {v(ta)}, 23, 8
  v_mad_u32_u24 {v(ta)}, {v(ta)}, {v(v264)}, s{sIns}
  s_mov_b64 exec, {s(mk,2)}
  ds_add_rtn_u32 {v(rk)}, {v(ta)}, {v(vOne)}
  s_mov_b64 exec, -1""")

    def ins2(u, tag, ta, rk, mk, tmp=None, addr=True):
        lab = f"{tag}_{u}"
        a(f"  s_mov_b64 exec, {s(mk,2)}\n  v_cmp_lt_u32 vcc, 31, {v(rk)}")
        if addr: a(f"  v_lshl_add_u32 {v(ta)}, {v(rk)}, 3, {v(ta)}")
        a(f"  s_cbranch_vccnz L_rare_{lab}")
        a.label(f"L_back_{lab}")
        a(f"""
  ds_write_b64 {v(ta)}, {v(REC[u],2)} offset:8
  s_mov_b64 exec, -1""")
        rare.append((lab, u, rk if tmp is None else tmp, mk))

    vL7 = vL8
    a(f"""
  v_add_u32 {v(PT+2)}, {P1_REC}, {v(vL16)}
  v_add_u32 {v(PT+3)}, {P1_REC + 65536 - 1024}, {v(vL16)}
  v_add_u32 {v(PT+4)}, {P1_REC + 65536 - 1024 + 8*7168}, {v(vL16)}
  v_subrev_u32 {v(vL7)}, 1024, {v(vL16)}
  v_and_b32 {v(vL7)}, 0x7fffffff, {v(vL7)}
  s_mov_b32 s{sSo}, 0
  s_waitcnt lgkmcnt(0)
  s_barrier""")
    stamp(a, 252, 45)
    NS = 21
    SD = lambda r: ACC[r]
    gv = []
    def gwait(x, extra=""): a(f"  s_waitcnt vmcnt({len(gv) - 1 - gv.index(x)}){extra}")
    a(f"  ds_read2st64_b32 {v(PT+6,2)}, {v(vZ)} offset0:4 offset1:8")
    def rd(r):
        if r < 8: a(f"  ds_read_b128 {v(SD(r),4)}, {v(PT+2)} offset:{r*8192}")
        else: a(f"  ds_read_b128 {v(SD(r),4)}, {v(PT+3 + (r-8)//8)} offset:{((r-8)%8)*7168}")
    def st(r, track=True):
        a(f"  buffer_store_dwordx4 {v(SD(r),4)}, {v(vL16 if r < 8 else vL7)}, {s(sRW,4)}, s{sSo} offen sc1\n  s_add_u32 s{sSo}, s{sSo}, {8192 if r < 8 else 7168}")
        if track: gv.append(("st", r))
    zero_acc = lambda t: a(f"  v_mov_b64 {v(ACC[t],2)}, 0\n  v_mov_b64 {v(ACC[t]+2,2)}, 0")
    def flag_store(val):
        a(f"  v_mov_b32 {v(vDum)}, {val}\n  buffer_store_dword {v(vDum)}, {v(vFlg)}, {s(sFLG,4)}, 0 offen sc1")
        gv.append(("flg", val))
    NB, N1, N2, N3 = OPT["nb"], OPT["n1"], OPT["n2"], OPT["n3"]
    for r in range(8): rd(r)
    def early():
        a(flag_load(FP, RK[0])); gv.append(("fl", 1))
        a(f"  global_load_ushort {v(T+9)}, {v(vWo)}, s[66:67]"); gv.append(("w", 0))
    if OPT["mode"] == 1: early()
    for r in range(NB):
        a(f"  s_waitcnt lgkmcnt({7 - r})")
        st(r)
    if OPT["mode"] != 1: early()
    for r in range(8, NS): rd(r)
    a(f"""
  v_readfirstlane_b32 s{sY}, {v(PT+6)}
  v_readfirstlane_b32 s{sX}, {v(PT+7)}
  s_waitcnt lgkmcnt(0)""")
    if OPT["mode"] != 1: a(f"""
  s_cmp_gt_u32 s{sY}, {NB*8192 // 6 - 2}
  s_cbranch_scc1 L_allfirst
  s_cmp_gt_u32 s{sX}, {8*8192 // 6 - 2}
  s_cbranch_scc1 L_allfirst""")
    a.label("L_allfirst_back")
    nxt = NB
    for r in range(nxt, nxt + N1): st(r)
    nxt += N1
    a(f"""
  s_mul_i32 s{sFl}, s{sJ}, {2*CARLIST}
  s_add_u32 s{sFl}, s{sFl}, {CAROFF}""")
    srd(a, sREC, sWS, sWS+1, None, NCH * CH * 6)
    srd(a, sM, 48, 49, None, E * 32)
    srd(a, sCAR, sWS, sWS+1, f"s{sFl}", 2 * CARLIST)
    srd(a, sDIST, 54, 55, None, E * 2)
    a(f"""
  s_mul_i32 s{sEb}, s{sJ}, {EB}
  s_mul_i32 s{sX}, s{sW}, 200
  s_add_u32 s{sFl}, s{sEb}, {EB}
  s_add_u32 s{sEb}, s{sEb}, s{sX}
  s_add_u32 s{sX}, s{sEb}, 200
  s_min_u32 s{sX}, s{sX}, s{sFl}
  s_min_u32 s{sX}, s{sX}, {E}
  s_lshl_b32 s{sX}, s{sX}, 5""")
    srd(a, sOUT, 70, 71, None, f"s{sX}")
    srd(a, sMW, 48, 49, None, f"s{sX}")
    a(f"""
  s_lshl_b32 s{sEb}, s{sEb}, 5
  s_add_u32 s{sEb2}, s{sEb}, 4096""")
    for q in range(D):
        a(f"  v_mov_b64 {v(RING[q],2)}, 0\n  v_mov_b64 {v(RING[q]+2,2)}, 0")
    for t in list(range(NS, 25)) + list(range(NB)): zero_acc(t)
    gwait(("w", 0))
    a(f"  s_cmp_lg_u32 s{sW}, 0\n  s_cbranch_scc1 L_polled_t")
    a(flag_cond(FP, 1))
    a("  s_cbranch_vccz L_polled_t")
    poll("t", flag_load(FP, RK[0]), flag_cond(FP, 1), 32)
    a("  s_barrier")
    stamp(a, 252, 46)
    if OPT["mode"] != 1: flag_store(2)
    a(f"""
  buffer_load_dwordx4 {v(Q,4)}, {v(vTab)}, {s(sTAB,4)}, 0 offen sc1
  buffer_load_dwordx2 {v(Q+4,2)}, {v(vTab)}, {s(sTAB,4)}, 0 offen offset:16 sc1""")
    gv.extend([("tab", 0), ("tab", 1)])
    assert nxt + N2 >= 8
    for r in range(nxt, min(nxt + 2, 8)): st(r)
    a(f"""
  v_min_u32 {v(T+6)}, 399, v0
  v_mul_u32_u24 {v(T+6)}, {v(T+6)}, {v(v264)}
  ds_write_b32 {v(T+6)}, {v(vZ)}
  v_and_b32 {v(T+6)}, 15, v0
  v_lshl_add_u32 {v(T+6)}, {v(T+6)}, 2, {v(vCtlN)}
  ds_write_b32 {v(T+6)}, {v(vZ)}
  ds_write_b128 {v(vSrd)}, {v(RING[0],4)}
  v_and_b32 {v(T+6)}, 63, v0
  v_lshlrev_b32 {v(TA[0])}, 4, {v(T+6)}
  v_add_u32 {v(TA[0])}, {RB_OFF}, {v(TA[0])}
  s_lshl_b32 s{sX}, s{sW}, 1
  v_add_u32 {v(T+8)}, s{sX}, {v(TA[0])}
  ds_write_b16 {v(T+8)}, {v(T+9)}""")
    for r in range(max(nxt, min(nxt + 2, 8)), nxt + N2): st(r)
    nxt += N2
    for t in range(NB, nxt): zero_acc(t)
    zdone = nxt
    gwait(("tab", 1))
    a(f"  v_lshrrev_b32 {v(rem)}, 16, {v(Q)}")
    for i in range(1, K):
        a(f"  v_lshrrev_b32 {v(T+4)}, 16, {v(Q+i)}\n  v_add_u32 {v(rem)}, {v(rem)}, {v(T+4)}")
    if OPT["mode"] == 1:
        assert nxt == NS
        a("  s_waitcnt vmcnt(0)\n  s_barrier")
        flag_store(4)
    stamp(a, 252, 47)
    a(f"  s_cmp_lg_u32 s{sW}, 0\n  s_cbranch_scc1 L_polled_b")
    poll("b", flag_load(FP, RK[0]), flag_cond(FP, 4 if OPT["mode"] == 1 else 2), OPT["nap"])
    state_update()
    gwait(("st", 7), " lgkmcnt(0)")
    a("  s_barrier")
    stamp(a, 252, 1)
    if OPT["mode"] == 0: flag_store(3)
    a(f"  ds_read_b128 {v(Wb,4)}, {v(TA[0])}")
    for u in range(0, 16, 2):
        a(f"""
  v_add_u32_dpp {v(T+4)}, {v(vB6)}, {v(vI6)} {bc(u)}
  v_sub_u32_dpp {v(T+5)}, {v(vRT4)}, {v(vI4)} {bc(u)}
  v_add_u32_dpp {v(T+6)}, {v(vB6)}, {v(vI6)} {bc(u+1)}
  v_sub_u32_dpp {v(T+7)}, {v(vRT4)}, {v(vI4)} {bc(u+1)}
  v_bfi_b32 {v(T+4)}, {v(vMsk)}, {v(T+4)}, {v(T+5)}
  v_bfi_b32 {v(T+6)}, {v(vMsk)}, {v(T+6)}, {v(T+7)}
  buffer_load_dwordx2 {v(REC[u],2)}, {v(T+4)}, {s(sREC,4)}, 0 offen{RPOL}
  buffer_load_dwordx2 {v(REC[u+1],2)}, {v(T+6)}, {s(sREC,4)}, 0 offen{RPOL}""")
        gv.extend([("rec", u), ("rec", u + 1)])
    for r in range(nxt, min(NS, nxt + N3)): st(r)
    nxt = min(NS, nxt + N3)
    stamp(a, 252, 12)
    state_update2()
    state_update()
    state_update2()
    set_flag("pro")
    for q in range(D):
        a(f"  v_mov_b32 {v(CC[q])}, 0\n  v_mov_b32 {v(SA[q])}, {v(vSst)}")
    a(f"  v_bfe_u32 {v(T)}, v0, 4, 1\n  v_cmp_eq_u32 vcc, 1, {v(T)}\n  s_waitcnt lgkmcnt(0)\n  s_nop 0")
    for r in range(4):
        a(f"  v_cndmask_b32 {v(Wa+r)}, {v(Wb+r)}, {v(vZ)}, vcc")
        a(f"  v_cndmask_b32 {v(Wb+r)}, {v(vZ)}, {v(Wb+r)}, vcc")
    stamp(a, 252, 13)
    PTA = lambda u: Da + u
    PRK = lambda u: RING[0] + u
    PMK = lambda u: sPM + 2 * (u % 8)
    slowg = []
    def pro_ins1(g):
        us = range(4*g, 4*g+4)
        gwait(("rec", 4*g+3))
        for u in us: a(f"  v_min_i32 {v(PTA(u))}, {v(REC[u])}, {v(REC[u]+1)}")
        for u in us: a(f"  v_cmp_gt_i32 {s(PMK(u),2)}, 0, {v(PTA(u))}")
        for u in us: a(f"  v_bfe_u32 {v(PTA(u))}, {v(PTA(u))}, 23, 8")
        for u in us: a(f"  v_mul_u32_u24 {v(PTA(u))}, {v(PTA(u))}, {v(v264)}")
        for u in us: a(f"  s_mov_b64 exec, {s(PMK(u),2)}\n  ds_add_rtn_u32 {v(PRK(u))}, {v(PTA(u))}, {v(vOne)}")
        a("  s_mov_b64 exec, -1")
    def pro_ins2(g):
        us = list(range(4*g, 4*g+4))
        a(f"""
  v_max3_u32 {v(T)}, {v(PRK(us[0]))}, {v(PRK(us[1]))}, {v(PRK(us[2]))}
  v_max_u32 {v(T)}, {v(T)}, {v(PRK(us[3]))}
  v_cmp_lt_u32 vcc, 31, {v(T)}
  s_cbranch_vccz L_pfast_{g}
  v_cmp_lt_u32 vcc, 63, {v(T)}
  s_cbranch_vccnz L_pslow_{g}""")
        a.label(f"L_pback_{g}")
        for x, u in enumerate(us): a(f"  v_subrev_u32 {v(T+4+x)}, 31, {v(PRK(u))}")
        for x, u in enumerate(us): a(f"  s_mov_b64 exec, {s(PMK(u),2)}\n  ds_max_i32 {v(PTA(u))}, {v(T+4+x)} offset:{BUFSZ}")
        a(f"  s_mov_b64 exec, -1\n  ds_write_b32 {v(vCtlN)}, {v(vOne)} offset:4")
        for x, u in enumerate(us): a(f"  v_lshrrev_b32 {v(T+4+x)}, 5, {v(PRK(u))}")
        for x, u in enumerate(us): a(f"  v_mad_u32_u24 {v(PTA(u))}, {v(T+4+x)}, s{sThr}, {v(PTA(u))}")
        a.label(f"L_pfast_{g}")
        for u in us: a(f"  v_lshl_add_u32 {v(PTA(u))}, {v(PRK(u))}, 3, {v(PTA(u))}")
        for u in us: a(f"  s_mov_b64 exec, {s(PMK(u),2)}\n  ds_write_b64 {v(PTA(u))}, {v(REC[u],2)} offset:8")
        a("  s_mov_b64 exec, -1")
        slowg.append(g)
    left = list(range(nxt, NS))
    def some(n):
        for _ in range(n):
            if left: st(left.pop(0))
    per = (len(left) + 3) // 4
    a(f"  s_mov_b32 s{sThr}, {BUFSZ - 256}")
    pro_ins1(0)
    stamp(a, 252, 3)
    pro_ins1(1)
    some(per)
    a("  s_waitcnt lgkmcnt(0)")
    pro_ins2(0); some(per); pro_ins1(2); pro_ins2(1); some(per); pro_ins1(3)
    F3 = RP[0]
    assert RP[1] == RP[0] + 2
    ld3 = f"  buffer_load_dwordx4 {v(F3,4)}, {v(RK[0])}, {s(sFLG,4)}, s{sCin} offen sc1"
    some(per)
    if OPT["mode"] == 0:
        a(f"  s_cmp_lg_u32 s{sW}, 0\n  s_cbranch_scc1 L_nold3")
        a(ld3)
        a.label("L_nold3")
    stamp(a, 252, 8)
    for t in range(zdone, NS): zero_acc(t)
    a("  s_waitcnt lgkmcnt(0)")
    pro_ins2(2); pro_ins2(3)
    stamp(a, 252, 11)
    if OPT["mode"] == 0:
        a(f"  s_cmp_lg_u32 s{sW}, 0\n  s_cbranch_scc1 L_turn2\n  s_waitcnt vmcnt(0)")
        a(flag_cond(F3, 3))
        a("  s_cbranch_vccz L_turn2")
        poll("k1", ld3, flag_cond(F3, 3), OPT["nap"])
    if OPT["mode"] == 2:
        assert NB == 8
        a(f"""
  s_lshl_b32 s{sX}, s2, 2
  v_lshl_add_u32 {v(T+6)}, v0, 10, s{sX}
  v_mov_b32 {v(T+7)}, 4
  s_waitcnt vmcnt(0)
  s_barrier
  buffer_store_dword {v(T+7)}, {v(T+6)}, {s(sFLG,4)}, 0 offen sc1""")
    a("  s_branch L_turn2")
    def signal_all(tag, n):
        a(f"""
  v_mov_b32 {v(T+4)}, {CTL + 32}
  s_waitcnt vmcnt({n})
  s_mov_b64 exec, 1
  ds_add_rtn_u32 {v(T+5)}, {v(T+4)}, {v(vOne)}
  s_mov_b64 exec, -1
  v_and_b32 {v(T+6)}, 63, v0
  s_lshl_b32 s{sX}, s2, 2
  v_lshl_add_u32 {v(T+6)}, {v(T+6)}, 10, s{sX}
  v_mov_b32 {v(T+7)}, 4
  s_waitcnt lgkmcnt(0)
  v_readfirstlane_b32 s{sX}, {v(T+5)}
  s_cmp_lg_u32 s{sX}, 7
  s_cbranch_scc1 L_nosig_{tag}
  buffer_store_dword {v(T+7)}, {v(T+6)}, {s(sFLG,4)}, 0 offen sc1""")
        a.label(f"L_nosig_{tag}")

    INS0 = OPT["ins0"]
    def cstage_head(q):
        if OPT["abl_s"]: return
        a(f"""
  ds_write_b16 {v(SA[q])}, {v(CC[q])}
  ds_read_b128 {v(Sf,4)}, {v(vSrd)}
  ds_write_b16 {v(SA[q])}, {v(vZ)}""")
    def cstage_m1(q):
        if OPT["abl_mfma"]: return
        a(f"""
  v_mfma_f32_16x16x32_bf16 {v(Da,4)}, {v(RING[q],4)}, {v(Wa,4)}, 0
  v_mfma_f32_16x16x32_bf16 {v(Db,4)}, {v(RING[q],4)}, {v(Wb,4)}, 0""")
    def cstage_cvt():
        if OPT["abl_mfma"]: return
        a(f"""
  v_cvt_pk_bf16_f32 {v(P)}, {v(Da)}, {v(Da+1)}
  v_cvt_pk_bf16_f32 {v(P+1)}, {v(Da+2)}, {v(Da+3)}
  v_cvt_pk_bf16_f32 {v(P+2)}, {v(Db)}, {v(Db+1)}
  v_cvt_pk_bf16_f32 {v(P+3)}, {v(Db+2)}, {v(Db+3)}""")
    def cstage_m2(tc):
        if OPT["abl_mfma"]: return
        a(f"  v_mfma_f32_16x16x32_bf16 {v(ACC[tc],4)}, {v(P,4)}, {v(Sf,4)}, {v(ACC[tc],4)}")
    def step_top(t):
        a(f"  ; ---- step {t}")
        a("  s_waitcnt lgkmcnt(0)")
        cstage_head(t % D)
        if t < NT - 1:
            a(f"  ds_read_b64 {v(RP[(t+1)&1],2)}, {v(vRd)} offset:{(t+1)*TS+8}")
            a(f"  v_readlane_b32 s{sCnt[(t+1)&1]}, {v(vCnt)}, {t+1}")
    def step_main(t, n):
        q = t % D; tc = (t - D) % NT
        rp = RP[t & 1]
        a(f"  s_waitcnt vmcnt({n})")
        cstage_m1(q)
        w, off, af, e = T, T + 1, T + 2, T + 3
        a(f"""
  v_min_i32 {v(w)}, {v(rp)}, {v(rp+1)}
  v_cmp_gt_i32 vcc, 0, {v(rp)}
  v_and_b32 {v(off)}, 0x7ffff, {v(w)}
  v_lshl_add_u32 {v(off)}, {v(off)}, 5, {v(vHalf)}
  v_cndmask_b32_sdwa {v(af)}, {v(rp)}, {v(rp+1)}, vcc dst_sel:WORD_1 dst_unused:UNUSED_PAD src0_sel:WORD_1 src1_sel:WORD_0
  v_cmp_gt_u32 vcc, s{sCnt[t&1]}, {v(vSlot)}
  v_bfe_u32 {v(e)}, {v(w)}, 20, 3
  v_mul_f32 {v(af)}, {v(af)}, {v(vFreq)}
  v_cndmask_b32 {v(off)}, {v(vOOB)}, {v(off)}, vcc
  buffer_load_dwordx4 {v(RING[q],4)}, {v(vOOB if OPT["abl_g"] else off)}, {s(sM,4)}, 0 offen""")
        cstage_cvt()
        a(f"""
  v_cndmask_b32 {v(af)}, {v(vZ)}, {v(af)}, vcc
  v_cvt_pk_bf16_f32 {v(af)}, 0, {v(af)}
  s_waitcnt lgkmcnt({2 if t < NT-1 else 1})""")
        cstage_m2(tc)
        if not OPT["abl_cos"]: a(f"""
  v_mul_f32 {v(af)}, 0.15915494, {v(af)}
  v_fract_f32 {v(af)}, {v(af)}
  v_cos_f32 {v(af)}, {v(af)}
  v_lshl_add_u32 {v(SA[q])}, {v(e)}, 4, {v(vSst)}
  v_cvt_pk_bf16_f32 {v(CC[q])}, {v(af)}, {v(af)}""")

    order = []
    for t in range(NT):
        if t == 0: order.append(("car", 16))
        u2 = t - INS0 - 1
        if 0 <= u2 < 16: order.append(("rec", u2))
        order.append(("W", t))
        order.append(("g", t))
    tail = [x for x in order[order.index(("g", NT - D)):] if x[0] != "W"]
    assert tail == [("g", t) for t in range(NT - D, NT)], tail
    def younger(target, at):
        n = len(order); i = order.index(target); cnt = 0
        j = (i + 1) % n
        while j != at:
            if order[j][0] != "W": cnt += 1
            j = (j + 1) % n
        return cnt
    first = []
    for x in order:
        if x[0] == "W" and x[1] < 4: first += [("f", 4 * x[1] + i) for i in range(4)]
        first.append(x)
    def younger_first(u, t):
        i = first.index(("f", u)); j = first.index(("W", t))
        return sum(1 for x in first[i+1:j] if x[0] != "W")
    RBH = 1
    a(".p2align 6")
    a.label("L_loop")
    for t in range(NT):
        step_top(t)
        if t == 0:
            a(f"""
  v_cmp_gt_u32 vcc, s{sCin}, {v(vCarIdx)}
  s_add_u32 s{sX}, s{sIt}, 2
  s_and_b32 s{sX}, s{sX}, 3
  s_lshl_b32 s{sX}, s{sX}, 3
  s_add_u32 s{sX}, s{sX}, {CTL}
  v_mov_b32 {v(T+1)}, s{sX}
  ds_write_b64 {v(T+1)}, {v(vZ,2)}
  ds_write_b32 {v(vCntA)}, {v(vZ)}
  v_cndmask_b32 {v(T)}, {v(vOOB)}, {v(vCarOff)}, vcc
  buffer_load_dwordx2 {v(REC[16],2)}, {v(T)}, {s(sCAR,4)}, s{sCarR} offen sc1""")
        if t < 4:
            a(f"  s_cmp_eq_u32 s{sIt}, 0\n  s_cbranch_scc1 L_first_{t}")
            a.label(f"L_first_back_{t}")
        if t == INS0:
            a(f"  s_cmp_lg_u32 s{sThr}, 0\n  s_cbranch_scc1 L_nostate")
            state_update(); state_update2()
            a.label("L_nostate")
            set_flag("lp")
        if t == INS0 + 1:
            if OPT["mode"] != 1: a(f"  s_cmp_eq_u32 s{sIt}, 0\n  s_cbranch_scc1 L_chk")
            a.label("L_polled_c")
        u1 = t - INS0; u2 = u1 - 1
        if 0 <= u2 < 17:
            ins2(u2, "lp", TA[u2 & 1], RK[u2 & 1], sMk[u2 & 1])
            if u2 < 16: rec_load(u2, T + 4)
        if 0 <= u1 < 17:
            pos = order.index(("W", t))
            if u1 < 16: n = min(younger(("rec", u1), pos), younger_first(u1, t))
            else: n = younger(("car", 16), pos)
            a(f"  s_waitcnt vmcnt({min(n, 62)})")
            ins1(u1, f"s{sThr}" if u1 < 16 else "0", TA[u1 & 1], RK[u1 & 1], sMk[u1 & 1])
        if t == INS0 + 18:
            a(f"  s_cmp_gt_u32 s{sCin}, 512\n  s_cbranch_scc1 L_slow")
            a.label("L_slow_back")
        if t == RBH:
            a(f"  s_cmp_eq_u32 s{sRb}, s{sIt}\n  s_cbranch_scc1 L_rbf")
            a.label("L_rbf_back1")
        step_main(t, younger(("g", (t - D) % NT), order.index(("W", t))))
    assert INS0 >= 4 and RBH < NT
    a(f"  s_waitcnt vmcnt({NT - (INS0 + 17)})")
    a.label("L_turn2")
    a(f"""
  v_mov_b32 {v(T)}, {v(vCtlN)}
  s_add_u32 s{sIt}, s{sIt}, 1
  s_add_u32 s{sX}, s{sIt}, 1
  s_and_b32 s{sX}, s{sX}, 3
  s_lshl_b32 s{sX}, s{sX}, 3
  s_add_u32 s{sX}, s{sX}, {CTL}
  v_mov_b32 {v(vCtlN)}, s{sX}
  s_sub_u32 s{sX}, s{sIns}, {BUFSZ}
  s_add_u32 s{sX}, s{sX}, s{sIns}
  v_add_u32 {v(vRd)}, s{sX}, {v(vRd)}
  v_add_u32 {v(vCntA)}, s{sX}, {v(vCntA)}
  s_sub_u32 s{sIns}, {BUFSZ}, s{sIns}
  s_mov_b32 s{sCarR}, s{sCarW}
  s_sub_u32 s{sCarW}, {CARLIST}, s{sCarW}
  s_waitcnt lgkmcnt(0)""")
    if OPT["stamp"] == 1:
        a(f"  s_lshl_b32 s90, s{sIt}, 1\n  s_add_u32 s90, s90, 16\n  s_min_u32 m0, s90, 36")
        stamp(a, 252, "m0")
        a("  s_add_u32 m0, m0, 1")
    a("  s_barrier")
    stamp(a, 252, "m0")
    a(f"""
  ds_read_b64 {v(T+2,2)}, {v(T)}
  ds_read_b32 {v(vCnt)}, {v(vCntA)}
  ds_read_b64 {v(RP[0],2)}, {v(vRd)} offset:8
  s_waitcnt lgkmcnt(1)
  v_readfirstlane_b32 s{sCin}, {v(T+2)}
  v_readfirstlane_b32 s{sFl}, {v(T+3)}
  v_readlane_b32 s{sCnt[0]}, {v(vCnt)}, 0
  s_cmp_gt_u32 s{sCin}, 512
  s_cselect_b32 s{sThr}, 0x80000000, 0
  s_min_u32 s{sCin}, s{sCin}, {CARCAP}
  s_or_b32 s{sFl}, s{sFl}, s{sCin}
  s_cmp_lt_u32 s{sIt}, {OPT['itcap']}
  s_cselect_b32 s{sFl}, s{sFl}, 0
  s_cmp_lg_u32 s{sFl}, 0
  s_cbranch_scc1 L_loop""")
    if OPT["mode"] == 0:
        a(f"  s_cmp_lg_u32 s{sIt}, 0\n  s_cbranch_scc1 L_nosig_z")
        signal_all("z", 0)
    a(f"""
  s_cmp_ge_u32 s{sRb}, s{sIt}
  s_mov_b32 s{sRb}, -1
  s_cbranch_scc1 L_rbf""")
    a.label("L_rbf_back2")

    RBv = Q
    assert vRT4 - Q + 1 >= 14
    R0 = REC[0]
    G0, G1, RR, U = R0, R0 + 4, R0 + 8, R0 + 12
    XS0, XS1, XR, AG = R0 + 16, R0 + 18, R0 + 20, R0 + 22
    MS = [R0 + 24 + 2 * i for i in range(5)]
    vMoff, vLin, vOw, vOr = vCarOff, vI6, vI1, vI4
    a(f"""
  v_and_b32 {v(T)}, 63, v0
  s_mul_i32 s{sX}, s{sW}, 3584
  s_add_u32 s{sX}, s{sX}, {RB_OFF}
  v_lshl_add_u32 {v(T+1)}, {v(T)}, 3, s{sX}
  v_lshlrev_b32 {v(vLin)}, 4, {v(T)}
  v_bfe_u32 {v(T+2)}, v0, 4, 2
  v_and_b32 {v(T+3)}, 15, v0
  v_lshlrev_b32 {v(T+2)}, 3, {v(T+2)}
  v_lshl_add_u32 {v(vMoff)}, {v(T+3)}, 5, {v(T+2)}
  s_mul_i32 s{sX}, s{sW}, 6400
  s_add_u32 s{sX}, s{sX}, s{sIns}
  s_add_u32 s{sX}, s{sX}, 15
  s_and_b32 s{sX}, s{sX}, -16
  v_add_u32 {v(vOw)}, s{sX}, {v(vMoff)}
  v_add_u32 {v(vOr)}, s{sX}, {v(vLin)}
  v_cmp_gt_u32 {s(sT,2)}, 8, {v(T+3)}""")
    for h in range(7):
        a(f"  ds_read_b64 {v(RBv+2*h,2)}, {v(T+1)} offset:{h*512}")
    fo = [("g", t - NT) for t in range(NT - D, NT)]
    def fwait(x): return len(fo) - 1 - fo.index(x)
    def s1(p):
        b = RBv + (p & ~1)
        w0, w1 = (WS0, WS1) if p % 2 == 0 else (XS0, XS1)
        a(f"""
  v_mfma_f32_16x16x16_bf16 {v(G0,4)}, {v(w0,2)}, {v(b,2)}, 0
  v_mfma_f32_16x16x16_bf16 {v(G1,4)}, {v(w1,2)}, {v(b,2)}, 0""")
    def s2(p):
        t0 = ACC[2*p]; t1 = ACC[2*p+1] if 2*p+1 < NT else ACC[2*p]
        for r in range(4): a(f"  v_mul_f32 {v(U+r)}, {v(t0+r)}, {v(G0+r)}")
        for r in range(4): a(f"  v_mul_f32_dpp {v(U+r)}, {v(t1+r)}, {v(G0+r)} row_ror:8 row_mask:0xf bank_mask:0xc")
        for r in range(4): a(f"  v_fmac_f32_dpp {v(U+r)}, {v(t0+r)}, {v(G1+r)} row_ror:8 row_mask:0xf bank_mask:0x3")
        for r in range(4): a(f"  v_fmac_f32_dpp {v(U+r)}, {v(t1+r)}, {v(G1+r)} quad_perm:[0,1,2,3] row_mask:0xf bank_mask:0xc")
        a(f"""
  v_cvt_pk_bf16_f32 {v(AG)}, {v(U)}, {v(U+1)}
  v_cvt_pk_bf16_f32 {v(AG+1)}, {v(U+2)}, {v(U+3)}
  v_mfma_f32_16x16x16_bf16 {v(RR,4)}, {v(WR if p % 2 == 0 else XR,2)}, {v(RBv + (p & ~1),2)}, 0""")
        if p + 1 < 13: s1(p + 1)
        else: a("  s_nop 0")
        a(f"  v_mfma_f32_16x16x16_bf16 {v(U,4)}, {v(WUP,2)}, {v(AG,2)}, 0")
    def s3(p):
        x = ACC[2*p]; m_ = MS[p % 5]
        a(f"""
  s_waitcnt vmcnt({fwait(("m", p))})
  v_lshlrev_b32 {v(x)}, 16, {v(m_)}
  v_and_b32 {v(x+1)}, 0xffff0000, {v(m_)}
  v_lshlrev_b32 {v(x+2)}, 16, {v(m_+1)}
  v_and_b32 {v(x+3)}, 0xffff0000, {v(m_+1)}""")
        if p == 12: a("  s_nop 2")
        a(f"""
  v_pk_fma_f32 {v(x,2)}, {v(U,2)}, {v(RR,2)}, {v(x,2)}
  v_pk_fma_f32 {v(x+2,2)}, {v(U+2,2)}, {v(RR+2,2)}, {v(x+2,2)}
  v_cvt_pk_bf16_f32 {v(x)}, {v(x)}, {v(x+1)}
  v_cvt_pk_bf16_f32 {v(x+1)}, {v(x+2)}, {v(x+3)}""")
        if p == 12: a(f"  s_mov_b64 exec, {s(sT,2)}")
        a(f"  ds_write_b64 {v(vOw)}, {v(x,2)} offset:{p*512}")
        if p == 12: a(f"  s_mov_b64 exec, -1")
        if p % 2 == 1 or p == 12:
            r = p // 2
            a(f"  ds_read_b128 {v(ACC[4*r+1 if r < 6 else 23],4)}, {v(vOr)} offset:{r*1024}")
    def s4(r):
        a(f"  buffer_store_dwordx4 {v(ACC[4*r+1 if r < 6 else 23],4)}, {v(vLin)}, {s(sOUT,4)}, s{sEb if r < 4 else sEb2} offen offset:{(r%4)*1024}")
        fo.append(("st", r))
    for t in range(NT + D + 2):
        if t < NT + D: step_top(t)
        else: a(f"  ; ---- tail {t}\n  s_waitcnt lgkmcnt(0)")
        if t == NT: stamp(a, 252, 4)
        if t == NT + D: stamp(a, 252, 5)
        if t == 1:
            a(f"""
  v_mov_b32 {v(XS0)}, 0
  v_mov_b32 {v(XS0+1)}, {v(WS0)}
  v_mov_b32 {v(XS1)}, 0
  v_mov_b32 {v(XS1+1)}, {v(WS1)}
  v_mov_b32 {v(XR)}, 0
  v_mov_b32 {v(XR+1)}, {v(WR)}""")
        if t == 5: s1(0)
        ts2 = {2*p+7 if p < 12 else 30: p for p in range(13)}
        if t - 2 in ts2 and (ts2[t-2] % 2 == 1): s4(ts2[t-2] // 2)
        if t - 1 in ts2: s3(ts2[t-1])
        if t in ts2: s2(ts2[t])
        if t % 2 == 1 and t // 2 < 13:
            p = t // 2
            a(f"  buffer_load_dwordx2 {v(MS[p%5],2)}, {v(vMoff)}, {s(sMW,4)}, s{sEb if p < 8 else sEb2} offen offset:{(p%8)*512}")
            fo.append(("m", p))
        if t < NT:
            step_main(t, fwait(("g", t - D)))
            fo.append(("g", t))
        elif t < NT + D:
            a(f"  s_waitcnt vmcnt({fwait(('g', t - D))})")
            cstage_m1(t % D)
            a("  s_nop 6")
            cstage_cvt()
            a("  s_waitcnt lgkmcnt(0)\n  s_nop 0")
            cstage_m2(t - D)
            a("  s_nop 3")
    a("  s_waitcnt lgkmcnt(0)")
    s4(6)
    stamp(a, 252, 6)
    if OPT["stamp"]: a("  s_waitcnt vmcnt(0)")
    stamp(a, 252, 7); stamp(a, 252, 63, "s_memrealtime")
    if OPT["stamp"] == 1: a(f"  v_writelane_b32 v252, s{sIt}, 61")
    stamp_out(a, 252, sWS, 8, STAMPOFF + 0x200000, 253)
    a.label("L_end")
    a("  s_endpgm")

    for t in range(4):
        a.label(f"L_first_{t}")
        for u in range(4*t, 4*t+4): rec_load(u, T + 4 + 2 * (u & 1))
        if t == OPT["sig"] and OPT["mode"] == 0:
            signal_all("f", 1 + 4 * (t + 1) + t)
        if t == 3 and OPT["mode"] != 1:
            a(f"""
  v_and_b32 {v(WR)}, 63, v0
  v_lshlrev_b32 {v(WR)}, 4, {v(WR)}
  s_and_b32 s{sX}, s2, 7
  s_lshl_b32 s{sX}, s{sX}, 10""")
            a(flag_load(WS0, WR))
        a(f"  s_branch L_first_back_{t}")
    a.label("L_chk")
    a(f"  s_waitcnt vmcnt({INS0 + 1 - 3})")
    a(flag_cond(WS0, 4))
    a(f"""
  s_cbranch_vccz L_polled_c
  s_and_b32 s{sX}, s2, 7
  s_lshl_b32 s{sX}, s{sX}, 10
  s_mov_b32 s{sY}, {OPT['spin']}""")
    a.label("L_poll_c")
    a(flag_load(WS0, WR))
    a("  s_waitcnt vmcnt(0)")
    a(flag_cond(WS0, 4))
    a(f"""
  s_cbranch_vccz L_polled_c
  s_sleep 4
  s_sub_u32 s{sY}, s{sY}, 1
  s_cbranch_scc0 L_poll_c
  s_branch L_polled_c""")
    a.label("L_allfirst")
    a(f"  s_mov_b32 s{sY}, s{sSo}")
    for r in range(NB, NS): st(r, False)
    a(f"  s_mov_b32 s{sSo}, s{sY}\n  s_waitcnt vmcnt(0)\n  s_branch L_allfirst_back")
    for g in slowg:
        a.label(f"L_pslow_{g}")
        for u in range(4*g, 4*g+4):
            a(f"""
  s_mov_b64 exec, {s(PMK(u),2)}
  v_cmp_lt_u32 vcc, 63, {v(PRK(u))}
  s_cbranch_vccz L_pskip_{u}
  s_andn2_b64 {s(PMK(u),2)}, {s(PMK(u),2)}, vcc
  s_mov_b64 exec, vcc
  ds_add_rtn_u32 {v(T+1)}, {v(vCtlN)}, {v(vOne)}
  s_waitcnt lgkmcnt(0)
  v_lshlrev_b32 {v(T+1)}, 3, {v(T+1)}
  buffer_store_dwordx2 {v(REC[u],2)}, {v(T+1)}, {s(sCAR,4)}, s{sCarW} offen
  s_waitcnt vmcnt(0)""")
            a.label(f"L_pskip_{u}")
        a(f"  s_mov_b64 exec, -1\n  s_branch L_pback_{g}")
    a.label("L_slow")
    a(f"  s_mov_b32 s{sX}, 512")
    a.label("L_slow_loop")
    a(f"""
  v_add_u32 {v(T+1)}, s{sX}, {v(vCarIdx)}
  v_cmp_gt_u32 vcc, s{sCin}, {v(T+1)}
  v_lshlrev_b32 {v(T+1)}, 3, {v(T+1)}
  s_nop 0
  v_cndmask_b32 {v(T+1)}, {v(vOOB)}, {v(T+1)}, vcc
  buffer_load_dwordx2 {v(REC[16],2)}, {v(T+1)}, {s(sCAR,4)}, s{sCarR} offen sc1
  s_waitcnt vmcnt(0)""")
    ins1(16, "0", TA[0], RK[0], sMk[0])
    a("  s_waitcnt lgkmcnt(0)")
    ins2(16, "sl", TA[0], RK[0], sMk[0])
    a(f"""
  s_add_u32 s{sX}, s{sX}, 512
  s_cmp_lt_u32 s{sX}, s{sCin}
  s_cbranch_scc1 L_slow_loop
  s_waitcnt vmcnt(0)
  s_branch L_slow_back""")
    a.label("L_rbf")
    DI = [Da + p for p in range(12)] + [T + 10, T + 11]
    H = T
    assert RK[1] == T + 13
    a(f"""
  v_and_b32 {v(H+8)}, 63, v0
  s_lshr_b32 s{sX}, s{sEb}, 4
  v_lshlrev_b32 {v(H+9)}, 3, {v(H+8)}
  v_lshlrev_b32 {v(H+8)}, 2, {v(H+8)}
  s_load_dwordx4 {s(84,4)}, s[58:59], 0
  buffer_load_dwordx2 {v(H,2)}, {v(H+9)}, {s(sDIST,4)}, s{sX} offen
  global_load_dwordx2 {v(H+2,2)}, {v(H+9)}, s[64:65]
  global_load_dwordx2 {v(H+4,2)}, {v(H+9)}, s[68:69]
  global_load_dword {v(H+6)}, {v(H+8)}, s[62:63]
  s_mov_b32 s{sC10}, 0xc1200000
  s_mov_b32 s{sC10+1}, 0xc1200000
  s_mov_b32 s{sCl2}, 0x3fb8aa3b
  s_mov_b32 s{sCl2+1}, 0x3fb8aa3b
  s_mul_i32 s{sX}, s{sW}, 3584
  s_add_u32 s{sX}, s{sX}, {RB_OFF}
  v_add_u32 {v(H+9)}, s{sX}, {v(H+9)}
  v_add_u32 {v(H+8)}, s{sX}, {v(H+8)}
  v_and_b32 {v(Da)}, 15, v0
  v_bfe_u32 {v(Da+1)}, v0, 4, 2
  v_lshl_add_u32 {v(H+7)}, {v(Da)}, 1, s{sX}
  v_lshl_add_u32 {v(Da+2)}, {v(Da+1)}, 7, {v(H+7)}
  v_lshl_add_u32 {v(Da+3)}, {v(Da+1)}, 6, {v(H+7)}
  s_waitcnt lgkmcnt(0)
  v_mov_b32 {v(H+13)}, s84
  v_cmp_eq_u32 vcc, 1, {v(Da+1)}
  v_mov_b32 {v(H+12)}, s85
  v_cmp_eq_u32 {s(sT,2)}, 2, {v(Da+1)}
  v_cndmask_b32 {v(H+13)}, {v(H+13)}, {v(H+12)}, vcc
  v_mov_b32 {v(H+12)}, s86
  v_cmp_eq_u32 vcc, 3, {v(Da+1)}
  v_cndmask_b32 {v(H+13)}, {v(H+13)}, {v(H+12)}, {s(sT,2)}
  v_mov_b32 {v(H+12)}, s87
  v_cndmask_b32 {v(H+13)}, {v(H+13)}, {v(H+12)}, vcc
  v_lshlrev_b32 {v(H+12)}, 16, {v(H+13)}
  v_and_b32 {v(H+13)}, 0xffff0000, {v(H+13)}
  s_waitcnt vmcnt(0)
  ds_write_b64 {v(H+9)}, {v(H,2)}
  ds_write_b64 {v(H+9)}, {v(H+2,2)} offset:512
  ds_write_b64 {v(H+9)}, {v(H+4,2)} offset:1024
  ds_write_b32 {v(H+8)}, {v(H+6)} offset:1536
  ds_read_u16 {v(WS0)}, {v(Da+2)} offset:512
  ds_read_u16 {v(WS1)}, {v(Da+2)} offset:{512+32}
  ds_read_u16 {v(WS0+1)}, {v(Da+2)} offset:{512+64}
  ds_read_u16 {v(WS1+1)}, {v(Da+2)} offset:{512+96}
  ds_read_u16 {v(WUP)}, {v(Da+2)} offset:1024
  ds_read_u16 {v(H)}, {v(Da+2)} offset:{1024+32}
  ds_read_u16 {v(WUP+1)}, {v(Da+2)} offset:{1024+64}
  ds_read_u16 {v(H+1)}, {v(Da+2)} offset:{1024+96}
  ds_read_u16 {v(WR)}, {v(Da+3)} offset:1536
  ds_read_u16 {v(WR+1)}, {v(Da+3)} offset:{1536+32}""")
    for p in range(13):
        a(f"  ds_read_u16 {v(DI[p])}, {v(H+7)} offset:{p*32}")
    a(f"""
  s_waitcnt lgkmcnt(0)
  v_lshl_or_b32 {v(WS0)}, {v(WS0+1)}, 16, {v(WS0)}
  v_lshl_or_b32 {v(WS1)}, {v(WS1+1)}, 16, {v(WS1)}
  v_lshl_or_b32 {v(WUP)}, {v(H)}, 16, {v(WUP)}
  v_lshl_or_b32 {v(WUP+1)}, {v(H+1)}, 16, {v(WUP+1)}
  v_lshl_or_b32 {v(WR)}, {v(WR+1)}, 16, {v(WR)}
  v_mov_b32 {v(WS0+1)}, 0
  v_mov_b32 {v(WS1+1)}, 0
  v_mov_b32 {v(WR+1)}, 0
  v_mov_b32 {v(DI[13])}, 0""")
    CEN = H + 12
    for ps in ([0,1,2,3], [4,5,6,7], [8,9,10], [11,12]):
        p0 = ps[0]
        tt = {p: H + 2 * (p - p0) for p in ps}
        def rnd():
            for p in ps: a(f"  v_cvt_pk_bf16_f32 {v(tt[p])}, 0, {v(tt[p])}\n  v_cvt_pk_bf16_f32 {v(tt[p]+1)}, 0, {v(tt[p]+1)}")
        for p in ps: a(f"  v_lshlrev_b32 {v(tt[p])}, 16, {v(DI[p])}")
        for p in ps: a(f"  v_pk_add_f32 {v(tt[p],2)}, {v(tt[p],2)}, {v(CEN,2)} op_sel_hi:[0,1] neg_lo:[0,1] neg_hi:[0,1]")
        rnd()
        for p in ps: a(f"  v_pk_mul_f32 {v(tt[p],2)}, {v(tt[p],2)}, {v(tt[p],2)}")
        rnd()
        for p in ps: a(f"  v_pk_mul_f32 {v(tt[p],2)}, {v(tt[p],2)}, {s(sC10,2)}")
        rnd()
        for p in ps: a(f"  v_pk_mul_f32 {v(tt[p],2)}, {v(tt[p],2)}, {s(sCl2,2)}")
        for p in ps: a(f"  v_exp_f32 {v(tt[p])}, {v(tt[p])}\n  v_exp_f32 {v(tt[p]+1)}, {v(tt[p]+1)}")
        for p in ps: a(f"  v_cvt_pk_bf16_f32 {v(DI[p])}, {v(tt[p])}, {v(tt[p]+1)}")
    for h in range(7):
        a(f"  ds_write_b64 {v(H+9)}, {v(DI[2*h],2)} offset:{h*512}")
    a(f"""
  s_waitcnt lgkmcnt(0)
  s_cmp_eq_u32 s{sRb}, -1
  s_cbranch_scc1 L_rbf_back2
  s_branch L_rbf_back1""")
    for lab, u, tmp, mk in rare:
        a.label(f"L_rare_{lab}")
        a(f"""
  s_mov_b64 exec, vcc
  ds_add_rtn_u32 {v(tmp)}, {v(vCtlN)}, {v(vOne)}
  s_waitcnt lgkmcnt(0)
  v_lshlrev_b32 {v(tmp)}, 3, {v(tmp)}
  buffer_store_dwordx2 {v(REC[u],2)}, {v(tmp)}, {s(sCAR,4)}, s{sCarW} offen
  s_andn2_b64 exec, {s(mk,2)}, vcc
  s_branch L_back_{lab}""")
    return NV

def kd(name, nv, ns):
    nv4 = (nv + 3) // 4 * 4
    return f""".amdhsa_kernel {name}
  .amdhsa_next_free_vgpr {nv}
  .amdhsa_next_free_sgpr {ns}
  .amdhsa_accum_offset {nv4}
  .amdhsa_group_segment_fixed_size 0
  .amdhsa_kernarg_size 112
  .amdhsa_user_sgpr_count 2
  .amdhsa_user_sgpr_kernarg_segment_ptr 1
  .amdhsa_system_sgpr_workgroup_id_x 1
  .amdhsa_float_denorm_mode_32 3
.end_amdhsa_kernel
"""

def main():
    out = sys.argv[1]
    ref = open(f"cdna_kernels/{NAME}.s.ref").read().split("\n")
    head = [l for l in ref if l.startswith(";") and "@launch" not in l and "Override" not in l and "grid=ceil" not in l]
    a = Asm()
    a(".amdgcn_target \"amdgcn-amd-amdhsa--gfx950\"\n.text")
    a(f".globl {NAME}_kernel\n.type {NAME}_kernel,@function")
    nv = gen_p2(a)
    errs = a.check()
    for e in errs: print("HAZARD", e)
    txt = "\n".join(head) + "\n"
    kern = f"kernel={NAME}_kernel " if OPT["list"] else ""
    txt += f"; @launch {kern}grid=(256,1,1) block=(512,1,1) lds={P1_LDS}\n"
    txt += a.text()
    txt += ".section .rodata,\"a\"\n.p2align 6\n" + kd(NAME + "_kernel", 256, 102)
    open(out, "w").write(txt)
    print("vgprs p2:", nv, "lines:", len(a.lines), "hazards:", len(errs))

main()
```

```python
import sys, os
sys.path.insert(0, os.path.dirname(__file__))
from asmlib import Asm

NAME = "gather_scatter__molecular_angular_gemnet__graph"
E = 400000
NCH, CH = 250, 25600
EB = 1568
K = 6
MJ = 2739138
TABOFF = 0x2800000
CAROFF = 0x3000000
CARCAP = 9216
CARLIST = CARCAP * 8
STAMPOFF = 0x6000000
FLGOFF = 0x2c00000
OPT = dict(jid=0, fprio=0x3ffff, lprio=0x3fff, napt=8, st0=1, stp=1, rb0=2, nap=16, list=1, nb=7, n1=4, n2=8, n2a=2, n3=0, arr=10, spin=60000, rec_pol=2, stamp=0, itcap=64, ld_nt=7, st_pol=0, mtouch=0, la=4, apre=4, wmain=70000, b5=0, lim=24, nb2=7, ins0=4,
           abl_mfma=0, abl_s=0, abl_cos=0, abl_g=0)
for a in sys.argv[2:]:
    k, v = a.split("=")
    assert k in OPT, k
    OPT[k] = int(v, 0)
MK = -(-(1 << 32) // OPT["wmain"])
assert (399999 * MK) >> 32 <= 5

RPOL = ('', ' nt', ' sc1', ' sc0 sc1')[OPT['rec_pol']]

def v(i, n=1):
    return f"v{i}" if n == 1 else f"v[{i}:{i+n-1}]"
def s(i, n=1):
    return f"s{i}" if n == 1 else f"s[{i}:{i+n-1}]"

def stamp(a, vreg, lane, op="s_memtime"):
    if not OPT["stamp"]: return
    if OPT["stamp"] == 2:
        mp = {127: {62: (0, 1), 1: (1, 0), 4: (2, 0), 7: (3, 0), 63: (4, 0)}, 252: {62: (0, 1), 2: (1, 0), 11: (2, 0), 4: (3, 0), 63: (4, 0)}}[vreg]
        if lane not in mp: return
        l, inv = mp[lane]
        a(f"  s_memrealtime s[88:89]\n  s_waitcnt lgkmcnt(0)")
        if inv: a("  s_not_b32 s88, s88")
        a(f"  v_writelane_b32 v{vreg}, s88, {l}")
        return
    a(f"  {op} s[88:89]\n  s_waitcnt lgkmcnt(0)\n  v_writelane_b32 v{vreg}, s88, {lane}")
def stamp_out(a, vreg, wslo, nwaves, base, tmp):
    if not OPT["stamp"]: return
    if OPT["stamp"] == 2:
        back = 512 if vreg == 127 else 32
        a(f"""
  s_load_dwordx2 s[90:91], s[0:1], 96
  s_waitcnt lgkmcnt(0)
  s_add_u32 s92, s90, {back}
  s_addc_u32 s93, s91, 0
  s_mov_b32 s94, 20
  s_mov_b32 s95, 0x20000
  v_lshlrev_b32 v{tmp}, 2, v0
  buffer_atomic_umax v{vreg}, v{tmp}, s[92:95], 0 offen""")
        return
    a(f"  s_mul_i32 s88, s2, {nwaves*256}\n  s_add_u32 s88, s88, {base}")
    srd(a, 92, wslo, wslo+1, "s88", nwaves*256)
    a(f"  v_lshlrev_b32 v{tmp}, 2, v0\n  buffer_store_dword v{vreg}, v{tmp}, s[92:95], 0 offen")

def srd(a, d, lo, hi, add, size):
    if add is None:
        a(f"  s_mov_b32 s{d}, s{lo}\n  s_mov_b32 s{d+1}, s{hi}")
    else:
        a(f"  s_add_u32 s{d}, s{lo}, {add}\n  s_addc_u32 s{d+1}, s{hi}, 0")
    a(f"  s_mov_b32 s{d+2}, {size}\n  s_mov_b32 s{d+3}, 0x20000")

P1_CNT, P1_SENT, P1_TMP, P1_REC = 0, 6144, 6160, 6272
P1_LDS = P1_REC + CH * 6

TS = 264
BUFSZ = 200 * TS
S_OFF = 2 * BUFSZ
CTL = S_OFF + 8192
RB_OFF = CTL + 128
P2_LDS = RB_OFF + 8 * 3584
D = 5
NT = 25

class RA:
    def __init__(self, start): self.n = start
    def __call__(self, k=1, al=1):
        self.n = (self.n + al - 1) // al * al
        r = self.n; self.n += k
        return r

def gen_p2(a):
    ra = RA(1)
    vSlot, vHalf, vFreq, vSst, vSrd, vI6, vI1, vI4 = (ra() for _ in range(8))
    vRd, vCntA, vOne, vOOB, vCarOff, vCarIdx, v264, vMsk, vCtlN = (ra() for _ in range(9))
    vZ = ra(2, 2)
    Q = ra(6, 4)
    sA, nA, cb, rem, rtot, vA6, vB6, vR0, vRT4 = (ra() for _ in range(9))
    vCnt = ra()
    Wa = ra(4, 4); Wb = ra(4, 4)
    RING = [ra(4, 4) for _ in range(D)]
    Da = ra(4, 4); Db = ra(4, 4); P = ra(4, 4); Sf = ra(4, 4)
    ACC = [ra(4, 4) for _ in range(NT)]
    REC = [ra(2, 4 if i == 0 else 2) for i in range(17)]
    RP = [ra(2, 2), ra(2, 2)]
    T = ra(10, 2)
    TA = [ra(), ra()]; RK = [ra(), ra()]
    WS0 = ra(2, 2); WS1 = ra(2, 2); WR = ra(2, 2); WUP = ra(2, 2)
    CC = [ra() for _ in range(D)]; SA = [ra() for _ in range(D)]
    assert ra.n <= 252, ra.n
    NV = ra.n
    sM = 4; sREC = 8; sCAR = 12; sTAB = 16; sOUT = 20; sDIST = 24; sMW = 28
    sJ, sW, sIt, sThr, sIns, sCarW, sCarR, sRb, sCin, sX, sFl, sEb = range(32, 44)
    sCnt = [44, 45]
    sWS = 46
    sPM = 72
    sMk = [72, 74]; sT = 76; sC10 = 78; sCl2 = 80
    sEb2 = 3
    rare = []

    O, I, R, A = 36, 88, 140, 192
    PT = 218
    vL16, vL8, vL4, vL128, vSix, vTwo, vFlg, vDum, vTab, vWo = range(234, 244)
    assert Wa == 36 and T == PT and NV <= 250
    sIO, sII, sAN, sMT, sTW, sDBG = 4, 8, 12, 16, 20, 24
    sFLG, sRW = 92, 96
    sMJ, sMK, sNEB, sB5, sO4, sO2 = range(80, 86)
    sY, sSo = 100, 101
    nto, nti, nta = (" nt" if OPT["ld_nt"] >> b & 1 else "" for b in range(3))
    NR = 13
    nrec = lambda q: 4 if q < 12 else 2
    vm = []
    def ld_pair(q):
        if q < 12:
            a(f"  buffer_load_dwordx4 {v(O+4*q,4)}, {v(vL16)}, {s(sIO,4)}, s{sO4} offen{nto}")
            a(f"  buffer_load_dwordx4 {v(I+4*q,4)}, {v(vL16)}, {s(sII,4)}, s{sO4} offen{nti}")
            a(f"  s_add_u32 s{sO4}, s{sO4}, 8192")
        else:
            a(f"  buffer_load_dwordx2 {v(O+48,2)}, {v(vL8)}, {s(sIO,4)}, s{sO4} offen{nto}")
            a(f"  buffer_load_dwordx2 {v(I+48,2)}, {v(vL8)}, {s(sII,4)}, s{sO4} offen{nti}")
        vm.extend([("o", q), ("p", q)])
    def ld_ang(q):
        if q < 12:
            a(f"  buffer_load_dwordx2 {v(A+2*q,2)}, {v(vL8)}, {s(sAN,4)}, s{sO2} offen{nta}")
            a(f"  s_add_u32 s{sO2}, s{sO2}, 4096")
        else: a(f"  buffer_load_dword {v(A+24)}, {v(vL4)}, {s(sAN,4)}, s{sO2} offen{nta}")
        vm.append(("a", q))
    def wait_for(x):
        a(f"  s_waitcnt vmcnt({len(vm) - 1 - vm.index(x)})")
    def poll(tag, load, cond, nap=4):
        a(f"  s_mov_b32 s{sY}, {OPT['spin']}")
        a.label(f"L_poll_{tag}")
        a(load)
        a("  s_waitcnt vmcnt(0)")
        a(cond)
        a(f"""
  s_cbranch_vccz L_polled_{tag}
  s_sleep {nap}
  s_sub_u32 s{sY}, s{sY}, 1
  s_cbranch_scc0 L_poll_{tag}""")
        a.label(f"L_polled_{tag}")

    a(".p2align 8")
    a.label(NAME + "_kernel")
    a(f"""
  s_cmp_ge_u32 s2, 256
  s_cbranch_scc1 L_end
  s_load_dwordx16 s[48:63], s[0:1], 0
  s_load_dwordx4 s[44:47], s[0:1], 96
  s_load_dwordx8 s[64:71], s[0:1], 64
  v_lshlrev_b32 {v(vL16)}, 4, v0
  v_mov_b64 {v(PT,2)}, 0
  v_mov_b64 {v(PT+2,2)}, 0
  s_min_u32 s{sY}, s2, {NCH-1}
  s_mul_i32 s{sX}, s{sY}, {CH*4}
  s_cmp_lt_u32 s2, {NCH}
  s_cselect_b32 s{sFl}, {CH*2}, 0
  s_lshl_b32 s{sCin}, s{sFl}, 1
  s_mov_b32 s{sO4}, 0
  s_mov_b32 s{sO2}, 0
  ds_write_b128 {v(vL16)}, {v(PT,4)}
  s_waitcnt lgkmcnt(0)""")
    stamp(a, 252, 0); stamp(a, 252, 62, "s_memrealtime")
    srd(a, sIO, 52, 53, f"s{sX}", f"s{sCin}")
    srd(a, sII, 50, 51, f"s{sX}", f"s{sCin}")
    ld_pair(0); ld_pair(1)
    a("  s_barrier")
    LA = OPT["la"]
    for q in range(2, LA): ld_pair(q)
    a(f"  s_lshr_b32 s{sX}, s{sX}, 1")
    srd(a, sAN, 56, 57, f"s{sX}", f"s{sFl}")
    srd(a, sMT, 48, 49, f"s{sX}", f"s{sFl}")
    a(f"  s_mul_i32 s{sX}, s{sY}, {CH*6}\n  s_mul_i32 s{sFl}, s{sFl}, 3")
    srd(a, sRW, sWS, sWS+1, f"s{sX}", f"s{sFl}")
    srd(a, sTW, sWS, sWS+1, TABOFF, 256 * 8192)
    srd(a, sFLG, sWS, sWS+1, FLGOFF, 8192)
    srd(a, sDBG, 44, 45, None, 256)
    a(f"""
  s_lshl_b32 s{sX}, s2, 2
  v_lshl_add_u32 {v(vFlg)}, v0, 10, s{sX}
  s_cmp_lt_u32 s2, {NCH}
  s_cselect_b32 s{sX}, 0, 4
  v_mov_b32 {v(vDum)}, s{sX}
  buffer_store_dword {v(vDum)}, {v(vFlg)}, {s(sFLG,4)}, 0 offen sc1
  s_lshl_b32 s{sX}, s{sX}, 20
  v_or_b32 {v(vFlg)}, s{sX}, {v(vFlg)}
  s_load_dword s{sCin}, s[60:61], 0
  v_lshlrev_b32 {v(vL8)}, 3, v0
  v_lshlrev_b32 {v(vL4)}, 2, v0
  v_lshlrev_b32 {v(vL128)}, 7, v0
  v_mov_b32 {v(vSix)}, 6
  v_mov_b32 {v(vTwo)}, 2
  s_mov_b32 s{sMJ}, {MJ}
  s_mov_b32 s{sMK}, {MK}
  s_mov_b32 s{sNEB}, {-EB & 0xffffffff}
  s_mov_b32 s{sB5}, {OPT['b5']}
  s_and_b32 s{sJ}, s2, 7
  s_lshl_b32 s{sJ}, s{sJ}, 5
  s_lshr_b32 s{sX}, s2, 3
  s_add_u32 s{sJ}, s{sJ}, s{sX}
  {"s_mov_b32 s%d, s2" % sJ if OPT["jid"] else "s_nop 0"}
  v_lshrrev_b32 {v(T)}, 6, v0
  v_and_b32 {v(T+2)}, 15, v0
  v_bfe_u32 {v(T+3)}, v0, 5, 1
  v_readfirstlane_b32 s{sW}, {v(T)}
  v_lshlrev_b32 {v(vHalf)}, 4, {v(T+3)}
  v_lshl_add_u32 {v(cb)}, {v(T)}, 5, {v(vHalf)}
  v_add_u32 {v(cb)}, {v(cb)}, {v(T+2)}
  v_lshlrev_b32 {v(vTab)}, 13, {v(cb)}
  v_and_b32 {v(T+1)}, 63, v0
  v_and_b32 {v(vSlot)}, 31, v0
  v_mov_b64 {v(vZ,2)}, 0
  v_mov_b32 {v(v264)}, {TS}
  v_lshlrev_b32 {v(vWo)}, 1, {v(T+2)}
  v_lshl_add_u32 {v(vWo)}, {v(T+3)}, 8, {v(vWo)}
  v_lshl_add_u32 {v(vWo)}, {v(T)}, 5, {v(vWo)}
  v_mov_b32 {v(vCtlN)}, {CTL}
  s_lshl_b32 s{sX}, s{sW}, 10
  s_add_u32 s{sX}, s{sX}, {S_OFF}
  v_lshl_add_u32 {v(vSrd)}, {v(T+1)}, 4, s{sX}
  v_bfe_u32 {v(T+6)}, v0, 2, 2
  v_lshlrev_b32 {v(vSst)}, 8, {v(T+6)}
  v_lshl_add_u32 {v(vSst)}, {v(T+3)}, 7, {v(vSst)}
  v_bfe_u32 {v(T+6)}, v0, 4, 1
  v_lshl_add_u32 {v(vSst)}, {v(T+6)}, 3, {v(vSst)}
  v_and_b32 {v(T+6)}, 3, v0
  v_lshl_add_u32 {v(vSst)}, {v(T+6)}, 1, {v(vSst)}
  v_add_u32 {v(vSst)}, s{sX}, {v(vSst)}
  v_mov_b32 {v(vOne)}, 1
  v_mov_b32 {v(vOOB)}, 0x80000000
  v_mov_b32 {v(vMsk)}, 0x7ffffffc
  v_mul_u32_u24 {v(vI6)}, 6, {v(vSlot)}
  v_add_u32 {v(vI1)}, 1, {v(vSlot)}
  v_lshlrev_b32 {v(vI4)}, 2, {v(vI1)}
  v_mov_b32 {v(T+6)}, {CH}
  v_mul_u32_u24 {v(cb)}, {v(cb)}, {v(T+6)}
  v_mov_b32 {v(sA)}, 0
  v_mov_b32 {v(nA)}, 0
  v_mov_b32 {v(rtot)}, 0
  s_mul_i32 s{sX}, s{sW}, {NT*TS}
  s_add_u32 s{sX}, s{sX}, {BUFSZ}
  v_lshl_add_u32 {v(vRd)}, {v(vSlot)}, 3, s{sX}
  v_min_u32 {v(T+6)}, {NT-1}, {v(T+1)}
  v_mad_u32_u24 {v(vCntA)}, {v(T+6)}, {v(v264)}, s{sX}
  v_sub_u32 {v(vCarIdx)}, 511, v0
  v_lshlrev_b32 {v(vCarOff)}, 3, {v(vCarIdx)}
  v_cmp_eq_u32 vcc, 1, {v(T+3)}
  s_waitcnt lgkmcnt(0)
  s_lshl_b32 s{sX}, s{sCin}, 16
  s_and_b32 s{sCin}, s{sCin}, 0xffff0000
  v_mov_b32 {v(vFreq)}, s{sX}
  v_mov_b32 {v(T+6)}, s{sCin}
  v_cndmask_b32 {v(vFreq)}, {v(vFreq)}, {v(T+6)}, vcc
  s_mov_b32 s{sIt}, -1
  s_mov_b32 s{sIns}, 0
  s_mov_b32 s{sCarW}, 0
  s_mov_b32 s{sCarR}, {CARLIST}
  s_lshr_b32 s{sRb}, s{sW}, 2
  s_add_u32 s{sRb}, s{sRb}, {OPT['rb0']}
  s_cmp_ge_u32 s2, {NCH}
  s_cbranch_scc1 L_nochunk1""")
    vm.append(("flg", 0))
    arrive = f"""
  s_and_b32 s{sY}, s2, 15
  s_lshl_b32 s{sY}, s{sY}, 4
  v_lshlrev_b32 {v(PT)}, 8, v0
  buffer_atomic_add {v(vOne)}, {v(PT)}, {s(sDBG,4)}, s{sY} offen"""
    def hist(idx):
        if OPT["b5"]:
            for x, i in enumerate(idx): a(f"  v_cmp_le_u32 {s(72+2*x,2)}, s{sB5}, {v(I+i)}")
        for x, i in enumerate(idx): a(f"  v_mul_hi_u32_u24 {v(PT+x)}, s{sMJ}, {v(O+i)}")
        for x, i in enumerate(idx): a(f"  v_mul_hi_u32_u24 {v(PT+4+x)}, s{sMK}, {v(I+i)}")
        if OPT["b5"]:
            for x, i in enumerate(idx): a(f"  v_cndmask_b32 {v(PT+4+x)}, {v(PT+4+x)}, 5, {s(72+2*x,2)}")
        for x, i in enumerate(idx): a(f"  v_mad_i32_i24 {v(PT+8+x)}, {v(PT+x)}, s{sNEB}, {v(O+i)}")
        for x, i in enumerate(idx): a(f"  v_lshl_add_u32 {v(O+i)}, {v(PT+4+x)}, 8, {v(PT+x)}")
        for x, i in enumerate(idx): a(f"  v_lshlrev_b32 {v(O+i)}, 2, {v(O+i)}")
        for x, i in enumerate(idx): a(f"  ds_add_rtn_u32 {v(R+i)}, {v(O+i)}, {v(vOne)}")
        for x, i in enumerate(idx): a(f"  v_lshl_or_b32 {v(I+i)}, {v(PT+8+x)}, 20, {v(I+i)}")
        for x, i in enumerate(idx): a(f"  v_or_b32 {v(I+i)}, 0x80000000, {v(I+i)}")
    na = 0
    for q in range(NR):
        wait_for(("p", q))
        if q == 0: stamp(a, 252, 40)
        if q == LA:
            a(arrive); vm.append(("arr", 0))
        if q + LA < NR: ld_pair(q + LA)
        else:
            for _ in range(2):
                if na < OPT["apre"]: ld_ang(na); na += 1
        hist(list(range(4*q, 4*q + nrec(q))))
    stamp(a, 252, 41)
    X = v(PT+4)
    a(f"""
  s_waitcnt lgkmcnt(0)
  s_barrier
  s_cmp_ge_u32 s{sW}, {K}
  s_cbranch_scc1 L_bin_s1
  ds_read_b128 {v(PT,4)}, {v(vL16)}
  v_and_b32 {v(PT+8)}, 63, v0
  s_waitcnt lgkmcnt(0)
  v_add_u32 {v(PT+1)}, {v(PT)}, {v(PT+1)}
  v_add_u32 {v(PT+2)}, {v(PT+1)}, {v(PT+2)}
  v_add_u32 {v(PT+3)}, {v(PT+2)}, {v(PT+3)}
  v_mov_b32 {v(PT+4)}, {v(PT+3)}""")
    for sh in (1, 2, 4, 8):
        a(f"  s_nop 1\n  v_add_u32_dpp {X}, {X}, {X} row_shr:{sh} row_mask:0xf bank_mask:0xf bound_ctrl:0")
    a(f"  s_nop 1\n  v_add_u32_dpp {X}, {X}, {X} row_bcast:15 row_mask:0xa bank_mask:0xf")
    a(f"  s_nop 1\n  v_add_u32_dpp {X}, {X}, {X} row_bcast:31 row_mask:0xc bank_mask:0xf")
    a(f"""
  v_cmp_lt_u32 vcc, s{sW}, {v(PT+8)}
  v_readlane_b32 s{sY}, {X}, 63
  v_lshlrev_b32 {v(PT+9)}, 2, {v(PT+8)}
  s_and_b32 vcc_lo, vcc_lo, 0xff
  s_mov_b32 vcc_hi, 0
  v_mov_b32 {v(PT+10)}, s{sY}
  s_mov_b64 exec, vcc
  ds_add_u32 {v(PT+9)}, {v(PT+10)} offset:{P1_TMP}
  s_mov_b64 exec, -1
  s_waitcnt lgkmcnt(0)""")
    a.label("L_bin_s1")
    a(f"""
  s_barrier
  s_cmp_ge_u32 s{sW}, {K}
  s_cbranch_scc1 L_bin_s2
  s_lshl_b32 s{sY}, s{sW}, 2
  v_mov_b32 {v(PT+9)}, s{sY}
  ds_read_b32 {v(PT+9)}, {v(PT+9)} offset:{P1_TMP}
  v_sub_u32 {X}, {X}, {v(PT+3)}
  v_mov_b32 {v(PT+10)}, {CH}
  s_waitcnt lgkmcnt(0)
  v_add_u32 {v(PT+4)}, {X}, {v(PT+9)}
  v_add_u32 {v(PT+5)}, {v(PT+4)}, {v(PT)}
  v_add_u32 {v(PT+6)}, {v(PT+4)}, {v(PT+1)}
  v_add_u32 {v(PT+7)}, {v(PT+4)}, {v(PT+2)}
  ds_write_b128 {v(vL16)}, {v(PT+4,4)}
  ds_write_b32 {v(vZ)}, {v(PT+10)} offset:{P1_SENT}
  s_waitcnt lgkmcnt(0)""")
    a.label("L_bin_s2")
    a("  s_barrier")
    stamp(a, 252, 42)
    a(f"""
  v_lshrrev_b32 {v(PT+12)}, 1, v0
  v_and_b32 {v(PT+13)}, 1, v0
  v_lshlrev_b32 {v(PT+12)}, 2, {v(PT+12)}
  v_lshl_add_u32 {v(PT+13)}, {v(PT+13)}, 12, {v(PT+12)}
  s_lshl_b32 s{sY}, s2, 13""")
    for k in range(4):
        a(f"  ds_read_b32 {v(PT+k)}, {v(PT+13)} offset:{k*1024}")
        a(f"  ds_read_b32 {v(PT+6+k)}, {v(PT+13)} offset:{k*1024+4}")
    a("  s_waitcnt lgkmcnt(0)")
    for k in range(4): a(f"  v_sub_u32 {v(PT+6+k)}, {v(PT+6+k)}, {v(PT+k)}")
    for k in range(4): a(f"  v_lshl_or_b32 {v(PT+k)}, {v(PT+6+k)}, 16, {v(PT+k)}")
    a(f"  buffer_store_dwordx4 {v(PT,4)}, {v(vL16)}, {s(sTW,4)}, s{sY} offen sc1")
    vm.append(("tab", 0))
    mark = len(vm)
    while na < NR: ld_ang(na); na += 1
    if OPT["mtouch"]:
        a(f"  buffer_load_dword v244, {v(vL128)}, {s(sMT,4)}, 0 offen"); vm.append(("m", 0))
    NRD = 15
    for i in range(NRD): a(f"  ds_read_b32 {v(O+i)}, {v(O+i)}")
    def scat(g):
        idx = list(range(5*g, 5*g+5))
        a("  s_waitcnt lgkmcnt(10)")
        for i in idx:
            if i + NRD < 50: a(f"  ds_read_b32 {v(O+i+NRD)}, {v(O+i+NRD)}")
        for i in idx: a(f"  v_add_u32 {v(O+i)}, {v(O+i)}, {v(R+i)}")
        for i in idx: a(f"  v_mad_u32_u24 {v(O+i)}, {v(O+i)}, {v(vSix)}, {v(vTwo)}")
        for i in idx: a(f"  v_and_b32 {v(R+i)}, -4, {v(O+i)}")
        for i in idx: a(f"  ds_write_b32 {v(R+i)}, {v(I+i)} offset:{P1_REC}")
        for i in idx: a(f"  v_and_b32 {v(I+i)}, 2, {v(O+i)}")
        for i in idx: a(f"  v_lshl_add_u32 {v(O+i)}, {v(I+i)}, 1, {v(O+i)}")
    for g in range(OPT["arr"]): scat(g)
    lda = f"  buffer_load_dword {v(PT+1)}, {v(PT)}, {s(sDBG,4)}, 0 offen sc1"
    cda = f"  v_cmp_gt_u32 vcc, 16, {v(PT+1)}"
    ada = f"""
  s_lshl_b32 s{sX}, s{sW}, 16
  v_and_b32 {v(PT)}, 15, v0
  v_lshl_add_u32 {v(PT)}, {v(PT)}, 4, s{sX}"""
    a(ada)
    a(f"  s_waitcnt vmcnt({len(vm) - mark})\n  s_barrier")
    a(lda)
    vm.append(("lda", 0))
    a(f"  buffer_store_dword {v(vOne)}, {v(vFlg)}, {s(sFLG,4)}, 0 offen sc1")
    vm.append(("flg", 1))
    for g in range(OPT["arr"], 10): scat(g)
    stamp(a, 252, 43)
    for q in range(NR):
        wait_for(("a", q))
        for r in range(nrec(q) // 2): a(f"  v_and_b32 {v(A+2*q+r)}, 0x7fff7fff, {v(A+2*q+r)}")
        for i in range(4*q, 4*q + nrec(q)):
            op = "ds_write_b16_d16_hi" if (i & 1) else "ds_write_b16"
            a(f"  {op} {v(O+i)}, {v(A + i//2)} offset:{P1_REC-2}")
    stamp(a, 252, 44)
    a(f"  s_cmp_lg_u32 s{sW}, 0\n  s_cbranch_scc1 L_polled_a")
    wait_for(("lda", 0))
    a(cda)
    a("  s_cbranch_vccz L_polled_a\n  s_branch L_wait_a")
    a.label("L_nochunk1")
    a("  s_waitcnt vmcnt(0)")
    a(arrive)
    a(ada)
    a(f"  s_cmp_lg_u32 s{sW}, 0\n  s_cbranch_scc1 L_polled_a")
    a.label("L_wait_a")
    poll("a", lda, cda, 64)
    a(f"""
  s_lshl_b32 s{sX}, s{sW}, 16
  v_and_b32 {v(RK[0])}, 63, v0
  v_lshl_add_u32 {v(RK[0])}, {v(RK[0])}, 4, s{sX}
  s_and_b32 s{sCin}, s2, 7
  s_lshl_b32 s{sCin}, s{sCin}, 10""")
    FP = Da
    def flag_load(dst, off): return f"  buffer_load_dwordx4 {v(dst,4)}, {v(off)}, {s(sFLG,4)}, s{sCin if dst == FP else sX} offen sc1"
    def flag_cond(dst, stage): return f"""
  v_min3_u32 {v(dst)}, {v(dst)}, {v(dst+1)}, {v(dst+2)}
  v_min_u32 {v(dst)}, {v(dst)}, {v(dst+3)}
  v_cmp_gt_u32 vcc, {stage}, {v(dst)}"""
    a(f"""
  s_lshl_b32 s{sX}, s{sJ}, 5
  s_add_u32 s{sX}, s{sX}, {TABOFF}""")
    srd(a, sTAB, sWS, sWS+1, f"s{sX}", (NCH - 1) * 8192 + 32)

    def state_update():
        a(f"""
  v_sub_u32 {v(rem)}, {v(rem)}, {v(rtot)}
  v_lshrrev_b32 {v(T)}, 16, {v(Q)}
  v_and_b32 {v(T+1)}, 0xffff, {v(Q)}
  v_min_u32 {v(vR0)}, 32, {v(nA)}
  v_cmp_ge_u32 vcc, 32, {v(nA)}
  v_sub_u32 {v(T+2)}, 32, {v(vR0)}
  v_add_u32 {v(vB6)}, {v(cb)}, {v(T+1)}
  v_min_u32 {v(T+2)}, {v(T)}, {v(T+2)}
  v_mul_u32_u24 {v(vB6)}, 6, {v(vB6)}
  v_add_u32 {v(rtot)}, {v(vR0)}, {v(T+2)}
  v_mad_i32_i24 {v(vB6)}, {v(vR0)}, -6, {v(vB6)}
  v_lshlrev_b32 {v(vRT4)}, 2, {v(rtot)}
  v_add_u32 {v(vA6)}, {v(cb)}, {v(sA)}
  v_mul_u32_u24 {v(vA6)}, 6, {v(vA6)}""")
    def state_update2():
        a(f"""
  v_add_u32 {v(sA)}, 32, {v(sA)}
  v_subrev_u32 {v(nA)}, 32, {v(nA)}
  v_add_u32 {v(T+1)}, {v(T+1)}, {v(T+2)}
  v_sub_u32 {v(T)}, {v(T)}, {v(T+2)}
  v_cndmask_b32 {v(sA)}, {v(sA)}, {v(T+1)}, vcc
  v_cndmask_b32 {v(nA)}, {v(nA)}, {v(T)}, vcc""")
        for i in range(K - 1):
            a(f"  v_cndmask_b32 {v(Q+i)}, {v(Q+i)}, {v(Q+i+1)}, vcc")
        a(f"  v_cndmask_b32 {v(Q+K-1)}, {v(Q+K-1)}, {v(vZ)}, vcc")
    def set_flag(tag):
        a(f"""
  v_cmp_lt_u32 vcc, 0, {v(rem)}
  s_cbranch_vccz L_noflag_{tag}
  ds_write_b32 {v(vCtlN)}, {v(vOne)} offset:4""")
        a.label(f"L_noflag_{tag}")

    bc = lambda u: f"row_newbcast:{u} row_mask:0xf bank_mask:0xf"
    def rec_load(u, t0):
        a(f"""
  v_sub_co_u32_dpp {v(t0)}, vcc, {v(vR0)}, {v(vI1)} {bc(u)}
  v_add_u32_dpp {v(t0)}, {v(vA6)}, {v(vI6)} {bc(u)}
  v_add_u32_dpp {v(t0+1)}, {v(vB6)}, {v(vI6)} {bc(u)}
  v_cndmask_b32 {v(t0)}, {v(t0)}, {v(t0+1)}, vcc
  v_sub_u32_dpp {v(t0+1)}, {v(vRT4)}, {v(vI4)} {bc(u)}
  v_bfi_b32 {v(t0)}, {v(vMsk)}, {v(t0)}, {v(t0+1)}
  buffer_load_dwordx2 {v(REC[u],2)}, {v(t0)}, {s(sREC,4)}, 0 offen{RPOL}""")

    def ins1(u, thr, ta, rk, mk):
        a(f"""
  v_min_i32 {v(ta)}, {v(REC[u])}, {v(REC[u]+1)}
  v_cmp_gt_i32 {s(mk,2)}, {thr}, {v(ta)}
  v_bfe_u32 {v(ta)}, {v(ta)}, 23, 8
  v_mad_u32_u24 {v(ta)}, {v(ta)}, {v(v264)}, s{sIns}
  s_mov_b64 exec, {s(mk,2)}
  ds_add_rtn_u32 {v(rk)}, {v(ta)}, {v(vOne)}
  s_mov_b64 exec, -1""")

    def ins2(u, tag, ta, rk, mk, tmp=None, addr=True):
        lab = f"{tag}_{u}"
        a(f"  s_mov_b64 exec, {s(mk,2)}\n  v_cmp_lt_u32 vcc, 31, {v(rk)}")
        if addr: a(f"  v_lshl_add_u32 {v(ta)}, {v(rk)}, 3, {v(ta)}")
        a(f"  s_cbranch_vccnz L_rare_{lab}")
        a.label(f"L_back_{lab}")
        a(f"""
  ds_write_b64 {v(ta)}, {v(REC[u],2)} offset:8
  s_mov_b64 exec, -1""")
        rare.append((lab, u, rk if tmp is None else tmp, mk))

    a(f"""
  v_add_u32 {v(PT+2)}, {P1_REC}, {v(vL16)}
  v_add_u32 {v(PT+3)}, {P1_REC + 8*8192}, {v(vL16)}
  v_add_u32 {v(PT+4)}, {P1_REC + 16*8192}, {v(vL16)}
  s_mov_b32 s{sSo}, 0
  s_waitcnt lgkmcnt(0)
  s_barrier""")
    stamp(a, 252, 45)
    NS = 19
    sdt = lambda r: (20 + r) % 25 if r < 8 else r + 1
    SD = lambda r: ACC[sdt(r)]
    gv = []
    def gwait(x, extra=""): a(f"  s_waitcnt vmcnt({len(gv) - 1 - gv.index(x)}){extra}")
    a(f"  ds_read2st64_b32 {v(PT+6,2)}, {v(vZ)} offset0:4 offset1:8")
    def rd(r): a(f"  ds_read_b128 {v(SD(r),4)}, {v(PT+2 + r//8)} offset:{(r%8)*8192}")
    def st(r, lst=None):
        a(f"  buffer_store_dwordx4 {v(SD(r),4)}, {v(vL16)}, {s(sRW,4)}, s{sSo} offen sc1\n  s_add_u32 s{sSo}, s{sSo}, 8192")
        if lst is not None: lst.append(("st", r))
    zero_acc = lambda t: a(f"  v_mov_b64 {v(ACC[t],2)}, 0\n  v_mov_b64 {v(ACC[t]+2,2)}, 0")
    def flag_store(val):
        a(f"  v_mov_b32 {v(vDum)}, {val}\n  buffer_store_dword {v(vDum)}, {v(vFlg)}, {s(sFLG,4)}, 0 offen sc1")
        gv.append(("flg", val))
    NB, N1, N3, NB2 = OPT["nb"], OPT["n1"], OPT["n3"], OPT["nb2"]
    assert NB <= NB2 <= 8
    a(flag_load(FP, RK[0])); gv.append(("fl", 1))
    a(f"  global_load_ushort {v(T+9)}, {v(vWo)}, s[66:67]"); gv.append(("w", 0))
    for r in range(8): rd(r)
    for r in range(NB):
        a(f"  s_waitcnt lgkmcnt({7 - r})")
        st(r, gv)
    for r in range(8, NS): rd(r)
    a(f"""
  v_readfirstlane_b32 s{sY}, {v(PT+6)}
  v_readfirstlane_b32 s{sX}, {v(PT+7)}
  s_waitcnt lgkmcnt(0)
  s_cmp_gt_u32 s{sY}, {NB*8192 // 6 - 2}
  s_cbranch_scc1 L_allfirst
  s_cmp_gt_u32 s{sX}, {NB2*8192 // 6 - 2}
  s_cbranch_scc1 L_allfirst""")
    a.label("L_allfirst_back")
    nxt = NB + N1
    for r in range(NB, nxt): st(r, gv)
    a(f"""
  s_mul_i32 s{sFl}, s{sJ}, {2*CARLIST}
  s_add_u32 s{sFl}, s{sFl}, {CAROFF}""")
    srd(a, sREC, sWS, sWS+1, None, NCH * CH * 6)
    srd(a, sM, 48, 49, None, E * 32)
    srd(a, sCAR, sWS, sWS+1, f"s{sFl}", 2 * CARLIST)
    srd(a, sDIST, 54, 55, None, E * 2)
    a(f"""
  s_mul_i32 s{sEb}, s{sJ}, {EB}
  s_mul_i32 s{sX}, s{sW}, 200
  s_add_u32 s{sFl}, s{sEb}, {EB}
  s_add_u32 s{sEb}, s{sEb}, s{sX}
  s_add_u32 s{sX}, s{sEb}, 200
  s_min_u32 s{sX}, s{sX}, s{sFl}
  s_min_u32 s{sX}, s{sX}, {E}
  s_lshl_b32 s{sX}, s{sX}, 5""")
    srd(a, sOUT, 70, 71, None, f"s{sX}")
    srd(a, sMW, 48, 49, None, f"s{sX}")
    a(f"""
  s_lshl_b32 s{sEb}, s{sEb}, 5
  s_add_u32 s{sEb2}, s{sEb}, 4096""")
    for q in range(D):
        a(f"  v_mov_b64 {v(RING[q],2)}, 0\n  v_mov_b64 {v(RING[q]+2,2)}, 0")
    for t in list(range(3, 9)) + [sdt(r) for r in range(NB)]: zero_acc(t)
    gwait(("st", NB - 1))
    a(f"  s_cmp_lg_u32 s{sW}, 0\n  s_cbranch_scc1 L_polled_t")
    a(flag_cond(FP, 1))
    a("  s_cbranch_vccz L_polled_t")
    poll("t", flag_load(FP, RK[0]), flag_cond(FP, 1), OPT["napt"])
    a("  s_barrier")
    stamp(a, 252, 46)
    flag_store(2 if NB < NB2 else 3)
    a(f"""
  buffer_load_dwordx4 {v(Q,4)}, {v(vTab)}, {s(sTAB,4)}, 0 offen sc1
  buffer_load_dwordx2 {v(Q+4,2)}, {v(vTab)}, {s(sTAB,4)}, 0 offen offset:16 sc1""")
    gv.extend([("tab", 0), ("tab", 1)])
    nx2 = min(NS, max(NB2, nxt + OPT["n2"]))
    for r in range(nxt, min(nxt + 2, nx2)): st(r, gv)
    a(f"""
  v_min_u32 {v(T+6)}, 399, v0
  v_mul_u32_u24 {v(T+6)}, {v(T+6)}, {v(v264)}
  ds_write_b32 {v(T+6)}, {v(vZ)}
  v_and_b32 {v(T+6)}, 15, v0
  v_lshl_add_u32 {v(T+6)}, {v(T+6)}, 2, {v(vCtlN)}
  ds_write_b32 {v(T+6)}, {v(vZ)}
  ds_write_b128 {v(vSrd)}, {v(RING[0],4)}
  v_and_b32 {v(T+6)}, 63, v0
  v_lshlrev_b32 {v(TA[0])}, 4, {v(T+6)}
  v_add_u32 {v(TA[0])}, {RB_OFF}, {v(TA[0])}
  s_lshl_b32 s{sX}, s{sW}, 1
  v_add_u32 {v(T+8)}, s{sX}, {v(TA[0])}
  ds_write_b16 {v(T+8)}, {v(T+9)}""")
    mid = min(nxt + 2 + OPT["n2a"], nx2)
    for r in range(min(nxt + 2, nx2), mid): st(r, gv)
    for q in range(D): a(f"  v_mov_b32 {v(SA[q])}, {v(vSst)}")
    gwait(("tab", 1))
    a(f"  v_lshrrev_b32 {v(rem)}, 16, {v(Q)}")
    for i in range(1, K):
        a(f"  v_lshrrev_b32 {v(T+4)}, 16, {v(Q+i)}\n  v_add_u32 {v(rem)}, {v(rem)}, {v(T+4)}")
    state_update()
    for u in range(0, 16, 2):
        a(f"""
  v_add_u32_dpp {v(REC[u])}, {v(vB6)}, {v(vI6)} {bc(u)}
  v_sub_u32_dpp {v(REC[u]+1)}, {v(vRT4)}, {v(vI4)} {bc(u)}
  v_add_u32_dpp {v(REC[u+1])}, {v(vB6)}, {v(vI6)} {bc(u+1)}
  v_sub_u32_dpp {v(REC[u+1]+1)}, {v(vRT4)}, {v(vI4)} {bc(u+1)}
  v_bfi_b32 {v(REC[u])}, {v(vMsk)}, {v(REC[u])}, {v(REC[u]+1)}
  v_bfi_b32 {v(REC[u+1])}, {v(vMsk)}, {v(REC[u+1])}, {v(REC[u+1]+1)}""")
        if mid < nx2:
            st(mid, gv); mid += 1
    for r in range(mid, nx2): st(r, gv)
    state_update2()
    state_update()
    state_update2()
    for r in range(NB, nx2): zero_acc(sdt(r))
    stamp(a, 252, 47)
    a(f"  s_cmp_lg_u32 s{sW}, 0\n  s_cbranch_scc1 L_polled_b")
    poll("b", flag_load(FP, RK[0]), flag_cond(FP, 2), OPT["nap"])
    gwait(("st", NB2 - 1), " lgkmcnt(0)")
    a("  s_barrier")
    stamp(a, 252, 1)
    for u in range(16):
        a(f"  buffer_load_dwordx2 {v(REC[u],2)}, {v(REC[u])}, {s(sREC,4)}, 0 offen{RPOL}")
        gv.append(("rec", u))
        if u == 1 and NB < NB2: flag_store(3)
    a(f"  ds_read_b128 {v(Wb,4)}, {v(TA[0])}")
    NG = min(NS, nx2 + N3)
    for r in range(nx2, NG): st(r, gv)
    stamp(a, 252, 12)
    set_flag("pro")
    for q in range(D): a(f"  v_mov_b32 {v(CC[q])}, 0")
    for r in range(nx2, NG): zero_acc(sdt(r))
    a(f"  v_bfe_u32 {v(T)}, v0, 4, 1\n  v_cmp_eq_u32 vcc, 1, {v(T)}\n  s_waitcnt lgkmcnt(0)\n  s_nop 0")
    for r in range(4):
        a(f"  v_cndmask_b32 {v(Wa+r)}, {v(Wb+r)}, {v(vZ)}, vcc")
        a(f"  v_cndmask_b32 {v(Wb+r)}, {v(vZ)}, {v(Wb+r)}, vcc")
    stamp(a, 252, 13)
    PTA = lambda u: Da + u
    PRK = lambda u: RING[0] + u
    PMK = lambda u: sPM + 2 * (u % 8)
    slowg = []
    def pro_ins1(g):
        us = range(4*g, 4*g+4)
        gwait(("rec", 4*g+3))
        for u in us: a(f"  v_min_i32 {v(PTA(u))}, {v(REC[u])}, {v(REC[u]+1)}")
        for u in us: a(f"  v_cmp_gt_i32 {s(PMK(u),2)}, 0, {v(PTA(u))}")
        for u in us: a(f"  v_bfe_u32 {v(PTA(u))}, {v(PTA(u))}, 23, 8")
        for u in us: a(f"  v_mul_u32_u24 {v(PTA(u))}, {v(PTA(u))}, {v(v264)}")
        for u in us: a(f"  s_mov_b64 exec, {s(PMK(u),2)}\n  ds_add_rtn_u32 {v(PRK(u))}, {v(PTA(u))}, {v(vOne)}")
        a("  s_mov_b64 exec, -1")
    def pro_ins2(g):
        us = list(range(4*g, 4*g+4))
        a(f"""
  v_max3_u32 {v(T)}, {v(PRK(us[0]))}, {v(PRK(us[1]))}, {v(PRK(us[2]))}
  v_max_u32 {v(T)}, {v(T)}, {v(PRK(us[3]))}
  v_cmp_lt_u32 vcc, 31, {v(T)}
  s_cbranch_vccz L_pfast_{g}
  v_cmp_lt_u32 vcc, 63, {v(T)}
  s_cbranch_vccnz L_pslow_{g}""")
        a.label(f"L_pback_{g}")
        for x, u in enumerate(us): a(f"  v_subrev_u32 {v(T+4+x)}, 31, {v(PRK(u))}")
        for x, u in enumerate(us): a(f"  s_mov_b64 exec, {s(PMK(u),2)}\n  ds_max_i32 {v(PTA(u))}, {v(T+4+x)} offset:{BUFSZ}")
        a(f"  s_mov_b64 exec, -1\n  ds_write_b32 {v(vCtlN)}, {v(vOne)} offset:4")
        for x, u in enumerate(us): a(f"  v_lshrrev_b32 {v(T+4+x)}, 5, {v(PRK(u))}")
        for x, u in enumerate(us): a(f"  v_mad_u32_u24 {v(PTA(u))}, {v(T+4+x)}, s{sThr}, {v(PTA(u))}")
        a.label(f"L_pfast_{g}")
        for u in us: a(f"  v_lshl_add_u32 {v(PTA(u))}, {v(PRK(u))}, 3, {v(PTA(u))}")
        for u in us: a(f"  s_mov_b64 exec, {s(PMK(u),2)}\n  ds_write_b64 {v(PTA(u))}, {v(REC[u],2)} offset:8")
        a("  s_mov_b64 exec, -1")
        slowg.append(g)
    a(f"  s_mov_b32 s{sThr}, {BUFSZ - 256}")
    pro_ins1(0)
    stamp(a, 252, 3)
    pro_ins1(1)
    a("  s_waitcnt lgkmcnt(0)")
    pro_ins2(0); pro_ins1(2); pro_ins2(1); pro_ins1(3)
    F3 = RP[0]
    assert RP[1] == RP[0] + 2
    ld3 = f"  buffer_load_dwordx4 {v(F3,4)}, {v(RK[0])}, {s(sFLG,4)}, s{sCin} offen sc1"
    if NB < NB2:
        a(f"  s_cmp_lg_u32 s{sW}, 0\n  s_cbranch_scc1 L_nold3")
        a(ld3)
        a.label("L_nold3")
    stamp(a, 252, 8)
    a("  s_waitcnt lgkmcnt(0)")
    pro_ins2(2); pro_ins2(3)
    stamp(a, 252, 11)
    if NB < NB2:
        a(f"  s_cmp_lg_u32 s{sW}, 0\n  s_cbranch_scc1 L_turn2\n  s_waitcnt vmcnt(0)")
        a(flag_cond(F3, 3))
        a("  s_cbranch_vccz L_turn2")
        poll("k1", ld3, flag_cond(F3, 3), OPT["nap"])
    a("  s_branch L_turn2")
    def signal_all(tag, n):
        a(f"""
  v_mov_b32 {v(T+4)}, {CTL + 32}
  s_waitcnt vmcnt({n})
  s_mov_b64 exec, 1
  ds_add_rtn_u32 {v(T+5)}, {v(T+4)}, {v(vOne)}
  s_mov_b64 exec, -1
  v_and_b32 {v(T+6)}, 63, v0
  s_lshl_b32 s{sX}, s2, 2
  v_lshl_add_u32 {v(T+6)}, {v(T+6)}, 10, s{sX}
  v_mov_b32 {v(T+7)}, 4
  s_waitcnt lgkmcnt(0)
  v_readfirstlane_b32 s{sX}, {v(T+5)}
  s_cmp_lg_u32 s{sX}, 7
  s_cbranch_scc1 L_nosig_{tag}
  buffer_store_dword {v(T+7)}, {v(T+6)}, {s(sFLG,4)}, 0 offen sc1""")
        a.label(f"L_nosig_{tag}")

    INS0 = OPT["ins0"]
    def cstage_head(q):
        if OPT["abl_s"]: return
        a(f"""
  ds_write_b16 {v(SA[q])}, {v(CC[q])}
  ds_read_b128 {v(Sf,4)}, {v(vSrd)}
  ds_write_b16 {v(SA[q])}, {v(vZ)}""")
    def cstage_m1(q):
        if OPT["abl_mfma"]: return
        a(f"""
  v_mfma_f32_16x16x32_bf16 {v(Da,4)}, {v(RING[q],4)}, {v(Wa,4)}, 0
  v_mfma_f32_16x16x32_bf16 {v(Db,4)}, {v(RING[q],4)}, {v(Wb,4)}, 0""")
    def cstage_cvt():
        if OPT["abl_mfma"]: return
        a(f"""
  v_cvt_pk_bf16_f32 {v(P)}, {v(Da)}, {v(Da+1)}
  v_cvt_pk_bf16_f32 {v(P+1)}, {v(Da+2)}, {v(Da+3)}
  v_cvt_pk_bf16_f32 {v(P+2)}, {v(Db)}, {v(Db+1)}
  v_cvt_pk_bf16_f32 {v(P+3)}, {v(Db+2)}, {v(Db+3)}""")
    def cstage_m2(tc):
        if OPT["abl_mfma"]: return
        a(f"  v_mfma_f32_16x16x32_bf16 {v(ACC[tc],4)}, {v(P,4)}, {v(Sf,4)}, {v(ACC[tc],4)}")
    def step_top(t):
        a(f"  ; ---- step {t}")
        a("  s_waitcnt lgkmcnt(0)")
        cstage_head(t % D)
        if t < NT - 1:
            a(f"  ds_read_b64 {v(RP[(t+1)&1],2)}, {v(vRd)} offset:{(t+1)*TS+8}")
            a(f"  v_readlane_b32 s{sCnt[(t+1)&1]}, {v(vCnt)}, {t+1}")
    def step_main(t, n):
        q = t % D; tc = (t - D) % NT
        rp = RP[t & 1]
        a(f"  s_waitcnt vmcnt({n})")
        cstage_m1(q)
        w, off, af, e = T, T + 1, T + 2, T + 3
        a(f"""
  v_min_i32 {v(w)}, {v(rp)}, {v(rp+1)}
  v_cmp_gt_i32 vcc, 0, {v(rp)}
  v_and_b32 {v(off)}, 0x7ffff, {v(w)}
  v_lshl_add_u32 {v(off)}, {v(off)}, 5, {v(vHalf)}
  v_cndmask_b32_sdwa {v(af)}, {v(rp)}, {v(rp+1)}, vcc dst_sel:WORD_1 dst_unused:UNUSED_PAD src0_sel:WORD_1 src1_sel:WORD_0
  v_cmp_gt_u32 vcc, s{sCnt[t&1]}, {v(vSlot)}
  v_bfe_u32 {v(e)}, {v(w)}, 20, 3
  v_mul_f32 {v(af)}, {v(af)}, {v(vFreq)}
  v_cndmask_b32 {v(off)}, {v(vOOB)}, {v(off)}, vcc
  buffer_load_dwordx4 {v(RING[q],4)}, {v(vOOB if OPT["abl_g"] else off)}, {s(sM,4)}, 0 offen""")
        cstage_cvt()
        a(f"""
  v_cndmask_b32 {v(af)}, {v(vZ)}, {v(af)}, vcc
  v_cvt_pk_bf16_f32 {v(af)}, 0, {v(af)}
  s_waitcnt lgkmcnt({2 if t < NT-1 else 1})""")
        cstage_m2(tc)
        if not OPT["abl_cos"]: a(f"""
  v_mul_f32 {v(af)}, 0.15915494, {v(af)}
  v_fract_f32 {v(af)}, {v(af)}
  v_cos_f32 {v(af)}, {v(af)}
  v_lshl_add_u32 {v(SA[q])}, {v(e)}, 4, {v(vSst)}
  v_cvt_pk_bf16_f32 {v(CC[q])}, {v(af)}, {v(af)}""")

    order = []
    for t in range(NT):
        if t == 0: order.append(("car", 16))
        u2 = t - INS0 - 1
        if 0 <= u2 < 16: order.append(("rec", u2))
        order.append(("W", t))
        order.append(("g", t))
    tail = [x for x in order[order.index(("g", NT - D)):] if x[0] != "W"]
    assert tail == [("g", t) for t in range(NT - D, NT)], tail
    def younger(target, at):
        n = len(order); i = order.index(target); cnt = 0
        j = (i + 1) % n
        while j != at:
            if order[j][0] != "W": cnt += 1
            j = (j + 1) % n
        return cnt
    first = []
    for x in order:
        if x[0] == "W" and x[1] < 4: first += [("f", 4 * x[1] + i) for i in range(4)]
        first.append(x)
    def younger_first(u, t):
        i = first.index(("f", u)); j = first.index(("W", t))
        return sum(1 for x in first[i+1:j] if x[0] != "W")
    RBH = 1
    def prio(tag, mask, t):
        cur = mask >> t & 1; prev = (mask >> (t - 1) & 1) if t else 0
        if cur and not prev:
            a(f"  s_cmp_lt_u32 s{sW}, 4\n  s_cbranch_scc1 L_{tag}prio{t}\n  s_setprio 1")
            a.label(f"L_{tag}prio{t}")
        if prev and not cur: a("  s_setprio 0")
    assert not OPT["lprio"] >> (NT - 1)
    def step0_extra():
        a(f"""
  v_cmp_gt_u32 vcc, s{sCin}, {v(vCarIdx)}
  s_add_u32 s{sX}, s{sIt}, 2
  s_and_b32 s{sX}, s{sX}, 3
  s_lshl_b32 s{sX}, s{sX}, 3
  s_add_u32 s{sX}, s{sX}, {CTL}
  v_mov_b32 {v(T+1)}, s{sX}
  ds_write_b64 {v(T+1)}, {v(vZ,2)}
  ds_write_b32 {v(vCntA)}, {v(vZ)}
  v_cndmask_b32 {v(T)}, {v(vOOB)}, {v(vCarOff)}, vcc
  buffer_load_dwordx2 {v(REC[16],2)}, {v(T)}, {s(sCAR,4)}, s{sCarR} offen sc1""")
    def state_step(tag):
        a(f"  s_cmp_lg_u32 s{sThr}, 0\n  s_cbranch_scc1 L_nostate_{tag}")
        if tag == "b0":
            QL = Q + K - 3
            a(f"""
  v_lshrrev_b32 {v(T)}, 16, {v(QL)}
  v_cmp_eq_u32 vcc, 0, {v(nA)}
  v_subrev_u32 {v(T+1)}, {OPT['lim']}, {v(T)}
  v_and_b32 {v(T+2)}, 0xffff, {v(QL)}
  v_max_i32 {v(T+1)}, 0, {v(T+1)}
  v_cndmask_b32 {v(T+1)}, {v(vZ)}, {v(T+1)}, vcc
  v_add_u32 {v(T+2)}, {v(T+2)}, {v(T)}
  v_sub_u32 {v(T+2)}, {v(T+2)}, {v(T+1)}
  v_cndmask_b32 {v(sA)}, {v(sA)}, {v(T+2)}, vcc
  v_add_u32 {v(nA)}, {v(nA)}, {v(T+1)}
  v_lshlrev_b32 {v(T+1)}, 16, {v(T+1)}
  v_sub_u32 {v(QL)}, {v(QL)}, {v(T+1)}""")
        state_update(); state_update2()
        a.label(f"L_nostate_{tag}")
        set_flag(tag)
    a(".p2align 6")
    a.label("L_body0")
    lo = []
    lw = lambda x: len(lo) - 1 - lo.index(x)
    ST0, STP = OPT["st0"], OPT["stp"]
    late = list(range(NG, NS))
    tsig = None
    FC = WS0
    for t in range(NT):
        step_top(t)
        prio("b0", OPT["lprio"], t)
        if t == 0:
            step0_extra(); lo.append(("rec", 16))
        if t < 4:
            for u in range(4*t, 4*t+4):
                rec_load(u, T + 4 + 2 * (u & 1)); lo.append(("rec", u))
        if t == INS0: state_step("b0")
        zs = []
        if t >= ST0:
            for _ in range(STP):
                if late:
                    r = late.pop(0); st(r, lo); zs.append(r)
                    assert sdt(r) + D > t
                    if not late: tsig = t + D + 1
        u1 = t - INS0; u2 = u1 - 1
        if 0 <= u2 < 17: ins2(u2, "b0", TA[u2 & 1], RK[u2 & 1], sMk[u2 & 1])
        if 0 <= u1 < 17:
            a(f"  s_waitcnt vmcnt({lw(('rec', u1))})")
            ins1(u1, f"s{sThr}" if u1 < 16 else "0", TA[u1 & 1], RK[u1 & 1], sMk[u1 & 1])
        else: a("  s_nop 0")
        for r in zs: zero_acc(sdt(r))
        if t == tsig or (NG == NS and t == 2):
            signal_all("b0", lw(("st", NS - 1)) if NG < NS else len(lo))
        if t == INS0 + 18:
            a(f"  s_cmp_gt_u32 s{sCin}, 512\n  s_cbranch_scc1 L_slow_b0")
            a.label("L_slow_back_b0")
        if t == NT - 3:
            a(f"""
  s_cmp_lg_u32 s{sW}, 0
  s_cbranch_scc1 L_noldc
  v_lshlrev_b32 {v(WR)}, 4, v0
  s_and_b32 s{sX}, s2, 7
  s_lshl_b32 s{sX}, s{sX}, 10""")
            a(flag_load(FC, WR))
            a.label("L_noldc")
        step_main(t, lw(("g", t - D)) if t >= D else 62)
        lo.append(("g", t))
    assert not late and (tsig is None or tsig < NT - 3)
    a(f"""
  s_waitcnt vmcnt(3)
  s_cmp_lg_u32 s{sW}, 0
  s_cbranch_scc1 L_turn2""")
    assert NT - (INS0 + 17) >= 3
    a(flag_cond(FC, 4))
    a(f"""
  s_cbranch_vccz L_turn2
  s_and_b32 s{sX}, s2, 7
  s_lshl_b32 s{sX}, s{sX}, 10""")
    poll("c", flag_load(FC, WR), flag_cond(FC, 4), OPT["nap"])
    a("  s_branch L_turn2")

    a(".p2align 6")
    a.label("L_loop")
    for t in range(NT):
        step_top(t)
        if t == 0: step0_extra()
        prio("lp", OPT["lprio"], t)
        if t < 4:
            a(f"  s_cmp_eq_u32 s{sIt}, 1\n  s_cbranch_scc1 L_first_{t}")
            a.label(f"L_first_back_{t}")
        if t == INS0: state_step("lp")
        u1 = t - INS0; u2 = u1 - 1
        if 0 <= u2 < 17:
            ins2(u2, "lp", TA[u2 & 1], RK[u2 & 1], sMk[u2 & 1])
            if u2 < 16: rec_load(u2, T + 4)
        if 0 <= u1 < 17:
            pos = order.index(("W", t))
            if u1 < 16: n = min(younger(("rec", u1), pos), younger_first(u1, t))
            else: n = younger(("car", 16), pos)
            a(f"  s_waitcnt vmcnt({min(n, 62)})")
            ins1(u1, f"s{sThr}" if u1 < 16 else "0", TA[u1 & 1], RK[u1 & 1], sMk[u1 & 1])
        if t == INS0 + 18:
            a(f"  s_cmp_gt_u32 s{sCin}, 512\n  s_cbranch_scc1 L_slow_lp")
            a.label("L_slow_back_lp")
        if t == RBH:
            a(f"  s_cmp_eq_u32 s{sRb}, s{sIt}\n  s_cbranch_scc1 L_rbf")
            a.label("L_rbf_back1")
        step_main(t, younger(("g", (t - D) % NT), order.index(("W", t))))
    assert INS0 >= 4 and RBH < NT
    a(f"  s_waitcnt vmcnt({NT - (INS0 + 17)})")
    a.label("L_turn2")
    a(f"""
  v_mov_b32 {v(T)}, {v(vCtlN)}
  s_add_u32 s{sIt}, s{sIt}, 1
  s_add_u32 s{sX}, s{sIt}, 1
  s_and_b32 s{sX}, s{sX}, 3
  s_lshl_b32 s{sX}, s{sX}, 3
  s_add_u32 s{sX}, s{sX}, {CTL}
  v_mov_b32 {v(vCtlN)}, s{sX}
  s_sub_u32 s{sX}, s{sIns}, {BUFSZ}
  s_add_u32 s{sX}, s{sX}, s{sIns}
  v_add_u32 {v(vRd)}, s{sX}, {v(vRd)}
  v_add_u32 {v(vCntA)}, s{sX}, {v(vCntA)}
  s_sub_u32 s{sIns}, {BUFSZ}, s{sIns}
  s_mov_b32 s{sCarR}, s{sCarW}
  s_sub_u32 s{sCarW}, {CARLIST}, s{sCarW}
  s_waitcnt lgkmcnt(0)""")
    if OPT["stamp"] == 1:
        a(f"  s_lshl_b32 s90, s{sIt}, 1\n  s_add_u32 s90, s90, 16\n  s_min_u32 m0, s90, 36")
        stamp(a, 252, "m0")
        a("  s_add_u32 m0, m0, 1")
    a("  s_barrier")
    stamp(a, 252, "m0")
    a(f"""
  ds_read_b64 {v(T+2,2)}, {v(T)}
  ds_read_b32 {v(vCnt)}, {v(vCntA)}
  ds_read_b64 {v(RP[0],2)}, {v(vRd)} offset:8
  s_waitcnt lgkmcnt(1)
  v_readfirstlane_b32 s{sCin}, {v(T+2)}
  v_readfirstlane_b32 s{sFl}, {v(T+3)}
  v_readlane_b32 s{sCnt[0]}, {v(vCnt)}, 0
  s_cmp_gt_u32 s{sCin}, 512
  s_cselect_b32 s{sThr}, 0x80000000, 0
  s_min_u32 s{sCin}, s{sCin}, {CARCAP}
  s_cmp_gt_u32 s{sCin}, 32
  s_cselect_b32 s{sFl}, 1, s{sFl}
  s_cmp_lt_u32 s{sIt}, {OPT['itcap']}
  s_cselect_b32 s{sFl}, s{sFl}, 0
  s_cmp_eq_u32 s{sIt}, 0
  s_cbranch_scc1 L_it0
  s_cmp_lg_u32 s{sFl}, 0
  s_cbranch_scc1 L_loop""")
    a.label("L_nosig_z")
    a(f"""
  s_cmp_ge_u32 s{sRb}, s{sIt}
  s_mov_b32 s{sRb}, -1
  s_cbranch_scc1 L_rbf""")
    a.label("L_rbf_back2")

    RBv = Q
    assert vRT4 - Q + 1 >= 14
    R0 = REC[0]
    G0, G1, RR, U = R0, R0 + 4, R0 + 8, R0 + 12
    XS0, XS1, XR, AG = R0 + 16, R0 + 18, R0 + 20, R0 + 22
    MS = [R0 + 24 + 2 * i for i in range(5)]
    vMoff, vLin, vOw, vOr = vCarOff, vI6, vI1, vI4
    a(f"""
  v_and_b32 {v(T)}, 63, v0
  s_mul_i32 s{sX}, s{sW}, 3584
  s_add_u32 s{sX}, s{sX}, {RB_OFF}
  v_lshl_add_u32 {v(T+1)}, {v(T)}, 3, s{sX}
  v_lshlrev_b32 {v(vLin)}, 4, {v(T)}
  v_bfe_u32 {v(T+2)}, v0, 4, 2
  v_and_b32 {v(T+3)}, 15, v0
  v_lshlrev_b32 {v(T+2)}, 3, {v(T+2)}
  v_lshl_add_u32 {v(vMoff)}, {v(T+3)}, 5, {v(T+2)}
  s_mul_i32 s{sX}, s{sW}, 6400
  s_add_u32 s{sX}, s{sX}, s{sIns}
  s_add_u32 s{sX}, s{sX}, 15
  s_and_b32 s{sX}, s{sX}, -16
  v_add_u32 {v(vOw)}, s{sX}, {v(vMoff)}
  v_add_u32 {v(vOr)}, s{sX}, {v(vLin)}
  v_cmp_gt_u32 {s(sT,2)}, 8, {v(T+3)}""")
    for h in range(7):
        a(f"  ds_read_b64 {v(RBv+2*h,2)}, {v(T+1)} offset:{h*512}")
    fo = [("g", t - NT) for t in range(NT - D, NT)]
    def fwait(x): return len(fo) - 1 - fo.index(x)
    def s1(p):
        b = RBv + (p & ~1)
        w0, w1 = (WS0, WS1) if p % 2 == 0 else (XS0, XS1)
        a(f"""
  v_mfma_f32_16x16x16_bf16 {v(G0,4)}, {v(w0,2)}, {v(b,2)}, 0
  v_mfma_f32_16x16x16_bf16 {v(G1,4)}, {v(w1,2)}, {v(b,2)}, 0""")
    def s2(p):
        t0 = ACC[2*p]; t1 = ACC[2*p+1] if 2*p+1 < NT else ACC[2*p]
        for r in range(4): a(f"  v_mul_f32 {v(U+r)}, {v(t0+r)}, {v(G0+r)}")
        for r in range(4): a(f"  v_mul_f32_dpp {v(U+r)}, {v(t1+r)}, {v(G0+r)} row_ror:8 row_mask:0xf bank_mask:0xc")
        for r in range(4): a(f"  v_fmac_f32_dpp {v(U+r)}, {v(t0+r)}, {v(G1+r)} row_ror:8 row_mask:0xf bank_mask:0x3")
        for r in range(4): a(f"  v_fmac_f32_dpp {v(U+r)}, {v(t1+r)}, {v(G1+r)} quad_perm:[0,1,2,3] row_mask:0xf bank_mask:0xc")
        a(f"""
  v_cvt_pk_bf16_f32 {v(AG)}, {v(U)}, {v(U+1)}
  v_cvt_pk_bf16_f32 {v(AG+1)}, {v(U+2)}, {v(U+3)}
  v_mfma_f32_16x16x16_bf16 {v(RR,4)}, {v(WR if p % 2 == 0 else XR,2)}, {v(RBv + (p & ~1),2)}, 0""")
        if p + 1 < 13: s1(p + 1)
        else: a("  s_nop 0")
        a(f"  v_mfma_f32_16x16x16_bf16 {v(U,4)}, {v(WUP,2)}, {v(AG,2)}, 0")
    def s3(p):
        x = ACC[2*p]; m_ = MS[p % 5]
        a(f"""
  s_waitcnt vmcnt({fwait(("m", p))})
  v_lshlrev_b32 {v(x)}, 16, {v(m_)}
  v_and_b32 {v(x+1)}, 0xffff0000, {v(m_)}
  v_lshlrev_b32 {v(x+2)}, 16, {v(m_+1)}
  v_and_b32 {v(x+3)}, 0xffff0000, {v(m_+1)}""")
        if p == 12: a("  s_nop 2")
        a(f"""
  v_pk_fma_f32 {v(x,2)}, {v(U,2)}, {v(RR,2)}, {v(x,2)}
  v_pk_fma_f32 {v(x+2,2)}, {v(U+2,2)}, {v(RR+2,2)}, {v(x+2,2)}
  v_cvt_pk_bf16_f32 {v(x)}, {v(x)}, {v(x+1)}
  v_cvt_pk_bf16_f32 {v(x+1)}, {v(x+2)}, {v(x+3)}""")
        if p == 12: a(f"  s_mov_b64 exec, {s(sT,2)}")
        a(f"  ds_write_b64 {v(vOw)}, {v(x,2)} offset:{p*512}")
        if p == 12: a(f"  s_mov_b64 exec, -1")
        if p % 2 == 1 or p == 12:
            r = p // 2
            a(f"  ds_read_b128 {v(ACC[4*r+1 if r < 6 else 23],4)}, {v(vOr)} offset:{r*1024}")
    def s4(r):
        a(f"  buffer_store_dwordx4 {v(ACC[4*r+1 if r < 6 else 23],4)}, {v(vLin)}, {s(sOUT,4)}, s{sEb if r < 4 else sEb2} offen offset:{(r%4)*1024}")
        fo.append(("st", r))
    xw = {}
    for t in range(NT + D + 2):
        if t == 6:
            a(f"  s_cmp_lg_u32 s{sCin}, 0\n  s_cbranch_scc1 L_x3")
            a.label("L_x3_back")
            xw[3] = len(fo) - xw[2]
        if t < NT + D: step_top(t)
        else: a(f"  ; ---- tail {t}\n  s_waitcnt lgkmcnt(0)")
        prio("fp", OPT["fprio"], t)
        if t in (0, 3):
            n = 1 if t == 0 else 2
            a(f"  s_cmp_lg_u32 s{sCin}, 0\n  s_cbranch_scc1 L_x{n}")
            a.label(f"L_x{n}_back")
            xw[n] = len(fo)
        if t == NT: stamp(a, 252, 4)
        if t == NT + D: stamp(a, 252, 5)
        if t == 1:
            a(f"""
  v_mov_b32 {v(XS0)}, 0
  v_mov_b32 {v(XS0+1)}, {v(WS0)}
  v_mov_b32 {v(XS1)}, 0
  v_mov_b32 {v(XS1+1)}, {v(WS1)}
  v_mov_b32 {v(XR)}, 0
  v_mov_b32 {v(XR+1)}, {v(WR)}""")
        if t == 5: s1(0)
        ts2 = {2*p+7 if p < 12 else 30: p for p in range(13)}
        if t - 2 in ts2 and (ts2[t-2] % 2 == 1): s4(ts2[t-2] // 2)
        if t - 1 in ts2: s3(ts2[t-1])
        if t in ts2: s2(ts2[t])
        if t % 2 == 1 and t // 2 < 13:
            p = t // 2
            a(f"  buffer_load_dwordx2 {v(MS[p%5],2)}, {v(vMoff)}, {s(sMW,4)}, s{sEb if p < 8 else sEb2} offen offset:{(p%8)*512}")
            fo.append(("m", p))
        if t < NT:
            step_main(t, fwait(("g", t - D)))
            fo.append(("g", t))
        elif t < NT + D:
            a(f"  s_waitcnt vmcnt({fwait(('g', t - D))})")
            cstage_m1(t % D)
            a("  s_nop 6")
            cstage_cvt()
            a("  s_waitcnt lgkmcnt(0)\n  s_nop 0")
            cstage_m2(t - D)
            a("  s_nop 3")
    a("  s_waitcnt lgkmcnt(0)")
    s4(6)
    stamp(a, 252, 6)
    if OPT["stamp"]: a("  s_waitcnt vmcnt(0)")
    stamp(a, 252, 7); stamp(a, 252, 63, "s_memrealtime")
    if OPT["stamp"] == 1: a(f"  v_writelane_b32 v252, s{sIt}, 61")
    stamp_out(a, 252, sWS, 8, STAMPOFF + 0x200000, 253)
    a.label("L_end")
    a("  s_endpgm")

    sSm, sS2 = sMk
    a.label("L_x1")
    a(f"""
  v_cmp_gt_u32 vcc, s{sCin}, {v(vSlot)}
  v_lshlrev_b32 {v(T)}, 3, {v(vSlot)}
  s_nop 0
  v_cndmask_b32 {v(T)}, {v(vOOB)}, {v(T)}, vcc
  buffer_load_dwordx2 {v(AG,2)}, {v(T)}, {s(sCAR,4)}, s{sCarR} offen sc1
  s_branch L_x1_back""")
    a.label("L_x2")
    a(f"""
  s_mul_i32 s{sX}, s{sW}, {NT}
  s_waitcnt vmcnt({xw[2] - xw[1]})
  v_min_i32 {v(U)}, {v(AG)}, {v(AG+1)}
  v_cmp_gt_i32 vcc, 0, {v(AG)}
  v_bfe_u32 {v(U+2)}, {v(U)}, 23, 8
  v_subrev_u32 {v(U+2)}, s{sX}, {v(U+2)}
  v_cndmask_b32_sdwa {v(U+1)}, {v(AG)}, {v(AG+1)}, vcc dst_sel:WORD_1 dst_unused:UNUSED_PAD src0_sel:WORD_1 src1_sel:WORD_0
  v_cmp_gt_i32 {s(sS2,2)}, 0, {v(U)}
  v_cmp_gt_u32 {s(sSm,2)}, {NT}, {v(U+2)}
  s_and_b64 vcc, {s(sSm,2)}, {s(sS2,2)}
  s_cselect_b32 s{sCin}, s{sCin}, 0
  s_cbranch_scc0 L_x2_back
  v_and_b32 {v(T)}, 0x7ffff, {v(U)}
  v_lshl_add_u32 {v(T)}, {v(T)}, 5, {v(vHalf)}
  v_mul_f32 {v(U+1)}, {v(U+1)}, {v(vFreq)}
  v_cndmask_b32 {v(T)}, {v(vOOB)}, {v(T)}, vcc
  buffer_load_dwordx4 {v(RR,4)}, {v(T)}, {s(sM,4)}, 0 offen
  v_cndmask_b32 {v(U+2)}, {v(vOOB)}, {v(U+2)}, vcc
  v_cvt_pk_bf16_f32 {v(U+1)}, 0, {v(U+1)}
  v_mul_f32 {v(U+1)}, 0.15915494, {v(U+1)}
  v_fract_f32 {v(U+1)}, {v(U+1)}
  v_cos_f32 {v(U+1)}, {v(U+1)}
  v_bfe_u32 {v(U+3)}, {v(U)}, 20, 3
  v_lshl_add_u32 {v(U+3)}, {v(U+3)}, 4, {v(vSst)}
  v_cvt_pk_bf16_f32 {v(U+1)}, {v(U+1)}, {v(U+1)}
  s_branch L_x2_back""")
    a.label("L_x3")
    a(f"""
  s_waitcnt vmcnt({xw[3]})
  v_mfma_f32_16x16x32_bf16 {v(Da,4)}, {v(RR,4)}, {v(Wa,4)}, 0
  v_mfma_f32_16x16x32_bf16 {v(Db,4)}, {v(RR,4)}, {v(Wb,4)}, 0
  s_nop 6""")
    cstage_cvt()
    for t in range(NT):
        a(f"""
  v_cmp_eq_u32 vcc, {t}, {v(U+2)}
  s_cbranch_vccz L_x3_{t}
  s_mov_b64 exec, vcc
  ds_write_b16 {v(U+3)}, {v(U+1)}
  s_mov_b64 exec, -1
  ds_read_b128 {v(Sf,4)}, {v(vSrd)}
  s_mov_b64 exec, vcc
  ds_write_b16 {v(U+3)}, {v(vZ)}
  s_mov_b64 exec, -1
  s_waitcnt lgkmcnt(0)""")
        cstage_m2(t)
        a.label(f"L_x3_{t}")
    a("  s_branch L_x3_back")
    a.label("L_it0")
    a(f"  s_cmp_lg_u32 s{sFl}, 0\n  s_cbranch_scc1 L_body0")
    for r in range(NG, NS): st(r)
    a("  s_nop 0")
    for r in range(NG, NS): zero_acc(sdt(r))
    signal_all("z0", 0)
    a("  s_branch L_nosig_z")
    for t in range(4):
        a.label(f"L_first_{t}")
        for u in range(4*t, 4*t+4): rec_load(u, T + 4 + 2 * (u & 1))
        a(f"  s_branch L_first_back_{t}")
    a.label("L_allfirst")
    a(f"  s_mov_b32 s{sY}, s{sSo}")
    for r in range(NB, NS): st(r)
    a(f"  s_mov_b32 s{sSo}, s{sY}\n  s_waitcnt vmcnt(0)\n  s_branch L_allfirst_back")
    for g in slowg:
        a.label(f"L_pslow_{g}")
        for u in range(4*g, 4*g+4):
            a(f"""
  s_mov_b64 exec, {s(PMK(u),2)}
  v_cmp_lt_u32 vcc, 63, {v(PRK(u))}
  s_cbranch_vccz L_pskip_{u}
  s_andn2_b64 {s(PMK(u),2)}, {s(PMK(u),2)}, vcc
  s_mov_b64 exec, vcc
  ds_add_rtn_u32 {v(T+1)}, {v(vCtlN)}, {v(vOne)}
  s_waitcnt lgkmcnt(0)
  v_lshlrev_b32 {v(T+1)}, 3, {v(T+1)}
  buffer_store_dwordx2 {v(REC[u],2)}, {v(T+1)}, {s(sCAR,4)}, s{sCarW} offen
  s_waitcnt vmcnt(0)""")
            a.label(f"L_pskip_{u}")
        a(f"  s_mov_b64 exec, -1\n  s_branch L_pback_{g}")
    for tag in ("b0", "lp"):
        a.label(f"L_slow_{tag}")
        a(f"  s_mov_b32 s{sX}, 512")
        a.label(f"L_slow_loop_{tag}")
        a(f"""
  v_add_u32 {v(T+1)}, s{sX}, {v(vCarIdx)}
  v_cmp_gt_u32 vcc, s{sCin}, {v(T+1)}
  v_lshlrev_b32 {v(T+1)}, 3, {v(T+1)}
  s_nop 0
  v_cndmask_b32 {v(T+1)}, {v(vOOB)}, {v(T+1)}, vcc
  buffer_load_dwordx2 {v(REC[16],2)}, {v(T+1)}, {s(sCAR,4)}, s{sCarR} offen sc1
  s_waitcnt vmcnt(0)""")
        ins1(16, "0", TA[0], RK[0], sMk[0])
        a("  s_waitcnt lgkmcnt(0)")
        ins2(16, "sl" + tag, TA[0], RK[0], sMk[0])
        a(f"""
  s_add_u32 s{sX}, s{sX}, 512
  s_cmp_lt_u32 s{sX}, s{sCin}
  s_cbranch_scc1 L_slow_loop_{tag}
  s_waitcnt vmcnt(0)
  s_branch L_slow_back_{tag}""")
    a.label("L_rbf")
    DI = [Da + p for p in range(12)] + [T + 10, T + 11]
    H = T
    assert RK[1] == T + 13
    a(f"""
  v_and_b32 {v(H+8)}, 63, v0
  s_lshr_b32 s{sX}, s{sEb}, 4
  v_lshlrev_b32 {v(H+9)}, 3, {v(H+8)}
  v_lshlrev_b32 {v(H+8)}, 2, {v(H+8)}
  s_load_dwordx4 {s(84,4)}, s[58:59], 0
  buffer_load_dwordx2 {v(H,2)}, {v(H+9)}, {s(sDIST,4)}, s{sX} offen
  global_load_dwordx2 {v(H+2,2)}, {v(H+9)}, s[64:65]
  global_load_dwordx2 {v(H+4,2)}, {v(H+9)}, s[68:69]
  global_load_dword {v(H+6)}, {v(H+8)}, s[62:63]
  s_mov_b32 s{sC10}, 0xc1200000
  s_mov_b32 s{sC10+1}, 0xc1200000
  s_mov_b32 s{sCl2}, 0x3fb8aa3b
  s_mov_b32 s{sCl2+1}, 0x3fb8aa3b
  s_mul_i32 s{sX}, s{sW}, 3584
  s_add_u32 s{sX}, s{sX}, {RB_OFF}
  v_add_u32 {v(H+9)}, s{sX}, {v(H+9)}
  v_add_u32 {v(H+8)}, s{sX}, {v(H+8)}
  v_and_b32 {v(Da)}, 15, v0
  v_bfe_u32 {v(Da+1)}, v0, 4, 2
  v_lshl_add_u32 {v(H+7)}, {v(Da)}, 1, s{sX}
  v_lshl_add_u32 {v(Da+2)}, {v(Da+1)}, 7, {v(H+7)}
  v_lshl_add_u32 {v(Da+3)}, {v(Da+1)}, 6, {v(H+7)}
  s_waitcnt lgkmcnt(0)
  v_mov_b32 {v(H+13)}, s84
  v_cmp_eq_u32 vcc, 1, {v(Da+1)}
  v_mov_b32 {v(H+12)}, s85
  v_cmp_eq_u32 {s(sT,2)}, 2, {v(Da+1)}
  v_cndmask_b32 {v(H+13)}, {v(H+13)}, {v(H+12)}, vcc
  v_mov_b32 {v(H+12)}, s86
  v_cmp_eq_u32 vcc, 3, {v(Da+1)}
  v_cndmask_b32 {v(H+13)}, {v(H+13)}, {v(H+12)}, {s(sT,2)}
  v_mov_b32 {v(H+12)}, s87
  v_cndmask_b32 {v(H+13)}, {v(H+13)}, {v(H+12)}, vcc
  v_lshlrev_b32 {v(H+12)}, 16, {v(H+13)}
  v_and_b32 {v(H+13)}, 0xffff0000, {v(H+13)}
  s_waitcnt vmcnt(0)
  ds_write_b64 {v(H+9)}, {v(H,2)}
  ds_write_b64 {v(H+9)}, {v(H+2,2)} offset:512
  ds_write_b64 {v(H+9)}, {v(H+4,2)} offset:1024
  ds_write_b32 {v(H+8)}, {v(H+6)} offset:1536
  ds_read_u16 {v(WS0)}, {v(Da+2)} offset:512
  ds_read_u16 {v(WS1)}, {v(Da+2)} offset:{512+32}
  ds_read_u16 {v(WS0+1)}, {v(Da+2)} offset:{512+64}
  ds_read_u16 {v(WS1+1)}, {v(Da+2)} offset:{512+96}
  ds_read_u16 {v(WUP)}, {v(Da+2)} offset:1024
  ds_read_u16 {v(H)}, {v(Da+2)} offset:{1024+32}
  ds_read_u16 {v(WUP+1)}, {v(Da+2)} offset:{1024+64}
  ds_read_u16 {v(H+1)}, {v(Da+2)} offset:{1024+96}
  ds_read_u16 {v(WR)}, {v(Da+3)} offset:1536
  ds_read_u16 {v(WR+1)}, {v(Da+3)} offset:{1536+32}""")
    for p in range(13):
        a(f"  ds_read_u16 {v(DI[p])}, {v(H+7)} offset:{p*32}")
    a(f"""
  s_waitcnt lgkmcnt(0)
  v_lshl_or_b32 {v(WS0)}, {v(WS0+1)}, 16, {v(WS0)}
  v_lshl_or_b32 {v(WS1)}, {v(WS1+1)}, 16, {v(WS1)}
  v_lshl_or_b32 {v(WUP)}, {v(H)}, 16, {v(WUP)}
  v_lshl_or_b32 {v(WUP+1)}, {v(H+1)}, 16, {v(WUP+1)}
  v_lshl_or_b32 {v(WR)}, {v(WR+1)}, 16, {v(WR)}
  v_mov_b32 {v(WS0+1)}, 0
  v_mov_b32 {v(WS1+1)}, 0
  v_mov_b32 {v(WR+1)}, 0
  v_mov_b32 {v(DI[13])}, 0""")
    CEN = H + 12
    for ps in ([0,1,2,3], [4,5,6,7], [8,9,10], [11,12]):
        p0 = ps[0]
        tt = {p: H + 2 * (p - p0) for p in ps}
        def rnd():
            for p in ps: a(f"  v_cvt_pk_bf16_f32 {v(tt[p])}, 0, {v(tt[p])}\n  v_cvt_pk_bf16_f32 {v(tt[p]+1)}, 0, {v(tt[p]+1)}")
        for p in ps: a(f"  v_lshlrev_b32 {v(tt[p])}, 16, {v(DI[p])}")
        for p in ps: a(f"  v_pk_add_f32 {v(tt[p],2)}, {v(tt[p],2)}, {v(CEN,2)} op_sel_hi:[0,1] neg_lo:[0,1] neg_hi:[0,1]")
        rnd()
        for p in ps: a(f"  v_pk_mul_f32 {v(tt[p],2)}, {v(tt[p],2)}, {v(tt[p],2)}")
        rnd()
        for p in ps: a(f"  v_pk_mul_f32 {v(tt[p],2)}, {v(tt[p],2)}, {s(sC10,2)}")
        rnd()
        for p in ps: a(f"  v_pk_mul_f32 {v(tt[p],2)}, {v(tt[p],2)}, {s(sCl2,2)}")
        for p in ps: a(f"  v_exp_f32 {v(tt[p])}, {v(tt[p])}\n  v_exp_f32 {v(tt[p]+1)}, {v(tt[p]+1)}")
        for p in ps: a(f"  v_cvt_pk_bf16_f32 {v(DI[p])}, {v(tt[p])}, {v(tt[p]+1)}")
    for h in range(7):
        a(f"  ds_write_b64 {v(H+9)}, {v(DI[2*h],2)} offset:{h*512}")
    a(f"""
  s_waitcnt lgkmcnt(0)
  s_cmp_eq_u32 s{sRb}, -1
  s_cbranch_scc1 L_rbf_back2
  s_branch L_rbf_back1""")
    for lab, u, tmp, mk in rare:
        a.label(f"L_rare_{lab}")
        a(f"""
  s_mov_b64 exec, vcc
  ds_add_rtn_u32 {v(tmp)}, {v(vCtlN)}, {v(vOne)}
  s_waitcnt lgkmcnt(0)
  v_lshlrev_b32 {v(tmp)}, 3, {v(tmp)}
  buffer_store_dwordx2 {v(REC[u],2)}, {v(tmp)}, {s(sCAR,4)}, s{sCarW} offen
  s_andn2_b64 exec, {s(mk,2)}, vcc
  s_branch L_back_{lab}""")
    return NV

def kd(name, nv, ns):
    nv4 = (nv + 3) // 4 * 4
    return f""".amdhsa_kernel {name}
  .amdhsa_next_free_vgpr {nv}
  .amdhsa_next_free_sgpr {ns}
  .amdhsa_accum_offset {nv4}
  .amdhsa_group_segment_fixed_size 0
  .amdhsa_kernarg_size 112
  .amdhsa_user_sgpr_count 2
  .amdhsa_user_sgpr_kernarg_segment_ptr 1
  .amdhsa_system_sgpr_workgroup_id_x 1
  .amdhsa_float_denorm_mode_32 3
.end_amdhsa_kernel
"""

def main():
    out = sys.argv[1]
    ref = open(f"cdna_kernels/{NAME}.s.ref").read().split("\n")
    head = [l for l in ref if l.startswith(";") and "@launch" not in l and "Override" not in l and "grid=ceil" not in l]
    a = Asm()
    a(".amdgcn_target \"amdgcn-amd-amdhsa--gfx950\"\n.text")
    a(f".globl {NAME}_kernel\n.type {NAME}_kernel,@function")
    nv = gen_p2(a)
    errs = a.check()
    for e in errs: print("HAZARD", e)
    txt = "\n".join(head) + "\n"
    kern = f"kernel={NAME}_kernel " if OPT["list"] else ""
    txt += f"; @launch {kern}grid=(256,1,1) block=(512,1,1) lds={P1_LDS}\n"
    txt += a.text()
    txt += ".section .rodata,\"a\"\n.p2align 6\n" + kd(NAME + "_kernel", 256, 102)
    open(out, "w").write(txt)
    print("vgprs p2:", nv, "lines:", len(a.lines), "hazards:", len(errs))

main()
```

```python
import sys, os
sys.path.insert(0, os.path.dirname(__file__))
from asmlib import Asm

NAME = "gather_scatter__molecular_angular_gemnet__graph"
E = 400000
NCH, CH = 250, 25600
EB = 1568
K = 6
MJ = 2739138
TABOFF = 0x2800000
CAROFF = 0x3000000
CARCAP = 9216
CARLIST = CARCAP * 8
STAMPOFF = 0x6000000
FLGOFF = 0x2c00000
OPT = dict(opol=0, mpol=0, tq=5, fq=10, keff=6, jid=0, fprio=0x3ffff, lprio=0x3fff, napt=8, st0=1, stp=1, rb0=2, nap=16, list=1, nb=7, n1=2, n2=5, n2a=1, n3=2, arr=10, spin=60000, rec_pol=2, stamp=0, itcap=64, ld_nt=7, st_pol=0, mtouch=0, la=4, apre=4, wmain=70000, b5=0, lim=24, nb2=7, ins0=4,
           abl_mfma=0, abl_s=0, abl_cos=0, abl_g=0)
for a in sys.argv[2:]:
    k, v = a.split("=")
    assert k in OPT, k
    OPT[k] = int(v, 0)
MK = -(-(1 << 32) // OPT["wmain"])
assert (399999 * MK) >> 32 <= 5

RPOL = ('', ' nt', ' sc1', ' sc0 sc1')[OPT['rec_pol']]

POL = ('', ' nt', ' sc1', ' sc0 sc1')

def v(i, n=1):
    return f"v{i}" if n == 1 else f"v[{i}:{i+n-1}]"
def s(i, n=1):
    return f"s{i}" if n == 1 else f"s[{i}:{i+n-1}]"

def stamp(a, vreg, lane, op="s_memtime"):
    if not OPT["stamp"]: return
    if OPT["stamp"] == 2:
        mp = {127: {62: (0, 1), 1: (1, 0), 4: (2, 0), 7: (3, 0), 63: (4, 0)}, 252: {62: (0, 1), 2: (1, 0), 11: (2, 0), 4: (3, 0), 63: (4, 0)}}[vreg]
        if lane not in mp: return
        l, inv = mp[lane]
        a(f"  s_memrealtime s[88:89]\n  s_waitcnt lgkmcnt(0)")
        if inv: a("  s_not_b32 s88, s88")
        a(f"  v_writelane_b32 v{vreg}, s88, {l}")
        return
    a(f"  {op} s[88:89]\n  s_waitcnt lgkmcnt(0)\n  v_writelane_b32 v{vreg}, s88, {lane}")
def stamp_out(a, vreg, wslo, nwaves, base, tmp):
    if not OPT["stamp"]: return
    if OPT["stamp"] == 2:
        back = 512 if vreg == 127 else 32
        a(f"""
  s_load_dwordx2 s[90:91], s[0:1], 96
  s_waitcnt lgkmcnt(0)
  s_add_u32 s92, s90, {back}
  s_addc_u32 s93, s91, 0
  s_mov_b32 s94, 20
  s_mov_b32 s95, 0x20000
  v_lshlrev_b32 v{tmp}, 2, v0
  buffer_atomic_umax v{vreg}, v{tmp}, s[92:95], 0 offen""")
        return
    a(f"  s_mul_i32 s88, s2, {nwaves*256}\n  s_add_u32 s88, s88, {base}")
    srd(a, 92, wslo, wslo+1, "s88", nwaves*256)
    a(f"  v_lshlrev_b32 v{tmp}, 2, v0\n  buffer_store_dword v{vreg}, v{tmp}, s[92:95], 0 offen")

def srd(a, d, lo, hi, add, size):
    if add is None:
        a(f"  s_mov_b32 s{d}, s{lo}\n  s_mov_b32 s{d+1}, s{hi}")
    else:
        a(f"  s_add_u32 s{d}, s{lo}, {add}\n  s_addc_u32 s{d+1}, s{hi}, 0")
    a(f"  s_mov_b32 s{d+2}, {size}\n  s_mov_b32 s{d+3}, 0x20000")

P1_CNT, P1_SENT, P1_TMP, P1_REC = 0, 6144, 6160, 6272
P1_LDS = P1_REC + CH * 6

TS = 264
BUFSZ = 200 * TS
S_OFF = 13 * 8192
CTL = S_OFF + 8192
RB_OFF = CTL + 128
P2_LDS = RB_OFF + 8 * 3584
D = 5
NT = 25

class RA:
    def __init__(self, start): self.n = start
    def __call__(self, k=1, al=1):
        self.n = (self.n + al - 1) // al * al
        r = self.n; self.n += k
        return r

def gen_p2(a):
    ra = RA(1)
    vSlot, vHalf, vFreq, vSst, vSrd, vI6, vI1, vI4 = (ra() for _ in range(8))
    vRd, vCntA, vOne, vOOB, vCarOff, vCarIdx, v264, vMsk, vCtlN = (ra() for _ in range(9))
    vZ = ra(2, 2)
    Q = ra(6, 4)
    sA, nA, cb, rem, rtot, vA6, vB6, vR0, vRT4 = (ra() for _ in range(9))
    vCnt = ra()
    Wa = ra(4, 4); Wb = ra(4, 4)
    RING = [ra(4, 4) for _ in range(D)]
    Da = ra(4, 4); Db = ra(4, 4); P = ra(4, 4); Sf = ra(4, 4)
    ACC = [ra(4, 4) for _ in range(NT)]
    REC = [ra(2, 4 if i == 0 else 2) for i in range(17)]
    RP = [ra(2, 2), ra(2, 2)]
    T = ra(10, 2)
    TA = [ra(), ra()]; RK = [ra(), ra()]
    WS0 = ra(2, 2); WS1 = ra(2, 2); WR = ra(2, 2); WUP = ra(2, 2)
    CC = [ra() for _ in range(D)]; SA = [ra() for _ in range(D)]
    WW = [ra(), ra()]
    assert ra.n <= 252, ra.n
    NV = ra.n
    sM = 4; sREC = 8; sCAR = 12; sTAB = 16; sOUT = 20; sDIST = 24; sMW = 28
    sJ, sW, sIt, sThr, sIns, sCarW, sCarR, sRb, sCin, sX, sFl, sEb = range(32, 44)
    sCnt = [44, 45]
    sWS = 46
    sPM = 72
    sMk = [72, 74]; sT = 76; sC10 = 78; sCl2 = 80
    sEb2 = 3
    rare = []

    O, I, R, A = 36, 88, 140, 192
    PT = 218
    vL16, vL8, vL4, vL128, vSix, vTwo, vFlg, vDum, vTab, vWo = range(234, 244)
    assert Wa == 36 and T == PT
    vSent = vCnt
    sIO, sII, sAN, sMT, sTW, sDBG = 4, 8, 12, 16, 20, 24
    sFLG, sRW = 92, 96
    sMJ, sMK, sNEB, sB5, sO4, sO2 = range(80, 86)
    sY, sSo = 100, 101
    nto, nti, nta = (" nt" if OPT["ld_nt"] >> b & 1 else "" for b in range(3))
    NR = 13
    nrec = lambda q: 4 if q < 12 else 2
    vm = []
    def ld_pair(q):
        if q < 12:
            a(f"  buffer_load_dwordx4 {v(O+4*q,4)}, {v(vL16)}, {s(sIO,4)}, s{sO4} offen{nto}")
            a(f"  buffer_load_dwordx4 {v(I+4*q,4)}, {v(vL16)}, {s(sII,4)}, s{sO4} offen{nti}")
            a(f"  s_add_u32 s{sO4}, s{sO4}, 8192")
        else:
            a(f"  buffer_load_dwordx2 {v(O+48,2)}, {v(vL8)}, {s(sIO,4)}, s{sO4} offen{nto}")
            a(f"  buffer_load_dwordx2 {v(I+48,2)}, {v(vL8)}, {s(sII,4)}, s{sO4} offen{nti}")
        vm.extend([("o", q), ("p", q)])
    def ld_ang(q):
        if q < 12:
            a(f"  buffer_load_dwordx2 {v(A+2*q,2)}, {v(vL8)}, {s(sAN,4)}, s{sO2} offen{nta}")
            a(f"  s_add_u32 s{sO2}, s{sO2}, 4096")
        else: a(f"  buffer_load_dword {v(A+24)}, {v(vL4)}, {s(sAN,4)}, s{sO2} offen{nta}")
        vm.append(("a", q))
    def wait_for(x):
        a(f"  s_waitcnt vmcnt({len(vm) - 1 - vm.index(x)})")
    def poll(tag, load, cond, nap=4):
        a(f"  s_mov_b32 s{sY}, {OPT['spin']}")
        a.label(f"L_poll_{tag}")
        a(load)
        a("  s_waitcnt vmcnt(0)")
        a(cond)
        a(f"""
  s_cbranch_vccz L_polled_{tag}
  s_sleep {nap}
  s_sub_u32 s{sY}, s{sY}, 1
  s_cbranch_scc0 L_poll_{tag}""")
        a.label(f"L_polled_{tag}")

    a(".p2align 8")
    a.label(NAME + "_kernel")
    a(f"""
  s_cmp_ge_u32 s2, 256
  s_cbranch_scc1 L_end
  s_load_dwordx16 s[48:63], s[0:1], 0
  s_load_dwordx4 s[44:47], s[0:1], 96
  s_load_dwordx8 s[64:71], s[0:1], 64
  v_lshlrev_b32 {v(vL16)}, 4, v0
  v_mov_b64 {v(PT,2)}, 0
  v_mov_b64 {v(PT+2,2)}, 0
  s_min_u32 s{sY}, s2, {NCH-1}
  s_mul_i32 s{sX}, s{sY}, {CH*4}
  s_cmp_lt_u32 s2, {NCH}
  s_cselect_b32 s{sFl}, {CH*2}, 0
  s_lshl_b32 s{sCin}, s{sFl}, 1
  s_mov_b32 s{sO4}, 0
  s_mov_b32 s{sO2}, 0
  ds_write_b128 {v(vL16)}, {v(PT,4)}
  s_waitcnt lgkmcnt(0)""")
    stamp(a, 252, 0); stamp(a, 252, 62, "s_memrealtime")
    srd(a, sIO, 52, 53, f"s{sX}", f"s{sCin}")
    srd(a, sII, 50, 51, f"s{sX}", f"s{sCin}")
    ld_pair(0); ld_pair(1)
    a("  s_barrier")
    LA = OPT["la"]
    for q in range(2, LA): ld_pair(q)
    a(f"  s_lshr_b32 s{sX}, s{sX}, 1")
    srd(a, sAN, 56, 57, f"s{sX}", f"s{sFl}")
    srd(a, sMT, 48, 49, f"s{sX}", f"s{sFl}")
    a(f"  s_mul_i32 s{sX}, s{sY}, {CH*6}\n  s_mul_i32 s{sFl}, s{sFl}, 3")
    srd(a, sRW, sWS, sWS+1, f"s{sX}", f"s{sFl}")
    srd(a, sTW, sWS, sWS+1, TABOFF, 256 * 8192)
    srd(a, sFLG, sWS, sWS+1, FLGOFF, 8192)
    srd(a, sDBG, 44, 45, None, 256)
    a(f"""
  s_lshl_b32 s{sX}, s2, 2
  v_lshl_add_u32 {v(vFlg)}, v0, 10, s{sX}
  s_cmp_lt_u32 s2, {NCH}
  s_cselect_b32 s{sX}, 0, 4
  v_mov_b32 {v(vDum)}, s{sX}
  buffer_store_dword {v(vDum)}, {v(vFlg)}, {s(sFLG,4)}, 0 offen sc1
  s_lshl_b32 s{sX}, s{sX}, 20
  v_or_b32 {v(vFlg)}, s{sX}, {v(vFlg)}
  s_load_dword s{sCin}, s[60:61], 0
  v_lshlrev_b32 {v(vL8)}, 3, v0
  v_lshlrev_b32 {v(vL4)}, 2, v0
  v_lshlrev_b32 {v(vL128)}, 7, v0
  v_mov_b32 {v(vSix)}, 6
  v_mov_b32 {v(vTwo)}, 2
  s_mov_b32 s{sMJ}, {MJ}
  s_mov_b32 s{sMK}, {MK}
  s_mov_b32 s{sNEB}, {-EB & 0xffffffff}
  s_mov_b32 s{sB5}, {OPT['b5']}
  s_and_b32 s{sJ}, s2, 7
  s_lshl_b32 s{sJ}, s{sJ}, 5
  s_lshr_b32 s{sX}, s2, 3
  s_add_u32 s{sJ}, s{sJ}, s{sX}
  {"s_mov_b32 s%d, s2" % sJ if OPT["jid"] else "s_nop 0"}
  v_lshrrev_b32 {v(T)}, 6, v0
  v_and_b32 {v(T+2)}, 15, v0
  v_bfe_u32 {v(T+3)}, v0, 5, 1
  v_readfirstlane_b32 s{sW}, {v(T)}
  v_lshlrev_b32 {v(vHalf)}, 4, {v(T+3)}
  v_lshl_add_u32 {v(cb)}, {v(T)}, 5, {v(vHalf)}
  v_add_u32 {v(cb)}, {v(cb)}, {v(T+2)}
  v_lshlrev_b32 {v(vTab)}, 13, {v(cb)}
  v_and_b32 {v(T+1)}, 63, v0
  v_and_b32 {v(vSlot)}, 31, v0
  v_mov_b64 {v(vZ,2)}, 0
  v_mov_b32 {v(v264)}, {TS}
  v_lshlrev_b32 {v(vWo)}, 1, {v(T+2)}
  v_lshl_add_u32 {v(vWo)}, {v(T+3)}, 8, {v(vWo)}
  v_lshl_add_u32 {v(vWo)}, {v(T)}, 5, {v(vWo)}
  v_mov_b32 {v(vCtlN)}, {CTL}
  s_lshl_b32 s{sX}, s{sW}, 10
  s_add_u32 s{sX}, s{sX}, {S_OFF}
  v_lshl_add_u32 {v(vSrd)}, {v(T+1)}, 4, s{sX}
  v_bfe_u32 {v(T+6)}, v0, 2, 2
  v_lshlrev_b32 {v(vSst)}, 8, {v(T+6)}
  v_lshl_add_u32 {v(vSst)}, {v(T+3)}, 7, {v(vSst)}
  v_bfe_u32 {v(T+6)}, v0, 4, 1
  v_lshl_add_u32 {v(vSst)}, {v(T+6)}, 3, {v(vSst)}
  v_and_b32 {v(T+6)}, 3, v0
  v_lshl_add_u32 {v(vSst)}, {v(T+6)}, 1, {v(vSst)}
  v_add_u32 {v(vSst)}, s{sX}, {v(vSst)}
  v_mov_b32 {v(vOne)}, 1
  v_mov_b32 {v(vOOB)}, 0x80000000
  v_mov_b32 {v(vMsk)}, 0x7ffffffc
  v_mul_u32_u24 {v(vI6)}, 6, {v(vSlot)}
  v_add_u32 {v(vI1)}, 1, {v(vSlot)}
  v_lshlrev_b32 {v(vI4)}, 2, {v(vI1)}
  v_mov_b32 {v(T+6)}, {CH}
  v_mul_u32_u24 {v(cb)}, {v(cb)}, {v(T+6)}
  v_mov_b32 {v(sA)}, 0
  v_mov_b32 {v(nA)}, 0
  v_mov_b32 {v(rtot)}, 0
  s_mul_i32 s{sX}, s{sW}, {NT*TS}
  s_add_u32 s{sX}, s{sX}, {BUFSZ}
  v_lshl_add_u32 {v(vRd)}, {v(vSlot)}, 3, s{sX}
  v_min_u32 {v(T+6)}, {NT-1}, {v(T+1)}
  v_mad_u32_u24 {v(vCntA)}, {v(T+6)}, {v(v264)}, s{sX}
  v_sub_u32 {v(vCarIdx)}, 511, v0
  v_lshlrev_b32 {v(vCarOff)}, 3, {v(vCarIdx)}
  v_cmp_eq_u32 vcc, 1, {v(T+3)}
  s_waitcnt lgkmcnt(0)
  s_lshl_b32 s{sX}, s{sCin}, 16
  s_and_b32 s{sCin}, s{sCin}, 0xffff0000
  v_mov_b32 {v(vFreq)}, s{sX}
  v_mov_b32 {v(T+6)}, s{sCin}
  v_cndmask_b32 {v(vFreq)}, {v(vFreq)}, {v(T+6)}, vcc
  s_mov_b32 s{sIt}, -1
  s_mov_b32 s{sIns}, 0
  s_mov_b32 s{sCarW}, 0
  s_mov_b32 s{sCarR}, {CARLIST}
  s_lshr_b32 s{sRb}, s{sW}, 2
  s_add_u32 s{sRb}, s{sRb}, {OPT['rb0']}
  s_cmp_ge_u32 s2, {NCH}
  s_cbranch_scc1 L_nochunk1""")
    vm.append(("flg", 0))
    arrive = f"""
  s_and_b32 s{sY}, s2, 15
  s_lshl_b32 s{sY}, s{sY}, 4
  v_lshlrev_b32 {v(PT)}, 8, v0
  buffer_atomic_add {v(vOne)}, {v(PT)}, {s(sDBG,4)}, s{sY} offen"""
    def hist(idx):
        if OPT["b5"]:
            for x, i in enumerate(idx): a(f"  v_cmp_le_u32 {s(72+2*x,2)}, s{sB5}, {v(I+i)}")
        for x, i in enumerate(idx): a(f"  v_mul_hi_u32_u24 {v(PT+x)}, s{sMJ}, {v(O+i)}")
        for x, i in enumerate(idx): a(f"  v_mul_hi_u32_u24 {v(PT+4+x)}, s{sMK}, {v(I+i)}")
        if OPT["b5"]:
            for x, i in enumerate(idx): a(f"  v_cndmask_b32 {v(PT+4+x)}, {v(PT+4+x)}, 5, {s(72+2*x,2)}")
        for x, i in enumerate(idx): a(f"  v_mad_i32_i24 {v(PT+8+x)}, {v(PT+x)}, s{sNEB}, {v(O+i)}")
        for x, i in enumerate(idx): a(f"  v_lshl_add_u32 {v(O+i)}, {v(PT+4+x)}, 8, {v(PT+x)}")
        for x, i in enumerate(idx): a(f"  v_lshlrev_b32 {v(O+i)}, 2, {v(O+i)}")
        for x, i in enumerate(idx): a(f"  ds_add_rtn_u32 {v(R+i)}, {v(O+i)}, {v(vOne)}")
        for x, i in enumerate(idx): a(f"  v_lshl_or_b32 {v(I+i)}, {v(PT+8+x)}, 20, {v(I+i)}")
        for x, i in enumerate(idx): a(f"  v_or_b32 {v(I+i)}, 0x80000000, {v(I+i)}")
    na = 0
    for q in range(NR):
        wait_for(("p", q))
        if q == 0: stamp(a, 252, 40)
        if q == LA:
            a(arrive); vm.append(("arr", 0))
        if q + LA < NR: ld_pair(q + LA)
        else:
            for _ in range(2):
                if na < OPT["apre"]: ld_ang(na); na += 1
        hist(list(range(4*q, 4*q + nrec(q))))
    stamp(a, 252, 41)
    X = v(PT+4)
    a(f"""
  s_waitcnt lgkmcnt(0)
  s_barrier
  s_cmp_ge_u32 s{sW}, {K}
  s_cbranch_scc1 L_bin_s1
  ds_read_b128 {v(PT,4)}, {v(vL16)}
  v_and_b32 {v(PT+8)}, 63, v0
  s_waitcnt lgkmcnt(0)
  v_add_u32 {v(PT+1)}, {v(PT)}, {v(PT+1)}
  v_add_u32 {v(PT+2)}, {v(PT+1)}, {v(PT+2)}
  v_add_u32 {v(PT+3)}, {v(PT+2)}, {v(PT+3)}
  v_mov_b32 {v(PT+4)}, {v(PT+3)}""")
    for sh in (1, 2, 4, 8):
        a(f"  s_nop 1\n  v_add_u32_dpp {X}, {X}, {X} row_shr:{sh} row_mask:0xf bank_mask:0xf bound_ctrl:0")
    a(f"  s_nop 1\n  v_add_u32_dpp {X}, {X}, {X} row_bcast:15 row_mask:0xa bank_mask:0xf")
    a(f"  s_nop 1\n  v_add_u32_dpp {X}, {X}, {X} row_bcast:31 row_mask:0xc bank_mask:0xf")
    a(f"""
  v_cmp_lt_u32 vcc, s{sW}, {v(PT+8)}
  v_readlane_b32 s{sY}, {X}, 63
  v_lshlrev_b32 {v(PT+9)}, 2, {v(PT+8)}
  s_and_b32 vcc_lo, vcc_lo, 0xff
  s_mov_b32 vcc_hi, 0
  v_mov_b32 {v(PT+10)}, s{sY}
  s_mov_b64 exec, vcc
  ds_add_u32 {v(PT+9)}, {v(PT+10)} offset:{P1_TMP}
  s_mov_b64 exec, -1
  s_waitcnt lgkmcnt(0)""")
    a.label("L_bin_s1")
    a(f"""
  s_barrier
  s_cmp_ge_u32 s{sW}, {K}
  s_cbranch_scc1 L_bin_s2
  s_lshl_b32 s{sY}, s{sW}, 2
  v_mov_b32 {v(PT+9)}, s{sY}
  ds_read_b32 {v(PT+9)}, {v(PT+9)} offset:{P1_TMP}
  v_sub_u32 {X}, {X}, {v(PT+3)}
  v_mov_b32 {v(PT+10)}, {CH}
  s_waitcnt lgkmcnt(0)
  v_add_u32 {v(PT+4)}, {X}, {v(PT+9)}
  v_add_u32 {v(PT+5)}, {v(PT+4)}, {v(PT)}
  v_add_u32 {v(PT+6)}, {v(PT+4)}, {v(PT+1)}
  v_add_u32 {v(PT+7)}, {v(PT+4)}, {v(PT+2)}
  ds_write_b128 {v(vL16)}, {v(PT+4,4)}
  ds_write_b32 {v(vZ)}, {v(PT+10)} offset:{P1_SENT}
  s_waitcnt lgkmcnt(0)""")
    a.label("L_bin_s2")
    a("  s_barrier")
    stamp(a, 252, 42)
    a(f"""
  v_lshrrev_b32 {v(PT+12)}, 1, v0
  v_and_b32 {v(PT+13)}, 1, v0
  v_lshlrev_b32 {v(PT+12)}, 2, {v(PT+12)}
  v_lshl_add_u32 {v(PT+13)}, {v(PT+13)}, 12, {v(PT+12)}
  s_lshl_b32 s{sY}, s2, 13""")
    for k in range(4):
        a(f"  ds_read_b32 {v(PT+k)}, {v(PT+13)} offset:{k*1024}")
        a(f"  ds_read_b32 {v(PT+6+k)}, {v(PT+13)} offset:{k*1024+4}")
    a("  s_waitcnt lgkmcnt(0)")
    for k in range(4): a(f"  v_sub_u32 {v(PT+6+k)}, {v(PT+6+k)}, {v(PT+k)}")
    for k in range(4): a(f"  v_lshl_or_b32 {v(PT+k)}, {v(PT+6+k)}, 16, {v(PT+k)}")
    a(f"  buffer_store_dwordx4 {v(PT,4)}, {v(vL16)}, {s(sTW,4)}, s{sY} offen sc1")
    vm.append(("tab", 0))
    mark = len(vm)
    while na < NR: ld_ang(na); na += 1
    if OPT["mtouch"]:
        a(f"  buffer_load_dword v244, {v(vL128)}, {s(sMT,4)}, 0 offen"); vm.append(("m", 0))
    NB = OPT["nb"]
    vDa, vDv, vRa = 245, 246, 247
    lda = f"  buffer_load_dword {v(vDv)}, {v(vDa)}, {s(sDBG,4)}, 0 offen sc1"
    cda = f"  v_cmp_gt_u32 vcc, 16, {v(vDv)}"
    ada = f"""
  s_lshl_b32 s{sX}, s{sW}, 16
  v_and_b32 {v(vDa)}, 15, v0
  v_lshl_add_u32 {v(vDa)}, {v(vDa)}, 4, s{sX}"""
    NRD = 15
    for i in range(NRD): a(f"  ds_read_b32 {v(O+i)}, {v(O+i)}")
    a(f"  s_mov_b32 s{sB5}, {NB*8192 + 4}\n  s_mov_b32 s{sSo}, 0")
    a(ada)
    a(f"  v_add_u32 {v(vRa)}, {P1_REC}, {v(vL16)}")
    for g in range(10):
        idx = list(range(5*g, 5*g+5))
        a(f"  s_waitcnt lgkmcnt({min(10, 45 - 5*g)})")
        for i in idx:
            if i + NRD < 50: a(f"  ds_read_b32 {v(O+i+NRD)}, {v(O+i+NRD)}")
        for i in idx: a(f"  v_add_u32 {v(O+i)}, {v(O+i)}, {v(R+i)}")
        for i in idx: a(f"  v_mad_u32_u24 {v(O+i)}, {v(O+i)}, {v(vSix)}, {v(vTwo)}")
        for x, i in enumerate(idx): a(f"  v_and_b32 {v(PT+x)}, 2, {v(O+i)}")
        for i in idx: a(f"  v_and_b32 {v(R+i)}, -4, {v(O+i)}")
        for x, i in enumerate(idx): a(f"  v_lshl_add_u32 {v(O+i)}, {v(PT+x)}, 1, {v(O+i)}")
    def put(q, cmp):
        idx = list(range(4*q, 4*q + nrec(q)))
        for x, i in enumerate(idx): a(f"  v_cmp_{cmp}_u32 {s(72+2*x,2)}, s{sB5}, {v(R+i)}")
        for x, i in enumerate(idx):
            op = "ds_write_b16_d16_hi" if (i & 1) else "ds_write_b16"
            a(f"""
  s_mov_b64 exec, {s(72+2*x,2)}
  ds_write_b32 {v(R+i)}, {v(I+i)} offset:{P1_REC}
  {op} {v(O+i)}, {v(A + i//2)} offset:{P1_REC-2}""")
        a("  s_mov_b64 exec, -1")
    for q in range(NR):
        wait_for(("a", q))
        for r in range(nrec(q) // 2): a(f"  v_and_b32 {v(A+2*q+r)}, 0x7fff7fff, {v(A+2*q+r)}")
        if q == OPT["tq"]:
            assert q >= OPT["apre"]
            a("  s_barrier")
            a(lda); vm.append(("lda", 0))
            a(f"  buffer_store_dword {v(vOne)}, {v(vFlg)}, {s(sFLG,4)}, 0 offen sc1"); vm.append(("flg", 1))
        put(q, "gt")
    a(f"  ds_read_b32 v248, {v(vZ)} offset:2048")
    a("  s_waitcnt lgkmcnt(0)\n  s_barrier")
    stamp(a, 252, 43)
    a(f"  v_readfirstlane_b32 s{sO2}, v248")
    free = [PT, PT + 4, PT + 8, O, I, R, O + 4, I + 4, R + 4]
    def erd(r): a(f"  ds_read_b128 {v(free[r],4)}, {v(vRa)} offset:{r*8192}")
    def est(r):
        a(f"  buffer_store_dwordx4 {v(free[r],4)}, {v(vL16)}, {s(sRW,4)}, s{sSo} offen sc1\n  s_add_u32 s{sSo}, s{sSo}, 8192")
        vm.append(("st", r))
    assert NB <= 8
    for r in range(3): erd(r)
    for r in range(3):
        a(f"  s_waitcnt lgkmcnt({2 - r})")
        est(r)
    put(0, "le"); put(1, "le")
    for r in range(3, NB): erd(r)
    put(2, "le")
    a("  s_waitcnt lgkmcnt(0)")
    todo = list(range(3, NB))
    fad = f"""
  v_and_b32 {v(RK[0])}, 63, v0
  v_lshlrev_b32 {v(RK[0])}, 4, {v(RK[0])}
  s_and_b32 s{sCin}, s2, 7
  s_lshl_b32 s{sCin}, s{sCin}, 10"""
    for q in range(3, NR):
        if todo: est(todo.pop(0))
        if q == OPT["fq"]:
            assert q >= 8 and Da == O + 28 and not todo
            a(fad)
            a(f"  s_mov_b32 s{sO4}, 0\n  s_cmp_lg_u32 s{sW}, 0\n  s_cbranch_scc1 L_nofl")
            wait_for(("lda", 0))
            a(cda)
            a(f"  s_cbranch_vccnz L_nofl\n  s_mov_b32 s{sO4}, 1")
            a(f"  buffer_load_dwordx4 {v(Da,4)}, {v(RK[0])}, {s(sFLG,4)}, s{sCin} offen sc1")
            a.label("L_nofl")
        put(q, "le")
    assert not todo
    stamp(a, 252, 44)
    FP = Da
    def flag_load(dst, off): return f"  buffer_load_dwordx4 {v(dst,4)}, {v(off)}, {s(sFLG,4)}, s{sCin if dst == FP else sX} offen sc1"
    def flag_cond(dst, stage): return f"""
  v_min3_u32 {v(dst)}, {v(dst)}, {v(dst+1)}, {v(dst+2)}
  v_min_u32 {v(dst)}, {v(dst)}, {v(dst+3)}
  v_cmp_gt_u32 vcc, {stage}, {v(dst)}"""
    a(f"  s_waitcnt vmcnt(0)\n  s_cmp_lg_u32 s{sW}, 0\n  s_cbranch_scc1 L_polled_t")
    a(f"  s_cmp_eq_u32 s{sO4}, 0\n  s_cbranch_scc1 L_wait_a")
    a(flag_cond(FP, 1))
    a("  s_cbranch_vccz L_polled_t\n  s_branch L_polled_a")
    a.label("L_nochunk1")
    a("  s_waitcnt vmcnt(0)")
    a(arrive)
    a(ada)
    a(fad)
    a(f"  s_mov_b32 s{sO2}, 0\n  s_cmp_lg_u32 s{sW}, 0\n  s_cbranch_scc1 L_polled_t")
    a.label("L_wait_a")
    poll("a", lda, cda, 64)
    poll("t", flag_load(FP, RK[0]), flag_cond(FP, 1), OPT["napt"])
    a(f"""
  s_lshl_b32 s{sX}, s{sJ}, 5
  s_add_u32 s{sX}, s{sX}, {TABOFF}""")
    srd(a, sTAB, sWS, sWS+1, f"s{sX}", (NCH - 1) * 8192 + 32)

    def state_update():
        a(f"""
  v_sub_u32 {v(rem)}, {v(rem)}, {v(rtot)}
  v_lshrrev_b32 {v(T)}, 16, {v(Q)}
  v_and_b32 {v(T+1)}, 0xffff, {v(Q)}
  v_min_u32 {v(vR0)}, 32, {v(nA)}
  v_cmp_ge_u32 vcc, 32, {v(nA)}
  v_sub_u32 {v(T+2)}, 32, {v(vR0)}
  v_add_u32 {v(vB6)}, {v(cb)}, {v(T+1)}
  v_min_u32 {v(T+2)}, {v(T)}, {v(T+2)}
  v_mul_u32_u24 {v(vB6)}, 6, {v(vB6)}
  v_add_u32 {v(rtot)}, {v(vR0)}, {v(T+2)}
  v_mad_i32_i24 {v(vB6)}, {v(vR0)}, -6, {v(vB6)}
  v_lshlrev_b32 {v(vRT4)}, 2, {v(rtot)}
  v_add_u32 {v(vA6)}, {v(cb)}, {v(sA)}
  v_mul_u32_u24 {v(vA6)}, 6, {v(vA6)}""")
    def state_update2():
        a(f"""
  v_add_u32 {v(sA)}, 32, {v(sA)}
  v_subrev_u32 {v(nA)}, 32, {v(nA)}
  v_add_u32 {v(T+1)}, {v(T+1)}, {v(T+2)}
  v_sub_u32 {v(T)}, {v(T)}, {v(T+2)}
  v_cndmask_b32 {v(sA)}, {v(sA)}, {v(T+1)}, vcc
  v_cndmask_b32 {v(nA)}, {v(nA)}, {v(T)}, vcc""")
        for i in range(K - 1):
            a(f"  v_cndmask_b32 {v(Q+i)}, {v(Q+i)}, {v(Q+i+1)}, vcc")
        a(f"  v_cndmask_b32 {v(Q+K-1)}, {v(Q+K-1)}, {v(vZ)}, vcc")
    def set_flag(tag):
        a(f"""
  v_cmp_lt_u32 vcc, 0, {v(rem)}
  s_cbranch_vccz L_noflag_{tag}
  ds_write_b32 {v(vCtlN)}, {v(vOne)} offset:4""")
        a.label(f"L_noflag_{tag}")

    bc = lambda u: f"row_newbcast:{u} row_mask:0xf bank_mask:0xf"
    def rec_load(u, t0):
        a(f"""
  v_sub_co_u32_dpp {v(t0)}, vcc, {v(vR0)}, {v(vI1)} {bc(u)}
  v_add_u32_dpp {v(t0)}, {v(vA6)}, {v(vI6)} {bc(u)}
  v_add_u32_dpp {v(t0+1)}, {v(vB6)}, {v(vI6)} {bc(u)}
  v_cndmask_b32 {v(t0)}, {v(t0)}, {v(t0+1)}, vcc
  v_sub_u32_dpp {v(t0+1)}, {v(vRT4)}, {v(vI4)} {bc(u)}
  v_bfi_b32 {v(t0)}, {v(vMsk)}, {v(t0)}, {v(t0+1)}
  buffer_load_dwordx2 {v(REC[u],2)}, {v(t0)}, {s(sREC,4)}, 0 offen{RPOL}""")

    SDWA = "dst_sel:WORD_1 dst_unused:UNUSED_PAD src0_sel:WORD_1 src1_sel:WORD_0"
    def ins1(u, thr, p):
        ta, rk, mk, w = TA[p], RK[p], sMk[p], WW[p]
        a(f"""
  v_cmp_gt_i32 vcc, 0, {v(REC[u])}
  v_min_i32 {v(w)}, {v(REC[u])}, {v(REC[u]+1)}
  v_cmp_gt_i32 {s(mk,2)}, {thr}, {v(w)}
  v_bfe_u32 {v(ta)}, {v(w)}, 23, 8
  v_cndmask_b32_sdwa {v(REC[u])}, {v(REC[u])}, {v(REC[u]+1)}, vcc {SDWA}
  v_mad_u32_u24 {v(ta)}, {v(ta)}, {v(v264)}, s{sIns}
  s_mov_b64 exec, {s(mk,2)}
  ds_add_rtn_u32 {v(rk)}, {v(ta)}, {v(vOne)}
  s_mov_b64 exec, -1""")

    def ins2(u, tag, p):
        ta, rk, mk, w = TA[p], RK[p], sMk[p], WW[p]
        lab = f"{tag}_{u}"
        a(f"""
  s_mov_b64 exec, {s(mk,2)}
  v_cmp_lt_u32 vcc, 31, {v(rk)}
  v_lshl_add_u32 {v(ta)}, {v(rk)}, 3, {v(ta)}
  s_cbranch_vccnz L_rare_{lab}""")
        a.label(f"L_back_{lab}")
        a(f"""
  ds_write2_b32 {v(ta)}, {v(REC[u])}, {v(w)} offset0:2 offset1:3
  s_mov_b64 exec, -1""")
        rare.append((lab, u, p))

    a(f"""
  v_add_u32 {v(PT+2)}, {P1_REC}, {v(vL16)}
  v_add_u32 {v(PT+3)}, {P1_REC + 8*8192}, {v(vL16)}
  v_add_u32 {v(PT+4)}, {P1_REC + 16*8192}, {v(vL16)}
  s_mov_b32 s{sSo}, {NB*8192}
  v_mov_b32 {v(vDum)}, 3
  s_waitcnt lgkmcnt(0)
  s_barrier""")
    stamp(a, 252, 45)
    NS = 19
    sdt = lambda r: (20 + r) % 25 if r < 8 else r + 1
    SD = lambda r: ACC[sdt(r)]
    gv = []
    def gwait(x, extra=""): a(f"  s_waitcnt vmcnt({len(gv) - 1 - gv.index(x)}){extra}")
    def rd(r): a(f"  ds_read_b128 {v(SD(r),4)}, {v(PT+2 + r//8)} offset:{(r%8)*8192}")
    def st(r, lst=None):
        a(f"  buffer_store_dwordx4 {v(SD(r),4)}, {v(vL16)}, {s(sRW,4)}, s{sSo} offen sc1\n  s_add_u32 s{sSo}, s{sSo}, 8192")
        if lst is not None: lst.append(("st", r))
    zero_acc = lambda t: a(f"  v_mov_b64 {v(ACC[t],2)}, 0\n  v_mov_b64 {v(ACC[t]+2,2)}, 0")
    flag3 = f"  buffer_store_dword {v(vDum)}, {v(vFlg)}, {s(sFLG,4)}, 0 offen sc1"
    N1, N3 = OPT["n1"], OPT["n3"]
    a(f"  s_cmp_gt_u32 s{sO2}, {NB*8192 // 6 - 2}\n  s_cbranch_scc1 L_noearly")
    a(flag3)
    a.label("L_noearly")
    a(f"""
  buffer_load_dwordx4 {v(Q,4)}, {v(vTab)}, {s(sTAB,4)}, 0 offen sc1
  buffer_load_dwordx2 {v(Q+4,2)}, {v(vTab)}, {s(sTAB,4)}, 0 offen offset:16 sc1
  global_load_ushort {v(T+9)}, {v(vWo)}, s[66:67]""")
    gv.extend([("tab", 0), ("tab", 1), ("w", 0)])
    for r in range(NB, NS): rd(r)
    nxt = NB + N1
    for r in range(NB, nxt):
        a(f"  s_waitcnt lgkmcnt({NS - 1 - r})")
        st(r, gv)
    a(f"""
  s_waitcnt lgkmcnt(0)
  s_cmp_gt_u32 s{sO2}, {NB*8192 // 6 - 2}
  s_cbranch_scc1 L_allfirst
  s_barrier""")
    a.label("L_allfirst_back")
    stamp(a, 252, 46)
    a(f"""
  s_mul_i32 s{sFl}, s{sJ}, {2*CARLIST}
  s_add_u32 s{sFl}, s{sFl}, {CAROFF}""")
    srd(a, sREC, sWS, sWS+1, None, NCH * CH * 6)
    srd(a, sM, 48, 49, None, E * 32)
    srd(a, sCAR, sWS, sWS+1, f"s{sFl}", 2 * CARLIST)
    srd(a, sDIST, 54, 55, None, E * 2)
    a(f"""
  s_mul_i32 s{sEb}, s{sJ}, {EB}
  s_mul_i32 s{sX}, s{sW}, 200
  s_add_u32 s{sFl}, s{sEb}, {EB}
  s_add_u32 s{sEb}, s{sEb}, s{sX}
  s_add_u32 s{sX}, s{sEb}, 200
  s_min_u32 s{sX}, s{sX}, s{sFl}
  s_min_u32 s{sX}, s{sX}, {E}
  s_lshl_b32 s{sX}, s{sX}, 5""")
    srd(a, sOUT, 70, 71, None, f"s{sX}")
    srd(a, sMW, 48, 49, None, f"s{sX}")
    a(f"""
  s_lshl_b32 s{sEb}, s{sEb}, 5
  s_add_u32 s{sEb2}, s{sEb}, 4096""")
    for q in range(D):
        a(f"  v_mov_b64 {v(RING[q],2)}, 0\n  v_mov_b64 {v(RING[q]+2,2)}, 0")
    for t in list(range(3, 9)) + [sdt(r) for r in range(NB)]: zero_acc(t)
    nx2 = min(NS, nxt + OPT["n2"])
    for r in range(nxt, min(nxt + 2, nx2)): st(r, gv)
    a(f"""
  v_mov_b32 {v(vSent)}, 0x7ffff
  v_mov_b32 {v(T)}, 0
  v_mov_b32 {v(T+1)}, {v(vSent)}
  v_mov_b32 {v(T+2)}, 0
  v_mov_b32 {v(T+3)}, {v(vSent)}
  v_add_u32 {v(T+6)}, {7*8192}, {v(vL16)}""")
    for r in range(13):
        a(f"  ds_write_b128 {v(vL16 if r < 7 else T+6)}, {v(T,4)} offset:{(r%7)*8192}")
    a(f"""
  v_and_b32 {v(T+6)}, 15, v0
  v_lshl_add_u32 {v(T+6)}, {v(T+6)}, 2, {v(vCtlN)}
  ds_write_b32 {v(T+6)}, {v(vZ)}
  ds_write_b128 {v(vSrd)}, {v(RING[0],4)}
  v_and_b32 {v(T+6)}, 63, v0
  v_lshlrev_b32 {v(TA[0])}, 4, {v(T+6)}
  v_add_u32 {v(TA[0])}, {RB_OFF}, {v(TA[0])}
  s_lshl_b32 s{sX}, s{sW}, 1
  v_add_u32 {v(T+8)}, s{sX}, {v(TA[0])}""")
    mid = min(nxt + 2 + OPT["n2a"], nx2)
    for r in range(min(nxt + 2, nx2), mid): st(r, gv)
    for q in range(D): a(f"  v_mov_b32 {v(SA[q])}, {v(vSst)}")
    gwait(("w", 0))
    a(f"  ds_write_b16 {v(T+8)}, {v(T+9)}")
    a(f"  v_lshrrev_b32 {v(rem)}, 16, {v(Q)}")
    for i in range(1, K):
        a(f"  v_lshrrev_b32 {v(T+4)}, 16, {v(Q+i)}\n  v_add_u32 {v(rem)}, {v(rem)}, {v(T+4)}")
    state_update()
    for u in range(0, 16, 2):
        a(f"""
  v_add_u32_dpp {v(REC[u])}, {v(vB6)}, {v(vI6)} {bc(u)}
  v_sub_u32_dpp {v(REC[u]+1)}, {v(vRT4)}, {v(vI4)} {bc(u)}
  v_add_u32_dpp {v(REC[u+1])}, {v(vB6)}, {v(vI6)} {bc(u+1)}
  v_sub_u32_dpp {v(REC[u+1]+1)}, {v(vRT4)}, {v(vI4)} {bc(u+1)}
  v_bfi_b32 {v(REC[u])}, {v(vMsk)}, {v(REC[u])}, {v(REC[u]+1)}
  v_bfi_b32 {v(REC[u+1])}, {v(vMsk)}, {v(REC[u+1])}, {v(REC[u+1]+1)}""")
        if mid < nx2:
            st(mid, gv); mid += 1
    for r in range(mid, nx2): st(r, gv)
    state_update2()
    state_update()
    state_update2()
    for r in range(NB, nx2): zero_acc(sdt(r))
    stamp(a, 252, 47)
    a(f"  s_cmp_lg_u32 s{sW}, 0\n  s_cbranch_scc1 L_polled_b")
    poll("b", flag_load(FP, RK[0]), flag_cond(FP, 2), OPT["nap"])
    a("  s_waitcnt lgkmcnt(0)")
    a("  s_barrier")
    stamp(a, 252, 1)
    for u in range(16):
        a(f"  buffer_load_dwordx2 {v(REC[u],2)}, {v(REC[u])}, {s(sREC,4)}, 0 offen{RPOL}")
        gv.append(("rec", u))
    a(f"  ds_read_b128 {v(Wb,4)}, {v(TA[0])}")
    NG = NS
    nx3 = min(NS, nx2 + N3)
    for r in range(nx2, nx3): st(r, gv)
    stamp(a, 252, 12)
    set_flag("pro")
    for q in range(D): a(f"  v_mov_b32 {v(CC[q])}, 0")
    for r in range(nx2, nx3): zero_acc(sdt(r))
    a(f"  v_bfe_u32 {v(T)}, v0, 4, 1\n  v_cmp_eq_u32 vcc, 1, {v(T)}\n  s_waitcnt lgkmcnt(0)\n  s_nop 0")
    for r in range(4):
        a(f"  v_cndmask_b32 {v(Wa+r)}, {v(Wb+r)}, {v(vZ)}, vcc")
        a(f"  v_cndmask_b32 {v(Wb+r)}, {v(vZ)}, {v(Wb+r)}, vcc")
    stamp(a, 252, 13)
    PTA = lambda u: Da + u
    PRK = lambda u: RING[0] + u
    PMK = lambda u: sPM + 2 * (u % 8)
    slowg = []
    def pro_ins1(g):
        us = range(4*g, 4*g+4)
        gwait(("rec", 4*g+3))
        for u in us:
            a(f"""
  v_cmp_gt_i32 vcc, 0, {v(REC[u])}
  v_min_i32 {v(PTA(u))}, {v(REC[u])}, {v(REC[u]+1)}
  v_cmp_gt_i32 {s(PMK(u),2)}, 0, {v(PTA(u))}
  v_cndmask_b32_sdwa {v(REC[u])}, {v(REC[u])}, {v(REC[u]+1)}, vcc {SDWA}
  v_mov_b32 {v(REC[u]+1)}, {v(PTA(u))}""")
        for u in us: a(f"  v_bfe_u32 {v(PTA(u))}, {v(PTA(u))}, 23, 8")
        for u in us: a(f"  v_mul_u32_u24 {v(PTA(u))}, {v(PTA(u))}, {v(v264)}")
        for u in us: a(f"  s_mov_b64 exec, {s(PMK(u),2)}\n  ds_add_rtn_u32 {v(PRK(u))}, {v(PTA(u))}, {v(vOne)}")
        a("  s_mov_b64 exec, -1")
    def pro_ins2(g):
        us = list(range(4*g, 4*g+4))
        a(f"""
  v_max3_u32 {v(T)}, {v(PRK(us[0]))}, {v(PRK(us[1]))}, {v(PRK(us[2]))}
  v_max_u32 {v(T)}, {v(T)}, {v(PRK(us[3]))}
  v_cmp_lt_u32 vcc, 31, {v(T)}
  s_cbranch_vccz L_pfast_{g}
  v_cmp_lt_u32 vcc, 63, {v(T)}
  s_cbranch_vccnz L_pslow_{g}""")
        a.label(f"L_pback_{g}")
        for x, u in enumerate(us): a(f"  v_subrev_u32 {v(T+4+x)}, 31, {v(PRK(u))}")
        for x, u in enumerate(us): a(f"  s_mov_b64 exec, {s(PMK(u),2)}\n  ds_max_i32 {v(PTA(u))}, {v(T+4+x)} offset:{BUFSZ}")
        a(f"  s_mov_b64 exec, -1\n  ds_write_b32 {v(vCtlN)}, {v(vOne)} offset:4")
        for x, u in enumerate(us): a(f"  v_lshrrev_b32 {v(T+4+x)}, 5, {v(PRK(u))}")
        for x, u in enumerate(us): a(f"  v_mad_u32_u24 {v(PTA(u))}, {v(T+4+x)}, s{sThr}, {v(PTA(u))}")
        a.label(f"L_pfast_{g}")
        for u in us: a(f"  v_lshl_add_u32 {v(PTA(u))}, {v(PRK(u))}, 3, {v(PTA(u))}")
        for u in us: a(f"  s_mov_b64 exec, {s(PMK(u),2)}\n  ds_write_b64 {v(PTA(u))}, {v(REC[u],2)} offset:8")
        a("  s_mov_b64 exec, -1")
        slowg.append(g)
    a(f"  s_mov_b32 s{sThr}, {BUFSZ - 256}")
    left = list(range(nx3, NS))
    per = (len(left) + 3) // 4
    def some():
        for _ in range(per):
            if left: st(left.pop(0), gv)
    pro_ins1(0)
    stamp(a, 252, 3)
    pro_ins1(1)
    some()
    a("  s_waitcnt lgkmcnt(0)")
    pro_ins2(0); some(); pro_ins1(2); pro_ins2(1); some(); pro_ins1(3); some()
    stamp(a, 252, 8)
    a("  s_nop 0")
    for r in range(nx3, NS): zero_acc(sdt(r))
    a("  s_waitcnt lgkmcnt(0)")
    pro_ins2(2); pro_ins2(3)
    stamp(a, 252, 11)
    a("  s_branch L_turn2")
    def signal_all(tag, n):
        a(f"""
  v_mov_b32 {v(T+4)}, {CTL + 32}
  s_waitcnt vmcnt({n})
  s_mov_b64 exec, 1
  ds_add_rtn_u32 {v(T+5)}, {v(T+4)}, {v(vOne)}
  s_mov_b64 exec, -1
  v_and_b32 {v(T+6)}, 63, v0
  s_lshl_b32 s{sX}, s2, 2
  v_lshl_add_u32 {v(T+6)}, {v(T+6)}, 10, s{sX}
  v_mov_b32 {v(T+7)}, 4
  s_waitcnt lgkmcnt(0)
  v_readfirstlane_b32 s{sX}, {v(T+5)}
  s_cmp_lg_u32 s{sX}, 7
  s_cbranch_scc1 L_nosig_{tag}
  buffer_store_dword {v(T+7)}, {v(T+6)}, {s(sFLG,4)}, 0 offen sc1""")
        a.label(f"L_nosig_{tag}")

    INS0 = OPT["ins0"]
    def cstage_head(q):
        if OPT["abl_s"]: return
        a(f"""
  ds_write_b16 {v(SA[q])}, {v(CC[q])}
  ds_read_b128 {v(Sf,4)}, {v(vSrd)}
  ds_write_b16 {v(SA[q])}, {v(vZ)}""")
    def cstage_m1(q):
        if OPT["abl_mfma"]: return
        a(f"""
  v_mfma_f32_16x16x32_bf16 {v(Da,4)}, {v(RING[q],4)}, {v(Wa,4)}, 0
  v_mfma_f32_16x16x32_bf16 {v(Db,4)}, {v(RING[q],4)}, {v(Wb,4)}, 0""")
    def cstage_cvt():
        if OPT["abl_mfma"]: return
        a(f"""
  v_cvt_pk_bf16_f32 {v(P)}, {v(Da)}, {v(Da+1)}
  v_cvt_pk_bf16_f32 {v(P+1)}, {v(Da+2)}, {v(Da+3)}
  v_cvt_pk_bf16_f32 {v(P+2)}, {v(Db)}, {v(Db+1)}
  v_cvt_pk_bf16_f32 {v(P+3)}, {v(Db+2)}, {v(Db+3)}""")
    def cstage_m2(tc):
        if OPT["abl_mfma"]: return
        a(f"  v_mfma_f32_16x16x32_bf16 {v(ACC[tc],4)}, {v(P,4)}, {v(Sf,4)}, {v(ACC[tc],4)}")
    def step_top(t, reset=True):
        a(f"  ; ---- step {t}")
        a("  s_waitcnt lgkmcnt(0)")
        cstage_head(t % D)
        if t < NT - 1:
            a(f"  ds_read_b64 {v(RP[(t+1)&1],2)}, {v(vRd)} offset:{(t+1)*TS+8}")
        if reset and t < NT:
            a(f"  ds_write_b32 {v(vRd)}, {v(vSent)} offset:{t*TS+12}")
    def step_main(t, n, reset=True):
        q = t % D; tc = (t - D) % NT
        rp = RP[t & 1]
        a(f"  s_waitcnt vmcnt({n})")
        cstage_m1(q)
        off, af, e = T + 1, T + 2, T + 3
        a(f"""
  v_and_b32 {v(off)}, {v(vSent)}, {v(rp+1)}
  v_mul_f32 {v(af)}, {v(rp)}, {v(vFreq)}
  v_lshl_add_u32 {v(off)}, {v(off)}, 5, {v(vHalf)}
  v_cvt_pk_bf16_f32 {v(af)}, 0, {v(af)}
  buffer_load_dwordx4 {v(RING[q],4)}, {v(vOOB if OPT["abl_g"] else off)}, {s(sM,4)}, 0 offen
  v_mul_f32 {v(af)}, 0.15915494, {v(af)}
  v_bfe_u32 {v(e)}, {v(rp+1)}, 20, 3
  v_fract_f32 {v(af)}, {v(af)}""")
        cstage_cvt()
        a(f"""
  v_cos_f32 {v(af)}, {v(af)}
  v_lshl_add_u32 {v(SA[q])}, {v(e)}, 4, {v(vSst)}
  s_waitcnt lgkmcnt({(2 if t < NT-1 else 1) + (1 if reset else 0)})""")
        cstage_m2(tc)
        a(f"  v_cvt_pk_bf16_f32 {v(CC[q])}, {v(af)}, {v(af)}")

    order = []
    for t in range(NT):
        if t == 0: order.append(("car", 16))
        u2 = t - INS0 - 1
        if 0 <= u2 < 16: order.append(("rec", u2))
        order.append(("W", t))
        order.append(("g", t))
    tail = [x for x in order[order.index(("g", NT - D)):] if x[0] != "W"]
    assert tail == [("g", t) for t in range(NT - D, NT)], tail
    def younger(target, at):
        n = len(order); i = order.index(target); cnt = 0
        j = (i + 1) % n
        while j != at:
            if order[j][0] != "W": cnt += 1
            j = (j + 1) % n
        return cnt
    first = []
    for x in order:
        if x[0] == "W" and x[1] < 4: first += [("f", 4 * x[1] + i) for i in range(4)]
        first.append(x)
    def younger_first(u, t):
        i = first.index(("f", u)); j = first.index(("W", t))
        return sum(1 for x in first[i+1:j] if x[0] != "W")
    RBH = 1
    def prio(tag, mask, t):
        cur = mask >> t & 1; prev = (mask >> (t - 1) & 1) if t else 0
        if cur and not prev:
            a(f"  s_cmp_lt_u32 s{sW}, 4\n  s_cbranch_scc1 L_{tag}prio{t}\n  s_setprio 1")
            a.label(f"L_{tag}prio{t}")
        if prev and not cur: a("  s_setprio 0")
    assert not OPT["lprio"] >> (NT - 1)
    def step0_extra():
        a(f"""
  v_cmp_gt_u32 vcc, s{sCin}, {v(vCarIdx)}
  s_add_u32 s{sX}, s{sIt}, 2
  s_and_b32 s{sX}, s{sX}, 3
  s_lshl_b32 s{sX}, s{sX}, 3
  s_add_u32 s{sX}, s{sX}, {CTL}
  v_mov_b32 {v(T+1)}, s{sX}
  ds_write_b64 {v(T+1)}, {v(vZ,2)}
  ds_write_b32 {v(vCntA)}, {v(vZ)}
  v_cndmask_b32 {v(T)}, {v(vOOB)}, {v(vCarOff)}, vcc
  buffer_load_dwordx2 {v(REC[16],2)}, {v(T)}, {s(sCAR,4)}, s{sCarR} offen sc1""")
    def state_step(tag):
        a(f"  s_cmp_lg_u32 s{sThr}, 0\n  s_cbranch_scc1 L_nostate_{tag}")
        if tag == "b0":
            QL = Q + OPT['keff'] - 3
            a(f"""
  v_lshrrev_b32 {v(T)}, 16, {v(QL)}
  v_cmp_eq_u32 vcc, 0, {v(nA)}
  v_subrev_u32 {v(T+1)}, {OPT['lim']}, {v(T)}
  v_and_b32 {v(T+2)}, 0xffff, {v(QL)}
  v_max_i32 {v(T+1)}, 0, {v(T+1)}
  v_cndmask_b32 {v(T+1)}, {v(vZ)}, {v(T+1)}, vcc
  v_add_u32 {v(T+2)}, {v(T+2)}, {v(T)}
  v_sub_u32 {v(T+2)}, {v(T+2)}, {v(T+1)}
  v_cndmask_b32 {v(sA)}, {v(sA)}, {v(T+2)}, vcc
  v_add_u32 {v(nA)}, {v(nA)}, {v(T+1)}
  v_lshlrev_b32 {v(T+1)}, 16, {v(T+1)}
  v_sub_u32 {v(QL)}, {v(QL)}, {v(T+1)}""")
        state_update(); state_update2()
        a.label(f"L_nostate_{tag}")
        set_flag(tag)
    a(".p2align 6")
    a.label("L_body0")
    lo = []
    lw = lambda x: len(lo) - 1 - lo.index(x)
    ST0, STP = OPT["st0"], OPT["stp"]
    late = list(range(NG, NS))
    tsig = None
    FC = WS0
    for t in range(NT):
        step_top(t)
        prio("b0", OPT["lprio"], t)
        if t == 0:
            step0_extra(); lo.append(("rec", 16))
        if t < 4:
            for u in range(4*t, 4*t+4):
                rec_load(u, T + 4 + 2 * (u & 1)); lo.append(("rec", u))
        if t == INS0: state_step("b0")
        zs = []
        if t >= ST0:
            for _ in range(STP):
                if late:
                    r = late.pop(0); st(r, lo); zs.append(r)
                    assert sdt(r) + D > t
                    if not late: tsig = t + D + 1
        u1 = t - INS0; u2 = u1 - 1
        if 0 <= u2 < 17: ins2(u2, "b0", u2 & 1)
        if 0 <= u1 < 17:
            a(f"  s_waitcnt vmcnt({lw(('rec', u1))})")
            ins1(u1, f"s{sThr}" if u1 < 16 else "0", u1 & 1)
        else: a("  s_nop 0")
        for r in zs: zero_acc(sdt(r))
        if t == tsig or (NG == NS and t == 2):
            signal_all("b0", lw(("st", NS - 1)) if NG < NS else len(lo))
        if t == INS0 + 18:
            a(f"  s_cmp_gt_u32 s{sCin}, 512\n  s_cbranch_scc1 L_slow_b0")
            a.label("L_slow_back_b0")
        if t == NT - 3:
            a(f"""
  s_cmp_lg_u32 s{sW}, 0
  s_cbranch_scc1 L_noldc
  v_lshlrev_b32 {v(WR)}, 4, v0
  s_and_b32 s{sX}, s2, 7
  s_lshl_b32 s{sX}, s{sX}, 10""")
            a(flag_load(FC, WR))
            a.label("L_noldc")
        step_main(t, lw(("g", t - D)) if t >= D else 62)
        lo.append(("g", t))
    assert not late and (tsig is None or tsig < NT - 3)
    a(f"""
  s_waitcnt vmcnt(3)
  s_cmp_lg_u32 s{sW}, 0
  s_cbranch_scc1 L_turn2""")
    assert NT - (INS0 + 17) >= 3
    a(flag_cond(FC, 4))
    a(f"""
  s_cbranch_vccz L_turn2
  s_and_b32 s{sX}, s2, 7
  s_lshl_b32 s{sX}, s{sX}, 10""")
    poll("c", flag_load(FC, WR), flag_cond(FC, 4), OPT["nap"])
    a("  s_branch L_turn2")

    a(".p2align 6")
    a.label("L_loop")
    for t in range(NT):
        step_top(t)
        if t == 0: step0_extra()
        prio("lp", OPT["lprio"], t)
        if t < 4:
            a(f"  s_cmp_eq_u32 s{sIt}, 1\n  s_cbranch_scc1 L_first_{t}")
            a.label(f"L_first_back_{t}")
        if t == INS0: state_step("lp")
        u1 = t - INS0; u2 = u1 - 1
        if 0 <= u2 < 17:
            ins2(u2, "lp", u2 & 1)
            if u2 < 16: rec_load(u2, T + 4)
        if 0 <= u1 < 17:
            pos = order.index(("W", t))
            if u1 < 16: n = min(younger(("rec", u1), pos), younger_first(u1, t))
            else: n = younger(("car", 16), pos)
            a(f"  s_waitcnt vmcnt({min(n, 62)})")
            ins1(u1, f"s{sThr}" if u1 < 16 else "0", u1 & 1)
        if t == INS0 + 18:
            a(f"  s_cmp_gt_u32 s{sCin}, 512\n  s_cbranch_scc1 L_slow_lp")
            a.label("L_slow_back_lp")
        if t == RBH:
            a(f"  s_cmp_eq_u32 s{sRb}, s{sIt}\n  s_cbranch_scc1 L_rbf")
            a.label("L_rbf_back1")
        step_main(t, younger(("g", (t - D) % NT), order.index(("W", t))))
    assert INS0 >= 4 and RBH < NT
    a(f"  s_waitcnt vmcnt({NT - (INS0 + 17)})")
    a.label("L_turn2")
    a(f"""
  v_mov_b32 {v(T)}, {v(vCtlN)}
  s_add_u32 s{sIt}, s{sIt}, 1
  s_add_u32 s{sX}, s{sIt}, 1
  s_and_b32 s{sX}, s{sX}, 3
  s_lshl_b32 s{sX}, s{sX}, 3
  s_add_u32 s{sX}, s{sX}, {CTL}
  v_mov_b32 {v(vCtlN)}, s{sX}
  s_sub_u32 s{sX}, s{sIns}, {BUFSZ}
  s_add_u32 s{sX}, s{sX}, s{sIns}
  v_add_u32 {v(vRd)}, s{sX}, {v(vRd)}
  v_add_u32 {v(vCntA)}, s{sX}, {v(vCntA)}
  s_sub_u32 s{sIns}, {BUFSZ}, s{sIns}
  s_mov_b32 s{sCarR}, s{sCarW}
  s_sub_u32 s{sCarW}, {CARLIST}, s{sCarW}
  s_waitcnt lgkmcnt(0)""")
    if OPT["stamp"] == 1:
        a(f"  s_lshl_b32 s90, s{sIt}, 1\n  s_add_u32 s90, s90, 16\n  s_min_u32 m0, s90, 36")
        stamp(a, 252, "m0")
        a("  s_add_u32 m0, m0, 1")
    a("  s_barrier")
    stamp(a, 252, "m0")
    a(f"""
  ds_read_b64 {v(T+2,2)}, {v(T)}
  ds_read_b64 {v(RP[0],2)}, {v(vRd)} offset:8
  s_waitcnt lgkmcnt(1)
  v_readfirstlane_b32 s{sCin}, {v(T+2)}
  v_readfirstlane_b32 s{sFl}, {v(T+3)}
  s_cmp_gt_u32 s{sCin}, 512
  s_cselect_b32 s{sThr}, 0x80000000, 0
  s_min_u32 s{sCin}, s{sCin}, {CARCAP}
  s_cmp_gt_u32 s{sCin}, 32
  s_cselect_b32 s{sFl}, 1, s{sFl}
  s_cmp_lt_u32 s{sIt}, {OPT['itcap']}
  s_cselect_b32 s{sFl}, s{sFl}, 0
  s_cmp_eq_u32 s{sIt}, 0
  s_cbranch_scc1 L_it0
  s_cmp_lg_u32 s{sFl}, 0
  s_cbranch_scc1 L_loop""")
    a.label("L_nosig_z")
    a(f"""
  s_cmp_ge_u32 s{sRb}, s{sIt}
  s_mov_b32 s{sRb}, -1
  s_cbranch_scc1 L_rbf""")
    a.label("L_rbf_back2")

    RBv = Q
    assert vRT4 - Q + 1 >= 14
    R0 = REC[0]
    G0, G1, RR, U = R0, R0 + 4, R0 + 8, R0 + 12
    XS0, XS1, XR, AG = R0 + 16, R0 + 18, R0 + 20, R0 + 22
    MS = [R0 + 24 + 2 * i for i in range(5)]
    vMoff, vLin, vOw, vOr = vCarOff, vI6, vI1, vI4
    a(f"""
  v_and_b32 {v(T)}, 63, v0
  s_mul_i32 s{sX}, s{sW}, 3584
  s_add_u32 s{sX}, s{sX}, {RB_OFF}
  v_lshl_add_u32 {v(T+1)}, {v(T)}, 3, s{sX}
  v_lshlrev_b32 {v(vLin)}, 4, {v(T)}
  v_bfe_u32 {v(T+2)}, v0, 4, 2
  v_and_b32 {v(T+3)}, 15, v0
  v_lshlrev_b32 {v(T+2)}, 3, {v(T+2)}
  v_lshl_add_u32 {v(vMoff)}, {v(T+3)}, 5, {v(T+2)}
  s_mul_i32 s{sX}, s{sW}, 6400
  s_add_u32 s{sX}, s{sX}, s{sIns}
  s_add_u32 s{sX}, s{sX}, 15
  s_and_b32 s{sX}, s{sX}, -16
  v_add_u32 {v(vOw)}, s{sX}, {v(vMoff)}
  v_add_u32 {v(vOr)}, s{sX}, {v(vLin)}
  v_cmp_gt_u32 {s(sT,2)}, 8, {v(T+3)}""")
    for h in range(7):
        a(f"  ds_read_b64 {v(RBv+2*h,2)}, {v(T+1)} offset:{h*512}")
    fo = [("g", t - NT) for t in range(NT - D, NT)]
    def fwait(x): return len(fo) - 1 - fo.index(x)
    def s1(p):
        b = RBv + (p & ~1)
        w0, w1 = (WS0, WS1) if p % 2 == 0 else (XS0, XS1)
        a(f"""
  v_mfma_f32_16x16x16_bf16 {v(G0,4)}, {v(w0,2)}, {v(b,2)}, 0
  v_mfma_f32_16x16x16_bf16 {v(G1,4)}, {v(w1,2)}, {v(b,2)}, 0""")
    def s2(p):
        t0 = ACC[2*p]; t1 = ACC[2*p+1] if 2*p+1 < NT else ACC[2*p]
        for r in range(4): a(f"  v_mul_f32 {v(U+r)}, {v(t0+r)}, {v(G0+r)}")
        for r in range(4): a(f"  v_mul_f32_dpp {v(U+r)}, {v(t1+r)}, {v(G0+r)} row_ror:8 row_mask:0xf bank_mask:0xc")
        for r in range(4): a(f"  v_fmac_f32_dpp {v(U+r)}, {v(t0+r)}, {v(G1+r)} row_ror:8 row_mask:0xf bank_mask:0x3")
        for r in range(4): a(f"  v_fmac_f32_dpp {v(U+r)}, {v(t1+r)}, {v(G1+r)} quad_perm:[0,1,2,3] row_mask:0xf bank_mask:0xc")
        a(f"""
  v_cvt_pk_bf16_f32 {v(AG)}, {v(U)}, {v(U+1)}
  v_cvt_pk_bf16_f32 {v(AG+1)}, {v(U+2)}, {v(U+3)}
  v_mfma_f32_16x16x16_bf16 {v(RR,4)}, {v(WR if p % 2 == 0 else XR,2)}, {v(RBv + (p & ~1),2)}, 0""")
        if p + 1 < 13: s1(p + 1)
        else: a("  s_nop 0")
        a(f"  v_mfma_f32_16x16x16_bf16 {v(U,4)}, {v(WUP,2)}, {v(AG,2)}, 0")
    def s3(p):
        x = ACC[2*p]; m_ = MS[p % 5]
        a(f"""
  s_waitcnt vmcnt({fwait(("m", p))})
  v_lshlrev_b32 {v(x)}, 16, {v(m_)}
  v_and_b32 {v(x+1)}, 0xffff0000, {v(m_)}
  v_lshlrev_b32 {v(x+2)}, 16, {v(m_+1)}
  v_and_b32 {v(x+3)}, 0xffff0000, {v(m_+1)}""")
        if p == 12: a("  s_nop 2")
        a(f"""
  v_pk_fma_f32 {v(x,2)}, {v(U,2)}, {v(RR,2)}, {v(x,2)}
  v_pk_fma_f32 {v(x+2,2)}, {v(U+2,2)}, {v(RR+2,2)}, {v(x+2,2)}
  v_cvt_pk_bf16_f32 {v(x)}, {v(x)}, {v(x+1)}
  v_cvt_pk_bf16_f32 {v(x+1)}, {v(x+2)}, {v(x+3)}""")
        if p == 12: a(f"  s_mov_b64 exec, {s(sT,2)}")
        a(f"  ds_write_b64 {v(vOw)}, {v(x,2)} offset:{p*512}")
        if p == 12: a(f"  s_mov_b64 exec, -1")
        if p % 2 == 1 or p == 12:
            r = p // 2
            a(f"  ds_read_b128 {v(ACC[4*r+1 if r < 6 else 23],4)}, {v(vOr)} offset:{r*1024}")
    def s4(r):
        a(f"  buffer_store_dwordx4 {v(ACC[4*r+1 if r < 6 else 23],4)}, {v(vLin)}, {s(sOUT,4)}, s{sEb if r < 4 else sEb2} offen offset:{(r%4)*1024}{POL[OPT['opol']]}")
        fo.append(("st", r))
    xw = {}
    for t in range(NT + D + 2):
        if t == 6:
            a(f"  s_cmp_lg_u32 s{sCin}, 0\n  s_cbranch_scc1 L_x3")
            a.label("L_x3_back")
            xw[3] = len(fo) - xw[2]
        if t < NT + D: step_top(t, False)
        else: a(f"  ; ---- tail {t}\n  s_waitcnt lgkmcnt(0)")
        prio("fp", OPT["fprio"], t)
        if t in (0, 3):
            n = 1 if t == 0 else 2
            a(f"  s_cmp_lg_u32 s{sCin}, 0\n  s_cbranch_scc1 L_x{n}")
            a.label(f"L_x{n}_back")
            xw[n] = len(fo)
        if t == NT: stamp(a, 252, 4)
        if t == NT + D: stamp(a, 252, 5)
        if t == 1:
            a(f"""
  v_mov_b32 {v(XS0)}, 0
  v_mov_b32 {v(XS0+1)}, {v(WS0)}
  v_mov_b32 {v(XS1)}, 0
  v_mov_b32 {v(XS1+1)}, {v(WS1)}
  v_mov_b32 {v(XR)}, 0
  v_mov_b32 {v(XR+1)}, {v(WR)}""")
        if t == 5: s1(0)
        ts2 = {2*p+7 if p < 12 else 30: p for p in range(13)}
        if t - 2 in ts2 and (ts2[t-2] % 2 == 1): s4(ts2[t-2] // 2)
        if t - 1 in ts2: s3(ts2[t-1])
        if t in ts2: s2(ts2[t])
        if t % 2 == 1 and t // 2 < 13:
            p = t // 2
            a(f"  buffer_load_dwordx2 {v(MS[p%5],2)}, {v(vMoff)}, {s(sMW,4)}, s{sEb if p < 8 else sEb2} offen offset:{(p%8)*512}{POL[OPT['mpol']]}")
            fo.append(("m", p))
        if t < NT:
            step_main(t, fwait(("g", t - D)), False)
            fo.append(("g", t))
        elif t < NT + D:
            a(f"  s_waitcnt vmcnt({fwait(('g', t - D))})")
            cstage_m1(t % D)
            a("  s_nop 6")
            cstage_cvt()
            a("  s_waitcnt lgkmcnt(0)\n  s_nop 0")
            cstage_m2(t - D)
            a("  s_nop 3")
    a("  s_waitcnt lgkmcnt(0)")
    s4(6)
    stamp(a, 252, 6)
    if OPT["stamp"]: a("  s_waitcnt vmcnt(0)")
    stamp(a, 252, 7); stamp(a, 252, 63, "s_memrealtime")
    if OPT["stamp"] == 1: a(f"  v_writelane_b32 v252, s{sIt}, 61")
    stamp_out(a, 252, sWS, 8, STAMPOFF + 0x200000, 253)
    a.label("L_end")
    a("  s_endpgm")

    sSm, sS2 = sMk
    a.label("L_x1")
    a(f"""
  v_cmp_gt_u32 vcc, s{sCin}, {v(vSlot)}
  v_lshlrev_b32 {v(T)}, 3, {v(vSlot)}
  s_nop 0
  v_cndmask_b32 {v(T)}, {v(vOOB)}, {v(T)}, vcc
  buffer_load_dwordx2 {v(AG,2)}, {v(T)}, {s(sCAR,4)}, s{sCarR} offen sc1
  s_branch L_x1_back""")
    a.label("L_x2")
    a(f"""
  s_mul_i32 s{sX}, s{sW}, {NT}
  s_waitcnt vmcnt({xw[2] - xw[1]})
  v_min_i32 {v(U)}, {v(AG)}, {v(AG+1)}
  v_cmp_gt_i32 vcc, 0, {v(AG)}
  v_bfe_u32 {v(U+2)}, {v(U)}, 23, 8
  v_subrev_u32 {v(U+2)}, s{sX}, {v(U+2)}
  v_cndmask_b32_sdwa {v(U+1)}, {v(AG)}, {v(AG+1)}, vcc dst_sel:WORD_1 dst_unused:UNUSED_PAD src0_sel:WORD_1 src1_sel:WORD_0
  v_cmp_gt_i32 {s(sS2,2)}, 0, {v(U)}
  v_cmp_gt_u32 {s(sSm,2)}, {NT}, {v(U+2)}
  s_and_b64 vcc, {s(sSm,2)}, {s(sS2,2)}
  s_cselect_b32 s{sCin}, s{sCin}, 0
  s_cbranch_scc0 L_x2_back
  v_and_b32 {v(T)}, 0x7ffff, {v(U)}
  v_lshl_add_u32 {v(T)}, {v(T)}, 5, {v(vHalf)}
  v_mul_f32 {v(U+1)}, {v(U+1)}, {v(vFreq)}
  v_cndmask_b32 {v(T)}, {v(vOOB)}, {v(T)}, vcc
  buffer_load_dwordx4 {v(RR,4)}, {v(T)}, {s(sM,4)}, 0 offen
  v_cndmask_b32 {v(U+2)}, {v(vOOB)}, {v(U+2)}, vcc
  v_cvt_pk_bf16_f32 {v(U+1)}, 0, {v(U+1)}
  v_mul_f32 {v(U+1)}, 0.15915494, {v(U+1)}
  v_fract_f32 {v(U+1)}, {v(U+1)}
  v_cos_f32 {v(U+1)}, {v(U+1)}
  v_bfe_u32 {v(U+3)}, {v(U)}, 20, 3
  v_lshl_add_u32 {v(U+3)}, {v(U+3)}, 4, {v(vSst)}
  v_cvt_pk_bf16_f32 {v(U+1)}, {v(U+1)}, {v(U+1)}
  s_branch L_x2_back""")
    a.label("L_x3")
    a(f"""
  s_waitcnt vmcnt({xw[3]})
  v_mfma_f32_16x16x32_bf16 {v(Da,4)}, {v(RR,4)}, {v(Wa,4)}, 0
  v_mfma_f32_16x16x32_bf16 {v(Db,4)}, {v(RR,4)}, {v(Wb,4)}, 0
  s_nop 6""")
    cstage_cvt()
    for t in range(NT):
        a(f"""
  v_cmp_eq_u32 vcc, {t}, {v(U+2)}
  s_cbranch_vccz L_x3_{t}
  s_mov_b64 exec, vcc
  ds_write_b16 {v(U+3)}, {v(U+1)}
  s_mov_b64 exec, -1
  ds_read_b128 {v(Sf,4)}, {v(vSrd)}
  s_mov_b64 exec, vcc
  ds_write_b16 {v(U+3)}, {v(vZ)}
  s_mov_b64 exec, -1
  s_waitcnt lgkmcnt(0)""")
        cstage_m2(t)
        a.label(f"L_x3_{t}")
    a("  s_branch L_x3_back")
    a.label("L_it0")
    a(f"  s_cmp_lg_u32 s{sFl}, 0\n  s_cbranch_scc1 L_body0")
    for r in range(NG, NS): st(r)
    a("  s_nop 0")
    for r in range(NG, NS): zero_acc(sdt(r))
    signal_all("z0", 0)
    a("  s_branch L_nosig_z")
    for t in range(4):
        a.label(f"L_first_{t}")
        for u in range(4*t, 4*t+4): rec_load(u, T + 4 + 2 * (u & 1))
        a(f"  s_branch L_first_back_{t}")
    a.label("L_allfirst")
    a(f"  s_mov_b32 s{sY}, s{sSo}")
    for r in range(NB + N1, NS): st(r)
    a(f"  s_mov_b32 s{sSo}, s{sY}\n  s_waitcnt vmcnt(0)\n  s_barrier\n{flag3}\n  s_branch L_allfirst_back")
    for g in slowg:
        a.label(f"L_pslow_{g}")
        for u in range(4*g, 4*g+4):
            a(f"""
  s_mov_b64 exec, {s(PMK(u),2)}
  v_cmp_lt_u32 vcc, 63, {v(PRK(u))}
  s_cbranch_vccz L_pskip_{u}
  s_andn2_b64 {s(PMK(u),2)}, {s(PMK(u),2)}, vcc
  s_mov_b64 exec, vcc
  ds_add_rtn_u32 {v(T+1)}, {v(vCtlN)}, {v(vOne)}
  s_waitcnt lgkmcnt(0)
  v_lshlrev_b32 {v(T+1)}, 3, {v(T+1)}
  buffer_store_dwordx2 {v(REC[u],2)}, {v(T+1)}, {s(sCAR,4)}, s{sCarW} offen
  s_waitcnt vmcnt(0)""")
            a.label(f"L_pskip_{u}")
        a(f"  s_mov_b64 exec, -1\n  s_branch L_pback_{g}")
    for tag in ("b0", "lp"):
        a.label(f"L_slow_{tag}")
        a(f"  s_mov_b32 s{sX}, 512")
        a.label(f"L_slow_loop_{tag}")
        a(f"""
  v_add_u32 {v(T+1)}, s{sX}, {v(vCarIdx)}
  v_cmp_gt_u32 vcc, s{sCin}, {v(T+1)}
  v_lshlrev_b32 {v(T+1)}, 3, {v(T+1)}
  s_nop 0
  v_cndmask_b32 {v(T+1)}, {v(vOOB)}, {v(T+1)}, vcc
  buffer_load_dwordx2 {v(REC[16],2)}, {v(T+1)}, {s(sCAR,4)}, s{sCarR} offen sc1
  s_waitcnt vmcnt(0)""")
        ins1(16, "0", 0)
        a("  s_waitcnt lgkmcnt(0)")
        ins2(16, "sl" + tag, 0)
        a(f"""
  s_add_u32 s{sX}, s{sX}, 512
  s_cmp_lt_u32 s{sX}, s{sCin}
  s_cbranch_scc1 L_slow_loop_{tag}
  s_waitcnt vmcnt(0)
  s_branch L_slow_back_{tag}""")
    a.label("L_rbf")
    DI = [Da + p for p in range(12)] + [T + 10, T + 11]
    H = T
    assert RK[1] == T + 13
    a(f"""
  v_and_b32 {v(H+8)}, 63, v0
  s_lshr_b32 s{sX}, s{sEb}, 4
  v_lshlrev_b32 {v(H+9)}, 3, {v(H+8)}
  v_lshlrev_b32 {v(H+8)}, 2, {v(H+8)}
  s_load_dwordx4 {s(84,4)}, s[58:59], 0
  buffer_load_dwordx2 {v(H,2)}, {v(H+9)}, {s(sDIST,4)}, s{sX} offen
  global_load_dwordx2 {v(H+2,2)}, {v(H+9)}, s[64:65]
  global_load_dwordx2 {v(H+4,2)}, {v(H+9)}, s[68:69]
  global_load_dword {v(H+6)}, {v(H+8)}, s[62:63]
  s_mov_b32 s{sC10}, 0xc1200000
  s_mov_b32 s{sC10+1}, 0xc1200000
  s_mov_b32 s{sCl2}, 0x3fb8aa3b
  s_mov_b32 s{sCl2+1}, 0x3fb8aa3b
  s_mul_i32 s{sX}, s{sW}, 3584
  s_add_u32 s{sX}, s{sX}, {RB_OFF}
  v_add_u32 {v(H+9)}, s{sX}, {v(H+9)}
  v_add_u32 {v(H+8)}, s{sX}, {v(H+8)}
  v_and_b32 {v(Da)}, 15, v0
  v_bfe_u32 {v(Da+1)}, v0, 4, 2
  v_lshl_add_u32 {v(H+7)}, {v(Da)}, 1, s{sX}
  v_lshl_add_u32 {v(Da+2)}, {v(Da+1)}, 7, {v(H+7)}
  v_lshl_add_u32 {v(Da+3)}, {v(Da+1)}, 6, {v(H+7)}
  s_waitcnt lgkmcnt(0)
  v_mov_b32 {v(H+13)}, s84
  v_cmp_eq_u32 vcc, 1, {v(Da+1)}
  v_mov_b32 {v(H+12)}, s85
  v_cmp_eq_u32 {s(sT,2)}, 2, {v(Da+1)}
  v_cndmask_b32 {v(H+13)}, {v(H+13)}, {v(H+12)}, vcc
  v_mov_b32 {v(H+12)}, s86
  v_cmp_eq_u32 vcc, 3, {v(Da+1)}
  v_cndmask_b32 {v(H+13)}, {v(H+13)}, {v(H+12)}, {s(sT,2)}
  v_mov_b32 {v(H+12)}, s87
  v_cndmask_b32 {v(H+13)}, {v(H+13)}, {v(H+12)}, vcc
  v_lshlrev_b32 {v(H+12)}, 16, {v(H+13)}
  v_and_b32 {v(H+13)}, 0xffff0000, {v(H+13)}
  s_waitcnt vmcnt(0)
  ds_write_b64 {v(H+9)}, {v(H,2)}
  ds_write_b64 {v(H+9)}, {v(H+2,2)} offset:512
  ds_write_b64 {v(H+9)}, {v(H+4,2)} offset:1024
  ds_write_b32 {v(H+8)}, {v(H+6)} offset:1536
  ds_read_u16 {v(WS0)}, {v(Da+2)} offset:512
  ds_read_u16 {v(WS1)}, {v(Da+2)} offset:{512+32}
  ds_read_u16 {v(WS0+1)}, {v(Da+2)} offset:{512+64}
  ds_read_u16 {v(WS1+1)}, {v(Da+2)} offset:{512+96}
  ds_read_u16 {v(WUP)}, {v(Da+2)} offset:1024
  ds_read_u16 {v(H)}, {v(Da+2)} offset:{1024+32}
  ds_read_u16 {v(WUP+1)}, {v(Da+2)} offset:{1024+64}
  ds_read_u16 {v(H+1)}, {v(Da+2)} offset:{1024+96}
  ds_read_u16 {v(WR)}, {v(Da+3)} offset:1536
  ds_read_u16 {v(WR+1)}, {v(Da+3)} offset:{1536+32}""")
    for p in range(13):
        a(f"  ds_read_u16 {v(DI[p])}, {v(H+7)} offset:{p*32}")
    a(f"""
  s_waitcnt lgkmcnt(0)
  v_lshl_or_b32 {v(WS0)}, {v(WS0+1)}, 16, {v(WS0)}
  v_lshl_or_b32 {v(WS1)}, {v(WS1+1)}, 16, {v(WS1)}
  v_lshl_or_b32 {v(WUP)}, {v(H)}, 16, {v(WUP)}
  v_lshl_or_b32 {v(WUP+1)}, {v(H+1)}, 16, {v(WUP+1)}
  v_lshl_or_b32 {v(WR)}, {v(WR+1)}, 16, {v(WR)}
  v_mov_b32 {v(WS0+1)}, 0
  v_mov_b32 {v(WS1+1)}, 0
  v_mov_b32 {v(WR+1)}, 0
  v_mov_b32 {v(DI[13])}, 0""")
    CEN = H + 12
    for ps in ([0,1,2,3], [4,5,6,7], [8,9,10], [11,12]):
        p0 = ps[0]
        tt = {p: H + 2 * (p - p0) for p in ps}
        def rnd():
            for p in ps: a(f"  v_cvt_pk_bf16_f32 {v(tt[p])}, 0, {v(tt[p])}\n  v_cvt_pk_bf16_f32 {v(tt[p]+1)}, 0, {v(tt[p]+1)}")
        for p in ps: a(f"  v_lshlrev_b32 {v(tt[p])}, 16, {v(DI[p])}")
        for p in ps: a(f"  v_pk_add_f32 {v(tt[p],2)}, {v(tt[p],2)}, {v(CEN,2)} op_sel_hi:[0,1] neg_lo:[0,1] neg_hi:[0,1]")
        rnd()
        for p in ps: a(f"  v_pk_mul_f32 {v(tt[p],2)}, {v(tt[p],2)}, {v(tt[p],2)}")
        rnd()
        for p in ps: a(f"  v_pk_mul_f32 {v(tt[p],2)}, {v(tt[p],2)}, {s(sC10,2)}")
        rnd()
        for p in ps: a(f"  v_pk_mul_f32 {v(tt[p],2)}, {v(tt[p],2)}, {s(sCl2,2)}")
        for p in ps: a(f"  v_exp_f32 {v(tt[p])}, {v(tt[p])}\n  v_exp_f32 {v(tt[p]+1)}, {v(tt[p]+1)}")
        for p in ps: a(f"  v_cvt_pk_bf16_f32 {v(DI[p])}, {v(tt[p])}, {v(tt[p]+1)}")
    for h in range(7):
        a(f"  ds_write_b64 {v(H+9)}, {v(DI[2*h],2)} offset:{h*512}")
    a(f"""
  s_waitcnt lgkmcnt(0)
  s_cmp_eq_u32 s{sRb}, -1
  s_cbranch_scc1 L_rbf_back2
  s_branch L_rbf_back1""")
    for lab, u, p in rare:
        a.label(f"L_rare_{lab}")
        a(f"""
  s_mov_b64 exec, vcc
  ds_add_rtn_u32 {v(RK[p])}, {v(vCtlN)}, {v(vOne)}
  v_mov_b32 {v(REC[u]+1)}, {v(WW[p])}
  s_waitcnt lgkmcnt(0)
  v_lshlrev_b32 {v(RK[p])}, 3, {v(RK[p])}
  buffer_store_dwordx2 {v(REC[u],2)}, {v(RK[p])}, {s(sCAR,4)}, s{sCarW} offen
  s_andn2_b64 exec, {s(sMk[p],2)}, vcc
  s_branch L_back_{lab}""")
    return NV

def kd(name, nv, ns):
    nv4 = (nv + 3) // 4 * 4
    return f""".amdhsa_kernel {name}
  .amdhsa_next_free_vgpr {nv}
  .amdhsa_next_free_sgpr {ns}
  .amdhsa_accum_offset {nv4}
  .amdhsa_group_segment_fixed_size 0
  .amdhsa_kernarg_size 112
  .amdhsa_user_sgpr_count 2
  .amdhsa_user_sgpr_kernarg_segment_ptr 1
  .amdhsa_system_sgpr_workgroup_id_x 1
  .amdhsa_float_denorm_mode_32 3
.end_amdhsa_kernel
"""

def main():
    out = sys.argv[1]
    ref = open(f"cdna_kernels/{NAME}.s.ref").read().split("\n")
    head = [l for l in ref if l.startswith(";") and "@launch" not in l and "Override" not in l and "grid=ceil" not in l]
    a = Asm()
    a(".amdgcn_target \"amdgcn-amd-amdhsa--gfx950\"\n.text")
    a(f".globl {NAME}_kernel\n.type {NAME}_kernel,@function")
    nv = gen_p2(a)
    errs = a.check()
    for e in errs: print("HAZARD", e)
    txt = "\n".join(head) + "\n"
    kern = f"kernel={NAME}_kernel " if OPT["list"] else ""
    txt += f"; @launch {kern}grid=(256,1,1) block=(512,1,1) lds={P1_LDS}\n"
    txt += a.text()
    txt += ".section .rodata,\"a\"\n.p2align 6\n" + kd(NAME + "_kernel", 256, 102)
    open(out, "w").write(txt)
    print("vgprs p2:", nv, "lines:", len(a.lines), "hazards:", len(errs))

main()
```

```python
import sys, os
sys.path.insert(0, os.path.dirname(__file__))
from asmlib import Asm

NAME = "gather_scatter__molecular_angular_gemnet__graph"
E = 400000
NCH, CH = 250, 25600
EB = 1568
K = 6
MJ = 2739138
TABOFF = 0x2800000
CAROFF = 0x3000000
CARCAP = 9216
CARLIST = CARCAP * 8
STAMPOFF = 0x6000000
FLGOFF = 0x2c00000
OPT = dict(tlb=0, cut=-1, opol=0, mpol=0, tq=5, fq=10, keff=6, jid=0, fprio=0x3ffff, lprio=0x3fff, napt=8, st0=1, stp=1, rb0=2, nap=16, list=1, nb=7, n1=2, n2=5, n2a=1, n3=2, arr=10, spin=60000, rec_pol=2, stamp=0, itcap=64, ld_nt=7, st_pol=0, mtouch=0, la=4, apre=4, wmain=70000, b5=0, lim=24, nb2=7, ins0=4,
           abl_mfma=0, abl_s=0, abl_cos=0, abl_g=0)
for a in sys.argv[2:]:
    k, v = a.split("=")
    assert k in OPT, k
    OPT[k] = int(v, 0)
MK = -(-(1 << 32) // OPT["wmain"])
assert (399999 * MK) >> 32 <= 5

RPOL = ('', ' nt', ' sc1', ' sc0 sc1')[OPT['rec_pol']]

POL = ('', ' nt', ' sc1', ' sc0 sc1')

def v(i, n=1):
    return f"v{i}" if n == 1 else f"v[{i}:{i+n-1}]"
def s(i, n=1):
    return f"s{i}" if n == 1 else f"s[{i}:{i+n-1}]"

def stamp(a, vreg, lane, op="s_memtime"):
    if lane == OPT["cut"]: a("  s_endpgm")
    if not OPT["stamp"]: return
    if OPT["stamp"] == 2:
        mp = {127: {62: (0, 1), 1: (1, 0), 4: (2, 0), 7: (3, 0), 63: (4, 0)}, 252: {62: (0, 1), 2: (1, 0), 11: (2, 0), 4: (3, 0), 63: (4, 0)}}[vreg]
        if lane not in mp: return
        l, inv = mp[lane]
        a(f"  s_memrealtime s[88:89]\n  s_waitcnt lgkmcnt(0)")
        if inv: a("  s_not_b32 s88, s88")
        a(f"  v_writelane_b32 v{vreg}, s88, {l}")
        return
    a(f"  {op} s[88:89]\n  s_waitcnt lgkmcnt(0)\n  v_writelane_b32 v{vreg}, s88, {lane}")
def stamp_out(a, vreg, wslo, nwaves, base, tmp):
    if not OPT["stamp"]: return
    if OPT["stamp"] == 2:
        back = 512 if vreg == 127 else 32
        a(f"""
  s_load_dwordx2 s[90:91], s[0:1], 96
  s_waitcnt lgkmcnt(0)
  s_add_u32 s92, s90, {back}
  s_addc_u32 s93, s91, 0
  s_mov_b32 s94, 20
  s_mov_b32 s95, 0x20000
  v_lshlrev_b32 v{tmp}, 2, v0
  buffer_atomic_umax v{vreg}, v{tmp}, s[92:95], 0 offen""")
        return
    a(f"  s_mul_i32 s88, s2, {nwaves*256}\n  s_add_u32 s88, s88, {base}")
    srd(a, 92, wslo, wslo+1, "s88", nwaves*256)
    a(f"  v_lshlrev_b32 v{tmp}, 2, v0\n  buffer_store_dword v{vreg}, v{tmp}, s[92:95], 0 offen")

def srd(a, d, lo, hi, add, size):
    if add is None:
        a(f"  s_mov_b32 s{d}, s{lo}\n  s_mov_b32 s{d+1}, s{hi}")
    else:
        a(f"  s_add_u32 s{d}, s{lo}, {add}\n  s_addc_u32 s{d+1}, s{hi}, 0")
    a(f"  s_mov_b32 s{d+2}, {size}\n  s_mov_b32 s{d+3}, 0x20000")

P1_CNT, P1_SENT, P1_TMP, P1_REC = 0, 6144, 6160, 6272
P1_LDS = P1_REC + CH * 6

TS = 264
BUFSZ = 200 * TS
S_OFF = 13 * 8192
CTL = S_OFF + 8192
RB_OFF = CTL + 128
P2_LDS = RB_OFF + 8 * 3584
D = 5
NT = 25

class RA:
    def __init__(self, start): self.n = start
    def __call__(self, k=1, al=1):
        self.n = (self.n + al - 1) // al * al
        r = self.n; self.n += k
        return r

def gen_p2(a):
    ra = RA(1)
    vSlot, vHalf, vFreq, vSst, vSrd, vI6, vI1, vI4 = (ra() for _ in range(8))
    vRd, vCntA, vOne, vOOB, vCarOff, vCarIdx, v264, vMsk, vCtlN = (ra() for _ in range(9))
    vZ = ra(2, 2)
    Q = ra(6, 4)
    sA, nA, cb, rem, rtot, vA6, vB6, vR0, vRT4 = (ra() for _ in range(9))
    vCnt = ra()
    Wa = ra(4, 4); Wb = ra(4, 4)
    RING = [ra(4, 4) for _ in range(D)]
    Da = ra(4, 4); Db = ra(4, 4); P = ra(4, 4); Sf = ra(4, 4)
    ACC = [ra(4, 4) for _ in range(NT)]
    REC = [ra(2, 4 if i == 0 else 2) for i in range(17)]
    RP = [ra(2, 2), ra(2, 2)]
    T = ra(10, 2)
    TA = [ra(), ra()]; RK = [ra(), ra()]
    WS0 = ra(2, 2); WS1 = ra(2, 2); WR = ra(2, 2); WUP = ra(2, 2)
    CC = [ra() for _ in range(D)]; SA = [ra() for _ in range(D)]
    WW = [ra(), ra()]
    assert ra.n <= 252, ra.n
    NV = ra.n
    sM = 4; sREC = 8; sCAR = 12; sTAB = 16; sOUT = 20; sDIST = 24; sMW = 28
    sJ, sW, sIt, sThr, sIns, sCarW, sCarR, sRb, sCin, sX, sFl, sEb = range(32, 44)
    sCnt = [44, 45]
    sWS = 46
    sPM = 72
    sMk = [72, 74]; sT = 76; sC10 = 78; sCl2 = 80
    sEb2 = 3
    rare = []

    O, I, R, A = 36, 88, 140, 192
    PT = 218
    vL16, vL8, vL4, vL128, vSix, vTwo, vFlg, vDum, vTab, vWo = range(234, 244)
    assert Wa == 36 and T == PT
    vSent = vCnt
    sIO, sII, sAN, sMT, sTW, sDBG = 4, 8, 12, 16, 20, 24
    sFLG, sRW = 92, 96
    sMJ, sMK, sNEB, sB5, sO4, sO2 = range(80, 86)
    sY, sSo = 100, 101
    nto, nti, nta = (" nt" if OPT["ld_nt"] >> b & 1 else "" for b in range(3))
    NR = 13
    nrec = lambda q: 4 if q < 12 else 2
    vm = []
    def ld_pair(q):
        if q < 12:
            a(f"  buffer_load_dwordx4 {v(O+4*q,4)}, {v(vL16)}, {s(sIO,4)}, s{sO4} offen{nto}")
            a(f"  buffer_load_dwordx4 {v(I+4*q,4)}, {v(vL16)}, {s(sII,4)}, s{sO4} offen{nti}")
            a(f"  s_add_u32 s{sO4}, s{sO4}, 8192")
        else:
            a(f"  buffer_load_dwordx2 {v(O+48,2)}, {v(vL8)}, {s(sIO,4)}, s{sO4} offen{nto}")
            a(f"  buffer_load_dwordx2 {v(I+48,2)}, {v(vL8)}, {s(sII,4)}, s{sO4} offen{nti}")
        vm.extend([("o", q), ("p", q)])
    def ld_ang(q):
        if q < 12:
            a(f"  buffer_load_dwordx2 {v(A+2*q,2)}, {v(vL8)}, {s(sAN,4)}, s{sO2} offen{nta}")
            a(f"  s_add_u32 s{sO2}, s{sO2}, 4096")
        else: a(f"  buffer_load_dword {v(A+24)}, {v(vL4)}, {s(sAN,4)}, s{sO2} offen{nta}")
        vm.append(("a", q))
    def wait_for(x):
        a(f"  s_waitcnt vmcnt({len(vm) - 1 - vm.index(x)})")
    def poll(tag, load, cond, nap=4):
        a(f"  s_mov_b32 s{sY}, {OPT['spin']}")
        a.label(f"L_poll_{tag}")
        a(load)
        a("  s_waitcnt vmcnt(0)")
        a(cond)
        a(f"""
  s_cbranch_vccz L_polled_{tag}
  s_sleep {nap}
  s_sub_u32 s{sY}, s{sY}, 1
  s_cbranch_scc0 L_poll_{tag}""")
        a.label(f"L_polled_{tag}")

    a(".p2align 8")
    a.label(NAME + "_kernel")
    a(f"""
  s_cmp_ge_u32 s2, 256
  s_cbranch_scc1 L_end
  s_load_dwordx16 s[48:63], s[0:1], 0
  s_load_dwordx4 s[44:47], s[0:1], 96
  s_load_dwordx8 s[64:71], s[0:1], 64
  v_lshlrev_b32 {v(vL16)}, 4, v0
  v_mov_b64 {v(PT,2)}, 0
  v_mov_b64 {v(PT+2,2)}, 0
  s_min_u32 s{sY}, s2, {NCH-1}
  s_mul_i32 s{sX}, s{sY}, {CH*4}
  s_cmp_lt_u32 s2, {NCH}
  s_cselect_b32 s{sFl}, {CH*2}, 0
  s_lshl_b32 s{sCin}, s{sFl}, 1
  s_mov_b32 s{sO4}, 0
  s_mov_b32 s{sO2}, 0
  ds_write_b128 {v(vL16)}, {v(PT,4)}
  s_waitcnt lgkmcnt(0)""")
    stamp(a, 252, 0); stamp(a, 252, 62, "s_memrealtime")
    srd(a, sIO, 52, 53, f"s{sX}", f"s{sCin}")
    srd(a, sII, 50, 51, f"s{sX}", f"s{sCin}")
    ld_pair(0); ld_pair(1)
    a("  s_barrier")
    LA = OPT["la"]
    for q in range(2, LA): ld_pair(q)
    a(f"  s_lshr_b32 s{sX}, s{sX}, 1")
    srd(a, sAN, 56, 57, f"s{sX}", f"s{sFl}")
    srd(a, sMT, 48, 49, f"s{sX}", f"s{sFl}")
    a(f"  s_mul_i32 s{sX}, s{sY}, {CH*6}\n  s_mul_i32 s{sFl}, s{sFl}, 3")
    srd(a, sRW, sWS, sWS+1, f"s{sX}", f"s{sFl}")
    srd(a, sTW, sWS, sWS+1, TABOFF, 256 * 8192)
    srd(a, sFLG, sWS, sWS+1, FLGOFF, 8192)
    srd(a, sDBG, 44, 45, None, 256)
    a(f"""
  s_lshl_b32 s{sX}, s2, 2
  v_lshl_add_u32 {v(vFlg)}, v0, 10, s{sX}
  s_cmp_lt_u32 s2, {NCH}
  s_cselect_b32 s{sX}, 0, 4
  v_mov_b32 {v(vDum)}, s{sX}
  buffer_store_dword {v(vDum)}, {v(vFlg)}, {s(sFLG,4)}, 0 offen sc1
  s_lshl_b32 s{sX}, s{sX}, 20
  v_or_b32 {v(vFlg)}, s{sX}, {v(vFlg)}
  s_load_dword s{sCin}, s[60:61], 0
  v_lshlrev_b32 {v(vL8)}, 3, v0
  v_lshlrev_b32 {v(vL4)}, 2, v0
  v_lshlrev_b32 {v(vL128)}, 7, v0
  v_mov_b32 {v(vSix)}, 6
  v_mov_b32 {v(vTwo)}, 2
  s_mov_b32 s{sMJ}, {MJ}
  s_mov_b32 s{sMK}, {MK}
  s_mov_b32 s{sNEB}, {-EB & 0xffffffff}
  s_mov_b32 s{sB5}, {OPT['b5']}
  s_and_b32 s{sJ}, s2, 7
  s_lshl_b32 s{sJ}, s{sJ}, 5
  s_lshr_b32 s{sX}, s2, 3
  s_add_u32 s{sJ}, s{sJ}, s{sX}
  {"s_mov_b32 s%d, s2" % sJ if OPT["jid"] else "s_nop 0"}
  v_lshrrev_b32 {v(T)}, 6, v0
  v_and_b32 {v(T+2)}, 15, v0
  v_bfe_u32 {v(T+3)}, v0, 5, 1
  v_readfirstlane_b32 s{sW}, {v(T)}
  v_lshlrev_b32 {v(vHalf)}, 4, {v(T+3)}
  v_lshl_add_u32 {v(cb)}, {v(T)}, 5, {v(vHalf)}
  v_add_u32 {v(cb)}, {v(cb)}, {v(T+2)}
  v_lshlrev_b32 {v(vTab)}, 13, {v(cb)}
  v_and_b32 {v(T+1)}, 63, v0
  v_and_b32 {v(vSlot)}, 31, v0
  v_mov_b64 {v(vZ,2)}, 0
  v_mov_b32 {v(v264)}, {TS}
  v_lshlrev_b32 {v(vWo)}, 1, {v(T+2)}
  v_lshl_add_u32 {v(vWo)}, {v(T+3)}, 8, {v(vWo)}
  v_lshl_add_u32 {v(vWo)}, {v(T)}, 5, {v(vWo)}
  v_mov_b32 {v(vCtlN)}, {CTL}
  s_lshl_b32 s{sX}, s{sW}, 10
  s_add_u32 s{sX}, s{sX}, {S_OFF}
  v_lshl_add_u32 {v(vSrd)}, {v(T+1)}, 4, s{sX}
  v_bfe_u32 {v(T+6)}, v0, 2, 2
  v_lshlrev_b32 {v(vSst)}, 8, {v(T+6)}
  v_lshl_add_u32 {v(vSst)}, {v(T+3)}, 7, {v(vSst)}
  v_bfe_u32 {v(T+6)}, v0, 4, 1
  v_lshl_add_u32 {v(vSst)}, {v(T+6)}, 3, {v(vSst)}
  v_and_b32 {v(T+6)}, 3, v0
  v_lshl_add_u32 {v(vSst)}, {v(T+6)}, 1, {v(vSst)}
  v_add_u32 {v(vSst)}, s{sX}, {v(vSst)}
  v_mov_b32 {v(vOne)}, 1
  v_mov_b32 {v(vOOB)}, 0x80000000
  v_mov_b32 {v(vMsk)}, 0x7ffffffc
  v_mul_u32_u24 {v(vI6)}, 6, {v(vSlot)}
  v_add_u32 {v(vI1)}, 1, {v(vSlot)}
  v_lshlrev_b32 {v(vI4)}, 2, {v(vI1)}
  v_mov_b32 {v(T+6)}, {CH}
  v_mul_u32_u24 {v(cb)}, {v(cb)}, {v(T+6)}
  v_mov_b32 {v(sA)}, 0
  v_mov_b32 {v(nA)}, 0
  v_mov_b32 {v(rtot)}, 0
  s_mul_i32 s{sX}, s{sW}, {NT*TS}
  s_add_u32 s{sX}, s{sX}, {BUFSZ}
  v_lshl_add_u32 {v(vRd)}, {v(vSlot)}, 3, s{sX}
  v_min_u32 {v(T+6)}, {NT-1}, {v(T+1)}
  v_mad_u32_u24 {v(vCntA)}, {v(T+6)}, {v(v264)}, s{sX}
  v_sub_u32 {v(vCarIdx)}, 511, v0
  v_lshlrev_b32 {v(vCarOff)}, 3, {v(vCarIdx)}
  v_cmp_eq_u32 vcc, 1, {v(T+3)}
  s_waitcnt lgkmcnt(0)
  s_lshl_b32 s{sX}, s{sCin}, 16
  s_and_b32 s{sCin}, s{sCin}, 0xffff0000
  v_mov_b32 {v(vFreq)}, s{sX}
  v_mov_b32 {v(T+6)}, s{sCin}
  v_cndmask_b32 {v(vFreq)}, {v(vFreq)}, {v(T+6)}, vcc
  s_mov_b32 s{sIt}, -1
  s_mov_b32 s{sIns}, 0
  s_mov_b32 s{sCarW}, 0
  s_mov_b32 s{sCarR}, {CARLIST}
  s_lshr_b32 s{sRb}, s{sW}, 2
  s_add_u32 s{sRb}, s{sRb}, {OPT['rb0']}
  s_nop 0""")
    if OPT["tlb"]:
        sh = OPT["tlb"]
        srd(a, 28, sWS, sWS+1, None, FLGOFF + 8192)
        a(f"  v_lshlrev_b32 v249, {sh}, v0\n  buffer_load_dword v248, v249, s[28:31], 0 offen")
        srd(a, 28, 48, 49, None, E * 32)
        a(f"  buffer_load_dword v248, v249, s[28:31], 0 offen")
        srd(a, 28, 70, 71, None, E * 32)
        a(f"  buffer_load_dword v248, v249, s[28:31], 0 offen")
        vm.extend([("tlb", i) for i in range(3)])
    a(f"""
  s_cmp_ge_u32 s2, {NCH}
  s_cbranch_scc1 L_nochunk1""")
    vm.append(("flg", 0))
    arrive = f"""
  s_and_b32 s{sY}, s2, 15
  s_lshl_b32 s{sY}, s{sY}, 4
  v_lshlrev_b32 {v(PT)}, 8, v0
  buffer_atomic_add {v(vOne)}, {v(PT)}, {s(sDBG,4)}, s{sY} offen"""
    def hist(idx):
        if OPT["b5"]:
            for x, i in enumerate(idx): a(f"  v_cmp_le_u32 {s(72+2*x,2)}, s{sB5}, {v(I+i)}")
        for x, i in enumerate(idx): a(f"  v_mul_hi_u32_u24 {v(PT+x)}, s{sMJ}, {v(O+i)}")
        for x, i in enumerate(idx): a(f"  v_mul_hi_u32_u24 {v(PT+4+x)}, s{sMK}, {v(I+i)}")
        if OPT["b5"]:
            for x, i in enumerate(idx): a(f"  v_cndmask_b32 {v(PT+4+x)}, {v(PT+4+x)}, 5, {s(72+2*x,2)}")
        for x, i in enumerate(idx): a(f"  v_mad_i32_i24 {v(PT+8+x)}, {v(PT+x)}, s{sNEB}, {v(O+i)}")
        for x, i in enumerate(idx): a(f"  v_lshl_add_u32 {v(O+i)}, {v(PT+4+x)}, 8, {v(PT+x)}")
        for x, i in enumerate(idx): a(f"  v_lshlrev_b32 {v(O+i)}, 2, {v(O+i)}")
        for x, i in enumerate(idx): a(f"  ds_add_rtn_u32 {v(R+i)}, {v(O+i)}, {v(vOne)}")
        for x, i in enumerate(idx): a(f"  v_lshl_or_b32 {v(I+i)}, {v(PT+8+x)}, 20, {v(I+i)}")
        for x, i in enumerate(idx): a(f"  v_or_b32 {v(I+i)}, 0x80000000, {v(I+i)}")
    na = 0
    for q in range(NR):
        wait_for(("p", q))
        if q == 0: stamp(a, 252, 40)
        if q == LA:
            a(arrive); vm.append(("arr", 0))
        if q + LA < NR: ld_pair(q + LA)
        else:
            for _ in range(2):
                if na < OPT["apre"]: ld_ang(na); na += 1
        hist(list(range(4*q, 4*q + nrec(q))))
    stamp(a, 252, 41)
    X = v(PT+4)
    a(f"""
  s_waitcnt lgkmcnt(0)
  s_barrier
  s_cmp_ge_u32 s{sW}, {K}
  s_cbranch_scc1 L_bin_s1
  ds_read_b128 {v(PT,4)}, {v(vL16)}
  v_and_b32 {v(PT+8)}, 63, v0
  s_waitcnt lgkmcnt(0)
  v_add_u32 {v(PT+1)}, {v(PT)}, {v(PT+1)}
  v_add_u32 {v(PT+2)}, {v(PT+1)}, {v(PT+2)}
  v_add_u32 {v(PT+3)}, {v(PT+2)}, {v(PT+3)}
  v_mov_b32 {v(PT+4)}, {v(PT+3)}""")
    for sh in (1, 2, 4, 8):
        a(f"  s_nop 1\n  v_add_u32_dpp {X}, {X}, {X} row_shr:{sh} row_mask:0xf bank_mask:0xf bound_ctrl:0")
    a(f"  s_nop 1\n  v_add_u32_dpp {X}, {X}, {X} row_bcast:15 row_mask:0xa bank_mask:0xf")
    a(f"  s_nop 1\n  v_add_u32_dpp {X}, {X}, {X} row_bcast:31 row_mask:0xc bank_mask:0xf")
    a(f"""
  v_cmp_lt_u32 vcc, s{sW}, {v(PT+8)}
  v_readlane_b32 s{sY}, {X}, 63
  v_lshlrev_b32 {v(PT+9)}, 2, {v(PT+8)}
  s_and_b32 vcc_lo, vcc_lo, 0xff
  s_mov_b32 vcc_hi, 0
  v_mov_b32 {v(PT+10)}, s{sY}
  s_mov_b64 exec, vcc
  ds_add_u32 {v(PT+9)}, {v(PT+10)} offset:{P1_TMP}
  s_mov_b64 exec, -1
  s_waitcnt lgkmcnt(0)""")
    a.label("L_bin_s1")
    a(f"""
  s_barrier
  s_cmp_ge_u32 s{sW}, {K}
  s_cbranch_scc1 L_bin_s2
  s_lshl_b32 s{sY}, s{sW}, 2
  v_mov_b32 {v(PT+9)}, s{sY}
  ds_read_b32 {v(PT+9)}, {v(PT+9)} offset:{P1_TMP}
  v_sub_u32 {X}, {X}, {v(PT+3)}
  v_mov_b32 {v(PT+10)}, {CH}
  s_waitcnt lgkmcnt(0)
  v_add_u32 {v(PT+4)}, {X}, {v(PT+9)}
  v_add_u32 {v(PT+5)}, {v(PT+4)}, {v(PT)}
  v_add_u32 {v(PT+6)}, {v(PT+4)}, {v(PT+1)}
  v_add_u32 {v(PT+7)}, {v(PT+4)}, {v(PT+2)}
  ds_write_b128 {v(vL16)}, {v(PT+4,4)}
  ds_write_b32 {v(vZ)}, {v(PT+10)} offset:{P1_SENT}
  s_waitcnt lgkmcnt(0)""")
    a.label("L_bin_s2")
    a("  s_barrier")
    stamp(a, 252, 42)
    a(f"""
  v_lshrrev_b32 {v(PT+12)}, 1, v0
  v_and_b32 {v(PT+13)}, 1, v0
  v_lshlrev_b32 {v(PT+12)}, 2, {v(PT+12)}
  v_lshl_add_u32 {v(PT+13)}, {v(PT+13)}, 12, {v(PT+12)}
  s_lshl_b32 s{sY}, s2, 13""")
    for k in range(4):
        a(f"  ds_read_b32 {v(PT+k)}, {v(PT+13)} offset:{k*1024}")
        a(f"  ds_read_b32 {v(PT+6+k)}, {v(PT+13)} offset:{k*1024+4}")
    a("  s_waitcnt lgkmcnt(0)")
    for k in range(4): a(f"  v_sub_u32 {v(PT+6+k)}, {v(PT+6+k)}, {v(PT+k)}")
    for k in range(4): a(f"  v_lshl_or_b32 {v(PT+k)}, {v(PT+6+k)}, 16, {v(PT+k)}")
    a(f"  buffer_store_dwordx4 {v(PT,4)}, {v(vL16)}, {s(sTW,4)}, s{sY} offen sc1")
    vm.append(("tab", 0))
    mark = len(vm)
    while na < NR: ld_ang(na); na += 1
    if OPT["mtouch"]:
        a(f"  buffer_load_dword v244, {v(vL128)}, {s(sMT,4)}, 0 offen"); vm.append(("m", 0))
    NB = OPT["nb"]
    vDa, vDv, vRa = 245, 246, 247
    lda = f"  buffer_load_dword {v(vDv)}, {v(vDa)}, {s(sDBG,4)}, 0 offen sc1"
    cda = f"  v_cmp_gt_u32 vcc, 16, {v(vDv)}"
    ada = f"""
  s_lshl_b32 s{sX}, s{sW}, 16
  v_and_b32 {v(vDa)}, 15, v0
  v_lshl_add_u32 {v(vDa)}, {v(vDa)}, 4, s{sX}"""
    NRD = 15
    for i in range(NRD): a(f"  ds_read_b32 {v(O+i)}, {v(O+i)}")
    a(f"  s_mov_b32 s{sB5}, {NB*8192 + 4}\n  s_mov_b32 s{sSo}, 0")
    a(ada)
    a(f"  v_add_u32 {v(vRa)}, {P1_REC}, {v(vL16)}")
    for g in range(10):
        idx = list(range(5*g, 5*g+5))
        a(f"  s_waitcnt lgkmcnt({min(10, 45 - 5*g)})")
        for i in idx:
            if i + NRD < 50: a(f"  ds_read_b32 {v(O+i+NRD)}, {v(O+i+NRD)}")
        for i in idx: a(f"  v_add_u32 {v(O+i)}, {v(O+i)}, {v(R+i)}")
        for i in idx: a(f"  v_mad_u32_u24 {v(O+i)}, {v(O+i)}, {v(vSix)}, {v(vTwo)}")
        for x, i in enumerate(idx): a(f"  v_and_b32 {v(PT+x)}, 2, {v(O+i)}")
        for i in idx: a(f"  v_and_b32 {v(R+i)}, -4, {v(O+i)}")
        for x, i in enumerate(idx): a(f"  v_lshl_add_u32 {v(O+i)}, {v(PT+x)}, 1, {v(O+i)}")
    def put(q, cmp):
        idx = list(range(4*q, 4*q + nrec(q)))
        for x, i in enumerate(idx): a(f"  v_cmp_{cmp}_u32 {s(72+2*x,2)}, s{sB5}, {v(R+i)}")
        for x, i in enumerate(idx):
            op = "ds_write_b16_d16_hi" if (i & 1) else "ds_write_b16"
            a(f"""
  s_mov_b64 exec, {s(72+2*x,2)}
  ds_write_b32 {v(R+i)}, {v(I+i)} offset:{P1_REC}
  {op} {v(O+i)}, {v(A + i//2)} offset:{P1_REC-2}""")
        a("  s_mov_b64 exec, -1")
    for q in range(NR):
        wait_for(("a", q))
        for r in range(nrec(q) // 2): a(f"  v_and_b32 {v(A+2*q+r)}, 0x7fff7fff, {v(A+2*q+r)}")
        if q == OPT["tq"]:
            assert q >= OPT["apre"]
            a("  s_barrier")
            a(lda); vm.append(("lda", 0))
            a(f"  buffer_store_dword {v(vOne)}, {v(vFlg)}, {s(sFLG,4)}, 0 offen sc1"); vm.append(("flg", 1))
        put(q, "gt")
    a(f"  ds_read_b32 v248, {v(vZ)} offset:2048")
    a("  s_waitcnt lgkmcnt(0)\n  s_barrier")
    stamp(a, 252, 43)
    a(f"  v_readfirstlane_b32 s{sO2}, v248")
    free = [PT, PT + 4, PT + 8, O, I, R, O + 4, I + 4, R + 4]
    def erd(r): a(f"  ds_read_b128 {v(free[r],4)}, {v(vRa)} offset:{r*8192}")
    def est(r):
        a(f"  buffer_store_dwordx4 {v(free[r],4)}, {v(vL16)}, {s(sRW,4)}, s{sSo} offen sc1\n  s_add_u32 s{sSo}, s{sSo}, 8192")
        vm.append(("st", r))
    assert NB <= 8
    for r in range(3): erd(r)
    for r in range(3):
        a(f"  s_waitcnt lgkmcnt({2 - r})")
        est(r)
    put(0, "le"); put(1, "le")
    for r in range(3, NB): erd(r)
    put(2, "le")
    a("  s_waitcnt lgkmcnt(0)")
    todo = list(range(3, NB))
    fad = f"""
  v_and_b32 {v(RK[0])}, 63, v0
  v_lshlrev_b32 {v(RK[0])}, 4, {v(RK[0])}
  s_and_b32 s{sCin}, s2, 7
  s_lshl_b32 s{sCin}, s{sCin}, 10"""
    for q in range(3, NR):
        if todo: est(todo.pop(0))
        if q == OPT["fq"]:
            assert q >= 8 and Da == O + 28 and not todo
            a(fad)
            a(f"  s_mov_b32 s{sO4}, 0\n  s_cmp_lg_u32 s{sW}, 0\n  s_cbranch_scc1 L_nofl")
            wait_for(("lda", 0))
            a(cda)
            a(f"  s_cbranch_vccnz L_nofl\n  s_mov_b32 s{sO4}, 1")
            a(f"  buffer_load_dwordx4 {v(Da,4)}, {v(RK[0])}, {s(sFLG,4)}, s{sCin} offen sc1")
            a.label("L_nofl")
        put(q, "le")
    assert not todo
    stamp(a, 252, 44)
    FP = Da
    def flag_load(dst, off): return f"  buffer_load_dwordx4 {v(dst,4)}, {v(off)}, {s(sFLG,4)}, s{sCin if dst == FP else sX} offen sc1"
    def flag_cond(dst, stage): return f"""
  v_min3_u32 {v(dst)}, {v(dst)}, {v(dst+1)}, {v(dst+2)}
  v_min_u32 {v(dst)}, {v(dst)}, {v(dst+3)}
  v_cmp_gt_u32 vcc, {stage}, {v(dst)}"""
    a(f"  s_waitcnt vmcnt(0)\n  s_cmp_lg_u32 s{sW}, 0\n  s_cbranch_scc1 L_polled_t")
    a(f"  s_cmp_eq_u32 s{sO4}, 0\n  s_cbranch_scc1 L_wait_a")
    a(flag_cond(FP, 1))
    a("  s_cbranch_vccz L_polled_t\n  s_branch L_polled_a")
    a.label("L_nochunk1")
    if 40 <= OPT["cut"] <= 44: a("  s_endpgm")
    a("  s_waitcnt vmcnt(0)")
    a(arrive)
    a(ada)
    a(fad)
    a(f"  s_mov_b32 s{sO2}, 0\n  s_cmp_lg_u32 s{sW}, 0\n  s_cbranch_scc1 L_polled_t")
    a.label("L_wait_a")
    poll("a", lda, cda, 64)
    poll("t", flag_load(FP, RK[0]), flag_cond(FP, 1), OPT["napt"])
    a(f"""
  s_lshl_b32 s{sX}, s{sJ}, 5
  s_add_u32 s{sX}, s{sX}, {TABOFF}""")
    srd(a, sTAB, sWS, sWS+1, f"s{sX}", (NCH - 1) * 8192 + 32)

    def state_update():
        a(f"""
  v_sub_u32 {v(rem)}, {v(rem)}, {v(rtot)}
  v_lshrrev_b32 {v(T)}, 16, {v(Q)}
  v_and_b32 {v(T+1)}, 0xffff, {v(Q)}
  v_min_u32 {v(vR0)}, 32, {v(nA)}
  v_cmp_ge_u32 vcc, 32, {v(nA)}
  v_sub_u32 {v(T+2)}, 32, {v(vR0)}
  v_add_u32 {v(vB6)}, {v(cb)}, {v(T+1)}
  v_min_u32 {v(T+2)}, {v(T)}, {v(T+2)}
  v_mul_u32_u24 {v(vB6)}, 6, {v(vB6)}
  v_add_u32 {v(rtot)}, {v(vR0)}, {v(T+2)}
  v_mad_i32_i24 {v(vB6)}, {v(vR0)}, -6, {v(vB6)}
  v_lshlrev_b32 {v(vRT4)}, 2, {v(rtot)}
  v_add_u32 {v(vA6)}, {v(cb)}, {v(sA)}
  v_mul_u32_u24 {v(vA6)}, 6, {v(vA6)}""")
    def state_update2():
        a(f"""
  v_add_u32 {v(sA)}, 32, {v(sA)}
  v_subrev_u32 {v(nA)}, 32, {v(nA)}
  v_add_u32 {v(T+1)}, {v(T+1)}, {v(T+2)}
  v_sub_u32 {v(T)}, {v(T)}, {v(T+2)}
  v_cndmask_b32 {v(sA)}, {v(sA)}, {v(T+1)}, vcc
  v_cndmask_b32 {v(nA)}, {v(nA)}, {v(T)}, vcc""")
        for i in range(K - 1):
            a(f"  v_cndmask_b32 {v(Q+i)}, {v(Q+i)}, {v(Q+i+1)}, vcc")
        a(f"  v_cndmask_b32 {v(Q+K-1)}, {v(Q+K-1)}, {v(vZ)}, vcc")
    def set_flag(tag):
        a(f"""
  v_cmp_lt_u32 vcc, 0, {v(rem)}
  s_cbranch_vccz L_noflag_{tag}
  ds_write_b32 {v(vCtlN)}, {v(vOne)} offset:4""")
        a.label(f"L_noflag_{tag}")

    bc = lambda u: f"row_newbcast:{u} row_mask:0xf bank_mask:0xf"
    def rec_load(u, t0):
        a(f"""
  v_sub_co_u32_dpp {v(t0)}, vcc, {v(vR0)}, {v(vI1)} {bc(u)}
  v_add_u32_dpp {v(t0)}, {v(vA6)}, {v(vI6)} {bc(u)}
  v_add_u32_dpp {v(t0+1)}, {v(vB6)}, {v(vI6)} {bc(u)}
  v_cndmask_b32 {v(t0)}, {v(t0)}, {v(t0+1)}, vcc
  v_sub_u32_dpp {v(t0+1)}, {v(vRT4)}, {v(vI4)} {bc(u)}
  v_bfi_b32 {v(t0)}, {v(vMsk)}, {v(t0)}, {v(t0+1)}
  buffer_load_dwordx2 {v(REC[u],2)}, {v(t0)}, {s(sREC,4)}, 0 offen{RPOL}""")

    SDWA = "dst_sel:WORD_1 dst_unused:UNUSED_PAD src0_sel:WORD_1 src1_sel:WORD_0"
    def ins1(u, thr, p):
        ta, rk, mk, w = TA[p], RK[p], sMk[p], WW[p]
        a(f"""
  v_cmp_gt_i32 vcc, 0, {v(REC[u])}
  v_min_i32 {v(w)}, {v(REC[u])}, {v(REC[u]+1)}
  v_cmp_gt_i32 {s(mk,2)}, {thr}, {v(w)}
  v_bfe_u32 {v(ta)}, {v(w)}, 23, 8
  v_cndmask_b32_sdwa {v(REC[u])}, {v(REC[u])}, {v(REC[u]+1)}, vcc {SDWA}
  v_mad_u32_u24 {v(ta)}, {v(ta)}, {v(v264)}, s{sIns}
  s_mov_b64 exec, {s(mk,2)}
  ds_add_rtn_u32 {v(rk)}, {v(ta)}, {v(vOne)}
  s_mov_b64 exec, -1""")

    def ins2(u, tag, p):
        ta, rk, mk, w = TA[p], RK[p], sMk[p], WW[p]
        lab = f"{tag}_{u}"
        a(f"""
  s_mov_b64 exec, {s(mk,2)}
  v_cmp_lt_u32 vcc, 31, {v(rk)}
  v_lshl_add_u32 {v(ta)}, {v(rk)}, 3, {v(ta)}
  s_cbranch_vccnz L_rare_{lab}""")
        a.label(f"L_back_{lab}")
        a(f"""
  ds_write2_b32 {v(ta)}, {v(REC[u])}, {v(w)} offset0:2 offset1:3
  s_mov_b64 exec, -1""")
        rare.append((lab, u, p))

    a(f"""
  v_add_u32 {v(PT+2)}, {P1_REC}, {v(vL16)}
  v_add_u32 {v(PT+3)}, {P1_REC + 8*8192}, {v(vL16)}
  v_add_u32 {v(PT+4)}, {P1_REC + 16*8192}, {v(vL16)}
  s_mov_b32 s{sSo}, {NB*8192}
  v_mov_b32 {v(vDum)}, 3
  s_waitcnt lgkmcnt(0)
  s_barrier""")
    stamp(a, 252, 45)
    NS = 19
    sdt = lambda r: (20 + r) % 25 if r < 8 else r + 1
    SD = lambda r: ACC[sdt(r)]
    gv = []
    def gwait(x, extra=""): a(f"  s_waitcnt vmcnt({len(gv) - 1 - gv.index(x)}){extra}")
    def rd(r): a(f"  ds_read_b128 {v(SD(r),4)}, {v(PT+2 + r//8)} offset:{(r%8)*8192}")
    def st(r, lst=None):
        a(f"  buffer_store_dwordx4 {v(SD(r),4)}, {v(vL16)}, {s(sRW,4)}, s{sSo} offen sc1\n  s_add_u32 s{sSo}, s{sSo}, 8192")
        if lst is not None: lst.append(("st", r))
    zero_acc = lambda t: a(f"  v_mov_b64 {v(ACC[t],2)}, 0\n  v_mov_b64 {v(ACC[t]+2,2)}, 0")
    flag3 = f"  buffer_store_dword {v(vDum)}, {v(vFlg)}, {s(sFLG,4)}, 0 offen sc1"
    N1, N3 = OPT["n1"], OPT["n3"]
    a(f"  s_cmp_gt_u32 s{sO2}, {NB*8192 // 6 - 2}\n  s_cbranch_scc1 L_noearly")
    a(flag3)
    a.label("L_noearly")
    a(f"""
  buffer_load_dwordx4 {v(Q,4)}, {v(vTab)}, {s(sTAB,4)}, 0 offen sc1
  buffer_load_dwordx2 {v(Q+4,2)}, {v(vTab)}, {s(sTAB,4)}, 0 offen offset:16 sc1
  global_load_ushort {v(T+9)}, {v(vWo)}, s[66:67]""")
    gv.extend([("tab", 0), ("tab", 1), ("w", 0)])
    for r in range(NB, NS): rd(r)
    nxt = NB + N1
    for r in range(NB, nxt):
        a(f"  s_waitcnt lgkmcnt({NS - 1 - r})")
        st(r, gv)
    a(f"""
  s_waitcnt lgkmcnt(0)
  s_cmp_gt_u32 s{sO2}, {NB*8192 // 6 - 2}
  s_cbranch_scc1 L_allfirst
  s_barrier""")
    a.label("L_allfirst_back")
    stamp(a, 252, 46)
    a(f"""
  s_mul_i32 s{sFl}, s{sJ}, {2*CARLIST}
  s_add_u32 s{sFl}, s{sFl}, {CAROFF}""")
    srd(a, sREC, sWS, sWS+1, None, NCH * CH * 6)
    srd(a, sM, 48, 49, None, E * 32)
    srd(a, sCAR, sWS, sWS+1, f"s{sFl}", 2 * CARLIST)
    srd(a, sDIST, 54, 55, None, E * 2)
    a(f"""
  s_mul_i32 s{sEb}, s{sJ}, {EB}
  s_mul_i32 s{sX}, s{sW}, 200
  s_add_u32 s{sFl}, s{sEb}, {EB}
  s_add_u32 s{sEb}, s{sEb}, s{sX}
  s_add_u32 s{sX}, s{sEb}, 200
  s_min_u32 s{sX}, s{sX}, s{sFl}
  s_min_u32 s{sX}, s{sX}, {E}
  s_lshl_b32 s{sX}, s{sX}, 5""")
    srd(a, sOUT, 70, 71, None, f"s{sX}")
    srd(a, sMW, 48, 49, None, f"s{sX}")
    a(f"""
  s_lshl_b32 s{sEb}, s{sEb}, 5
  s_add_u32 s{sEb2}, s{sEb}, 4096""")
    for q in range(D):
        a(f"  v_mov_b64 {v(RING[q],2)}, 0\n  v_mov_b64 {v(RING[q]+2,2)}, 0")
    for t in list(range(3, 9)) + [sdt(r) for r in range(NB)]: zero_acc(t)
    nx2 = min(NS, nxt + OPT["n2"])
    for r in range(nxt, min(nxt + 2, nx2)): st(r, gv)
    a(f"""
  v_mov_b32 {v(vSent)}, 0x7ffff
  v_mov_b32 {v(T)}, 0
  v_mov_b32 {v(T+1)}, {v(vSent)}
  v_mov_b32 {v(T+2)}, 0
  v_mov_b32 {v(T+3)}, {v(vSent)}
  v_add_u32 {v(T+6)}, {7*8192}, {v(vL16)}""")
    for r in range(13):
        a(f"  ds_write_b128 {v(vL16 if r < 7 else T+6)}, {v(T,4)} offset:{(r%7)*8192}")
    a(f"""
  v_and_b32 {v(T+6)}, 15, v0
  v_lshl_add_u32 {v(T+6)}, {v(T+6)}, 2, {v(vCtlN)}
  ds_write_b32 {v(T+6)}, {v(vZ)}
  ds_write_b128 {v(vSrd)}, {v(RING[0],4)}
  v_and_b32 {v(T+6)}, 63, v0
  v_lshlrev_b32 {v(TA[0])}, 4, {v(T+6)}
  v_add_u32 {v(TA[0])}, {RB_OFF}, {v(TA[0])}
  s_lshl_b32 s{sX}, s{sW}, 1
  v_add_u32 {v(T+8)}, s{sX}, {v(TA[0])}""")
    mid = min(nxt + 2 + OPT["n2a"], nx2)
    for r in range(min(nxt + 2, nx2), mid): st(r, gv)
    for q in range(D): a(f"  v_mov_b32 {v(SA[q])}, {v(vSst)}")
    gwait(("w", 0))
    a(f"  ds_write_b16 {v(T+8)}, {v(T+9)}")
    a(f"  v_lshrrev_b32 {v(rem)}, 16, {v(Q)}")
    for i in range(1, K):
        a(f"  v_lshrrev_b32 {v(T+4)}, 16, {v(Q+i)}\n  v_add_u32 {v(rem)}, {v(rem)}, {v(T+4)}")
    state_update()
    for u in range(0, 16, 2):
        a(f"""
  v_add_u32_dpp {v(REC[u])}, {v(vB6)}, {v(vI6)} {bc(u)}
  v_sub_u32_dpp {v(REC[u]+1)}, {v(vRT4)}, {v(vI4)} {bc(u)}
  v_add_u32_dpp {v(REC[u+1])}, {v(vB6)}, {v(vI6)} {bc(u+1)}
  v_sub_u32_dpp {v(REC[u+1]+1)}, {v(vRT4)}, {v(vI4)} {bc(u+1)}
  v_bfi_b32 {v(REC[u])}, {v(vMsk)}, {v(REC[u])}, {v(REC[u]+1)}
  v_bfi_b32 {v(REC[u+1])}, {v(vMsk)}, {v(REC[u+1])}, {v(REC[u+1]+1)}""")
        if mid < nx2:
            st(mid, gv); mid += 1
    for r in range(mid, nx2): st(r, gv)
    state_update2()
    state_update()
    state_update2()
    for r in range(NB, nx2): zero_acc(sdt(r))
    stamp(a, 252, 47)
    a(f"  s_cmp_lg_u32 s{sW}, 0\n  s_cbranch_scc1 L_polled_b")
    poll("b", flag_load(FP, RK[0]), flag_cond(FP, 2), OPT["nap"])
    a("  s_waitcnt lgkmcnt(0)")
    a("  s_barrier")
    stamp(a, 252, 1)
    for u in range(16):
        a(f"  buffer_load_dwordx2 {v(REC[u],2)}, {v(REC[u])}, {s(sREC,4)}, 0 offen{RPOL}")
        gv.append(("rec", u))
    a(f"  ds_read_b128 {v(Wb,4)}, {v(TA[0])}")
    NG = NS
    nx3 = min(NS, nx2 + N3)
    for r in range(nx2, nx3): st(r, gv)
    stamp(a, 252, 12)
    set_flag("pro")
    for q in range(D): a(f"  v_mov_b32 {v(CC[q])}, 0")
    for r in range(nx2, nx3): zero_acc(sdt(r))
    a(f"  v_bfe_u32 {v(T)}, v0, 4, 1\n  v_cmp_eq_u32 vcc, 1, {v(T)}\n  s_waitcnt lgkmcnt(0)\n  s_nop 0")
    for r in range(4):
        a(f"  v_cndmask_b32 {v(Wa+r)}, {v(Wb+r)}, {v(vZ)}, vcc")
        a(f"  v_cndmask_b32 {v(Wb+r)}, {v(vZ)}, {v(Wb+r)}, vcc")
    stamp(a, 252, 13)
    PTA = lambda u: Da + u
    PRK = lambda u: RING[0] + u
    PMK = lambda u: sPM + 2 * (u % 8)
    slowg = []
    def pro_ins1(g):
        us = range(4*g, 4*g+4)
        gwait(("rec", 4*g+3))
        for u in us:
            a(f"""
  v_cmp_gt_i32 vcc, 0, {v(REC[u])}
  v_min_i32 {v(PTA(u))}, {v(REC[u])}, {v(REC[u]+1)}
  v_cmp_gt_i32 {s(PMK(u),2)}, 0, {v(PTA(u))}
  v_cndmask_b32_sdwa {v(REC[u])}, {v(REC[u])}, {v(REC[u]+1)}, vcc {SDWA}
  v_mov_b32 {v(REC[u]+1)}, {v(PTA(u))}""")
        for u in us: a(f"  v_bfe_u32 {v(PTA(u))}, {v(PTA(u))}, 23, 8")
        for u in us: a(f"  v_mul_u32_u24 {v(PTA(u))}, {v(PTA(u))}, {v(v264)}")
        for u in us: a(f"  s_mov_b64 exec, {s(PMK(u),2)}\n  ds_add_rtn_u32 {v(PRK(u))}, {v(PTA(u))}, {v(vOne)}")
        a("  s_mov_b64 exec, -1")
    def pro_ins2(g):
        us = list(range(4*g, 4*g+4))
        a(f"""
  v_max3_u32 {v(T)}, {v(PRK(us[0]))}, {v(PRK(us[1]))}, {v(PRK(us[2]))}
  v_max_u32 {v(T)}, {v(T)}, {v(PRK(us[3]))}
  v_cmp_lt_u32 vcc, 31, {v(T)}
  s_cbranch_vccz L_pfast_{g}
  v_cmp_lt_u32 vcc, 63, {v(T)}
  s_cbranch_vccnz L_pslow_{g}""")
        a.label(f"L_pback_{g}")
        for x, u in enumerate(us): a(f"  v_subrev_u32 {v(T+4+x)}, 31, {v(PRK(u))}")
        for x, u in enumerate(us): a(f"  s_mov_b64 exec, {s(PMK(u),2)}\n  ds_max_i32 {v(PTA(u))}, {v(T+4+x)} offset:{BUFSZ}")
        a(f"  s_mov_b64 exec, -1\n  ds_write_b32 {v(vCtlN)}, {v(vOne)} offset:4")
        for x, u in enumerate(us): a(f"  v_lshrrev_b32 {v(T+4+x)}, 5, {v(PRK(u))}")
        for x, u in enumerate(us): a(f"  v_mad_u32_u24 {v(PTA(u))}, {v(T+4+x)}, s{sThr}, {v(PTA(u))}")
        a.label(f"L_pfast_{g}")
        for u in us: a(f"  v_lshl_add_u32 {v(PTA(u))}, {v(PRK(u))}, 3, {v(PTA(u))}")
        for u in us: a(f"  s_mov_b64 exec, {s(PMK(u),2)}\n  ds_write_b64 {v(PTA(u))}, {v(REC[u],2)} offset:8")
        a("  s_mov_b64 exec, -1")
        slowg.append(g)
    a(f"  s_mov_b32 s{sThr}, {BUFSZ - 256}")
    left = list(range(nx3, NS))
    per = (len(left) + 3) // 4
    def some():
        for _ in range(per):
            if left: st(left.pop(0), gv)
    pro_ins1(0)
    stamp(a, 252, 3)
    pro_ins1(1)
    some()
    a("  s_waitcnt lgkmcnt(0)")
    pro_ins2(0); some(); pro_ins1(2); pro_ins2(1); some(); pro_ins1(3); some()
    stamp(a, 252, 8)
    a("  s_nop 0")
    for r in range(nx3, NS): zero_acc(sdt(r))
    a("  s_waitcnt lgkmcnt(0)")
    pro_ins2(2); pro_ins2(3)
    stamp(a, 252, 11)
    a("  s_branch L_turn2")
    def signal_all(tag, n):
        a(f"""
  v_mov_b32 {v(T+4)}, {CTL + 32}
  s_waitcnt vmcnt({n})
  s_mov_b64 exec, 1
  ds_add_rtn_u32 {v(T+5)}, {v(T+4)}, {v(vOne)}
  s_mov_b64 exec, -1
  v_and_b32 {v(T+6)}, 63, v0
  s_lshl_b32 s{sX}, s2, 2
  v_lshl_add_u32 {v(T+6)}, {v(T+6)}, 10, s{sX}
  v_mov_b32 {v(T+7)}, 4
  s_waitcnt lgkmcnt(0)
  v_readfirstlane_b32 s{sX}, {v(T+5)}
  s_cmp_lg_u32 s{sX}, 7
  s_cbranch_scc1 L_nosig_{tag}
  buffer_store_dword {v(T+7)}, {v(T+6)}, {s(sFLG,4)}, 0 offen sc1""")
        a.label(f"L_nosig_{tag}")

    INS0 = OPT["ins0"]
    def cstage_head(q):
        if OPT["abl_s"]: return
        a(f"""
  ds_write_b16 {v(SA[q])}, {v(CC[q])}
  ds_read_b128 {v(Sf,4)}, {v(vSrd)}
  ds_write_b16 {v(SA[q])}, {v(vZ)}""")
    def cstage_m1(q):
        if OPT["abl_mfma"]: return
        a(f"""
  v_mfma_f32_16x16x32_bf16 {v(Da,4)}, {v(RING[q],4)}, {v(Wa,4)}, 0
  v_mfma_f32_16x16x32_bf16 {v(Db,4)}, {v(RING[q],4)}, {v(Wb,4)}, 0""")
    def cstage_cvt():
        if OPT["abl_mfma"]: return
        a(f"""
  v_cvt_pk_bf16_f32 {v(P)}, {v(Da)}, {v(Da+1)}
  v_cvt_pk_bf16_f32 {v(P+1)}, {v(Da+2)}, {v(Da+3)}
  v_cvt_pk_bf16_f32 {v(P+2)}, {v(Db)}, {v(Db+1)}
  v_cvt_pk_bf16_f32 {v(P+3)}, {v(Db+2)}, {v(Db+3)}""")
    def cstage_m2(tc):
        if OPT["abl_mfma"]: return
        a(f"  v_mfma_f32_16x16x32_bf16 {v(ACC[tc],4)}, {v(P,4)}, {v(Sf,4)}, {v(ACC[tc],4)}")
    def step_top(t, reset=True):
        a(f"  ; ---- step {t}")
        a("  s_waitcnt lgkmcnt(0)")
        cstage_head(t % D)
        if t < NT - 1:
            a(f"  ds_read_b64 {v(RP[(t+1)&1],2)}, {v(vRd)} offset:{(t+1)*TS+8}")
        if reset and t < NT:
            a(f"  ds_write_b32 {v(vRd)}, {v(vSent)} offset:{t*TS+12}")
    def step_main(t, n, reset=True):
        q = t % D; tc = (t - D) % NT
        rp = RP[t & 1]
        a(f"  s_waitcnt vmcnt({n})")
        cstage_m1(q)
        off, af, e = T + 1, T + 2, T + 3
        a(f"""
  v_and_b32 {v(off)}, {v(vSent)}, {v(rp+1)}
  v_mul_f32 {v(af)}, {v(rp)}, {v(vFreq)}
  v_lshl_add_u32 {v(off)}, {v(off)}, 5, {v(vHalf)}
  v_cvt_pk_bf16_f32 {v(af)}, 0, {v(af)}
  buffer_load_dwordx4 {v(RING[q],4)}, {v(vOOB if OPT["abl_g"] else off)}, {s(sM,4)}, 0 offen
  v_mul_f32 {v(af)}, 0.15915494, {v(af)}
  v_bfe_u32 {v(e)}, {v(rp+1)}, 20, 3
  v_fract_f32 {v(af)}, {v(af)}""")
        cstage_cvt()
        a(f"""
  v_cos_f32 {v(af)}, {v(af)}
  v_lshl_add_u32 {v(SA[q])}, {v(e)}, 4, {v(vSst)}
  s_waitcnt lgkmcnt({(2 if t < NT-1 else 1) + (1 if reset else 0)})""")
        cstage_m2(tc)
        a(f"  v_cvt_pk_bf16_f32 {v(CC[q])}, {v(af)}, {v(af)}")

    order = []
    for t in range(NT):
        if t == 0: order.append(("car", 16))
        u2 = t - INS0 - 1
        if 0 <= u2 < 16: order.append(("rec", u2))
        order.append(("W", t))
        order.append(("g", t))
    tail = [x for x in order[order.index(("g", NT - D)):] if x[0] != "W"]
    assert tail == [("g", t) for t in range(NT - D, NT)], tail
    def younger(target, at):
        n = len(order); i = order.index(target); cnt = 0
        j = (i + 1) % n
        while j != at:
            if order[j][0] != "W": cnt += 1
            j = (j + 1) % n
        return cnt
    first = []
    for x in order:
        if x[0] == "W" and x[1] < 4: first += [("f", 4 * x[1] + i) for i in range(4)]
        first.append(x)
    def younger_first(u, t):
        i = first.index(("f", u)); j = first.index(("W", t))
        return sum(1 for x in first[i+1:j] if x[0] != "W")
    RBH = 1
    def prio(tag, mask, t):
        cur = mask >> t & 1; prev = (mask >> (t - 1) & 1) if t else 0
        if cur and not prev:
            a(f"  s_cmp_lt_u32 s{sW}, 4\n  s_cbranch_scc1 L_{tag}prio{t}\n  s_setprio 1")
            a.label(f"L_{tag}prio{t}")
        if prev and not cur: a("  s_setprio 0")
    assert not OPT["lprio"] >> (NT - 1)
    def step0_extra():
        a(f"""
  v_cmp_gt_u32 vcc, s{sCin}, {v(vCarIdx)}
  s_add_u32 s{sX}, s{sIt}, 2
  s_and_b32 s{sX}, s{sX}, 3
  s_lshl_b32 s{sX}, s{sX}, 3
  s_add_u32 s{sX}, s{sX}, {CTL}
  v_mov_b32 {v(T+1)}, s{sX}
  ds_write_b64 {v(T+1)}, {v(vZ,2)}
  ds_write_b32 {v(vCntA)}, {v(vZ)}
  v_cndmask_b32 {v(T)}, {v(vOOB)}, {v(vCarOff)}, vcc
  buffer_load_dwordx2 {v(REC[16],2)}, {v(T)}, {s(sCAR,4)}, s{sCarR} offen sc1""")
    def state_step(tag):
        a(f"  s_cmp_lg_u32 s{sThr}, 0\n  s_cbranch_scc1 L_nostate_{tag}")
        if tag == "b0":
            QL = Q + OPT['keff'] - 3
            a(f"""
  v_lshrrev_b32 {v(T)}, 16, {v(QL)}
  v_cmp_eq_u32 vcc, 0, {v(nA)}
  v_subrev_u32 {v(T+1)}, {OPT['lim']}, {v(T)}
  v_and_b32 {v(T+2)}, 0xffff, {v(QL)}
  v_max_i32 {v(T+1)}, 0, {v(T+1)}
  v_cndmask_b32 {v(T+1)}, {v(vZ)}, {v(T+1)}, vcc
  v_add_u32 {v(T+2)}, {v(T+2)}, {v(T)}
  v_sub_u32 {v(T+2)}, {v(T+2)}, {v(T+1)}
  v_cndmask_b32 {v(sA)}, {v(sA)}, {v(T+2)}, vcc
  v_add_u32 {v(nA)}, {v(nA)}, {v(T+1)}
  v_lshlrev_b32 {v(T+1)}, 16, {v(T+1)}
  v_sub_u32 {v(QL)}, {v(QL)}, {v(T+1)}""")
        state_update(); state_update2()
        a.label(f"L_nostate_{tag}")
        set_flag(tag)
    a(".p2align 6")
    a.label("L_body0")
    lo = []
    lw = lambda x: len(lo) - 1 - lo.index(x)
    ST0, STP = OPT["st0"], OPT["stp"]
    late = list(range(NG, NS))
    tsig = None
    FC = WS0
    for t in range(NT):
        step_top(t)
        prio("b0", OPT["lprio"], t)
        if t == 0:
            step0_extra(); lo.append(("rec", 16))
        if t < 4:
            for u in range(4*t, 4*t+4):
                rec_load(u, T + 4 + 2 * (u & 1)); lo.append(("rec", u))
        if t == INS0: state_step("b0")
        zs = []
        if t >= ST0:
            for _ in range(STP):
                if late:
                    r = late.pop(0); st(r, lo); zs.append(r)
                    assert sdt(r) + D > t
                    if not late: tsig = t + D + 1
        u1 = t - INS0; u2 = u1 - 1
        if 0 <= u2 < 17: ins2(u2, "b0", u2 & 1)
        if 0 <= u1 < 17:
            a(f"  s_waitcnt vmcnt({lw(('rec', u1))})")
            ins1(u1, f"s{sThr}" if u1 < 16 else "0", u1 & 1)
        else: a("  s_nop 0")
        for r in zs: zero_acc(sdt(r))
        if t == tsig or (NG == NS and t == 2):
            signal_all("b0", lw(("st", NS - 1)) if NG < NS else len(lo))
        if t == INS0 + 18:
            a(f"  s_cmp_gt_u32 s{sCin}, 512\n  s_cbranch_scc1 L_slow_b0")
            a.label("L_slow_back_b0")
        if t == NT - 3:
            a(f"""
  s_cmp_lg_u32 s{sW}, 0
  s_cbranch_scc1 L_noldc
  v_lshlrev_b32 {v(WR)}, 4, v0
  s_and_b32 s{sX}, s2, 7
  s_lshl_b32 s{sX}, s{sX}, 10""")
            a(flag_load(FC, WR))
            a.label("L_noldc")
        step_main(t, lw(("g", t - D)) if t >= D else 62)
        lo.append(("g", t))
    assert not late and (tsig is None or tsig < NT - 3)
    a(f"""
  s_waitcnt vmcnt(3)
  s_cmp_lg_u32 s{sW}, 0
  s_cbranch_scc1 L_turn2""")
    assert NT - (INS0 + 17) >= 3
    a(flag_cond(FC, 4))
    a(f"""
  s_cbranch_vccz L_turn2
  s_and_b32 s{sX}, s2, 7
  s_lshl_b32 s{sX}, s{sX}, 10""")
    poll("c", flag_load(FC, WR), flag_cond(FC, 4), OPT["nap"])
    a("  s_branch L_turn2")

    a(".p2align 6")
    a.label("L_loop")
    for t in range(NT):
        step_top(t)
        if t == 0: step0_extra()
        prio("lp", OPT["lprio"], t)
        if t < 4:
            a(f"  s_cmp_eq_u32 s{sIt}, 1\n  s_cbranch_scc1 L_first_{t}")
            a.label(f"L_first_back_{t}")
        if t == INS0: state_step("lp")
        u1 = t - INS0; u2 = u1 - 1
        if 0 <= u2 < 17:
            ins2(u2, "lp", u2 & 1)
            if u2 < 16: rec_load(u2, T + 4)
        if 0 <= u1 < 17:
            pos = order.index(("W", t))
            if u1 < 16: n = min(younger(("rec", u1), pos), younger_first(u1, t))
            else: n = younger(("car", 16), pos)
            a(f"  s_waitcnt vmcnt({min(n, 62)})")
            ins1(u1, f"s{sThr}" if u1 < 16 else "0", u1 & 1)
        if t == INS0 + 18:
            a(f"  s_cmp_gt_u32 s{sCin}, 512\n  s_cbranch_scc1 L_slow_lp")
            a.label("L_slow_back_lp")
        if t == RBH:
            a(f"  s_cmp_eq_u32 s{sRb}, s{sIt}\n  s_cbranch_scc1 L_rbf")
            a.label("L_rbf_back1")
        step_main(t, younger(("g", (t - D) % NT), order.index(("W", t))))
    assert INS0 >= 4 and RBH < NT
    a(f"  s_waitcnt vmcnt({NT - (INS0 + 17)})")
    a.label("L_turn2")
    a(f"""
  v_mov_b32 {v(T)}, {v(vCtlN)}
  s_add_u32 s{sIt}, s{sIt}, 1
  s_add_u32 s{sX}, s{sIt}, 1
  s_and_b32 s{sX}, s{sX}, 3
  s_lshl_b32 s{sX}, s{sX}, 3
  s_add_u32 s{sX}, s{sX}, {CTL}
  v_mov_b32 {v(vCtlN)}, s{sX}
  s_sub_u32 s{sX}, s{sIns}, {BUFSZ}
  s_add_u32 s{sX}, s{sX}, s{sIns}
  v_add_u32 {v(vRd)}, s{sX}, {v(vRd)}
  v_add_u32 {v(vCntA)}, s{sX}, {v(vCntA)}
  s_sub_u32 s{sIns}, {BUFSZ}, s{sIns}
  s_mov_b32 s{sCarR}, s{sCarW}
  s_sub_u32 s{sCarW}, {CARLIST}, s{sCarW}
  s_waitcnt lgkmcnt(0)""")
    if OPT["stamp"] == 1:
        a(f"  s_lshl_b32 s90, s{sIt}, 1\n  s_add_u32 s90, s90, 16\n  s_min_u32 m0, s90, 36")
        stamp(a, 252, "m0")
        a("  s_add_u32 m0, m0, 1")
    a("  s_barrier")
    stamp(a, 252, "m0")
    a(f"""
  ds_read_b64 {v(T+2,2)}, {v(T)}
  ds_read_b64 {v(RP[0],2)}, {v(vRd)} offset:8
  s_waitcnt lgkmcnt(1)
  v_readfirstlane_b32 s{sCin}, {v(T+2)}
  v_readfirstlane_b32 s{sFl}, {v(T+3)}
  s_cmp_gt_u32 s{sCin}, 512
  s_cselect_b32 s{sThr}, 0x80000000, 0
  s_min_u32 s{sCin}, s{sCin}, {CARCAP}
  s_cmp_gt_u32 s{sCin}, 32
  s_cselect_b32 s{sFl}, 1, s{sFl}
  s_cmp_lt_u32 s{sIt}, {OPT['itcap']}
  s_cselect_b32 s{sFl}, s{sFl}, 0
  s_cmp_eq_u32 s{sIt}, {OPT["cut"] - 100 if OPT["cut"] >= 100 else -1}
  s_cbranch_scc1 L_end
  s_cmp_eq_u32 s{sIt}, 0
  s_cbranch_scc1 L_it0
  s_cmp_lg_u32 s{sFl}, 0
  s_cbranch_scc1 L_loop""")
    a.label("L_nosig_z")
    a(f"""
  s_cmp_ge_u32 s{sRb}, s{sIt}
  s_mov_b32 s{sRb}, -1
  s_cbranch_scc1 L_rbf""")
    a.label("L_rbf_back2")

    RBv = Q
    assert vRT4 - Q + 1 >= 14
    R0 = REC[0]
    G0, G1, RR, U = R0, R0 + 4, R0 + 8, R0 + 12
    XS0, XS1, XR, AG = R0 + 16, R0 + 18, R0 + 20, R0 + 22
    MS = [R0 + 24 + 2 * i for i in range(5)]
    vMoff, vLin, vOw, vOr = vCarOff, vI6, vI1, vI4
    a(f"""
  v_and_b32 {v(T)}, 63, v0
  s_mul_i32 s{sX}, s{sW}, 3584
  s_add_u32 s{sX}, s{sX}, {RB_OFF}
  v_lshl_add_u32 {v(T+1)}, {v(T)}, 3, s{sX}
  v_lshlrev_b32 {v(vLin)}, 4, {v(T)}
  v_bfe_u32 {v(T+2)}, v0, 4, 2
  v_and_b32 {v(T+3)}, 15, v0
  v_lshlrev_b32 {v(T+2)}, 3, {v(T+2)}
  v_lshl_add_u32 {v(vMoff)}, {v(T+3)}, 5, {v(T+2)}
  s_mul_i32 s{sX}, s{sW}, 6400
  s_add_u32 s{sX}, s{sX}, s{sIns}
  s_add_u32 s{sX}, s{sX}, 15
  s_and_b32 s{sX}, s{sX}, -16
  v_add_u32 {v(vOw)}, s{sX}, {v(vMoff)}
  v_add_u32 {v(vOr)}, s{sX}, {v(vLin)}
  v_cmp_gt_u32 {s(sT,2)}, 8, {v(T+3)}""")
    for h in range(7):
        a(f"  ds_read_b64 {v(RBv+2*h,2)}, {v(T+1)} offset:{h*512}")
    fo = [("g", t - NT) for t in range(NT - D, NT)]
    def fwait(x): return len(fo) - 1 - fo.index(x)
    def s1(p):
        b = RBv + (p & ~1)
        w0, w1 = (WS0, WS1) if p % 2 == 0 else (XS0, XS1)
        a(f"""
  v_mfma_f32_16x16x16_bf16 {v(G0,4)}, {v(w0,2)}, {v(b,2)}, 0
  v_mfma_f32_16x16x16_bf16 {v(G1,4)}, {v(w1,2)}, {v(b,2)}, 0""")
    def s2(p):
        t0 = ACC[2*p]; t1 = ACC[2*p+1] if 2*p+1 < NT else ACC[2*p]
        for r in range(4): a(f"  v_mul_f32 {v(U+r)}, {v(t0+r)}, {v(G0+r)}")
        for r in range(4): a(f"  v_mul_f32_dpp {v(U+r)}, {v(t1+r)}, {v(G0+r)} row_ror:8 row_mask:0xf bank_mask:0xc")
        for r in range(4): a(f"  v_fmac_f32_dpp {v(U+r)}, {v(t0+r)}, {v(G1+r)} row_ror:8 row_mask:0xf bank_mask:0x3")
        for r in range(4): a(f"  v_fmac_f32_dpp {v(U+r)}, {v(t1+r)}, {v(G1+r)} quad_perm:[0,1,2,3] row_mask:0xf bank_mask:0xc")
        a(f"""
  v_cvt_pk_bf16_f32 {v(AG)}, {v(U)}, {v(U+1)}
  v_cvt_pk_bf16_f32 {v(AG+1)}, {v(U+2)}, {v(U+3)}
  v_mfma_f32_16x16x16_bf16 {v(RR,4)}, {v(WR if p % 2 == 0 else XR,2)}, {v(RBv + (p & ~1),2)}, 0""")
        if p + 1 < 13: s1(p + 1)
        else: a("  s_nop 0")
        a(f"  v_mfma_f32_16x16x16_bf16 {v(U,4)}, {v(WUP,2)}, {v(AG,2)}, 0")
    def s3(p):
        x = ACC[2*p]; m_ = MS[p % 5]
        a(f"""
  s_waitcnt vmcnt({fwait(("m", p))})
  v_lshlrev_b32 {v(x)}, 16, {v(m_)}
  v_and_b32 {v(x+1)}, 0xffff0000, {v(m_)}
  v_lshlrev_b32 {v(x+2)}, 16, {v(m_+1)}
  v_and_b32 {v(x+3)}, 0xffff0000, {v(m_+1)}""")
        if p == 12: a("  s_nop 2")
        a(f"""
  v_pk_fma_f32 {v(x,2)}, {v(U,2)}, {v(RR,2)}, {v(x,2)}
  v_pk_fma_f32 {v(x+2,2)}, {v(U+2,2)}, {v(RR+2,2)}, {v(x+2,2)}
  v_cvt_pk_bf16_f32 {v(x)}, {v(x)}, {v(x+1)}
  v_cvt_pk_bf16_f32 {v(x+1)}, {v(x+2)}, {v(x+3)}""")
        if p == 12: a(f"  s_mov_b64 exec, {s(sT,2)}")
        a(f"  ds_write_b64 {v(vOw)}, {v(x,2)} offset:{p*512}")
        if p == 12: a(f"  s_mov_b64 exec, -1")
        if p % 2 == 1 or p == 12:
            r = p // 2
            a(f"  ds_read_b128 {v(ACC[4*r+1 if r < 6 else 23],4)}, {v(vOr)} offset:{r*1024}")
    def s4(r):
        a(f"  buffer_store_dwordx4 {v(ACC[4*r+1 if r < 6 else 23],4)}, {v(vLin)}, {s(sOUT,4)}, s{sEb if r < 4 else sEb2} offen offset:{(r%4)*1024}{POL[OPT['opol']]}")
        fo.append(("st", r))
    xw = {}
    for t in range(NT + D + 2):
        if t == 6:
            a(f"  s_cmp_lg_u32 s{sCin}, 0\n  s_cbranch_scc1 L_x3")
            a.label("L_x3_back")
            xw[3] = len(fo) - xw[2]
        if t < NT + D: step_top(t, False)
        else: a(f"  ; ---- tail {t}\n  s_waitcnt lgkmcnt(0)")
        prio("fp", OPT["fprio"], t)
        if t in (0, 3):
            n = 1 if t == 0 else 2
            a(f"  s_cmp_lg_u32 s{sCin}, 0\n  s_cbranch_scc1 L_x{n}")
            a.label(f"L_x{n}_back")
            xw[n] = len(fo)
        if t == NT: stamp(a, 252, 4)
        if t == NT + D: stamp(a, 252, 5)
        if t == 1:
            a(f"""
  v_mov_b32 {v(XS0)}, 0
  v_mov_b32 {v(XS0+1)}, {v(WS0)}
  v_mov_b32 {v(XS1)}, 0
  v_mov_b32 {v(XS1+1)}, {v(WS1)}
  v_mov_b32 {v(XR)}, 0
  v_mov_b32 {v(XR+1)}, {v(WR)}""")
        if t == 5: s1(0)
        ts2 = {2*p+7 if p < 12 else 30: p for p in range(13)}
        if t - 2 in ts2 and (ts2[t-2] % 2 == 1): s4(ts2[t-2] // 2)
        if t - 1 in ts2: s3(ts2[t-1])
        if t in ts2: s2(ts2[t])
        if t % 2 == 1 and t // 2 < 13:
            p = t // 2
            a(f"  buffer_load_dwordx2 {v(MS[p%5],2)}, {v(vMoff)}, {s(sMW,4)}, s{sEb if p < 8 else sEb2} offen offset:{(p%8)*512}{POL[OPT['mpol']]}")
            fo.append(("m", p))
        if t < NT:
            step_main(t, fwait(("g", t - D)), False)
            fo.append(("g", t))
        elif t < NT + D:
            a(f"  s_waitcnt vmcnt({fwait(('g', t - D))})")
            cstage_m1(t % D)
            a("  s_nop 6")
            cstage_cvt()
            a("  s_waitcnt lgkmcnt(0)\n  s_nop 0")
            cstage_m2(t - D)
            a("  s_nop 3")
    a("  s_waitcnt lgkmcnt(0)")
    s4(6)
    stamp(a, 252, 6)
    if OPT["stamp"]: a("  s_waitcnt vmcnt(0)")
    stamp(a, 252, 7); stamp(a, 252, 63, "s_memrealtime")
    if OPT["stamp"] == 1: a(f"  v_writelane_b32 v252, s{sIt}, 61")
    stamp_out(a, 252, sWS, 8, STAMPOFF + 0x200000, 253)
    a.label("L_end")
    a("  s_endpgm")

    sSm, sS2 = sMk
    a.label("L_x1")
    a(f"""
  v_cmp_gt_u32 vcc, s{sCin}, {v(vSlot)}
  v_lshlrev_b32 {v(T)}, 3, {v(vSlot)}
  s_nop 0
  v_cndmask_b32 {v(T)}, {v(vOOB)}, {v(T)}, vcc
  buffer_load_dwordx2 {v(AG,2)}, {v(T)}, {s(sCAR,4)}, s{sCarR} offen sc1
  s_branch L_x1_back""")
    a.label("L_x2")
    a(f"""
  s_mul_i32 s{sX}, s{sW}, {NT}
  s_waitcnt vmcnt({xw[2] - xw[1]})
  v_min_i32 {v(U)}, {v(AG)}, {v(AG+1)}
  v_cmp_gt_i32 vcc, 0, {v(AG)}
  v_bfe_u32 {v(U+2)}, {v(U)}, 23, 8
  v_subrev_u32 {v(U+2)}, s{sX}, {v(U+2)}
  v_cndmask_b32_sdwa {v(U+1)}, {v(AG)}, {v(AG+1)}, vcc dst_sel:WORD_1 dst_unused:UNUSED_PAD src0_sel:WORD_1 src1_sel:WORD_0
  v_cmp_gt_i32 {s(sS2,2)}, 0, {v(U)}
  v_cmp_gt_u32 {s(sSm,2)}, {NT}, {v(U+2)}
  s_and_b64 vcc, {s(sSm,2)}, {s(sS2,2)}
  s_cselect_b32 s{sCin}, s{sCin}, 0
  s_cbranch_scc0 L_x2_back
  v_and_b32 {v(T)}, 0x7ffff, {v(U)}
  v_lshl_add_u32 {v(T)}, {v(T)}, 5, {v(vHalf)}
  v_mul_f32 {v(U+1)}, {v(U+1)}, {v(vFreq)}
  v_cndmask_b32 {v(T)}, {v(vOOB)}, {v(T)}, vcc
  buffer_load_dwordx4 {v(RR,4)}, {v(T)}, {s(sM,4)}, 0 offen
  v_cndmask_b32 {v(U+2)}, {v(vOOB)}, {v(U+2)}, vcc
  v_cvt_pk_bf16_f32 {v(U+1)}, 0, {v(U+1)}
  v_mul_f32 {v(U+1)}, 0.15915494, {v(U+1)}
  v_fract_f32 {v(U+1)}, {v(U+1)}
  v_cos_f32 {v(U+1)}, {v(U+1)}
  v_bfe_u32 {v(U+3)}, {v(U)}, 20, 3
  v_lshl_add_u32 {v(U+3)}, {v(U+3)}, 4, {v(vSst)}
  v_cvt_pk_bf16_f32 {v(U+1)}, {v(U+1)}, {v(U+1)}
  s_branch L_x2_back""")
    a.label("L_x3")
    a(f"""
  s_waitcnt vmcnt({xw[3]})
  v_mfma_f32_16x16x32_bf16 {v(Da,4)}, {v(RR,4)}, {v(Wa,4)}, 0
  v_mfma_f32_16x16x32_bf16 {v(Db,4)}, {v(RR,4)}, {v(Wb,4)}, 0
  s_nop 6""")
    cstage_cvt()
    for t in range(NT):
        a(f"""
  v_cmp_eq_u32 vcc, {t}, {v(U+2)}
  s_cbranch_vccz L_x3_{t}
  s_mov_b64 exec, vcc
  ds_write_b16 {v(U+3)}, {v(U+1)}
  s_mov_b64 exec, -1
  ds_read_b128 {v(Sf,4)}, {v(vSrd)}
  s_mov_b64 exec, vcc
  ds_write_b16 {v(U+3)}, {v(vZ)}
  s_mov_b64 exec, -1
  s_waitcnt lgkmcnt(0)""")
        cstage_m2(t)
        a.label(f"L_x3_{t}")
    a("  s_branch L_x3_back")
    a.label("L_it0")
    a(f"  s_cmp_lg_u32 s{sFl}, 0\n  s_cbranch_scc1 L_body0")
    for r in range(NG, NS): st(r)
    a("  s_nop 0")
    for r in range(NG, NS): zero_acc(sdt(r))
    signal_all("z0", 0)
    a("  s_branch L_nosig_z")
    for t in range(4):
        a.label(f"L_first_{t}")
        for u in range(4*t, 4*t+4): rec_load(u, T + 4 + 2 * (u & 1))
        a(f"  s_branch L_first_back_{t}")
    a.label("L_allfirst")
    a(f"  s_mov_b32 s{sY}, s{sSo}")
    for r in range(NB + N1, NS): st(r)
    a(f"  s_mov_b32 s{sSo}, s{sY}\n  s_waitcnt vmcnt(0)\n  s_barrier\n{flag3}\n  s_branch L_allfirst_back")
    for g in slowg:
        a.label(f"L_pslow_{g}")
        for u in range(4*g, 4*g+4):
            a(f"""
  s_mov_b64 exec, {s(PMK(u),2)}
  v_cmp_lt_u32 vcc, 63, {v(PRK(u))}
  s_cbranch_vccz L_pskip_{u}
  s_andn2_b64 {s(PMK(u),2)}, {s(PMK(u),2)}, vcc
  s_mov_b64 exec, vcc
  ds_add_rtn_u32 {v(T+1)}, {v(vCtlN)}, {v(vOne)}
  s_waitcnt lgkmcnt(0)
  v_lshlrev_b32 {v(T+1)}, 3, {v(T+1)}
  buffer_store_dwordx2 {v(REC[u],2)}, {v(T+1)}, {s(sCAR,4)}, s{sCarW} offen
  s_waitcnt vmcnt(0)""")
            a.label(f"L_pskip_{u}")
        a(f"  s_mov_b64 exec, -1\n  s_branch L_pback_{g}")
    for tag in ("b0", "lp"):
        a.label(f"L_slow_{tag}")
        a(f"  s_mov_b32 s{sX}, 512")
        a.label(f"L_slow_loop_{tag}")
        a(f"""
  v_add_u32 {v(T+1)}, s{sX}, {v(vCarIdx)}
  v_cmp_gt_u32 vcc, s{sCin}, {v(T+1)}
  v_lshlrev_b32 {v(T+1)}, 3, {v(T+1)}
  s_nop 0
  v_cndmask_b32 {v(T+1)}, {v(vOOB)}, {v(T+1)}, vcc
  buffer_load_dwordx2 {v(REC[16],2)}, {v(T+1)}, {s(sCAR,4)}, s{sCarR} offen sc1
  s_waitcnt vmcnt(0)""")
        ins1(16, "0", 0)
        a("  s_waitcnt lgkmcnt(0)")
        ins2(16, "sl" + tag, 0)
        a(f"""
  s_add_u32 s{sX}, s{sX}, 512
  s_cmp_lt_u32 s{sX}, s{sCin}
  s_cbranch_scc1 L_slow_loop_{tag}
  s_waitcnt vmcnt(0)
  s_branch L_slow_back_{tag}""")
    a.label("L_rbf")
    DI = [Da + p for p in range(12)] + [T + 10, T + 11]
    H = T
    assert RK[1] == T + 13
    a(f"""
  v_and_b32 {v(H+8)}, 63, v0
  s_lshr_b32 s{sX}, s{sEb}, 4
  v_lshlrev_b32 {v(H+9)}, 3, {v(H+8)}
  v_lshlrev_b32 {v(H+8)}, 2, {v(H+8)}
  s_load_dwordx4 {s(84,4)}, s[58:59], 0
  buffer_load_dwordx2 {v(H,2)}, {v(H+9)}, {s(sDIST,4)}, s{sX} offen
  global_load_dwordx2 {v(H+2,2)}, {v(H+9)}, s[64:65]
  global_load_dwordx2 {v(H+4,2)}, {v(H+9)}, s[68:69]
  global_load_dword {v(H+6)}, {v(H+8)}, s[62:63]
  s_mov_b32 s{sC10}, 0xc1200000
  s_mov_b32 s{sC10+1}, 0xc1200000
  s_mov_b32 s{sCl2}, 0x3fb8aa3b
  s_mov_b32 s{sCl2+1}, 0x3fb8aa3b
  s_mul_i32 s{sX}, s{sW}, 3584
  s_add_u32 s{sX}, s{sX}, {RB_OFF}
  v_add_u32 {v(H+9)}, s{sX}, {v(H+9)}
  v_add_u32 {v(H+8)}, s{sX}, {v(H+8)}
  v_and_b32 {v(Da)}, 15, v0
  v_bfe_u32 {v(Da+1)}, v0, 4, 2
  v_lshl_add_u32 {v(H+7)}, {v(Da)}, 1, s{sX}
  v_lshl_add_u32 {v(Da+2)}, {v(Da+1)}, 7, {v(H+7)}
  v_lshl_add_u32 {v(Da+3)}, {v(Da+1)}, 6, {v(H+7)}
  s_waitcnt lgkmcnt(0)
  v_mov_b32 {v(H+13)}, s84
  v_cmp_eq_u32 vcc, 1, {v(Da+1)}
  v_mov_b32 {v(H+12)}, s85
  v_cmp_eq_u32 {s(sT,2)}, 2, {v(Da+1)}
  v_cndmask_b32 {v(H+13)}, {v(H+13)}, {v(H+12)}, vcc
  v_mov_b32 {v(H+12)}, s86
  v_cmp_eq_u32 vcc, 3, {v(Da+1)}
  v_cndmask_b32 {v(H+13)}, {v(H+13)}, {v(H+12)}, {s(sT,2)}
  v_mov_b32 {v(H+12)}, s87
  v_cndmask_b32 {v(H+13)}, {v(H+13)}, {v(H+12)}, vcc
  v_lshlrev_b32 {v(H+12)}, 16, {v(H+13)}
  v_and_b32 {v(H+13)}, 0xffff0000, {v(H+13)}
  s_waitcnt vmcnt(0)
  ds_write_b64 {v(H+9)}, {v(H,2)}
  ds_write_b64 {v(H+9)}, {v(H+2,2)} offset:512
  ds_write_b64 {v(H+9)}, {v(H+4,2)} offset:1024
  ds_write_b32 {v(H+8)}, {v(H+6)} offset:1536
  ds_read_u16 {v(WS0)}, {v(Da+2)} offset:512
  ds_read_u16 {v(WS1)}, {v(Da+2)} offset:{512+32}
  ds_read_u16 {v(WS0+1)}, {v(Da+2)} offset:{512+64}
  ds_read_u16 {v(WS1+1)}, {v(Da+2)} offset:{512+96}
  ds_read_u16 {v(WUP)}, {v(Da+2)} offset:1024
  ds_read_u16 {v(H)}, {v(Da+2)} offset:{1024+32}
  ds_read_u16 {v(WUP+1)}, {v(Da+2)} offset:{1024+64}
  ds_read_u16 {v(H+1)}, {v(Da+2)} offset:{1024+96}
  ds_read_u16 {v(WR)}, {v(Da+3)} offset:1536
  ds_read_u16 {v(WR+1)}, {v(Da+3)} offset:{1536+32}""")
    for p in range(13):
        a(f"  ds_read_u16 {v(DI[p])}, {v(H+7)} offset:{p*32}")
    a(f"""
  s_waitcnt lgkmcnt(0)
  v_lshl_or_b32 {v(WS0)}, {v(WS0+1)}, 16, {v(WS0)}
  v_lshl_or_b32 {v(WS1)}, {v(WS1+1)}, 16, {v(WS1)}
  v_lshl_or_b32 {v(WUP)}, {v(H)}, 16, {v(WUP)}
  v_lshl_or_b32 {v(WUP+1)}, {v(H+1)}, 16, {v(WUP+1)}
  v_lshl_or_b32 {v(WR)}, {v(WR+1)}, 16, {v(WR)}
  v_mov_b32 {v(WS0+1)}, 0
  v_mov_b32 {v(WS1+1)}, 0
  v_mov_b32 {v(WR+1)}, 0
  v_mov_b32 {v(DI[13])}, 0""")
    CEN = H + 12
    for ps in ([0,1,2,3], [4,5,6,7], [8,9,10], [11,12]):
        p0 = ps[0]
        tt = {p: H + 2 * (p - p0) for p in ps}
        def rnd():
            for p in ps: a(f"  v_cvt_pk_bf16_f32 {v(tt[p])}, 0, {v(tt[p])}\n  v_cvt_pk_bf16_f32 {v(tt[p]+1)}, 0, {v(tt[p]+1)}")
        for p in ps: a(f"  v_lshlrev_b32 {v(tt[p])}, 16, {v(DI[p])}")
        for p in ps: a(f"  v_pk_add_f32 {v(tt[p],2)}, {v(tt[p],2)}, {v(CEN,2)} op_sel_hi:[0,1] neg_lo:[0,1] neg_hi:[0,1]")
        rnd()
        for p in ps: a(f"  v_pk_mul_f32 {v(tt[p],2)}, {v(tt[p],2)}, {v(tt[p],2)}")
        rnd()
        for p in ps: a(f"  v_pk_mul_f32 {v(tt[p],2)}, {v(tt[p],2)}, {s(sC10,2)}")
        rnd()
        for p in ps: a(f"  v_pk_mul_f32 {v(tt[p],2)}, {v(tt[p],2)}, {s(sCl2,2)}")
        for p in ps: a(f"  v_exp_f32 {v(tt[p])}, {v(tt[p])}\n  v_exp_f32 {v(tt[p]+1)}, {v(tt[p]+1)}")
        for p in ps: a(f"  v_cvt_pk_bf16_f32 {v(DI[p])}, {v(tt[p])}, {v(tt[p]+1)}")
    for h in range(7):
        a(f"  ds_write_b64 {v(H+9)}, {v(DI[2*h],2)} offset:{h*512}")
    a(f"""
  s_waitcnt lgkmcnt(0)
  s_cmp_eq_u32 s{sRb}, -1
  s_cbranch_scc1 L_rbf_back2
  s_branch L_rbf_back1""")
    for lab, u, p in rare:
        a.label(f"L_rare_{lab}")
        a(f"""
  s_mov_b64 exec, vcc
  ds_add_rtn_u32 {v(RK[p])}, {v(vCtlN)}, {v(vOne)}
  v_mov_b32 {v(REC[u]+1)}, {v(WW[p])}
  s_waitcnt lgkmcnt(0)
  v_lshlrev_b32 {v(RK[p])}, 3, {v(RK[p])}
  buffer_store_dwordx2 {v(REC[u],2)}, {v(RK[p])}, {s(sCAR,4)}, s{sCarW} offen
  s_andn2_b64 exec, {s(sMk[p],2)}, vcc
  s_branch L_back_{lab}""")
    return NV

def kd(name, nv, ns):
    nv4 = (nv + 3) // 4 * 4
    return f""".amdhsa_kernel {name}
  .amdhsa_next_free_vgpr {nv}
  .amdhsa_next_free_sgpr {ns}
  .amdhsa_accum_offset {nv4}
  .amdhsa_group_segment_fixed_size 0
  .amdhsa_kernarg_size 112
  .amdhsa_user_sgpr_count 2
  .amdhsa_user_sgpr_kernarg_segment_ptr 1
  .amdhsa_system_sgpr_workgroup_id_x 1
  .amdhsa_float_denorm_mode_32 3
.end_amdhsa_kernel
"""

def main():
    out = sys.argv[1]
    ref = open(f"cdna_kernels/{NAME}.s.ref").read().split("\n")
    head = [l for l in ref if l.startswith(";") and "@launch" not in l and "Override" not in l and "grid=ceil" not in l]
    a = Asm()
    a(".amdgcn_target \"amdgcn-amd-amdhsa--gfx950\"\n.text")
    a(f".globl {NAME}_kernel\n.type {NAME}_kernel,@function")
    nv = gen_p2(a)
    errs = a.check()
    for e in errs: print("HAZARD", e)
    txt = "\n".join(head) + "\n"
    kern = f"kernel={NAME}_kernel " if OPT["list"] else ""
    txt += f"; @launch {kern}grid=(256,1,1) block=(512,1,1) lds={P1_LDS}\n"
    txt += a.text()
    txt += ".section .rodata,\"a\"\n.p2align 6\n" + kd(NAME + "_kernel", 256, 102)
    open(out, "w").write(txt)
    print("vgprs p2:", nv, "lines:", len(a.lines), "hazards:", len(errs))

main()
```

```python
import sys, os
sys.path.insert(0, os.path.dirname(__file__))
from asmlib import Asm

NAME = "gather_scatter__molecular_angular_gemnet__graph"
E = 400000
NCH, CH = 250, 25600
EB = 1568
K = 6
MJ = 2739138
TABOFF = 0x2800000
CAROFF = 0x3000000
CARCAP = 9216
CARLIST = CARCAP * 8
STAMPOFF = 0x6000000
FLGOFF = 0x2c00000
OPT = dict(probe=-1, tlb=0, cut=-1, opol=0, mpol=0, tq=5, fq=10, keff=6, jid=0, fprio=0x3ffff, lprio=0x3fff, napt=8, st0=1, stp=1, rb0=2, nap=16, list=1, nb=7, n1=2, n2=5, n2a=1, n3=2, arr=10, spin=60000, rec_pol=2, stamp=0, itcap=64, ld_nt=7, st_pol=0, mtouch=0, la=4, apre=4, wmain=70000, b5=0, lim=24, nb2=7, ins0=4,
           abl_mfma=0, abl_s=0, abl_cos=0, abl_g=0)
for a in sys.argv[2:]:
    k, v = a.split("=")
    assert k in OPT, k
    OPT[k] = int(v, 0)
MK = -(-(1 << 32) // OPT["wmain"])
assert (399999 * MK) >> 32 <= 5

RPOL = ('', ' nt', ' sc1', ' sc0 sc1')[OPT['rec_pol']]

POL = ('', ' nt', ' sc1', ' sc0 sc1')

def v(i, n=1):
    return f"v{i}" if n == 1 else f"v[{i}:{i+n-1}]"
def s(i, n=1):
    return f"s{i}" if n == 1 else f"s[{i}:{i+n-1}]"

def stamp(a, vreg, lane, op="s_memtime"):
    if lane == OPT["cut"]: a("  s_endpgm")
    if not OPT["stamp"]: return
    if OPT["stamp"] == 2:
        mp = {62: (0, 1), 42: (1, 0), 45: (2, 0), 1: (3, 0), 11: (4, 0), 4: (5, 0), 63: (6, 0), 40: (7, 0)}
        if lane not in mp: return
        l, inv = mp[lane]
        a(f"  s_memrealtime s[88:89]\n  s_waitcnt lgkmcnt(0)")
        if inv: a("  s_not_b32 s88, s88")
        a(f"  v_writelane_b32 v{vreg}, s88, {l}")
        return
    a(f"  {op} s[88:89]\n  s_waitcnt lgkmcnt(0)\n  v_writelane_b32 v{vreg}, s88, {lane}")
def stamp_out(a, vreg, wslo, nwaves, base, tmp):
    if not OPT["stamp"]: return
    if OPT["stamp"] == 2:
        back = 512
        a(f"""
  s_load_dwordx2 s[90:91], s[0:1], 96
  s_waitcnt lgkmcnt(0)
  s_add_u32 s92, s90, {back}
  s_addc_u32 s93, s91, 0
  s_mov_b32 s94, 32
  s_mov_b32 s95, 0x20000
  v_lshlrev_b32 v{tmp}, 2, v0
  buffer_atomic_umax v{vreg}, v{tmp}, s[92:95], 0 offen""")
        return
    a(f"  s_mul_i32 s88, s2, {nwaves*256}\n  s_add_u32 s88, s88, {base}")
    srd(a, 92, wslo, wslo+1, "s88", nwaves*256)
    a(f"  v_lshlrev_b32 v{tmp}, 2, v0\n  buffer_store_dword v{vreg}, v{tmp}, s[92:95], 0 offen")

def srd(a, d, lo, hi, add, size):
    if add is None:
        a(f"  s_mov_b32 s{d}, s{lo}\n  s_mov_b32 s{d+1}, s{hi}")
    else:
        a(f"  s_add_u32 s{d}, s{lo}, {add}\n  s_addc_u32 s{d+1}, s{hi}, 0")
    a(f"  s_mov_b32 s{d+2}, {size}\n  s_mov_b32 s{d+3}, 0x20000")

P1_CNT, P1_SENT, P1_TMP, P1_REC = 0, 6144, 6160, 6272
P1_LDS = P1_REC + CH * 6

TS = 264
BUFSZ = 200 * TS
S_OFF = 13 * 8192
CTL = S_OFF + 8192
RB_OFF = CTL + 128
P2_LDS = RB_OFF + 8 * 3584
D = 5
NT = 25

class RA:
    def __init__(self, start): self.n = start
    def __call__(self, k=1, al=1):
        self.n = (self.n + al - 1) // al * al
        r = self.n; self.n += k
        return r

def gen_p2(a):
    ra = RA(1)
    vSlot, vHalf, vFreq, vSst, vSrd, vI6, vI1, vI4 = (ra() for _ in range(8))
    vRd, vCntA, vOne, vOOB, vCarOff, vCarIdx, v264, vMsk, vCtlN = (ra() for _ in range(9))
    vZ = ra(2, 2)
    Q = ra(6, 4)
    sA, nA, cb, rem, rtot, vA6, vB6, vR0, vRT4 = (ra() for _ in range(9))
    vCnt = ra()
    Wa = ra(4, 4); Wb = ra(4, 4)
    RING = [ra(4, 4) for _ in range(D)]
    Da = ra(4, 4); Db = ra(4, 4); P = ra(4, 4); Sf = ra(4, 4)
    ACC = [ra(4, 4) for _ in range(NT)]
    REC = [ra(2, 4 if i == 0 else 2) for i in range(17)]
    RP = [ra(2, 2), ra(2, 2)]
    T = ra(10, 2)
    TA = [ra(), ra()]; RK = [ra(), ra()]
    WS0 = ra(2, 2); WS1 = ra(2, 2); WR = ra(2, 2); WUP = ra(2, 2)
    CC = [ra() for _ in range(D)]; SA = [ra() for _ in range(D)]
    WW = [ra(), ra()]
    assert ra.n <= 252, ra.n
    NV = ra.n
    sM = 4; sREC = 8; sCAR = 12; sTAB = 16; sOUT = 20; sDIST = 24; sMW = 28
    sJ, sW, sIt, sThr, sIns, sCarW, sCarR, sRb, sCin, sX, sFl, sEb = range(32, 44)
    sCnt = [44, 45]
    sWS = 46
    sPM = 72
    sMk = [72, 74]; sT = 76; sC10 = 78; sCl2 = 80
    sEb2 = 3
    rare = []

    O, I, R, A = 36, 88, 140, 192
    PT = 218
    vL16, vL8, vL4, vL128, vSix, vTwo, vFlg, vDum, vTab, vWo = range(234, 244)
    assert Wa == 36 and T == PT
    vSent = vCnt
    sIO, sII, sAN, sMT, sTW, sDBG = 4, 8, 12, 16, 20, 24
    sFLG, sRW = 92, 96
    sMJ, sMK, sNEB, sB5, sO4, sO2 = range(80, 86)
    sY, sSo = 100, 101
    nto, nti, nta = (" nt" if OPT["ld_nt"] >> b & 1 else "" for b in range(3))
    NR = 13
    nrec = lambda q: 4 if q < 12 else 2
    vm = []
    def ld_pair(q):
        if q < 12:
            a(f"  buffer_load_dwordx4 {v(O+4*q,4)}, {v(vL16)}, {s(sIO,4)}, s{sO4} offen{nto}")
            a(f"  buffer_load_dwordx4 {v(I+4*q,4)}, {v(vL16)}, {s(sII,4)}, s{sO4} offen{nti}")
            a(f"  s_add_u32 s{sO4}, s{sO4}, 8192")
        else:
            a(f"  buffer_load_dwordx2 {v(O+48,2)}, {v(vL8)}, {s(sIO,4)}, s{sO4} offen{nto}")
            a(f"  buffer_load_dwordx2 {v(I+48,2)}, {v(vL8)}, {s(sII,4)}, s{sO4} offen{nti}")
        vm.extend([("o", q), ("p", q)])
    def ld_ang(q):
        if q < 12:
            a(f"  buffer_load_dwordx2 {v(A+2*q,2)}, {v(vL8)}, {s(sAN,4)}, s{sO2} offen{nta}")
            a(f"  s_add_u32 s{sO2}, s{sO2}, 4096")
        else: a(f"  buffer_load_dword {v(A+24)}, {v(vL4)}, {s(sAN,4)}, s{sO2} offen{nta}")
        vm.append(("a", q))
    def wait_for(x):
        a(f"  s_waitcnt vmcnt({len(vm) - 1 - vm.index(x)})")
    def poll(tag, load, cond, nap=4):
        a(f"  s_mov_b32 s{sY}, {OPT['spin']}")
        a.label(f"L_poll_{tag}")
        a(load)
        a("  s_waitcnt vmcnt(0)")
        a(cond)
        a(f"""
  s_cbranch_vccz L_polled_{tag}
  s_sleep {nap}
  s_sub_u32 s{sY}, s{sY}, 1
  s_cbranch_scc0 L_poll_{tag}""")
        a.label(f"L_polled_{tag}")

    a(".p2align 8")
    a.label(NAME + "_kernel")
    a(f"""
  s_cmp_ge_u32 s2, 256
  s_cbranch_scc1 L_end
  s_load_dwordx16 s[48:63], s[0:1], 0
  s_load_dwordx4 s[44:47], s[0:1], 96
  s_load_dwordx8 s[64:71], s[0:1], 64
  v_lshlrev_b32 {v(vL16)}, 4, v0
  v_mov_b64 {v(PT,2)}, 0
  v_mov_b64 {v(PT+2,2)}, 0
  s_min_u32 s{sY}, s2, {NCH-1}
  s_mul_i32 s{sX}, s{sY}, {CH*4}
  s_cmp_lt_u32 s2, {NCH}
  s_cselect_b32 s{sFl}, {CH*2}, 0
  s_lshl_b32 s{sCin}, s{sFl}, 1
  s_mov_b32 s{sO4}, 0
  s_mov_b32 s{sO2}, 0
  ds_write_b128 {v(vL16)}, {v(PT,4)}
  s_waitcnt lgkmcnt(0)""")
    stamp(a, 252, 0); stamp(a, 252, 62, "s_memrealtime")
    srd(a, sIO, 52, 53, f"s{sX}", f"s{sCin}")
    srd(a, sII, 50, 51, f"s{sX}", f"s{sCin}")
    ld_pair(0); ld_pair(1)
    a("  s_barrier")
    LA = OPT["la"]
    for q in range(2, LA): ld_pair(q)
    a(f"  s_lshr_b32 s{sX}, s{sX}, 1")
    srd(a, sAN, 56, 57, f"s{sX}", f"s{sFl}")
    srd(a, sMT, 48, 49, f"s{sX}", f"s{sFl}")
    a(f"  s_mul_i32 s{sX}, s{sY}, {CH*6}\n  s_mul_i32 s{sFl}, s{sFl}, 3")
    srd(a, sRW, sWS, sWS+1, f"s{sX}", f"s{sFl}")
    srd(a, sTW, sWS, sWS+1, TABOFF, 256 * 8192)
    srd(a, sFLG, sWS, sWS+1, FLGOFF, 8192)
    srd(a, sDBG, 44, 45, None, 256)
    a(f"""
  s_lshl_b32 s{sX}, s2, 2
  v_lshl_add_u32 {v(vFlg)}, v0, 10, s{sX}
  s_cmp_lt_u32 s2, {NCH}
  s_cselect_b32 s{sX}, 0, 4
  v_mov_b32 {v(vDum)}, s{sX}
  buffer_store_dword {v(vDum)}, {v(vFlg)}, {s(sFLG,4)}, 0 offen sc1
  s_lshl_b32 s{sX}, s{sX}, 20
  v_or_b32 {v(vFlg)}, s{sX}, {v(vFlg)}
  s_load_dword s{sCin}, s[60:61], 0
  v_lshlrev_b32 {v(vL8)}, 3, v0
  v_lshlrev_b32 {v(vL4)}, 2, v0
  v_lshlrev_b32 {v(vL128)}, 7, v0
  v_mov_b32 {v(vSix)}, 6
  v_mov_b32 {v(vTwo)}, 2
  s_mov_b32 s{sMJ}, {MJ}
  s_mov_b32 s{sMK}, {MK}
  s_mov_b32 s{sNEB}, {-EB & 0xffffffff}
  s_mov_b32 s{sB5}, {OPT['b5']}
  s_and_b32 s{sJ}, s2, 7
  s_lshl_b32 s{sJ}, s{sJ}, 5
  s_lshr_b32 s{sX}, s2, 3
  s_add_u32 s{sJ}, s{sJ}, s{sX}
  {"s_mov_b32 s%d, s2" % sJ if OPT["jid"] else "s_nop 0"}
  v_lshrrev_b32 {v(T)}, 6, v0
  v_and_b32 {v(T+2)}, 15, v0
  v_bfe_u32 {v(T+3)}, v0, 5, 1
  v_readfirstlane_b32 s{sW}, {v(T)}
  v_lshlrev_b32 {v(vHalf)}, 4, {v(T+3)}
  v_lshl_add_u32 {v(cb)}, {v(T)}, 5, {v(vHalf)}
  v_add_u32 {v(cb)}, {v(cb)}, {v(T+2)}
  v_lshlrev_b32 {v(vTab)}, 13, {v(cb)}
  v_and_b32 {v(T+1)}, 63, v0
  v_and_b32 {v(vSlot)}, 31, v0
  v_mov_b64 {v(vZ,2)}, 0
  v_mov_b32 {v(v264)}, {TS}
  v_lshlrev_b32 {v(vWo)}, 1, {v(T+2)}
  v_lshl_add_u32 {v(vWo)}, {v(T+3)}, 8, {v(vWo)}
  v_lshl_add_u32 {v(vWo)}, {v(T)}, 5, {v(vWo)}
  v_mov_b32 {v(vCtlN)}, {CTL}
  s_lshl_b32 s{sX}, s{sW}, 10
  s_add_u32 s{sX}, s{sX}, {S_OFF}
  v_lshl_add_u32 {v(vSrd)}, {v(T+1)}, 4, s{sX}
  v_bfe_u32 {v(T+6)}, v0, 2, 2
  v_lshlrev_b32 {v(vSst)}, 8, {v(T+6)}
  v_lshl_add_u32 {v(vSst)}, {v(T+3)}, 7, {v(vSst)}
  v_bfe_u32 {v(T+6)}, v0, 4, 1
  v_lshl_add_u32 {v(vSst)}, {v(T+6)}, 3, {v(vSst)}
  v_and_b32 {v(T+6)}, 3, v0
  v_lshl_add_u32 {v(vSst)}, {v(T+6)}, 1, {v(vSst)}
  v_add_u32 {v(vSst)}, s{sX}, {v(vSst)}
  v_mov_b32 {v(vOne)}, 1
  v_mov_b32 {v(vOOB)}, 0x80000000
  v_mov_b32 {v(vMsk)}, 0x7ffffffc
  v_mul_u32_u24 {v(vI6)}, 6, {v(vSlot)}
  v_add_u32 {v(vI1)}, 1, {v(vSlot)}
  v_lshlrev_b32 {v(vI4)}, 2, {v(vI1)}
  v_mov_b32 {v(T+6)}, {CH}
  v_mul_u32_u24 {v(cb)}, {v(cb)}, {v(T+6)}
  v_mov_b32 {v(sA)}, 0
  v_mov_b32 {v(nA)}, 0
  v_mov_b32 {v(rtot)}, 0
  s_mul_i32 s{sX}, s{sW}, {NT*TS}
  s_add_u32 s{sX}, s{sX}, {BUFSZ}
  v_lshl_add_u32 {v(vRd)}, {v(vSlot)}, 3, s{sX}
  v_min_u32 {v(T+6)}, {NT-1}, {v(T+1)}
  v_mad_u32_u24 {v(vCntA)}, {v(T+6)}, {v(v264)}, s{sX}
  v_sub_u32 {v(vCarIdx)}, 511, v0
  v_lshlrev_b32 {v(vCarOff)}, 3, {v(vCarIdx)}
  v_cmp_eq_u32 vcc, 1, {v(T+3)}
  s_waitcnt lgkmcnt(0)
  s_lshl_b32 s{sX}, s{sCin}, 16
  s_and_b32 s{sCin}, s{sCin}, 0xffff0000
  v_mov_b32 {v(vFreq)}, s{sX}
  v_mov_b32 {v(T+6)}, s{sCin}
  v_cndmask_b32 {v(vFreq)}, {v(vFreq)}, {v(T+6)}, vcc
  s_mov_b32 s{sIt}, -1
  s_mov_b32 s{sIns}, 0
  s_mov_b32 s{sCarW}, 0
  s_mov_b32 s{sCarR}, {CARLIST}
  s_lshr_b32 s{sRb}, s{sW}, 2
  s_add_u32 s{sRb}, s{sRb}, {OPT['rb0']}
  s_nop 0""")
    if OPT["tlb"]:
        sh = OPT["tlb"]
        srd(a, 28, sWS, sWS+1, None, FLGOFF + 8192)
        a(f"  v_lshlrev_b32 v249, {sh}, v0\n  buffer_load_dword v248, v249, s[28:31], 0 offen")
        srd(a, 28, 48, 49, None, E * 32)
        a(f"  buffer_load_dword v248, v249, s[28:31], 0 offen")
        srd(a, 28, 70, 71, None, E * 32)
        a(f"  buffer_load_dword v248, v249, s[28:31], 0 offen")
        vm.extend([("tlb", i) for i in range(3)])
    a(f"""
  s_cmp_ge_u32 s2, {NCH}
  s_cbranch_scc1 L_nochunk1""")
    vm.append(("flg", 0))
    arrive = f"""
  s_and_b32 s{sY}, s2, 15
  s_lshl_b32 s{sY}, s{sY}, 4
  v_lshlrev_b32 {v(PT)}, 8, v0
  buffer_atomic_add {v(vOne)}, {v(PT)}, {s(sDBG,4)}, s{sY} offen"""
    def hist(idx):
        if OPT["b5"]:
            for x, i in enumerate(idx): a(f"  v_cmp_le_u32 {s(72+2*x,2)}, s{sB5}, {v(I+i)}")
        for x, i in enumerate(idx): a(f"  v_mul_hi_u32_u24 {v(PT+x)}, s{sMJ}, {v(O+i)}")
        for x, i in enumerate(idx): a(f"  v_mul_hi_u32_u24 {v(PT+4+x)}, s{sMK}, {v(I+i)}")
        if OPT["b5"]:
            for x, i in enumerate(idx): a(f"  v_cndmask_b32 {v(PT+4+x)}, {v(PT+4+x)}, 5, {s(72+2*x,2)}")
        for x, i in enumerate(idx): a(f"  v_mad_i32_i24 {v(PT+8+x)}, {v(PT+x)}, s{sNEB}, {v(O+i)}")
        for x, i in enumerate(idx): a(f"  v_lshl_add_u32 {v(O+i)}, {v(PT+4+x)}, 8, {v(PT+x)}")
        for x, i in enumerate(idx): a(f"  v_lshlrev_b32 {v(O+i)}, 2, {v(O+i)}")
        for x, i in enumerate(idx): a(f"  ds_add_rtn_u32 {v(R+i)}, {v(O+i)}, {v(vOne)}")
        for x, i in enumerate(idx): a(f"  v_lshl_or_b32 {v(I+i)}, {v(PT+8+x)}, 20, {v(I+i)}")
        for x, i in enumerate(idx): a(f"  v_or_b32 {v(I+i)}, 0x80000000, {v(I+i)}")
    na = 0
    for q in range(NR):
        wait_for(("p", q))
        if q == 0: stamp(a, 252, 40)
        if q == LA:
            a(arrive); vm.append(("arr", 0))
        if q + LA < NR: ld_pair(q + LA)
        else:
            for _ in range(2):
                if na < OPT["apre"]: ld_ang(na); na += 1
        hist(list(range(4*q, 4*q + nrec(q))))
    stamp(a, 252, 41)
    X = v(PT+4)
    a(f"""
  s_waitcnt lgkmcnt(0)
  s_barrier
  s_cmp_ge_u32 s{sW}, {K}
  s_cbranch_scc1 L_bin_s1
  ds_read_b128 {v(PT,4)}, {v(vL16)}
  v_and_b32 {v(PT+8)}, 63, v0
  s_waitcnt lgkmcnt(0)
  v_add_u32 {v(PT+1)}, {v(PT)}, {v(PT+1)}
  v_add_u32 {v(PT+2)}, {v(PT+1)}, {v(PT+2)}
  v_add_u32 {v(PT+3)}, {v(PT+2)}, {v(PT+3)}
  v_mov_b32 {v(PT+4)}, {v(PT+3)}""")
    for sh in (1, 2, 4, 8):
        a(f"  s_nop 1\n  v_add_u32_dpp {X}, {X}, {X} row_shr:{sh} row_mask:0xf bank_mask:0xf bound_ctrl:0")
    a(f"  s_nop 1\n  v_add_u32_dpp {X}, {X}, {X} row_bcast:15 row_mask:0xa bank_mask:0xf")
    a(f"  s_nop 1\n  v_add_u32_dpp {X}, {X}, {X} row_bcast:31 row_mask:0xc bank_mask:0xf")
    a(f"""
  v_cmp_lt_u32 vcc, s{sW}, {v(PT+8)}
  v_readlane_b32 s{sY}, {X}, 63
  v_lshlrev_b32 {v(PT+9)}, 2, {v(PT+8)}
  s_and_b32 vcc_lo, vcc_lo, 0xff
  s_mov_b32 vcc_hi, 0
  v_mov_b32 {v(PT+10)}, s{sY}
  s_mov_b64 exec, vcc
  ds_add_u32 {v(PT+9)}, {v(PT+10)} offset:{P1_TMP}
  s_mov_b64 exec, -1
  s_waitcnt lgkmcnt(0)""")
    a.label("L_bin_s1")
    a(f"""
  s_barrier
  s_cmp_ge_u32 s{sW}, {K}
  s_cbranch_scc1 L_bin_s2
  s_lshl_b32 s{sY}, s{sW}, 2
  v_mov_b32 {v(PT+9)}, s{sY}
  ds_read_b32 {v(PT+9)}, {v(PT+9)} offset:{P1_TMP}
  v_sub_u32 {X}, {X}, {v(PT+3)}
  v_mov_b32 {v(PT+10)}, {CH}
  s_waitcnt lgkmcnt(0)
  v_add_u32 {v(PT+4)}, {X}, {v(PT+9)}
  v_add_u32 {v(PT+5)}, {v(PT+4)}, {v(PT)}
  v_add_u32 {v(PT+6)}, {v(PT+4)}, {v(PT+1)}
  v_add_u32 {v(PT+7)}, {v(PT+4)}, {v(PT+2)}
  ds_write_b128 {v(vL16)}, {v(PT+4,4)}
  ds_write_b32 {v(vZ)}, {v(PT+10)} offset:{P1_SENT}
  s_waitcnt lgkmcnt(0)""")
    a.label("L_bin_s2")
    a("  s_barrier")
    stamp(a, 252, 42)
    a(f"""
  v_lshrrev_b32 {v(PT+12)}, 1, v0
  v_and_b32 {v(PT+13)}, 1, v0
  v_lshlrev_b32 {v(PT+12)}, 2, {v(PT+12)}
  v_lshl_add_u32 {v(PT+13)}, {v(PT+13)}, 12, {v(PT+12)}
  s_lshl_b32 s{sY}, s2, 13""")
    for k in range(4):
        a(f"  ds_read_b32 {v(PT+k)}, {v(PT+13)} offset:{k*1024}")
        a(f"  ds_read_b32 {v(PT+6+k)}, {v(PT+13)} offset:{k*1024+4}")
    a("  s_waitcnt lgkmcnt(0)")
    for k in range(4): a(f"  v_sub_u32 {v(PT+6+k)}, {v(PT+6+k)}, {v(PT+k)}")
    for k in range(4): a(f"  v_lshl_or_b32 {v(PT+k)}, {v(PT+6+k)}, 16, {v(PT+k)}")
    a(f"  buffer_store_dwordx4 {v(PT,4)}, {v(vL16)}, {s(sTW,4)}, s{sY} offen sc1")
    vm.append(("tab", 0))
    mark = len(vm)
    while na < NR: ld_ang(na); na += 1
    if OPT["mtouch"]:
        a(f"  buffer_load_dword v244, {v(vL128)}, {s(sMT,4)}, 0 offen"); vm.append(("m", 0))
    NB = OPT["nb"]
    vDa, vDv, vRa = 245, 246, 247
    lda = f"  buffer_load_dword {v(vDv)}, {v(vDa)}, {s(sDBG,4)}, 0 offen sc1"
    cda = f"  v_cmp_gt_u32 vcc, 16, {v(vDv)}"
    ada = f"""
  s_lshl_b32 s{sX}, s{sW}, 16
  v_and_b32 {v(vDa)}, 15, v0
  v_lshl_add_u32 {v(vDa)}, {v(vDa)}, 4, s{sX}"""
    NRD = 15
    for i in range(NRD): a(f"  ds_read_b32 {v(O+i)}, {v(O+i)}")
    a(f"  s_mov_b32 s{sB5}, {NB*8192 + 4}\n  s_mov_b32 s{sSo}, 0")
    a(ada)
    a(f"  v_add_u32 {v(vRa)}, {P1_REC}, {v(vL16)}")
    for g in range(10):
        idx = list(range(5*g, 5*g+5))
        a(f"  s_waitcnt lgkmcnt({min(10, 45 - 5*g)})")
        for i in idx:
            if i + NRD < 50: a(f"  ds_read_b32 {v(O+i+NRD)}, {v(O+i+NRD)}")
        for i in idx: a(f"  v_add_u32 {v(O+i)}, {v(O+i)}, {v(R+i)}")
        for i in idx: a(f"  v_mad_u32_u24 {v(O+i)}, {v(O+i)}, {v(vSix)}, {v(vTwo)}")
        for x, i in enumerate(idx): a(f"  v_and_b32 {v(PT+x)}, 2, {v(O+i)}")
        for i in idx: a(f"  v_and_b32 {v(R+i)}, -4, {v(O+i)}")
        for x, i in enumerate(idx): a(f"  v_lshl_add_u32 {v(O+i)}, {v(PT+x)}, 1, {v(O+i)}")
    def put(q, cmp):
        idx = list(range(4*q, 4*q + nrec(q)))
        for x, i in enumerate(idx): a(f"  v_cmp_{cmp}_u32 {s(72+2*x,2)}, s{sB5}, {v(R+i)}")
        for x, i in enumerate(idx):
            op = "ds_write_b16_d16_hi" if (i & 1) else "ds_write_b16"
            a(f"""
  s_mov_b64 exec, {s(72+2*x,2)}
  ds_write_b32 {v(R+i)}, {v(I+i)} offset:{P1_REC}
  {op} {v(O+i)}, {v(A + i//2)} offset:{P1_REC-2}""")
        a("  s_mov_b64 exec, -1")
    for q in range(NR):
        wait_for(("a", q))
        for r in range(nrec(q) // 2): a(f"  v_and_b32 {v(A+2*q+r)}, 0x7fff7fff, {v(A+2*q+r)}")
        if q == OPT["tq"]:
            assert q >= OPT["apre"]
            a("  s_barrier")
            a(lda); vm.append(("lda", 0))
            a(f"  buffer_store_dword {v(vOne)}, {v(vFlg)}, {s(sFLG,4)}, 0 offen sc1"); vm.append(("flg", 1))
        put(q, "gt")
    a(f"  ds_read_b32 v248, {v(vZ)} offset:2048")
    a("  s_waitcnt lgkmcnt(0)\n  s_barrier")
    stamp(a, 252, 43)
    a(f"  v_readfirstlane_b32 s{sO2}, v248")
    free = [PT, PT + 4, PT + 8, O, I, R, O + 4, I + 4, R + 4]
    def erd(r): a(f"  ds_read_b128 {v(free[r],4)}, {v(vRa)} offset:{r*8192}")
    def est(r):
        a(f"  buffer_store_dwordx4 {v(free[r],4)}, {v(vL16)}, {s(sRW,4)}, s{sSo} offen sc1\n  s_add_u32 s{sSo}, s{sSo}, 8192")
        vm.append(("st", r))
    assert NB <= 8
    for r in range(3): erd(r)
    for r in range(3):
        a(f"  s_waitcnt lgkmcnt({2 - r})")
        est(r)
    put(0, "le"); put(1, "le")
    for r in range(3, NB): erd(r)
    put(2, "le")
    a("  s_waitcnt lgkmcnt(0)")
    todo = list(range(3, NB))
    fad = f"""
  v_and_b32 {v(RK[0])}, 63, v0
  v_lshlrev_b32 {v(RK[0])}, 4, {v(RK[0])}
  s_and_b32 s{sCin}, s2, 7
  s_lshl_b32 s{sCin}, s{sCin}, 10"""
    for q in range(3, NR):
        if todo: est(todo.pop(0))
        if q == OPT["fq"]:
            assert q >= 8 and Da == O + 28 and not todo
            a(fad)
            a(f"  s_mov_b32 s{sO4}, 0\n  s_cmp_lg_u32 s{sW}, 0\n  s_cbranch_scc1 L_nofl")
            wait_for(("lda", 0))
            a(cda)
            a(f"  s_cbranch_vccnz L_nofl\n  s_mov_b32 s{sO4}, 1")
            a(f"  buffer_load_dwordx4 {v(Da,4)}, {v(RK[0])}, {s(sFLG,4)}, s{sCin} offen sc1")
            a.label("L_nofl")
        put(q, "le")
    assert not todo
    stamp(a, 252, 44)
    FP = Da
    def flag_load(dst, off): return f"  buffer_load_dwordx4 {v(dst,4)}, {v(off)}, {s(sFLG,4)}, s{sCin if dst == FP else sX} offen sc1"
    def flag_cond(dst, stage): return f"""
  v_min3_u32 {v(dst)}, {v(dst)}, {v(dst+1)}, {v(dst+2)}
  v_min_u32 {v(dst)}, {v(dst)}, {v(dst+3)}
  v_cmp_gt_u32 vcc, {stage}, {v(dst)}"""
    a(f"  s_waitcnt vmcnt(0)\n  s_cmp_lg_u32 s{sW}, 0\n  s_cbranch_scc1 L_polled_t")
    a(f"  s_cmp_eq_u32 s{sO4}, 0\n  s_cbranch_scc1 L_wait_a")
    a(flag_cond(FP, 1))
    a("  s_cbranch_vccz L_polled_t\n  s_branch L_polled_a")
    a.label("L_nochunk1")
    if 40 <= OPT["cut"] <= 44: a("  s_endpgm")
    a("  s_waitcnt vmcnt(0)")
    a(arrive)
    a(ada)
    a(fad)
    a(f"  s_mov_b32 s{sO2}, 0\n  s_cmp_lg_u32 s{sW}, 0\n  s_cbranch_scc1 L_polled_t")
    a.label("L_wait_a")
    poll("a", lda, cda, 64)
    poll("t", flag_load(FP, RK[0]), flag_cond(FP, 1), OPT["napt"])
    a(f"""
  s_lshl_b32 s{sX}, s{sJ}, 5
  s_add_u32 s{sX}, s{sX}, {TABOFF}""")
    srd(a, sTAB, sWS, sWS+1, f"s{sX}", (NCH - 1) * 8192 + 32)

    def state_update():
        a(f"""
  v_sub_u32 {v(rem)}, {v(rem)}, {v(rtot)}
  v_lshrrev_b32 {v(T)}, 16, {v(Q)}
  v_and_b32 {v(T+1)}, 0xffff, {v(Q)}
  v_min_u32 {v(vR0)}, 32, {v(nA)}
  v_cmp_ge_u32 vcc, 32, {v(nA)}
  v_sub_u32 {v(T+2)}, 32, {v(vR0)}
  v_add_u32 {v(vB6)}, {v(cb)}, {v(T+1)}
  v_min_u32 {v(T+2)}, {v(T)}, {v(T+2)}
  v_mul_u32_u24 {v(vB6)}, 6, {v(vB6)}
  v_add_u32 {v(rtot)}, {v(vR0)}, {v(T+2)}
  v_mad_i32_i24 {v(vB6)}, {v(vR0)}, -6, {v(vB6)}
  v_lshlrev_b32 {v(vRT4)}, 2, {v(rtot)}
  v_add_u32 {v(vA6)}, {v(cb)}, {v(sA)}
  v_mul_u32_u24 {v(vA6)}, 6, {v(vA6)}""")
    def state_update2():
        a(f"""
  v_add_u32 {v(sA)}, 32, {v(sA)}
  v_subrev_u32 {v(nA)}, 32, {v(nA)}
  v_add_u32 {v(T+1)}, {v(T+1)}, {v(T+2)}
  v_sub_u32 {v(T)}, {v(T)}, {v(T+2)}
  v_cndmask_b32 {v(sA)}, {v(sA)}, {v(T+1)}, vcc
  v_cndmask_b32 {v(nA)}, {v(nA)}, {v(T)}, vcc""")
        for i in range(K - 1):
            a(f"  v_cndmask_b32 {v(Q+i)}, {v(Q+i)}, {v(Q+i+1)}, vcc")
        a(f"  v_cndmask_b32 {v(Q+K-1)}, {v(Q+K-1)}, {v(vZ)}, vcc")
    def set_flag(tag):
        a(f"""
  v_cmp_lt_u32 vcc, 0, {v(rem)}
  s_cbranch_vccz L_noflag_{tag}
  ds_write_b32 {v(vCtlN)}, {v(vOne)} offset:4""")
        a.label(f"L_noflag_{tag}")

    bc = lambda u: f"row_newbcast:{u} row_mask:0xf bank_mask:0xf"
    def rec_load(u, t0):
        a(f"""
  v_sub_co_u32_dpp {v(t0)}, vcc, {v(vR0)}, {v(vI1)} {bc(u)}
  v_add_u32_dpp {v(t0)}, {v(vA6)}, {v(vI6)} {bc(u)}
  v_add_u32_dpp {v(t0+1)}, {v(vB6)}, {v(vI6)} {bc(u)}
  v_cndmask_b32 {v(t0)}, {v(t0)}, {v(t0+1)}, vcc
  v_sub_u32_dpp {v(t0+1)}, {v(vRT4)}, {v(vI4)} {bc(u)}
  v_bfi_b32 {v(t0)}, {v(vMsk)}, {v(t0)}, {v(t0+1)}
  buffer_load_dwordx2 {v(REC[u],2)}, {v(t0)}, {s(sREC,4)}, 0 offen{RPOL}""")

    SDWA = "dst_sel:WORD_1 dst_unused:UNUSED_PAD src0_sel:WORD_1 src1_sel:WORD_0"
    def ins1(u, thr, p):
        ta, rk, mk, w = TA[p], RK[p], sMk[p], WW[p]
        a(f"""
  v_cmp_gt_i32 vcc, 0, {v(REC[u])}
  v_min_i32 {v(w)}, {v(REC[u])}, {v(REC[u]+1)}
  v_cmp_gt_i32 {s(mk,2)}, {thr}, {v(w)}
  v_bfe_u32 {v(ta)}, {v(w)}, 23, 8
  v_cndmask_b32_sdwa {v(REC[u])}, {v(REC[u])}, {v(REC[u]+1)}, vcc {SDWA}
  v_mad_u32_u24 {v(ta)}, {v(ta)}, {v(v264)}, s{sIns}
  s_mov_b64 exec, {s(mk,2)}
  ds_add_rtn_u32 {v(rk)}, {v(ta)}, {v(vOne)}
  s_mov_b64 exec, -1""")

    def ins2(u, tag, p):
        ta, rk, mk, w = TA[p], RK[p], sMk[p], WW[p]
        lab = f"{tag}_{u}"
        a(f"""
  s_mov_b64 exec, {s(mk,2)}
  v_cmp_lt_u32 vcc, 31, {v(rk)}
  v_lshl_add_u32 {v(ta)}, {v(rk)}, 3, {v(ta)}
  s_cbranch_vccnz L_rare_{lab}""")
        a.label(f"L_back_{lab}")
        a(f"""
  ds_write2_b32 {v(ta)}, {v(REC[u])}, {v(w)} offset0:2 offset1:3
  s_mov_b64 exec, -1""")
        rare.append((lab, u, p))

    a(f"""
  v_add_u32 {v(PT+2)}, {P1_REC}, {v(vL16)}
  v_add_u32 {v(PT+3)}, {P1_REC + 8*8192}, {v(vL16)}
  v_add_u32 {v(PT+4)}, {P1_REC + 16*8192}, {v(vL16)}
  s_mov_b32 s{sSo}, {NB*8192}
  v_mov_b32 {v(vDum)}, 3
  s_waitcnt lgkmcnt(0)
  s_barrier""")
    stamp(a, 252, 45)
    NS = 19
    sdt = lambda r: (20 + r) % 25 if r < 8 else r + 1
    SD = lambda r: ACC[sdt(r)]
    gv = []
    def gwait(x, extra=""): a(f"  s_waitcnt vmcnt({len(gv) - 1 - gv.index(x)}){extra}")
    def rd(r): a(f"  ds_read_b128 {v(SD(r),4)}, {v(PT+2 + r//8)} offset:{(r%8)*8192}")
    def st(r, lst=None):
        a(f"  buffer_store_dwordx4 {v(SD(r),4)}, {v(vL16)}, {s(sRW,4)}, s{sSo} offen sc1\n  s_add_u32 s{sSo}, s{sSo}, 8192")
        if lst is not None: lst.append(("st", r))
    zero_acc = lambda t: a(f"  v_mov_b64 {v(ACC[t],2)}, 0\n  v_mov_b64 {v(ACC[t]+2,2)}, 0")
    flag3 = f"  buffer_store_dword {v(vDum)}, {v(vFlg)}, {s(sFLG,4)}, 0 offen sc1"
    N1, N3 = OPT["n1"], OPT["n3"]
    a(f"  s_cmp_gt_u32 s{sO2}, {NB*8192 // 6 - 2}\n  s_cbranch_scc1 L_noearly")
    a(flag3)
    a.label("L_noearly")
    a(f"""
  buffer_load_dwordx4 {v(Q,4)}, {v(vTab)}, {s(sTAB,4)}, 0 offen sc1
  buffer_load_dwordx2 {v(Q+4,2)}, {v(vTab)}, {s(sTAB,4)}, 0 offen offset:16 sc1
  global_load_ushort {v(T+9)}, {v(vWo)}, s[66:67]""")
    gv.extend([("tab", 0), ("tab", 1), ("w", 0)])
    for r in range(NB, NS): rd(r)
    nxt = NB + N1
    for r in range(NB, nxt):
        a(f"  s_waitcnt lgkmcnt({NS - 1 - r})")
        st(r, gv)
    a(f"""
  s_waitcnt lgkmcnt(0)
  s_cmp_gt_u32 s{sO2}, {NB*8192 // 6 - 2}
  s_cbranch_scc1 L_allfirst
  s_barrier""")
    a.label("L_allfirst_back")
    stamp(a, 252, 46)
    a(f"""
  s_mul_i32 s{sFl}, s{sJ}, {2*CARLIST}
  s_add_u32 s{sFl}, s{sFl}, {CAROFF}""")
    srd(a, sREC, sWS, sWS+1, None, NCH * CH * 6)
    srd(a, sM, 48, 49, None, E * 32)
    srd(a, sCAR, sWS, sWS+1, f"s{sFl}", 2 * CARLIST)
    srd(a, sDIST, 54, 55, None, E * 2)
    a(f"""
  s_mul_i32 s{sEb}, s{sJ}, {EB}
  s_mul_i32 s{sX}, s{sW}, 200
  s_add_u32 s{sFl}, s{sEb}, {EB}
  s_add_u32 s{sEb}, s{sEb}, s{sX}
  s_add_u32 s{sX}, s{sEb}, 200
  s_min_u32 s{sX}, s{sX}, s{sFl}
  s_min_u32 s{sX}, s{sX}, {E}
  s_lshl_b32 s{sX}, s{sX}, 5""")
    srd(a, sOUT, 70, 71, None, f"s{sX}")
    srd(a, sMW, 48, 49, None, f"s{sX}")
    a(f"""
  s_lshl_b32 s{sEb}, s{sEb}, 5
  s_add_u32 s{sEb2}, s{sEb}, 4096""")
    for q in range(D):
        a(f"  v_mov_b64 {v(RING[q],2)}, 0\n  v_mov_b64 {v(RING[q]+2,2)}, 0")
    for t in list(range(3, 9)) + [sdt(r) for r in range(NB)]: zero_acc(t)
    nx2 = min(NS, nxt + OPT["n2"])
    for r in range(nxt, min(nxt + 2, nx2)): st(r, gv)
    a(f"""
  v_mov_b32 {v(vSent)}, 0x7ffff
  v_mov_b32 {v(T)}, 0
  v_mov_b32 {v(T+1)}, {v(vSent)}
  v_mov_b32 {v(T+2)}, 0
  v_mov_b32 {v(T+3)}, {v(vSent)}
  v_add_u32 {v(T+6)}, {7*8192}, {v(vL16)}""")
    for r in range(13):
        a(f"  ds_write_b128 {v(vL16 if r < 7 else T+6)}, {v(T,4)} offset:{(r%7)*8192}")
    a(f"""
  v_and_b32 {v(T+6)}, 15, v0
  v_lshl_add_u32 {v(T+6)}, {v(T+6)}, 2, {v(vCtlN)}
  ds_write_b32 {v(T+6)}, {v(vZ)}
  ds_write_b128 {v(vSrd)}, {v(RING[0],4)}
  v_and_b32 {v(T+6)}, 63, v0
  v_lshlrev_b32 {v(TA[0])}, 4, {v(T+6)}
  v_add_u32 {v(TA[0])}, {RB_OFF}, {v(TA[0])}
  s_lshl_b32 s{sX}, s{sW}, 1
  v_add_u32 {v(T+8)}, s{sX}, {v(TA[0])}""")
    mid = min(nxt + 2 + OPT["n2a"], nx2)
    for r in range(min(nxt + 2, nx2), mid): st(r, gv)
    for q in range(D): a(f"  v_mov_b32 {v(SA[q])}, {v(vSst)}")
    gwait(("w", 0))
    a(f"  ds_write_b16 {v(T+8)}, {v(T+9)}")
    a(f"  v_lshrrev_b32 {v(rem)}, 16, {v(Q)}")
    for i in range(1, K):
        a(f"  v_lshrrev_b32 {v(T+4)}, 16, {v(Q+i)}\n  v_add_u32 {v(rem)}, {v(rem)}, {v(T+4)}")
    state_update()
    for u in range(0, 16, 2):
        a(f"""
  v_add_u32_dpp {v(REC[u])}, {v(vB6)}, {v(vI6)} {bc(u)}
  v_sub_u32_dpp {v(REC[u]+1)}, {v(vRT4)}, {v(vI4)} {bc(u)}
  v_add_u32_dpp {v(REC[u+1])}, {v(vB6)}, {v(vI6)} {bc(u+1)}
  v_sub_u32_dpp {v(REC[u+1]+1)}, {v(vRT4)}, {v(vI4)} {bc(u+1)}
  v_bfi_b32 {v(REC[u])}, {v(vMsk)}, {v(REC[u])}, {v(REC[u]+1)}
  v_bfi_b32 {v(REC[u+1])}, {v(vMsk)}, {v(REC[u+1])}, {v(REC[u+1]+1)}""")
        if mid < nx2:
            st(mid, gv); mid += 1
    for r in range(mid, nx2): st(r, gv)
    state_update2()
    state_update()
    state_update2()
    for r in range(NB, nx2): zero_acc(sdt(r))
    stamp(a, 252, 47)
    a(f"  s_cmp_lg_u32 s{sW}, 0\n  s_cbranch_scc1 L_polled_b")
    poll("b", flag_load(FP, RK[0]), flag_cond(FP, 2), OPT["nap"])
    a("  s_waitcnt lgkmcnt(0)")
    a("  s_barrier")
    stamp(a, 252, 1)
    for u in range(16):
        a(f"  buffer_load_dwordx2 {v(REC[u],2)}, {v(REC[u])}, {s(sREC,4)}, 0 offen{RPOL}")
        gv.append(("rec", u))
    a(f"  ds_read_b128 {v(Wb,4)}, {v(TA[0])}")
    NG = NS
    nx3 = min(NS, nx2 + N3)
    for r in range(nx2, nx3): st(r, gv)
    stamp(a, 252, 12)
    set_flag("pro")
    for q in range(D): a(f"  v_mov_b32 {v(CC[q])}, 0")
    for r in range(nx2, nx3): zero_acc(sdt(r))
    a(f"  v_bfe_u32 {v(T)}, v0, 4, 1\n  v_cmp_eq_u32 vcc, 1, {v(T)}\n  s_waitcnt lgkmcnt(0)\n  s_nop 0")
    for r in range(4):
        a(f"  v_cndmask_b32 {v(Wa+r)}, {v(Wb+r)}, {v(vZ)}, vcc")
        a(f"  v_cndmask_b32 {v(Wb+r)}, {v(vZ)}, {v(Wb+r)}, vcc")
    stamp(a, 252, 13)
    PTA = lambda u: Da + u
    PRK = lambda u: RING[0] + u
    PMK = lambda u: sPM + 2 * (u % 8)
    slowg = []
    def pro_ins1(g):
        us = range(4*g, 4*g+4)
        gwait(("rec", 4*g+3))
        for u in us:
            a(f"""
  v_cmp_gt_i32 vcc, 0, {v(REC[u])}
  v_min_i32 {v(PTA(u))}, {v(REC[u])}, {v(REC[u]+1)}
  v_cmp_gt_i32 {s(PMK(u),2)}, 0, {v(PTA(u))}
  v_cndmask_b32_sdwa {v(REC[u])}, {v(REC[u])}, {v(REC[u]+1)}, vcc {SDWA}
  v_mov_b32 {v(REC[u]+1)}, {v(PTA(u))}""")
        for u in us: a(f"  v_bfe_u32 {v(PTA(u))}, {v(PTA(u))}, 23, 8")
        for u in us: a(f"  v_mul_u32_u24 {v(PTA(u))}, {v(PTA(u))}, {v(v264)}")
        for u in us: a(f"  s_mov_b64 exec, {s(PMK(u),2)}\n  ds_add_rtn_u32 {v(PRK(u))}, {v(PTA(u))}, {v(vOne)}")
        a("  s_mov_b64 exec, -1")
    def pro_ins2(g):
        us = list(range(4*g, 4*g+4))
        a(f"""
  v_max3_u32 {v(T)}, {v(PRK(us[0]))}, {v(PRK(us[1]))}, {v(PRK(us[2]))}
  v_max_u32 {v(T)}, {v(T)}, {v(PRK(us[3]))}
  v_cmp_lt_u32 vcc, 31, {v(T)}
  s_cbranch_vccz L_pfast_{g}
  v_cmp_lt_u32 vcc, 63, {v(T)}
  s_cbranch_vccnz L_pslow_{g}""")
        a.label(f"L_pback_{g}")
        for x, u in enumerate(us): a(f"  v_subrev_u32 {v(T+4+x)}, 31, {v(PRK(u))}")
        for x, u in enumerate(us): a(f"  s_mov_b64 exec, {s(PMK(u),2)}\n  ds_max_i32 {v(PTA(u))}, {v(T+4+x)} offset:{BUFSZ}")
        a(f"  s_mov_b64 exec, -1\n  ds_write_b32 {v(vCtlN)}, {v(vOne)} offset:4")
        for x, u in enumerate(us): a(f"  v_lshrrev_b32 {v(T+4+x)}, 5, {v(PRK(u))}")
        for x, u in enumerate(us): a(f"  v_mad_u32_u24 {v(PTA(u))}, {v(T+4+x)}, s{sThr}, {v(PTA(u))}")
        a.label(f"L_pfast_{g}")
        for u in us: a(f"  v_lshl_add_u32 {v(PTA(u))}, {v(PRK(u))}, 3, {v(PTA(u))}")
        for u in us: a(f"  s_mov_b64 exec, {s(PMK(u),2)}\n  ds_write_b64 {v(PTA(u))}, {v(REC[u],2)} offset:8")
        a("  s_mov_b64 exec, -1")
        slowg.append(g)
    a(f"  s_mov_b32 s{sThr}, {BUFSZ - 256}")
    left = list(range(nx3, NS))
    per = (len(left) + 3) // 4
    def some():
        for _ in range(per):
            if left: st(left.pop(0), gv)
    pro_ins1(0)
    stamp(a, 252, 3)
    pro_ins1(1)
    some()
    a("  s_waitcnt lgkmcnt(0)")
    pro_ins2(0); some(); pro_ins1(2); pro_ins2(1); some(); pro_ins1(3); some()
    stamp(a, 252, 8)
    a("  s_nop 0")
    for r in range(nx3, NS): zero_acc(sdt(r))
    a("  s_waitcnt lgkmcnt(0)")
    pro_ins2(2); pro_ins2(3)
    stamp(a, 252, 11)
    a("  s_branch L_turn2")
    def signal_all(tag, n):
        a(f"""
  v_mov_b32 {v(T+4)}, {CTL + 32}
  s_waitcnt vmcnt({n})
  s_mov_b64 exec, 1
  ds_add_rtn_u32 {v(T+5)}, {v(T+4)}, {v(vOne)}
  s_mov_b64 exec, -1
  v_and_b32 {v(T+6)}, 63, v0
  s_lshl_b32 s{sX}, s2, 2
  v_lshl_add_u32 {v(T+6)}, {v(T+6)}, 10, s{sX}
  v_mov_b32 {v(T+7)}, 4
  s_waitcnt lgkmcnt(0)
  v_readfirstlane_b32 s{sX}, {v(T+5)}
  s_cmp_lg_u32 s{sX}, 7
  s_cbranch_scc1 L_nosig_{tag}
  buffer_store_dword {v(T+7)}, {v(T+6)}, {s(sFLG,4)}, 0 offen sc1""")
        a.label(f"L_nosig_{tag}")

    INS0 = OPT["ins0"]
    def cstage_head(q):
        if OPT["abl_s"]: return
        a(f"""
  ds_write_b16 {v(SA[q])}, {v(CC[q])}
  ds_read_b128 {v(Sf,4)}, {v(vSrd)}
  ds_write_b16 {v(SA[q])}, {v(vZ)}""")
    def cstage_m1(q):
        if OPT["abl_mfma"]: return
        a(f"""
  v_mfma_f32_16x16x32_bf16 {v(Da,4)}, {v(RING[q],4)}, {v(Wa,4)}, 0
  v_mfma_f32_16x16x32_bf16 {v(Db,4)}, {v(RING[q],4)}, {v(Wb,4)}, 0""")
    def cstage_cvt():
        if OPT["abl_mfma"]: return
        a(f"""
  v_cvt_pk_bf16_f32 {v(P)}, {v(Da)}, {v(Da+1)}
  v_cvt_pk_bf16_f32 {v(P+1)}, {v(Da+2)}, {v(Da+3)}
  v_cvt_pk_bf16_f32 {v(P+2)}, {v(Db)}, {v(Db+1)}
  v_cvt_pk_bf16_f32 {v(P+3)}, {v(Db+2)}, {v(Db+3)}""")
    def cstage_m2(tc):
        if OPT["abl_mfma"]: return
        a(f"  v_mfma_f32_16x16x32_bf16 {v(ACC[tc],4)}, {v(P,4)}, {v(Sf,4)}, {v(ACC[tc],4)}")
    def step_top(t, reset=True):
        a(f"  ; ---- step {t}")
        a("  s_waitcnt lgkmcnt(0)")
        cstage_head(t % D)
        if t < NT - 1:
            a(f"  ds_read_b64 {v(RP[(t+1)&1],2)}, {v(vRd)} offset:{(t+1)*TS+8}")
        if reset and t < NT:
            a(f"  ds_write_b32 {v(vRd)}, {v(vSent)} offset:{t*TS+12}")
    def step_main(t, n, reset=True):
        q = t % D; tc = (t - D) % NT
        rp = RP[t & 1]
        a(f"  s_waitcnt vmcnt({n})")
        cstage_m1(q)
        off, af, e = T + 1, T + 2, T + 3
        a(f"""
  v_and_b32 {v(off)}, {v(vSent)}, {v(rp+1)}
  v_mul_f32 {v(af)}, {v(rp)}, {v(vFreq)}
  v_lshl_add_u32 {v(off)}, {v(off)}, 5, {v(vHalf)}
  v_cvt_pk_bf16_f32 {v(af)}, 0, {v(af)}
  buffer_load_dwordx4 {v(RING[q],4)}, {v(vOOB if OPT["abl_g"] else off)}, {s(sM,4)}, 0 offen
  v_mul_f32 {v(af)}, 0.15915494, {v(af)}
  v_bfe_u32 {v(e)}, {v(rp+1)}, 20, 3
  v_fract_f32 {v(af)}, {v(af)}""")
        cstage_cvt()
        a(f"""
  v_cos_f32 {v(af)}, {v(af)}
  v_lshl_add_u32 {v(SA[q])}, {v(e)}, 4, {v(vSst)}
  s_waitcnt lgkmcnt({(2 if t < NT-1 else 1) + (1 if reset else 0)})""")
        cstage_m2(tc)
        a(f"  v_cvt_pk_bf16_f32 {v(CC[q])}, {v(af)}, {v(af)}")

    order = []
    for t in range(NT):
        if t == 0: order.append(("car", 16))
        u2 = t - INS0 - 1
        if 0 <= u2 < 16: order.append(("rec", u2))
        order.append(("W", t))
        order.append(("g", t))
    tail = [x for x in order[order.index(("g", NT - D)):] if x[0] != "W"]
    assert tail == [("g", t) for t in range(NT - D, NT)], tail
    def younger(target, at):
        n = len(order); i = order.index(target); cnt = 0
        j = (i + 1) % n
        while j != at:
            if order[j][0] != "W": cnt += 1
            j = (j + 1) % n
        return cnt
    first = []
    for x in order:
        if x[0] == "W" and x[1] < 4: first += [("f", 4 * x[1] + i) for i in range(4)]
        first.append(x)
    def younger_first(u, t):
        i = first.index(("f", u)); j = first.index(("W", t))
        return sum(1 for x in first[i+1:j] if x[0] != "W")
    RBH = 1
    def prio(tag, mask, t):
        cur = mask >> t & 1; prev = (mask >> (t - 1) & 1) if t else 0
        if cur and not prev:
            a(f"  s_cmp_lt_u32 s{sW}, 4\n  s_cbranch_scc1 L_{tag}prio{t}\n  s_setprio 1")
            a.label(f"L_{tag}prio{t}")
        if prev and not cur: a("  s_setprio 0")
    assert not OPT["lprio"] >> (NT - 1)
    def step0_extra():
        a(f"""
  v_cmp_gt_u32 vcc, s{sCin}, {v(vCarIdx)}
  s_add_u32 s{sX}, s{sIt}, 2
  s_and_b32 s{sX}, s{sX}, 3
  s_lshl_b32 s{sX}, s{sX}, 3
  s_add_u32 s{sX}, s{sX}, {CTL}
  v_mov_b32 {v(T+1)}, s{sX}
  ds_write_b64 {v(T+1)}, {v(vZ,2)}
  ds_write_b32 {v(vCntA)}, {v(vZ)}
  v_cndmask_b32 {v(T)}, {v(vOOB)}, {v(vCarOff)}, vcc
  buffer_load_dwordx2 {v(REC[16],2)}, {v(T)}, {s(sCAR,4)}, s{sCarR} offen sc1""")
    def state_step(tag):
        a(f"  s_cmp_lg_u32 s{sThr}, 0\n  s_cbranch_scc1 L_nostate_{tag}")
        if tag == "b0":
            QL = Q + OPT['keff'] - 3
            a(f"""
  v_lshrrev_b32 {v(T)}, 16, {v(QL)}
  v_cmp_eq_u32 vcc, 0, {v(nA)}
  v_subrev_u32 {v(T+1)}, {OPT['lim']}, {v(T)}
  v_and_b32 {v(T+2)}, 0xffff, {v(QL)}
  v_max_i32 {v(T+1)}, 0, {v(T+1)}
  v_cndmask_b32 {v(T+1)}, {v(vZ)}, {v(T+1)}, vcc
  v_add_u32 {v(T+2)}, {v(T+2)}, {v(T)}
  v_sub_u32 {v(T+2)}, {v(T+2)}, {v(T+1)}
  v_cndmask_b32 {v(sA)}, {v(sA)}, {v(T+2)}, vcc
  v_add_u32 {v(nA)}, {v(nA)}, {v(T+1)}
  v_lshlrev_b32 {v(T+1)}, 16, {v(T+1)}
  v_sub_u32 {v(QL)}, {v(QL)}, {v(T+1)}""")
        state_update(); state_update2()
        a.label(f"L_nostate_{tag}")
        set_flag(tag)
    a(".p2align 6")
    a.label("L_body0")
    lo = []
    lw = lambda x: len(lo) - 1 - lo.index(x)
    ST0, STP = OPT["st0"], OPT["stp"]
    late = list(range(NG, NS))
    tsig = None
    FC = WS0
    for t in range(NT):
        step_top(t)
        prio("b0", OPT["lprio"], t)
        if t == 0:
            step0_extra(); lo.append(("rec", 16))
        if t < 4:
            for u in range(4*t, 4*t+4):
                rec_load(u, T + 4 + 2 * (u & 1)); lo.append(("rec", u))
        if t == INS0: state_step("b0")
        zs = []
        if t >= ST0:
            for _ in range(STP):
                if late:
                    r = late.pop(0); st(r, lo); zs.append(r)
                    assert sdt(r) + D > t
                    if not late: tsig = t + D + 1
        u1 = t - INS0; u2 = u1 - 1
        if 0 <= u2 < 17: ins2(u2, "b0", u2 & 1)
        if 0 <= u1 < 17:
            a(f"  s_waitcnt vmcnt({lw(('rec', u1))})")
            ins1(u1, f"s{sThr}" if u1 < 16 else "0", u1 & 1)
        else: a("  s_nop 0")
        for r in zs: zero_acc(sdt(r))
        if t == tsig or (NG == NS and t == 2):
            signal_all("b0", lw(("st", NS - 1)) if NG < NS else len(lo))
        if t == INS0 + 18:
            a(f"  s_cmp_gt_u32 s{sCin}, 512\n  s_cbranch_scc1 L_slow_b0")
            a.label("L_slow_back_b0")
        if t == NT - 3:
            a(f"""
  s_cmp_lg_u32 s{sW}, 0
  s_cbranch_scc1 L_noldc
  v_lshlrev_b32 {v(WR)}, 4, v0
  s_and_b32 s{sX}, s2, 7
  s_lshl_b32 s{sX}, s{sX}, 10""")
            a(flag_load(FC, WR))
            a.label("L_noldc")
        step_main(t, lw(("g", t - D)) if t >= D else 62)
        lo.append(("g", t))
    assert not late and (tsig is None or tsig < NT - 3)
    a(f"""
  s_waitcnt vmcnt(3)
  s_cmp_lg_u32 s{sW}, 0
  s_cbranch_scc1 L_turn2""")
    assert NT - (INS0 + 17) >= 3
    a(flag_cond(FC, 4))
    a(f"""
  s_cbranch_vccz L_turn2
  s_and_b32 s{sX}, s2, 7
  s_lshl_b32 s{sX}, s{sX}, 10""")
    poll("c", flag_load(FC, WR), flag_cond(FC, 4), OPT["nap"])
    a("  s_branch L_turn2")

    a(".p2align 6")
    a.label("L_loop")
    for t in range(NT):
        step_top(t)
        if t == 0: step0_extra()
        prio("lp", OPT["lprio"], t)
        if t < 4:
            a(f"  s_cmp_eq_u32 s{sIt}, 1\n  s_cbranch_scc1 L_first_{t}")
            a.label(f"L_first_back_{t}")
        if t == INS0: state_step("lp")
        u1 = t - INS0; u2 = u1 - 1
        if 0 <= u2 < 17:
            ins2(u2, "lp", u2 & 1)
            if u2 < 16: rec_load(u2, T + 4)
        if 0 <= u1 < 17:
            pos = order.index(("W", t))
            if u1 < 16: n = min(younger(("rec", u1), pos), younger_first(u1, t))
            else: n = younger(("car", 16), pos)
            a(f"  s_waitcnt vmcnt({min(n, 62)})")
            ins1(u1, f"s{sThr}" if u1 < 16 else "0", u1 & 1)
        if t == INS0 + 18:
            a(f"  s_cmp_gt_u32 s{sCin}, 512\n  s_cbranch_scc1 L_slow_lp")
            a.label("L_slow_back_lp")
        if t == RBH:
            a(f"  s_cmp_eq_u32 s{sRb}, s{sIt}\n  s_cbranch_scc1 L_rbf")
            a.label("L_rbf_back1")
        step_main(t, younger(("g", (t - D) % NT), order.index(("W", t))))
    assert INS0 >= 4 and RBH < NT
    a(f"  s_waitcnt vmcnt({NT - (INS0 + 17)})")
    a.label("L_turn2")
    a(f"""
  v_mov_b32 {v(T)}, {v(vCtlN)}
  s_add_u32 s{sIt}, s{sIt}, 1
  s_add_u32 s{sX}, s{sIt}, 1
  s_and_b32 s{sX}, s{sX}, 3
  s_lshl_b32 s{sX}, s{sX}, 3
  s_add_u32 s{sX}, s{sX}, {CTL}
  v_mov_b32 {v(vCtlN)}, s{sX}
  s_sub_u32 s{sX}, s{sIns}, {BUFSZ}
  s_add_u32 s{sX}, s{sX}, s{sIns}
  v_add_u32 {v(vRd)}, s{sX}, {v(vRd)}
  v_add_u32 {v(vCntA)}, s{sX}, {v(vCntA)}
  s_sub_u32 s{sIns}, {BUFSZ}, s{sIns}
  s_mov_b32 s{sCarR}, s{sCarW}
  s_sub_u32 s{sCarW}, {CARLIST}, s{sCarW}
  s_waitcnt lgkmcnt(0)""")
    if OPT["stamp"] == 1:
        a(f"  s_lshl_b32 s90, s{sIt}, 1\n  s_add_u32 s90, s90, 16\n  s_min_u32 m0, s90, 36")
        stamp(a, 252, "m0")
        a("  s_add_u32 m0, m0, 1")
    a("  s_barrier")
    stamp(a, 252, "m0")
    a(f"""
  ds_read_b64 {v(T+2,2)}, {v(T)}
  ds_read_b64 {v(RP[0],2)}, {v(vRd)} offset:8
  s_waitcnt lgkmcnt(1)
  v_readfirstlane_b32 s{sCin}, {v(T+2)}
  v_readfirstlane_b32 s{sFl}, {v(T+3)}
  s_cmp_gt_u32 s{sCin}, 512
  s_cselect_b32 s{sThr}, 0x80000000, 0
  s_min_u32 s{sCin}, s{sCin}, {CARCAP}
  s_cmp_gt_u32 s{sCin}, 32
  s_cselect_b32 s{sFl}, 1, s{sFl}
  s_cmp_lt_u32 s{sIt}, {OPT['itcap']}
  s_cselect_b32 s{sFl}, s{sFl}, 0
  s_cmp_eq_u32 s{sIt}, {OPT["cut"] - 100 if OPT["cut"] >= 100 else -1}
  s_cbranch_scc1 L_end
  s_cmp_eq_u32 s{sIt}, 0
  s_cbranch_scc1 L_it0
  s_cmp_lg_u32 s{sFl}, 0
  s_cbranch_scc1 L_loop""")
    a.label("L_nosig_z")
    a(f"""
  s_cmp_ge_u32 s{sRb}, s{sIt}
  s_mov_b32 s{sRb}, -1
  s_cbranch_scc1 L_rbf""")
    a.label("L_rbf_back2")

    RBv = Q
    assert vRT4 - Q + 1 >= 14
    R0 = REC[0]
    G0, G1, RR, U = R0, R0 + 4, R0 + 8, R0 + 12
    XS0, XS1, XR, AG = R0 + 16, R0 + 18, R0 + 20, R0 + 22
    MS = [R0 + 24 + 2 * i for i in range(5)]
    vMoff, vLin, vOw, vOr = vCarOff, vI6, vI1, vI4
    a(f"""
  v_and_b32 {v(T)}, 63, v0
  s_mul_i32 s{sX}, s{sW}, 3584
  s_add_u32 s{sX}, s{sX}, {RB_OFF}
  v_lshl_add_u32 {v(T+1)}, {v(T)}, 3, s{sX}
  v_lshlrev_b32 {v(vLin)}, 4, {v(T)}
  v_bfe_u32 {v(T+2)}, v0, 4, 2
  v_and_b32 {v(T+3)}, 15, v0
  v_lshlrev_b32 {v(T+2)}, 3, {v(T+2)}
  v_lshl_add_u32 {v(vMoff)}, {v(T+3)}, 5, {v(T+2)}
  s_mul_i32 s{sX}, s{sW}, 6400
  s_add_u32 s{sX}, s{sX}, s{sIns}
  s_add_u32 s{sX}, s{sX}, 15
  s_and_b32 s{sX}, s{sX}, -16
  v_add_u32 {v(vOw)}, s{sX}, {v(vMoff)}
  v_add_u32 {v(vOr)}, s{sX}, {v(vLin)}
  v_cmp_gt_u32 {s(sT,2)}, 8, {v(T+3)}""")
    for h in range(7):
        a(f"  ds_read_b64 {v(RBv+2*h,2)}, {v(T+1)} offset:{h*512}")
    fo = [("g", t - NT) for t in range(NT - D, NT)]
    def fwait(x): return len(fo) - 1 - fo.index(x)
    def s1(p):
        b = RBv + (p & ~1)
        w0, w1 = (WS0, WS1) if p % 2 == 0 else (XS0, XS1)
        a(f"""
  v_mfma_f32_16x16x16_bf16 {v(G0,4)}, {v(w0,2)}, {v(b,2)}, 0
  v_mfma_f32_16x16x16_bf16 {v(G1,4)}, {v(w1,2)}, {v(b,2)}, 0""")
    def s2(p):
        t0 = ACC[2*p]; t1 = ACC[2*p+1] if 2*p+1 < NT else ACC[2*p]
        for r in range(4): a(f"  v_mul_f32 {v(U+r)}, {v(t0+r)}, {v(G0+r)}")
        for r in range(4): a(f"  v_mul_f32_dpp {v(U+r)}, {v(t1+r)}, {v(G0+r)} row_ror:8 row_mask:0xf bank_mask:0xc")
        for r in range(4): a(f"  v_fmac_f32_dpp {v(U+r)}, {v(t0+r)}, {v(G1+r)} row_ror:8 row_mask:0xf bank_mask:0x3")
        for r in range(4): a(f"  v_fmac_f32_dpp {v(U+r)}, {v(t1+r)}, {v(G1+r)} quad_perm:[0,1,2,3] row_mask:0xf bank_mask:0xc")
        a(f"""
  v_cvt_pk_bf16_f32 {v(AG)}, {v(U)}, {v(U+1)}
  v_cvt_pk_bf16_f32 {v(AG+1)}, {v(U+2)}, {v(U+3)}
  v_mfma_f32_16x16x16_bf16 {v(RR,4)}, {v(WR if p % 2 == 0 else XR,2)}, {v(RBv + (p & ~1),2)}, 0""")
        if p + 1 < 13: s1(p + 1)
        else: a("  s_nop 0")
        a(f"  v_mfma_f32_16x16x16_bf16 {v(U,4)}, {v(WUP,2)}, {v(AG,2)}, 0")
    def s3(p):
        x = ACC[2*p]; m_ = MS[p % 5]
        a(f"""
  s_waitcnt vmcnt({fwait(("m", p))})
  v_lshlrev_b32 {v(x)}, 16, {v(m_)}
  v_and_b32 {v(x+1)}, 0xffff0000, {v(m_)}
  v_lshlrev_b32 {v(x+2)}, 16, {v(m_+1)}
  v_and_b32 {v(x+3)}, 0xffff0000, {v(m_+1)}""")
        if p == 12: a("  s_nop 2")
        a(f"""
  v_pk_fma_f32 {v(x,2)}, {v(U,2)}, {v(RR,2)}, {v(x,2)}
  v_pk_fma_f32 {v(x+2,2)}, {v(U+2,2)}, {v(RR+2,2)}, {v(x+2,2)}
  v_cvt_pk_bf16_f32 {v(x)}, {v(x)}, {v(x+1)}
  v_cvt_pk_bf16_f32 {v(x+1)}, {v(x+2)}, {v(x+3)}""")
        if p == 12: a(f"  s_mov_b64 exec, {s(sT,2)}")
        a(f"  ds_write_b64 {v(vOw)}, {v(x,2)} offset:{p*512}")
        if p == 12: a(f"  s_mov_b64 exec, -1")
        if p % 2 == 1 or p == 12:
            r = p // 2
            a(f"  ds_read_b128 {v(ACC[4*r+1 if r < 6 else 23],4)}, {v(vOr)} offset:{r*1024}")
    def s4(r):
        a(f"  buffer_store_dwordx4 {v(ACC[4*r+1 if r < 6 else 23],4)}, {v(vLin)}, {s(sOUT,4)}, s{sEb if r < 4 else sEb2} offen offset:{(r%4)*1024}{POL[OPT['opol']]}")
        fo.append(("st", r))
    xw = {}
    for t in range(NT + D + 2):
        if t == 6:
            a(f"  s_cmp_lg_u32 s{sCin}, 0\n  s_cbranch_scc1 L_x3")
            a.label("L_x3_back")
            xw[3] = len(fo) - xw[2]
        if t < NT + D: step_top(t, False)
        else: a(f"  ; ---- tail {t}\n  s_waitcnt lgkmcnt(0)")
        prio("fp", OPT["fprio"], t)
        if t in (0, 3):
            n = 1 if t == 0 else 2
            a(f"  s_cmp_lg_u32 s{sCin}, 0\n  s_cbranch_scc1 L_x{n}")
            a.label(f"L_x{n}_back")
            xw[n] = len(fo)
        if t == NT: stamp(a, 252, 4)
        if t == NT + D: stamp(a, 252, 5)
        if t == 1:
            a(f"""
  v_mov_b32 {v(XS0)}, 0
  v_mov_b32 {v(XS0+1)}, {v(WS0)}
  v_mov_b32 {v(XS1)}, 0
  v_mov_b32 {v(XS1+1)}, {v(WS1)}
  v_mov_b32 {v(XR)}, 0
  v_mov_b32 {v(XR+1)}, {v(WR)}""")
        if t == 5: s1(0)
        ts2 = {2*p+7 if p < 12 else 30: p for p in range(13)}
        if t - 2 in ts2 and (ts2[t-2] % 2 == 1): s4(ts2[t-2] // 2)
        if t - 1 in ts2: s3(ts2[t-1])
        if t in ts2: s2(ts2[t])
        if t % 2 == 1 and t // 2 < 13:
            p = t // 2
            a(f"  buffer_load_dwordx2 {v(MS[p%5],2)}, {v(vMoff)}, {s(sMW,4)}, s{sEb if p < 8 else sEb2} offen offset:{(p%8)*512}{POL[OPT['mpol']]}")
            fo.append(("m", p))
        if t < NT:
            step_main(t, fwait(("g", t - D)), False)
            fo.append(("g", t))
        elif t < NT + D:
            a(f"  s_waitcnt vmcnt({fwait(('g', t - D))})")
            cstage_m1(t % D)
            a("  s_nop 6")
            cstage_cvt()
            a("  s_waitcnt lgkmcnt(0)\n  s_nop 0")
            cstage_m2(t - D)
            a("  s_nop 3")
    a("  s_waitcnt lgkmcnt(0)")
    s4(6)
    stamp(a, 252, 6)
    if OPT["stamp"]: a("  s_waitcnt vmcnt(0)")
    stamp(a, 252, 7); stamp(a, 252, 63, "s_memrealtime")
    if OPT["stamp"] == 1: a(f"  v_writelane_b32 v252, s{sIt}, 61")
    stamp_out(a, 252, sWS, 8, STAMPOFF + 0x200000, 253)
    a.label("L_end")
    a("  s_endpgm")

    sSm, sS2 = sMk
    a.label("L_x1")
    a(f"""
  v_cmp_gt_u32 vcc, s{sCin}, {v(vSlot)}
  v_lshlrev_b32 {v(T)}, 3, {v(vSlot)}
  s_nop 0
  v_cndmask_b32 {v(T)}, {v(vOOB)}, {v(T)}, vcc
  buffer_load_dwordx2 {v(AG,2)}, {v(T)}, {s(sCAR,4)}, s{sCarR} offen sc1
  s_branch L_x1_back""")
    a.label("L_x2")
    a(f"""
  s_mul_i32 s{sX}, s{sW}, {NT}
  s_waitcnt vmcnt({xw[2] - xw[1]})
  v_min_i32 {v(U)}, {v(AG)}, {v(AG+1)}
  v_cmp_gt_i32 vcc, 0, {v(AG)}
  v_bfe_u32 {v(U+2)}, {v(U)}, 23, 8
  v_subrev_u32 {v(U+2)}, s{sX}, {v(U+2)}
  v_cndmask_b32_sdwa {v(U+1)}, {v(AG)}, {v(AG+1)}, vcc dst_sel:WORD_1 dst_unused:UNUSED_PAD src0_sel:WORD_1 src1_sel:WORD_0
  v_cmp_gt_i32 {s(sS2,2)}, 0, {v(U)}
  v_cmp_gt_u32 {s(sSm,2)}, {NT}, {v(U+2)}
  s_and_b64 vcc, {s(sSm,2)}, {s(sS2,2)}
  s_cselect_b32 s{sCin}, s{sCin}, 0
  s_cbranch_scc0 L_x2_back
  v_and_b32 {v(T)}, 0x7ffff, {v(U)}
  v_lshl_add_u32 {v(T)}, {v(T)}, 5, {v(vHalf)}
  v_mul_f32 {v(U+1)}, {v(U+1)}, {v(vFreq)}
  v_cndmask_b32 {v(T)}, {v(vOOB)}, {v(T)}, vcc
  buffer_load_dwordx4 {v(RR,4)}, {v(T)}, {s(sM,4)}, 0 offen
  v_cndmask_b32 {v(U+2)}, {v(vOOB)}, {v(U+2)}, vcc
  v_cvt_pk_bf16_f32 {v(U+1)}, 0, {v(U+1)}
  v_mul_f32 {v(U+1)}, 0.15915494, {v(U+1)}
  v_fract_f32 {v(U+1)}, {v(U+1)}
  v_cos_f32 {v(U+1)}, {v(U+1)}
  v_bfe_u32 {v(U+3)}, {v(U)}, 20, 3
  v_lshl_add_u32 {v(U+3)}, {v(U+3)}, 4, {v(vSst)}
  v_cvt_pk_bf16_f32 {v(U+1)}, {v(U+1)}, {v(U+1)}
  s_branch L_x2_back""")
    a.label("L_x3")
    a(f"""
  s_waitcnt vmcnt({xw[3]})
  v_mfma_f32_16x16x32_bf16 {v(Da,4)}, {v(RR,4)}, {v(Wa,4)}, 0
  v_mfma_f32_16x16x32_bf16 {v(Db,4)}, {v(RR,4)}, {v(Wb,4)}, 0
  s_nop 6""")
    cstage_cvt()
    for t in range(NT):
        a(f"""
  v_cmp_eq_u32 vcc, {t}, {v(U+2)}
  s_cbranch_vccz L_x3_{t}
  s_mov_b64 exec, vcc
  ds_write_b16 {v(U+3)}, {v(U+1)}
  s_mov_b64 exec, -1
  ds_read_b128 {v(Sf,4)}, {v(vSrd)}
  s_mov_b64 exec, vcc
  ds_write_b16 {v(U+3)}, {v(vZ)}
  s_mov_b64 exec, -1
  s_waitcnt lgkmcnt(0)""")
        cstage_m2(t)
        a.label(f"L_x3_{t}")
    a("  s_branch L_x3_back")
    a.label("L_it0")
    a(f"  s_cmp_lg_u32 s{sFl}, 0\n  s_cbranch_scc1 L_body0")
    for r in range(NG, NS): st(r)
    a("  s_nop 0")
    for r in range(NG, NS): zero_acc(sdt(r))
    signal_all("z0", 0)
    a("  s_branch L_nosig_z")
    for t in range(4):
        a.label(f"L_first_{t}")
        for u in range(4*t, 4*t+4): rec_load(u, T + 4 + 2 * (u & 1))
        a(f"  s_branch L_first_back_{t}")
    a.label("L_allfirst")
    a(f"  s_mov_b32 s{sY}, s{sSo}")
    for r in range(NB + N1, NS): st(r)
    a(f"  s_mov_b32 s{sSo}, s{sY}\n  s_waitcnt vmcnt(0)\n  s_barrier\n{flag3}\n  s_branch L_allfirst_back")
    for g in slowg:
        a.label(f"L_pslow_{g}")
        for u in range(4*g, 4*g+4):
            a(f"""
  s_mov_b64 exec, {s(PMK(u),2)}
  v_cmp_lt_u32 vcc, 63, {v(PRK(u))}
  s_cbranch_vccz L_pskip_{u}
  s_andn2_b64 {s(PMK(u),2)}, {s(PMK(u),2)}, vcc
  s_mov_b64 exec, vcc
  ds_add_rtn_u32 {v(T+1)}, {v(vCtlN)}, {v(vOne)}
  s_waitcnt lgkmcnt(0)
  v_lshlrev_b32 {v(T+1)}, 3, {v(T+1)}
  buffer_store_dwordx2 {v(REC[u],2)}, {v(T+1)}, {s(sCAR,4)}, s{sCarW} offen
  s_waitcnt vmcnt(0)""")
            a.label(f"L_pskip_{u}")
        a(f"  s_mov_b64 exec, -1\n  s_branch L_pback_{g}")
    for tag in ("b0", "lp"):
        a.label(f"L_slow_{tag}")
        a(f"  s_mov_b32 s{sX}, 512")
        a.label(f"L_slow_loop_{tag}")
        a(f"""
  v_add_u32 {v(T+1)}, s{sX}, {v(vCarIdx)}
  v_cmp_gt_u32 vcc, s{sCin}, {v(T+1)}
  v_lshlrev_b32 {v(T+1)}, 3, {v(T+1)}
  s_nop 0
  v_cndmask_b32 {v(T+1)}, {v(vOOB)}, {v(T+1)}, vcc
  buffer_load_dwordx2 {v(REC[16],2)}, {v(T+1)}, {s(sCAR,4)}, s{sCarR} offen sc1
  s_waitcnt vmcnt(0)""")
        ins1(16, "0", 0)
        a("  s_waitcnt lgkmcnt(0)")
        ins2(16, "sl" + tag, 0)
        a(f"""
  s_add_u32 s{sX}, s{sX}, 512
  s_cmp_lt_u32 s{sX}, s{sCin}
  s_cbranch_scc1 L_slow_loop_{tag}
  s_waitcnt vmcnt(0)
  s_branch L_slow_back_{tag}""")
    a.label("L_rbf")
    DI = [Da + p for p in range(12)] + [T + 10, T + 11]
    H = T
    assert RK[1] == T + 13
    a(f"""
  v_and_b32 {v(H+8)}, 63, v0
  s_lshr_b32 s{sX}, s{sEb}, 4
  v_lshlrev_b32 {v(H+9)}, 3, {v(H+8)}
  v_lshlrev_b32 {v(H+8)}, 2, {v(H+8)}
  s_load_dwordx4 {s(84,4)}, s[58:59], 0
  buffer_load_dwordx2 {v(H,2)}, {v(H+9)}, {s(sDIST,4)}, s{sX} offen
  global_load_dwordx2 {v(H+2,2)}, {v(H+9)}, s[64:65]
  global_load_dwordx2 {v(H+4,2)}, {v(H+9)}, s[68:69]
  global_load_dword {v(H+6)}, {v(H+8)}, s[62:63]
  s_mov_b32 s{sC10}, 0xc1200000
  s_mov_b32 s{sC10+1}, 0xc1200000
  s_mov_b32 s{sCl2}, 0x3fb8aa3b
  s_mov_b32 s{sCl2+1}, 0x3fb8aa3b
  s_mul_i32 s{sX}, s{sW}, 3584
  s_add_u32 s{sX}, s{sX}, {RB_OFF}
  v_add_u32 {v(H+9)}, s{sX}, {v(H+9)}
  v_add_u32 {v(H+8)}, s{sX}, {v(H+8)}
  v_and_b32 {v(Da)}, 15, v0
  v_bfe_u32 {v(Da+1)}, v0, 4, 2
  v_lshl_add_u32 {v(H+7)}, {v(Da)}, 1, s{sX}
  v_lshl_add_u32 {v(Da+2)}, {v(Da+1)}, 7, {v(H+7)}
  v_lshl_add_u32 {v(Da+3)}, {v(Da+1)}, 6, {v(H+7)}
  s_waitcnt lgkmcnt(0)
  v_mov_b32 {v(H+13)}, s84
  v_cmp_eq_u32 vcc, 1, {v(Da+1)}
  v_mov_b32 {v(H+12)}, s85
  v_cmp_eq_u32 {s(sT,2)}, 2, {v(Da+1)}
  v_cndmask_b32 {v(H+13)}, {v(H+13)}, {v(H+12)}, vcc
  v_mov_b32 {v(H+12)}, s86
  v_cmp_eq_u32 vcc, 3, {v(Da+1)}
  v_cndmask_b32 {v(H+13)}, {v(H+13)}, {v(H+12)}, {s(sT,2)}
  v_mov_b32 {v(H+12)}, s87
  v_cndmask_b32 {v(H+13)}, {v(H+13)}, {v(H+12)}, vcc
  v_lshlrev_b32 {v(H+12)}, 16, {v(H+13)}
  v_and_b32 {v(H+13)}, 0xffff0000, {v(H+13)}
  s_waitcnt vmcnt(0)
  ds_write_b64 {v(H+9)}, {v(H,2)}
  ds_write_b64 {v(H+9)}, {v(H+2,2)} offset:512
  ds_write_b64 {v(H+9)}, {v(H+4,2)} offset:1024
  ds_write_b32 {v(H+8)}, {v(H+6)} offset:1536
  ds_read_u16 {v(WS0)}, {v(Da+2)} offset:512
  ds_read_u16 {v(WS1)}, {v(Da+2)} offset:{512+32}
  ds_read_u16 {v(WS0+1)}, {v(Da+2)} offset:{512+64}
  ds_read_u16 {v(WS1+1)}, {v(Da+2)} offset:{512+96}
  ds_read_u16 {v(WUP)}, {v(Da+2)} offset:1024
  ds_read_u16 {v(H)}, {v(Da+2)} offset:{1024+32}
  ds_read_u16 {v(WUP+1)}, {v(Da+2)} offset:{1024+64}
  ds_read_u16 {v(H+1)}, {v(Da+2)} offset:{1024+96}
  ds_read_u16 {v(WR)}, {v(Da+3)} offset:1536
  ds_read_u16 {v(WR+1)}, {v(Da+3)} offset:{1536+32}""")
    for p in range(13):
        a(f"  ds_read_u16 {v(DI[p])}, {v(H+7)} offset:{p*32}")
    a(f"""
  s_waitcnt lgkmcnt(0)
  v_lshl_or_b32 {v(WS0)}, {v(WS0+1)}, 16, {v(WS0)}
  v_lshl_or_b32 {v(WS1)}, {v(WS1+1)}, 16, {v(WS1)}
  v_lshl_or_b32 {v(WUP)}, {v(H)}, 16, {v(WUP)}
  v_lshl_or_b32 {v(WUP+1)}, {v(H+1)}, 16, {v(WUP+1)}
  v_lshl_or_b32 {v(WR)}, {v(WR+1)}, 16, {v(WR)}
  v_mov_b32 {v(WS0+1)}, 0
  v_mov_b32 {v(WS1+1)}, 0
  v_mov_b32 {v(WR+1)}, 0
  v_mov_b32 {v(DI[13])}, 0""")
    CEN = H + 12
    for ps in ([0,1,2,3], [4,5,6,7], [8,9,10], [11,12]):
        p0 = ps[0]
        tt = {p: H + 2 * (p - p0) for p in ps}
        def rnd():
            for p in ps: a(f"  v_cvt_pk_bf16_f32 {v(tt[p])}, 0, {v(tt[p])}\n  v_cvt_pk_bf16_f32 {v(tt[p]+1)}, 0, {v(tt[p]+1)}")
        for p in ps: a(f"  v_lshlrev_b32 {v(tt[p])}, 16, {v(DI[p])}")
        for p in ps: a(f"  v_pk_add_f32 {v(tt[p],2)}, {v(tt[p],2)}, {v(CEN,2)} op_sel_hi:[0,1] neg_lo:[0,1] neg_hi:[0,1]")
        rnd()
        for p in ps: a(f"  v_pk_mul_f32 {v(tt[p],2)}, {v(tt[p],2)}, {v(tt[p],2)}")
        rnd()
        for p in ps: a(f"  v_pk_mul_f32 {v(tt[p],2)}, {v(tt[p],2)}, {s(sC10,2)}")
        rnd()
        for p in ps: a(f"  v_pk_mul_f32 {v(tt[p],2)}, {v(tt[p],2)}, {s(sCl2,2)}")
        for p in ps: a(f"  v_exp_f32 {v(tt[p])}, {v(tt[p])}\n  v_exp_f32 {v(tt[p]+1)}, {v(tt[p]+1)}")
        for p in ps: a(f"  v_cvt_pk_bf16_f32 {v(DI[p])}, {v(tt[p])}, {v(tt[p]+1)}")
    for h in range(7):
        a(f"  ds_write_b64 {v(H+9)}, {v(DI[2*h],2)} offset:{h*512}")
    a(f"""
  s_waitcnt lgkmcnt(0)
  s_cmp_eq_u32 s{sRb}, -1
  s_cbranch_scc1 L_rbf_back2
  s_branch L_rbf_back1""")
    for lab, u, p in rare:
        a.label(f"L_rare_{lab}")
        a(f"""
  s_mov_b64 exec, vcc
  ds_add_rtn_u32 {v(RK[p])}, {v(vCtlN)}, {v(vOne)}
  v_mov_b32 {v(REC[u]+1)}, {v(WW[p])}
  s_waitcnt lgkmcnt(0)
  v_lshlrev_b32 {v(RK[p])}, 3, {v(RK[p])}
  buffer_store_dwordx2 {v(REC[u],2)}, {v(RK[p])}, {s(sCAR,4)}, s{sCarW} offen
  s_andn2_b64 exec, {s(sMk[p],2)}, vcc
  s_branch L_back_{lab}""")
    return NV

def kd(name, nv, ns):
    nv4 = (nv + 3) // 4 * 4
    return f""".amdhsa_kernel {name}
  .amdhsa_next_free_vgpr {nv}
  .amdhsa_next_free_sgpr {ns}
  .amdhsa_accum_offset {nv4}
  .amdhsa_group_segment_fixed_size 0
  .amdhsa_kernarg_size 112
  .amdhsa_user_sgpr_count 2
  .amdhsa_user_sgpr_kernarg_segment_ptr 1
  .amdhsa_system_sgpr_workgroup_id_x 1
  .amdhsa_float_denorm_mode_32 3
.end_amdhsa_kernel
"""

def main():
    out = sys.argv[1]
    ref = open(f"cdna_kernels/{NAME}.s.ref").read().split("\n")
    head = [l for l in ref if l.startswith(";") and "@launch" not in l and "Override" not in l and "grid=ceil" not in l]
    a = Asm()
    a(".amdgcn_target \"amdgcn-amd-amdhsa--gfx950\"\n.text")
    a(f".globl {NAME}_kernel\n.type {NAME}_kernel,@function")
    nv = gen_p2(a)
    errs = a.check()
    for e in errs: print("HAZARD", e)
    txt = "\n".join(head) + "\n"
    kern = f"kernel={NAME}_kernel " if OPT["list"] else ""
    txt += f"; @launch {kern}grid=(256,1,1) block=(512,1,1) lds={P1_LDS}\n"
    if OPT["probe"] >= 0:
        txt += "; @launch kernel=probe_kernel grid=(1,1,1) block=(64,1,1) lds=0\n"
        a(f"""
.p2align 8
probe_kernel:
  s_cmp_ge_u32 s2, 1
  s_cbranch_scc1 P_end
  s_load_dwordx2 s[4:5], s[0:1], 96
  s_waitcnt lgkmcnt(0)
  s_load_dwordx8 s[8:15], s[4:5], 0
  s_memrealtime s[16:17]
  s_waitcnt lgkmcnt(0)
  s_not_b32 s8, s8
  s_sub_u32 s20, s{8 + OPT['probe']}, s8
  s_min_u32 s20, s20, 20000
P_loop:
  s_memrealtime s[18:19]
  s_waitcnt lgkmcnt(0)
  s_sub_u32 s21, s18, s16
  s_cmp_lt_u32 s21, s20
  s_cbranch_scc1 P_loop
P_end:
  s_endpgm""")
    txt += a.text()
    txt += ".section .rodata,\"a\"\n.p2align 6\n" + kd(NAME + "_kernel", 256, 102) + (".p2align 6\n" + kd("probe_kernel", 8, 32) if OPT["probe"] >= 0 else "")
    open(out, "w").write(txt)
    print("vgprs p2:", nv, "lines:", len(a.lines), "hazards:", len(errs))

main()
```

```python
import sys, os
sys.path.insert(0, os.path.dirname(__file__))
from asmlib import Asm

NAME = "gather_scatter__molecular_angular_gemnet__graph"
E = 400000
NCH, CH = 250, 25600
EB = 1568
K = 6
MJ = 2739138
TABOFF = 0x2800000
CAROFF = 0x3000000
CARCAP = 9216
CARLIST = CARCAP * 8
STAMPOFF = 0x6000000
FLGOFF = 0x2c00000
OPT = dict(a0=2, ag=2, early=0, abl_adj=0, probe=-1, tlb=0, cut=-1, opol=1, mpol=0, tq=3, fq=10, keff=6, jid=0, fprio=0x3ffff, lprio=0x3fff, napt=8, st0=1, stp=1, rb0=2, nap=8, list=1, nb=7, n1=2, n3=4, nl0=8, smask=0x2925, arr=10, spin=60000, rec_pol=2, stamp=0, itcap=64, ld_nt=7, st_pol=0, mtouch=0, la=3, apre=2, wmain=70000, b5=0, lim=24, nb2=7, ins0=4,
           abl_mfma=0, abl_s=0, abl_cos=0, abl_g=0)
for a in sys.argv[2:]:
    k, v = a.split("=")
    assert k in OPT, k
    OPT[k] = int(v, 0)
MK = -(-(1 << 32) // OPT["wmain"])
assert (399999 * MK) >> 32 <= 5

RPOL = ('', ' nt', ' sc1', ' sc0 sc1')[OPT['rec_pol']]

POL = ('', ' nt', ' sc1', ' sc0 sc1')

def v(i, n=1):
    return f"v{i}" if n == 1 else f"v[{i}:{i+n-1}]"
def s(i, n=1):
    return f"s{i}" if n == 1 else f"s[{i}:{i+n-1}]"

def stamp(a, vreg, lane, op="s_memtime"):
    if lane == OPT["cut"]: a("  s_endpgm")
    if not OPT["stamp"]: return
    if OPT["stamp"] == 2:
        mp = {62: (0, 1), 42: (1, 0), 45: (2, 0), 1: (3, 0), 11: (4, 0), 4: (5, 0), 63: (6, 0), 40: (7, 0)}
        if lane not in mp: return
        l, inv = mp[lane]
        a(f"  s_memrealtime s[88:89]\n  s_waitcnt lgkmcnt(0)")
        if inv: a("  s_not_b32 s88, s88")
        a(f"  v_writelane_b32 v{vreg}, s88, {l}")
        return
    a(f"  {op} s[88:89]\n  s_waitcnt lgkmcnt(0)\n  v_writelane_b32 v{vreg}, s88, {lane}")
def stamp_out(a, vreg, wslo, nwaves, base, tmp):
    if not OPT["stamp"]: return
    if OPT["stamp"] == 2:
        back = 512
        a(f"""
  s_load_dwordx2 s[90:91], s[0:1], 96
  s_waitcnt lgkmcnt(0)
  s_add_u32 s92, s90, {back}
  s_addc_u32 s93, s91, 0
  s_mov_b32 s94, 32
  s_mov_b32 s95, 0x20000
  v_lshlrev_b32 v{tmp}, 2, v0
  buffer_atomic_umax v{vreg}, v{tmp}, s[92:95], 0 offen""")
        return
    a(f"  s_mul_i32 s88, s2, {nwaves*256}\n  s_add_u32 s88, s88, {base}")
    srd(a, 92, wslo, wslo+1, "s88", nwaves*256)
    a(f"  v_lshlrev_b32 v{tmp}, 2, v0\n  buffer_store_dword v{vreg}, v{tmp}, s[92:95], 0 offen")

def srd(a, d, lo, hi, add, size):
    if add is None:
        a(f"  s_mov_b32 s{d}, s{lo}\n  s_mov_b32 s{d+1}, s{hi}")
    else:
        a(f"  s_add_u32 s{d}, s{lo}, {add}\n  s_addc_u32 s{d+1}, s{hi}, 0")
    a(f"  s_mov_b32 s{d+2}, {size}\n  s_mov_b32 s{d+3}, 0x20000")

P1_CNT, P1_SENT, P1_TMP, P1_REC = 0, 6144, 6160, 6272
P1_LDS = P1_REC + CH * 6

TS = 264
BUFSZ = 200 * TS
S_OFF = 13 * 8192
CTL = S_OFF + 8192
RB_OFF = CTL + 128
P2_LDS = RB_OFF + 8 * 3584
D = 5
NT = 25

class RA:
    def __init__(self, start): self.n = start
    def __call__(self, k=1, al=1):
        self.n = (self.n + al - 1) // al * al
        r = self.n; self.n += k
        return r

def gen_p2(a):
    ra = RA(1)
    vSlot, vHalf, vFreq, vSst, vSrd, vI6, vI1, vI4 = (ra() for _ in range(8))
    vRd, vCntA, vOne, vOOB, vCarOff, vCarIdx, v264, vMsk, vCtlN = (ra() for _ in range(9))
    vZ = ra(2, 2)
    Q = ra(6, 4)
    sA, nA, cb, rem, rtot, vA6, vB6, vR0, vRT4 = (ra() for _ in range(9))
    vCnt = ra()
    Wa = ra(4, 4); Wb = ra(4, 4)
    RING = [ra(4, 4) for _ in range(D)]
    Da = ra(4, 4); Db = ra(4, 4); P = ra(4, 4); Sf = ra(4, 4)
    ACC = [ra(4, 4) for _ in range(NT)]
    REC = [ra(2, 4 if i == 0 else 2) for i in range(17)]
    RP = [ra(2, 2), ra(2, 2)]
    T = ra(10, 2)
    TA = [ra(), ra()]; RK = [ra(), ra()]
    WS0 = ra(2, 2); WS1 = ra(2, 2); WR = ra(2, 2); WUP = ra(2, 2)
    CC = [ra() for _ in range(D)]; SA = [ra() for _ in range(D)]
    WW = [ra(), ra()]
    assert ra.n <= 252, ra.n
    NV = ra.n
    sM = 4; sREC = 8; sCAR = 12; sTAB = 16; sOUT = 20; sDIST = 24; sMW = 28
    sJ, sW, sIt, sThr, sIns, sCarW, sCarR, sRb, sCin, sX, sFl, sEb = range(32, 44)
    sCnt = [44, 45]
    sWS = 46
    sPM = 72
    sMk = [72, 74]; sT = 76; sC10 = 78; sCl2 = 80
    sEb2 = 3
    rare = []

    O, I, R, A = 36, 88, 140, 192
    PT = 218
    _, vL8, vL4, vL128, vSix, vTwo, vFlg, vDum, vTab, vWo = range(234, 244)
    vL16 = WW[0]
    rDist, rSbf, rUp, rDown, rRbf = 86, 248, 190, 232, 217
    assert Wa == 36 and T == PT
    vSent = vCnt
    sIO, sII, sAN, sMT, sTW, sDBG = 4, 8, 12, 16, 20, 24
    sFLG, sRW = 92, 96
    sMJ, sMK, sNEB, sB5, sO4, sO2 = range(80, 86)
    sY, sSo = 100, 101
    nto, nti, nta = (" nt" if OPT["ld_nt"] >> b & 1 else "" for b in range(3))
    NR = 13
    nrec = lambda q: 4 if q < 12 else 2
    vm = []
    def ld_pair(q):
        if q < 12:
            a(f"  buffer_load_dwordx4 {v(O+4*q,4)}, {v(vL16)}, {s(sIO,4)}, s{sO4} offen{nto}")
            a(f"  buffer_load_dwordx4 {v(I+4*q,4)}, {v(vL16)}, {s(sII,4)}, s{sO4} offen{nti}")
            a(f"  s_add_u32 s{sO4}, s{sO4}, 8192")
        else:
            a(f"  buffer_load_dwordx2 {v(O+48,2)}, {v(vL8)}, {s(sIO,4)}, s{sO4} offen{nto}")
            a(f"  buffer_load_dwordx2 {v(I+48,2)}, {v(vL8)}, {s(sII,4)}, s{sO4} offen{nti}")
        vm.extend([("o", q), ("p", q)])
    def ld_ang(q):
        if q < 12:
            a(f"  buffer_load_dwordx2 {v(A+2*q,2)}, {v(vL8)}, {s(sAN,4)}, s{sO2} offen{nta}")
            a(f"  s_add_u32 s{sO2}, s{sO2}, 4096")
        else: a(f"  buffer_load_dword {v(A+24)}, {v(vL4)}, {s(sAN,4)}, s{sO2} offen{nta}")
        vm.append(("a", q))
    def wait_for(x):
        a(f"  s_waitcnt vmcnt({len(vm) - 1 - vm.index(x)})")
    def poll(tag, load, cond, nap=4):
        a(f"  s_mov_b32 s{sY}, {OPT['spin']}")
        a.label(f"L_poll_{tag}")
        a(load)
        a("  s_waitcnt vmcnt(0)")
        a(cond)
        a(f"""
  s_cbranch_vccz L_polled_{tag}
  s_sleep {nap}
  s_sub_u32 s{sY}, s{sY}, 1
  s_cbranch_scc0 L_poll_{tag}""")
        a.label(f"L_polled_{tag}")

    a(".p2align 8")
    a.label(NAME + "_kernel")
    a(f"""
  s_cmp_ge_u32 s2, 256
  s_cbranch_scc1 L_end
  s_load_dwordx16 s[48:63], s[0:1], 0
  s_load_dwordx4 s[44:47], s[0:1], 96
  s_load_dwordx8 s[64:71], s[0:1], 64
  v_lshlrev_b32 {v(vL16)}, 4, v0
  v_mov_b64 {v(PT,2)}, 0
  v_mov_b64 {v(PT+2,2)}, 0
  s_min_u32 s{sY}, s2, {NCH-1}
  s_mul_i32 s{sX}, s{sY}, {CH*4}
  s_cmp_lt_u32 s2, {NCH}
  s_cselect_b32 s{sFl}, {CH*2}, 0
  s_lshl_b32 s{sCin}, s{sFl}, 1
  s_mov_b32 s{sO4}, 0
  s_mov_b32 s{sO2}, 0
  ds_write_b128 {v(vL16)}, {v(PT,4)}
  v_lshrrev_b32 {v(T+8)}, 6, v0
  s_and_b32 s{sJ}, s2, 7
  s_lshl_b32 s{sJ}, s{sJ}, 5
  s_lshr_b32 s{sEb}, s2, 3
  s_add_u32 s{sJ}, s{sJ}, s{sEb}
  v_readfirstlane_b32 s{sW}, {v(T+8)}
  v_and_b32 {v(T+7)}, 63, v0
  v_lshlrev_b32 {v(T+6)}, 3, {v(T+7)}
  v_lshlrev_b32 {v(T+7)}, 2, {v(T+7)}
  s_mul_i32 s{sEb}, s{sJ}, {EB*2}
  s_mul_i32 s{sRb}, s{sW}, 400
  s_add_u32 s{sEb}, s{sEb}, s{sRb}
  s_waitcnt lgkmcnt(0)""")
    if OPT["stamp"] == 2: a("  v_mov_b32 v252, 0\n  s_nop 1")
    stamp(a, 252, 0); stamp(a, 252, 62, "s_memrealtime")
    srd(a, sIO, 52, 53, f"s{sX}", f"s{sCin}")
    srd(a, sII, 50, 51, f"s{sX}", f"s{sCin}")
    ld_pair(0)
    srd(a, 28, 54, 55, None, E * 2)
    a(f"""
  buffer_load_dwordx2 {v(rDist,2)}, {v(T+6)}, s[28:31], s{sEb} offen
  global_load_dwordx2 {v(rSbf,2)}, {v(T+6)}, s[64:65]
  global_load_dwordx2 {v(rUp,2)}, {v(T+6)}, s[68:69]
  global_load_dwordx2 {v(rDown,2)}, {v(T+6)}, s[66:67]
  global_load_dword {v(rRbf)}, {v(T+7)}, s[62:63]""")
    vm.extend([("s", i) for i in range(5)])
    ld_pair(1)
    a("  s_barrier")
    LA = OPT["la"]
    for q in range(2, LA): ld_pair(q)
    a(f"  s_lshr_b32 s{sX}, s{sX}, 1")
    srd(a, sAN, 56, 57, f"s{sX}", f"s{sFl}")
    srd(a, sMT, 48, 49, f"s{sX}", f"s{sFl}")
    a(f"  s_mul_i32 s{sX}, s{sY}, {CH*6}\n  s_mul_i32 s{sFl}, s{sFl}, 3")
    srd(a, sRW, sWS, sWS+1, f"s{sX}", f"s{sFl}")
    srd(a, sTW, sWS, sWS+1, TABOFF, 256 * 8192)
    srd(a, sFLG, sWS, sWS+1, FLGOFF, 8192)
    srd(a, sDBG, 44, 45, None, 256)
    a(f"""
  s_lshl_b32 s{sX}, s2, 2
  v_lshl_add_u32 {v(vFlg)}, v0, 10, s{sX}
  s_cmp_lt_u32 s2, {NCH}
  s_cselect_b32 s{sX}, 0, 4
  v_mov_b32 {v(vDum)}, s{sX}
  buffer_store_dword {v(vDum)}, {v(vFlg)}, {s(sFLG,4)}, 0 offen sc1
  s_lshl_b32 s{sX}, s{sX}, 20
  v_or_b32 {v(vFlg)}, s{sX}, {v(vFlg)}
  s_load_dword s{sCin}, s[60:61], 0
  s_load_dwordx4 s[56:59], s[58:59], 0
  v_lshlrev_b32 {v(vL8)}, 3, v0
  v_lshlrev_b32 {v(vL4)}, 2, v0
  v_lshlrev_b32 {v(vL128)}, 7, v0
  v_mov_b32 {v(vSix)}, 6
  v_mov_b32 {v(vTwo)}, 2
  s_mov_b32 s{sMJ}, {MJ}
  s_mov_b32 s{sMK}, {MK}
  s_mov_b32 s{sNEB}, {-EB & 0xffffffff}
  s_mov_b32 s{sB5}, {OPT['b5']}
  v_lshrrev_b32 {v(T)}, 6, v0
  v_and_b32 {v(T+2)}, 15, v0
  v_bfe_u32 {v(T+3)}, v0, 5, 1
  v_lshlrev_b32 {v(vHalf)}, 4, {v(T+3)}
  v_lshl_add_u32 {v(cb)}, {v(T)}, 5, {v(vHalf)}
  v_add_u32 {v(cb)}, {v(cb)}, {v(T+2)}
  v_lshlrev_b32 {v(vTab)}, 13, {v(cb)}
  v_and_b32 {v(T+1)}, 63, v0
  v_and_b32 {v(vSlot)}, 31, v0
  v_mov_b64 {v(vZ,2)}, 0
  v_mov_b32 {v(v264)}, {TS}
  v_mov_b32 {v(vCtlN)}, {CTL}
  s_lshl_b32 s{sX}, s{sW}, 10
  s_add_u32 s{sX}, s{sX}, {S_OFF}
  v_lshl_add_u32 {v(vSrd)}, {v(T+1)}, 4, s{sX}
  v_bfe_u32 {v(T+6)}, v0, 2, 2
  v_lshlrev_b32 {v(vSst)}, 8, {v(T+6)}
  v_lshl_add_u32 {v(vSst)}, {v(T+3)}, 7, {v(vSst)}
  v_bfe_u32 {v(T+6)}, v0, 4, 1
  v_lshl_add_u32 {v(vSst)}, {v(T+6)}, 3, {v(vSst)}
  v_and_b32 {v(T+6)}, 3, v0
  v_lshl_add_u32 {v(vSst)}, {v(T+6)}, 1, {v(vSst)}
  v_add_u32 {v(vSst)}, s{sX}, {v(vSst)}
  v_mov_b32 {v(vOne)}, 1
  v_mov_b32 {v(vOOB)}, 0x80000000
  v_mov_b32 {v(vMsk)}, 0x7ffffffc
  v_mul_u32_u24 {v(vI6)}, 6, {v(vSlot)}
  v_add_u32 {v(vI1)}, 1, {v(vSlot)}
  v_lshlrev_b32 {v(vI4)}, 2, {v(vI1)}
  v_mov_b32 {v(T+6)}, {CH}
  v_mul_u32_u24 {v(cb)}, {v(cb)}, {v(T+6)}
  v_mov_b32 {v(sA)}, 0
  v_mov_b32 {v(nA)}, 0
  v_mov_b32 {v(rtot)}, 0
  s_mul_i32 s{sX}, s{sW}, {NT*TS}
  s_add_u32 s{sX}, s{sX}, {BUFSZ}
  v_lshl_add_u32 {v(vRd)}, {v(vSlot)}, 3, s{sX}""")
    if OPT["abl_adj"]:
        a(f"""
  v_bfe_u32 {v(T+6)}, v0, 1, 5
  v_lshl_add_u32 {v(vRd)}, {v(T+6)}, 3, s{sX}
  v_and_b32 {v(vHalf)}, 1, v0
  v_lshlrev_b32 {v(vHalf)}, 4, {v(vHalf)}""")
    a(f"""
  v_min_u32 {v(T+6)}, {NT-1}, {v(T+1)}
  v_mad_u32_u24 {v(vCntA)}, {v(T+6)}, {v(v264)}, s{sX}
  v_sub_u32 {v(vCarIdx)}, 511, v0
  v_lshlrev_b32 {v(vCarOff)}, 3, {v(vCarIdx)}
  v_cmp_eq_u32 vcc, 1, {v(T+3)}
  s_waitcnt lgkmcnt(0)
  s_lshl_b32 s{sX}, s{sCin}, 16
  s_and_b32 s{sCin}, s{sCin}, 0xffff0000
  v_mov_b32 {v(vFreq)}, s{sX}
  v_mov_b32 {v(T+6)}, s{sCin}
  v_cndmask_b32 {v(vFreq)}, {v(vFreq)}, {v(T+6)}, vcc
  s_mov_b32 s{sIt}, -1
  s_mov_b32 s{sIns}, 0
  s_mov_b32 s{sCarW}, 0
  s_mov_b32 s{sCarR}, {CARLIST}
  s_mul_i32 s{sEb}, s{sJ}, {EB}
  s_mul_i32 s{sX}, s{sW}, 200
  s_add_u32 s{sFl}, s{sEb}, {EB}
  s_add_u32 s{sEb}, s{sEb}, s{sX}
  s_add_u32 s{sRb}, s{sEb}, 200
  s_min_u32 s{sRb}, s{sRb}, s{sFl}
  s_min_u32 s{sRb}, s{sRb}, {E}
  s_lshl_b32 s{sRb}, s{sRb}, 5
  s_lshl_b32 s{sEb}, s{sEb}, 5
  s_add_u32 s{sEb2}, s{sEb}, 4096""")

    if OPT["tlb"]:
        sh = OPT["tlb"]
        srd(a, 28, sWS, sWS+1, None, FLGOFF + 8192)
        a(f"  v_lshlrev_b32 v249, {sh}, v0\n  buffer_load_dword v248, v249, s[28:31], 0 offen")
        srd(a, 28, 48, 49, None, E * 32)
        a(f"  buffer_load_dword v248, v249, s[28:31], 0 offen")
        srd(a, 28, 70, 71, None, E * 32)
        a(f"  buffer_load_dword v248, v249, s[28:31], 0 offen")
        vm.extend([("tlb", i) for i in range(3)])
    a(f"""
  s_cmp_ge_u32 s2, {NCH}
  s_cbranch_scc1 L_nochunk1""")
    vm.append(("flg", 0))
    arrive = f"""
  s_and_b32 s{sY}, s2, 15
  s_lshl_b32 s{sY}, s{sY}, 4
  v_lshlrev_b32 {v(PT)}, 8, v0
  buffer_atomic_add {v(vOne)}, {v(PT)}, {s(sDBG,4)}, s{sY} offen"""
    def hist(idx):
        if OPT["b5"]:
            for x, i in enumerate(idx): a(f"  v_cmp_le_u32 {s(72+2*x,2)}, s{sB5}, {v(I+i)}")
        for x, i in enumerate(idx): a(f"  v_mul_hi_u32_u24 {v(PT+x)}, s{sMJ}, {v(O+i)}")
        for x, i in enumerate(idx): a(f"  v_mul_hi_u32_u24 {v(PT+4+x)}, s{sMK}, {v(I+i)}")
        if OPT["b5"]:
            for x, i in enumerate(idx): a(f"  v_cndmask_b32 {v(PT+4+x)}, {v(PT+4+x)}, 5, {s(72+2*x,2)}")
        for x, i in enumerate(idx): a(f"  v_mad_i32_i24 {v(PT+8+x)}, {v(PT+x)}, s{sNEB}, {v(O+i)}")
        for x, i in enumerate(idx): a(f"  v_lshl_add_u32 {v(O+i)}, {v(PT+4+x)}, 8, {v(PT+x)}")
        for x, i in enumerate(idx): a(f"  v_lshlrev_b32 {v(O+i)}, 2, {v(O+i)}")
        for x, i in enumerate(idx): a(f"  ds_add_rtn_u32 {v(R+i)}, {v(O+i)}, {v(vOne)}")
        for x, i in enumerate(idx): a(f"  v_lshl_or_b32 {v(I+i)}, {v(PT+8+x)}, 20, {v(I+i)}")
        for x, i in enumerate(idx): a(f"  v_or_b32 {v(I+i)}, 0x80000000, {v(I+i)}")
    na = 0
    for q in range(NR):
        wait_for(("p", q))
        if q == 0: stamp(a, 252, 40)
        if q == LA:
            a(arrive); vm.append(("arr", 0))
        if q + LA < NR: ld_pair(q + LA)
        else:
            for _ in range(2):
                if na < OPT["apre"]: ld_ang(na); na += 1
        hist(list(range(4*q, 4*q + nrec(q))))
    stamp(a, 252, 41)
    X = v(PT+4)
    a(f"""
  s_waitcnt lgkmcnt(0)
  s_barrier
  s_cmp_ge_u32 s{sW}, {K}
  s_cbranch_scc1 L_bin_s1
  ds_read_b128 {v(PT,4)}, {v(vL16)}
  v_and_b32 {v(PT+8)}, 63, v0
  s_waitcnt lgkmcnt(0)
  v_add_u32 {v(PT+1)}, {v(PT)}, {v(PT+1)}
  v_add_u32 {v(PT+2)}, {v(PT+1)}, {v(PT+2)}
  v_add_u32 {v(PT+3)}, {v(PT+2)}, {v(PT+3)}
  v_mov_b32 {v(PT+4)}, {v(PT+3)}""")
    for sh in (1, 2, 4, 8):
        a(f"  s_nop 1\n  v_add_u32_dpp {X}, {X}, {X} row_shr:{sh} row_mask:0xf bank_mask:0xf bound_ctrl:0")
    a(f"  s_nop 1\n  v_add_u32_dpp {X}, {X}, {X} row_bcast:15 row_mask:0xa bank_mask:0xf")
    a(f"  s_nop 1\n  v_add_u32_dpp {X}, {X}, {X} row_bcast:31 row_mask:0xc bank_mask:0xf")
    a(f"""
  v_cmp_lt_u32 vcc, s{sW}, {v(PT+8)}
  v_readlane_b32 s{sY}, {X}, 63
  v_lshlrev_b32 {v(PT+9)}, 2, {v(PT+8)}
  s_and_b32 vcc_lo, vcc_lo, 0xff
  s_mov_b32 vcc_hi, 0
  v_mov_b32 {v(PT+10)}, s{sY}
  s_mov_b64 exec, vcc
  ds_add_u32 {v(PT+9)}, {v(PT+10)} offset:{P1_TMP}
  s_mov_b64 exec, -1
  s_waitcnt lgkmcnt(0)""")
    a.label("L_bin_s1")
    a(f"""
  s_barrier
  s_cmp_ge_u32 s{sW}, {K}
  s_cbranch_scc1 L_bin_s2
  s_lshl_b32 s{sY}, s{sW}, 2
  v_mov_b32 {v(PT+9)}, s{sY}
  ds_read_b32 {v(PT+9)}, {v(PT+9)} offset:{P1_TMP}
  v_sub_u32 {X}, {X}, {v(PT+3)}
  v_mov_b32 {v(PT+10)}, {CH}
  s_waitcnt lgkmcnt(0)
  v_add_u32 {v(PT+4)}, {X}, {v(PT+9)}
  v_add_u32 {v(PT+5)}, {v(PT+4)}, {v(PT)}
  v_add_u32 {v(PT+6)}, {v(PT+4)}, {v(PT+1)}
  v_add_u32 {v(PT+7)}, {v(PT+4)}, {v(PT+2)}
  ds_write_b128 {v(vL16)}, {v(PT+4,4)}
  ds_write_b32 {v(vZ)}, {v(PT+10)} offset:{P1_SENT}
  s_waitcnt lgkmcnt(0)""")
    a.label("L_bin_s2")
    a("  s_barrier")
    stamp(a, 252, 42)
    a(f"""
  v_lshrrev_b32 {v(PT+12)}, 1, v0
  v_and_b32 {v(PT+13)}, 1, v0
  v_lshlrev_b32 {v(PT+12)}, 2, {v(PT+12)}
  v_lshl_add_u32 {v(PT+13)}, {v(PT+13)}, 12, {v(PT+12)}
  s_lshl_b32 s{sY}, s2, 13""")
    for k in range(4):
        a(f"  ds_read_b32 {v(PT+k)}, {v(PT+13)} offset:{k*1024}")
        a(f"  ds_read_b32 {v(PT+6+k)}, {v(PT+13)} offset:{k*1024+4}")
    a("  s_waitcnt lgkmcnt(0)")
    for k in range(4): a(f"  v_sub_u32 {v(PT+6+k)}, {v(PT+6+k)}, {v(PT+k)}")
    for k in range(4): a(f"  v_lshl_or_b32 {v(PT+k)}, {v(PT+6+k)}, 16, {v(PT+k)}")
    a(f"  buffer_store_dwordx4 {v(PT,4)}, {v(vL16)}, {s(sTW,4)}, s{sY} offen sc1")
    vm.append(("tab", 0))
    mark = len(vm)
    for _ in range(OPT["a0"]):
        if na < NR: ld_ang(na); na += 1
    if OPT["mtouch"]:
        a(f"  buffer_load_dword v244, {v(vL128)}, {s(sMT,4)}, 0 offen"); vm.append(("m", 0))
    NB = OPT["nb"]
    vDa, vDv, vRa = 245, 246, 247
    lda = f"  buffer_load_dword {v(vDv)}, {v(vDa)}, {s(sDBG,4)}, 0 offen sc1"
    cda = f"  v_cmp_gt_u32 vcc, 16, {v(vDv)}"
    ada = f"""
  s_lshl_b32 s{sX}, s{sW}, 16
  v_and_b32 {v(vDa)}, 15, v0
  v_lshl_add_u32 {v(vDa)}, {v(vDa)}, 4, s{sX}"""
    NRD = 15
    for i in range(NRD): a(f"  ds_read_b32 {v(O+i)}, {v(O+i)}")
    a(f"  s_mov_b32 s{sB5}, {NB*8192 + 4}\n  s_mov_b32 s{sSo}, 0")
    a(ada)
    a(f"  v_add_u32 {v(vRa)}, {P1_REC}, {v(vL16)}")
    for g in range(10):
        idx = list(range(5*g, 5*g+5))
        for _ in range(OPT["ag"]):
            if na < NR: ld_ang(na); na += 1
        a(f"  s_waitcnt lgkmcnt({min(10, 45 - 5*g)})")
        for i in idx:
            if i + NRD < 50: a(f"  ds_read_b32 {v(O+i+NRD)}, {v(O+i+NRD)}")
        for i in idx: a(f"  v_add_u32 {v(O+i)}, {v(O+i)}, {v(R+i)}")
        for i in idx: a(f"  v_mad_u32_u24 {v(O+i)}, {v(O+i)}, {v(vSix)}, {v(vTwo)}")
        for x, i in enumerate(idx): a(f"  v_and_b32 {v(PT+x)}, 2, {v(O+i)}")
        for i in idx: a(f"  v_and_b32 {v(R+i)}, -4, {v(O+i)}")
        for x, i in enumerate(idx): a(f"  v_lshl_add_u32 {v(O+i)}, {v(PT+x)}, 1, {v(O+i)}")
    assert na == NR
    def put(q, cmp):
        idx = list(range(4*q, 4*q + nrec(q)))
        for x, i in enumerate(idx): a(f"  v_cmp_{cmp}_u32 {s(72+2*x,2)}, s{sB5}, {v(R+i)}")
        for x, i in enumerate(idx):
            op = "ds_write_b16_d16_hi" if (i & 1) else "ds_write_b16"
            a(f"""
  s_mov_b64 exec, {s(72+2*x,2)}
  ds_write_b32 {v(R+i)}, {v(I+i)} offset:{P1_REC}
  {op} {v(O+i)}, {v(A + i//2)} offset:{P1_REC-2}""")
        a("  s_mov_b64 exec, -1")
    for q in range(NR):
        wait_for(("a", q))
        for r in range(nrec(q) // 2): a(f"  v_and_b32 {v(A+2*q+r)}, 0x7fff7fff, {v(A+2*q+r)}")
        if q == OPT["tq"]:
            assert q >= OPT["apre"]
            a("  s_barrier")
            a(lda); vm.append(("lda", 0))
            a(f"  buffer_store_dword {v(vOne)}, {v(vFlg)}, {s(sFLG,4)}, 0 offen sc1"); vm.append(("flg", 1))
        put(q, "gt")
    a(f"  ds_read_b32 {v(vWo)}, {v(vZ)} offset:2048")
    a("  s_waitcnt lgkmcnt(0)\n  s_barrier")
    stamp(a, 252, 43)
    a(f"  v_readfirstlane_b32 s{sO2}, {v(vWo)}")
    free = [PT, PT + 4, PT + 8, O, I, R, O + 4, I + 4, R + 4]
    def erd(r): a(f"  ds_read_b128 {v(free[r],4)}, {v(vRa)} offset:{r*8192}")
    def est(r):
        a(f"  buffer_store_dwordx4 {v(free[r],4)}, {v(vL16)}, {s(sRW,4)}, s{sSo} offen sc1\n  s_add_u32 s{sSo}, s{sSo}, 8192")
        vm.append(("st", r))
    assert NB <= 8
    for r in range(3): erd(r)
    for r in range(3):
        a(f"  s_waitcnt lgkmcnt({2 - r})")
        est(r)
    put(0, "le"); put(1, "le")
    for r in range(3, NB): erd(r)
    put(2, "le")
    a("  s_waitcnt lgkmcnt(0)")
    todo = list(range(3, NB))
    fad = f"""
  v_and_b32 {v(RK[0])}, 63, v0
  v_lshlrev_b32 {v(RK[0])}, 4, {v(RK[0])}
  s_and_b32 s{sCin}, s2, 7
  s_lshl_b32 s{sCin}, s{sCin}, 10"""
    for q in range(3, NR):
        if todo: est(todo.pop(0))
        if q == OPT["fq"]:
            assert q >= 8 and Da == O + 28 and not todo
            a(fad)
            a(f"  s_mov_b32 s{sO4}, 0\n  s_cmp_lg_u32 s{sW}, 0\n  s_cbranch_scc1 L_nofl")
            wait_for(("lda", 0))
            a(cda)
            a(f"  s_cbranch_vccnz L_nofl\n  s_mov_b32 s{sO4}, 1")
            a(f"  buffer_load_dwordx4 {v(Da,4)}, {v(RK[0])}, {s(sFLG,4)}, s{sCin} offen sc1")
            a.label("L_nofl")
        put(q, "le")
    assert not todo
    stamp(a, 252, 44)
    FP = Da
    def flag_load(dst, off): return f"  buffer_load_dwordx4 {v(dst,4)}, {v(off)}, {s(sFLG,4)}, s{sCin if dst == FP else sX} offen sc1"
    def flag_cond(dst, stage): return f"""
  v_min3_u32 {v(dst)}, {v(dst)}, {v(dst+1)}, {v(dst+2)}
  v_min_u32 {v(dst)}, {v(dst)}, {v(dst+3)}
  v_cmp_gt_u32 vcc, {stage}, {v(dst)}"""
    a(f"  s_waitcnt vmcnt(0)\n  s_cmp_lg_u32 s{sW}, 0\n  s_cbranch_scc1 L_polled_t")
    a(f"  s_cmp_eq_u32 s{sO4}, 0\n  s_cbranch_scc1 L_wait_a")
    a(flag_cond(FP, 1))
    a("  s_cbranch_vccz L_polled_t\n  s_branch L_polled_a")
    a.label("L_nochunk1")
    if 40 <= OPT["cut"] <= 44: a("  s_endpgm")
    a("  s_waitcnt vmcnt(0)")
    a(arrive)
    a(ada)
    a(fad)
    a(f"  s_mov_b32 s{sO2}, 0\n  s_cmp_lg_u32 s{sW}, 0\n  s_cbranch_scc1 L_polled_t")
    a.label("L_wait_a")
    poll("a", lda, cda, 64)
    poll("t", flag_load(FP, RK[0]), flag_cond(FP, 1), OPT["napt"])
    a(f"""
  s_lshl_b32 s{sX}, s{sJ}, 5
  s_add_u32 s{sX}, s{sX}, {TABOFF}""")
    srd(a, sTAB, sWS, sWS+1, f"s{sX}", (NCH - 1) * 8192 + 32)

    def state_update():
        a(f"""
  v_sub_u32 {v(rem)}, {v(rem)}, {v(rtot)}
  v_lshrrev_b32 {v(T)}, 16, {v(Q)}
  v_and_b32 {v(T+1)}, 0xffff, {v(Q)}
  v_min_u32 {v(vR0)}, 32, {v(nA)}
  v_cmp_ge_u32 vcc, 32, {v(nA)}
  v_sub_u32 {v(T+2)}, 32, {v(vR0)}
  v_add_u32 {v(vB6)}, {v(cb)}, {v(T+1)}
  v_min_u32 {v(T+2)}, {v(T)}, {v(T+2)}
  v_mul_u32_u24 {v(vB6)}, 6, {v(vB6)}
  v_add_u32 {v(rtot)}, {v(vR0)}, {v(T+2)}
  v_mad_i32_i24 {v(vB6)}, {v(vR0)}, -6, {v(vB6)}
  v_lshlrev_b32 {v(vRT4)}, 2, {v(rtot)}
  v_add_u32 {v(vA6)}, {v(cb)}, {v(sA)}
  v_mul_u32_u24 {v(vA6)}, 6, {v(vA6)}""")
    def state_update2():
        a(f"""
  v_add_u32 {v(sA)}, 32, {v(sA)}
  v_subrev_u32 {v(nA)}, 32, {v(nA)}
  v_add_u32 {v(T+1)}, {v(T+1)}, {v(T+2)}
  v_sub_u32 {v(T)}, {v(T)}, {v(T+2)}
  v_cndmask_b32 {v(sA)}, {v(sA)}, {v(T+1)}, vcc
  v_cndmask_b32 {v(nA)}, {v(nA)}, {v(T)}, vcc""")
        for i in range(K - 1):
            a(f"  v_cndmask_b32 {v(Q+i)}, {v(Q+i)}, {v(Q+i+1)}, vcc")
        a(f"  v_cndmask_b32 {v(Q+K-1)}, {v(Q+K-1)}, {v(vZ)}, vcc")
    def set_flag(tag):
        a(f"""
  v_cmp_lt_u32 vcc, 0, {v(rem)}
  s_cbranch_vccz L_noflag_{tag}
  ds_write_b32 {v(vCtlN)}, {v(vOne)} offset:4""")
        a.label(f"L_noflag_{tag}")

    bc = lambda u: f"row_newbcast:{u} row_mask:0xf bank_mask:0xf"
    def rec_load(u, t0):
        a(f"""
  v_sub_co_u32_dpp {v(t0)}, vcc, {v(vR0)}, {v(vI1)} {bc(u)}
  v_add_u32_dpp {v(t0)}, {v(vA6)}, {v(vI6)} {bc(u)}
  v_add_u32_dpp {v(t0+1)}, {v(vB6)}, {v(vI6)} {bc(u)}
  v_cndmask_b32 {v(t0)}, {v(t0)}, {v(t0+1)}, vcc
  v_sub_u32_dpp {v(t0+1)}, {v(vRT4)}, {v(vI4)} {bc(u)}
  v_bfi_b32 {v(t0)}, {v(vMsk)}, {v(t0)}, {v(t0+1)}
  buffer_load_dwordx2 {v(REC[u],2)}, {v(t0)}, {s(sREC,4)}, 0 offen{RPOL}""")

    SDWA = "dst_sel:WORD_1 dst_unused:UNUSED_PAD src0_sel:WORD_1 src1_sel:WORD_0"
    def ins1(u, thr, p):
        ta, rk, mk, w = TA[p], RK[p], sMk[p], WW[p]
        a(f"""
  v_cmp_gt_i32 vcc, 0, {v(REC[u])}
  v_min_i32 {v(w)}, {v(REC[u])}, {v(REC[u]+1)}
  v_cmp_gt_i32 {s(mk,2)}, {thr}, {v(w)}
  v_bfe_u32 {v(ta)}, {v(w)}, 23, 8
  v_cndmask_b32_sdwa {v(REC[u])}, {v(REC[u])}, {v(REC[u]+1)}, vcc {SDWA}
  v_mad_u32_u24 {v(ta)}, {v(ta)}, {v(v264)}, s{sIns}
  s_mov_b64 exec, {s(mk,2)}
  ds_add_rtn_u32 {v(rk)}, {v(ta)}, {v(vOne)}
  s_mov_b64 exec, -1""")

    def ins2(u, tag, p):
        ta, rk, mk, w = TA[p], RK[p], sMk[p], WW[p]
        lab = f"{tag}_{u}"
        a(f"""
  s_mov_b64 exec, {s(mk,2)}
  v_cmp_lt_u32 vcc, 31, {v(rk)}
  v_lshl_add_u32 {v(ta)}, {v(rk)}, 3, {v(ta)}
  s_cbranch_vccnz L_rare_{lab}""")
        a.label(f"L_back_{lab}")
        a(f"""
  ds_write2_b32 {v(ta)}, {v(REC[u])}, {v(w)} offset0:2 offset1:3
  s_mov_b64 exec, -1""")
        rare.append((lab, u, p))

    a(f"""
  v_add_u32 {v(PT+2)}, {P1_REC}, {v(vL16)}
  v_add_u32 {v(PT+3)}, {P1_REC + 8*8192}, {v(vL16)}
  v_add_u32 {v(PT+4)}, {P1_REC + 16*8192}, {v(vL16)}
  s_mov_b32 s{sSo}, {NB*8192}
  v_mov_b32 {v(vDum)}, 3
  s_waitcnt lgkmcnt(0)
  s_barrier""")
    stamp(a, 252, 45)
    NS = 19
    sdt = lambda r: (20 + r) % 25 if r < 8 else r + 1
    SD = lambda r: ACC[sdt(r)]
    gv = []
    def gwait(x, extra=""): a(f"  s_waitcnt vmcnt({len(gv) - 1 - gv.index(x)}){extra}")
    def rd(r): a(f"  ds_read_b128 {v(SD(r),4)}, {v(PT+2 + r//8)} offset:{(r%8)*8192}")
    def st(r, lst=None):
        a(f"  buffer_store_dwordx4 {v(SD(r),4)}, {v(vL16)}, {s(sRW,4)}, s{sSo} offen sc1\n  s_add_u32 s{sSo}, s{sSo}, 8192")
        if lst is not None: lst.append(("st", r))
    zero_acc = lambda t: a(f"  v_mov_b64 {v(ACC[t],2)}, 0\n  v_mov_b64 {v(ACC[t]+2,2)}, 0")
    flag3 = f"  buffer_store_dword {v(vDum)}, {v(vFlg)}, {s(sFLG,4)}, 0 offen sc1"
    N1, N3 = OPT["n1"], OPT["n3"]
    a(f"  s_cmp_gt_u32 s{sO2}, {NB*8192 // 6 - 2}\n  s_cbranch_scc1 L_noearly")
    a(flag3)
    a.label("L_noearly")
    a(f"""
  buffer_load_dwordx4 {v(Q,4)}, {v(vTab)}, {s(sTAB,4)}, 0 offen sc1
  buffer_load_dwordx2 {v(Q+4,2)}, {v(vTab)}, {s(sTAB,4)}, 0 offen offset:16 sc1""")
    gv.extend([("tab", 0), ("tab", 1)])
    for r in range(NB, NS): rd(r)
    nxt = NB + N1
    for r in range(NB, nxt):
        a(f"  s_waitcnt lgkmcnt({NS - 1 - r})")
        st(r, gv)
    a(f"""
  s_waitcnt lgkmcnt(0)
  s_cmp_gt_u32 s{sO2}, {NB*8192 // 6 - 2}
  s_cbranch_scc1 L_allfirst
  s_barrier""")
    a.label("L_allfirst_back")
    stamp(a, 252, 46)
    pend = list(range(nxt, NS))
    keep = OPT["n3"]
    slot = [0]
    def st1(n=1):
        on = OPT["smask"] >> slot[0] & 1 or n > 1
        slot[0] += 1
        for _ in range(n):
            if on and len(pend) > keep: st(pend.pop(0), gv)
    st1()
    DI = [RING[0] + p for p in range(14)]
    H = Da
    a(f"""
  s_mul_i32 s{sX}, s{sW}, 3584
  s_add_u32 s{sX}, s{sX}, {RB_OFF}
  v_and_b32 {v(T+8)}, 63, v0
  v_lshl_add_u32 {v(T+9)}, {v(T+8)}, 3, s{sX}
  v_lshl_add_u32 {v(T+8)}, {v(T+8)}, 2, s{sX}
  ds_write_b64 {v(T+9)}, {v(rDist,2)}
  ds_write_b64 {v(T+9)}, {v(rSbf,2)} offset:512
  ds_write_b64 {v(T+9)}, {v(rUp,2)} offset:1024
  ds_write_b32 {v(T+8)}, {v(rRbf)} offset:1536
  ds_write_b64 {v(T+9)}, {v(rDown,2)} offset:2048
  v_and_b32 {v(T+4)}, 15, v0
  v_bfe_u32 {v(T+8)}, v0, 4, 2
  v_lshl_add_u32 {v(T+4)}, {v(T+4)}, 1, s{sX}
  v_lshl_add_u32 {v(T+5)}, {v(T+8)}, 7, {v(T+4)}
  v_lshl_add_u32 {v(T+6)}, {v(T+8)}, 6, {v(T+4)}
  v_lshl_add_u32 {v(T+7)}, {v(vHalf)}, 4, {v(T+4)}
  ds_read_u16 {v(WS0)}, {v(T+5)} offset:512
  ds_read_u16 {v(WS1)}, {v(T+5)} offset:{512+32}
  ds_read_u16 {v(WS0+1)}, {v(T+5)} offset:{512+64}
  ds_read_u16 {v(WS1+1)}, {v(T+5)} offset:{512+96}
  ds_read_u16 {v(WUP)}, {v(T+5)} offset:1024
  ds_read_u16 {v(H+10)}, {v(T+5)} offset:{1024+32}
  ds_read_u16 {v(WUP+1)}, {v(T+5)} offset:{1024+64}
  ds_read_u16 {v(H+11)}, {v(T+5)} offset:{1024+96}
  ds_read_u16 {v(WR)}, {v(T+6)} offset:1536
  ds_read_u16 {v(WR+1)}, {v(T+6)} offset:{1536+32}""")
    st1()
    for r in range(8): a(f"  ds_read_u16 {v(Wa+r)}, {v(T+7)} offset:{2048+r*32}")
    for p in range(13): a(f"  ds_read_u16 {v(DI[p])}, {v(T+4)} offset:{p*32}")
    st1()
    a(f"""
  s_mul_i32 s{sFl}, s{sJ}, {2*CARLIST}
  s_add_u32 s{sFl}, s{sFl}, {CAROFF}""")
    srd(a, sREC, sWS, sWS+1, None, NCH * CH * 6)
    srd(a, sM, 48, 49, None, E * 32)
    srd(a, sCAR, sWS, sWS+1, f"s{sFl}", 2 * CARLIST)
    srd(a, sOUT, 70, 71, None, f"s{sRb}")
    srd(a, sMW, 48, 49, None, f"s{sRb}")
    for t in list(range(3, 9)) + [sdt(r) for r in range(NB)]: zero_acc(t)
    st1()
    a(f"""
  v_mov_b32 {v(vSent)}, 0x7ffff
  v_mov_b32 {v(T)}, 0
  v_mov_b32 {v(T+1)}, {v(vSent)}
  v_mov_b32 {v(T+2)}, 0
  v_mov_b32 {v(T+3)}, {v(vSent)}
  v_add_u32 {v(T+6)}, {7*8192}, {v(vL16)}""")
    for r in range(13):
        a(f"  ds_write_b128 {v(vL16 if r < 7 else T+6)}, {v(T,4)} offset:{(r%7)*8192}")
        if r % 5 == 4: st1()
    a(f"""
  v_and_b32 {v(T+6)}, 15, v0
  v_lshl_add_u32 {v(T+6)}, {v(T+6)}, 2, {v(vCtlN)}
  ds_write_b32 {v(T+6)}, {v(vZ)}
  ds_write_b128 {v(vSrd)}, {v(ACC[3],4)}""")
    for q in range(D): a(f"  v_mov_b32 {v(SA[q])}, {v(vSst)}\n  v_mov_b32 {v(CC[q])}, 0")
    gwait(("tab", 1))
    a(f"  v_lshrrev_b32 {v(rem)}, 16, {v(Q)}")
    for i in range(1, K):
        a(f"  v_lshrrev_b32 {v(T+4)}, 16, {v(Q+i)}\n  v_add_u32 {v(rem)}, {v(rem)}, {v(T+4)}")
    state_update()
    for u in range(0, 16, 2):
        a(f"""
  v_add_u32_dpp {v(REC[u])}, {v(vB6)}, {v(vI6)} {bc(u)}
  v_sub_u32_dpp {v(REC[u]+1)}, {v(vRT4)}, {v(vI4)} {bc(u)}
  v_add_u32_dpp {v(REC[u+1])}, {v(vB6)}, {v(vI6)} {bc(u+1)}
  v_sub_u32_dpp {v(REC[u+1]+1)}, {v(vRT4)}, {v(vI4)} {bc(u+1)}
  v_bfi_b32 {v(REC[u])}, {v(vMsk)}, {v(REC[u])}, {v(REC[u]+1)}
  v_bfi_b32 {v(REC[u+1])}, {v(vMsk)}, {v(REC[u+1])}, {v(REC[u+1]+1)}""")
        if u % 4 == 2: st1()
    state_update2()
    state_update()
    state_update2()
    st1()
    CEN = H + 8
    a(f"""
  v_mov_b32 {v(CEN+1)}, s56
  v_cmp_eq_u32 vcc, 1, {v(T+8)}
  v_mov_b32 {v(CEN)}, s57
  v_cmp_eq_u32 {s(sT,2)}, 2, {v(T+8)}
  v_cndmask_b32 {v(CEN+1)}, {v(CEN+1)}, {v(CEN)}, vcc
  v_mov_b32 {v(CEN)}, s58
  v_cmp_eq_u32 vcc, 3, {v(T+8)}
  v_cndmask_b32 {v(CEN+1)}, {v(CEN+1)}, {v(CEN)}, {s(sT,2)}
  v_mov_b32 {v(CEN)}, s59
  v_cndmask_b32 {v(CEN+1)}, {v(CEN+1)}, {v(CEN)}, vcc
  v_lshlrev_b32 {v(CEN)}, 16, {v(CEN+1)}
  v_and_b32 {v(CEN+1)}, 0xffff0000, {v(CEN+1)}
  s_mov_b32 s{sC10}, 0xc1200000
  s_mov_b32 s{sC10+1}, 0xc1200000
  s_mov_b32 s{sCl2}, 0x3fb8aa3b
  s_mov_b32 s{sCl2+1}, 0x3fb8aa3b
  v_and_b32 {v(T+8)}, 1, {v(T+8)}
  v_cmp_eq_u32 vcc, 1, {v(T+8)}
  s_waitcnt lgkmcnt(0)
  v_lshl_or_b32 {v(WS0)}, {v(WS0+1)}, 16, {v(WS0)}
  v_lshl_or_b32 {v(WS1)}, {v(WS1+1)}, 16, {v(WS1)}
  v_lshl_or_b32 {v(WUP)}, {v(H+10)}, 16, {v(WUP)}
  v_lshl_or_b32 {v(WUP+1)}, {v(H+11)}, 16, {v(WUP+1)}
  v_lshl_or_b32 {v(WR)}, {v(WR+1)}, 16, {v(WR)}
  v_mov_b32 {v(WS0+1)}, 0
  v_mov_b32 {v(WS1+1)}, 0
  v_mov_b32 {v(WR+1)}, 0
  v_mov_b32 {v(DI[13])}, 0""")
    for r in range(4): a(f"  v_lshl_or_b32 {v(H+r)}, {v(Wa+2*r+1)}, 16, {v(Wa+2*r)}")
    for r in range(4):
        a(f"  v_cndmask_b32 {v(Wa+r)}, {v(H+r)}, {v(vZ)}, vcc")
        a(f"  v_cndmask_b32 {v(Wb+r)}, {v(vZ)}, {v(H+r)}, vcc")
    for ps in ([0,1,2,3], [4,5,6,7], [8,9,10], [11,12]):
        p0 = ps[0]
        tt = {p: H + 2 * (p - p0) for p in ps}
        def rnd():
            for p in ps: a(f"  v_cvt_pk_bf16_f32 {v(tt[p])}, 0, {v(tt[p])}\n  v_cvt_pk_bf16_f32 {v(tt[p]+1)}, 0, {v(tt[p]+1)}")
        for p in ps: a(f"  v_lshlrev_b32 {v(tt[p])}, 16, {v(DI[p])}")
        for p in ps: a(f"  v_pk_add_f32 {v(tt[p],2)}, {v(tt[p],2)}, {v(CEN,2)} op_sel_hi:[0,1] neg_lo:[0,1] neg_hi:[0,1]")
        rnd()
        for p in ps: a(f"  v_pk_mul_f32 {v(tt[p],2)}, {v(tt[p],2)}, {v(tt[p],2)}")
        rnd()
        for p in ps: a(f"  v_pk_mul_f32 {v(tt[p],2)}, {v(tt[p],2)}, {s(sC10,2)}")
        rnd()
        for p in ps: a(f"  v_pk_mul_f32 {v(tt[p],2)}, {v(tt[p],2)}, {s(sCl2,2)}")
        for p in ps: a(f"  v_exp_f32 {v(tt[p])}, {v(tt[p])}\n  v_exp_f32 {v(tt[p]+1)}, {v(tt[p]+1)}")
        for p in ps: a(f"  v_cvt_pk_bf16_f32 {v(DI[p])}, {v(tt[p])}, {v(tt[p]+1)}")
        st1()
    st1(NS)
    print("store slots", slot[0])
    for h in range(7):
        a(f"  ds_write_b64 {v(T+9)}, {v(DI[2*h],2)} offset:{h*512}")
    nx3 = NS - len(pend)
    for r in range(NB, nx3): zero_acc(sdt(r))
    for q in range(D):
        a(f"  v_mov_b64 {v(RING[q],2)}, 0\n  v_mov_b64 {v(RING[q]+2,2)}, 0")
    stamp(a, 252, 47)
    a(f"  s_cmp_lg_u32 s{sW}, 0\n  s_cbranch_scc1 L_polled_b")
    poll("b", flag_load(FP, RK[0]), flag_cond(FP, 2), OPT["nap"])
    a("  s_waitcnt lgkmcnt(0)")
    a("  s_barrier")
    stamp(a, 252, 1)
    def pro_ld(us):
        for u in us:
            a(f"  buffer_load_dwordx2 {v(REC[u],2)}, {v(REC[u])}, {s(sREC,4)}, 0 offen{RPOL}")
            gv.append(("rec", u))
    NL0 = OPT["nl0"]
    pro_ld(range(NL0))
    NG = NS
    stamp(a, 252, 12)
    set_flag("pro")
    stamp(a, 252, 13)
    PTA = lambda u: Da + u
    PRK = lambda u: RING[0] + u
    PMK = lambda u: sPM + 2 * (u % 8)
    slowg = []
    def pro_ins1(g):
        us = range(4*g, 4*g+4)
        gwait(("rec", 4*g+3))
        for u in us:
            a(f"""
  v_cmp_gt_i32 vcc, 0, {v(REC[u])}
  v_min_i32 {v(PTA(u))}, {v(REC[u])}, {v(REC[u]+1)}
  v_cmp_gt_i32 {s(PMK(u),2)}, 0, {v(PTA(u))}
  v_cndmask_b32_sdwa {v(REC[u])}, {v(REC[u])}, {v(REC[u]+1)}, vcc {SDWA}
  v_mov_b32 {v(REC[u]+1)}, {v(PTA(u))}""")
        for u in us: a(f"  v_bfe_u32 {v(PTA(u))}, {v(PTA(u))}, 23, 8")
        for u in us: a(f"  v_mul_u32_u24 {v(PTA(u))}, {v(PTA(u))}, {v(v264)}")
        for u in us: a(f"  s_mov_b64 exec, {s(PMK(u),2)}\n  ds_add_rtn_u32 {v(PRK(u))}, {v(PTA(u))}, {v(vOne)}")
        a("  s_mov_b64 exec, -1")
    def pro_ins2(g):
        us = list(range(4*g, 4*g+4))
        a(f"""
  v_max3_u32 {v(T)}, {v(PRK(us[0]))}, {v(PRK(us[1]))}, {v(PRK(us[2]))}
  v_max_u32 {v(T)}, {v(T)}, {v(PRK(us[3]))}
  v_cmp_lt_u32 vcc, 31, {v(T)}
  s_cbranch_vccz L_pfast_{g}
  v_cmp_lt_u32 vcc, 63, {v(T)}
  s_cbranch_vccnz L_pslow_{g}""")
        a.label(f"L_pback_{g}")
        for x, u in enumerate(us): a(f"  v_subrev_u32 {v(T+4+x)}, 31, {v(PRK(u))}")
        for x, u in enumerate(us): a(f"  s_mov_b64 exec, {s(PMK(u),2)}\n  ds_max_i32 {v(PTA(u))}, {v(T+4+x)} offset:{BUFSZ}")
        a(f"  s_mov_b64 exec, -1\n  ds_write_b32 {v(vCtlN)}, {v(vOne)} offset:4")
        for x, u in enumerate(us): a(f"  v_lshrrev_b32 {v(T+4+x)}, 5, {v(PRK(u))}")
        for x, u in enumerate(us): a(f"  v_mad_u32_u24 {v(PTA(u))}, {v(T+4+x)}, s{sThr}, {v(PTA(u))}")
        a.label(f"L_pfast_{g}")
        for u in us: a(f"  v_lshl_add_u32 {v(PTA(u))}, {v(PRK(u))}, 3, {v(PTA(u))}")
        for u in us: a(f"  s_mov_b64 exec, {s(PMK(u),2)}\n  ds_write_b64 {v(PTA(u))}, {v(REC[u],2)} offset:8")
        a("  s_mov_b64 exec, -1")
        slowg.append(g)
    a(f"  s_mov_b32 s{sThr}, {BUFSZ - 256}")
    left = list(range(nx3, NS))
    per = (len(left) + 3) // 4
    def some():
        for _ in range(per):
            if left: st(left.pop(0), gv)
    pro_ins1(0)
    stamp(a, 252, 3)
    pro_ld(range(NL0, 16))
    pro_ins1(1)
    some()
    a("  s_waitcnt lgkmcnt(0)")
    pro_ins2(0); some(); pro_ins1(2); pro_ins2(1); some(); pro_ins1(3); some()
    stamp(a, 252, 8)
    a("  s_nop 0")
    for r in range(nx3, NS): zero_acc(sdt(r))
    a("  s_waitcnt lgkmcnt(0)")
    pro_ins2(2); pro_ins2(3)
    stamp(a, 252, 11)
    a("  s_branch L_turn2")
    def signal_all(tag, n):
        a(f"""
  v_mov_b32 {v(T+4)}, {CTL + 32}
  s_waitcnt vmcnt({n})
  s_mov_b64 exec, 1
  ds_add_rtn_u32 {v(T+5)}, {v(T+4)}, {v(vOne)}
  s_mov_b64 exec, -1
  v_and_b32 {v(T+6)}, 63, v0
  s_lshl_b32 s{sX}, s2, 2
  v_lshl_add_u32 {v(T+6)}, {v(T+6)}, 10, s{sX}
  v_mov_b32 {v(T+7)}, 4
  s_waitcnt lgkmcnt(0)
  v_readfirstlane_b32 s{sX}, {v(T+5)}
  s_cmp_lg_u32 s{sX}, 7
  s_cbranch_scc1 L_nosig_{tag}
  buffer_store_dword {v(T+7)}, {v(T+6)}, {s(sFLG,4)}, 0 offen sc1""")
        a.label(f"L_nosig_{tag}")

    INS0 = OPT["ins0"]
    def cstage_head(q):
        if OPT["abl_s"]: return
        a(f"""
  ds_write_b16 {v(SA[q])}, {v(CC[q])}
  ds_read_b128 {v(Sf,4)}, {v(vSrd)}
  ds_write_b16 {v(SA[q])}, {v(vZ)}""")
    def cstage_m1(q):
        if OPT["abl_mfma"]: return
        a(f"""
  v_mfma_f32_16x16x32_bf16 {v(Da,4)}, {v(RING[q],4)}, {v(Wa,4)}, 0
  v_mfma_f32_16x16x32_bf16 {v(Db,4)}, {v(RING[q],4)}, {v(Wb,4)}, 0""")
    def cstage_cvt():
        if OPT["abl_mfma"]: return
        a(f"""
  v_cvt_pk_bf16_f32 {v(P)}, {v(Da)}, {v(Da+1)}
  v_cvt_pk_bf16_f32 {v(P+1)}, {v(Da+2)}, {v(Da+3)}
  v_cvt_pk_bf16_f32 {v(P+2)}, {v(Db)}, {v(Db+1)}
  v_cvt_pk_bf16_f32 {v(P+3)}, {v(Db+2)}, {v(Db+3)}""")
    def cstage_m2(tc):
        if OPT["abl_mfma"]: return
        a(f"  v_mfma_f32_16x16x32_bf16 {v(ACC[tc],4)}, {v(P,4)}, {v(Sf,4)}, {v(ACC[tc],4)}")
    def step_top(t, reset=True):
        a(f"  ; ---- step {t}")
        a("  s_waitcnt lgkmcnt(0)")
        cstage_head(t % D)
        if t < NT - 1:
            a(f"  ds_read_b64 {v(RP[(t+1)&1],2)}, {v(vRd)} offset:{(t+1)*TS+8}")
        if reset and t < NT:
            a(f"  ds_write_b32 {v(vRd)}, {v(vSent)} offset:{t*TS+12}")
    def step_main(t, n, reset=True):
        q = t % D; tc = (t - D) % NT
        rp = RP[t & 1]
        a(f"  s_waitcnt vmcnt({n})")
        cstage_m1(q)
        off, af, e = T + 1, T + 2, T + 3
        a(f"""
  v_and_b32 {v(off)}, {v(vSent)}, {v(rp+1)}
  v_mul_f32 {v(af)}, {v(rp)}, {v(vFreq)}
  v_lshl_add_u32 {v(off)}, {v(off)}, 5, {v(vHalf)}
  v_cvt_pk_bf16_f32 {v(af)}, 0, {v(af)}
  buffer_load_dwordx4 {v(RING[q],4)}, {v(vOOB if OPT["abl_g"] else off)}, {s(sM,4)}, 0 offen
  v_mul_f32 {v(af)}, 0.15915494, {v(af)}
  v_bfe_u32 {v(e)}, {v(rp+1)}, 20, 3
  v_fract_f32 {v(af)}, {v(af)}""")
        cstage_cvt()
        a(f"""
  v_cos_f32 {v(af)}, {v(af)}
  v_lshl_add_u32 {v(SA[q])}, {v(e)}, 4, {v(vSst)}
  s_waitcnt lgkmcnt({(2 if t < NT-1 else 1) + (1 if reset else 0)})""")
        cstage_m2(tc)
        a(f"  v_cvt_pk_bf16_f32 {v(CC[q])}, {v(af)}, {v(af)}")

    order = []
    for t in range(NT):
        if t == 0: order.append(("car", 16))
        u2 = t - INS0 - 1
        EA = OPT["early"]
        if EA: order += [("rec", u) for u in range(EA * t, min(16, EA * t + EA))]
        elif 0 <= u2 < 16: order.append(("rec", u2))
        order.append(("W", t))
        order.append(("g", t))
    tail = [x for x in order[order.index(("g", NT - D)):] if x[0] != "W"]
    assert tail == [("g", t) for t in range(NT - D, NT)], tail
    def younger(target, at):
        n = len(order); i = order.index(target); cnt = 0
        j = (i + 1) % n
        while j != at:
            if order[j][0] != "W": cnt += 1
            j = (j + 1) % n
        return cnt
    first = []
    for x in order:
        if x[0] == "W" and x[1] < 4: first += [("f", 4 * x[1] + i) for i in range(4)]
        first.append(x)
    def younger_first(u, t):
        i = first.index(("f", u)); j = first.index(("W", t))
        return sum(1 for x in first[i+1:j] if x[0] != "W")
    RBH = 1
    def prio(tag, mask, t):
        cur = mask >> t & 1; prev = (mask >> (t - 1) & 1) if t else 0
        if cur and not prev:
            a(f"  s_cmp_lt_u32 s{sW}, 4\n  s_cbranch_scc1 L_{tag}prio{t}\n  s_setprio 1")
            a.label(f"L_{tag}prio{t}")
        if prev and not cur: a("  s_setprio 0")
    assert not OPT["lprio"] >> (NT - 1)
    def step0_extra():
        a(f"""
  v_cmp_gt_u32 vcc, s{sCin}, {v(vCarIdx)}
  s_add_u32 s{sX}, s{sIt}, 2
  s_and_b32 s{sX}, s{sX}, 3
  s_lshl_b32 s{sX}, s{sX}, 3
  s_add_u32 s{sX}, s{sX}, {CTL}
  v_mov_b32 {v(T+1)}, s{sX}
  ds_write_b64 {v(T+1)}, {v(vZ,2)}
  ds_write_b32 {v(vCntA)}, {v(vZ)}
  v_cndmask_b32 {v(T)}, {v(vOOB)}, {v(vCarOff)}, vcc
  buffer_load_dwordx2 {v(REC[16],2)}, {v(T)}, {s(sCAR,4)}, s{sCarR} offen sc1""")
    def state_step(tag):
        a(f"  s_cmp_lg_u32 s{sThr}, 0\n  s_cbranch_scc1 L_nostate_{tag}")
        if tag == "b0":
            QL = Q + OPT['keff'] - 3
            a(f"""
  v_lshrrev_b32 {v(T)}, 16, {v(QL)}
  v_cmp_eq_u32 vcc, 0, {v(nA)}
  v_subrev_u32 {v(T+1)}, {OPT['lim']}, {v(T)}
  v_and_b32 {v(T+2)}, 0xffff, {v(QL)}
  v_max_i32 {v(T+1)}, 0, {v(T+1)}
  v_cndmask_b32 {v(T+1)}, {v(vZ)}, {v(T+1)}, vcc
  v_add_u32 {v(T+2)}, {v(T+2)}, {v(T)}
  v_sub_u32 {v(T+2)}, {v(T+2)}, {v(T+1)}
  v_cndmask_b32 {v(sA)}, {v(sA)}, {v(T+2)}, vcc
  v_add_u32 {v(nA)}, {v(nA)}, {v(T+1)}
  v_lshlrev_b32 {v(T+1)}, 16, {v(T+1)}
  v_sub_u32 {v(QL)}, {v(QL)}, {v(T+1)}""")
        state_update(); state_update2()
        a.label(f"L_nostate_{tag}")
        set_flag(tag)
    a(".p2align 6")
    a.label("L_body0")
    lo = []
    lw = lambda x: len(lo) - 1 - lo.index(x)
    ST0, STP = OPT["st0"], OPT["stp"]
    late = list(range(NG, NS))
    tsig = None
    FC = REC[0]
    FO = REC[2]
    for t in range(NT):
        step_top(t)
        prio("b0", OPT["lprio"], t)
        if t == 0:
            step0_extra(); lo.append(("rec", 16))
        if t < 4:
            for u in range(4*t, 4*t+4):
                rec_load(u, T + 4 + 2 * (u & 1)); lo.append(("rec", u))
        if t == INS0: state_step("b0")
        zs = []
        if t >= ST0:
            for _ in range(STP):
                if late:
                    r = late.pop(0); st(r, lo); zs.append(r)
                    assert sdt(r) + D > t
                    if not late: tsig = t + D + 1
        u1 = t - INS0; u2 = u1 - 1
        if 0 <= u2 < 17: ins2(u2, "b0", u2 & 1)
        if 0 <= u1 < 17:
            a(f"  s_waitcnt vmcnt({lw(('rec', u1))})")
            ins1(u1, f"s{sThr}" if u1 < 16 else "0", u1 & 1)
        else: a("  s_nop 0")
        for r in zs: zero_acc(sdt(r))
        if t == tsig or (NG == NS and t == 2):
            signal_all("b0", lw(("st", NS - 1)) if NG < NS else len(lo))
        if t == INS0 + 18:
            a(f"  s_cmp_gt_u32 s{sCin}, 512\n  s_cbranch_scc1 L_slow_b0")
            a.label("L_slow_back_b0")
        if t == NT - 3:
            a(f"""
  s_cmp_lg_u32 s{sW}, 0
  s_cbranch_scc1 L_noldc
  v_lshlrev_b32 {v(FO)}, 4, v0
  s_and_b32 s{sX}, s2, 7
  s_lshl_b32 s{sX}, s{sX}, 10""")
            a(flag_load(FC, FO))
            a.label("L_noldc")
        step_main(t, lw(("g", t - D)) if t >= D else 62)
        lo.append(("g", t))
    assert not late and (tsig is None or tsig < NT - 3)
    a(f"""
  s_waitcnt vmcnt(3)
  s_cmp_lg_u32 s{sW}, 0
  s_cbranch_scc1 L_turn2""")
    assert NT - (INS0 + 17) >= 3
    a(flag_cond(FC, 4))
    a(f"""
  s_cbranch_vccz L_turn2
  s_and_b32 s{sX}, s2, 7
  s_lshl_b32 s{sX}, s{sX}, 10""")
    poll("c", flag_load(FC, FO), flag_cond(FC, 4), OPT["nap"])
    a("  s_branch L_turn2")

    a(".p2align 6")
    a.label("L_loop")
    for t in range(NT):
        step_top(t)
        if t == 0: step0_extra()
        prio("lp", OPT["lprio"], t)
        if EA:
            for u in range(EA * t, min(16, EA * t + EA)): rec_load(u, T + 4 + 2 * (u & 1))
        if t < 4:
            if not EA: a(f"  s_cmp_eq_u32 s{sIt}, 1\n  s_cbranch_scc1 L_first_{t}")
            a.label(f"L_first_back_{t}")
        if t == INS0: state_step("lp")
        u1 = t - INS0; u2 = u1 - 1
        if 0 <= u2 < 17:
            ins2(u2, "lp", u2 & 1)
            if u2 < 16 and not EA: rec_load(u2, T + 4)
        if 0 <= u1 < 17:
            pos = order.index(("W", t))
            if EA and u1 < 16: n = younger(("rec", u1), pos)
            elif u1 < 16: n = min(younger(("rec", u1), pos), younger_first(u1, t))
            else: n = younger(("car", 16), pos)
            a(f"  s_waitcnt vmcnt({min(n, 62)})")
            ins1(u1, f"s{sThr}" if u1 < 16 else "0", u1 & 1)
        if t == INS0 + 18:
            a(f"  s_cmp_gt_u32 s{sCin}, 512\n  s_cbranch_scc1 L_slow_lp")
            a.label("L_slow_back_lp")
        step_main(t, younger(("g", (t - D) % NT), order.index(("W", t))))
    assert INS0 >= 4 and RBH < NT
    a(f"  s_waitcnt vmcnt({NT - (INS0 + 17)})")
    a.label("L_turn2")
    a(f"""
  v_mov_b32 {v(T)}, {v(vCtlN)}
  s_add_u32 s{sIt}, s{sIt}, 1
  s_add_u32 s{sX}, s{sIt}, 1
  s_and_b32 s{sX}, s{sX}, 3
  s_lshl_b32 s{sX}, s{sX}, 3
  s_add_u32 s{sX}, s{sX}, {CTL}
  v_mov_b32 {v(vCtlN)}, s{sX}
  s_sub_u32 s{sX}, s{sIns}, {BUFSZ}
  s_add_u32 s{sX}, s{sX}, s{sIns}
  v_add_u32 {v(vRd)}, s{sX}, {v(vRd)}
  v_add_u32 {v(vCntA)}, s{sX}, {v(vCntA)}
  s_sub_u32 s{sIns}, {BUFSZ}, s{sIns}
  s_mov_b32 s{sCarR}, s{sCarW}
  s_sub_u32 s{sCarW}, {CARLIST}, s{sCarW}
  s_waitcnt lgkmcnt(0)""")
    if OPT["stamp"] == 1:
        a(f"  s_lshl_b32 s90, s{sIt}, 1\n  s_add_u32 s90, s90, 16\n  s_min_u32 m0, s90, 36")
        stamp(a, 252, "m0")
        a("  s_add_u32 m0, m0, 1")
    a("  s_barrier")
    stamp(a, 252, "m0")
    a(f"""
  ds_read_b64 {v(T+2,2)}, {v(T)}
  ds_read_b64 {v(RP[0],2)}, {v(vRd)} offset:8
  s_waitcnt lgkmcnt(1)
  v_readfirstlane_b32 s{sCin}, {v(T+2)}
  v_readfirstlane_b32 s{sFl}, {v(T+3)}
  s_cmp_gt_u32 s{sCin}, 512
  s_cselect_b32 s{sThr}, 0x80000000, 0
  s_min_u32 s{sCin}, s{sCin}, {CARCAP}
  s_cmp_gt_u32 s{sCin}, 32
  s_cselect_b32 s{sFl}, 1, s{sFl}
  s_cmp_lt_u32 s{sIt}, {OPT['itcap']}
  s_cselect_b32 s{sFl}, s{sFl}, 0
  s_cmp_eq_u32 s{sIt}, {OPT["cut"] - 100 if OPT["cut"] >= 100 else -1}
  s_cbranch_scc1 L_end
  s_cmp_eq_u32 s{sIt}, 0
  s_cbranch_scc1 L_it0
  s_cmp_lg_u32 s{sFl}, 0
  s_cbranch_scc1 L_loop""")
    a.label("L_nosig_z")

    RBv = Q
    assert vRT4 - Q + 1 >= 14
    R0 = REC[0]
    G0, G1, RR, U = R0, R0 + 4, R0 + 8, R0 + 12
    XS0, XS1, XR, AG = R0 + 16, R0 + 18, R0 + 20, R0 + 22
    MS = [R0 + 24 + 2 * i for i in range(5)]
    vMoff, vLin, vOw, vOr = vCarOff, vI6, vI1, vI4
    a(f"""
  v_and_b32 {v(T)}, 63, v0
  s_mul_i32 s{sX}, s{sW}, 3584
  s_add_u32 s{sX}, s{sX}, {RB_OFF}
  v_lshl_add_u32 {v(T+1)}, {v(T)}, 3, s{sX}
  v_lshlrev_b32 {v(vLin)}, 4, {v(T)}
  v_bfe_u32 {v(T+2)}, v0, 4, 2
  v_and_b32 {v(T+3)}, 15, v0
  v_lshlrev_b32 {v(T+2)}, 3, {v(T+2)}
  v_lshl_add_u32 {v(vMoff)}, {v(T+3)}, 5, {v(T+2)}
  s_mul_i32 s{sX}, s{sW}, 6400
  s_add_u32 s{sX}, s{sX}, s{sIns}
  s_add_u32 s{sX}, s{sX}, 15
  s_and_b32 s{sX}, s{sX}, -16
  v_add_u32 {v(vOw)}, s{sX}, {v(vMoff)}
  v_add_u32 {v(vOr)}, s{sX}, {v(vLin)}
  v_cmp_gt_u32 {s(sT,2)}, 8, {v(T+3)}""")
    for h in range(7):
        a(f"  ds_read_b64 {v(RBv+2*h,2)}, {v(T+1)} offset:{h*512}")
    fo = [("g", t - NT) for t in range(NT - D, NT)]
    def fwait(x): return len(fo) - 1 - fo.index(x)
    def s1(p):
        b = RBv + (p & ~1)
        w0, w1 = (WS0, WS1) if p % 2 == 0 else (XS0, XS1)
        a(f"""
  v_mfma_f32_16x16x16_bf16 {v(G0,4)}, {v(w0,2)}, {v(b,2)}, 0
  v_mfma_f32_16x16x16_bf16 {v(G1,4)}, {v(w1,2)}, {v(b,2)}, 0""")
    def s2(p):
        t0 = ACC[2*p]; t1 = ACC[2*p+1] if 2*p+1 < NT else ACC[2*p]
        for r in range(4): a(f"  v_mul_f32 {v(U+r)}, {v(t0+r)}, {v(G0+r)}")
        for r in range(4): a(f"  v_mul_f32_dpp {v(U+r)}, {v(t1+r)}, {v(G0+r)} row_ror:8 row_mask:0xf bank_mask:0xc")
        for r in range(4): a(f"  v_fmac_f32_dpp {v(U+r)}, {v(t0+r)}, {v(G1+r)} row_ror:8 row_mask:0xf bank_mask:0x3")
        for r in range(4): a(f"  v_fmac_f32_dpp {v(U+r)}, {v(t1+r)}, {v(G1+r)} quad_perm:[0,1,2,3] row_mask:0xf bank_mask:0xc")
        a(f"""
  v_cvt_pk_bf16_f32 {v(AG)}, {v(U)}, {v(U+1)}
  v_cvt_pk_bf16_f32 {v(AG+1)}, {v(U+2)}, {v(U+3)}
  v_mfma_f32_16x16x16_bf16 {v(RR,4)}, {v(WR if p % 2 == 0 else XR,2)}, {v(RBv + (p & ~1),2)}, 0""")
        if p + 1 < 13: s1(p + 1)
        else: a("  s_nop 0")
        a(f"  v_mfma_f32_16x16x16_bf16 {v(U,4)}, {v(WUP,2)}, {v(AG,2)}, 0")
    def s3(p):
        x = ACC[2*p]; m_ = MS[p % 5]
        a(f"""
  s_waitcnt vmcnt({fwait(("m", p))})
  v_lshlrev_b32 {v(x)}, 16, {v(m_)}
  v_and_b32 {v(x+1)}, 0xffff0000, {v(m_)}
  v_lshlrev_b32 {v(x+2)}, 16, {v(m_+1)}
  v_and_b32 {v(x+3)}, 0xffff0000, {v(m_+1)}""")
        if p == 12: a("  s_nop 2")
        a(f"""
  v_pk_fma_f32 {v(x,2)}, {v(U,2)}, {v(RR,2)}, {v(x,2)}
  v_pk_fma_f32 {v(x+2,2)}, {v(U+2,2)}, {v(RR+2,2)}, {v(x+2,2)}
  v_cvt_pk_bf16_f32 {v(x)}, {v(x)}, {v(x+1)}
  v_cvt_pk_bf16_f32 {v(x+1)}, {v(x+2)}, {v(x+3)}""")
        if p == 12: a(f"  s_mov_b64 exec, {s(sT,2)}")
        a(f"  ds_write_b64 {v(vOw)}, {v(x,2)} offset:{p*512}")
        if p == 12: a(f"  s_mov_b64 exec, -1")
        if p % 2 == 1 or p == 12:
            r = p // 2
            a(f"  ds_read_b128 {v(ACC[4*r+1 if r < 6 else 23],4)}, {v(vOr)} offset:{r*1024}")
    def s4(r):
        a(f"  buffer_store_dwordx4 {v(ACC[4*r+1 if r < 6 else 23],4)}, {v(vLin)}, {s(sOUT,4)}, s{sEb if r < 4 else sEb2} offen offset:{(r%4)*1024}{POL[OPT['opol']]}")
        fo.append(("st", r))
    xw = {}
    for t in range(NT + D + 2):
        if t == 6:
            a(f"  s_cmp_lg_u32 s{sCin}, 0\n  s_cbranch_scc1 L_x3")
            a.label("L_x3_back")
            xw[3] = len(fo) - xw[2]
        if t < NT + D: step_top(t, False)
        else: a(f"  ; ---- tail {t}\n  s_waitcnt lgkmcnt(0)")
        prio("fp", OPT["fprio"], t)
        if t in (0, 3):
            n = 1 if t == 0 else 2
            a(f"  s_cmp_lg_u32 s{sCin}, 0\n  s_cbranch_scc1 L_x{n}")
            a.label(f"L_x{n}_back")
            xw[n] = len(fo)
        if t == NT: stamp(a, 252, 4)
        if t == NT + D: stamp(a, 252, 5)
        if t == 1:
            a(f"""
  v_mov_b32 {v(XS0)}, 0
  v_mov_b32 {v(XS0+1)}, {v(WS0)}
  v_mov_b32 {v(XS1)}, 0
  v_mov_b32 {v(XS1+1)}, {v(WS1)}
  v_mov_b32 {v(XR)}, 0
  v_mov_b32 {v(XR+1)}, {v(WR)}""")
        if t == 5: s1(0)
        ts2 = {2*p+7 if p < 12 else 30: p for p in range(13)}
        if t - 2 in ts2 and (ts2[t-2] % 2 == 1): s4(ts2[t-2] // 2)
        if t - 1 in ts2: s3(ts2[t-1])
        if t in ts2: s2(ts2[t])
        if t % 2 == 1 and t // 2 < 13:
            p = t // 2
            a(f"  buffer_load_dwordx2 {v(MS[p%5],2)}, {v(vMoff)}, {s(sMW,4)}, s{sEb if p < 8 else sEb2} offen offset:{(p%8)*512}{POL[OPT['mpol']]}")
            fo.append(("m", p))
        if t < NT:
            step_main(t, fwait(("g", t - D)), False)
            fo.append(("g", t))
        elif t < NT + D:
            a(f"  s_waitcnt vmcnt({fwait(('g', t - D))})")
            cstage_m1(t % D)
            a("  s_nop 6")
            cstage_cvt()
            a("  s_waitcnt lgkmcnt(0)\n  s_nop 0")
            cstage_m2(t - D)
            a("  s_nop 3")
    a("  s_waitcnt lgkmcnt(0)")
    s4(6)
    stamp(a, 252, 6)
    if OPT["stamp"]: a("  s_waitcnt vmcnt(0)")
    stamp(a, 252, 7); stamp(a, 252, 63, "s_memrealtime")
    if OPT["stamp"] == 1: a(f"  v_writelane_b32 v252, s{sIt}, 61")
    stamp_out(a, 252, sWS, 8, STAMPOFF + 0x200000, 253)
    a.label("L_end")
    a("  s_endpgm")

    sSm, sS2 = sMk
    a.label("L_x1")
    a(f"""
  v_cmp_gt_u32 vcc, s{sCin}, {v(vSlot)}
  v_lshlrev_b32 {v(T)}, 3, {v(vSlot)}
  s_nop 0
  v_cndmask_b32 {v(T)}, {v(vOOB)}, {v(T)}, vcc
  buffer_load_dwordx2 {v(AG,2)}, {v(T)}, {s(sCAR,4)}, s{sCarR} offen sc1
  s_branch L_x1_back""")
    a.label("L_x2")
    a(f"""
  s_mul_i32 s{sX}, s{sW}, {NT}
  s_waitcnt vmcnt({xw[2] - xw[1]})
  v_min_i32 {v(U)}, {v(AG)}, {v(AG+1)}
  v_cmp_gt_i32 vcc, 0, {v(AG)}
  v_bfe_u32 {v(U+2)}, {v(U)}, 23, 8
  v_subrev_u32 {v(U+2)}, s{sX}, {v(U+2)}
  v_cndmask_b32_sdwa {v(U+1)}, {v(AG)}, {v(AG+1)}, vcc dst_sel:WORD_1 dst_unused:UNUSED_PAD src0_sel:WORD_1 src1_sel:WORD_0
  v_cmp_gt_i32 {s(sS2,2)}, 0, {v(U)}
  v_cmp_gt_u32 {s(sSm,2)}, {NT}, {v(U+2)}
  s_and_b64 vcc, {s(sSm,2)}, {s(sS2,2)}
  s_cselect_b32 s{sCin}, s{sCin}, 0
  s_cbranch_scc0 L_x2_back
  v_and_b32 {v(T)}, 0x7ffff, {v(U)}
  v_lshl_add_u32 {v(T)}, {v(T)}, 5, {v(vHalf)}
  v_mul_f32 {v(U+1)}, {v(U+1)}, {v(vFreq)}
  v_cndmask_b32 {v(T)}, {v(vOOB)}, {v(T)}, vcc
  buffer_load_dwordx4 {v(RR,4)}, {v(T)}, {s(sM,4)}, 0 offen
  v_cndmask_b32 {v(U+2)}, {v(vOOB)}, {v(U+2)}, vcc
  v_cvt_pk_bf16_f32 {v(U+1)}, 0, {v(U+1)}
  v_mul_f32 {v(U+1)}, 0.15915494, {v(U+1)}
  v_fract_f32 {v(U+1)}, {v(U+1)}
  v_cos_f32 {v(U+1)}, {v(U+1)}
  v_bfe_u32 {v(U+3)}, {v(U)}, 20, 3
  v_lshl_add_u32 {v(U+3)}, {v(U+3)}, 4, {v(vSst)}
  v_cvt_pk_bf16_f32 {v(U+1)}, {v(U+1)}, {v(U+1)}
  s_branch L_x2_back""")
    a.label("L_x3")
    a(f"""
  s_waitcnt vmcnt({xw[3]})
  v_mfma_f32_16x16x32_bf16 {v(Da,4)}, {v(RR,4)}, {v(Wa,4)}, 0
  v_mfma_f32_16x16x32_bf16 {v(Db,4)}, {v(RR,4)}, {v(Wb,4)}, 0
  s_nop 6""")
    cstage_cvt()
    for t in range(NT):
        a(f"""
  v_cmp_eq_u32 vcc, {t}, {v(U+2)}
  s_cbranch_vccz L_x3_{t}
  s_mov_b64 exec, vcc
  ds_write_b16 {v(U+3)}, {v(U+1)}
  s_mov_b64 exec, -1
  ds_read_b128 {v(Sf,4)}, {v(vSrd)}
  s_mov_b64 exec, vcc
  ds_write_b16 {v(U+3)}, {v(vZ)}
  s_mov_b64 exec, -1
  s_waitcnt lgkmcnt(0)""")
        cstage_m2(t)
        a.label(f"L_x3_{t}")
    a("  s_branch L_x3_back")
    a.label("L_it0")
    a(f"  s_cmp_lg_u32 s{sFl}, 0\n  s_cbranch_scc1 L_body0")
    for r in range(NG, NS): st(r)
    a("  s_nop 0")
    for r in range(NG, NS): zero_acc(sdt(r))
    signal_all("z0", 0)
    a("  s_branch L_nosig_z")
    for t in range(4):
        a.label(f"L_first_{t}")
        for u in range(4*t, 4*t+4): rec_load(u, T + 4 + 2 * (u & 1))
        a(f"  s_branch L_first_back_{t}")
    a.label("L_allfirst")
    a(f"  s_mov_b32 s{sY}, s{sSo}")
    for r in range(NB + N1, NS): st(r)
    a(f"  s_mov_b32 s{sSo}, s{sY}\n  s_waitcnt vmcnt(0)\n  s_barrier\n{flag3}\n  s_branch L_allfirst_back")
    for g in slowg:
        a.label(f"L_pslow_{g}")
        for u in range(4*g, 4*g+4):
            a(f"""
  s_mov_b64 exec, {s(PMK(u),2)}
  v_cmp_lt_u32 vcc, 63, {v(PRK(u))}
  s_cbranch_vccz L_pskip_{u}
  s_andn2_b64 {s(PMK(u),2)}, {s(PMK(u),2)}, vcc
  s_mov_b64 exec, vcc
  ds_add_rtn_u32 {v(T+1)}, {v(vCtlN)}, {v(vOne)}
  s_waitcnt lgkmcnt(0)
  v_lshlrev_b32 {v(T+1)}, 3, {v(T+1)}
  buffer_store_dwordx2 {v(REC[u],2)}, {v(T+1)}, {s(sCAR,4)}, s{sCarW} offen
  s_waitcnt vmcnt(0)""")
            a.label(f"L_pskip_{u}")
        a(f"  s_mov_b64 exec, -1\n  s_branch L_pback_{g}")
    for tag in ("b0", "lp"):
        a.label(f"L_slow_{tag}")
        a(f"  s_mov_b32 s{sX}, 512")
        a.label(f"L_slow_loop_{tag}")
        a(f"""
  v_add_u32 {v(T+1)}, s{sX}, {v(vCarIdx)}
  v_cmp_gt_u32 vcc, s{sCin}, {v(T+1)}
  v_lshlrev_b32 {v(T+1)}, 3, {v(T+1)}
  s_nop 0
  v_cndmask_b32 {v(T+1)}, {v(vOOB)}, {v(T+1)}, vcc
  buffer_load_dwordx2 {v(REC[16],2)}, {v(T+1)}, {s(sCAR,4)}, s{sCarR} offen sc1
  s_waitcnt vmcnt(0)""")
        ins1(16, "0", 0)
        a("  s_waitcnt lgkmcnt(0)")
        ins2(16, "sl" + tag, 0)
        a(f"""
  s_add_u32 s{sX}, s{sX}, 512
  s_cmp_lt_u32 s{sX}, s{sCin}
  s_cbranch_scc1 L_slow_loop_{tag}
  s_waitcnt vmcnt(0)
  s_branch L_slow_back_{tag}""")
    for lab, u, p in rare:
        a.label(f"L_rare_{lab}")
        a(f"""
  s_mov_b64 exec, vcc
  ds_add_rtn_u32 {v(RK[p])}, {v(vCtlN)}, {v(vOne)}
  v_mov_b32 {v(REC[u]+1)}, {v(WW[p])}
  s_waitcnt lgkmcnt(0)
  v_lshlrev_b32 {v(RK[p])}, 3, {v(RK[p])}
  buffer_store_dwordx2 {v(REC[u],2)}, {v(RK[p])}, {s(sCAR,4)}, s{sCarW} offen
  s_andn2_b64 exec, {s(sMk[p],2)}, vcc
  s_branch L_back_{lab}""")
    return NV

def kd(name, nv, ns):
    nv4 = (nv + 3) // 4 * 4
    return f""".amdhsa_kernel {name}
  .amdhsa_next_free_vgpr {nv}
  .amdhsa_next_free_sgpr {ns}
  .amdhsa_accum_offset {nv4}
  .amdhsa_group_segment_fixed_size 0
  .amdhsa_kernarg_size 112
  .amdhsa_user_sgpr_count 2
  .amdhsa_user_sgpr_kernarg_segment_ptr 1
  .amdhsa_system_sgpr_workgroup_id_x 1
  .amdhsa_float_denorm_mode_32 3
.end_amdhsa_kernel
"""

def main():
    out = sys.argv[1]
    ref = open(f"cdna_kernels/{NAME}.s.ref").read().split("\n")
    head = [l for l in ref if l.startswith(";") and "@launch" not in l and "Override" not in l and "grid=ceil" not in l]
    a = Asm()
    a(".amdgcn_target \"amdgcn-amd-amdhsa--gfx950\"\n.text")
    a(f".globl {NAME}_kernel\n.type {NAME}_kernel,@function")
    nv = gen_p2(a)
    errs = a.check()
    for e in errs: print("HAZARD", e)
    txt = "\n".join(head) + "\n"
    kern = f"kernel={NAME}_kernel " if OPT["list"] else ""
    txt += f"; @launch {kern}grid=(256,1,1) block=(512,1,1) lds={P1_LDS}\n"
    if OPT["probe"] >= 0:
        txt += "; @launch kernel=probe_kernel grid=(1,1,1) block=(64,1,1) lds=0\n"
        a(f"""
.p2align 8
probe_kernel:
  s_cmp_ge_u32 s2, 1
  s_cbranch_scc1 P_end
  s_load_dwordx2 s[4:5], s[0:1], 96
  s_waitcnt lgkmcnt(0)
  s_load_dwordx8 s[8:15], s[4:5], 0
  s_memrealtime s[16:17]
  s_waitcnt lgkmcnt(0)
  s_not_b32 s8, s8
  s_sub_u32 s20, s{8 + OPT['probe']}, s8
  s_min_u32 s20, s20, 20000
P_loop:
  s_memrealtime s[18:19]
  s_waitcnt lgkmcnt(0)
  s_sub_u32 s21, s18, s16
  s_cmp_lt_u32 s21, s20
  s_cbranch_scc1 P_loop
P_end:
  s_endpgm""")
    txt += a.text()
    txt += ".section .rodata,\"a\"\n.p2align 6\n" + kd(NAME + "_kernel", 256, 102) + (".p2align 6\n" + kd("probe_kernel", 8, 32) if OPT["probe"] >= 0 else "")
    open(out, "w").write(txt)
    print("vgprs p2:", nv, "lines:", len(a.lines), "hazards:", len(errs))

main()
```

```python
import sys, os
sys.path.insert(0, os.path.dirname(__file__))
from asmlib import Asm

NAME = "gather_scatter__molecular_angular_gemnet__graph"
E = 400000
NCH, CH = 250, 25600
EB = 1568
K = 6
MJ = 2739138
TABOFF = 0x2800000
CAROFF = 0x3000000
CARCAP = 9216
CARLIST = CARCAP * 8
STAMPOFF = 0x6000000
FLGOFF = 0x2c00000
OPT = dict(a0=2, ag=2, early=0, abl_adj=0, probe=-1, tlb=0, cut=-1, opol=1, mpol=0, tq=3, fq=10, keff=6, jid=0, fprio=0x3ffff, lprio=0x3fff, napt=8, st0=1, stp=1, rb0=2, nap=8, list=1, nb=7, n1=2, n3=4, nl0=8, smask=0x2925, arr=10, spin=60000, rec_pol=2, stamp=0, itcap=64, ld_nt=7, st_pol=0, mtouch=0, la=3, apre=2, wmain=70000, b5=0, lim=24, nb2=7, ins0=4,
           abl_mfma=0, abl_s=0, abl_cos=0, abl_g=0)
for a in sys.argv[2:]:
    k, v = a.split("=")
    assert k in OPT, k
    OPT[k] = int(v, 0)
MK = -(-(1 << 32) // OPT["wmain"])
assert (399999 * MK) >> 32 <= 5

RPOL = ('', ' nt', ' sc1', ' sc0 sc1')[OPT['rec_pol']]

POL = ('', ' nt', ' sc1', ' sc0 sc1')

def v(i, n=1):
    return f"v{i}" if n == 1 else f"v[{i}:{i+n-1}]"
def s(i, n=1):
    return f"s{i}" if n == 1 else f"s[{i}:{i+n-1}]"

def stamp(a, vreg, lane, op="s_memtime"):
    if lane == OPT["cut"]: a("  s_endpgm")
    if not OPT["stamp"]: return
    if OPT["stamp"] == 2:
        mp = {62: (0, 1), 42: (1, 0), 45: (2, 0), 1: (3, 0), 11: (4, 0), 63: (6, 0)}
        if lane == 0:
            a("  s_memtime s[88:89]\n  s_waitcnt lgkmcnt(0)\n  s_mov_b32 s91, s88")
        if lane in (11, 7):
            a(f"  s_memtime s[88:89]\n  s_waitcnt lgkmcnt(0)\n  s_sub_u32 s88, s88, s91\n  v_writelane_b32 v{vreg}, s88, {5 if lane == 11 else 7}")
        if lane not in mp: return
        l, inv = mp[lane]
        a(f"  s_memrealtime s[88:89]\n  s_waitcnt lgkmcnt(0)")
        if inv: a("  s_not_b32 s88, s88")
        a(f"  v_writelane_b32 v{vreg}, s88, {l}")
        return
    a(f"  {op} s[88:89]\n  s_waitcnt lgkmcnt(0)\n  v_writelane_b32 v{vreg}, s88, {lane}")
def stamp_out(a, vreg, wslo, nwaves, base, tmp):
    if not OPT["stamp"]: return
    if OPT["stamp"] == 2:
        back = 512
        a(f"""
  s_load_dwordx2 s[90:91], s[0:1], 96
  s_waitcnt lgkmcnt(0)
  s_add_u32 s92, s90, {back}
  s_addc_u32 s93, s91, 0
  s_mov_b32 s94, 32
  s_mov_b32 s95, 0x20000
  v_lshlrev_b32 v{tmp}, 2, v0
  buffer_atomic_umax v{vreg}, v{tmp}, s[92:95], 0 offen""")
        return
    a(f"  s_mul_i32 s88, s2, {nwaves*256}\n  s_add_u32 s88, s88, {base}")
    srd(a, 92, wslo, wslo+1, "s88", nwaves*256)
    a(f"  v_lshlrev_b32 v{tmp}, 2, v0\n  buffer_store_dword v{vreg}, v{tmp}, s[92:95], 0 offen")

def srd(a, d, lo, hi, add, size):
    if add is None:
        a(f"  s_mov_b32 s{d}, s{lo}\n  s_mov_b32 s{d+1}, s{hi}")
    else:
        a(f"  s_add_u32 s{d}, s{lo}, {add}\n  s_addc_u32 s{d+1}, s{hi}, 0")
    a(f"  s_mov_b32 s{d+2}, {size}\n  s_mov_b32 s{d+3}, 0x20000")

P1_CNT, P1_SENT, P1_TMP, P1_REC = 0, 6144, 6160, 6272
P1_LDS = P1_REC + CH * 6

TS = 264
BUFSZ = 200 * TS
S_OFF = 13 * 8192
CTL = S_OFF + 8192
RB_OFF = CTL + 128
P2_LDS = RB_OFF + 8 * 3584
D = 5
NT = 25

class RA:
    def __init__(self, start): self.n = start
    def __call__(self, k=1, al=1):
        self.n = (self.n + al - 1) // al * al
        r = self.n; self.n += k
        return r

def gen_p2(a):
    ra = RA(1)
    vSlot, vHalf, vFreq, vSst, vSrd, vI6, vI1, vI4 = (ra() for _ in range(8))
    vRd, vCntA, vOne, vOOB, vCarOff, vCarIdx, v264, vMsk, vCtlN = (ra() for _ in range(9))
    vZ = ra(2, 2)
    Q = ra(6, 4)
    sA, nA, cb, rem, rtot, vA6, vB6, vR0, vRT4 = (ra() for _ in range(9))
    vCnt = ra()
    Wa = ra(4, 4); Wb = ra(4, 4)
    RING = [ra(4, 4) for _ in range(D)]
    Da = ra(4, 4); Db = ra(4, 4); P = ra(4, 4); Sf = ra(4, 4)
    ACC = [ra(4, 4) for _ in range(NT)]
    REC = [ra(2, 4 if i == 0 else 2) for i in range(17)]
    RP = [ra(2, 2), ra(2, 2)]
    T = ra(10, 2)
    TA = [ra(), ra()]; RK = [ra(), ra()]
    WS0 = ra(2, 2); WS1 = ra(2, 2); WR = ra(2, 2); WUP = ra(2, 2)
    CC = [ra() for _ in range(D)]; SA = [ra() for _ in range(D)]
    WW = [ra(), ra()]
    assert ra.n <= 252, ra.n
    NV = ra.n
    sM = 4; sREC = 8; sCAR = 12; sTAB = 16; sOUT = 20; sDIST = 24; sMW = 28
    sJ, sW, sIt, sThr, sIns, sCarW, sCarR, sRb, sCin, sX, sFl, sEb = range(32, 44)
    sCnt = [44, 45]
    sWS = 46
    sPM = 72
    sMk = [72, 74]; sT = 76; sC10 = 78; sCl2 = 80
    sEb2 = 3
    rare = []

    O, I, R, A = 36, 88, 140, 192
    PT = 218
    _, vL8, vL4, vL128, vSix, vTwo, vFlg, vDum, vTab, vWo = range(234, 244)
    vL16 = WW[0]
    rDist, rSbf, rUp, rDown, rRbf = 86, 248, 190, 232, 217
    assert Wa == 36 and T == PT
    vSent = vCnt
    sIO, sII, sAN, sMT, sTW, sDBG = 4, 8, 12, 16, 20, 24
    sFLG, sRW = 92, 96
    sMJ, sMK, sNEB, sB5, sO4, sO2 = range(80, 86)
    sY, sSo = 100, 101
    nto, nti, nta = (" nt" if OPT["ld_nt"] >> b & 1 else "" for b in range(3))
    NR = 13
    nrec = lambda q: 4 if q < 12 else 2
    vm = []
    def ld_pair(q):
        if q < 12:
            a(f"  buffer_load_dwordx4 {v(O+4*q,4)}, {v(vL16)}, {s(sIO,4)}, s{sO4} offen{nto}")
            a(f"  buffer_load_dwordx4 {v(I+4*q,4)}, {v(vL16)}, {s(sII,4)}, s{sO4} offen{nti}")
            a(f"  s_add_u32 s{sO4}, s{sO4}, 8192")
        else:
            a(f"  buffer_load_dwordx2 {v(O+48,2)}, {v(vL8)}, {s(sIO,4)}, s{sO4} offen{nto}")
            a(f"  buffer_load_dwordx2 {v(I+48,2)}, {v(vL8)}, {s(sII,4)}, s{sO4} offen{nti}")
        vm.extend([("o", q), ("p", q)])
    def ld_ang(q):
        if q < 12:
            a(f"  buffer_load_dwordx2 {v(A+2*q,2)}, {v(vL8)}, {s(sAN,4)}, s{sO2} offen{nta}")
            a(f"  s_add_u32 s{sO2}, s{sO2}, 4096")
        else: a(f"  buffer_load_dword {v(A+24)}, {v(vL4)}, {s(sAN,4)}, s{sO2} offen{nta}")
        vm.append(("a", q))
    def wait_for(x):
        a(f"  s_waitcnt vmcnt({len(vm) - 1 - vm.index(x)})")
    def poll(tag, load, cond, nap=4):
        a(f"  s_mov_b32 s{sY}, {OPT['spin']}")
        a.label(f"L_poll_{tag}")
        a(load)
        a("  s_waitcnt vmcnt(0)")
        a(cond)
        a(f"""
  s_cbranch_vccz L_polled_{tag}
  s_sleep {nap}
  s_sub_u32 s{sY}, s{sY}, 1
  s_cbranch_scc0 L_poll_{tag}""")
        a.label(f"L_polled_{tag}")

    a(".p2align 8")
    a.label(NAME + "_kernel")
    a(f"""
  s_cmp_ge_u32 s2, 256
  s_cbranch_scc1 L_end
  s_load_dwordx16 s[48:63], s[0:1], 0
  s_load_dwordx4 s[44:47], s[0:1], 96
  s_load_dwordx8 s[64:71], s[0:1], 64
  v_lshlrev_b32 {v(vL16)}, 4, v0
  v_mov_b64 {v(PT,2)}, 0
  v_mov_b64 {v(PT+2,2)}, 0
  s_min_u32 s{sY}, s2, {NCH-1}
  s_mul_i32 s{sX}, s{sY}, {CH*4}
  s_cmp_lt_u32 s2, {NCH}
  s_cselect_b32 s{sFl}, {CH*2}, 0
  s_lshl_b32 s{sCin}, s{sFl}, 1
  s_mov_b32 s{sO4}, 0
  s_mov_b32 s{sO2}, 0
  ds_write_b128 {v(vL16)}, {v(PT,4)}
  v_lshrrev_b32 {v(T+8)}, 6, v0
  s_and_b32 s{sJ}, s2, 7
  s_lshl_b32 s{sJ}, s{sJ}, 5
  s_lshr_b32 s{sEb}, s2, 3
  s_add_u32 s{sJ}, s{sJ}, s{sEb}
  v_readfirstlane_b32 s{sW}, {v(T+8)}
  v_and_b32 {v(T+7)}, 63, v0
  v_lshlrev_b32 {v(T+6)}, 3, {v(T+7)}
  v_lshlrev_b32 {v(T+7)}, 2, {v(T+7)}
  s_mul_i32 s{sEb}, s{sJ}, {EB*2}
  s_mul_i32 s{sRb}, s{sW}, 400
  s_add_u32 s{sEb}, s{sEb}, s{sRb}
  s_waitcnt lgkmcnt(0)""")
    if OPT["stamp"] == 2: a("  v_mov_b32 v252, 0\n  s_nop 1")
    stamp(a, 252, 0); stamp(a, 252, 62, "s_memrealtime")
    srd(a, sIO, 52, 53, f"s{sX}", f"s{sCin}")
    srd(a, sII, 50, 51, f"s{sX}", f"s{sCin}")
    ld_pair(0)
    srd(a, 28, 54, 55, None, E * 2)
    a(f"""
  buffer_load_dwordx2 {v(rDist,2)}, {v(T+6)}, s[28:31], s{sEb} offen
  global_load_dwordx2 {v(rSbf,2)}, {v(T+6)}, s[64:65]
  global_load_dwordx2 {v(rUp,2)}, {v(T+6)}, s[68:69]
  global_load_dwordx2 {v(rDown,2)}, {v(T+6)}, s[66:67]
  global_load_dword {v(rRbf)}, {v(T+7)}, s[62:63]""")
    vm.extend([("s", i) for i in range(5)])
    ld_pair(1)
    a("  s_barrier")
    LA = OPT["la"]
    for q in range(2, LA): ld_pair(q)
    a(f"  s_lshr_b32 s{sX}, s{sX}, 1")
    srd(a, sAN, 56, 57, f"s{sX}", f"s{sFl}")
    srd(a, sMT, 48, 49, f"s{sX}", f"s{sFl}")
    a(f"  s_mul_i32 s{sX}, s{sY}, {CH*6}\n  s_mul_i32 s{sFl}, s{sFl}, 3")
    srd(a, sRW, sWS, sWS+1, f"s{sX}", f"s{sFl}")
    srd(a, sTW, sWS, sWS+1, TABOFF, 256 * 8192)
    srd(a, sFLG, sWS, sWS+1, FLGOFF, 8192)
    srd(a, sDBG, 44, 45, None, 256)
    a(f"""
  s_lshl_b32 s{sX}, s2, 2
  v_lshl_add_u32 {v(vFlg)}, v0, 10, s{sX}
  s_cmp_lt_u32 s2, {NCH}
  s_cselect_b32 s{sX}, 0, 4
  v_mov_b32 {v(vDum)}, s{sX}
  buffer_store_dword {v(vDum)}, {v(vFlg)}, {s(sFLG,4)}, 0 offen sc1
  s_lshl_b32 s{sX}, s{sX}, 20
  v_or_b32 {v(vFlg)}, s{sX}, {v(vFlg)}
  s_load_dword s{sCin}, s[60:61], 0
  s_load_dwordx4 s[56:59], s[58:59], 0
  v_lshlrev_b32 {v(vL8)}, 3, v0
  v_lshlrev_b32 {v(vL4)}, 2, v0
  v_lshlrev_b32 {v(vL128)}, 7, v0
  v_mov_b32 {v(vSix)}, 6
  v_mov_b32 {v(vTwo)}, 2
  s_mov_b32 s{sMJ}, {MJ}
  s_mov_b32 s{sMK}, {MK}
  s_mov_b32 s{sNEB}, {-EB & 0xffffffff}
  s_mov_b32 s{sB5}, {OPT['b5']}
  v_lshrrev_b32 {v(T)}, 6, v0
  v_and_b32 {v(T+2)}, 15, v0
  v_bfe_u32 {v(T+3)}, v0, 5, 1
  v_lshlrev_b32 {v(vHalf)}, 4, {v(T+3)}
  v_lshl_add_u32 {v(cb)}, {v(T)}, 5, {v(vHalf)}
  v_add_u32 {v(cb)}, {v(cb)}, {v(T+2)}
  v_lshlrev_b32 {v(vTab)}, 13, {v(cb)}
  v_and_b32 {v(T+1)}, 63, v0
  v_and_b32 {v(vSlot)}, 31, v0
  v_mov_b64 {v(vZ,2)}, 0
  v_mov_b32 {v(v264)}, {TS}
  v_mov_b32 {v(vCtlN)}, {CTL}
  s_lshl_b32 s{sX}, s{sW}, 10
  s_add_u32 s{sX}, s{sX}, {S_OFF}
  v_lshl_add_u32 {v(vSrd)}, {v(T+1)}, 4, s{sX}
  v_bfe_u32 {v(T+6)}, v0, 2, 2
  v_lshlrev_b32 {v(vSst)}, 8, {v(T+6)}
  v_lshl_add_u32 {v(vSst)}, {v(T+3)}, 7, {v(vSst)}
  v_bfe_u32 {v(T+6)}, v0, 4, 1
  v_lshl_add_u32 {v(vSst)}, {v(T+6)}, 3, {v(vSst)}
  v_and_b32 {v(T+6)}, 3, v0
  v_lshl_add_u32 {v(vSst)}, {v(T+6)}, 1, {v(vSst)}
  v_add_u32 {v(vSst)}, s{sX}, {v(vSst)}
  v_mov_b32 {v(vOne)}, 1
  v_mov_b32 {v(vOOB)}, 0x80000000
  v_mov_b32 {v(vMsk)}, 0x7ffffffc
  v_mul_u32_u24 {v(vI6)}, 6, {v(vSlot)}
  v_add_u32 {v(vI1)}, 1, {v(vSlot)}
  v_lshlrev_b32 {v(vI4)}, 2, {v(vI1)}
  v_mov_b32 {v(T+6)}, {CH}
  v_mul_u32_u24 {v(cb)}, {v(cb)}, {v(T+6)}
  v_mov_b32 {v(sA)}, 0
  v_mov_b32 {v(nA)}, 0
  v_mov_b32 {v(rtot)}, 0
  s_mul_i32 s{sX}, s{sW}, {NT*TS}
  s_add_u32 s{sX}, s{sX}, {BUFSZ}
  v_lshl_add_u32 {v(vRd)}, {v(vSlot)}, 3, s{sX}""")
    if OPT["abl_adj"]:
        a(f"""
  v_bfe_u32 {v(T+6)}, v0, 1, 5
  v_lshl_add_u32 {v(vRd)}, {v(T+6)}, 3, s{sX}
  v_and_b32 {v(vHalf)}, 1, v0
  v_lshlrev_b32 {v(vHalf)}, 4, {v(vHalf)}""")
    a(f"""
  v_min_u32 {v(T+6)}, {NT-1}, {v(T+1)}
  v_mad_u32_u24 {v(vCntA)}, {v(T+6)}, {v(v264)}, s{sX}
  v_sub_u32 {v(vCarIdx)}, 511, v0
  v_lshlrev_b32 {v(vCarOff)}, 3, {v(vCarIdx)}
  v_cmp_eq_u32 vcc, 1, {v(T+3)}
  s_waitcnt lgkmcnt(0)
  s_lshl_b32 s{sX}, s{sCin}, 16
  s_and_b32 s{sCin}, s{sCin}, 0xffff0000
  v_mov_b32 {v(vFreq)}, s{sX}
  v_mov_b32 {v(T+6)}, s{sCin}
  v_cndmask_b32 {v(vFreq)}, {v(vFreq)}, {v(T+6)}, vcc
  s_mov_b32 s{sIt}, -1
  s_mov_b32 s{sIns}, 0
  s_mov_b32 s{sCarW}, 0
  s_mov_b32 s{sCarR}, {CARLIST}
  s_mul_i32 s{sEb}, s{sJ}, {EB}
  s_mul_i32 s{sX}, s{sW}, 200
  s_add_u32 s{sFl}, s{sEb}, {EB}
  s_add_u32 s{sEb}, s{sEb}, s{sX}
  s_add_u32 s{sRb}, s{sEb}, 200
  s_min_u32 s{sRb}, s{sRb}, s{sFl}
  s_min_u32 s{sRb}, s{sRb}, {E}
  s_lshl_b32 s{sRb}, s{sRb}, 5
  s_lshl_b32 s{sEb}, s{sEb}, 5
  s_add_u32 s{sEb2}, s{sEb}, 4096""")

    if OPT["tlb"]:
        sh = OPT["tlb"]
        srd(a, 28, sWS, sWS+1, None, FLGOFF + 8192)
        a(f"  v_lshlrev_b32 v249, {sh}, v0\n  buffer_load_dword v248, v249, s[28:31], 0 offen")
        srd(a, 28, 48, 49, None, E * 32)
        a(f"  buffer_load_dword v248, v249, s[28:31], 0 offen")
        srd(a, 28, 70, 71, None, E * 32)
        a(f"  buffer_load_dword v248, v249, s[28:31], 0 offen")
        vm.extend([("tlb", i) for i in range(3)])
    a(f"""
  s_cmp_ge_u32 s2, {NCH}
  s_cbranch_scc1 L_nochunk1""")
    vm.append(("flg", 0))
    arrive = f"""
  s_and_b32 s{sY}, s2, 15
  s_lshl_b32 s{sY}, s{sY}, 4
  v_lshlrev_b32 {v(PT)}, 8, v0
  buffer_atomic_add {v(vOne)}, {v(PT)}, {s(sDBG,4)}, s{sY} offen"""
    def hist(idx):
        if OPT["b5"]:
            for x, i in enumerate(idx): a(f"  v_cmp_le_u32 {s(72+2*x,2)}, s{sB5}, {v(I+i)}")
        for x, i in enumerate(idx): a(f"  v_mul_hi_u32_u24 {v(PT+x)}, s{sMJ}, {v(O+i)}")
        for x, i in enumerate(idx): a(f"  v_mul_hi_u32_u24 {v(PT+4+x)}, s{sMK}, {v(I+i)}")
        if OPT["b5"]:
            for x, i in enumerate(idx): a(f"  v_cndmask_b32 {v(PT+4+x)}, {v(PT+4+x)}, 5, {s(72+2*x,2)}")
        for x, i in enumerate(idx): a(f"  v_mad_i32_i24 {v(PT+8+x)}, {v(PT+x)}, s{sNEB}, {v(O+i)}")
        for x, i in enumerate(idx): a(f"  v_lshl_add_u32 {v(O+i)}, {v(PT+4+x)}, 8, {v(PT+x)}")
        for x, i in enumerate(idx): a(f"  v_lshlrev_b32 {v(O+i)}, 2, {v(O+i)}")
        for x, i in enumerate(idx): a(f"  ds_add_rtn_u32 {v(R+i)}, {v(O+i)}, {v(vOne)}")
        for x, i in enumerate(idx): a(f"  v_lshl_or_b32 {v(I+i)}, {v(PT+8+x)}, 20, {v(I+i)}")
        for x, i in enumerate(idx): a(f"  v_or_b32 {v(I+i)}, 0x80000000, {v(I+i)}")
    na = 0
    for q in range(NR):
        wait_for(("p", q))
        if q == 0: stamp(a, 252, 40)
        if q == LA:
            a(arrive); vm.append(("arr", 0))
        if q + LA < NR: ld_pair(q + LA)
        else:
            for _ in range(2):
                if na < OPT["apre"]: ld_ang(na); na += 1
        hist(list(range(4*q, 4*q + nrec(q))))
    stamp(a, 252, 41)
    X = v(PT+4)
    a(f"""
  s_waitcnt lgkmcnt(0)
  s_barrier
  s_cmp_ge_u32 s{sW}, {K}
  s_cbranch_scc1 L_bin_s1
  ds_read_b128 {v(PT,4)}, {v(vL16)}
  v_and_b32 {v(PT+8)}, 63, v0
  s_waitcnt lgkmcnt(0)
  v_add_u32 {v(PT+1)}, {v(PT)}, {v(PT+1)}
  v_add_u32 {v(PT+2)}, {v(PT+1)}, {v(PT+2)}
  v_add_u32 {v(PT+3)}, {v(PT+2)}, {v(PT+3)}
  v_mov_b32 {v(PT+4)}, {v(PT+3)}""")
    for sh in (1, 2, 4, 8):
        a(f"  s_nop 1\n  v_add_u32_dpp {X}, {X}, {X} row_shr:{sh} row_mask:0xf bank_mask:0xf bound_ctrl:0")
    a(f"  s_nop 1\n  v_add_u32_dpp {X}, {X}, {X} row_bcast:15 row_mask:0xa bank_mask:0xf")
    a(f"  s_nop 1\n  v_add_u32_dpp {X}, {X}, {X} row_bcast:31 row_mask:0xc bank_mask:0xf")
    a(f"""
  v_cmp_lt_u32 vcc, s{sW}, {v(PT+8)}
  v_readlane_b32 s{sY}, {X}, 63
  v_lshlrev_b32 {v(PT+9)}, 2, {v(PT+8)}
  s_and_b32 vcc_lo, vcc_lo, 0xff
  s_mov_b32 vcc_hi, 0
  v_mov_b32 {v(PT+10)}, s{sY}
  s_mov_b64 exec, vcc
  ds_add_u32 {v(PT+9)}, {v(PT+10)} offset:{P1_TMP}
  s_mov_b64 exec, -1
  s_waitcnt lgkmcnt(0)""")
    a.label("L_bin_s1")
    a(f"""
  s_barrier
  s_cmp_ge_u32 s{sW}, {K}
  s_cbranch_scc1 L_bin_s2
  s_lshl_b32 s{sY}, s{sW}, 2
  v_mov_b32 {v(PT+9)}, s{sY}
  ds_read_b32 {v(PT+9)}, {v(PT+9)} offset:{P1_TMP}
  v_sub_u32 {X}, {X}, {v(PT+3)}
  v_mov_b32 {v(PT+10)}, {CH}
  s_waitcnt lgkmcnt(0)
  v_add_u32 {v(PT+4)}, {X}, {v(PT+9)}
  v_add_u32 {v(PT+5)}, {v(PT+4)}, {v(PT)}
  v_add_u32 {v(PT+6)}, {v(PT+4)}, {v(PT+1)}
  v_add_u32 {v(PT+7)}, {v(PT+4)}, {v(PT+2)}
  ds_write_b128 {v(vL16)}, {v(PT+4,4)}
  ds_write_b32 {v(vZ)}, {v(PT+10)} offset:{P1_SENT}
  s_waitcnt lgkmcnt(0)""")
    a.label("L_bin_s2")
    a("  s_barrier")
    stamp(a, 252, 42)
    a(f"""
  v_lshrrev_b32 {v(PT+12)}, 1, v0
  v_and_b32 {v(PT+13)}, 1, v0
  v_lshlrev_b32 {v(PT+12)}, 2, {v(PT+12)}
  v_lshl_add_u32 {v(PT+13)}, {v(PT+13)}, 12, {v(PT+12)}
  s_lshl_b32 s{sY}, s2, 13""")
    for k in range(4):
        a(f"  ds_read_b32 {v(PT+k)}, {v(PT+13)} offset:{k*1024}")
        a(f"  ds_read_b32 {v(PT+6+k)}, {v(PT+13)} offset:{k*1024+4}")
    a("  s_waitcnt lgkmcnt(0)")
    for k in range(4): a(f"  v_sub_u32 {v(PT+6+k)}, {v(PT+6+k)}, {v(PT+k)}")
    for k in range(4): a(f"  v_lshl_or_b32 {v(PT+k)}, {v(PT+6+k)}, 16, {v(PT+k)}")
    a(f"  buffer_store_dwordx4 {v(PT,4)}, {v(vL16)}, {s(sTW,4)}, s{sY} offen sc1")
    vm.append(("tab", 0))
    mark = len(vm)
    for _ in range(OPT["a0"]):
        if na < NR: ld_ang(na); na += 1
    NB = OPT["nb"]
    vDa, vDv, vRa = 245, 246, 247
    lda = f"  buffer_load_dword {v(vDv)}, {v(vDa)}, {s(sDBG,4)}, 0 offen sc1"
    cda = f"  v_cmp_gt_u32 vcc, 16, {v(vDv)}"
    ada = f"""
  s_lshl_b32 s{sX}, s{sW}, 16
  v_and_b32 {v(vDa)}, 15, v0
  v_lshl_add_u32 {v(vDa)}, {v(vDa)}, 4, s{sX}"""
    NRD = 15
    for i in range(NRD): a(f"  ds_read_b32 {v(O+i)}, {v(O+i)}")
    a(f"  s_mov_b32 s{sB5}, {NB*8192 + 4}\n  s_mov_b32 s{sSo}, 0")
    a(ada)
    a(f"  v_add_u32 {v(vRa)}, {P1_REC}, {v(vL16)}")
    for g in range(10):
        idx = list(range(5*g, 5*g+5))
        for _ in range(OPT["ag"]):
            if na < NR: ld_ang(na); na += 1
        a(f"  s_waitcnt lgkmcnt({min(10, 45 - 5*g)})")
        for i in idx:
            if i + NRD < 50: a(f"  ds_read_b32 {v(O+i+NRD)}, {v(O+i+NRD)}")
        for i in idx: a(f"  v_add_u32 {v(O+i)}, {v(O+i)}, {v(R+i)}")
        for i in idx: a(f"  v_mad_u32_u24 {v(O+i)}, {v(O+i)}, {v(vSix)}, {v(vTwo)}")
        for x, i in enumerate(idx): a(f"  v_and_b32 {v(PT+x)}, 2, {v(O+i)}")
        for i in idx: a(f"  v_and_b32 {v(R+i)}, -4, {v(O+i)}")
        for x, i in enumerate(idx): a(f"  v_lshl_add_u32 {v(O+i)}, {v(PT+x)}, 1, {v(O+i)}")
    assert na == NR
    if OPT["mtouch"]:
        a(f"  buffer_load_dword v244, {v(vL128)}, {s(sMT,4)}, 0 offen"); vm.append(("m", 0))
    def put(q, cmp):
        idx = list(range(4*q, 4*q + nrec(q)))
        for x, i in enumerate(idx): a(f"  v_cmp_{cmp}_u32 {s(72+2*x,2)}, s{sB5}, {v(R+i)}")
        for x, i in enumerate(idx):
            op = "ds_write_b16_d16_hi" if (i & 1) else "ds_write_b16"
            a(f"""
  s_mov_b64 exec, {s(72+2*x,2)}
  ds_write_b32 {v(R+i)}, {v(I+i)} offset:{P1_REC}
  {op} {v(O+i)}, {v(A + i//2)} offset:{P1_REC-2}""")
        a("  s_mov_b64 exec, -1")
    for q in range(NR):
        wait_for(("a", q))
        for r in range(nrec(q) // 2): a(f"  v_and_b32 {v(A+2*q+r)}, 0x7fff7fff, {v(A+2*q+r)}")
        if q == OPT["tq"]:
            assert q >= OPT["apre"]
            a("  s_barrier")
            a(lda); vm.append(("lda", 0))
            a(f"  buffer_store_dword {v(vOne)}, {v(vFlg)}, {s(sFLG,4)}, 0 offen sc1"); vm.append(("flg", 1))
        put(q, "gt")
    a(f"  ds_read_b32 {v(vWo)}, {v(vZ)} offset:2048")
    a("  s_waitcnt lgkmcnt(0)\n  s_barrier")
    stamp(a, 252, 43)
    a(f"  v_readfirstlane_b32 s{sO2}, {v(vWo)}")
    free = [PT, PT + 4, PT + 8, O, I, R, O + 4, I + 4, R + 4]
    def erd(r): a(f"  ds_read_b128 {v(free[r],4)}, {v(vRa)} offset:{r*8192}")
    def est(r):
        a(f"  buffer_store_dwordx4 {v(free[r],4)}, {v(vL16)}, {s(sRW,4)}, s{sSo} offen sc1\n  s_add_u32 s{sSo}, s{sSo}, 8192")
        vm.append(("st", r))
    assert NB <= 8
    for r in range(3): erd(r)
    for r in range(3):
        a(f"  s_waitcnt lgkmcnt({2 - r})")
        est(r)
    put(0, "le"); put(1, "le")
    for r in range(3, NB): erd(r)
    put(2, "le")
    a("  s_waitcnt lgkmcnt(0)")
    todo = list(range(3, NB))
    fad = f"""
  v_and_b32 {v(RK[0])}, 63, v0
  v_lshlrev_b32 {v(RK[0])}, 4, {v(RK[0])}
  s_and_b32 s{sCin}, s2, 7
  s_lshl_b32 s{sCin}, s{sCin}, 10"""
    for q in range(3, NR):
        if todo: est(todo.pop(0))
        if q == OPT["fq"]:
            assert q >= 8 and Da == O + 28 and not todo
            a(fad)
            a(f"  s_mov_b32 s{sO4}, 0\n  s_cmp_lg_u32 s{sW}, 0\n  s_cbranch_scc1 L_nofl")
            wait_for(("lda", 0))
            a(cda)
            a(f"  s_cbranch_vccnz L_nofl\n  s_mov_b32 s{sO4}, 1")
            a(f"  buffer_load_dwordx4 {v(Da,4)}, {v(RK[0])}, {s(sFLG,4)}, s{sCin} offen sc1")
            a.label("L_nofl")
        put(q, "le")
    assert not todo
    stamp(a, 252, 44)
    FP = Da
    def flag_load(dst, off): return f"  buffer_load_dwordx4 {v(dst,4)}, {v(off)}, {s(sFLG,4)}, s{sCin if dst == FP else sX} offen sc1"
    def flag_cond(dst, stage): return f"""
  v_min3_u32 {v(dst)}, {v(dst)}, {v(dst+1)}, {v(dst+2)}
  v_min_u32 {v(dst)}, {v(dst)}, {v(dst+3)}
  v_cmp_gt_u32 vcc, {stage}, {v(dst)}"""
    a(f"  s_waitcnt vmcnt(0)\n  s_cmp_lg_u32 s{sW}, 0\n  s_cbranch_scc1 L_polled_t")
    a(f"  s_cmp_eq_u32 s{sO4}, 0\n  s_cbranch_scc1 L_wait_a")
    a(flag_cond(FP, 1))
    a("  s_cbranch_vccz L_polled_t\n  s_branch L_polled_a")
    a.label("L_nochunk1")
    if 40 <= OPT["cut"] <= 44: a("  s_endpgm")
    a("  s_waitcnt vmcnt(0)")
    a(arrive)
    a(ada)
    a(fad)
    a(f"  s_mov_b32 s{sO2}, 0\n  s_cmp_lg_u32 s{sW}, 0\n  s_cbranch_scc1 L_polled_t")
    a.label("L_wait_a")
    poll("a", lda, cda, 64)
    poll("t", flag_load(FP, RK[0]), flag_cond(FP, 1), OPT["napt"])
    a(f"""
  s_lshl_b32 s{sX}, s{sJ}, 5
  s_add_u32 s{sX}, s{sX}, {TABOFF}""")
    srd(a, sTAB, sWS, sWS+1, f"s{sX}", (NCH - 1) * 8192 + 32)

    def state_update():
        a(f"""
  v_sub_u32 {v(rem)}, {v(rem)}, {v(rtot)}
  v_lshrrev_b32 {v(T)}, 16, {v(Q)}
  v_and_b32 {v(T+1)}, 0xffff, {v(Q)}
  v_min_u32 {v(vR0)}, 32, {v(nA)}
  v_cmp_ge_u32 vcc, 32, {v(nA)}
  v_sub_u32 {v(T+2)}, 32, {v(vR0)}
  v_add_u32 {v(vB6)}, {v(cb)}, {v(T+1)}
  v_min_u32 {v(T+2)}, {v(T)}, {v(T+2)}
  v_mul_u32_u24 {v(vB6)}, 6, {v(vB6)}
  v_add_u32 {v(rtot)}, {v(vR0)}, {v(T+2)}
  v_mad_i32_i24 {v(vB6)}, {v(vR0)}, -6, {v(vB6)}
  v_lshlrev_b32 {v(vRT4)}, 2, {v(rtot)}
  v_add_u32 {v(vA6)}, {v(cb)}, {v(sA)}
  v_mul_u32_u24 {v(vA6)}, 6, {v(vA6)}""")
    def state_update2():
        a(f"""
  v_add_u32 {v(sA)}, 32, {v(sA)}
  v_subrev_u32 {v(nA)}, 32, {v(nA)}
  v_add_u32 {v(T+1)}, {v(T+1)}, {v(T+2)}
  v_sub_u32 {v(T)}, {v(T)}, {v(T+2)}
  v_cndmask_b32 {v(sA)}, {v(sA)}, {v(T+1)}, vcc
  v_cndmask_b32 {v(nA)}, {v(nA)}, {v(T)}, vcc""")
        for i in range(K - 1):
            a(f"  v_cndmask_b32 {v(Q+i)}, {v(Q+i)}, {v(Q+i+1)}, vcc")
        a(f"  v_cndmask_b32 {v(Q+K-1)}, {v(Q+K-1)}, {v(vZ)}, vcc")
    def set_flag(tag):
        a(f"""
  v_cmp_lt_u32 vcc, 0, {v(rem)}
  s_cbranch_vccz L_noflag_{tag}
  ds_write_b32 {v(vCtlN)}, {v(vOne)} offset:4""")
        a.label(f"L_noflag_{tag}")

    bc = lambda u: f"row_newbcast:{u} row_mask:0xf bank_mask:0xf"
    def rec_load(u, t0):
        a(f"""
  v_sub_co_u32_dpp {v(t0)}, vcc, {v(vR0)}, {v(vI1)} {bc(u)}
  v_add_u32_dpp {v(t0)}, {v(vA6)}, {v(vI6)} {bc(u)}
  v_add_u32_dpp {v(t0+1)}, {v(vB6)}, {v(vI6)} {bc(u)}
  v_cndmask_b32 {v(t0)}, {v(t0)}, {v(t0+1)}, vcc
  v_sub_u32_dpp {v(t0+1)}, {v(vRT4)}, {v(vI4)} {bc(u)}
  v_bfi_b32 {v(t0)}, {v(vMsk)}, {v(t0)}, {v(t0+1)}
  buffer_load_dwordx2 {v(REC[u],2)}, {v(t0)}, {s(sREC,4)}, 0 offen{RPOL}""")

    SDWA = "dst_sel:WORD_1 dst_unused:UNUSED_PAD src0_sel:WORD_1 src1_sel:WORD_0"
    def ins1(u, thr, p):
        ta, rk, mk, w = TA[p], RK[p], sMk[p], WW[p]
        a(f"""
  v_cmp_gt_i32 vcc, 0, {v(REC[u])}
  v_min_i32 {v(w)}, {v(REC[u])}, {v(REC[u]+1)}
  v_cmp_gt_i32 {s(mk,2)}, {thr}, {v(w)}
  v_bfe_u32 {v(ta)}, {v(w)}, 23, 8
  v_cndmask_b32_sdwa {v(REC[u])}, {v(REC[u])}, {v(REC[u]+1)}, vcc {SDWA}
  v_mad_u32_u24 {v(ta)}, {v(ta)}, {v(v264)}, s{sIns}
  s_mov_b64 exec, {s(mk,2)}
  ds_add_rtn_u32 {v(rk)}, {v(ta)}, {v(vOne)}
  s_mov_b64 exec, -1""")

    def ins2(u, tag, p):
        ta, rk, mk, w = TA[p], RK[p], sMk[p], WW[p]
        lab = f"{tag}_{u}"
        a(f"""
  s_mov_b64 exec, {s(mk,2)}
  v_cmp_lt_u32 vcc, 31, {v(rk)}
  v_lshl_add_u32 {v(ta)}, {v(rk)}, 3, {v(ta)}
  s_cbranch_vccnz L_rare_{lab}""")
        a.label(f"L_back_{lab}")
        a(f"""
  ds_write2_b32 {v(ta)}, {v(REC[u])}, {v(w)} offset0:2 offset1:3
  s_mov_b64 exec, -1""")
        rare.append((lab, u, p))

    a(f"""
  v_add_u32 {v(PT+2)}, {P1_REC}, {v(vL16)}
  v_add_u32 {v(PT+3)}, {P1_REC + 8*8192}, {v(vL16)}
  v_add_u32 {v(PT+4)}, {P1_REC + 16*8192}, {v(vL16)}
  s_mov_b32 s{sSo}, {NB*8192}
  v_mov_b32 {v(vDum)}, 3
  s_waitcnt lgkmcnt(0)
  s_barrier""")
    stamp(a, 252, 45)
    NS = 19
    sdt = lambda r: (20 + r) % 25 if r < 8 else r + 1
    SD = lambda r: ACC[sdt(r)]
    gv = []
    def gwait(x, extra=""): a(f"  s_waitcnt vmcnt({len(gv) - 1 - gv.index(x)}){extra}")
    def rd(r): a(f"  ds_read_b128 {v(SD(r),4)}, {v(PT+2 + r//8)} offset:{(r%8)*8192}")
    def st(r, lst=None):
        a(f"  buffer_store_dwordx4 {v(SD(r),4)}, {v(vL16)}, {s(sRW,4)}, s{sSo} offen sc1\n  s_add_u32 s{sSo}, s{sSo}, 8192")
        if lst is not None: lst.append(("st", r))
    zero_acc = lambda t: a(f"  v_mov_b64 {v(ACC[t],2)}, 0\n  v_mov_b64 {v(ACC[t]+2,2)}, 0")
    flag3 = f"  buffer_store_dword {v(vDum)}, {v(vFlg)}, {s(sFLG,4)}, 0 offen sc1"
    N1, N3 = OPT["n1"], OPT["n3"]
    a(f"  s_cmp_gt_u32 s{sO2}, {NB*8192 // 6 - 2}\n  s_cbranch_scc1 L_noearly")
    a(flag3)
    a.label("L_noearly")
    a(f"""
  buffer_load_dwordx4 {v(Q,4)}, {v(vTab)}, {s(sTAB,4)}, 0 offen sc1
  buffer_load_dwordx2 {v(Q+4,2)}, {v(vTab)}, {s(sTAB,4)}, 0 offen offset:16 sc1""")
    gv.extend([("tab", 0), ("tab", 1)])
    for r in range(NB, NS): rd(r)
    nxt = NB + N1
    for r in range(NB, nxt):
        a(f"  s_waitcnt lgkmcnt({NS - 1 - r})")
        st(r, gv)
    a(f"""
  s_waitcnt lgkmcnt(0)
  s_cmp_gt_u32 s{sO2}, {NB*8192 // 6 - 2}
  s_cbranch_scc1 L_allfirst
  s_barrier""")
    a.label("L_allfirst_back")
    stamp(a, 252, 46)
    pend = list(range(nxt, NS))
    keep = OPT["n3"]
    slot = [0]
    def st1(n=1):
        on = OPT["smask"] >> slot[0] & 1 or n > 1
        slot[0] += 1
        for _ in range(n):
            if on and len(pend) > keep: st(pend.pop(0), gv)
    st1()
    DI = [RING[0] + p for p in range(14)]
    H = Da
    a(f"""
  s_mul_i32 s{sX}, s{sW}, 3584
  s_add_u32 s{sX}, s{sX}, {RB_OFF}
  v_and_b32 {v(T+8)}, 63, v0
  v_lshl_add_u32 {v(T+9)}, {v(T+8)}, 3, s{sX}
  v_lshl_add_u32 {v(T+8)}, {v(T+8)}, 2, s{sX}
  ds_write_b64 {v(T+9)}, {v(rDist,2)}
  ds_write_b64 {v(T+9)}, {v(rSbf,2)} offset:512
  ds_write_b64 {v(T+9)}, {v(rUp,2)} offset:1024
  ds_write_b32 {v(T+8)}, {v(rRbf)} offset:1536
  ds_write_b64 {v(T+9)}, {v(rDown,2)} offset:2048
  v_and_b32 {v(T+4)}, 15, v0
  v_bfe_u32 {v(T+8)}, v0, 4, 2
  v_lshl_add_u32 {v(T+4)}, {v(T+4)}, 1, s{sX}
  v_lshl_add_u32 {v(T+5)}, {v(T+8)}, 7, {v(T+4)}
  v_lshl_add_u32 {v(T+6)}, {v(T+8)}, 6, {v(T+4)}
  v_lshl_add_u32 {v(T+7)}, {v(vHalf)}, 4, {v(T+4)}
  ds_read_u16 {v(WS0)}, {v(T+5)} offset:512
  ds_read_u16 {v(WS1)}, {v(T+5)} offset:{512+32}
  ds_read_u16 {v(WS0+1)}, {v(T+5)} offset:{512+64}
  ds_read_u16 {v(WS1+1)}, {v(T+5)} offset:{512+96}
  ds_read_u16 {v(WUP)}, {v(T+5)} offset:1024
  ds_read_u16 {v(H+10)}, {v(T+5)} offset:{1024+32}
  ds_read_u16 {v(WUP+1)}, {v(T+5)} offset:{1024+64}
  ds_read_u16 {v(H+11)}, {v(T+5)} offset:{1024+96}
  ds_read_u16 {v(WR)}, {v(T+6)} offset:1536
  ds_read_u16 {v(WR+1)}, {v(T+6)} offset:{1536+32}""")
    st1()
    for r in range(8): a(f"  ds_read_u16 {v(Wa+r)}, {v(T+7)} offset:{2048+r*32}")
    for p in range(13): a(f"  ds_read_u16 {v(DI[p])}, {v(T+4)} offset:{p*32}")
    st1()
    a(f"""
  s_mul_i32 s{sFl}, s{sJ}, {2*CARLIST}
  s_add_u32 s{sFl}, s{sFl}, {CAROFF}""")
    srd(a, sREC, sWS, sWS+1, None, NCH * CH * 6)
    srd(a, sM, 48, 49, None, E * 32)
    srd(a, sCAR, sWS, sWS+1, f"s{sFl}", 2 * CARLIST)
    srd(a, sOUT, 70, 71, None, f"s{sRb}")
    srd(a, sMW, 48, 49, None, f"s{sRb}")
    for t in list(range(3, 9)) + [sdt(r) for r in range(NB)]: zero_acc(t)
    st1()
    a(f"""
  v_mov_b32 {v(vSent)}, 0x7ffff
  v_mov_b32 {v(T)}, 0
  v_mov_b32 {v(T+1)}, {v(vSent)}
  v_mov_b32 {v(T+2)}, 0
  v_mov_b32 {v(T+3)}, {v(vSent)}
  v_add_u32 {v(T+6)}, {7*8192}, {v(vL16)}""")
    for r in range(13):
        a(f"  ds_write_b128 {v(vL16 if r < 7 else T+6)}, {v(T,4)} offset:{(r%7)*8192}")
        if r % 5 == 4: st1()
    a(f"""
  v_and_b32 {v(T+6)}, 15, v0
  v_lshl_add_u32 {v(T+6)}, {v(T+6)}, 2, {v(vCtlN)}
  ds_write_b32 {v(T+6)}, {v(vZ)}
  ds_write_b128 {v(vSrd)}, {v(ACC[3],4)}""")
    for q in range(D): a(f"  v_mov_b32 {v(SA[q])}, {v(vSst)}\n  v_mov_b32 {v(CC[q])}, 0")
    gwait(("tab", 1))
    a(f"  v_lshrrev_b32 {v(rem)}, 16, {v(Q)}")
    for i in range(1, K):
        a(f"  v_lshrrev_b32 {v(T+4)}, 16, {v(Q+i)}\n  v_add_u32 {v(rem)}, {v(rem)}, {v(T+4)}")
    state_update()
    for u in range(0, 16, 2):
        a(f"""
  v_add_u32_dpp {v(REC[u])}, {v(vB6)}, {v(vI6)} {bc(u)}
  v_sub_u32_dpp {v(REC[u]+1)}, {v(vRT4)}, {v(vI4)} {bc(u)}
  v_add_u32_dpp {v(REC[u+1])}, {v(vB6)}, {v(vI6)} {bc(u+1)}
  v_sub_u32_dpp {v(REC[u+1]+1)}, {v(vRT4)}, {v(vI4)} {bc(u+1)}
  v_bfi_b32 {v(REC[u])}, {v(vMsk)}, {v(REC[u])}, {v(REC[u]+1)}
  v_bfi_b32 {v(REC[u+1])}, {v(vMsk)}, {v(REC[u+1])}, {v(REC[u+1]+1)}""")
        if u % 4 == 2: st1()
    state_update2()
    state_update()
    state_update2()
    st1()
    CEN = H + 8
    a(f"""
  v_mov_b32 {v(CEN+1)}, s56
  v_cmp_eq_u32 vcc, 1, {v(T+8)}
  v_mov_b32 {v(CEN)}, s57
  v_cmp_eq_u32 {s(sT,2)}, 2, {v(T+8)}
  v_cndmask_b32 {v(CEN+1)}, {v(CEN+1)}, {v(CEN)}, vcc
  v_mov_b32 {v(CEN)}, s58
  v_cmp_eq_u32 vcc, 3, {v(T+8)}
  v_cndmask_b32 {v(CEN+1)}, {v(CEN+1)}, {v(CEN)}, {s(sT,2)}
  v_mov_b32 {v(CEN)}, s59
  v_cndmask_b32 {v(CEN+1)}, {v(CEN+1)}, {v(CEN)}, vcc
  v_lshlrev_b32 {v(CEN)}, 16, {v(CEN+1)}
  v_and_b32 {v(CEN+1)}, 0xffff0000, {v(CEN+1)}
  s_mov_b32 s{sC10}, 0xc1200000
  s_mov_b32 s{sC10+1}, 0xc1200000
  s_mov_b32 s{sCl2}, 0x3fb8aa3b
  s_mov_b32 s{sCl2+1}, 0x3fb8aa3b
  v_and_b32 {v(T+8)}, 1, {v(T+8)}
  v_cmp_eq_u32 vcc, 1, {v(T+8)}
  s_waitcnt lgkmcnt(0)
  v_lshl_or_b32 {v(WS0)}, {v(WS0+1)}, 16, {v(WS0)}
  v_lshl_or_b32 {v(WS1)}, {v(WS1+1)}, 16, {v(WS1)}
  v_lshl_or_b32 {v(WUP)}, {v(H+10)}, 16, {v(WUP)}
  v_lshl_or_b32 {v(WUP+1)}, {v(H+11)}, 16, {v(WUP+1)}
  v_lshl_or_b32 {v(WR)}, {v(WR+1)}, 16, {v(WR)}
  v_mov_b32 {v(WS0+1)}, 0
  v_mov_b32 {v(WS1+1)}, 0
  v_mov_b32 {v(WR+1)}, 0
  v_mov_b32 {v(DI[13])}, 0""")
    for r in range(4): a(f"  v_lshl_or_b32 {v(H+r)}, {v(Wa+2*r+1)}, 16, {v(Wa+2*r)}")
    for r in range(4):
        a(f"  v_cndmask_b32 {v(Wa+r)}, {v(H+r)}, {v(vZ)}, vcc")
        a(f"  v_cndmask_b32 {v(Wb+r)}, {v(vZ)}, {v(H+r)}, vcc")
    for ps in ([0,1,2,3], [4,5,6,7], [8,9,10], [11,12]):
        p0 = ps[0]
        tt = {p: H + 2 * (p - p0) for p in ps}
        def rnd():
            for p in ps: a(f"  v_cvt_pk_bf16_f32 {v(tt[p])}, 0, {v(tt[p])}\n  v_cvt_pk_bf16_f32 {v(tt[p]+1)}, 0, {v(tt[p]+1)}")
        for p in ps: a(f"  v_lshlrev_b32 {v(tt[p])}, 16, {v(DI[p])}")
        for p in ps: a(f"  v_pk_add_f32 {v(tt[p],2)}, {v(tt[p],2)}, {v(CEN,2)} op_sel_hi:[0,1] neg_lo:[0,1] neg_hi:[0,1]")
        rnd()
        for p in ps: a(f"  v_pk_mul_f32 {v(tt[p],2)}, {v(tt[p],2)}, {v(tt[p],2)}")
        rnd()
        for p in ps: a(f"  v_pk_mul_f32 {v(tt[p],2)}, {v(tt[p],2)}, {s(sC10,2)}")
        rnd()
        for p in ps: a(f"  v_pk_mul_f32 {v(tt[p],2)}, {v(tt[p],2)}, {s(sCl2,2)}")
        for p in ps: a(f"  v_exp_f32 {v(tt[p])}, {v(tt[p])}\n  v_exp_f32 {v(tt[p]+1)}, {v(tt[p]+1)}")
        for p in ps: a(f"  v_cvt_pk_bf16_f32 {v(DI[p])}, {v(tt[p])}, {v(tt[p]+1)}")
        st1()
    st1(NS)
    print("store slots", slot[0])
    for h in range(7):
        a(f"  ds_write_b64 {v(T+9)}, {v(DI[2*h],2)} offset:{h*512}")
    nx3 = NS - len(pend)
    for r in range(NB, nx3): zero_acc(sdt(r))
    for q in range(D):
        a(f"  v_mov_b64 {v(RING[q],2)}, 0\n  v_mov_b64 {v(RING[q]+2,2)}, 0")
    stamp(a, 252, 47)
    a(f"  s_cmp_lg_u32 s{sW}, 0\n  s_cbranch_scc1 L_polled_b")
    poll("b", flag_load(FP, RK[0]), flag_cond(FP, 2), OPT["nap"])
    a("  s_waitcnt lgkmcnt(0)")
    a("  s_barrier")
    stamp(a, 252, 1)
    def pro_ld(us):
        for u in us:
            a(f"  buffer_load_dwordx2 {v(REC[u],2)}, {v(REC[u])}, {s(sREC,4)}, 0 offen{RPOL}")
            gv.append(("rec", u))
    NL0 = OPT["nl0"]
    pro_ld(range(NL0))
    NG = NS
    stamp(a, 252, 12)
    set_flag("pro")
    stamp(a, 252, 13)
    PTA = lambda u: Da + u
    PRK = lambda u: RING[0] + u
    PMK = lambda u: sPM + 2 * (u % 8)
    slowg = []
    def pro_ins1(g):
        us = range(4*g, 4*g+4)
        gwait(("rec", 4*g+3))
        for u in us:
            a(f"""
  v_cmp_gt_i32 vcc, 0, {v(REC[u])}
  v_min_i32 {v(PTA(u))}, {v(REC[u])}, {v(REC[u]+1)}
  v_cmp_gt_i32 {s(PMK(u),2)}, 0, {v(PTA(u))}
  v_cndmask_b32_sdwa {v(REC[u])}, {v(REC[u])}, {v(REC[u]+1)}, vcc {SDWA}
  v_mov_b32 {v(REC[u]+1)}, {v(PTA(u))}""")
        for u in us: a(f"  v_bfe_u32 {v(PTA(u))}, {v(PTA(u))}, 23, 8")
        for u in us: a(f"  v_mul_u32_u24 {v(PTA(u))}, {v(PTA(u))}, {v(v264)}")
        for u in us: a(f"  s_mov_b64 exec, {s(PMK(u),2)}\n  ds_add_rtn_u32 {v(PRK(u))}, {v(PTA(u))}, {v(vOne)}")
        a("  s_mov_b64 exec, -1")
    def pro_ins2(g):
        us = list(range(4*g, 4*g+4))
        a(f"""
  v_max3_u32 {v(T)}, {v(PRK(us[0]))}, {v(PRK(us[1]))}, {v(PRK(us[2]))}
  v_max_u32 {v(T)}, {v(T)}, {v(PRK(us[3]))}
  v_cmp_lt_u32 vcc, 31, {v(T)}
  s_cbranch_vccz L_pfast_{g}
  v_cmp_lt_u32 vcc, 63, {v(T)}
  s_cbranch_vccnz L_pslow_{g}""")
        a.label(f"L_pback_{g}")
        for x, u in enumerate(us): a(f"  v_subrev_u32 {v(T+4+x)}, 31, {v(PRK(u))}")
        for x, u in enumerate(us): a(f"  s_mov_b64 exec, {s(PMK(u),2)}\n  ds_max_i32 {v(PTA(u))}, {v(T+4+x)} offset:{BUFSZ}")
        a(f"  s_mov_b64 exec, -1\n  ds_write_b32 {v(vCtlN)}, {v(vOne)} offset:4")
        for x, u in enumerate(us): a(f"  v_lshrrev_b32 {v(T+4+x)}, 5, {v(PRK(u))}")
        for x, u in enumerate(us): a(f"  v_mad_u32_u24 {v(PTA(u))}, {v(T+4+x)}, s{sThr}, {v(PTA(u))}")
        a.label(f"L_pfast_{g}")
        for u in us: a(f"  v_lshl_add_u32 {v(PTA(u))}, {v(PRK(u))}, 3, {v(PTA(u))}")
        for u in us: a(f"  s_mov_b64 exec, {s(PMK(u),2)}\n  ds_write_b64 {v(PTA(u))}, {v(REC[u],2)} offset:8")
        a("  s_mov_b64 exec, -1")
        slowg.append(g)
    a(f"  s_mov_b32 s{sThr}, {BUFSZ - 256}")
    left = list(range(nx3, NS))
    per = (len(left) + 3) // 4
    def some():
        for _ in range(per):
            if left: st(left.pop(0), gv)
    pro_ins1(0)
    stamp(a, 252, 3)
    pro_ld(range(NL0, 16))
    pro_ins1(1)
    some()
    a("  s_waitcnt lgkmcnt(0)")
    pro_ins2(0); some(); pro_ins1(2); pro_ins2(1); some(); pro_ins1(3); some()
    stamp(a, 252, 8)
    a("  s_nop 0")
    for r in range(nx3, NS): zero_acc(sdt(r))
    a("  s_waitcnt lgkmcnt(0)")
    pro_ins2(2); pro_ins2(3)
    stamp(a, 252, 11)
    a("  s_branch L_turn2")
    def signal_all(tag, n):
        a(f"""
  v_mov_b32 {v(T+4)}, {CTL + 32}
  s_waitcnt vmcnt({n})
  s_mov_b64 exec, 1
  ds_add_rtn_u32 {v(T+5)}, {v(T+4)}, {v(vOne)}
  s_mov_b64 exec, -1
  v_and_b32 {v(T+6)}, 63, v0
  s_lshl_b32 s{sX}, s2, 2
  v_lshl_add_u32 {v(T+6)}, {v(T+6)}, 10, s{sX}
  v_mov_b32 {v(T+7)}, 4
  s_waitcnt lgkmcnt(0)
  v_readfirstlane_b32 s{sX}, {v(T+5)}
  s_cmp_lg_u32 s{sX}, 7
  s_cbranch_scc1 L_nosig_{tag}
  buffer_store_dword {v(T+7)}, {v(T+6)}, {s(sFLG,4)}, 0 offen sc1""")
        a.label(f"L_nosig_{tag}")

    INS0 = OPT["ins0"]
    def cstage_head(q):
        if OPT["abl_s"]: return
        a(f"""
  ds_write_b16 {v(SA[q])}, {v(CC[q])}
  ds_read_b128 {v(Sf,4)}, {v(vSrd)}
  ds_write_b16 {v(SA[q])}, {v(vZ)}""")
    def cstage_m1(q):
        if OPT["abl_mfma"]: return
        a(f"""
  v_mfma_f32_16x16x32_bf16 {v(Da,4)}, {v(RING[q],4)}, {v(Wa,4)}, 0
  v_mfma_f32_16x16x32_bf16 {v(Db,4)}, {v(RING[q],4)}, {v(Wb,4)}, 0""")
    def cstage_cvt():
        if OPT["abl_mfma"]: return
        a(f"""
  v_cvt_pk_bf16_f32 {v(P)}, {v(Da)}, {v(Da+1)}
  v_cvt_pk_bf16_f32 {v(P+1)}, {v(Da+2)}, {v(Da+3)}
  v_cvt_pk_bf16_f32 {v(P+2)}, {v(Db)}, {v(Db+1)}
  v_cvt_pk_bf16_f32 {v(P+3)}, {v(Db+2)}, {v(Db+3)}""")
    def cstage_m2(tc):
        if OPT["abl_mfma"]: return
        a(f"  v_mfma_f32_16x16x32_bf16 {v(ACC[tc],4)}, {v(P,4)}, {v(Sf,4)}, {v(ACC[tc],4)}")
    def step_top(t, reset=True):
        a(f"  ; ---- step {t}")
        a("  s_waitcnt lgkmcnt(0)")
        cstage_head(t % D)
        if t < NT - 1:
            a(f"  ds_read_b64 {v(RP[(t+1)&1],2)}, {v(vRd)} offset:{(t+1)*TS+8}")
        if reset and t < NT:
            a(f"  ds_write_b32 {v(vRd)}, {v(vSent)} offset:{t*TS+12}")
    def step_main(t, n, reset=True):
        q = t % D; tc = (t - D) % NT
        rp = RP[t & 1]
        a(f"  s_waitcnt vmcnt({n})")
        cstage_m1(q)
        off, af, e = T + 1, T + 2, T + 3
        a(f"""
  v_and_b32 {v(off)}, {v(vSent)}, {v(rp+1)}
  v_mul_f32 {v(af)}, {v(rp)}, {v(vFreq)}
  v_lshl_add_u32 {v(off)}, {v(off)}, 5, {v(vHalf)}
  v_cvt_pk_bf16_f32 {v(af)}, 0, {v(af)}
  buffer_load_dwordx4 {v(RING[q],4)}, {v(vOOB if OPT["abl_g"] else off)}, {s(sM,4)}, 0 offen
  v_mul_f32 {v(af)}, 0.15915494, {v(af)}
  v_bfe_u32 {v(e)}, {v(rp+1)}, 20, 3
  v_fract_f32 {v(af)}, {v(af)}""")
        cstage_cvt()
        a(f"""
  v_cos_f32 {v(af)}, {v(af)}
  v_lshl_add_u32 {v(SA[q])}, {v(e)}, 4, {v(vSst)}
  s_waitcnt lgkmcnt({(2 if t < NT-1 else 1) + (1 if reset else 0)})""")
        cstage_m2(tc)
        a(f"  v_cvt_pk_bf16_f32 {v(CC[q])}, {v(af)}, {v(af)}")

    order = []
    for t in range(NT):
        if t == 0: order.append(("car", 16))
        u2 = t - INS0 - 1
        EA = OPT["early"]
        if EA: order += [("rec", u) for u in range(EA * t, min(16, EA * t + EA))]
        elif 0 <= u2 < 16: order.append(("rec", u2))
        order.append(("W", t))
        order.append(("g", t))
    tail = [x for x in order[order.index(("g", NT - D)):] if x[0] != "W"]
    assert tail == [("g", t) for t in range(NT - D, NT)], tail
    def younger(target, at):
        n = len(order); i = order.index(target); cnt = 0
        j = (i + 1) % n
        while j != at:
            if order[j][0] != "W": cnt += 1
            j = (j + 1) % n
        return cnt
    first = []
    for x in order:
        if x[0] == "W" and x[1] < 4: first += [("f", 4 * x[1] + i) for i in range(4)]
        first.append(x)
    def younger_first(u, t):
        i = first.index(("f", u)); j = first.index(("W", t))
        return sum(1 for x in first[i+1:j] if x[0] != "W")
    RBH = 1
    def prio(tag, mask, t):
        cur = mask >> t & 1; prev = (mask >> (t - 1) & 1) if t else 0
        if cur and not prev:
            a(f"  s_cmp_lt_u32 s{sW}, 4\n  s_cbranch_scc1 L_{tag}prio{t}\n  s_setprio 1")
            a.label(f"L_{tag}prio{t}")
        if prev and not cur: a("  s_setprio 0")
    assert not OPT["lprio"] >> (NT - 1)
    def step0_extra():
        a(f"""
  v_cmp_gt_u32 vcc, s{sCin}, {v(vCarIdx)}
  s_add_u32 s{sX}, s{sIt}, 2
  s_and_b32 s{sX}, s{sX}, 3
  s_lshl_b32 s{sX}, s{sX}, 3
  s_add_u32 s{sX}, s{sX}, {CTL}
  v_mov_b32 {v(T+1)}, s{sX}
  ds_write_b64 {v(T+1)}, {v(vZ,2)}
  ds_write_b32 {v(vCntA)}, {v(vZ)}
  v_cndmask_b32 {v(T)}, {v(vOOB)}, {v(vCarOff)}, vcc
  buffer_load_dwordx2 {v(REC[16],2)}, {v(T)}, {s(sCAR,4)}, s{sCarR} offen sc1""")
    def state_step(tag):
        a(f"  s_cmp_lg_u32 s{sThr}, 0\n  s_cbranch_scc1 L_nostate_{tag}")
        if tag == "b0":
            QL = Q + OPT['keff'] - 3
            a(f"""
  v_lshrrev_b32 {v(T)}, 16, {v(QL)}
  v_cmp_eq_u32 vcc, 0, {v(nA)}
  v_subrev_u32 {v(T+1)}, {OPT['lim']}, {v(T)}
  v_and_b32 {v(T+2)}, 0xffff, {v(QL)}
  v_max_i32 {v(T+1)}, 0, {v(T+1)}
  v_cndmask_b32 {v(T+1)}, {v(vZ)}, {v(T+1)}, vcc
  v_add_u32 {v(T+2)}, {v(T+2)}, {v(T)}
  v_sub_u32 {v(T+2)}, {v(T+2)}, {v(T+1)}
  v_cndmask_b32 {v(sA)}, {v(sA)}, {v(T+2)}, vcc
  v_add_u32 {v(nA)}, {v(nA)}, {v(T+1)}
  v_lshlrev_b32 {v(T+1)}, 16, {v(T+1)}
  v_sub_u32 {v(QL)}, {v(QL)}, {v(T+1)}""")
        state_update(); state_update2()
        a.label(f"L_nostate_{tag}")
        set_flag(tag)
    a(".p2align 6")
    a.label("L_body0")
    lo = []
    lw = lambda x: len(lo) - 1 - lo.index(x)
    ST0, STP = OPT["st0"], OPT["stp"]
    late = list(range(NG, NS))
    tsig = None
    FC = REC[0]
    FO = REC[2]
    for t in range(NT):
        step_top(t)
        prio("b0", OPT["lprio"], t)
        if t == 0:
            step0_extra(); lo.append(("rec", 16))
        if t < 4:
            for u in range(4*t, 4*t+4):
                rec_load(u, T + 4 + 2 * (u & 1)); lo.append(("rec", u))
        if t == INS0: state_step("b0")
        zs = []
        if t >= ST0:
            for _ in range(STP):
                if late:
                    r = late.pop(0); st(r, lo); zs.append(r)
                    assert sdt(r) + D > t
                    if not late: tsig = t + D + 1
        u1 = t - INS0; u2 = u1 - 1
        if 0 <= u2 < 17: ins2(u2, "b0", u2 & 1)
        if 0 <= u1 < 17:
            a(f"  s_waitcnt vmcnt({lw(('rec', u1))})")
            ins1(u1, f"s{sThr}" if u1 < 16 else "0", u1 & 1)
        else: a("  s_nop 0")
        for r in zs: zero_acc(sdt(r))
        if t == tsig or (NG == NS and t == 2):
            signal_all("b0", lw(("st", NS - 1)) if NG < NS else len(lo))
        if t == INS0 + 18:
            a(f"  s_cmp_gt_u32 s{sCin}, 512\n  s_cbranch_scc1 L_slow_b0")
            a.label("L_slow_back_b0")
        if t == NT - 3:
            a(f"""
  s_cmp_lg_u32 s{sW}, 0
  s_cbranch_scc1 L_noldc
  v_lshlrev_b32 {v(FO)}, 4, v0
  s_and_b32 s{sX}, s2, 7
  s_lshl_b32 s{sX}, s{sX}, 10""")
            a(flag_load(FC, FO))
            a.label("L_noldc")
        step_main(t, lw(("g", t - D)) if t >= D else 62)
        lo.append(("g", t))
    assert not late and (tsig is None or tsig < NT - 3)
    a(f"""
  s_waitcnt vmcnt(3)
  s_cmp_lg_u32 s{sW}, 0
  s_cbranch_scc1 L_turn2""")
    assert NT - (INS0 + 17) >= 3
    a(flag_cond(FC, 4))
    a(f"""
  s_cbranch_vccz L_turn2
  s_and_b32 s{sX}, s2, 7
  s_lshl_b32 s{sX}, s{sX}, 10""")
    poll("c", flag_load(FC, FO), flag_cond(FC, 4), OPT["nap"])
    a("  s_branch L_turn2")

    a(".p2align 6")
    a.label("L_loop")
    for t in range(NT):
        step_top(t)
        if t == 0: step0_extra()
        prio("lp", OPT["lprio"], t)
        if EA:
            for u in range(EA * t, min(16, EA * t + EA)): rec_load(u, T + 4 + 2 * (u & 1))
        if t < 4:
            if not EA: a(f"  s_cmp_eq_u32 s{sIt}, 1\n  s_cbranch_scc1 L_first_{t}")
            a.label(f"L_first_back_{t}")
        if t == INS0: state_step("lp")
        u1 = t - INS0; u2 = u1 - 1
        if 0 <= u2 < 17:
            ins2(u2, "lp", u2 & 1)
            if u2 < 16 and not EA: rec_load(u2, T + 4)
        if 0 <= u1 < 17:
            pos = order.index(("W", t))
            if EA and u1 < 16: n = younger(("rec", u1), pos)
            elif u1 < 16: n = min(younger(("rec", u1), pos), younger_first(u1, t))
            else: n = younger(("car", 16), pos)
            a(f"  s_waitcnt vmcnt({min(n, 62)})")
            ins1(u1, f"s{sThr}" if u1 < 16 else "0", u1 & 1)
        if t == INS0 + 18:
            a(f"  s_cmp_gt_u32 s{sCin}, 512\n  s_cbranch_scc1 L_slow_lp")
            a.label("L_slow_back_lp")
        step_main(t, younger(("g", (t - D) % NT), order.index(("W", t))))
    assert INS0 >= 4 and RBH < NT
    a(f"  s_waitcnt vmcnt({NT - (INS0 + 17)})")
    a.label("L_turn2")
    a(f"""
  v_mov_b32 {v(T)}, {v(vCtlN)}
  s_add_u32 s{sIt}, s{sIt}, 1
  s_add_u32 s{sX}, s{sIt}, 1
  s_and_b32 s{sX}, s{sX}, 3
  s_lshl_b32 s{sX}, s{sX}, 3
  s_add_u32 s{sX}, s{sX}, {CTL}
  v_mov_b32 {v(vCtlN)}, s{sX}
  s_sub_u32 s{sX}, s{sIns}, {BUFSZ}
  s_add_u32 s{sX}, s{sX}, s{sIns}
  v_add_u32 {v(vRd)}, s{sX}, {v(vRd)}
  v_add_u32 {v(vCntA)}, s{sX}, {v(vCntA)}
  s_sub_u32 s{sIns}, {BUFSZ}, s{sIns}
  s_mov_b32 s{sCarR}, s{sCarW}
  s_sub_u32 s{sCarW}, {CARLIST}, s{sCarW}
  s_waitcnt lgkmcnt(0)""")
    if OPT["stamp"] == 1:
        a(f"  s_lshl_b32 s90, s{sIt}, 1\n  s_add_u32 s90, s90, 16\n  s_min_u32 m0, s90, 36")
        stamp(a, 252, "m0")
        a("  s_add_u32 m0, m0, 1")
    a("  s_barrier")
    stamp(a, 252, "m0")
    a(f"""
  ds_read_b64 {v(T+2,2)}, {v(T)}
  ds_read_b64 {v(RP[0],2)}, {v(vRd)} offset:8
  s_waitcnt lgkmcnt(1)
  v_readfirstlane_b32 s{sCin}, {v(T+2)}
  v_readfirstlane_b32 s{sFl}, {v(T+3)}
  s_cmp_gt_u32 s{sCin}, 512
  s_cselect_b32 s{sThr}, 0x80000000, 0
  s_min_u32 s{sCin}, s{sCin}, {CARCAP}
  s_cmp_gt_u32 s{sCin}, 32
  s_cselect_b32 s{sFl}, 1, s{sFl}
  s_cmp_lt_u32 s{sIt}, {OPT['itcap']}
  s_cselect_b32 s{sFl}, s{sFl}, 0
  s_cmp_eq_u32 s{sIt}, {OPT["cut"] - 100 if OPT["cut"] >= 100 else -1}
  s_cbranch_scc1 L_end
  s_cmp_eq_u32 s{sIt}, 0
  s_cbranch_scc1 L_it0
  s_cmp_lg_u32 s{sFl}, 0
  s_cbranch_scc1 L_loop""")
    a.label("L_nosig_z")

    RBv = Q
    assert vRT4 - Q + 1 >= 14
    R0 = REC[0]
    G0, G1, RR, U = R0, R0 + 4, R0 + 8, R0 + 12
    XS0, XS1, XR, AG = R0 + 16, R0 + 18, R0 + 20, R0 + 22
    MS = [R0 + 24 + 2 * i for i in range(5)]
    vMoff, vLin, vOw, vOr = vCarOff, vI6, vI1, vI4
    a(f"""
  v_and_b32 {v(T)}, 63, v0
  s_mul_i32 s{sX}, s{sW}, 3584
  s_add_u32 s{sX}, s{sX}, {RB_OFF}
  v_lshl_add_u32 {v(T+1)}, {v(T)}, 3, s{sX}
  v_lshlrev_b32 {v(vLin)}, 4, {v(T)}
  v_bfe_u32 {v(T+2)}, v0, 4, 2
  v_and_b32 {v(T+3)}, 15, v0
  v_lshlrev_b32 {v(T+2)}, 3, {v(T+2)}
  v_lshl_add_u32 {v(vMoff)}, {v(T+3)}, 5, {v(T+2)}
  s_mul_i32 s{sX}, s{sW}, 6400
  s_add_u32 s{sX}, s{sX}, s{sIns}
  s_add_u32 s{sX}, s{sX}, 15
  s_and_b32 s{sX}, s{sX}, -16
  v_add_u32 {v(vOw)}, s{sX}, {v(vMoff)}
  v_add_u32 {v(vOr)}, s{sX}, {v(vLin)}
  v_cmp_gt_u32 {s(sT,2)}, 8, {v(T+3)}""")
    for h in range(7):
        a(f"  ds_read_b64 {v(RBv+2*h,2)}, {v(T+1)} offset:{h*512}")
    fo = [("g", t - NT) for t in range(NT - D, NT)]
    def fwait(x): return len(fo) - 1 - fo.index(x)
    def s1(p):
        b = RBv + (p & ~1)
        w0, w1 = (WS0, WS1) if p % 2 == 0 else (XS0, XS1)
        a(f"""
  v_mfma_f32_16x16x16_bf16 {v(G0,4)}, {v(w0,2)}, {v(b,2)}, 0
  v_mfma_f32_16x16x16_bf16 {v(G1,4)}, {v(w1,2)}, {v(b,2)}, 0""")
    def s2(p):
        t0 = ACC[2*p]; t1 = ACC[2*p+1] if 2*p+1 < NT else ACC[2*p]
        for r in range(4): a(f"  v_mul_f32 {v(U+r)}, {v(t0+r)}, {v(G0+r)}")
        for r in range(4): a(f"  v_mul_f32_dpp {v(U+r)}, {v(t1+r)}, {v(G0+r)} row_ror:8 row_mask:0xf bank_mask:0xc")
        for r in range(4): a(f"  v_fmac_f32_dpp {v(U+r)}, {v(t0+r)}, {v(G1+r)} row_ror:8 row_mask:0xf bank_mask:0x3")
        for r in range(4): a(f"  v_fmac_f32_dpp {v(U+r)}, {v(t1+r)}, {v(G1+r)} quad_perm:[0,1,2,3] row_mask:0xf bank_mask:0xc")
        a(f"""
  v_cvt_pk_bf16_f32 {v(AG)}, {v(U)}, {v(U+1)}
  v_cvt_pk_bf16_f32 {v(AG+1)}, {v(U+2)}, {v(U+3)}
  v_mfma_f32_16x16x16_bf16 {v(RR,4)}, {v(WR if p % 2 == 0 else XR,2)}, {v(RBv + (p & ~1),2)}, 0""")
        if p + 1 < 13: s1(p + 1)
        else: a("  s_nop 0")
        a(f"  v_mfma_f32_16x16x16_bf16 {v(U,4)}, {v(WUP,2)}, {v(AG,2)}, 0")
    def s3(p):
        x = ACC[2*p]; m_ = MS[p % 5]
        a(f"""
  s_waitcnt vmcnt({fwait(("m", p))})
  v_lshlrev_b32 {v(x)}, 16, {v(m_)}
  v_and_b32 {v(x+1)}, 0xffff0000, {v(m_)}
  v_lshlrev_b32 {v(x+2)}, 16, {v(m_+1)}
  v_and_b32 {v(x+3)}, 0xffff0000, {v(m_+1)}""")
        if p == 12: a("  s_nop 2")
        a(f"""
  v_pk_fma_f32 {v(x,2)}, {v(U,2)}, {v(RR,2)}, {v(x,2)}
  v_pk_fma_f32 {v(x+2,2)}, {v(U+2,2)}, {v(RR+2,2)}, {v(x+2,2)}
  v_cvt_pk_bf16_f32 {v(x)}, {v(x)}, {v(x+1)}
  v_cvt_pk_bf16_f32 {v(x+1)}, {v(x+2)}, {v(x+3)}""")
        if p == 12: a(f"  s_mov_b64 exec, {s(sT,2)}")
        a(f"  ds_write_b64 {v(vOw)}, {v(x,2)} offset:{p*512}")
        if p == 12: a(f"  s_mov_b64 exec, -1")
        if p % 2 == 1 or p == 12:
            r = p // 2
            a(f"  ds_read_b128 {v(ACC[4*r+1 if r < 6 else 23],4)}, {v(vOr)} offset:{r*1024}")
    def s4(r):
        a(f"  buffer_store_dwordx4 {v(ACC[4*r+1 if r < 6 else 23],4)}, {v(vLin)}, {s(sOUT,4)}, s{sEb if r < 4 else sEb2} offen offset:{(r%4)*1024}{POL[OPT['opol']]}")
        fo.append(("st", r))
    xw = {}
    for t in range(NT + D + 2):
        if t == 6:
            a(f"  s_cmp_lg_u32 s{sCin}, 0\n  s_cbranch_scc1 L_x3")
            a.label("L_x3_back")
            xw[3] = len(fo) - xw[2]
        if t < NT + D: step_top(t, False)
        else: a(f"  ; ---- tail {t}\n  s_waitcnt lgkmcnt(0)")
        prio("fp", OPT["fprio"], t)
        if t in (0, 3):
            n = 1 if t == 0 else 2
            a(f"  s_cmp_lg_u32 s{sCin}, 0\n  s_cbranch_scc1 L_x{n}")
            a.label(f"L_x{n}_back")
            xw[n] = len(fo)
        if t == NT: stamp(a, 252, 4)
        if t == NT + D: stamp(a, 252, 5)
        if t == 1:
            a(f"""
  v_mov_b32 {v(XS0)}, 0
  v_mov_b32 {v(XS0+1)}, {v(WS0)}
  v_mov_b32 {v(XS1)}, 0
  v_mov_b32 {v(XS1+1)}, {v(WS1)}
  v_mov_b32 {v(XR)}, 0
  v_mov_b32 {v(XR+1)}, {v(WR)}""")
        if t == 5: s1(0)
        ts2 = {2*p+7 if p < 12 else 30: p for p in range(13)}
        if t - 2 in ts2 and (ts2[t-2] % 2 == 1): s4(ts2[t-2] // 2)
        if t - 1 in ts2: s3(ts2[t-1])
        if t in ts2: s2(ts2[t])
        if t % 2 == 1 and t // 2 < 13:
            p = t // 2
            a(f"  buffer_load_dwordx2 {v(MS[p%5],2)}, {v(vMoff)}, {s(sMW,4)}, s{sEb if p < 8 else sEb2} offen offset:{(p%8)*512}{POL[OPT['mpol']]}")
            fo.append(("m", p))
        if t < NT:
            step_main(t, fwait(("g", t - D)), False)
            fo.append(("g", t))
        elif t < NT + D:
            a(f"  s_waitcnt vmcnt({fwait(('g', t - D))})")
            cstage_m1(t % D)
            a("  s_nop 6")
            cstage_cvt()
            a("  s_waitcnt lgkmcnt(0)\n  s_nop 0")
            cstage_m2(t - D)
            a("  s_nop 3")
    a("  s_waitcnt lgkmcnt(0)")
    s4(6)
    stamp(a, 252, 6)
    if OPT["stamp"]: a("  s_waitcnt vmcnt(0)")
    stamp(a, 252, 7); stamp(a, 252, 63, "s_memrealtime")
    if OPT["stamp"] == 1: a(f"  v_writelane_b32 v252, s{sIt}, 61")
    stamp_out(a, 252, sWS, 8, STAMPOFF + 0x200000, 253)
    a.label("L_end")
    a("  s_endpgm")

    sSm, sS2 = sMk
    a.label("L_x1")
    a(f"""
  v_cmp_gt_u32 vcc, s{sCin}, {v(vSlot)}
  v_lshlrev_b32 {v(T)}, 3, {v(vSlot)}
  s_nop 0
  v_cndmask_b32 {v(T)}, {v(vOOB)}, {v(T)}, vcc
  buffer_load_dwordx2 {v(AG,2)}, {v(T)}, {s(sCAR,4)}, s{sCarR} offen sc1
  s_branch L_x1_back""")
    a.label("L_x2")
    a(f"""
  s_mul_i32 s{sX}, s{sW}, {NT}
  s_waitcnt vmcnt({xw[2] - xw[1]})
  v_min_i32 {v(U)}, {v(AG)}, {v(AG+1)}
  v_cmp_gt_i32 vcc, 0, {v(AG)}
  v_bfe_u32 {v(U+2)}, {v(U)}, 23, 8
  v_subrev_u32 {v(U+2)}, s{sX}, {v(U+2)}
  v_cndmask_b32_sdwa {v(U+1)}, {v(AG)}, {v(AG+1)}, vcc dst_sel:WORD_1 dst_unused:UNUSED_PAD src0_sel:WORD_1 src1_sel:WORD_0
  v_cmp_gt_i32 {s(sS2,2)}, 0, {v(U)}
  v_cmp_gt_u32 {s(sSm,2)}, {NT}, {v(U+2)}
  s_and_b64 vcc, {s(sSm,2)}, {s(sS2,2)}
  s_cselect_b32 s{sCin}, s{sCin}, 0
  s_cbranch_scc0 L_x2_back
  v_and_b32 {v(T)}, 0x7ffff, {v(U)}
  v_lshl_add_u32 {v(T)}, {v(T)}, 5, {v(vHalf)}
  v_mul_f32 {v(U+1)}, {v(U+1)}, {v(vFreq)}
  v_cndmask_b32 {v(T)}, {v(vOOB)}, {v(T)}, vcc
  buffer_load_dwordx4 {v(RR,4)}, {v(T)}, {s(sM,4)}, 0 offen
  v_cndmask_b32 {v(U+2)}, {v(vOOB)}, {v(U+2)}, vcc
  v_cvt_pk_bf16_f32 {v(U+1)}, 0, {v(U+1)}
  v_mul_f32 {v(U+1)}, 0.15915494, {v(U+1)}
  v_fract_f32 {v(U+1)}, {v(U+1)}
  v_cos_f32 {v(U+1)}, {v(U+1)}
  v_bfe_u32 {v(U+3)}, {v(U)}, 20, 3
  v_lshl_add_u32 {v(U+3)}, {v(U+3)}, 4, {v(vSst)}
  v_cvt_pk_bf16_f32 {v(U+1)}, {v(U+1)}, {v(U+1)}
  s_branch L_x2_back""")
    a.label("L_x3")
    a(f"""
  s_waitcnt vmcnt({xw[3]})
  v_mfma_f32_16x16x32_bf16 {v(Da,4)}, {v(RR,4)}, {v(Wa,4)}, 0
  v_mfma_f32_16x16x32_bf16 {v(Db,4)}, {v(RR,4)}, {v(Wb,4)}, 0
  s_nop 6""")
    cstage_cvt()
    for t in range(NT):
        a(f"""
  v_cmp_eq_u32 vcc, {t}, {v(U+2)}
  s_cbranch_vccz L_x3_{t}
  s_mov_b64 exec, vcc
  ds_write_b16 {v(U+3)}, {v(U+1)}
  s_mov_b64 exec, -1
  ds_read_b128 {v(Sf,4)}, {v(vSrd)}
  s_mov_b64 exec, vcc
  ds_write_b16 {v(U+3)}, {v(vZ)}
  s_mov_b64 exec, -1
  s_waitcnt lgkmcnt(0)""")
        cstage_m2(t)
        a.label(f"L_x3_{t}")
    a("  s_branch L_x3_back")
    a.label("L_it0")
    a(f"  s_cmp_lg_u32 s{sFl}, 0\n  s_cbranch_scc1 L_body0")
    for r in range(NG, NS): st(r)
    a("  s_nop 0")
    for r in range(NG, NS): zero_acc(sdt(r))
    signal_all("z0", 0)
    a("  s_branch L_nosig_z")
    for t in range(4):
        a.label(f"L_first_{t}")
        for u in range(4*t, 4*t+4): rec_load(u, T + 4 + 2 * (u & 1))
        a(f"  s_branch L_first_back_{t}")
    a.label("L_allfirst")
    a(f"  s_mov_b32 s{sY}, s{sSo}")
    for r in range(NB + N1, NS): st(r)
    a(f"  s_mov_b32 s{sSo}, s{sY}\n  s_waitcnt vmcnt(0)\n  s_barrier\n{flag3}\n  s_branch L_allfirst_back")
    for g in slowg:
        a.label(f"L_pslow_{g}")
        for u in range(4*g, 4*g+4):
            a(f"""
  s_mov_b64 exec, {s(PMK(u),2)}
  v_cmp_lt_u32 vcc, 63, {v(PRK(u))}
  s_cbranch_vccz L_pskip_{u}
  s_andn2_b64 {s(PMK(u),2)}, {s(PMK(u),2)}, vcc
  s_mov_b64 exec, vcc
  ds_add_rtn_u32 {v(T+1)}, {v(vCtlN)}, {v(vOne)}
  s_waitcnt lgkmcnt(0)
  v_lshlrev_b32 {v(T+1)}, 3, {v(T+1)}
  buffer_store_dwordx2 {v(REC[u],2)}, {v(T+1)}, {s(sCAR,4)}, s{sCarW} offen
  s_waitcnt vmcnt(0)""")
            a.label(f"L_pskip_{u}")
        a(f"  s_mov_b64 exec, -1\n  s_branch L_pback_{g}")
    for tag in ("b0", "lp"):
        a.label(f"L_slow_{tag}")
        a(f"  s_mov_b32 s{sX}, 512")
        a.label(f"L_slow_loop_{tag}")
        a(f"""
  v_add_u32 {v(T+1)}, s{sX}, {v(vCarIdx)}
  v_cmp_gt_u32 vcc, s{sCin}, {v(T+1)}
  v_lshlrev_b32 {v(T+1)}, 3, {v(T+1)}
  s_nop 0
  v_cndmask_b32 {v(T+1)}, {v(vOOB)}, {v(T+1)}, vcc
  buffer_load_dwordx2 {v(REC[16],2)}, {v(T+1)}, {s(sCAR,4)}, s{sCarR} offen sc1
  s_waitcnt vmcnt(0)""")
        ins1(16, "0", 0)
        a("  s_waitcnt lgkmcnt(0)")
        ins2(16, "sl" + tag, 0)
        a(f"""
  s_add_u32 s{sX}, s{sX}, 512
  s_cmp_lt_u32 s{sX}, s{sCin}
  s_cbranch_scc1 L_slow_loop_{tag}
  s_waitcnt vmcnt(0)
  s_branch L_slow_back_{tag}""")
    for lab, u, p in rare:
        a.label(f"L_rare_{lab}")
        a(f"""
  s_mov_b64 exec, vcc
  ds_add_rtn_u32 {v(RK[p])}, {v(vCtlN)}, {v(vOne)}
  v_mov_b32 {v(REC[u]+1)}, {v(WW[p])}
  s_waitcnt lgkmcnt(0)
  v_lshlrev_b32 {v(RK[p])}, 3, {v(RK[p])}
  buffer_store_dwordx2 {v(REC[u],2)}, {v(RK[p])}, {s(sCAR,4)}, s{sCarW} offen
  s_andn2_b64 exec, {s(sMk[p],2)}, vcc
  s_branch L_back_{lab}""")
    return NV

def kd(name, nv, ns):
    nv4 = (nv + 3) // 4 * 4
    return f""".amdhsa_kernel {name}
  .amdhsa_next_free_vgpr {nv}
  .amdhsa_next_free_sgpr {ns}
  .amdhsa_accum_offset {nv4}
  .amdhsa_group_segment_fixed_size 0
  .amdhsa_kernarg_size 112
  .amdhsa_user_sgpr_count 2
  .amdhsa_user_sgpr_kernarg_segment_ptr 1
  .amdhsa_system_sgpr_workgroup_id_x 1
  .amdhsa_float_denorm_mode_32 3
.end_amdhsa_kernel
"""

def main():
    out = sys.argv[1]
    ref = open(f"cdna_kernels/{NAME}.s.ref").read().split("\n")
    head = [l for l in ref if l.startswith(";") and "@launch" not in l and "Override" not in l and "grid=ceil" not in l]
    a = Asm()
    a(".amdgcn_target \"amdgcn-amd-amdhsa--gfx950\"\n.text")
    a(f".globl {NAME}_kernel\n.type {NAME}_kernel,@function")
    nv = gen_p2(a)
    errs = a.check()
    for e in errs: print("HAZARD", e)
    txt = "\n".join(head) + "\n"
    kern = f"kernel={NAME}_kernel " if OPT["list"] else ""
    txt += f"; @launch {kern}grid=(256,1,1) block=(512,1,1) lds={P1_LDS}\n"
    if OPT["probe"] >= 0:
        txt += "; @launch kernel=probe_kernel grid=(1,1,1) block=(64,1,1) lds=0\n"
        a(f"""
.p2align 8
probe_kernel:
  s_cmp_ge_u32 s2, 1
  s_cbranch_scc1 P_end
  s_load_dwordx2 s[4:5], s[0:1], 96
  s_waitcnt lgkmcnt(0)
  s_load_dwordx8 s[8:15], s[4:5], 0
  s_memrealtime s[16:17]
  s_waitcnt lgkmcnt(0)
  s_not_b32 s8, s8
  s_sub_u32 s20, s{8 + OPT['probe']}, s8
  {"s_lshr_b32 s20, s%d, 4" % (8 + OPT['probe']) if OPT['probe'] in (5, 7) else "s_nop 0"}
  s_min_u32 s20, s20, 20000
P_loop:
  s_memrealtime s[18:19]
  s_waitcnt lgkmcnt(0)
  s_sub_u32 s21, s18, s16
  s_cmp_lt_u32 s21, s20
  s_cbranch_scc1 P_loop
P_end:
  s_endpgm""")
    txt += a.text()
    txt += ".section .rodata,\"a\"\n.p2align 6\n" + kd(NAME + "_kernel", 256, 102) + (".p2align 6\n" + kd("probe_kernel", 8, 32) if OPT["probe"] >= 0 else "")
    open(out, "w").write(txt)
    print("vgprs p2:", nv, "lines:", len(a.lines), "hazards:", len(errs))

main()
```

```python
import sys, os
sys.path.insert(0, os.path.dirname(__file__))
from asmlib import Asm

NAME = "gather_scatter__molecular_angular_gemnet__graph"
E = 400000
NCH, CH = 250, 25600
EB = 1568
K = 6
MJ = 2739138
TABOFF = 0x2800000
CAROFF = 0x3000000
CARCAP = 9216
CARLIST = CARCAP * 8
STAMPOFF = 0x6000000
FLGOFF = 0x2c00000
OPT = dict(rot=1, pf0=0, a0=2, ag=2, early=0, abl_adj=0, probe=-1, tlb=0, cut=-1, opol=1, mpol=0, tq=3, fq=10, keff=6, jid=0, fprio=0x3ffff, lprio=0x3fff, napt=8, st0=1, stp=1, rb0=2, nap=8, list=1, nb=7, n1=2, n3=4, nl0=8, smask=0x2925, arr=10, spin=60000, rec_pol=2, stamp=0, itcap=64, ld_nt=7, st_pol=0, mtouch=0, la=3, apre=2, wmain=70000, b5=0, lim=24, nb2=7, ins0=4,
           abl_mfma=0, abl_s=0, abl_cos=0, abl_g=0)
for a in sys.argv[2:]:
    k, v = a.split("=")
    assert k in OPT, k
    OPT[k] = int(v, 0)
MK = -(-(1 << 32) // OPT["wmain"])
assert (399999 * MK) >> 32 <= 5

RPOL = ('', ' nt', ' sc1', ' sc0 sc1')[OPT['rec_pol']]

POL = ('', ' nt', ' sc1', ' sc0 sc1')

def v(i, n=1):
    return f"v{i}" if n == 1 else f"v[{i}:{i+n-1}]"
def s(i, n=1):
    return f"s{i}" if n == 1 else f"s[{i}:{i+n-1}]"

def stamp(a, vreg, lane, op="s_memtime"):
    if lane == OPT["cut"]: a("  s_endpgm")
    if not OPT["stamp"]: return
    if OPT["stamp"] == 2:
        mp = {62: (0, 1), 42: (1, 0), 45: (2, 0), 1: (3, 0), 11: (4, 0), 63: (6, 0)}
        if lane == 0:
            a("  s_memtime s[88:89]\n  s_waitcnt lgkmcnt(0)\n  s_mov_b32 s91, s88")
        if lane in (11, 7):
            a(f"  s_memtime s[88:89]\n  s_waitcnt lgkmcnt(0)\n  s_sub_u32 s88, s88, s91\n  v_writelane_b32 v{vreg}, s88, {5 if lane == 11 else 7}")
        if lane not in mp: return
        l, inv = mp[lane]
        a(f"  s_memrealtime s[88:89]\n  s_waitcnt lgkmcnt(0)")
        if inv: a("  s_not_b32 s88, s88")
        a(f"  v_writelane_b32 v{vreg}, s88, {l}")
        return
    a(f"  {op} s[88:89]\n  s_waitcnt lgkmcnt(0)\n  v_writelane_b32 v{vreg}, s88, {lane}")
def stamp_out(a, vreg, wslo, nwaves, base, tmp):
    if not OPT["stamp"]: return
    if OPT["stamp"] == 2:
        back = 512
        a(f"""
  s_load_dwordx2 s[90:91], s[0:1], 96
  s_waitcnt lgkmcnt(0)
  s_add_u32 s92, s90, {back}
  s_addc_u32 s93, s91, 0
  s_mov_b32 s94, 32
  s_mov_b32 s95, 0x20000
  v_lshlrev_b32 v{tmp}, 2, v0
  buffer_atomic_umax v{vreg}, v{tmp}, s[92:95], 0 offen""")
        return
    a(f"  s_mul_i32 s88, s2, {nwaves*256}\n  s_add_u32 s88, s88, {base}")
    srd(a, 92, wslo, wslo+1, "s88", nwaves*256)
    a(f"  v_lshlrev_b32 v{tmp}, 2, v0\n  buffer_store_dword v{vreg}, v{tmp}, s[92:95], 0 offen")

def srd(a, d, lo, hi, add, size):
    if add is None:
        a(f"  s_mov_b32 s{d}, s{lo}\n  s_mov_b32 s{d+1}, s{hi}")
    else:
        a(f"  s_add_u32 s{d}, s{lo}, {add}\n  s_addc_u32 s{d+1}, s{hi}, 0")
    a(f"  s_mov_b32 s{d+2}, {size}\n  s_mov_b32 s{d+3}, 0x20000")

P1_CNT, P1_SENT, P1_TMP, P1_REC = 0, 6144, 6160, 6272
P1_LDS = P1_REC + CH * 6

TS = 264
BUFSZ = 200 * TS
S_OFF = 13 * 8192
CTL = S_OFF + 8192
RB_OFF = CTL + 128
P2_LDS = RB_OFF + 8 * 3584
D = 5
NT = 25

class RA:
    def __init__(self, start): self.n = start
    def __call__(self, k=1, al=1):
        self.n = (self.n + al - 1) // al * al
        r = self.n; self.n += k
        return r

def gen_p2(a):
    ra = RA(1)
    vSlot, vHalf, vFreq, vSst, vSrd, vI6, vI1, vI4 = (ra() for _ in range(8))
    vRd, vCntA, vOne, vOOB, vCarOff, vCarIdx, v264, vMsk, vCtlN = (ra() for _ in range(9))
    vZ = ra(2, 2)
    Q = ra(6, 4)
    sA, nA, cb, rem, rtot, vA6, vB6, vR0, vRT4 = (ra() for _ in range(9))
    vCnt = ra()
    Wa = ra(4, 4); Wb = ra(4, 4)
    RING = [ra(4, 4) for _ in range(D)]
    Da = ra(4, 4); Db = ra(4, 4); P = ra(4, 4); Sf = ra(4, 4)
    ACC = [ra(4, 4) for _ in range(NT)]
    REC = [ra(2, 4 if i == 0 else 2) for i in range(17)]
    RP = [ra(2, 2), ra(2, 2)]
    T = ra(10, 2)
    TA = [ra(), ra()]; RK = [ra(), ra()]
    WS0 = ra(2, 2); WS1 = ra(2, 2); WR = ra(2, 2); WUP = ra(2, 2)
    CC = [ra() for _ in range(D)]; SA = [ra() for _ in range(D)]
    WW = [ra(), ra()]
    assert ra.n <= 252, ra.n
    NV = ra.n
    sM = 4; sREC = 8; sCAR = 12; sTAB = 16; sOUT = 20; sDIST = 24; sMW = 28
    sJ, sW, sIt, sThr, sIns, sCarW, sCarR, sRb, sCin, sX, sFl, sEb = range(32, 44)
    sCnt = [44, 45]
    sWS = 46
    sPM = 72
    sMk = [72, 74]; sT = 76; sC10 = 78; sCl2 = 80
    sEb2 = 3
    rare = []

    O, I, R, A = 36, 88, 140, 192
    PT = 218
    _, vL8, vL4, vL128, vSix, vTwo, vFlg, vDum, vTab, vWo = range(234, 244)
    vL16 = WW[0]
    rDist, rSbf, rUp, rDown, rRbf = 86, 248, 190, 232, 217
    assert Wa == 36 and T == PT
    vSent = vCnt
    sIO, sII, sAN, sMT, sTW, sDBG = 4, 8, 12, 16, 20, 24
    sFLG, sRW = 92, 96
    sMJ, sMK, sNEB, sB5, sO4, sO2 = range(80, 86)
    sY, sSo = 100, 101
    nto, nti, nta = (" nt" if OPT["ld_nt"] >> b & 1 else "" for b in range(3))
    NR = 13
    nrec = lambda q: 4 if q < 12 else 2
    vm = []
    def ld_pair(q):
        if q < 12:
            a(f"  buffer_load_dwordx4 {v(O+4*q,4)}, {v(vL16)}, {s(sIO,4)}, s{sO4} offen{nto}")
            a(f"  buffer_load_dwordx4 {v(I+4*q,4)}, {v(vL16)}, {s(sII,4)}, s{sO4} offen{nti}")
            a(f"  s_add_u32 s{sO4}, s{sO4}, 8192")
        else:
            a(f"  buffer_load_dwordx2 {v(O+48,2)}, {v(vL8)}, {s(sIO,4)}, s{sO4} offen{nto}")
            a(f"  buffer_load_dwordx2 {v(I+48,2)}, {v(vL8)}, {s(sII,4)}, s{sO4} offen{nti}")
        vm.extend([("o", q), ("p", q)])
    def ld_ang(q):
        if q < 12:
            a(f"  buffer_load_dwordx2 {v(A+2*q,2)}, {v(vL8)}, {s(sAN,4)}, s{sO2} offen{nta}")
            a(f"  s_add_u32 s{sO2}, s{sO2}, 4096")
        else: a(f"  buffer_load_dword {v(A+24)}, {v(vL4)}, {s(sAN,4)}, s{sO2} offen{nta}")
        vm.append(("a", q))
    def wait_for(x):
        a(f"  s_waitcnt vmcnt({len(vm) - 1 - vm.index(x)})")
    def poll(tag, load, cond, nap=4):
        a(f"  s_mov_b32 s{sY}, {OPT['spin']}")
        a.label(f"L_poll_{tag}")
        a(load)
        a("  s_waitcnt vmcnt(0)")
        a(cond)
        a(f"""
  s_cbranch_vccz L_polled_{tag}
  s_sleep {nap}
  s_sub_u32 s{sY}, s{sY}, 1
  s_cbranch_scc0 L_poll_{tag}""")
        a.label(f"L_polled_{tag}")

    a(".p2align 8")
    a.label(NAME + "_kernel")
    a(f"""
  s_cmp_ge_u32 s2, 256
  s_cbranch_scc1 L_end
  s_load_dwordx16 s[48:63], s[0:1], 0
  s_load_dwordx4 s[44:47], s[0:1], 96
  s_load_dwordx8 s[64:71], s[0:1], 64
  v_lshlrev_b32 {v(vL16)}, 4, v0
  v_mov_b64 {v(PT,2)}, 0
  v_mov_b64 {v(PT+2,2)}, 0
  s_min_u32 s{sY}, s2, {NCH-1}
  s_mul_i32 s{sX}, s{sY}, {CH*4}
  s_cmp_lt_u32 s2, {NCH}
  s_cselect_b32 s{sFl}, {CH*2}, 0
  s_lshl_b32 s{sCin}, s{sFl}, 1
  s_mov_b32 s{sO4}, 0
  s_mov_b32 s{sO2}, 0
  ds_write_b128 {v(vL16)}, {v(PT,4)}
  v_lshrrev_b32 {v(T+8)}, 6, v0
  s_and_b32 s{sJ}, s2, 7
  s_lshl_b32 s{sJ}, s{sJ}, 5
  s_lshr_b32 s{sEb}, s2, 3
  s_add_u32 s{sJ}, s{sJ}, s{sEb}
  v_readfirstlane_b32 s{sW}, {v(T+8)}
  v_and_b32 {v(T+7)}, 63, v0
  v_lshlrev_b32 {v(T+6)}, 3, {v(T+7)}
  v_lshlrev_b32 {v(T+7)}, 2, {v(T+7)}
  s_mul_i32 s{sEb}, s{sJ}, {EB*2}
  s_mul_i32 s{sRb}, s{sW}, 400
  s_add_u32 s{sEb}, s{sEb}, s{sRb}
  s_waitcnt lgkmcnt(0)""")
    if OPT["stamp"] == 2: a("  v_mov_b32 v252, 0\n  s_nop 1")
    stamp(a, 252, 0); stamp(a, 252, 62, "s_memrealtime")
    srd(a, sIO, 52, 53, f"s{sX}", f"s{sCin}")
    srd(a, sII, 50, 51, f"s{sX}", f"s{sCin}")
    ld_pair(0)
    srd(a, 28, 54, 55, None, E * 2)
    a(f"""
  buffer_load_dwordx2 {v(rDist,2)}, {v(T+6)}, s[28:31], s{sEb} offen
  global_load_dwordx2 {v(rSbf,2)}, {v(T+6)}, s[64:65]
  global_load_dwordx2 {v(rUp,2)}, {v(T+6)}, s[68:69]
  global_load_dwordx2 {v(rDown,2)}, {v(T+6)}, s[66:67]
  global_load_dword {v(rRbf)}, {v(T+7)}, s[62:63]""")
    vm.extend([("s", i) for i in range(5)])
    ld_pair(1)
    a("  s_barrier")
    LA = OPT["la"]
    for q in range(2, LA): ld_pair(q)
    a(f"  s_lshr_b32 s{sX}, s{sX}, 1")
    srd(a, sAN, 56, 57, f"s{sX}", f"s{sFl}")
    srd(a, sMT, 48, 49, f"s{sX}", f"s{sFl}")
    a(f"  s_mul_i32 s{sX}, s{sY}, {CH*6}\n  s_mul_i32 s{sFl}, s{sFl}, 3")
    srd(a, sRW, sWS, sWS+1, f"s{sX}", f"s{sFl}")
    srd(a, sTW, sWS, sWS+1, TABOFF, 256 * 8192)
    srd(a, sFLG, sWS, sWS+1, FLGOFF, 8192)
    srd(a, sDBG, 44, 45, None, 256)
    a(f"""
  s_lshl_b32 s{sX}, s2, 2
  v_lshl_add_u32 {v(vFlg)}, v0, 10, s{sX}
  s_cmp_lt_u32 s2, {NCH}
  s_cselect_b32 s{sX}, 0, 4
  v_mov_b32 {v(vDum)}, s{sX}
  buffer_store_dword {v(vDum)}, {v(vFlg)}, {s(sFLG,4)}, 0 offen sc1
  s_lshl_b32 s{sX}, s{sX}, 20
  v_or_b32 {v(vFlg)}, s{sX}, {v(vFlg)}
  s_load_dword s{sCin}, s[60:61], 0
  s_load_dwordx4 s[56:59], s[58:59], 0
  v_lshlrev_b32 {v(vL8)}, 3, v0
  v_lshlrev_b32 {v(vL4)}, 2, v0
  v_lshlrev_b32 {v(vL128)}, 7, v0
  v_mov_b32 {v(vSix)}, 6
  v_mov_b32 {v(vTwo)}, 2
  s_mov_b32 s{sMJ}, {MJ}
  s_mov_b32 s{sMK}, {MK}
  s_mov_b32 s{sNEB}, {-EB & 0xffffffff}
  s_mov_b32 s{sB5}, {(-(E//8) & 0xffffffff) if OPT['rot'] else OPT['b5']}
  v_lshrrev_b32 {v(T)}, 6, v0
  v_and_b32 {v(T+2)}, 15, v0
  v_bfe_u32 {v(T+3)}, v0, 5, 1
  v_lshlrev_b32 {v(vHalf)}, 4, {v(T+3)}
  v_lshl_add_u32 {v(cb)}, {v(T)}, 5, {v(vHalf)}
  v_add_u32 {v(cb)}, {v(cb)}, {v(T+2)}
  v_lshlrev_b32 {v(vTab)}, 13, {v(cb)}
  v_and_b32 {v(T+1)}, 63, v0
  v_and_b32 {v(vSlot)}, 31, v0
  v_mov_b64 {v(vZ,2)}, 0
  v_mov_b32 {v(v264)}, {TS}
  v_mov_b32 {v(vCtlN)}, {CTL}
  s_lshl_b32 s{sX}, s{sW}, 10
  s_add_u32 s{sX}, s{sX}, {S_OFF}
  v_lshl_add_u32 {v(vSrd)}, {v(T+1)}, 4, s{sX}
  v_bfe_u32 {v(T+6)}, v0, 2, 2
  v_lshlrev_b32 {v(vSst)}, 8, {v(T+6)}
  v_lshl_add_u32 {v(vSst)}, {v(T+3)}, 7, {v(vSst)}
  v_bfe_u32 {v(T+6)}, v0, 4, 1
  v_lshl_add_u32 {v(vSst)}, {v(T+6)}, 3, {v(vSst)}
  v_and_b32 {v(T+6)}, 3, v0
  v_lshl_add_u32 {v(vSst)}, {v(T+6)}, 1, {v(vSst)}
  v_add_u32 {v(vSst)}, s{sX}, {v(vSst)}
  v_mov_b32 {v(vOne)}, 1
  v_mov_b32 {v(vOOB)}, 0x80000000
  v_mov_b32 {v(vMsk)}, 0x7ffffffc
  v_mul_u32_u24 {v(vI6)}, 6, {v(vSlot)}
  v_add_u32 {v(vI1)}, 1, {v(vSlot)}
  v_lshlrev_b32 {v(vI4)}, 2, {v(vI1)}
  v_mov_b32 {v(T+6)}, {CH}
  v_mul_u32_u24 {v(cb)}, {v(cb)}, {v(T+6)}
  v_mov_b32 {v(sA)}, 0
  v_mov_b32 {v(nA)}, 0
  v_mov_b32 {v(rtot)}, 0
  s_mul_i32 s{sX}, s{sW}, {NT*TS}
  s_add_u32 s{sX}, s{sX}, {BUFSZ}
  v_lshl_add_u32 {v(vRd)}, {v(vSlot)}, 3, s{sX}""")
    if OPT["abl_adj"]:
        a(f"""
  v_bfe_u32 {v(T+6)}, v0, 1, 5
  v_lshl_add_u32 {v(vRd)}, {v(T+6)}, 3, s{sX}
  v_and_b32 {v(vHalf)}, 1, v0
  v_lshlrev_b32 {v(vHalf)}, 4, {v(vHalf)}""")
    a(f"""
  v_min_u32 {v(T+6)}, {NT-1}, {v(T+1)}
  v_mad_u32_u24 {v(vCntA)}, {v(T+6)}, {v(v264)}, s{sX}
  v_sub_u32 {v(vCarIdx)}, 511, v0
  v_lshlrev_b32 {v(vCarOff)}, 3, {v(vCarIdx)}
  v_cmp_eq_u32 vcc, 1, {v(T+3)}
  s_waitcnt lgkmcnt(0)
  s_lshl_b32 s{sX}, s{sCin}, 16
  s_and_b32 s{sCin}, s{sCin}, 0xffff0000
  v_mov_b32 {v(vFreq)}, s{sX}
  v_mov_b32 {v(T+6)}, s{sCin}
  v_cndmask_b32 {v(vFreq)}, {v(vFreq)}, {v(T+6)}, vcc
  s_mov_b32 s{sIt}, -1
  s_mov_b32 s{sIns}, 0
  s_mov_b32 s{sCarW}, 0
  s_mov_b32 s{sCarR}, {CARLIST}
  s_mul_i32 s{sEb}, s{sJ}, {EB}
  s_mul_i32 s{sX}, s{sW}, 200
  s_add_u32 s{sFl}, s{sEb}, {EB}
  s_add_u32 s{sEb}, s{sEb}, s{sX}
  s_add_u32 s{sRb}, s{sEb}, 200
  s_min_u32 s{sRb}, s{sRb}, s{sFl}
  s_min_u32 s{sRb}, s{sRb}, {E}
  s_lshl_b32 s{sRb}, s{sRb}, 5
  s_lshl_b32 s{sEb}, s{sEb}, 5
  s_add_u32 s{sEb2}, s{sEb}, 4096""")

    if OPT["tlb"]:
        sh = OPT["tlb"]
        srd(a, 28, sWS, sWS+1, None, FLGOFF + 8192)
        a(f"  v_lshlrev_b32 v249, {sh}, v0\n  buffer_load_dword v248, v249, s[28:31], 0 offen")
        srd(a, 28, 48, 49, None, E * 32)
        a(f"  buffer_load_dword v248, v249, s[28:31], 0 offen")
        srd(a, 28, 70, 71, None, E * 32)
        a(f"  buffer_load_dword v248, v249, s[28:31], 0 offen")
        vm.extend([("tlb", i) for i in range(3)])
    a(f"""
  s_cmp_ge_u32 s2, {NCH}
  s_cbranch_scc1 L_nochunk1""")
    vm.append(("flg", 0))
    arrive = f"""
  s_and_b32 s{sY}, s2, 15
  s_lshl_b32 s{sY}, s{sY}, 4
  v_lshlrev_b32 {v(PT)}, 8, v0
  buffer_atomic_add {v(vOne)}, {v(PT)}, {s(sDBG,4)}, s{sY} offen"""
    def hist(idx):
        if OPT["b5"]:
            for x, i in enumerate(idx): a(f"  v_cmp_le_u32 {s(72+2*x,2)}, s{sB5}, {v(I+i)}")
        for x, i in enumerate(idx): a(f"  v_mul_hi_u32_u24 {v(PT+x)}, s{sMJ}, {v(O+i)}")
        if OPT["rot"]:
            for x, i in enumerate(idx): a(f"  v_lshrrev_b32 {v(PT+4+x)}, 5, {v(PT+x)}")
            for x, i in enumerate(idx): a(f"  v_mad_i32_i24 {v(PT+4+x)}, {v(PT+4+x)}, s{sB5}, {v(I+i)}")
            for x, i in enumerate(idx): a(f"  v_add_u32 {v(PT+8+x)}, {E - E//8}, {v(PT+4+x)}")
            for x, i in enumerate(idx): a(f"  v_add_u32 {v(PT+4+x)}, s{sB5}, {v(PT+4+x)}")
            for x, i in enumerate(idx): a(f"  v_min_u32 {v(PT+4+x)}, {v(PT+4+x)}, {v(PT+8+x)}")
            for x, i in enumerate(idx): a(f"  v_mul_hi_u32_u24 {v(PT+4+x)}, s{sMK}, {v(PT+4+x)}")
        else:
            for x, i in enumerate(idx): a(f"  v_mul_hi_u32_u24 {v(PT+4+x)}, s{sMK}, {v(I+i)}")
        if OPT["b5"]:
            for x, i in enumerate(idx): a(f"  v_cndmask_b32 {v(PT+4+x)}, {v(PT+4+x)}, 5, {s(72+2*x,2)}")
        for x, i in enumerate(idx): a(f"  v_mad_i32_i24 {v(PT+8+x)}, {v(PT+x)}, s{sNEB}, {v(O+i)}")
        for x, i in enumerate(idx): a(f"  v_lshl_add_u32 {v(O+i)}, {v(PT+4+x)}, 8, {v(PT+x)}")
        for x, i in enumerate(idx): a(f"  v_lshlrev_b32 {v(O+i)}, 2, {v(O+i)}")
        for x, i in enumerate(idx): a(f"  ds_add_rtn_u32 {v(R+i)}, {v(O+i)}, {v(vOne)}")
        for x, i in enumerate(idx): a(f"  v_lshl_or_b32 {v(I+i)}, {v(PT+8+x)}, 20, {v(I+i)}")
        for x, i in enumerate(idx): a(f"  v_or_b32 {v(I+i)}, 0x80000000, {v(I+i)}")
    na = 0
    for q in range(NR):
        wait_for(("p", q))
        if q == 0: stamp(a, 252, 40)
        if q == LA:
            a(arrive); vm.append(("arr", 0))
        if q + LA < NR: ld_pair(q + LA)
        else:
            for _ in range(2):
                if na < OPT["apre"]: ld_ang(na); na += 1
        hist(list(range(4*q, 4*q + nrec(q))))
    stamp(a, 252, 41)
    X = v(PT+4)
    a(f"""
  s_waitcnt lgkmcnt(0)
  s_barrier
  s_cmp_ge_u32 s{sW}, {K}
  s_cbranch_scc1 L_bin_s1
  ds_read_b128 {v(PT,4)}, {v(vL16)}
  v_and_b32 {v(PT+8)}, 63, v0
  s_waitcnt lgkmcnt(0)
  v_add_u32 {v(PT+1)}, {v(PT)}, {v(PT+1)}
  v_add_u32 {v(PT+2)}, {v(PT+1)}, {v(PT+2)}
  v_add_u32 {v(PT+3)}, {v(PT+2)}, {v(PT+3)}
  v_mov_b32 {v(PT+4)}, {v(PT+3)}""")
    for sh in (1, 2, 4, 8):
        a(f"  s_nop 1\n  v_add_u32_dpp {X}, {X}, {X} row_shr:{sh} row_mask:0xf bank_mask:0xf bound_ctrl:0")
    a(f"  s_nop 1\n  v_add_u32_dpp {X}, {X}, {X} row_bcast:15 row_mask:0xa bank_mask:0xf")
    a(f"  s_nop 1\n  v_add_u32_dpp {X}, {X}, {X} row_bcast:31 row_mask:0xc bank_mask:0xf")
    a(f"""
  v_cmp_lt_u32 vcc, s{sW}, {v(PT+8)}
  v_readlane_b32 s{sY}, {X}, 63
  v_lshlrev_b32 {v(PT+9)}, 2, {v(PT+8)}
  s_and_b32 vcc_lo, vcc_lo, 0xff
  s_mov_b32 vcc_hi, 0
  v_mov_b32 {v(PT+10)}, s{sY}
  s_mov_b64 exec, vcc
  ds_add_u32 {v(PT+9)}, {v(PT+10)} offset:{P1_TMP}
  s_mov_b64 exec, -1
  s_waitcnt lgkmcnt(0)""")
    a.label("L_bin_s1")
    a(f"""
  s_barrier
  s_cmp_ge_u32 s{sW}, {K}
  s_cbranch_scc1 L_bin_s2
  s_lshl_b32 s{sY}, s{sW}, 2
  v_mov_b32 {v(PT+9)}, s{sY}
  ds_read_b32 {v(PT+9)}, {v(PT+9)} offset:{P1_TMP}
  v_sub_u32 {X}, {X}, {v(PT+3)}
  v_mov_b32 {v(PT+10)}, {CH}
  s_waitcnt lgkmcnt(0)
  v_add_u32 {v(PT+4)}, {X}, {v(PT+9)}
  v_add_u32 {v(PT+5)}, {v(PT+4)}, {v(PT)}
  v_add_u32 {v(PT+6)}, {v(PT+4)}, {v(PT+1)}
  v_add_u32 {v(PT+7)}, {v(PT+4)}, {v(PT+2)}
  ds_write_b128 {v(vL16)}, {v(PT+4,4)}
  ds_write_b32 {v(vZ)}, {v(PT+10)} offset:{P1_SENT}
  s_waitcnt lgkmcnt(0)""")
    a.label("L_bin_s2")
    a("  s_barrier")
    stamp(a, 252, 42)
    a(f"""
  v_lshrrev_b32 {v(PT+12)}, 1, v0
  v_and_b32 {v(PT+13)}, 1, v0
  v_lshlrev_b32 {v(PT+12)}, 2, {v(PT+12)}
  v_lshl_add_u32 {v(PT+13)}, {v(PT+13)}, 12, {v(PT+12)}
  s_lshl_b32 s{sY}, s2, 13""")
    for k in range(4):
        a(f"  ds_read_b32 {v(PT+k)}, {v(PT+13)} offset:{k*1024}")
        a(f"  ds_read_b32 {v(PT+6+k)}, {v(PT+13)} offset:{k*1024+4}")
    a("  s_waitcnt lgkmcnt(0)")
    for k in range(4): a(f"  v_sub_u32 {v(PT+6+k)}, {v(PT+6+k)}, {v(PT+k)}")
    for k in range(4): a(f"  v_lshl_or_b32 {v(PT+k)}, {v(PT+6+k)}, 16, {v(PT+k)}")
    a(f"  buffer_store_dwordx4 {v(PT,4)}, {v(vL16)}, {s(sTW,4)}, s{sY} offen sc1")
    vm.append(("tab", 0))
    mark = len(vm)
    for _ in range(OPT["a0"]):
        if na < NR: ld_ang(na); na += 1
    NB = OPT["nb"]
    vDa, vDv, vRa = 245, 246, 247
    lda = f"  buffer_load_dword {v(vDv)}, {v(vDa)}, {s(sDBG,4)}, 0 offen sc1"
    cda = f"  v_cmp_gt_u32 vcc, 16, {v(vDv)}"
    ada = f"""
  s_lshl_b32 s{sX}, s{sW}, 16
  v_and_b32 {v(vDa)}, 15, v0
  v_lshl_add_u32 {v(vDa)}, {v(vDa)}, 4, s{sX}"""
    NRD = 15
    for i in range(NRD): a(f"  ds_read_b32 {v(O+i)}, {v(O+i)}")
    a(f"  s_mov_b32 s{sB5}, {NB*8192 + 4}\n  s_mov_b32 s{sSo}, 0")
    a(ada)
    a(f"  v_add_u32 {v(vRa)}, {P1_REC}, {v(vL16)}")
    for g in range(10):
        idx = list(range(5*g, 5*g+5))
        for _ in range(OPT["ag"]):
            if na < NR: ld_ang(na); na += 1
        a(f"  s_waitcnt lgkmcnt({min(10, 45 - 5*g)})")
        for i in idx:
            if i + NRD < 50: a(f"  ds_read_b32 {v(O+i+NRD)}, {v(O+i+NRD)}")
        for i in idx: a(f"  v_add_u32 {v(O+i)}, {v(O+i)}, {v(R+i)}")
        for i in idx: a(f"  v_mad_u32_u24 {v(O+i)}, {v(O+i)}, {v(vSix)}, {v(vTwo)}")
        for x, i in enumerate(idx): a(f"  v_and_b32 {v(PT+x)}, 2, {v(O+i)}")
        for i in idx: a(f"  v_and_b32 {v(R+i)}, -4, {v(O+i)}")
        for x, i in enumerate(idx): a(f"  v_lshl_add_u32 {v(O+i)}, {v(PT+x)}, 1, {v(O+i)}")
    assert na == NR
    if OPT["mtouch"]:
        a(f"  buffer_load_dword v244, {v(vL128)}, {s(sMT,4)}, 0 offen"); vm.append(("m", 0))
    def put(q, cmp):
        idx = list(range(4*q, 4*q + nrec(q)))
        for x, i in enumerate(idx): a(f"  v_cmp_{cmp}_u32 {s(72+2*x,2)}, s{sB5}, {v(R+i)}")
        for x, i in enumerate(idx):
            op = "ds_write_b16_d16_hi" if (i & 1) else "ds_write_b16"
            a(f"""
  s_mov_b64 exec, {s(72+2*x,2)}
  ds_write_b32 {v(R+i)}, {v(I+i)} offset:{P1_REC}
  {op} {v(O+i)}, {v(A + i//2)} offset:{P1_REC-2}""")
        a("  s_mov_b64 exec, -1")
    for q in range(NR):
        wait_for(("a", q))
        for r in range(nrec(q) // 2): a(f"  v_and_b32 {v(A+2*q+r)}, 0x7fff7fff, {v(A+2*q+r)}")
        if q == OPT["tq"]:
            assert q >= OPT["apre"]
            a("  s_barrier")
            a(lda); vm.append(("lda", 0))
            a(f"  buffer_store_dword {v(vOne)}, {v(vFlg)}, {s(sFLG,4)}, 0 offen sc1"); vm.append(("flg", 1))
        put(q, "gt")
    a(f"  ds_read_b32 {v(vWo)}, {v(vZ)} offset:2048")
    a("  s_waitcnt lgkmcnt(0)\n  s_barrier")
    stamp(a, 252, 43)
    a(f"  v_readfirstlane_b32 s{sO2}, {v(vWo)}")
    free = [PT, PT + 4, PT + 8, O, I, R, O + 4, I + 4, R + 4]
    def erd(r): a(f"  ds_read_b128 {v(free[r],4)}, {v(vRa)} offset:{r*8192}")
    def est(r):
        a(f"  buffer_store_dwordx4 {v(free[r],4)}, {v(vL16)}, {s(sRW,4)}, s{sSo} offen sc1\n  s_add_u32 s{sSo}, s{sSo}, 8192")
        vm.append(("st", r))
    assert NB <= 8
    for r in range(3): erd(r)
    for r in range(3):
        a(f"  s_waitcnt lgkmcnt({2 - r})")
        est(r)
    put(0, "le"); put(1, "le")
    for r in range(3, NB): erd(r)
    put(2, "le")
    a("  s_waitcnt lgkmcnt(0)")
    todo = list(range(3, NB))
    fad = f"""
  v_and_b32 {v(RK[0])}, 63, v0
  v_lshlrev_b32 {v(RK[0])}, 4, {v(RK[0])}
  s_and_b32 s{sCin}, s2, 7
  s_lshl_b32 s{sCin}, s{sCin}, 10"""
    for q in range(3, NR):
        if todo: est(todo.pop(0))
        if q == OPT["fq"]:
            assert q >= 8 and Da == O + 28 and not todo
            a(fad)
            a(f"  s_mov_b32 s{sO4}, 0\n  s_cmp_lg_u32 s{sW}, 0\n  s_cbranch_scc1 L_nofl")
            wait_for(("lda", 0))
            a(cda)
            a(f"  s_cbranch_vccnz L_nofl\n  s_mov_b32 s{sO4}, 1")
            a(f"  buffer_load_dwordx4 {v(Da,4)}, {v(RK[0])}, {s(sFLG,4)}, s{sCin} offen sc1")
            a.label("L_nofl")
        put(q, "le")
    assert not todo
    stamp(a, 252, 44)
    FP = Da
    def flag_load(dst, off): return f"  buffer_load_dwordx4 {v(dst,4)}, {v(off)}, {s(sFLG,4)}, s{sCin if dst == FP else sX} offen sc1"
    def flag_cond(dst, stage): return f"""
  v_min3_u32 {v(dst)}, {v(dst)}, {v(dst+1)}, {v(dst+2)}
  v_min_u32 {v(dst)}, {v(dst)}, {v(dst+3)}
  v_cmp_gt_u32 vcc, {stage}, {v(dst)}"""
    a(f"  s_waitcnt vmcnt(0)\n  s_cmp_lg_u32 s{sW}, 0\n  s_cbranch_scc1 L_polled_t")
    a(f"  s_cmp_eq_u32 s{sO4}, 0\n  s_cbranch_scc1 L_wait_a")
    a(flag_cond(FP, 1))
    a("  s_cbranch_vccz L_polled_t\n  s_branch L_polled_a")
    a.label("L_nochunk1")
    if 40 <= OPT["cut"] <= 44: a("  s_endpgm")
    a("  s_waitcnt vmcnt(0)")
    a(arrive)
    a(ada)
    a(fad)
    a(f"  s_mov_b32 s{sO2}, 0\n  s_cmp_lg_u32 s{sW}, 0\n  s_cbranch_scc1 L_polled_t")
    a.label("L_wait_a")
    poll("a", lda, cda, 64)
    poll("t", flag_load(FP, RK[0]), flag_cond(FP, 1), OPT["napt"])
    a(f"""
  s_lshl_b32 s{sX}, s{sJ}, 5
  s_add_u32 s{sX}, s{sX}, {TABOFF}""")
    srd(a, sTAB, sWS, sWS+1, f"s{sX}", (NCH - 1) * 8192 + 32)

    def state_update():
        a(f"""
  v_sub_u32 {v(rem)}, {v(rem)}, {v(rtot)}
  v_lshrrev_b32 {v(T)}, 16, {v(Q)}
  v_and_b32 {v(T+1)}, 0xffff, {v(Q)}
  v_min_u32 {v(vR0)}, 32, {v(nA)}
  v_cmp_ge_u32 vcc, 32, {v(nA)}
  v_sub_u32 {v(T+2)}, 32, {v(vR0)}
  v_add_u32 {v(vB6)}, {v(cb)}, {v(T+1)}
  v_min_u32 {v(T+2)}, {v(T)}, {v(T+2)}
  v_mul_u32_u24 {v(vB6)}, 6, {v(vB6)}
  v_add_u32 {v(rtot)}, {v(vR0)}, {v(T+2)}
  v_mad_i32_i24 {v(vB6)}, {v(vR0)}, -6, {v(vB6)}
  v_lshlrev_b32 {v(vRT4)}, 2, {v(rtot)}
  v_add_u32 {v(vA6)}, {v(cb)}, {v(sA)}
  v_mul_u32_u24 {v(vA6)}, 6, {v(vA6)}""")
    def state_update2():
        a(f"""
  v_add_u32 {v(sA)}, 32, {v(sA)}
  v_subrev_u32 {v(nA)}, 32, {v(nA)}
  v_add_u32 {v(T+1)}, {v(T+1)}, {v(T+2)}
  v_sub_u32 {v(T)}, {v(T)}, {v(T+2)}
  v_cndmask_b32 {v(sA)}, {v(sA)}, {v(T+1)}, vcc
  v_cndmask_b32 {v(nA)}, {v(nA)}, {v(T)}, vcc""")
        for i in range(K - 1):
            a(f"  v_cndmask_b32 {v(Q+i)}, {v(Q+i)}, {v(Q+i+1)}, vcc")
        a(f"  v_cndmask_b32 {v(Q+K-1)}, {v(Q+K-1)}, {v(vZ)}, vcc")
    def set_flag(tag):
        a(f"""
  v_cmp_lt_u32 vcc, 0, {v(rem)}
  s_cbranch_vccz L_noflag_{tag}
  ds_write_b32 {v(vCtlN)}, {v(vOne)} offset:4""")
        a.label(f"L_noflag_{tag}")

    bc = lambda u: f"row_newbcast:{u} row_mask:0xf bank_mask:0xf"
    def rec_load(u, t0):
        a(f"""
  v_sub_co_u32_dpp {v(t0)}, vcc, {v(vR0)}, {v(vI1)} {bc(u)}
  v_add_u32_dpp {v(t0)}, {v(vA6)}, {v(vI6)} {bc(u)}
  v_add_u32_dpp {v(t0+1)}, {v(vB6)}, {v(vI6)} {bc(u)}
  v_cndmask_b32 {v(t0)}, {v(t0)}, {v(t0+1)}, vcc
  v_sub_u32_dpp {v(t0+1)}, {v(vRT4)}, {v(vI4)} {bc(u)}
  v_bfi_b32 {v(t0)}, {v(vMsk)}, {v(t0)}, {v(t0+1)}
  buffer_load_dwordx2 {v(REC[u],2)}, {v(t0)}, {s(sREC,4)}, 0 offen{RPOL}""")

    SDWA = "dst_sel:WORD_1 dst_unused:UNUSED_PAD src0_sel:WORD_1 src1_sel:WORD_0"
    def ins1(u, thr, p):
        ta, rk, mk, w = TA[p], RK[p], sMk[p], WW[p]
        a(f"""
  v_cmp_gt_i32 vcc, 0, {v(REC[u])}
  v_min_i32 {v(w)}, {v(REC[u])}, {v(REC[u]+1)}
  v_cmp_gt_i32 {s(mk,2)}, {thr}, {v(w)}
  v_bfe_u32 {v(ta)}, {v(w)}, 23, 8
  v_cndmask_b32_sdwa {v(REC[u])}, {v(REC[u])}, {v(REC[u]+1)}, vcc {SDWA}
  v_mad_u32_u24 {v(ta)}, {v(ta)}, {v(v264)}, s{sIns}
  s_mov_b64 exec, {s(mk,2)}
  ds_add_rtn_u32 {v(rk)}, {v(ta)}, {v(vOne)}
  s_mov_b64 exec, -1""")

    def ins2(u, tag, p):
        ta, rk, mk, w = TA[p], RK[p], sMk[p], WW[p]
        lab = f"{tag}_{u}"
        a(f"""
  s_mov_b64 exec, {s(mk,2)}
  v_cmp_lt_u32 vcc, 31, {v(rk)}
  v_lshl_add_u32 {v(ta)}, {v(rk)}, 3, {v(ta)}
  s_cbranch_vccnz L_rare_{lab}""")
        a.label(f"L_back_{lab}")
        a(f"""
  ds_write2_b32 {v(ta)}, {v(REC[u])}, {v(w)} offset0:2 offset1:3
  s_mov_b64 exec, -1""")
        rare.append((lab, u, p))

    a(f"""
  v_add_u32 {v(PT+2)}, {P1_REC}, {v(vL16)}
  v_add_u32 {v(PT+3)}, {P1_REC + 8*8192}, {v(vL16)}
  v_add_u32 {v(PT+4)}, {P1_REC + 16*8192}, {v(vL16)}
  s_mov_b32 s{sSo}, {NB*8192}
  v_mov_b32 {v(vDum)}, 3
  s_waitcnt lgkmcnt(0)
  s_barrier""")
    stamp(a, 252, 45)
    NS = 19
    sdt = lambda r: (20 + r) % 25 if r < 8 else r + 1
    SD = lambda r: ACC[sdt(r)]
    gv = []
    def gwait(x, extra=""): a(f"  s_waitcnt vmcnt({len(gv) - 1 - gv.index(x)}){extra}")
    def rd(r): a(f"  ds_read_b128 {v(SD(r),4)}, {v(PT+2 + r//8)} offset:{(r%8)*8192}")
    def st(r, lst=None):
        a(f"  buffer_store_dwordx4 {v(SD(r),4)}, {v(vL16)}, {s(sRW,4)}, s{sSo} offen sc1\n  s_add_u32 s{sSo}, s{sSo}, 8192")
        if lst is not None: lst.append(("st", r))
    zero_acc = lambda t: a(f"  v_mov_b64 {v(ACC[t],2)}, 0\n  v_mov_b64 {v(ACC[t]+2,2)}, 0")
    flag3 = f"  buffer_store_dword {v(vDum)}, {v(vFlg)}, {s(sFLG,4)}, 0 offen sc1"
    N1, N3 = OPT["n1"], OPT["n3"]
    a(f"  s_cmp_gt_u32 s{sO2}, {NB*8192 // 6 - 2}\n  s_cbranch_scc1 L_noearly")
    a(flag3)
    a.label("L_noearly")
    a(f"""
  buffer_load_dwordx4 {v(Q,4)}, {v(vTab)}, {s(sTAB,4)}, 0 offen sc1
  buffer_load_dwordx2 {v(Q+4,2)}, {v(vTab)}, {s(sTAB,4)}, 0 offen offset:16 sc1""")
    gv.extend([("tab", 0), ("tab", 1)])
    for r in range(NB, NS): rd(r)
    nxt = NB + N1
    for r in range(NB, nxt):
        a(f"  s_waitcnt lgkmcnt({NS - 1 - r})")
        st(r, gv)
    a(f"""
  s_waitcnt lgkmcnt(0)
  s_cmp_gt_u32 s{sO2}, {NB*8192 // 6 - 2}
  s_cbranch_scc1 L_allfirst
  s_barrier""")
    a.label("L_allfirst_back")
    stamp(a, 252, 46)
    pend = list(range(nxt, NS))
    keep = OPT["n3"]
    slot = [0]
    def st1(n=1):
        on = OPT["smask"] >> slot[0] & 1 or n > 1
        slot[0] += 1
        for _ in range(n):
            if on and len(pend) > keep: st(pend.pop(0), gv)
    st1()
    DI = [RING[0] + p for p in range(14)]
    H = Da
    a(f"""
  s_mul_i32 s{sX}, s{sW}, 3584
  s_add_u32 s{sX}, s{sX}, {RB_OFF}
  v_and_b32 {v(T+8)}, 63, v0
  v_lshl_add_u32 {v(T+9)}, {v(T+8)}, 3, s{sX}
  v_lshl_add_u32 {v(T+8)}, {v(T+8)}, 2, s{sX}
  ds_write_b64 {v(T+9)}, {v(rDist,2)}
  ds_write_b64 {v(T+9)}, {v(rSbf,2)} offset:512
  ds_write_b64 {v(T+9)}, {v(rUp,2)} offset:1024
  ds_write_b32 {v(T+8)}, {v(rRbf)} offset:1536
  ds_write_b64 {v(T+9)}, {v(rDown,2)} offset:2048
  v_and_b32 {v(T+4)}, 15, v0
  v_bfe_u32 {v(T+8)}, v0, 4, 2
  v_lshl_add_u32 {v(T+4)}, {v(T+4)}, 1, s{sX}
  v_lshl_add_u32 {v(T+5)}, {v(T+8)}, 7, {v(T+4)}
  v_lshl_add_u32 {v(T+6)}, {v(T+8)}, 6, {v(T+4)}
  v_lshl_add_u32 {v(T+7)}, {v(vHalf)}, 4, {v(T+4)}
  ds_read_u16 {v(WS0)}, {v(T+5)} offset:512
  ds_read_u16 {v(WS1)}, {v(T+5)} offset:{512+32}
  ds_read_u16 {v(WS0+1)}, {v(T+5)} offset:{512+64}
  ds_read_u16 {v(WS1+1)}, {v(T+5)} offset:{512+96}
  ds_read_u16 {v(WUP)}, {v(T+5)} offset:1024
  ds_read_u16 {v(H+10)}, {v(T+5)} offset:{1024+32}
  ds_read_u16 {v(WUP+1)}, {v(T+5)} offset:{1024+64}
  ds_read_u16 {v(H+11)}, {v(T+5)} offset:{1024+96}
  ds_read_u16 {v(WR)}, {v(T+6)} offset:1536
  ds_read_u16 {v(WR+1)}, {v(T+6)} offset:{1536+32}""")
    st1()
    for r in range(8): a(f"  ds_read_u16 {v(Wa+r)}, {v(T+7)} offset:{2048+r*32}")
    for p in range(13): a(f"  ds_read_u16 {v(DI[p])}, {v(T+4)} offset:{p*32}")
    st1()
    a(f"""
  s_mul_i32 s{sFl}, s{sJ}, {2*CARLIST}
  s_add_u32 s{sFl}, s{sFl}, {CAROFF}""")
    srd(a, sREC, sWS, sWS+1, None, NCH * CH * 6)
    srd(a, sM, 48, 49, None, E * 32)
    srd(a, sCAR, sWS, sWS+1, f"s{sFl}", 2 * CARLIST)
    srd(a, sOUT, 70, 71, None, f"s{sRb}")
    srd(a, sMW, 48, 49, None, f"s{sRb}")
    for t in list(range(3, 9)) + [sdt(r) for r in range(NB)]: zero_acc(t)
    st1()
    a(f"""
  v_mov_b32 {v(vSent)}, 0x7ffff
  v_mov_b32 {v(T)}, 0
  v_mov_b32 {v(T+1)}, {v(vSent)}
  v_mov_b32 {v(T+2)}, 0
  v_mov_b32 {v(T+3)}, {v(vSent)}
  v_add_u32 {v(T+6)}, {7*8192}, {v(vL16)}""")
    for r in range(13):
        a(f"  ds_write_b128 {v(vL16 if r < 7 else T+6)}, {v(T,4)} offset:{(r%7)*8192}")
        if r % 5 == 4: st1()
    a(f"""
  v_and_b32 {v(T+6)}, 15, v0
  v_lshl_add_u32 {v(T+6)}, {v(T+6)}, 2, {v(vCtlN)}
  ds_write_b32 {v(T+6)}, {v(vZ)}
  ds_write_b128 {v(vSrd)}, {v(ACC[3],4)}""")
    for q in range(D): a(f"  v_mov_b32 {v(SA[q])}, {v(vSst)}\n  v_mov_b32 {v(CC[q])}, 0")
    gwait(("tab", 1))
    a(f"  v_lshrrev_b32 {v(rem)}, 16, {v(Q)}")
    for i in range(1, K):
        a(f"  v_lshrrev_b32 {v(T+4)}, 16, {v(Q+i)}\n  v_add_u32 {v(rem)}, {v(rem)}, {v(T+4)}")
    state_update()
    for u in range(0, 16, 2):
        a(f"""
  v_add_u32_dpp {v(REC[u])}, {v(vB6)}, {v(vI6)} {bc(u)}
  v_sub_u32_dpp {v(REC[u]+1)}, {v(vRT4)}, {v(vI4)} {bc(u)}
  v_add_u32_dpp {v(REC[u+1])}, {v(vB6)}, {v(vI6)} {bc(u+1)}
  v_sub_u32_dpp {v(REC[u+1]+1)}, {v(vRT4)}, {v(vI4)} {bc(u+1)}
  v_bfi_b32 {v(REC[u])}, {v(vMsk)}, {v(REC[u])}, {v(REC[u]+1)}
  v_bfi_b32 {v(REC[u+1])}, {v(vMsk)}, {v(REC[u+1])}, {v(REC[u+1]+1)}""")
        if u % 4 == 2: st1()
    state_update2()
    state_update()
    state_update2()
    st1()
    CEN = H + 8
    a(f"""
  v_mov_b32 {v(CEN+1)}, s56
  v_cmp_eq_u32 vcc, 1, {v(T+8)}
  v_mov_b32 {v(CEN)}, s57
  v_cmp_eq_u32 {s(sT,2)}, 2, {v(T+8)}
  v_cndmask_b32 {v(CEN+1)}, {v(CEN+1)}, {v(CEN)}, vcc
  v_mov_b32 {v(CEN)}, s58
  v_cmp_eq_u32 vcc, 3, {v(T+8)}
  v_cndmask_b32 {v(CEN+1)}, {v(CEN+1)}, {v(CEN)}, {s(sT,2)}
  v_mov_b32 {v(CEN)}, s59
  v_cndmask_b32 {v(CEN+1)}, {v(CEN+1)}, {v(CEN)}, vcc
  v_lshlrev_b32 {v(CEN)}, 16, {v(CEN+1)}
  v_and_b32 {v(CEN+1)}, 0xffff0000, {v(CEN+1)}
  s_mov_b32 s{sC10}, 0xc1200000
  s_mov_b32 s{sC10+1}, 0xc1200000
  s_mov_b32 s{sCl2}, 0x3fb8aa3b
  s_mov_b32 s{sCl2+1}, 0x3fb8aa3b
  v_and_b32 {v(T+8)}, 1, {v(T+8)}
  v_cmp_eq_u32 vcc, 1, {v(T+8)}
  s_waitcnt lgkmcnt(0)
  v_lshl_or_b32 {v(WS0)}, {v(WS0+1)}, 16, {v(WS0)}
  v_lshl_or_b32 {v(WS1)}, {v(WS1+1)}, 16, {v(WS1)}
  v_lshl_or_b32 {v(WUP)}, {v(H+10)}, 16, {v(WUP)}
  v_lshl_or_b32 {v(WUP+1)}, {v(H+11)}, 16, {v(WUP+1)}
  v_lshl_or_b32 {v(WR)}, {v(WR+1)}, 16, {v(WR)}
  v_mov_b32 {v(WS0+1)}, 0
  v_mov_b32 {v(WS1+1)}, 0
  v_mov_b32 {v(WR+1)}, 0
  v_mov_b32 {v(DI[13])}, 0""")
    for r in range(4): a(f"  v_lshl_or_b32 {v(H+r)}, {v(Wa+2*r+1)}, 16, {v(Wa+2*r)}")
    for r in range(4):
        a(f"  v_cndmask_b32 {v(Wa+r)}, {v(H+r)}, {v(vZ)}, vcc")
        a(f"  v_cndmask_b32 {v(Wb+r)}, {v(vZ)}, {v(H+r)}, vcc")
    for ps in ([0,1,2,3], [4,5,6,7], [8,9,10], [11,12]):
        p0 = ps[0]
        tt = {p: H + 2 * (p - p0) for p in ps}
        def rnd():
            for p in ps: a(f"  v_cvt_pk_bf16_f32 {v(tt[p])}, 0, {v(tt[p])}\n  v_cvt_pk_bf16_f32 {v(tt[p]+1)}, 0, {v(tt[p]+1)}")
        for p in ps: a(f"  v_lshlrev_b32 {v(tt[p])}, 16, {v(DI[p])}")
        for p in ps: a(f"  v_pk_add_f32 {v(tt[p],2)}, {v(tt[p],2)}, {v(CEN,2)} op_sel_hi:[0,1] neg_lo:[0,1] neg_hi:[0,1]")
        rnd()
        for p in ps: a(f"  v_pk_mul_f32 {v(tt[p],2)}, {v(tt[p],2)}, {v(tt[p],2)}")
        rnd()
        for p in ps: a(f"  v_pk_mul_f32 {v(tt[p],2)}, {v(tt[p],2)}, {s(sC10,2)}")
        rnd()
        for p in ps: a(f"  v_pk_mul_f32 {v(tt[p],2)}, {v(tt[p],2)}, {s(sCl2,2)}")
        for p in ps: a(f"  v_exp_f32 {v(tt[p])}, {v(tt[p])}\n  v_exp_f32 {v(tt[p]+1)}, {v(tt[p]+1)}")
        for p in ps: a(f"  v_cvt_pk_bf16_f32 {v(DI[p])}, {v(tt[p])}, {v(tt[p]+1)}")
        st1()
    st1(NS)
    print("store slots", slot[0])
    for h in range(7):
        a(f"  ds_write_b64 {v(T+9)}, {v(DI[2*h],2)} offset:{h*512}")
    nx3 = NS - len(pend)
    for r in range(NB, nx3): zero_acc(sdt(r))
    for q in range(D):
        a(f"  v_mov_b64 {v(RING[q],2)}, 0\n  v_mov_b64 {v(RING[q]+2,2)}, 0")
    stamp(a, 252, 47)
    if OPT["pf0"] == 3:
        share = (OPT["wmain"] // 4 + 31) // 32
        a(f"""
  s_cmp_eq_u32 s{sW}, 0
  s_cbranch_scc1 L_nopf
  s_lshr_b32 s{sX}, s2, 3
  s_mul_i32 s{sX}, s{sX}, {share*128}
  v_lshlrev_b32 {v(TA[1])}, 7, v0
  buffer_load_dword {v(WW[1])}, {v(TA[1])}, {s(sM,4)}, s{sX} offen""")
        a.label("L_nopf")
    a(f"  s_cmp_lg_u32 s{sW}, 0\n  s_cbranch_scc1 L_polled_b")
    poll("b", flag_load(FP, RK[0]), flag_cond(FP, 2), OPT["nap"])
    a("  s_waitcnt lgkmcnt(0)")
    a("  s_barrier")
    stamp(a, 252, 1)
    def pro_ld(us):
        for u in us:
            a(f"  buffer_load_dwordx2 {v(REC[u],2)}, {v(REC[u])}, {s(sREC,4)}, 0 offen{RPOL}")
            gv.append(("rec", u))
    NL0 = OPT["nl0"]
    pro_ld(range(NL0))
    NG = NS
    stamp(a, 252, 12)
    set_flag("pro")
    stamp(a, 252, 13)
    PTA = lambda u: Da + u
    PRK = lambda u: RING[0] + u
    PMK = lambda u: sPM + 2 * (u % 8)
    slowg = []
    def pro_ins1(g):
        us = range(4*g, 4*g+4)
        gwait(("rec", 4*g+3))
        for u in us:
            a(f"""
  v_cmp_gt_i32 vcc, 0, {v(REC[u])}
  v_min_i32 {v(PTA(u))}, {v(REC[u])}, {v(REC[u]+1)}
  v_cmp_gt_i32 {s(PMK(u),2)}, 0, {v(PTA(u))}
  v_cndmask_b32_sdwa {v(REC[u])}, {v(REC[u])}, {v(REC[u]+1)}, vcc {SDWA}
  v_mov_b32 {v(REC[u]+1)}, {v(PTA(u))}""")
        for u in us: a(f"  v_bfe_u32 {v(PTA(u))}, {v(PTA(u))}, 23, 8")
        for u in us: a(f"  v_mul_u32_u24 {v(PTA(u))}, {v(PTA(u))}, {v(v264)}")
        for u in us: a(f"  s_mov_b64 exec, {s(PMK(u),2)}\n  ds_add_rtn_u32 {v(PRK(u))}, {v(PTA(u))}, {v(vOne)}")
        a("  s_mov_b64 exec, -1")
    def pro_ins2(g):
        us = list(range(4*g, 4*g+4))
        a(f"""
  v_max3_u32 {v(T)}, {v(PRK(us[0]))}, {v(PRK(us[1]))}, {v(PRK(us[2]))}
  v_max_u32 {v(T)}, {v(T)}, {v(PRK(us[3]))}
  v_cmp_lt_u32 vcc, 31, {v(T)}
  s_cbranch_vccz L_pfast_{g}
  v_cmp_lt_u32 vcc, 63, {v(T)}
  s_cbranch_vccnz L_pslow_{g}""")
        a.label(f"L_pback_{g}")
        for x, u in enumerate(us): a(f"  v_subrev_u32 {v(T+4+x)}, 31, {v(PRK(u))}")
        for x, u in enumerate(us): a(f"  s_mov_b64 exec, {s(PMK(u),2)}\n  ds_max_i32 {v(PTA(u))}, {v(T+4+x)} offset:{BUFSZ}")
        a(f"  s_mov_b64 exec, -1\n  ds_write_b32 {v(vCtlN)}, {v(vOne)} offset:4")
        for x, u in enumerate(us): a(f"  v_lshrrev_b32 {v(T+4+x)}, 5, {v(PRK(u))}")
        for x, u in enumerate(us): a(f"  v_mad_u32_u24 {v(PTA(u))}, {v(T+4+x)}, s{sThr}, {v(PTA(u))}")
        a.label(f"L_pfast_{g}")
        for u in us: a(f"  v_lshl_add_u32 {v(PTA(u))}, {v(PRK(u))}, 3, {v(PTA(u))}")
        for u in us: a(f"  s_mov_b64 exec, {s(PMK(u),2)}\n  ds_write_b64 {v(PTA(u))}, {v(REC[u],2)} offset:8")
        a("  s_mov_b64 exec, -1")
        slowg.append(g)
    a(f"  s_mov_b32 s{sThr}, {BUFSZ - 256}")
    left = list(range(nx3, NS))
    per = (len(left) + 3) // 4
    def some():
        for _ in range(per):
            if left: st(left.pop(0), gv)
    pro_ins1(0)
    stamp(a, 252, 3)
    pro_ld(range(NL0, 16))
    def pf():
        share = (OPT["wmain"] // 4 + 31) // 32
        a(f"""
  s_lshr_b32 s{sX}, s2, 3
  s_mul_i32 s{sX}, s{sX}, {share*128}
  v_lshlrev_b32 {v(TA[1])}, 7, v0
  buffer_load_dword {v(WW[1])}, {v(TA[1])}, {s(sM,4)}, s{sX} offen""")
        gv.append(("pf", 0))
    if OPT["pf0"] == 1:
        while left: st(left.pop(0), gv)
        pf()
    pro_ins1(1)
    some()
    a("  s_waitcnt lgkmcnt(0)")
    pro_ins2(0); some(); pro_ins1(2); pro_ins2(1); some(); pro_ins1(3); some()
    if OPT["pf0"] == 2: pf()
    stamp(a, 252, 8)
    a("  s_nop 0")
    for r in range(nx3, NS): zero_acc(sdt(r))
    a("  s_waitcnt lgkmcnt(0)")
    pro_ins2(2); pro_ins2(3)
    stamp(a, 252, 11)
    a("  s_branch L_turn2")
    def signal_all(tag, n):
        a(f"""
  v_mov_b32 {v(T+4)}, {CTL + 32}
  s_waitcnt vmcnt({n})
  s_mov_b64 exec, 1
  ds_add_rtn_u32 {v(T+5)}, {v(T+4)}, {v(vOne)}
  s_mov_b64 exec, -1
  v_and_b32 {v(T+6)}, 63, v0
  s_lshl_b32 s{sX}, s2, 2
  v_lshl_add_u32 {v(T+6)}, {v(T+6)}, 10, s{sX}
  v_mov_b32 {v(T+7)}, 4
  s_waitcnt lgkmcnt(0)
  v_readfirstlane_b32 s{sX}, {v(T+5)}
  s_cmp_lg_u32 s{sX}, 7
  s_cbranch_scc1 L_nosig_{tag}
  buffer_store_dword {v(T+7)}, {v(T+6)}, {s(sFLG,4)}, 0 offen sc1""")
        a.label(f"L_nosig_{tag}")

    INS0 = OPT["ins0"]
    def cstage_head(q):
        if OPT["abl_s"]: return
        a(f"""
  ds_write_b16 {v(SA[q])}, {v(CC[q])}
  ds_read_b128 {v(Sf,4)}, {v(vSrd)}
  ds_write_b16 {v(SA[q])}, {v(vZ)}""")
    def cstage_m1(q):
        if OPT["abl_mfma"]: return
        a(f"""
  v_mfma_f32_16x16x32_bf16 {v(Da,4)}, {v(RING[q],4)}, {v(Wa,4)}, 0
  v_mfma_f32_16x16x32_bf16 {v(Db,4)}, {v(RING[q],4)}, {v(Wb,4)}, 0""")
    def cstage_cvt():
        if OPT["abl_mfma"]: return
        a(f"""
  v_cvt_pk_bf16_f32 {v(P)}, {v(Da)}, {v(Da+1)}
  v_cvt_pk_bf16_f32 {v(P+1)}, {v(Da+2)}, {v(Da+3)}
  v_cvt_pk_bf16_f32 {v(P+2)}, {v(Db)}, {v(Db+1)}
  v_cvt_pk_bf16_f32 {v(P+3)}, {v(Db+2)}, {v(Db+3)}""")
    def cstage_m2(tc):
        if OPT["abl_mfma"]: return
        a(f"  v_mfma_f32_16x16x32_bf16 {v(ACC[tc],4)}, {v(P,4)}, {v(Sf,4)}, {v(ACC[tc],4)}")
    def step_top(t, reset=True):
        a(f"  ; ---- step {t}")
        a("  s_waitcnt lgkmcnt(0)")
        cstage_head(t % D)
        if t < NT - 1:
            a(f"  ds_read_b64 {v(RP[(t+1)&1],2)}, {v(vRd)} offset:{(t+1)*TS+8}")
        if reset and t < NT:
            a(f"  ds_write_b32 {v(vRd)}, {v(vSent)} offset:{t*TS+12}")
    def step_main(t, n, reset=True):
        q = t % D; tc = (t - D) % NT
        rp = RP[t & 1]
        a(f"  s_waitcnt vmcnt({n})")
        cstage_m1(q)
        off, af, e = T + 1, T + 2, T + 3
        a(f"""
  v_and_b32 {v(off)}, {v(vSent)}, {v(rp+1)}
  v_mul_f32 {v(af)}, {v(rp)}, {v(vFreq)}
  v_lshl_add_u32 {v(off)}, {v(off)}, 5, {v(vHalf)}
  v_cvt_pk_bf16_f32 {v(af)}, 0, {v(af)}
  buffer_load_dwordx4 {v(RING[q],4)}, {v(vOOB if OPT["abl_g"] else off)}, {s(sM,4)}, 0 offen
  v_mul_f32 {v(af)}, 0.15915494, {v(af)}
  v_bfe_u32 {v(e)}, {v(rp+1)}, 20, 3
  v_fract_f32 {v(af)}, {v(af)}""")
        cstage_cvt()
        a(f"""
  v_cos_f32 {v(af)}, {v(af)}
  v_lshl_add_u32 {v(SA[q])}, {v(e)}, 4, {v(vSst)}
  s_waitcnt lgkmcnt({(2 if t < NT-1 else 1) + (1 if reset else 0)})""")
        cstage_m2(tc)
        a(f"  v_cvt_pk_bf16_f32 {v(CC[q])}, {v(af)}, {v(af)}")

    order = []
    for t in range(NT):
        if t == 0: order.append(("car", 16))
        u2 = t - INS0 - 1
        EA = OPT["early"]
        if EA: order += [("rec", u) for u in range(EA * t, min(16, EA * t + EA))]
        elif 0 <= u2 < 16: order.append(("rec", u2))
        order.append(("W", t))
        order.append(("g", t))
    tail = [x for x in order[order.index(("g", NT - D)):] if x[0] != "W"]
    assert tail == [("g", t) for t in range(NT - D, NT)], tail
    def younger(target, at):
        n = len(order); i = order.index(target); cnt = 0
        j = (i + 1) % n
        while j != at:
            if order[j][0] != "W": cnt += 1
            j = (j + 1) % n
        return cnt
    first = []
    for x in order:
        if x[0] == "W" and x[1] < 4: first += [("f", 4 * x[1] + i) for i in range(4)]
        first.append(x)
    def younger_first(u, t):
        i = first.index(("f", u)); j = first.index(("W", t))
        return sum(1 for x in first[i+1:j] if x[0] != "W")
    RBH = 1
    def prio(tag, mask, t):
        cur = mask >> t & 1; prev = (mask >> (t - 1) & 1) if t else 0
        if cur and not prev:
            a(f"  s_cmp_lt_u32 s{sW}, 4\n  s_cbranch_scc1 L_{tag}prio{t}\n  s_setprio 1")
            a.label(f"L_{tag}prio{t}")
        if prev and not cur: a("  s_setprio 0")
    assert not OPT["lprio"] >> (NT - 1)
    def step0_extra():
        a(f"""
  v_cmp_gt_u32 vcc, s{sCin}, {v(vCarIdx)}
  s_add_u32 s{sX}, s{sIt}, 2
  s_and_b32 s{sX}, s{sX}, 3
  s_lshl_b32 s{sX}, s{sX}, 3
  s_add_u32 s{sX}, s{sX}, {CTL}
  v_mov_b32 {v(T+1)}, s{sX}
  ds_write_b64 {v(T+1)}, {v(vZ,2)}
  ds_write_b32 {v(vCntA)}, {v(vZ)}
  v_cndmask_b32 {v(T)}, {v(vOOB)}, {v(vCarOff)}, vcc
  buffer_load_dwordx2 {v(REC[16],2)}, {v(T)}, {s(sCAR,4)}, s{sCarR} offen sc1""")
    def state_step(tag):
        a(f"  s_cmp_lg_u32 s{sThr}, 0\n  s_cbranch_scc1 L_nostate_{tag}")
        if tag == "b0":
            QL = Q + OPT['keff'] - 3
            a(f"""
  v_lshrrev_b32 {v(T)}, 16, {v(QL)}
  v_cmp_eq_u32 vcc, 0, {v(nA)}
  v_subrev_u32 {v(T+1)}, {OPT['lim']}, {v(T)}
  v_and_b32 {v(T+2)}, 0xffff, {v(QL)}
  v_max_i32 {v(T+1)}, 0, {v(T+1)}
  v_cndmask_b32 {v(T+1)}, {v(vZ)}, {v(T+1)}, vcc
  v_add_u32 {v(T+2)}, {v(T+2)}, {v(T)}
  v_sub_u32 {v(T+2)}, {v(T+2)}, {v(T+1)}
  v_cndmask_b32 {v(sA)}, {v(sA)}, {v(T+2)}, vcc
  v_add_u32 {v(nA)}, {v(nA)}, {v(T+1)}
  v_lshlrev_b32 {v(T+1)}, 16, {v(T+1)}
  v_sub_u32 {v(QL)}, {v(QL)}, {v(T+1)}""")
        state_update(); state_update2()
        a.label(f"L_nostate_{tag}")
        set_flag(tag)
    a(".p2align 6")
    a.label("L_body0")
    lo = []
    lw = lambda x: len(lo) - 1 - lo.index(x)
    ST0, STP = OPT["st0"], OPT["stp"]
    late = list(range(NG, NS))
    tsig = None
    FC = REC[0]
    FO = REC[2]
    for t in range(NT):
        step_top(t)
        prio("b0", OPT["lprio"], t)
        if t == 0:
            step0_extra(); lo.append(("rec", 16))
        if t < 4:
            for u in range(4*t, 4*t+4):
                rec_load(u, T + 4 + 2 * (u & 1)); lo.append(("rec", u))
        if t == INS0: state_step("b0")
        zs = []
        if t >= ST0:
            for _ in range(STP):
                if late:
                    r = late.pop(0); st(r, lo); zs.append(r)
                    assert sdt(r) + D > t
                    if not late: tsig = t + D + 1
        u1 = t - INS0; u2 = u1 - 1
        if 0 <= u2 < 17: ins2(u2, "b0", u2 & 1)
        if 0 <= u1 < 17:
            a(f"  s_waitcnt vmcnt({lw(('rec', u1))})")
            ins1(u1, f"s{sThr}" if u1 < 16 else "0", u1 & 1)
        else: a("  s_nop 0")
        for r in zs: zero_acc(sdt(r))
        if t == tsig or (NG == NS and t == 2):
            signal_all("b0", lw(("st", NS - 1)) if NG < NS else len(lo))
        if t == INS0 + 18:
            a(f"  s_cmp_gt_u32 s{sCin}, 512\n  s_cbranch_scc1 L_slow_b0")
            a.label("L_slow_back_b0")
        if t == NT - 3:
            a(f"""
  s_cmp_lg_u32 s{sW}, 0
  s_cbranch_scc1 L_noldc
  v_lshlrev_b32 {v(FO)}, 4, v0
  s_and_b32 s{sX}, s2, 7
  s_lshl_b32 s{sX}, s{sX}, 10""")
            a(flag_load(FC, FO))
            a.label("L_noldc")
        step_main(t, lw(("g", t - D)) if t >= D else 62)
        lo.append(("g", t))
    assert not late and (tsig is None or tsig < NT - 3)
    a(f"""
  s_waitcnt vmcnt(3)
  s_cmp_lg_u32 s{sW}, 0
  s_cbranch_scc1 L_turn2""")
    assert NT - (INS0 + 17) >= 3
    a(flag_cond(FC, 4))
    a(f"""
  s_cbranch_vccz L_turn2
  s_and_b32 s{sX}, s2, 7
  s_lshl_b32 s{sX}, s{sX}, 10""")
    poll("c", flag_load(FC, FO), flag_cond(FC, 4), OPT["nap"])
    a("  s_branch L_turn2")

    a(".p2align 6")
    a.label("L_loop")
    for t in range(NT):
        step_top(t)
        if t == 0: step0_extra()
        prio("lp", OPT["lprio"], t)
        if EA:
            for u in range(EA * t, min(16, EA * t + EA)): rec_load(u, T + 4 + 2 * (u & 1))
        if t < 4:
            if not EA: a(f"  s_cmp_eq_u32 s{sIt}, 1\n  s_cbranch_scc1 L_first_{t}")
            a.label(f"L_first_back_{t}")
        if t == INS0: state_step("lp")
        u1 = t - INS0; u2 = u1 - 1
        if 0 <= u2 < 17:
            ins2(u2, "lp", u2 & 1)
            if u2 < 16 and not EA: rec_load(u2, T + 4)
        if 0 <= u1 < 17:
            pos = order.index(("W", t))
            if EA and u1 < 16: n = younger(("rec", u1), pos)
            elif u1 < 16: n = min(younger(("rec", u1), pos), younger_first(u1, t))
            else: n = younger(("car", 16), pos)
            a(f"  s_waitcnt vmcnt({min(n, 62)})")
            ins1(u1, f"s{sThr}" if u1 < 16 else "0", u1 & 1)
        if t == INS0 + 18:
            a(f"  s_cmp_gt_u32 s{sCin}, 512\n  s_cbranch_scc1 L_slow_lp")
            a.label("L_slow_back_lp")
        step_main(t, younger(("g", (t - D) % NT), order.index(("W", t))))
    assert INS0 >= 4 and RBH < NT
    a(f"  s_waitcnt vmcnt({NT - (INS0 + 17)})")
    a.label("L_turn2")
    a(f"""
  v_mov_b32 {v(T)}, {v(vCtlN)}
  s_add_u32 s{sIt}, s{sIt}, 1
  s_add_u32 s{sX}, s{sIt}, 1
  s_and_b32 s{sX}, s{sX}, 3
  s_lshl_b32 s{sX}, s{sX}, 3
  s_add_u32 s{sX}, s{sX}, {CTL}
  v_mov_b32 {v(vCtlN)}, s{sX}
  s_sub_u32 s{sX}, s{sIns}, {BUFSZ}
  s_add_u32 s{sX}, s{sX}, s{sIns}
  v_add_u32 {v(vRd)}, s{sX}, {v(vRd)}
  v_add_u32 {v(vCntA)}, s{sX}, {v(vCntA)}
  s_sub_u32 s{sIns}, {BUFSZ}, s{sIns}
  s_mov_b32 s{sCarR}, s{sCarW}
  s_sub_u32 s{sCarW}, {CARLIST}, s{sCarW}
  s_waitcnt lgkmcnt(0)""")
    if OPT["stamp"] == 1:
        a(f"  s_lshl_b32 s90, s{sIt}, 1\n  s_add_u32 s90, s90, 16\n  s_min_u32 m0, s90, 36")
        stamp(a, 252, "m0")
        a("  s_add_u32 m0, m0, 1")
    a("  s_barrier")
    stamp(a, 252, "m0")
    a(f"""
  ds_read_b64 {v(T+2,2)}, {v(T)}
  ds_read_b64 {v(RP[0],2)}, {v(vRd)} offset:8
  s_waitcnt lgkmcnt(1)
  v_readfirstlane_b32 s{sCin}, {v(T+2)}
  v_readfirstlane_b32 s{sFl}, {v(T+3)}
  s_cmp_gt_u32 s{sCin}, 512
  s_cselect_b32 s{sThr}, 0x80000000, 0
  s_min_u32 s{sCin}, s{sCin}, {CARCAP}
  s_cmp_gt_u32 s{sCin}, 32
  s_cselect_b32 s{sFl}, 1, s{sFl}
  s_cmp_lt_u32 s{sIt}, {OPT['itcap']}
  s_cselect_b32 s{sFl}, s{sFl}, 0
  s_cmp_eq_u32 s{sIt}, {OPT["cut"] - 100 if OPT["cut"] >= 100 else -1}
  s_cbranch_scc1 L_end
  s_cmp_eq_u32 s{sIt}, 0
  s_cbranch_scc1 L_it0
  s_cmp_lg_u32 s{sFl}, 0
  s_cbranch_scc1 L_loop""")
    a.label("L_nosig_z")

    RBv = Q
    assert vRT4 - Q + 1 >= 14
    R0 = REC[0]
    G0, G1, RR, U = R0, R0 + 4, R0 + 8, R0 + 12
    XS0, XS1, XR, AG = R0 + 16, R0 + 18, R0 + 20, R0 + 22
    MS = [R0 + 24 + 2 * i for i in range(5)]
    vMoff, vLin, vOw, vOr = vCarOff, vI6, vI1, vI4
    a(f"""
  v_and_b32 {v(T)}, 63, v0
  s_mul_i32 s{sX}, s{sW}, 3584
  s_add_u32 s{sX}, s{sX}, {RB_OFF}
  v_lshl_add_u32 {v(T+1)}, {v(T)}, 3, s{sX}
  v_lshlrev_b32 {v(vLin)}, 4, {v(T)}
  v_bfe_u32 {v(T+2)}, v0, 4, 2
  v_and_b32 {v(T+3)}, 15, v0
  v_lshlrev_b32 {v(T+2)}, 3, {v(T+2)}
  v_lshl_add_u32 {v(vMoff)}, {v(T+3)}, 5, {v(T+2)}
  s_mul_i32 s{sX}, s{sW}, 6400
  s_add_u32 s{sX}, s{sX}, s{sIns}
  s_add_u32 s{sX}, s{sX}, 15
  s_and_b32 s{sX}, s{sX}, -16
  v_add_u32 {v(vOw)}, s{sX}, {v(vMoff)}
  v_add_u32 {v(vOr)}, s{sX}, {v(vLin)}
  v_cmp_gt_u32 {s(sT,2)}, 8, {v(T+3)}""")
    for h in range(7):
        a(f"  ds_read_b64 {v(RBv+2*h,2)}, {v(T+1)} offset:{h*512}")
    fo = [("g", t - NT) for t in range(NT - D, NT)]
    def fwait(x): return len(fo) - 1 - fo.index(x)
    def s1(p):
        b = RBv + (p & ~1)
        w0, w1 = (WS0, WS1) if p % 2 == 0 else (XS0, XS1)
        a(f"""
  v_mfma_f32_16x16x16_bf16 {v(G0,4)}, {v(w0,2)}, {v(b,2)}, 0
  v_mfma_f32_16x16x16_bf16 {v(G1,4)}, {v(w1,2)}, {v(b,2)}, 0""")
    def s2(p):
        t0 = ACC[2*p]; t1 = ACC[2*p+1] if 2*p+1 < NT else ACC[2*p]
        for r in range(4): a(f"  v_mul_f32 {v(U+r)}, {v(t0+r)}, {v(G0+r)}")
        for r in range(4): a(f"  v_mul_f32_dpp {v(U+r)}, {v(t1+r)}, {v(G0+r)} row_ror:8 row_mask:0xf bank_mask:0xc")
        for r in range(4): a(f"  v_fmac_f32_dpp {v(U+r)}, {v(t0+r)}, {v(G1+r)} row_ror:8 row_mask:0xf bank_mask:0x3")
        for r in range(4): a(f"  v_fmac_f32_dpp {v(U+r)}, {v(t1+r)}, {v(G1+r)} quad_perm:[0,1,2,3] row_mask:0xf bank_mask:0xc")
        a(f"""
  v_cvt_pk_bf16_f32 {v(AG)}, {v(U)}, {v(U+1)}
  v_cvt_pk_bf16_f32 {v(AG+1)}, {v(U+2)}, {v(U+3)}
  v_mfma_f32_16x16x16_bf16 {v(RR,4)}, {v(WR if p % 2 == 0 else XR,2)}, {v(RBv + (p & ~1),2)}, 0""")
        if p + 1 < 13: s1(p + 1)
        else: a("  s_nop 0")
        a(f"  v_mfma_f32_16x16x16_bf16 {v(U,4)}, {v(WUP,2)}, {v(AG,2)}, 0")
    def s3(p):
        x = ACC[2*p]; m_ = MS[p % 5]
        a(f"""
  s_waitcnt vmcnt({fwait(("m", p))})
  v_lshlrev_b32 {v(x)}, 16, {v(m_)}
  v_and_b32 {v(x+1)}, 0xffff0000, {v(m_)}
  v_lshlrev_b32 {v(x+2)}, 16, {v(m_+1)}
  v_and_b32 {v(x+3)}, 0xffff0000, {v(m_+1)}""")
        if p == 12: a("  s_nop 2")
        a(f"""
  v_pk_fma_f32 {v(x,2)}, {v(U,2)}, {v(RR,2)}, {v(x,2)}
  v_pk_fma_f32 {v(x+2,2)}, {v(U+2,2)}, {v(RR+2,2)}, {v(x+2,2)}
  v_cvt_pk_bf16_f32 {v(x)}, {v(x)}, {v(x+1)}
  v_cvt_pk_bf16_f32 {v(x+1)}, {v(x+2)}, {v(x+3)}""")
        if p == 12: a(f"  s_mov_b64 exec, {s(sT,2)}")
        a(f"  ds_write_b64 {v(vOw)}, {v(x,2)} offset:{p*512}")
        if p == 12: a(f"  s_mov_b64 exec, -1")
        if p % 2 == 1 or p == 12:
            r = p // 2
            a(f"  ds_read_b128 {v(ACC[4*r+1 if r < 6 else 23],4)}, {v(vOr)} offset:{r*1024}")
    def s4(r):
        a(f"  buffer_store_dwordx4 {v(ACC[4*r+1 if r < 6 else 23],4)}, {v(vLin)}, {s(sOUT,4)}, s{sEb if r < 4 else sEb2} offen offset:{(r%4)*1024}{POL[OPT['opol']]}")
        fo.append(("st", r))
    xw = {}
    for t in range(NT + D + 2):
        if t == 6:
            a(f"  s_cmp_lg_u32 s{sCin}, 0\n  s_cbranch_scc1 L_x3")
            a.label("L_x3_back")
            xw[3] = len(fo) - xw[2]
        if t < NT + D: step_top(t, False)
        else: a(f"  ; ---- tail {t}\n  s_waitcnt lgkmcnt(0)")
        prio("fp", OPT["fprio"], t)
        if t in (0, 3):
            n = 1 if t == 0 else 2
            a(f"  s_cmp_lg_u32 s{sCin}, 0\n  s_cbranch_scc1 L_x{n}")
            a.label(f"L_x{n}_back")
            xw[n] = len(fo)
        if t == NT: stamp(a, 252, 4)
        if t == NT + D: stamp(a, 252, 5)
        if t == 1:
            a(f"""
  v_mov_b32 {v(XS0)}, 0
  v_mov_b32 {v(XS0+1)}, {v(WS0)}
  v_mov_b32 {v(XS1)}, 0
  v_mov_b32 {v(XS1+1)}, {v(WS1)}
  v_mov_b32 {v(XR)}, 0
  v_mov_b32 {v(XR+1)}, {v(WR)}""")
        if t == 5: s1(0)
        ts2 = {2*p+7 if p < 12 else 30: p for p in range(13)}
        if t - 2 in ts2 and (ts2[t-2] % 2 == 1): s4(ts2[t-2] // 2)
        if t - 1 in ts2: s3(ts2[t-1])
        if t in ts2: s2(ts2[t])
        if t % 2 == 1 and t // 2 < 13:
            p = t // 2
            a(f"  buffer_load_dwordx2 {v(MS[p%5],2)}, {v(vMoff)}, {s(sMW,4)}, s{sEb if p < 8 else sEb2} offen offset:{(p%8)*512}{POL[OPT['mpol']]}")
            fo.append(("m", p))
        if t < NT:
            step_main(t, fwait(("g", t - D)), False)
            fo.append(("g", t))
        elif t < NT + D:
            a(f"  s_waitcnt vmcnt({fwait(('g', t - D))})")
            cstage_m1(t % D)
            a("  s_nop 6")
            cstage_cvt()
            a("  s_waitcnt lgkmcnt(0)\n  s_nop 0")
            cstage_m2(t - D)
            a("  s_nop 3")
    a("  s_waitcnt lgkmcnt(0)")
    s4(6)
    stamp(a, 252, 6)
    if OPT["stamp"]: a("  s_waitcnt vmcnt(0)")
    stamp(a, 252, 7); stamp(a, 252, 63, "s_memrealtime")
    if OPT["stamp"] == 1: a(f"  v_writelane_b32 v252, s{sIt}, 61")
    stamp_out(a, 252, sWS, 8, STAMPOFF + 0x200000, 253)
    a.label("L_end")
    a("  s_endpgm")

    sSm, sS2 = sMk
    a.label("L_x1")
    a(f"""
  v_cmp_gt_u32 vcc, s{sCin}, {v(vSlot)}
  v_lshlrev_b32 {v(T)}, 3, {v(vSlot)}
  s_nop 0
  v_cndmask_b32 {v(T)}, {v(vOOB)}, {v(T)}, vcc
  buffer_load_dwordx2 {v(AG,2)}, {v(T)}, {s(sCAR,4)}, s{sCarR} offen sc1
  s_branch L_x1_back""")
    a.label("L_x2")
    a(f"""
  s_mul_i32 s{sX}, s{sW}, {NT}
  s_waitcnt vmcnt({xw[2] - xw[1]})
  v_min_i32 {v(U)}, {v(AG)}, {v(AG+1)}
  v_cmp_gt_i32 vcc, 0, {v(AG)}
  v_bfe_u32 {v(U+2)}, {v(U)}, 23, 8
  v_subrev_u32 {v(U+2)}, s{sX}, {v(U+2)}
  v_cndmask_b32_sdwa {v(U+1)}, {v(AG)}, {v(AG+1)}, vcc dst_sel:WORD_1 dst_unused:UNUSED_PAD src0_sel:WORD_1 src1_sel:WORD_0
  v_cmp_gt_i32 {s(sS2,2)}, 0, {v(U)}
  v_cmp_gt_u32 {s(sSm,2)}, {NT}, {v(U+2)}
  s_and_b64 vcc, {s(sSm,2)}, {s(sS2,2)}
  s_cselect_b32 s{sCin}, s{sCin}, 0
  s_cbranch_scc0 L_x2_back
  v_and_b32 {v(T)}, 0x7ffff, {v(U)}
  v_lshl_add_u32 {v(T)}, {v(T)}, 5, {v(vHalf)}
  v_mul_f32 {v(U+1)}, {v(U+1)}, {v(vFreq)}
  v_cndmask_b32 {v(T)}, {v(vOOB)}, {v(T)}, vcc
  buffer_load_dwordx4 {v(RR,4)}, {v(T)}, {s(sM,4)}, 0 offen
  v_cndmask_b32 {v(U+2)}, {v(vOOB)}, {v(U+2)}, vcc
  v_cvt_pk_bf16_f32 {v(U+1)}, 0, {v(U+1)}
  v_mul_f32 {v(U+1)}, 0.15915494, {v(U+1)}
  v_fract_f32 {v(U+1)}, {v(U+1)}
  v_cos_f32 {v(U+1)}, {v(U+1)}
  v_bfe_u32 {v(U+3)}, {v(U)}, 20, 3
  v_lshl_add_u32 {v(U+3)}, {v(U+3)}, 4, {v(vSst)}
  v_cvt_pk_bf16_f32 {v(U+1)}, {v(U+1)}, {v(U+1)}
  s_branch L_x2_back""")
    a.label("L_x3")
    a(f"""
  s_waitcnt vmcnt({xw[3]})
  v_mfma_f32_16x16x32_bf16 {v(Da,4)}, {v(RR,4)}, {v(Wa,4)}, 0
  v_mfma_f32_16x16x32_bf16 {v(Db,4)}, {v(RR,4)}, {v(Wb,4)}, 0
  s_nop 6""")
    cstage_cvt()
    for t in range(NT):
        a(f"""
  v_cmp_eq_u32 vcc, {t}, {v(U+2)}
  s_cbranch_vccz L_x3_{t}
  s_mov_b64 exec, vcc
  ds_write_b16 {v(U+3)}, {v(U+1)}
  s_mov_b64 exec, -1
  ds_read_b128 {v(Sf,4)}, {v(vSrd)}
  s_mov_b64 exec, vcc
  ds_write_b16 {v(U+3)}, {v(vZ)}
  s_mov_b64 exec, -1
  s_waitcnt lgkmcnt(0)""")
        cstage_m2(t)
        a.label(f"L_x3_{t}")
    a("  s_branch L_x3_back")
    a.label("L_it0")
    a(f"  s_cmp_lg_u32 s{sFl}, 0\n  s_cbranch_scc1 L_body0")
    for r in range(NG, NS): st(r)
    a("  s_nop 0")
    for r in range(NG, NS): zero_acc(sdt(r))
    signal_all("z0", 0)
    a("  s_branch L_nosig_z")
    for t in range(4):
        a.label(f"L_first_{t}")
        for u in range(4*t, 4*t+4): rec_load(u, T + 4 + 2 * (u & 1))
        a(f"  s_branch L_first_back_{t}")
    a.label("L_allfirst")
    a(f"  s_mov_b32 s{sY}, s{sSo}")
    for r in range(NB + N1, NS): st(r)
    a(f"  s_mov_b32 s{sSo}, s{sY}\n  s_waitcnt vmcnt(0)\n  s_barrier\n{flag3}\n  s_branch L_allfirst_back")
    for g in slowg:
        a.label(f"L_pslow_{g}")
        for u in range(4*g, 4*g+4):
            a(f"""
  s_mov_b64 exec, {s(PMK(u),2)}
  v_cmp_lt_u32 vcc, 63, {v(PRK(u))}
  s_cbranch_vccz L_pskip_{u}
  s_andn2_b64 {s(PMK(u),2)}, {s(PMK(u),2)}, vcc
  s_mov_b64 exec, vcc
  ds_add_rtn_u32 {v(T+1)}, {v(vCtlN)}, {v(vOne)}
  s_waitcnt lgkmcnt(0)
  v_lshlrev_b32 {v(T+1)}, 3, {v(T+1)}
  buffer_store_dwordx2 {v(REC[u],2)}, {v(T+1)}, {s(sCAR,4)}, s{sCarW} offen
  s_waitcnt vmcnt(0)""")
            a.label(f"L_pskip_{u}")
        a(f"  s_mov_b64 exec, -1\n  s_branch L_pback_{g}")
    for tag in ("b0", "lp"):
        a.label(f"L_slow_{tag}")
        a(f"  s_mov_b32 s{sX}, 512")
        a.label(f"L_slow_loop_{tag}")
        a(f"""
  v_add_u32 {v(T+1)}, s{sX}, {v(vCarIdx)}
  v_cmp_gt_u32 vcc, s{sCin}, {v(T+1)}
  v_lshlrev_b32 {v(T+1)}, 3, {v(T+1)}
  s_nop 0
  v_cndmask_b32 {v(T+1)}, {v(vOOB)}, {v(T+1)}, vcc
  buffer_load_dwordx2 {v(REC[16],2)}, {v(T+1)}, {s(sCAR,4)}, s{sCarR} offen sc1
  s_waitcnt vmcnt(0)""")
        ins1(16, "0", 0)
        a("  s_waitcnt lgkmcnt(0)")
        ins2(16, "sl" + tag, 0)
        a(f"""
  s_add_u32 s{sX}, s{sX}, 512
  s_cmp_lt_u32 s{sX}, s{sCin}
  s_cbranch_scc1 L_slow_loop_{tag}
  s_waitcnt vmcnt(0)
  s_branch L_slow_back_{tag}""")
    for lab, u, p in rare:
        a.label(f"L_rare_{lab}")
        a(f"""
  s_mov_b64 exec, vcc
  ds_add_rtn_u32 {v(RK[p])}, {v(vCtlN)}, {v(vOne)}
  v_mov_b32 {v(REC[u]+1)}, {v(WW[p])}
  s_waitcnt lgkmcnt(0)
  v_lshlrev_b32 {v(RK[p])}, 3, {v(RK[p])}
  buffer_store_dwordx2 {v(REC[u],2)}, {v(RK[p])}, {s(sCAR,4)}, s{sCarW} offen
  s_andn2_b64 exec, {s(sMk[p],2)}, vcc
  s_branch L_back_{lab}""")
    return NV

def kd(name, nv, ns):
    nv4 = (nv + 3) // 4 * 4
    return f""".amdhsa_kernel {name}
  .amdhsa_next_free_vgpr {nv}
  .amdhsa_next_free_sgpr {ns}
  .amdhsa_accum_offset {nv4}
  .amdhsa_group_segment_fixed_size 0
  .amdhsa_kernarg_size 112
  .amdhsa_user_sgpr_count 2
  .amdhsa_user_sgpr_kernarg_segment_ptr 1
  .amdhsa_system_sgpr_workgroup_id_x 1
  .amdhsa_float_denorm_mode_32 3
.end_amdhsa_kernel
"""

def main():
    out = sys.argv[1]
    ref = open(f"cdna_kernels/{NAME}.s.ref").read().split("\n")
    head = [l for l in ref if l.startswith(";") and "@launch" not in l and "Override" not in l and "grid=ceil" not in l]
    a = Asm()
    a(".amdgcn_target \"amdgcn-amd-amdhsa--gfx950\"\n.text")
    a(f".globl {NAME}_kernel\n.type {NAME}_kernel,@function")
    nv = gen_p2(a)
    errs = a.check()
    for e in errs: print("HAZARD", e)
    txt = "\n".join(head) + "\n"
    kern = f"kernel={NAME}_kernel " if OPT["list"] else ""
    txt += f"; @launch {kern}grid=(256,1,1) block=(512,1,1) lds={P1_LDS}\n"
    if OPT["probe"] >= 0:
        txt += "; @launch kernel=probe_kernel grid=(1,1,1) block=(64,1,1) lds=0\n"
        a(f"""
.p2align 8
probe_kernel:
  s_cmp_ge_u32 s2, 1
  s_cbranch_scc1 P_end
  s_load_dwordx2 s[4:5], s[0:1], 96
  s_waitcnt lgkmcnt(0)
  s_load_dwordx8 s[8:15], s[4:5], 0
  s_memrealtime s[16:17]
  s_waitcnt lgkmcnt(0)
  s_not_b32 s8, s8
  s_sub_u32 s20, s{8 + OPT['probe']}, s8
  {"s_lshr_b32 s20, s%d, 4" % (8 + OPT['probe']) if OPT['probe'] in (5, 7) else "s_nop 0"}
  s_min_u32 s20, s20, 20000
P_loop:
  s_memrealtime s[18:19]
  s_waitcnt lgkmcnt(0)
  s_sub_u32 s21, s18, s16
  s_cmp_lt_u32 s21, s20
  s_cbranch_scc1 P_loop
P_end:
  s_endpgm""")
    txt += a.text()
    txt += ".section .rodata,\"a\"\n.p2align 6\n" + kd(NAME + "_kernel", 256, 102) + (".p2align 6\n" + kd("probe_kernel", 8, 32) if OPT["probe"] >= 0 else "")
    open(out, "w").write(txt)
    print("vgprs p2:", nv, "lines:", len(a.lines), "hazards:", len(errs))

main()
```

```python
import sys, os
sys.path.insert(0, os.path.dirname(__file__))
from asmlib import Asm

NAME = "gather_scatter__molecular_angular_gemnet__graph"
E = 400000
NCH, CH = 250, 25600
EB = 1568
K = 6
MJ = 2739138
TABOFF = 0x2800000
CAROFF = 0x3000000
CARCAP = 9216
CARLIST = CARCAP * 8
STAMPOFF = 0x6000000
FLGOFF = 0x2c00000
OPT = dict(wsoff=0, mq=11, rot=0, pf0=0, a0=2, ag=2, early=0, abl_adj=0, probe=-1, tlb=0, cut=-1, opol=1, mpol=0, tq=3, fq=10, keff=6, jid=0, fprio=0x3ffff, lprio=0x3fff, napt=8, st0=1, stp=1, rb0=2, nap=8, list=1, nb=7, n1=2, n3=4, nl0=8, smask=0x2925, arr=10, spin=60000, rec_pol=2, stamp=0, itcap=64, ld_nt=7, st_pol=0, mtouch=0, la=3, apre=2, wmain=70000, b5=0, lim=24, nb2=7, ins0=4,
           abl_mfma=0, abl_s=0, abl_cos=0, abl_g=0)
for a in sys.argv[2:]:
    k, v = a.split("=")
    assert k in OPT, k
    OPT[k] = int(v, 0)
MK = -(-(1 << 32) // OPT["wmain"])
assert (399999 * MK) >> 32 <= 5

RPOL = ('', ' nt', ' sc1', ' sc0 sc1')[OPT['rec_pol']]

POL = ('', ' nt', ' sc1', ' sc0 sc1')

def v(i, n=1):
    return f"v{i}" if n == 1 else f"v[{i}:{i+n-1}]"
def s(i, n=1):
    return f"s{i}" if n == 1 else f"s[{i}:{i+n-1}]"

def stamp(a, vreg, lane, op="s_memtime"):
    if lane == OPT["cut"]: a("  s_endpgm")
    if not OPT["stamp"]: return
    if OPT["stamp"] == 2:
        mp = {62: (0, 1), 42: (1, 0), 45: (2, 0), 1: (3, 0), 11: (4, 0), 63: (6, 0)}
        if lane == 0:
            a("  s_memtime s[88:89]\n  s_waitcnt lgkmcnt(0)\n  s_mov_b32 s91, s88")
        if lane in (11, 7):
            a(f"  s_memtime s[88:89]\n  s_waitcnt lgkmcnt(0)\n  s_sub_u32 s88, s88, s91\n  v_writelane_b32 v{vreg}, s88, {5 if lane == 11 else 7}")
        if lane not in mp: return
        l, inv = mp[lane]
        a(f"  s_memrealtime s[88:89]\n  s_waitcnt lgkmcnt(0)")
        if inv: a("  s_not_b32 s88, s88")
        a(f"  v_writelane_b32 v{vreg}, s88, {l}")
        return
    a(f"  {op} s[88:89]\n  s_waitcnt lgkmcnt(0)\n  v_writelane_b32 v{vreg}, s88, {lane}")
def stamp_out(a, vreg, wslo, nwaves, base, tmp):
    if not OPT["stamp"]: return
    if OPT["stamp"] == 2:
        back = 512
        a(f"""
  s_load_dwordx2 s[90:91], s[0:1], 96
  s_waitcnt lgkmcnt(0)
  s_add_u32 s92, s90, {back}
  s_addc_u32 s93, s91, 0
  s_mov_b32 s94, 32
  s_mov_b32 s95, 0x20000
  v_lshlrev_b32 v{tmp}, 2, v0
  buffer_atomic_umax v{vreg}, v{tmp}, s[92:95], 0 offen""")
        return
    a(f"  s_mul_i32 s88, s2, {nwaves*256}\n  s_add_u32 s88, s88, {base}")
    srd(a, 92, wslo, wslo+1, "s88", nwaves*256)
    a(f"  v_lshlrev_b32 v{tmp}, 2, v0\n  buffer_store_dword v{vreg}, v{tmp}, s[92:95], 0 offen")

def srd(a, d, lo, hi, add, size):
    if add is None:
        a(f"  s_mov_b32 s{d}, s{lo}\n  s_mov_b32 s{d+1}, s{hi}")
    else:
        a(f"  s_add_u32 s{d}, s{lo}, {add}\n  s_addc_u32 s{d+1}, s{hi}, 0")
    a(f"  s_mov_b32 s{d+2}, {size}\n  s_mov_b32 s{d+3}, 0x20000")

P1_CNT, P1_SENT, P1_TMP, P1_REC = 0, 6144, 6160, 6272
P1_LDS = P1_REC + CH * 6

TS = 264
BUFSZ = 200 * TS
S_OFF = 13 * 8192
CTL = S_OFF + 8192
RB_OFF = CTL + 128
P2_LDS = RB_OFF + 8 * 3584
D = 5
NT = 25

class RA:
    def __init__(self, start): self.n = start
    def __call__(self, k=1, al=1):
        self.n = (self.n + al - 1) // al * al
        r = self.n; self.n += k
        return r

def gen_p2(a):
    ra = RA(1)
    vSlot, vHalf, vFreq, vSst, vSrd, vI6, vI1, vI4 = (ra() for _ in range(8))
    vRd, vCntA, vOne, vOOB, vCarOff, vCarIdx, v264, vMsk, vCtlN = (ra() for _ in range(9))
    vZ = ra(2, 2)
    Q = ra(6, 4)
    sA, nA, cb, rem, rtot, vA6, vB6, vR0, vRT4 = (ra() for _ in range(9))
    vCnt = ra()
    Wa = ra(4, 4); Wb = ra(4, 4)
    RING = [ra(4, 4) for _ in range(D)]
    Da = ra(4, 4); Db = ra(4, 4); P = ra(4, 4); Sf = ra(4, 4)
    ACC = [ra(4, 4) for _ in range(NT)]
    REC = [ra(2, 4 if i == 0 else 2) for i in range(17)]
    RP = [ra(2, 2), ra(2, 2)]
    T = ra(10, 2)
    TA = [ra(), ra()]; RK = [ra(), ra()]
    WS0 = ra(2, 2); WS1 = ra(2, 2); WR = ra(2, 2); WUP = ra(2, 2)
    CC = [ra() for _ in range(D)]; SA = [ra() for _ in range(D)]
    WW = [ra(), ra()]
    assert ra.n <= 252, ra.n
    NV = ra.n
    sM = 4; sREC = 8; sCAR = 12; sTAB = 16; sOUT = 20; sDIST = 24; sMW = 28
    sJ, sW, sIt, sThr, sIns, sCarW, sCarR, sRb, sCin, sX, sFl, sEb = range(32, 44)
    sCnt = [44, 45]
    sWS = 46
    sPM = 72
    sMk = [72, 74]; sT = 76; sC10 = 78; sCl2 = 80
    sEb2 = 3
    rare = []

    O, I, R, A = 36, 88, 140, 192
    PT = 218
    _, vL8, vL4, vL128, vSix, vTwo, vFlg, vDum, vTab, vWo = range(234, 244)
    vL16 = WW[0]
    rDist, rSbf, rUp, rDown, rRbf = 86, 248, 190, 232, 217
    assert Wa == 36 and T == PT
    vSent = vCnt
    sIO, sII, sAN, sMT, sTW, sDBG = 4, 8, 12, 16, 20, 24
    sFLG, sRW = 92, 96
    sMJ, sMK, sNEB, sB5, sO4, sO2 = range(80, 86)
    sY, sSo = 100, 101
    nto, nti, nta = (" nt" if OPT["ld_nt"] >> b & 1 else "" for b in range(3))
    NR = 13
    nrec = lambda q: 4 if q < 12 else 2
    vm = []
    def ld_pair(q):
        if q < 12:
            a(f"  buffer_load_dwordx4 {v(O+4*q,4)}, {v(vL16)}, {s(sIO,4)}, s{sO4} offen{nto}")
            a(f"  buffer_load_dwordx4 {v(I+4*q,4)}, {v(vL16)}, {s(sII,4)}, s{sO4} offen{nti}")
            a(f"  s_add_u32 s{sO4}, s{sO4}, 8192")
        else:
            a(f"  buffer_load_dwordx2 {v(O+48,2)}, {v(vL8)}, {s(sIO,4)}, s{sO4} offen{nto}")
            a(f"  buffer_load_dwordx2 {v(I+48,2)}, {v(vL8)}, {s(sII,4)}, s{sO4} offen{nti}")
        vm.extend([("o", q), ("p", q)])
    def ld_ang(q):
        if q < 12:
            a(f"  buffer_load_dwordx2 {v(A+2*q,2)}, {v(vL8)}, {s(sAN,4)}, s{sO2} offen{nta}")
            a(f"  s_add_u32 s{sO2}, s{sO2}, 4096")
        else: a(f"  buffer_load_dword {v(A+24)}, {v(vL4)}, {s(sAN,4)}, s{sO2} offen{nta}")
        vm.append(("a", q))
    def wait_for(x):
        a(f"  s_waitcnt vmcnt({len(vm) - 1 - vm.index(x)})")
    def poll(tag, load, cond, nap=4):
        a(f"  s_mov_b32 s{sY}, {OPT['spin']}")
        a.label(f"L_poll_{tag}")
        a(load)
        a("  s_waitcnt vmcnt(0)")
        a(cond)
        a(f"""
  s_cbranch_vccz L_polled_{tag}
  s_sleep {nap}
  s_sub_u32 s{sY}, s{sY}, 1
  s_cbranch_scc0 L_poll_{tag}""")
        a.label(f"L_polled_{tag}")

    a(".p2align 8")
    a.label(NAME + "_kernel")
    a(f"""
  s_cmp_ge_u32 s2, 256
  s_cbranch_scc1 L_end
  s_load_dwordx16 s[48:63], s[0:1], 0
  s_load_dwordx4 s[44:47], s[0:1], 96
  s_load_dwordx8 s[64:71], s[0:1], 64
  v_lshlrev_b32 {v(vL16)}, 4, v0
  v_mov_b64 {v(PT,2)}, 0
  v_mov_b64 {v(PT+2,2)}, 0
  s_min_u32 s{sY}, s2, {NCH-1}
  s_mul_i32 s{sX}, s{sY}, {CH*4}
  s_cmp_lt_u32 s2, {NCH}
  s_cselect_b32 s{sFl}, {CH*2}, 0
  s_lshl_b32 s{sCin}, s{sFl}, 1
  s_mov_b32 s{sO4}, 0
  s_mov_b32 s{sO2}, 0
  ds_write_b128 {v(vL16)}, {v(PT,4)}
  v_lshrrev_b32 {v(T+8)}, 6, v0
  s_and_b32 s{sJ}, s2, 7
  s_lshl_b32 s{sJ}, s{sJ}, 5
  s_lshr_b32 s{sEb}, s2, 3
  s_add_u32 s{sJ}, s{sJ}, s{sEb}
  v_readfirstlane_b32 s{sW}, {v(T+8)}
  v_and_b32 {v(T+7)}, 63, v0
  v_lshlrev_b32 {v(T+6)}, 3, {v(T+7)}
  v_lshlrev_b32 {v(T+7)}, 2, {v(T+7)}
  s_mul_i32 s{sEb}, s{sJ}, {EB*2}
  s_mul_i32 s{sRb}, s{sW}, 400
  s_add_u32 s{sEb}, s{sEb}, s{sRb}
  s_waitcnt lgkmcnt(0)""")
    if OPT["stamp"] == 2: a("  v_mov_b32 v252, 0\n  s_nop 1")
    stamp(a, 252, 0); stamp(a, 252, 62, "s_memrealtime")
    srd(a, sIO, 52, 53, f"s{sX}", f"s{sCin}")
    srd(a, sII, 50, 51, f"s{sX}", f"s{sCin}")
    ld_pair(0)
    if OPT["wsoff"]: a(f"  s_add_u32 s{sWS}, s{sWS}, {OPT['wsoff'] << 20}\n  s_addc_u32 s{sWS+1}, s{sWS+1}, 0")
    srd(a, 28, 54, 55, None, E * 2)
    a(f"""
  buffer_load_dwordx2 {v(rDist,2)}, {v(T+6)}, s[28:31], s{sEb} offen
  global_load_dwordx2 {v(rSbf,2)}, {v(T+6)}, s[64:65]
  global_load_dwordx2 {v(rUp,2)}, {v(T+6)}, s[68:69]
  global_load_dwordx2 {v(rDown,2)}, {v(T+6)}, s[66:67]
  global_load_dword {v(rRbf)}, {v(T+7)}, s[62:63]""")
    vm.extend([("s", i) for i in range(5)])
    ld_pair(1)
    a("  s_barrier")
    LA = OPT["la"]
    for q in range(2, LA): ld_pair(q)
    a(f"  s_lshr_b32 s{sX}, s{sX}, 1")
    srd(a, sAN, 56, 57, f"s{sX}", f"s{sFl}")
    srd(a, sMT, 48, 49, f"s{sX}", f"s{sFl}")
    a(f"  s_mul_i32 s{sX}, s{sY}, {CH*6}\n  s_mul_i32 s{sFl}, s{sFl}, 3")
    srd(a, sRW, sWS, sWS+1, f"s{sX}", f"s{sFl}")
    srd(a, sTW, sWS, sWS+1, TABOFF, 256 * 8192)
    srd(a, sFLG, sWS, sWS+1, FLGOFF, 8192)
    srd(a, sDBG, 44, 45, None, 256)
    a(f"""
  s_lshl_b32 s{sX}, s2, 2
  v_lshl_add_u32 {v(vFlg)}, v0, 10, s{sX}
  s_cmp_lt_u32 s2, {NCH}
  s_cselect_b32 s{sX}, 0, 4
  v_mov_b32 {v(vDum)}, s{sX}
  buffer_store_dword {v(vDum)}, {v(vFlg)}, {s(sFLG,4)}, 0 offen sc1
  s_lshl_b32 s{sX}, s{sX}, 20
  v_or_b32 {v(vFlg)}, s{sX}, {v(vFlg)}
  s_load_dword s{sCin}, s[60:61], 0
  s_load_dwordx4 s[56:59], s[58:59], 0
  v_lshlrev_b32 {v(vL8)}, 3, v0
  v_lshlrev_b32 {v(vL4)}, 2, v0
  {'v_mov_b32 %s, %d' % (v(vL128), E//8) if OPT['rot'] == 2 else 'v_lshlrev_b32 %s, 7, v0' % v(vL128)}
  v_mov_b32 {v(vSix)}, 6
  v_mov_b32 {v(vTwo)}, 2
  s_mov_b32 s{sMJ}, {MJ}
  s_mov_b32 s{sMK}, {MK}
  s_mov_b32 s{sNEB}, {-EB & 0xffffffff}
  s_mov_b32 s{sB5}, {(-(E//8) & 0xffffffff) if OPT['rot'] else OPT['b5']}
  v_lshrrev_b32 {v(T)}, 6, v0
  v_and_b32 {v(T+2)}, 15, v0
  v_bfe_u32 {v(T+3)}, v0, 5, 1
  v_lshlrev_b32 {v(vHalf)}, 4, {v(T+3)}
  v_lshl_add_u32 {v(cb)}, {v(T)}, 5, {v(vHalf)}
  v_add_u32 {v(cb)}, {v(cb)}, {v(T+2)}
  v_lshlrev_b32 {v(vTab)}, 13, {v(cb)}
  v_and_b32 {v(T+1)}, 63, v0
  v_and_b32 {v(vSlot)}, 31, v0
  v_mov_b64 {v(vZ,2)}, 0
  v_mov_b32 {v(v264)}, {TS}
  v_mov_b32 {v(vCtlN)}, {CTL}
  s_lshl_b32 s{sX}, s{sW}, 10
  s_add_u32 s{sX}, s{sX}, {S_OFF}
  v_lshl_add_u32 {v(vSrd)}, {v(T+1)}, 4, s{sX}
  v_bfe_u32 {v(T+6)}, v0, 2, 2
  v_lshlrev_b32 {v(vSst)}, 8, {v(T+6)}
  v_lshl_add_u32 {v(vSst)}, {v(T+3)}, 7, {v(vSst)}
  v_bfe_u32 {v(T+6)}, v0, 4, 1
  v_lshl_add_u32 {v(vSst)}, {v(T+6)}, 3, {v(vSst)}
  v_and_b32 {v(T+6)}, 3, v0
  v_lshl_add_u32 {v(vSst)}, {v(T+6)}, 1, {v(vSst)}
  v_add_u32 {v(vSst)}, s{sX}, {v(vSst)}
  v_mov_b32 {v(vOne)}, 1
  v_mov_b32 {v(vOOB)}, 0x80000000
  v_mov_b32 {v(vMsk)}, 0x7ffffffc
  v_mul_u32_u24 {v(vI6)}, 6, {v(vSlot)}
  v_add_u32 {v(vI1)}, 1, {v(vSlot)}
  v_lshlrev_b32 {v(vI4)}, 2, {v(vI1)}
  v_mov_b32 {v(T+6)}, {CH}
  v_mul_u32_u24 {v(cb)}, {v(cb)}, {v(T+6)}
  v_mov_b32 {v(sA)}, 0
  v_mov_b32 {v(nA)}, 0
  v_mov_b32 {v(rtot)}, 0
  s_mul_i32 s{sX}, s{sW}, {NT*TS}
  s_add_u32 s{sX}, s{sX}, {BUFSZ}
  v_lshl_add_u32 {v(vRd)}, {v(vSlot)}, 3, s{sX}""")
    if OPT["abl_adj"]:
        a(f"""
  v_bfe_u32 {v(T+6)}, v0, 1, 5
  v_lshl_add_u32 {v(vRd)}, {v(T+6)}, 3, s{sX}
  v_and_b32 {v(vHalf)}, 1, v0
  v_lshlrev_b32 {v(vHalf)}, 4, {v(vHalf)}""")
    a(f"""
  v_min_u32 {v(T+6)}, {NT-1}, {v(T+1)}
  v_mad_u32_u24 {v(vCntA)}, {v(T+6)}, {v(v264)}, s{sX}
  v_sub_u32 {v(vCarIdx)}, 511, v0
  v_lshlrev_b32 {v(vCarOff)}, 3, {v(vCarIdx)}
  v_cmp_eq_u32 vcc, 1, {v(T+3)}
  s_waitcnt lgkmcnt(0)
  s_lshl_b32 s{sX}, s{sCin}, 16
  s_and_b32 s{sCin}, s{sCin}, 0xffff0000
  v_mov_b32 {v(vFreq)}, s{sX}
  v_mov_b32 {v(T+6)}, s{sCin}
  v_cndmask_b32 {v(vFreq)}, {v(vFreq)}, {v(T+6)}, vcc
  s_mov_b32 s{sIt}, -1
  s_mov_b32 s{sIns}, 0
  s_mov_b32 s{sCarW}, 0
  s_mov_b32 s{sCarR}, {CARLIST}
  s_mul_i32 s{sEb}, s{sJ}, {EB}
  s_mul_i32 s{sX}, s{sW}, 200
  s_add_u32 s{sFl}, s{sEb}, {EB}
  s_add_u32 s{sEb}, s{sEb}, s{sX}
  s_add_u32 s{sRb}, s{sEb}, 200
  s_min_u32 s{sRb}, s{sRb}, s{sFl}
  s_min_u32 s{sRb}, s{sRb}, {E}
  s_lshl_b32 s{sRb}, s{sRb}, 5
  s_lshl_b32 s{sEb}, s{sEb}, 5
  s_add_u32 s{sEb2}, s{sEb}, 4096""")

    if OPT["tlb"]:
        sh = OPT["tlb"]
        srd(a, 28, sWS, sWS+1, None, FLGOFF + 8192)
        a(f"  v_lshlrev_b32 v249, {sh}, v0\n  buffer_load_dword v248, v249, s[28:31], 0 offen")
        srd(a, 28, 48, 49, None, E * 32)
        a(f"  buffer_load_dword v248, v249, s[28:31], 0 offen")
        srd(a, 28, 70, 71, None, E * 32)
        a(f"  buffer_load_dword v248, v249, s[28:31], 0 offen")
        vm.extend([("tlb", i) for i in range(3)])
    a(f"""
  s_cmp_ge_u32 s2, {NCH}
  s_cbranch_scc1 L_nochunk1""")
    vm.append(("flg", 0))
    arrive = f"""
  s_and_b32 s{sY}, s2, 15
  s_lshl_b32 s{sY}, s{sY}, 4
  v_lshlrev_b32 {v(PT)}, 8, v0
  buffer_atomic_add {v(vOne)}, {v(PT)}, {s(sDBG,4)}, s{sY} offen"""
    def hist(idx):
        if OPT["b5"]:
            for x, i in enumerate(idx): a(f"  v_cmp_le_u32 {s(72+2*x,2)}, s{sB5}, {v(I+i)}")
        for x, i in enumerate(idx): a(f"  v_mul_hi_u32_u24 {v(PT+x)}, s{sMJ}, {v(O+i)}")
        if OPT["rot"] == 2:
            for x, i in enumerate(idx): a(f"  v_lshrrev_b32 {v(PT+4+x)}, 5, {v(PT+x)}")
            for x, i in enumerate(idx): a(f"  v_mad_i32_i24 {v(PT+4+x)}, {v(PT+4+x)}, s{sB5}, {v(I+i)}")
            for x, i in enumerate(idx): a(f"  v_cmp_gt_u32 {s(72+2*x,2)}, {v(vL128)}, {v(PT+4+x)}")
            for x, i in enumerate(idx): a(f"  v_ashrrev_i32 {v(PT+4+x)}, 31, {v(PT+4+x)}")
            for x, i in enumerate(idx): a(f"  v_and_b32 {v(PT+4+x)}, {v(vL128)}, {v(PT+4+x)}")
            for x, i in enumerate(idx): a(f"  v_add3_u32 {v(PT+4+x)}, {v(PT+4+x)}, s{sB5}, {v(I+i)}")
            for x, i in enumerate(idx): a(f"  v_mul_hi_u32_u24 {v(PT+4+x)}, s{sMK}, {v(PT+4+x)}")
            for x, i in enumerate(idx): a(f"  v_cndmask_b32 {v(PT+4+x)}, {v(PT+4+x)}, 5, {s(72+2*x,2)}")
        elif OPT["rot"]:
            for x, i in enumerate(idx): a(f"  v_lshrrev_b32 {v(PT+4+x)}, 5, {v(PT+x)}")
            for x, i in enumerate(idx): a(f"  v_mad_i32_i24 {v(PT+4+x)}, {v(PT+4+x)}, s{sB5}, {v(I+i)}")
            for x, i in enumerate(idx): a(f"  v_add_u32 {v(PT+8+x)}, {E - E//8}, {v(PT+4+x)}")
            for x, i in enumerate(idx): a(f"  v_add_u32 {v(PT+4+x)}, s{sB5}, {v(PT+4+x)}")
            for x, i in enumerate(idx): a(f"  v_min_u32 {v(PT+4+x)}, {v(PT+4+x)}, {v(PT+8+x)}")
            for x, i in enumerate(idx): a(f"  v_mul_hi_u32_u24 {v(PT+4+x)}, s{sMK}, {v(PT+4+x)}")
        else:
            for x, i in enumerate(idx): a(f"  v_mul_hi_u32_u24 {v(PT+4+x)}, s{sMK}, {v(I+i)}")
        if OPT["b5"]:
            for x, i in enumerate(idx): a(f"  v_cndmask_b32 {v(PT+4+x)}, {v(PT+4+x)}, 5, {s(72+2*x,2)}")
        for x, i in enumerate(idx): a(f"  v_mad_i32_i24 {v(PT+8+x)}, {v(PT+x)}, s{sNEB}, {v(O+i)}")
        for x, i in enumerate(idx): a(f"  v_lshl_add_u32 {v(O+i)}, {v(PT+4+x)}, 8, {v(PT+x)}")
        for x, i in enumerate(idx): a(f"  v_lshlrev_b32 {v(O+i)}, 2, {v(O+i)}")
        for x, i in enumerate(idx): a(f"  ds_add_rtn_u32 {v(R+i)}, {v(O+i)}, {v(vOne)}")
        for x, i in enumerate(idx): a(f"  v_lshl_or_b32 {v(I+i)}, {v(PT+8+x)}, 20, {v(I+i)}")
        for x, i in enumerate(idx): a(f"  v_or_b32 {v(I+i)}, 0x80000000, {v(I+i)}")
    na = 0
    for q in range(NR):
        wait_for(("p", q))
        if q == 0: stamp(a, 252, 40)
        if q == LA:
            a(arrive); vm.append(("arr", 0))
        if OPT["mtouch"] == 3 and q == OPT["mq"]:
            a(f"  buffer_load_dword v244, {v(vL128)}, {s(sMT,4)}, 0 offen"); vm.append(("m", 0))
        if q + LA < NR: ld_pair(q + LA)
        else:
            for _ in range(2):
                if na < OPT["apre"]: ld_ang(na); na += 1
        hist(list(range(4*q, 4*q + nrec(q))))
    stamp(a, 252, 41)
    X = v(PT+4)
    a(f"""
  s_waitcnt lgkmcnt(0)
  s_barrier
  s_cmp_ge_u32 s{sW}, {K}
  s_cbranch_scc1 L_bin_s1
  ds_read_b128 {v(PT,4)}, {v(vL16)}
  v_and_b32 {v(PT+8)}, 63, v0
  s_waitcnt lgkmcnt(0)
  v_add_u32 {v(PT+1)}, {v(PT)}, {v(PT+1)}
  v_add_u32 {v(PT+2)}, {v(PT+1)}, {v(PT+2)}
  v_add_u32 {v(PT+3)}, {v(PT+2)}, {v(PT+3)}
  v_mov_b32 {v(PT+4)}, {v(PT+3)}""")
    for sh in (1, 2, 4, 8):
        a(f"  s_nop 1\n  v_add_u32_dpp {X}, {X}, {X} row_shr:{sh} row_mask:0xf bank_mask:0xf bound_ctrl:0")
    a(f"  s_nop 1\n  v_add_u32_dpp {X}, {X}, {X} row_bcast:15 row_mask:0xa bank_mask:0xf")
    a(f"  s_nop 1\n  v_add_u32_dpp {X}, {X}, {X} row_bcast:31 row_mask:0xc bank_mask:0xf")
    a(f"""
  v_cmp_lt_u32 vcc, s{sW}, {v(PT+8)}
  v_readlane_b32 s{sY}, {X}, 63
  v_lshlrev_b32 {v(PT+9)}, 2, {v(PT+8)}
  s_and_b32 vcc_lo, vcc_lo, 0xff
  s_mov_b32 vcc_hi, 0
  v_mov_b32 {v(PT+10)}, s{sY}
  s_mov_b64 exec, vcc
  ds_add_u32 {v(PT+9)}, {v(PT+10)} offset:{P1_TMP}
  s_mov_b64 exec, -1
  s_waitcnt lgkmcnt(0)""")
    a.label("L_bin_s1")
    a(f"""
  s_barrier
  s_cmp_ge_u32 s{sW}, {K}
  s_cbranch_scc1 L_bin_s2
  s_lshl_b32 s{sY}, s{sW}, 2
  v_mov_b32 {v(PT+9)}, s{sY}
  ds_read_b32 {v(PT+9)}, {v(PT+9)} offset:{P1_TMP}
  v_sub_u32 {X}, {X}, {v(PT+3)}
  v_mov_b32 {v(PT+10)}, {CH}
  s_waitcnt lgkmcnt(0)
  v_add_u32 {v(PT+4)}, {X}, {v(PT+9)}
  v_add_u32 {v(PT+5)}, {v(PT+4)}, {v(PT)}
  v_add_u32 {v(PT+6)}, {v(PT+4)}, {v(PT+1)}
  v_add_u32 {v(PT+7)}, {v(PT+4)}, {v(PT+2)}
  ds_write_b128 {v(vL16)}, {v(PT+4,4)}
  ds_write_b32 {v(vZ)}, {v(PT+10)} offset:{P1_SENT}
  s_waitcnt lgkmcnt(0)""")
    a.label("L_bin_s2")
    a("  s_barrier")
    stamp(a, 252, 42)
    a(f"""
  v_lshrrev_b32 {v(PT+12)}, 1, v0
  v_and_b32 {v(PT+13)}, 1, v0
  v_lshlrev_b32 {v(PT+12)}, 2, {v(PT+12)}
  v_lshl_add_u32 {v(PT+13)}, {v(PT+13)}, 12, {v(PT+12)}
  s_lshl_b32 s{sY}, s2, 13""")
    for k in range(4):
        a(f"  ds_read_b32 {v(PT+k)}, {v(PT+13)} offset:{k*1024}")
        a(f"  ds_read_b32 {v(PT+6+k)}, {v(PT+13)} offset:{k*1024+4}")
    a("  s_waitcnt lgkmcnt(0)")
    for k in range(4): a(f"  v_sub_u32 {v(PT+6+k)}, {v(PT+6+k)}, {v(PT+k)}")
    for k in range(4): a(f"  v_lshl_or_b32 {v(PT+k)}, {v(PT+6+k)}, 16, {v(PT+k)}")
    a(f"  buffer_store_dwordx4 {v(PT,4)}, {v(vL16)}, {s(sTW,4)}, s{sY} offen sc1")
    vm.append(("tab", 0))
    mark = len(vm)
    for _ in range(OPT["a0"]):
        if na < NR: ld_ang(na); na += 1
    NB = OPT["nb"]
    vDa, vDv, vRa = 245, 246, 247
    lda = f"  buffer_load_dword {v(vDv)}, {v(vDa)}, {s(sDBG,4)}, 0 offen sc1"
    cda = f"  v_cmp_gt_u32 vcc, 16, {v(vDv)}"
    ada = f"""
  s_lshl_b32 s{sX}, s{sW}, 16
  v_and_b32 {v(vDa)}, 15, v0
  v_lshl_add_u32 {v(vDa)}, {v(vDa)}, 4, s{sX}"""
    NRD = 15
    for i in range(NRD): a(f"  ds_read_b32 {v(O+i)}, {v(O+i)}")
    a(f"  s_mov_b32 s{sB5}, {NB*8192 + 4}\n  s_mov_b32 s{sSo}, 0")
    a(ada)
    a(f"  v_add_u32 {v(vRa)}, {P1_REC}, {v(vL16)}")
    for g in range(10):
        idx = list(range(5*g, 5*g+5))
        for _ in range(OPT["ag"]):
            if na < NR: ld_ang(na); na += 1
        a(f"  s_waitcnt lgkmcnt({min(10, 45 - 5*g)})")
        for i in idx:
            if i + NRD < 50: a(f"  ds_read_b32 {v(O+i+NRD)}, {v(O+i+NRD)}")
        for i in idx: a(f"  v_add_u32 {v(O+i)}, {v(O+i)}, {v(R+i)}")
        for i in idx: a(f"  v_mad_u32_u24 {v(O+i)}, {v(O+i)}, {v(vSix)}, {v(vTwo)}")
        for x, i in enumerate(idx): a(f"  v_and_b32 {v(PT+x)}, 2, {v(O+i)}")
        for i in idx: a(f"  v_and_b32 {v(R+i)}, -4, {v(O+i)}")
        for x, i in enumerate(idx): a(f"  v_lshl_add_u32 {v(O+i)}, {v(PT+x)}, 1, {v(O+i)}")
    assert na == NR
    if OPT["mtouch"] == 1:
        a(f"  buffer_load_dword v244, {v(vL128)}, {s(sMT,4)}, 0 offen"); vm.append(("m", 0))
    def put(q, cmp):
        idx = list(range(4*q, 4*q + nrec(q)))
        for x, i in enumerate(idx): a(f"  v_cmp_{cmp}_u32 {s(72+2*x,2)}, s{sB5}, {v(R+i)}")
        for x, i in enumerate(idx):
            op = "ds_write_b16_d16_hi" if (i & 1) else "ds_write_b16"
            a(f"""
  s_mov_b64 exec, {s(72+2*x,2)}
  ds_write_b32 {v(R+i)}, {v(I+i)} offset:{P1_REC}
  {op} {v(O+i)}, {v(A + i//2)} offset:{P1_REC-2}""")
        a("  s_mov_b64 exec, -1")
    for q in range(NR):
        wait_for(("a", q))
        for r in range(nrec(q) // 2): a(f"  v_and_b32 {v(A+2*q+r)}, 0x7fff7fff, {v(A+2*q+r)}")
        if q == OPT["tq"]:
            assert q >= OPT["apre"]
            a("  s_barrier")
            a(lda); vm.append(("lda", 0))
            a(f"  buffer_store_dword {v(vOne)}, {v(vFlg)}, {s(sFLG,4)}, 0 offen sc1"); vm.append(("flg", 1))
            if OPT["mtouch"] == 2:
                a(f"  buffer_load_dword v244, {v(vL128)}, {s(sMT,4)}, 0 offen"); vm.append(("m", 0))
        put(q, "gt")
    a(f"  ds_read_b32 {v(vWo)}, {v(vZ)} offset:2048")
    a("  s_waitcnt lgkmcnt(0)\n  s_barrier")
    stamp(a, 252, 43)
    a(f"  v_readfirstlane_b32 s{sO2}, {v(vWo)}")
    free = [PT, PT + 4, PT + 8, O, I, R, O + 4, I + 4, R + 4]
    def erd(r): a(f"  ds_read_b128 {v(free[r],4)}, {v(vRa)} offset:{r*8192}")
    def est(r):
        a(f"  buffer_store_dwordx4 {v(free[r],4)}, {v(vL16)}, {s(sRW,4)}, s{sSo} offen sc1\n  s_add_u32 s{sSo}, s{sSo}, 8192")
        vm.append(("st", r))
    assert NB <= 8
    for r in range(3): erd(r)
    for r in range(3):
        a(f"  s_waitcnt lgkmcnt({2 - r})")
        est(r)
    put(0, "le"); put(1, "le")
    for r in range(3, NB): erd(r)
    put(2, "le")
    a("  s_waitcnt lgkmcnt(0)")
    todo = list(range(3, NB))
    fad = f"""
  v_and_b32 {v(RK[0])}, 63, v0
  v_lshlrev_b32 {v(RK[0])}, 4, {v(RK[0])}
  s_and_b32 s{sCin}, s2, 7
  s_lshl_b32 s{sCin}, s{sCin}, 10"""
    for q in range(3, NR):
        if todo: est(todo.pop(0))
        if q == OPT["fq"]:
            assert q >= 8 and Da == O + 28 and not todo
            a(fad)
            a(f"  s_mov_b32 s{sO4}, 0\n  s_cmp_lg_u32 s{sW}, 0\n  s_cbranch_scc1 L_nofl")
            wait_for(("lda", 0))
            a(cda)
            a(f"  s_cbranch_vccnz L_nofl\n  s_mov_b32 s{sO4}, 1")
            a(f"  buffer_load_dwordx4 {v(Da,4)}, {v(RK[0])}, {s(sFLG,4)}, s{sCin} offen sc1")
            a.label("L_nofl")
        put(q, "le")
    assert not todo
    stamp(a, 252, 44)
    FP = Da
    def flag_load(dst, off): return f"  buffer_load_dwordx4 {v(dst,4)}, {v(off)}, {s(sFLG,4)}, s{sCin if dst == FP else sX} offen sc1"
    def flag_cond(dst, stage): return f"""
  v_min3_u32 {v(dst)}, {v(dst)}, {v(dst+1)}, {v(dst+2)}
  v_min_u32 {v(dst)}, {v(dst)}, {v(dst+3)}
  v_cmp_gt_u32 vcc, {stage}, {v(dst)}"""
    a(f"  s_waitcnt vmcnt(0)\n  s_cmp_lg_u32 s{sW}, 0\n  s_cbranch_scc1 L_polled_t")
    a(f"  s_cmp_eq_u32 s{sO4}, 0\n  s_cbranch_scc1 L_wait_a")
    a(flag_cond(FP, 1))
    a("  s_cbranch_vccz L_polled_t\n  s_branch L_polled_a")
    a.label("L_nochunk1")
    if 40 <= OPT["cut"] <= 44: a("  s_endpgm")
    a("  s_waitcnt vmcnt(0)")
    a(arrive)
    a(ada)
    a(fad)
    a(f"  s_mov_b32 s{sO2}, 0\n  s_cmp_lg_u32 s{sW}, 0\n  s_cbranch_scc1 L_polled_t")
    a.label("L_wait_a")
    poll("a", lda, cda, 64)
    poll("t", flag_load(FP, RK[0]), flag_cond(FP, 1), OPT["napt"])
    a(f"""
  s_lshl_b32 s{sX}, s{sJ}, 5
  s_add_u32 s{sX}, s{sX}, {TABOFF}""")
    srd(a, sTAB, sWS, sWS+1, f"s{sX}", (NCH - 1) * 8192 + 32)

    def state_update():
        a(f"""
  v_sub_u32 {v(rem)}, {v(rem)}, {v(rtot)}
  v_lshrrev_b32 {v(T)}, 16, {v(Q)}
  v_and_b32 {v(T+1)}, 0xffff, {v(Q)}
  v_min_u32 {v(vR0)}, 32, {v(nA)}
  v_cmp_ge_u32 vcc, 32, {v(nA)}
  v_sub_u32 {v(T+2)}, 32, {v(vR0)}
  v_add_u32 {v(vB6)}, {v(cb)}, {v(T+1)}
  v_min_u32 {v(T+2)}, {v(T)}, {v(T+2)}
  v_mul_u32_u24 {v(vB6)}, 6, {v(vB6)}
  v_add_u32 {v(rtot)}, {v(vR0)}, {v(T+2)}
  v_mad_i32_i24 {v(vB6)}, {v(vR0)}, -6, {v(vB6)}
  v_lshlrev_b32 {v(vRT4)}, 2, {v(rtot)}
  v_add_u32 {v(vA6)}, {v(cb)}, {v(sA)}
  v_mul_u32_u24 {v(vA6)}, 6, {v(vA6)}""")
    def state_update2():
        a(f"""
  v_add_u32 {v(sA)}, 32, {v(sA)}
  v_subrev_u32 {v(nA)}, 32, {v(nA)}
  v_add_u32 {v(T+1)}, {v(T+1)}, {v(T+2)}
  v_sub_u32 {v(T)}, {v(T)}, {v(T+2)}
  v_cndmask_b32 {v(sA)}, {v(sA)}, {v(T+1)}, vcc
  v_cndmask_b32 {v(nA)}, {v(nA)}, {v(T)}, vcc""")
        for i in range(K - 1):
            a(f"  v_cndmask_b32 {v(Q+i)}, {v(Q+i)}, {v(Q+i+1)}, vcc")
        a(f"  v_cndmask_b32 {v(Q+K-1)}, {v(Q+K-1)}, {v(vZ)}, vcc")
    def set_flag(tag):
        a(f"""
  v_cmp_lt_u32 vcc, 0, {v(rem)}
  s_cbranch_vccz L_noflag_{tag}
  ds_write_b32 {v(vCtlN)}, {v(vOne)} offset:4""")
        a.label(f"L_noflag_{tag}")

    bc = lambda u: f"row_newbcast:{u} row_mask:0xf bank_mask:0xf"
    def rec_load(u, t0):
        a(f"""
  v_sub_co_u32_dpp {v(t0)}, vcc, {v(vR0)}, {v(vI1)} {bc(u)}
  v_add_u32_dpp {v(t0)}, {v(vA6)}, {v(vI6)} {bc(u)}
  v_add_u32_dpp {v(t0+1)}, {v(vB6)}, {v(vI6)} {bc(u)}
  v_cndmask_b32 {v(t0)}, {v(t0)}, {v(t0+1)}, vcc
  v_sub_u32_dpp {v(t0+1)}, {v(vRT4)}, {v(vI4)} {bc(u)}
  v_bfi_b32 {v(t0)}, {v(vMsk)}, {v(t0)}, {v(t0+1)}
  buffer_load_dwordx2 {v(REC[u],2)}, {v(t0)}, {s(sREC,4)}, 0 offen{RPOL}""")

    SDWA = "dst_sel:WORD_1 dst_unused:UNUSED_PAD src0_sel:WORD_1 src1_sel:WORD_0"
    def ins1(u, thr, p):
        ta, rk, mk, w = TA[p], RK[p], sMk[p], WW[p]
        a(f"""
  v_cmp_gt_i32 vcc, 0, {v(REC[u])}
  v_min_i32 {v(w)}, {v(REC[u])}, {v(REC[u]+1)}
  v_cmp_gt_i32 {s(mk,2)}, {thr}, {v(w)}
  v_bfe_u32 {v(ta)}, {v(w)}, 23, 8
  v_cndmask_b32_sdwa {v(REC[u])}, {v(REC[u])}, {v(REC[u]+1)}, vcc {SDWA}
  v_mad_u32_u24 {v(ta)}, {v(ta)}, {v(v264)}, s{sIns}
  s_mov_b64 exec, {s(mk,2)}
  ds_add_rtn_u32 {v(rk)}, {v(ta)}, {v(vOne)}
  s_mov_b64 exec, -1""")

    def ins2(u, tag, p):
        ta, rk, mk, w = TA[p], RK[p], sMk[p], WW[p]
        lab = f"{tag}_{u}"
        a(f"""
  s_mov_b64 exec, {s(mk,2)}
  v_cmp_lt_u32 vcc, 31, {v(rk)}
  v_lshl_add_u32 {v(ta)}, {v(rk)}, 3, {v(ta)}
  s_cbranch_vccnz L_rare_{lab}""")
        a.label(f"L_back_{lab}")
        a(f"""
  ds_write2_b32 {v(ta)}, {v(REC[u])}, {v(w)} offset0:2 offset1:3
  s_mov_b64 exec, -1""")
        rare.append((lab, u, p))

    a(f"""
  v_add_u32 {v(PT+2)}, {P1_REC}, {v(vL16)}
  v_add_u32 {v(PT+3)}, {P1_REC + 8*8192}, {v(vL16)}
  v_add_u32 {v(PT+4)}, {P1_REC + 16*8192}, {v(vL16)}
  s_mov_b32 s{sSo}, {NB*8192}
  v_mov_b32 {v(vDum)}, 3
  s_waitcnt lgkmcnt(0)
  s_barrier""")
    stamp(a, 252, 45)
    NS = 19
    sdt = lambda r: (20 + r) % 25 if r < 8 else r + 1
    SD = lambda r: ACC[sdt(r)]
    gv = []
    def gwait(x, extra=""): a(f"  s_waitcnt vmcnt({len(gv) - 1 - gv.index(x)}){extra}")
    def rd(r): a(f"  ds_read_b128 {v(SD(r),4)}, {v(PT+2 + r//8)} offset:{(r%8)*8192}")
    def st(r, lst=None):
        a(f"  buffer_store_dwordx4 {v(SD(r),4)}, {v(vL16)}, {s(sRW,4)}, s{sSo} offen sc1\n  s_add_u32 s{sSo}, s{sSo}, 8192")
        if lst is not None: lst.append(("st", r))
    zero_acc = lambda t: a(f"  v_mov_b64 {v(ACC[t],2)}, 0\n  v_mov_b64 {v(ACC[t]+2,2)}, 0")
    flag3 = f"  buffer_store_dword {v(vDum)}, {v(vFlg)}, {s(sFLG,4)}, 0 offen sc1"
    N1, N3 = OPT["n1"], OPT["n3"]
    a(f"  s_cmp_gt_u32 s{sO2}, {NB*8192 // 6 - 2}\n  s_cbranch_scc1 L_noearly")
    a(flag3)
    a.label("L_noearly")
    a(f"""
  buffer_load_dwordx4 {v(Q,4)}, {v(vTab)}, {s(sTAB,4)}, 0 offen sc1
  buffer_load_dwordx2 {v(Q+4,2)}, {v(vTab)}, {s(sTAB,4)}, 0 offen offset:16 sc1""")
    gv.extend([("tab", 0), ("tab", 1)])
    for r in range(NB, NS): rd(r)
    nxt = NB + N1
    for r in range(NB, nxt):
        a(f"  s_waitcnt lgkmcnt({NS - 1 - r})")
        st(r, gv)
    a(f"""
  s_waitcnt lgkmcnt(0)
  s_cmp_gt_u32 s{sO2}, {NB*8192 // 6 - 2}
  s_cbranch_scc1 L_allfirst
  s_barrier""")
    a.label("L_allfirst_back")
    stamp(a, 252, 46)
    pend = list(range(nxt, NS))
    keep = OPT["n3"]
    slot = [0]
    def st1(n=1):
        on = OPT["smask"] >> slot[0] & 1 or n > 1
        slot[0] += 1
        for _ in range(n):
            if on and len(pend) > keep: st(pend.pop(0), gv)
    st1()
    DI = [RING[0] + p for p in range(14)]
    H = Da
    a(f"""
  s_mul_i32 s{sX}, s{sW}, 3584
  s_add_u32 s{sX}, s{sX}, {RB_OFF}
  v_and_b32 {v(T+8)}, 63, v0
  v_lshl_add_u32 {v(T+9)}, {v(T+8)}, 3, s{sX}
  v_lshl_add_u32 {v(T+8)}, {v(T+8)}, 2, s{sX}
  ds_write_b64 {v(T+9)}, {v(rDist,2)}
  ds_write_b64 {v(T+9)}, {v(rSbf,2)} offset:512
  ds_write_b64 {v(T+9)}, {v(rUp,2)} offset:1024
  ds_write_b32 {v(T+8)}, {v(rRbf)} offset:1536
  ds_write_b64 {v(T+9)}, {v(rDown,2)} offset:2048
  v_and_b32 {v(T+4)}, 15, v0
  v_bfe_u32 {v(T+8)}, v0, 4, 2
  v_lshl_add_u32 {v(T+4)}, {v(T+4)}, 1, s{sX}
  v_lshl_add_u32 {v(T+5)}, {v(T+8)}, 7, {v(T+4)}
  v_lshl_add_u32 {v(T+6)}, {v(T+8)}, 6, {v(T+4)}
  v_lshl_add_u32 {v(T+7)}, {v(vHalf)}, 4, {v(T+4)}
  ds_read_u16 {v(WS0)}, {v(T+5)} offset:512
  ds_read_u16 {v(WS1)}, {v(T+5)} offset:{512+32}
  ds_read_u16 {v(WS0+1)}, {v(T+5)} offset:{512+64}
  ds_read_u16 {v(WS1+1)}, {v(T+5)} offset:{512+96}
  ds_read_u16 {v(WUP)}, {v(T+5)} offset:1024
  ds_read_u16 {v(H+10)}, {v(T+5)} offset:{1024+32}
  ds_read_u16 {v(WUP+1)}, {v(T+5)} offset:{1024+64}
  ds_read_u16 {v(H+11)}, {v(T+5)} offset:{1024+96}
  ds_read_u16 {v(WR)}, {v(T+6)} offset:1536
  ds_read_u16 {v(WR+1)}, {v(T+6)} offset:{1536+32}""")
    st1()
    for r in range(8): a(f"  ds_read_u16 {v(Wa+r)}, {v(T+7)} offset:{2048+r*32}")
    for p in range(13): a(f"  ds_read_u16 {v(DI[p])}, {v(T+4)} offset:{p*32}")
    st1()
    a(f"""
  s_mul_i32 s{sFl}, s{sJ}, {2*CARLIST}
  s_add_u32 s{sFl}, s{sFl}, {CAROFF}""")
    srd(a, sREC, sWS, sWS+1, None, NCH * CH * 6)
    srd(a, sM, 48, 49, None, E * 32)
    srd(a, sCAR, sWS, sWS+1, f"s{sFl}", 2 * CARLIST)
    srd(a, sOUT, 70, 71, None, f"s{sRb}")
    srd(a, sMW, 48, 49, None, f"s{sRb}")
    for t in list(range(3, 9)) + [sdt(r) for r in range(NB)]: zero_acc(t)
    st1()
    a(f"""
  v_mov_b32 {v(vSent)}, 0x7ffff
  v_mov_b32 {v(T)}, 0
  v_mov_b32 {v(T+1)}, {v(vSent)}
  v_mov_b32 {v(T+2)}, 0
  v_mov_b32 {v(T+3)}, {v(vSent)}
  v_add_u32 {v(T+6)}, {7*8192}, {v(vL16)}""")
    for r in range(13):
        a(f"  ds_write_b128 {v(vL16 if r < 7 else T+6)}, {v(T,4)} offset:{(r%7)*8192}")
        if r % 5 == 4: st1()
    a(f"""
  v_and_b32 {v(T+6)}, 15, v0
  v_lshl_add_u32 {v(T+6)}, {v(T+6)}, 2, {v(vCtlN)}
  ds_write_b32 {v(T+6)}, {v(vZ)}
  ds_write_b128 {v(vSrd)}, {v(ACC[3],4)}""")
    for q in range(D): a(f"  v_mov_b32 {v(SA[q])}, {v(vSst)}\n  v_mov_b32 {v(CC[q])}, 0")
    gwait(("tab", 1))
    a(f"  v_lshrrev_b32 {v(rem)}, 16, {v(Q)}")
    for i in range(1, K):
        a(f"  v_lshrrev_b32 {v(T+4)}, 16, {v(Q+i)}\n  v_add_u32 {v(rem)}, {v(rem)}, {v(T+4)}")
    state_update()
    for u in range(0, 16, 2):
        a(f"""
  v_add_u32_dpp {v(REC[u])}, {v(vB6)}, {v(vI6)} {bc(u)}
  v_sub_u32_dpp {v(REC[u]+1)}, {v(vRT4)}, {v(vI4)} {bc(u)}
  v_add_u32_dpp {v(REC[u+1])}, {v(vB6)}, {v(vI6)} {bc(u+1)}
  v_sub_u32_dpp {v(REC[u+1]+1)}, {v(vRT4)}, {v(vI4)} {bc(u+1)}
  v_bfi_b32 {v(REC[u])}, {v(vMsk)}, {v(REC[u])}, {v(REC[u]+1)}
  v_bfi_b32 {v(REC[u+1])}, {v(vMsk)}, {v(REC[u+1])}, {v(REC[u+1]+1)}""")
        if u % 4 == 2: st1()
    state_update2()
    state_update()
    state_update2()
    st1()
    CEN = H + 8
    a(f"""
  v_mov_b32 {v(CEN+1)}, s56
  v_cmp_eq_u32 vcc, 1, {v(T+8)}
  v_mov_b32 {v(CEN)}, s57
  v_cmp_eq_u32 {s(sT,2)}, 2, {v(T+8)}
  v_cndmask_b32 {v(CEN+1)}, {v(CEN+1)}, {v(CEN)}, vcc
  v_mov_b32 {v(CEN)}, s58
  v_cmp_eq_u32 vcc, 3, {v(T+8)}
  v_cndmask_b32 {v(CEN+1)}, {v(CEN+1)}, {v(CEN)}, {s(sT,2)}
  v_mov_b32 {v(CEN)}, s59
  v_cndmask_b32 {v(CEN+1)}, {v(CEN+1)}, {v(CEN)}, vcc
  v_lshlrev_b32 {v(CEN)}, 16, {v(CEN+1)}
  v_and_b32 {v(CEN+1)}, 0xffff0000, {v(CEN+1)}
  s_mov_b32 s{sC10}, 0xc1200000
  s_mov_b32 s{sC10+1}, 0xc1200000
  s_mov_b32 s{sCl2}, 0x3fb8aa3b
  s_mov_b32 s{sCl2+1}, 0x3fb8aa3b
  v_and_b32 {v(T+8)}, 1, {v(T+8)}
  v_cmp_eq_u32 vcc, 1, {v(T+8)}
  s_waitcnt lgkmcnt(0)
  v_lshl_or_b32 {v(WS0)}, {v(WS0+1)}, 16, {v(WS0)}
  v_lshl_or_b32 {v(WS1)}, {v(WS1+1)}, 16, {v(WS1)}
  v_lshl_or_b32 {v(WUP)}, {v(H+10)}, 16, {v(WUP)}
  v_lshl_or_b32 {v(WUP+1)}, {v(H+11)}, 16, {v(WUP+1)}
  v_lshl_or_b32 {v(WR)}, {v(WR+1)}, 16, {v(WR)}
  v_mov_b32 {v(WS0+1)}, 0
  v_mov_b32 {v(WS1+1)}, 0
  v_mov_b32 {v(WR+1)}, 0
  v_mov_b32 {v(DI[13])}, 0""")
    for r in range(4): a(f"  v_lshl_or_b32 {v(H+r)}, {v(Wa+2*r+1)}, 16, {v(Wa+2*r)}")
    for r in range(4):
        a(f"  v_cndmask_b32 {v(Wa+r)}, {v(H+r)}, {v(vZ)}, vcc")
        a(f"  v_cndmask_b32 {v(Wb+r)}, {v(vZ)}, {v(H+r)}, vcc")
    for ps in ([0,1,2,3], [4,5,6,7], [8,9,10], [11,12]):
        p0 = ps[0]
        tt = {p: H + 2 * (p - p0) for p in ps}
        def rnd():
            for p in ps: a(f"  v_cvt_pk_bf16_f32 {v(tt[p])}, 0, {v(tt[p])}\n  v_cvt_pk_bf16_f32 {v(tt[p]+1)}, 0, {v(tt[p]+1)}")
        for p in ps: a(f"  v_lshlrev_b32 {v(tt[p])}, 16, {v(DI[p])}")
        for p in ps: a(f"  v_pk_add_f32 {v(tt[p],2)}, {v(tt[p],2)}, {v(CEN,2)} op_sel_hi:[0,1] neg_lo:[0,1] neg_hi:[0,1]")
        rnd()
        for p in ps: a(f"  v_pk_mul_f32 {v(tt[p],2)}, {v(tt[p],2)}, {v(tt[p],2)}")
        rnd()
        for p in ps: a(f"  v_pk_mul_f32 {v(tt[p],2)}, {v(tt[p],2)}, {s(sC10,2)}")
        rnd()
        for p in ps: a(f"  v_pk_mul_f32 {v(tt[p],2)}, {v(tt[p],2)}, {s(sCl2,2)}")
        for p in ps: a(f"  v_exp_f32 {v(tt[p])}, {v(tt[p])}\n  v_exp_f32 {v(tt[p]+1)}, {v(tt[p]+1)}")
        for p in ps: a(f"  v_cvt_pk_bf16_f32 {v(DI[p])}, {v(tt[p])}, {v(tt[p]+1)}")
        st1()
    st1(NS)
    print("store slots", slot[0])
    for h in range(7):
        a(f"  ds_write_b64 {v(T+9)}, {v(DI[2*h],2)} offset:{h*512}")
    nx3 = NS - len(pend)
    for r in range(NB, nx3): zero_acc(sdt(r))
    for q in range(D):
        a(f"  v_mov_b64 {v(RING[q],2)}, 0\n  v_mov_b64 {v(RING[q]+2,2)}, 0")
    stamp(a, 252, 47)
    if OPT["pf0"] == 3:
        share = (OPT["wmain"] // 4 + 31) // 32
        a(f"""
  s_cmp_eq_u32 s{sW}, 0
  s_cbranch_scc1 L_nopf
  s_lshr_b32 s{sX}, s2, 3
  s_mul_i32 s{sX}, s{sX}, {share*128}
  v_lshlrev_b32 {v(TA[1])}, 7, v0
  buffer_load_dword {v(WW[1])}, {v(TA[1])}, {s(sM,4)}, s{sX} offen""")
        a.label("L_nopf")
    a(f"  s_cmp_lg_u32 s{sW}, 0\n  s_cbranch_scc1 L_polled_b")
    poll("b", flag_load(FP, RK[0]), flag_cond(FP, 2), OPT["nap"])
    a("  s_waitcnt lgkmcnt(0)")
    a("  s_barrier")
    stamp(a, 252, 1)
    def pro_ld(us):
        for u in us:
            a(f"  buffer_load_dwordx2 {v(REC[u],2)}, {v(REC[u])}, {s(sREC,4)}, 0 offen{RPOL}")
            gv.append(("rec", u))
    NL0 = OPT["nl0"]
    pro_ld(range(NL0))
    NG = NS
    stamp(a, 252, 12)
    set_flag("pro")
    stamp(a, 252, 13)
    PTA = lambda u: Da + u
    PRK = lambda u: RING[0] + u
    PMK = lambda u: sPM + 2 * (u % 8)
    slowg = []
    def pro_ins1(g):
        us = range(4*g, 4*g+4)
        gwait(("rec", 4*g+3))
        for u in us:
            a(f"""
  v_cmp_gt_i32 vcc, 0, {v(REC[u])}
  v_min_i32 {v(PTA(u))}, {v(REC[u])}, {v(REC[u]+1)}
  v_cmp_gt_i32 {s(PMK(u),2)}, 0, {v(PTA(u))}
  v_cndmask_b32_sdwa {v(REC[u])}, {v(REC[u])}, {v(REC[u]+1)}, vcc {SDWA}
  v_mov_b32 {v(REC[u]+1)}, {v(PTA(u))}""")
        for u in us: a(f"  v_bfe_u32 {v(PTA(u))}, {v(PTA(u))}, 23, 8")
        for u in us: a(f"  v_mul_u32_u24 {v(PTA(u))}, {v(PTA(u))}, {v(v264)}")
        for u in us: a(f"  s_mov_b64 exec, {s(PMK(u),2)}\n  ds_add_rtn_u32 {v(PRK(u))}, {v(PTA(u))}, {v(vOne)}")
        a("  s_mov_b64 exec, -1")
    def pro_ins2(g):
        us = list(range(4*g, 4*g+4))
        a(f"""
  v_max3_u32 {v(T)}, {v(PRK(us[0]))}, {v(PRK(us[1]))}, {v(PRK(us[2]))}
  v_max_u32 {v(T)}, {v(T)}, {v(PRK(us[3]))}
  v_cmp_lt_u32 vcc, 31, {v(T)}
  s_cbranch_vccz L_pfast_{g}
  v_cmp_lt_u32 vcc, 63, {v(T)}
  s_cbranch_vccnz L_pslow_{g}""")
        a.label(f"L_pback_{g}")
        for x, u in enumerate(us): a(f"  v_subrev_u32 {v(T+4+x)}, 31, {v(PRK(u))}")
        for x, u in enumerate(us): a(f"  s_mov_b64 exec, {s(PMK(u),2)}\n  ds_max_i32 {v(PTA(u))}, {v(T+4+x)} offset:{BUFSZ}")
        a(f"  s_mov_b64 exec, -1\n  ds_write_b32 {v(vCtlN)}, {v(vOne)} offset:4")
        for x, u in enumerate(us): a(f"  v_lshrrev_b32 {v(T+4+x)}, 5, {v(PRK(u))}")
        for x, u in enumerate(us): a(f"  v_mad_u32_u24 {v(PTA(u))}, {v(T+4+x)}, s{sThr}, {v(PTA(u))}")
        a.label(f"L_pfast_{g}")
        for u in us: a(f"  v_lshl_add_u32 {v(PTA(u))}, {v(PRK(u))}, 3, {v(PTA(u))}")
        for u in us: a(f"  s_mov_b64 exec, {s(PMK(u),2)}\n  ds_write_b64 {v(PTA(u))}, {v(REC[u],2)} offset:8")
        a("  s_mov_b64 exec, -1")
        slowg.append(g)
    a(f"  s_mov_b32 s{sThr}, {BUFSZ - 256}")
    left = list(range(nx3, NS))
    per = (len(left) + 3) // 4
    def some():
        for _ in range(per):
            if left: st(left.pop(0), gv)
    pro_ins1(0)
    stamp(a, 252, 3)
    pro_ld(range(NL0, 16))
    def pf():
        share = (OPT["wmain"] // 4 + 31) // 32
        a(f"""
  s_lshr_b32 s{sX}, s2, 3
  s_mul_i32 s{sX}, s{sX}, {share*128}
  v_lshlrev_b32 {v(TA[1])}, 7, v0
  buffer_load_dword {v(WW[1])}, {v(TA[1])}, {s(sM,4)}, s{sX} offen""")
        gv.append(("pf", 0))
    if OPT["pf0"] == 1:
        while left: st(left.pop(0), gv)
        pf()
    pro_ins1(1)
    some()
    a("  s_waitcnt lgkmcnt(0)")
    pro_ins2(0); some(); pro_ins1(2); pro_ins2(1); some(); pro_ins1(3); some()
    if OPT["pf0"] == 2: pf()
    stamp(a, 252, 8)
    a("  s_nop 0")
    for r in range(nx3, NS): zero_acc(sdt(r))
    a("  s_waitcnt lgkmcnt(0)")
    pro_ins2(2); pro_ins2(3)
    stamp(a, 252, 11)
    a("  s_branch L_turn2")
    def signal_all(tag, n):
        a(f"""
  v_mov_b32 {v(T+4)}, {CTL + 32}
  s_waitcnt vmcnt({n})
  s_mov_b64 exec, 1
  ds_add_rtn_u32 {v(T+5)}, {v(T+4)}, {v(vOne)}
  s_mov_b64 exec, -1
  v_and_b32 {v(T+6)}, 63, v0
  s_lshl_b32 s{sX}, s2, 2
  v_lshl_add_u32 {v(T+6)}, {v(T+6)}, 10, s{sX}
  v_mov_b32 {v(T+7)}, 4
  s_waitcnt lgkmcnt(0)
  v_readfirstlane_b32 s{sX}, {v(T+5)}
  s_cmp_lg_u32 s{sX}, 7
  s_cbranch_scc1 L_nosig_{tag}
  buffer_store_dword {v(T+7)}, {v(T+6)}, {s(sFLG,4)}, 0 offen sc1""")
        a.label(f"L_nosig_{tag}")

    INS0 = OPT["ins0"]
    def cstage_head(q):
        if OPT["abl_s"]: return
        a(f"""
  ds_write_b16 {v(SA[q])}, {v(CC[q])}
  ds_read_b128 {v(Sf,4)}, {v(vSrd)}
  ds_write_b16 {v(SA[q])}, {v(vZ)}""")
    def cstage_m1(q):
        if OPT["abl_mfma"]: return
        a(f"""
  v_mfma_f32_16x16x32_bf16 {v(Da,4)}, {v(RING[q],4)}, {v(Wa,4)}, 0
  v_mfma_f32_16x16x32_bf16 {v(Db,4)}, {v(RING[q],4)}, {v(Wb,4)}, 0""")
    def cstage_cvt():
        if OPT["abl_mfma"]: return
        a(f"""
  v_cvt_pk_bf16_f32 {v(P)}, {v(Da)}, {v(Da+1)}
  v_cvt_pk_bf16_f32 {v(P+1)}, {v(Da+2)}, {v(Da+3)}
  v_cvt_pk_bf16_f32 {v(P+2)}, {v(Db)}, {v(Db+1)}
  v_cvt_pk_bf16_f32 {v(P+3)}, {v(Db+2)}, {v(Db+3)}""")
    def cstage_m2(tc):
        if OPT["abl_mfma"]: return
        a(f"  v_mfma_f32_16x16x32_bf16 {v(ACC[tc],4)}, {v(P,4)}, {v(Sf,4)}, {v(ACC[tc],4)}")
    def step_top(t, reset=True):
        a(f"  ; ---- step {t}")
        a("  s_waitcnt lgkmcnt(0)")
        cstage_head(t % D)
        if t < NT - 1:
            a(f"  ds_read_b64 {v(RP[(t+1)&1],2)}, {v(vRd)} offset:{(t+1)*TS+8}")
        if reset and t < NT:
            a(f"  ds_write_b32 {v(vRd)}, {v(vSent)} offset:{t*TS+12}")
    def step_main(t, n, reset=True):
        q = t % D; tc = (t - D) % NT
        rp = RP[t & 1]
        a(f"  s_waitcnt vmcnt({n})")
        cstage_m1(q)
        off, af, e = T + 1, T + 2, T + 3
        a(f"""
  v_and_b32 {v(off)}, {v(vSent)}, {v(rp+1)}
  v_mul_f32 {v(af)}, {v(rp)}, {v(vFreq)}
  v_lshl_add_u32 {v(off)}, {v(off)}, 5, {v(vHalf)}
  v_cvt_pk_bf16_f32 {v(af)}, 0, {v(af)}
  buffer_load_dwordx4 {v(RING[q],4)}, {v(vOOB if OPT["abl_g"] else off)}, {s(sM,4)}, 0 offen
  v_mul_f32 {v(af)}, 0.15915494, {v(af)}
  v_bfe_u32 {v(e)}, {v(rp+1)}, 20, 3
  v_fract_f32 {v(af)}, {v(af)}""")
        cstage_cvt()
        a(f"""
  v_cos_f32 {v(af)}, {v(af)}
  v_lshl_add_u32 {v(SA[q])}, {v(e)}, 4, {v(vSst)}
  s_waitcnt lgkmcnt({(2 if t < NT-1 else 1) + (1 if reset else 0)})""")
        cstage_m2(tc)
        a(f"  v_cvt_pk_bf16_f32 {v(CC[q])}, {v(af)}, {v(af)}")

    order = []
    for t in range(NT):
        if t == 0: order.append(("car", 16))
        u2 = t - INS0 - 1
        EA = OPT["early"]
        if EA: order += [("rec", u) for u in range(EA * t, min(16, EA * t + EA))]
        elif 0 <= u2 < 16: order.append(("rec", u2))
        order.append(("W", t))
        order.append(("g", t))
    tail = [x for x in order[order.index(("g", NT - D)):] if x[0] != "W"]
    assert tail == [("g", t) for t in range(NT - D, NT)], tail
    def younger(target, at):
        n = len(order); i = order.index(target); cnt = 0
        j = (i + 1) % n
        while j != at:
            if order[j][0] != "W": cnt += 1
            j = (j + 1) % n
        return cnt
    first = []
    for x in order:
        if x[0] == "W" and x[1] < 4: first += [("f", 4 * x[1] + i) for i in range(4)]
        first.append(x)
    def younger_first(u, t):
        i = first.index(("f", u)); j = first.index(("W", t))
        return sum(1 for x in first[i+1:j] if x[0] != "W")
    RBH = 1
    def prio(tag, mask, t):
        cur = mask >> t & 1; prev = (mask >> (t - 1) & 1) if t else 0
        if cur and not prev:
            a(f"  s_cmp_lt_u32 s{sW}, 4\n  s_cbranch_scc1 L_{tag}prio{t}\n  s_setprio 1")
            a.label(f"L_{tag}prio{t}")
        if prev and not cur: a("  s_setprio 0")
    assert not OPT["lprio"] >> (NT - 1)
    def step0_extra():
        a(f"""
  v_cmp_gt_u32 vcc, s{sCin}, {v(vCarIdx)}
  s_add_u32 s{sX}, s{sIt}, 2
  s_and_b32 s{sX}, s{sX}, 3
  s_lshl_b32 s{sX}, s{sX}, 3
  s_add_u32 s{sX}, s{sX}, {CTL}
  v_mov_b32 {v(T+1)}, s{sX}
  ds_write_b64 {v(T+1)}, {v(vZ,2)}
  ds_write_b32 {v(vCntA)}, {v(vZ)}
  v_cndmask_b32 {v(T)}, {v(vOOB)}, {v(vCarOff)}, vcc
  buffer_load_dwordx2 {v(REC[16],2)}, {v(T)}, {s(sCAR,4)}, s{sCarR} offen sc1""")
    def state_step(tag):
        a(f"  s_cmp_lg_u32 s{sThr}, 0\n  s_cbranch_scc1 L_nostate_{tag}")
        if tag == "b0":
            QL = Q + OPT['keff'] - 3
            a(f"""
  v_lshrrev_b32 {v(T)}, 16, {v(QL)}
  v_cmp_eq_u32 vcc, 0, {v(nA)}
  v_subrev_u32 {v(T+1)}, {OPT['lim']}, {v(T)}
  v_and_b32 {v(T+2)}, 0xffff, {v(QL)}
  v_max_i32 {v(T+1)}, 0, {v(T+1)}
  v_cndmask_b32 {v(T+1)}, {v(vZ)}, {v(T+1)}, vcc
  v_add_u32 {v(T+2)}, {v(T+2)}, {v(T)}
  v_sub_u32 {v(T+2)}, {v(T+2)}, {v(T+1)}
  v_cndmask_b32 {v(sA)}, {v(sA)}, {v(T+2)}, vcc
  v_add_u32 {v(nA)}, {v(nA)}, {v(T+1)}
  v_lshlrev_b32 {v(T+1)}, 16, {v(T+1)}
  v_sub_u32 {v(QL)}, {v(QL)}, {v(T+1)}""")
        state_update(); state_update2()
        a.label(f"L_nostate_{tag}")
        set_flag(tag)
    a(".p2align 6")
    a.label("L_body0")
    lo = []
    lw = lambda x: len(lo) - 1 - lo.index(x)
    ST0, STP = OPT["st0"], OPT["stp"]
    late = list(range(NG, NS))
    tsig = None
    FC = REC[0]
    FO = REC[2]
    for t in range(NT):
        step_top(t)
        prio("b0", OPT["lprio"], t)
        if t == 0:
            step0_extra(); lo.append(("rec", 16))
        if t < 4:
            for u in range(4*t, 4*t+4):
                rec_load(u, T + 4 + 2 * (u & 1)); lo.append(("rec", u))
        if t == INS0: state_step("b0")
        zs = []
        if t >= ST0:
            for _ in range(STP):
                if late:
                    r = late.pop(0); st(r, lo); zs.append(r)
                    assert sdt(r) + D > t
                    if not late: tsig = t + D + 1
        u1 = t - INS0; u2 = u1 - 1
        if 0 <= u2 < 17: ins2(u2, "b0", u2 & 1)
        if 0 <= u1 < 17:
            a(f"  s_waitcnt vmcnt({lw(('rec', u1))})")
            ins1(u1, f"s{sThr}" if u1 < 16 else "0", u1 & 1)
        else: a("  s_nop 0")
        for r in zs: zero_acc(sdt(r))
        if t == tsig or (NG == NS and t == 2):
            signal_all("b0", lw(("st", NS - 1)) if NG < NS else len(lo))
        if t == INS0 + 18:
            a(f"  s_cmp_gt_u32 s{sCin}, 512\n  s_cbranch_scc1 L_slow_b0")
            a.label("L_slow_back_b0")
        if t == NT - 3:
            a(f"""
  s_cmp_lg_u32 s{sW}, 0
  s_cbranch_scc1 L_noldc
  v_lshlrev_b32 {v(FO)}, 4, v0
  s_and_b32 s{sX}, s2, 7
  s_lshl_b32 s{sX}, s{sX}, 10""")
            a(flag_load(FC, FO))
            a.label("L_noldc")
        step_main(t, lw(("g", t - D)) if t >= D else 62)
        lo.append(("g", t))
    assert not late and (tsig is None or tsig < NT - 3)
    a(f"""
  s_waitcnt vmcnt(3)
  s_cmp_lg_u32 s{sW}, 0
  s_cbranch_scc1 L_turn2""")
    assert NT - (INS0 + 17) >= 3
    a(flag_cond(FC, 4))
    a(f"""
  s_cbranch_vccz L_turn2
  s_and_b32 s{sX}, s2, 7
  s_lshl_b32 s{sX}, s{sX}, 10""")
    poll("c", flag_load(FC, FO), flag_cond(FC, 4), OPT["nap"])
    a("  s_branch L_turn2")

    a(".p2align 6")
    a.label("L_loop")
    for t in range(NT):
        step_top(t)
        if t == 0: step0_extra()
        prio("lp", OPT["lprio"], t)
        if EA:
            for u in range(EA * t, min(16, EA * t + EA)): rec_load(u, T + 4 + 2 * (u & 1))
        if t < 4:
            if not EA: a(f"  s_cmp_eq_u32 s{sIt}, 1\n  s_cbranch_scc1 L_first_{t}")
            a.label(f"L_first_back_{t}")
        if t == INS0: state_step("lp")
        u1 = t - INS0; u2 = u1 - 1
        if 0 <= u2 < 17:
            ins2(u2, "lp", u2 & 1)
            if u2 < 16 and not EA: rec_load(u2, T + 4)
        if 0 <= u1 < 17:
            pos = order.index(("W", t))
            if EA and u1 < 16: n = younger(("rec", u1), pos)
            elif u1 < 16: n = min(younger(("rec", u1), pos), younger_first(u1, t))
            else: n = younger(("car", 16), pos)
            a(f"  s_waitcnt vmcnt({min(n, 62)})")
            ins1(u1, f"s{sThr}" if u1 < 16 else "0", u1 & 1)
        if t == INS0 + 18:
            a(f"  s_cmp_gt_u32 s{sCin}, 512\n  s_cbranch_scc1 L_slow_lp")
            a.label("L_slow_back_lp")
        step_main(t, younger(("g", (t - D) % NT), order.index(("W", t))))
    assert INS0 >= 4 and RBH < NT
    a(f"  s_waitcnt vmcnt({NT - (INS0 + 17)})")
    a.label("L_turn2")
    a(f"""
  v_mov_b32 {v(T)}, {v(vCtlN)}
  s_add_u32 s{sIt}, s{sIt}, 1
  s_add_u32 s{sX}, s{sIt}, 1
  s_and_b32 s{sX}, s{sX}, 3
  s_lshl_b32 s{sX}, s{sX}, 3
  s_add_u32 s{sX}, s{sX}, {CTL}
  v_mov_b32 {v(vCtlN)}, s{sX}
  s_sub_u32 s{sX}, s{sIns}, {BUFSZ}
  s_add_u32 s{sX}, s{sX}, s{sIns}
  v_add_u32 {v(vRd)}, s{sX}, {v(vRd)}
  v_add_u32 {v(vCntA)}, s{sX}, {v(vCntA)}
  s_sub_u32 s{sIns}, {BUFSZ}, s{sIns}
  s_mov_b32 s{sCarR}, s{sCarW}
  s_sub_u32 s{sCarW}, {CARLIST}, s{sCarW}
  s_waitcnt lgkmcnt(0)""")
    if OPT["stamp"] == 1:
        a(f"  s_lshl_b32 s90, s{sIt}, 1\n  s_add_u32 s90, s90, 16\n  s_min_u32 m0, s90, 36")
        stamp(a, 252, "m0")
        a("  s_add_u32 m0, m0, 1")
    a("  s_barrier")
    stamp(a, 252, "m0")
    a(f"""
  ds_read_b64 {v(T+2,2)}, {v(T)}
  ds_read_b64 {v(RP[0],2)}, {v(vRd)} offset:8
  s_waitcnt lgkmcnt(1)
  v_readfirstlane_b32 s{sCin}, {v(T+2)}
  v_readfirstlane_b32 s{sFl}, {v(T+3)}
  s_cmp_gt_u32 s{sCin}, 512
  s_cselect_b32 s{sThr}, 0x80000000, 0
  s_min_u32 s{sCin}, s{sCin}, {CARCAP}
  s_cmp_gt_u32 s{sCin}, 32
  s_cselect_b32 s{sFl}, 1, s{sFl}
  s_cmp_lt_u32 s{sIt}, {OPT['itcap']}
  s_cselect_b32 s{sFl}, s{sFl}, 0
  s_cmp_eq_u32 s{sIt}, {OPT["cut"] - 100 if OPT["cut"] >= 100 else -1}
  s_cbranch_scc1 L_end
  s_cmp_eq_u32 s{sIt}, 0
  s_cbranch_scc1 L_it0
  s_cmp_lg_u32 s{sFl}, 0
  s_cbranch_scc1 L_loop""")
    a.label("L_nosig_z")

    RBv = Q
    assert vRT4 - Q + 1 >= 14
    R0 = REC[0]
    G0, G1, RR, U = R0, R0 + 4, R0 + 8, R0 + 12
    XS0, XS1, XR, AG = R0 + 16, R0 + 18, R0 + 20, R0 + 22
    MS = [R0 + 24 + 2 * i for i in range(5)]
    vMoff, vLin, vOw, vOr = vCarOff, vI6, vI1, vI4
    a(f"""
  v_and_b32 {v(T)}, 63, v0
  s_mul_i32 s{sX}, s{sW}, 3584
  s_add_u32 s{sX}, s{sX}, {RB_OFF}
  v_lshl_add_u32 {v(T+1)}, {v(T)}, 3, s{sX}
  v_lshlrev_b32 {v(vLin)}, 4, {v(T)}
  v_bfe_u32 {v(T+2)}, v0, 4, 2
  v_and_b32 {v(T+3)}, 15, v0
  v_lshlrev_b32 {v(T+2)}, 3, {v(T+2)}
  v_lshl_add_u32 {v(vMoff)}, {v(T+3)}, 5, {v(T+2)}
  s_mul_i32 s{sX}, s{sW}, 6400
  s_add_u32 s{sX}, s{sX}, s{sIns}
  s_add_u32 s{sX}, s{sX}, 15
  s_and_b32 s{sX}, s{sX}, -16
  v_add_u32 {v(vOw)}, s{sX}, {v(vMoff)}
  v_add_u32 {v(vOr)}, s{sX}, {v(vLin)}
  v_cmp_gt_u32 {s(sT,2)}, 8, {v(T+3)}""")
    for h in range(7):
        a(f"  ds_read_b64 {v(RBv+2*h,2)}, {v(T+1)} offset:{h*512}")
    fo = [("g", t - NT) for t in range(NT - D, NT)]
    def fwait(x): return len(fo) - 1 - fo.index(x)
    def s1(p):
        b = RBv + (p & ~1)
        w0, w1 = (WS0, WS1) if p % 2 == 0 else (XS0, XS1)
        a(f"""
  v_mfma_f32_16x16x16_bf16 {v(G0,4)}, {v(w0,2)}, {v(b,2)}, 0
  v_mfma_f32_16x16x16_bf16 {v(G1,4)}, {v(w1,2)}, {v(b,2)}, 0""")
    def s2(p):
        t0 = ACC[2*p]; t1 = ACC[2*p+1] if 2*p+1 < NT else ACC[2*p]
        for r in range(4): a(f"  v_mul_f32 {v(U+r)}, {v(t0+r)}, {v(G0+r)}")
        for r in range(4): a(f"  v_mul_f32_dpp {v(U+r)}, {v(t1+r)}, {v(G0+r)} row_ror:8 row_mask:0xf bank_mask:0xc")
        for r in range(4): a(f"  v_fmac_f32_dpp {v(U+r)}, {v(t0+r)}, {v(G1+r)} row_ror:8 row_mask:0xf bank_mask:0x3")
        for r in range(4): a(f"  v_fmac_f32_dpp {v(U+r)}, {v(t1+r)}, {v(G1+r)} quad_perm:[0,1,2,3] row_mask:0xf bank_mask:0xc")
        a(f"""
  v_cvt_pk_bf16_f32 {v(AG)}, {v(U)}, {v(U+1)}
  v_cvt_pk_bf16_f32 {v(AG+1)}, {v(U+2)}, {v(U+3)}
  v_mfma_f32_16x16x16_bf16 {v(RR,4)}, {v(WR if p % 2 == 0 else XR,2)}, {v(RBv + (p & ~1),2)}, 0""")
        if p + 1 < 13: s1(p + 1)
        else: a("  s_nop 0")
        a(f"  v_mfma_f32_16x16x16_bf16 {v(U,4)}, {v(WUP,2)}, {v(AG,2)}, 0")
    def s3(p):
        x = ACC[2*p]; m_ = MS[p % 5]
        a(f"""
  s_waitcnt vmcnt({fwait(("m", p))})
  v_lshlrev_b32 {v(x)}, 16, {v(m_)}
  v_and_b32 {v(x+1)}, 0xffff0000, {v(m_)}
  v_lshlrev_b32 {v(x+2)}, 16, {v(m_+1)}
  v_and_b32 {v(x+3)}, 0xffff0000, {v(m_+1)}""")
        if p == 12: a("  s_nop 2")
        a(f"""
  v_pk_fma_f32 {v(x,2)}, {v(U,2)}, {v(RR,2)}, {v(x,2)}
  v_pk_fma_f32 {v(x+2,2)}, {v(U+2,2)}, {v(RR+2,2)}, {v(x+2,2)}
  v_cvt_pk_bf16_f32 {v(x)}, {v(x)}, {v(x+1)}
  v_cvt_pk_bf16_f32 {v(x+1)}, {v(x+2)}, {v(x+3)}""")
        if p == 12: a(f"  s_mov_b64 exec, {s(sT,2)}")
        a(f"  ds_write_b64 {v(vOw)}, {v(x,2)} offset:{p*512}")
        if p == 12: a(f"  s_mov_b64 exec, -1")
        if p % 2 == 1 or p == 12:
            r = p // 2
            a(f"  ds_read_b128 {v(ACC[4*r+1 if r < 6 else 23],4)}, {v(vOr)} offset:{r*1024}")
    def s4(r):
        a(f"  buffer_store_dwordx4 {v(ACC[4*r+1 if r < 6 else 23],4)}, {v(vLin)}, {s(sOUT,4)}, s{sEb if r < 4 else sEb2} offen offset:{(r%4)*1024}{POL[OPT['opol']]}")
        fo.append(("st", r))
    xw = {}
    for t in range(NT + D + 2):
        if t == 6:
            a(f"  s_cmp_lg_u32 s{sCin}, 0\n  s_cbranch_scc1 L_x3")
            a.label("L_x3_back")
            xw[3] = len(fo) - xw[2]
        if t < NT + D: step_top(t, False)
        else: a(f"  ; ---- tail {t}\n  s_waitcnt lgkmcnt(0)")
        prio("fp", OPT["fprio"], t)
        if t in (0, 3):
            n = 1 if t == 0 else 2
            a(f"  s_cmp_lg_u32 s{sCin}, 0\n  s_cbranch_scc1 L_x{n}")
            a.label(f"L_x{n}_back")
            xw[n] = len(fo)
        if t == NT: stamp(a, 252, 4)
        if t == NT + D: stamp(a, 252, 5)
        if t == 1:
            a(f"""
  v_mov_b32 {v(XS0)}, 0
  v_mov_b32 {v(XS0+1)}, {v(WS0)}
  v_mov_b32 {v(XS1)}, 0
  v_mov_b32 {v(XS1+1)}, {v(WS1)}
  v_mov_b32 {v(XR)}, 0
  v_mov_b32 {v(XR+1)}, {v(WR)}""")
        if t == 5: s1(0)
        ts2 = {2*p+7 if p < 12 else 30: p for p in range(13)}
        if t - 2 in ts2 and (ts2[t-2] % 2 == 1): s4(ts2[t-2] // 2)
        if t - 1 in ts2: s3(ts2[t-1])
        if t in ts2: s2(ts2[t])
        if t % 2 == 1 and t // 2 < 13:
            p = t // 2
            a(f"  buffer_load_dwordx2 {v(MS[p%5],2)}, {v(vMoff)}, {s(sMW,4)}, s{sEb if p < 8 else sEb2} offen offset:{(p%8)*512}{POL[OPT['mpol']]}")
            fo.append(("m", p))
        if t < NT:
            step_main(t, fwait(("g", t - D)), False)
            fo.append(("g", t))
        elif t < NT + D:
            a(f"  s_waitcnt vmcnt({fwait(('g', t - D))})")
            cstage_m1(t % D)
            a("  s_nop 6")
            cstage_cvt()
            a("  s_waitcnt lgkmcnt(0)\n  s_nop 0")
            cstage_m2(t - D)
            a("  s_nop 3")
    a("  s_waitcnt lgkmcnt(0)")
    s4(6)
    stamp(a, 252, 6)
    if OPT["stamp"]: a("  s_waitcnt vmcnt(0)")
    stamp(a, 252, 7); stamp(a, 252, 63, "s_memrealtime")
    if OPT["stamp"] == 1: a(f"  v_writelane_b32 v252, s{sIt}, 61")
    stamp_out(a, 252, sWS, 8, STAMPOFF + 0x200000, 253)
    a.label("L_end")
    a("  s_endpgm")

    sSm, sS2 = sMk
    a.label("L_x1")
    a(f"""
  v_cmp_gt_u32 vcc, s{sCin}, {v(vSlot)}
  v_lshlrev_b32 {v(T)}, 3, {v(vSlot)}
  s_nop 0
  v_cndmask_b32 {v(T)}, {v(vOOB)}, {v(T)}, vcc
  buffer_load_dwordx2 {v(AG,2)}, {v(T)}, {s(sCAR,4)}, s{sCarR} offen sc1
  s_branch L_x1_back""")
    a.label("L_x2")
    a(f"""
  s_mul_i32 s{sX}, s{sW}, {NT}
  s_waitcnt vmcnt({xw[2] - xw[1]})
  v_min_i32 {v(U)}, {v(AG)}, {v(AG+1)}
  v_cmp_gt_i32 vcc, 0, {v(AG)}
  v_bfe_u32 {v(U+2)}, {v(U)}, 23, 8
  v_subrev_u32 {v(U+2)}, s{sX}, {v(U+2)}
  v_cndmask_b32_sdwa {v(U+1)}, {v(AG)}, {v(AG+1)}, vcc dst_sel:WORD_1 dst_unused:UNUSED_PAD src0_sel:WORD_1 src1_sel:WORD_0
  v_cmp_gt_i32 {s(sS2,2)}, 0, {v(U)}
  v_cmp_gt_u32 {s(sSm,2)}, {NT}, {v(U+2)}
  s_and_b64 vcc, {s(sSm,2)}, {s(sS2,2)}
  s_cselect_b32 s{sCin}, s{sCin}, 0
  s_cbranch_scc0 L_x2_back
  v_and_b32 {v(T)}, 0x7ffff, {v(U)}
  v_lshl_add_u32 {v(T)}, {v(T)}, 5, {v(vHalf)}
  v_mul_f32 {v(U+1)}, {v(U+1)}, {v(vFreq)}
  v_cndmask_b32 {v(T)}, {v(vOOB)}, {v(T)}, vcc
  buffer_load_dwordx4 {v(RR,4)}, {v(T)}, {s(sM,4)}, 0 offen
  v_cndmask_b32 {v(U+2)}, {v(vOOB)}, {v(U+2)}, vcc
  v_cvt_pk_bf16_f32 {v(U+1)}, 0, {v(U+1)}
  v_mul_f32 {v(U+1)}, 0.15915494, {v(U+1)}
  v_fract_f32 {v(U+1)}, {v(U+1)}
  v_cos_f32 {v(U+1)}, {v(U+1)}
  v_bfe_u32 {v(U+3)}, {v(U)}, 20, 3
  v_lshl_add_u32 {v(U+3)}, {v(U+3)}, 4, {v(vSst)}
  v_cvt_pk_bf16_f32 {v(U+1)}, {v(U+1)}, {v(U+1)}
  s_branch L_x2_back""")
    a.label("L_x3")
    a(f"""
  s_waitcnt vmcnt({xw[3]})
  v_mfma_f32_16x16x32_bf16 {v(Da,4)}, {v(RR,4)}, {v(Wa,4)}, 0
  v_mfma_f32_16x16x32_bf16 {v(Db,4)}, {v(RR,4)}, {v(Wb,4)}, 0
  s_nop 6""")
    cstage_cvt()
    for t in range(NT):
        a(f"""
  v_cmp_eq_u32 vcc, {t}, {v(U+2)}
  s_cbranch_vccz L_x3_{t}
  s_mov_b64 exec, vcc
  ds_write_b16 {v(U+3)}, {v(U+1)}
  s_mov_b64 exec, -1
  ds_read_b128 {v(Sf,4)}, {v(vSrd)}
  s_mov_b64 exec, vcc
  ds_write_b16 {v(U+3)}, {v(vZ)}
  s_mov_b64 exec, -1
  s_waitcnt lgkmcnt(0)""")
        cstage_m2(t)
        a.label(f"L_x3_{t}")
    a("  s_branch L_x3_back")
    a.label("L_it0")
    a(f"  s_cmp_lg_u32 s{sFl}, 0\n  s_cbranch_scc1 L_body0")
    for r in range(NG, NS): st(r)
    a("  s_nop 0")
    for r in range(NG, NS): zero_acc(sdt(r))
    signal_all("z0", 0)
    a("  s_branch L_nosig_z")
    for t in range(4):
        a.label(f"L_first_{t}")
        for u in range(4*t, 4*t+4): rec_load(u, T + 4 + 2 * (u & 1))
        a(f"  s_branch L_first_back_{t}")
    a.label("L_allfirst")
    a(f"  s_mov_b32 s{sY}, s{sSo}")
    for r in range(NB + N1, NS): st(r)
    a(f"  s_mov_b32 s{sSo}, s{sY}\n  s_waitcnt vmcnt(0)\n  s_barrier\n{flag3}\n  s_branch L_allfirst_back")
    for g in slowg:
        a.label(f"L_pslow_{g}")
        for u in range(4*g, 4*g+4):
            a(f"""
  s_mov_b64 exec, {s(PMK(u),2)}
  v_cmp_lt_u32 vcc, 63, {v(PRK(u))}
  s_cbranch_vccz L_pskip_{u}
  s_andn2_b64 {s(PMK(u),2)}, {s(PMK(u),2)}, vcc
  s_mov_b64 exec, vcc
  ds_add_rtn_u32 {v(T+1)}, {v(vCtlN)}, {v(vOne)}
  s_waitcnt lgkmcnt(0)
  v_lshlrev_b32 {v(T+1)}, 3, {v(T+1)}
  buffer_store_dwordx2 {v(REC[u],2)}, {v(T+1)}, {s(sCAR,4)}, s{sCarW} offen
  s_waitcnt vmcnt(0)""")
            a.label(f"L_pskip_{u}")
        a(f"  s_mov_b64 exec, -1\n  s_branch L_pback_{g}")
    for tag in ("b0", "lp"):
        a.label(f"L_slow_{tag}")
        a(f"  s_mov_b32 s{sX}, 512")
        a.label(f"L_slow_loop_{tag}")
        a(f"""
  v_add_u32 {v(T+1)}, s{sX}, {v(vCarIdx)}
  v_cmp_gt_u32 vcc, s{sCin}, {v(T+1)}
  v_lshlrev_b32 {v(T+1)}, 3, {v(T+1)}
  s_nop 0
  v_cndmask_b32 {v(T+1)}, {v(vOOB)}, {v(T+1)}, vcc
  buffer_load_dwordx2 {v(REC[16],2)}, {v(T+1)}, {s(sCAR,4)}, s{sCarR} offen sc1
  s_waitcnt vmcnt(0)""")
        ins1(16, "0", 0)
        a("  s_waitcnt lgkmcnt(0)")
        ins2(16, "sl" + tag, 0)
        a(f"""
  s_add_u32 s{sX}, s{sX}, 512
  s_cmp_lt_u32 s{sX}, s{sCin}
  s_cbranch_scc1 L_slow_loop_{tag}
  s_waitcnt vmcnt(0)
  s_branch L_slow_back_{tag}""")
    for lab, u, p in rare:
        a.label(f"L_rare_{lab}")
        a(f"""
  s_mov_b64 exec, vcc
  ds_add_rtn_u32 {v(RK[p])}, {v(vCtlN)}, {v(vOne)}
  v_mov_b32 {v(REC[u]+1)}, {v(WW[p])}
  s_waitcnt lgkmcnt(0)
  v_lshlrev_b32 {v(RK[p])}, 3, {v(RK[p])}
  buffer_store_dwordx2 {v(REC[u],2)}, {v(RK[p])}, {s(sCAR,4)}, s{sCarW} offen
  s_andn2_b64 exec, {s(sMk[p],2)}, vcc
  s_branch L_back_{lab}""")
    return NV

def kd(name, nv, ns):
    nv4 = (nv + 3) // 4 * 4
    return f""".amdhsa_kernel {name}
  .amdhsa_next_free_vgpr {nv}
  .amdhsa_next_free_sgpr {ns}
  .amdhsa_accum_offset {nv4}
  .amdhsa_group_segment_fixed_size 0
  .amdhsa_kernarg_size 112
  .amdhsa_user_sgpr_count 2
  .amdhsa_user_sgpr_kernarg_segment_ptr 1
  .amdhsa_system_sgpr_workgroup_id_x 1
  .amdhsa_float_denorm_mode_32 3
.end_amdhsa_kernel
"""

def main():
    out = sys.argv[1]
    ref = open(f"cdna_kernels/{NAME}.s.ref").read().split("\n")
    head = [l for l in ref if l.startswith(";") and "@launch" not in l and "Override" not in l and "grid=ceil" not in l]
    a = Asm()
    a(".amdgcn_target \"amdgcn-amd-amdhsa--gfx950\"\n.text")
    a(f".globl {NAME}_kernel\n.type {NAME}_kernel,@function")
    nv = gen_p2(a)
    errs = a.check()
    for e in errs: print("HAZARD", e)
    txt = "\n".join(head) + "\n"
    kern = f"kernel={NAME}_kernel " if OPT["list"] else ""
    txt += f"; @launch {kern}grid=(256,1,1) block=(512,1,1) lds={P1_LDS}\n"
    if OPT["probe"] >= 0:
        txt += "; @launch kernel=probe_kernel grid=(1,1,1) block=(64,1,1) lds=0\n"
        a(f"""
.p2align 8
probe_kernel:
  s_cmp_ge_u32 s2, 1
  s_cbranch_scc1 P_end
  s_load_dwordx2 s[4:5], s[0:1], 96
  s_waitcnt lgkmcnt(0)
  s_load_dwordx8 s[8:15], s[4:5], 0
  s_memrealtime s[16:17]
  s_waitcnt lgkmcnt(0)
  s_not_b32 s8, s8
  s_sub_u32 s20, s{8 + OPT['probe']}, s8
  {"s_lshr_b32 s20, s%d, 4" % (8 + OPT['probe']) if OPT['probe'] in (5, 7) else "s_nop 0"}
  s_min_u32 s20, s20, 20000
P_loop:
  s_memrealtime s[18:19]
  s_waitcnt lgkmcnt(0)
  s_sub_u32 s21, s18, s16
  s_cmp_lt_u32 s21, s20
  s_cbranch_scc1 P_loop
P_end:
  s_endpgm""")
    txt += a.text()
    txt += ".section .rodata,\"a\"\n.p2align 6\n" + kd(NAME + "_kernel", 256, 102) + (".p2align 6\n" + kd("probe_kernel", 8, 32) if OPT["probe"] >= 0 else "")
    open(out, "w").write(txt)
    print("vgprs p2:", nv, "lines:", len(a.lines), "hazards:", len(errs))

main()
```

```python
import sys, os
sys.path.insert(0, os.path.dirname(__file__))
from asmlib import Asm

NAME = "gather_scatter__molecular_angular_gemnet__graph"
E = 400000
NCH, CH = 250, 25600
EB = 1568
K = 6
MJ = 2739138
TABOFF = 0x2800000
CAROFF = 0x3000000
CARCAP = 9216
CARLIST = CARCAP * 8
STAMPOFF = 0x6000000
FLGOFF = 0x2c00000
OPT = dict(cpf=0, wsoff=0, mq=11, rot=0, pf0=0, a0=2, ag=2, early=0, abl_adj=0, probe=-1, tlb=0, cut=-1, opol=1, mpol=0, tq=3, fq=10, keff=6, jid=0, fprio=0x3ffff, lprio=0x3fff, napt=8, st0=1, stp=1, rb0=2, nap=8, list=1, nb=7, n1=2, n3=4, nl0=8, smask=0x2925, arr=10, spin=60000, rec_pol=2, stamp=0, itcap=64, ld_nt=7, st_pol=0, mtouch=0, la=3, apre=2, wmain=70000, b5=0, lim=24, nb2=7, ins0=4,
           abl_mfma=0, abl_s=0, abl_cos=0, abl_g=0)
for a in sys.argv[2:]:
    k, v = a.split("=")
    assert k in OPT, k
    OPT[k] = int(v, 0)
MK = -(-(1 << 32) // OPT["wmain"])
assert (399999 * MK) >> 32 <= 5

RPOL = ('', ' nt', ' sc1', ' sc0 sc1')[OPT['rec_pol']]

POL = ('', ' nt', ' sc1', ' sc0 sc1')

def v(i, n=1):
    return f"v{i}" if n == 1 else f"v[{i}:{i+n-1}]"
def s(i, n=1):
    return f"s{i}" if n == 1 else f"s[{i}:{i+n-1}]"

def stamp(a, vreg, lane, op="s_memtime"):
    if lane == OPT["cut"]: a("  s_endpgm")
    if not OPT["stamp"]: return
    if OPT["stamp"] == 2:
        mp = {62: (0, 1), 42: (1, 0), 45: (2, 0), 1: (3, 0), 11: (4, 0), 63: (6, 0)}
        if lane == 0:
            a("  s_memtime s[88:89]\n  s_waitcnt lgkmcnt(0)\n  s_mov_b32 s91, s88")
        if lane in (11, 7):
            a(f"  s_memtime s[88:89]\n  s_waitcnt lgkmcnt(0)\n  s_sub_u32 s88, s88, s91\n  v_writelane_b32 v{vreg}, s88, {5 if lane == 11 else 7}")
        if lane not in mp: return
        l, inv = mp[lane]
        a(f"  s_memrealtime s[88:89]\n  s_waitcnt lgkmcnt(0)")
        if inv: a("  s_not_b32 s88, s88")
        a(f"  v_writelane_b32 v{vreg}, s88, {l}")
        return
    a(f"  {op} s[88:89]\n  s_waitcnt lgkmcnt(0)\n  v_writelane_b32 v{vreg}, s88, {lane}")
def stamp_out(a, vreg, wslo, nwaves, base, tmp):
    if not OPT["stamp"]: return
    if OPT["stamp"] == 2:
        back = 512
        a(f"""
  s_load_dwordx2 s[90:91], s[0:1], 96
  s_waitcnt lgkmcnt(0)
  s_add_u32 s92, s90, {back}
  s_addc_u32 s93, s91, 0
  s_mov_b32 s94, 32
  s_mov_b32 s95, 0x20000
  v_lshlrev_b32 v{tmp}, 2, v0
  buffer_atomic_umax v{vreg}, v{tmp}, s[92:95], 0 offen""")
        return
    a(f"  s_mul_i32 s88, s2, {nwaves*256}\n  s_add_u32 s88, s88, {base}")
    srd(a, 92, wslo, wslo+1, "s88", nwaves*256)
    a(f"  v_lshlrev_b32 v{tmp}, 2, v0\n  buffer_store_dword v{vreg}, v{tmp}, s[92:95], 0 offen")

def srd(a, d, lo, hi, add, size):
    if add is None:
        a(f"  s_mov_b32 s{d}, s{lo}\n  s_mov_b32 s{d+1}, s{hi}")
    else:
        a(f"  s_add_u32 s{d}, s{lo}, {add}\n  s_addc_u32 s{d+1}, s{hi}, 0")
    a(f"  s_mov_b32 s{d+2}, {size}\n  s_mov_b32 s{d+3}, 0x20000")

P1_CNT, P1_SENT, P1_TMP, P1_REC = 0, 6144, 6160, 6272
P1_LDS = P1_REC + CH * 6

TS = 264
BUFSZ = 200 * TS
S_OFF = 13 * 8192
CTL = S_OFF + 8192
RB_OFF = CTL + 128
P2_LDS = RB_OFF + 8 * 3584
D = 5
NT = 25

class RA:
    def __init__(self, start): self.n = start
    def __call__(self, k=1, al=1):
        self.n = (self.n + al - 1) // al * al
        r = self.n; self.n += k
        return r

def gen_p2(a):
    ra = RA(1)
    vSlot, vHalf, vFreq, vSst, vSrd, vI6, vI1, vI4 = (ra() for _ in range(8))
    vRd, vCntA, vOne, vOOB, vCarOff, vCarIdx, v264, vMsk, vCtlN = (ra() for _ in range(9))
    vZ = ra(2, 2)
    Q = ra(6, 4)
    sA, nA, cb, rem, rtot, vA6, vB6, vR0, vRT4 = (ra() for _ in range(9))
    vCnt = ra()
    Wa = ra(4, 4); Wb = ra(4, 4)
    RING = [ra(4, 4) for _ in range(D)]
    Da = ra(4, 4); Db = ra(4, 4); P = ra(4, 4); Sf = ra(4, 4)
    ACC = [ra(4, 4) for _ in range(NT)]
    REC = [ra(2, 4 if i == 0 else 2) for i in range(17)]
    RP = [ra(2, 2), ra(2, 2)]
    T = ra(10, 2)
    TA = [ra(), ra()]; RK = [ra(), ra()]
    WS0 = ra(2, 2); WS1 = ra(2, 2); WR = ra(2, 2); WUP = ra(2, 2)
    CC = [ra() for _ in range(D)]; SA = [ra() for _ in range(D)]
    WW = [ra(), ra()]
    assert ra.n <= 252, ra.n
    NV = ra.n
    sM = 4; sREC = 8; sCAR = 12; sTAB = 16; sOUT = 20; sDIST = 24; sMW = 28
    sJ, sW, sIt, sThr, sIns, sCarW, sCarR, sRb, sCin, sX, sFl, sEb = range(32, 44)
    sCnt = [44, 45]
    sWS = 46
    sPM = 72
    sMk = [72, 74]; sT = 76; sC10 = 78; sCl2 = 80
    sEb2 = 3
    rare = []

    O, I, R, A = 36, 88, 140, 192
    PT = 218
    _, vL8, vL4, vL128, vSix, vTwo, vFlg, vDum, vTab, vWo = range(234, 244)
    vL16 = WW[0]
    rDist, rSbf, rUp, rDown, rRbf = 86, 248, 190, 232, 217
    assert Wa == 36 and T == PT
    vSent = vCnt
    sIO, sII, sAN, sMT, sTW, sDBG = 4, 8, 12, 16, 20, 24
    sFLG, sRW = 92, 96
    sMJ, sMK, sNEB, sB5, sO4, sO2 = range(80, 86)
    sY, sSo = 100, 101
    nto, nti, nta = (" nt" if OPT["ld_nt"] >> b & 1 else "" for b in range(3))
    NR = 13
    nrec = lambda q: 4 if q < 12 else 2
    vm = []
    def ld_pair(q):
        if q < 12:
            a(f"  buffer_load_dwordx4 {v(O+4*q,4)}, {v(vL16)}, {s(sIO,4)}, s{sO4} offen{nto}")
            a(f"  buffer_load_dwordx4 {v(I+4*q,4)}, {v(vL16)}, {s(sII,4)}, s{sO4} offen{nti}")
            a(f"  s_add_u32 s{sO4}, s{sO4}, 8192")
        else:
            a(f"  buffer_load_dwordx2 {v(O+48,2)}, {v(vL8)}, {s(sIO,4)}, s{sO4} offen{nto}")
            a(f"  buffer_load_dwordx2 {v(I+48,2)}, {v(vL8)}, {s(sII,4)}, s{sO4} offen{nti}")
        vm.extend([("o", q), ("p", q)])
    def ld_ang(q):
        if q < 12:
            a(f"  buffer_load_dwordx2 {v(A+2*q,2)}, {v(vL8)}, {s(sAN,4)}, s{sO2} offen{nta}")
            a(f"  s_add_u32 s{sO2}, s{sO2}, 4096")
        else: a(f"  buffer_load_dword {v(A+24)}, {v(vL4)}, {s(sAN,4)}, s{sO2} offen{nta}")
        vm.append(("a", q))
    def wait_for(x):
        a(f"  s_waitcnt vmcnt({len(vm) - 1 - vm.index(x)})")
    def poll(tag, load, cond, nap=4):
        a(f"  s_mov_b32 s{sY}, {OPT['spin']}")
        a.label(f"L_poll_{tag}")
        a(load)
        a("  s_waitcnt vmcnt(0)")
        a(cond)
        a(f"""
  s_cbranch_vccz L_polled_{tag}
  s_sleep {nap}
  s_sub_u32 s{sY}, s{sY}, 1
  s_cbranch_scc0 L_poll_{tag}""")
        a.label(f"L_polled_{tag}")

    a(".p2align 8")
    a.label(NAME + "_kernel")
    a(f"""
  s_cmp_ge_u32 s2, 256
  s_cbranch_scc1 L_end
  s_load_dwordx16 s[48:63], s[0:1], 0
  s_load_dwordx4 s[44:47], s[0:1], 96
  s_load_dwordx8 s[64:71], s[0:1], 64
  v_lshlrev_b32 {v(vL16)}, 4, v0
  v_mov_b64 {v(PT,2)}, 0
  v_mov_b64 {v(PT+2,2)}, 0
  s_min_u32 s{sY}, s2, {NCH-1}
  s_mul_i32 s{sX}, s{sY}, {CH*4}
  s_cmp_lt_u32 s2, {NCH}
  s_cselect_b32 s{sFl}, {CH*2}, 0
  s_lshl_b32 s{sCin}, s{sFl}, 1
  s_mov_b32 s{sO4}, 0
  s_mov_b32 s{sO2}, 0
  ds_write_b128 {v(vL16)}, {v(PT,4)}
  v_lshrrev_b32 {v(T+8)}, 6, v0
  s_and_b32 s{sJ}, s2, 7
  s_lshl_b32 s{sJ}, s{sJ}, 5
  s_lshr_b32 s{sEb}, s2, 3
  s_add_u32 s{sJ}, s{sJ}, s{sEb}
  v_readfirstlane_b32 s{sW}, {v(T+8)}
  v_and_b32 {v(T+7)}, 63, v0
  v_lshlrev_b32 {v(T+6)}, 3, {v(T+7)}
  v_lshlrev_b32 {v(T+7)}, 2, {v(T+7)}
  s_mul_i32 s{sEb}, s{sJ}, {EB*2}
  s_mul_i32 s{sRb}, s{sW}, 400
  s_add_u32 s{sEb}, s{sEb}, s{sRb}
  s_waitcnt lgkmcnt(0)""")
    if OPT["stamp"] == 2: a("  v_mov_b32 v252, 0\n  s_nop 1")
    stamp(a, 252, 0); stamp(a, 252, 62, "s_memrealtime")
    srd(a, sIO, 52, 53, f"s{sX}", f"s{sCin}")
    srd(a, sII, 50, 51, f"s{sX}", f"s{sCin}")
    ld_pair(0)
    if OPT["wsoff"]: a(f"  s_add_u32 s{sWS}, s{sWS}, {OPT['wsoff'] << 20}\n  s_addc_u32 s{sWS+1}, s{sWS+1}, 0")
    srd(a, 28, 54, 55, None, E * 2)
    a(f"""
  buffer_load_dwordx2 {v(rDist,2)}, {v(T+6)}, s[28:31], s{sEb} offen
  global_load_dwordx2 {v(rSbf,2)}, {v(T+6)}, s[64:65]
  global_load_dwordx2 {v(rUp,2)}, {v(T+6)}, s[68:69]
  global_load_dwordx2 {v(rDown,2)}, {v(T+6)}, s[66:67]
  global_load_dword {v(rRbf)}, {v(T+7)}, s[62:63]""")
    vm.extend([("s", i) for i in range(5)])
    if OPT["cpf"]:
        n = OPT["cpf"]
        a(f"""
  s_getpc_b64 s[28:29]
  s_lshr_b32 s{sRb}, s2, 3
  s_mul_i32 s{sRb}, s{sRb}, {n*128}
  s_add_u32 s30, s{sRb}, {n*128}
  s_min_u32 s30, s30, L_code_end-L_cpf
  v_lshlrev_b32 {v(T+5)}, 7, v0""")
        a.label("L_cpf")
        a(f"  buffer_load_dword v244, {v(T+5)}, s[28:31], s{sRb} offen")
        vm.append(("c", 0))
    ld_pair(1)
    a("  s_barrier")
    LA = OPT["la"]
    for q in range(2, LA): ld_pair(q)
    a(f"  s_lshr_b32 s{sX}, s{sX}, 1")
    srd(a, sAN, 56, 57, f"s{sX}", f"s{sFl}")
    srd(a, sMT, 48, 49, f"s{sX}", f"s{sFl}")
    a(f"  s_mul_i32 s{sX}, s{sY}, {CH*6}\n  s_mul_i32 s{sFl}, s{sFl}, 3")
    srd(a, sRW, sWS, sWS+1, f"s{sX}", f"s{sFl}")
    srd(a, sTW, sWS, sWS+1, TABOFF, 256 * 8192)
    srd(a, sFLG, sWS, sWS+1, FLGOFF, 8192)
    srd(a, sDBG, 44, 45, None, 256)
    a(f"""
  s_lshl_b32 s{sX}, s2, 2
  v_lshl_add_u32 {v(vFlg)}, v0, 10, s{sX}
  s_cmp_lt_u32 s2, {NCH}
  s_cselect_b32 s{sX}, 0, 4
  v_mov_b32 {v(vDum)}, s{sX}
  buffer_store_dword {v(vDum)}, {v(vFlg)}, {s(sFLG,4)}, 0 offen sc1
  s_lshl_b32 s{sX}, s{sX}, 20
  v_or_b32 {v(vFlg)}, s{sX}, {v(vFlg)}
  s_load_dword s{sCin}, s[60:61], 0
  s_load_dwordx4 s[56:59], s[58:59], 0
  v_lshlrev_b32 {v(vL8)}, 3, v0
  v_lshlrev_b32 {v(vL4)}, 2, v0
  {'v_mov_b32 %s, %d' % (v(vL128), E//8) if OPT['rot'] == 2 else 'v_lshlrev_b32 %s, 7, v0' % v(vL128)}
  v_mov_b32 {v(vSix)}, 6
  v_mov_b32 {v(vTwo)}, 2
  s_mov_b32 s{sMJ}, {MJ}
  s_mov_b32 s{sMK}, {MK}
  s_mov_b32 s{sNEB}, {-EB & 0xffffffff}
  s_mov_b32 s{sB5}, {(-(E//8) & 0xffffffff) if OPT['rot'] else OPT['b5']}
  v_lshrrev_b32 {v(T)}, 6, v0
  v_and_b32 {v(T+2)}, 15, v0
  v_bfe_u32 {v(T+3)}, v0, 5, 1
  v_lshlrev_b32 {v(vHalf)}, 4, {v(T+3)}
  v_lshl_add_u32 {v(cb)}, {v(T)}, 5, {v(vHalf)}
  v_add_u32 {v(cb)}, {v(cb)}, {v(T+2)}
  v_lshlrev_b32 {v(vTab)}, 13, {v(cb)}
  v_and_b32 {v(T+1)}, 63, v0
  v_and_b32 {v(vSlot)}, 31, v0
  v_mov_b64 {v(vZ,2)}, 0
  v_mov_b32 {v(v264)}, {TS}
  v_mov_b32 {v(vCtlN)}, {CTL}
  s_lshl_b32 s{sX}, s{sW}, 10
  s_add_u32 s{sX}, s{sX}, {S_OFF}
  v_lshl_add_u32 {v(vSrd)}, {v(T+1)}, 4, s{sX}
  v_bfe_u32 {v(T+6)}, v0, 2, 2
  v_lshlrev_b32 {v(vSst)}, 8, {v(T+6)}
  v_lshl_add_u32 {v(vSst)}, {v(T+3)}, 7, {v(vSst)}
  v_bfe_u32 {v(T+6)}, v0, 4, 1
  v_lshl_add_u32 {v(vSst)}, {v(T+6)}, 3, {v(vSst)}
  v_and_b32 {v(T+6)}, 3, v0
  v_lshl_add_u32 {v(vSst)}, {v(T+6)}, 1, {v(vSst)}
  v_add_u32 {v(vSst)}, s{sX}, {v(vSst)}
  v_mov_b32 {v(vOne)}, 1
  v_mov_b32 {v(vOOB)}, 0x80000000
  v_mov_b32 {v(vMsk)}, 0x7ffffffc
  v_mul_u32_u24 {v(vI6)}, 6, {v(vSlot)}
  v_add_u32 {v(vI1)}, 1, {v(vSlot)}
  v_lshlrev_b32 {v(vI4)}, 2, {v(vI1)}
  v_mov_b32 {v(T+6)}, {CH}
  v_mul_u32_u24 {v(cb)}, {v(cb)}, {v(T+6)}
  v_mov_b32 {v(sA)}, 0
  v_mov_b32 {v(nA)}, 0
  v_mov_b32 {v(rtot)}, 0
  s_mul_i32 s{sX}, s{sW}, {NT*TS}
  s_add_u32 s{sX}, s{sX}, {BUFSZ}
  v_lshl_add_u32 {v(vRd)}, {v(vSlot)}, 3, s{sX}""")
    if OPT["abl_adj"]:
        a(f"""
  v_bfe_u32 {v(T+6)}, v0, 1, 5
  v_lshl_add_u32 {v(vRd)}, {v(T+6)}, 3, s{sX}
  v_and_b32 {v(vHalf)}, 1, v0
  v_lshlrev_b32 {v(vHalf)}, 4, {v(vHalf)}""")
    a(f"""
  v_min_u32 {v(T+6)}, {NT-1}, {v(T+1)}
  v_mad_u32_u24 {v(vCntA)}, {v(T+6)}, {v(v264)}, s{sX}
  v_sub_u32 {v(vCarIdx)}, 511, v0
  v_lshlrev_b32 {v(vCarOff)}, 3, {v(vCarIdx)}
  v_cmp_eq_u32 vcc, 1, {v(T+3)}
  s_waitcnt lgkmcnt(0)
  s_lshl_b32 s{sX}, s{sCin}, 16
  s_and_b32 s{sCin}, s{sCin}, 0xffff0000
  v_mov_b32 {v(vFreq)}, s{sX}
  v_mov_b32 {v(T+6)}, s{sCin}
  v_cndmask_b32 {v(vFreq)}, {v(vFreq)}, {v(T+6)}, vcc
  s_mov_b32 s{sIt}, -1
  s_mov_b32 s{sIns}, 0
  s_mov_b32 s{sCarW}, 0
  s_mov_b32 s{sCarR}, {CARLIST}
  s_mul_i32 s{sEb}, s{sJ}, {EB}
  s_mul_i32 s{sX}, s{sW}, 200
  s_add_u32 s{sFl}, s{sEb}, {EB}
  s_add_u32 s{sEb}, s{sEb}, s{sX}
  s_add_u32 s{sRb}, s{sEb}, 200
  s_min_u32 s{sRb}, s{sRb}, s{sFl}
  s_min_u32 s{sRb}, s{sRb}, {E}
  s_lshl_b32 s{sRb}, s{sRb}, 5
  s_lshl_b32 s{sEb}, s{sEb}, 5
  s_add_u32 s{sEb2}, s{sEb}, 4096""")

    if OPT["tlb"]:
        sh = OPT["tlb"]
        srd(a, 28, sWS, sWS+1, None, FLGOFF + 8192)
        a(f"  v_lshlrev_b32 v249, {sh}, v0\n  buffer_load_dword v248, v249, s[28:31], 0 offen")
        srd(a, 28, 48, 49, None, E * 32)
        a(f"  buffer_load_dword v248, v249, s[28:31], 0 offen")
        srd(a, 28, 70, 71, None, E * 32)
        a(f"  buffer_load_dword v248, v249, s[28:31], 0 offen")
        vm.extend([("tlb", i) for i in range(3)])
    a(f"""
  s_cmp_ge_u32 s2, {NCH}
  s_cbranch_scc1 L_nochunk1""")
    vm.append(("flg", 0))
    arrive = f"""
  s_and_b32 s{sY}, s2, 15
  s_lshl_b32 s{sY}, s{sY}, 4
  v_lshlrev_b32 {v(PT)}, 8, v0
  buffer_atomic_add {v(vOne)}, {v(PT)}, {s(sDBG,4)}, s{sY} offen"""
    def hist(idx):
        if OPT["b5"]:
            for x, i in enumerate(idx): a(f"  v_cmp_le_u32 {s(72+2*x,2)}, s{sB5}, {v(I+i)}")
        for x, i in enumerate(idx): a(f"  v_mul_hi_u32_u24 {v(PT+x)}, s{sMJ}, {v(O+i)}")
        if OPT["rot"] == 2:
            for x, i in enumerate(idx): a(f"  v_lshrrev_b32 {v(PT+4+x)}, 5, {v(PT+x)}")
            for x, i in enumerate(idx): a(f"  v_mad_i32_i24 {v(PT+4+x)}, {v(PT+4+x)}, s{sB5}, {v(I+i)}")
            for x, i in enumerate(idx): a(f"  v_cmp_gt_u32 {s(72+2*x,2)}, {v(vL128)}, {v(PT+4+x)}")
            for x, i in enumerate(idx): a(f"  v_ashrrev_i32 {v(PT+4+x)}, 31, {v(PT+4+x)}")
            for x, i in enumerate(idx): a(f"  v_and_b32 {v(PT+4+x)}, {v(vL128)}, {v(PT+4+x)}")
            for x, i in enumerate(idx): a(f"  v_add3_u32 {v(PT+4+x)}, {v(PT+4+x)}, s{sB5}, {v(I+i)}")
            for x, i in enumerate(idx): a(f"  v_mul_hi_u32_u24 {v(PT+4+x)}, s{sMK}, {v(PT+4+x)}")
            for x, i in enumerate(idx): a(f"  v_cndmask_b32 {v(PT+4+x)}, {v(PT+4+x)}, 5, {s(72+2*x,2)}")
        elif OPT["rot"]:
            for x, i in enumerate(idx): a(f"  v_lshrrev_b32 {v(PT+4+x)}, 5, {v(PT+x)}")
            for x, i in enumerate(idx): a(f"  v_mad_i32_i24 {v(PT+4+x)}, {v(PT+4+x)}, s{sB5}, {v(I+i)}")
            for x, i in enumerate(idx): a(f"  v_add_u32 {v(PT+8+x)}, {E - E//8}, {v(PT+4+x)}")
            for x, i in enumerate(idx): a(f"  v_add_u32 {v(PT+4+x)}, s{sB5}, {v(PT+4+x)}")
            for x, i in enumerate(idx): a(f"  v_min_u32 {v(PT+4+x)}, {v(PT+4+x)}, {v(PT+8+x)}")
            for x, i in enumerate(idx): a(f"  v_mul_hi_u32_u24 {v(PT+4+x)}, s{sMK}, {v(PT+4+x)}")
        else:
            for x, i in enumerate(idx): a(f"  v_mul_hi_u32_u24 {v(PT+4+x)}, s{sMK}, {v(I+i)}")
        if OPT["b5"]:
            for x, i in enumerate(idx): a(f"  v_cndmask_b32 {v(PT+4+x)}, {v(PT+4+x)}, 5, {s(72+2*x,2)}")
        for x, i in enumerate(idx): a(f"  v_mad_i32_i24 {v(PT+8+x)}, {v(PT+x)}, s{sNEB}, {v(O+i)}")
        for x, i in enumerate(idx): a(f"  v_lshl_add_u32 {v(O+i)}, {v(PT+4+x)}, 8, {v(PT+x)}")
        for x, i in enumerate(idx): a(f"  v_lshlrev_b32 {v(O+i)}, 2, {v(O+i)}")
        for x, i in enumerate(idx): a(f"  ds_add_rtn_u32 {v(R+i)}, {v(O+i)}, {v(vOne)}")
        for x, i in enumerate(idx): a(f"  v_lshl_or_b32 {v(I+i)}, {v(PT+8+x)}, 20, {v(I+i)}")
        for x, i in enumerate(idx): a(f"  v_or_b32 {v(I+i)}, 0x80000000, {v(I+i)}")
    na = 0
    for q in range(NR):
        wait_for(("p", q))
        if q == 0: stamp(a, 252, 40)
        if q == LA:
            a(arrive); vm.append(("arr", 0))
        if OPT["mtouch"] == 3 and q == OPT["mq"]:
            a(f"  buffer_load_dword v244, {v(vL128)}, {s(sMT,4)}, 0 offen"); vm.append(("m", 0))
        if q + LA < NR: ld_pair(q + LA)
        else:
            for _ in range(2):
                if na < OPT["apre"]: ld_ang(na); na += 1
        hist(list(range(4*q, 4*q + nrec(q))))
    stamp(a, 252, 41)
    X = v(PT+4)
    a(f"""
  s_waitcnt lgkmcnt(0)
  s_barrier
  s_cmp_ge_u32 s{sW}, {K}
  s_cbranch_scc1 L_bin_s1
  ds_read_b128 {v(PT,4)}, {v(vL16)}
  v_and_b32 {v(PT+8)}, 63, v0
  s_waitcnt lgkmcnt(0)
  v_add_u32 {v(PT+1)}, {v(PT)}, {v(PT+1)}
  v_add_u32 {v(PT+2)}, {v(PT+1)}, {v(PT+2)}
  v_add_u32 {v(PT+3)}, {v(PT+2)}, {v(PT+3)}
  v_mov_b32 {v(PT+4)}, {v(PT+3)}""")
    for sh in (1, 2, 4, 8):
        a(f"  s_nop 1\n  v_add_u32_dpp {X}, {X}, {X} row_shr:{sh} row_mask:0xf bank_mask:0xf bound_ctrl:0")
    a(f"  s_nop 1\n  v_add_u32_dpp {X}, {X}, {X} row_bcast:15 row_mask:0xa bank_mask:0xf")
    a(f"  s_nop 1\n  v_add_u32_dpp {X}, {X}, {X} row_bcast:31 row_mask:0xc bank_mask:0xf")
    a(f"""
  v_cmp_lt_u32 vcc, s{sW}, {v(PT+8)}
  v_readlane_b32 s{sY}, {X}, 63
  v_lshlrev_b32 {v(PT+9)}, 2, {v(PT+8)}
  s_and_b32 vcc_lo, vcc_lo, 0xff
  s_mov_b32 vcc_hi, 0
  v_mov_b32 {v(PT+10)}, s{sY}
  s_mov_b64 exec, vcc
  ds_add_u32 {v(PT+9)}, {v(PT+10)} offset:{P1_TMP}
  s_mov_b64 exec, -1
  s_waitcnt lgkmcnt(0)""")
    a.label("L_bin_s1")
    a(f"""
  s_barrier
  s_cmp_ge_u32 s{sW}, {K}
  s_cbranch_scc1 L_bin_s2
  s_lshl_b32 s{sY}, s{sW}, 2
  v_mov_b32 {v(PT+9)}, s{sY}
  ds_read_b32 {v(PT+9)}, {v(PT+9)} offset:{P1_TMP}
  v_sub_u32 {X}, {X}, {v(PT+3)}
  v_mov_b32 {v(PT+10)}, {CH}
  s_waitcnt lgkmcnt(0)
  v_add_u32 {v(PT+4)}, {X}, {v(PT+9)}
  v_add_u32 {v(PT+5)}, {v(PT+4)}, {v(PT)}
  v_add_u32 {v(PT+6)}, {v(PT+4)}, {v(PT+1)}
  v_add_u32 {v(PT+7)}, {v(PT+4)}, {v(PT+2)}
  ds_write_b128 {v(vL16)}, {v(PT+4,4)}
  ds_write_b32 {v(vZ)}, {v(PT+10)} offset:{P1_SENT}
  s_waitcnt lgkmcnt(0)""")
    a.label("L_bin_s2")
    a("  s_barrier")
    stamp(a, 252, 42)
    a(f"""
  v_lshrrev_b32 {v(PT+12)}, 1, v0
  v_and_b32 {v(PT+13)}, 1, v0
  v_lshlrev_b32 {v(PT+12)}, 2, {v(PT+12)}
  v_lshl_add_u32 {v(PT+13)}, {v(PT+13)}, 12, {v(PT+12)}
  s_lshl_b32 s{sY}, s2, 13""")
    for k in range(4):
        a(f"  ds_read_b32 {v(PT+k)}, {v(PT+13)} offset:{k*1024}")
        a(f"  ds_read_b32 {v(PT+6+k)}, {v(PT+13)} offset:{k*1024+4}")
    a("  s_waitcnt lgkmcnt(0)")
    for k in range(4): a(f"  v_sub_u32 {v(PT+6+k)}, {v(PT+6+k)}, {v(PT+k)}")
    for k in range(4): a(f"  v_lshl_or_b32 {v(PT+k)}, {v(PT+6+k)}, 16, {v(PT+k)}")
    a(f"  buffer_store_dwordx4 {v(PT,4)}, {v(vL16)}, {s(sTW,4)}, s{sY} offen sc1")
    vm.append(("tab", 0))
    mark = len(vm)
    for _ in range(OPT["a0"]):
        if na < NR: ld_ang(na); na += 1
    NB = OPT["nb"]
    vDa, vDv, vRa = 245, 246, 247
    lda = f"  buffer_load_dword {v(vDv)}, {v(vDa)}, {s(sDBG,4)}, 0 offen sc1"
    cda = f"  v_cmp_gt_u32 vcc, 16, {v(vDv)}"
    ada = f"""
  s_lshl_b32 s{sX}, s{sW}, 16
  v_and_b32 {v(vDa)}, 15, v0
  v_lshl_add_u32 {v(vDa)}, {v(vDa)}, 4, s{sX}"""
    NRD = 15
    for i in range(NRD): a(f"  ds_read_b32 {v(O+i)}, {v(O+i)}")
    a(f"  s_mov_b32 s{sB5}, {NB*8192 + 4}\n  s_mov_b32 s{sSo}, 0")
    a(ada)
    a(f"  v_add_u32 {v(vRa)}, {P1_REC}, {v(vL16)}")
    for g in range(10):
        idx = list(range(5*g, 5*g+5))
        for _ in range(OPT["ag"]):
            if na < NR: ld_ang(na); na += 1
        a(f"  s_waitcnt lgkmcnt({min(10, 45 - 5*g)})")
        for i in idx:
            if i + NRD < 50: a(f"  ds_read_b32 {v(O+i+NRD)}, {v(O+i+NRD)}")
        for i in idx: a(f"  v_add_u32 {v(O+i)}, {v(O+i)}, {v(R+i)}")
        for i in idx: a(f"  v_mad_u32_u24 {v(O+i)}, {v(O+i)}, {v(vSix)}, {v(vTwo)}")
        for x, i in enumerate(idx): a(f"  v_and_b32 {v(PT+x)}, 2, {v(O+i)}")
        for i in idx: a(f"  v_and_b32 {v(R+i)}, -4, {v(O+i)}")
        for x, i in enumerate(idx): a(f"  v_lshl_add_u32 {v(O+i)}, {v(PT+x)}, 1, {v(O+i)}")
    assert na == NR
    if OPT["mtouch"] == 1:
        a(f"  buffer_load_dword v244, {v(vL128)}, {s(sMT,4)}, 0 offen"); vm.append(("m", 0))
    def put(q, cmp):
        idx = list(range(4*q, 4*q + nrec(q)))
        for x, i in enumerate(idx): a(f"  v_cmp_{cmp}_u32 {s(72+2*x,2)}, s{sB5}, {v(R+i)}")
        for x, i in enumerate(idx):
            op = "ds_write_b16_d16_hi" if (i & 1) else "ds_write_b16"
            a(f"""
  s_mov_b64 exec, {s(72+2*x,2)}
  ds_write_b32 {v(R+i)}, {v(I+i)} offset:{P1_REC}
  {op} {v(O+i)}, {v(A + i//2)} offset:{P1_REC-2}""")
        a("  s_mov_b64 exec, -1")
    for q in range(NR):
        wait_for(("a", q))
        for r in range(nrec(q) // 2): a(f"  v_and_b32 {v(A+2*q+r)}, 0x7fff7fff, {v(A+2*q+r)}")
        if q == OPT["tq"]:
            assert q >= OPT["apre"]
            a("  s_barrier")
            a(lda); vm.append(("lda", 0))
            a(f"  buffer_store_dword {v(vOne)}, {v(vFlg)}, {s(sFLG,4)}, 0 offen sc1"); vm.append(("flg", 1))
            if OPT["mtouch"] == 2:
                a(f"  buffer_load_dword v244, {v(vL128)}, {s(sMT,4)}, 0 offen"); vm.append(("m", 0))
        put(q, "gt")
    a(f"  ds_read_b32 {v(vWo)}, {v(vZ)} offset:2048")
    a("  s_waitcnt lgkmcnt(0)\n  s_barrier")
    stamp(a, 252, 43)
    a(f"  v_readfirstlane_b32 s{sO2}, {v(vWo)}")
    free = [PT, PT + 4, PT + 8, O, I, R, O + 4, I + 4, R + 4]
    def erd(r): a(f"  ds_read_b128 {v(free[r],4)}, {v(vRa)} offset:{r*8192}")
    def est(r):
        a(f"  buffer_store_dwordx4 {v(free[r],4)}, {v(vL16)}, {s(sRW,4)}, s{sSo} offen sc1\n  s_add_u32 s{sSo}, s{sSo}, 8192")
        vm.append(("st", r))
    assert NB <= 8
    for r in range(3): erd(r)
    for r in range(3):
        a(f"  s_waitcnt lgkmcnt({2 - r})")
        est(r)
    put(0, "le"); put(1, "le")
    for r in range(3, NB): erd(r)
    put(2, "le")
    a("  s_waitcnt lgkmcnt(0)")
    todo = list(range(3, NB))
    fad = f"""
  v_and_b32 {v(RK[0])}, 63, v0
  v_lshlrev_b32 {v(RK[0])}, 4, {v(RK[0])}
  s_and_b32 s{sCin}, s2, 7
  s_lshl_b32 s{sCin}, s{sCin}, 10"""
    for q in range(3, NR):
        if todo: est(todo.pop(0))
        if q == OPT["fq"]:
            assert q >= 8 and Da == O + 28 and not todo
            a(fad)
            a(f"  s_mov_b32 s{sO4}, 0\n  s_cmp_lg_u32 s{sW}, 0\n  s_cbranch_scc1 L_nofl")
            wait_for(("lda", 0))
            a(cda)
            a(f"  s_cbranch_vccnz L_nofl\n  s_mov_b32 s{sO4}, 1")
            a(f"  buffer_load_dwordx4 {v(Da,4)}, {v(RK[0])}, {s(sFLG,4)}, s{sCin} offen sc1")
            a.label("L_nofl")
        put(q, "le")
    assert not todo
    stamp(a, 252, 44)
    FP = Da
    def flag_load(dst, off): return f"  buffer_load_dwordx4 {v(dst,4)}, {v(off)}, {s(sFLG,4)}, s{sCin if dst == FP else sX} offen sc1"
    def flag_cond(dst, stage): return f"""
  v_min3_u32 {v(dst)}, {v(dst)}, {v(dst+1)}, {v(dst+2)}
  v_min_u32 {v(dst)}, {v(dst)}, {v(dst+3)}
  v_cmp_gt_u32 vcc, {stage}, {v(dst)}"""
    a(f"  s_waitcnt vmcnt(0)\n  s_cmp_lg_u32 s{sW}, 0\n  s_cbranch_scc1 L_polled_t")
    a(f"  s_cmp_eq_u32 s{sO4}, 0\n  s_cbranch_scc1 L_wait_a")
    a(flag_cond(FP, 1))
    a("  s_cbranch_vccz L_polled_t\n  s_branch L_polled_a")
    a.label("L_nochunk1")
    if 40 <= OPT["cut"] <= 44: a("  s_endpgm")
    a("  s_waitcnt vmcnt(0)")
    a(arrive)
    a(ada)
    a(fad)
    a(f"  s_mov_b32 s{sO2}, 0\n  s_cmp_lg_u32 s{sW}, 0\n  s_cbranch_scc1 L_polled_t")
    a.label("L_wait_a")
    poll("a", lda, cda, 64)
    poll("t", flag_load(FP, RK[0]), flag_cond(FP, 1), OPT["napt"])
    a(f"""
  s_lshl_b32 s{sX}, s{sJ}, 5
  s_add_u32 s{sX}, s{sX}, {TABOFF}""")
    srd(a, sTAB, sWS, sWS+1, f"s{sX}", (NCH - 1) * 8192 + 32)

    def state_update():
        a(f"""
  v_sub_u32 {v(rem)}, {v(rem)}, {v(rtot)}
  v_lshrrev_b32 {v(T)}, 16, {v(Q)}
  v_and_b32 {v(T+1)}, 0xffff, {v(Q)}
  v_min_u32 {v(vR0)}, 32, {v(nA)}
  v_cmp_ge_u32 vcc, 32, {v(nA)}
  v_sub_u32 {v(T+2)}, 32, {v(vR0)}
  v_add_u32 {v(vB6)}, {v(cb)}, {v(T+1)}
  v_min_u32 {v(T+2)}, {v(T)}, {v(T+2)}
  v_mul_u32_u24 {v(vB6)}, 6, {v(vB6)}
  v_add_u32 {v(rtot)}, {v(vR0)}, {v(T+2)}
  v_mad_i32_i24 {v(vB6)}, {v(vR0)}, -6, {v(vB6)}
  v_lshlrev_b32 {v(vRT4)}, 2, {v(rtot)}
  v_add_u32 {v(vA6)}, {v(cb)}, {v(sA)}
  v_mul_u32_u24 {v(vA6)}, 6, {v(vA6)}""")
    def state_update2():
        a(f"""
  v_add_u32 {v(sA)}, 32, {v(sA)}
  v_subrev_u32 {v(nA)}, 32, {v(nA)}
  v_add_u32 {v(T+1)}, {v(T+1)}, {v(T+2)}
  v_sub_u32 {v(T)}, {v(T)}, {v(T+2)}
  v_cndmask_b32 {v(sA)}, {v(sA)}, {v(T+1)}, vcc
  v_cndmask_b32 {v(nA)}, {v(nA)}, {v(T)}, vcc""")
        for i in range(K - 1):
            a(f"  v_cndmask_b32 {v(Q+i)}, {v(Q+i)}, {v(Q+i+1)}, vcc")
        a(f"  v_cndmask_b32 {v(Q+K-1)}, {v(Q+K-1)}, {v(vZ)}, vcc")
    def set_flag(tag):
        a(f"""
  v_cmp_lt_u32 vcc, 0, {v(rem)}
  s_cbranch_vccz L_noflag_{tag}
  ds_write_b32 {v(vCtlN)}, {v(vOne)} offset:4""")
        a.label(f"L_noflag_{tag}")

    bc = lambda u: f"row_newbcast:{u} row_mask:0xf bank_mask:0xf"
    def rec_load(u, t0):
        a(f"""
  v_sub_co_u32_dpp {v(t0)}, vcc, {v(vR0)}, {v(vI1)} {bc(u)}
  v_add_u32_dpp {v(t0)}, {v(vA6)}, {v(vI6)} {bc(u)}
  v_add_u32_dpp {v(t0+1)}, {v(vB6)}, {v(vI6)} {bc(u)}
  v_cndmask_b32 {v(t0)}, {v(t0)}, {v(t0+1)}, vcc
  v_sub_u32_dpp {v(t0+1)}, {v(vRT4)}, {v(vI4)} {bc(u)}
  v_bfi_b32 {v(t0)}, {v(vMsk)}, {v(t0)}, {v(t0+1)}
  buffer_load_dwordx2 {v(REC[u],2)}, {v(t0)}, {s(sREC,4)}, 0 offen{RPOL}""")

    SDWA = "dst_sel:WORD_1 dst_unused:UNUSED_PAD src0_sel:WORD_1 src1_sel:WORD_0"
    def ins1(u, thr, p):
        ta, rk, mk, w = TA[p], RK[p], sMk[p], WW[p]
        a(f"""
  v_cmp_gt_i32 vcc, 0, {v(REC[u])}
  v_min_i32 {v(w)}, {v(REC[u])}, {v(REC[u]+1)}
  v_cmp_gt_i32 {s(mk,2)}, {thr}, {v(w)}
  v_bfe_u32 {v(ta)}, {v(w)}, 23, 8
  v_cndmask_b32_sdwa {v(REC[u])}, {v(REC[u])}, {v(REC[u]+1)}, vcc {SDWA}
  v_mad_u32_u24 {v(ta)}, {v(ta)}, {v(v264)}, s{sIns}
  s_mov_b64 exec, {s(mk,2)}
  ds_add_rtn_u32 {v(rk)}, {v(ta)}, {v(vOne)}
  s_mov_b64 exec, -1""")

    def ins2(u, tag, p):
        ta, rk, mk, w = TA[p], RK[p], sMk[p], WW[p]
        lab = f"{tag}_{u}"
        a(f"""
  s_mov_b64 exec, {s(mk,2)}
  v_cmp_lt_u32 vcc, 31, {v(rk)}
  v_lshl_add_u32 {v(ta)}, {v(rk)}, 3, {v(ta)}
  s_cbranch_vccnz L_rare_{lab}""")
        a.label(f"L_back_{lab}")
        a(f"""
  ds_write2_b32 {v(ta)}, {v(REC[u])}, {v(w)} offset0:2 offset1:3
  s_mov_b64 exec, -1""")
        rare.append((lab, u, p))

    a(f"""
  v_add_u32 {v(PT+2)}, {P1_REC}, {v(vL16)}
  v_add_u32 {v(PT+3)}, {P1_REC + 8*8192}, {v(vL16)}
  v_add_u32 {v(PT+4)}, {P1_REC + 16*8192}, {v(vL16)}
  s_mov_b32 s{sSo}, {NB*8192}
  v_mov_b32 {v(vDum)}, 3
  s_waitcnt lgkmcnt(0)
  s_barrier""")
    stamp(a, 252, 45)
    NS = 19
    sdt = lambda r: (20 + r) % 25 if r < 8 else r + 1
    SD = lambda r: ACC[sdt(r)]
    gv = []
    def gwait(x, extra=""): a(f"  s_waitcnt vmcnt({len(gv) - 1 - gv.index(x)}){extra}")
    def rd(r): a(f"  ds_read_b128 {v(SD(r),4)}, {v(PT+2 + r//8)} offset:{(r%8)*8192}")
    def st(r, lst=None):
        a(f"  buffer_store_dwordx4 {v(SD(r),4)}, {v(vL16)}, {s(sRW,4)}, s{sSo} offen sc1\n  s_add_u32 s{sSo}, s{sSo}, 8192")
        if lst is not None: lst.append(("st", r))
    zero_acc = lambda t: a(f"  v_mov_b64 {v(ACC[t],2)}, 0\n  v_mov_b64 {v(ACC[t]+2,2)}, 0")
    flag3 = f"  buffer_store_dword {v(vDum)}, {v(vFlg)}, {s(sFLG,4)}, 0 offen sc1"
    N1, N3 = OPT["n1"], OPT["n3"]
    a(f"  s_cmp_gt_u32 s{sO2}, {NB*8192 // 6 - 2}\n  s_cbranch_scc1 L_noearly")
    a(flag3)
    a.label("L_noearly")
    a(f"""
  buffer_load_dwordx4 {v(Q,4)}, {v(vTab)}, {s(sTAB,4)}, 0 offen sc1
  buffer_load_dwordx2 {v(Q+4,2)}, {v(vTab)}, {s(sTAB,4)}, 0 offen offset:16 sc1""")
    gv.extend([("tab", 0), ("tab", 1)])
    for r in range(NB, NS): rd(r)
    nxt = NB + N1
    for r in range(NB, nxt):
        a(f"  s_waitcnt lgkmcnt({NS - 1 - r})")
        st(r, gv)
    a(f"""
  s_waitcnt lgkmcnt(0)
  s_cmp_gt_u32 s{sO2}, {NB*8192 // 6 - 2}
  s_cbranch_scc1 L_allfirst
  s_barrier""")
    a.label("L_allfirst_back")
    stamp(a, 252, 46)
    pend = list(range(nxt, NS))
    keep = OPT["n3"]
    slot = [0]
    def st1(n=1):
        on = OPT["smask"] >> slot[0] & 1 or n > 1
        slot[0] += 1
        for _ in range(n):
            if on and len(pend) > keep: st(pend.pop(0), gv)
    st1()
    DI = [RING[0] + p for p in range(14)]
    H = Da
    a(f"""
  s_mul_i32 s{sX}, s{sW}, 3584
  s_add_u32 s{sX}, s{sX}, {RB_OFF}
  v_and_b32 {v(T+8)}, 63, v0
  v_lshl_add_u32 {v(T+9)}, {v(T+8)}, 3, s{sX}
  v_lshl_add_u32 {v(T+8)}, {v(T+8)}, 2, s{sX}
  ds_write_b64 {v(T+9)}, {v(rDist,2)}
  ds_write_b64 {v(T+9)}, {v(rSbf,2)} offset:512
  ds_write_b64 {v(T+9)}, {v(rUp,2)} offset:1024
  ds_write_b32 {v(T+8)}, {v(rRbf)} offset:1536
  ds_write_b64 {v(T+9)}, {v(rDown,2)} offset:2048
  v_and_b32 {v(T+4)}, 15, v0
  v_bfe_u32 {v(T+8)}, v0, 4, 2
  v_lshl_add_u32 {v(T+4)}, {v(T+4)}, 1, s{sX}
  v_lshl_add_u32 {v(T+5)}, {v(T+8)}, 7, {v(T+4)}
  v_lshl_add_u32 {v(T+6)}, {v(T+8)}, 6, {v(T+4)}
  v_lshl_add_u32 {v(T+7)}, {v(vHalf)}, 4, {v(T+4)}
  ds_read_u16 {v(WS0)}, {v(T+5)} offset:512
  ds_read_u16 {v(WS1)}, {v(T+5)} offset:{512+32}
  ds_read_u16 {v(WS0+1)}, {v(T+5)} offset:{512+64}
  ds_read_u16 {v(WS1+1)}, {v(T+5)} offset:{512+96}
  ds_read_u16 {v(WUP)}, {v(T+5)} offset:1024
  ds_read_u16 {v(H+10)}, {v(T+5)} offset:{1024+32}
  ds_read_u16 {v(WUP+1)}, {v(T+5)} offset:{1024+64}
  ds_read_u16 {v(H+11)}, {v(T+5)} offset:{1024+96}
  ds_read_u16 {v(WR)}, {v(T+6)} offset:1536
  ds_read_u16 {v(WR+1)}, {v(T+6)} offset:{1536+32}""")
    st1()
    for r in range(8): a(f"  ds_read_u16 {v(Wa+r)}, {v(T+7)} offset:{2048+r*32}")
    for p in range(13): a(f"  ds_read_u16 {v(DI[p])}, {v(T+4)} offset:{p*32}")
    st1()
    a(f"""
  s_mul_i32 s{sFl}, s{sJ}, {2*CARLIST}
  s_add_u32 s{sFl}, s{sFl}, {CAROFF}""")
    srd(a, sREC, sWS, sWS+1, None, NCH * CH * 6)
    srd(a, sM, 48, 49, None, E * 32)
    srd(a, sCAR, sWS, sWS+1, f"s{sFl}", 2 * CARLIST)
    srd(a, sOUT, 70, 71, None, f"s{sRb}")
    srd(a, sMW, 48, 49, None, f"s{sRb}")
    for t in list(range(3, 9)) + [sdt(r) for r in range(NB)]: zero_acc(t)
    st1()
    a(f"""
  v_mov_b32 {v(vSent)}, 0x7ffff
  v_mov_b32 {v(T)}, 0
  v_mov_b32 {v(T+1)}, {v(vSent)}
  v_mov_b32 {v(T+2)}, 0
  v_mov_b32 {v(T+3)}, {v(vSent)}
  v_add_u32 {v(T+6)}, {7*8192}, {v(vL16)}""")
    for r in range(13):
        a(f"  ds_write_b128 {v(vL16 if r < 7 else T+6)}, {v(T,4)} offset:{(r%7)*8192}")
        if r % 5 == 4: st1()
    a(f"""
  v_and_b32 {v(T+6)}, 15, v0
  v_lshl_add_u32 {v(T+6)}, {v(T+6)}, 2, {v(vCtlN)}
  ds_write_b32 {v(T+6)}, {v(vZ)}
  ds_write_b128 {v(vSrd)}, {v(ACC[3],4)}""")
    for q in range(D): a(f"  v_mov_b32 {v(SA[q])}, {v(vSst)}\n  v_mov_b32 {v(CC[q])}, 0")
    gwait(("tab", 1))
    a(f"  v_lshrrev_b32 {v(rem)}, 16, {v(Q)}")
    for i in range(1, K):
        a(f"  v_lshrrev_b32 {v(T+4)}, 16, {v(Q+i)}\n  v_add_u32 {v(rem)}, {v(rem)}, {v(T+4)}")
    state_update()
    for u in range(0, 16, 2):
        a(f"""
  v_add_u32_dpp {v(REC[u])}, {v(vB6)}, {v(vI6)} {bc(u)}
  v_sub_u32_dpp {v(REC[u]+1)}, {v(vRT4)}, {v(vI4)} {bc(u)}
  v_add_u32_dpp {v(REC[u+1])}, {v(vB6)}, {v(vI6)} {bc(u+1)}
  v_sub_u32_dpp {v(REC[u+1]+1)}, {v(vRT4)}, {v(vI4)} {bc(u+1)}
  v_bfi_b32 {v(REC[u])}, {v(vMsk)}, {v(REC[u])}, {v(REC[u]+1)}
  v_bfi_b32 {v(REC[u+1])}, {v(vMsk)}, {v(REC[u+1])}, {v(REC[u+1]+1)}""")
        if u % 4 == 2: st1()
    state_update2()
    state_update()
    state_update2()
    st1()
    CEN = H + 8
    a(f"""
  v_mov_b32 {v(CEN+1)}, s56
  v_cmp_eq_u32 vcc, 1, {v(T+8)}
  v_mov_b32 {v(CEN)}, s57
  v_cmp_eq_u32 {s(sT,2)}, 2, {v(T+8)}
  v_cndmask_b32 {v(CEN+1)}, {v(CEN+1)}, {v(CEN)}, vcc
  v_mov_b32 {v(CEN)}, s58
  v_cmp_eq_u32 vcc, 3, {v(T+8)}
  v_cndmask_b32 {v(CEN+1)}, {v(CEN+1)}, {v(CEN)}, {s(sT,2)}
  v_mov_b32 {v(CEN)}, s59
  v_cndmask_b32 {v(CEN+1)}, {v(CEN+1)}, {v(CEN)}, vcc
  v_lshlrev_b32 {v(CEN)}, 16, {v(CEN+1)}
  v_and_b32 {v(CEN+1)}, 0xffff0000, {v(CEN+1)}
  s_mov_b32 s{sC10}, 0xc1200000
  s_mov_b32 s{sC10+1}, 0xc1200000
  s_mov_b32 s{sCl2}, 0x3fb8aa3b
  s_mov_b32 s{sCl2+1}, 0x3fb8aa3b
  v_and_b32 {v(T+8)}, 1, {v(T+8)}
  v_cmp_eq_u32 vcc, 1, {v(T+8)}
  s_waitcnt lgkmcnt(0)
  v_lshl_or_b32 {v(WS0)}, {v(WS0+1)}, 16, {v(WS0)}
  v_lshl_or_b32 {v(WS1)}, {v(WS1+1)}, 16, {v(WS1)}
  v_lshl_or_b32 {v(WUP)}, {v(H+10)}, 16, {v(WUP)}
  v_lshl_or_b32 {v(WUP+1)}, {v(H+11)}, 16, {v(WUP+1)}
  v_lshl_or_b32 {v(WR)}, {v(WR+1)}, 16, {v(WR)}
  v_mov_b32 {v(WS0+1)}, 0
  v_mov_b32 {v(WS1+1)}, 0
  v_mov_b32 {v(WR+1)}, 0
  v_mov_b32 {v(DI[13])}, 0""")
    for r in range(4): a(f"  v_lshl_or_b32 {v(H+r)}, {v(Wa+2*r+1)}, 16, {v(Wa+2*r)}")
    for r in range(4):
        a(f"  v_cndmask_b32 {v(Wa+r)}, {v(H+r)}, {v(vZ)}, vcc")
        a(f"  v_cndmask_b32 {v(Wb+r)}, {v(vZ)}, {v(H+r)}, vcc")
    for ps in ([0,1,2,3], [4,5,6,7], [8,9,10], [11,12]):
        p0 = ps[0]
        tt = {p: H + 2 * (p - p0) for p in ps}
        def rnd():
            for p in ps: a(f"  v_cvt_pk_bf16_f32 {v(tt[p])}, 0, {v(tt[p])}\n  v_cvt_pk_bf16_f32 {v(tt[p]+1)}, 0, {v(tt[p]+1)}")
        for p in ps: a(f"  v_lshlrev_b32 {v(tt[p])}, 16, {v(DI[p])}")
        for p in ps: a(f"  v_pk_add_f32 {v(tt[p],2)}, {v(tt[p],2)}, {v(CEN,2)} op_sel_hi:[0,1] neg_lo:[0,1] neg_hi:[0,1]")
        rnd()
        for p in ps: a(f"  v_pk_mul_f32 {v(tt[p],2)}, {v(tt[p],2)}, {v(tt[p],2)}")
        rnd()
        for p in ps: a(f"  v_pk_mul_f32 {v(tt[p],2)}, {v(tt[p],2)}, {s(sC10,2)}")
        rnd()
        for p in ps: a(f"  v_pk_mul_f32 {v(tt[p],2)}, {v(tt[p],2)}, {s(sCl2,2)}")
        for p in ps: a(f"  v_exp_f32 {v(tt[p])}, {v(tt[p])}\n  v_exp_f32 {v(tt[p]+1)}, {v(tt[p]+1)}")
        for p in ps: a(f"  v_cvt_pk_bf16_f32 {v(DI[p])}, {v(tt[p])}, {v(tt[p]+1)}")
        st1()
    st1(NS)
    print("store slots", slot[0])
    for h in range(7):
        a(f"  ds_write_b64 {v(T+9)}, {v(DI[2*h],2)} offset:{h*512}")
    nx3 = NS - len(pend)
    for r in range(NB, nx3): zero_acc(sdt(r))
    for q in range(D):
        a(f"  v_mov_b64 {v(RING[q],2)}, 0\n  v_mov_b64 {v(RING[q]+2,2)}, 0")
    stamp(a, 252, 47)
    if OPT["pf0"] == 3:
        share = (OPT["wmain"] // 4 + 31) // 32
        a(f"""
  s_cmp_eq_u32 s{sW}, 0
  s_cbranch_scc1 L_nopf
  s_lshr_b32 s{sX}, s2, 3
  s_mul_i32 s{sX}, s{sX}, {share*128}
  v_lshlrev_b32 {v(TA[1])}, 7, v0
  buffer_load_dword {v(WW[1])}, {v(TA[1])}, {s(sM,4)}, s{sX} offen""")
        a.label("L_nopf")
    a(f"  s_cmp_lg_u32 s{sW}, 0\n  s_cbranch_scc1 L_polled_b")
    poll("b", flag_load(FP, RK[0]), flag_cond(FP, 2), OPT["nap"])
    a("  s_waitcnt lgkmcnt(0)")
    a("  s_barrier")
    stamp(a, 252, 1)
    def pro_ld(us):
        for u in us:
            a(f"  buffer_load_dwordx2 {v(REC[u],2)}, {v(REC[u])}, {s(sREC,4)}, 0 offen{RPOL}")
            gv.append(("rec", u))
    NL0 = OPT["nl0"]
    pro_ld(range(NL0))
    NG = NS
    stamp(a, 252, 12)
    set_flag("pro")
    stamp(a, 252, 13)
    PTA = lambda u: Da + u
    PRK = lambda u: RING[0] + u
    PMK = lambda u: sPM + 2 * (u % 8)
    slowg = []
    def pro_ins1(g):
        us = range(4*g, 4*g+4)
        gwait(("rec", 4*g+3))
        for u in us:
            a(f"""
  v_cmp_gt_i32 vcc, 0, {v(REC[u])}
  v_min_i32 {v(PTA(u))}, {v(REC[u])}, {v(REC[u]+1)}
  v_cmp_gt_i32 {s(PMK(u),2)}, 0, {v(PTA(u))}
  v_cndmask_b32_sdwa {v(REC[u])}, {v(REC[u])}, {v(REC[u]+1)}, vcc {SDWA}
  v_mov_b32 {v(REC[u]+1)}, {v(PTA(u))}""")
        for u in us: a(f"  v_bfe_u32 {v(PTA(u))}, {v(PTA(u))}, 23, 8")
        for u in us: a(f"  v_mul_u32_u24 {v(PTA(u))}, {v(PTA(u))}, {v(v264)}")
        for u in us: a(f"  s_mov_b64 exec, {s(PMK(u),2)}\n  ds_add_rtn_u32 {v(PRK(u))}, {v(PTA(u))}, {v(vOne)}")
        a("  s_mov_b64 exec, -1")
    def pro_ins2(g):
        us = list(range(4*g, 4*g+4))
        a(f"""
  v_max3_u32 {v(T)}, {v(PRK(us[0]))}, {v(PRK(us[1]))}, {v(PRK(us[2]))}
  v_max_u32 {v(T)}, {v(T)}, {v(PRK(us[3]))}
  v_cmp_lt_u32 vcc, 31, {v(T)}
  s_cbranch_vccz L_pfast_{g}
  v_cmp_lt_u32 vcc, 63, {v(T)}
  s_cbranch_vccnz L_pslow_{g}""")
        a.label(f"L_pback_{g}")
        for x, u in enumerate(us): a(f"  v_subrev_u32 {v(T+4+x)}, 31, {v(PRK(u))}")
        for x, u in enumerate(us): a(f"  s_mov_b64 exec, {s(PMK(u),2)}\n  ds_max_i32 {v(PTA(u))}, {v(T+4+x)} offset:{BUFSZ}")
        a(f"  s_mov_b64 exec, -1\n  ds_write_b32 {v(vCtlN)}, {v(vOne)} offset:4")
        for x, u in enumerate(us): a(f"  v_lshrrev_b32 {v(T+4+x)}, 5, {v(PRK(u))}")
        for x, u in enumerate(us): a(f"  v_mad_u32_u24 {v(PTA(u))}, {v(T+4+x)}, s{sThr}, {v(PTA(u))}")
        a.label(f"L_pfast_{g}")
        for u in us: a(f"  v_lshl_add_u32 {v(PTA(u))}, {v(PRK(u))}, 3, {v(PTA(u))}")
        for u in us: a(f"  s_mov_b64 exec, {s(PMK(u),2)}\n  ds_write_b64 {v(PTA(u))}, {v(REC[u],2)} offset:8")
        a("  s_mov_b64 exec, -1")
        slowg.append(g)
    a(f"  s_mov_b32 s{sThr}, {BUFSZ - 256}")
    left = list(range(nx3, NS))
    per = (len(left) + 3) // 4
    def some():
        for _ in range(per):
            if left: st(left.pop(0), gv)
    pro_ins1(0)
    stamp(a, 252, 3)
    pro_ld(range(NL0, 16))
    def pf():
        share = (OPT["wmain"] // 4 + 31) // 32
        a(f"""
  s_lshr_b32 s{sX}, s2, 3
  s_mul_i32 s{sX}, s{sX}, {share*128}
  v_lshlrev_b32 {v(TA[1])}, 7, v0
  buffer_load_dword {v(WW[1])}, {v(TA[1])}, {s(sM,4)}, s{sX} offen""")
        gv.append(("pf", 0))
    if OPT["pf0"] == 1:
        while left: st(left.pop(0), gv)
        pf()
    pro_ins1(1)
    some()
    a("  s_waitcnt lgkmcnt(0)")
    pro_ins2(0); some(); pro_ins1(2); pro_ins2(1); some(); pro_ins1(3); some()
    if OPT["pf0"] == 2: pf()
    stamp(a, 252, 8)
    a("  s_nop 0")
    for r in range(nx3, NS): zero_acc(sdt(r))
    a("  s_waitcnt lgkmcnt(0)")
    pro_ins2(2); pro_ins2(3)
    stamp(a, 252, 11)
    a("  s_branch L_turn2")
    def signal_all(tag, n):
        a(f"""
  v_mov_b32 {v(T+4)}, {CTL + 32}
  s_waitcnt vmcnt({n})
  s_mov_b64 exec, 1
  ds_add_rtn_u32 {v(T+5)}, {v(T+4)}, {v(vOne)}
  s_mov_b64 exec, -1
  v_and_b32 {v(T+6)}, 63, v0
  s_lshl_b32 s{sX}, s2, 2
  v_lshl_add_u32 {v(T+6)}, {v(T+6)}, 10, s{sX}
  v_mov_b32 {v(T+7)}, 4
  s_waitcnt lgkmcnt(0)
  v_readfirstlane_b32 s{sX}, {v(T+5)}
  s_cmp_lg_u32 s{sX}, 7
  s_cbranch_scc1 L_nosig_{tag}
  buffer_store_dword {v(T+7)}, {v(T+6)}, {s(sFLG,4)}, 0 offen sc1""")
        a.label(f"L_nosig_{tag}")

    INS0 = OPT["ins0"]
    def cstage_head(q):
        if OPT["abl_s"]: return
        a(f"""
  ds_write_b16 {v(SA[q])}, {v(CC[q])}
  ds_read_b128 {v(Sf,4)}, {v(vSrd)}
  ds_write_b16 {v(SA[q])}, {v(vZ)}""")
    def cstage_m1(q):
        if OPT["abl_mfma"]: return
        a(f"""
  v_mfma_f32_16x16x32_bf16 {v(Da,4)}, {v(RING[q],4)}, {v(Wa,4)}, 0
  v_mfma_f32_16x16x32_bf16 {v(Db,4)}, {v(RING[q],4)}, {v(Wb,4)}, 0""")
    def cstage_cvt():
        if OPT["abl_mfma"]: return
        a(f"""
  v_cvt_pk_bf16_f32 {v(P)}, {v(Da)}, {v(Da+1)}
  v_cvt_pk_bf16_f32 {v(P+1)}, {v(Da+2)}, {v(Da+3)}
  v_cvt_pk_bf16_f32 {v(P+2)}, {v(Db)}, {v(Db+1)}
  v_cvt_pk_bf16_f32 {v(P+3)}, {v(Db+2)}, {v(Db+3)}""")
    def cstage_m2(tc):
        if OPT["abl_mfma"]: return
        a(f"  v_mfma_f32_16x16x32_bf16 {v(ACC[tc],4)}, {v(P,4)}, {v(Sf,4)}, {v(ACC[tc],4)}")
    def step_top(t, reset=True):
        a(f"  ; ---- step {t}")
        a("  s_waitcnt lgkmcnt(0)")
        cstage_head(t % D)
        if t < NT - 1:
            a(f"  ds_read_b64 {v(RP[(t+1)&1],2)}, {v(vRd)} offset:{(t+1)*TS+8}")
        if reset and t < NT:
            a(f"  ds_write_b32 {v(vRd)}, {v(vSent)} offset:{t*TS+12}")
    def step_main(t, n, reset=True):
        q = t % D; tc = (t - D) % NT
        rp = RP[t & 1]
        a(f"  s_waitcnt vmcnt({n})")
        cstage_m1(q)
        off, af, e = T + 1, T + 2, T + 3
        a(f"""
  v_and_b32 {v(off)}, {v(vSent)}, {v(rp+1)}
  v_mul_f32 {v(af)}, {v(rp)}, {v(vFreq)}
  v_lshl_add_u32 {v(off)}, {v(off)}, 5, {v(vHalf)}
  v_cvt_pk_bf16_f32 {v(af)}, 0, {v(af)}
  buffer_load_dwordx4 {v(RING[q],4)}, {v(vOOB if OPT["abl_g"] else off)}, {s(sM,4)}, 0 offen
  v_mul_f32 {v(af)}, 0.15915494, {v(af)}
  v_bfe_u32 {v(e)}, {v(rp+1)}, 20, 3
  v_fract_f32 {v(af)}, {v(af)}""")
        cstage_cvt()
        a(f"""
  v_cos_f32 {v(af)}, {v(af)}
  v_lshl_add_u32 {v(SA[q])}, {v(e)}, 4, {v(vSst)}
  s_waitcnt lgkmcnt({(2 if t < NT-1 else 1) + (1 if reset else 0)})""")
        cstage_m2(tc)
        a(f"  v_cvt_pk_bf16_f32 {v(CC[q])}, {v(af)}, {v(af)}")

    order = []
    for t in range(NT):
        if t == 0: order.append(("car", 16))
        u2 = t - INS0 - 1
        EA = OPT["early"]
        if EA: order += [("rec", u) for u in range(EA * t, min(16, EA * t + EA))]
        elif 0 <= u2 < 16: order.append(("rec", u2))
        order.append(("W", t))
        order.append(("g", t))
    tail = [x for x in order[order.index(("g", NT - D)):] if x[0] != "W"]
    assert tail == [("g", t) for t in range(NT - D, NT)], tail
    def younger(target, at):
        n = len(order); i = order.index(target); cnt = 0
        j = (i + 1) % n
        while j != at:
            if order[j][0] != "W": cnt += 1
            j = (j + 1) % n
        return cnt
    first = []
    for x in order:
        if x[0] == "W" and x[1] < 4: first += [("f", 4 * x[1] + i) for i in range(4)]
        first.append(x)
    def younger_first(u, t):
        i = first.index(("f", u)); j = first.index(("W", t))
        return sum(1 for x in first[i+1:j] if x[0] != "W")
    RBH = 1
    def prio(tag, mask, t):
        cur = mask >> t & 1; prev = (mask >> (t - 1) & 1) if t else 0
        if cur and not prev:
            a(f"  s_cmp_lt_u32 s{sW}, 4\n  s_cbranch_scc1 L_{tag}prio{t}\n  s_setprio 1")
            a.label(f"L_{tag}prio{t}")
        if prev and not cur: a("  s_setprio 0")
    assert not OPT["lprio"] >> (NT - 1)
    def step0_extra():
        a(f"""
  v_cmp_gt_u32 vcc, s{sCin}, {v(vCarIdx)}
  s_add_u32 s{sX}, s{sIt}, 2
  s_and_b32 s{sX}, s{sX}, 3
  s_lshl_b32 s{sX}, s{sX}, 3
  s_add_u32 s{sX}, s{sX}, {CTL}
  v_mov_b32 {v(T+1)}, s{sX}
  ds_write_b64 {v(T+1)}, {v(vZ,2)}
  ds_write_b32 {v(vCntA)}, {v(vZ)}
  v_cndmask_b32 {v(T)}, {v(vOOB)}, {v(vCarOff)}, vcc
  buffer_load_dwordx2 {v(REC[16],2)}, {v(T)}, {s(sCAR,4)}, s{sCarR} offen sc1""")
    def state_step(tag):
        a(f"  s_cmp_lg_u32 s{sThr}, 0\n  s_cbranch_scc1 L_nostate_{tag}")
        if tag == "b0":
            QL = Q + OPT['keff'] - 3
            a(f"""
  v_lshrrev_b32 {v(T)}, 16, {v(QL)}
  v_cmp_eq_u32 vcc, 0, {v(nA)}
  v_subrev_u32 {v(T+1)}, {OPT['lim']}, {v(T)}
  v_and_b32 {v(T+2)}, 0xffff, {v(QL)}
  v_max_i32 {v(T+1)}, 0, {v(T+1)}
  v_cndmask_b32 {v(T+1)}, {v(vZ)}, {v(T+1)}, vcc
  v_add_u32 {v(T+2)}, {v(T+2)}, {v(T)}
  v_sub_u32 {v(T+2)}, {v(T+2)}, {v(T+1)}
  v_cndmask_b32 {v(sA)}, {v(sA)}, {v(T+2)}, vcc
  v_add_u32 {v(nA)}, {v(nA)}, {v(T+1)}
  v_lshlrev_b32 {v(T+1)}, 16, {v(T+1)}
  v_sub_u32 {v(QL)}, {v(QL)}, {v(T+1)}""")
        state_update(); state_update2()
        a.label(f"L_nostate_{tag}")
        set_flag(tag)
    a(".p2align 6")
    a.label("L_body0")
    lo = []
    lw = lambda x: len(lo) - 1 - lo.index(x)
    ST0, STP = OPT["st0"], OPT["stp"]
    late = list(range(NG, NS))
    tsig = None
    FC = REC[0]
    FO = REC[2]
    for t in range(NT):
        step_top(t)
        prio("b0", OPT["lprio"], t)
        if t == 0:
            step0_extra(); lo.append(("rec", 16))
        if t < 4:
            for u in range(4*t, 4*t+4):
                rec_load(u, T + 4 + 2 * (u & 1)); lo.append(("rec", u))
        if t == INS0: state_step("b0")
        zs = []
        if t >= ST0:
            for _ in range(STP):
                if late:
                    r = late.pop(0); st(r, lo); zs.append(r)
                    assert sdt(r) + D > t
                    if not late: tsig = t + D + 1
        u1 = t - INS0; u2 = u1 - 1
        if 0 <= u2 < 17: ins2(u2, "b0", u2 & 1)
        if 0 <= u1 < 17:
            a(f"  s_waitcnt vmcnt({lw(('rec', u1))})")
            ins1(u1, f"s{sThr}" if u1 < 16 else "0", u1 & 1)
        else: a("  s_nop 0")
        for r in zs: zero_acc(sdt(r))
        if t == tsig or (NG == NS and t == 2):
            signal_all("b0", lw(("st", NS - 1)) if NG < NS else len(lo))
        if t == INS0 + 18:
            a(f"  s_cmp_gt_u32 s{sCin}, 512\n  s_cbranch_scc1 L_slow_b0")
            a.label("L_slow_back_b0")
        if t == NT - 3:
            a(f"""
  s_cmp_lg_u32 s{sW}, 0
  s_cbranch_scc1 L_noldc
  v_lshlrev_b32 {v(FO)}, 4, v0
  s_and_b32 s{sX}, s2, 7
  s_lshl_b32 s{sX}, s{sX}, 10""")
            a(flag_load(FC, FO))
            a.label("L_noldc")
        step_main(t, lw(("g", t - D)) if t >= D else 62)
        lo.append(("g", t))
    assert not late and (tsig is None or tsig < NT - 3)
    a(f"""
  s_waitcnt vmcnt(3)
  s_cmp_lg_u32 s{sW}, 0
  s_cbranch_scc1 L_turn2""")
    assert NT - (INS0 + 17) >= 3
    a(flag_cond(FC, 4))
    a(f"""
  s_cbranch_vccz L_turn2
  s_and_b32 s{sX}, s2, 7
  s_lshl_b32 s{sX}, s{sX}, 10""")
    poll("c", flag_load(FC, FO), flag_cond(FC, 4), OPT["nap"])
    a("  s_branch L_turn2")

    a(".p2align 6")
    a.label("L_loop")
    for t in range(NT):
        step_top(t)
        if t == 0: step0_extra()
        prio("lp", OPT["lprio"], t)
        if EA:
            for u in range(EA * t, min(16, EA * t + EA)): rec_load(u, T + 4 + 2 * (u & 1))
        if t < 4:
            if not EA: a(f"  s_cmp_eq_u32 s{sIt}, 1\n  s_cbranch_scc1 L_first_{t}")
            a.label(f"L_first_back_{t}")
        if t == INS0: state_step("lp")
        u1 = t - INS0; u2 = u1 - 1
        if 0 <= u2 < 17:
            ins2(u2, "lp", u2 & 1)
            if u2 < 16 and not EA: rec_load(u2, T + 4)
        if 0 <= u1 < 17:
            pos = order.index(("W", t))
            if EA and u1 < 16: n = younger(("rec", u1), pos)
            elif u1 < 16: n = min(younger(("rec", u1), pos), younger_first(u1, t))
            else: n = younger(("car", 16), pos)
            a(f"  s_waitcnt vmcnt({min(n, 62)})")
            ins1(u1, f"s{sThr}" if u1 < 16 else "0", u1 & 1)
        if t == INS0 + 18:
            a(f"  s_cmp_gt_u32 s{sCin}, 512\n  s_cbranch_scc1 L_slow_lp")
            a.label("L_slow_back_lp")
        step_main(t, younger(("g", (t - D) % NT), order.index(("W", t))))
    assert INS0 >= 4 and RBH < NT
    a(f"  s_waitcnt vmcnt({NT - (INS0 + 17)})")
    a.label("L_turn2")
    a(f"""
  v_mov_b32 {v(T)}, {v(vCtlN)}
  s_add_u32 s{sIt}, s{sIt}, 1
  s_add_u32 s{sX}, s{sIt}, 1
  s_and_b32 s{sX}, s{sX}, 3
  s_lshl_b32 s{sX}, s{sX}, 3
  s_add_u32 s{sX}, s{sX}, {CTL}
  v_mov_b32 {v(vCtlN)}, s{sX}
  s_sub_u32 s{sX}, s{sIns}, {BUFSZ}
  s_add_u32 s{sX}, s{sX}, s{sIns}
  v_add_u32 {v(vRd)}, s{sX}, {v(vRd)}
  v_add_u32 {v(vCntA)}, s{sX}, {v(vCntA)}
  s_sub_u32 s{sIns}, {BUFSZ}, s{sIns}
  s_mov_b32 s{sCarR}, s{sCarW}
  s_sub_u32 s{sCarW}, {CARLIST}, s{sCarW}
  s_waitcnt lgkmcnt(0)""")
    if OPT["stamp"] == 1:
        a(f"  s_lshl_b32 s90, s{sIt}, 1\n  s_add_u32 s90, s90, 16\n  s_min_u32 m0, s90, 36")
        stamp(a, 252, "m0")
        a("  s_add_u32 m0, m0, 1")
    a("  s_barrier")
    stamp(a, 252, "m0")
    a(f"""
  ds_read_b64 {v(T+2,2)}, {v(T)}
  ds_read_b64 {v(RP[0],2)}, {v(vRd)} offset:8
  s_waitcnt lgkmcnt(1)
  v_readfirstlane_b32 s{sCin}, {v(T+2)}
  v_readfirstlane_b32 s{sFl}, {v(T+3)}
  s_cmp_gt_u32 s{sCin}, 512
  s_cselect_b32 s{sThr}, 0x80000000, 0
  s_min_u32 s{sCin}, s{sCin}, {CARCAP}
  s_cmp_gt_u32 s{sCin}, 32
  s_cselect_b32 s{sFl}, 1, s{sFl}
  s_cmp_lt_u32 s{sIt}, {OPT['itcap']}
  s_cselect_b32 s{sFl}, s{sFl}, 0
  s_cmp_eq_u32 s{sIt}, {OPT["cut"] - 100 if OPT["cut"] >= 100 else -1}
  s_cbranch_scc1 L_end
  s_cmp_eq_u32 s{sIt}, 0
  s_cbranch_scc1 L_it0
  s_cmp_lg_u32 s{sFl}, 0
  s_cbranch_scc1 L_loop""")
    a.label("L_nosig_z")

    RBv = Q
    assert vRT4 - Q + 1 >= 14
    R0 = REC[0]
    G0, G1, RR, U = R0, R0 + 4, R0 + 8, R0 + 12
    XS0, XS1, XR, AG = R0 + 16, R0 + 18, R0 + 20, R0 + 22
    MS = [R0 + 24 + 2 * i for i in range(5)]
    vMoff, vLin, vOw, vOr = vCarOff, vI6, vI1, vI4
    a(f"""
  v_and_b32 {v(T)}, 63, v0
  s_mul_i32 s{sX}, s{sW}, 3584
  s_add_u32 s{sX}, s{sX}, {RB_OFF}
  v_lshl_add_u32 {v(T+1)}, {v(T)}, 3, s{sX}
  v_lshlrev_b32 {v(vLin)}, 4, {v(T)}
  v_bfe_u32 {v(T+2)}, v0, 4, 2
  v_and_b32 {v(T+3)}, 15, v0
  v_lshlrev_b32 {v(T+2)}, 3, {v(T+2)}
  v_lshl_add_u32 {v(vMoff)}, {v(T+3)}, 5, {v(T+2)}
  s_mul_i32 s{sX}, s{sW}, 6400
  s_add_u32 s{sX}, s{sX}, s{sIns}
  s_add_u32 s{sX}, s{sX}, 15
  s_and_b32 s{sX}, s{sX}, -16
  v_add_u32 {v(vOw)}, s{sX}, {v(vMoff)}
  v_add_u32 {v(vOr)}, s{sX}, {v(vLin)}
  v_cmp_gt_u32 {s(sT,2)}, 8, {v(T+3)}""")
    for h in range(7):
        a(f"  ds_read_b64 {v(RBv+2*h,2)}, {v(T+1)} offset:{h*512}")
    fo = [("g", t - NT) for t in range(NT - D, NT)]
    def fwait(x): return len(fo) - 1 - fo.index(x)
    def s1(p):
        b = RBv + (p & ~1)
        w0, w1 = (WS0, WS1) if p % 2 == 0 else (XS0, XS1)
        a(f"""
  v_mfma_f32_16x16x16_bf16 {v(G0,4)}, {v(w0,2)}, {v(b,2)}, 0
  v_mfma_f32_16x16x16_bf16 {v(G1,4)}, {v(w1,2)}, {v(b,2)}, 0""")
    def s2(p):
        t0 = ACC[2*p]; t1 = ACC[2*p+1] if 2*p+1 < NT else ACC[2*p]
        for r in range(4): a(f"  v_mul_f32 {v(U+r)}, {v(t0+r)}, {v(G0+r)}")
        for r in range(4): a(f"  v_mul_f32_dpp {v(U+r)}, {v(t1+r)}, {v(G0+r)} row_ror:8 row_mask:0xf bank_mask:0xc")
        for r in range(4): a(f"  v_fmac_f32_dpp {v(U+r)}, {v(t0+r)}, {v(G1+r)} row_ror:8 row_mask:0xf bank_mask:0x3")
        for r in range(4): a(f"  v_fmac_f32_dpp {v(U+r)}, {v(t1+r)}, {v(G1+r)} quad_perm:[0,1,2,3] row_mask:0xf bank_mask:0xc")
        a(f"""
  v_cvt_pk_bf16_f32 {v(AG)}, {v(U)}, {v(U+1)}
  v_cvt_pk_bf16_f32 {v(AG+1)}, {v(U+2)}, {v(U+3)}
  v_mfma_f32_16x16x16_bf16 {v(RR,4)}, {v(WR if p % 2 == 0 else XR,2)}, {v(RBv + (p & ~1),2)}, 0""")
        if p + 1 < 13: s1(p + 1)
        else: a("  s_nop 0")
        a(f"  v_mfma_f32_16x16x16_bf16 {v(U,4)}, {v(WUP,2)}, {v(AG,2)}, 0")
    def s3(p):
        x = ACC[2*p]; m_ = MS[p % 5]
        a(f"""
  s_waitcnt vmcnt({fwait(("m", p))})
  v_lshlrev_b32 {v(x)}, 16, {v(m_)}
  v_and_b32 {v(x+1)}, 0xffff0000, {v(m_)}
  v_lshlrev_b32 {v(x+2)}, 16, {v(m_+1)}
  v_and_b32 {v(x+3)}, 0xffff0000, {v(m_+1)}""")
        if p == 12: a("  s_nop 2")
        a(f"""
  v_pk_fma_f32 {v(x,2)}, {v(U,2)}, {v(RR,2)}, {v(x,2)}
  v_pk_fma_f32 {v(x+2,2)}, {v(U+2,2)}, {v(RR+2,2)}, {v(x+2,2)}
  v_cvt_pk_bf16_f32 {v(x)}, {v(x)}, {v(x+1)}
  v_cvt_pk_bf16_f32 {v(x+1)}, {v(x+2)}, {v(x+3)}""")
        if p == 12: a(f"  s_mov_b64 exec, {s(sT,2)}")
        a(f"  ds_write_b64 {v(vOw)}, {v(x,2)} offset:{p*512}")
        if p == 12: a(f"  s_mov_b64 exec, -1")
        if p % 2 == 1 or p == 12:
            r = p // 2
            a(f"  ds_read_b128 {v(ACC[4*r+1 if r < 6 else 23],4)}, {v(vOr)} offset:{r*1024}")
    def s4(r):
        a(f"  buffer_store_dwordx4 {v(ACC[4*r+1 if r < 6 else 23],4)}, {v(vLin)}, {s(sOUT,4)}, s{sEb if r < 4 else sEb2} offen offset:{(r%4)*1024}{POL[OPT['opol']]}")
        fo.append(("st", r))
    xw = {}
    for t in range(NT + D + 2):
        if t == 6:
            a(f"  s_cmp_lg_u32 s{sCin}, 0\n  s_cbranch_scc1 L_x3")
            a.label("L_x3_back")
            xw[3] = len(fo) - xw[2]
        if t < NT + D: step_top(t, False)
        else: a(f"  ; ---- tail {t}\n  s_waitcnt lgkmcnt(0)")
        prio("fp", OPT["fprio"], t)
        if t in (0, 3):
            n = 1 if t == 0 else 2
            a(f"  s_cmp_lg_u32 s{sCin}, 0\n  s_cbranch_scc1 L_x{n}")
            a.label(f"L_x{n}_back")
            xw[n] = len(fo)
        if t == NT: stamp(a, 252, 4)
        if t == NT + D: stamp(a, 252, 5)
        if t == 1:
            a(f"""
  v_mov_b32 {v(XS0)}, 0
  v_mov_b32 {v(XS0+1)}, {v(WS0)}
  v_mov_b32 {v(XS1)}, 0
  v_mov_b32 {v(XS1+1)}, {v(WS1)}
  v_mov_b32 {v(XR)}, 0
  v_mov_b32 {v(XR+1)}, {v(WR)}""")
        if t == 5: s1(0)
        ts2 = {2*p+7 if p < 12 else 30: p for p in range(13)}
        if t - 2 in ts2 and (ts2[t-2] % 2 == 1): s4(ts2[t-2] // 2)
        if t - 1 in ts2: s3(ts2[t-1])
        if t in ts2: s2(ts2[t])
        if t % 2 == 1 and t // 2 < 13:
            p = t // 2
            a(f"  buffer_load_dwordx2 {v(MS[p%5],2)}, {v(vMoff)}, {s(sMW,4)}, s{sEb if p < 8 else sEb2} offen offset:{(p%8)*512}{POL[OPT['mpol']]}")
            fo.append(("m", p))
        if t < NT:
            step_main(t, fwait(("g", t - D)), False)
            fo.append(("g", t))
        elif t < NT + D:
            a(f"  s_waitcnt vmcnt({fwait(('g', t - D))})")
            cstage_m1(t % D)
            a("  s_nop 6")
            cstage_cvt()
            a("  s_waitcnt lgkmcnt(0)\n  s_nop 0")
            cstage_m2(t - D)
            a("  s_nop 3")
    a("  s_waitcnt lgkmcnt(0)")
    s4(6)
    stamp(a, 252, 6)
    if OPT["stamp"]: a("  s_waitcnt vmcnt(0)")
    stamp(a, 252, 7); stamp(a, 252, 63, "s_memrealtime")
    if OPT["stamp"] == 1: a(f"  v_writelane_b32 v252, s{sIt}, 61")
    stamp_out(a, 252, sWS, 8, STAMPOFF + 0x200000, 253)
    a.label("L_end")
    a("  s_endpgm")

    sSm, sS2 = sMk
    a.label("L_x1")
    a(f"""
  v_cmp_gt_u32 vcc, s{sCin}, {v(vSlot)}
  v_lshlrev_b32 {v(T)}, 3, {v(vSlot)}
  s_nop 0
  v_cndmask_b32 {v(T)}, {v(vOOB)}, {v(T)}, vcc
  buffer_load_dwordx2 {v(AG,2)}, {v(T)}, {s(sCAR,4)}, s{sCarR} offen sc1
  s_branch L_x1_back""")
    a.label("L_x2")
    a(f"""
  s_mul_i32 s{sX}, s{sW}, {NT}
  s_waitcnt vmcnt({xw[2] - xw[1]})
  v_min_i32 {v(U)}, {v(AG)}, {v(AG+1)}
  v_cmp_gt_i32 vcc, 0, {v(AG)}
  v_bfe_u32 {v(U+2)}, {v(U)}, 23, 8
  v_subrev_u32 {v(U+2)}, s{sX}, {v(U+2)}
  v_cndmask_b32_sdwa {v(U+1)}, {v(AG)}, {v(AG+1)}, vcc dst_sel:WORD_1 dst_unused:UNUSED_PAD src0_sel:WORD_1 src1_sel:WORD_0
  v_cmp_gt_i32 {s(sS2,2)}, 0, {v(U)}
  v_cmp_gt_u32 {s(sSm,2)}, {NT}, {v(U+2)}
  s_and_b64 vcc, {s(sSm,2)}, {s(sS2,2)}
  s_cselect_b32 s{sCin}, s{sCin}, 0
  s_cbranch_scc0 L_x2_back
  v_and_b32 {v(T)}, 0x7ffff, {v(U)}
  v_lshl_add_u32 {v(T)}, {v(T)}, 5, {v(vHalf)}
  v_mul_f32 {v(U+1)}, {v(U+1)}, {v(vFreq)}
  v_cndmask_b32 {v(T)}, {v(vOOB)}, {v(T)}, vcc
  buffer_load_dwordx4 {v(RR,4)}, {v(T)}, {s(sM,4)}, 0 offen
  v_cndmask_b32 {v(U+2)}, {v(vOOB)}, {v(U+2)}, vcc
  v_cvt_pk_bf16_f32 {v(U+1)}, 0, {v(U+1)}
  v_mul_f32 {v(U+1)}, 0.15915494, {v(U+1)}
  v_fract_f32 {v(U+1)}, {v(U+1)}
  v_cos_f32 {v(U+1)}, {v(U+1)}
  v_bfe_u32 {v(U+3)}, {v(U)}, 20, 3
  v_lshl_add_u32 {v(U+3)}, {v(U+3)}, 4, {v(vSst)}
  v_cvt_pk_bf16_f32 {v(U+1)}, {v(U+1)}, {v(U+1)}
  s_branch L_x2_back""")
    a.label("L_x3")
    a(f"""
  s_waitcnt vmcnt({xw[3]})
  v_mfma_f32_16x16x32_bf16 {v(Da,4)}, {v(RR,4)}, {v(Wa,4)}, 0
  v_mfma_f32_16x16x32_bf16 {v(Db,4)}, {v(RR,4)}, {v(Wb,4)}, 0
  s_nop 6""")
    cstage_cvt()
    for t in range(NT):
        a(f"""
  v_cmp_eq_u32 vcc, {t}, {v(U+2)}
  s_cbranch_vccz L_x3_{t}
  s_mov_b64 exec, vcc
  ds_write_b16 {v(U+3)}, {v(U+1)}
  s_mov_b64 exec, -1
  ds_read_b128 {v(Sf,4)}, {v(vSrd)}
  s_mov_b64 exec, vcc
  ds_write_b16 {v(U+3)}, {v(vZ)}
  s_mov_b64 exec, -1
  s_waitcnt lgkmcnt(0)""")
        cstage_m2(t)
        a.label(f"L_x3_{t}")
    a("  s_branch L_x3_back")
    a.label("L_it0")
    a(f"  s_cmp_lg_u32 s{sFl}, 0\n  s_cbranch_scc1 L_body0")
    for r in range(NG, NS): st(r)
    a("  s_nop 0")
    for r in range(NG, NS): zero_acc(sdt(r))
    signal_all("z0", 0)
    a("  s_branch L_nosig_z")
    for t in range(4):
        a.label(f"L_first_{t}")
        for u in range(4*t, 4*t+4): rec_load(u, T + 4 + 2 * (u & 1))
        a(f"  s_branch L_first_back_{t}")
    a.label("L_allfirst")
    a(f"  s_mov_b32 s{sY}, s{sSo}")
    for r in range(NB + N1, NS): st(r)
    a(f"  s_mov_b32 s{sSo}, s{sY}\n  s_waitcnt vmcnt(0)\n  s_barrier\n{flag3}\n  s_branch L_allfirst_back")
    for g in slowg:
        a.label(f"L_pslow_{g}")
        for u in range(4*g, 4*g+4):
            a(f"""
  s_mov_b64 exec, {s(PMK(u),2)}
  v_cmp_lt_u32 vcc, 63, {v(PRK(u))}
  s_cbranch_vccz L_pskip_{u}
  s_andn2_b64 {s(PMK(u),2)}, {s(PMK(u),2)}, vcc
  s_mov_b64 exec, vcc
  ds_add_rtn_u32 {v(T+1)}, {v(vCtlN)}, {v(vOne)}
  s_waitcnt lgkmcnt(0)
  v_lshlrev_b32 {v(T+1)}, 3, {v(T+1)}
  buffer_store_dwordx2 {v(REC[u],2)}, {v(T+1)}, {s(sCAR,4)}, s{sCarW} offen
  s_waitcnt vmcnt(0)""")
            a.label(f"L_pskip_{u}")
        a(f"  s_mov_b64 exec, -1\n  s_branch L_pback_{g}")
    for tag in ("b0", "lp"):
        a.label(f"L_slow_{tag}")
        a(f"  s_mov_b32 s{sX}, 512")
        a.label(f"L_slow_loop_{tag}")
        a(f"""
  v_add_u32 {v(T+1)}, s{sX}, {v(vCarIdx)}
  v_cmp_gt_u32 vcc, s{sCin}, {v(T+1)}
  v_lshlrev_b32 {v(T+1)}, 3, {v(T+1)}
  s_nop 0
  v_cndmask_b32 {v(T+1)}, {v(vOOB)}, {v(T+1)}, vcc
  buffer_load_dwordx2 {v(REC[16],2)}, {v(T+1)}, {s(sCAR,4)}, s{sCarR} offen sc1
  s_waitcnt vmcnt(0)""")
        ins1(16, "0", 0)
        a("  s_waitcnt lgkmcnt(0)")
        ins2(16, "sl" + tag, 0)
        a(f"""
  s_add_u32 s{sX}, s{sX}, 512
  s_cmp_lt_u32 s{sX}, s{sCin}
  s_cbranch_scc1 L_slow_loop_{tag}
  s_waitcnt vmcnt(0)
  s_branch L_slow_back_{tag}""")
    for lab, u, p in rare:
        a.label(f"L_rare_{lab}")
        a(f"""
  s_mov_b64 exec, vcc
  ds_add_rtn_u32 {v(RK[p])}, {v(vCtlN)}, {v(vOne)}
  v_mov_b32 {v(REC[u]+1)}, {v(WW[p])}
  s_waitcnt lgkmcnt(0)
  v_lshlrev_b32 {v(RK[p])}, 3, {v(RK[p])}
  buffer_store_dwordx2 {v(REC[u],2)}, {v(RK[p])}, {s(sCAR,4)}, s{sCarW} offen
  s_andn2_b64 exec, {s(sMk[p],2)}, vcc
  s_branch L_back_{lab}""")
    a.label("L_code_end")
    return NV

def kd(name, nv, ns):
    nv4 = (nv + 3) // 4 * 4
    return f""".amdhsa_kernel {name}
  .amdhsa_next_free_vgpr {nv}
  .amdhsa_next_free_sgpr {ns}
  .amdhsa_accum_offset {nv4}
  .amdhsa_group_segment_fixed_size 0
  .amdhsa_kernarg_size 112
  .amdhsa_user_sgpr_count 2
  .amdhsa_user_sgpr_kernarg_segment_ptr 1
  .amdhsa_system_sgpr_workgroup_id_x 1
  .amdhsa_float_denorm_mode_32 3
.end_amdhsa_kernel
"""

def main():
    out = sys.argv[1]
    ref = open(f"cdna_kernels/{NAME}.s.ref").read().split("\n")
    head = [l for l in ref if l.startswith(";") and "@launch" not in l and "Override" not in l and "grid=ceil" not in l]
    a = Asm()
    a(".amdgcn_target \"amdgcn-amd-amdhsa--gfx950\"\n.text")
    a(f".globl {NAME}_kernel\n.type {NAME}_kernel,@function")
    nv = gen_p2(a)
    errs = a.check()
    for e in errs: print("HAZARD", e)
    txt = "\n".join(head) + "\n"
    kern = f"kernel={NAME}_kernel " if OPT["list"] else ""
    txt += f"; @launch {kern}grid=(256,1,1) block=(512,1,1) lds={P1_LDS}\n"
    if OPT["probe"] >= 0:
        txt += "; @launch kernel=probe_kernel grid=(1,1,1) block=(64,1,1) lds=0\n"
        a(f"""
.p2align 8
probe_kernel:
  s_cmp_ge_u32 s2, 1
  s_cbranch_scc1 P_end
  s_load_dwordx2 s[4:5], s[0:1], 96
  s_waitcnt lgkmcnt(0)
  s_load_dwordx8 s[8:15], s[4:5], 0
  s_memrealtime s[16:17]
  s_waitcnt lgkmcnt(0)
  s_not_b32 s8, s8
  s_sub_u32 s20, s{8 + OPT['probe']}, s8
  {"s_lshr_b32 s20, s%d, 4" % (8 + OPT['probe']) if OPT['probe'] in (5, 7) else "s_nop 0"}
  s_min_u32 s20, s20, 20000
P_loop:
  s_memrealtime s[18:19]
  s_waitcnt lgkmcnt(0)
  s_sub_u32 s21, s18, s16
  s_cmp_lt_u32 s21, s20
  s_cbranch_scc1 P_loop
P_end:
  s_endpgm""")
    txt += a.text()
    txt += ".section .rodata,\"a\"\n.p2align 6\n" + kd(NAME + "_kernel", 256, 102) + (".p2align 6\n" + kd("probe_kernel", 8, 32) if OPT["probe"] >= 0 else "")
    open(out, "w").write(txt)
    print("vgprs p2:", nv, "lines:", len(a.lines), "hazards:", len(errs))

main()
```

```python
import sys, os
sys.path.insert(0, os.path.dirname(__file__))
from asmlib import Asm

NAME = "gather_scatter__molecular_angular_gemnet__graph"
E = 400000
NCH, CH = 250, 25600
EB = 1568
K = 6
MJ = 2739138
TABOFF = 0x2800000
CAROFF = 0x3000000
CARCAP = 9216
CARLIST = CARCAP * 8
STAMPOFF = 0x6000000
FLGOFF = 0x2c00000
OPT = dict(cpf=1, wsoff=0, mq=11, rot=0, pf0=0, a0=2, ag=2, early=0, abl_adj=0, probe=-1, tlb=0, cut=-1, opol=1, mpol=0, tq=3, fq=10, keff=6, jid=0, fprio=0x3ffff, lprio=0x3fff, napt=8, st0=1, stp=1, rb0=2, nap=8, list=1, nb=7, n1=2, n3=4, nl0=8, smask=0x2925, arr=10, spin=60000, rec_pol=2, stamp=0, itcap=64, ld_nt=7, st_pol=0, mtouch=0, la=3, apre=2, wmain=70000, b5=0, lim=24, nb2=7, ins0=4,
           abl_mfma=0, abl_s=0, abl_cos=0, abl_g=0)
for a in sys.argv[2:]:
    k, v = a.split("=")
    assert k in OPT, k
    OPT[k] = int(v, 0)
MK = -(-(1 << 32) // OPT["wmain"])
assert (399999 * MK) >> 32 <= 5

RPOL = ('', ' nt', ' sc1', ' sc0 sc1')[OPT['rec_pol']]

POL = ('', ' nt', ' sc1', ' sc0 sc1')

def v(i, n=1):
    return f"v{i}" if n == 1 else f"v[{i}:{i+n-1}]"
def s(i, n=1):
    return f"s{i}" if n == 1 else f"s[{i}:{i+n-1}]"

def stamp(a, vreg, lane, op="s_memtime"):
    if lane == OPT["cut"]: a("  s_endpgm")
    if not OPT["stamp"]: return
    if OPT["stamp"] == 2:
        mp = {62: (0, 1), 42: (1, 0), 45: (2, 0), 1: (3, 0), 11: (4, 0), 63: (6, 0)}
        if lane == 0:
            a("  s_memtime s[88:89]\n  s_waitcnt lgkmcnt(0)\n  s_mov_b32 s91, s88")
        if lane in (11, 7):
            a(f"  s_memtime s[88:89]\n  s_waitcnt lgkmcnt(0)\n  s_sub_u32 s88, s88, s91\n  v_writelane_b32 v{vreg}, s88, {5 if lane == 11 else 7}")
        if lane not in mp: return
        l, inv = mp[lane]
        a(f"  s_memrealtime s[88:89]\n  s_waitcnt lgkmcnt(0)")
        if inv: a("  s_not_b32 s88, s88")
        a(f"  v_writelane_b32 v{vreg}, s88, {l}")
        return
    a(f"  {op} s[88:89]\n  s_waitcnt lgkmcnt(0)\n  v_writelane_b32 v{vreg}, s88, {lane}")
def stamp_out(a, vreg, wslo, nwaves, base, tmp):
    if not OPT["stamp"]: return
    if OPT["stamp"] == 2:
        back = 512
        a(f"""
  s_load_dwordx2 s[90:91], s[0:1], 96
  s_waitcnt lgkmcnt(0)
  s_add_u32 s92, s90, {back}
  s_addc_u32 s93, s91, 0
  s_mov_b32 s94, 32
  s_mov_b32 s95, 0x20000
  v_lshlrev_b32 v{tmp}, 2, v0
  buffer_atomic_umax v{vreg}, v{tmp}, s[92:95], 0 offen""")
        return
    a(f"  s_mul_i32 s88, s2, {nwaves*256}\n  s_add_u32 s88, s88, {base}")
    srd(a, 92, wslo, wslo+1, "s88", nwaves*256)
    a(f"  v_lshlrev_b32 v{tmp}, 2, v0\n  buffer_store_dword v{vreg}, v{tmp}, s[92:95], 0 offen")

def srd(a, d, lo, hi, add, size):
    if add is None:
        a(f"  s_mov_b32 s{d}, s{lo}\n  s_mov_b32 s{d+1}, s{hi}")
    else:
        a(f"  s_add_u32 s{d}, s{lo}, {add}\n  s_addc_u32 s{d+1}, s{hi}, 0")
    a(f"  s_mov_b32 s{d+2}, {size}\n  s_mov_b32 s{d+3}, 0x20000")

P1_CNT, P1_SENT, P1_TMP, P1_REC = 0, 6144, 6160, 6272
P1_LDS = P1_REC + CH * 6

TS = 264
BUFSZ = 200 * TS
S_OFF = 13 * 8192
CTL = S_OFF + 8192
RB_OFF = CTL + 128
P2_LDS = RB_OFF + 8 * 3584
D = 5
NT = 25

class RA:
    def __init__(self, start): self.n = start
    def __call__(self, k=1, al=1):
        self.n = (self.n + al - 1) // al * al
        r = self.n; self.n += k
        return r

def gen_p2(a):
    ra = RA(1)
    vSlot, vHalf, vFreq, vSst, vSrd, vI6, vI1, vI4 = (ra() for _ in range(8))
    vRd, vCntA, vOne, vOOB, vCarOff, vCarIdx, v264, vMsk, vCtlN = (ra() for _ in range(9))
    vZ = ra(2, 2)
    Q = ra(6, 4)
    sA, nA, cb, rem, rtot, vA6, vB6, vR0, vRT4 = (ra() for _ in range(9))
    vCnt = ra()
    Wa = ra(4, 4); Wb = ra(4, 4)
    RING = [ra(4, 4) for _ in range(D)]
    Da = ra(4, 4); Db = ra(4, 4); P = ra(4, 4); Sf = ra(4, 4)
    ACC = [ra(4, 4) for _ in range(NT)]
    REC = [ra(2, 4 if i == 0 else 2) for i in range(17)]
    RP = [ra(2, 2), ra(2, 2)]
    T = ra(10, 2)
    TA = [ra(), ra()]; RK = [ra(), ra()]
    WS0 = ra(2, 2); WS1 = ra(2, 2); WR = ra(2, 2); WUP = ra(2, 2)
    CC = [ra() for _ in range(D)]; SA = [ra() for _ in range(D)]
    WW = [ra(), ra()]
    assert ra.n <= 252, ra.n
    NV = ra.n
    sM = 4; sREC = 8; sCAR = 12; sTAB = 16; sOUT = 20; sDIST = 24; sMW = 28
    sJ, sW, sIt, sThr, sIns, sCarW, sCarR, sRb, sCin, sX, sFl, sEb = range(32, 44)
    sCnt = [44, 45]
    sWS = 46
    sPM = 72
    sMk = [72, 74]; sT = 76; sC10 = 78; sCl2 = 80
    sEb2 = 3
    rare = []

    O, I, R, A = 36, 88, 140, 192
    PT = 218
    _, vL8, vL4, vL128, vSix, vTwo, vFlg, vDum, vTab, vWo = range(234, 244)
    vL16 = WW[0]
    rDist, rSbf, rUp, rDown, rRbf = 86, 248, 190, 232, 217
    assert Wa == 36 and T == PT
    vSent = vCnt
    sIO, sII, sAN, sMT, sTW, sDBG = 4, 8, 12, 16, 20, 24
    sFLG, sRW = 92, 96
    sMJ, sMK, sNEB, sB5, sO4, sO2 = range(80, 86)
    sY, sSo = 100, 101
    nto, nti, nta = (" nt" if OPT["ld_nt"] >> b & 1 else "" for b in range(3))
    NR = 13
    nrec = lambda q: 4 if q < 12 else 2
    vm = []
    def ld_pair(q):
        if q < 12:
            a(f"  buffer_load_dwordx4 {v(O+4*q,4)}, {v(vL16)}, {s(sIO,4)}, s{sO4} offen{nto}")
            a(f"  buffer_load_dwordx4 {v(I+4*q,4)}, {v(vL16)}, {s(sII,4)}, s{sO4} offen{nti}")
            a(f"  s_add_u32 s{sO4}, s{sO4}, 8192")
        else:
            a(f"  buffer_load_dwordx2 {v(O+48,2)}, {v(vL8)}, {s(sIO,4)}, s{sO4} offen{nto}")
            a(f"  buffer_load_dwordx2 {v(I+48,2)}, {v(vL8)}, {s(sII,4)}, s{sO4} offen{nti}")
        vm.extend([("o", q), ("p", q)])
    def ld_ang(q):
        if q < 12:
            a(f"  buffer_load_dwordx2 {v(A+2*q,2)}, {v(vL8)}, {s(sAN,4)}, s{sO2} offen{nta}")
            a(f"  s_add_u32 s{sO2}, s{sO2}, 4096")
        else: a(f"  buffer_load_dword {v(A+24)}, {v(vL4)}, {s(sAN,4)}, s{sO2} offen{nta}")
        vm.append(("a", q))
    def wait_for(x):
        a(f"  s_waitcnt vmcnt({len(vm) - 1 - vm.index(x)})")
    def poll(tag, load, cond, nap=4):
        a(f"  s_mov_b32 s{sY}, {OPT['spin']}")
        a.label(f"L_poll_{tag}")
        a(load)
        a("  s_waitcnt vmcnt(0)")
        a(cond)
        a(f"""
  s_cbranch_vccz L_polled_{tag}
  s_sleep {nap}
  s_sub_u32 s{sY}, s{sY}, 1
  s_cbranch_scc0 L_poll_{tag}""")
        a.label(f"L_polled_{tag}")

    a(".p2align 8")
    a.label(NAME + "_kernel")
    ncp = [0]
    def cpf(bit, q, first=False):
        if not OPT["cpf"] >> bit & 1: return False
        ncp[0] += 1
        a(f"  s_getpc_b64 s[{q}:{q+1}]")
        a.label(f"L_cp{ncp[0]}")
        a(f"""
  s_sub_u32 s{q}, s{q}, L_cp{ncp[0]}-{NAME}_kernel
  s_subb_u32 s{q+1}, s{q+1}, 0
  s_mov_b32 s{q+2}, L_code_end-{NAME}_kernel
  s_mov_b32 s{q+3}, 0x20000""")
        if first:
            a(f"""
  s_and_b32 s{sY}, s2, 0xf8
  s_lshl_b32 s{sY}, s{sY}, 4
  v_lshl_add_u32 v255, v0, 12, s{sY}""")
        a(f"  buffer_load_dword v254, v255, s[{q}:{q+3}], 0 offen")
        return True
    a(f"""
  s_cmp_ge_u32 s2, 256
  s_cbranch_scc1 L_end
  s_load_dwordx16 s[48:63], s[0:1], 0
  s_load_dwordx4 s[44:47], s[0:1], 96
  s_load_dwordx8 s[64:71], s[0:1], 64""")
    cpf(0, 28, True)
    a(f"""
  v_lshlrev_b32 {v(vL16)}, 4, v0
  s_min_u32 s{sY}, s2, {NCH-1}
  s_mul_i32 s{sX}, s{sY}, {CH*4}
  s_cmp_lt_u32 s2, {NCH}
  s_cselect_b32 s{sFl}, {CH*2}, 0
  s_lshl_b32 s{sIO+2}, s{sFl}, 1
  s_mov_b32 s{sII+2}, s{sIO+2}
  s_mov_b32 s{sIO+3}, 0x20000
  s_mov_b32 s{sII+3}, 0x20000
  s_mov_b32 s{sO4}, 0
  v_mov_b64 {v(PT,2)}, 0
  v_mov_b64 {v(PT+2,2)}, 0
  s_mov_b32 s{sO2}, 0
  ds_write_b128 {v(vL16)}, {v(PT,4)}
  v_lshrrev_b32 {v(T+8)}, 6, v0
  s_and_b32 s{sJ}, s2, 7
  s_lshl_b32 s{sJ}, s{sJ}, 5
  s_lshr_b32 s{sEb}, s2, 3
  s_add_u32 s{sJ}, s{sJ}, s{sEb}
  v_readfirstlane_b32 s{sW}, {v(T+8)}
  v_and_b32 {v(T+7)}, 63, v0
  v_lshlrev_b32 {v(T+6)}, 3, {v(T+7)}
  v_lshlrev_b32 {v(T+7)}, 2, {v(T+7)}
  s_mul_i32 s{sEb}, s{sJ}, {EB*2}
  s_mul_i32 s{sRb}, s{sW}, 400
  s_add_u32 s{sEb}, s{sEb}, s{sRb}
  s_waitcnt lgkmcnt(0)""")
    if OPT["stamp"] == 2: a("  v_mov_b32 v252, 0\n  s_nop 1")
    stamp(a, 252, 0); stamp(a, 252, 62, "s_memrealtime")
    a(f"""
  s_add_u32 s{sIO}, s52, s{sX}
  s_addc_u32 s{sIO+1}, s53, 0
  s_add_u32 s{sII}, s50, s{sX}
  s_addc_u32 s{sII+1}, s51, 0""")
    ld_pair(0)
    if OPT["wsoff"]: a(f"  s_add_u32 s{sWS}, s{sWS}, {OPT['wsoff'] << 20}\n  s_addc_u32 s{sWS+1}, s{sWS+1}, 0")
    srd(a, 28, 54, 55, None, E * 2)
    a(f"""
  buffer_load_dwordx2 {v(rDist,2)}, {v(T+6)}, s[28:31], s{sEb} offen
  global_load_dwordx2 {v(rSbf,2)}, {v(T+6)}, s[64:65]
  global_load_dwordx2 {v(rUp,2)}, {v(T+6)}, s[68:69]
  global_load_dwordx2 {v(rDown,2)}, {v(T+6)}, s[66:67]
  global_load_dword {v(rRbf)}, {v(T+7)}, s[62:63]""")
    vm.extend([("s", i) for i in range(5)])
    ld_pair(1)
    a("  s_barrier")
    LA = OPT["la"]
    for q in range(2, LA): ld_pair(q)
    a(f"  s_lshr_b32 s{sX}, s{sX}, 1")
    srd(a, sAN, 56, 57, f"s{sX}", f"s{sFl}")
    srd(a, sMT, 48, 49, f"s{sX}", f"s{sFl}")
    a(f"  s_mul_i32 s{sX}, s{sY}, {CH*6}\n  s_mul_i32 s{sFl}, s{sFl}, 3")
    srd(a, sRW, sWS, sWS+1, f"s{sX}", f"s{sFl}")
    srd(a, sTW, sWS, sWS+1, TABOFF, 256 * 8192)
    srd(a, sFLG, sWS, sWS+1, FLGOFF, 8192)
    srd(a, sDBG, 44, 45, None, 256)
    a(f"""
  s_lshl_b32 s{sX}, s2, 2
  v_lshl_add_u32 {v(vFlg)}, v0, 10, s{sX}
  s_cmp_lt_u32 s2, {NCH}
  s_cselect_b32 s{sX}, 0, 4
  v_mov_b32 {v(vDum)}, s{sX}
  buffer_store_dword {v(vDum)}, {v(vFlg)}, {s(sFLG,4)}, 0 offen sc1
  s_lshl_b32 s{sX}, s{sX}, 20
  v_or_b32 {v(vFlg)}, s{sX}, {v(vFlg)}
  s_load_dword s{sCin}, s[60:61], 0
  s_load_dwordx4 s[56:59], s[58:59], 0
  v_lshlrev_b32 {v(vL8)}, 3, v0
  v_lshlrev_b32 {v(vL4)}, 2, v0
  {'v_mov_b32 %s, %d' % (v(vL128), E//8) if OPT['rot'] == 2 else 'v_lshlrev_b32 %s, 7, v0' % v(vL128)}
  v_mov_b32 {v(vSix)}, 6
  v_mov_b32 {v(vTwo)}, 2
  s_mov_b32 s{sMJ}, {MJ}
  s_mov_b32 s{sMK}, {MK}
  s_mov_b32 s{sNEB}, {-EB & 0xffffffff}
  s_mov_b32 s{sB5}, {(-(E//8) & 0xffffffff) if OPT['rot'] else OPT['b5']}
  v_lshrrev_b32 {v(T)}, 6, v0
  v_and_b32 {v(T+2)}, 15, v0
  v_bfe_u32 {v(T+3)}, v0, 5, 1
  v_lshlrev_b32 {v(vHalf)}, 4, {v(T+3)}
  v_lshl_add_u32 {v(cb)}, {v(T)}, 5, {v(vHalf)}
  v_add_u32 {v(cb)}, {v(cb)}, {v(T+2)}
  v_lshlrev_b32 {v(vTab)}, 13, {v(cb)}
  v_and_b32 {v(T+1)}, 63, v0
  v_and_b32 {v(vSlot)}, 31, v0
  v_mov_b64 {v(vZ,2)}, 0
  v_mov_b32 {v(v264)}, {TS}
  v_mov_b32 {v(vCtlN)}, {CTL}
  s_lshl_b32 s{sX}, s{sW}, 10
  s_add_u32 s{sX}, s{sX}, {S_OFF}
  v_lshl_add_u32 {v(vSrd)}, {v(T+1)}, 4, s{sX}
  v_bfe_u32 {v(T+6)}, v0, 2, 2
  v_lshlrev_b32 {v(vSst)}, 8, {v(T+6)}
  v_lshl_add_u32 {v(vSst)}, {v(T+3)}, 7, {v(vSst)}
  v_bfe_u32 {v(T+6)}, v0, 4, 1
  v_lshl_add_u32 {v(vSst)}, {v(T+6)}, 3, {v(vSst)}
  v_and_b32 {v(T+6)}, 3, v0
  v_lshl_add_u32 {v(vSst)}, {v(T+6)}, 1, {v(vSst)}
  v_add_u32 {v(vSst)}, s{sX}, {v(vSst)}
  v_mov_b32 {v(vOne)}, 1
  v_mov_b32 {v(vOOB)}, 0x80000000
  v_mov_b32 {v(vMsk)}, 0x7ffffffc
  v_mul_u32_u24 {v(vI6)}, 6, {v(vSlot)}
  v_add_u32 {v(vI1)}, 1, {v(vSlot)}
  v_lshlrev_b32 {v(vI4)}, 2, {v(vI1)}
  v_mov_b32 {v(T+6)}, {CH}
  v_mul_u32_u24 {v(cb)}, {v(cb)}, {v(T+6)}
  v_mov_b32 {v(sA)}, 0
  v_mov_b32 {v(nA)}, 0
  v_mov_b32 {v(rtot)}, 0
  s_mul_i32 s{sX}, s{sW}, {NT*TS}
  s_add_u32 s{sX}, s{sX}, {BUFSZ}
  v_lshl_add_u32 {v(vRd)}, {v(vSlot)}, 3, s{sX}""")
    if OPT["abl_adj"]:
        a(f"""
  v_bfe_u32 {v(T+6)}, v0, 1, 5
  v_lshl_add_u32 {v(vRd)}, {v(T+6)}, 3, s{sX}
  v_and_b32 {v(vHalf)}, 1, v0
  v_lshlrev_b32 {v(vHalf)}, 4, {v(vHalf)}""")
    a(f"""
  v_min_u32 {v(T+6)}, {NT-1}, {v(T+1)}
  v_mad_u32_u24 {v(vCntA)}, {v(T+6)}, {v(v264)}, s{sX}
  v_sub_u32 {v(vCarIdx)}, 511, v0
  v_lshlrev_b32 {v(vCarOff)}, 3, {v(vCarIdx)}
  v_cmp_eq_u32 vcc, 1, {v(T+3)}
  s_waitcnt lgkmcnt(0)
  s_lshl_b32 s{sX}, s{sCin}, 16
  s_and_b32 s{sCin}, s{sCin}, 0xffff0000
  v_mov_b32 {v(vFreq)}, s{sX}
  v_mov_b32 {v(T+6)}, s{sCin}
  v_cndmask_b32 {v(vFreq)}, {v(vFreq)}, {v(T+6)}, vcc
  s_mov_b32 s{sIt}, -1
  s_mov_b32 s{sIns}, 0
  s_mov_b32 s{sCarW}, 0
  s_mov_b32 s{sCarR}, {CARLIST}
  s_mul_i32 s{sEb}, s{sJ}, {EB}
  s_mul_i32 s{sX}, s{sW}, 200
  s_add_u32 s{sFl}, s{sEb}, {EB}
  s_add_u32 s{sEb}, s{sEb}, s{sX}
  s_add_u32 s{sRb}, s{sEb}, 200
  s_min_u32 s{sRb}, s{sRb}, s{sFl}
  s_min_u32 s{sRb}, s{sRb}, {E}
  s_lshl_b32 s{sRb}, s{sRb}, 5
  s_lshl_b32 s{sEb}, s{sEb}, 5
  s_add_u32 s{sEb2}, s{sEb}, 4096""")

    if OPT["tlb"]:
        sh = OPT["tlb"]
        srd(a, 28, sWS, sWS+1, None, FLGOFF + 8192)
        a(f"  v_lshlrev_b32 v249, {sh}, v0\n  buffer_load_dword v248, v249, s[28:31], 0 offen")
        srd(a, 28, 48, 49, None, E * 32)
        a(f"  buffer_load_dword v248, v249, s[28:31], 0 offen")
        srd(a, 28, 70, 71, None, E * 32)
        a(f"  buffer_load_dword v248, v249, s[28:31], 0 offen")
        vm.extend([("tlb", i) for i in range(3)])
    a(f"""
  s_cmp_ge_u32 s2, {NCH}
  s_cbranch_scc1 L_nochunk1""")
    vm.append(("flg", 0))
    arrive = f"""
  s_and_b32 s{sY}, s2, 15
  s_lshl_b32 s{sY}, s{sY}, 4
  v_lshlrev_b32 {v(PT)}, 8, v0
  buffer_atomic_add {v(vOne)}, {v(PT)}, {s(sDBG,4)}, s{sY} offen"""
    def hist(idx):
        if OPT["b5"]:
            for x, i in enumerate(idx): a(f"  v_cmp_le_u32 {s(72+2*x,2)}, s{sB5}, {v(I+i)}")
        for x, i in enumerate(idx): a(f"  v_mul_hi_u32_u24 {v(PT+x)}, s{sMJ}, {v(O+i)}")
        if OPT["rot"] == 2:
            for x, i in enumerate(idx): a(f"  v_lshrrev_b32 {v(PT+4+x)}, 5, {v(PT+x)}")
            for x, i in enumerate(idx): a(f"  v_mad_i32_i24 {v(PT+4+x)}, {v(PT+4+x)}, s{sB5}, {v(I+i)}")
            for x, i in enumerate(idx): a(f"  v_cmp_gt_u32 {s(72+2*x,2)}, {v(vL128)}, {v(PT+4+x)}")
            for x, i in enumerate(idx): a(f"  v_ashrrev_i32 {v(PT+4+x)}, 31, {v(PT+4+x)}")
            for x, i in enumerate(idx): a(f"  v_and_b32 {v(PT+4+x)}, {v(vL128)}, {v(PT+4+x)}")
            for x, i in enumerate(idx): a(f"  v_add3_u32 {v(PT+4+x)}, {v(PT+4+x)}, s{sB5}, {v(I+i)}")
            for x, i in enumerate(idx): a(f"  v_mul_hi_u32_u24 {v(PT+4+x)}, s{sMK}, {v(PT+4+x)}")
            for x, i in enumerate(idx): a(f"  v_cndmask_b32 {v(PT+4+x)}, {v(PT+4+x)}, 5, {s(72+2*x,2)}")
        elif OPT["rot"]:
            for x, i in enumerate(idx): a(f"  v_lshrrev_b32 {v(PT+4+x)}, 5, {v(PT+x)}")
            for x, i in enumerate(idx): a(f"  v_mad_i32_i24 {v(PT+4+x)}, {v(PT+4+x)}, s{sB5}, {v(I+i)}")
            for x, i in enumerate(idx): a(f"  v_add_u32 {v(PT+8+x)}, {E - E//8}, {v(PT+4+x)}")
            for x, i in enumerate(idx): a(f"  v_add_u32 {v(PT+4+x)}, s{sB5}, {v(PT+4+x)}")
            for x, i in enumerate(idx): a(f"  v_min_u32 {v(PT+4+x)}, {v(PT+4+x)}, {v(PT+8+x)}")
            for x, i in enumerate(idx): a(f"  v_mul_hi_u32_u24 {v(PT+4+x)}, s{sMK}, {v(PT+4+x)}")
        else:
            for x, i in enumerate(idx): a(f"  v_mul_hi_u32_u24 {v(PT+4+x)}, s{sMK}, {v(I+i)}")
        if OPT["b5"]:
            for x, i in enumerate(idx): a(f"  v_cndmask_b32 {v(PT+4+x)}, {v(PT+4+x)}, 5, {s(72+2*x,2)}")
        for x, i in enumerate(idx): a(f"  v_mad_i32_i24 {v(PT+8+x)}, {v(PT+x)}, s{sNEB}, {v(O+i)}")
        for x, i in enumerate(idx): a(f"  v_lshl_add_u32 {v(O+i)}, {v(PT+4+x)}, 8, {v(PT+x)}")
        for x, i in enumerate(idx): a(f"  v_lshlrev_b32 {v(O+i)}, 2, {v(O+i)}")
        for x, i in enumerate(idx): a(f"  ds_add_rtn_u32 {v(R+i)}, {v(O+i)}, {v(vOne)}")
        for x, i in enumerate(idx): a(f"  v_lshl_or_b32 {v(I+i)}, {v(PT+8+x)}, 20, {v(I+i)}")
        for x, i in enumerate(idx): a(f"  v_or_b32 {v(I+i)}, 0x80000000, {v(I+i)}")
    na = 0
    for q in range(NR):
        wait_for(("p", q))
        if q == 0: stamp(a, 252, 40)
        if q == LA:
            a(arrive); vm.append(("arr", 0))
        if OPT["mtouch"] == 3 and q == OPT["mq"]:
            a(f"  buffer_load_dword v244, {v(vL128)}, {s(sMT,4)}, 0 offen"); vm.append(("m", 0))
        if q + LA < NR: ld_pair(q + LA)
        else:
            for _ in range(2):
                if na < OPT["apre"]: ld_ang(na); na += 1
        hist(list(range(4*q, 4*q + nrec(q))))
    stamp(a, 252, 41)
    X = v(PT+4)
    a(f"""
  s_waitcnt lgkmcnt(0)
  s_barrier
  s_cmp_ge_u32 s{sW}, {K}
  s_cbranch_scc1 L_bin_s1
  ds_read_b128 {v(PT,4)}, {v(vL16)}
  v_and_b32 {v(PT+8)}, 63, v0
  s_waitcnt lgkmcnt(0)
  v_add_u32 {v(PT+1)}, {v(PT)}, {v(PT+1)}
  v_add_u32 {v(PT+2)}, {v(PT+1)}, {v(PT+2)}
  v_add_u32 {v(PT+3)}, {v(PT+2)}, {v(PT+3)}
  v_mov_b32 {v(PT+4)}, {v(PT+3)}""")
    for sh in (1, 2, 4, 8):
        a(f"  s_nop 1\n  v_add_u32_dpp {X}, {X}, {X} row_shr:{sh} row_mask:0xf bank_mask:0xf bound_ctrl:0")
    a(f"  s_nop 1\n  v_add_u32_dpp {X}, {X}, {X} row_bcast:15 row_mask:0xa bank_mask:0xf")
    a(f"  s_nop 1\n  v_add_u32_dpp {X}, {X}, {X} row_bcast:31 row_mask:0xc bank_mask:0xf")
    a(f"""
  v_cmp_lt_u32 vcc, s{sW}, {v(PT+8)}
  v_readlane_b32 s{sY}, {X}, 63
  v_lshlrev_b32 {v(PT+9)}, 2, {v(PT+8)}
  s_and_b32 vcc_lo, vcc_lo, 0xff
  s_mov_b32 vcc_hi, 0
  v_mov_b32 {v(PT+10)}, s{sY}
  s_mov_b64 exec, vcc
  ds_add_u32 {v(PT+9)}, {v(PT+10)} offset:{P1_TMP}
  s_mov_b64 exec, -1
  s_waitcnt lgkmcnt(0)""")
    a.label("L_bin_s1")
    a(f"""
  s_barrier
  s_cmp_ge_u32 s{sW}, {K}
  s_cbranch_scc1 L_bin_s2
  s_lshl_b32 s{sY}, s{sW}, 2
  v_mov_b32 {v(PT+9)}, s{sY}
  ds_read_b32 {v(PT+9)}, {v(PT+9)} offset:{P1_TMP}
  v_sub_u32 {X}, {X}, {v(PT+3)}
  v_mov_b32 {v(PT+10)}, {CH}
  s_waitcnt lgkmcnt(0)
  v_add_u32 {v(PT+4)}, {X}, {v(PT+9)}
  v_add_u32 {v(PT+5)}, {v(PT+4)}, {v(PT)}
  v_add_u32 {v(PT+6)}, {v(PT+4)}, {v(PT+1)}
  v_add_u32 {v(PT+7)}, {v(PT+4)}, {v(PT+2)}
  ds_write_b128 {v(vL16)}, {v(PT+4,4)}
  ds_write_b32 {v(vZ)}, {v(PT+10)} offset:{P1_SENT}
  s_waitcnt lgkmcnt(0)""")
    a.label("L_bin_s2")
    a("  s_barrier")
    stamp(a, 252, 42)
    a(f"""
  v_lshrrev_b32 {v(PT+12)}, 1, v0
  v_and_b32 {v(PT+13)}, 1, v0
  v_lshlrev_b32 {v(PT+12)}, 2, {v(PT+12)}
  v_lshl_add_u32 {v(PT+13)}, {v(PT+13)}, 12, {v(PT+12)}
  s_lshl_b32 s{sY}, s2, 13""")
    for k in range(4):
        a(f"  ds_read_b32 {v(PT+k)}, {v(PT+13)} offset:{k*1024}")
        a(f"  ds_read_b32 {v(PT+6+k)}, {v(PT+13)} offset:{k*1024+4}")
    a("  s_waitcnt lgkmcnt(0)")
    for k in range(4): a(f"  v_sub_u32 {v(PT+6+k)}, {v(PT+6+k)}, {v(PT+k)}")
    for k in range(4): a(f"  v_lshl_or_b32 {v(PT+k)}, {v(PT+6+k)}, 16, {v(PT+k)}")
    a(f"  buffer_store_dwordx4 {v(PT,4)}, {v(vL16)}, {s(sTW,4)}, s{sY} offen sc1")
    vm.append(("tab", 0))
    mark = len(vm)
    for _ in range(OPT["a0"]):
        if na < NR: ld_ang(na); na += 1
    NB = OPT["nb"]
    vDa, vDv, vRa = 245, 246, 247
    lda = f"  buffer_load_dword {v(vDv)}, {v(vDa)}, {s(sDBG,4)}, 0 offen sc1"
    cda = f"  v_cmp_gt_u32 vcc, 16, {v(vDv)}"
    ada = f"""
  s_lshl_b32 s{sX}, s{sW}, 16
  v_and_b32 {v(vDa)}, 15, v0
  v_lshl_add_u32 {v(vDa)}, {v(vDa)}, 4, s{sX}"""
    NRD = 15
    for i in range(NRD): a(f"  ds_read_b32 {v(O+i)}, {v(O+i)}")
    a(f"  s_mov_b32 s{sB5}, {NB*8192 + 4}\n  s_mov_b32 s{sSo}, 0")
    a(ada)
    a(f"  v_add_u32 {v(vRa)}, {P1_REC}, {v(vL16)}")
    for g in range(10):
        idx = list(range(5*g, 5*g+5))
        for _ in range(OPT["ag"]):
            if na < NR: ld_ang(na); na += 1
        a(f"  s_waitcnt lgkmcnt({min(10, 45 - 5*g)})")
        for i in idx:
            if i + NRD < 50: a(f"  ds_read_b32 {v(O+i+NRD)}, {v(O+i+NRD)}")
        for i in idx: a(f"  v_add_u32 {v(O+i)}, {v(O+i)}, {v(R+i)}")
        for i in idx: a(f"  v_mad_u32_u24 {v(O+i)}, {v(O+i)}, {v(vSix)}, {v(vTwo)}")
        for x, i in enumerate(idx): a(f"  v_and_b32 {v(PT+x)}, 2, {v(O+i)}")
        for i in idx: a(f"  v_and_b32 {v(R+i)}, -4, {v(O+i)}")
        for x, i in enumerate(idx): a(f"  v_lshl_add_u32 {v(O+i)}, {v(PT+x)}, 1, {v(O+i)}")
    assert na == NR
    if OPT["mtouch"] == 1:
        a(f"  buffer_load_dword v244, {v(vL128)}, {s(sMT,4)}, 0 offen"); vm.append(("m", 0))
    def put(q, cmp):
        idx = list(range(4*q, 4*q + nrec(q)))
        for x, i in enumerate(idx): a(f"  v_cmp_{cmp}_u32 {s(72+2*x,2)}, s{sB5}, {v(R+i)}")
        for x, i in enumerate(idx):
            op = "ds_write_b16_d16_hi" if (i & 1) else "ds_write_b16"
            a(f"""
  s_mov_b64 exec, {s(72+2*x,2)}
  ds_write_b32 {v(R+i)}, {v(I+i)} offset:{P1_REC}
  {op} {v(O+i)}, {v(A + i//2)} offset:{P1_REC-2}""")
        a("  s_mov_b64 exec, -1")
    for q in range(NR):
        wait_for(("a", q))
        for r in range(nrec(q) // 2): a(f"  v_and_b32 {v(A+2*q+r)}, 0x7fff7fff, {v(A+2*q+r)}")
        if q == OPT["tq"]:
            assert q >= OPT["apre"]
            a("  s_barrier")
            a(lda); vm.append(("lda", 0))
            a(f"  buffer_store_dword {v(vOne)}, {v(vFlg)}, {s(sFLG,4)}, 0 offen sc1"); vm.append(("flg", 1))
            if OPT["mtouch"] == 2:
                a(f"  buffer_load_dword v244, {v(vL128)}, {s(sMT,4)}, 0 offen"); vm.append(("m", 0))
        put(q, "gt")
    a(f"  ds_read_b32 {v(vWo)}, {v(vZ)} offset:2048")
    a("  s_waitcnt lgkmcnt(0)\n  s_barrier")
    stamp(a, 252, 43)
    a(f"  v_readfirstlane_b32 s{sO2}, {v(vWo)}")
    free = [PT, PT + 4, PT + 8, O, I, R, O + 4, I + 4, R + 4]
    def erd(r): a(f"  ds_read_b128 {v(free[r],4)}, {v(vRa)} offset:{r*8192}")
    def est(r):
        a(f"  buffer_store_dwordx4 {v(free[r],4)}, {v(vL16)}, {s(sRW,4)}, s{sSo} offen sc1\n  s_add_u32 s{sSo}, s{sSo}, 8192")
        vm.append(("st", r))
    assert NB <= 8
    for r in range(3): erd(r)
    for r in range(3):
        a(f"  s_waitcnt lgkmcnt({2 - r})")
        est(r)
    put(0, "le"); put(1, "le")
    for r in range(3, NB): erd(r)
    put(2, "le")
    a("  s_waitcnt lgkmcnt(0)")
    todo = list(range(3, NB))
    fad = f"""
  v_and_b32 {v(RK[0])}, 63, v0
  v_lshlrev_b32 {v(RK[0])}, 4, {v(RK[0])}
  s_and_b32 s{sCin}, s2, 7
  s_lshl_b32 s{sCin}, s{sCin}, 10"""
    for q in range(3, NR):
        if todo: est(todo.pop(0))
        if q == OPT["fq"]:
            assert q >= 8 and Da == O + 28 and not todo
            a(fad)
            a(f"  s_mov_b32 s{sO4}, 0\n  s_cmp_lg_u32 s{sW}, 0\n  s_cbranch_scc1 L_nofl")
            wait_for(("lda", 0))
            a(cda)
            a(f"  s_cbranch_vccnz L_nofl\n  s_mov_b32 s{sO4}, 1")
            a(f"  buffer_load_dwordx4 {v(Da,4)}, {v(RK[0])}, {s(sFLG,4)}, s{sCin} offen sc1")
            a.label("L_nofl")
        put(q, "le")
    assert not todo
    stamp(a, 252, 44)
    FP = Da
    def flag_load(dst, off): return f"  buffer_load_dwordx4 {v(dst,4)}, {v(off)}, {s(sFLG,4)}, s{sCin if dst == FP else sX} offen sc1"
    def flag_cond(dst, stage): return f"""
  v_min3_u32 {v(dst)}, {v(dst)}, {v(dst+1)}, {v(dst+2)}
  v_min_u32 {v(dst)}, {v(dst)}, {v(dst+3)}
  v_cmp_gt_u32 vcc, {stage}, {v(dst)}"""
    a(f"  s_waitcnt vmcnt(0)\n  s_cmp_lg_u32 s{sW}, 0\n  s_cbranch_scc1 L_polled_t")
    a(f"  s_cmp_eq_u32 s{sO4}, 0\n  s_cbranch_scc1 L_wait_a")
    a(flag_cond(FP, 1))
    a("  s_cbranch_vccz L_polled_t\n  s_branch L_polled_a")
    a.label("L_nochunk1")
    if 40 <= OPT["cut"] <= 44: a("  s_endpgm")
    a("  s_waitcnt vmcnt(0)")
    a(arrive)
    a(ada)
    a(fad)
    a(f"  s_mov_b32 s{sO2}, 0\n  s_cmp_lg_u32 s{sW}, 0\n  s_cbranch_scc1 L_polled_t")
    a.label("L_wait_a")
    poll("a", lda, cda, 64)
    poll("t", flag_load(FP, RK[0]), flag_cond(FP, 1), OPT["napt"])
    a(f"""
  s_lshl_b32 s{sX}, s{sJ}, 5
  s_add_u32 s{sX}, s{sX}, {TABOFF}""")
    srd(a, sTAB, sWS, sWS+1, f"s{sX}", (NCH - 1) * 8192 + 32)

    def state_update():
        a(f"""
  v_sub_u32 {v(rem)}, {v(rem)}, {v(rtot)}
  v_lshrrev_b32 {v(T)}, 16, {v(Q)}
  v_and_b32 {v(T+1)}, 0xffff, {v(Q)}
  v_min_u32 {v(vR0)}, 32, {v(nA)}
  v_cmp_ge_u32 vcc, 32, {v(nA)}
  v_sub_u32 {v(T+2)}, 32, {v(vR0)}
  v_add_u32 {v(vB6)}, {v(cb)}, {v(T+1)}
  v_min_u32 {v(T+2)}, {v(T)}, {v(T+2)}
  v_mul_u32_u24 {v(vB6)}, 6, {v(vB6)}
  v_add_u32 {v(rtot)}, {v(vR0)}, {v(T+2)}
  v_mad_i32_i24 {v(vB6)}, {v(vR0)}, -6, {v(vB6)}
  v_lshlrev_b32 {v(vRT4)}, 2, {v(rtot)}
  v_add_u32 {v(vA6)}, {v(cb)}, {v(sA)}
  v_mul_u32_u24 {v(vA6)}, 6, {v(vA6)}""")
    def state_update2():
        a(f"""
  v_add_u32 {v(sA)}, 32, {v(sA)}
  v_subrev_u32 {v(nA)}, 32, {v(nA)}
  v_add_u32 {v(T+1)}, {v(T+1)}, {v(T+2)}
  v_sub_u32 {v(T)}, {v(T)}, {v(T+2)}
  v_cndmask_b32 {v(sA)}, {v(sA)}, {v(T+1)}, vcc
  v_cndmask_b32 {v(nA)}, {v(nA)}, {v(T)}, vcc""")
        for i in range(K - 1):
            a(f"  v_cndmask_b32 {v(Q+i)}, {v(Q+i)}, {v(Q+i+1)}, vcc")
        a(f"  v_cndmask_b32 {v(Q+K-1)}, {v(Q+K-1)}, {v(vZ)}, vcc")
    def set_flag(tag):
        a(f"""
  v_cmp_lt_u32 vcc, 0, {v(rem)}
  s_cbranch_vccz L_noflag_{tag}
  ds_write_b32 {v(vCtlN)}, {v(vOne)} offset:4""")
        a.label(f"L_noflag_{tag}")

    bc = lambda u: f"row_newbcast:{u} row_mask:0xf bank_mask:0xf"
    def rec_load(u, t0):
        a(f"""
  v_sub_co_u32_dpp {v(t0)}, vcc, {v(vR0)}, {v(vI1)} {bc(u)}
  v_add_u32_dpp {v(t0)}, {v(vA6)}, {v(vI6)} {bc(u)}
  v_add_u32_dpp {v(t0+1)}, {v(vB6)}, {v(vI6)} {bc(u)}
  v_cndmask_b32 {v(t0)}, {v(t0)}, {v(t0+1)}, vcc
  v_sub_u32_dpp {v(t0+1)}, {v(vRT4)}, {v(vI4)} {bc(u)}
  v_bfi_b32 {v(t0)}, {v(vMsk)}, {v(t0)}, {v(t0+1)}
  buffer_load_dwordx2 {v(REC[u],2)}, {v(t0)}, {s(sREC,4)}, 0 offen{RPOL}""")

    SDWA = "dst_sel:WORD_1 dst_unused:UNUSED_PAD src0_sel:WORD_1 src1_sel:WORD_0"
    def ins1(u, thr, p):
        ta, rk, mk, w = TA[p], RK[p], sMk[p], WW[p]
        a(f"""
  v_cmp_gt_i32 vcc, 0, {v(REC[u])}
  v_min_i32 {v(w)}, {v(REC[u])}, {v(REC[u]+1)}
  v_cmp_gt_i32 {s(mk,2)}, {thr}, {v(w)}
  v_bfe_u32 {v(ta)}, {v(w)}, 23, 8
  v_cndmask_b32_sdwa {v(REC[u])}, {v(REC[u])}, {v(REC[u]+1)}, vcc {SDWA}
  v_mad_u32_u24 {v(ta)}, {v(ta)}, {v(v264)}, s{sIns}
  s_mov_b64 exec, {s(mk,2)}
  ds_add_rtn_u32 {v(rk)}, {v(ta)}, {v(vOne)}
  s_mov_b64 exec, -1""")

    def ins2(u, tag, p):
        ta, rk, mk, w = TA[p], RK[p], sMk[p], WW[p]
        lab = f"{tag}_{u}"
        a(f"""
  s_mov_b64 exec, {s(mk,2)}
  v_cmp_lt_u32 vcc, 31, {v(rk)}
  v_lshl_add_u32 {v(ta)}, {v(rk)}, 3, {v(ta)}
  s_cbranch_vccnz L_rare_{lab}""")
        a.label(f"L_back_{lab}")
        a(f"""
  ds_write2_b32 {v(ta)}, {v(REC[u])}, {v(w)} offset0:2 offset1:3
  s_mov_b64 exec, -1""")
        rare.append((lab, u, p))

    a(f"""
  v_add_u32 {v(PT+2)}, {P1_REC}, {v(vL16)}
  v_add_u32 {v(PT+3)}, {P1_REC + 8*8192}, {v(vL16)}
  v_add_u32 {v(PT+4)}, {P1_REC + 16*8192}, {v(vL16)}
  s_mov_b32 s{sSo}, {NB*8192}
  v_mov_b32 {v(vDum)}, 3
  s_waitcnt lgkmcnt(0)
  s_barrier""")
    stamp(a, 252, 45)
    NS = 19
    sdt = lambda r: (20 + r) % 25 if r < 8 else r + 1
    SD = lambda r: ACC[sdt(r)]
    gv = []
    def gwait(x, extra=""): a(f"  s_waitcnt vmcnt({len(gv) - 1 - gv.index(x)}){extra}")
    def rd(r): a(f"  ds_read_b128 {v(SD(r),4)}, {v(PT+2 + r//8)} offset:{(r%8)*8192}")
    def st(r, lst=None):
        a(f"  buffer_store_dwordx4 {v(SD(r),4)}, {v(vL16)}, {s(sRW,4)}, s{sSo} offen sc1\n  s_add_u32 s{sSo}, s{sSo}, 8192")
        if lst is not None: lst.append(("st", r))
    zero_acc = lambda t: a(f"  v_mov_b64 {v(ACC[t],2)}, 0\n  v_mov_b64 {v(ACC[t]+2,2)}, 0")
    flag3 = f"  buffer_store_dword {v(vDum)}, {v(vFlg)}, {s(sFLG,4)}, 0 offen sc1"
    N1, N3 = OPT["n1"], OPT["n3"]
    a(f"  s_cmp_gt_u32 s{sO2}, {NB*8192 // 6 - 2}\n  s_cbranch_scc1 L_noearly")
    a(flag3)
    a.label("L_noearly")
    a(f"""
  buffer_load_dwordx4 {v(Q,4)}, {v(vTab)}, {s(sTAB,4)}, 0 offen sc1
  buffer_load_dwordx2 {v(Q+4,2)}, {v(vTab)}, {s(sTAB,4)}, 0 offen offset:16 sc1""")
    gv.extend([("tab", 0), ("tab", 1)])
    if cpf(1, 24): gv.append(("c", 1))
    for r in range(NB, NS): rd(r)
    nxt = NB + N1
    for r in range(NB, nxt):
        a(f"  s_waitcnt lgkmcnt({NS - 1 - r})")
        st(r, gv)
    a(f"""
  s_waitcnt lgkmcnt(0)
  s_cmp_gt_u32 s{sO2}, {NB*8192 // 6 - 2}
  s_cbranch_scc1 L_allfirst
  s_barrier""")
    a.label("L_allfirst_back")
    stamp(a, 252, 46)
    pend = list(range(nxt, NS))
    keep = OPT["n3"]
    slot = [0]
    def st1(n=1):
        on = OPT["smask"] >> slot[0] & 1 or n > 1
        slot[0] += 1
        for _ in range(n):
            if on and len(pend) > keep: st(pend.pop(0), gv)
    st1()
    DI = [RING[0] + p for p in range(14)]
    H = Da
    a(f"""
  s_mul_i32 s{sX}, s{sW}, 3584
  s_add_u32 s{sX}, s{sX}, {RB_OFF}
  v_and_b32 {v(T+8)}, 63, v0
  v_lshl_add_u32 {v(T+9)}, {v(T+8)}, 3, s{sX}
  v_lshl_add_u32 {v(T+8)}, {v(T+8)}, 2, s{sX}
  ds_write_b64 {v(T+9)}, {v(rDist,2)}
  ds_write_b64 {v(T+9)}, {v(rSbf,2)} offset:512
  ds_write_b64 {v(T+9)}, {v(rUp,2)} offset:1024
  ds_write_b32 {v(T+8)}, {v(rRbf)} offset:1536
  ds_write_b64 {v(T+9)}, {v(rDown,2)} offset:2048
  v_and_b32 {v(T+4)}, 15, v0
  v_bfe_u32 {v(T+8)}, v0, 4, 2
  v_lshl_add_u32 {v(T+4)}, {v(T+4)}, 1, s{sX}
  v_lshl_add_u32 {v(T+5)}, {v(T+8)}, 7, {v(T+4)}
  v_lshl_add_u32 {v(T+6)}, {v(T+8)}, 6, {v(T+4)}
  v_lshl_add_u32 {v(T+7)}, {v(vHalf)}, 4, {v(T+4)}
  ds_read_u16 {v(WS0)}, {v(T+5)} offset:512
  ds_read_u16 {v(WS1)}, {v(T+5)} offset:{512+32}
  ds_read_u16 {v(WS0+1)}, {v(T+5)} offset:{512+64}
  ds_read_u16 {v(WS1+1)}, {v(T+5)} offset:{512+96}
  ds_read_u16 {v(WUP)}, {v(T+5)} offset:1024
  ds_read_u16 {v(H+10)}, {v(T+5)} offset:{1024+32}
  ds_read_u16 {v(WUP+1)}, {v(T+5)} offset:{1024+64}
  ds_read_u16 {v(H+11)}, {v(T+5)} offset:{1024+96}
  ds_read_u16 {v(WR)}, {v(T+6)} offset:1536
  ds_read_u16 {v(WR+1)}, {v(T+6)} offset:{1536+32}""")
    st1()
    for r in range(8): a(f"  ds_read_u16 {v(Wa+r)}, {v(T+7)} offset:{2048+r*32}")
    for p in range(13): a(f"  ds_read_u16 {v(DI[p])}, {v(T+4)} offset:{p*32}")
    st1()
    a(f"""
  s_mul_i32 s{sFl}, s{sJ}, {2*CARLIST}
  s_add_u32 s{sFl}, s{sFl}, {CAROFF}""")
    srd(a, sREC, sWS, sWS+1, None, NCH * CH * 6)
    srd(a, sM, 48, 49, None, E * 32)
    srd(a, sCAR, sWS, sWS+1, f"s{sFl}", 2 * CARLIST)
    srd(a, sOUT, 70, 71, None, f"s{sRb}")
    srd(a, sMW, 48, 49, None, f"s{sRb}")
    for t in list(range(3, 9)) + [sdt(r) for r in range(NB)]: zero_acc(t)
    st1()
    a(f"""
  v_mov_b32 {v(vSent)}, 0x7ffff
  v_mov_b32 {v(T)}, 0
  v_mov_b32 {v(T+1)}, {v(vSent)}
  v_mov_b32 {v(T+2)}, 0
  v_mov_b32 {v(T+3)}, {v(vSent)}
  v_add_u32 {v(T+6)}, {7*8192}, {v(vL16)}""")
    for r in range(13):
        a(f"  ds_write_b128 {v(vL16 if r < 7 else T+6)}, {v(T,4)} offset:{(r%7)*8192}")
        if r % 5 == 4: st1()
    a(f"""
  v_and_b32 {v(T+6)}, 15, v0
  v_lshl_add_u32 {v(T+6)}, {v(T+6)}, 2, {v(vCtlN)}
  ds_write_b32 {v(T+6)}, {v(vZ)}
  ds_write_b128 {v(vSrd)}, {v(ACC[3],4)}""")
    for q in range(D): a(f"  v_mov_b32 {v(SA[q])}, {v(vSst)}\n  v_mov_b32 {v(CC[q])}, 0")
    gwait(("tab", 1))
    a(f"  v_lshrrev_b32 {v(rem)}, 16, {v(Q)}")
    for i in range(1, K):
        a(f"  v_lshrrev_b32 {v(T+4)}, 16, {v(Q+i)}\n  v_add_u32 {v(rem)}, {v(rem)}, {v(T+4)}")
    state_update()
    for u in range(0, 16, 2):
        a(f"""
  v_add_u32_dpp {v(REC[u])}, {v(vB6)}, {v(vI6)} {bc(u)}
  v_sub_u32_dpp {v(REC[u]+1)}, {v(vRT4)}, {v(vI4)} {bc(u)}
  v_add_u32_dpp {v(REC[u+1])}, {v(vB6)}, {v(vI6)} {bc(u+1)}
  v_sub_u32_dpp {v(REC[u+1]+1)}, {v(vRT4)}, {v(vI4)} {bc(u+1)}
  v_bfi_b32 {v(REC[u])}, {v(vMsk)}, {v(REC[u])}, {v(REC[u]+1)}
  v_bfi_b32 {v(REC[u+1])}, {v(vMsk)}, {v(REC[u+1])}, {v(REC[u+1]+1)}""")
        if u % 4 == 2: st1()
    state_update2()
    state_update()
    state_update2()
    st1()
    CEN = H + 8
    a(f"""
  v_mov_b32 {v(CEN+1)}, s56
  v_cmp_eq_u32 vcc, 1, {v(T+8)}
  v_mov_b32 {v(CEN)}, s57
  v_cmp_eq_u32 {s(sT,2)}, 2, {v(T+8)}
  v_cndmask_b32 {v(CEN+1)}, {v(CEN+1)}, {v(CEN)}, vcc
  v_mov_b32 {v(CEN)}, s58
  v_cmp_eq_u32 vcc, 3, {v(T+8)}
  v_cndmask_b32 {v(CEN+1)}, {v(CEN+1)}, {v(CEN)}, {s(sT,2)}
  v_mov_b32 {v(CEN)}, s59
  v_cndmask_b32 {v(CEN+1)}, {v(CEN+1)}, {v(CEN)}, vcc
  v_lshlrev_b32 {v(CEN)}, 16, {v(CEN+1)}
  v_and_b32 {v(CEN+1)}, 0xffff0000, {v(CEN+1)}
  s_mov_b32 s{sC10}, 0xc1200000
  s_mov_b32 s{sC10+1}, 0xc1200000
  s_mov_b32 s{sCl2}, 0x3fb8aa3b
  s_mov_b32 s{sCl2+1}, 0x3fb8aa3b
  v_and_b32 {v(T+8)}, 1, {v(T+8)}
  v_cmp_eq_u32 vcc, 1, {v(T+8)}
  s_waitcnt lgkmcnt(0)
  v_lshl_or_b32 {v(WS0)}, {v(WS0+1)}, 16, {v(WS0)}
  v_lshl_or_b32 {v(WS1)}, {v(WS1+1)}, 16, {v(WS1)}
  v_lshl_or_b32 {v(WUP)}, {v(H+10)}, 16, {v(WUP)}
  v_lshl_or_b32 {v(WUP+1)}, {v(H+11)}, 16, {v(WUP+1)}
  v_lshl_or_b32 {v(WR)}, {v(WR+1)}, 16, {v(WR)}
  v_mov_b32 {v(WS0+1)}, 0
  v_mov_b32 {v(WS1+1)}, 0
  v_mov_b32 {v(WR+1)}, 0
  v_mov_b32 {v(DI[13])}, 0""")
    for r in range(4): a(f"  v_lshl_or_b32 {v(H+r)}, {v(Wa+2*r+1)}, 16, {v(Wa+2*r)}")
    for r in range(4):
        a(f"  v_cndmask_b32 {v(Wa+r)}, {v(H+r)}, {v(vZ)}, vcc")
        a(f"  v_cndmask_b32 {v(Wb+r)}, {v(vZ)}, {v(H+r)}, vcc")
    for ps in ([0,1,2,3], [4,5,6,7], [8,9,10], [11,12]):
        p0 = ps[0]
        tt = {p: H + 2 * (p - p0) for p in ps}
        def rnd():
            for p in ps: a(f"  v_cvt_pk_bf16_f32 {v(tt[p])}, 0, {v(tt[p])}\n  v_cvt_pk_bf16_f32 {v(tt[p]+1)}, 0, {v(tt[p]+1)}")
        for p in ps: a(f"  v_lshlrev_b32 {v(tt[p])}, 16, {v(DI[p])}")
        for p in ps: a(f"  v_pk_add_f32 {v(tt[p],2)}, {v(tt[p],2)}, {v(CEN,2)} op_sel_hi:[0,1] neg_lo:[0,1] neg_hi:[0,1]")
        rnd()
        for p in ps: a(f"  v_pk_mul_f32 {v(tt[p],2)}, {v(tt[p],2)}, {v(tt[p],2)}")
        rnd()
        for p in ps: a(f"  v_pk_mul_f32 {v(tt[p],2)}, {v(tt[p],2)}, {s(sC10,2)}")
        rnd()
        for p in ps: a(f"  v_pk_mul_f32 {v(tt[p],2)}, {v(tt[p],2)}, {s(sCl2,2)}")
        for p in ps: a(f"  v_exp_f32 {v(tt[p])}, {v(tt[p])}\n  v_exp_f32 {v(tt[p]+1)}, {v(tt[p]+1)}")
        for p in ps: a(f"  v_cvt_pk_bf16_f32 {v(DI[p])}, {v(tt[p])}, {v(tt[p]+1)}")
        st1()
    st1(NS)
    print("store slots", slot[0])
    for h in range(7):
        a(f"  ds_write_b64 {v(T+9)}, {v(DI[2*h],2)} offset:{h*512}")
    nx3 = NS - len(pend)
    for r in range(NB, nx3): zero_acc(sdt(r))
    for q in range(D):
        a(f"  v_mov_b64 {v(RING[q],2)}, 0\n  v_mov_b64 {v(RING[q]+2,2)}, 0")
    stamp(a, 252, 47)
    if OPT["pf0"] == 3:
        share = (OPT["wmain"] // 4 + 31) // 32
        a(f"""
  s_cmp_eq_u32 s{sW}, 0
  s_cbranch_scc1 L_nopf
  s_lshr_b32 s{sX}, s2, 3
  s_mul_i32 s{sX}, s{sX}, {share*128}
  v_lshlrev_b32 {v(TA[1])}, 7, v0
  buffer_load_dword {v(WW[1])}, {v(TA[1])}, {s(sM,4)}, s{sX} offen""")
        a.label("L_nopf")
    a(f"  s_cmp_lg_u32 s{sW}, 0\n  s_cbranch_scc1 L_polled_b")
    poll("b", flag_load(FP, RK[0]), flag_cond(FP, 2), OPT["nap"])
    a("  s_waitcnt lgkmcnt(0)")
    a("  s_barrier")
    stamp(a, 252, 1)
    def pro_ld(us):
        for u in us:
            a(f"  buffer_load_dwordx2 {v(REC[u],2)}, {v(REC[u])}, {s(sREC,4)}, 0 offen{RPOL}")
            gv.append(("rec", u))
    NL0 = OPT["nl0"]
    pro_ld(range(NL0))
    NG = NS
    stamp(a, 252, 12)
    set_flag("pro")
    stamp(a, 252, 13)
    PTA = lambda u: Da + u
    PRK = lambda u: RING[0] + u
    PMK = lambda u: sPM + 2 * (u % 8)
    slowg = []
    def pro_ins1(g):
        us = range(4*g, 4*g+4)
        gwait(("rec", 4*g+3))
        for u in us:
            a(f"""
  v_cmp_gt_i32 vcc, 0, {v(REC[u])}
  v_min_i32 {v(PTA(u))}, {v(REC[u])}, {v(REC[u]+1)}
  v_cmp_gt_i32 {s(PMK(u),2)}, 0, {v(PTA(u))}
  v_cndmask_b32_sdwa {v(REC[u])}, {v(REC[u])}, {v(REC[u]+1)}, vcc {SDWA}
  v_mov_b32 {v(REC[u]+1)}, {v(PTA(u))}""")
        for u in us: a(f"  v_bfe_u32 {v(PTA(u))}, {v(PTA(u))}, 23, 8")
        for u in us: a(f"  v_mul_u32_u24 {v(PTA(u))}, {v(PTA(u))}, {v(v264)}")
        for u in us: a(f"  s_mov_b64 exec, {s(PMK(u),2)}\n  ds_add_rtn_u32 {v(PRK(u))}, {v(PTA(u))}, {v(vOne)}")
        a("  s_mov_b64 exec, -1")
    def pro_ins2(g):
        us = list(range(4*g, 4*g+4))
        a(f"""
  v_max3_u32 {v(T)}, {v(PRK(us[0]))}, {v(PRK(us[1]))}, {v(PRK(us[2]))}
  v_max_u32 {v(T)}, {v(T)}, {v(PRK(us[3]))}
  v_cmp_lt_u32 vcc, 31, {v(T)}
  s_cbranch_vccz L_pfast_{g}
  v_cmp_lt_u32 vcc, 63, {v(T)}
  s_cbranch_vccnz L_pslow_{g}""")
        a.label(f"L_pback_{g}")
        for x, u in enumerate(us): a(f"  v_subrev_u32 {v(T+4+x)}, 31, {v(PRK(u))}")
        for x, u in enumerate(us): a(f"  s_mov_b64 exec, {s(PMK(u),2)}\n  ds_max_i32 {v(PTA(u))}, {v(T+4+x)} offset:{BUFSZ}")
        a(f"  s_mov_b64 exec, -1\n  ds_write_b32 {v(vCtlN)}, {v(vOne)} offset:4")
        for x, u in enumerate(us): a(f"  v_lshrrev_b32 {v(T+4+x)}, 5, {v(PRK(u))}")
        for x, u in enumerate(us): a(f"  v_mad_u32_u24 {v(PTA(u))}, {v(T+4+x)}, s{sThr}, {v(PTA(u))}")
        a.label(f"L_pfast_{g}")
        for u in us: a(f"  v_lshl_add_u32 {v(PTA(u))}, {v(PRK(u))}, 3, {v(PTA(u))}")
        for u in us: a(f"  s_mov_b64 exec, {s(PMK(u),2)}\n  ds_write_b64 {v(PTA(u))}, {v(REC[u],2)} offset:8")
        a("  s_mov_b64 exec, -1")
        slowg.append(g)
    a(f"  s_mov_b32 s{sThr}, {BUFSZ - 256}")
    left = list(range(nx3, NS))
    per = (len(left) + 3) // 4
    def some():
        for _ in range(per):
            if left: st(left.pop(0), gv)
    pro_ins1(0)
    stamp(a, 252, 3)
    pro_ld(range(NL0, 16))
    def pf():
        share = (OPT["wmain"] // 4 + 31) // 32
        a(f"""
  s_lshr_b32 s{sX}, s2, 3
  s_mul_i32 s{sX}, s{sX}, {share*128}
  v_lshlrev_b32 {v(TA[1])}, 7, v0
  buffer_load_dword {v(WW[1])}, {v(TA[1])}, {s(sM,4)}, s{sX} offen""")
        gv.append(("pf", 0))
    if OPT["pf0"] == 1:
        while left: st(left.pop(0), gv)
        pf()
    pro_ins1(1)
    some()
    a("  s_waitcnt lgkmcnt(0)")
    pro_ins2(0); some(); pro_ins1(2); pro_ins2(1); some(); pro_ins1(3); some()
    if OPT["pf0"] == 2: pf()
    stamp(a, 252, 8)
    a("  s_nop 0")
    for r in range(nx3, NS): zero_acc(sdt(r))
    a("  s_waitcnt lgkmcnt(0)")
    pro_ins2(2); pro_ins2(3)
    stamp(a, 252, 11)
    a("  s_branch L_turn2")
    def signal_all(tag, n):
        a(f"""
  v_mov_b32 {v(T+4)}, {CTL + 32}
  s_waitcnt vmcnt({n})
  s_mov_b64 exec, 1
  ds_add_rtn_u32 {v(T+5)}, {v(T+4)}, {v(vOne)}
  s_mov_b64 exec, -1
  v_and_b32 {v(T+6)}, 63, v0
  s_lshl_b32 s{sX}, s2, 2
  v_lshl_add_u32 {v(T+6)}, {v(T+6)}, 10, s{sX}
  v_mov_b32 {v(T+7)}, 4
  s_waitcnt lgkmcnt(0)
  v_readfirstlane_b32 s{sX}, {v(T+5)}
  s_cmp_lg_u32 s{sX}, 7
  s_cbranch_scc1 L_nosig_{tag}
  buffer_store_dword {v(T+7)}, {v(T+6)}, {s(sFLG,4)}, 0 offen sc1""")
        a.label(f"L_nosig_{tag}")

    INS0 = OPT["ins0"]
    def cstage_head(q):
        if OPT["abl_s"]: return
        a(f"""
  ds_write_b16 {v(SA[q])}, {v(CC[q])}
  ds_read_b128 {v(Sf,4)}, {v(vSrd)}
  ds_write_b16 {v(SA[q])}, {v(vZ)}""")
    def cstage_m1(q):
        if OPT["abl_mfma"]: return
        a(f"""
  v_mfma_f32_16x16x32_bf16 {v(Da,4)}, {v(RING[q],4)}, {v(Wa,4)}, 0
  v_mfma_f32_16x16x32_bf16 {v(Db,4)}, {v(RING[q],4)}, {v(Wb,4)}, 0""")
    def cstage_cvt():
        if OPT["abl_mfma"]: return
        a(f"""
  v_cvt_pk_bf16_f32 {v(P)}, {v(Da)}, {v(Da+1)}
  v_cvt_pk_bf16_f32 {v(P+1)}, {v(Da+2)}, {v(Da+3)}
  v_cvt_pk_bf16_f32 {v(P+2)}, {v(Db)}, {v(Db+1)}
  v_cvt_pk_bf16_f32 {v(P+3)}, {v(Db+2)}, {v(Db+3)}""")
    def cstage_m2(tc):
        if OPT["abl_mfma"]: return
        a(f"  v_mfma_f32_16x16x32_bf16 {v(ACC[tc],4)}, {v(P,4)}, {v(Sf,4)}, {v(ACC[tc],4)}")
    def step_top(t, reset=True):
        a(f"  ; ---- step {t}")
        a("  s_waitcnt lgkmcnt(0)")
        cstage_head(t % D)
        if t < NT - 1:
            a(f"  ds_read_b64 {v(RP[(t+1)&1],2)}, {v(vRd)} offset:{(t+1)*TS+8}")
        if reset and t < NT:
            a(f"  ds_write_b32 {v(vRd)}, {v(vSent)} offset:{t*TS+12}")
    def step_main(t, n, reset=True):
        q = t % D; tc = (t - D) % NT
        rp = RP[t & 1]
        a(f"  s_waitcnt vmcnt({n})")
        cstage_m1(q)
        off, af, e = T + 1, T + 2, T + 3
        a(f"""
  v_and_b32 {v(off)}, {v(vSent)}, {v(rp+1)}
  v_mul_f32 {v(af)}, {v(rp)}, {v(vFreq)}
  v_lshl_add_u32 {v(off)}, {v(off)}, 5, {v(vHalf)}
  v_cvt_pk_bf16_f32 {v(af)}, 0, {v(af)}
  buffer_load_dwordx4 {v(RING[q],4)}, {v(vOOB if OPT["abl_g"] else off)}, {s(sM,4)}, 0 offen
  v_mul_f32 {v(af)}, 0.15915494, {v(af)}
  v_bfe_u32 {v(e)}, {v(rp+1)}, 20, 3
  v_fract_f32 {v(af)}, {v(af)}""")
        cstage_cvt()
        a(f"""
  v_cos_f32 {v(af)}, {v(af)}
  v_lshl_add_u32 {v(SA[q])}, {v(e)}, 4, {v(vSst)}
  s_waitcnt lgkmcnt({(2 if t < NT-1 else 1) + (1 if reset else 0)})""")
        cstage_m2(tc)
        a(f"  v_cvt_pk_bf16_f32 {v(CC[q])}, {v(af)}, {v(af)}")

    order = []
    for t in range(NT):
        if t == 0: order.append(("car", 16))
        u2 = t - INS0 - 1
        EA = OPT["early"]
        if EA: order += [("rec", u) for u in range(EA * t, min(16, EA * t + EA))]
        elif 0 <= u2 < 16: order.append(("rec", u2))
        order.append(("W", t))
        order.append(("g", t))
    tail = [x for x in order[order.index(("g", NT - D)):] if x[0] != "W"]
    assert tail == [("g", t) for t in range(NT - D, NT)], tail
    def younger(target, at):
        n = len(order); i = order.index(target); cnt = 0
        j = (i + 1) % n
        while j != at:
            if order[j][0] != "W": cnt += 1
            j = (j + 1) % n
        return cnt
    first = []
    for x in order:
        if x[0] == "W" and x[1] < 4: first += [("f", 4 * x[1] + i) for i in range(4)]
        first.append(x)
    def younger_first(u, t):
        i = first.index(("f", u)); j = first.index(("W", t))
        return sum(1 for x in first[i+1:j] if x[0] != "W")
    RBH = 1
    def prio(tag, mask, t):
        cur = mask >> t & 1; prev = (mask >> (t - 1) & 1) if t else 0
        if cur and not prev:
            a(f"  s_cmp_lt_u32 s{sW}, 4\n  s_cbranch_scc1 L_{tag}prio{t}\n  s_setprio 1")
            a.label(f"L_{tag}prio{t}")
        if prev and not cur: a("  s_setprio 0")
    assert not OPT["lprio"] >> (NT - 1)
    def step0_extra():
        a(f"""
  v_cmp_gt_u32 vcc, s{sCin}, {v(vCarIdx)}
  s_add_u32 s{sX}, s{sIt}, 2
  s_and_b32 s{sX}, s{sX}, 3
  s_lshl_b32 s{sX}, s{sX}, 3
  s_add_u32 s{sX}, s{sX}, {CTL}
  v_mov_b32 {v(T+1)}, s{sX}
  ds_write_b64 {v(T+1)}, {v(vZ,2)}
  ds_write_b32 {v(vCntA)}, {v(vZ)}
  v_cndmask_b32 {v(T)}, {v(vOOB)}, {v(vCarOff)}, vcc
  buffer_load_dwordx2 {v(REC[16],2)}, {v(T)}, {s(sCAR,4)}, s{sCarR} offen sc1""")
    def state_step(tag):
        a(f"  s_cmp_lg_u32 s{sThr}, 0\n  s_cbranch_scc1 L_nostate_{tag}")
        if tag == "b0":
            QL = Q + OPT['keff'] - 3
            a(f"""
  v_lshrrev_b32 {v(T)}, 16, {v(QL)}
  v_cmp_eq_u32 vcc, 0, {v(nA)}
  v_subrev_u32 {v(T+1)}, {OPT['lim']}, {v(T)}
  v_and_b32 {v(T+2)}, 0xffff, {v(QL)}
  v_max_i32 {v(T+1)}, 0, {v(T+1)}
  v_cndmask_b32 {v(T+1)}, {v(vZ)}, {v(T+1)}, vcc
  v_add_u32 {v(T+2)}, {v(T+2)}, {v(T)}
  v_sub_u32 {v(T+2)}, {v(T+2)}, {v(T+1)}
  v_cndmask_b32 {v(sA)}, {v(sA)}, {v(T+2)}, vcc
  v_add_u32 {v(nA)}, {v(nA)}, {v(T+1)}
  v_lshlrev_b32 {v(T+1)}, 16, {v(T+1)}
  v_sub_u32 {v(QL)}, {v(QL)}, {v(T+1)}""")
        state_update(); state_update2()
        a.label(f"L_nostate_{tag}")
        set_flag(tag)
    a(".p2align 6")
    a.label("L_body0")
    lo = []
    lw = lambda x: len(lo) - 1 - lo.index(x)
    ST0, STP = OPT["st0"], OPT["stp"]
    late = list(range(NG, NS))
    tsig = None
    FC = REC[0]
    FO = REC[2]
    for t in range(NT):
        step_top(t)
        prio("b0", OPT["lprio"], t)
        if t == 0:
            step0_extra(); lo.append(("rec", 16))
        if t < 4:
            for u in range(4*t, 4*t+4):
                rec_load(u, T + 4 + 2 * (u & 1)); lo.append(("rec", u))
        if t == INS0: state_step("b0")
        if t == 14 and cpf(2, 24): lo.append(("c", 2))
        zs = []
        if t >= ST0:
            for _ in range(STP):
                if late:
                    r = late.pop(0); st(r, lo); zs.append(r)
                    assert sdt(r) + D > t
                    if not late: tsig = t + D + 1
        u1 = t - INS0; u2 = u1 - 1
        if 0 <= u2 < 17: ins2(u2, "b0", u2 & 1)
        if 0 <= u1 < 17:
            a(f"  s_waitcnt vmcnt({lw(('rec', u1))})")
            ins1(u1, f"s{sThr}" if u1 < 16 else "0", u1 & 1)
        else: a("  s_nop 0")
        for r in zs: zero_acc(sdt(r))
        if t == tsig or (NG == NS and t == 2):
            signal_all("b0", lw(("st", NS - 1)) if NG < NS else len(lo))
        if t == INS0 + 18:
            a(f"  s_cmp_gt_u32 s{sCin}, 512\n  s_cbranch_scc1 L_slow_b0")
            a.label("L_slow_back_b0")
        if t == NT - 3:
            a(f"""
  s_cmp_lg_u32 s{sW}, 0
  s_cbranch_scc1 L_noldc
  v_lshlrev_b32 {v(FO)}, 4, v0
  s_and_b32 s{sX}, s2, 7
  s_lshl_b32 s{sX}, s{sX}, 10""")
            a(flag_load(FC, FO))
            a.label("L_noldc")
        step_main(t, lw(("g", t - D)) if t >= D else 62)
        lo.append(("g", t))
    assert not late and (tsig is None or tsig < NT - 3)
    a(f"""
  s_waitcnt vmcnt(3)
  s_cmp_lg_u32 s{sW}, 0
  s_cbranch_scc1 L_turn2""")
    assert NT - (INS0 + 17) >= 3
    a(flag_cond(FC, 4))
    a(f"""
  s_cbranch_vccz L_turn2
  s_and_b32 s{sX}, s2, 7
  s_lshl_b32 s{sX}, s{sX}, 10""")
    poll("c", flag_load(FC, FO), flag_cond(FC, 4), OPT["nap"])
    a("  s_branch L_turn2")

    a(".p2align 6")
    a.label("L_loop")
    for t in range(NT):
        step_top(t)
        if t == 0: step0_extra()
        prio("lp", OPT["lprio"], t)
        if EA:
            for u in range(EA * t, min(16, EA * t + EA)): rec_load(u, T + 4 + 2 * (u & 1))
        if t < 4:
            if not EA: a(f"  s_cmp_eq_u32 s{sIt}, 1\n  s_cbranch_scc1 L_first_{t}")
            a.label(f"L_first_back_{t}")
        if t == INS0: state_step("lp")
        if t == 14: cpf(3, 24)
        u1 = t - INS0; u2 = u1 - 1
        if 0 <= u2 < 17:
            ins2(u2, "lp", u2 & 1)
            if u2 < 16 and not EA: rec_load(u2, T + 4)
        if 0 <= u1 < 17:
            pos = order.index(("W", t))
            if EA and u1 < 16: n = younger(("rec", u1), pos)
            elif u1 < 16: n = min(younger(("rec", u1), pos), younger_first(u1, t))
            else: n = younger(("car", 16), pos)
            a(f"  s_waitcnt vmcnt({min(n, 62)})")
            ins1(u1, f"s{sThr}" if u1 < 16 else "0", u1 & 1)
        if t == INS0 + 18:
            a(f"  s_cmp_gt_u32 s{sCin}, 512\n  s_cbranch_scc1 L_slow_lp")
            a.label("L_slow_back_lp")
        step_main(t, younger(("g", (t - D) % NT), order.index(("W", t))))
    assert INS0 >= 4 and RBH < NT
    a(f"  s_waitcnt vmcnt({NT - (INS0 + 17)})")
    a.label("L_turn2")
    a(f"""
  v_mov_b32 {v(T)}, {v(vCtlN)}
  s_add_u32 s{sIt}, s{sIt}, 1
  s_add_u32 s{sX}, s{sIt}, 1
  s_and_b32 s{sX}, s{sX}, 3
  s_lshl_b32 s{sX}, s{sX}, 3
  s_add_u32 s{sX}, s{sX}, {CTL}
  v_mov_b32 {v(vCtlN)}, s{sX}
  s_sub_u32 s{sX}, s{sIns}, {BUFSZ}
  s_add_u32 s{sX}, s{sX}, s{sIns}
  v_add_u32 {v(vRd)}, s{sX}, {v(vRd)}
  v_add_u32 {v(vCntA)}, s{sX}, {v(vCntA)}
  s_sub_u32 s{sIns}, {BUFSZ}, s{sIns}
  s_mov_b32 s{sCarR}, s{sCarW}
  s_sub_u32 s{sCarW}, {CARLIST}, s{sCarW}
  s_waitcnt lgkmcnt(0)""")
    if OPT["stamp"] == 1:
        a(f"  s_lshl_b32 s90, s{sIt}, 1\n  s_add_u32 s90, s90, 16\n  s_min_u32 m0, s90, 36")
        stamp(a, 252, "m0")
        a("  s_add_u32 m0, m0, 1")
    a("  s_barrier")
    stamp(a, 252, "m0")
    a(f"""
  ds_read_b64 {v(T+2,2)}, {v(T)}
  ds_read_b64 {v(RP[0],2)}, {v(vRd)} offset:8
  s_waitcnt lgkmcnt(1)
  v_readfirstlane_b32 s{sCin}, {v(T+2)}
  v_readfirstlane_b32 s{sFl}, {v(T+3)}
  s_cmp_gt_u32 s{sCin}, 512
  s_cselect_b32 s{sThr}, 0x80000000, 0
  s_min_u32 s{sCin}, s{sCin}, {CARCAP}
  s_cmp_gt_u32 s{sCin}, 32
  s_cselect_b32 s{sFl}, 1, s{sFl}
  s_cmp_lt_u32 s{sIt}, {OPT['itcap']}
  s_cselect_b32 s{sFl}, s{sFl}, 0
  s_cmp_eq_u32 s{sIt}, {OPT["cut"] - 100 if OPT["cut"] >= 100 else -1}
  s_cbranch_scc1 L_end
  s_cmp_eq_u32 s{sIt}, 0
  s_cbranch_scc1 L_it0
  s_cmp_lg_u32 s{sFl}, 0
  s_cbranch_scc1 L_loop""")
    a.label("L_nosig_z")

    RBv = Q
    assert vRT4 - Q + 1 >= 14
    R0 = REC[0]
    G0, G1, RR, U = R0, R0 + 4, R0 + 8, R0 + 12
    XS0, XS1, XR, AG = R0 + 16, R0 + 18, R0 + 20, R0 + 22
    MS = [R0 + 24 + 2 * i for i in range(5)]
    vMoff, vLin, vOw, vOr = vCarOff, vI6, vI1, vI4
    a(f"""
  v_and_b32 {v(T)}, 63, v0
  s_mul_i32 s{sX}, s{sW}, 3584
  s_add_u32 s{sX}, s{sX}, {RB_OFF}
  v_lshl_add_u32 {v(T+1)}, {v(T)}, 3, s{sX}
  v_lshlrev_b32 {v(vLin)}, 4, {v(T)}
  v_bfe_u32 {v(T+2)}, v0, 4, 2
  v_and_b32 {v(T+3)}, 15, v0
  v_lshlrev_b32 {v(T+2)}, 3, {v(T+2)}
  v_lshl_add_u32 {v(vMoff)}, {v(T+3)}, 5, {v(T+2)}
  s_mul_i32 s{sX}, s{sW}, 6400
  s_add_u32 s{sX}, s{sX}, s{sIns}
  s_add_u32 s{sX}, s{sX}, 15
  s_and_b32 s{sX}, s{sX}, -16
  v_add_u32 {v(vOw)}, s{sX}, {v(vMoff)}
  v_add_u32 {v(vOr)}, s{sX}, {v(vLin)}
  v_cmp_gt_u32 {s(sT,2)}, 8, {v(T+3)}""")
    for h in range(7):
        a(f"  ds_read_b64 {v(RBv+2*h,2)}, {v(T+1)} offset:{h*512}")
    fo = [("g", t - NT) for t in range(NT - D, NT)]
    def fwait(x): return len(fo) - 1 - fo.index(x)
    def s1(p):
        b = RBv + (p & ~1)
        w0, w1 = (WS0, WS1) if p % 2 == 0 else (XS0, XS1)
        a(f"""
  v_mfma_f32_16x16x16_bf16 {v(G0,4)}, {v(w0,2)}, {v(b,2)}, 0
  v_mfma_f32_16x16x16_bf16 {v(G1,4)}, {v(w1,2)}, {v(b,2)}, 0""")
    def s2(p):
        t0 = ACC[2*p]; t1 = ACC[2*p+1] if 2*p+1 < NT else ACC[2*p]
        for r in range(4): a(f"  v_mul_f32 {v(U+r)}, {v(t0+r)}, {v(G0+r)}")
        for r in range(4): a(f"  v_mul_f32_dpp {v(U+r)}, {v(t1+r)}, {v(G0+r)} row_ror:8 row_mask:0xf bank_mask:0xc")
        for r in range(4): a(f"  v_fmac_f32_dpp {v(U+r)}, {v(t0+r)}, {v(G1+r)} row_ror:8 row_mask:0xf bank_mask:0x3")
        for r in range(4): a(f"  v_fmac_f32_dpp {v(U+r)}, {v(t1+r)}, {v(G1+r)} quad_perm:[0,1,2,3] row_mask:0xf bank_mask:0xc")
        a(f"""
  v_cvt_pk_bf16_f32 {v(AG)}, {v(U)}, {v(U+1)}
  v_cvt_pk_bf16_f32 {v(AG+1)}, {v(U+2)}, {v(U+3)}
  v_mfma_f32_16x16x16_bf16 {v(RR,4)}, {v(WR if p % 2 == 0 else XR,2)}, {v(RBv + (p & ~1),2)}, 0""")
        if p + 1 < 13: s1(p + 1)
        else: a("  s_nop 0")
        a(f"  v_mfma_f32_16x16x16_bf16 {v(U,4)}, {v(WUP,2)}, {v(AG,2)}, 0")
    def s3(p):
        x = ACC[2*p]; m_ = MS[p % 5]
        a(f"""
  s_waitcnt vmcnt({fwait(("m", p))})
  v_lshlrev_b32 {v(x)}, 16, {v(m_)}
  v_and_b32 {v(x+1)}, 0xffff0000, {v(m_)}
  v_lshlrev_b32 {v(x+2)}, 16, {v(m_+1)}
  v_and_b32 {v(x+3)}, 0xffff0000, {v(m_+1)}""")
        if p == 12: a("  s_nop 2")
        a(f"""
  v_pk_fma_f32 {v(x,2)}, {v(U,2)}, {v(RR,2)}, {v(x,2)}
  v_pk_fma_f32 {v(x+2,2)}, {v(U+2,2)}, {v(RR+2,2)}, {v(x+2,2)}
  v_cvt_pk_bf16_f32 {v(x)}, {v(x)}, {v(x+1)}
  v_cvt_pk_bf16_f32 {v(x+1)}, {v(x+2)}, {v(x+3)}""")
        if p == 12: a(f"  s_mov_b64 exec, {s(sT,2)}")
        a(f"  ds_write_b64 {v(vOw)}, {v(x,2)} offset:{p*512}")
        if p == 12: a(f"  s_mov_b64 exec, -1")
        if p % 2 == 1 or p == 12:
            r = p // 2
            a(f"  ds_read_b128 {v(ACC[4*r+1 if r < 6 else 23],4)}, {v(vOr)} offset:{r*1024}")
    def s4(r):
        a(f"  buffer_store_dwordx4 {v(ACC[4*r+1 if r < 6 else 23],4)}, {v(vLin)}, {s(sOUT,4)}, s{sEb if r < 4 else sEb2} offen offset:{(r%4)*1024}{POL[OPT['opol']]}")
        fo.append(("st", r))
    xw = {}
    for t in range(NT + D + 2):
        if t == 6:
            a(f"  s_cmp_lg_u32 s{sCin}, 0\n  s_cbranch_scc1 L_x3")
            a.label("L_x3_back")
            xw[3] = len(fo) - xw[2]
        if t < NT + D: step_top(t, False)
        else: a(f"  ; ---- tail {t}\n  s_waitcnt lgkmcnt(0)")
        prio("fp", OPT["fprio"], t)
        if t in (0, 3):
            n = 1 if t == 0 else 2
            a(f"  s_cmp_lg_u32 s{sCin}, 0\n  s_cbranch_scc1 L_x{n}")
            a.label(f"L_x{n}_back")
            xw[n] = len(fo)
        if t == NT: stamp(a, 252, 4)
        if t == NT + D: stamp(a, 252, 5)
        if t == 1:
            a(f"""
  v_mov_b32 {v(XS0)}, 0
  v_mov_b32 {v(XS0+1)}, {v(WS0)}
  v_mov_b32 {v(XS1)}, 0
  v_mov_b32 {v(XS1+1)}, {v(WS1)}
  v_mov_b32 {v(XR)}, 0
  v_mov_b32 {v(XR+1)}, {v(WR)}""")
        if t == 5: s1(0)
        ts2 = {2*p+7 if p < 12 else 30: p for p in range(13)}
        if t - 2 in ts2 and (ts2[t-2] % 2 == 1): s4(ts2[t-2] // 2)
        if t - 1 in ts2: s3(ts2[t-1])
        if t in ts2: s2(ts2[t])
        if t % 2 == 1 and t // 2 < 13:
            p = t // 2
            a(f"  buffer_load_dwordx2 {v(MS[p%5],2)}, {v(vMoff)}, {s(sMW,4)}, s{sEb if p < 8 else sEb2} offen offset:{(p%8)*512}{POL[OPT['mpol']]}")
            fo.append(("m", p))
        if t < NT:
            step_main(t, fwait(("g", t - D)), False)
            fo.append(("g", t))
        elif t < NT + D:
            a(f"  s_waitcnt vmcnt({fwait(('g', t - D))})")
            cstage_m1(t % D)
            a("  s_nop 6")
            cstage_cvt()
            a("  s_waitcnt lgkmcnt(0)\n  s_nop 0")
            cstage_m2(t - D)
            a("  s_nop 3")
    a("  s_waitcnt lgkmcnt(0)")
    s4(6)
    stamp(a, 252, 6)
    if OPT["stamp"]: a("  s_waitcnt vmcnt(0)")
    stamp(a, 252, 7); stamp(a, 252, 63, "s_memrealtime")
    if OPT["stamp"] == 1: a(f"  v_writelane_b32 v252, s{sIt}, 61")
    stamp_out(a, 252, sWS, 8, STAMPOFF + 0x200000, 253)
    a.label("L_end")
    a("  s_endpgm")

    sSm, sS2 = sMk
    a.label("L_x1")
    a(f"""
  v_cmp_gt_u32 vcc, s{sCin}, {v(vSlot)}
  v_lshlrev_b32 {v(T)}, 3, {v(vSlot)}
  s_nop 0
  v_cndmask_b32 {v(T)}, {v(vOOB)}, {v(T)}, vcc
  buffer_load_dwordx2 {v(AG,2)}, {v(T)}, {s(sCAR,4)}, s{sCarR} offen sc1
  s_branch L_x1_back""")
    a.label("L_x2")
    a(f"""
  s_mul_i32 s{sX}, s{sW}, {NT}
  s_waitcnt vmcnt({xw[2] - xw[1]})
  v_min_i32 {v(U)}, {v(AG)}, {v(AG+1)}
  v_cmp_gt_i32 vcc, 0, {v(AG)}
  v_bfe_u32 {v(U+2)}, {v(U)}, 23, 8
  v_subrev_u32 {v(U+2)}, s{sX}, {v(U+2)}
  v_cndmask_b32_sdwa {v(U+1)}, {v(AG)}, {v(AG+1)}, vcc dst_sel:WORD_1 dst_unused:UNUSED_PAD src0_sel:WORD_1 src1_sel:WORD_0
  v_cmp_gt_i32 {s(sS2,2)}, 0, {v(U)}
  v_cmp_gt_u32 {s(sSm,2)}, {NT}, {v(U+2)}
  s_and_b64 vcc, {s(sSm,2)}, {s(sS2,2)}
  s_cselect_b32 s{sCin}, s{sCin}, 0
  s_cbranch_scc0 L_x2_back
  v_and_b32 {v(T)}, 0x7ffff, {v(U)}
  v_lshl_add_u32 {v(T)}, {v(T)}, 5, {v(vHalf)}
  v_mul_f32 {v(U+1)}, {v(U+1)}, {v(vFreq)}
  v_cndmask_b32 {v(T)}, {v(vOOB)}, {v(T)}, vcc
  buffer_load_dwordx4 {v(RR,4)}, {v(T)}, {s(sM,4)}, 0 offen
  v_cndmask_b32 {v(U+2)}, {v(vOOB)}, {v(U+2)}, vcc
  v_cvt_pk_bf16_f32 {v(U+1)}, 0, {v(U+1)}
  v_mul_f32 {v(U+1)}, 0.15915494, {v(U+1)}
  v_fract_f32 {v(U+1)}, {v(U+1)}
  v_cos_f32 {v(U+1)}, {v(U+1)}
  v_bfe_u32 {v(U+3)}, {v(U)}, 20, 3
  v_lshl_add_u32 {v(U+3)}, {v(U+3)}, 4, {v(vSst)}
  v_cvt_pk_bf16_f32 {v(U+1)}, {v(U+1)}, {v(U+1)}
  s_branch L_x2_back""")
    a.label("L_x3")
    a(f"""
  s_waitcnt vmcnt({xw[3]})
  v_mfma_f32_16x16x32_bf16 {v(Da,4)}, {v(RR,4)}, {v(Wa,4)}, 0
  v_mfma_f32_16x16x32_bf16 {v(Db,4)}, {v(RR,4)}, {v(Wb,4)}, 0
  s_nop 6""")
    cstage_cvt()
    for t in range(NT):
        a(f"""
  v_cmp_eq_u32 vcc, {t}, {v(U+2)}
  s_cbranch_vccz L_x3_{t}
  s_mov_b64 exec, vcc
  ds_write_b16 {v(U+3)}, {v(U+1)}
  s_mov_b64 exec, -1
  ds_read_b128 {v(Sf,4)}, {v(vSrd)}
  s_mov_b64 exec, vcc
  ds_write_b16 {v(U+3)}, {v(vZ)}
  s_mov_b64 exec, -1
  s_waitcnt lgkmcnt(0)""")
        cstage_m2(t)
        a.label(f"L_x3_{t}")
    a("  s_branch L_x3_back")
    a.label("L_it0")
    a(f"  s_cmp_lg_u32 s{sFl}, 0\n  s_cbranch_scc1 L_body0")
    for r in range(NG, NS): st(r)
    a("  s_nop 0")
    for r in range(NG, NS): zero_acc(sdt(r))
    signal_all("z0", 0)
    a("  s_branch L_nosig_z")
    for t in range(4):
        a.label(f"L_first_{t}")
        for u in range(4*t, 4*t+4): rec_load(u, T + 4 + 2 * (u & 1))
        a(f"  s_branch L_first_back_{t}")
    a.label("L_allfirst")
    a(f"  s_mov_b32 s{sY}, s{sSo}")
    for r in range(NB + N1, NS): st(r)
    a(f"  s_mov_b32 s{sSo}, s{sY}\n  s_waitcnt vmcnt(0)\n  s_barrier\n{flag3}\n  s_branch L_allfirst_back")
    for g in slowg:
        a.label(f"L_pslow_{g}")
        for u in range(4*g, 4*g+4):
            a(f"""
  s_mov_b64 exec, {s(PMK(u),2)}
  v_cmp_lt_u32 vcc, 63, {v(PRK(u))}
  s_cbranch_vccz L_pskip_{u}
  s_andn2_b64 {s(PMK(u),2)}, {s(PMK(u),2)}, vcc
  s_mov_b64 exec, vcc
  ds_add_rtn_u32 {v(T+1)}, {v(vCtlN)}, {v(vOne)}
  s_waitcnt lgkmcnt(0)
  v_lshlrev_b32 {v(T+1)}, 3, {v(T+1)}
  buffer_store_dwordx2 {v(REC[u],2)}, {v(T+1)}, {s(sCAR,4)}, s{sCarW} offen
  s_waitcnt vmcnt(0)""")
            a.label(f"L_pskip_{u}")
        a(f"  s_mov_b64 exec, -1\n  s_branch L_pback_{g}")
    for tag in ("b0", "lp"):
        a.label(f"L_slow_{tag}")
        a(f"  s_mov_b32 s{sX}, 512")
        a.label(f"L_slow_loop_{tag}")
        a(f"""
  v_add_u32 {v(T+1)}, s{sX}, {v(vCarIdx)}
  v_cmp_gt_u32 vcc, s{sCin}, {v(T+1)}
  v_lshlrev_b32 {v(T+1)}, 3, {v(T+1)}
  s_nop 0
  v_cndmask_b32 {v(T+1)}, {v(vOOB)}, {v(T+1)}, vcc
  buffer_load_dwordx2 {v(REC[16],2)}, {v(T+1)}, {s(sCAR,4)}, s{sCarR} offen sc1
  s_waitcnt vmcnt(0)""")
        ins1(16, "0", 0)
        a("  s_waitcnt lgkmcnt(0)")
        ins2(16, "sl" + tag, 0)
        a(f"""
  s_add_u32 s{sX}, s{sX}, 512
  s_cmp_lt_u32 s{sX}, s{sCin}
  s_cbranch_scc1 L_slow_loop_{tag}
  s_waitcnt vmcnt(0)
  s_branch L_slow_back_{tag}""")
    for lab, u, p in rare:
        a.label(f"L_rare_{lab}")
        a(f"""
  s_mov_b64 exec, vcc
  ds_add_rtn_u32 {v(RK[p])}, {v(vCtlN)}, {v(vOne)}
  v_mov_b32 {v(REC[u]+1)}, {v(WW[p])}
  s_waitcnt lgkmcnt(0)
  v_lshlrev_b32 {v(RK[p])}, 3, {v(RK[p])}
  buffer_store_dwordx2 {v(REC[u],2)}, {v(RK[p])}, {s(sCAR,4)}, s{sCarW} offen
  s_andn2_b64 exec, {s(sMk[p],2)}, vcc
  s_branch L_back_{lab}""")
    a.label("L_code_end")
    return NV

def kd(name, nv, ns):
    nv4 = (nv + 3) // 4 * 4
    return f""".amdhsa_kernel {name}
  .amdhsa_next_free_vgpr {nv}
  .amdhsa_next_free_sgpr {ns}
  .amdhsa_accum_offset {nv4}
  .amdhsa_group_segment_fixed_size 0
  .amdhsa_kernarg_size 112
  .amdhsa_user_sgpr_count 2
  .amdhsa_user_sgpr_kernarg_segment_ptr 1
  .amdhsa_system_sgpr_workgroup_id_x 1
  .amdhsa_float_denorm_mode_32 3
.end_amdhsa_kernel
"""

def main():
    out = sys.argv[1]
    ref = open(f"cdna_kernels/{NAME}.s.ref").read().split("\n")
    head = [l for l in ref if l.startswith(";") and "@launch" not in l and "Override" not in l and "grid=ceil" not in l]
    a = Asm()
    a(".amdgcn_target \"amdgcn-amd-amdhsa--gfx950\"\n.text")
    a(f".globl {NAME}_kernel\n.type {NAME}_kernel,@function")
    nv = gen_p2(a)
    errs = a.check()
    for e in errs: print("HAZARD", e)
    txt = "\n".join(head) + "\n"
    kern = f"kernel={NAME}_kernel " if OPT["list"] else ""
    txt += f"; @launch {kern}grid=(256,1,1) block=(512,1,1) lds={P1_LDS}\n"
    if OPT["probe"] >= 0:
        txt += "; @launch kernel=probe_kernel grid=(1,1,1) block=(64,1,1) lds=0\n"
        a(f"""
.p2align 8
probe_kernel:
  s_cmp_ge_u32 s2, 1
  s_cbranch_scc1 P_end
  s_load_dwordx2 s[4:5], s[0:1], 96
  s_waitcnt lgkmcnt(0)
  s_load_dwordx8 s[8:15], s[4:5], 0
  s_memrealtime s[16:17]
  s_waitcnt lgkmcnt(0)
  s_not_b32 s8, s8
  s_sub_u32 s20, s{8 + OPT['probe']}, s8
  {"s_lshr_b32 s20, s%d, 4" % (8 + OPT['probe']) if OPT['probe'] in (5, 7) else "s_nop 0"}
  s_min_u32 s20, s20, 20000
P_loop:
  s_memrealtime s[18:19]
  s_waitcnt lgkmcnt(0)
  s_sub_u32 s21, s18, s16
  s_cmp_lt_u32 s21, s20
  s_cbranch_scc1 P_loop
P_end:
  s_endpgm""")
    txt += a.text()
    txt += ".section .rodata,\"a\"\n.p2align 6\n" + kd(NAME + "_kernel", 256, 102) + (".p2align 6\n" + kd("probe_kernel", 8, 32) if OPT["probe"] >= 0 else "")
    open(out, "w").write(txt)
    print("vgprs p2:", nv, "lines:", len(a.lines), "hazards:", len(errs))

main()
```

```python
import sys, os
sys.path.insert(0, os.path.dirname(__file__))
from asmlib import Asm

NAME = "gather_scatter__molecular_angular_gemnet__graph"
E = 400000
NCH, CH = 250, 25600
EB = 1568
K = 6
MJ = 2739138
TABOFF = 0x2800000
CAROFF = 0x3000000
CARCAP = 9216
CARLIST = CARCAP * 8
STAMPOFF = 0x6000000
FLGOFF = 0x2c00000
OPT = dict(abl_rbf=0, tg=-1, wall=0, cpf=3, wsoff=0, mq=11, rot=0, pf0=0, a0=2, ag=2, early=0, adj=1, probe=-1, tlb=0, cut=-1, opol=1, mpol=0, tq=3, fq=10, keff=6, jid=0, fprio=0x3ffff, lprio=0x3fff, napt=8, st0=1, stp=1, rb0=2, nap=8, list=1, nb=7, n1=2, n3=4, nl0=8, smask=0x555, arr=10, spin=60000, rec_pol=2, stamp=0, itcap=64, ld_nt=7, st_pol=0, mtouch=0, la=4, apre=2, wmain=70000, b5=0, lim=24, nb2=7, ins0=4,
           abl_mfma=0, abl_s=0, abl_cos=0, abl_g=0)
for a in sys.argv[2:]:
    k, v = a.split("=")
    assert k in OPT, k
    OPT[k] = int(v, 0)
MK = -(-(1 << 32) // OPT["wmain"])
assert (399999 * MK) >> 32 <= 5

RPOL = ('', ' nt', ' sc1', ' sc0 sc1')[OPT['rec_pol']]

POL = ('', ' nt', ' sc1', ' sc0 sc1')

def v(i, n=1):
    return f"v{i}" if n == 1 else f"v[{i}:{i+n-1}]"
def s(i, n=1):
    return f"s{i}" if n == 1 else f"s[{i}:{i+n-1}]"

def stamp(a, vreg, lane, op="s_memtime"):
    if lane == OPT["cut"]: a("  s_endpgm")
    if not OPT["stamp"]: return
    if OPT["stamp"] == 2:
        mp = {62: (0, 1), 42: (1, 0), 45: (2, 0), 1: (3, 0), 11: (4, 0), 63: (6, 0)}
        if lane == 0:
            a("  s_memtime s[88:89]\n  s_waitcnt lgkmcnt(0)\n  s_mov_b32 s91, s88")
        if lane in (11, 7):
            a(f"  s_memtime s[88:89]\n  s_waitcnt lgkmcnt(0)\n  s_sub_u32 s88, s88, s91\n  v_writelane_b32 v{vreg}, s88, {5 if lane == 11 else 7}")
        if lane not in mp: return
        l, inv = mp[lane]
        a(f"  s_memrealtime s[88:89]\n  s_waitcnt lgkmcnt(0)")
        if inv: a("  s_not_b32 s88, s88")
        a(f"  v_writelane_b32 v{vreg}, s88, {l}")
        return
    a(f"  {op} s[88:89]\n  s_waitcnt lgkmcnt(0)\n  v_writelane_b32 v{vreg}, s88, {lane}")
def stamp_out(a, vreg, wslo, nwaves, base, tmp):
    if not OPT["stamp"]: return
    if OPT["stamp"] == 2:
        back = 512
        a(f"""
  s_load_dwordx2 s[90:91], s[0:1], 96
  s_waitcnt lgkmcnt(0)
  s_add_u32 s92, s90, {back}
  s_addc_u32 s93, s91, 0
  s_mov_b32 s94, 32
  s_mov_b32 s95, 0x20000
  v_lshlrev_b32 v{tmp}, 2, v0
  buffer_atomic_umax v{vreg}, v{tmp}, s[92:95], 0 offen""")
        return
    a(f"  s_mul_i32 s88, s2, {nwaves*256}\n  s_add_u32 s88, s88, {base}")
    srd(a, 92, wslo, wslo+1, "s88", nwaves*256)
    a(f"  v_lshlrev_b32 v{tmp}, 2, v0\n  buffer_store_dword v{vreg}, v{tmp}, s[92:95], 0 offen")

def srd(a, d, lo, hi, add, size):
    if add is None:
        a(f"  s_mov_b32 s{d}, s{lo}\n  s_mov_b32 s{d+1}, s{hi}")
    else:
        a(f"  s_add_u32 s{d}, s{lo}, {add}\n  s_addc_u32 s{d+1}, s{hi}, 0")
    a(f"  s_mov_b32 s{d+2}, {size}\n  s_mov_b32 s{d+3}, 0x20000")

P1_CNT, P1_SENT, P1_TMP, P1_REC = 0, 6144, 6160, 6272
P1_LDS = P1_REC + CH * 6

TS = 264
BUFSZ = 200 * TS
S_OFF = 13 * 8192
CTL = S_OFF + 8192
RB_OFF = CTL + 128
P2_LDS = RB_OFF + 8 * 3584
D = 5
NT = 25

class RA:
    def __init__(self, start): self.n = start
    def __call__(self, k=1, al=1):
        self.n = (self.n + al - 1) // al * al
        r = self.n; self.n += k
        return r

def gen_p2(a):
    ra = RA(1)
    vSlot, vHalf, vFreq, vSst, vSrd, vI6, vI1, vI4 = (ra() for _ in range(8))
    vRd, vCntA, vOne, vOOB, vCarOff, vCarIdx, v264, vMsk, vCtlN = (ra() for _ in range(9))
    vZ = ra(2, 2)
    Q = ra(6, 4)
    sA, nA, cb, rem, rtot, vA6, vB6, vR0, vRT4 = (ra() for _ in range(9))
    vCnt = ra()
    Wa = ra(4, 4); Wb = ra(4, 4)
    RING = [ra(4, 4) for _ in range(D)]
    Da = ra(4, 4); Db = ra(4, 4); P = ra(4, 4); Sf = ra(4, 4)
    ACC = [ra(4, 4) for _ in range(NT)]
    REC = [ra(2, 4 if i == 0 else 2) for i in range(17)]
    RP = [ra(2, 2), ra(2, 2)]
    T = ra(10, 2)
    TA = [ra(), ra()]; RK = [ra(), ra()]
    WS0 = ra(2, 2); WS1 = ra(2, 2); WR = ra(2, 2); WUP = ra(2, 2)
    CC = [ra() for _ in range(D)]; SA = [ra() for _ in range(D)]
    WW = [ra(), ra()]
    assert ra.n <= 252, ra.n
    NV = ra.n
    sM = 4; sREC = 8; sCAR = 12; sTAB = 16; sOUT = 20; sDIST = 24; sMW = 28
    sJ, sW, sIt, sThr, sIns, sCarW, sCarR, sRb, sCin, sX, sFl, sEb = range(32, 44)
    sCnt = [44, 45]
    sWS = 46
    sPM = 72
    sMk = [72, 74]; sT = 76; sC10 = 78; sCl2 = 80
    sEb2 = 3
    rare = []

    O, I, R, A = 36, 88, 140, 192
    PT = 218
    vFlg, vDum, vTab, vWo, vTwo = range(240, 245)
    vL8, vL4, vSix = WS0 + 1, WS1 + 1, WR + 1
    vL128 = 253
    vL16 = WW[0]
    rDist, rSbf, rUp, rDown, rRbf = A + 4, A + 6, A + 8, A + 10, A + 12
    RBK = [sA, nA, rem, rtot, vA6, vB6, vR0, vRT4, vCnt, 86, 87, 190, 191]
    WDK = [248, 249, WW[1], 217]
    assert Wa == 36 and T == PT
    vSent = vCnt
    sIO, sII, sAN, sMT, sTW, sDBG = 4, 8, 12, 16, 20, 24
    sFLG, sRW = 92, 96
    sMJ, sMK, sNEB, sB5, sO4, sO2 = range(80, 86)
    sY, sSo = 100, 101
    nto, nti, nta = (" nt" if OPT["ld_nt"] >> b & 1 else "" for b in range(3))
    NR = 13
    nrec = lambda q: 4 if q < 12 else 2
    vm = []
    def ld_pair(q):
        if q < 12:
            a(f"  buffer_load_dwordx4 {v(O+4*q,4)}, {v(vL16)}, {s(sIO,4)}, s{sO4} offen{nto}")
            a(f"  buffer_load_dwordx4 {v(I+4*q,4)}, {v(vL16)}, {s(sII,4)}, s{sO4} offen{nti}")
            a(f"  s_add_u32 s{sO4}, s{sO4}, 8192")
        else:
            a(f"  buffer_load_dwordx2 {v(O+48,2)}, {v(vL8)}, {s(sIO,4)}, s{sO4} offen{nto}")
            a(f"  buffer_load_dwordx2 {v(I+48,2)}, {v(vL8)}, {s(sII,4)}, s{sO4} offen{nti}")
        vm.extend([("o", q), ("p", q)])
    def ld_ang(q):
        if q < 12:
            a(f"  buffer_load_dwordx2 {v(A+2*q,2)}, {v(vL8)}, {s(sAN,4)}, s{sO2} offen{nta}")
            a(f"  s_add_u32 s{sO2}, s{sO2}, 4096")
        else: a(f"  buffer_load_dword {v(A+24)}, {v(vL4)}, {s(sAN,4)}, s{sO2} offen{nta}")
        vm.append(("a", q))
    def wait_for(x):
        a(f"  s_waitcnt vmcnt({len(vm) - 1 - vm.index(x)})")
    def poll(tag, load, cond, nap=4):
        a(f"  s_mov_b32 s{sY}, {OPT['spin']}")
        a.label(f"L_poll_{tag}")
        a(load)
        a("  s_waitcnt vmcnt(0)")
        a(cond)
        a(f"""
  s_cbranch_vccz L_polled_{tag}
  s_sleep {nap}
  s_sub_u32 s{sY}, s{sY}, 1
  s_cbranch_scc0 L_poll_{tag}""")
        a.label(f"L_polled_{tag}")

    a(".p2align 8")
    a.label(NAME + "_kernel")
    ncp = [0]
    def cpf(bit, q, first=False):
        if not OPT["cpf"] >> bit & 1: return False
        ncp[0] += 1
        a(f"  s_getpc_b64 s[{q}:{q+1}]")
        a.label(f"L_cp{ncp[0]}")
        a(f"""
  s_sub_u32 s{q}, s{q}, L_cp{ncp[0]}-{NAME}_kernel
  s_subb_u32 s{q+1}, s{q+1}, 0
  s_mov_b32 s{q+2}, L_code_end-{NAME}_kernel
  s_mov_b32 s{q+3}, 0x20000""")
        if first:
            a(f"""
  s_and_b32 s{sY}, s2, 0xf8
  s_lshl_b32 s{sY}, s{sY}, 4
  v_lshl_add_u32 v255, v0, 12, s{sY}""")
        a(f"  buffer_load_dword v254, v255, s[{q}:{q+3}], 0 offen")
        return True
    a(f"""
  s_cmp_ge_u32 s2, 256
  s_cbranch_scc1 L_end
  s_load_dwordx16 s[48:63], s[0:1], 0
  s_load_dwordx4 s[44:47], s[0:1], 96
  s_load_dwordx8 s[64:71], s[0:1], 64""")
    cpf(0, 28, True)
    a(f"""
  v_lshlrev_b32 {v(vL16)}, 4, v0
  s_min_u32 s{sY}, s2, {NCH-1}
  s_mul_i32 s{sX}, s{sY}, {CH*4}
  s_cmp_lt_u32 s2, {NCH}
  s_cselect_b32 s{sFl}, {CH*2}, 0
  s_lshl_b32 s{sIO+2}, s{sFl}, 1
  s_mov_b32 s{sII+2}, s{sIO+2}
  s_mov_b32 s{sIO+3}, 0x20000
  s_mov_b32 s{sII+3}, 0x20000
  s_mov_b32 s{sO4}, 0
  v_mov_b64 {v(PT,2)}, 0
  v_mov_b64 {v(PT+2,2)}, 0
  s_mov_b32 s{sO2}, 0
  ds_write_b128 {v(vL16)}, {v(PT,4)}
  v_lshrrev_b32 {v(T+8)}, 6, v0
  s_and_b32 s{sJ}, s2, 7
  s_lshl_b32 s{sJ}, s{sJ}, 5
  s_lshr_b32 s{sEb}, s2, 3
  s_add_u32 s{sJ}, s{sJ}, s{sEb}
  v_readfirstlane_b32 s{sW}, {v(T+8)}
  v_and_b32 {v(T+7)}, 63, v0
  v_lshlrev_b32 {v(T+6)}, 3, {v(T+7)}
  v_lshlrev_b32 {v(T+7)}, 2, {v(T+7)}
  s_mul_i32 s{sEb}, s{sJ}, {EB*2}
  s_mul_i32 s{sRb}, s{sW}, 400
  s_add_u32 s{sEb}, s{sEb}, s{sRb}
  s_waitcnt lgkmcnt(0)""")
    if OPT["stamp"] == 2: a("  v_mov_b32 v252, 0\n  s_nop 1")
    stamp(a, 252, 0); stamp(a, 252, 62, "s_memrealtime")
    a(f"""
  s_add_u32 s{sIO}, s52, s{sX}
  s_addc_u32 s{sIO+1}, s53, 0
  s_add_u32 s{sII}, s50, s{sX}
  s_addc_u32 s{sII+1}, s51, 0""")
    ld_pair(0)
    if OPT["wsoff"]: a(f"  s_add_u32 s{sWS}, s{sWS}, {OPT['wsoff'] << 20}\n  s_addc_u32 s{sWS+1}, s{sWS+1}, 0")
    srd(a, 28, 54, 55, None, E * 2)
    a(f"""
  buffer_load_dwordx2 {v(rDist,2)}, {v(T+6)}, s[28:31], s{sEb} offen
  global_load_dwordx2 {v(rSbf,2)}, {v(T+6)}, s[64:65]
  global_load_dwordx2 {v(rUp,2)}, {v(T+6)}, s[68:69]
  global_load_dwordx2 {v(rDown,2)}, {v(T+6)}, s[66:67]
  global_load_dword {v(rRbf)}, {v(T+7)}, s[62:63]""")
    vm.extend([("s", i) for i in range(5)])
    ld_pair(1)
    a("  s_barrier")
    LA = OPT["la"]
    for q in range(2, LA): ld_pair(q)
    a(f"  s_lshr_b32 s{sX}, s{sX}, 1")
    srd(a, sAN, 56, 57, f"s{sX}", f"s{sFl}")
    srd(a, sMT, 48, 49, f"s{sX}", f"s{sFl}")
    a(f"  s_mul_i32 s{sX}, s{sY}, {CH*6}\n  s_mul_i32 s{sFl}, s{sFl}, 3")
    srd(a, sRW, sWS, sWS+1, f"s{sX}", f"s{sFl}")
    srd(a, sTW, sWS, sWS+1, TABOFF, 256 * 8192)
    srd(a, sFLG, sWS, sWS+1, FLGOFF, 8192)
    srd(a, sDBG, 44, 45, None, 256)
    a(f"""
  s_lshl_b32 s{sX}, s2, 2
  v_lshl_add_u32 {v(vFlg)}, v0, 10, s{sX}
  s_cmp_lt_u32 s2, {NCH}
  s_cselect_b32 s{sX}, 0, 4
  v_mov_b32 {v(vDum)}, s{sX}
  buffer_store_dword {v(vDum)}, {v(vFlg)}, {s(sFLG,4)}, 0 offen sc1
  s_lshl_b32 s{sX}, s{sX}, 20
  v_or_b32 {v(vFlg)}, s{sX}, {v(vFlg)}
  s_load_dword s{sCin}, s[60:61], 0
  s_load_dwordx4 s[56:59], s[58:59], 0
  v_lshlrev_b32 {v(vL8)}, 3, v0
  v_lshlrev_b32 {v(vL4)}, 2, v0
  {'v_mov_b32 %s, %d' % (v(vL128), E//8) if OPT['rot'] == 2 else 'v_lshlrev_b32 %s, 7, v0' % v(vL128)}
  v_mov_b32 {v(vSix)}, 6
  v_mov_b32 {v(vTwo)}, 2
  s_mov_b32 s{sMJ}, {MJ}
  s_mov_b32 s{sMK}, {MK}
  s_mov_b32 s{sNEB}, {-EB & 0xffffffff}
  s_mov_b32 s{sB5}, {(-(E//8) & 0xffffffff) if OPT['rot'] else OPT['b5']}
  v_lshrrev_b32 {v(T)}, 6, v0
  v_and_b32 {v(T+2)}, 15, v0
  v_bfe_u32 {v(T+3)}, v0, 5, 1
  v_lshlrev_b32 {v(vHalf)}, 4, {v(T+3)}
  v_lshl_add_u32 {v(cb)}, {v(T)}, 5, {v(vHalf)}
  v_add_u32 {v(cb)}, {v(cb)}, {v(T+2)}
  v_lshlrev_b32 {v(vTab)}, 13, {v(cb)}
  v_and_b32 {v(T+1)}, 63, v0
  v_and_b32 {v(vSlot)}, 31, v0
  v_mov_b64 {v(vZ,2)}, 0
  v_mov_b32 {v(v264)}, {TS}
  v_mov_b32 {v(vCtlN)}, {CTL}
  s_lshl_b32 s{sX}, s{sW}, 10
  s_add_u32 s{sX}, s{sX}, {S_OFF}
  v_lshl_add_u32 {v(vSrd)}, {v(T+1)}, 4, s{sX}
  v_bfe_u32 {v(T+6)}, v0, 2, 2
  v_lshlrev_b32 {v(vSst)}, 8, {v(T+6)}
  v_lshl_add_u32 {v(vSst)}, {v(T+3)}, 7, {v(vSst)}
  v_bfe_u32 {v(T+6)}, v0, 4, 1
  v_lshl_add_u32 {v(vSst)}, {v(T+6)}, 3, {v(vSst)}
  v_and_b32 {v(T+6)}, 3, v0
  v_lshl_add_u32 {v(vSst)}, {v(T+6)}, 1, {v(vSst)}
  v_add_u32 {v(vSst)}, s{sX}, {v(vSst)}
  v_mov_b32 {v(vOne)}, 1
  v_mov_b32 {v(vOOB)}, 0x80000000
  v_mov_b32 {v(vMsk)}, 0x7ffffffc
  v_mul_u32_u24 {v(vI6)}, 6, {v(vSlot)}
  v_add_u32 {v(vI1)}, 1, {v(vSlot)}
  v_lshlrev_b32 {v(vI4)}, 2, {v(vI1)}
  v_mov_b32 {v(T+6)}, {CH}
  v_mul_u32_u24 {v(cb)}, {v(cb)}, {v(T+6)}
  s_mul_i32 s{sX}, s{sW}, {NT*TS}
  s_add_u32 s{sX}, s{sX}, {BUFSZ}
  v_lshl_add_u32 {v(vRd)}, {v(vSlot)}, 3, s{sX}""")
    sOdd, s70 = 86, 84
    if OPT["adj"]:
        a(f"""
  v_bfe_u32 {v(vSlot)}, v0, 1, 5
  v_lshl_add_u32 {v(vRd)}, {v(vSlot)}, 3, s{sX}
  v_and_b32 {v(T+3)}, 1, v0
  v_lshlrev_b32 {v(vHalf)}, 4, {v(T+3)}
  s_lshl_b32 s{sY}, s{sW}, 10
  s_add_u32 s{sY}, s{sY}, {S_OFF}
  v_bfe_u32 {v(T+6)}, v0, 2, 2
  v_lshlrev_b32 {v(vSst)}, 8, {v(T+6)}
  v_mul_u32_u24 {v(T+6)}, 0xc0, {v(T+3)}
  v_add_u32 {v(vSst)}, {v(vSst)}, {v(T+6)}
  v_bfe_u32 {v(T+6)}, v0, 4, 1
  v_lshl_add_u32 {v(vSst)}, {v(T+6)}, 3, {v(vSst)}
  v_bfe_u32 {v(T+6)}, v0, 1, 1
  v_lshl_add_u32 {v(vSst)}, {v(T+6)}, 2, {v(vSst)}
  v_bfe_u32 {v(T+6)}, v0, 5, 1
  v_lshl_add_u32 {v(vSst)}, {v(T+6)}, 1, {v(vSst)}
  v_add_u32 {v(vSst)}, s{sY}, {v(vSst)}
  v_bfe_u32 {v(T+6)}, v0, 3, 1
  v_lshlrev_b32 {v(T+6)}, 6, {v(T+6)}
  v_xor_b32 {v(vSrd)}, {v(vSrd)}, {v(T+6)}""")
    a(f"""
  v_min_u32 {v(T+6)}, {NT-1}, {v(T+1)}
  v_mad_u32_u24 {v(vCntA)}, {v(T+6)}, {v(v264)}, s{sX}
  v_sub_u32 {v(vCarIdx)}, 511, v0
  v_lshlrev_b32 {v(vCarOff)}, 3, {v(vCarIdx)}
  v_cmp_eq_u32 vcc, 1, {v(T+3)}
  s_waitcnt lgkmcnt(0)
  s_lshl_b32 s{sX}, s{sCin}, 16
  s_and_b32 s{sCin}, s{sCin}, 0xffff0000
  v_mov_b32 {v(vFreq)}, s{sX}
  v_mov_b32 {v(T+6)}, s{sCin}
  v_cndmask_b32 {v(vFreq)}, {v(vFreq)}, {v(T+6)}, vcc
  s_mov_b32 s{sIt}, -1
  s_mov_b32 s{sIns}, 0
  s_mov_b32 s{sCarW}, 0
  s_mov_b32 s{sCarR}, {CARLIST}
  s_mul_i32 s{sEb}, s{sJ}, {EB}
  s_mul_i32 s{sX}, s{sW}, 200
  s_add_u32 s{sFl}, s{sEb}, {EB}
  s_add_u32 s{sEb}, s{sEb}, s{sX}
  s_add_u32 s{sRb}, s{sEb}, 200
  s_min_u32 s{sRb}, s{sRb}, s{sFl}
  s_min_u32 s{sRb}, s{sRb}, {E}
  s_lshl_b32 s{sRb}, s{sRb}, 5
  s_lshl_b32 s{sEb}, s{sEb}, 5
  s_add_u32 s{sEb2}, s{sEb}, 4096""")

    if OPT["tlb"]:
        sh = OPT["tlb"]
        srd(a, 28, sWS, sWS+1, None, FLGOFF + 8192)
        a(f"  v_lshlrev_b32 v249, {sh}, v0\n  buffer_load_dword v248, v249, s[28:31], 0 offen")
        srd(a, 28, 48, 49, None, E * 32)
        a(f"  buffer_load_dword v248, v249, s[28:31], 0 offen")
        srd(a, 28, 70, 71, None, E * 32)
        a(f"  buffer_load_dword v248, v249, s[28:31], 0 offen")
        vm.extend([("tlb", i) for i in range(3)])
    a(f"""
  s_cmp_ge_u32 s2, {NCH}
  s_cbranch_scc1 L_nochunk1""")
    vm.append(("flg", 0))
    arrive = f"""
  s_and_b32 s{sY}, s2, 15
  s_lshl_b32 s{sY}, s{sY}, 4
  v_lshlrev_b32 {v(PT)}, 8, v0
  buffer_atomic_add {v(vOne)}, {v(PT)}, {s(sDBG,4)}, s{sY} offen"""
    def hist(idx):
        if OPT["b5"]:
            for x, i in enumerate(idx): a(f"  v_cmp_le_u32 {s(72+2*x,2)}, s{sB5}, {v(I+i)}")
        for x, i in enumerate(idx): a(f"  v_mul_hi_u32_u24 {v(PT+x)}, s{sMJ}, {v(O+i)}")
        if OPT["rot"] == 2:
            for x, i in enumerate(idx): a(f"  v_lshrrev_b32 {v(PT+4+x)}, 5, {v(PT+x)}")
            for x, i in enumerate(idx): a(f"  v_mad_i32_i24 {v(PT+4+x)}, {v(PT+4+x)}, s{sB5}, {v(I+i)}")
            for x, i in enumerate(idx): a(f"  v_cmp_gt_u32 {s(72+2*x,2)}, {v(vL128)}, {v(PT+4+x)}")
            for x, i in enumerate(idx): a(f"  v_ashrrev_i32 {v(PT+4+x)}, 31, {v(PT+4+x)}")
            for x, i in enumerate(idx): a(f"  v_and_b32 {v(PT+4+x)}, {v(vL128)}, {v(PT+4+x)}")
            for x, i in enumerate(idx): a(f"  v_add3_u32 {v(PT+4+x)}, {v(PT+4+x)}, s{sB5}, {v(I+i)}")
            for x, i in enumerate(idx): a(f"  v_mul_hi_u32_u24 {v(PT+4+x)}, s{sMK}, {v(PT+4+x)}")
            for x, i in enumerate(idx): a(f"  v_cndmask_b32 {v(PT+4+x)}, {v(PT+4+x)}, 5, {s(72+2*x,2)}")
        elif OPT["rot"]:
            for x, i in enumerate(idx): a(f"  v_lshrrev_b32 {v(PT+4+x)}, 5, {v(PT+x)}")
            for x, i in enumerate(idx): a(f"  v_mad_i32_i24 {v(PT+4+x)}, {v(PT+4+x)}, s{sB5}, {v(I+i)}")
            for x, i in enumerate(idx): a(f"  v_add_u32 {v(PT+8+x)}, {E - E//8}, {v(PT+4+x)}")
            for x, i in enumerate(idx): a(f"  v_add_u32 {v(PT+4+x)}, s{sB5}, {v(PT+4+x)}")
            for x, i in enumerate(idx): a(f"  v_min_u32 {v(PT+4+x)}, {v(PT+4+x)}, {v(PT+8+x)}")
            for x, i in enumerate(idx): a(f"  v_mul_hi_u32_u24 {v(PT+4+x)}, s{sMK}, {v(PT+4+x)}")
        else:
            for x, i in enumerate(idx): a(f"  v_mul_hi_u32_u24 {v(PT+4+x)}, s{sMK}, {v(I+i)}")
        if OPT["b5"]:
            for x, i in enumerate(idx): a(f"  v_cndmask_b32 {v(PT+4+x)}, {v(PT+4+x)}, 5, {s(72+2*x,2)}")
        for x, i in enumerate(idx): a(f"  v_mad_i32_i24 {v(PT+8+x)}, {v(PT+x)}, s{sNEB}, {v(O+i)}")
        for x, i in enumerate(idx): a(f"  v_lshl_add_u32 {v(O+i)}, {v(PT+4+x)}, 8, {v(PT+x)}")
        for x, i in enumerate(idx): a(f"  v_lshlrev_b32 {v(O+i)}, 2, {v(O+i)}")
        for x, i in enumerate(idx): a(f"  ds_add_rtn_u32 {v(R+i)}, {v(O+i)}, {v(vOne)}")
        for x, i in enumerate(idx): a(f"  v_lshl_or_b32 {v(I+i)}, {v(PT+8+x)}, 20, {v(I+i)}")
        for x, i in enumerate(idx): a(f"  v_or_b32 {v(I+i)}, 0x80000000, {v(I+i)}")
    def prep(piece):
        Z = R + 24
        aW, aD, aS, aR, aN, gq = Z, Z + 1, Z + 2, Z + 3, Z + 4, Z + 5
        CEN = Z + 6; H = Z + 8; Y = Z + 16
        if piece == 0:
            a(f"""
  s_lshl_b32 s{sX}, s{sW}, 12
  s_add_u32 s{sX}, s{sX}, 8192
  v_and_b32 {v(gq)}, 63, v0
  v_lshl_add_u32 {v(aW)}, {v(gq)}, 3, s{sX}
  v_lshl_add_u32 {v(gq)}, {v(gq)}, 2, s{sX}
  ds_write_b64 {v(aW)}, {v(rDist,2)}
  ds_write_b64 {v(aW)}, {v(rSbf,2)} offset:512
  ds_write_b64 {v(aW)}, {v(rUp,2)} offset:1024
  ds_write_b32 {v(gq)}, {v(rRbf)} offset:1536
  ds_write_b64 {v(aW)}, {v(rDown,2)} offset:2048
  v_and_b32 {v(aD)}, 15, v0
  v_bfe_u32 {v(gq)}, v0, 4, 2
  v_lshl_add_u32 {v(aD)}, {v(aD)}, 1, s{sX}
  v_lshl_add_u32 {v(aS)}, {v(gq)}, 7, {v(aD)}
  v_lshl_add_u32 {v(aR)}, {v(gq)}, 6, {v(aD)}
  v_bfe_u32 {v(aN)}, v0, 5, 1
  v_lshl_add_u32 {v(aN)}, {v(aN)}, {7 if OPT["adj"] else 8}, {v(aD)}
  ds_read_u16 {v(WS0)}, {v(aS)} offset:512
  ds_read_u16 {v(WS1)}, {v(aS)} offset:{512+32}
  ds_read_u16 {v(Y)}, {v(aS)} offset:{512+64}
  ds_read_u16 {v(Y+1)}, {v(aS)} offset:{512+96}
  ds_read_u16 {v(WUP)}, {v(aS)} offset:1024
  ds_read_u16 {v(Y+2)}, {v(aS)} offset:{1024+32}
  ds_read_u16 {v(WUP+1)}, {v(aS)} offset:{1024+64}
  ds_read_u16 {v(Y+3)}, {v(aS)} offset:{1024+96}
  ds_read_u16 {v(WR)}, {v(aR)} offset:1536
  ds_read_u16 {v(Y+4)}, {v(aR)} offset:{1536+32}""")
            for r in range(8): a(f"  ds_read_u16 {v(WDK[r//2] if r % 2 == 0 else H + r//2)}, {v(aN)} offset:{2048 + (((r&3) + 8*(r>>2)) if OPT['adj'] else r)*32}")
            for p in range(13): a(f"  ds_read_u16 {v(RBK[p])}, {v(aD)} offset:{p*32}")
            return
        if piece == 1:
            a(f"""
  v_mov_b32 {v(CEN+1)}, s56
  v_cmp_eq_u32 vcc, 1, {v(gq)}
  v_mov_b32 {v(CEN)}, s57
  v_cmp_eq_u32 {s(sT,2)}, 2, {v(gq)}
  v_cndmask_b32 {v(CEN+1)}, {v(CEN+1)}, {v(CEN)}, vcc
  v_mov_b32 {v(CEN)}, s58
  v_cmp_eq_u32 vcc, 3, {v(gq)}
  v_cndmask_b32 {v(CEN+1)}, {v(CEN+1)}, {v(CEN)}, {s(sT,2)}
  v_mov_b32 {v(CEN)}, s59
  v_cndmask_b32 {v(CEN+1)}, {v(CEN+1)}, {v(CEN)}, vcc
  v_lshlrev_b32 {v(CEN)}, 16, {v(CEN+1)}
  v_and_b32 {v(CEN+1)}, 0xffff0000, {v(CEN+1)}
  s_mov_b32 s56, 0xc1200000
  s_mov_b32 s57, 0xc1200000
  s_mov_b32 s58, 0x3fb8aa3b
  s_mov_b32 s59, 0x3fb8aa3b
  s_waitcnt lgkmcnt(0)
  v_lshl_or_b32 {v(WS0)}, {v(Y)}, 16, {v(WS0)}
  v_lshl_or_b32 {v(WS1)}, {v(Y+1)}, 16, {v(WS1)}
  v_lshl_or_b32 {v(WUP)}, {v(Y+2)}, 16, {v(WUP)}
  v_lshl_or_b32 {v(WUP+1)}, {v(Y+3)}, 16, {v(WUP+1)}
  v_lshl_or_b32 {v(WR)}, {v(Y+4)}, 16, {v(WR)}""")
            for r in range(4): a(f"  v_lshl_or_b32 {v(WDK[r])}, {v(H+r)}, 16, {v(WDK[r])}")
        ps = ([0,1,2], [3,4,5,6,7], [8,9,10,11,12])[piece - 1]
        tt = {p: H + 2 * (p - ps[0]) for p in ps}
        def rnd():
            for p in ps: a(f"  v_cvt_pk_bf16_f32 {v(tt[p])}, 0, {v(tt[p])}\n  v_cvt_pk_bf16_f32 {v(tt[p]+1)}, 0, {v(tt[p]+1)}")
        for p in ps: a(f"  v_lshlrev_b32 {v(tt[p])}, 16, {v(RBK[p])}")
        for p in ps: a(f"  v_pk_add_f32 {v(tt[p],2)}, {v(tt[p],2)}, {v(CEN,2)} op_sel_hi:[0,1] neg_lo:[0,1] neg_hi:[0,1]")
        rnd()
        for p in ps: a(f"  v_pk_mul_f32 {v(tt[p],2)}, {v(tt[p],2)}, {v(tt[p],2)}")
        rnd()
        for p in ps: a(f"  v_pk_mul_f32 {v(tt[p],2)}, {v(tt[p],2)}, s[56:57]")
        rnd()
        for p in ps: a(f"  v_pk_mul_f32 {v(tt[p],2)}, {v(tt[p],2)}, s[58:59]")
        for p in ps: a(f"  v_exp_f32 {v(tt[p])}, {v(tt[p])}\n  v_exp_f32 {v(tt[p]+1)}, {v(tt[p]+1)}")
        for p in ps: a(f"  v_cvt_pk_bf16_f32 {v(RBK[p])}, {v(tt[p])}, {v(tt[p]+1)}")
    na = 0
    for q in range(NR):
        wait_for(("p", q))
        if q == 0: stamp(a, 252, 40)
        if q == LA:
            a(arrive); vm.append(("arr", 0))
        if OPT["mtouch"] == 3 and q == OPT["mq"]:
            a(f"  buffer_load_dword v244, {v(vL128)}, {s(sMT,4)}, 0 offen"); vm.append(("m", 0))
        if q + LA < NR: ld_pair(q + LA)
        else:
            for _ in range(2):
                if na < OPT["apre"]: ld_ang(na); na += 1
        hist(list(range(4*q, 4*q + nrec(q))))
        if 1 <= q <= 4: prep(q - 1)
    stamp(a, 252, 41)
    X = v(PT+4)
    PR = A + 4
    assert OPT["apre"] <= 2
    a(f"""
  v_and_b32 {v(PT+8)}, 0x3f0, {v(vL16)}
  v_lshrrev_b32 {v(PT+12)}, 1, v0
  v_and_b32 {v(PT+13)}, 1, v0
  v_lshlrev_b32 {v(PT+12)}, 2, {v(PT+12)}
  v_lshl_add_u32 {v(PT+13)}, {v(PT+13)}, 12, {v(PT+12)}
  s_waitcnt lgkmcnt(0)
  s_barrier
  s_cmp_ge_u32 s{sW}, {K}
  s_cbranch_scc1 L_bin_s2
  ds_read_b128 {v(PT,4)}, {v(vL16)}""")
    for r in range(K - 1): a(f"  ds_read_b128 {v(PR+4*r,4)}, {v(PT+8)} offset:{r*1024}")
    for r in range(K - 1): a(f"  s_cmp_gt_u32 s{sW}, {r}\n  s_cselect_b32 s{72+r}, 1, 0")
    a(f"""
  s_waitcnt lgkmcnt({K-1})
  v_add_u32 {v(PT+5)}, {v(PT)}, {v(PT+1)}
  v_add_u32 {v(PT+6)}, {v(PT+5)}, {v(PT+2)}
  v_add_u32 {v(PT+7)}, {v(PT+6)}, {v(PT+3)}""")
    for r in range(K - 1):
        a(f"""
  s_waitcnt lgkmcnt({K-2-r})
  v_add3_u32 {v(PR+4*r)}, {v(PR+4*r)}, {v(PR+4*r+1)}, {v(PR+4*r+2)}
  v_add_u32 {v(PR+4*r)}, {v(PR+4*r)}, {v(PR+4*r+3)}""")
        if r == 0: a(f"  v_mul_u32_u24 {v(PT+9)}, s72, {v(PR)}")
        else: a(f"  v_mad_u32_u24 {v(PT+9)}, {v(PR+4*r)}, s{72+r}, {v(PT+9)}")
    a(f"  v_lshl_or_b32 {X}, {v(PT+9)}, 16, {v(PT+7)}")
    for sh in (1, 2, 4, 8):
        a(f"  s_nop 1\n  v_add_u32_dpp {X}, {X}, {X} row_shr:{sh} row_mask:0xf bank_mask:0xf bound_ctrl:0")
    a(f"  s_nop 1\n  v_add_u32_dpp {X}, {X}, {X} row_bcast:15 row_mask:0xa bank_mask:0xf")
    a(f"  s_nop 1\n  v_add_u32_dpp {X}, {X}, {X} row_bcast:31 row_mask:0xc bank_mask:0xf")
    a(f"""
  s_nop 0
  v_readlane_b32 s{sY}, {X}, 63
  v_sub_u32 {X}, {X}, {v(PT+7)}
  s_lshr_b32 s{sY}, s{sY}, 16
  v_add_u32 {X}, s{sY}, {X}
  v_add_u32 {v(PT+7)}, {X}, {v(PT+6)}
  v_add_u32 {v(PT+6)}, {X}, {v(PT+5)}
  v_add_u32 {v(PT+5)}, {X}, {v(PT)}
  v_lshl_or_b32 {v(PT)}, {X}, 16, {v(PT)}
  v_lshl_or_b32 {v(PT+1)}, {v(PT+5)}, 16, {v(PT+1)}
  v_lshl_or_b32 {v(PT+2)}, {v(PT+6)}, 16, {v(PT+2)}
  v_lshl_or_b32 {v(PT+3)}, {v(PT+7)}, 16, {v(PT+3)}
  ds_write_b128 {v(vL16)}, {v(PT,4)}
  s_waitcnt lgkmcnt(0)""")
    a.label("L_bin_s2")
    a(f"  s_lshl_b32 s{sY}, s2, 13\n  s_barrier")
    stamp(a, 252, 42)
    TB = PT + 8
    for k in range(4): a(f"  ds_read_b32 {v(TB+k)}, {v(PT+13)} offset:{k*1024}")
    NB = OPT["nb"]
    vDa, vDv, vRa = 245, 246, 247
    lda = f"  buffer_load_dword {v(vDv)}, {v(vDa)}, {s(sDBG,4)}, 0 offen sc1"
    cda = f"  v_cmp_gt_u32 vcc, 16, {v(vDv)}"
    ada = f"""
  s_lshl_b32 s{sX}, s{sW}, 16
  v_and_b32 {v(vDa)}, 15, v0
  v_lshl_add_u32 {v(vDa)}, {v(vDa)}, 4, s{sX}"""
    NRD = 15
    for i in range(10): a(f"  ds_read_u16 {v(O+i)}, {v(O+i)} offset:2")
    a("  s_waitcnt lgkmcnt(10)")
    for k in range(4): a(f"  v_alignbit_b32 {v(TB+k)}, {v(TB+k)}, {v(TB+k)}, 16")
    a(f"  buffer_store_dwordx4 {v(TB,4)}, {v(vL16)}, {s(sTW,4)}, s{sY} offen sc1")
    vm.append(("tab", 0))
    for i in range(10, NRD): a(f"  ds_read_u16 {v(O+i)}, {v(O+i)} offset:2")
    for _ in range(OPT["a0"]):
        if na < NR: ld_ang(na); na += 1
    a(f"  s_mov_b32 s{sB5}, {NB*8192 + 4}\n  s_mov_b32 s{sSo}, 0")
    a(ada)
    a(f"  v_add_u32 {v(vRa)}, {P1_REC}, {v(vL16)}")
    for g in range(10):
        idx = list(range(5*g, 5*g+5))
        if g == OPT["tg"]:
            wait_for(("tab", 0))
            a("  s_barrier")
            a(lda); vm.append(("lda", 0))
            a(f"  buffer_store_dword {v(vOne)}, {v(vFlg)}, {s(sFLG,4)}, 0 offen sc1"); vm.append(("flg", 1))
        for _ in range(OPT["ag"]):
            if na < NR: ld_ang(na); na += 1
        a(f"  s_waitcnt lgkmcnt({10 if OPT['wall'] else min(10, 45 - 5*g)})")
        for i in idx:
            if i + NRD < 50: a(f"  ds_read_u16 {v(O+i+NRD)}, {v(O+i+NRD)} offset:2")
        for i in idx: a(f"  v_add_u32 {v(O+i)}, {v(O+i)}, {v(R+i)}")
        for i in idx: a(f"  v_mad_u32_u24 {v(O+i)}, {v(O+i)}, {v(vSix)}, {v(vTwo)}")
        for x, i in enumerate(idx): a(f"  v_and_b32 {v(PT+x)}, 2, {v(O+i)}")
        for i in idx: a(f"  v_and_b32 {v(R+i)}, -4, {v(O+i)}")
        if OPT["wall"]:
            for i in idx: a(f"  ds_write_b32 {v(R+i)}, {v(I+i)} offset:{P1_REC}")
        for x, i in enumerate(idx): a(f"  v_lshl_add_u32 {v(O+i)}, {v(PT+x)}, 1, {v(O+i)}")
    assert na == NR
    if OPT["mtouch"] == 1:
        a(f"  buffer_load_dword v244, {v(vL128)}, {s(sMT,4)}, 0 offen"); vm.append(("m", 0))
    def put(q, cmp):
        idx = list(range(4*q, 4*q + nrec(q)))
        for x, i in enumerate(idx): a(f"  v_cmp_{cmp}_u32 {s(72+2*x,2)}, s{sB5}, {v(R+i)}")
        for x, i in enumerate(idx):
            op = "ds_write_b16_d16_hi" if (i & 1) else "ds_write_b16"
            a(f"""
  s_mov_b64 exec, {s(72+2*x,2)}
  {"" if OPT["wall"] else "ds_write_b32 %s, %s offset:%d" % (v(R+i), v(I+i), P1_REC)}
  {op} {v(O+i)}, {v(A + i//2)} offset:{P1_REC-2}""")
        a("  s_mov_b64 exec, -1")
    for q in range(NR):
        wait_for(("a", q))
        for r in range(nrec(q) // 2): a(f"  v_and_b32 {v(A+2*q+r)}, 0x7fff7fff, {v(A+2*q+r)}")
        if q == OPT["tq"] and OPT["tg"] < 0:
            assert q >= OPT["apre"]
            a("  s_barrier")
            a(lda); vm.append(("lda", 0))
            a(f"  buffer_store_dword {v(vOne)}, {v(vFlg)}, {s(sFLG,4)}, 0 offen sc1"); vm.append(("flg", 1))
            if OPT["mtouch"] == 2:
                a(f"  buffer_load_dword v244, {v(vL128)}, {s(sMT,4)}, 0 offen"); vm.append(("m", 0))
        put(q, "gt")
    a(f"  ds_read_u16 {v(vWo)}, {v(vZ)} offset:2050")
    a("  s_waitcnt lgkmcnt(0)\n  s_barrier")
    stamp(a, 252, 43)
    a(f"  v_readfirstlane_b32 s{sO2}, {v(vWo)}")
    free = [PT, PT + 4, PT + 8, O, I, R, O + 4, I + 4, R + 4]
    def erd(r): a(f"  ds_read_b128 {v(free[r],4)}, {v(vRa)} offset:{r*8192}")
    def est(r):
        a(f"  buffer_store_dwordx4 {v(free[r],4)}, {v(vL16)}, {s(sRW,4)}, s{sSo} offen sc1\n  s_add_u32 s{sSo}, s{sSo}, 8192")
        vm.append(("st", r))
    assert NB <= 8
    fad = f"""
  v_and_b32 {v(RK[0])}, 63, v0
  v_lshlrev_b32 {v(RK[0])}, 4, {v(RK[0])}
  s_and_b32 s{sCin}, s2, 7
  s_lshl_b32 s{sCin}, s{sCin}, 10"""
    if OPT["wall"]:
        free = [I + 4 * r for r in range(8)]
        for r in range(NB): erd(r)
        a(fad)
        a(f"  s_mov_b32 s{sO4}, 0\n  s_cmp_lg_u32 s{sW}, 0\n  s_cbranch_scc1 L_nofl")
        wait_for(("lda", 0))
        a(cda)
        a(f"  s_cbranch_vccnz L_nofl\n  s_mov_b32 s{sO4}, 1")
        a(f"  buffer_load_dwordx4 {v(PT,4)}, {v(RK[0])}, {s(sFLG,4)}, s{sCin} offen sc1")
        a.label("L_nofl")
        for r in range(3):
            a(f"  s_waitcnt lgkmcnt({NB - 1 - r})")
            est(r)
        a("  s_waitcnt lgkmcnt(0)")
        put(0, "le"); put(1, "le"); put(2, "le")
    else:
        for r in range(3): erd(r)
        for r in range(3):
            a(f"  s_waitcnt lgkmcnt({2 - r})")
            est(r)
        put(0, "le"); put(1, "le")
        for r in range(3, NB): erd(r)
        put(2, "le")
        a("  s_waitcnt lgkmcnt(0)")
    todo = list(range(3, NB))
    fad = f"""
  v_and_b32 {v(RK[0])}, 63, v0
  v_lshlrev_b32 {v(RK[0])}, 4, {v(RK[0])}
  s_and_b32 s{sCin}, s2, 7
  s_lshl_b32 s{sCin}, s{sCin}, 10"""
    for q in range(3, NR):
        if todo: est(todo.pop(0))
        if q == OPT["fq"] and not OPT["wall"]:
            assert q >= 8 and Da == O + 28 and not todo
            a(fad)
            a(f"  s_mov_b32 s{sO4}, 0\n  s_cmp_lg_u32 s{sW}, 0\n  s_cbranch_scc1 L_nofl")
            wait_for(("lda", 0))
            a(cda)
            a(f"  s_cbranch_vccnz L_nofl\n  s_mov_b32 s{sO4}, 1")
            a(f"  buffer_load_dwordx4 {v(Da,4)}, {v(RK[0])}, {s(sFLG,4)}, s{sCin} offen sc1")
            a.label("L_nofl")
        put(q, "le")
    assert not todo
    stamp(a, 252, 44)
    FP = Da
    def flag_load(dst, off): return f"  buffer_load_dwordx4 {v(dst,4)}, {v(off)}, {s(sFLG,4)}, s{sCin if dst == FP else sX} offen sc1"
    def flag_cond(dst, stage): return f"""
  v_min3_u32 {v(dst)}, {v(dst)}, {v(dst+1)}, {v(dst+2)}
  v_min_u32 {v(dst)}, {v(dst)}, {v(dst+3)}
  v_cmp_gt_u32 vcc, {stage}, {v(dst)}"""
    if OPT["wall"]: a(f"  s_cmp_lg_u32 s{sW}, 0\n  s_cbranch_scc1 L_polled_t\n  s_waitcnt vmcnt({NB})")
    else: a(f"  s_waitcnt vmcnt(0)\n  s_cmp_lg_u32 s{sW}, 0\n  s_cbranch_scc1 L_polled_t")
    a(f"  s_cmp_eq_u32 s{sO4}, 0\n  s_cbranch_scc1 L_wait_a")
    a(flag_cond(PT if OPT["wall"] else FP, 1))
    a("  s_cbranch_vccz L_polled_t\n  s_branch L_polled_a")
    a.label("L_nochunk1")
    if 40 <= OPT["cut"] <= 44: a("  s_endpgm")
    a("  s_waitcnt vmcnt(0)")
    a(arrive)
    for piece in range(4): prep(piece)
    a(ada)
    a(fad)
    a(f"  s_mov_b32 s{sO2}, 0\n  s_cmp_lg_u32 s{sW}, 0\n  s_cbranch_scc1 L_polled_t")
    a.label("L_wait_a")
    poll("a", lda, cda, 64)
    poll("t", flag_load(FP, RK[0]), flag_cond(FP, 1), OPT["napt"])
    a(f"""
  s_lshl_b32 s{sX}, s{sJ}, 5
  s_add_u32 s{sX}, s{sX}, {TABOFF}""")
    srd(a, sTAB, sWS, sWS+1, f"s{sX}", (NCH - 1) * 8192 + 32)

    def state_update():
        a(f"""
  v_sub_u32 {v(rem)}, {v(rem)}, {v(rtot)}
  v_lshrrev_b32 {v(T)}, 16, {v(Q)}
  v_and_b32 {v(T+1)}, 0xffff, {v(Q)}
  v_min_u32 {v(vR0)}, 32, {v(nA)}
  v_cmp_ge_u32 vcc, 32, {v(nA)}
  v_sub_u32 {v(T+2)}, 32, {v(vR0)}
  v_add_u32 {v(vB6)}, {v(cb)}, {v(T+1)}
  v_min_u32 {v(T+2)}, {v(T)}, {v(T+2)}
  v_mul_u32_u24 {v(vB6)}, 6, {v(vB6)}
  v_add_u32 {v(rtot)}, {v(vR0)}, {v(T+2)}
  v_mad_i32_i24 {v(vB6)}, {v(vR0)}, -6, {v(vB6)}
  v_lshlrev_b32 {v(vRT4)}, 2, {v(rtot)}
  v_add_u32 {v(vA6)}, {v(cb)}, {v(sA)}
  v_mul_u32_u24 {v(vA6)}, 6, {v(vA6)}""")
    def state_update2():
        a(f"""
  v_add_u32 {v(sA)}, 32, {v(sA)}
  v_subrev_u32 {v(nA)}, 32, {v(nA)}
  v_add_u32 {v(T+1)}, {v(T+1)}, {v(T+2)}
  v_sub_u32 {v(T)}, {v(T)}, {v(T+2)}
  v_cndmask_b32 {v(sA)}, {v(sA)}, {v(T+1)}, vcc
  v_cndmask_b32 {v(nA)}, {v(nA)}, {v(T)}, vcc""")
        for i in range(K - 1):
            a(f"  v_cndmask_b32 {v(Q+i)}, {v(Q+i)}, {v(Q+i+1)}, vcc")
        a(f"  v_cndmask_b32 {v(Q+K-1)}, {v(Q+K-1)}, {v(vZ)}, vcc")
    def set_flag(tag):
        a(f"""
  v_cmp_lt_u32 vcc, 0, {v(rem)}
  s_cbranch_vccz L_noflag_{tag}
  ds_write_b32 {v(vCtlN)}, {v(vOne)} offset:4""")
        a.label(f"L_noflag_{tag}")

    bc = lambda u: f"row_newbcast:{u} row_mask:0xf bank_mask:0xf"
    def rec_load(u, t0):
        a(f"""
  v_sub_co_u32_dpp {v(t0)}, vcc, {v(vR0)}, {v(vI1)} {bc(u)}
  v_add_u32_dpp {v(t0)}, {v(vA6)}, {v(vI6)} {bc(u)}
  v_add_u32_dpp {v(t0+1)}, {v(vB6)}, {v(vI6)} {bc(u)}
  v_cndmask_b32 {v(t0)}, {v(t0)}, {v(t0+1)}, vcc
  v_sub_u32_dpp {v(t0+1)}, {v(vRT4)}, {v(vI4)} {bc(u)}
  v_bfi_b32 {v(t0)}, {v(vMsk)}, {v(t0)}, {v(t0+1)}
  buffer_load_dwordx2 {v(REC[u],2)}, {v(t0)}, {s(sREC,4)}, 0 offen{RPOL}""")

    SDWA = "dst_sel:WORD_1 dst_unused:UNUSED_PAD src0_sel:WORD_1 src1_sel:WORD_0"
    def ins1(u, thr, p):
        ta, rk, mk, w = TA[p], RK[p], sMk[p], WW[p]
        a(f"""
  v_cmp_gt_i32 vcc, 0, {v(REC[u])}
  v_min_i32 {v(w)}, {v(REC[u])}, {v(REC[u]+1)}
  v_cmp_gt_i32 {s(mk,2)}, {thr}, {v(w)}
  v_bfe_u32 {v(ta)}, {v(w)}, 23, 8
  v_cndmask_b32_sdwa {v(REC[u])}, {v(REC[u])}, {v(REC[u]+1)}, vcc {SDWA}
  v_mad_u32_u24 {v(ta)}, {v(ta)}, {v(v264)}, s{sIns}
  s_mov_b64 exec, {s(mk,2)}
  ds_add_rtn_u32 {v(rk)}, {v(ta)}, {v(vOne)}
  s_mov_b64 exec, -1""")

    def ins2(u, tag, p):
        ta, rk, mk, w = TA[p], RK[p], sMk[p], WW[p]
        lab = f"{tag}_{u}"
        a(f"""
  s_mov_b64 exec, {s(mk,2)}
  v_cmp_lt_u32 vcc, 31, {v(rk)}
  v_lshl_add_u32 {v(ta)}, {v(rk)}, 3, {v(ta)}
  s_cbranch_vccnz L_rare_{lab}""")
        a.label(f"L_back_{lab}")
        a(f"""
  ds_write2_b32 {v(ta)}, {v(REC[u])}, {v(w)} offset0:2 offset1:3
  s_mov_b64 exec, -1""")
        rare.append((lab, u, p))

    a(f"""
  v_add_u32 {v(PT+2)}, {P1_REC}, {v(vL16)}
  v_add_u32 {v(PT+3)}, {P1_REC + 8*8192}, {v(vL16)}
  v_add_u32 {v(PT+4)}, {P1_REC + 16*8192}, {v(vL16)}
  s_mov_b32 s{sSo}, {NB*8192}
  v_mov_b32 {v(vDum)}, 3
  s_waitcnt lgkmcnt(0)
  s_barrier""")
    stamp(a, 252, 45)
    NS = 19
    sdt = lambda r: (20 + r) % 25 if r < 8 else r + 1
    SD = lambda r: ACC[sdt(r)]
    gv = []
    def gwait(x, extra=""): a(f"  s_waitcnt vmcnt({len(gv) - 1 - gv.index(x)}){extra}")
    def rd(r): a(f"  ds_read_b128 {v(SD(r),4)}, {v(PT+2 + r//8)} offset:{(r%8)*8192}")
    def st(r, lst=None):
        a(f"  buffer_store_dwordx4 {v(SD(r),4)}, {v(vL16)}, {s(sRW,4)}, s{sSo} offen sc1\n  s_add_u32 s{sSo}, s{sSo}, 8192")
        if lst is not None: lst.append(("st", r))
    zero_acc = lambda t: a(f"  v_mov_b64 {v(ACC[t],2)}, 0\n  v_mov_b64 {v(ACC[t]+2,2)}, 0")
    flag3 = f"  buffer_store_dword {v(vDum)}, {v(vFlg)}, {s(sFLG,4)}, 0 offen sc1"
    N1, N3 = OPT["n1"], OPT["n3"]
    if not OPT["wall"]:
        a(f"  s_cmp_gt_u32 s{sO2}, {NB*8192 // 6 - 2}\n  s_cbranch_scc1 L_noearly")
        a(flag3)
        a.label("L_noearly")
    a(f"""
  buffer_load_dwordx4 {v(Q,4)}, {v(vTab)}, {s(sTAB,4)}, 0 offen sc1
  buffer_load_dwordx2 {v(Q+4,2)}, {v(vTab)}, {s(sTAB,4)}, 0 offen offset:16 sc1""")
    gv.extend([("tab", 0), ("tab", 1)])
    if cpf(1, 24): gv.append(("c", 1))
    for r in range(NB, NS): rd(r)
    nxt = NB + N1
    for r in range(NB, nxt):
        a(f"  s_waitcnt lgkmcnt({NS - 1 - r})")
        st(r, gv)
    a(f"""
  s_waitcnt lgkmcnt(0)
  s_cmp_gt_u32 s{sO2}, {NB*8192 // 6 - 2}
  s_cbranch_scc1 L_allfirst""")
    if OPT["wall"]: a(f"  s_waitcnt vmcnt({len(gv)})")
    a("  s_barrier")
    if OPT["wall"]: a(flag3)
    a.label("L_allfirst_back")
    stamp(a, 252, 46)
    pend = list(range(nxt, NS))
    keep = OPT["n3"]
    slot = [0]
    def st1(n=1):
        on = OPT["smask"] >> slot[0] & 1 or n > 1
        slot[0] += 1
        for _ in range(n):
            if on and len(pend) > keep: st(pend.pop(0), gv)
    st1()
    a(f"""
  s_mul_i32 s{sX}, s{sW}, 3584
  s_add_u32 s{sX}, s{sX}, {RB_OFF}
  v_and_b32 {v(T+8)}, 63, v0
  v_lshl_add_u32 {v(T+9)}, {v(T+8)}, 3, s{sX}
  v_bfe_u32 {v(T+8)}, v0, 4, 1
  v_cmp_eq_u32 vcc, 1, {v(T+8)}""")
    for p in range(14): a(f"  ds_write_b32 {v(T+9)}, {v(RBK[p] if p < 13 else vZ)} offset:{(p//2)*512 + (p%2)*4}")
    st1()
    for r in range(4):
        a(f"  v_cndmask_b32 {v(Wa+r)}, {v(WDK[r])}, {v(vZ)}, vcc")
        a(f"  v_cndmask_b32 {v(Wb+r)}, {v(vZ)}, {v(WDK[r])}, vcc")
    a(f"""
  v_mov_b32 {v(WS0+1)}, 0
  v_mov_b32 {v(WS1+1)}, 0
  v_mov_b32 {v(WR+1)}, 0
  v_mov_b32 {v(sA)}, 0
  v_mov_b32 {v(nA)}, 0
  v_mov_b32 {v(rtot)}, 0""")
    for q in range(D):
        a(f"  v_mov_b64 {v(RING[q],2)}, 0\n  v_mov_b64 {v(RING[q]+2,2)}, 0")
    st1()
    a(f"""
  s_mul_i32 s{sFl}, s{sJ}, {2*CARLIST}
  s_add_u32 s{sFl}, s{sFl}, {CAROFF}""")
    srd(a, sREC, sWS, sWS+1, None, NCH * CH * 6)
    srd(a, sM, 48, 49, None, E * 32)
    srd(a, sCAR, sWS, sWS+1, f"s{sFl}", 2 * CARLIST)
    srd(a, sOUT, 70, 71, None, f"s{sRb}")
    srd(a, sMW, 48, 49, None, f"s{sRb}")
    for t in list(range(3, 9)) + [sdt(r) for r in range(NB)]: zero_acc(t)
    st1()
    a(f"""
  v_mov_b32 {v(vSent)}, 0x7ffff
  v_mov_b32 {v(T)}, 0
  v_mov_b32 {v(T+1)}, {v(vSent)}
  v_mov_b32 {v(T+2)}, 0
  v_mov_b32 {v(T+3)}, {v(vSent)}
  v_add_u32 {v(T+6)}, {7*8192}, {v(vL16)}""")
    for r in range(13):
        a(f"  ds_write_b128 {v(vL16 if r < 7 else T+6)}, {v(T,4)} offset:{(r%7)*8192}")
        if r % 5 == 4: st1()
    a(f"""
  v_and_b32 {v(T+6)}, 15, v0
  v_lshl_add_u32 {v(T+6)}, {v(T+6)}, 2, {v(vCtlN)}
  ds_write_b32 {v(T+6)}, {v(vZ)}
  ds_write_b128 {v(vSrd)}, {v(ACC[3],4)}""")
    for q in range(D): a(f"  v_mov_b32 {v(SA[q])}, {v(vSst)}\n  v_mov_b32 {v(CC[q])}, 0")
    gwait(("tab", 1))
    a(f"  v_lshrrev_b32 {v(rem)}, 16, {v(Q)}")
    for i in range(1, K):
        a(f"  v_lshrrev_b32 {v(T+4)}, 16, {v(Q+i)}\n  v_add_u32 {v(rem)}, {v(rem)}, {v(T+4)}")
    state_update()
    for u in range(0, 16, 2):
        a(f"""
  v_add_u32_dpp {v(REC[u])}, {v(vB6)}, {v(vI6)} {bc(u)}
  v_sub_u32_dpp {v(REC[u]+1)}, {v(vRT4)}, {v(vI4)} {bc(u)}
  v_add_u32_dpp {v(REC[u+1])}, {v(vB6)}, {v(vI6)} {bc(u+1)}
  v_sub_u32_dpp {v(REC[u+1]+1)}, {v(vRT4)}, {v(vI4)} {bc(u+1)}
  v_bfi_b32 {v(REC[u])}, {v(vMsk)}, {v(REC[u])}, {v(REC[u]+1)}
  v_bfi_b32 {v(REC[u+1])}, {v(vMsk)}, {v(REC[u+1])}, {v(REC[u+1]+1)}""")
        if u % 4 == 2: st1()
    state_update2()
    state_update()
    state_update2()
    st1()
    st1(NS)
    a("  s_nop 0")
    nx3 = NS - len(pend)
    for r in range(NB, nx3): zero_acc(sdt(r))
    stamp(a, 252, 47)
    if OPT["pf0"] == 3:
        share = (OPT["wmain"] // 4 + 31) // 32
        a(f"""
  s_cmp_eq_u32 s{sW}, 0
  s_cbranch_scc1 L_nopf
  s_lshr_b32 s{sX}, s2, 3
  s_mul_i32 s{sX}, s{sX}, {share*128}
  v_lshlrev_b32 {v(TA[1])}, 7, v0
  buffer_load_dword {v(WW[1])}, {v(TA[1])}, {s(sM,4)}, s{sX} offen""")
        a.label("L_nopf")
    a(f"  s_cmp_lg_u32 s{sW}, 0\n  s_cbranch_scc1 L_polled_b")
    poll("b", flag_load(FP, RK[0]), flag_cond(FP, 2), OPT["nap"])
    a("  s_waitcnt lgkmcnt(0)")
    a("  s_barrier")
    stamp(a, 252, 1)
    def pro_ld(us):
        for u in us:
            a(f"  buffer_load_dwordx2 {v(REC[u],2)}, {v(REC[u])}, {s(sREC,4)}, 0 offen{RPOL}")
            gv.append(("rec", u))
    NL0 = OPT["nl0"]
    pro_ld(range(NL0))
    NG = NS
    stamp(a, 252, 12)
    set_flag("pro")
    stamp(a, 252, 13)
    PTA = lambda u: Da + u
    PRK = lambda u: RING[0] + u
    PMK = lambda u: sPM + 2 * (u % 8)
    slowg = []
    def pro_ins1(g):
        us = range(4*g, 4*g+4)
        gwait(("rec", 4*g+3))
        for u in us:
            a(f"""
  v_cmp_gt_i32 vcc, 0, {v(REC[u])}
  v_min_i32 {v(PTA(u))}, {v(REC[u])}, {v(REC[u]+1)}
  v_cmp_gt_i32 {s(PMK(u),2)}, 0, {v(PTA(u))}
  v_cndmask_b32_sdwa {v(REC[u])}, {v(REC[u])}, {v(REC[u]+1)}, vcc {SDWA}
  v_mov_b32 {v(REC[u]+1)}, {v(PTA(u))}""")
        for u in us: a(f"  v_bfe_u32 {v(PTA(u))}, {v(PTA(u))}, 23, 8")
        for u in us: a(f"  v_mul_u32_u24 {v(PTA(u))}, {v(PTA(u))}, {v(v264)}")
        for u in us: a(f"  s_mov_b64 exec, {s(PMK(u),2)}\n  ds_add_rtn_u32 {v(PRK(u))}, {v(PTA(u))}, {v(vOne)}")
        a("  s_mov_b64 exec, -1")
    def pro_ins2(g):
        us = list(range(4*g, 4*g+4))
        a(f"""
  v_max3_u32 {v(T)}, {v(PRK(us[0]))}, {v(PRK(us[1]))}, {v(PRK(us[2]))}
  v_max_u32 {v(T)}, {v(T)}, {v(PRK(us[3]))}
  v_cmp_lt_u32 vcc, 31, {v(T)}
  s_cbranch_vccz L_pfast_{g}
  v_cmp_lt_u32 vcc, 63, {v(T)}
  s_cbranch_vccnz L_pslow_{g}""")
        a.label(f"L_pback_{g}")
        for x, u in enumerate(us): a(f"  v_subrev_u32 {v(T+4+x)}, 31, {v(PRK(u))}")
        for x, u in enumerate(us): a(f"  s_mov_b64 exec, {s(PMK(u),2)}\n  ds_max_i32 {v(PTA(u))}, {v(T+4+x)} offset:{BUFSZ}")
        a(f"  s_mov_b64 exec, -1\n  ds_write_b32 {v(vCtlN)}, {v(vOne)} offset:4")
        for x, u in enumerate(us): a(f"  v_lshrrev_b32 {v(T+4+x)}, 5, {v(PRK(u))}")
        for x, u in enumerate(us): a(f"  v_mad_u32_u24 {v(PTA(u))}, {v(T+4+x)}, s{sThr}, {v(PTA(u))}")
        a.label(f"L_pfast_{g}")
        for u in us: a(f"  v_lshl_add_u32 {v(PTA(u))}, {v(PRK(u))}, 3, {v(PTA(u))}")
        for u in us: a(f"  s_mov_b64 exec, {s(PMK(u),2)}\n  ds_write_b64 {v(PTA(u))}, {v(REC[u],2)} offset:8")
        a("  s_mov_b64 exec, -1")
        slowg.append(g)
    a(f"  s_mov_b32 s{sThr}, {BUFSZ - 256}")
    left = list(range(nx3, NS))
    per = (len(left) + 3) // 4
    def some():
        for _ in range(per):
            if left: st(left.pop(0), gv)
    pro_ins1(0)
    stamp(a, 252, 3)
    pro_ld(range(NL0, 16))
    def pf():
        share = (OPT["wmain"] // 4 + 31) // 32
        a(f"""
  s_lshr_b32 s{sX}, s2, 3
  s_mul_i32 s{sX}, s{sX}, {share*128}
  v_lshlrev_b32 {v(TA[1])}, 7, v0
  buffer_load_dword {v(WW[1])}, {v(TA[1])}, {s(sM,4)}, s{sX} offen""")
        gv.append(("pf", 0))
    if OPT["pf0"] == 1:
        while left: st(left.pop(0), gv)
        pf()
    pro_ins1(1)
    some()
    a("  s_waitcnt lgkmcnt(0)")
    pro_ins2(0); some(); pro_ins1(2); pro_ins2(1); some(); pro_ins1(3); some()
    if OPT["pf0"] == 2: pf()
    stamp(a, 252, 8)
    a("  s_nop 0")
    for r in range(nx3, NS): zero_acc(sdt(r))
    a("  s_waitcnt lgkmcnt(0)")
    pro_ins2(2); pro_ins2(3)
    stamp(a, 252, 11)
    a(f"  s_mov_b32 s{sOdd}, 0xaaaaaaaa\n  s_mov_b32 s{sOdd+1}, 0xaaaaaaaa\n  s_mov_b32 s{s70}, 0x70")
    a("  s_branch L_turn2")
    def signal_all(tag, n):
        a(f"""
  v_mov_b32 {v(T+4)}, {CTL + 32}
  s_waitcnt vmcnt({n})
  s_mov_b64 exec, 1
  ds_add_rtn_u32 {v(T+5)}, {v(T+4)}, {v(vOne)}
  s_mov_b64 exec, -1
  v_and_b32 {v(T+6)}, 63, v0
  s_lshl_b32 s{sX}, s2, 2
  v_lshl_add_u32 {v(T+6)}, {v(T+6)}, 10, s{sX}
  v_mov_b32 {v(T+7)}, 4
  s_waitcnt lgkmcnt(0)
  v_readfirstlane_b32 s{sX}, {v(T+5)}
  s_cmp_lg_u32 s{sX}, 7
  s_cbranch_scc1 L_nosig_{tag}
  buffer_store_dword {v(T+7)}, {v(T+6)}, {s(sFLG,4)}, 0 offen sc1""")
        a.label(f"L_nosig_{tag}")

    INS0 = OPT["ins0"]
    def cstage_head(q):
        if OPT["abl_s"]: return
        a(f"""
  ds_write_b16 {v(SA[q])}, {v(CC[q])}
  ds_read_b128 {v(Sf,4)}, {v(vSrd)}
  ds_write_b16 {v(SA[q])}, {v(vZ)}""")
    def cstage_m1(q):
        if OPT["abl_mfma"]: return
        if OPT["adj"]:
            shuffle(RING[q]); return
        a(f"""
  v_mfma_f32_16x16x32_bf16 {v(Da,4)}, {v(RING[q],4)}, {v(Wa,4)}, 0
  v_mfma_f32_16x16x32_bf16 {v(Db,4)}, {v(RING[q],4)}, {v(Wb,4)}, 0""")
    NB_ = "quad_perm:[1,0,3,2] row_mask:0xf bank_mask:0xf"
    def shuffle(X, f1="  s_nop 0", f2="  s_nop 1"):
        a(f"""
  v_permlane32_swap_b32 {v(X)}, {v(X+2)}
  v_permlane32_swap_b32 {v(X+1)}, {v(X+3)}
  s_mov_b64 vcc, {s(sOdd,2)}""")
        a(f1)
        a(f"""
  v_cndmask_b32_dpp {v(P+2)}, {v(X)}, {v(X+2)}, vcc {NB_}
  v_cndmask_b32_dpp {v(P+3)}, {v(X+1)}, {v(X+3)}, vcc {NB_}
  s_not_b64 vcc, vcc
  v_cndmask_b32_dpp {v(P)}, {v(X+2)}, {v(X)}, vcc {NB_}
  v_cndmask_b32_dpp {v(P+1)}, {v(X+3)}, {v(X+1)}, vcc {NB_}""")
        a(f2)
        a(f"""
  v_mfma_f32_16x16x32_bf16 {v(Da,4)}, {v(P,4)}, {v(Wa,4)}, 0
  v_mfma_f32_16x16x32_bf16 {v(Db,4)}, {v(P,4)}, {v(Wb,4)}, 0""")
    def cstage_cvt():
        if OPT["abl_mfma"]: return
        a(f"""
  v_cvt_pk_bf16_f32 {v(P)}, {v(Da)}, {v(Da+1)}
  v_cvt_pk_bf16_f32 {v(P+1)}, {v(Da+2)}, {v(Da+3)}
  v_cvt_pk_bf16_f32 {v(P+2)}, {v(Db)}, {v(Db+1)}
  v_cvt_pk_bf16_f32 {v(P+3)}, {v(Db+2)}, {v(Db+3)}""")
    def cstage_m2(tc):
        if OPT["abl_mfma"]: return
        a(f"  v_mfma_f32_16x16x32_bf16 {v(ACC[tc],4)}, {v(P,4)}, {v(Sf,4)}, {v(ACC[tc],4)}")
    def step_top(t, reset=True):
        a(f"  ; ---- step {t}")
        a("  s_waitcnt lgkmcnt(0)")
        cstage_head(t % D)
        if t < NT - 1:
            a(f"  ds_read_b64 {v(RP[(t+1)&1],2)}, {v(vRd)} offset:{(t+1)*TS+8}")
        if reset and t < NT:
            a(f"  ds_write_b32 {v(vRd)}, {v(vSent)} offset:{t*TS+12}")
    def step_main(t, n, reset=True):
        q = t % D; tc = (t - D) % NT
        rp = RP[t & 1]
        a(f"  s_waitcnt vmcnt({n})")
        off, af, e = T + 1, T + 2, T + 3
        lg = (2 if t < NT-1 else 1) + (1 if reset else 0)
        if OPT["adj"]:
            shuffle(RING[q], f"  v_and_b32 {v(off)}, {v(vSent)}, {v(rp+1)}",
                    f"  v_lshl_add_u32 {v(off)}, {v(off)}, 5, {v(vHalf)}\n  buffer_load_dwordx4 {v(RING[q],4)}, {v(off)}, {s(sM,4)}, 0 offen")
            a(f"""
  v_mul_f32 {v(af)}, {v(rp)}, {v(vFreq)}
  v_lshrrev_b32 {v(e)}, 16, {v(rp+1)}
  v_cvt_pk_bf16_f32 {v(af)}, 0, {v(af)}
  v_bitop3_b32 {v(SA[q])}, {v(e)}, s{s70}, {v(vSst)} bitop3:0x6a
  v_mul_f32 {v(af)}, 0.15915494, {v(af)}
  v_fract_f32 {v(af)}, {v(af)}
  v_cos_f32 {v(af)}, {v(af)}""")
            cstage_cvt()
            a(f"""
  v_cvt_pk_bf16_f32 {v(CC[q])}, {v(af)}, {v(af)}
  s_waitcnt lgkmcnt({lg})""")
            cstage_m2(tc)
            return
        cstage_m1(q)
        a(f"""
  v_and_b32 {v(off)}, {v(vSent)}, {v(rp+1)}
  v_mul_f32 {v(af)}, {v(rp)}, {v(vFreq)}
  v_lshl_add_u32 {v(off)}, {v(off)}, 5, {v(vHalf)}
  v_cvt_pk_bf16_f32 {v(af)}, 0, {v(af)}
  buffer_load_dwordx4 {v(RING[q],4)}, {v(vOOB if OPT["abl_g"] else off)}, {s(sM,4)}, 0 offen
  v_mul_f32 {v(af)}, 0.15915494, {v(af)}
  v_bfe_u32 {v(e)}, {v(rp+1)}, 20, 3
  v_fract_f32 {v(af)}, {v(af)}""")
        cstage_cvt()
        a(f"""
  v_cos_f32 {v(af)}, {v(af)}
  v_lshl_add_u32 {v(SA[q])}, {v(e)}, 4, {v(vSst)}
  s_waitcnt lgkmcnt({lg})""")
        cstage_m2(tc)
        a(f"  v_cvt_pk_bf16_f32 {v(CC[q])}, {v(af)}, {v(af)}")

    order = []
    for t in range(NT):
        if t == 0: order.append(("car", 16))
        u2 = t - INS0 - 1
        EA = OPT["early"]
        if EA: order += [("rec", u) for u in range(EA * t, min(16, EA * t + EA))]
        elif 0 <= u2 < 16: order.append(("rec", u2))
        order.append(("W", t))
        order.append(("g", t))
    tail = [x for x in order[order.index(("g", NT - D)):] if x[0] != "W"]
    assert tail == [("g", t) for t in range(NT - D, NT)], tail
    def younger(target, at):
        n = len(order); i = order.index(target); cnt = 0
        j = (i + 1) % n
        while j != at:
            if order[j][0] != "W": cnt += 1
            j = (j + 1) % n
        return cnt
    first = []
    for x in order:
        if x[0] == "W" and x[1] < 4: first += [("f", 4 * x[1] + i) for i in range(4)]
        first.append(x)
    def younger_first(u, t):
        i = first.index(("f", u)); j = first.index(("W", t))
        return sum(1 for x in first[i+1:j] if x[0] != "W")
    RBH = 1
    def prio(tag, mask, t):
        cur = mask >> t & 1; prev = (mask >> (t - 1) & 1) if t else 0
        if cur and not prev:
            a(f"  s_cmp_lt_u32 s{sW}, 4\n  s_cbranch_scc1 L_{tag}prio{t}\n  s_setprio 1")
            a.label(f"L_{tag}prio{t}")
        if prev and not cur: a("  s_setprio 0")
    assert not OPT["lprio"] >> (NT - 1)
    def step0_extra():
        a(f"""
  v_cmp_gt_u32 vcc, s{sCin}, {v(vCarIdx)}
  s_add_u32 s{sX}, s{sIt}, 2
  s_and_b32 s{sX}, s{sX}, 3
  s_lshl_b32 s{sX}, s{sX}, 3
  s_add_u32 s{sX}, s{sX}, {CTL}
  v_mov_b32 {v(T+1)}, s{sX}
  ds_write_b64 {v(T+1)}, {v(vZ,2)}
  ds_write_b32 {v(vCntA)}, {v(vZ)}
  v_cndmask_b32 {v(T)}, {v(vOOB)}, {v(vCarOff)}, vcc
  buffer_load_dwordx2 {v(REC[16],2)}, {v(T)}, {s(sCAR,4)}, s{sCarR} offen sc1""")
    def state_step(tag):
        a(f"  s_cmp_lg_u32 s{sThr}, 0\n  s_cbranch_scc1 L_nostate_{tag}")
        if tag == "b0":
            QL = Q + OPT['keff'] - 3
            a(f"""
  v_lshrrev_b32 {v(T)}, 16, {v(QL)}
  v_cmp_eq_u32 vcc, 0, {v(nA)}
  v_subrev_u32 {v(T+1)}, {OPT['lim']}, {v(T)}
  v_and_b32 {v(T+2)}, 0xffff, {v(QL)}
  v_max_i32 {v(T+1)}, 0, {v(T+1)}
  v_cndmask_b32 {v(T+1)}, {v(vZ)}, {v(T+1)}, vcc
  v_add_u32 {v(T+2)}, {v(T+2)}, {v(T)}
  v_sub_u32 {v(T+2)}, {v(T+2)}, {v(T+1)}
  v_cndmask_b32 {v(sA)}, {v(sA)}, {v(T+2)}, vcc
  v_add_u32 {v(nA)}, {v(nA)}, {v(T+1)}
  v_lshlrev_b32 {v(T+1)}, 16, {v(T+1)}
  v_sub_u32 {v(QL)}, {v(QL)}, {v(T+1)}""")
        state_update(); state_update2()
        a.label(f"L_nostate_{tag}")
        set_flag(tag)
    a(".p2align 6")
    a.label("L_body0")
    lo = []
    lw = lambda x: len(lo) - 1 - lo.index(x)
    ST0, STP = OPT["st0"], OPT["stp"]
    late = list(range(NG, NS))
    tsig = None
    FC = REC[0]
    FO = REC[2]
    for t in range(NT):
        step_top(t)
        prio("b0", OPT["lprio"], t)
        if t == 0:
            step0_extra(); lo.append(("rec", 16))
        if t < 4:
            for u in range(4*t, 4*t+4):
                rec_load(u, T + 4 + 2 * (u & 1)); lo.append(("rec", u))
        if t == INS0: state_step("b0")
        if t == 14 and cpf(2, 24): lo.append(("c", 2))
        zs = []
        if t >= ST0:
            for _ in range(STP):
                if late:
                    r = late.pop(0); st(r, lo); zs.append(r)
                    assert sdt(r) + D > t
                    if not late: tsig = t + D + 1
        u1 = t - INS0; u2 = u1 - 1
        if 0 <= u2 < 17: ins2(u2, "b0", u2 & 1)
        if 0 <= u1 < 17:
            a(f"  s_waitcnt vmcnt({lw(('rec', u1))})")
            ins1(u1, f"s{sThr}" if u1 < 16 else "0", u1 & 1)
        else: a("  s_nop 0")
        for r in zs: zero_acc(sdt(r))
        if t == tsig or (NG == NS and t == 2):
            signal_all("b0", lw(("st", NS - 1)) if NG < NS else len(lo))
        if t == INS0 + 18:
            a(f"  s_cmp_gt_u32 s{sCin}, 512\n  s_cbranch_scc1 L_slow_b0")
            a.label("L_slow_back_b0")
        if t == NT - 3:
            a(f"""
  s_cmp_lg_u32 s{sW}, 0
  s_cbranch_scc1 L_noldc
  v_lshlrev_b32 {v(FO)}, 4, v0
  s_and_b32 s{sX}, s2, 7
  s_lshl_b32 s{sX}, s{sX}, 10""")
            a(flag_load(FC, FO))
            a.label("L_noldc")
        step_main(t, lw(("g", t - D)) if t >= D else 62)
        lo.append(("g", t))
    assert not late and (tsig is None or tsig < NT - 3)
    a(f"""
  s_waitcnt vmcnt(3)
  s_cmp_lg_u32 s{sW}, 0
  s_cbranch_scc1 L_turn2""")
    assert NT - (INS0 + 17) >= 3
    a(flag_cond(FC, 4))
    a(f"""
  s_cbranch_vccz L_turn2
  s_and_b32 s{sX}, s2, 7
  s_lshl_b32 s{sX}, s{sX}, 10""")
    poll("c", flag_load(FC, FO), flag_cond(FC, 4), OPT["nap"])
    a("  s_branch L_turn2")

    a(".p2align 6")
    a.label("L_loop")
    for t in range(NT):
        step_top(t)
        if t == 0: step0_extra()
        prio("lp", OPT["lprio"], t)
        if EA:
            for u in range(EA * t, min(16, EA * t + EA)): rec_load(u, T + 4 + 2 * (u & 1))
        if t < 4:
            if not EA: a(f"  s_cmp_eq_u32 s{sIt}, 1\n  s_cbranch_scc1 L_first_{t}")
            a.label(f"L_first_back_{t}")
        if t == INS0: state_step("lp")
        if t == 14: cpf(3, 24)
        u1 = t - INS0; u2 = u1 - 1
        if 0 <= u2 < 17:
            ins2(u2, "lp", u2 & 1)
            if u2 < 16 and not EA: rec_load(u2, T + 4)
        if 0 <= u1 < 17:
            pos = order.index(("W", t))
            if EA and u1 < 16: n = younger(("rec", u1), pos)
            elif u1 < 16: n = min(younger(("rec", u1), pos), younger_first(u1, t))
            else: n = younger(("car", 16), pos)
            a(f"  s_waitcnt vmcnt({min(n, 62)})")
            ins1(u1, f"s{sThr}" if u1 < 16 else "0", u1 & 1)
        if t == INS0 + 18:
            a(f"  s_cmp_gt_u32 s{sCin}, 512\n  s_cbranch_scc1 L_slow_lp")
            a.label("L_slow_back_lp")
        step_main(t, younger(("g", (t - D) % NT), order.index(("W", t))))
    assert INS0 >= 4 and RBH < NT
    a(f"  s_waitcnt vmcnt({NT - (INS0 + 17)})")
    a.label("L_turn2")
    a(f"""
  v_mov_b32 {v(T)}, {v(vCtlN)}
  s_add_u32 s{sIt}, s{sIt}, 1
  s_add_u32 s{sX}, s{sIt}, 1
  s_and_b32 s{sX}, s{sX}, 3
  s_lshl_b32 s{sX}, s{sX}, 3
  s_add_u32 s{sX}, s{sX}, {CTL}
  v_mov_b32 {v(vCtlN)}, s{sX}
  s_sub_u32 s{sX}, s{sIns}, {BUFSZ}
  s_add_u32 s{sX}, s{sX}, s{sIns}
  v_add_u32 {v(vRd)}, s{sX}, {v(vRd)}
  v_add_u32 {v(vCntA)}, s{sX}, {v(vCntA)}
  s_sub_u32 s{sIns}, {BUFSZ}, s{sIns}
  s_mov_b32 s{sCarR}, s{sCarW}
  s_sub_u32 s{sCarW}, {CARLIST}, s{sCarW}
  s_waitcnt lgkmcnt(0)""")
    if OPT["stamp"] == 1:
        a(f"  s_lshl_b32 s90, s{sIt}, 1\n  s_add_u32 s90, s90, 16\n  s_min_u32 m0, s90, 36")
        stamp(a, 252, "m0")
        a("  s_add_u32 m0, m0, 1")
    a("  s_barrier")
    stamp(a, 252, "m0")
    a(f"""
  ds_read_b64 {v(T+2,2)}, {v(T)}
  ds_read_b64 {v(RP[0],2)}, {v(vRd)} offset:8
  s_waitcnt lgkmcnt(1)
  v_readfirstlane_b32 s{sCin}, {v(T+2)}
  v_readfirstlane_b32 s{sFl}, {v(T+3)}
  s_cmp_gt_u32 s{sCin}, 512
  s_cselect_b32 s{sThr}, 0x80000000, 0
  s_min_u32 s{sCin}, s{sCin}, {CARCAP}
  s_cmp_gt_u32 s{sCin}, 32
  s_cselect_b32 s{sFl}, 1, s{sFl}
  s_cmp_lt_u32 s{sIt}, {OPT['itcap']}
  s_cselect_b32 s{sFl}, s{sFl}, 0
  s_cmp_eq_u32 s{sIt}, {OPT["cut"] - 100 if OPT["cut"] >= 100 else -1}
  s_cbranch_scc1 L_end
  s_cmp_eq_u32 s{sIt}, 0
  s_cbranch_scc1 L_it0
  s_cmp_lg_u32 s{sFl}, 0
  s_cbranch_scc1 L_loop""")
    a.label("L_nosig_z")

    RBv = Q
    assert vRT4 - Q + 1 >= 14
    R0 = REC[0]
    G0, G1, RR, U = R0, R0 + 4, R0 + 8, R0 + 12
    XS0, XS1, XR, AG = R0 + 16, R0 + 18, R0 + 20, R0 + 22
    MS = [R0 + 24 + 2 * i for i in range(5)]
    vMoff, vLin, vOw, vOr = vCarOff, vI6, vI1, vI4
    a(f"""
  v_and_b32 {v(T)}, 63, v0
  s_mul_i32 s{sX}, s{sW}, 3584
  s_add_u32 s{sX}, s{sX}, {RB_OFF}
  v_lshl_add_u32 {v(T+1)}, {v(T)}, 3, s{sX}
  v_lshlrev_b32 {v(vLin)}, 4, {v(T)}
  v_bfe_u32 {v(T+2)}, v0, 4, 2
  v_and_b32 {v(T+3)}, 15, v0
  v_lshlrev_b32 {v(T+2)}, 3, {v(T+2)}
  v_lshl_add_u32 {v(vMoff)}, {v(T+3)}, 5, {v(T+2)}
  s_mul_i32 s{sX}, s{sW}, 6400
  s_add_u32 s{sX}, s{sX}, s{sIns}
  s_add_u32 s{sX}, s{sX}, 15
  s_and_b32 s{sX}, s{sX}, -16
  v_add_u32 {v(vOw)}, s{sX}, {v(vMoff)}
  v_add_u32 {v(vOr)}, s{sX}, {v(vLin)}
  v_cmp_gt_u32 {s(sT,2)}, 8, {v(T+3)}""")
    for h in range(7):
        a(f"  ds_read_b64 {v(RBv+2*h,2)}, {v(T+1)} offset:{h*512}")
    fo = [("g", t - NT) for t in range(NT - D, NT)]
    def fwait(x): return len(fo) - 1 - fo.index(x)
    def s1(p):
        b = RBv + (p & ~1)
        w0, w1 = (WS0, WS1) if p % 2 == 0 else (XS0, XS1)
        a(f"""
  v_mfma_f32_16x16x16_bf16 {v(G0,4)}, {v(w0,2)}, {v(b,2)}, 0
  v_mfma_f32_16x16x16_bf16 {v(G1,4)}, {v(w1,2)}, {v(b,2)}, 0""")
    def s2(p):
        t0 = ACC[2*p]; t1 = ACC[2*p+1] if 2*p+1 < NT else ACC[2*p]
        for r in range(4): a(f"  v_mul_f32 {v(U+r)}, {v(t0+r)}, {v(G0+r)}")
        for r in range(4): a(f"  v_mul_f32_dpp {v(U+r)}, {v(t1+r)}, {v(G0+r)} row_ror:8 row_mask:0xf bank_mask:0xc")
        for r in range(4): a(f"  v_fmac_f32_dpp {v(U+r)}, {v(t0+r)}, {v(G1+r)} row_ror:8 row_mask:0xf bank_mask:0x3")
        for r in range(4): a(f"  v_fmac_f32_dpp {v(U+r)}, {v(t1+r)}, {v(G1+r)} quad_perm:[0,1,2,3] row_mask:0xf bank_mask:0xc")
        a(f"""
  v_cvt_pk_bf16_f32 {v(AG)}, {v(U)}, {v(U+1)}
  v_cvt_pk_bf16_f32 {v(AG+1)}, {v(U+2)}, {v(U+3)}
  v_mfma_f32_16x16x16_bf16 {v(RR,4)}, {v(WR if p % 2 == 0 else XR,2)}, {v(RBv + (p & ~1),2)}, 0""")
        if p + 1 < 13: s1(p + 1)
        else: a("  s_nop 0")
        a(f"  v_mfma_f32_16x16x16_bf16 {v(U,4)}, {v(WUP,2)}, {v(AG,2)}, 0")
    def s3(p):
        x = ACC[2*p]; m_ = MS[p % 5]
        a(f"""
  s_waitcnt vmcnt({fwait(("m", p))})
  v_lshlrev_b32 {v(x)}, 16, {v(m_)}
  v_and_b32 {v(x+1)}, 0xffff0000, {v(m_)}
  v_lshlrev_b32 {v(x+2)}, 16, {v(m_+1)}
  v_and_b32 {v(x+3)}, 0xffff0000, {v(m_+1)}""")
        if p == 12: a("  s_nop 2")
        a(f"""
  v_pk_fma_f32 {v(x,2)}, {v(U,2)}, {v(RR,2)}, {v(x,2)}
  v_pk_fma_f32 {v(x+2,2)}, {v(U+2,2)}, {v(RR+2,2)}, {v(x+2,2)}
  v_cvt_pk_bf16_f32 {v(x)}, {v(x)}, {v(x+1)}
  v_cvt_pk_bf16_f32 {v(x+1)}, {v(x+2)}, {v(x+3)}""")
        if p == 12: a(f"  s_mov_b64 exec, {s(sT,2)}")
        a(f"  ds_write_b64 {v(vOw)}, {v(x,2)} offset:{p*512}")
        if p == 12: a(f"  s_mov_b64 exec, -1")
        if p % 2 == 1 or p == 12:
            r = p // 2
            a(f"  ds_read_b128 {v(ACC[4*r+1 if r < 6 else 23],4)}, {v(vOr)} offset:{r*1024}")
    def s4(r):
        a(f"  buffer_store_dwordx4 {v(ACC[4*r+1 if r < 6 else 23],4)}, {v(vLin)}, {s(sOUT,4)}, s{sEb if r < 4 else sEb2} offen offset:{(r%4)*1024}{POL[OPT['opol']]}")
        fo.append(("st", r))
    xw = {}
    for t in range(NT + D + 2):
        if t == 6:
            a(f"  s_cmp_lg_u32 s{sCin}, 0\n  s_cbranch_scc1 L_x3")
            a.label("L_x3_back")
            xw[3] = len(fo) - xw[2]
        if t < NT + D: step_top(t, False)
        else: a(f"  ; ---- tail {t}\n  s_waitcnt lgkmcnt(0)")
        prio("fp", OPT["fprio"], t)
        if t in (0, 3):
            n = 1 if t == 0 else 2
            a(f"  s_cmp_lg_u32 s{sCin}, 0\n  s_cbranch_scc1 L_x{n}")
            a.label(f"L_x{n}_back")
            xw[n] = len(fo)
        if t == NT: stamp(a, 252, 4)
        if t == NT + D: stamp(a, 252, 5)
        if t == 1:
            a(f"""
  v_mov_b32 {v(XS0)}, 0
  v_mov_b32 {v(XS0+1)}, {v(WS0)}
  v_mov_b32 {v(XS1)}, 0
  v_mov_b32 {v(XS1+1)}, {v(WS1)}
  v_mov_b32 {v(XR)}, 0
  v_mov_b32 {v(XR+1)}, {v(WR)}""")
        if t == 5: s1(0)
        ts2 = {2*p+7 if p < 12 else 30: p for p in range(13)}
        if t - 2 in ts2 and (ts2[t-2] % 2 == 1): s4(ts2[t-2] // 2)
        if t - 1 in ts2: s3(ts2[t-1])
        if t in ts2: s2(ts2[t])
        if t % 2 == 1 and t // 2 < 13:
            p = t // 2
            a(f"  buffer_load_dwordx2 {v(MS[p%5],2)}, {v(vMoff)}, {s(sMW,4)}, s{sEb if p < 8 else sEb2} offen offset:{(p%8)*512}{POL[OPT['mpol']]}")
            fo.append(("m", p))
        if t < NT:
            step_main(t, fwait(("g", t - D)), False)
            fo.append(("g", t))
        elif t < NT + D:
            a(f"  s_waitcnt vmcnt({fwait(('g', t - D))})")
            cstage_m1(t % D)
            a("  s_nop 6")
            cstage_cvt()
            a("  s_waitcnt lgkmcnt(0)\n  s_nop 0")
            cstage_m2(t - D)
            a("  s_nop 3")
    a("  s_waitcnt lgkmcnt(0)")
    s4(6)
    stamp(a, 252, 6)
    if OPT["stamp"]: a("  s_waitcnt vmcnt(0)")
    stamp(a, 252, 7); stamp(a, 252, 63, "s_memrealtime")
    if OPT["stamp"] == 1: a(f"  v_writelane_b32 v252, s{sIt}, 61")
    stamp_out(a, 252, sWS, 8, STAMPOFF + 0x200000, 253)
    a.label("L_end")
    a("  s_endpgm")

    sSm, sS2 = sMk
    a.label("L_x1")
    a(f"""
  v_cmp_gt_u32 vcc, s{sCin}, {v(vSlot)}
  v_lshlrev_b32 {v(T)}, 3, {v(vSlot)}
  s_nop 0
  v_cndmask_b32 {v(T)}, {v(vOOB)}, {v(T)}, vcc
  buffer_load_dwordx2 {v(AG,2)}, {v(T)}, {s(sCAR,4)}, s{sCarR} offen sc1
  s_branch L_x1_back""")
    a.label("L_x2")
    a(f"""
  s_mul_i32 s{sX}, s{sW}, {NT}
  s_waitcnt vmcnt({xw[2] - xw[1]})
  v_min_i32 {v(U)}, {v(AG)}, {v(AG+1)}
  v_cmp_gt_i32 vcc, 0, {v(AG)}
  v_bfe_u32 {v(U+2)}, {v(U)}, 23, 8
  v_subrev_u32 {v(U+2)}, s{sX}, {v(U+2)}
  v_cndmask_b32_sdwa {v(U+1)}, {v(AG)}, {v(AG+1)}, vcc dst_sel:WORD_1 dst_unused:UNUSED_PAD src0_sel:WORD_1 src1_sel:WORD_0
  v_cmp_gt_i32 {s(sS2,2)}, 0, {v(U)}
  v_cmp_gt_u32 {s(sSm,2)}, {NT}, {v(U+2)}
  s_and_b64 vcc, {s(sSm,2)}, {s(sS2,2)}
  s_cselect_b32 s{sCin}, s{sCin}, 0
  s_cbranch_scc0 L_x2_back
  v_and_b32 {v(T)}, 0x7ffff, {v(U)}
  v_lshl_add_u32 {v(T)}, {v(T)}, 5, {v(vHalf)}
  v_mul_f32 {v(U+1)}, {v(U+1)}, {v(vFreq)}
  v_cndmask_b32 {v(T)}, {v(vOOB)}, {v(T)}, vcc
  buffer_load_dwordx4 {v(RR,4)}, {v(T)}, {s(sM,4)}, 0 offen
  v_cndmask_b32 {v(U+2)}, {v(vOOB)}, {v(U+2)}, vcc
  v_cvt_pk_bf16_f32 {v(U+1)}, 0, {v(U+1)}
  v_mul_f32 {v(U+1)}, 0.15915494, {v(U+1)}
  v_fract_f32 {v(U+1)}, {v(U+1)}
  v_cos_f32 {v(U+1)}, {v(U+1)}
  v_bfe_u32 {v(U+3)}, {v(U)}, 20, 3
  v_lshlrev_b32 {v(U+3)}, 4, {v(U+3)}
  v_xor_b32 {v(U+3)}, {v(U+3)}, {v(vSst)}
  v_cvt_pk_bf16_f32 {v(U+1)}, {v(U+1)}, {v(U+1)}
  s_branch L_x2_back""")
    a.label("L_x3")
    a(f"""
  s_waitcnt vmcnt({xw[3]})""")
    if OPT["adj"]: shuffle(RR)
    else: a(f"""
  v_mfma_f32_16x16x32_bf16 {v(Da,4)}, {v(RR,4)}, {v(Wa,4)}, 0
  v_mfma_f32_16x16x32_bf16 {v(Db,4)}, {v(RR,4)}, {v(Wb,4)}, 0""")
    a("  s_nop 6")
    cstage_cvt()
    for t in range(NT):
        a(f"""
  v_cmp_eq_u32 vcc, {t}, {v(U+2)}
  s_cbranch_vccz L_x3_{t}
  s_mov_b64 exec, vcc
  ds_write_b16 {v(U+3)}, {v(U+1)}
  s_mov_b64 exec, -1
  ds_read_b128 {v(Sf,4)}, {v(vSrd)}
  s_mov_b64 exec, vcc
  ds_write_b16 {v(U+3)}, {v(vZ)}
  s_mov_b64 exec, -1
  s_waitcnt lgkmcnt(0)""")
        cstage_m2(t)
        a.label(f"L_x3_{t}")
    a("  s_branch L_x3_back")
    a.label("L_it0")
    a(f"  s_cmp_lg_u32 s{sFl}, 0\n  s_cbranch_scc1 L_body0")
    for r in range(NG, NS): st(r)
    a("  s_nop 0")
    for r in range(NG, NS): zero_acc(sdt(r))
    signal_all("z0", 0)
    a("  s_branch L_nosig_z")
    for t in range(4):
        a.label(f"L_first_{t}")
        for u in range(4*t, 4*t+4): rec_load(u, T + 4 + 2 * (u & 1))
        a(f"  s_branch L_first_back_{t}")
    a.label("L_allfirst")
    a(f"  s_mov_b32 s{sY}, s{sSo}")
    for r in range(NB + N1, NS): st(r)
    a(f"  s_mov_b32 s{sSo}, s{sY}\n  s_waitcnt vmcnt(0)\n  s_barrier\n{flag3}\n  s_branch L_allfirst_back")
    for g in slowg:
        a.label(f"L_pslow_{g}")
        for u in range(4*g, 4*g+4):
            a(f"""
  s_mov_b64 exec, {s(PMK(u),2)}
  v_cmp_lt_u32 vcc, 63, {v(PRK(u))}
  s_cbranch_vccz L_pskip_{u}
  s_andn2_b64 {s(PMK(u),2)}, {s(PMK(u),2)}, vcc
  s_mov_b64 exec, vcc
  ds_add_rtn_u32 {v(T+1)}, {v(vCtlN)}, {v(vOne)}
  s_waitcnt lgkmcnt(0)
  v_lshlrev_b32 {v(T+1)}, 3, {v(T+1)}
  buffer_store_dwordx2 {v(REC[u],2)}, {v(T+1)}, {s(sCAR,4)}, s{sCarW} offen
  s_waitcnt vmcnt(0)""")
            a.label(f"L_pskip_{u}")
        a(f"  s_mov_b64 exec, -1\n  s_branch L_pback_{g}")
    for tag in ("b0", "lp"):
        a.label(f"L_slow_{tag}")
        a(f"  s_mov_b32 s{sX}, 512")
        a.label(f"L_slow_loop_{tag}")
        a(f"""
  v_add_u32 {v(T+1)}, s{sX}, {v(vCarIdx)}
  v_cmp_gt_u32 vcc, s{sCin}, {v(T+1)}
  v_lshlrev_b32 {v(T+1)}, 3, {v(T+1)}
  s_nop 0
  v_cndmask_b32 {v(T+1)}, {v(vOOB)}, {v(T+1)}, vcc
  buffer_load_dwordx2 {v(REC[16],2)}, {v(T+1)}, {s(sCAR,4)}, s{sCarR} offen sc1
  s_waitcnt vmcnt(0)""")
        ins1(16, "0", 0)
        a("  s_waitcnt lgkmcnt(0)")
        ins2(16, "sl" + tag, 0)
        a(f"""
  s_add_u32 s{sX}, s{sX}, 512
  s_cmp_lt_u32 s{sX}, s{sCin}
  s_cbranch_scc1 L_slow_loop_{tag}
  s_waitcnt vmcnt(0)
  s_branch L_slow_back_{tag}""")
    for lab, u, p in rare:
        a.label(f"L_rare_{lab}")
        a(f"""
  s_mov_b64 exec, vcc
  ds_add_rtn_u32 {v(RK[p])}, {v(vCtlN)}, {v(vOne)}
  v_mov_b32 {v(REC[u]+1)}, {v(WW[p])}
  s_waitcnt lgkmcnt(0)
  v_lshlrev_b32 {v(RK[p])}, 3, {v(RK[p])}
  buffer_store_dwordx2 {v(REC[u],2)}, {v(RK[p])}, {s(sCAR,4)}, s{sCarW} offen
  s_andn2_b64 exec, {s(sMk[p],2)}, vcc
  s_branch L_back_{lab}""")
    a.label("L_code_end")
    return NV

def kd(name, nv, ns):
    nv4 = (nv + 3) // 4 * 4
    return f""".amdhsa_kernel {name}
  .amdhsa_next_free_vgpr {nv}
  .amdhsa_next_free_sgpr {ns}
  .amdhsa_accum_offset {nv4}
  .amdhsa_group_segment_fixed_size 0
  .amdhsa_kernarg_size 112
  .amdhsa_user_sgpr_count 2
  .amdhsa_user_sgpr_kernarg_segment_ptr 1
  .amdhsa_system_sgpr_workgroup_id_x 1
  .amdhsa_float_denorm_mode_32 3
.end_amdhsa_kernel
"""

def main():
    out = sys.argv[1]
    ref = open(f"cdna_kernels/{NAME}.s.ref").read().split("\n")
    head = [l for l in ref if l.startswith(";") and "@launch" not in l and "Override" not in l and "grid=ceil" not in l]
    a = Asm()
    a(".amdgcn_target \"amdgcn-amd-amdhsa--gfx950\"\n.text")
    a(f".globl {NAME}_kernel\n.type {NAME}_kernel,@function")
    nv = gen_p2(a)
    errs = a.check()
    for e in errs: print("HAZARD", e)
    txt = "\n".join(head) + "\n"
    kern = f"kernel={NAME}_kernel " if OPT["list"] else ""
    txt += f"; @launch {kern}grid=(256,1,1) block=(512,1,1) lds={P1_LDS}\n"
    if OPT["probe"] >= 0:
        txt += "; @launch kernel=probe_kernel grid=(1,1,1) block=(64,1,1) lds=0\n"
        a(f"""
.p2align 8
probe_kernel:
  s_cmp_ge_u32 s2, 1
  s_cbranch_scc1 P_end
  s_load_dwordx2 s[4:5], s[0:1], 96
  s_waitcnt lgkmcnt(0)
  s_load_dwordx8 s[8:15], s[4:5], 0
  s_memrealtime s[16:17]
  s_waitcnt lgkmcnt(0)
  s_not_b32 s8, s8
  s_sub_u32 s20, s{8 + OPT['probe']}, s8
  {"s_lshr_b32 s20, s%d, 4" % (8 + OPT['probe']) if OPT['probe'] in (5, 7) else "s_nop 0"}
  s_min_u32 s20, s20, 20000
P_loop:
  s_memrealtime s[18:19]
  s_waitcnt lgkmcnt(0)
  s_sub_u32 s21, s18, s16
  s_cmp_lt_u32 s21, s20
  s_cbranch_scc1 P_loop
P_end:
  s_endpgm""")
    txt += a.text()
    txt += ".section .rodata,\"a\"\n.p2align 6\n" + kd(NAME + "_kernel", 256, 102) + (".p2align 6\n" + kd("probe_kernel", 8, 32) if OPT["probe"] >= 0 else "")
    open(out, "w").write(txt)
    print("vgprs p2:", nv, "lines:", len(a.lines), "hazards:", len(errs))

main()
```

```python
import sys, os
sys.path.insert(0, os.path.dirname(__file__))
from asmlib import Asm

NAME = "gather_scatter__molecular_angular_gemnet__graph"
E = 400000
NCH, CH = 250, 25600
EB = 1568
K = 6
MJ = 2739138
TABOFF = 0x2800000
CAROFF = 0x3000000
CARCAP = 9216
CARLIST = CARCAP * 8
STAMPOFF = 0x6000000
FLGOFF = 0x2c00000
OPT = dict(dum=0, dumm=0, abl_rbf=0, tg=-1, wall=0, cpf=3, wsoff=0, mq=11, rot=0, pf0=0, a0=2, ag=2, early=0, adj=0, probe=-1, tlb=0, cut=-1, opol=1, mpol=0, tq=3, fq=10, keff=6, jid=0, fprio=0x3ffff, lprio=0x3fff, napt=8, st0=1, stp=1, rb0=2, nap=8, list=1, nb=7, n1=2, n3=4, nl0=8, smask=0x555, arr=10, spin=60000, rec_pol=2, stamp=0, itcap=64, ld_nt=7, st_pol=0, mtouch=0, la=4, apre=2, wmain=70000, b5=0, lim=24, nb2=7, ins0=4,
           abl_mfma=0, abl_s=0, abl_cos=0, abl_g=0)
for a in sys.argv[2:]:
    k, v = a.split("=")
    assert k in OPT, k
    OPT[k] = int(v, 0)
MK = -(-(1 << 32) // OPT["wmain"])
assert (399999 * MK) >> 32 <= 5

RPOL = ('', ' nt', ' sc1', ' sc0 sc1')[OPT['rec_pol']]

POL = ('', ' nt', ' sc1', ' sc0 sc1')

def v(i, n=1):
    return f"v{i}" if n == 1 else f"v[{i}:{i+n-1}]"
def s(i, n=1):
    return f"s{i}" if n == 1 else f"s[{i}:{i+n-1}]"

def stamp(a, vreg, lane, op="s_memtime"):
    if lane == OPT["cut"]: a("  s_endpgm")
    if not OPT["stamp"]: return
    if OPT["stamp"] == 2:
        mp = {62: (0, 1), 42: (1, 0), 45: (2, 0), 1: (3, 0), 11: (4, 0), 63: (6, 0)}
        if lane == 0:
            a("  s_memtime s[88:89]\n  s_waitcnt lgkmcnt(0)\n  s_mov_b32 s91, s88")
        if lane in (11, 7):
            a(f"  s_memtime s[88:89]\n  s_waitcnt lgkmcnt(0)\n  s_sub_u32 s88, s88, s91\n  v_writelane_b32 v{vreg}, s88, {5 if lane == 11 else 7}")
        if lane not in mp: return
        l, inv = mp[lane]
        a(f"  s_memrealtime s[88:89]\n  s_waitcnt lgkmcnt(0)")
        if inv: a("  s_not_b32 s88, s88")
        a(f"  v_writelane_b32 v{vreg}, s88, {l}")
        return
    a(f"  {op} s[88:89]\n  s_waitcnt lgkmcnt(0)\n  v_writelane_b32 v{vreg}, s88, {lane}")
def stamp_out(a, vreg, wslo, nwaves, base, tmp):
    if not OPT["stamp"]: return
    if OPT["stamp"] == 2:
        back = 512
        a(f"""
  s_load_dwordx2 s[90:91], s[0:1], 96
  s_waitcnt lgkmcnt(0)
  s_add_u32 s92, s90, {back}
  s_addc_u32 s93, s91, 0
  s_mov_b32 s94, 32
  s_mov_b32 s95, 0x20000
  v_lshlrev_b32 v{tmp}, 2, v0
  buffer_atomic_umax v{vreg}, v{tmp}, s[92:95], 0 offen""")
        return
    a(f"  s_mul_i32 s88, s2, {nwaves*256}\n  s_add_u32 s88, s88, {base}")
    srd(a, 92, wslo, wslo+1, "s88", nwaves*256)
    a(f"  v_lshlrev_b32 v{tmp}, 2, v0\n  buffer_store_dword v{vreg}, v{tmp}, s[92:95], 0 offen")

def srd(a, d, lo, hi, add, size):
    if add is None:
        a(f"  s_mov_b32 s{d}, s{lo}\n  s_mov_b32 s{d+1}, s{hi}")
    else:
        a(f"  s_add_u32 s{d}, s{lo}, {add}\n  s_addc_u32 s{d+1}, s{hi}, 0")
    a(f"  s_mov_b32 s{d+2}, {size}\n  s_mov_b32 s{d+3}, 0x20000")

P1_CNT, P1_SENT, P1_TMP, P1_REC = 0, 6144, 6160, 6272
P1_LDS = P1_REC + CH * 6

TS = 264
BUFSZ = 200 * TS
S_OFF = 13 * 8192
CTL = S_OFF + 8192
RB_OFF = CTL + 128
P2_LDS = RB_OFF + 8 * 3584
D = 5
NT = 25

class RA:
    def __init__(self, start): self.n = start
    def __call__(self, k=1, al=1):
        self.n = (self.n + al - 1) // al * al
        r = self.n; self.n += k
        return r

def gen_p2(a):
    ra = RA(1)
    vSlot, vHalf, vFreq, vSst, vSrd, vI6, vI1, vI4 = (ra() for _ in range(8))
    vRd, vCntA, vOne, vOOB, vCarOff, vCarIdx, v264, vMsk, vCtlN = (ra() for _ in range(9))
    vZ = ra(2, 2)
    Q = ra(6, 4)
    sA, nA, cb, rem, rtot, vA6, vB6, vR0, vRT4 = (ra() for _ in range(9))
    vCnt = ra()
    Wa = ra(4, 4); Wb = ra(4, 4)
    RING = [ra(4, 4) for _ in range(D)]
    Da = ra(4, 4); Db = ra(4, 4); P = ra(4, 4); Sf = ra(4, 4)
    ACC = [ra(4, 4) for _ in range(NT)]
    REC = [ra(2, 4 if i == 0 else 2) for i in range(17)]
    RP = [ra(2, 2), ra(2, 2)]
    T = ra(10, 2)
    TA = [ra(), ra()]; RK = [ra(), ra()]
    WS0 = ra(2, 2); WS1 = ra(2, 2); WR = ra(2, 2); WUP = ra(2, 2)
    CC = [ra() for _ in range(D)]; SA = [ra() for _ in range(D)]
    WW = [ra(), ra()]
    assert ra.n <= 252, ra.n
    NV = ra.n
    sM = 4; sREC = 8; sCAR = 12; sTAB = 16; sOUT = 20; sDIST = 24; sMW = 28
    sJ, sW, sIt, sThr, sIns, sCarW, sCarR, sRb, sCin, sX, sFl, sEb = range(32, 44)
    sCnt = [44, 45]
    sWS = 46
    sPM = 72
    sMk = [72, 74]; sT = 76; sC10 = 78; sCl2 = 80
    sEb2 = 3
    rare = []

    O, I, R, A = 36, 88, 140, 192
    PT = 218
    vFlg, vDum, vTab, vWo, vTwo = range(240, 245)
    vL8, vL4, vSix = WS0 + 1, WS1 + 1, WR + 1
    vL128 = 253
    vL16 = WW[0]
    rDist, rSbf, rUp, rDown, rRbf = A + 4, A + 6, A + 8, A + 10, A + 12
    RBK = [sA, nA, rem, rtot, vA6, vB6, vR0, vRT4, vCnt, 86, 87, 190, 191]
    WDK = [248, 249, WW[1], 217]
    assert Wa == 36 and T == PT
    vSent = vCnt
    sIO, sII, sAN, sMT, sTW, sDBG = 4, 8, 12, 16, 20, 24
    sFLG, sRW = 92, 96
    sMJ, sMK, sNEB, sB5, sO4, sO2 = range(80, 86)
    sY, sSo = 100, 101
    nto, nti, nta = (" nt" if OPT["ld_nt"] >> b & 1 else "" for b in range(3))
    NR = 13
    nrec = lambda q: 4 if q < 12 else 2
    vm = []
    def ld_pair(q):
        if q < 12:
            a(f"  buffer_load_dwordx4 {v(O+4*q,4)}, {v(vL16)}, {s(sIO,4)}, s{sO4} offen{nto}")
            a(f"  buffer_load_dwordx4 {v(I+4*q,4)}, {v(vL16)}, {s(sII,4)}, s{sO4} offen{nti}")
            a(f"  s_add_u32 s{sO4}, s{sO4}, 8192")
        else:
            a(f"  buffer_load_dwordx2 {v(O+48,2)}, {v(vL8)}, {s(sIO,4)}, s{sO4} offen{nto}")
            a(f"  buffer_load_dwordx2 {v(I+48,2)}, {v(vL8)}, {s(sII,4)}, s{sO4} offen{nti}")
        vm.extend([("o", q), ("p", q)])
    def ld_ang(q):
        if q < 12:
            a(f"  buffer_load_dwordx2 {v(A+2*q,2)}, {v(vL8)}, {s(sAN,4)}, s{sO2} offen{nta}")
            a(f"  s_add_u32 s{sO2}, s{sO2}, 4096")
        else: a(f"  buffer_load_dword {v(A+24)}, {v(vL4)}, {s(sAN,4)}, s{sO2} offen{nta}")
        vm.append(("a", q))
    def wait_for(x):
        a(f"  s_waitcnt vmcnt({len(vm) - 1 - vm.index(x)})")
    def poll(tag, load, cond, nap=4):
        a(f"  s_mov_b32 s{sY}, {OPT['spin']}")
        a.label(f"L_poll_{tag}")
        a(load)
        a("  s_waitcnt vmcnt(0)")
        a(cond)
        a(f"""
  s_cbranch_vccz L_polled_{tag}
  s_sleep {nap}
  s_sub_u32 s{sY}, s{sY}, 1
  s_cbranch_scc0 L_poll_{tag}""")
        a.label(f"L_polled_{tag}")

    a(".p2align 8")
    a.label(NAME + "_kernel")
    ncp = [0]
    def cpf(bit, q, first=False):
        if not OPT["cpf"] >> bit & 1: return False
        ncp[0] += 1
        a(f"  s_getpc_b64 s[{q}:{q+1}]")
        a.label(f"L_cp{ncp[0]}")
        a(f"""
  s_sub_u32 s{q}, s{q}, L_cp{ncp[0]}-{NAME}_kernel
  s_subb_u32 s{q+1}, s{q+1}, 0
  s_mov_b32 s{q+2}, L_code_end-{NAME}_kernel
  s_mov_b32 s{q+3}, 0x20000""")
        if first:
            a(f"""
  s_and_b32 s{sY}, s2, 0xf8
  s_lshl_b32 s{sY}, s{sY}, 4
  v_lshl_add_u32 v255, v0, 12, s{sY}""")
        a(f"  buffer_load_dword v254, v255, s[{q}:{q+3}], 0 offen")
        return True
    a(f"""
  s_cmp_ge_u32 s2, 256
  s_cbranch_scc1 L_end
  s_load_dwordx16 s[48:63], s[0:1], 0
  s_load_dwordx4 s[44:47], s[0:1], 96
  s_load_dwordx8 s[64:71], s[0:1], 64""")
    cpf(0, 28, True)
    a(f"""
  v_lshlrev_b32 {v(vL16)}, 4, v0
  s_min_u32 s{sY}, s2, {NCH-1}
  s_mul_i32 s{sX}, s{sY}, {CH*4}
  s_cmp_lt_u32 s2, {NCH}
  s_cselect_b32 s{sFl}, {CH*2}, 0
  s_lshl_b32 s{sIO+2}, s{sFl}, 1
  s_mov_b32 s{sII+2}, s{sIO+2}
  s_mov_b32 s{sIO+3}, 0x20000
  s_mov_b32 s{sII+3}, 0x20000
  s_mov_b32 s{sO4}, 0
  v_mov_b64 {v(PT,2)}, 0
  v_mov_b64 {v(PT+2,2)}, 0
  s_mov_b32 s{sO2}, 0
  ds_write_b128 {v(vL16)}, {v(PT,4)}
  v_lshrrev_b32 {v(T+8)}, 6, v0
  s_and_b32 s{sJ}, s2, 7
  s_lshl_b32 s{sJ}, s{sJ}, 5
  s_lshr_b32 s{sEb}, s2, 3
  s_add_u32 s{sJ}, s{sJ}, s{sEb}
  v_readfirstlane_b32 s{sW}, {v(T+8)}
  v_and_b32 {v(T+7)}, 63, v0
  v_lshlrev_b32 {v(T+6)}, 3, {v(T+7)}
  v_lshlrev_b32 {v(T+7)}, 2, {v(T+7)}
  s_mul_i32 s{sEb}, s{sJ}, {EB*2}
  s_mul_i32 s{sRb}, s{sW}, 400
  s_add_u32 s{sEb}, s{sEb}, s{sRb}
  s_waitcnt lgkmcnt(0)""")
    if OPT["stamp"] == 2: a("  v_mov_b32 v252, 0\n  s_nop 1")
    stamp(a, 252, 0); stamp(a, 252, 62, "s_memrealtime")
    a(f"""
  s_add_u32 s{sIO}, s52, s{sX}
  s_addc_u32 s{sIO+1}, s53, 0
  s_add_u32 s{sII}, s50, s{sX}
  s_addc_u32 s{sII+1}, s51, 0""")
    ld_pair(0)
    if OPT["wsoff"]: a(f"  s_add_u32 s{sWS}, s{sWS}, {OPT['wsoff'] << 20}\n  s_addc_u32 s{sWS+1}, s{sWS+1}, 0")
    srd(a, 28, 54, 55, None, E * 2)
    a(f"""
  buffer_load_dwordx2 {v(rDist,2)}, {v(T+6)}, s[28:31], s{sEb} offen
  global_load_dwordx2 {v(rSbf,2)}, {v(T+6)}, s[64:65]
  global_load_dwordx2 {v(rUp,2)}, {v(T+6)}, s[68:69]
  global_load_dwordx2 {v(rDown,2)}, {v(T+6)}, s[66:67]
  global_load_dword {v(rRbf)}, {v(T+7)}, s[62:63]""")
    vm.extend([("s", i) for i in range(5)])
    ld_pair(1)
    a("  s_barrier")
    LA = OPT["la"]
    for q in range(2, LA): ld_pair(q)
    a(f"  s_lshr_b32 s{sX}, s{sX}, 1")
    srd(a, sAN, 56, 57, f"s{sX}", f"s{sFl}")
    srd(a, sMT, 48, 49, f"s{sX}", f"s{sFl}")
    a(f"  s_mul_i32 s{sX}, s{sY}, {CH*6}\n  s_mul_i32 s{sFl}, s{sFl}, 3")
    srd(a, sRW, sWS, sWS+1, f"s{sX}", f"s{sFl}")
    srd(a, sTW, sWS, sWS+1, TABOFF, 256 * 8192)
    srd(a, sFLG, sWS, sWS+1, FLGOFF, 8192)
    srd(a, sDBG, 44, 45, None, 256)
    a(f"""
  s_lshl_b32 s{sX}, s2, 2
  v_lshl_add_u32 {v(vFlg)}, v0, 10, s{sX}
  s_cmp_lt_u32 s2, {NCH}
  s_cselect_b32 s{sX}, 0, 4
  v_mov_b32 {v(vDum)}, s{sX}
  buffer_store_dword {v(vDum)}, {v(vFlg)}, {s(sFLG,4)}, 0 offen sc1
  s_lshl_b32 s{sX}, s{sX}, 20
  v_or_b32 {v(vFlg)}, s{sX}, {v(vFlg)}
  s_load_dword s{sCin}, s[60:61], 0
  s_load_dwordx4 s[56:59], s[58:59], 0
  v_lshlrev_b32 {v(vL8)}, 3, v0
  v_lshlrev_b32 {v(vL4)}, 2, v0
  {'v_mov_b32 %s, %d' % (v(vL128), E//8) if OPT['rot'] == 2 else 'v_lshlrev_b32 %s, 7, v0' % v(vL128)}
  v_mov_b32 {v(vSix)}, 6
  v_mov_b32 {v(vTwo)}, 2
  s_mov_b32 s{sMJ}, {MJ}
  s_mov_b32 s{sMK}, {MK}
  s_mov_b32 s{sNEB}, {-EB & 0xffffffff}
  s_mov_b32 s{sB5}, {(-(E//8) & 0xffffffff) if OPT['rot'] else OPT['b5']}
  v_lshrrev_b32 {v(T)}, 6, v0
  v_and_b32 {v(T+2)}, 15, v0
  v_bfe_u32 {v(T+3)}, v0, 5, 1
  v_lshlrev_b32 {v(vHalf)}, 4, {v(T+3)}
  v_lshl_add_u32 {v(cb)}, {v(T)}, 5, {v(vHalf)}
  v_add_u32 {v(cb)}, {v(cb)}, {v(T+2)}
  v_lshlrev_b32 {v(vTab)}, 13, {v(cb)}
  v_and_b32 {v(T+1)}, 63, v0
  v_and_b32 {v(vSlot)}, 31, v0
  v_mov_b64 {v(vZ,2)}, 0
  v_mov_b32 {v(v264)}, {TS}
  v_mov_b32 {v(vCtlN)}, {CTL}
  s_lshl_b32 s{sX}, s{sW}, 10
  s_add_u32 s{sX}, s{sX}, {S_OFF}
  v_lshl_add_u32 {v(vSrd)}, {v(T+1)}, 4, s{sX}
  v_bfe_u32 {v(T+6)}, v0, 2, 2
  v_lshlrev_b32 {v(vSst)}, 8, {v(T+6)}
  v_lshl_add_u32 {v(vSst)}, {v(T+3)}, 7, {v(vSst)}
  v_bfe_u32 {v(T+6)}, v0, 4, 1
  v_lshl_add_u32 {v(vSst)}, {v(T+6)}, 3, {v(vSst)}
  v_and_b32 {v(T+6)}, 3, v0
  v_lshl_add_u32 {v(vSst)}, {v(T+6)}, 1, {v(vSst)}
  v_add_u32 {v(vSst)}, s{sX}, {v(vSst)}
  v_mov_b32 {v(vOne)}, 1
  v_mov_b32 {v(vOOB)}, 0x80000000
  v_mov_b32 {v(vMsk)}, 0x7ffffffc
  v_mul_u32_u24 {v(vI6)}, 6, {v(vSlot)}
  v_add_u32 {v(vI1)}, 1, {v(vSlot)}
  v_lshlrev_b32 {v(vI4)}, 2, {v(vI1)}
  v_mov_b32 {v(T+6)}, {CH}
  v_mul_u32_u24 {v(cb)}, {v(cb)}, {v(T+6)}
  s_mul_i32 s{sX}, s{sW}, {NT*TS}
  s_add_u32 s{sX}, s{sX}, {BUFSZ}
  v_lshl_add_u32 {v(vRd)}, {v(vSlot)}, 3, s{sX}""")
    sOdd, s70 = 86, 84
    if OPT["adj"]:
        a(f"""
  v_bfe_u32 {v(vSlot)}, v0, 1, 5
  v_lshl_add_u32 {v(vRd)}, {v(vSlot)}, 3, s{sX}
  v_and_b32 {v(T+3)}, 1, v0
  v_lshlrev_b32 {v(vHalf)}, 4, {v(T+3)}
  s_lshl_b32 s{sY}, s{sW}, 10
  s_add_u32 s{sY}, s{sY}, {S_OFF}
  v_bfe_u32 {v(T+6)}, v0, 2, 2
  v_lshlrev_b32 {v(vSst)}, 8, {v(T+6)}
  v_mul_u32_u24 {v(T+6)}, 0xc0, {v(T+3)}
  v_add_u32 {v(vSst)}, {v(vSst)}, {v(T+6)}
  v_bfe_u32 {v(T+6)}, v0, 4, 1
  v_lshl_add_u32 {v(vSst)}, {v(T+6)}, 3, {v(vSst)}
  v_bfe_u32 {v(T+6)}, v0, 1, 1
  v_lshl_add_u32 {v(vSst)}, {v(T+6)}, 2, {v(vSst)}
  v_bfe_u32 {v(T+6)}, v0, 5, 1
  v_lshl_add_u32 {v(vSst)}, {v(T+6)}, 1, {v(vSst)}
  v_add_u32 {v(vSst)}, s{sY}, {v(vSst)}
  v_bfe_u32 {v(T+6)}, v0, 3, 1
  v_lshlrev_b32 {v(T+6)}, 6, {v(T+6)}
  v_xor_b32 {v(vSrd)}, {v(vSrd)}, {v(T+6)}""")
    a(f"""
  v_min_u32 {v(T+6)}, {NT-1}, {v(T+1)}
  v_mad_u32_u24 {v(vCntA)}, {v(T+6)}, {v(v264)}, s{sX}
  v_sub_u32 {v(vCarIdx)}, 511, v0
  v_lshlrev_b32 {v(vCarOff)}, 3, {v(vCarIdx)}
  v_cmp_eq_u32 vcc, 1, {v(T+3)}
  s_waitcnt lgkmcnt(0)
  s_lshl_b32 s{sX}, s{sCin}, 16
  s_and_b32 s{sCin}, s{sCin}, 0xffff0000
  v_mov_b32 {v(vFreq)}, s{sX}
  v_mov_b32 {v(T+6)}, s{sCin}
  v_cndmask_b32 {v(vFreq)}, {v(vFreq)}, {v(T+6)}, vcc
  s_mov_b32 s{sIt}, -1
  s_mov_b32 s{sIns}, 0
  s_mov_b32 s{sCarW}, 0
  s_mov_b32 s{sCarR}, {CARLIST}
  s_mul_i32 s{sEb}, s{sJ}, {EB}
  s_mul_i32 s{sX}, s{sW}, 200
  s_add_u32 s{sFl}, s{sEb}, {EB}
  s_add_u32 s{sEb}, s{sEb}, s{sX}
  s_add_u32 s{sRb}, s{sEb}, 200
  s_min_u32 s{sRb}, s{sRb}, s{sFl}
  s_min_u32 s{sRb}, s{sRb}, {E}
  s_lshl_b32 s{sRb}, s{sRb}, 5
  s_lshl_b32 s{sEb}, s{sEb}, 5
  s_add_u32 s{sEb2}, s{sEb}, 4096""")

    if OPT["tlb"]:
        sh = OPT["tlb"]
        srd(a, 28, sWS, sWS+1, None, FLGOFF + 8192)
        a(f"  v_lshlrev_b32 v249, {sh}, v0\n  buffer_load_dword v248, v249, s[28:31], 0 offen")
        srd(a, 28, 48, 49, None, E * 32)
        a(f"  buffer_load_dword v248, v249, s[28:31], 0 offen")
        srd(a, 28, 70, 71, None, E * 32)
        a(f"  buffer_load_dword v248, v249, s[28:31], 0 offen")
        vm.extend([("tlb", i) for i in range(3)])
    a(f"""
  s_cmp_ge_u32 s2, {NCH}
  s_cbranch_scc1 L_nochunk1""")
    vm.append(("flg", 0))
    arrive = f"""
  s_and_b32 s{sY}, s2, 15
  s_lshl_b32 s{sY}, s{sY}, 4
  v_lshlrev_b32 {v(PT)}, 8, v0
  buffer_atomic_add {v(vOne)}, {v(PT)}, {s(sDBG,4)}, s{sY} offen"""
    def hist(idx):
        if OPT["b5"]:
            for x, i in enumerate(idx): a(f"  v_cmp_le_u32 {s(72+2*x,2)}, s{sB5}, {v(I+i)}")
        for x, i in enumerate(idx): a(f"  v_mul_hi_u32_u24 {v(PT+x)}, s{sMJ}, {v(O+i)}")
        if OPT["rot"] == 2:
            for x, i in enumerate(idx): a(f"  v_lshrrev_b32 {v(PT+4+x)}, 5, {v(PT+x)}")
            for x, i in enumerate(idx): a(f"  v_mad_i32_i24 {v(PT+4+x)}, {v(PT+4+x)}, s{sB5}, {v(I+i)}")
            for x, i in enumerate(idx): a(f"  v_cmp_gt_u32 {s(72+2*x,2)}, {v(vL128)}, {v(PT+4+x)}")
            for x, i in enumerate(idx): a(f"  v_ashrrev_i32 {v(PT+4+x)}, 31, {v(PT+4+x)}")
            for x, i in enumerate(idx): a(f"  v_and_b32 {v(PT+4+x)}, {v(vL128)}, {v(PT+4+x)}")
            for x, i in enumerate(idx): a(f"  v_add3_u32 {v(PT+4+x)}, {v(PT+4+x)}, s{sB5}, {v(I+i)}")
            for x, i in enumerate(idx): a(f"  v_mul_hi_u32_u24 {v(PT+4+x)}, s{sMK}, {v(PT+4+x)}")
            for x, i in enumerate(idx): a(f"  v_cndmask_b32 {v(PT+4+x)}, {v(PT+4+x)}, 5, {s(72+2*x,2)}")
        elif OPT["rot"]:
            for x, i in enumerate(idx): a(f"  v_lshrrev_b32 {v(PT+4+x)}, 5, {v(PT+x)}")
            for x, i in enumerate(idx): a(f"  v_mad_i32_i24 {v(PT+4+x)}, {v(PT+4+x)}, s{sB5}, {v(I+i)}")
            for x, i in enumerate(idx): a(f"  v_add_u32 {v(PT+8+x)}, {E - E//8}, {v(PT+4+x)}")
            for x, i in enumerate(idx): a(f"  v_add_u32 {v(PT+4+x)}, s{sB5}, {v(PT+4+x)}")
            for x, i in enumerate(idx): a(f"  v_min_u32 {v(PT+4+x)}, {v(PT+4+x)}, {v(PT+8+x)}")
            for x, i in enumerate(idx): a(f"  v_mul_hi_u32_u24 {v(PT+4+x)}, s{sMK}, {v(PT+4+x)}")
        else:
            for x, i in enumerate(idx): a(f"  v_mul_hi_u32_u24 {v(PT+4+x)}, s{sMK}, {v(I+i)}")
        if OPT["b5"]:
            for x, i in enumerate(idx): a(f"  v_cndmask_b32 {v(PT+4+x)}, {v(PT+4+x)}, 5, {s(72+2*x,2)}")
        for x, i in enumerate(idx): a(f"  v_mad_i32_i24 {v(PT+8+x)}, {v(PT+x)}, s{sNEB}, {v(O+i)}")
        for x, i in enumerate(idx): a(f"  v_lshl_add_u32 {v(O+i)}, {v(PT+4+x)}, 8, {v(PT+x)}")
        for x, i in enumerate(idx): a(f"  v_lshlrev_b32 {v(O+i)}, 2, {v(O+i)}")
        for x, i in enumerate(idx): a(f"  ds_add_rtn_u32 {v(R+i)}, {v(O+i)}, {v(vOne)}")
        for x, i in enumerate(idx): a(f"  v_lshl_or_b32 {v(I+i)}, {v(PT+8+x)}, 20, {v(I+i)}")
        for x, i in enumerate(idx): a(f"  v_or_b32 {v(I+i)}, 0x80000000, {v(I+i)}")
    def prep(piece):
        Z = R + 24
        aW, aD, aS, aR, aN, gq = Z, Z + 1, Z + 2, Z + 3, Z + 4, Z + 5
        CEN = Z + 6; H = Z + 8; Y = Z + 16
        if piece == 0:
            a(f"""
  s_lshl_b32 s{sX}, s{sW}, 12
  s_add_u32 s{sX}, s{sX}, 8192
  v_and_b32 {v(gq)}, 63, v0
  v_lshl_add_u32 {v(aW)}, {v(gq)}, 3, s{sX}
  v_lshl_add_u32 {v(gq)}, {v(gq)}, 2, s{sX}
  ds_write_b64 {v(aW)}, {v(rDist,2)}
  ds_write_b64 {v(aW)}, {v(rSbf,2)} offset:512
  ds_write_b64 {v(aW)}, {v(rUp,2)} offset:1024
  ds_write_b32 {v(gq)}, {v(rRbf)} offset:1536
  ds_write_b64 {v(aW)}, {v(rDown,2)} offset:2048
  v_and_b32 {v(aD)}, 15, v0
  v_bfe_u32 {v(gq)}, v0, 4, 2
  v_lshl_add_u32 {v(aD)}, {v(aD)}, 1, s{sX}
  v_lshl_add_u32 {v(aS)}, {v(gq)}, 7, {v(aD)}
  v_lshl_add_u32 {v(aR)}, {v(gq)}, 6, {v(aD)}
  v_bfe_u32 {v(aN)}, v0, 5, 1
  v_lshl_add_u32 {v(aN)}, {v(aN)}, {7 if OPT["adj"] else 8}, {v(aD)}
  ds_read_u16 {v(WS0)}, {v(aS)} offset:512
  ds_read_u16 {v(WS1)}, {v(aS)} offset:{512+32}
  ds_read_u16 {v(Y)}, {v(aS)} offset:{512+64}
  ds_read_u16 {v(Y+1)}, {v(aS)} offset:{512+96}
  ds_read_u16 {v(WUP)}, {v(aS)} offset:1024
  ds_read_u16 {v(Y+2)}, {v(aS)} offset:{1024+32}
  ds_read_u16 {v(WUP+1)}, {v(aS)} offset:{1024+64}
  ds_read_u16 {v(Y+3)}, {v(aS)} offset:{1024+96}
  ds_read_u16 {v(WR)}, {v(aR)} offset:1536
  ds_read_u16 {v(Y+4)}, {v(aR)} offset:{1536+32}""")
            for r in range(8): a(f"  ds_read_u16 {v(WDK[r//2] if r % 2 == 0 else H + r//2)}, {v(aN)} offset:{2048 + (((r&3) + 8*(r>>2)) if OPT['adj'] else r)*32}")
            for p in range(13): a(f"  ds_read_u16 {v(RBK[p])}, {v(aD)} offset:{p*32}")
            return
        if piece == 1:
            a(f"""
  v_mov_b32 {v(CEN+1)}, s56
  v_cmp_eq_u32 vcc, 1, {v(gq)}
  v_mov_b32 {v(CEN)}, s57
  v_cmp_eq_u32 {s(sT,2)}, 2, {v(gq)}
  v_cndmask_b32 {v(CEN+1)}, {v(CEN+1)}, {v(CEN)}, vcc
  v_mov_b32 {v(CEN)}, s58
  v_cmp_eq_u32 vcc, 3, {v(gq)}
  v_cndmask_b32 {v(CEN+1)}, {v(CEN+1)}, {v(CEN)}, {s(sT,2)}
  v_mov_b32 {v(CEN)}, s59
  v_cndmask_b32 {v(CEN+1)}, {v(CEN+1)}, {v(CEN)}, vcc
  v_lshlrev_b32 {v(CEN)}, 16, {v(CEN+1)}
  v_and_b32 {v(CEN+1)}, 0xffff0000, {v(CEN+1)}
  s_mov_b32 s56, 0xc1200000
  s_mov_b32 s57, 0xc1200000
  s_mov_b32 s58, 0x3fb8aa3b
  s_mov_b32 s59, 0x3fb8aa3b
  s_waitcnt lgkmcnt(0)
  v_lshl_or_b32 {v(WS0)}, {v(Y)}, 16, {v(WS0)}
  v_lshl_or_b32 {v(WS1)}, {v(Y+1)}, 16, {v(WS1)}
  v_lshl_or_b32 {v(WUP)}, {v(Y+2)}, 16, {v(WUP)}
  v_lshl_or_b32 {v(WUP+1)}, {v(Y+3)}, 16, {v(WUP+1)}
  v_lshl_or_b32 {v(WR)}, {v(Y+4)}, 16, {v(WR)}""")
            for r in range(4): a(f"  v_lshl_or_b32 {v(WDK[r])}, {v(H+r)}, 16, {v(WDK[r])}")
        ps = ([0,1,2], [3,4,5,6,7], [8,9,10,11,12])[piece - 1]
        tt = {p: H + 2 * (p - ps[0]) for p in ps}
        def rnd():
            for p in ps: a(f"  v_cvt_pk_bf16_f32 {v(tt[p])}, 0, {v(tt[p])}\n  v_cvt_pk_bf16_f32 {v(tt[p]+1)}, 0, {v(tt[p]+1)}")
        for p in ps: a(f"  v_lshlrev_b32 {v(tt[p])}, 16, {v(RBK[p])}")
        for p in ps: a(f"  v_pk_add_f32 {v(tt[p],2)}, {v(tt[p],2)}, {v(CEN,2)} op_sel_hi:[0,1] neg_lo:[0,1] neg_hi:[0,1]")
        rnd()
        for p in ps: a(f"  v_pk_mul_f32 {v(tt[p],2)}, {v(tt[p],2)}, {v(tt[p],2)}")
        rnd()
        for p in ps: a(f"  v_pk_mul_f32 {v(tt[p],2)}, {v(tt[p],2)}, s[56:57]")
        rnd()
        for p in ps: a(f"  v_pk_mul_f32 {v(tt[p],2)}, {v(tt[p],2)}, s[58:59]")
        for p in ps: a(f"  v_exp_f32 {v(tt[p])}, {v(tt[p])}\n  v_exp_f32 {v(tt[p]+1)}, {v(tt[p]+1)}")
        for p in ps: a(f"  v_cvt_pk_bf16_f32 {v(RBK[p])}, {v(tt[p])}, {v(tt[p]+1)}")
    na = 0
    for q in range(NR):
        wait_for(("p", q))
        if q == 0: stamp(a, 252, 40)
        if q == LA:
            a(arrive); vm.append(("arr", 0))
        if OPT["mtouch"] == 3 and q == OPT["mq"]:
            a(f"  buffer_load_dword v244, {v(vL128)}, {s(sMT,4)}, 0 offen"); vm.append(("m", 0))
        if q + LA < NR: ld_pair(q + LA)
        else:
            for _ in range(2):
                if na < OPT["apre"]: ld_ang(na); na += 1
        hist(list(range(4*q, 4*q + nrec(q))))
        if 1 <= q <= 4: prep(q - 1)
    stamp(a, 252, 41)
    X = v(PT+4)
    PR = A + 4
    assert OPT["apre"] <= 2
    a(f"""
  v_and_b32 {v(PT+8)}, 0x3f0, {v(vL16)}
  v_lshrrev_b32 {v(PT+12)}, 1, v0
  v_and_b32 {v(PT+13)}, 1, v0
  v_lshlrev_b32 {v(PT+12)}, 2, {v(PT+12)}
  v_lshl_add_u32 {v(PT+13)}, {v(PT+13)}, 12, {v(PT+12)}
  s_waitcnt lgkmcnt(0)
  s_barrier
  s_cmp_ge_u32 s{sW}, {K}
  s_cbranch_scc1 L_bin_s2
  ds_read_b128 {v(PT,4)}, {v(vL16)}""")
    for r in range(K - 1): a(f"  ds_read_b128 {v(PR+4*r,4)}, {v(PT+8)} offset:{r*1024}")
    for r in range(K - 1): a(f"  s_cmp_gt_u32 s{sW}, {r}\n  s_cselect_b32 s{72+r}, 1, 0")
    a(f"""
  s_waitcnt lgkmcnt({K-1})
  v_add_u32 {v(PT+5)}, {v(PT)}, {v(PT+1)}
  v_add_u32 {v(PT+6)}, {v(PT+5)}, {v(PT+2)}
  v_add_u32 {v(PT+7)}, {v(PT+6)}, {v(PT+3)}""")
    for r in range(K - 1):
        a(f"""
  s_waitcnt lgkmcnt({K-2-r})
  v_add3_u32 {v(PR+4*r)}, {v(PR+4*r)}, {v(PR+4*r+1)}, {v(PR+4*r+2)}
  v_add_u32 {v(PR+4*r)}, {v(PR+4*r)}, {v(PR+4*r+3)}""")
        if r == 0: a(f"  v_mul_u32_u24 {v(PT+9)}, s72, {v(PR)}")
        else: a(f"  v_mad_u32_u24 {v(PT+9)}, {v(PR+4*r)}, s{72+r}, {v(PT+9)}")
    a(f"  v_lshl_or_b32 {X}, {v(PT+9)}, 16, {v(PT+7)}")
    for sh in (1, 2, 4, 8):
        a(f"  s_nop 1\n  v_add_u32_dpp {X}, {X}, {X} row_shr:{sh} row_mask:0xf bank_mask:0xf bound_ctrl:0")
    a(f"  s_nop 1\n  v_add_u32_dpp {X}, {X}, {X} row_bcast:15 row_mask:0xa bank_mask:0xf")
    a(f"  s_nop 1\n  v_add_u32_dpp {X}, {X}, {X} row_bcast:31 row_mask:0xc bank_mask:0xf")
    a(f"""
  s_nop 0
  v_readlane_b32 s{sY}, {X}, 63
  v_sub_u32 {X}, {X}, {v(PT+7)}
  s_lshr_b32 s{sY}, s{sY}, 16
  v_add_u32 {X}, s{sY}, {X}
  v_add_u32 {v(PT+7)}, {X}, {v(PT+6)}
  v_add_u32 {v(PT+6)}, {X}, {v(PT+5)}
  v_add_u32 {v(PT+5)}, {X}, {v(PT)}
  v_lshl_or_b32 {v(PT)}, {X}, 16, {v(PT)}
  v_lshl_or_b32 {v(PT+1)}, {v(PT+5)}, 16, {v(PT+1)}
  v_lshl_or_b32 {v(PT+2)}, {v(PT+6)}, 16, {v(PT+2)}
  v_lshl_or_b32 {v(PT+3)}, {v(PT+7)}, 16, {v(PT+3)}
  ds_write_b128 {v(vL16)}, {v(PT,4)}
  s_waitcnt lgkmcnt(0)""")
    a.label("L_bin_s2")
    a(f"  s_lshl_b32 s{sY}, s2, 13\n  s_barrier")
    stamp(a, 252, 42)
    TB = PT + 8
    for k in range(4): a(f"  ds_read_b32 {v(TB+k)}, {v(PT+13)} offset:{k*1024}")
    NB = OPT["nb"]
    vDa, vDv, vRa = 245, 246, 247
    lda = f"  buffer_load_dword {v(vDv)}, {v(vDa)}, {s(sDBG,4)}, 0 offen sc1"
    cda = f"  v_cmp_gt_u32 vcc, 16, {v(vDv)}"
    ada = f"""
  s_lshl_b32 s{sX}, s{sW}, 16
  v_and_b32 {v(vDa)}, 15, v0
  v_lshl_add_u32 {v(vDa)}, {v(vDa)}, 4, s{sX}"""
    NRD = 15
    for i in range(10): a(f"  ds_read_u16 {v(O+i)}, {v(O+i)} offset:2")
    a("  s_waitcnt lgkmcnt(10)")
    for k in range(4): a(f"  v_alignbit_b32 {v(TB+k)}, {v(TB+k)}, {v(TB+k)}, 16")
    a(f"  buffer_store_dwordx4 {v(TB,4)}, {v(vL16)}, {s(sTW,4)}, s{sY} offen sc1")
    vm.append(("tab", 0))
    for i in range(10, NRD): a(f"  ds_read_u16 {v(O+i)}, {v(O+i)} offset:2")
    for _ in range(OPT["a0"]):
        if na < NR: ld_ang(na); na += 1
    a(f"  s_mov_b32 s{sB5}, {NB*8192 + 4}\n  s_mov_b32 s{sSo}, 0")
    a(ada)
    a(f"  v_add_u32 {v(vRa)}, {P1_REC}, {v(vL16)}")
    for g in range(10):
        idx = list(range(5*g, 5*g+5))
        if g == OPT["tg"]:
            wait_for(("tab", 0))
            a("  s_barrier")
            a(lda); vm.append(("lda", 0))
            a(f"  buffer_store_dword {v(vOne)}, {v(vFlg)}, {s(sFLG,4)}, 0 offen sc1"); vm.append(("flg", 1))
        for _ in range(OPT["ag"]):
            if na < NR: ld_ang(na); na += 1
        a(f"  s_waitcnt lgkmcnt({10 if OPT['wall'] else min(10, 45 - 5*g)})")
        for i in idx:
            if i + NRD < 50: a(f"  ds_read_u16 {v(O+i+NRD)}, {v(O+i+NRD)} offset:2")
        for i in idx: a(f"  v_add_u32 {v(O+i)}, {v(O+i)}, {v(R+i)}")
        for i in idx: a(f"  v_mad_u32_u24 {v(O+i)}, {v(O+i)}, {v(vSix)}, {v(vTwo)}")
        for x, i in enumerate(idx): a(f"  v_and_b32 {v(PT+x)}, 2, {v(O+i)}")
        for i in idx: a(f"  v_and_b32 {v(R+i)}, -4, {v(O+i)}")
        if OPT["wall"]:
            for i in idx: a(f"  ds_write_b32 {v(R+i)}, {v(I+i)} offset:{P1_REC}")
        for x, i in enumerate(idx): a(f"  v_lshl_add_u32 {v(O+i)}, {v(PT+x)}, 1, {v(O+i)}")
    assert na == NR
    if OPT["mtouch"] == 1:
        a(f"  buffer_load_dword v244, {v(vL128)}, {s(sMT,4)}, 0 offen"); vm.append(("m", 0))
    def put(q, cmp):
        idx = list(range(4*q, 4*q + nrec(q)))
        for x, i in enumerate(idx): a(f"  v_cmp_{cmp}_u32 {s(72+2*x,2)}, s{sB5}, {v(R+i)}")
        for x, i in enumerate(idx):
            op = "ds_write_b16_d16_hi" if (i & 1) else "ds_write_b16"
            a(f"""
  s_mov_b64 exec, {s(72+2*x,2)}
  {"" if OPT["wall"] else "ds_write_b32 %s, %s offset:%d" % (v(R+i), v(I+i), P1_REC)}
  {op} {v(O+i)}, {v(A + i//2)} offset:{P1_REC-2}""")
        a("  s_mov_b64 exec, -1")
    for q in range(NR):
        wait_for(("a", q))
        for r in range(nrec(q) // 2): a(f"  v_and_b32 {v(A+2*q+r)}, 0x7fff7fff, {v(A+2*q+r)}")
        if q == OPT["tq"] and OPT["tg"] < 0:
            assert q >= OPT["apre"]
            a("  s_barrier")
            a(lda); vm.append(("lda", 0))
            a(f"  buffer_store_dword {v(vOne)}, {v(vFlg)}, {s(sFLG,4)}, 0 offen sc1"); vm.append(("flg", 1))
            if OPT["mtouch"] == 2:
                a(f"  buffer_load_dword v244, {v(vL128)}, {s(sMT,4)}, 0 offen"); vm.append(("m", 0))
        put(q, "gt")
    a(f"  ds_read_u16 {v(vWo)}, {v(vZ)} offset:2050")
    a("  s_waitcnt lgkmcnt(0)\n  s_barrier")
    stamp(a, 252, 43)
    a(f"  v_readfirstlane_b32 s{sO2}, {v(vWo)}")
    free = [PT, PT + 4, PT + 8, O, I, R, O + 4, I + 4, R + 4]
    def erd(r): a(f"  ds_read_b128 {v(free[r],4)}, {v(vRa)} offset:{r*8192}")
    def est(r):
        a(f"  buffer_store_dwordx4 {v(free[r],4)}, {v(vL16)}, {s(sRW,4)}, s{sSo} offen sc1\n  s_add_u32 s{sSo}, s{sSo}, 8192")
        vm.append(("st", r))
    assert NB <= 8
    fad = f"""
  v_and_b32 {v(RK[0])}, 63, v0
  v_lshlrev_b32 {v(RK[0])}, 4, {v(RK[0])}
  s_and_b32 s{sCin}, s2, 7
  s_lshl_b32 s{sCin}, s{sCin}, 10"""
    if OPT["wall"]:
        free = [I + 4 * r for r in range(8)]
        for r in range(NB): erd(r)
        a(fad)
        a(f"  s_mov_b32 s{sO4}, 0\n  s_cmp_lg_u32 s{sW}, 0\n  s_cbranch_scc1 L_nofl")
        wait_for(("lda", 0))
        a(cda)
        a(f"  s_cbranch_vccnz L_nofl\n  s_mov_b32 s{sO4}, 1")
        a(f"  buffer_load_dwordx4 {v(PT,4)}, {v(RK[0])}, {s(sFLG,4)}, s{sCin} offen sc1")
        a.label("L_nofl")
        for r in range(3):
            a(f"  s_waitcnt lgkmcnt({NB - 1 - r})")
            est(r)
        a("  s_waitcnt lgkmcnt(0)")
        put(0, "le"); put(1, "le"); put(2, "le")
    else:
        for r in range(3): erd(r)
        for r in range(3):
            a(f"  s_waitcnt lgkmcnt({2 - r})")
            est(r)
        put(0, "le"); put(1, "le")
        for r in range(3, NB): erd(r)
        put(2, "le")
        a("  s_waitcnt lgkmcnt(0)")
    todo = list(range(3, NB))
    fad = f"""
  v_and_b32 {v(RK[0])}, 63, v0
  v_lshlrev_b32 {v(RK[0])}, 4, {v(RK[0])}
  s_and_b32 s{sCin}, s2, 7
  s_lshl_b32 s{sCin}, s{sCin}, 10"""
    for q in range(3, NR):
        if todo: est(todo.pop(0))
        if q == OPT["fq"] and not OPT["wall"]:
            assert q >= 8 and Da == O + 28 and not todo
            a(fad)
            a(f"  s_mov_b32 s{sO4}, 0\n  s_cmp_lg_u32 s{sW}, 0\n  s_cbranch_scc1 L_nofl")
            wait_for(("lda", 0))
            a(cda)
            a(f"  s_cbranch_vccnz L_nofl\n  s_mov_b32 s{sO4}, 1")
            a(f"  buffer_load_dwordx4 {v(Da,4)}, {v(RK[0])}, {s(sFLG,4)}, s{sCin} offen sc1")
            a.label("L_nofl")
        put(q, "le")
    assert not todo
    stamp(a, 252, 44)
    FP = Da
    def flag_load(dst, off): return f"  buffer_load_dwordx4 {v(dst,4)}, {v(off)}, {s(sFLG,4)}, s{sCin if dst == FP else sX} offen sc1"
    def flag_cond(dst, stage): return f"""
  v_min3_u32 {v(dst)}, {v(dst)}, {v(dst+1)}, {v(dst+2)}
  v_min_u32 {v(dst)}, {v(dst)}, {v(dst+3)}
  v_cmp_gt_u32 vcc, {stage}, {v(dst)}"""
    if OPT["wall"]: a(f"  s_cmp_lg_u32 s{sW}, 0\n  s_cbranch_scc1 L_polled_t\n  s_waitcnt vmcnt({NB})")
    else: a(f"  s_waitcnt vmcnt(0)\n  s_cmp_lg_u32 s{sW}, 0\n  s_cbranch_scc1 L_polled_t")
    a(f"  s_cmp_eq_u32 s{sO4}, 0\n  s_cbranch_scc1 L_wait_a")
    a(flag_cond(PT if OPT["wall"] else FP, 1))
    a("  s_cbranch_vccz L_polled_t\n  s_branch L_polled_a")
    a.label("L_nochunk1")
    if 40 <= OPT["cut"] <= 44: a("  s_endpgm")
    a("  s_waitcnt vmcnt(0)")
    a(arrive)
    for piece in range(4): prep(piece)
    a(ada)
    a(fad)
    a(f"  s_mov_b32 s{sO2}, 0\n  s_cmp_lg_u32 s{sW}, 0\n  s_cbranch_scc1 L_polled_t")
    a.label("L_wait_a")
    poll("a", lda, cda, 64)
    poll("t", flag_load(FP, RK[0]), flag_cond(FP, 1), OPT["napt"])
    a(f"""
  s_lshl_b32 s{sX}, s{sJ}, 5
  s_add_u32 s{sX}, s{sX}, {TABOFF}""")
    srd(a, sTAB, sWS, sWS+1, f"s{sX}", (NCH - 1) * 8192 + 32)

    def state_update():
        a(f"""
  v_sub_u32 {v(rem)}, {v(rem)}, {v(rtot)}
  v_lshrrev_b32 {v(T)}, 16, {v(Q)}
  v_and_b32 {v(T+1)}, 0xffff, {v(Q)}
  v_min_u32 {v(vR0)}, 32, {v(nA)}
  v_cmp_ge_u32 vcc, 32, {v(nA)}
  v_sub_u32 {v(T+2)}, 32, {v(vR0)}
  v_add_u32 {v(vB6)}, {v(cb)}, {v(T+1)}
  v_min_u32 {v(T+2)}, {v(T)}, {v(T+2)}
  v_mul_u32_u24 {v(vB6)}, 6, {v(vB6)}
  v_add_u32 {v(rtot)}, {v(vR0)}, {v(T+2)}
  v_mad_i32_i24 {v(vB6)}, {v(vR0)}, -6, {v(vB6)}
  v_lshlrev_b32 {v(vRT4)}, 2, {v(rtot)}
  v_add_u32 {v(vA6)}, {v(cb)}, {v(sA)}
  v_mul_u32_u24 {v(vA6)}, 6, {v(vA6)}""")
    def state_update2():
        a(f"""
  v_add_u32 {v(sA)}, 32, {v(sA)}
  v_subrev_u32 {v(nA)}, 32, {v(nA)}
  v_add_u32 {v(T+1)}, {v(T+1)}, {v(T+2)}
  v_sub_u32 {v(T)}, {v(T)}, {v(T+2)}
  v_cndmask_b32 {v(sA)}, {v(sA)}, {v(T+1)}, vcc
  v_cndmask_b32 {v(nA)}, {v(nA)}, {v(T)}, vcc""")
        for i in range(K - 1):
            a(f"  v_cndmask_b32 {v(Q+i)}, {v(Q+i)}, {v(Q+i+1)}, vcc")
        a(f"  v_cndmask_b32 {v(Q+K-1)}, {v(Q+K-1)}, {v(vZ)}, vcc")
    def set_flag(tag):
        a(f"""
  v_cmp_lt_u32 vcc, 0, {v(rem)}
  s_cbranch_vccz L_noflag_{tag}
  ds_write_b32 {v(vCtlN)}, {v(vOne)} offset:4""")
        a.label(f"L_noflag_{tag}")

    bc = lambda u: f"row_newbcast:{u} row_mask:0xf bank_mask:0xf"
    def rec_load(u, t0):
        a(f"""
  v_sub_co_u32_dpp {v(t0)}, vcc, {v(vR0)}, {v(vI1)} {bc(u)}
  v_add_u32_dpp {v(t0)}, {v(vA6)}, {v(vI6)} {bc(u)}
  v_add_u32_dpp {v(t0+1)}, {v(vB6)}, {v(vI6)} {bc(u)}
  v_cndmask_b32 {v(t0)}, {v(t0)}, {v(t0+1)}, vcc
  v_sub_u32_dpp {v(t0+1)}, {v(vRT4)}, {v(vI4)} {bc(u)}
  v_bfi_b32 {v(t0)}, {v(vMsk)}, {v(t0)}, {v(t0+1)}
  buffer_load_dwordx2 {v(REC[u],2)}, {v(t0)}, {s(sREC,4)}, 0 offen{RPOL}""")

    SDWA = "dst_sel:WORD_1 dst_unused:UNUSED_PAD src0_sel:WORD_1 src1_sel:WORD_0"
    def ins1(u, thr, p):
        ta, rk, mk, w = TA[p], RK[p], sMk[p], WW[p]
        a(f"""
  v_cmp_gt_i32 vcc, 0, {v(REC[u])}
  v_min_i32 {v(w)}, {v(REC[u])}, {v(REC[u]+1)}
  v_cmp_gt_i32 {s(mk,2)}, {thr}, {v(w)}
  v_bfe_u32 {v(ta)}, {v(w)}, 23, 8
  v_cndmask_b32_sdwa {v(REC[u])}, {v(REC[u])}, {v(REC[u]+1)}, vcc {SDWA}
  v_mad_u32_u24 {v(ta)}, {v(ta)}, {v(v264)}, s{sIns}
  s_mov_b64 exec, {s(mk,2)}
  ds_add_rtn_u32 {v(rk)}, {v(ta)}, {v(vOne)}
  s_mov_b64 exec, -1""")

    def ins2(u, tag, p):
        ta, rk, mk, w = TA[p], RK[p], sMk[p], WW[p]
        lab = f"{tag}_{u}"
        a(f"""
  s_mov_b64 exec, {s(mk,2)}
  v_cmp_lt_u32 vcc, 31, {v(rk)}
  v_lshl_add_u32 {v(ta)}, {v(rk)}, 3, {v(ta)}
  s_cbranch_vccnz L_rare_{lab}""")
        a.label(f"L_back_{lab}")
        a(f"""
  ds_write2_b32 {v(ta)}, {v(REC[u])}, {v(w)} offset0:2 offset1:3
  s_mov_b64 exec, -1""")
        rare.append((lab, u, p))

    a(f"""
  v_add_u32 {v(PT+2)}, {P1_REC}, {v(vL16)}
  v_add_u32 {v(PT+3)}, {P1_REC + 8*8192}, {v(vL16)}
  v_add_u32 {v(PT+4)}, {P1_REC + 16*8192}, {v(vL16)}
  s_mov_b32 s{sSo}, {NB*8192}
  v_mov_b32 {v(vDum)}, 3
  s_waitcnt lgkmcnt(0)
  s_barrier""")
    stamp(a, 252, 45)
    NS = 19
    sdt = lambda r: (20 + r) % 25 if r < 8 else r + 1
    SD = lambda r: ACC[sdt(r)]
    gv = []
    def gwait(x, extra=""): a(f"  s_waitcnt vmcnt({len(gv) - 1 - gv.index(x)}){extra}")
    def rd(r): a(f"  ds_read_b128 {v(SD(r),4)}, {v(PT+2 + r//8)} offset:{(r%8)*8192}")
    def st(r, lst=None):
        a(f"  buffer_store_dwordx4 {v(SD(r),4)}, {v(vL16)}, {s(sRW,4)}, s{sSo} offen sc1\n  s_add_u32 s{sSo}, s{sSo}, 8192")
        if lst is not None: lst.append(("st", r))
    zero_acc = lambda t: a(f"  v_mov_b64 {v(ACC[t],2)}, 0\n  v_mov_b64 {v(ACC[t]+2,2)}, 0")
    flag3 = f"  buffer_store_dword {v(vDum)}, {v(vFlg)}, {s(sFLG,4)}, 0 offen sc1"
    N1, N3 = OPT["n1"], OPT["n3"]
    if not OPT["wall"]:
        a(f"  s_cmp_gt_u32 s{sO2}, {NB*8192 // 6 - 2}\n  s_cbranch_scc1 L_noearly")
        a(flag3)
        a.label("L_noearly")
    a(f"""
  buffer_load_dwordx4 {v(Q,4)}, {v(vTab)}, {s(sTAB,4)}, 0 offen sc1
  buffer_load_dwordx2 {v(Q+4,2)}, {v(vTab)}, {s(sTAB,4)}, 0 offen offset:16 sc1""")
    gv.extend([("tab", 0), ("tab", 1)])
    if cpf(1, 24): gv.append(("c", 1))
    for r in range(NB, NS): rd(r)
    nxt = NB + N1
    for r in range(NB, nxt):
        a(f"  s_waitcnt lgkmcnt({NS - 1 - r})")
        st(r, gv)
    a(f"""
  s_waitcnt lgkmcnt(0)
  s_cmp_gt_u32 s{sO2}, {NB*8192 // 6 - 2}
  s_cbranch_scc1 L_allfirst""")
    if OPT["wall"]: a(f"  s_waitcnt vmcnt({len(gv)})")
    a("  s_barrier")
    if OPT["wall"]: a(flag3)
    a.label("L_allfirst_back")
    stamp(a, 252, 46)
    pend = list(range(nxt, NS))
    keep = OPT["n3"]
    slot = [0]
    def st1(n=1):
        on = OPT["smask"] >> slot[0] & 1 or n > 1
        slot[0] += 1
        for _ in range(n):
            if on and len(pend) > keep: st(pend.pop(0), gv)
    st1()
    a(f"""
  s_mul_i32 s{sX}, s{sW}, 3584
  s_add_u32 s{sX}, s{sX}, {RB_OFF}
  v_and_b32 {v(T+8)}, 63, v0
  v_lshl_add_u32 {v(T+9)}, {v(T+8)}, 3, s{sX}
  v_bfe_u32 {v(T+8)}, v0, 4, 1
  v_cmp_eq_u32 vcc, 1, {v(T+8)}""")
    for p in range(14): a(f"  ds_write_b32 {v(T+9)}, {v(RBK[p] if p < 13 else vZ)} offset:{(p//2)*512 + (p%2)*4}")
    st1()
    for r in range(4):
        a(f"  v_cndmask_b32 {v(Wa+r)}, {v(WDK[r])}, {v(vZ)}, vcc")
        a(f"  v_cndmask_b32 {v(Wb+r)}, {v(vZ)}, {v(WDK[r])}, vcc")
    a(f"""
  v_mov_b32 {v(WS0+1)}, 0
  v_mov_b32 {v(WS1+1)}, 0
  v_mov_b32 {v(WR+1)}, 0
  v_mov_b32 {v(sA)}, 0
  v_mov_b32 {v(nA)}, 0
  v_mov_b32 {v(rtot)}, 0""")
    for q in range(D):
        a(f"  v_mov_b64 {v(RING[q],2)}, 0\n  v_mov_b64 {v(RING[q]+2,2)}, 0")
    st1()
    a(f"""
  s_mul_i32 s{sFl}, s{sJ}, {2*CARLIST}
  s_add_u32 s{sFl}, s{sFl}, {CAROFF}""")
    srd(a, sREC, sWS, sWS+1, None, NCH * CH * 6)
    srd(a, sM, 48, 49, None, E * 32)
    srd(a, sCAR, sWS, sWS+1, f"s{sFl}", 2 * CARLIST)
    srd(a, sOUT, 70, 71, None, f"s{sRb}")
    srd(a, sMW, 48, 49, None, f"s{sRb}")
    for t in list(range(3, 9)) + [sdt(r) for r in range(NB)]: zero_acc(t)
    st1()
    a(f"""
  v_mov_b32 {v(vSent)}, 0x7ffff
  v_mov_b32 {v(T)}, 0
  v_mov_b32 {v(T+1)}, {v(vSent)}
  v_mov_b32 {v(T+2)}, 0
  v_mov_b32 {v(T+3)}, {v(vSent)}
  v_add_u32 {v(T+6)}, {7*8192}, {v(vL16)}""")
    for r in range(13):
        a(f"  ds_write_b128 {v(vL16 if r < 7 else T+6)}, {v(T,4)} offset:{(r%7)*8192}")
        if r % 5 == 4: st1()
    a(f"""
  v_and_b32 {v(T+6)}, 15, v0
  v_lshl_add_u32 {v(T+6)}, {v(T+6)}, 2, {v(vCtlN)}
  ds_write_b32 {v(T+6)}, {v(vZ)}
  ds_write_b128 {v(vSrd)}, {v(ACC[3],4)}""")
    for q in range(D): a(f"  v_mov_b32 {v(SA[q])}, {v(vSst)}\n  v_mov_b32 {v(CC[q])}, 0")
    gwait(("tab", 1))
    a(f"  v_lshrrev_b32 {v(rem)}, 16, {v(Q)}")
    for i in range(1, K):
        a(f"  v_lshrrev_b32 {v(T+4)}, 16, {v(Q+i)}\n  v_add_u32 {v(rem)}, {v(rem)}, {v(T+4)}")
    state_update()
    for u in range(0, 16, 2):
        a(f"""
  v_add_u32_dpp {v(REC[u])}, {v(vB6)}, {v(vI6)} {bc(u)}
  v_sub_u32_dpp {v(REC[u]+1)}, {v(vRT4)}, {v(vI4)} {bc(u)}
  v_add_u32_dpp {v(REC[u+1])}, {v(vB6)}, {v(vI6)} {bc(u+1)}
  v_sub_u32_dpp {v(REC[u+1]+1)}, {v(vRT4)}, {v(vI4)} {bc(u+1)}
  v_bfi_b32 {v(REC[u])}, {v(vMsk)}, {v(REC[u])}, {v(REC[u]+1)}
  v_bfi_b32 {v(REC[u+1])}, {v(vMsk)}, {v(REC[u+1])}, {v(REC[u+1]+1)}""")
        if u % 4 == 2: st1()
    state_update2()
    state_update()
    state_update2()
    st1()
    st1(NS)
    a("  s_nop 0")
    nx3 = NS - len(pend)
    for r in range(NB, nx3): zero_acc(sdt(r))
    stamp(a, 252, 47)
    if OPT["pf0"] == 3:
        share = (OPT["wmain"] // 4 + 31) // 32
        a(f"""
  s_cmp_eq_u32 s{sW}, 0
  s_cbranch_scc1 L_nopf
  s_lshr_b32 s{sX}, s2, 3
  s_mul_i32 s{sX}, s{sX}, {share*128}
  v_lshlrev_b32 {v(TA[1])}, 7, v0
  buffer_load_dword {v(WW[1])}, {v(TA[1])}, {s(sM,4)}, s{sX} offen""")
        a.label("L_nopf")
    a(f"  s_cmp_lg_u32 s{sW}, 0\n  s_cbranch_scc1 L_polled_b")
    poll("b", flag_load(FP, RK[0]), flag_cond(FP, 2), OPT["nap"])
    a("  s_waitcnt lgkmcnt(0)")
    a("  s_barrier")
    stamp(a, 252, 1)
    def pro_ld(us):
        for u in us:
            a(f"  buffer_load_dwordx2 {v(REC[u],2)}, {v(REC[u])}, {s(sREC,4)}, 0 offen{RPOL}")
            gv.append(("rec", u))
    NL0 = OPT["nl0"]
    pro_ld(range(NL0))
    NG = NS
    stamp(a, 252, 12)
    set_flag("pro")
    stamp(a, 252, 13)
    PTA = lambda u: Da + u
    PRK = lambda u: RING[0] + u
    PMK = lambda u: sPM + 2 * (u % 8)
    slowg = []
    def pro_ins1(g):
        us = range(4*g, 4*g+4)
        gwait(("rec", 4*g+3))
        for u in us:
            a(f"""
  v_cmp_gt_i32 vcc, 0, {v(REC[u])}
  v_min_i32 {v(PTA(u))}, {v(REC[u])}, {v(REC[u]+1)}
  v_cmp_gt_i32 {s(PMK(u),2)}, 0, {v(PTA(u))}
  v_cndmask_b32_sdwa {v(REC[u])}, {v(REC[u])}, {v(REC[u]+1)}, vcc {SDWA}
  v_mov_b32 {v(REC[u]+1)}, {v(PTA(u))}""")
        for u in us: a(f"  v_bfe_u32 {v(PTA(u))}, {v(PTA(u))}, 23, 8")
        for u in us: a(f"  v_mul_u32_u24 {v(PTA(u))}, {v(PTA(u))}, {v(v264)}")
        for u in us: a(f"  s_mov_b64 exec, {s(PMK(u),2)}\n  ds_add_rtn_u32 {v(PRK(u))}, {v(PTA(u))}, {v(vOne)}")
        a("  s_mov_b64 exec, -1")
    def pro_ins2(g):
        us = list(range(4*g, 4*g+4))
        a(f"""
  v_max3_u32 {v(T)}, {v(PRK(us[0]))}, {v(PRK(us[1]))}, {v(PRK(us[2]))}
  v_max_u32 {v(T)}, {v(T)}, {v(PRK(us[3]))}
  v_cmp_lt_u32 vcc, 31, {v(T)}
  s_cbranch_vccz L_pfast_{g}
  v_cmp_lt_u32 vcc, 63, {v(T)}
  s_cbranch_vccnz L_pslow_{g}""")
        a.label(f"L_pback_{g}")
        for x, u in enumerate(us): a(f"  v_subrev_u32 {v(T+4+x)}, 31, {v(PRK(u))}")
        for x, u in enumerate(us): a(f"  s_mov_b64 exec, {s(PMK(u),2)}\n  ds_max_i32 {v(PTA(u))}, {v(T+4+x)} offset:{BUFSZ}")
        a(f"  s_mov_b64 exec, -1\n  ds_write_b32 {v(vCtlN)}, {v(vOne)} offset:4")
        for x, u in enumerate(us): a(f"  v_lshrrev_b32 {v(T+4+x)}, 5, {v(PRK(u))}")
        for x, u in enumerate(us): a(f"  v_mad_u32_u24 {v(PTA(u))}, {v(T+4+x)}, s{sThr}, {v(PTA(u))}")
        a.label(f"L_pfast_{g}")
        for u in us: a(f"  v_lshl_add_u32 {v(PTA(u))}, {v(PRK(u))}, 3, {v(PTA(u))}")
        for u in us: a(f"  s_mov_b64 exec, {s(PMK(u),2)}\n  ds_write_b64 {v(PTA(u))}, {v(REC[u],2)} offset:8")
        a("  s_mov_b64 exec, -1")
        slowg.append(g)
    a(f"  s_mov_b32 s{sThr}, {BUFSZ - 256}")
    left = list(range(nx3, NS))
    per = (len(left) + 3) // 4
    def some():
        for _ in range(per):
            if left: st(left.pop(0), gv)
    pro_ins1(0)
    stamp(a, 252, 3)
    pro_ld(range(NL0, 16))
    def pf():
        share = (OPT["wmain"] // 4 + 31) // 32
        a(f"""
  s_lshr_b32 s{sX}, s2, 3
  s_mul_i32 s{sX}, s{sX}, {share*128}
  v_lshlrev_b32 {v(TA[1])}, 7, v0
  buffer_load_dword {v(WW[1])}, {v(TA[1])}, {s(sM,4)}, s{sX} offen""")
        gv.append(("pf", 0))
    if OPT["pf0"] == 1:
        while left: st(left.pop(0), gv)
        pf()
    pro_ins1(1)
    some()
    a("  s_waitcnt lgkmcnt(0)")
    pro_ins2(0); some(); pro_ins1(2); pro_ins2(1); some(); pro_ins1(3); some()
    if OPT["pf0"] == 2: pf()
    stamp(a, 252, 8)
    a("  s_nop 0")
    for r in range(nx3, NS): zero_acc(sdt(r))
    a("  s_waitcnt lgkmcnt(0)")
    pro_ins2(2); pro_ins2(3)
    stamp(a, 252, 11)
    a(f"  s_mov_b32 s{sOdd}, 0xaaaaaaaa\n  s_mov_b32 s{sOdd+1}, 0xaaaaaaaa\n  s_mov_b32 s{s70}, 0x70")
    a("  s_branch L_turn2")
    def signal_all(tag, n):
        a(f"""
  v_mov_b32 {v(T+4)}, {CTL + 32}
  s_waitcnt vmcnt({n})
  s_mov_b64 exec, 1
  ds_add_rtn_u32 {v(T+5)}, {v(T+4)}, {v(vOne)}
  s_mov_b64 exec, -1
  v_and_b32 {v(T+6)}, 63, v0
  s_lshl_b32 s{sX}, s2, 2
  v_lshl_add_u32 {v(T+6)}, {v(T+6)}, 10, s{sX}
  v_mov_b32 {v(T+7)}, 4
  s_waitcnt lgkmcnt(0)
  v_readfirstlane_b32 s{sX}, {v(T+5)}
  s_cmp_lg_u32 s{sX}, 7
  s_cbranch_scc1 L_nosig_{tag}
  buffer_store_dword {v(T+7)}, {v(T+6)}, {s(sFLG,4)}, 0 offen sc1""")
        a.label(f"L_nosig_{tag}")

    INS0 = OPT["ins0"]
    def cstage_head(q):
        if OPT["abl_s"]: return
        a(f"""
  ds_write_b16 {v(SA[q])}, {v(CC[q])}
  ds_read_b128 {v(Sf,4)}, {v(vSrd)}
  ds_write_b16 {v(SA[q])}, {v(vZ)}""")
    def cstage_m1(q):
        if OPT["abl_mfma"]: return
        if OPT["adj"]:
            shuffle(RING[q]); return
        a(f"""
  v_mfma_f32_16x16x32_bf16 {v(Da,4)}, {v(RING[q],4)}, {v(Wa,4)}, 0
  v_mfma_f32_16x16x32_bf16 {v(Db,4)}, {v(RING[q],4)}, {v(Wb,4)}, 0""")
    NB_ = "quad_perm:[1,0,3,2] row_mask:0xf bank_mask:0xf"
    def shuffle(X, f1="  s_nop 0", f2="  s_nop 1"):
        a(f"""
  v_permlane32_swap_b32 {v(X)}, {v(X+2)}
  v_permlane32_swap_b32 {v(X+1)}, {v(X+3)}
  s_mov_b64 vcc, {s(sOdd,2)}""")
        a(f1)
        a(f"""
  v_cndmask_b32_dpp {v(P+2)}, {v(X)}, {v(X+2)}, vcc {NB_}
  v_cndmask_b32_dpp {v(P+3)}, {v(X+1)}, {v(X+3)}, vcc {NB_}
  s_not_b64 vcc, vcc
  v_cndmask_b32_dpp {v(P)}, {v(X+2)}, {v(X)}, vcc {NB_}
  v_cndmask_b32_dpp {v(P+1)}, {v(X+3)}, {v(X+1)}, vcc {NB_}""")
        a(f2)
        a(f"""
  v_mfma_f32_16x16x32_bf16 {v(Da,4)}, {v(P,4)}, {v(Wa,4)}, 0
  v_mfma_f32_16x16x32_bf16 {v(Db,4)}, {v(P,4)}, {v(Wb,4)}, 0""")
    def cstage_cvt():
        if OPT["abl_mfma"]: return
        a(f"""
  v_cvt_pk_bf16_f32 {v(P)}, {v(Da)}, {v(Da+1)}
  v_cvt_pk_bf16_f32 {v(P+1)}, {v(Da+2)}, {v(Da+3)}
  v_cvt_pk_bf16_f32 {v(P+2)}, {v(Db)}, {v(Db+1)}
  v_cvt_pk_bf16_f32 {v(P+3)}, {v(Db+2)}, {v(Db+3)}""")
    def cstage_m2(tc):
        if OPT["abl_mfma"]: return
        a(f"  v_mfma_f32_16x16x32_bf16 {v(ACC[tc],4)}, {v(P,4)}, {v(Sf,4)}, {v(ACC[tc],4)}")
    def step_top(t, reset=True):
        a(f"  ; ---- step {t}")
        a("  s_waitcnt lgkmcnt(0)")
        cstage_head(t % D)
        if t < NT - 1:
            a(f"  ds_read_b64 {v(RP[(t+1)&1],2)}, {v(vRd)} offset:{(t+1)*TS+8}")
        if reset and t < NT:
            a(f"  ds_write_b32 {v(vRd)}, {v(vSent)} offset:{t*TS+12}")
    def step_main(t, n, reset=True):
        q = t % D; tc = (t - D) % NT
        rp = RP[t & 1]
        a(f"  s_waitcnt vmcnt({n})")
        off, af, e = T + 1, T + 2, T + 3
        lg = (2 if t < NT-1 else 1) + (1 if reset else 0)
        if OPT["adj"]:
            shuffle(RING[q], f"  v_and_b32 {v(off)}, {v(vSent)}, {v(rp+1)}",
                    f"  v_lshl_add_u32 {v(off)}, {v(off)}, 5, {v(vHalf)}\n  buffer_load_dwordx4 {v(RING[q],4)}, {v(off)}, {s(sM,4)}, 0 offen")
            a(f"""
  v_mul_f32 {v(af)}, {v(rp)}, {v(vFreq)}
  v_lshrrev_b32 {v(e)}, 16, {v(rp+1)}
  v_cvt_pk_bf16_f32 {v(af)}, 0, {v(af)}
  v_bitop3_b32 {v(SA[q])}, {v(e)}, s{s70}, {v(vSst)} bitop3:0x6a
  v_mul_f32 {v(af)}, 0.15915494, {v(af)}
  v_fract_f32 {v(af)}, {v(af)}
  v_cos_f32 {v(af)}, {v(af)}""")
            cstage_cvt()
            a(f"""
  v_cvt_pk_bf16_f32 {v(CC[q])}, {v(af)}, {v(af)}
  s_waitcnt lgkmcnt({lg})""")
            cstage_m2(tc)
            return
        cstage_m1(q)
        a(f"""
  v_and_b32 {v(off)}, {v(vSent)}, {v(rp+1)}
  v_mul_f32 {v(af)}, {v(rp)}, {v(vFreq)}
  v_lshl_add_u32 {v(off)}, {v(off)}, 5, {v(vHalf)}
  v_cvt_pk_bf16_f32 {v(af)}, 0, {v(af)}
  buffer_load_dwordx4 {v(RING[q],4)}, {v(vOOB if OPT["abl_g"] else off)}, {s(sM,4)}, 0 offen
  v_mul_f32 {v(af)}, 0.15915494, {v(af)}
  v_bfe_u32 {v(e)}, {v(rp+1)}, 20, 3
  v_fract_f32 {v(af)}, {v(af)}""")
        cstage_cvt()
        a(f"""
  v_cos_f32 {v(af)}, {v(af)}
  v_lshl_add_u32 {v(SA[q])}, {v(e)}, 4, {v(vSst)}
  s_waitcnt lgkmcnt({lg})""")
        cstage_m2(tc)
        a(f"  v_cvt_pk_bf16_f32 {v(CC[q])}, {v(af)}, {v(af)}")
        for i in range(OPT["dum"]): a(f"  v_mul_f32 v253, {v(Da + i % 8)}, {v(rp+1)}")
        for i in range(OPT["dumm"]): a(f"  v_mfma_f32_16x16x32_bf16 {v(Da if i % 2 == 0 else Db,4)}, {v(P,4)}, {v(Wa,4)}, 0")
        if OPT["dumm"]: a("  s_nop 3")

    order = []
    for t in range(NT):
        if t == 0: order.append(("car", 16))
        u2 = t - INS0 - 1
        EA = OPT["early"]
        if EA: order += [("rec", u) for u in range(EA * t, min(16, EA * t + EA))]
        elif 0 <= u2 < 16: order.append(("rec", u2))
        order.append(("W", t))
        order.append(("g", t))
    tail = [x for x in order[order.index(("g", NT - D)):] if x[0] != "W"]
    assert tail == [("g", t) for t in range(NT - D, NT)], tail
    def younger(target, at):
        n = len(order); i = order.index(target); cnt = 0
        j = (i + 1) % n
        while j != at:
            if order[j][0] != "W": cnt += 1
            j = (j + 1) % n
        return cnt
    first = []
    for x in order:
        if x[0] == "W" and x[1] < 4: first += [("f", 4 * x[1] + i) for i in range(4)]
        first.append(x)
    def younger_first(u, t):
        i = first.index(("f", u)); j = first.index(("W", t))
        return sum(1 for x in first[i+1:j] if x[0] != "W")
    RBH = 1
    def prio(tag, mask, t):
        cur = mask >> t & 1; prev = (mask >> (t - 1) & 1) if t else 0
        if cur and not prev:
            a(f"  s_cmp_lt_u32 s{sW}, 4\n  s_cbranch_scc1 L_{tag}prio{t}\n  s_setprio 1")
            a.label(f"L_{tag}prio{t}")
        if prev and not cur: a("  s_setprio 0")
    assert not OPT["lprio"] >> (NT - 1)
    def step0_extra():
        a(f"""
  v_cmp_gt_u32 vcc, s{sCin}, {v(vCarIdx)}
  s_add_u32 s{sX}, s{sIt}, 2
  s_and_b32 s{sX}, s{sX}, 3
  s_lshl_b32 s{sX}, s{sX}, 3
  s_add_u32 s{sX}, s{sX}, {CTL}
  v_mov_b32 {v(T+1)}, s{sX}
  ds_write_b64 {v(T+1)}, {v(vZ,2)}
  ds_write_b32 {v(vCntA)}, {v(vZ)}
  v_cndmask_b32 {v(T)}, {v(vOOB)}, {v(vCarOff)}, vcc
  buffer_load_dwordx2 {v(REC[16],2)}, {v(T)}, {s(sCAR,4)}, s{sCarR} offen sc1""")
    def state_step(tag):
        a(f"  s_cmp_lg_u32 s{sThr}, 0\n  s_cbranch_scc1 L_nostate_{tag}")
        if tag == "b0":
            QL = Q + OPT['keff'] - 3
            a(f"""
  v_lshrrev_b32 {v(T)}, 16, {v(QL)}
  v_cmp_eq_u32 vcc, 0, {v(nA)}
  v_subrev_u32 {v(T+1)}, {OPT['lim']}, {v(T)}
  v_and_b32 {v(T+2)}, 0xffff, {v(QL)}
  v_max_i32 {v(T+1)}, 0, {v(T+1)}
  v_cndmask_b32 {v(T+1)}, {v(vZ)}, {v(T+1)}, vcc
  v_add_u32 {v(T+2)}, {v(T+2)}, {v(T)}
  v_sub_u32 {v(T+2)}, {v(T+2)}, {v(T+1)}
  v_cndmask_b32 {v(sA)}, {v(sA)}, {v(T+2)}, vcc
  v_add_u32 {v(nA)}, {v(nA)}, {v(T+1)}
  v_lshlrev_b32 {v(T+1)}, 16, {v(T+1)}
  v_sub_u32 {v(QL)}, {v(QL)}, {v(T+1)}""")
        state_update(); state_update2()
        a.label(f"L_nostate_{tag}")
        set_flag(tag)
    a(".p2align 6")
    a.label("L_body0")
    lo = []
    lw = lambda x: len(lo) - 1 - lo.index(x)
    ST0, STP = OPT["st0"], OPT["stp"]
    late = list(range(NG, NS))
    tsig = None
    FC = REC[0]
    FO = REC[2]
    for t in range(NT):
        step_top(t)
        prio("b0", OPT["lprio"], t)
        if t == 0:
            step0_extra(); lo.append(("rec", 16))
        if t < 4:
            for u in range(4*t, 4*t+4):
                rec_load(u, T + 4 + 2 * (u & 1)); lo.append(("rec", u))
        if t == INS0: state_step("b0")
        if t == 14 and cpf(2, 24): lo.append(("c", 2))
        zs = []
        if t >= ST0:
            for _ in range(STP):
                if late:
                    r = late.pop(0); st(r, lo); zs.append(r)
                    assert sdt(r) + D > t
                    if not late: tsig = t + D + 1
        u1 = t - INS0; u2 = u1 - 1
        if 0 <= u2 < 17: ins2(u2, "b0", u2 & 1)
        if 0 <= u1 < 17:
            a(f"  s_waitcnt vmcnt({lw(('rec', u1))})")
            ins1(u1, f"s{sThr}" if u1 < 16 else "0", u1 & 1)
        else: a("  s_nop 0")
        for r in zs: zero_acc(sdt(r))
        if t == tsig or (NG == NS and t == 2):
            signal_all("b0", lw(("st", NS - 1)) if NG < NS else len(lo))
        if t == INS0 + 18:
            a(f"  s_cmp_gt_u32 s{sCin}, 512\n  s_cbranch_scc1 L_slow_b0")
            a.label("L_slow_back_b0")
        if t == NT - 3:
            a(f"""
  s_cmp_lg_u32 s{sW}, 0
  s_cbranch_scc1 L_noldc
  v_lshlrev_b32 {v(FO)}, 4, v0
  s_and_b32 s{sX}, s2, 7
  s_lshl_b32 s{sX}, s{sX}, 10""")
            a(flag_load(FC, FO))
            a.label("L_noldc")
        step_main(t, lw(("g", t - D)) if t >= D else 62)
        lo.append(("g", t))
    assert not late and (tsig is None or tsig < NT - 3)
    a(f"""
  s_waitcnt vmcnt(3)
  s_cmp_lg_u32 s{sW}, 0
  s_cbranch_scc1 L_turn2""")
    assert NT - (INS0 + 17) >= 3
    a(flag_cond(FC, 4))
    a(f"""
  s_cbranch_vccz L_turn2
  s_and_b32 s{sX}, s2, 7
  s_lshl_b32 s{sX}, s{sX}, 10""")
    poll("c", flag_load(FC, FO), flag_cond(FC, 4), OPT["nap"])
    a("  s_branch L_turn2")

    a(".p2align 6")
    a.label("L_loop")
    for t in range(NT):
        step_top(t)
        if t == 0: step0_extra()
        prio("lp", OPT["lprio"], t)
        if EA:
            for u in range(EA * t, min(16, EA * t + EA)): rec_load(u, T + 4 + 2 * (u & 1))
        if t < 4:
            if not EA: a(f"  s_cmp_eq_u32 s{sIt}, 1\n  s_cbranch_scc1 L_first_{t}")
            a.label(f"L_first_back_{t}")
        if t == INS0: state_step("lp")
        if t == 14: cpf(3, 24)
        u1 = t - INS0; u2 = u1 - 1
        if 0 <= u2 < 17:
            ins2(u2, "lp", u2 & 1)
            if u2 < 16 and not EA: rec_load(u2, T + 4)
        if 0 <= u1 < 17:
            pos = order.index(("W", t))
            if EA and u1 < 16: n = younger(("rec", u1), pos)
            elif u1 < 16: n = min(younger(("rec", u1), pos), younger_first(u1, t))
            else: n = younger(("car", 16), pos)
            a(f"  s_waitcnt vmcnt({min(n, 62)})")
            ins1(u1, f"s{sThr}" if u1 < 16 else "0", u1 & 1)
        if t == INS0 + 18:
            a(f"  s_cmp_gt_u32 s{sCin}, 512\n  s_cbranch_scc1 L_slow_lp")
            a.label("L_slow_back_lp")
        step_main(t, younger(("g", (t - D) % NT), order.index(("W", t))))
    assert INS0 >= 4 and RBH < NT
    a(f"  s_waitcnt vmcnt({NT - (INS0 + 17)})")
    a.label("L_turn2")
    a(f"""
  v_mov_b32 {v(T)}, {v(vCtlN)}
  s_add_u32 s{sIt}, s{sIt}, 1
  s_add_u32 s{sX}, s{sIt}, 1
  s_and_b32 s{sX}, s{sX}, 3
  s_lshl_b32 s{sX}, s{sX}, 3
  s_add_u32 s{sX}, s{sX}, {CTL}
  v_mov_b32 {v(vCtlN)}, s{sX}
  s_sub_u32 s{sX}, s{sIns}, {BUFSZ}
  s_add_u32 s{sX}, s{sX}, s{sIns}
  v_add_u32 {v(vRd)}, s{sX}, {v(vRd)}
  v_add_u32 {v(vCntA)}, s{sX}, {v(vCntA)}
  s_sub_u32 s{sIns}, {BUFSZ}, s{sIns}
  s_mov_b32 s{sCarR}, s{sCarW}
  s_sub_u32 s{sCarW}, {CARLIST}, s{sCarW}
  s_waitcnt lgkmcnt(0)""")
    if OPT["stamp"] == 1:
        a(f"  s_lshl_b32 s90, s{sIt}, 1\n  s_add_u32 s90, s90, 16\n  s_min_u32 m0, s90, 36")
        stamp(a, 252, "m0")
        a("  s_add_u32 m0, m0, 1")
    a("  s_barrier")
    stamp(a, 252, "m0")
    a(f"""
  ds_read_b64 {v(T+2,2)}, {v(T)}
  ds_read_b64 {v(RP[0],2)}, {v(vRd)} offset:8
  s_waitcnt lgkmcnt(1)
  v_readfirstlane_b32 s{sCin}, {v(T+2)}
  v_readfirstlane_b32 s{sFl}, {v(T+3)}
  s_cmp_gt_u32 s{sCin}, 512
  s_cselect_b32 s{sThr}, 0x80000000, 0
  s_min_u32 s{sCin}, s{sCin}, {CARCAP}
  s_cmp_gt_u32 s{sCin}, 32
  s_cselect_b32 s{sFl}, 1, s{sFl}
  s_cmp_lt_u32 s{sIt}, {OPT['itcap']}
  s_cselect_b32 s{sFl}, s{sFl}, 0
  s_cmp_eq_u32 s{sIt}, {OPT["cut"] - 100 if OPT["cut"] >= 100 else -1}
  s_cbranch_scc1 L_end
  s_cmp_eq_u32 s{sIt}, 0
  s_cbranch_scc1 L_it0
  s_cmp_lg_u32 s{sFl}, 0
  s_cbranch_scc1 L_loop""")
    a.label("L_nosig_z")

    RBv = Q
    assert vRT4 - Q + 1 >= 14
    R0 = REC[0]
    G0, G1, RR, U = R0, R0 + 4, R0 + 8, R0 + 12
    XS0, XS1, XR, AG = R0 + 16, R0 + 18, R0 + 20, R0 + 22
    MS = [R0 + 24 + 2 * i for i in range(5)]
    vMoff, vLin, vOw, vOr = vCarOff, vI6, vI1, vI4
    a(f"""
  v_and_b32 {v(T)}, 63, v0
  s_mul_i32 s{sX}, s{sW}, 3584
  s_add_u32 s{sX}, s{sX}, {RB_OFF}
  v_lshl_add_u32 {v(T+1)}, {v(T)}, 3, s{sX}
  v_lshlrev_b32 {v(vLin)}, 4, {v(T)}
  v_bfe_u32 {v(T+2)}, v0, 4, 2
  v_and_b32 {v(T+3)}, 15, v0
  v_lshlrev_b32 {v(T+2)}, 3, {v(T+2)}
  v_lshl_add_u32 {v(vMoff)}, {v(T+3)}, 5, {v(T+2)}
  s_mul_i32 s{sX}, s{sW}, 6400
  s_add_u32 s{sX}, s{sX}, s{sIns}
  s_add_u32 s{sX}, s{sX}, 15
  s_and_b32 s{sX}, s{sX}, -16
  v_add_u32 {v(vOw)}, s{sX}, {v(vMoff)}
  v_add_u32 {v(vOr)}, s{sX}, {v(vLin)}
  v_cmp_gt_u32 {s(sT,2)}, 8, {v(T+3)}""")
    for h in range(7):
        a(f"  ds_read_b64 {v(RBv+2*h,2)}, {v(T+1)} offset:{h*512}")
    fo = [("g", t - NT) for t in range(NT - D, NT)]
    def fwait(x): return len(fo) - 1 - fo.index(x)
    def s1(p):
        b = RBv + (p & ~1)
        w0, w1 = (WS0, WS1) if p % 2 == 0 else (XS0, XS1)
        a(f"""
  v_mfma_f32_16x16x16_bf16 {v(G0,4)}, {v(w0,2)}, {v(b,2)}, 0
  v_mfma_f32_16x16x16_bf16 {v(G1,4)}, {v(w1,2)}, {v(b,2)}, 0""")
    def s2(p):
        t0 = ACC[2*p]; t1 = ACC[2*p+1] if 2*p+1 < NT else ACC[2*p]
        for r in range(4): a(f"  v_mul_f32 {v(U+r)}, {v(t0+r)}, {v(G0+r)}")
        for r in range(4): a(f"  v_mul_f32_dpp {v(U+r)}, {v(t1+r)}, {v(G0+r)} row_ror:8 row_mask:0xf bank_mask:0xc")
        for r in range(4): a(f"  v_fmac_f32_dpp {v(U+r)}, {v(t0+r)}, {v(G1+r)} row_ror:8 row_mask:0xf bank_mask:0x3")
        for r in range(4): a(f"  v_fmac_f32_dpp {v(U+r)}, {v(t1+r)}, {v(G1+r)} quad_perm:[0,1,2,3] row_mask:0xf bank_mask:0xc")
        a(f"""
  v_cvt_pk_bf16_f32 {v(AG)}, {v(U)}, {v(U+1)}
  v_cvt_pk_bf16_f32 {v(AG+1)}, {v(U+2)}, {v(U+3)}
  v_mfma_f32_16x16x16_bf16 {v(RR,4)}, {v(WR if p % 2 == 0 else XR,2)}, {v(RBv + (p & ~1),2)}, 0""")
        if p + 1 < 13: s1(p + 1)
        else: a("  s_nop 0")
        a(f"  v_mfma_f32_16x16x16_bf16 {v(U,4)}, {v(WUP,2)}, {v(AG,2)}, 0")
    def s3(p):
        x = ACC[2*p]; m_ = MS[p % 5]
        a(f"""
  s_waitcnt vmcnt({fwait(("m", p))})
  v_lshlrev_b32 {v(x)}, 16, {v(m_)}
  v_and_b32 {v(x+1)}, 0xffff0000, {v(m_)}
  v_lshlrev_b32 {v(x+2)}, 16, {v(m_+1)}
  v_and_b32 {v(x+3)}, 0xffff0000, {v(m_+1)}""")
        if p == 12: a("  s_nop 2")
        a(f"""
  v_pk_fma_f32 {v(x,2)}, {v(U,2)}, {v(RR,2)}, {v(x,2)}
  v_pk_fma_f32 {v(x+2,2)}, {v(U+2,2)}, {v(RR+2,2)}, {v(x+2,2)}
  v_cvt_pk_bf16_f32 {v(x)}, {v(x)}, {v(x+1)}
  v_cvt_pk_bf16_f32 {v(x+1)}, {v(x+2)}, {v(x+3)}""")
        if p == 12: a(f"  s_mov_b64 exec, {s(sT,2)}")
        a(f"  ds_write_b64 {v(vOw)}, {v(x,2)} offset:{p*512}")
        if p == 12: a(f"  s_mov_b64 exec, -1")
        if p % 2 == 1 or p == 12:
            r = p // 2
            a(f"  ds_read_b128 {v(ACC[4*r+1 if r < 6 else 23],4)}, {v(vOr)} offset:{r*1024}")
    def s4(r):
        a(f"  buffer_store_dwordx4 {v(ACC[4*r+1 if r < 6 else 23],4)}, {v(vLin)}, {s(sOUT,4)}, s{sEb if r < 4 else sEb2} offen offset:{(r%4)*1024}{POL[OPT['opol']]}")
        fo.append(("st", r))
    xw = {}
    for t in range(NT + D + 2):
        if t == 6:
            a(f"  s_cmp_lg_u32 s{sCin}, 0\n  s_cbranch_scc1 L_x3")
            a.label("L_x3_back")
            xw[3] = len(fo) - xw[2]
        if t < NT + D: step_top(t, False)
        else: a(f"  ; ---- tail {t}\n  s_waitcnt lgkmcnt(0)")
        prio("fp", OPT["fprio"], t)
        if t in (0, 3):
            n = 1 if t == 0 else 2
            a(f"  s_cmp_lg_u32 s{sCin}, 0\n  s_cbranch_scc1 L_x{n}")
            a.label(f"L_x{n}_back")
            xw[n] = len(fo)
        if t == NT: stamp(a, 252, 4)
        if t == NT + D: stamp(a, 252, 5)
        if t == 1:
            a(f"""
  v_mov_b32 {v(XS0)}, 0
  v_mov_b32 {v(XS0+1)}, {v(WS0)}
  v_mov_b32 {v(XS1)}, 0
  v_mov_b32 {v(XS1+1)}, {v(WS1)}
  v_mov_b32 {v(XR)}, 0
  v_mov_b32 {v(XR+1)}, {v(WR)}""")
        if t == 5: s1(0)
        ts2 = {2*p+7 if p < 12 else 30: p for p in range(13)}
        if t - 2 in ts2 and (ts2[t-2] % 2 == 1): s4(ts2[t-2] // 2)
        if t - 1 in ts2: s3(ts2[t-1])
        if t in ts2: s2(ts2[t])
        if t % 2 == 1 and t // 2 < 13:
            p = t // 2
            a(f"  buffer_load_dwordx2 {v(MS[p%5],2)}, {v(vMoff)}, {s(sMW,4)}, s{sEb if p < 8 else sEb2} offen offset:{(p%8)*512}{POL[OPT['mpol']]}")
            fo.append(("m", p))
        if t < NT:
            step_main(t, fwait(("g", t - D)), False)
            fo.append(("g", t))
        elif t < NT + D:
            a(f"  s_waitcnt vmcnt({fwait(('g', t - D))})")
            cstage_m1(t % D)
            a("  s_nop 6")
            cstage_cvt()
            a("  s_waitcnt lgkmcnt(0)\n  s_nop 0")
            cstage_m2(t - D)
            a("  s_nop 3")
    a("  s_waitcnt lgkmcnt(0)")
    s4(6)
    stamp(a, 252, 6)
    if OPT["stamp"]: a("  s_waitcnt vmcnt(0)")
    stamp(a, 252, 7); stamp(a, 252, 63, "s_memrealtime")
    if OPT["stamp"] == 1: a(f"  v_writelane_b32 v252, s{sIt}, 61")
    stamp_out(a, 252, sWS, 8, STAMPOFF + 0x200000, 253)
    a.label("L_end")
    a("  s_endpgm")

    sSm, sS2 = sMk
    a.label("L_x1")
    a(f"""
  v_cmp_gt_u32 vcc, s{sCin}, {v(vSlot)}
  v_lshlrev_b32 {v(T)}, 3, {v(vSlot)}
  s_nop 0
  v_cndmask_b32 {v(T)}, {v(vOOB)}, {v(T)}, vcc
  buffer_load_dwordx2 {v(AG,2)}, {v(T)}, {s(sCAR,4)}, s{sCarR} offen sc1
  s_branch L_x1_back""")
    a.label("L_x2")
    a(f"""
  s_mul_i32 s{sX}, s{sW}, {NT}
  s_waitcnt vmcnt({xw[2] - xw[1]})
  v_min_i32 {v(U)}, {v(AG)}, {v(AG+1)}
  v_cmp_gt_i32 vcc, 0, {v(AG)}
  v_bfe_u32 {v(U+2)}, {v(U)}, 23, 8
  v_subrev_u32 {v(U+2)}, s{sX}, {v(U+2)}
  v_cndmask_b32_sdwa {v(U+1)}, {v(AG)}, {v(AG+1)}, vcc dst_sel:WORD_1 dst_unused:UNUSED_PAD src0_sel:WORD_1 src1_sel:WORD_0
  v_cmp_gt_i32 {s(sS2,2)}, 0, {v(U)}
  v_cmp_gt_u32 {s(sSm,2)}, {NT}, {v(U+2)}
  s_and_b64 vcc, {s(sSm,2)}, {s(sS2,2)}
  s_cselect_b32 s{sCin}, s{sCin}, 0
  s_cbranch_scc0 L_x2_back
  v_and_b32 {v(T)}, 0x7ffff, {v(U)}
  v_lshl_add_u32 {v(T)}, {v(T)}, 5, {v(vHalf)}
  v_mul_f32 {v(U+1)}, {v(U+1)}, {v(vFreq)}
  v_cndmask_b32 {v(T)}, {v(vOOB)}, {v(T)}, vcc
  buffer_load_dwordx4 {v(RR,4)}, {v(T)}, {s(sM,4)}, 0 offen
  v_cndmask_b32 {v(U+2)}, {v(vOOB)}, {v(U+2)}, vcc
  v_cvt_pk_bf16_f32 {v(U+1)}, 0, {v(U+1)}
  v_mul_f32 {v(U+1)}, 0.15915494, {v(U+1)}
  v_fract_f32 {v(U+1)}, {v(U+1)}
  v_cos_f32 {v(U+1)}, {v(U+1)}
  v_bfe_u32 {v(U+3)}, {v(U)}, 20, 3
  v_lshlrev_b32 {v(U+3)}, 4, {v(U+3)}
  v_xor_b32 {v(U+3)}, {v(U+3)}, {v(vSst)}
  v_cvt_pk_bf16_f32 {v(U+1)}, {v(U+1)}, {v(U+1)}
  s_branch L_x2_back""")
    a.label("L_x3")
    a(f"""
  s_waitcnt vmcnt({xw[3]})""")
    if OPT["adj"]: shuffle(RR)
    else: a(f"""
  v_mfma_f32_16x16x32_bf16 {v(Da,4)}, {v(RR,4)}, {v(Wa,4)}, 0
  v_mfma_f32_16x16x32_bf16 {v(Db,4)}, {v(RR,4)}, {v(Wb,4)}, 0""")
    a("  s_nop 6")
    cstage_cvt()
    for t in range(NT):
        a(f"""
  v_cmp_eq_u32 vcc, {t}, {v(U+2)}
  s_cbranch_vccz L_x3_{t}
  s_mov_b64 exec, vcc
  ds_write_b16 {v(U+3)}, {v(U+1)}
  s_mov_b64 exec, -1
  ds_read_b128 {v(Sf,4)}, {v(vSrd)}
  s_mov_b64 exec, vcc
  ds_write_b16 {v(U+3)}, {v(vZ)}
  s_mov_b64 exec, -1
  s_waitcnt lgkmcnt(0)""")
        cstage_m2(t)
        a.label(f"L_x3_{t}")
    a("  s_branch L_x3_back")
    a.label("L_it0")
    a(f"  s_cmp_lg_u32 s{sFl}, 0\n  s_cbranch_scc1 L_body0")
    for r in range(NG, NS): st(r)
    a("  s_nop 0")
    for r in range(NG, NS): zero_acc(sdt(r))
    signal_all("z0", 0)
    a("  s_branch L_nosig_z")
    for t in range(4):
        a.label(f"L_first_{t}")
        for u in range(4*t, 4*t+4): rec_load(u, T + 4 + 2 * (u & 1))
        a(f"  s_branch L_first_back_{t}")
    a.label("L_allfirst")
    a(f"  s_mov_b32 s{sY}, s{sSo}")
    for r in range(NB + N1, NS): st(r)
    a(f"  s_mov_b32 s{sSo}, s{sY}\n  s_waitcnt vmcnt(0)\n  s_barrier\n{flag3}\n  s_branch L_allfirst_back")
    for g in slowg:
        a.label(f"L_pslow_{g}")
        for u in range(4*g, 4*g+4):
            a(f"""
  s_mov_b64 exec, {s(PMK(u),2)}
  v_cmp_lt_u32 vcc, 63, {v(PRK(u))}
  s_cbranch_vccz L_pskip_{u}
  s_andn2_b64 {s(PMK(u),2)}, {s(PMK(u),2)}, vcc
  s_mov_b64 exec, vcc
  ds_add_rtn_u32 {v(T+1)}, {v(vCtlN)}, {v(vOne)}
  s_waitcnt lgkmcnt(0)
  v_lshlrev_b32 {v(T+1)}, 3, {v(T+1)}
  buffer_store_dwordx2 {v(REC[u],2)}, {v(T+1)}, {s(sCAR,4)}, s{sCarW} offen
  s_waitcnt vmcnt(0)""")
            a.label(f"L_pskip_{u}")
        a(f"  s_mov_b64 exec, -1\n  s_branch L_pback_{g}")
    for tag in ("b0", "lp"):
        a.label(f"L_slow_{tag}")
        a(f"  s_mov_b32 s{sX}, 512")
        a.label(f"L_slow_loop_{tag}")
        a(f"""
  v_add_u32 {v(T+1)}, s{sX}, {v(vCarIdx)}
  v_cmp_gt_u32 vcc, s{sCin}, {v(T+1)}
  v_lshlrev_b32 {v(T+1)}, 3, {v(T+1)}
  s_nop 0
  v_cndmask_b32 {v(T+1)}, {v(vOOB)}, {v(T+1)}, vcc
  buffer_load_dwordx2 {v(REC[16],2)}, {v(T+1)}, {s(sCAR,4)}, s{sCarR} offen sc1
  s_waitcnt vmcnt(0)""")
        ins1(16, "0", 0)
        a("  s_waitcnt lgkmcnt(0)")
        ins2(16, "sl" + tag, 0)
        a(f"""
  s_add_u32 s{sX}, s{sX}, 512
  s_cmp_lt_u32 s{sX}, s{sCin}
  s_cbranch_scc1 L_slow_loop_{tag}
  s_waitcnt vmcnt(0)
  s_branch L_slow_back_{tag}""")
    for lab, u, p in rare:
        a.label(f"L_rare_{lab}")
        a(f"""
  s_mov_b64 exec, vcc
  ds_add_rtn_u32 {v(RK[p])}, {v(vCtlN)}, {v(vOne)}
  v_mov_b32 {v(REC[u]+1)}, {v(WW[p])}
  s_waitcnt lgkmcnt(0)
  v_lshlrev_b32 {v(RK[p])}, 3, {v(RK[p])}
  buffer_store_dwordx2 {v(REC[u],2)}, {v(RK[p])}, {s(sCAR,4)}, s{sCarW} offen
  s_andn2_b64 exec, {s(sMk[p],2)}, vcc
  s_branch L_back_{lab}""")
    a.label("L_code_end")
    return NV

def kd(name, nv, ns):
    nv4 = (nv + 3) // 4 * 4
    return f""".amdhsa_kernel {name}
  .amdhsa_next_free_vgpr {nv}
  .amdhsa_next_free_sgpr {ns}
  .amdhsa_accum_offset {nv4}
  .amdhsa_group_segment_fixed_size 0
  .amdhsa_kernarg_size 112
  .amdhsa_user_sgpr_count 2
  .amdhsa_user_sgpr_kernarg_segment_ptr 1
  .amdhsa_system_sgpr_workgroup_id_x 1
  .amdhsa_float_denorm_mode_32 3
.end_amdhsa_kernel
"""

def main():
    out = sys.argv[1]
    ref = open(f"cdna_kernels/{NAME}.s.ref").read().split("\n")
    head = [l for l in ref if l.startswith(";") and "@launch" not in l and "Override" not in l and "grid=ceil" not in l]
    a = Asm()
    a(".amdgcn_target \"amdgcn-amd-amdhsa--gfx950\"\n.text")
    a(f".globl {NAME}_kernel\n.type {NAME}_kernel,@function")
    nv = gen_p2(a)
    errs = a.check()
    for e in errs: print("HAZARD", e)
    txt = "\n".join(head) + "\n"
    kern = f"kernel={NAME}_kernel " if OPT["list"] else ""
    txt += f"; @launch {kern}grid=(256,1,1) block=(512,1,1) lds={P1_LDS}\n"
    if OPT["probe"] >= 0:
        txt += "; @launch kernel=probe_kernel grid=(1,1,1) block=(64,1,1) lds=0\n"
        a(f"""
.p2align 8
probe_kernel:
  s_cmp_ge_u32 s2, 1
  s_cbranch_scc1 P_end
  s_load_dwordx2 s[4:5], s[0:1], 96
  s_waitcnt lgkmcnt(0)
  s_load_dwordx8 s[8:15], s[4:5], 0
  s_memrealtime s[16:17]
  s_waitcnt lgkmcnt(0)
  s_not_b32 s8, s8
  s_sub_u32 s20, s{8 + OPT['probe']}, s8
  {"s_lshr_b32 s20, s%d, 4" % (8 + OPT['probe']) if OPT['probe'] in (5, 7) else "s_nop 0"}
  s_min_u32 s20, s20, 20000
P_loop:
  s_memrealtime s[18:19]
  s_waitcnt lgkmcnt(0)
  s_sub_u32 s21, s18, s16
  s_cmp_lt_u32 s21, s20
  s_cbranch_scc1 P_loop
P_end:
  s_endpgm""")
    txt += a.text()
    txt += ".section .rodata,\"a\"\n.p2align 6\n" + kd(NAME + "_kernel", 256, 102) + (".p2align 6\n" + kd("probe_kernel", 8, 32) if OPT["probe"] >= 0 else "")
    open(out, "w").write(txt)
    print("vgprs p2:", nv, "lines:", len(a.lines), "hazards:", len(errs))

main()
```

```python
import re

TRANS = ("v_exp_f32", "v_log_f32", "v_rcp_f32", "v_rsq_f32", "v_sqrt_f32", "v_sin_f32", "v_cos_f32")

def regs_of(tok):
    tok = tok.strip()
    tok = tok.lstrip("-")
    m = re.fullmatch(r"([vs])(\d+)", tok)
    if m:
        return {(m.group(1), int(m.group(2)))}
    m = re.fullmatch(r"([vs])\[(\d+):(\d+)\]", tok)
    if m:
        return {(m.group(1), i) for i in range(int(m.group(2)), int(m.group(3)) + 1)}
    if tok == "vcc":
        return {("s", "vcc_lo"), ("s", "vcc_hi")}
    if tok in ("vcc_lo", "vcc_hi"):
        return {("s", tok)}
    if tok == "exec":
        return {("s", "exec")}
    return set()

class Ins:
    def __init__(self, text):
        self.text = text
        body = text.split(";")[0].strip()
        parts = body.split(None, 1)
        self.op = parts[0]
        rest = parts[1] if len(parts) > 1 else ""
        ops = [o.strip() for o in rest.split(",")]
        toks = []
        self.mods = ""
        for i, o in enumerate(ops):
            if " " in o:
                a, b = o.split(None, 1)
                toks.append(a)
                self.mods += " " + b
            else:
                toks.append(o)
        self.toks = toks
        op = self.op
        self.is_valu = op.startswith("v_") and not op.startswith("v_mfma")
        self.is_mfma = op.startswith("v_mfma")
        self.is_ds = op.startswith("ds_")
        self.is_vmem = op.startswith("buffer_") or op.startswith("global_")
        self.is_salu = op.startswith("s_")
        self.is_dpp = "_dpp" in op
        self.is_trans = any(op.startswith(t) for t in TRANS)
        self.dst = set()
        self.src = set()
        R = [regs_of(t) for t in toks]
        if self.is_valu or self.is_mfma:
            nd = 2 if ("_co_" in op) else 1
            for r in R[:nd]:
                self.dst |= r
            for r in R[nd:]:
                self.src |= r
            if op.startswith("v_cmpx"):
                self.dst |= {("s", "exec")}
            if op.startswith("v_fmac") or op.startswith("v_permlane"):
                self.src |= R[0]
            if op.startswith("v_permlane"):
                self.dst |= R[1]
            if self.is_mfma:
                self.srcC = R[3]
                self.srcAB = R[1] | R[2]
        elif self.is_ds:
            if op.startswith("ds_read") or "_rtn" in op or op.startswith("ds_bpermute"):
                self.dst = R[0]
                for r in R[1:]:
                    self.src |= r
            else:
                for r in R:
                    self.src |= r
        elif self.is_vmem:
            if " lds" in self.mods:
                for r in R:
                    self.src |= r
            elif "_load" in op:
                self.dst = R[0]
                for r in R[1:]:
                    self.src |= r
            else:
                for r in R:
                    self.src |= r
                self.data = R[0] if op.startswith("buffer_") else R[1]
        elif self.is_salu:
            if op.startswith("s_cmp") or op.startswith("s_cbranch") or op in ("s_branch", "s_waitcnt", "s_nop", "s_barrier", "s_endpgm", "s_setprio"):
                for r in R:
                    self.src |= r
            else:
                if R:
                    self.dst = R[0]
                for r in R[1:]:
                    self.src |= r
        self.states = 1
        if op == "s_nop":
            self.states = int(toks[0], 0) + 1

def isv(r): return r[0] == "v"
def iss(r): return r[0] == "s"

def need(p, c):
    n = 0
    pv = {r for r in p.dst if isv(r)}
    ps = {r for r in p.dst if iss(r)}
    if p.is_valu:
        if ps and c.is_valu and (ps - {("s", "exec")}) & c.src:
            n = max(n, 2)
            if c.op.startswith("v_readlane") or c.op.startswith("v_writelane"):
                n = max(n, 4)
        if ps and c.is_vmem and ps & c.src:
            n = max(n, 5)
        if c.is_dpp and pv & c.src:
            n = max(n, 2)
        if ("s", "exec") in ps:
            if c.is_dpp: n = max(n, 5)
            if c.is_mfma or c.op.startswith("v_readlane") or c.op.startswith("v_readfirstlane") or c.op.startswith("v_permlane"):
                n = max(n, 4)
        if (c.op.startswith("v_readlane") or c.op.startswith("v_readfirstlane")) and pv & c.src:
            n = max(n, 1)
        if p.is_trans and c.is_valu and not c.is_trans and pv & c.src:
            n = max(n, 1)
        if p.is_trans and c.is_mfma and pv & c.src:
            n = max(n, 2)
        if ("dst_sel:WORD" in p.mods or "dst_sel:BYTE" in p.mods or "op_sel" in p.mods) and c.is_valu and pv & (c.src | c.dst):
            n = max(n, 1)
        if c.is_mfma and pv & c.src:
            n = max(n, 2)
        if c.op.startswith("v_permlane") and pv & (c.src | c.dst):
            n = max(n, 2)
    if p.is_mfma:
        if c.is_mfma:
            if pv & c.srcAB: n = max(n, 8)
            if pv & c.srcC and pv != c.srcC: n = max(n, 6)
            if pv & c.srcC and p.op != c.op: n = max(n, 6)
            if pv & c.dst and not (pv & c.srcC): n = max(n, 8)
        elif c.is_valu:
            if pv & (c.src | c.dst): n = max(n, 8)
            if p.srcC & c.dst: n = max(n, 3)
        elif c.is_ds or c.is_vmem:
            if pv & (c.src | c.dst): n = max(n, 8)
    if p.is_vmem and "_store" in p.op and ("x4" in p.op or "x3" in p.op):
        if p.data & c.dst:
            n = max(n, 2 if c.is_valu else 1)
    return n

def check_seq(seq, where, errs):
    for i, c in enumerate(seq):
        dist = 0
        for j in range(i - 1, -1, -1):
            p = seq[j]
            if dist >= 10:
                break
            n = need(p, c)
            if n > dist:
                errs.add(f"{where}: need {n} states, have {dist}: [{p.text.strip()}] -> [{c.text.strip()}]")
            dist += p.states

class Asm:
    def __init__(self):
        self.lines = []
    def __call__(self, s):
        for l in s.strip("\n").split("\n"):
            self.lines.append(l)
    def label(self, l):
        self.lines.append(l + ":")
    def text(self):
        return "\n".join(self.lines) + "\n"
    def check(self):
        items = []
        for l in self.lines:
            b = l.split(";")[0].strip()
            if not b or b.startswith("."):
                items.append(("dir", b)); continue
            if b.endswith(":"):
                items.append(("label", b[:-1])); continue
            items.append(("ins", Ins(l)))
        errs = set()
        run = []
        for k, x in items:
            if k == "ins":
                run.append(x)
                if x.op in ("s_branch", "s_endpgm"):
                    check_seq(run, "linear", errs); run = []
        check_seq(run, "linear", errs)
        labels = {x: i for i, (k, x) in enumerate(items) if k == "label"}
        for i, (k, x) in enumerate(items):
            if k == "ins" and (x.op.startswith("s_cbranch") or x.op == "s_branch"):
                tgt = x.toks[0]
                tail = []
                j = i
                while j >= 0 and len(tail) < 14:
                    kk, xx = items[j]
                    if kk == "ins":
                        if j != i and xx.op in ("s_branch", "s_endpgm"): break
                        tail.insert(0, xx)
                    j -= 1
                head = []
                j = labels[tgt]
                while j < len(items) and len(head) < 14:
                    kk, xx = items[j]
                    if kk == "ins":
                        head.append(xx)
                        if xx.op in ("s_branch", "s_endpgm"): break
                    j += 1
                check_seq(tail + head, "edge->" + tgt, errs)
        return sorted(errs)
```

```python
import sys, os
sys.path.insert(0, os.path.dirname(__file__))
from asmlib import Asm

NAME = "gather_scatter__molecular_angular_gemnet__graph"
E = 400000
NCH, CH = 250, 25600
EB = 1568
K = 6
MJ = 2739138
TABOFF = 0x2800000
CAROFF = 0x3000000
CARCAP = 9216
CARLIST = CARCAP * 8
STAMPOFF = 0x6000000
FLGOFF = 0x2c00000
OPT = dict(dma=1, fix=1, dum=0, dumm=0, abl_rbf=0, tg=-1, wall=0, cpf=3, wsoff=0, mq=11, rot=0, pf0=0, a0=2, ag=2, early=0, adj=0, probe=-1, tlb=0, cut=-1, opol=1, mpol=0, tq=3, fq=10, keff=6, jid=0, fprio=0x3ffff, lprio=0x3fff, napt=8, st0=1, stp=1, rb0=2, nap=8, list=1, nb=7, n1=2, n3=4, nl0=8, smask=0x555, arr=10, spin=60000, rec_pol=2, stamp=0, itcap=64, ld_nt=7, st_pol=0, mtouch=0, la=4, apre=2, wmain=70000, b5=0, lim=24, nb2=7, ins0=4,
           abl_mfma=0, abl_s=0, abl_cos=0, abl_g=0)
for a in sys.argv[2:]:
    k, v = a.split("=")
    assert k in OPT, k
    OPT[k] = int(v, 0)
MK = -(-(1 << 32) // OPT["wmain"])
assert (399999 * MK) >> 32 <= 5

RPOL = ('', ' nt', ' sc1', ' sc0 sc1')[OPT['rec_pol']]

POL = ('', ' nt', ' sc1', ' sc0 sc1')

def v(i, n=1):
    return f"v{i}" if n == 1 else f"v[{i}:{i+n-1}]"
def s(i, n=1):
    return f"s{i}" if n == 1 else f"s[{i}:{i+n-1}]"

def stamp(a, vreg, lane, op="s_memtime"):
    if lane == OPT["cut"]: a("  s_endpgm")
    if not OPT["stamp"]: return
    if OPT["stamp"] == 2:
        mp = {62: (0, 1), 42: (1, 0), 45: (2, 0), 1: (3, 0), 11: (4, 0), 63: (6, 0)}
        if lane == 0:
            a("  s_memtime s[88:89]\n  s_waitcnt lgkmcnt(0)\n  s_mov_b32 s91, s88")
        if lane in (11, 7):
            a(f"  s_memtime s[88:89]\n  s_waitcnt lgkmcnt(0)\n  s_sub_u32 s88, s88, s91\n  v_writelane_b32 v{vreg}, s88, {5 if lane == 11 else 7}")
        if lane not in mp: return
        l, inv = mp[lane]
        a(f"  s_memrealtime s[88:89]\n  s_waitcnt lgkmcnt(0)")
        if inv: a("  s_not_b32 s88, s88")
        a(f"  v_writelane_b32 v{vreg}, s88, {l}")
        return
    a(f"  {op} s[88:89]\n  s_waitcnt lgkmcnt(0)\n  v_writelane_b32 v{vreg}, s88, {lane}")
def stamp_out(a, vreg, wslo, nwaves, base, tmp):
    if not OPT["stamp"]: return
    if OPT["stamp"] == 2:
        back = 512
        a(f"""
  s_load_dwordx2 s[90:91], s[0:1], 96
  s_waitcnt lgkmcnt(0)
  s_add_u32 s92, s90, {back}
  s_addc_u32 s93, s91, 0
  s_mov_b32 s94, 32
  s_mov_b32 s95, 0x20000
  v_lshlrev_b32 v{tmp}, 2, v0
  buffer_atomic_umax v{vreg}, v{tmp}, s[92:95], 0 offen""")
        return
    a(f"  s_mul_i32 s88, s2, {nwaves*256}\n  s_add_u32 s88, s88, {base}")
    srd(a, 92, wslo, wslo+1, "s88", nwaves*256)
    a(f"  v_lshlrev_b32 v{tmp}, 2, v0\n  buffer_store_dword v{vreg}, v{tmp}, s[92:95], 0 offen")

def srd(a, d, lo, hi, add, size):
    if add is None:
        a(f"  s_mov_b32 s{d}, s{lo}\n  s_mov_b32 s{d+1}, s{hi}")
    else:
        a(f"  s_add_u32 s{d}, s{lo}, {add}\n  s_addc_u32 s{d+1}, s{hi}, 0")
    a(f"  s_mov_b32 s{d+2}, {size}\n  s_mov_b32 s{d+3}, 0x20000")

P1_CNT, P1_SENT, P1_TMP, P1_REC = 0, 6144, 6160, 6272
P1_LDS = P1_REC + CH * 6

TS = 264
BUFSZ = 200 * TS
S_OFF = 13 * 8192
DMA = OPT["dma"]
WSTR = 6144 if DMA else 1024
CTL = S_OFF + 8 * WSTR
RB_OFF = CTL + 128
SENT = 0x7ffff0
LAG = 4 if DMA else 5
P2_LDS = RB_OFF + 8 * 3584
D = 5
NT = 25

class RA:
    def __init__(self, start): self.n = start
    def __call__(self, k=1, al=1):
        self.n = (self.n + al - 1) // al * al
        r = self.n; self.n += k
        return r

def gen_p2(a):
    ra = RA(1)
    vSlot, vHalf, vFreq, vSst, vSrd, vI6, vI1, vI4 = (ra() for _ in range(8))
    vRd, vCntA, vOne, vOOB, vCarOff, vCarIdx, v264, vMsk, vCtlN = (ra() for _ in range(9))
    vZ = ra(2, 2)
    Q = ra(6, 4)
    sA, nA, cb, rem, rtot, vA6, vB6, vR0, vRT4 = (ra() for _ in range(9))
    vCnt = ra()
    Wa = ra(4, 4); Wb = ra(4, 4)
    RING = [ra(4, 4) for _ in range(D)]
    Da = ra(4, 4); Db = ra(4, 4); P = ra(4, 4); Sf = ra(4, 4)
    ACC = [ra(4, 4) for _ in range(NT)]
    REC = [ra(2, 4 if i == 0 else 2) for i in range(17)]
    RP = [ra(2, 2), ra(2, 2)]
    T = ra(10, 2)
    TA = [ra(), ra()]; RK = [ra(), ra()]
    WS0 = ra(2, 2); WS1 = ra(2, 2); WR = ra(2, 2); WUP = ra(2, 2)
    CC = [ra() for _ in range(D)]; SA = [ra() for _ in range(D)]
    WW = [ra(), ra()]
    assert ra.n <= 252, ra.n
    NV = ra.n
    sM = 4; sREC = 8; sCAR = 12; sTAB = 16; sOUT = 20; sDIST = 24; sMW = 28
    sJ, sW, sIt, sThr, sIns, sCarW, sCarR, sRb, sCin, sX, sFl, sEb = range(32, 44)
    sCnt = [44, 45]
    sWS = 46
    sPM = 72
    sMk = [72, 74]; sT = 76; sC10 = 78; sCl2 = 80
    sEb2 = 3
    rare = []

    O, I, R, A = 36, 88, 140, 192
    PT = 218
    vFlg, vDum, vTab, vWo, vTwo = range(240, 245)
    vL8, vL4, vSix = WS0 + 1, WS1 + 1, WR + 1
    vL128 = 253
    vL16 = WW[0]
    rDist, rSbf, rUp, rDown, rRbf = A + 4, A + 6, A + 8, A + 10, A + 12
    RBK = [sA, nA, rem, rtot, vA6, vB6, vR0, vRT4, vCnt, 86, 87, 190, 191]
    WDK = [248, 249, WW[1], 217]
    assert Wa == 36 and T == PT
    vSent = vCnt
    sIO, sII, sAN, sMT, sTW, sDBG = 4, 8, 12, 16, 20, 24
    sFLG, sRW = 92, 96
    sMJ, sMK, sNEB, sB5, sO4, sO2 = range(80, 86)
    sY, sSo = 100, 101
    nto, nti, nta = (" nt" if OPT["ld_nt"] >> b & 1 else "" for b in range(3))
    NR = 13
    nrec = lambda q: 4 if q < 12 else 2
    vm = []
    def ld_pair(q):
        if q < 12:
            a(f"  buffer_load_dwordx4 {v(O+4*q,4)}, {v(vL16)}, {s(sIO,4)}, s{sO4} offen{nto}")
            a(f"  buffer_load_dwordx4 {v(I+4*q,4)}, {v(vL16)}, {s(sII,4)}, s{sO4} offen{nti}")
            a(f"  s_add_u32 s{sO4}, s{sO4}, 8192")
        else:
            a(f"  buffer_load_dwordx2 {v(O+48,2)}, {v(vL8)}, {s(sIO,4)}, s{sO4} offen{nto}")
            a(f"  buffer_load_dwordx2 {v(I+48,2)}, {v(vL8)}, {s(sII,4)}, s{sO4} offen{nti}")
        vm.extend([("o", q), ("p", q)])
    def ld_ang(q):
        if q < 12:
            a(f"  buffer_load_dwordx2 {v(A+2*q,2)}, {v(vL8)}, {s(sAN,4)}, s{sO2} offen{nta}")
            a(f"  s_add_u32 s{sO2}, s{sO2}, 4096")
        else: a(f"  buffer_load_dword {v(A+24)}, {v(vL4)}, {s(sAN,4)}, s{sO2} offen{nta}")
        vm.append(("a", q))
    def wait_for(x):
        a(f"  s_waitcnt vmcnt({len(vm) - 1 - vm.index(x)})")
    def poll(tag, load, cond, nap=4):
        a(f"  s_mov_b32 s{sY}, {OPT['spin']}")
        a.label(f"L_poll_{tag}")
        a(load)
        a("  s_waitcnt vmcnt(0)")
        a(cond)
        a(f"""
  s_cbranch_vccz L_polled_{tag}
  s_sleep {nap}
  s_sub_u32 s{sY}, s{sY}, 1
  s_cbranch_scc0 L_poll_{tag}""")
        a.label(f"L_polled_{tag}")

    a(".p2align 8")
    a.label(NAME + "_kernel")
    ncp = [0]
    def cpf(bit, q, first=False):
        if not OPT["cpf"] >> bit & 1: return False
        ncp[0] += 1
        a(f"  s_getpc_b64 s[{q}:{q+1}]")
        a.label(f"L_cp{ncp[0]}")
        a(f"""
  s_sub_u32 s{q}, s{q}, L_cp{ncp[0]}-{NAME}_kernel
  s_subb_u32 s{q+1}, s{q+1}, 0
  s_mov_b32 s{q+2}, L_code_end-{NAME}_kernel
  s_mov_b32 s{q+3}, 0x20000""")
        if first:
            a(f"""
  s_and_b32 s{sY}, s2, 0xf8
  s_lshl_b32 s{sY}, s{sY}, 4
  v_lshl_add_u32 v255, v0, 12, s{sY}""")
        a(f"  buffer_load_dword v254, v255, s[{q}:{q+3}], 0 offen")
        return True
    a(f"""
  s_cmp_ge_u32 s2, 256
  s_cbranch_scc1 L_end
  s_load_dwordx16 s[48:63], s[0:1], 0
  s_load_dwordx4 s[44:47], s[0:1], 96
  s_load_dwordx8 s[64:71], s[0:1], 64""")
    cpf(0, 28, True)
    a(f"""
  v_lshlrev_b32 {v(vL16)}, 4, v0
  s_min_u32 s{sY}, s2, {NCH-1}
  s_mul_i32 s{sX}, s{sY}, {CH*4}
  s_cmp_lt_u32 s2, {NCH}
  s_cselect_b32 s{sFl}, {CH*2}, 0
  s_lshl_b32 s{sIO+2}, s{sFl}, 1
  s_mov_b32 s{sII+2}, s{sIO+2}
  s_mov_b32 s{sIO+3}, 0x20000
  s_mov_b32 s{sII+3}, 0x20000
  s_mov_b32 s{sO4}, 0
  v_mov_b64 {v(PT,2)}, 0
  v_mov_b64 {v(PT+2,2)}, 0
  s_mov_b32 s{sO2}, 0
  ds_write_b128 {v(vL16)}, {v(PT,4)}
  v_lshrrev_b32 {v(T+8)}, 6, v0
  s_and_b32 s{sJ}, s2, 7
  s_lshl_b32 s{sJ}, s{sJ}, 5
  s_lshr_b32 s{sEb}, s2, 3
  s_add_u32 s{sJ}, s{sJ}, s{sEb}
  v_readfirstlane_b32 s{sW}, {v(T+8)}
  v_and_b32 {v(T+7)}, 63, v0
  v_lshlrev_b32 {v(T+6)}, 3, {v(T+7)}
  v_lshlrev_b32 {v(T+7)}, 2, {v(T+7)}
  s_mul_i32 s{sEb}, s{sJ}, {EB*2}
  s_mul_i32 s{sRb}, s{sW}, 400
  s_add_u32 s{sEb}, s{sEb}, s{sRb}
  s_waitcnt lgkmcnt(0)""")
    if OPT["stamp"] == 2: a("  v_mov_b32 v252, 0\n  s_nop 1")
    stamp(a, 252, 0); stamp(a, 252, 62, "s_memrealtime")
    a(f"""
  s_add_u32 s{sIO}, s52, s{sX}
  s_addc_u32 s{sIO+1}, s53, 0
  s_add_u32 s{sII}, s50, s{sX}
  s_addc_u32 s{sII+1}, s51, 0""")
    ld_pair(0)
    if OPT["wsoff"]: a(f"  s_add_u32 s{sWS}, s{sWS}, {OPT['wsoff'] << 20}\n  s_addc_u32 s{sWS+1}, s{sWS+1}, 0")
    srd(a, 28, 54, 55, None, E * 2)
    a(f"""
  buffer_load_dwordx2 {v(rDist,2)}, {v(T+6)}, s[28:31], s{sEb} offen
  global_load_dwordx2 {v(rSbf,2)}, {v(T+6)}, s[64:65]
  global_load_dwordx2 {v(rUp,2)}, {v(T+6)}, s[68:69]
  global_load_dwordx2 {v(rDown,2)}, {v(T+6)}, s[66:67]
  global_load_dword {v(rRbf)}, {v(T+7)}, s[62:63]""")
    vm.extend([("s", i) for i in range(5)])
    ld_pair(1)
    a("  s_barrier")
    LA = OPT["la"]
    for q in range(2, LA): ld_pair(q)
    a(f"  s_lshr_b32 s{sX}, s{sX}, 1")
    srd(a, sAN, 56, 57, f"s{sX}", f"s{sFl}")
    srd(a, sMT, 48, 49, f"s{sX}", f"s{sFl}")
    a(f"  s_mul_i32 s{sX}, s{sY}, {CH*6}\n  s_mul_i32 s{sFl}, s{sFl}, 3")
    srd(a, sRW, sWS, sWS+1, f"s{sX}", f"s{sFl}")
    srd(a, sTW, sWS, sWS+1, TABOFF, 256 * 8192)
    srd(a, sFLG, sWS, sWS+1, FLGOFF, 8192)
    srd(a, sDBG, 44, 45, None, 256)
    a(f"""
  s_lshl_b32 s{sX}, s2, 2
  v_lshl_add_u32 {v(vFlg)}, v0, 10, s{sX}
  s_cmp_lt_u32 s2, {NCH}
  s_cselect_b32 s{sX}, 0, 4
  v_mov_b32 {v(vDum)}, s{sX}
  buffer_store_dword {v(vDum)}, {v(vFlg)}, {s(sFLG,4)}, 0 offen sc1
  s_lshl_b32 s{sX}, s{sX}, 20
  v_or_b32 {v(vFlg)}, s{sX}, {v(vFlg)}
  s_load_dword s{sCin}, s[60:61], 0
  s_load_dwordx4 s[56:59], s[58:59], 0
  v_lshlrev_b32 {v(vL8)}, 3, v0
  v_lshlrev_b32 {v(vL4)}, 2, v0
  {'v_mov_b32 %s, %d' % (v(vL128), E//8) if OPT['rot'] == 2 else 'v_lshlrev_b32 %s, 7, v0' % v(vL128)}
  v_mov_b32 {v(vSix)}, 6
  v_mov_b32 {v(vTwo)}, 2
  s_mov_b32 s{sMJ}, {MJ}
  s_mov_b32 s{sMK}, {MK}
  s_mov_b32 s{sNEB}, {-EB & 0xffffffff}
  s_mov_b32 s{sB5}, {(-(E//8) & 0xffffffff) if OPT['rot'] else OPT['b5']}
  v_lshrrev_b32 {v(T)}, 6, v0
  v_and_b32 {v(T+2)}, 15, v0
  v_bfe_u32 {v(T+3)}, v0, 5, 1
  v_lshlrev_b32 {v(vHalf)}, 4, {v(T+3)}
  v_lshl_add_u32 {v(cb)}, {v(T)}, 5, {v(vHalf)}
  v_add_u32 {v(cb)}, {v(cb)}, {v(T+2)}
  v_lshlrev_b32 {v(vTab)}, 13, {v(cb)}
  v_and_b32 {v(T+1)}, 63, v0
  v_and_b32 {v(vSlot)}, 31, v0
  v_mov_b64 {v(vZ,2)}, 0
  v_mov_b32 {v(v264)}, {TS}
  v_mov_b32 {v(vCtlN)}, {CTL}
  s_lshl_b32 s{sX}, s{sW}, 10
  s_add_u32 s{sX}, s{sX}, {S_OFF}
  v_lshl_add_u32 {v(vSrd)}, {v(T+1)}, 4, s{sX}
  v_bfe_u32 {v(T+6)}, v0, 2, 2
  v_lshlrev_b32 {v(vSst)}, 8, {v(T+6)}
  v_lshl_add_u32 {v(vSst)}, {v(T+3)}, 7, {v(vSst)}
  v_bfe_u32 {v(T+6)}, v0, 4, 1
  v_lshl_add_u32 {v(vSst)}, {v(T+6)}, 3, {v(vSst)}
  v_and_b32 {v(T+6)}, 3, v0
  v_lshl_add_u32 {v(vSst)}, {v(T+6)}, 1, {v(vSst)}
  v_add_u32 {v(vSst)}, s{sX}, {v(vSst)}
  v_mov_b32 {v(vOne)}, 1
  v_mov_b32 {v(vOOB)}, 0x80000000
  v_mov_b32 {v(vMsk)}, 0x7ffffffc
  v_mul_u32_u24 {v(vI6)}, 6, {v(vSlot)}
  v_add_u32 {v(vI1)}, 1, {v(vSlot)}
  v_lshlrev_b32 {v(vI4)}, 2, {v(vI1)}
  v_mov_b32 {v(T+6)}, {CH}
  v_mul_u32_u24 {v(cb)}, {v(cb)}, {v(T+6)}
  s_mul_i32 s{sX}, s{sW}, {NT*TS}
  s_add_u32 s{sX}, s{sX}, {BUFSZ}
  v_lshl_add_u32 {v(vRd)}, {v(vSlot)}, 3, s{sX}""")
    sRing = 84
    a(f"  v_lshrrev_b32 {v(vHalf)}, 1, {v(vHalf)}")
    if DMA:
        a(f"""
  v_bfe_u32 {v(vSlot)}, v0, 1, 5
  v_lshl_add_u32 {v(vRd)}, {v(vSlot)}, 3, s{sX}
  v_and_b32 {v(T+3)}, 1, v0
  v_lshlrev_b32 {v(vHalf)}, 3, {v(T+3)}
  s_mul_i32 s{sY}, s{sW}, {WSTR}
  s_add_u32 s{sY}, s{sY}, {S_OFF}
  v_lshl_add_u32 {v(vSst)}, {v(T+1)}, 4, s{sY}
  v_lshl_add_u32 {v(vSrd)}, {v(T+1)}, 3, s{sY}""")
    a(f"""
  v_min_u32 {v(T+6)}, {NT-1}, {v(T+1)}
  v_mad_u32_u24 {v(vCntA)}, {v(T+6)}, {v(v264)}, s{sX}
  v_sub_u32 {v(vCarIdx)}, 511, v0
  v_lshlrev_b32 {v(vCarOff)}, 3, {v(vCarIdx)}
  v_cmp_eq_u32 vcc, 1, {v(T+3)}
  s_waitcnt lgkmcnt(0)
  s_lshl_b32 s{sX}, s{sCin}, 16
  s_and_b32 s{sCin}, s{sCin}, 0xffff0000
  v_mov_b32 {v(vFreq)}, s{sX}
  v_mov_b32 {v(T+6)}, s{sCin}
  v_cndmask_b32 {v(vFreq)}, {v(vFreq)}, {v(T+6)}, vcc
  v_mul_f32 {v(vFreq)}, 0.15915494, {v(vFreq)}
  s_mov_b32 s{sIt}, -1
  s_mov_b32 s{sIns}, 0
  s_mov_b32 s{sCarW}, 0
  s_mov_b32 s{sCarR}, {CARLIST}
  s_mul_i32 s{sEb}, s{sJ}, {EB}
  s_mul_i32 s{sX}, s{sW}, 200
  s_add_u32 s{sFl}, s{sEb}, {EB}
  s_add_u32 s{sEb}, s{sEb}, s{sX}
  s_add_u32 s{sRb}, s{sEb}, 200
  s_min_u32 s{sRb}, s{sRb}, s{sFl}
  s_min_u32 s{sRb}, s{sRb}, {E}
  s_lshl_b32 s{sRb}, s{sRb}, 5
  s_lshl_b32 s{sEb}, s{sEb}, 5
  s_add_u32 s{sEb2}, s{sEb}, 4096""")

    if OPT["tlb"]:
        sh = OPT["tlb"]
        srd(a, 28, sWS, sWS+1, None, FLGOFF + 8192)
        a(f"  v_lshlrev_b32 v249, {sh}, v0\n  buffer_load_dword v248, v249, s[28:31], 0 offen")
        srd(a, 28, 48, 49, None, E * 32)
        a(f"  buffer_load_dword v248, v249, s[28:31], 0 offen")
        srd(a, 28, 70, 71, None, E * 32)
        a(f"  buffer_load_dword v248, v249, s[28:31], 0 offen")
        vm.extend([("tlb", i) for i in range(3)])
    a(f"""
  s_cmp_ge_u32 s2, {NCH}
  s_cbranch_scc1 L_nochunk1""")
    vm.append(("flg", 0))
    arrive = f"""
  s_and_b32 s{sY}, s2, 15
  s_lshl_b32 s{sY}, s{sY}, 4
  v_lshlrev_b32 {v(PT)}, 8, v0
  buffer_atomic_add {v(vOne)}, {v(PT)}, {s(sDBG,4)}, s{sY} offen"""
    def hist(idx):
        if OPT["b5"]:
            for x, i in enumerate(idx): a(f"  v_cmp_le_u32 {s(72+2*x,2)}, s{sB5}, {v(I+i)}")
        for x, i in enumerate(idx): a(f"  v_mul_hi_u32_u24 {v(PT+x)}, s{sMJ}, {v(O+i)}")
        if OPT["rot"] == 2:
            for x, i in enumerate(idx): a(f"  v_lshrrev_b32 {v(PT+4+x)}, 5, {v(PT+x)}")
            for x, i in enumerate(idx): a(f"  v_mad_i32_i24 {v(PT+4+x)}, {v(PT+4+x)}, s{sB5}, {v(I+i)}")
            for x, i in enumerate(idx): a(f"  v_cmp_gt_u32 {s(72+2*x,2)}, {v(vL128)}, {v(PT+4+x)}")
            for x, i in enumerate(idx): a(f"  v_ashrrev_i32 {v(PT+4+x)}, 31, {v(PT+4+x)}")
            for x, i in enumerate(idx): a(f"  v_and_b32 {v(PT+4+x)}, {v(vL128)}, {v(PT+4+x)}")
            for x, i in enumerate(idx): a(f"  v_add3_u32 {v(PT+4+x)}, {v(PT+4+x)}, s{sB5}, {v(I+i)}")
            for x, i in enumerate(idx): a(f"  v_mul_hi_u32_u24 {v(PT+4+x)}, s{sMK}, {v(PT+4+x)}")
            for x, i in enumerate(idx): a(f"  v_cndmask_b32 {v(PT+4+x)}, {v(PT+4+x)}, 5, {s(72+2*x,2)}")
        elif OPT["rot"]:
            for x, i in enumerate(idx): a(f"  v_lshrrev_b32 {v(PT+4+x)}, 5, {v(PT+x)}")
            for x, i in enumerate(idx): a(f"  v_mad_i32_i24 {v(PT+4+x)}, {v(PT+4+x)}, s{sB5}, {v(I+i)}")
            for x, i in enumerate(idx): a(f"  v_add_u32 {v(PT+8+x)}, {E - E//8}, {v(PT+4+x)}")
            for x, i in enumerate(idx): a(f"  v_add_u32 {v(PT+4+x)}, s{sB5}, {v(PT+4+x)}")
            for x, i in enumerate(idx): a(f"  v_min_u32 {v(PT+4+x)}, {v(PT+4+x)}, {v(PT+8+x)}")
            for x, i in enumerate(idx): a(f"  v_mul_hi_u32_u24 {v(PT+4+x)}, s{sMK}, {v(PT+4+x)}")
        else:
            for x, i in enumerate(idx): a(f"  v_mul_hi_u32_u24 {v(PT+4+x)}, s{sMK}, {v(I+i)}")
        if OPT["b5"]:
            for x, i in enumerate(idx): a(f"  v_cndmask_b32 {v(PT+4+x)}, {v(PT+4+x)}, 5, {s(72+2*x,2)}")
        for x, i in enumerate(idx): a(f"  v_mad_i32_i24 {v(PT+8+x)}, {v(PT+x)}, s{sNEB}, {v(O+i)}")
        for x, i in enumerate(idx): a(f"  v_lshl_add_u32 {v(O+i)}, {v(PT+4+x)}, 8, {v(PT+x)}")
        for x, i in enumerate(idx): a(f"  v_lshlrev_b32 {v(O+i)}, 2, {v(O+i)}")
        for x, i in enumerate(idx): a(f"  ds_add_rtn_u32 {v(R+i)}, {v(O+i)}, {v(vOne)}")
        for x, i in enumerate(idx): a(f"  v_and_b32 {v(PT+x)}, 7, {v(PT+8+x)}")
        for x, i in enumerate(idx): a(f"  v_lshl_or_b32 {v(I+i)}, {v(I+i)}, 3, {v(PT+x)}")
        for x, i in enumerate(idx): a(f"  v_lshrrev_b32 {v(PT+8+x)}, 3, {v(PT+8+x)}")
        for x, i in enumerate(idx): a(f"  v_lshl_or_b32 {v(I+i)}, {v(I+i)}, 1, {v(vOOB)}")
        for x, i in enumerate(idx): a(f"  v_lshl_or_b32 {v(I+i)}, {v(PT+8+x)}, 23, {v(I+i)}")
    def prep(piece):
        Z = R + 24
        aW, aD, aS, aR, aN, gq = Z, Z + 1, Z + 2, Z + 3, Z + 4, Z + 5
        CEN = Z + 6; H = Z + 8; Y = Z + 16
        if piece == 0:
            a(f"""
  s_lshl_b32 s{sX}, s{sW}, 12
  s_add_u32 s{sX}, s{sX}, 8192
  v_and_b32 {v(gq)}, 63, v0
  v_lshl_add_u32 {v(aW)}, {v(gq)}, 3, s{sX}
  v_lshl_add_u32 {v(gq)}, {v(gq)}, 2, s{sX}
  ds_write_b64 {v(aW)}, {v(rDist,2)}
  ds_write_b64 {v(aW)}, {v(rSbf,2)} offset:512
  ds_write_b64 {v(aW)}, {v(rUp,2)} offset:1024
  ds_write_b32 {v(gq)}, {v(rRbf)} offset:1536
  ds_write_b64 {v(aW)}, {v(rDown,2)} offset:2048
  v_and_b32 {v(aD)}, 15, v0
  v_bfe_u32 {v(gq)}, v0, 4, 2
  v_lshl_add_u32 {v(aD)}, {v(aD)}, 1, s{sX}
  v_lshl_add_u32 {v(aS)}, {v(gq)}, 7, {v(aD)}
  v_lshl_add_u32 {v(aR)}, {v(gq)}, 6, {v(aD)}
  v_bfe_u32 {v(aN)}, v0, 5, 1
  v_lshl_add_u32 {v(aN)}, {v(aN)}, 8, {v(aD)}
  ds_read_u16 {v(WS0)}, {v(aS)} offset:512
  ds_read_u16 {v(WS1)}, {v(aS)} offset:{512+32}
  ds_read_u16 {v(Y)}, {v(aS)} offset:{512+64}
  ds_read_u16 {v(Y+1)}, {v(aS)} offset:{512+96}
  ds_read_u16 {v(WUP)}, {v(aS)} offset:1024
  ds_read_u16 {v(Y+2)}, {v(aS)} offset:{1024+32}
  ds_read_u16 {v(WUP+1)}, {v(aS)} offset:{1024+64}
  ds_read_u16 {v(Y+3)}, {v(aS)} offset:{1024+96}
  ds_read_u16 {v(WR)}, {v(aR)} offset:1536
  ds_read_u16 {v(Y+4)}, {v(aR)} offset:{1536+32}""")
            for r in range(4 if DMA else 8): a(f"  ds_read_u16 {v(WDK[r//2] if r % 2 == 0 else H + r//2)}, {v(aS if DMA else aN)} offset:{2048 + r*32}")
            for p in range(13): a(f"  ds_read_u16 {v(RBK[p])}, {v(aD)} offset:{p*32}")
            return
        if piece == 1:
            a(f"""
  v_mov_b32 {v(CEN+1)}, s56
  v_cmp_eq_u32 vcc, 1, {v(gq)}
  v_mov_b32 {v(CEN)}, s57
  v_cmp_eq_u32 {s(sT,2)}, 2, {v(gq)}
  v_cndmask_b32 {v(CEN+1)}, {v(CEN+1)}, {v(CEN)}, vcc
  v_mov_b32 {v(CEN)}, s58
  v_cmp_eq_u32 vcc, 3, {v(gq)}
  v_cndmask_b32 {v(CEN+1)}, {v(CEN+1)}, {v(CEN)}, {s(sT,2)}
  v_mov_b32 {v(CEN)}, s59
  v_cndmask_b32 {v(CEN+1)}, {v(CEN+1)}, {v(CEN)}, vcc
  v_lshlrev_b32 {v(CEN)}, 16, {v(CEN+1)}
  v_and_b32 {v(CEN+1)}, 0xffff0000, {v(CEN+1)}
  s_mov_b32 s56, 0xc1200000
  s_mov_b32 s57, 0xc1200000
  s_mov_b32 s58, 0x3fb8aa3b
  s_mov_b32 s59, 0x3fb8aa3b
  s_waitcnt lgkmcnt(0)
  v_lshl_or_b32 {v(WS0)}, {v(Y)}, 16, {v(WS0)}
  v_lshl_or_b32 {v(WS1)}, {v(Y+1)}, 16, {v(WS1)}
  v_lshl_or_b32 {v(WUP)}, {v(Y+2)}, 16, {v(WUP)}
  v_lshl_or_b32 {v(WUP+1)}, {v(Y+3)}, 16, {v(WUP+1)}
  v_lshl_or_b32 {v(WR)}, {v(Y+4)}, 16, {v(WR)}""")
            for r in range(2 if DMA else 4): a(f"  v_lshl_or_b32 {v(WDK[r])}, {v(H+r)}, 16, {v(WDK[r])}")
        ps = ([0,1,2], [3,4,5,6,7], [8,9,10,11,12])[piece - 1]
        tt = {p: H + 2 * (p - ps[0]) for p in ps}
        def rnd():
            for p in ps: a(f"  v_cvt_pk_bf16_f32 {v(tt[p])}, 0, {v(tt[p])}\n  v_cvt_pk_bf16_f32 {v(tt[p]+1)}, 0, {v(tt[p]+1)}")
        for p in ps: a(f"  v_lshlrev_b32 {v(tt[p])}, 16, {v(RBK[p])}")
        for p in ps: a(f"  v_pk_add_f32 {v(tt[p],2)}, {v(tt[p],2)}, {v(CEN,2)} op_sel_hi:[0,1] neg_lo:[0,1] neg_hi:[0,1]")
        rnd()
        for p in ps: a(f"  v_pk_mul_f32 {v(tt[p],2)}, {v(tt[p],2)}, {v(tt[p],2)}")
        rnd()
        for p in ps: a(f"  v_pk_mul_f32 {v(tt[p],2)}, {v(tt[p],2)}, s[56:57]")
        rnd()
        for p in ps: a(f"  v_pk_mul_f32 {v(tt[p],2)}, {v(tt[p],2)}, s[58:59]")
        for p in ps: a(f"  v_exp_f32 {v(tt[p])}, {v(tt[p])}\n  v_exp_f32 {v(tt[p]+1)}, {v(tt[p]+1)}")
        for p in ps: a(f"  v_cvt_pk_bf16_f32 {v(RBK[p])}, {v(tt[p])}, {v(tt[p]+1)}")
    na = 0
    for q in range(NR):
        wait_for(("p", q))
        if q == 0: stamp(a, 252, 40)
        if q == LA:
            a(arrive); vm.append(("arr", 0))
        if OPT["mtouch"] == 3 and q == OPT["mq"]:
            a(f"  buffer_load_dword v244, {v(vL128)}, {s(sMT,4)}, 0 offen"); vm.append(("m", 0))
        if q + LA < NR: ld_pair(q + LA)
        else:
            for _ in range(2):
                if na < OPT["apre"]: ld_ang(na); na += 1
        hist(list(range(4*q, 4*q + nrec(q))))
        if 1 <= q <= 4: prep(q - 1)
    stamp(a, 252, 41)
    X = v(PT+4)
    PR = A + 4
    assert OPT["apre"] <= 2
    a(f"""
  v_and_b32 {v(PT+8)}, 0x3f0, {v(vL16)}
  v_lshrrev_b32 {v(PT+12)}, 1, v0
  v_and_b32 {v(PT+13)}, 1, v0
  v_lshlrev_b32 {v(PT+12)}, 2, {v(PT+12)}
  v_lshl_add_u32 {v(PT+13)}, {v(PT+13)}, 12, {v(PT+12)}
  s_waitcnt lgkmcnt(0)
  s_barrier
  s_cmp_ge_u32 s{sW}, {K}
  s_cbranch_scc1 L_bin_s2
  ds_read_b128 {v(PT,4)}, {v(vL16)}""")
    for r in range(K - 1): a(f"  ds_read_b128 {v(PR+4*r,4)}, {v(PT+8)} offset:{r*1024}")
    for r in range(K - 1): a(f"  s_cmp_gt_u32 s{sW}, {r}\n  s_cselect_b32 s{72+r}, 1, 0")
    a(f"""
  s_waitcnt lgkmcnt({K-1})
  v_add_u32 {v(PT+5)}, {v(PT)}, {v(PT+1)}
  v_add_u32 {v(PT+6)}, {v(PT+5)}, {v(PT+2)}
  v_add_u32 {v(PT+7)}, {v(PT+6)}, {v(PT+3)}""")
    for r in range(K - 1):
        a(f"""
  s_waitcnt lgkmcnt({K-2-r})
  v_add3_u32 {v(PR+4*r)}, {v(PR+4*r)}, {v(PR+4*r+1)}, {v(PR+4*r+2)}
  v_add_u32 {v(PR+4*r)}, {v(PR+4*r)}, {v(PR+4*r+3)}""")
        if r == 0: a(f"  v_mul_u32_u24 {v(PT+9)}, s72, {v(PR)}")
        else: a(f"  v_mad_u32_u24 {v(PT+9)}, {v(PR+4*r)}, s{72+r}, {v(PT+9)}")
    a(f"  v_lshl_or_b32 {X}, {v(PT+9)}, 16, {v(PT+7)}")
    for sh in (1, 2, 4, 8):
        a(f"  s_nop 1\n  v_add_u32_dpp {X}, {X}, {X} row_shr:{sh} row_mask:0xf bank_mask:0xf bound_ctrl:0")
    a(f"  s_nop 1\n  v_add_u32_dpp {X}, {X}, {X} row_bcast:15 row_mask:0xa bank_mask:0xf")
    a(f"  s_nop 1\n  v_add_u32_dpp {X}, {X}, {X} row_bcast:31 row_mask:0xc bank_mask:0xf")
    a(f"""
  s_nop 0
  v_readlane_b32 s{sY}, {X}, 63
  v_sub_u32 {X}, {X}, {v(PT+7)}
  s_lshr_b32 s{sY}, s{sY}, 16
  v_add_u32 {X}, s{sY}, {X}
  v_add_u32 {v(PT+7)}, {X}, {v(PT+6)}
  v_add_u32 {v(PT+6)}, {X}, {v(PT+5)}
  v_add_u32 {v(PT+5)}, {X}, {v(PT)}
  v_lshl_or_b32 {v(PT)}, {X}, 16, {v(PT)}
  v_lshl_or_b32 {v(PT+1)}, {v(PT+5)}, 16, {v(PT+1)}
  v_lshl_or_b32 {v(PT+2)}, {v(PT+6)}, 16, {v(PT+2)}
  v_lshl_or_b32 {v(PT+3)}, {v(PT+7)}, 16, {v(PT+3)}
  ds_write_b128 {v(vL16)}, {v(PT,4)}
  s_waitcnt lgkmcnt(0)""")
    a.label("L_bin_s2")
    a(f"  s_lshl_b32 s{sY}, s2, 13\n  s_barrier")
    stamp(a, 252, 42)
    TB = PT + 8
    for k in range(4): a(f"  ds_read_b32 {v(TB+k)}, {v(PT+13)} offset:{k*1024}")
    NB = OPT["nb"]
    vDa, vDv, vRa = 245, 246, 247
    lda = f"  buffer_load_dword {v(vDv)}, {v(vDa)}, {s(sDBG,4)}, 0 offen sc1"
    cda = f"  v_cmp_gt_u32 vcc, 16, {v(vDv)}"
    ada = f"""
  s_lshl_b32 s{sX}, s{sW}, 16
  v_and_b32 {v(vDa)}, 15, v0
  v_lshl_add_u32 {v(vDa)}, {v(vDa)}, 4, s{sX}"""
    NRD = 15
    for i in range(10): a(f"  ds_read_u16 {v(O+i)}, {v(O+i)} offset:2")
    a("  s_waitcnt lgkmcnt(10)")
    for k in range(4): a(f"  v_alignbit_b32 {v(TB+k)}, {v(TB+k)}, {v(TB+k)}, 16")
    a(f"  buffer_store_dwordx4 {v(TB,4)}, {v(vL16)}, {s(sTW,4)}, s{sY} offen sc1")
    vm.append(("tab", 0))
    for i in range(10, NRD): a(f"  ds_read_u16 {v(O+i)}, {v(O+i)} offset:2")
    for _ in range(OPT["a0"]):
        if na < NR: ld_ang(na); na += 1
    a(f"  s_mov_b32 s{sB5}, {NB*8192 + 4}\n  s_mov_b32 s{sSo}, 0")
    a(ada)
    a(f"  v_add_u32 {v(vRa)}, {P1_REC}, {v(vL16)}")
    for g in range(10):
        idx = list(range(5*g, 5*g+5))
        if g == OPT["tg"]:
            wait_for(("tab", 0))
            a("  s_barrier")
            a(lda); vm.append(("lda", 0))
            a(f"  buffer_store_dword {v(vOne)}, {v(vFlg)}, {s(sFLG,4)}, 0 offen sc1"); vm.append(("flg", 1))
        for _ in range(OPT["ag"]):
            if na < NR: ld_ang(na); na += 1
        a(f"  s_waitcnt lgkmcnt({10 if OPT['wall'] else min(10, 45 - 5*g)})")
        for i in idx:
            if i + NRD < 50: a(f"  ds_read_u16 {v(O+i+NRD)}, {v(O+i+NRD)} offset:2")
        for i in idx: a(f"  v_add_u32 {v(O+i)}, {v(O+i)}, {v(R+i)}")
        for i in idx: a(f"  v_mad_u32_u24 {v(O+i)}, {v(O+i)}, {v(vSix)}, {v(vTwo)}")
        for x, i in enumerate(idx): a(f"  v_and_b32 {v(PT+x)}, 2, {v(O+i)}")
        for i in idx: a(f"  v_and_b32 {v(R+i)}, -4, {v(O+i)}")
        if OPT["wall"]:
            for i in idx: a(f"  ds_write_b32 {v(R+i)}, {v(I+i)} offset:{P1_REC}")
        for x, i in enumerate(idx): a(f"  v_lshl_add_u32 {v(O+i)}, {v(PT+x)}, 1, {v(O+i)}")
    assert na == NR
    if OPT["mtouch"] == 1:
        a(f"  buffer_load_dword v244, {v(vL128)}, {s(sMT,4)}, 0 offen"); vm.append(("m", 0))
    def put(q, cmp):
        idx = list(range(4*q, 4*q + nrec(q)))
        for x, i in enumerate(idx): a(f"  v_cmp_{cmp}_u32 {s(72+2*x,2)}, s{sB5}, {v(R+i)}")
        for x, i in enumerate(idx):
            op = "ds_write_b16_d16_hi" if (i & 1) else "ds_write_b16"
            a(f"""
  s_mov_b64 exec, {s(72+2*x,2)}
  {"" if OPT["wall"] else "ds_write_b32 %s, %s offset:%d" % (v(R+i), v(I+i), P1_REC)}
  {op} {v(O+i)}, {v(A + i//2)} offset:{P1_REC-2}""")
        a("  s_mov_b64 exec, -1")
    for q in range(NR):
        wait_for(("a", q))
        for r in range(nrec(q) // 2): a(f"  v_and_b32 {v(A+2*q+r)}, 0x7fff7fff, {v(A+2*q+r)}")
        if q == OPT["tq"] and OPT["tg"] < 0:
            assert q >= OPT["apre"]
            a("  s_barrier")
            a(lda); vm.append(("lda", 0))
            a(f"  buffer_store_dword {v(vOne)}, {v(vFlg)}, {s(sFLG,4)}, 0 offen sc1"); vm.append(("flg", 1))
            if OPT["mtouch"] == 2:
                a(f"  buffer_load_dword v244, {v(vL128)}, {s(sMT,4)}, 0 offen"); vm.append(("m", 0))
        put(q, "gt")
    a(f"  ds_read_u16 {v(vWo)}, {v(vZ)} offset:2050")
    a("  s_waitcnt lgkmcnt(0)\n  s_barrier")
    stamp(a, 252, 43)
    a(f"  v_readfirstlane_b32 s{sO2}, {v(vWo)}")
    free = [PT, PT + 4, PT + 8, O, I, R, O + 4, I + 4, R + 4]
    def erd(r): a(f"  ds_read_b128 {v(free[r],4)}, {v(vRa)} offset:{r*8192}")
    def est(r):
        a(f"  buffer_store_dwordx4 {v(free[r],4)}, {v(vL16)}, {s(sRW,4)}, s{sSo} offen sc1\n  s_add_u32 s{sSo}, s{sSo}, 8192")
        vm.append(("st", r))
    assert NB <= 8
    fad = f"""
  v_and_b32 {v(RK[0])}, 63, v0
  v_lshlrev_b32 {v(RK[0])}, 4, {v(RK[0])}
  s_and_b32 s{sCin}, s2, 7
  s_lshl_b32 s{sCin}, s{sCin}, 10"""
    if OPT["wall"]:
        free = [I + 4 * r for r in range(8)]
        for r in range(NB): erd(r)
        a(fad)
        a(f"  s_mov_b32 s{sO4}, 0\n  s_cmp_lg_u32 s{sW}, 0\n  s_cbranch_scc1 L_nofl")
        wait_for(("lda", 0))
        a(cda)
        a(f"  s_cbranch_vccnz L_nofl\n  s_mov_b32 s{sO4}, 1")
        a(f"  buffer_load_dwordx4 {v(PT,4)}, {v(RK[0])}, {s(sFLG,4)}, s{sCin} offen sc1")
        a.label("L_nofl")
        for r in range(3):
            a(f"  s_waitcnt lgkmcnt({NB - 1 - r})")
            est(r)
        a("  s_waitcnt lgkmcnt(0)")
        put(0, "le"); put(1, "le"); put(2, "le")
    else:
        for r in range(3): erd(r)
        for r in range(3):
            a(f"  s_waitcnt lgkmcnt({2 - r})")
            est(r)
        put(0, "le"); put(1, "le")
        for r in range(3, NB): erd(r)
        put(2, "le")
        a("  s_waitcnt lgkmcnt(0)")
    todo = list(range(3, NB))
    fad = f"""
  v_and_b32 {v(RK[0])}, 63, v0
  v_lshlrev_b32 {v(RK[0])}, 4, {v(RK[0])}
  s_and_b32 s{sCin}, s2, 7
  s_lshl_b32 s{sCin}, s{sCin}, 10"""
    for q in range(3, NR):
        if todo: est(todo.pop(0))
        if q == OPT["fq"] and not OPT["wall"]:
            assert q >= 9 and Db == O + 32 and not todo
            a(fad)
            a(f"  s_mov_b32 s{sO4}, 0\n  s_cmp_lg_u32 s{sW}, 0\n  s_cbranch_scc1 L_nofl")
            wait_for(("lda", 0))
            a(cda)
            a(f"  s_cbranch_vccnz L_nofl\n  s_mov_b32 s{sO4}, 1")
            a(f"  buffer_load_dwordx4 {v(Db,4)}, {v(RK[0])}, {s(sFLG,4)}, s{sCin} offen sc1")
            a.label("L_nofl")
        put(q, "le")
    assert not todo
    stamp(a, 252, 44)
    FP = Db
    def flag_load(dst, off): return f"  buffer_load_dwordx4 {v(dst,4)}, {v(off)}, {s(sFLG,4)}, s{sCin if dst == FP else sX} offen sc1"
    def flag_cond(dst, stage): return f"""
  v_min3_u32 {v(dst)}, {v(dst)}, {v(dst+1)}, {v(dst+2)}
  v_min_u32 {v(dst)}, {v(dst)}, {v(dst+3)}
  v_cmp_gt_u32 vcc, {stage}, {v(dst)}"""
    if OPT["wall"]: a(f"  s_cmp_lg_u32 s{sW}, 0\n  s_cbranch_scc1 L_polled_t\n  s_waitcnt vmcnt({NB})")
    else: a(f"  s_waitcnt vmcnt(0)\n  s_cmp_lg_u32 s{sW}, 0\n  s_cbranch_scc1 L_polled_t")
    a(f"  s_cmp_eq_u32 s{sO4}, 0\n  s_cbranch_scc1 L_wait_a")
    a(flag_cond(PT if OPT["wall"] else FP, 1))
    a("  s_cbranch_vccz L_polled_t\n  s_branch L_polled_a")
    a.label("L_nochunk1")
    if 40 <= OPT["cut"] <= 44: a("  s_endpgm")
    a("  s_waitcnt vmcnt(0)")
    a(arrive)
    for piece in range(4): prep(piece)
    a(ada)
    a(fad)
    a(f"  s_mov_b32 s{sO2}, 0\n  s_cmp_lg_u32 s{sW}, 0\n  s_cbranch_scc1 L_polled_t")
    a.label("L_wait_a")
    poll("a", lda, cda, 64)
    poll("t", flag_load(FP, RK[0]), flag_cond(FP, 1), OPT["napt"])
    a(f"""
  s_lshl_b32 s{sX}, s{sJ}, 5
  s_add_u32 s{sX}, s{sX}, {TABOFF}""")
    srd(a, sTAB, sWS, sWS+1, f"s{sX}", (NCH - 1) * 8192 + 32)

    def state_update():
        a(f"""
  v_sub_u32 {v(rem)}, {v(rem)}, {v(rtot)}
  v_lshrrev_b32 {v(T)}, 16, {v(Q)}
  v_and_b32 {v(T+1)}, 0xffff, {v(Q)}
  v_min_u32 {v(vR0)}, 32, {v(nA)}
  v_cmp_ge_u32 vcc, 32, {v(nA)}
  v_sub_u32 {v(T+2)}, 32, {v(vR0)}
  v_add_u32 {v(vB6)}, {v(cb)}, {v(T+1)}
  v_min_u32 {v(T+2)}, {v(T)}, {v(T+2)}
  v_mul_u32_u24 {v(vB6)}, 6, {v(vB6)}
  v_add_u32 {v(rtot)}, {v(vR0)}, {v(T+2)}
  v_mad_i32_i24 {v(vB6)}, {v(vR0)}, -6, {v(vB6)}
  v_lshlrev_b32 {v(vRT4)}, 2, {v(rtot)}
  v_add_u32 {v(vA6)}, {v(cb)}, {v(sA)}
  v_mul_u32_u24 {v(vA6)}, 6, {v(vA6)}""")
    def state_update2():
        a(f"""
  v_add_u32 {v(sA)}, 32, {v(sA)}
  v_subrev_u32 {v(nA)}, 32, {v(nA)}
  v_add_u32 {v(T+1)}, {v(T+1)}, {v(T+2)}
  v_sub_u32 {v(T)}, {v(T)}, {v(T+2)}
  v_cndmask_b32 {v(sA)}, {v(sA)}, {v(T+1)}, vcc
  v_cndmask_b32 {v(nA)}, {v(nA)}, {v(T)}, vcc""")
        for i in range(K - 1):
            a(f"  v_cndmask_b32 {v(Q+i)}, {v(Q+i)}, {v(Q+i+1)}, vcc")
        a(f"  v_cndmask_b32 {v(Q+K-1)}, {v(Q+K-1)}, {v(vZ)}, vcc")
    def set_flag(tag):
        a(f"""
  v_cmp_lt_u32 vcc, 0, {v(rem)}
  s_cbranch_vccz L_noflag_{tag}
  ds_write_b32 {v(vCtlN)}, {v(vOne)} offset:4""")
        a.label(f"L_noflag_{tag}")

    bc = lambda u: f"row_newbcast:{u} row_mask:0xf bank_mask:0xf"
    def rec_load(u, t0):
        a(f"""
  v_sub_co_u32_dpp {v(t0)}, vcc, {v(vR0)}, {v(vI1)} {bc(u)}
  v_add_u32_dpp {v(t0)}, {v(vA6)}, {v(vI6)} {bc(u)}
  v_add_u32_dpp {v(t0+1)}, {v(vB6)}, {v(vI6)} {bc(u)}
  v_cndmask_b32 {v(t0)}, {v(t0)}, {v(t0+1)}, vcc
  v_sub_u32_dpp {v(t0+1)}, {v(vRT4)}, {v(vI4)} {bc(u)}
  v_bfi_b32 {v(t0)}, {v(vMsk)}, {v(t0)}, {v(t0+1)}
  buffer_load_dwordx2 {v(REC[u],2)}, {v(t0)}, {s(sREC,4)}, 0 offen{RPOL}""")

    SDWA = "dst_sel:WORD_1 dst_unused:UNUSED_PAD src0_sel:WORD_1 src1_sel:WORD_0"
    def ins1(u, thr, p):
        ta, rk, mk, w = TA[p], RK[p], sMk[p], WW[p]
        a(f"""
  v_cmp_gt_i32 vcc, 0, {v(REC[u])}
  v_min_i32 {v(w)}, {v(REC[u])}, {v(REC[u]+1)}
  v_cmp_gt_i32 {s(mk,2)}, {thr}, {v(w)}
  v_bfe_u32 {v(ta)}, {v(w)}, 23, 8
  v_cndmask_b32_sdwa {v(REC[u])}, {v(REC[u])}, {v(REC[u]+1)}, vcc {SDWA}
  v_mad_u32_u24 {v(ta)}, {v(ta)}, {v(v264)}, s{sIns}
  s_mov_b64 exec, {s(mk,2)}
  ds_add_rtn_u32 {v(rk)}, {v(ta)}, {v(vOne)}
  s_mov_b64 exec, -1""")

    def ins2(u, tag, p):
        ta, rk, mk, w = TA[p], RK[p], sMk[p], WW[p]
        lab = f"{tag}_{u}"
        a(f"""
  s_mov_b64 exec, {s(mk,2)}
  v_cmp_lt_u32 vcc, 31, {v(rk)}
  v_lshl_add_u32 {v(ta)}, {v(rk)}, 3, {v(ta)}
  s_cbranch_vccnz L_rare_{lab}""")
        a.label(f"L_back_{lab}")
        a(f"""
  ds_write2_b32 {v(ta)}, {v(REC[u])}, {v(w)} offset0:2 offset1:3
  s_mov_b64 exec, -1""")
        rare.append((lab, u, p))

    a(f"""
  v_add_u32 {v(PT+2)}, {P1_REC}, {v(vL16)}
  v_add_u32 {v(PT+3)}, {P1_REC + 8*8192}, {v(vL16)}
  v_add_u32 {v(PT+4)}, {P1_REC + 16*8192}, {v(vL16)}
  s_mov_b32 s{sSo}, {NB*8192}
  v_mov_b32 {v(vDum)}, 3
  s_waitcnt lgkmcnt(0)
  s_barrier""")
    stamp(a, 252, 45)
    NS = 19
    sdt = lambda r: (20 + r) % 25 if r < 8 else r + 1
    SD = lambda r: ACC[sdt(r)]
    gv = []
    def gwait(x, extra=""): a(f"  s_waitcnt vmcnt({len(gv) - 1 - gv.index(x)}){extra}")
    def rd(r): a(f"  ds_read_b128 {v(SD(r),4)}, {v(PT+2 + r//8)} offset:{(r%8)*8192}")
    def st(r, lst=None):
        a(f"  buffer_store_dwordx4 {v(SD(r),4)}, {v(vL16)}, {s(sRW,4)}, s{sSo} offen sc1\n  s_add_u32 s{sSo}, s{sSo}, 8192")
        if lst is not None: lst.append(("st", r))
    zero_acc = lambda t: a(f"  v_mov_b64 {v(ACC[t],2)}, 0\n  v_mov_b64 {v(ACC[t]+2,2)}, 0")
    flag3 = f"  buffer_store_dword {v(vDum)}, {v(vFlg)}, {s(sFLG,4)}, 0 offen sc1"
    N1, N3 = OPT["n1"], OPT["n3"]
    if not OPT["wall"]:
        a(f"  s_cmp_gt_u32 s{sO2}, {NB*8192 // 6 - 2}\n  s_cbranch_scc1 L_noearly")
        a(flag3)
        a.label("L_noearly")
    a(f"""
  buffer_load_dwordx4 {v(Q,4)}, {v(vTab)}, {s(sTAB,4)}, 0 offen sc1
  buffer_load_dwordx2 {v(Q+4,2)}, {v(vTab)}, {s(sTAB,4)}, 0 offen offset:16 sc1""")
    gv.extend([("tab", 0), ("tab", 1)])
    if cpf(1, 24): gv.append(("c", 1))
    for r in range(NB, NS): rd(r)
    nxt = NB + N1
    for r in range(NB, nxt):
        a(f"  s_waitcnt lgkmcnt({NS - 1 - r})")
        st(r, gv)
    a(f"""
  s_waitcnt lgkmcnt(0)
  s_cmp_gt_u32 s{sO2}, {NB*8192 // 6 - 2}
  s_cbranch_scc1 L_allfirst""")
    if OPT["wall"]: a(f"  s_waitcnt vmcnt({len(gv)})")
    a("  s_barrier")
    if OPT["wall"]: a(flag3)
    a.label("L_allfirst_back")
    stamp(a, 252, 46)
    pend = list(range(nxt, NS))
    keep = OPT["n3"]
    slot = [0]
    def st1(n=1):
        on = OPT["smask"] >> slot[0] & 1 or n > 1
        slot[0] += 1
        for _ in range(n):
            if on and len(pend) > keep: st(pend.pop(0), gv)
    st1()
    RBR, WD = Wa, Wa + 14
    if DMA:
        for p in range(14): a(f"  v_mov_b32 {v(RBR+p)}, {v(RBK[p]) if p < 13 else 0}")
        a(f"  v_mov_b32 {v(WD)}, {v(WDK[0])}\n  v_mov_b32 {v(WD+1)}, {v(WDK[1])}")
        st1()
    else:
        a(f"""
  s_mul_i32 s{sX}, s{sW}, 3584
  s_add_u32 s{sX}, s{sX}, {RB_OFF}
  v_and_b32 {v(T+8)}, 63, v0
  v_lshl_add_u32 {v(T+9)}, {v(T+8)}, 3, s{sX}
  v_bfe_u32 {v(T+8)}, v0, 4, 1
  v_cmp_eq_u32 vcc, 1, {v(T+8)}""")
        for p in range(14): a(f"  ds_write_b32 {v(T+9)}, {v(RBK[p] if p < 13 else vZ)} offset:{(p//2)*512 + (p%2)*4}")
        st1()
        for r in range(4):
            a(f"  v_cndmask_b32 {v(Wa+r)}, {v(WDK[r])}, {v(vZ)}, vcc")
            a(f"  v_cndmask_b32 {v(Wb+r)}, {v(vZ)}, {v(WDK[r])}, vcc")
    a(f"""
  v_mov_b32 {v(WS0+1)}, 0
  v_mov_b32 {v(WS1+1)}, 0
  v_mov_b32 {v(WR+1)}, 0
  v_mov_b32 {v(sA)}, 0
  v_mov_b32 {v(nA)}, 0
  v_mov_b32 {v(rtot)}, 0""")
    ZR = range(Wa + 16, Wa + 32, 2) if DMA else range(RING[0], RING[0] + 20, 2)
    for r in ZR: a(f"  v_mov_b64 {v(r,2)}, 0")
    st1()
    a(f"""
  s_mul_i32 s{sFl}, s{sJ}, {2*CARLIST}
  s_add_u32 s{sFl}, s{sFl}, {CAROFF}""")
    srd(a, sREC, sWS, sWS+1, None, NCH * CH * 6)
    a(f"  s_mov_b32 s{sM}, s48\n  s_or_b32 s{sM+1}, s49, 0x20000\n  s_mov_b32 s{sM+2}, {E*16}\n  s_mov_b32 s{sM+3}, 0x20000")
    srd(a, sCAR, sWS, sWS+1, f"s{sFl}", 2 * CARLIST)
    srd(a, sOUT, 70, 71, None, f"s{sRb}")
    srd(a, sMW, 48, 49, None, f"s{sRb}")
    for t in list(range(3, 9)) + [sdt(r) for r in range(NB)]: zero_acc(t)
    st1()
    a(f"""
  v_mov_b32 {v(vSent)}, {SENT}
  v_mov_b32 {v(T)}, 0
  v_mov_b32 {v(T+1)}, {v(vSent)}
  v_mov_b32 {v(T+2)}, 0
  v_mov_b32 {v(T+3)}, {v(vSent)}
  v_add_u32 {v(T+6)}, {7*8192}, {v(vL16)}""")
    for r in range(13):
        a(f"  ds_write_b128 {v(vL16 if r < 7 else T+6)}, {v(T,4)} offset:{(r%7)*8192}")
        if r % 5 == 4: st1()
    a(f"""
  v_and_b32 {v(T+6)}, 15, v0
  v_lshl_add_u32 {v(T+6)}, {v(T+6)}, 2, {v(vCtlN)}
  ds_write_b32 {v(T+6)}, {v(vZ)}
  ds_write_b128 {v(vSst if DMA else vSrd)}, {v(ACC[3],4)}""")
    if DMA:
        for q in range(D): a(f"  ds_write_b128 {v(vSst)}, {v(ACC[3],4)} offset:{1024*(q+1)}")
    for q in range(D): a(f"  v_mov_b32 {v(SA[q])}, {v(vSst)}\n  v_mov_b32 {v(CC[q])}, 0")
    gwait(("tab", 1))
    a(f"  v_lshrrev_b32 {v(rem)}, 16, {v(Q)}")
    for i in range(1, K):
        a(f"  v_lshrrev_b32 {v(T+4)}, 16, {v(Q+i)}\n  v_add_u32 {v(rem)}, {v(rem)}, {v(T+4)}")
    state_update()
    for u in range(0, 16, 2):
        a(f"""
  v_add_u32_dpp {v(REC[u])}, {v(vB6)}, {v(vI6)} {bc(u)}
  v_sub_u32_dpp {v(REC[u]+1)}, {v(vRT4)}, {v(vI4)} {bc(u)}
  v_add_u32_dpp {v(REC[u+1])}, {v(vB6)}, {v(vI6)} {bc(u+1)}
  v_sub_u32_dpp {v(REC[u+1]+1)}, {v(vRT4)}, {v(vI4)} {bc(u+1)}
  v_bfi_b32 {v(REC[u])}, {v(vMsk)}, {v(REC[u])}, {v(REC[u]+1)}
  v_bfi_b32 {v(REC[u+1])}, {v(vMsk)}, {v(REC[u+1])}, {v(REC[u+1]+1)}""")
        if u % 4 == 2: st1()
    state_update2()
    state_update()
    state_update2()
    st1()
    st1(NS)
    a("  s_nop 0")
    nx3 = NS - len(pend)
    for r in range(NB, nx3): zero_acc(sdt(r))
    stamp(a, 252, 47)
    if OPT["pf0"] == 3:
        share = (OPT["wmain"] // 4 + 31) // 32
        a(f"""
  s_cmp_eq_u32 s{sW}, 0
  s_cbranch_scc1 L_nopf
  s_lshr_b32 s{sX}, s2, 3
  s_mul_i32 s{sX}, s{sX}, {share*128}
  v_lshlrev_b32 {v(TA[1])}, 7, v0
  buffer_load_dword {v(WW[1])}, {v(TA[1])}, {s(sM,4)}, s{sX} offen""")
        a.label("L_nopf")
    a(f"  s_cmp_lg_u32 s{sW}, 0\n  s_cbranch_scc1 L_polled_b")
    poll("b", flag_load(FP, RK[0]), flag_cond(FP, 2), OPT["nap"])
    a("  s_waitcnt lgkmcnt(0)")
    a("  s_barrier")
    stamp(a, 252, 1)
    def pro_ld(us):
        for u in us:
            a(f"  buffer_load_dwordx2 {v(REC[u],2)}, {v(REC[u])}, {s(sREC,4)}, 0 offen{RPOL}")
            gv.append(("rec", u))
    NL0 = OPT["nl0"]
    pro_ld(range(NL0))
    NG = NS
    stamp(a, 252, 12)
    set_flag("pro")
    stamp(a, 252, 13)
    PTA = (lambda u: (list(range(Db, Sf + 4)) + [TA[0], TA[1], RK[1], WW[1]])[u]) if DMA else (lambda u: Da + u)
    PRK = (lambda u: Wa + 16 + u) if DMA else (lambda u: RING[0] + u)
    PMK = lambda u: sPM + 2 * (u % 8)
    slowg = []
    def pro_ins1(g):
        us = range(4*g, 4*g+4)
        gwait(("rec", 4*g+3))
        for u in us:
            a(f"""
  v_cmp_gt_i32 vcc, 0, {v(REC[u])}
  v_min_i32 {v(PTA(u))}, {v(REC[u])}, {v(REC[u]+1)}
  v_cmp_gt_i32 {s(PMK(u),2)}, 0, {v(PTA(u))}
  v_cndmask_b32_sdwa {v(REC[u])}, {v(REC[u])}, {v(REC[u]+1)}, vcc {SDWA}
  v_mov_b32 {v(REC[u]+1)}, {v(PTA(u))}""")
        for u in us: a(f"  v_bfe_u32 {v(PTA(u))}, {v(PTA(u))}, 23, 8")
        for u in us: a(f"  v_mul_u32_u24 {v(PTA(u))}, {v(PTA(u))}, {v(v264)}")
        for u in us: a(f"  s_mov_b64 exec, {s(PMK(u),2)}\n  ds_add_rtn_u32 {v(PRK(u))}, {v(PTA(u))}, {v(vOne)}")
        a("  s_mov_b64 exec, -1")
    def pro_ins2(g):
        us = list(range(4*g, 4*g+4))
        a(f"""
  v_max3_u32 {v(T)}, {v(PRK(us[0]))}, {v(PRK(us[1]))}, {v(PRK(us[2]))}
  v_max_u32 {v(T)}, {v(T)}, {v(PRK(us[3]))}
  v_cmp_lt_u32 vcc, 31, {v(T)}
  s_cbranch_vccz L_pfast_{g}
  v_cmp_lt_u32 vcc, 63, {v(T)}
  s_cbranch_vccnz L_pslow_{g}""")
        a.label(f"L_pback_{g}")
        for x, u in enumerate(us): a(f"  v_subrev_u32 {v(T+4+x)}, 31, {v(PRK(u))}")
        for x, u in enumerate(us): a(f"  s_mov_b64 exec, {s(PMK(u),2)}\n  ds_max_i32 {v(PTA(u))}, {v(T+4+x)} offset:{BUFSZ}")
        a(f"  s_mov_b64 exec, -1\n  ds_write_b32 {v(vCtlN)}, {v(vOne)} offset:4")
        for x, u in enumerate(us): a(f"  v_lshrrev_b32 {v(T+4+x)}, 5, {v(PRK(u))}")
        for x, u in enumerate(us): a(f"  v_mad_u32_u24 {v(PTA(u))}, {v(T+4+x)}, s{sThr}, {v(PTA(u))}")
        a.label(f"L_pfast_{g}")
        for u in us: a(f"  v_lshl_add_u32 {v(PTA(u))}, {v(PRK(u))}, 3, {v(PTA(u))}")
        for u in us: a(f"  s_mov_b64 exec, {s(PMK(u),2)}\n  ds_write_b64 {v(PTA(u))}, {v(REC[u],2)} offset:8")
        a("  s_mov_b64 exec, -1")
        slowg.append(g)
    a(f"  s_mov_b32 s{sThr}, {BUFSZ - 256}")
    left = list(range(nx3, NS))
    per = (len(left) + 3) // 4
    def some():
        for _ in range(per):
            if left: st(left.pop(0), gv)
    pro_ins1(0)
    stamp(a, 252, 3)
    pro_ld(range(NL0, 16))
    def pf():
        share = (OPT["wmain"] // 4 + 31) // 32
        a(f"""
  s_lshr_b32 s{sX}, s2, 3
  s_mul_i32 s{sX}, s{sX}, {share*128}
  v_lshlrev_b32 {v(TA[1])}, 7, v0
  buffer_load_dword {v(WW[1])}, {v(TA[1])}, {s(sM,4)}, s{sX} offen""")
        gv.append(("pf", 0))
    if OPT["pf0"] == 1:
        while left: st(left.pop(0), gv)
        pf()
    pro_ins1(1)
    some()
    a("  s_waitcnt lgkmcnt(0)")
    pro_ins2(0); some(); pro_ins1(2); pro_ins2(1); some(); pro_ins1(3); some()
    if OPT["pf0"] == 2: pf()
    stamp(a, 252, 8)
    a("  s_nop 0")
    for r in range(nx3, NS): zero_acc(sdt(r))
    a("  s_waitcnt lgkmcnt(0)")
    pro_ins2(2); pro_ins2(3)
    stamp(a, 252, 11)
    if DMA:
        a(f"  s_mul_i32 s{sRing}, s{sW}, {WSTR}\n  s_add_u32 s{sRing}, s{sRing}, {S_OFF + 1024}")
        for r in range(P, Sf + 4, 2): a(f"  v_mov_b64 {v(r,2)}, 0")
    a("  s_branch L_turn2")
    def signal_all(tag, n):
        a(f"""
  v_mov_b32 {v(T+4)}, {CTL + 32}
  s_waitcnt vmcnt({n})
  s_mov_b64 exec, 1
  ds_add_rtn_u32 {v(T+5)}, {v(T+4)}, {v(vOne)}
  s_mov_b64 exec, -1
  v_and_b32 {v(T+6)}, 63, v0
  s_lshl_b32 s{sX}, s2, 2
  v_lshl_add_u32 {v(T+6)}, {v(T+6)}, 10, s{sX}
  v_mov_b32 {v(T+7)}, 4
  s_waitcnt lgkmcnt(0)
  v_readfirstlane_b32 s{sX}, {v(T+5)}
  s_cmp_lg_u32 s{sX}, 7
  s_cbranch_scc1 L_nosig_{tag}
  buffer_store_dword {v(T+7)}, {v(T+6)}, {s(sFLG,4)}, 0 offen sc1""")
        a.label(f"L_nosig_{tag}")

    INS0 = OPT["ins0"]
    def cstage_head(q):
        if OPT["abl_s"]: return
        a(f"""
  ds_write_b16 {v(SA[q])}, {v(CC[q])}
  ds_read_b128 {v(Sf,4)}, {v(vSrd)}
  ds_write_b16 {v(SA[q])}, {v(vZ)}""")
    def cstage_m1(q):
        a(f"""
  v_mfma_f32_16x16x32_bf16 {v(Da,4)}, {v(RING[q],4)}, {v(Wa,4)}, 0
  v_mfma_f32_16x16x32_bf16 {v(Db,4)}, {v(RING[q],4)}, {v(Wb,4)}, 0""")
    def cstage_cvt():
        a(f"""
  v_cvt_pk_bf16_f32 {v(P)}, {v(Da)}, {v(Da+1)}
  v_cvt_pk_bf16_f32 {v(P+1)}, {v(Da+2)}, {v(Da+3)}
  v_cvt_pk_bf16_f32 {v(P+2)}, {v(Db)}, {v(Db+1)}
  v_cvt_pk_bf16_f32 {v(P+3)}, {v(Db+2)}, {v(Db+3)}""")
    def cstage_m2(tc):
        a(f"  v_mfma_f32_16x16x32_bf16 {v(ACC[tc],4)}, {v(P,4)}, {v(Sf,4)}, {v(ACC[tc],4)}")
    def tr(dst, addr, off):
        a(f"  ds_read_b64_tr_b16 {v(dst,2)}, {v(addr)} offset:{off}\n  ds_read_b64_tr_b16 {v(dst+2,2)}, {v(addr)} offset:{off+512}")
    def fetch(q):
        a(f"  ds_write_b16 {v(SA[q])}, {v(CC[q])}")
        tr(Sf, vSrd, 0)
        a(f"  ds_write_b16 {v(SA[q])}, {v(vZ)}")
        tr(P, vSrd, 1024 * (q + 1))
    def step_top(t, reset=True):
        a(f"  ; ---- step {t}")
        a("  s_waitcnt lgkmcnt(0)")
        if DMA: cstage_m2((t - D) % NT)
        else: cstage_head(t % D)
        if t < NT - 1:
            a(f"  ds_read_b64 {v(RP[(t+1)&1],2)}, {v(vRd)} offset:{(t+1)*TS+8}")
        if reset and t < NT:
            a(f"  ds_write_b32 {v(vRd)}, {v(vSent)} offset:{t*TS+12}")
    def step_main(t, n, reset=True):
        q = t % D; tc = (t - D) % NT
        rp = RP[t & 1]
        off, af, e = T + 1, T + 2, T + 3
        if DMA:
            a(f"""
  s_add_u32 m0, s{sRing}, {1024*q}
  v_and_or_b32 {v(off)}, {v(rp+1)}, {v(vSent)}, {v(vHalf)}
  buffer_load_dwordx4 {v(off)}, {s(sM,4)}, 0 idxen lds
  v_mul_f32 {v(af)}, {v(rp)}, {v(vFreq)}
  s_waitcnt vmcnt({min(n + 1, 62)})""")
            fetch((t + 1) % D)
            a(f"""
  v_cos_f32 {v(af)}, {v(af)}
  v_and_or_b32 {v(SA[q])}, {v(rp+1)}, 14, {v(vSst)}
  v_cvt_pk_bf16_f32 {v(CC[q])}, {v(af)}, {v(af)}""")
            return
        lg = (2 if t < NT-1 else 1) + (1 if reset else 0)
        a(f"  s_waitcnt vmcnt({n})")
        cstage_m1(q)
        a(f"""
  v_and_or_b32 {v(off)}, {v(rp+1)}, {v(vSent)}, {v(vHalf)}
  v_mul_f32 {v(af)}, {v(rp)}, {v(vFreq)}
  v_and_b32 {v(e)}, 14, {v(rp+1)}
  buffer_load_dwordx4 {v(RING[q],4)}, {v(off)}, {s(sM,4)}, 0 idxen
  v_cos_f32 {v(af)}, {v(af)}
  v_lshl_add_u32 {v(SA[q])}, {v(e)}, 3, {v(vSst)}
  v_cvt_pk_bf16_f32 {v(CC[q])}, {v(af)}, {v(af)}""")
        cstage_cvt()
        a(f"  s_waitcnt lgkmcnt({lg})\n  s_nop 0")
        cstage_m2(tc)

    order = []
    for t in range(NT):
        if t == 0: order.append(("car", 16))
        u2 = t - INS0 - 1
        EA = OPT["early"]
        if EA: order += [("rec", u) for u in range(EA * t, min(16, EA * t + EA))]
        elif 0 <= u2 < 16: order.append(("rec", u2))
        order.append(("W", t))
        order.append(("g", t))
    tail = [x for x in order[order.index(("g", NT - D)):] if x[0] != "W"]
    assert tail == [("g", t) for t in range(NT - D, NT)], tail
    def younger(target, at):
        n = len(order); i = order.index(target); cnt = 0
        j = (i + 1) % n
        while j != at:
            if order[j][0] != "W": cnt += 1
            j = (j + 1) % n
        return cnt
    first = []
    for x in order:
        if x[0] == "W" and x[1] < 4: first += [("f", 4 * x[1] + i) for i in range(4)]
        first.append(x)
    def younger_first(u, t):
        i = first.index(("f", u)); j = first.index(("W", t))
        return sum(1 for x in first[i+1:j] if x[0] != "W")
    RBH = 1
    def prio(tag, mask, t):
        cur = mask >> t & 1; prev = (mask >> (t - 1) & 1) if t else 0
        if cur and not prev:
            a(f"  s_cmp_lt_u32 s{sW}, 4\n  s_cbranch_scc1 L_{tag}prio{t}\n  s_setprio 1")
            a.label(f"L_{tag}prio{t}")
        if prev and not cur: a("  s_setprio 0")
    assert not OPT["lprio"] >> (NT - 1)
    def step0_extra():
        a(f"""
  v_cmp_gt_u32 vcc, s{sCin}, {v(vCarIdx)}
  s_add_u32 s{sX}, s{sIt}, 2
  s_and_b32 s{sX}, s{sX}, 3
  s_lshl_b32 s{sX}, s{sX}, 3
  s_add_u32 s{sX}, s{sX}, {CTL}
  v_mov_b32 {v(T+1)}, s{sX}
  ds_write_b64 {v(T+1)}, {v(vZ,2)}
  ds_write_b32 {v(vCntA)}, {v(vZ)}
  v_cndmask_b32 {v(T)}, {v(vOOB)}, {v(vCarOff)}, vcc
  buffer_load_dwordx2 {v(REC[16],2)}, {v(T)}, {s(sCAR,4)}, s{sCarR} offen sc1""")
    def state_step(tag):
        a(f"  s_cmp_lg_u32 s{sThr}, 0\n  s_cbranch_scc1 L_nostate_{tag}")
        if tag == "b0":
            QL = Q + OPT['keff'] - 3
            a(f"""
  v_lshrrev_b32 {v(T)}, 16, {v(QL)}
  v_cmp_eq_u32 vcc, 0, {v(nA)}
  v_subrev_u32 {v(T+1)}, {OPT['lim']}, {v(T)}
  v_and_b32 {v(T+2)}, 0xffff, {v(QL)}
  v_max_i32 {v(T+1)}, 0, {v(T+1)}
  v_cndmask_b32 {v(T+1)}, {v(vZ)}, {v(T+1)}, vcc
  v_add_u32 {v(T+2)}, {v(T+2)}, {v(T)}
  v_sub_u32 {v(T+2)}, {v(T+2)}, {v(T+1)}
  v_cndmask_b32 {v(sA)}, {v(sA)}, {v(T+2)}, vcc
  v_add_u32 {v(nA)}, {v(nA)}, {v(T+1)}
  v_lshlrev_b32 {v(T+1)}, 16, {v(T+1)}
  v_sub_u32 {v(QL)}, {v(QL)}, {v(T+1)}""")
        state_update(); state_update2()
        a.label(f"L_nostate_{tag}")
        set_flag(tag)
    a(".p2align 6")
    a.label("L_body0")
    lo = []
    lw = lambda x: len(lo) - 1 - lo.index(x)
    ST0, STP = OPT["st0"], OPT["stp"]
    late = list(range(NG, NS))
    tsig = None
    FC = REC[0]
    FO = REC[2]
    for t in range(NT):
        step_top(t)
        prio("b0", OPT["lprio"], t)
        if t == 0:
            step0_extra(); lo.append(("rec", 16))
        if t < 4:
            for u in range(4*t, 4*t+4):
                rec_load(u, T + 4 + 2 * (u & 1)); lo.append(("rec", u))
        if t == INS0: state_step("b0")
        if t == 14 and cpf(2, 24): lo.append(("c", 2))
        zs = []
        if t >= ST0:
            for _ in range(STP):
                if late:
                    r = late.pop(0); st(r, lo); zs.append(r)
                    assert sdt(r) + D > t
                    if not late: tsig = t + D + 1
        u1 = t - INS0; u2 = u1 - 1
        if 0 <= u2 < 17: ins2(u2, "b0", u2 & 1)
        if 0 <= u1 < 17:
            a(f"  s_waitcnt vmcnt({lw(('rec', u1))})")
            ins1(u1, f"s{sThr}" if u1 < 16 else "0", u1 & 1)
        else: a("  s_nop 0")
        for r in zs: zero_acc(sdt(r))
        if t == tsig or (NG == NS and t == 2):
            signal_all("b0", lw(("st", NS - 1)) if NG < NS else len(lo))
        if t == INS0 + 18:
            a(f"  s_cmp_gt_u32 s{sCin}, 512\n  s_cbranch_scc1 L_slow_b0")
            a.label("L_slow_back_b0")
        if t == NT - 3:
            a(f"""
  s_cmp_lg_u32 s{sW}, 0
  s_cbranch_scc1 L_noldc
  v_lshlrev_b32 {v(FO)}, 4, v0
  s_and_b32 s{sX}, s2, 7
  s_lshl_b32 s{sX}, s{sX}, 10""")
            a(flag_load(FC, FO))
            a.label("L_noldc")
        step_main(t, lw(("g", t - LAG)) if t >= LAG else 62)
        lo.append(("g", t))
    assert not late and (tsig is None or tsig < NT - 3)
    a(f"""
  s_waitcnt vmcnt(3)
  s_cmp_lg_u32 s{sW}, 0
  s_cbranch_scc1 L_turn2""")
    assert NT - (INS0 + 17) >= 3
    a(flag_cond(FC, 4))
    a(f"""
  s_cbranch_vccz L_turn2
  s_and_b32 s{sX}, s2, 7
  s_lshl_b32 s{sX}, s{sX}, 10""")
    poll("c", flag_load(FC, FO), flag_cond(FC, 4), OPT["nap"])
    a("  s_branch L_turn2")

    a(".p2align 6")
    a.label("L_loop")
    for t in range(NT):
        step_top(t)
        if t == 0: step0_extra()
        prio("lp", OPT["lprio"], t)
        if EA:
            for u in range(EA * t, min(16, EA * t + EA)): rec_load(u, T + 4 + 2 * (u & 1))
        if t < 4:
            if not EA: a(f"  s_cmp_eq_u32 s{sIt}, 1\n  s_cbranch_scc1 L_first_{t}")
            a.label(f"L_first_back_{t}")
        if t == INS0: state_step("lp")
        if t == 14: cpf(3, 24)
        u1 = t - INS0; u2 = u1 - 1
        if 0 <= u2 < 17:
            ins2(u2, "lp", u2 & 1)
            if u2 < 16 and not EA:
                if OPT["fix"]:
                    a(f"""
  v_add_u32_dpp {v(T+4)}, {v(vB6)}, {v(vI6)} {bc(u2)}
  v_sub_u32_dpp {v(T+5)}, {v(vRT4)}, {v(vI4)} {bc(u2)}
  v_bfi_b32 {v(T+4)}, {v(vMsk)}, {v(T+4)}, {v(T+5)}
  buffer_load_dwordx2 {v(REC[u2],2)}, {v(T+4)}, {s(sREC,4)}, 0 offen{RPOL}""")
                else: rec_load(u2, T + 4)
            if u2 == 16 and OPT["fix"]:
                a(f"  v_cmp_ne_u32 vcc, 0, {v(vR0)}\n  s_cbranch_vccnz L_fix")
                a.label("L_fix_back")
        if 0 <= u1 < 17:
            pos = order.index(("W", t))
            if EA and u1 < 16: n = younger(("rec", u1), pos)
            elif u1 < 16: n = min(younger(("rec", u1), pos), younger_first(u1, t))
            else: n = younger(("car", 16), pos)
            a(f"  s_waitcnt vmcnt({min(n, 62)})")
            ins1(u1, f"s{sThr}" if u1 < 16 else "0", u1 & 1)
        if t == INS0 + 18:
            a(f"  s_cmp_gt_u32 s{sCin}, 512\n  s_cbranch_scc1 L_slow_lp")
            a.label("L_slow_back_lp")
        step_main(t, younger(("g", (t - LAG) % NT), order.index(("W", t))))
    assert INS0 >= 4 and RBH < NT
    a(f"  s_waitcnt vmcnt({NT - (INS0 + 17)})")
    a.label("L_turn2")
    a(f"""
  v_mov_b32 {v(T)}, {v(vCtlN)}
  s_add_u32 s{sIt}, s{sIt}, 1
  s_add_u32 s{sX}, s{sIt}, 1
  s_and_b32 s{sX}, s{sX}, 3
  s_lshl_b32 s{sX}, s{sX}, 3
  s_add_u32 s{sX}, s{sX}, {CTL}
  v_mov_b32 {v(vCtlN)}, s{sX}
  s_sub_u32 s{sX}, s{sIns}, {BUFSZ}
  s_add_u32 s{sX}, s{sX}, s{sIns}
  v_add_u32 {v(vRd)}, s{sX}, {v(vRd)}
  v_add_u32 {v(vCntA)}, s{sX}, {v(vCntA)}
  s_sub_u32 s{sIns}, {BUFSZ}, s{sIns}
  s_mov_b32 s{sCarR}, s{sCarW}
  s_sub_u32 s{sCarW}, {CARLIST}, s{sCarW}
  s_waitcnt lgkmcnt(0)""")
    if OPT["stamp"] == 1:
        a(f"  s_lshl_b32 s90, s{sIt}, 1\n  s_add_u32 s90, s90, 16\n  s_min_u32 m0, s90, 36")
        stamp(a, 252, "m0")
        a("  s_add_u32 m0, m0, 1")
    a("  s_barrier")
    stamp(a, 252, "m0")
    a(f"""
  ds_read_b64 {v(T+2,2)}, {v(T)}
  ds_read_b64 {v(RP[0],2)}, {v(vRd)} offset:8
  s_waitcnt lgkmcnt(1)
  v_readfirstlane_b32 s{sCin}, {v(T+2)}
  v_readfirstlane_b32 s{sFl}, {v(T+3)}
  s_cmp_gt_u32 s{sCin}, 512
  s_cselect_b32 s{sThr}, 0x80000000, 0
  s_min_u32 s{sCin}, s{sCin}, {CARCAP}
  s_cmp_gt_u32 s{sCin}, 32
  s_cselect_b32 s{sFl}, 1, s{sFl}
  s_cmp_lt_u32 s{sIt}, {OPT['itcap']}
  s_cselect_b32 s{sFl}, s{sFl}, 0
  s_cmp_eq_u32 s{sIt}, {OPT["cut"] - 100 if OPT["cut"] >= 100 else -1}
  s_cbranch_scc1 L_end
  s_cmp_eq_u32 s{sIt}, 0
  s_cbranch_scc1 L_it0
  s_cmp_lg_u32 s{sFl}, 0
  s_cbranch_scc1 L_loop""")
    a.label("L_nosig_z")

    RBv = RBR if DMA else Q
    assert vRT4 - Q + 1 >= 14
    R0 = REC[0]
    G0, G1, RR, U = R0, R0 + 4, R0 + 8, R0 + 12
    XS0, XS1, XR, AG = R0 + 16, R0 + 18, R0 + 20, R0 + 22
    MS = [R0 + 24 + 2 * i for i in range(5)]
    vMoff, vLin, vOw, vOr = vCarOff, vI6, vI1, vI4
    a(f"""
  v_and_b32 {v(T)}, 63, v0
  s_mul_i32 s{sX}, s{sW}, 3584
  s_add_u32 s{sX}, s{sX}, {RB_OFF}
  v_lshl_add_u32 {v(T+1)}, {v(T)}, 3, s{sX}
  v_lshlrev_b32 {v(vLin)}, 4, {v(T)}
  v_bfe_u32 {v(T+2)}, v0, 4, 2
  v_and_b32 {v(T+3)}, 15, v0
  v_lshlrev_b32 {v(T+2)}, 3, {v(T+2)}
  v_lshl_add_u32 {v(vMoff)}, {v(T+3)}, 5, {v(T+2)}
  s_mul_i32 s{sX}, s{sW}, 6400
  s_add_u32 s{sX}, s{sX}, s{sIns}
  s_add_u32 s{sX}, s{sX}, 15
  s_and_b32 s{sX}, s{sX}, -16
  v_add_u32 {v(vOw)}, s{sX}, {v(vMoff)}
  v_add_u32 {v(vOr)}, s{sX}, {v(vLin)}
  v_cmp_gt_u32 {s(sT,2)}, 8, {v(T+3)}""")
    for h in range(0 if DMA else 7):
        a(f"  ds_read_b64 {v(RBv+2*h,2)}, {v(T+1)} offset:{h*512}")
    if DMA: a(f"  s_mov_b32 s{sCnt[0]}, s{sX}")
    def s0(tl):
        x = ACC[tl]
        a(f"""
  v_cvt_pk_bf16_f32 {v(Da)}, {v(x)}, {v(x+1)}
  v_cvt_pk_bf16_f32 {v(Da+1)}, {v(x+2)}, {v(x+3)}
  s_nop 1
  v_mfma_f32_16x16x16_bf16 {v(x,4)}, {v(WD,2)}, {v(Da,2)}, 0""")
    fo = [("g", t - NT) for t in range(NT - D, NT)]
    def fwait(x): return len(fo) - 1 - fo.index(x)
    def s1(p):
        b = RBv + (p & ~1)
        w0, w1 = (WS0, WS1) if p % 2 == 0 else (XS0, XS1)
        a(f"""
  v_mfma_f32_16x16x16_bf16 {v(G0,4)}, {v(w0,2)}, {v(b,2)}, 0
  v_mfma_f32_16x16x16_bf16 {v(G1,4)}, {v(w1,2)}, {v(b,2)}, 0""")
    def s2(p):
        t0 = ACC[2*p]; t1 = ACC[2*p+1] if 2*p+1 < NT else ACC[2*p]
        for r in range(4): a(f"  v_mul_f32 {v(U+r)}, {v(t0+r)}, {v(G0+r)}")
        for r in range(4): a(f"  v_mul_f32_dpp {v(U+r)}, {v(t1+r)}, {v(G0+r)} row_ror:8 row_mask:0xf bank_mask:0xc")
        for r in range(4): a(f"  v_fmac_f32_dpp {v(U+r)}, {v(t0+r)}, {v(G1+r)} row_ror:8 row_mask:0xf bank_mask:0x3")
        for r in range(4): a(f"  v_fmac_f32_dpp {v(U+r)}, {v(t1+r)}, {v(G1+r)} quad_perm:[0,1,2,3] row_mask:0xf bank_mask:0xc")
        a(f"""
  v_cvt_pk_bf16_f32 {v(AG)}, {v(U)}, {v(U+1)}
  v_cvt_pk_bf16_f32 {v(AG+1)}, {v(U+2)}, {v(U+3)}
  v_mfma_f32_16x16x16_bf16 {v(RR,4)}, {v(WR if p % 2 == 0 else XR,2)}, {v(RBv + (p & ~1),2)}, 0""")
        if p + 1 < 13: s1(p + 1)
        else: a("  s_nop 0")
        a(f"  v_mfma_f32_16x16x16_bf16 {v(U,4)}, {v(WUP,2)}, {v(AG,2)}, 0")
    def s3(p):
        x = ACC[2*p]; m_ = MS[p % 5]
        a(f"""
  s_waitcnt vmcnt({fwait(("m", p))})
  v_lshlrev_b32 {v(x)}, 16, {v(m_)}
  v_and_b32 {v(x+1)}, 0xffff0000, {v(m_)}
  v_lshlrev_b32 {v(x+2)}, 16, {v(m_+1)}
  v_and_b32 {v(x+3)}, 0xffff0000, {v(m_+1)}""")
        if p == 12: a("  s_nop 2")
        a(f"""
  v_pk_fma_f32 {v(x,2)}, {v(U,2)}, {v(RR,2)}, {v(x,2)}
  v_pk_fma_f32 {v(x+2,2)}, {v(U+2,2)}, {v(RR+2,2)}, {v(x+2,2)}
  v_cvt_pk_bf16_f32 {v(x)}, {v(x)}, {v(x+1)}
  v_cvt_pk_bf16_f32 {v(x+1)}, {v(x+2)}, {v(x+3)}""")
        if p == 12: a(f"  s_mov_b64 exec, {s(sT,2)}")
        a(f"  ds_write_b64 {v(vOw)}, {v(x,2)} offset:{p*512}")
        if p == 12: a(f"  s_mov_b64 exec, -1")
        if p % 2 == 1 or p == 12:
            r = p // 2
            a(f"  ds_read_b128 {v(ACC[4*r+1 if r < 6 else 23],4)}, {v(vOr)} offset:{r*1024}")
    def s4(r):
        a(f"  buffer_store_dwordx4 {v(ACC[4*r+1 if r < 6 else 23],4)}, {v(vLin)}, {s(sOUT,4)}, s{sEb if r < 4 else sEb2} offen offset:{(r%4)*1024}{POL[OPT['opol']]}")
        fo.append(("st", r))
    xw = {}
    for t in range(NT + D + 2):
        def x3():
            a(f"  s_cmp_lg_u32 s{sCin}, 0\n  s_cbranch_scc1 L_x3")
            a.label("L_x3_back")
            xw[3] = len(fo) - xw[2]
        if t == 6 and not DMA: x3()
        if t < NT + D: step_top(t, False)
        else: a(f"  ; ---- tail {t}\n  s_waitcnt lgkmcnt(0)")
        if t == 6 and DMA: x3()
        prio("fp", OPT["fprio"], t)
        if t in (0, 3):
            n = 1 if t == 0 else 2
            a(f"  s_cmp_lg_u32 s{sCin}, 0\n  s_cbranch_scc1 L_x{n}")
            a.label(f"L_x{n}_back")
            xw[n] = len(fo)
        if t == NT: stamp(a, 252, 4)
        if t == NT + D: stamp(a, 252, 5)
        if t == 1:
            a(f"""
  v_mov_b32 {v(XS0)}, 0
  v_mov_b32 {v(XS0+1)}, {v(WS0)}
  v_mov_b32 {v(XS1)}, 0
  v_mov_b32 {v(XS1+1)}, {v(WS1)}
  v_mov_b32 {v(XR)}, 0
  v_mov_b32 {v(XR+1)}, {v(WR)}""")
        if t == 5: s1(0)
        ts2 = {2*p+7 if p < 12 else 30: p for p in range(13)}
        if t - 2 in ts2 and (ts2[t-2] % 2 == 1): s4(ts2[t-2] // 2)
        if t - 1 in ts2: s3(ts2[t-1])
        if t in ts2: s2(ts2[t])
        if t % 2 == 1 and t // 2 < 13:
            p = t // 2
            a(f"  buffer_load_dwordx2 {v(MS[p%5],2)}, {v(vMoff)}, {s(sMW,4)}, s{sEb if p < 8 else sEb2} offen offset:{(p%8)*512}{POL[OPT['mpol']]}")
            fo.append(("m", p))
        if t < NT:
            step_main(t, fwait(("g", t - LAG)), False)
            fo.append(("g", t))
        elif t < NT + D and DMA:
            if t - LAG < NT:
                a(f"  s_waitcnt vmcnt({fwait(('g', t - LAG))})")
                fetch((t + 1) % D)
            a("  s_nop 7")
        elif t < NT + D:
            a(f"  s_waitcnt vmcnt({fwait(('g', t - D))})")
            cstage_m1(t % D)
            a("  s_nop 6")
            cstage_cvt()
            a("  s_waitcnt lgkmcnt(0)\n  s_nop 0")
            cstage_m2(t - D)
            a("  s_nop 3")
        if DMA and 6 <= t < NT + D:
            if t == 6: s0(0)
            s0(t - D)
            a("  s_nop 3")
    a("  s_waitcnt lgkmcnt(0)")
    s4(6)
    stamp(a, 252, 6)
    if OPT["stamp"]: a("  s_waitcnt vmcnt(0)")
    stamp(a, 252, 7); stamp(a, 252, 63, "s_memrealtime")
    if OPT["stamp"] == 1: a(f"  v_writelane_b32 v252, s{sIt}, 61")
    stamp_out(a, 252, sWS, 8, STAMPOFF + 0x200000, 253)
    a.label("L_end")
    a("  s_endpgm")

    sSm, sS2 = sMk
    a.label("L_x1")
    a(f"""
  v_cmp_gt_u32 vcc, s{sCin}, {v(vSlot)}
  v_lshlrev_b32 {v(T)}, 3, {v(vSlot)}
  s_nop 0
  v_cndmask_b32 {v(T)}, {v(vOOB)}, {v(T)}, vcc
  buffer_load_dwordx2 {v(AG,2)}, {v(T)}, {s(sCAR,4)}, s{sCarR} offen sc1
  s_branch L_x1_back""")
    a.label("L_x2")
    a(f"""
  s_mul_i32 s{sX}, s{sW}, {NT}
  s_waitcnt vmcnt({xw[2] - xw[1]})
  v_min_i32 {v(U)}, {v(AG)}, {v(AG+1)}
  v_cmp_gt_i32 vcc, 0, {v(AG)}
  v_bfe_u32 {v(U+2)}, {v(U)}, 23, 8
  v_subrev_u32 {v(U+2)}, s{sX}, {v(U+2)}
  v_cndmask_b32_sdwa {v(U+1)}, {v(AG)}, {v(AG+1)}, vcc dst_sel:WORD_1 dst_unused:UNUSED_PAD src0_sel:WORD_1 src1_sel:WORD_0
  v_cmp_gt_i32 {s(sS2,2)}, 0, {v(U)}
  v_cmp_gt_u32 {s(sSm,2)}, {NT}, {v(U+2)}
  s_and_b64 vcc, {s(sSm,2)}, {s(sS2,2)}
  s_cselect_b32 s{sCin}, s{sCin}, 0
  s_cbranch_scc0 L_x2_back
  v_and_or_b32 {v(T)}, {v(U)}, {v(vSent)}, {v(vHalf)}
  v_mul_f32 {v(U+1)}, {v(U+1)}, {v(vFreq)}
  s_mov_b32 m0, s{sCnt[0]}
  v_cndmask_b32 {v(T)}, {v(vSent)}, {v(T)}, vcc
  buffer_load_dwordx4 {(v(T) + ", " + s(sM,4) + ", 0 idxen lds") if DMA else (v(RR,4) + ", " + v(T) + ", " + s(sM,4) + ", 0 idxen")}
  v_cndmask_b32 {v(U+2)}, {v(vOOB)}, {v(U+2)}, vcc
  v_cos_f32 {v(U+1)}, {v(U+1)}
  v_and_b32 {v(U+3)}, 14, {v(U)}
  v_lshl_add_u32 {v(U+3)}, {v(U+3)}, {0 if DMA else 3}, {v(vSst)}
  v_cvt_pk_bf16_f32 {v(U+1)}, {v(U+1)}, {v(U+1)}
  s_branch L_x2_back""")
    a.label("L_x3")
    a(f"  s_waitcnt vmcnt({xw[3]})")
    if DMA:
        a(f"  v_lshrrev_b32 {v(T)}, 1, {v(vLin)}\n  v_add_u32 {v(T)}, s{sCnt[0]}, {v(T)}")
        tr(P, T, 0)
    else:
        a(f"""
  v_mfma_f32_16x16x32_bf16 {v(Da,4)}, {v(RR,4)}, {v(Wa,4)}, 0
  v_mfma_f32_16x16x32_bf16 {v(Db,4)}, {v(RR,4)}, {v(Wb,4)}, 0
  s_nop 6""")
        cstage_cvt()
    for t in range(NT):
        a(f"""
  v_cmp_eq_u32 vcc, {t}, {v(U+2)}
  s_cbranch_vccz L_x3_{t}
  s_mov_b64 exec, vcc
  ds_write_b16 {v(U+3)}, {v(U+1)}
  s_mov_b64 exec, -1""")
        if DMA: tr(Sf, vSrd, 0)
        else: a(f"  ds_read_b128 {v(Sf,4)}, {v(vSrd)}")
        a(f"""
  s_mov_b64 exec, vcc
  ds_write_b16 {v(U+3)}, {v(vZ)}
  s_mov_b64 exec, -1
  s_waitcnt lgkmcnt(0)""")
        cstage_m2(t)
        a.label(f"L_x3_{t}")
    a("  s_branch L_x3_back")
    a.label("L_it0")
    a(f"  s_cmp_lg_u32 s{sFl}, 0\n  s_cbranch_scc1 L_body0")
    for r in range(NG, NS): st(r)
    a("  s_nop 0")
    for r in range(NG, NS): zero_acc(sdt(r))
    signal_all("z0", 0)
    a("  s_branch L_nosig_z")
    for t in range(4):
        a.label(f"L_first_{t}")
        for u in range(4*t, 4*t+4): rec_load(u, T + 4 + 2 * (u & 1))
        a(f"  s_branch L_first_back_{t}")
    if OPT["fix"]:
        a.label("L_fix")
        for u in range(16):
            a(f"""
  v_sub_co_u32_dpp {v(T+5)}, vcc, {v(vR0)}, {v(vI1)} {bc(u)}
  v_add_u32_dpp {v(T+4)}, {v(vA6)}, {v(vI6)} {bc(u)}
  v_and_b32 {v(T+4)}, {v(vMsk)}, {v(T+4)}
  s_not_b64 exec, vcc
  s_cbranch_execz L_fix_{u}
  buffer_load_dwordx2 {v(REC[u],2)}, {v(T+4)}, {s(sREC,4)}, 0 offen{RPOL}""")
            a.label(f"L_fix_{u}")
            a("  s_mov_b64 exec, -1")
        a("  s_branch L_fix_back")
    a.label("L_allfirst")
    a(f"  s_mov_b32 s{sY}, s{sSo}")
    for r in range(NB + N1, NS): st(r)
    a(f"  s_mov_b32 s{sSo}, s{sY}\n  s_waitcnt vmcnt(0)\n  s_barrier\n{flag3}\n  s_branch L_allfirst_back")
    for g in slowg:
        a.label(f"L_pslow_{g}")
        for u in range(4*g, 4*g+4):
            a(f"""
  s_mov_b64 exec, {s(PMK(u),2)}
  v_cmp_lt_u32 vcc, 63, {v(PRK(u))}
  s_cbranch_vccz L_pskip_{u}
  s_andn2_b64 {s(PMK(u),2)}, {s(PMK(u),2)}, vcc
  s_mov_b64 exec, vcc
  ds_add_rtn_u32 {v(T+1)}, {v(vCtlN)}, {v(vOne)}
  s_waitcnt lgkmcnt(0)
  v_lshlrev_b32 {v(T+1)}, 3, {v(T+1)}
  buffer_store_dwordx2 {v(REC[u],2)}, {v(T+1)}, {s(sCAR,4)}, s{sCarW} offen
  s_waitcnt vmcnt(0)""")
            a.label(f"L_pskip_{u}")
        a(f"  s_mov_b64 exec, -1\n  s_branch L_pback_{g}")
    for tag in ("b0", "lp"):
        a.label(f"L_slow_{tag}")
        a(f"  s_mov_b32 s{sX}, 512")
        a.label(f"L_slow_loop_{tag}")
        a(f"""
  v_add_u32 {v(T+1)}, s{sX}, {v(vCarIdx)}
  v_cmp_gt_u32 vcc, s{sCin}, {v(T+1)}
  v_lshlrev_b32 {v(T+1)}, 3, {v(T+1)}
  s_nop 0
  v_cndmask_b32 {v(T+1)}, {v(vOOB)}, {v(T+1)}, vcc
  buffer_load_dwordx2 {v(REC[16],2)}, {v(T+1)}, {s(sCAR,4)}, s{sCarR} offen sc1
  s_waitcnt vmcnt(0)""")
        ins1(16, "0", 0)
        a("  s_waitcnt lgkmcnt(0)")
        ins2(16, "sl" + tag, 0)
        a(f"""
  s_add_u32 s{sX}, s{sX}, 512
  s_cmp_lt_u32 s{sX}, s{sCin}
  s_cbranch_scc1 L_slow_loop_{tag}
  s_waitcnt vmcnt(0)
  s_branch L_slow_back_{tag}""")
    for lab, u, p in rare:
        a.label(f"L_rare_{lab}")
        a(f"""
  s_mov_b64 exec, vcc
  ds_add_rtn_u32 {v(RK[p])}, {v(vCtlN)}, {v(vOne)}
  v_mov_b32 {v(REC[u]+1)}, {v(WW[p])}
  s_waitcnt lgkmcnt(0)
  v_lshlrev_b32 {v(RK[p])}, 3, {v(RK[p])}
  buffer_store_dwordx2 {v(REC[u],2)}, {v(RK[p])}, {s(sCAR,4)}, s{sCarW} offen
  s_andn2_b64 exec, {s(sMk[p],2)}, vcc
  s_branch L_back_{lab}""")
    a.label("L_code_end")
    return NV

def kd(name, nv, ns):
    nv4 = (nv + 3) // 4 * 4
    return f""".amdhsa_kernel {name}
  .amdhsa_next_free_vgpr {nv}
  .amdhsa_next_free_sgpr {ns}
  .amdhsa_accum_offset {nv4}
  .amdhsa_group_segment_fixed_size 0
  .amdhsa_kernarg_size 112
  .amdhsa_user_sgpr_count 2
  .amdhsa_user_sgpr_kernarg_segment_ptr 1
  .amdhsa_system_sgpr_workgroup_id_x 1
  .amdhsa_float_denorm_mode_32 3
.end_amdhsa_kernel
"""

def main():
    out = sys.argv[1]
    ref = open(f"cdna_kernels/{NAME}.s.ref").read().split("\n")
    head = [l for l in ref if l.startswith(";") and "@launch" not in l and "Override" not in l and "grid=ceil" not in l]
    a = Asm()
    a(".amdgcn_target \"amdgcn-amd-amdhsa--gfx950\"\n.text")
    a(f".globl {NAME}_kernel\n.type {NAME}_kernel,@function")
    nv = gen_p2(a)
    errs = a.check()
    for e in errs: print("HAZARD", e)
    txt = "\n".join(head) + "\n"
    kern = f"kernel={NAME}_kernel " if OPT["list"] else ""
    txt += f"; @launch {kern}grid=(256,1,1) block=(512,1,1) lds={P1_LDS}\n"
    if OPT["probe"] >= 0:
        txt += "; @launch kernel=probe_kernel grid=(1,1,1) block=(64,1,1) lds=0\n"
        a(f"""
.p2align 8
probe_kernel:
  s_cmp_ge_u32 s2, 1
  s_cbranch_scc1 P_end
  s_load_dwordx2 s[4:5], s[0:1], 96
  s_waitcnt lgkmcnt(0)
  s_load_dwordx8 s[8:15], s[4:5], 0
  s_memrealtime s[16:17]
  s_waitcnt lgkmcnt(0)
  s_not_b32 s8, s8
  s_sub_u32 s20, s{8 + OPT['probe']}, s8
  {"s_lshr_b32 s20, s%d, 4" % (8 + OPT['probe']) if OPT['probe'] in (5, 7) else "s_nop 0"}
  s_min_u32 s20, s20, 20000
P_loop:
  s_memrealtime s[18:19]
  s_waitcnt lgkmcnt(0)
  s_sub_u32 s21, s18, s16
  s_cmp_lt_u32 s21, s20
  s_cbranch_scc1 P_loop
P_end:
  s_endpgm""")
    txt += a.text()
    txt += ".section .rodata,\"a\"\n.p2align 6\n" + kd(NAME + "_kernel", 256, 102) + (".p2align 6\n" + kd("probe_kernel", 8, 32) if OPT["probe"] >= 0 else "")
    open(out, "w").write(txt)
    print("vgprs p2:", nv, "lines:", len(a.lines), "hazards:", len(errs))

main()
```

```python
import sys, os
sys.path.insert(0, os.path.dirname(__file__))
from asmlib import Asm

NAME = "gather_scatter__molecular_angular_gemnet__graph"
E = 400000
NCH, CH = 250, 25600
EB = 1568
K = 6
MJ = 2739138
TABOFF = 0x2800000
CAROFF = 0x3000000
CARCAP = 9216
CARLIST = CARCAP * 8
STAMPOFF = 0x6000000
FLGOFF = 0x2c00000
OPT = dict(eb=4, nrep=4, ncn=64, sq=-1, ep=1, bprio=0x1ff, dma=0, fix=1, dum=0, dumm=0, abl_rbf=0, tg=-1, wall=0, cpf=3, wsoff=0, mq=11, rot=0, pf0=0, a0=2, ag=2, early=0, adj=0, probe=-1, tlb=0, cut=-1, opol=1, mpol=0, tq=3, fq=10, keff=6, jid=0, fprio=0x3ffff, lprio=0xfff, napt=8, st0=1, stp=1, rb0=2, nap=8, list=1, nb=7, n1=2, n3=4, nl0=8, smask=0x555, arr=10, spin=60000, rec_pol=2, stamp=0, itcap=64, ld_nt=7, st_pol=0, mtouch=0, la=4, apre=2, wmain=70000, b5=0, lim=24, nb2=7, ins0=4,
           abl_mfma=0, abl_s=0, abl_cos=0, abl_g=0)
for a in sys.argv[2:]:
    k, v = a.split("=")
    assert k in OPT, k
    OPT[k] = int(v, 0)
MK = -(-(1 << 32) // OPT["wmain"])
assert (399999 * MK) >> 32 <= 5

RPOL = ('', ' nt', ' sc1', ' sc0 sc1')[OPT['rec_pol']]

POL = ('', ' nt', ' sc1', ' sc0 sc1')

def v(i, n=1):
    return f"v{i}" if n == 1 else f"v[{i}:{i+n-1}]"
def s(i, n=1):
    return f"s{i}" if n == 1 else f"s[{i}:{i+n-1}]"

def stamp(a, vreg, lane, op="s_memtime"):
    if lane == OPT["cut"]: a("  s_endpgm")
    if not OPT["stamp"]: return
    if OPT["stamp"] == 2:
        mp = {62: (0, 1), 42: (1, 0), 45: (2, 0), 1: (3, 0), 11: (4, 0), 63: (6, 0)}
        if lane == 0:
            a("  s_memtime s[88:89]\n  s_waitcnt lgkmcnt(0)\n  s_mov_b32 s91, s88")
        if lane in (11, 7):
            a(f"  s_memtime s[88:89]\n  s_waitcnt lgkmcnt(0)\n  s_sub_u32 s88, s88, s91\n  v_writelane_b32 v{vreg}, s88, {5 if lane == 11 else 7}")
        if lane not in mp: return
        l, inv = mp[lane]
        a(f"  s_memrealtime s[88:89]\n  s_waitcnt lgkmcnt(0)")
        if inv: a("  s_not_b32 s88, s88")
        a(f"  v_writelane_b32 v{vreg}, s88, {l}")
        return
    a(f"  {op} s[88:89]\n  s_waitcnt lgkmcnt(0)\n  v_writelane_b32 v{vreg}, s88, {lane}")
def stamp_out(a, vreg, wslo, nwaves, base, tmp):
    if not OPT["stamp"]: return
    if OPT["stamp"] == 2:
        back = 512
        a(f"""
  s_load_dwordx2 s[90:91], s[0:1], 96
  s_waitcnt lgkmcnt(0)
  s_add_u32 s92, s90, {back}
  s_addc_u32 s93, s91, 0
  s_mov_b32 s94, 32
  s_mov_b32 s95, 0x20000
  v_lshlrev_b32 v{tmp}, 2, v0
  buffer_atomic_umax v{vreg}, v{tmp}, s[92:95], 0 offen""")
        return
    a(f"  s_mul_i32 s88, s2, {nwaves*256}\n  s_add_u32 s88, s88, {base}")
    srd(a, 92, wslo, wslo+1, "s88", nwaves*256)
    a(f"  v_lshlrev_b32 v{tmp}, 2, v0\n  buffer_store_dword v{vreg}, v{tmp}, s[92:95], 0 offen")

def srd(a, d, lo, hi, add, size):
    if add is None:
        a(f"  s_mov_b32 s{d}, s{lo}\n  s_mov_b32 s{d+1}, s{hi}")
    else:
        a(f"  s_add_u32 s{d}, s{lo}, {add}\n  s_addc_u32 s{d+1}, s{hi}, 0")
    a(f"  s_mov_b32 s{d+2}, {size}\n  s_mov_b32 s{d+3}, 0x20000")

P1_CNT, P1_SENT, P1_TMP, P1_REC = 0, 6144, 6160, 6272
P1_LDS = P1_REC + CH * 6

TS = 264
BUFSZ = 200 * TS
S_OFF = 13 * 8192
DMA = OPT["dma"]
WSTR = 6144 if DMA else 1024
CTL = S_OFF + 8 * WSTR
RB_OFF = CTL + 128
SENT = 0x7ffff0
LAG = 4 if DMA else 5
P2_LDS = RB_OFF + 8 * 3584
D = 5
NT = 25

class RA:
    def __init__(self, start): self.n = start
    def __call__(self, k=1, al=1):
        self.n = (self.n + al - 1) // al * al
        r = self.n; self.n += k
        return r

def gen_p2(a):
    ra = RA(1)
    vSlot, vHalf, vFreq, vSst, vSrd, vI6, vI1, vI4 = (ra() for _ in range(8))
    vRd, vCntA, vOne, vOOB, vCarOff, vCarIdx, v264, vMsk, vCtlN = (ra() for _ in range(9))
    vZ = ra(2, 2)
    Q = ra(6, 4)
    sA, nA, cb, rem, rtot, vA6, vB6, vR0, vRT4 = (ra() for _ in range(9))
    vCnt = ra()
    Wa = ra(4, 4); Wb = ra(4, 4)
    RING = [ra(4, 4) for _ in range(D)]
    Da = ra(4, 4); Db = ra(4, 4); P = ra(4, 4); Sf = ra(4, 4)
    ACC = [ra(4, 4) for _ in range(NT)]
    REC = [ra(2, 4 if i == 0 else 2) for i in range(17)]
    RP = [ra(2, 2), ra(2, 2)]
    T = ra(10, 2)
    TA = [ra(), ra()]; RK = [ra(), ra()]
    WS0 = ra(2, 2); WS1 = ra(2, 2); WR = ra(2, 2); WUP = ra(2, 2)
    CC = [ra() for _ in range(D)]; SA = [ra() for _ in range(D)]
    WW = [ra(), ra()]
    assert ra.n <= 252, ra.n
    NV = ra.n
    sM = 4; sREC = 8; sCAR = 12; sTAB = 16; sOUT = 20; sDIST = 24; sMW = 28
    sJ, sW, sIt, sThr, sIns, sCarW, sCarR, sRb, sCin, sX, sFl, sEb = range(32, 44)
    sCnt = [44, 45]
    sWS = 46
    sPM = 72
    sMk = [72, 74]; sT = 76; sC10 = 78; sCl2 = 80
    sEb2 = 3
    rare = []

    O, I, R, A = 36, 88, 140, 192
    PT = 218
    vFlg, vDum, vTab, vWo, vTwo = range(240, 245)
    vL8, vL4, vSix = WS0 + 1, WS1 + 1, WR + 1
    vL128 = 253
    vL16 = WW[0]
    rDist, rSbf, rUp, rDown, rRbf = A + 4, A + 6, A + 8, A + 10, A + 12
    RBK = [sA, nA, rem, rtot, vA6, vB6, vR0, vRT4, vCnt, 86, 87, 190, 191]
    WDK = [248, 249, WW[1], 217]
    assert Wa == 36 and T == PT
    vSent = vCnt
    sIO, sII, sAN, sMT, sTW, sDBG = 4, 8, 12, 16, 20, 24
    sFLG, sRW = 92, 96
    sMJ, sMK, sNEB, sB5, sO4, sO2 = range(80, 86)
    sY, sSo = 100, 101
    nto, nti, nta = (" nt" if OPT["ld_nt"] >> b & 1 else "" for b in range(3))
    NR = 13
    nrec = lambda q: 4 if q < 12 else 2
    vm = []
    def ld_pair(q):
        if q < 12:
            a(f"  buffer_load_dwordx4 {v(O+4*q,4)}, {v(vL16)}, {s(sIO,4)}, s{sO4} offen{nto}")
            a(f"  buffer_load_dwordx4 {v(I+4*q,4)}, {v(vL16)}, {s(sII,4)}, s{sO4} offen{nti}")
            a(f"  s_add_u32 s{sO4}, s{sO4}, 8192")
        else:
            a(f"  buffer_load_dwordx2 {v(O+48,2)}, {v(vL8)}, {s(sIO,4)}, s{sO4} offen{nto}")
            a(f"  buffer_load_dwordx2 {v(I+48,2)}, {v(vL8)}, {s(sII,4)}, s{sO4} offen{nti}")
        vm.extend([("o", q), ("p", q)])
    def ld_ang(q):
        if q < 12:
            a(f"  buffer_load_dwordx2 {v(A+2*q,2)}, {v(vL8)}, {s(sAN,4)}, s{sO2} offen{nta}")
            a(f"  s_add_u32 s{sO2}, s{sO2}, 4096")
        else: a(f"  buffer_load_dword {v(A+24)}, {v(vL4)}, {s(sAN,4)}, s{sO2} offen{nta}")
        vm.append(("a", q))
    def wait_for(x):
        a(f"  s_waitcnt vmcnt({len(vm) - 1 - vm.index(x)})")
    def poll(tag, load, cond, nap=4):
        a(f"  s_mov_b32 s{sY}, {OPT['spin']}")
        a.label(f"L_poll_{tag}")
        a(load)
        a("  s_waitcnt vmcnt(0)")
        a(cond)
        a(f"""
  s_cbranch_vccz L_polled_{tag}
  s_sleep {nap}
  s_sub_u32 s{sY}, s{sY}, 1
  s_cbranch_scc0 L_poll_{tag}""")
        a.label(f"L_polled_{tag}")

    a(".p2align 8")
    a.label(NAME + "_kernel")
    ncp = [0]
    def cpf(bit, q, first=False):
        if not OPT["cpf"] >> bit & 1: return False
        ncp[0] += 1
        a(f"  s_getpc_b64 s[{q}:{q+1}]")
        a.label(f"L_cp{ncp[0]}")
        a(f"""
  s_sub_u32 s{q}, s{q}, L_cp{ncp[0]}-{NAME}_kernel
  s_subb_u32 s{q+1}, s{q+1}, 0
  s_mov_b32 s{q+2}, L_code_end-{NAME}_kernel
  s_mov_b32 s{q+3}, 0x20000""")
        if first:
            a(f"""
  s_and_b32 s{sY}, s2, 0xf8
  s_lshl_b32 s{sY}, s{sY}, 4
  v_lshl_add_u32 v255, v0, 12, s{sY}""")
        a(f"  buffer_load_dword v254, v255, s[{q}:{q+3}], 0 offen")
        return True
    a(f"""
  s_cmp_ge_u32 s2, 256
  s_cbranch_scc1 L_end
  s_load_dwordx16 s[48:63], s[0:1], 0
  s_load_dwordx4 s[44:47], s[0:1], 96
  s_load_dwordx8 s[64:71], s[0:1], 64""")
    cpf(0, 28, True)
    a(f"""
  v_lshlrev_b32 {v(vL16)}, 4, v0
  s_min_u32 s{sY}, s2, {NCH-1}
  s_mul_i32 s{sX}, s{sY}, {CH*4}
  s_cmp_lt_u32 s2, {NCH}
  s_cselect_b32 s{sFl}, {CH*2}, 0
  s_lshl_b32 s{sIO+2}, s{sFl}, 1
  s_mov_b32 s{sII+2}, s{sIO+2}
  s_mov_b32 s{sIO+3}, 0x20000
  s_mov_b32 s{sII+3}, 0x20000
  s_mov_b32 s{sO4}, 0
  v_mov_b64 {v(PT,2)}, 0
  v_mov_b64 {v(PT+2,2)}, 0
  s_mov_b32 s{sO2}, 0
  ds_write_b128 {v(vL16)}, {v(PT,4)}
  v_lshrrev_b32 {v(T+8)}, 6, v0
  s_and_b32 s{sJ}, s2, 7
  s_lshl_b32 s{sJ}, s{sJ}, 5
  s_lshr_b32 s{sEb}, s2, 3
  s_add_u32 s{sJ}, s{sJ}, s{sEb}
  v_readfirstlane_b32 s{sW}, {v(T+8)}
  v_and_b32 {v(T+7)}, 63, v0
  v_lshlrev_b32 {v(T+6)}, 3, {v(T+7)}
  v_lshlrev_b32 {v(T+7)}, 2, {v(T+7)}
  s_mul_i32 s{sEb}, s{sJ}, {EB*2}
  s_mul_i32 s{sRb}, s{sW}, 400
  s_add_u32 s{sEb}, s{sEb}, s{sRb}
  s_waitcnt lgkmcnt(0)""")
    if OPT["stamp"] == 2: a("  v_mov_b32 v252, 0\n  s_nop 1")
    stamp(a, 252, 0); stamp(a, 252, 62, "s_memrealtime")
    a(f"""
  s_add_u32 s{sIO}, s52, s{sX}
  s_addc_u32 s{sIO+1}, s53, 0
  s_add_u32 s{sII}, s50, s{sX}
  s_addc_u32 s{sII+1}, s51, 0""")
    ld_pair(0)
    if OPT["wsoff"]: a(f"  s_add_u32 s{sWS}, s{sWS}, {OPT['wsoff'] << 20}\n  s_addc_u32 s{sWS+1}, s{sWS+1}, 0")
    srd(a, 28, 54, 55, None, E * 2)
    a(f"""
  buffer_load_dwordx2 {v(rDist,2)}, {v(T+6)}, s[28:31], s{sEb} offen
  global_load_dwordx2 {v(rSbf,2)}, {v(T+6)}, s[64:65]
  global_load_dwordx2 {v(rUp,2)}, {v(T+6)}, s[68:69]
  global_load_dwordx2 {v(rDown,2)}, {v(T+6)}, s[66:67]
  global_load_dword {v(rRbf)}, {v(T+7)}, s[62:63]""")
    vm.extend([("s", i) for i in range(5)])
    ld_pair(1)
    a("  s_barrier")
    LA = OPT["la"]
    for q in range(2, LA): ld_pair(q)
    a(f"  s_lshr_b32 s{sX}, s{sX}, 1")
    srd(a, sAN, 56, 57, f"s{sX}", f"s{sFl}")
    srd(a, sMT, 48, 49, f"s{sX}", f"s{sFl}")
    a(f"  s_mul_i32 s{sX}, s{sY}, {CH*6}\n  s_mul_i32 s{sFl}, s{sFl}, 3")
    srd(a, sRW, sWS, sWS+1, f"s{sX}", f"s{sFl}")
    srd(a, sTW, sWS, sWS+1, TABOFF, 256 * 8192)
    srd(a, sFLG, sWS, sWS+1, FLGOFF, OPT['nrep'] * 1024)
    srd(a, sDBG, 44, 45, None, 256)
    a(f"""
  s_lshl_b32 s{sX}, s2, 2
  v_lshl_add_u32 {v(vFlg)}, v0, 10, s{sX}
  s_cmp_lt_u32 s2, {NCH}
  s_cselect_b32 s{sX}, 0, 4
  v_mov_b32 {v(vDum)}, s{sX}
  buffer_store_dword {v(vDum)}, {v(vFlg)}, {s(sFLG,4)}, 0 offen sc1
  s_lshl_b32 s{sX}, s{sX}, 20
  v_or_b32 {v(vFlg)}, s{sX}, {v(vFlg)}
  s_load_dword s{sCin}, s[60:61], 0
  s_load_dwordx4 s[56:59], s[58:59], 0
  v_lshlrev_b32 {v(vL8)}, 3, v0
  v_lshlrev_b32 {v(vL4)}, 2, v0
  {'v_mov_b32 %s, %d' % (v(vL128), E//8) if OPT['rot'] == 2 else 'v_lshlrev_b32 %s, 7, v0' % v(vL128)}
  v_mov_b32 {v(vSix)}, 6
  v_mov_b32 {v(vTwo)}, 2
  s_mov_b32 s{sMJ}, {MJ}
  s_mov_b32 s{sMK}, {MK}
  s_mov_b32 s{sNEB}, {-EB & 0xffffffff}
  s_mov_b32 s{sB5}, {(-(E//8) & 0xffffffff) if OPT['rot'] else OPT['b5']}
  v_lshrrev_b32 {v(T)}, 6, v0
  v_and_b32 {v(T+2)}, 15, v0
  v_bfe_u32 {v(T+3)}, v0, 5, 1
  v_lshlrev_b32 {v(vHalf)}, 4, {v(T+3)}
  v_lshl_add_u32 {v(cb)}, {v(T)}, 5, {v(vHalf)}
  v_add_u32 {v(cb)}, {v(cb)}, {v(T+2)}
  v_lshlrev_b32 {v(vTab)}, 13, {v(cb)}
  v_and_b32 {v(T+1)}, 63, v0
  v_and_b32 {v(vSlot)}, 31, v0
  v_mov_b64 {v(vZ,2)}, 0
  v_mov_b32 {v(v264)}, {TS}
  v_mov_b32 {v(vCtlN)}, {CTL}
  s_lshl_b32 s{sX}, s{sW}, 10
  s_add_u32 s{sX}, s{sX}, {S_OFF}
  v_lshl_add_u32 {v(vSrd)}, {v(T+1)}, 4, s{sX}
  v_bfe_u32 {v(T+6)}, v0, 2, 2
  v_lshlrev_b32 {v(vSst)}, 8, {v(T+6)}
  v_lshl_add_u32 {v(vSst)}, {v(T+3)}, 7, {v(vSst)}
  v_bfe_u32 {v(T+6)}, v0, 4, 1
  v_lshl_add_u32 {v(vSst)}, {v(T+6)}, 3, {v(vSst)}
  v_and_b32 {v(T+6)}, 3, v0
  v_lshl_add_u32 {v(vSst)}, {v(T+6)}, 1, {v(vSst)}
  v_add_u32 {v(vSst)}, s{sX}, {v(vSst)}
  v_mov_b32 {v(vOne)}, 1
  v_mov_b32 {v(vOOB)}, 0x80000000
  v_mov_b32 {v(vMsk)}, 0x7ffffffc
  v_mul_u32_u24 {v(vI6)}, 6, {v(vSlot)}
  v_add_u32 {v(vI1)}, 1, {v(vSlot)}
  v_lshlrev_b32 {v(vI4)}, 2, {v(vI1)}
  v_mov_b32 {v(T+6)}, {CH}
  v_mul_u32_u24 {v(cb)}, {v(cb)}, {v(T+6)}
  s_mul_i32 s{sX}, s{sW}, {NT*TS}
  s_add_u32 s{sX}, s{sX}, {BUFSZ}
  v_lshl_add_u32 {v(vRd)}, {v(vSlot)}, 3, s{sX}""")
    sRing = 84
    a(f"  v_lshrrev_b32 {v(vHalf)}, 1, {v(vHalf)}")
    if DMA:
        a(f"""
  v_bfe_u32 {v(vSlot)}, v0, 1, 5
  v_lshl_add_u32 {v(vRd)}, {v(vSlot)}, 3, s{sX}
  v_and_b32 {v(T+3)}, 1, v0
  v_lshlrev_b32 {v(vHalf)}, 3, {v(T+3)}
  s_mul_i32 s{sY}, s{sW}, {WSTR}
  s_add_u32 s{sY}, s{sY}, {S_OFF}
  v_lshl_add_u32 {v(vSst)}, {v(T+1)}, 4, s{sY}
  v_lshl_add_u32 {v(vSrd)}, {v(T+1)}, 3, s{sY}""")
    a(f"""
  v_min_u32 {v(T+6)}, {NT-1}, {v(T+1)}
  v_mad_u32_u24 {v(vCntA)}, {v(T+6)}, {v(v264)}, s{sX}
  v_sub_u32 {v(vCarIdx)}, 511, v0
  v_lshlrev_b32 {v(vCarOff)}, 3, {v(vCarIdx)}
  v_cmp_eq_u32 vcc, 1, {v(T+3)}
  s_waitcnt lgkmcnt(0)
  s_lshl_b32 s{sX}, s{sCin}, 16
  s_and_b32 s{sCin}, s{sCin}, 0xffff0000
  v_mov_b32 {v(vFreq)}, s{sX}
  v_mov_b32 {v(T+6)}, s{sCin}
  v_cndmask_b32 {v(vFreq)}, {v(vFreq)}, {v(T+6)}, vcc
  v_mul_f32 {v(vFreq)}, 0.15915494, {v(vFreq)}
  s_mov_b32 s{sIt}, -1
  s_mov_b32 s{sIns}, 0
  s_mov_b32 s{sCarW}, 0
  s_mov_b32 s{sCarR}, {CARLIST}
  s_mul_i32 s{sEb}, s{sJ}, {EB}
  s_mul_i32 s{sX}, s{sW}, 200
  s_add_u32 s{sFl}, s{sEb}, {EB}
  s_add_u32 s{sEb}, s{sEb}, s{sX}
  s_add_u32 s{sRb}, s{sEb}, 200
  s_min_u32 s{sRb}, s{sRb}, s{sFl}
  s_min_u32 s{sRb}, s{sRb}, {E}
  s_lshl_b32 s{sRb}, s{sRb}, 5
  s_lshl_b32 s{sEb}, s{sEb}, 5
  s_add_u32 s{sEb2}, s{sEb}, 4096""")

    if OPT["tlb"]:
        sh = OPT["tlb"]
        srd(a, 28, sWS, sWS+1, None, FLGOFF + 8192)
        a(f"  v_lshlrev_b32 v249, {sh}, v0\n  buffer_load_dword v248, v249, s[28:31], 0 offen")
        srd(a, 28, 48, 49, None, E * 32)
        a(f"  buffer_load_dword v248, v249, s[28:31], 0 offen")
        srd(a, 28, 70, 71, None, E * 32)
        a(f"  buffer_load_dword v248, v249, s[28:31], 0 offen")
        vm.extend([("tlb", i) for i in range(3)])
    a(f"""
  s_cmp_ge_u32 s2, {NCH}
  s_cbranch_scc1 L_nochunk1""")
    vm.append(("flg", 0))
    arrive = f"""
  s_and_b32 s{sY}, s2, 15
  s_lshl_b32 s{sY}, s{sY}, 4
  v_lshlrev_b32 {v(PT)}, 8, v0
  buffer_atomic_add {v(vOne)}, {v(PT)}, {s(sDBG,4)}, s{sY} offen"""
    def hist(idx):
        if OPT["b5"]:
            for x, i in enumerate(idx): a(f"  v_cmp_le_u32 {s(72+2*x,2)}, s{sB5}, {v(I+i)}")
        for x, i in enumerate(idx): a(f"  v_mul_hi_u32_u24 {v(PT+x)}, s{sMJ}, {v(O+i)}")
        if OPT["rot"] == 2:
            for x, i in enumerate(idx): a(f"  v_lshrrev_b32 {v(PT+4+x)}, 5, {v(PT+x)}")
            for x, i in enumerate(idx): a(f"  v_mad_i32_i24 {v(PT+4+x)}, {v(PT+4+x)}, s{sB5}, {v(I+i)}")
            for x, i in enumerate(idx): a(f"  v_cmp_gt_u32 {s(72+2*x,2)}, {v(vL128)}, {v(PT+4+x)}")
            for x, i in enumerate(idx): a(f"  v_ashrrev_i32 {v(PT+4+x)}, 31, {v(PT+4+x)}")
            for x, i in enumerate(idx): a(f"  v_and_b32 {v(PT+4+x)}, {v(vL128)}, {v(PT+4+x)}")
            for x, i in enumerate(idx): a(f"  v_add3_u32 {v(PT+4+x)}, {v(PT+4+x)}, s{sB5}, {v(I+i)}")
            for x, i in enumerate(idx): a(f"  v_mul_hi_u32_u24 {v(PT+4+x)}, s{sMK}, {v(PT+4+x)}")
            for x, i in enumerate(idx): a(f"  v_cndmask_b32 {v(PT+4+x)}, {v(PT+4+x)}, 5, {s(72+2*x,2)}")
        elif OPT["rot"]:
            for x, i in enumerate(idx): a(f"  v_lshrrev_b32 {v(PT+4+x)}, 5, {v(PT+x)}")
            for x, i in enumerate(idx): a(f"  v_mad_i32_i24 {v(PT+4+x)}, {v(PT+4+x)}, s{sB5}, {v(I+i)}")
            for x, i in enumerate(idx): a(f"  v_add_u32 {v(PT+8+x)}, {E - E//8}, {v(PT+4+x)}")
            for x, i in enumerate(idx): a(f"  v_add_u32 {v(PT+4+x)}, s{sB5}, {v(PT+4+x)}")
            for x, i in enumerate(idx): a(f"  v_min_u32 {v(PT+4+x)}, {v(PT+4+x)}, {v(PT+8+x)}")
            for x, i in enumerate(idx): a(f"  v_mul_hi_u32_u24 {v(PT+4+x)}, s{sMK}, {v(PT+4+x)}")
        else:
            for x, i in enumerate(idx): a(f"  v_mul_hi_u32_u24 {v(PT+4+x)}, s{sMK}, {v(I+i)}")
        if OPT["b5"]:
            for x, i in enumerate(idx): a(f"  v_cndmask_b32 {v(PT+4+x)}, {v(PT+4+x)}, 5, {s(72+2*x,2)}")
        for x, i in enumerate(idx): a(f"  v_mad_i32_i24 {v(PT+8+x)}, {v(PT+x)}, s{sNEB}, {v(O+i)}")
        for x, i in enumerate(idx): a(f"  v_lshl_add_u32 {v(O+i)}, {v(PT+4+x)}, 8, {v(PT+x)}")
        for x, i in enumerate(idx): a(f"  v_lshlrev_b32 {v(O+i)}, 2, {v(O+i)}")
        for x, i in enumerate(idx): a(f"  ds_add_rtn_u32 {v(R+i)}, {v(O+i)}, {v(vOne)}")
        for x, i in enumerate(idx): a(f"  v_and_b32 {v(PT+x)}, 7, {v(PT+8+x)}")
        for x, i in enumerate(idx): a(f"  v_lshl_or_b32 {v(I+i)}, {v(I+i)}, 3, {v(PT+x)}")
        for x, i in enumerate(idx): a(f"  v_lshrrev_b32 {v(PT+8+x)}, 3, {v(PT+8+x)}")
        for x, i in enumerate(idx): a(f"  v_lshl_or_b32 {v(I+i)}, {v(I+i)}, 1, {v(vOOB)}")
        for x, i in enumerate(idx): a(f"  v_lshl_or_b32 {v(I+i)}, {v(PT+8+x)}, 23, {v(I+i)}")
    def prep(piece):
        Z = R + 24
        aW, aD, aS, aR, aN, gq = Z, Z + 1, Z + 2, Z + 3, Z + 4, Z + 5
        CEN = Z + 6; H = Z + 8; Y = Z + 16
        if piece == 0:
            a(f"""
  s_lshl_b32 s{sX}, s{sW}, 12
  s_add_u32 s{sX}, s{sX}, 8192
  v_and_b32 {v(gq)}, 63, v0
  v_lshl_add_u32 {v(aW)}, {v(gq)}, 3, s{sX}
  v_lshl_add_u32 {v(gq)}, {v(gq)}, 2, s{sX}
  ds_write_b64 {v(aW)}, {v(rDist,2)}
  ds_write_b64 {v(aW)}, {v(rSbf,2)} offset:512
  ds_write_b64 {v(aW)}, {v(rUp,2)} offset:1024
  ds_write_b32 {v(gq)}, {v(rRbf)} offset:1536
  ds_write_b64 {v(aW)}, {v(rDown,2)} offset:2048
  v_and_b32 {v(aD)}, 15, v0
  v_bfe_u32 {v(gq)}, v0, 4, 2
  v_lshl_add_u32 {v(aD)}, {v(aD)}, 1, s{sX}
  v_lshl_add_u32 {v(aS)}, {v(gq)}, 7, {v(aD)}
  v_lshl_add_u32 {v(aR)}, {v(gq)}, 6, {v(aD)}
  v_bfe_u32 {v(aN)}, v0, 5, 1
  v_lshl_add_u32 {v(aN)}, {v(aN)}, 8, {v(aD)}
  ds_read_u16 {v(WS0)}, {v(aS)} offset:512
  ds_read_u16 {v(WS1)}, {v(aS)} offset:{512+32}
  ds_read_u16 {v(Y)}, {v(aS)} offset:{512+64}
  ds_read_u16 {v(Y+1)}, {v(aS)} offset:{512+96}
  ds_read_u16 {v(WUP)}, {v(aS)} offset:1024
  ds_read_u16 {v(Y+2)}, {v(aS)} offset:{1024+32}
  ds_read_u16 {v(WUP+1)}, {v(aS)} offset:{1024+64}
  ds_read_u16 {v(Y+3)}, {v(aS)} offset:{1024+96}
  ds_read_u16 {v(WR)}, {v(aR)} offset:1536
  ds_read_u16 {v(Y+4)}, {v(aR)} offset:{1536+32}""")
            for r in range(4 if DMA else 8): a(f"  ds_read_u16 {v(WDK[r//2] if r % 2 == 0 else H + r//2)}, {v(aS if DMA else aN)} offset:{2048 + r*32}")
            for p in range(13): a(f"  ds_read_u16 {v(RBK[p])}, {v(aD)} offset:{p*32}")
            return
        if piece == 1:
            a(f"""
  v_mov_b32 {v(CEN+1)}, s56
  v_cmp_eq_u32 vcc, 1, {v(gq)}
  v_mov_b32 {v(CEN)}, s57
  v_cmp_eq_u32 {s(sT,2)}, 2, {v(gq)}
  v_cndmask_b32 {v(CEN+1)}, {v(CEN+1)}, {v(CEN)}, vcc
  v_mov_b32 {v(CEN)}, s58
  v_cmp_eq_u32 vcc, 3, {v(gq)}
  v_cndmask_b32 {v(CEN+1)}, {v(CEN+1)}, {v(CEN)}, {s(sT,2)}
  v_mov_b32 {v(CEN)}, s59
  v_cndmask_b32 {v(CEN+1)}, {v(CEN+1)}, {v(CEN)}, vcc
  v_lshlrev_b32 {v(CEN)}, 16, {v(CEN+1)}
  v_and_b32 {v(CEN+1)}, 0xffff0000, {v(CEN+1)}
  s_mov_b32 s56, 0xc1200000
  s_mov_b32 s57, 0xc1200000
  s_mov_b32 s58, 0x3fb8aa3b
  s_mov_b32 s59, 0x3fb8aa3b
  s_waitcnt lgkmcnt(0)
  v_lshl_or_b32 {v(WS0)}, {v(Y)}, 16, {v(WS0)}
  v_lshl_or_b32 {v(WS1)}, {v(Y+1)}, 16, {v(WS1)}
  v_lshl_or_b32 {v(WUP)}, {v(Y+2)}, 16, {v(WUP)}
  v_lshl_or_b32 {v(WUP+1)}, {v(Y+3)}, 16, {v(WUP+1)}
  v_lshl_or_b32 {v(WR)}, {v(Y+4)}, 16, {v(WR)}""")
            for r in range(2 if DMA else 4): a(f"  v_lshl_or_b32 {v(WDK[r])}, {v(H+r)}, 16, {v(WDK[r])}")
        ps = ([0,1,2], [3,4,5,6,7], [8,9,10,11,12])[piece - 1]
        tt = {p: H + 2 * (p - ps[0]) for p in ps}
        def rnd():
            for p in ps: a(f"  v_cvt_pk_bf16_f32 {v(tt[p])}, 0, {v(tt[p])}\n  v_cvt_pk_bf16_f32 {v(tt[p]+1)}, 0, {v(tt[p]+1)}")
        for p in ps: a(f"  v_lshlrev_b32 {v(tt[p])}, 16, {v(RBK[p])}")
        for p in ps: a(f"  v_pk_add_f32 {v(tt[p],2)}, {v(tt[p],2)}, {v(CEN,2)} op_sel_hi:[0,1] neg_lo:[0,1] neg_hi:[0,1]")
        rnd()
        for p in ps: a(f"  v_pk_mul_f32 {v(tt[p],2)}, {v(tt[p],2)}, {v(tt[p],2)}")
        rnd()
        for p in ps: a(f"  v_pk_mul_f32 {v(tt[p],2)}, {v(tt[p],2)}, s[56:57]")
        rnd()
        for p in ps: a(f"  v_pk_mul_f32 {v(tt[p],2)}, {v(tt[p],2)}, s[58:59]")
        for p in ps: a(f"  v_exp_f32 {v(tt[p])}, {v(tt[p])}\n  v_exp_f32 {v(tt[p]+1)}, {v(tt[p]+1)}")
        for p in ps: a(f"  v_cvt_pk_bf16_f32 {v(RBK[p])}, {v(tt[p])}, {v(tt[p]+1)}")
    na = 0
    for q in range(NR):
        wait_for(("p", q))
        if q == 0: stamp(a, 252, 40)
        if q == LA:
            a(arrive); vm.append(("arr", 0))
        if OPT["mtouch"] == 3 and q == OPT["mq"]:
            a(f"  buffer_load_dword v244, {v(vL128)}, {s(sMT,4)}, 0 offen"); vm.append(("m", 0))
        if q + LA < NR: ld_pair(q + LA)
        else:
            for _ in range(2):
                if na < OPT["apre"]: ld_ang(na); na += 1
        hist(list(range(4*q, 4*q + nrec(q))))
        if 1 <= q <= 4: prep(q - 1)
    stamp(a, 252, 41)
    X = v(PT+4)
    PR = A + 4
    assert OPT["apre"] <= 2
    a(f"""
  v_and_b32 {v(PT+8)}, 0x3f0, {v(vL16)}
  v_lshrrev_b32 {v(PT+12)}, 1, v0
  v_and_b32 {v(PT+13)}, 1, v0
  v_lshlrev_b32 {v(PT+12)}, 2, {v(PT+12)}
  v_lshl_add_u32 {v(PT+13)}, {v(PT+13)}, 12, {v(PT+12)}
  s_waitcnt lgkmcnt(0)
  s_barrier
  s_cmp_ge_u32 s{sW}, {K}
  s_cbranch_scc1 L_bin_s2
  ds_read_b128 {v(PT,4)}, {v(vL16)}""")
    for r in range(K - 1): a(f"  ds_read_b128 {v(PR+4*r,4)}, {v(PT+8)} offset:{r*1024}")
    for r in range(K - 1): a(f"  s_cmp_gt_u32 s{sW}, {r}\n  s_cselect_b32 s{72+r}, 1, 0")
    a(f"""
  s_waitcnt lgkmcnt({K-1})
  v_add_u32 {v(PT+5)}, {v(PT)}, {v(PT+1)}
  v_add_u32 {v(PT+6)}, {v(PT+5)}, {v(PT+2)}
  v_add_u32 {v(PT+7)}, {v(PT+6)}, {v(PT+3)}""")
    for r in range(K - 1):
        a(f"""
  s_waitcnt lgkmcnt({K-2-r})
  v_add3_u32 {v(PR+4*r)}, {v(PR+4*r)}, {v(PR+4*r+1)}, {v(PR+4*r+2)}
  v_add_u32 {v(PR+4*r)}, {v(PR+4*r)}, {v(PR+4*r+3)}""")
        if r == 0: a(f"  v_mul_u32_u24 {v(PT+9)}, s72, {v(PR)}")
        else: a(f"  v_mad_u32_u24 {v(PT+9)}, {v(PR+4*r)}, s{72+r}, {v(PT+9)}")
    a(f"  v_lshl_or_b32 {X}, {v(PT+9)}, 16, {v(PT+7)}")
    for sh in (1, 2, 4, 8):
        a(f"  s_nop 1\n  v_add_u32_dpp {X}, {X}, {X} row_shr:{sh} row_mask:0xf bank_mask:0xf bound_ctrl:0")
    a(f"  s_nop 1\n  v_add_u32_dpp {X}, {X}, {X} row_bcast:15 row_mask:0xa bank_mask:0xf")
    a(f"  s_nop 1\n  v_add_u32_dpp {X}, {X}, {X} row_bcast:31 row_mask:0xc bank_mask:0xf")
    a(f"""
  s_nop 0
  v_readlane_b32 s{sY}, {X}, 63
  v_sub_u32 {X}, {X}, {v(PT+7)}
  s_lshr_b32 s{sY}, s{sY}, 16
  v_add_u32 {X}, s{sY}, {X}
  v_add_u32 {v(PT+7)}, {X}, {v(PT+6)}
  v_add_u32 {v(PT+6)}, {X}, {v(PT+5)}
  v_add_u32 {v(PT+5)}, {X}, {v(PT)}
  v_lshl_or_b32 {v(PT)}, {X}, 16, {v(PT)}
  v_lshl_or_b32 {v(PT+1)}, {v(PT+5)}, 16, {v(PT+1)}
  v_lshl_or_b32 {v(PT+2)}, {v(PT+6)}, 16, {v(PT+2)}
  v_lshl_or_b32 {v(PT+3)}, {v(PT+7)}, 16, {v(PT+3)}
  ds_write_b128 {v(vL16)}, {v(PT,4)}
  s_waitcnt lgkmcnt(0)""")
    a.label("L_bin_s2")
    a(f"  s_lshl_b32 s{sY}, s2, 13\n  s_barrier")
    stamp(a, 252, 42)
    TB = PT + 8
    for k in range(4): a(f"  ds_read_b32 {v(TB+k)}, {v(PT+13)} offset:{k*1024}")
    NB = OPT["nb"]
    vDa, vDv, vRa = 245, 246, 247
    lda = f"  buffer_load_dword {v(vDv)}, {v(vDa)}, {s(sDBG,4)}, 0 offen sc1"
    cda = f"  v_cmp_gt_u32 vcc, 16, {v(vDv)}"
    ada = f"""
  s_lshl_b32 s{sX}, s{sW}, 16
  v_and_b32 {v(vDa)}, 15, v0
  v_lshl_add_u32 {v(vDa)}, {v(vDa)}, 4, s{sX}"""
    NRD = 15
    for i in range(10): a(f"  ds_read_u16 {v(O+i)}, {v(O+i)} offset:2")
    a("  s_waitcnt lgkmcnt(10)")
    for k in range(4): a(f"  v_alignbit_b32 {v(TB+k)}, {v(TB+k)}, {v(TB+k)}, 16")
    a(f"  buffer_store_dwordx4 {v(TB,4)}, {v(vL16)}, {s(sTW,4)}, s{sY} offen sc1")
    vm.append(("tab", 0))
    for i in range(10, NRD): a(f"  ds_read_u16 {v(O+i)}, {v(O+i)} offset:2")
    for _ in range(OPT["a0"]):
        if na < NR: ld_ang(na); na += 1
    a(f"  s_mov_b32 s{sB5}, {NB*8192 + 4}\n  s_mov_b32 s{sSo}, 0")
    a(ada)
    a(f"  v_add_u32 {v(vRa)}, {P1_REC}, {v(vL16)}")
    for g in range(10):
        idx = list(range(5*g, 5*g+5))
        if g == OPT["tg"]:
            wait_for(("tab", 0))
            a("  s_barrier")
            a(lda); vm.append(("lda", 0))
            a(f"  buffer_store_dword {v(vOne)}, {v(vFlg)}, {s(sFLG,4)}, 0 offen sc1"); vm.append(("flg", 1))
        for _ in range(OPT["ag"]):
            if na < NR: ld_ang(na); na += 1
        a(f"  s_waitcnt lgkmcnt({10 if OPT['wall'] else min(10, 45 - 5*g)})")
        for i in idx:
            if i + NRD < 50: a(f"  ds_read_u16 {v(O+i+NRD)}, {v(O+i+NRD)} offset:2")
        for i in idx: a(f"  v_add_u32 {v(O+i)}, {v(O+i)}, {v(R+i)}")
        for i in idx: a(f"  v_mad_u32_u24 {v(O+i)}, {v(O+i)}, {v(vSix)}, {v(vTwo)}")
        for x, i in enumerate(idx): a(f"  v_and_b32 {v(PT+x)}, 2, {v(O+i)}")
        for i in idx: a(f"  v_and_b32 {v(R+i)}, -4, {v(O+i)}")
        if OPT["wall"]:
            for i in idx: a(f"  ds_write_b32 {v(R+i)}, {v(I+i)} offset:{P1_REC}")
        for x, i in enumerate(idx): a(f"  v_lshl_add_u32 {v(O+i)}, {v(PT+x)}, 1, {v(O+i)}")
    assert na == NR
    if OPT["mtouch"] == 1:
        a(f"  buffer_load_dword v244, {v(vL128)}, {s(sMT,4)}, 0 offen"); vm.append(("m", 0))
    def put(q, cmp):
        idx = list(range(4*q, 4*q + nrec(q)))
        for x, i in enumerate(idx): a(f"  v_cmp_{cmp}_u32 {s(72+2*x,2)}, s{sB5}, {v(R+i)}")
        for x, i in enumerate(idx):
            op = "ds_write_b16_d16_hi" if (i & 1) else "ds_write_b16"
            a(f"""
  s_mov_b64 exec, {s(72+2*x,2)}
  {"" if OPT["wall"] else "ds_write_b32 %s, %s offset:%d" % (v(R+i), v(I+i), P1_REC)}
  {op} {v(O+i)}, {v(A + i//2)} offset:{P1_REC-2}""")
        a("  s_mov_b64 exec, -1")
    for q in range(NR):
        wait_for(("a", q))
        for r in range(nrec(q) // 2): a(f"  v_and_b32 {v(A+2*q+r)}, 0x7fff7fff, {v(A+2*q+r)}")
        if q == OPT["tq"] and OPT["tg"] < 0:
            assert q >= OPT["apre"]
            a("  s_barrier")
            a(lda); vm.append(("lda", 0))
            a(f"  buffer_store_dword {v(vOne)}, {v(vFlg)}, {s(sFLG,4)}, 0 offen sc1"); vm.append(("flg", 1))
            if OPT["mtouch"] == 2:
                a(f"  buffer_load_dword v244, {v(vL128)}, {s(sMT,4)}, 0 offen"); vm.append(("m", 0))
        put(q, "gt")
    a(f"  ds_read_u16 {v(vWo)}, {v(vZ)} offset:2050")
    a("  s_waitcnt lgkmcnt(0)\n  s_barrier")
    stamp(a, 252, 43)
    a(f"  v_readfirstlane_b32 s{sO2}, {v(vWo)}")
    free = [PT, PT + 4, PT + 8, O, I, R, O + 4, I + 4, R + 4]
    def erd(r): a(f"  ds_read_b128 {v(free[r],4)}, {v(vRa)} offset:{r*8192}")
    def est(r):
        a(f"  buffer_store_dwordx4 {v(free[r],4)}, {v(vL16)}, {s(sRW,4)}, s{sSo} offen sc1\n  s_add_u32 s{sSo}, s{sSo}, 8192")
        vm.append(("st", r))
    assert NB <= 8
    fad = f"""
  v_and_b32 {v(RK[0])}, 63, v0
  v_lshlrev_b32 {v(RK[0])}, 4, {v(RK[0])}
  s_and_b32 s{sCin}, s2, {OPT['nrep']-1}
  s_lshl_b32 s{sCin}, s{sCin}, 10"""
    if OPT["wall"]:
        free = [I + 4 * r for r in range(8)]
        for r in range(NB): erd(r)
        a(fad)
        a(f"  s_mov_b32 s{sO4}, 0\n  s_cmp_lg_u32 s{sW}, 0\n  s_cbranch_scc1 L_nofl")
        wait_for(("lda", 0))
        a(cda)
        a(f"  s_cbranch_vccnz L_nofl\n  s_mov_b32 s{sO4}, 1")
        a(f"  buffer_load_dwordx4 {v(PT,4)}, {v(RK[0])}, {s(sFLG,4)}, s{sCin} offen sc1")
        a.label("L_nofl")
        for r in range(3):
            a(f"  s_waitcnt lgkmcnt({NB - 1 - r})")
            est(r)
        a("  s_waitcnt lgkmcnt(0)")
        put(0, "le"); put(1, "le"); put(2, "le")
    else:
        for r in range(3): erd(r)
        for r in range(3):
            a(f"  s_waitcnt lgkmcnt({2 - r})")
            est(r)
        put(0, "le"); put(1, "le")
        for r in range(3, NB): erd(r)
        put(2, "le")
        a("  s_waitcnt lgkmcnt(0)")
    todo = list(range(3, NB))
    fad = f"""
  v_and_b32 {v(RK[0])}, 63, v0
  v_lshlrev_b32 {v(RK[0])}, 4, {v(RK[0])}
  s_and_b32 s{sCin}, s2, {OPT['nrep']-1}
  s_lshl_b32 s{sCin}, s{sCin}, 10"""
    for q in range(3, NR):
        for _ in range(OPT["ep"]):
            if todo: est(todo.pop(0))
        if q == OPT["sq"]:
            assert not todo
            a(f"""
  v_mov_b32 {v(vDum)}, 3
  s_waitcnt vmcnt(0)
  s_barrier
  s_cmp_gt_u32 s{sO2}, {NB*8192 // 6 - 2}
  s_cbranch_scc1 L_noearly
  buffer_store_dword {v(vDum)}, {v(vFlg)}, {s(sFLG,4)}, 0 offen sc1""")
            a.label("L_noearly")
        if q == OPT["fq"] and not OPT["wall"]:
            assert q >= 3
            a(fad)
            a(f"  s_mov_b32 s{sO4}, 0\n  s_cmp_lg_u32 s{sW}, 0\n  s_cbranch_scc1 L_nofl")
            wait_for(("lda", 0))
            a(cda)
            a(f"  s_cbranch_vccnz L_nofl\n  s_mov_b32 s{sO4}, 1")
            a(f"  buffer_load_dwordx4 {v(R+8,4)}, {v(RK[0])}, {s(sFLG,4)}, s{sCin} offen sc1")
            a.label("L_nofl")
        put(q, "le")
    assert not todo
    stamp(a, 252, 44)
    FP = Db
    def flag_load(dst, off): return f"  buffer_load_dwordx4 {v(dst,4)}, {v(off)}, {s(sFLG,4)}, s{sCin if dst == FP else sX} offen sc1"
    def flag_cond(dst, stage): return f"""
  v_min3_u32 {v(dst)}, {v(dst)}, {v(dst+1)}, {v(dst+2)}
  v_min_u32 {v(dst)}, {v(dst)}, {v(dst+3)}
  v_cmp_gt_u32 vcc, {stage}, {v(dst)}"""
    if OPT["wall"]: a(f"  s_cmp_lg_u32 s{sW}, 0\n  s_cbranch_scc1 L_polled_t\n  s_waitcnt vmcnt({NB})")
    else:
        if OPT["sq"] < 0: a("  s_waitcnt vmcnt(0)")
        else: assert OPT["fq"] < OPT["sq"]
        stamp(a, 252, 48)
        a(f"  s_cmp_lg_u32 s{sW}, 0\n  s_cbranch_scc1 L_polled_t")
    a(f"  s_cmp_eq_u32 s{sO4}, 0\n  s_cbranch_scc1 L_wait_a")
    a(flag_cond(PT if OPT["wall"] else R+8, 1))
    a("  s_cbranch_vccz L_polled_t\n  s_branch L_polled_a")
    a.label("L_nochunk1")
    if 40 <= OPT["cut"] <= 44: a("  s_endpgm")
    a("  s_waitcnt vmcnt(0)")
    a(arrive)
    for piece in range(4): prep(piece)
    a(ada)
    a(fad)
    a(f"  s_mov_b32 s{sO2}, 0\n  s_cmp_lg_u32 s{sW}, 0\n  s_cbranch_scc1 L_polled_t")
    if OPT["ncn"]:
        poll("a0", lda, cda, 64)
        poll("t0", flag_load(FP, RK[0]), flag_cond(FP, 1), OPT["ncn"])
        a(f"  s_sleep {OPT['ncn']}\n  s_branch L_polled_t")
    a.label("L_wait_a")
    poll("a", lda, cda, 64)
    poll("t", flag_load(FP, RK[0]), flag_cond(FP, 1), OPT["napt"])
    stamp(a, 252, 49)
    a(f"""
  s_lshl_b32 s{sX}, s{sJ}, 5
  s_add_u32 s{sX}, s{sX}, {TABOFF}""")
    srd(a, sTAB, sWS, sWS+1, f"s{sX}", (NCH - 1) * 8192 + 32)

    def state_update():
        a(f"""
  v_sub_u32 {v(rem)}, {v(rem)}, {v(rtot)}
  v_lshrrev_b32 {v(T)}, 16, {v(Q)}
  v_and_b32 {v(T+1)}, 0xffff, {v(Q)}
  v_min_u32 {v(vR0)}, 32, {v(nA)}
  v_cmp_ge_u32 vcc, 32, {v(nA)}
  v_sub_u32 {v(T+2)}, 32, {v(vR0)}
  v_add_u32 {v(vB6)}, {v(cb)}, {v(T+1)}
  v_min_u32 {v(T+2)}, {v(T)}, {v(T+2)}
  v_mul_u32_u24 {v(vB6)}, 6, {v(vB6)}
  v_add_u32 {v(rtot)}, {v(vR0)}, {v(T+2)}
  v_mad_i32_i24 {v(vB6)}, {v(vR0)}, -6, {v(vB6)}
  v_lshlrev_b32 {v(vRT4)}, 2, {v(rtot)}
  v_add_u32 {v(vA6)}, {v(cb)}, {v(sA)}
  v_mul_u32_u24 {v(vA6)}, 6, {v(vA6)}""")
    def state_update2():
        a(f"""
  v_add_u32 {v(sA)}, 32, {v(sA)}
  v_subrev_u32 {v(nA)}, 32, {v(nA)}
  v_add_u32 {v(T+1)}, {v(T+1)}, {v(T+2)}
  v_sub_u32 {v(T)}, {v(T)}, {v(T+2)}
  v_cndmask_b32 {v(sA)}, {v(sA)}, {v(T+1)}, vcc
  v_cndmask_b32 {v(nA)}, {v(nA)}, {v(T)}, vcc""")
        for i in range(K - 1):
            a(f"  v_cndmask_b32 {v(Q+i)}, {v(Q+i)}, {v(Q+i+1)}, vcc")
        a(f"  v_cndmask_b32 {v(Q+K-1)}, {v(Q+K-1)}, {v(vZ)}, vcc")
    def set_flag(tag):
        a(f"""
  v_cmp_lt_u32 vcc, 0, {v(rem)}
  s_cbranch_vccz L_noflag_{tag}
  ds_write_b32 {v(vCtlN)}, {v(vOne)} offset:4""")
        a.label(f"L_noflag_{tag}")

    bc = lambda u: f"row_newbcast:{u} row_mask:0xf bank_mask:0xf"
    def rec_load(u, t0):
        a(f"""
  v_sub_co_u32_dpp {v(t0)}, vcc, {v(vR0)}, {v(vI1)} {bc(u)}
  v_add_u32_dpp {v(t0)}, {v(vA6)}, {v(vI6)} {bc(u)}
  v_add_u32_dpp {v(t0+1)}, {v(vB6)}, {v(vI6)} {bc(u)}
  v_cndmask_b32 {v(t0)}, {v(t0)}, {v(t0+1)}, vcc
  v_sub_u32_dpp {v(t0+1)}, {v(vRT4)}, {v(vI4)} {bc(u)}
  v_bfi_b32 {v(t0)}, {v(vMsk)}, {v(t0)}, {v(t0+1)}
  buffer_load_dwordx2 {v(REC[u],2)}, {v(t0)}, {s(sREC,4)}, 0 offen{RPOL}""")

    SDWA = "dst_sel:WORD_1 dst_unused:UNUSED_PAD src0_sel:WORD_1 src1_sel:WORD_0"
    def ins1(u, thr, p):
        ta, rk, mk, w = TA[p], RK[p], sMk[p], WW[p]
        a(f"""
  v_cmp_gt_i32 vcc, 0, {v(REC[u])}
  v_min_i32 {v(w)}, {v(REC[u])}, {v(REC[u]+1)}
  v_cmp_gt_i32 {s(mk,2)}, {thr}, {v(w)}
  v_bfe_u32 {v(ta)}, {v(w)}, 23, 8
  v_cndmask_b32_sdwa {v(REC[u])}, {v(REC[u])}, {v(REC[u]+1)}, vcc {SDWA}
  v_mad_u32_u24 {v(ta)}, {v(ta)}, {v(v264)}, s{sIns}
  s_mov_b64 exec, {s(mk,2)}
  ds_add_rtn_u32 {v(rk)}, {v(ta)}, {v(vOne)}
  s_mov_b64 exec, -1""")

    def ins2(u, tag, p):
        ta, rk, mk, w = TA[p], RK[p], sMk[p], WW[p]
        lab = f"{tag}_{u}"
        a(f"""
  s_mov_b64 exec, {s(mk,2)}
  v_cmp_lt_u32 vcc, 31, {v(rk)}
  v_lshl_add_u32 {v(ta)}, {v(rk)}, 3, {v(ta)}
  s_cbranch_vccnz L_rare_{lab}""")
        a.label(f"L_back_{lab}")
        a(f"""
  ds_write2_b32 {v(ta)}, {v(REC[u])}, {v(w)} offset0:2 offset1:3
  s_mov_b64 exec, -1""")
        rare.append((lab, u, p))

    a(f"""
  v_add_u32 {v(PT+2)}, {P1_REC}, {v(vL16)}
  v_add_u32 {v(PT+3)}, {P1_REC + 8*8192}, {v(vL16)}
  v_add_u32 {v(PT+4)}, {P1_REC + 16*8192}, {v(vL16)}
  s_mov_b32 s{sSo}, {NB*8192}
  v_mov_b32 {v(vDum)}, 3
  s_waitcnt lgkmcnt(0)
  s_barrier""")
    stamp(a, 252, 45)
    NS = 19
    sdt = lambda r: (20 + r) % 25 if r < 8 else r + 1
    SD = lambda r: ACC[sdt(r)]
    gv = []
    def gwait(x, extra=""): a(f"  s_waitcnt vmcnt({len(gv) - 1 - gv.index(x)}){extra}")
    def rd(r): a(f"  ds_read_b128 {v(SD(r),4)}, {v(PT+2 + r//8)} offset:{(r%8)*8192}")
    def st(r, lst=None):
        a(f"  buffer_store_dwordx4 {v(SD(r),4)}, {v(vL16)}, {s(sRW,4)}, s{sSo} offen sc1\n  s_add_u32 s{sSo}, s{sSo}, 8192")
        if lst is not None: lst.append(("st", r))
    zero_acc = lambda t: a(f"  v_mov_b64 {v(ACC[t],2)}, 0\n  v_mov_b64 {v(ACC[t]+2,2)}, 0")
    flag3 = f"  buffer_store_dword {v(vDum)}, {v(vFlg)}, {s(sFLG,4)}, 0 offen sc1"
    N1, N3 = OPT["n1"], OPT["n3"]
    if not OPT["wall"] and OPT["sq"] < 0:
        a(f"  s_cmp_gt_u32 s{sO2}, {NB*8192 // 6 - 2}\n  s_cbranch_scc1 L_noearly")
        a(flag3)
        a.label("L_noearly")
    a(f"""
  buffer_load_dwordx4 {v(Q,4)}, {v(vTab)}, {s(sTAB,4)}, 0 offen sc1
  buffer_load_dwordx2 {v(Q+4,2)}, {v(vTab)}, {s(sTAB,4)}, 0 offen offset:16 sc1""")
    gv.extend([("tab", 0), ("tab", 1)])
    if cpf(1, 24): gv.append(("c", 1))
    for r in range(NB, NS): rd(r)
    nxt = NB + N1
    for r in range(NB, nxt):
        a(f"  s_waitcnt lgkmcnt({NS - 1 - r})")
        st(r, gv)
    a(f"""
  s_waitcnt lgkmcnt(0)
  s_cmp_gt_u32 s{sO2}, {NB*8192 // 6 - 2}
  s_cbranch_scc1 L_allfirst""")
    if OPT["wall"]: a(f"  s_waitcnt vmcnt({len(gv)})")
    a("  s_barrier")
    if OPT["wall"]: a(flag3)
    a.label("L_allfirst_back")
    stamp(a, 252, 46)
    pend = list(range(nxt, NS))
    keep = OPT["n3"]
    slot = [0]
    def st1(n=1):
        on = OPT["smask"] >> slot[0] & 1 or n > 1
        slot[0] += 1
        for _ in range(n):
            if on and len(pend) > keep: st(pend.pop(0), gv)
    st1()
    RBR, WD = Wa, Wa + 14
    if DMA:
        for p in range(14): a(f"  v_mov_b32 {v(RBR+p)}, {v(RBK[p]) if p < 13 else 0}")
        a(f"  v_mov_b32 {v(WD)}, {v(WDK[0])}\n  v_mov_b32 {v(WD+1)}, {v(WDK[1])}")
        st1()
    else:
        a(f"""
  s_mul_i32 s{sX}, s{sW}, 3584
  s_add_u32 s{sX}, s{sX}, {RB_OFF}
  v_and_b32 {v(T+8)}, 63, v0
  v_lshl_add_u32 {v(T+9)}, {v(T+8)}, 3, s{sX}
  v_bfe_u32 {v(T+8)}, v0, 4, 1
  v_cmp_eq_u32 vcc, 1, {v(T+8)}""")
        for p in range(14): a(f"  ds_write_b32 {v(T+9)}, {v(RBK[p] if p < 13 else vZ)} offset:{(p//2)*512 + (p%2)*4}")
        st1()
        for r in range(4):
            a(f"  v_cndmask_b32 {v(Wa+r)}, {v(WDK[r])}, {v(vZ)}, vcc")
            a(f"  v_cndmask_b32 {v(Wb+r)}, {v(vZ)}, {v(WDK[r])}, vcc")
    a(f"""
  v_mov_b32 {v(WS0+1)}, 0
  v_mov_b32 {v(WS1+1)}, 0
  v_mov_b32 {v(WR+1)}, 0
  v_mov_b32 {v(sA)}, 0
  v_mov_b32 {v(nA)}, 0
  v_mov_b32 {v(rtot)}, 0""")
    ZR = range(Wa + 16, Wa + 32, 2) if DMA else range(RING[0], RING[0] + 20, 2)
    for r in ZR: a(f"  v_mov_b64 {v(r,2)}, 0")
    st1()
    a(f"""
  s_mul_i32 s{sFl}, s{sJ}, {2*CARLIST}
  s_add_u32 s{sFl}, s{sFl}, {CAROFF}""")
    srd(a, sREC, sWS, sWS+1, None, NCH * CH * 6)
    a(f"  s_mov_b32 s{sM}, s48\n  s_or_b32 s{sM+1}, s49, 0x20000\n  s_mov_b32 s{sM+2}, {E*16}\n  s_mov_b32 s{sM+3}, 0x20000")
    srd(a, sCAR, sWS, sWS+1, f"s{sFl}", 2 * CARLIST)
    srd(a, sOUT, 70, 71, None, f"s{sRb}")
    srd(a, sMW, 48, 49, None, f"s{sRb}")
    for t in list(range(3, 9)) + [sdt(r) for r in range(NB)]: zero_acc(t)
    st1()
    a(f"""
  v_mov_b32 {v(vSent)}, {SENT}
  v_mov_b32 {v(T)}, 0
  v_mov_b32 {v(T+1)}, {v(vSent)}
  v_mov_b32 {v(T+2)}, 0
  v_mov_b32 {v(T+3)}, {v(vSent)}
  v_add_u32 {v(T+6)}, {7*8192}, {v(vL16)}""")
    for r in range(13):
        a(f"  ds_write_b128 {v(vL16 if r < 7 else T+6)}, {v(T,4)} offset:{(r%7)*8192}")
        if r % 5 == 4: st1()
    a(f"""
  v_and_b32 {v(T+6)}, 15, v0
  v_lshl_add_u32 {v(T+6)}, {v(T+6)}, 2, {v(vCtlN)}
  ds_write_b32 {v(T+6)}, {v(vZ)}
  ds_write_b128 {v(vSst if DMA else vSrd)}, {v(ACC[3],4)}""")
    if DMA:
        for q in range(D): a(f"  ds_write_b128 {v(vSst)}, {v(ACC[3],4)} offset:{1024*(q+1)}")
    for q in range(D): a(f"  v_mov_b32 {v(SA[q])}, {v(vSst)}\n  v_mov_b32 {v(CC[q])}, 0")
    gwait(("tab", 1))
    a(f"  v_lshrrev_b32 {v(rem)}, 16, {v(Q)}")
    for i in range(1, K):
        a(f"  v_lshrrev_b32 {v(T+4)}, 16, {v(Q+i)}\n  v_add_u32 {v(rem)}, {v(rem)}, {v(T+4)}")
    state_update()
    for u in range(0, 16, 2):
        a(f"""
  v_add_u32_dpp {v(REC[u])}, {v(vB6)}, {v(vI6)} {bc(u)}
  v_sub_u32_dpp {v(REC[u]+1)}, {v(vRT4)}, {v(vI4)} {bc(u)}
  v_add_u32_dpp {v(REC[u+1])}, {v(vB6)}, {v(vI6)} {bc(u+1)}
  v_sub_u32_dpp {v(REC[u+1]+1)}, {v(vRT4)}, {v(vI4)} {bc(u+1)}
  v_bfi_b32 {v(REC[u])}, {v(vMsk)}, {v(REC[u])}, {v(REC[u]+1)}
  v_bfi_b32 {v(REC[u+1])}, {v(vMsk)}, {v(REC[u+1])}, {v(REC[u+1]+1)}""")
        if u == OPT["eb"]:
            a(f"  s_cmp_lg_u32 s{sW}, 0\n  s_cbranch_scc1 L_noeb")
            a(flag_load(FP, RK[0]))
            a.label("L_noeb")
            ebm = len(gv)
        if u % 4 == 2: st1()
    state_update2()
    state_update()
    state_update2()
    st1()
    st1(NS)
    a("  s_nop 0")
    nx3 = NS - len(pend)
    for r in range(NB, nx3): zero_acc(sdt(r))
    stamp(a, 252, 47)
    if OPT["pf0"] == 3:
        share = (OPT["wmain"] // 4 + 31) // 32
        a(f"""
  s_cmp_eq_u32 s{sW}, 0
  s_cbranch_scc1 L_nopf
  s_lshr_b32 s{sX}, s2, 3
  s_mul_i32 s{sX}, s{sX}, {share*128}
  v_lshlrev_b32 {v(TA[1])}, 7, v0
  buffer_load_dword {v(WW[1])}, {v(TA[1])}, {s(sM,4)}, s{sX} offen""")
        a.label("L_nopf")
    a(f"  s_cmp_lg_u32 s{sW}, 0\n  s_cbranch_scc1 L_polled_b")
    if OPT["eb"] >= 0:
        a(f"  s_waitcnt vmcnt({len(gv) - ebm})")
        a(flag_cond(FP, 2))
        a("  s_cbranch_vccz L_polled_b")
    poll("b", flag_load(FP, RK[0]), flag_cond(FP, 2), OPT["nap"])
    a("  s_waitcnt lgkmcnt(0)")
    a("  s_barrier")
    stamp(a, 252, 1)
    def pro_ld(us):
        for u in us:
            a(f"  buffer_load_dwordx2 {v(REC[u],2)}, {v(REC[u])}, {s(sREC,4)}, 0 offen{RPOL}")
            gv.append(("rec", u))
    NL0 = OPT["nl0"]
    pro_ld(range(NL0))
    NG = NS
    stamp(a, 252, 12)
    set_flag("pro")
    stamp(a, 252, 13)
    PTA = (lambda u: (list(range(Db, Sf + 4)) + [TA[0], TA[1], RK[1], WW[1]])[u]) if DMA else (lambda u: Da + u)
    PRK = (lambda u: Wa + 16 + u) if DMA else (lambda u: RING[0] + u)
    PMK = lambda u: sPM + 2 * (u % 8)
    slowg = []
    def pro_ins1(g):
        us = range(4*g, 4*g+4)
        gwait(("rec", 4*g+3))
        for u in us:
            a(f"""
  v_cmp_gt_i32 vcc, 0, {v(REC[u])}
  v_min_i32 {v(PTA(u))}, {v(REC[u])}, {v(REC[u]+1)}
  v_cmp_gt_i32 {s(PMK(u),2)}, 0, {v(PTA(u))}
  v_cndmask_b32_sdwa {v(REC[u])}, {v(REC[u])}, {v(REC[u]+1)}, vcc {SDWA}
  v_mov_b32 {v(REC[u]+1)}, {v(PTA(u))}""")
        for u in us: a(f"  v_bfe_u32 {v(PTA(u))}, {v(PTA(u))}, 23, 8")
        for u in us: a(f"  v_mul_u32_u24 {v(PTA(u))}, {v(PTA(u))}, {v(v264)}")
        for u in us: a(f"  s_mov_b64 exec, {s(PMK(u),2)}\n  ds_add_rtn_u32 {v(PRK(u))}, {v(PTA(u))}, {v(vOne)}")
        a("  s_mov_b64 exec, -1")
    def pro_ins2(g):
        us = list(range(4*g, 4*g+4))
        a(f"""
  v_max3_u32 {v(T)}, {v(PRK(us[0]))}, {v(PRK(us[1]))}, {v(PRK(us[2]))}
  v_max_u32 {v(T)}, {v(T)}, {v(PRK(us[3]))}
  v_cmp_lt_u32 vcc, 31, {v(T)}
  s_cbranch_vccz L_pfast_{g}
  v_cmp_lt_u32 vcc, 63, {v(T)}
  s_cbranch_vccnz L_pslow_{g}""")
        a.label(f"L_pback_{g}")
        for x, u in enumerate(us): a(f"  v_subrev_u32 {v(T+4+x)}, 31, {v(PRK(u))}")
        for x, u in enumerate(us): a(f"  s_mov_b64 exec, {s(PMK(u),2)}\n  ds_max_i32 {v(PTA(u))}, {v(T+4+x)} offset:{BUFSZ}")
        a(f"  s_mov_b64 exec, -1\n  ds_write_b32 {v(vCtlN)}, {v(vOne)} offset:4")
        for x, u in enumerate(us): a(f"  v_lshrrev_b32 {v(T+4+x)}, 5, {v(PRK(u))}")
        for x, u in enumerate(us): a(f"  v_mad_u32_u24 {v(PTA(u))}, {v(T+4+x)}, s{sThr}, {v(PTA(u))}")
        a.label(f"L_pfast_{g}")
        for u in us: a(f"  v_lshl_add_u32 {v(PTA(u))}, {v(PRK(u))}, 3, {v(PTA(u))}")
        for u in us: a(f"  s_mov_b64 exec, {s(PMK(u),2)}\n  ds_write_b64 {v(PTA(u))}, {v(REC[u],2)} offset:8")
        a("  s_mov_b64 exec, -1")
        slowg.append(g)
    a(f"  s_mov_b32 s{sThr}, {BUFSZ - 256}")
    left = list(range(nx3, NS))
    per = (len(left) + 3) // 4
    def some():
        for _ in range(per):
            if left: st(left.pop(0), gv)
    pro_ins1(0)
    stamp(a, 252, 3)
    pro_ld(range(NL0, 16))
    def pf():
        share = (OPT["wmain"] // 4 + 31) // 32
        a(f"""
  s_lshr_b32 s{sX}, s2, 3
  s_mul_i32 s{sX}, s{sX}, {share*128}
  v_lshlrev_b32 {v(TA[1])}, 7, v0
  buffer_load_dword {v(WW[1])}, {v(TA[1])}, {s(sM,4)}, s{sX} offen""")
        gv.append(("pf", 0))
    if OPT["pf0"] == 1:
        while left: st(left.pop(0), gv)
        pf()
    pro_ins1(1)
    some()
    a("  s_waitcnt lgkmcnt(0)")
    pro_ins2(0); some(); pro_ins1(2); pro_ins2(1); some(); pro_ins1(3); some()
    if OPT["pf0"] == 2: pf()
    stamp(a, 252, 8)
    a("  s_nop 0")
    for r in range(nx3, NS): zero_acc(sdt(r))
    a("  s_waitcnt lgkmcnt(0)")
    pro_ins2(2); pro_ins2(3)
    stamp(a, 252, 11)
    if DMA:
        a(f"  s_mul_i32 s{sRing}, s{sW}, {WSTR}\n  s_add_u32 s{sRing}, s{sRing}, {S_OFF + 1024}")
        for r in range(P, Sf + 4, 2): a(f"  v_mov_b64 {v(r,2)}, 0")
    a("  s_branch L_turn2")
    def signal_all(tag, n):
        a(f"""
  v_mov_b32 {v(T+4)}, {CTL + 32}
  s_waitcnt vmcnt({n})
  s_mov_b64 exec, 1
  ds_add_rtn_u32 {v(T+5)}, {v(T+4)}, {v(vOne)}
  s_mov_b64 exec, -1
  v_and_b32 {v(T+6)}, 63, v0
  s_lshl_b32 s{sX}, s2, 2
  v_lshl_add_u32 {v(T+6)}, {v(T+6)}, 10, s{sX}
  v_mov_b32 {v(T+7)}, 4
  s_waitcnt lgkmcnt(0)
  v_readfirstlane_b32 s{sX}, {v(T+5)}
  s_cmp_lg_u32 s{sX}, 7
  s_cbranch_scc1 L_nosig_{tag}
  buffer_store_dword {v(T+7)}, {v(T+6)}, {s(sFLG,4)}, 0 offen sc1""")
        a.label(f"L_nosig_{tag}")

    INS0 = OPT["ins0"]
    def cstage_head(q):
        if OPT["abl_s"]: return
        a(f"""
  ds_write_b16 {v(SA[q])}, {v(CC[q])}
  ds_read_b128 {v(Sf,4)}, {v(vSrd)}
  ds_write_b16 {v(SA[q])}, {v(vZ)}""")
    def cstage_m1(q):
        a(f"""
  v_mfma_f32_16x16x32_bf16 {v(Da,4)}, {v(RING[q],4)}, {v(Wa,4)}, 0
  v_mfma_f32_16x16x32_bf16 {v(Db,4)}, {v(RING[q],4)}, {v(Wb,4)}, 0""")
    def cstage_cvt():
        a(f"""
  v_cvt_pk_bf16_f32 {v(P)}, {v(Da)}, {v(Da+1)}
  v_cvt_pk_bf16_f32 {v(P+1)}, {v(Da+2)}, {v(Da+3)}
  v_cvt_pk_bf16_f32 {v(P+2)}, {v(Db)}, {v(Db+1)}
  v_cvt_pk_bf16_f32 {v(P+3)}, {v(Db+2)}, {v(Db+3)}""")
    def cstage_m2(tc):
        a(f"  v_mfma_f32_16x16x32_bf16 {v(ACC[tc],4)}, {v(P,4)}, {v(Sf,4)}, {v(ACC[tc],4)}")
    def tr(dst, addr, off):
        a(f"  ds_read_b64_tr_b16 {v(dst,2)}, {v(addr)} offset:{off}\n  ds_read_b64_tr_b16 {v(dst+2,2)}, {v(addr)} offset:{off+512}")
    def fetch(q):
        a(f"  ds_write_b16 {v(SA[q])}, {v(CC[q])}")
        tr(Sf, vSrd, 0)
        a(f"  ds_write_b16 {v(SA[q])}, {v(vZ)}")
        tr(P, vSrd, 1024 * (q + 1))
    def step_top(t, reset=True):
        a(f"  ; ---- step {t}")
        a("  s_waitcnt lgkmcnt(0)")
        if DMA: cstage_m2((t - D) % NT)
        else: cstage_head(t % D)
        if t < NT - 1:
            a(f"  ds_read_b64 {v(RP[(t+1)&1],2)}, {v(vRd)} offset:{(t+1)*TS+8}")
        if reset and t < NT:
            a(f"  ds_write_b32 {v(vRd)}, {v(vSent)} offset:{t*TS+12}")
    def step_main(t, n, reset=True):
        q = t % D; tc = (t - D) % NT
        rp = RP[t & 1]
        off, af, e = T + 1, T + 2, T + 3
        if DMA:
            a(f"""
  s_add_u32 m0, s{sRing}, {1024*q}
  v_and_or_b32 {v(off)}, {v(rp+1)}, {v(vSent)}, {v(vHalf)}
  buffer_load_dwordx4 {v(off)}, {s(sM,4)}, 0 idxen lds
  v_mul_f32 {v(af)}, {v(rp)}, {v(vFreq)}
  s_waitcnt vmcnt({min(n + 1, 62)})""")
            fetch((t + 1) % D)
            a(f"""
  v_cos_f32 {v(af)}, {v(af)}
  v_and_or_b32 {v(SA[q])}, {v(rp+1)}, 14, {v(vSst)}
  v_cvt_pk_bf16_f32 {v(CC[q])}, {v(af)}, {v(af)}""")
            return
        lg = (2 if t < NT-1 else 1) + (1 if reset else 0)
        a(f"  s_waitcnt vmcnt({n})")
        cstage_m1(q)
        a(f"""
  v_and_or_b32 {v(off)}, {v(rp+1)}, {v(vSent)}, {v(vHalf)}
  v_mul_f32 {v(af)}, {v(rp)}, {v(vFreq)}
  v_and_b32 {v(e)}, 14, {v(rp+1)}
  buffer_load_dwordx4 {v(RING[q],4)}, {v(off)}, {s(sM,4)}, 0 idxen
  v_cos_f32 {v(af)}, {v(af)}
  v_lshl_add_u32 {v(SA[q])}, {v(e)}, 3, {v(vSst)}
  v_cvt_pk_bf16_f32 {v(CC[q])}, {v(af)}, {v(af)}""")
        cstage_cvt()
        a(f"  s_waitcnt lgkmcnt({lg})\n  s_nop 0")
        cstage_m2(tc)
        for i in range(OPT["dum"]): a(f"  v_mul_f32 v253, {v(Da + i % 8)}, {v(rp+1)}")
        for i in range(OPT["dumm"]): a("  s_nop 0")

    order = []
    for t in range(NT):
        if t == 0: order.append(("car", 16))
        u2 = t - INS0 - 1
        EA = OPT["early"]
        if EA: order += [("rec", u) for u in range(EA * t, min(16, EA * t + EA))]
        elif 0 <= u2 < 16: order.append(("rec", u2))
        order.append(("W", t))
        order.append(("g", t))
    tail = [x for x in order[order.index(("g", NT - D)):] if x[0] != "W"]
    assert tail == [("g", t) for t in range(NT - D, NT)], tail
    def younger(target, at):
        n = len(order); i = order.index(target); cnt = 0
        j = (i + 1) % n
        while j != at:
            if order[j][0] != "W": cnt += 1
            j = (j + 1) % n
        return cnt
    first = []
    for x in order:
        if x[0] == "W" and x[1] < 4: first += [("f", 4 * x[1] + i) for i in range(4)]
        first.append(x)
    def younger_first(u, t):
        i = first.index(("f", u)); j = first.index(("W", t))
        return sum(1 for x in first[i+1:j] if x[0] != "W")
    RBH = 1
    def prio(tag, mask, t):
        cur = mask >> t & 1; prev = (mask >> (t - 1) & 1) if t else 0
        if cur and not prev:
            a(f"  s_cmp_lt_u32 s{sW}, 4\n  s_cbranch_scc1 L_{tag}prio{t}\n  s_setprio 1")
            a.label(f"L_{tag}prio{t}")
        if prev and not cur: a("  s_setprio 0")
    assert not OPT["lprio"] >> (NT - 1)
    def step0_extra():
        a(f"""
  v_cmp_gt_u32 vcc, s{sCin}, {v(vCarIdx)}
  s_add_u32 s{sX}, s{sIt}, 2
  s_and_b32 s{sX}, s{sX}, 3
  s_lshl_b32 s{sX}, s{sX}, 3
  s_add_u32 s{sX}, s{sX}, {CTL}
  v_mov_b32 {v(T+1)}, s{sX}
  ds_write_b64 {v(T+1)}, {v(vZ,2)}
  ds_write_b32 {v(vCntA)}, {v(vZ)}
  v_cndmask_b32 {v(T)}, {v(vOOB)}, {v(vCarOff)}, vcc
  buffer_load_dwordx2 {v(REC[16],2)}, {v(T)}, {s(sCAR,4)}, s{sCarR} offen sc1""")
    def state_step(tag):
        a(f"  s_cmp_lg_u32 s{sThr}, 0\n  s_cbranch_scc1 L_nostate_{tag}")
        if tag == "b0":
            QL = Q + OPT['keff'] - 3
            a(f"""
  v_lshrrev_b32 {v(T)}, 16, {v(QL)}
  v_cmp_eq_u32 vcc, 0, {v(nA)}
  v_subrev_u32 {v(T+1)}, {OPT['lim']}, {v(T)}
  v_and_b32 {v(T+2)}, 0xffff, {v(QL)}
  v_max_i32 {v(T+1)}, 0, {v(T+1)}
  v_cndmask_b32 {v(T+1)}, {v(vZ)}, {v(T+1)}, vcc
  v_add_u32 {v(T+2)}, {v(T+2)}, {v(T)}
  v_sub_u32 {v(T+2)}, {v(T+2)}, {v(T+1)}
  v_cndmask_b32 {v(sA)}, {v(sA)}, {v(T+2)}, vcc
  v_add_u32 {v(nA)}, {v(nA)}, {v(T+1)}
  v_lshlrev_b32 {v(T+1)}, 16, {v(T+1)}
  v_sub_u32 {v(QL)}, {v(QL)}, {v(T+1)}""")
        state_update(); state_update2()
        a.label(f"L_nostate_{tag}")
        set_flag(tag)
    a(".p2align 6")
    a.label("L_body0")
    lo = []
    lw = lambda x: len(lo) - 1 - lo.index(x)
    ST0, STP = OPT["st0"], OPT["stp"]
    late = list(range(NG, NS))
    tsig = None
    FC = REC[0]
    FO = REC[2]
    for t in range(NT):
        step_top(t)
        prio("b0", OPT["bprio"], t)
        if t == 0:
            step0_extra(); lo.append(("rec", 16))
        if t < 4:
            for u in range(4*t, 4*t+4):
                rec_load(u, T + 4 + 2 * (u & 1)); lo.append(("rec", u))
        if t == INS0: state_step("b0")
        if t == 14 and cpf(2, 24): lo.append(("c", 2))
        zs = []
        if t >= ST0:
            for _ in range(STP):
                if late:
                    r = late.pop(0); st(r, lo); zs.append(r)
                    assert sdt(r) + D > t
                    if not late: tsig = t + D + 1
        u1 = t - INS0; u2 = u1 - 1
        if 0 <= u2 < 17: ins2(u2, "b0", u2 & 1)
        if 0 <= u1 < 17:
            a(f"  s_waitcnt vmcnt({lw(('rec', u1))})")
            ins1(u1, f"s{sThr}" if u1 < 16 else "0", u1 & 1)
        else: a("  s_nop 0")
        for r in zs: zero_acc(sdt(r))
        if t == tsig or (NG == NS and t == 2):
            signal_all("b0", lw(("st", NS - 1)) if NG < NS else len(lo))
        if t == INS0 + 18:
            a(f"  s_cmp_gt_u32 s{sCin}, 512\n  s_cbranch_scc1 L_slow_b0")
            a.label("L_slow_back_b0")
        if t == NT - 3:
            a(f"""
  s_cmp_lg_u32 s{sW}, 0
  s_cbranch_scc1 L_noldc
  v_lshlrev_b32 {v(FO)}, 4, v0
  s_and_b32 s{sX}, s2, {OPT['nrep']-1}
  s_lshl_b32 s{sX}, s{sX}, 10""")
            a(flag_load(FC, FO))
            a.label("L_noldc")
        step_main(t, lw(("g", t - LAG)) if t >= LAG else 62)
        lo.append(("g", t))
    assert not late and (tsig is None or tsig < NT - 3)
    a(f"""
  s_waitcnt vmcnt(3)
  s_cmp_lg_u32 s{sW}, 0
  s_cbranch_scc1 L_turn2""")
    assert NT - (INS0 + 17) >= 3
    a(flag_cond(FC, 4))
    a(f"""
  s_cbranch_vccz L_turn2
  s_and_b32 s{sX}, s2, {OPT['nrep']-1}
  s_lshl_b32 s{sX}, s{sX}, 10""")
    poll("c", flag_load(FC, FO), flag_cond(FC, 4), OPT["nap"])
    a("  s_branch L_turn2")

    a(".p2align 6")
    a.label("L_loop")
    for t in range(NT):
        step_top(t)
        if t == 0: step0_extra()
        prio("lp", OPT["lprio"], t)
        if EA:
            for u in range(EA * t, min(16, EA * t + EA)): rec_load(u, T + 4 + 2 * (u & 1))
        if t < 4:
            if not EA: a(f"  s_cmp_eq_u32 s{sIt}, 1\n  s_cbranch_scc1 L_first_{t}")
            a.label(f"L_first_back_{t}")
        if t == INS0: state_step("lp")
        if t == 14: cpf(3, 24)
        u1 = t - INS0; u2 = u1 - 1
        if 0 <= u2 < 17:
            ins2(u2, "lp", u2 & 1)
            if u2 < 16 and not EA:
                if OPT["fix"]:
                    a(f"""
  v_add_u32_dpp {v(T+4)}, {v(vB6)}, {v(vI6)} {bc(u2)}
  v_sub_u32_dpp {v(T+5)}, {v(vRT4)}, {v(vI4)} {bc(u2)}
  v_bfi_b32 {v(T+4)}, {v(vMsk)}, {v(T+4)}, {v(T+5)}
  buffer_load_dwordx2 {v(REC[u2],2)}, {v(T+4)}, {s(sREC,4)}, 0 offen{RPOL}""")
                else: rec_load(u2, T + 4)
            if u2 == 16 and OPT["fix"]:
                a(f"  v_cmp_ne_u32 vcc, 0, {v(vR0)}\n  s_cbranch_vccnz L_fix")
                a.label("L_fix_back")
        if 0 <= u1 < 17:
            pos = order.index(("W", t))
            if EA and u1 < 16: n = younger(("rec", u1), pos)
            elif u1 < 16: n = min(younger(("rec", u1), pos), younger_first(u1, t))
            else: n = younger(("car", 16), pos)
            a(f"  s_waitcnt vmcnt({min(n, 62)})")
            ins1(u1, f"s{sThr}" if u1 < 16 else "0", u1 & 1)
        if t == INS0 + 18:
            a(f"  s_cmp_gt_u32 s{sCin}, 512\n  s_cbranch_scc1 L_slow_lp")
            a.label("L_slow_back_lp")
        step_main(t, younger(("g", (t - LAG) % NT), order.index(("W", t))))
    assert INS0 >= 4 and RBH < NT
    a(f"  s_waitcnt vmcnt({NT - (INS0 + 17)})")
    a.label("L_turn2")
    a(f"""
  v_mov_b32 {v(T)}, {v(vCtlN)}
  s_add_u32 s{sIt}, s{sIt}, 1
  s_add_u32 s{sX}, s{sIt}, 1
  s_and_b32 s{sX}, s{sX}, 3
  s_lshl_b32 s{sX}, s{sX}, 3
  s_add_u32 s{sX}, s{sX}, {CTL}
  v_mov_b32 {v(vCtlN)}, s{sX}
  s_sub_u32 s{sX}, s{sIns}, {BUFSZ}
  s_add_u32 s{sX}, s{sX}, s{sIns}
  v_add_u32 {v(vRd)}, s{sX}, {v(vRd)}
  v_add_u32 {v(vCntA)}, s{sX}, {v(vCntA)}
  s_sub_u32 s{sIns}, {BUFSZ}, s{sIns}
  s_mov_b32 s{sCarR}, s{sCarW}
  s_sub_u32 s{sCarW}, {CARLIST}, s{sCarW}
  s_waitcnt lgkmcnt(0)""")
    if OPT["stamp"] == 1:
        a(f"  s_lshl_b32 s90, s{sIt}, 1\n  s_add_u32 s90, s90, 16\n  s_min_u32 m0, s90, 36")
        stamp(a, 252, "m0")
        a("  s_add_u32 m0, m0, 1")
    a("  s_barrier")
    stamp(a, 252, "m0")
    a(f"""
  ds_read_b64 {v(T+2,2)}, {v(T)}
  ds_read_b64 {v(RP[0],2)}, {v(vRd)} offset:8
  s_waitcnt lgkmcnt(1)
  v_readfirstlane_b32 s{sCin}, {v(T+2)}
  v_readfirstlane_b32 s{sFl}, {v(T+3)}
  s_cmp_gt_u32 s{sCin}, 512
  s_cselect_b32 s{sThr}, 0x80000000, 0
  s_min_u32 s{sCin}, s{sCin}, {CARCAP}
  s_cmp_gt_u32 s{sCin}, 32
  s_cselect_b32 s{sFl}, 1, s{sFl}
  s_cmp_lt_u32 s{sIt}, {OPT['itcap']}
  s_cselect_b32 s{sFl}, s{sFl}, 0
  s_cmp_eq_u32 s{sIt}, {OPT["cut"] - 100 if OPT["cut"] >= 100 else -1}
  s_cbranch_scc1 L_end
  s_cmp_eq_u32 s{sIt}, 0
  s_cbranch_scc1 L_it0
  s_cmp_lg_u32 s{sFl}, 0
  s_cbranch_scc1 L_loop""")
    a.label("L_nosig_z")

    RBv = RBR if DMA else Q
    assert vRT4 - Q + 1 >= 14
    R0 = REC[0]
    G0, G1, RR, U = R0, R0 + 4, R0 + 8, R0 + 12
    XS0, XS1, XR, AG = R0 + 16, R0 + 18, R0 + 20, R0 + 22
    MS = [R0 + 24 + 2 * i for i in range(5)]
    vMoff, vLin, vOw, vOr = vCarOff, vI6, vI1, vI4
    a(f"""
  v_and_b32 {v(T)}, 63, v0
  s_mul_i32 s{sX}, s{sW}, 3584
  s_add_u32 s{sX}, s{sX}, {RB_OFF}
  v_lshl_add_u32 {v(T+1)}, {v(T)}, 3, s{sX}
  v_lshlrev_b32 {v(vLin)}, 4, {v(T)}
  v_bfe_u32 {v(T+2)}, v0, 4, 2
  v_and_b32 {v(T+3)}, 15, v0
  v_lshlrev_b32 {v(T+2)}, 3, {v(T+2)}
  v_lshl_add_u32 {v(vMoff)}, {v(T+3)}, 5, {v(T+2)}
  s_mul_i32 s{sX}, s{sW}, 6400
  s_add_u32 s{sX}, s{sX}, s{sIns}
  s_add_u32 s{sX}, s{sX}, 15
  s_and_b32 s{sX}, s{sX}, -16
  v_add_u32 {v(vOw)}, s{sX}, {v(vMoff)}
  v_add_u32 {v(vOr)}, s{sX}, {v(vLin)}
  v_cmp_gt_u32 {s(sT,2)}, 8, {v(T+3)}""")
    for h in range(0 if DMA else 7):
        a(f"  ds_read_b64 {v(RBv+2*h,2)}, {v(T+1)} offset:{h*512}")
    if DMA: a(f"  s_mov_b32 s{sCnt[0]}, s{sX}")
    def s0(tl):
        x = ACC[tl]
        a(f"""
  v_cvt_pk_bf16_f32 {v(Da)}, {v(x)}, {v(x+1)}
  v_cvt_pk_bf16_f32 {v(Da+1)}, {v(x+2)}, {v(x+3)}
  s_nop 1
  v_mfma_f32_16x16x16_bf16 {v(x,4)}, {v(WD,2)}, {v(Da,2)}, 0""")
    fo = [("g", t - NT) for t in range(NT - D, NT)]
    def fwait(x): return len(fo) - 1 - fo.index(x)
    def s1(p):
        b = RBv + (p & ~1)
        w0, w1 = (WS0, WS1) if p % 2 == 0 else (XS0, XS1)
        a(f"""
  v_mfma_f32_16x16x16_bf16 {v(G0,4)}, {v(w0,2)}, {v(b,2)}, 0
  v_mfma_f32_16x16x16_bf16 {v(G1,4)}, {v(w1,2)}, {v(b,2)}, 0""")
    def s2(p):
        t0 = ACC[2*p]; t1 = ACC[2*p+1] if 2*p+1 < NT else ACC[2*p]
        for r in range(4): a(f"  v_mul_f32 {v(U+r)}, {v(t0+r)}, {v(G0+r)}")
        for r in range(4): a(f"  v_mul_f32_dpp {v(U+r)}, {v(t1+r)}, {v(G0+r)} row_ror:8 row_mask:0xf bank_mask:0xc")
        for r in range(4): a(f"  v_fmac_f32_dpp {v(U+r)}, {v(t0+r)}, {v(G1+r)} row_ror:8 row_mask:0xf bank_mask:0x3")
        for r in range(4): a(f"  v_fmac_f32_dpp {v(U+r)}, {v(t1+r)}, {v(G1+r)} quad_perm:[0,1,2,3] row_mask:0xf bank_mask:0xc")
        a(f"""
  v_cvt_pk_bf16_f32 {v(AG)}, {v(U)}, {v(U+1)}
  v_cvt_pk_bf16_f32 {v(AG+1)}, {v(U+2)}, {v(U+3)}
  v_mfma_f32_16x16x16_bf16 {v(RR,4)}, {v(WR if p % 2 == 0 else XR,2)}, {v(RBv + (p & ~1),2)}, 0""")
        if p + 1 < 13: s1(p + 1)
        else: a("  s_nop 0")
        a(f"  v_mfma_f32_16x16x16_bf16 {v(U,4)}, {v(WUP,2)}, {v(AG,2)}, 0")
    def s3(p):
        x = ACC[2*p]; m_ = MS[p % 5]
        a(f"""
  s_waitcnt vmcnt({fwait(("m", p))})
  v_lshlrev_b32 {v(x)}, 16, {v(m_)}
  v_and_b32 {v(x+1)}, 0xffff0000, {v(m_)}
  v_lshlrev_b32 {v(x+2)}, 16, {v(m_+1)}
  v_and_b32 {v(x+3)}, 0xffff0000, {v(m_+1)}""")
        if p == 12: a("  s_nop 2")
        a(f"""
  v_pk_fma_f32 {v(x,2)}, {v(U,2)}, {v(RR,2)}, {v(x,2)}
  v_pk_fma_f32 {v(x+2,2)}, {v(U+2,2)}, {v(RR+2,2)}, {v(x+2,2)}
  v_cvt_pk_bf16_f32 {v(x)}, {v(x)}, {v(x+1)}
  v_cvt_pk_bf16_f32 {v(x+1)}, {v(x+2)}, {v(x+3)}""")
        if p == 12: a(f"  s_mov_b64 exec, {s(sT,2)}")
        a(f"  ds_write_b64 {v(vOw)}, {v(x,2)} offset:{p*512}")
        if p == 12: a(f"  s_mov_b64 exec, -1")
        if p % 2 == 1 or p == 12:
            r = p // 2
            a(f"  ds_read_b128 {v(ACC[4*r+1 if r < 6 else 23],4)}, {v(vOr)} offset:{r*1024}")
    def s4(r):
        a(f"  buffer_store_dwordx4 {v(ACC[4*r+1 if r < 6 else 23],4)}, {v(vLin)}, {s(sOUT,4)}, s{sEb if r < 4 else sEb2} offen offset:{(r%4)*1024}{POL[OPT['opol']]}")
        fo.append(("st", r))
    xw = {}
    for t in range(NT + D + 2):
        def x3():
            a(f"  s_cmp_lg_u32 s{sCin}, 0\n  s_cbranch_scc1 L_x3")
            a.label("L_x3_back")
            xw[3] = len(fo) - xw[2]
        if t == 6 and not DMA: x3()
        if t < NT + D: step_top(t, False)
        else: a(f"  ; ---- tail {t}\n  s_waitcnt lgkmcnt(0)")
        if t == 6 and DMA: x3()
        prio("fp", OPT["fprio"], t)
        if t in (0, 3):
            n = 1 if t == 0 else 2
            a(f"  s_cmp_lg_u32 s{sCin}, 0\n  s_cbranch_scc1 L_x{n}")
            a.label(f"L_x{n}_back")
            xw[n] = len(fo)
        if t == NT: stamp(a, 252, 4)
        if t == NT + D: stamp(a, 252, 5)
        if t == 1:
            a(f"""
  v_mov_b32 {v(XS0)}, 0
  v_mov_b32 {v(XS0+1)}, {v(WS0)}
  v_mov_b32 {v(XS1)}, 0
  v_mov_b32 {v(XS1+1)}, {v(WS1)}
  v_mov_b32 {v(XR)}, 0
  v_mov_b32 {v(XR+1)}, {v(WR)}""")
        if t == 5: s1(0)
        ts2 = {2*p+7 if p < 12 else 30: p for p in range(13)}
        if t - 2 in ts2 and (ts2[t-2] % 2 == 1): s4(ts2[t-2] // 2)
        if t - 1 in ts2: s3(ts2[t-1])
        if t in ts2: s2(ts2[t])
        if t % 2 == 1 and t // 2 < 13:
            p = t // 2
            a(f"  buffer_load_dwordx2 {v(MS[p%5],2)}, {v(vMoff)}, {s(sMW,4)}, s{sEb if p < 8 else sEb2} offen offset:{(p%8)*512}{POL[OPT['mpol']]}")
            fo.append(("m", p))
        if t < NT:
            step_main(t, fwait(("g", t - LAG)), False)
            fo.append(("g", t))
        elif t < NT + D and DMA:
            if t - LAG < NT:
                a(f"  s_waitcnt vmcnt({fwait(('g', t - LAG))})")
                fetch((t + 1) % D)
            a("  s_nop 7")
        elif t < NT + D:
            a(f"  s_waitcnt vmcnt({fwait(('g', t - D))})")
            cstage_m1(t % D)
            a("  s_nop 6")
            cstage_cvt()
            a("  s_waitcnt lgkmcnt(0)\n  s_nop 0")
            cstage_m2(t - D)
            a("  s_nop 3")
        if DMA and 6 <= t < NT + D:
            if t == 6: s0(0)
            s0(t - D)
            a("  s_nop 3")
    a("  s_waitcnt lgkmcnt(0)")
    s4(6)
    stamp(a, 252, 6)
    if OPT["stamp"]: a("  s_waitcnt vmcnt(0)")
    stamp(a, 252, 7); stamp(a, 252, 63, "s_memrealtime")
    if OPT["stamp"] == 1: a(f"  v_writelane_b32 v252, s{sIt}, 61")
    stamp_out(a, 252, sWS, 8, STAMPOFF + 0x200000, 253)
    a.label("L_end")
    a("  s_endpgm")

    sSm, sS2 = sMk
    a.label("L_x1")
    a(f"""
  v_cmp_gt_u32 vcc, s{sCin}, {v(vSlot)}
  v_lshlrev_b32 {v(T)}, 3, {v(vSlot)}
  s_nop 0
  v_cndmask_b32 {v(T)}, {v(vOOB)}, {v(T)}, vcc
  buffer_load_dwordx2 {v(AG,2)}, {v(T)}, {s(sCAR,4)}, s{sCarR} offen sc1
  s_branch L_x1_back""")
    a.label("L_x2")
    a(f"""
  s_mul_i32 s{sX}, s{sW}, {NT}
  s_waitcnt vmcnt({xw[2] - xw[1]})
  v_min_i32 {v(U)}, {v(AG)}, {v(AG+1)}
  v_cmp_gt_i32 vcc, 0, {v(AG)}
  v_bfe_u32 {v(U+2)}, {v(U)}, 23, 8
  v_subrev_u32 {v(U+2)}, s{sX}, {v(U+2)}
  v_cndmask_b32_sdwa {v(U+1)}, {v(AG)}, {v(AG+1)}, vcc dst_sel:WORD_1 dst_unused:UNUSED_PAD src0_sel:WORD_1 src1_sel:WORD_0
  v_cmp_gt_i32 {s(sS2,2)}, 0, {v(U)}
  v_cmp_gt_u32 {s(sSm,2)}, {NT}, {v(U+2)}
  s_and_b64 vcc, {s(sSm,2)}, {s(sS2,2)}
  s_cselect_b32 s{sCin}, s{sCin}, 0
  s_cbranch_scc0 L_x2_back
  v_and_or_b32 {v(T)}, {v(U)}, {v(vSent)}, {v(vHalf)}
  v_mul_f32 {v(U+1)}, {v(U+1)}, {v(vFreq)}
  s_mov_b32 m0, s{sCnt[0]}
  v_cndmask_b32 {v(T)}, {v(vSent)}, {v(T)}, vcc
  buffer_load_dwordx4 {(v(T) + ", " + s(sM,4) + ", 0 idxen lds") if DMA else (v(RR,4) + ", " + v(T) + ", " + s(sM,4) + ", 0 idxen")}
  v_cndmask_b32 {v(U+2)}, {v(vOOB)}, {v(U+2)}, vcc
  v_cos_f32 {v(U+1)}, {v(U+1)}
  v_and_b32 {v(U+3)}, 14, {v(U)}
  v_lshl_add_u32 {v(U+3)}, {v(U+3)}, {0 if DMA else 3}, {v(vSst)}
  v_cvt_pk_bf16_f32 {v(U+1)}, {v(U+1)}, {v(U+1)}
  s_branch L_x2_back""")
    a.label("L_x3")
    a(f"  s_waitcnt vmcnt({xw[3]})")
    if DMA:
        a(f"  v_lshrrev_b32 {v(T)}, 1, {v(vLin)}\n  v_add_u32 {v(T)}, s{sCnt[0]}, {v(T)}")
        tr(P, T, 0)
    else:
        a(f"""
  v_mfma_f32_16x16x32_bf16 {v(Da,4)}, {v(RR,4)}, {v(Wa,4)}, 0
  v_mfma_f32_16x16x32_bf16 {v(Db,4)}, {v(RR,4)}, {v(Wb,4)}, 0
  s_nop 6""")
        cstage_cvt()
    for t in range(NT):
        a(f"""
  v_cmp_eq_u32 vcc, {t}, {v(U+2)}
  s_cbranch_vccz L_x3_{t}
  s_mov_b64 exec, vcc
  ds_write_b16 {v(U+3)}, {v(U+1)}
  s_mov_b64 exec, -1""")
        if DMA: tr(Sf, vSrd, 0)
        else: a(f"  ds_read_b128 {v(Sf,4)}, {v(vSrd)}")
        a(f"""
  s_mov_b64 exec, vcc
  ds_write_b16 {v(U+3)}, {v(vZ)}
  s_mov_b64 exec, -1
  s_waitcnt lgkmcnt(0)""")
        cstage_m2(t)
        a.label(f"L_x3_{t}")
    a("  s_branch L_x3_back")
    a.label("L_it0")
    a(f"  s_cmp_lg_u32 s{sFl}, 0\n  s_cbranch_scc1 L_body0")
    for r in range(NG, NS): st(r)
    a("  s_nop 0")
    for r in range(NG, NS): zero_acc(sdt(r))
    signal_all("z0", 0)
    a("  s_branch L_nosig_z")
    for t in range(4):
        a.label(f"L_first_{t}")
        for u in range(4*t, 4*t+4): rec_load(u, T + 4 + 2 * (u & 1))
        a(f"  s_branch L_first_back_{t}")
    if OPT["fix"]:
        a.label("L_fix")
        for u in range(16):
            a(f"""
  v_sub_co_u32_dpp {v(T+5)}, vcc, {v(vR0)}, {v(vI1)} {bc(u)}
  v_add_u32_dpp {v(T+4)}, {v(vA6)}, {v(vI6)} {bc(u)}
  v_and_b32 {v(T+4)}, {v(vMsk)}, {v(T+4)}
  s_not_b64 exec, vcc
  s_cbranch_execz L_fix_{u}
  buffer_load_dwordx2 {v(REC[u],2)}, {v(T+4)}, {s(sREC,4)}, 0 offen{RPOL}""")
            a.label(f"L_fix_{u}")
            a("  s_mov_b64 exec, -1")
        a("  s_branch L_fix_back")
    a.label("L_allfirst")
    a(f"  s_mov_b32 s{sY}, s{sSo}")
    for r in range(NB + N1, NS): st(r)
    a(f"  s_mov_b32 s{sSo}, s{sY}\n  s_waitcnt vmcnt(0)\n  s_barrier\n{flag3}\n  s_branch L_allfirst_back")
    for g in slowg:
        a.label(f"L_pslow_{g}")
        for u in range(4*g, 4*g+4):
            a(f"""
  s_mov_b64 exec, {s(PMK(u),2)}
  v_cmp_lt_u32 vcc, 63, {v(PRK(u))}
  s_cbranch_vccz L_pskip_{u}
  s_andn2_b64 {s(PMK(u),2)}, {s(PMK(u),2)}, vcc
  s_mov_b64 exec, vcc
  ds_add_rtn_u32 {v(T+1)}, {v(vCtlN)}, {v(vOne)}
  s_waitcnt lgkmcnt(0)
  v_lshlrev_b32 {v(T+1)}, 3, {v(T+1)}
  buffer_store_dwordx2 {v(REC[u],2)}, {v(T+1)}, {s(sCAR,4)}, s{sCarW} offen
  s_waitcnt vmcnt(0)""")
            a.label(f"L_pskip_{u}")
        a(f"  s_mov_b64 exec, -1\n  s_branch L_pback_{g}")
    for tag in ("b0", "lp"):
        a.label(f"L_slow_{tag}")
        a(f"  s_mov_b32 s{sX}, 512")
        a.label(f"L_slow_loop_{tag}")
        a(f"""
  v_add_u32 {v(T+1)}, s{sX}, {v(vCarIdx)}
  v_cmp_gt_u32 vcc, s{sCin}, {v(T+1)}
  v_lshlrev_b32 {v(T+1)}, 3, {v(T+1)}
  s_nop 0
  v_cndmask_b32 {v(T+1)}, {v(vOOB)}, {v(T+1)}, vcc
  buffer_load_dwordx2 {v(REC[16],2)}, {v(T+1)}, {s(sCAR,4)}, s{sCarR} offen sc1
  s_waitcnt vmcnt(0)""")
        ins1(16, "0", 0)
        a("  s_waitcnt lgkmcnt(0)")
        ins2(16, "sl" + tag, 0)
        a(f"""
  s_add_u32 s{sX}, s{sX}, 512
  s_cmp_lt_u32 s{sX}, s{sCin}
  s_cbranch_scc1 L_slow_loop_{tag}
  s_waitcnt vmcnt(0)
  s_branch L_slow_back_{tag}""")
    for lab, u, p in rare:
        a.label(f"L_rare_{lab}")
        a(f"""
  s_mov_b64 exec, vcc
  ds_add_rtn_u32 {v(RK[p])}, {v(vCtlN)}, {v(vOne)}
  v_mov_b32 {v(REC[u]+1)}, {v(WW[p])}
  s_waitcnt lgkmcnt(0)
  v_lshlrev_b32 {v(RK[p])}, 3, {v(RK[p])}
  buffer_store_dwordx2 {v(REC[u],2)}, {v(RK[p])}, {s(sCAR,4)}, s{sCarW} offen
  s_andn2_b64 exec, {s(sMk[p],2)}, vcc
  s_branch L_back_{lab}""")
    a.label("L_code_end")
    return NV

def kd(name, nv, ns):
    nv4 = (nv + 3) // 4 * 4
    return f""".amdhsa_kernel {name}
  .amdhsa_next_free_vgpr {nv}
  .amdhsa_next_free_sgpr {ns}
  .amdhsa_accum_offset {nv4}
  .amdhsa_group_segment_fixed_size 0
  .amdhsa_kernarg_size 112
  .amdhsa_user_sgpr_count 2
  .amdhsa_user_sgpr_kernarg_segment_ptr 1
  .amdhsa_system_sgpr_workgroup_id_x 1
  .amdhsa_float_denorm_mode_32 3
.end_amdhsa_kernel
"""

def main():
    out = sys.argv[1]
    ref = open(f"cdna_kernels/{NAME}.s.ref").read().split("\n")
    head = [l for l in ref if l.startswith(";") and "@launch" not in l and "Override" not in l and "grid=ceil" not in l]
    a = Asm()
    a(".amdgcn_target \"amdgcn-amd-amdhsa--gfx950\"\n.text")
    a(f".globl {NAME}_kernel\n.type {NAME}_kernel,@function")
    nv = gen_p2(a)
    errs = a.check()
    for e in errs: print("HAZARD", e)
    txt = "\n".join(head) + "\n"
    kern = f"kernel={NAME}_kernel " if OPT["list"] else ""
    txt += f"; @launch {kern}grid=(256,1,1) block=(512,1,1) lds={P1_LDS}\n"
    if OPT["probe"] >= 0:
        txt += "; @launch kernel=probe_kernel grid=(1,1,1) block=(64,1,1) lds=0\n"
        a(f"""
.p2align 8
probe_kernel:
  s_cmp_ge_u32 s2, 1
  s_cbranch_scc1 P_end
  s_load_dwordx2 s[4:5], s[0:1], 96
  s_waitcnt lgkmcnt(0)
  s_load_dwordx8 s[8:15], s[4:5], 0
  s_memrealtime s[16:17]
  s_waitcnt lgkmcnt(0)
  s_not_b32 s8, s8
  s_sub_u32 s20, s{8 + OPT['probe']}, s8
  {"s_lshr_b32 s20, s%d, 4" % (8 + OPT['probe']) if OPT['probe'] in (5, 7) else "s_nop 0"}
  s_min_u32 s20, s20, 20000
P_loop:
  s_memrealtime s[18:19]
  s_waitcnt lgkmcnt(0)
  s_sub_u32 s21, s18, s16
  s_cmp_lt_u32 s21, s20
  s_cbranch_scc1 P_loop
P_end:
  s_endpgm""")
    txt += a.text()
    txt += ".section .rodata,\"a\"\n.p2align 6\n" + kd(NAME + "_kernel", 256, 102) + (".p2align 6\n" + kd("probe_kernel", 8, 32) if OPT["probe"] >= 0 else "")
    open(out, "w").write(txt)
    print("vgprs p2:", nv, "lines:", len(a.lines), "hazards:", len(errs))

main()
```

```python
import sys, os
sys.path.insert(0, os.path.dirname(__file__))
from asmlib import Asm

NAME = "gather_scatter__molecular_angular_gemnet__graph"
E = 400000
NCH, CH = 250, 25600
EB = 1568
K = 6
MJ = 2739138
TABOFF = 0x2800000
CAROFF = 0x3000000
CARCAP = 9216
CARLIST = CARCAP * 8
STAMPOFF = 0x6000000
FLGOFF = 0x2c00000
OPT = dict(str=0, uni=1, lead=3, pm2=1, eb=4, nrep=4, ncn=64, sq=-1, ep=1, bprio=0x1ff, dma=0, fix=1, dum=0, dumm=0, abl_rbf=0, tg=-1, wall=0, cpf=3, wsoff=0, mq=11, rot=0, pf0=0, a0=2, ag=2, early=0, adj=0, probe=-1, tlb=0, cut=-1, opol=1, mpol=0, tq=3, fq=10, keff=6, jid=0, fprio=0x3ffff, lprio=0xfff, napt=8, st0=1, stp=1, rb0=2, nap=8, list=1, nb=7, n1=2, n3=4, nl0=8, smask=0x555, arr=10, spin=60000, rec_pol=2, stamp=0, itcap=64, ld_nt=7, st_pol=0, mtouch=0, la=4, apre=2, wmain=70000, b5=0, lim=24, nb2=7, ins0=4,
           abl_mfma=0, abl_s=0, abl_cos=0, abl_g=0)
for a in sys.argv[2:]:
    k, v = a.split("=")
    assert k in OPT, k
    OPT[k] = int(v, 0)
MK = -(-(1 << 32) // OPT["wmain"])
assert (399999 * MK) >> 32 <= 5

RPOL = ('', ' nt', ' sc1', ' sc0 sc1')[OPT['rec_pol']]

POL = ('', ' nt', ' sc1', ' sc0 sc1')

def v(i, n=1):
    return f"v{i}" if n == 1 else f"v[{i}:{i+n-1}]"
def s(i, n=1):
    return f"s{i}" if n == 1 else f"s[{i}:{i+n-1}]"

def stamp(a, vreg, lane, op="s_memtime"):
    if lane == OPT["cut"]: a("  s_endpgm")
    if not OPT["stamp"]: return
    if OPT["stamp"] == 2:
        mp = {62: (0, 1), 42: (1, 0), 45: (2, 0), 1: (3, 0), 11: (4, 0), 63: (6, 0)}
        if lane == 0:
            a("  s_memtime s[88:89]\n  s_waitcnt lgkmcnt(0)\n  s_mov_b32 s91, s88")
        if lane in (11, 7):
            a(f"  s_memtime s[88:89]\n  s_waitcnt lgkmcnt(0)\n  s_sub_u32 s88, s88, s91\n  v_writelane_b32 v{vreg}, s88, {5 if lane == 11 else 7}")
        if lane not in mp: return
        l, inv = mp[lane]
        a(f"  s_memrealtime s[88:89]\n  s_waitcnt lgkmcnt(0)")
        if inv: a("  s_not_b32 s88, s88")
        a(f"  v_writelane_b32 v{vreg}, s88, {l}")
        return
    a(f"  {op} s[88:89]\n  s_waitcnt lgkmcnt(0)\n  v_writelane_b32 v{vreg}, s88, {lane}")
def stamp_out(a, vreg, wslo, nwaves, base, tmp):
    if not OPT["stamp"]: return
    if OPT["stamp"] == 2:
        back = 512
        a(f"""
  s_load_dwordx2 s[90:91], s[0:1], 96
  s_waitcnt lgkmcnt(0)
  s_add_u32 s92, s90, {back}
  s_addc_u32 s93, s91, 0
  s_mov_b32 s94, 32
  s_mov_b32 s95, 0x20000
  v_lshlrev_b32 v{tmp}, 2, v0
  buffer_atomic_umax v{vreg}, v{tmp}, s[92:95], 0 offen""")
        return
    a(f"  s_mul_i32 s88, s2, {nwaves*256}\n  s_add_u32 s88, s88, {base}")
    srd(a, 92, wslo, wslo+1, "s88", nwaves*256)
    a(f"  v_lshlrev_b32 v{tmp}, 2, v0\n  buffer_store_dword v{vreg}, v{tmp}, s[92:95], 0 offen")

def srd(a, d, lo, hi, add, size):
    if add is None:
        a(f"  s_mov_b32 s{d}, s{lo}\n  s_mov_b32 s{d+1}, s{hi}")
    else:
        a(f"  s_add_u32 s{d}, s{lo}, {add}\n  s_addc_u32 s{d+1}, s{hi}, 0")
    a(f"  s_mov_b32 s{d+2}, {size}\n  s_mov_b32 s{d+3}, 0x20000")

P1_CNT, P1_SENT, P1_TMP, P1_REC = 0, 6144, 6160, 6272
P1_LDS = P1_REC + CH * 6

TS = 264
BUFSZ = 200 * TS
S_OFF = 13 * 8192
DMA = OPT["dma"]
WSTR = 6144 if DMA else 1024
CTL = S_OFF + 8 * WSTR
RB_OFF = CTL + 128
SENT = 0x7ffff0
LAG = 4 if DMA else 5
P2_LDS = RB_OFF + 8 * 3584
D = 5
NT = 25

class RA:
    def __init__(self, start): self.n = start
    def __call__(self, k=1, al=1):
        self.n = (self.n + al - 1) // al * al
        r = self.n; self.n += k
        return r

def gen_p2(a):
    ra = RA(1)
    vSlot, vHalf, vFreq, vSst, vSrd, vI6, vI1, vI4 = (ra() for _ in range(8))
    vRd, vCntA, vOne, vOOB, vCarOff, vCarIdx, v264, vMsk, vCtlN = (ra() for _ in range(9))
    vZ = ra(2, 2)
    Q = ra(6, 4)
    sA, nA, cb, rem, rtot, vA6, vB6, vR0, vRT4 = (ra() for _ in range(9))
    vCnt = ra()
    Wa = ra(4, 4); Wb = ra(4, 4)
    RING = [ra(4, 4) for _ in range(D)]
    Da = ra(4, 4); Db = ra(4, 4); P = ra(4, 4); Sf = ra(4, 4)
    ACC = [ra(4, 4) for _ in range(NT)]
    REC = [ra(2, 4 if i == 0 else 2) for i in range(17)]
    RP = [ra(2, 2), ra(2, 2)]
    T = ra(10, 2)
    TA = [ra(), ra()]; RK = [ra(), ra()]
    WS0 = ra(2, 2); WS1 = ra(2, 2); WR = ra(2, 2); WUP = ra(2, 2)
    CC = [ra() for _ in range(D)]; SA = [ra() for _ in range(D)]
    WW = [ra(), ra()]
    assert ra.n <= 252, ra.n
    NV = ra.n
    sM = 4; sREC = 8; sCAR = 12; sTAB = 16; sOUT = 20; sDIST = 24; sMW = 28
    sJ, sW, sIt, sThr, sIns, sCarW, sCarR, sRb, sCin, sX, sFl, sEb = range(32, 44)
    sCnt = [44, 45]
    sWS = 46
    sPM = 72
    sMk = [72, 74]; sT = 76; sC10 = 78; sCl2 = 80
    sEb2 = 3
    rare = []

    O, I, R, A = 36, 88, 140, 192
    PT = 218
    vFlg, vDum, vTab, vWo, vTwo = range(240, 245)
    vL8, vL4, vSix = WS0 + 1, WS1 + 1, WR + 1
    vL128 = 253
    vL16 = WW[0]
    rDist, rSbf, rUp, rDown, rRbf = A + 4, A + 6, A + 8, A + 10, A + 12
    RBK = [sA, nA, rem, rtot, vA6, vB6, vR0, vRT4, vCnt, 86, 87, 190, 191]
    WDK = [248, 249, WW[1], 217]
    assert Wa == 36 and T == PT
    vSent = vCnt
    sIO, sII, sAN, sMT, sTW, sDBG = 4, 8, 12, 16, 20, 24
    sFLG, sRW = 92, 96
    sMJ, sMK, sNEB, sB5, sO4, sO2 = range(80, 86)
    sY, sSo = 100, 101
    nto, nti, nta = (" nt" if OPT["ld_nt"] >> b & 1 else "" for b in range(3))
    NR = 13
    nrec = lambda q: 4 if q < 12 else 2
    vm = []
    def ld_pair(q):
        if q < 12:
            a(f"  buffer_load_dwordx4 {v(O+4*q,4)}, {v(vL16)}, {s(sIO,4)}, s{sO4} offen{nto}")
            a(f"  buffer_load_dwordx4 {v(I+4*q,4)}, {v(vL16)}, {s(sII,4)}, s{sO4} offen{nti}")
            a(f"  s_add_u32 s{sO4}, s{sO4}, 8192")
        else:
            a(f"  buffer_load_dwordx2 {v(O+48,2)}, {v(vL8)}, {s(sIO,4)}, s{sO4} offen{nto}")
            a(f"  buffer_load_dwordx2 {v(I+48,2)}, {v(vL8)}, {s(sII,4)}, s{sO4} offen{nti}")
        vm.extend([("o", q), ("p", q)])
    def ld_ang(q):
        if q < 12:
            a(f"  buffer_load_dwordx2 {v(A+2*q,2)}, {v(vL8)}, {s(sAN,4)}, s{sO2} offen{nta}")
            a(f"  s_add_u32 s{sO2}, s{sO2}, 4096")
        else: a(f"  buffer_load_dword {v(A+24)}, {v(vL4)}, {s(sAN,4)}, s{sO2} offen{nta}")
        vm.append(("a", q))
    def wait_for(x):
        a(f"  s_waitcnt vmcnt({len(vm) - 1 - vm.index(x)})")
    def poll(tag, load, cond, nap=4):
        a(f"  s_mov_b32 s{sY}, {OPT['spin']}")
        a.label(f"L_poll_{tag}")
        a(load)
        a("  s_waitcnt vmcnt(0)")
        a(cond)
        a(f"""
  s_cbranch_vccz L_polled_{tag}
  s_sleep {nap}
  s_sub_u32 s{sY}, s{sY}, 1
  s_cbranch_scc0 L_poll_{tag}""")
        a.label(f"L_polled_{tag}")

    a(".p2align 8")
    a.label(NAME + "_kernel")
    ncp = [0]
    def cpf(bit, q, first=False):
        if not OPT["cpf"] >> bit & 1: return False
        ncp[0] += 1
        a(f"  s_getpc_b64 s[{q}:{q+1}]")
        a.label(f"L_cp{ncp[0]}")
        a(f"""
  s_sub_u32 s{q}, s{q}, L_cp{ncp[0]}-{NAME}_kernel
  s_subb_u32 s{q+1}, s{q+1}, 0
  s_mov_b32 s{q+2}, L_code_end-{NAME}_kernel
  s_mov_b32 s{q+3}, 0x20000""")
        if first:
            a(f"""
  s_and_b32 s{sY}, s2, 0xf8
  s_lshl_b32 s{sY}, s{sY}, 4
  v_lshl_add_u32 v255, v0, 12, s{sY}""")
        a(f"  buffer_load_dword v254, v255, s[{q}:{q+3}], 0 offen")
        return True
    a(f"""
  s_cmp_ge_u32 s2, 256
  s_cbranch_scc1 L_end
  s_load_dwordx16 s[48:63], s[0:1], 0
  s_load_dwordx4 s[44:47], s[0:1], 96
  s_load_dwordx8 s[64:71], s[0:1], 64""")
    cpf(0, 28, True)
    a(f"""
  v_lshlrev_b32 {v(vL16)}, 4, v0
  s_min_u32 s{sY}, s2, {NCH-1}
  s_mul_i32 s{sX}, s{sY}, {CH*4}
  s_cmp_lt_u32 s2, {NCH}
  s_cselect_b32 s{sFl}, {CH*2}, 0
  s_lshl_b32 s{sIO+2}, s{sFl}, 1
  s_mov_b32 s{sII+2}, s{sIO+2}
  s_mov_b32 s{sIO+3}, 0x20000
  s_mov_b32 s{sII+3}, 0x20000
  s_mov_b32 s{sO4}, 0
  v_mov_b64 {v(PT,2)}, 0
  v_mov_b64 {v(PT+2,2)}, 0
  s_mov_b32 s{sO2}, 0
  ds_write_b128 {v(vL16)}, {v(PT,4)}
  v_lshrrev_b32 {v(T+8)}, 6, v0
  s_and_b32 s{sJ}, s2, 7
  s_lshl_b32 s{sJ}, s{sJ}, 5
  s_lshr_b32 s{sEb}, s2, 3
  s_add_u32 s{sJ}, s{sJ}, s{sEb}
  v_readfirstlane_b32 s{sW}, {v(T+8)}
  v_and_b32 {v(T+7)}, 63, v0
  v_lshlrev_b32 {v(T+6)}, 3, {v(T+7)}
  v_lshlrev_b32 {v(T+7)}, 2, {v(T+7)}
  s_mul_i32 s{sEb}, s{sJ}, {EB*2}
  s_mul_i32 s{sRb}, s{sW}, 400
  s_add_u32 s{sEb}, s{sEb}, s{sRb}
  s_waitcnt lgkmcnt(0)""")
    if OPT["stamp"] == 2: a("  v_mov_b32 v252, 0\n  s_nop 1")
    stamp(a, 252, 0); stamp(a, 252, 62, "s_memrealtime")
    a(f"""
  s_add_u32 s{sIO}, s52, s{sX}
  s_addc_u32 s{sIO+1}, s53, 0
  s_add_u32 s{sII}, s50, s{sX}
  s_addc_u32 s{sII+1}, s51, 0""")
    ld_pair(0)
    if OPT["wsoff"]: a(f"  s_add_u32 s{sWS}, s{sWS}, {OPT['wsoff'] << 20}\n  s_addc_u32 s{sWS+1}, s{sWS+1}, 0")
    srd(a, 28, 54, 55, None, E * 2)
    a(f"""
  buffer_load_dwordx2 {v(rDist,2)}, {v(T+6)}, s[28:31], s{sEb} offen
  global_load_dwordx2 {v(rSbf,2)}, {v(T+6)}, s[64:65]
  global_load_dwordx2 {v(rUp,2)}, {v(T+6)}, s[68:69]
  global_load_dwordx2 {v(rDown,2)}, {v(T+6)}, s[66:67]
  global_load_dword {v(rRbf)}, {v(T+7)}, s[62:63]""")
    vm.extend([("s", i) for i in range(5)])
    ld_pair(1)
    a("  s_barrier")
    LA = OPT["la"]
    for q in range(2, LA): ld_pair(q)
    a(f"  s_lshr_b32 s{sX}, s{sX}, 1")
    srd(a, sAN, 56, 57, f"s{sX}", f"s{sFl}")
    srd(a, sMT, 48, 49, f"s{sX}", f"s{sFl}")
    a(f"  s_mul_i32 s{sX}, s{sY}, {CH*6}\n  s_mul_i32 s{sFl}, s{sFl}, 3")
    srd(a, sRW, sWS, sWS+1, f"s{sX}", f"s{sFl}")
    srd(a, sTW, sWS, sWS+1, TABOFF, 256 * 8192)
    srd(a, sFLG, sWS, sWS+1, FLGOFF, OPT['nrep'] * 1024)
    srd(a, sDBG, 44, 45, None, 256)
    a(f"""
  s_lshl_b32 s{sX}, s2, 2
  v_lshl_add_u32 {v(vFlg)}, v0, 10, s{sX}
  s_cmp_lt_u32 s2, {NCH}
  s_cselect_b32 s{sX}, 0, 4
  v_mov_b32 {v(vDum)}, s{sX}
  buffer_store_dword {v(vDum)}, {v(vFlg)}, {s(sFLG,4)}, 0 offen sc1
  s_lshl_b32 s{sX}, s{sX}, 20
  v_or_b32 {v(vFlg)}, s{sX}, {v(vFlg)}
  s_load_dword s{sCin}, s[60:61], 0
  s_load_dwordx4 s[56:59], s[58:59], 0
  v_lshlrev_b32 {v(vL8)}, 3, v0
  v_lshlrev_b32 {v(vL4)}, 2, v0
  {'v_mov_b32 %s, %d' % (v(vL128), E//8) if OPT['rot'] == 2 else 'v_lshlrev_b32 %s, 7, v0' % v(vL128)}
  v_mov_b32 {v(vSix)}, 6
  v_mov_b32 {v(vTwo)}, 2
  s_mov_b32 s{sMJ}, {MJ}
  s_mov_b32 s{sMK}, {MK}
  s_mov_b32 s{sNEB}, {-EB & 0xffffffff}
  s_mov_b32 s{sB5}, {(-(E//8) & 0xffffffff) if OPT['rot'] else OPT['b5']}
  v_lshrrev_b32 {v(T)}, 6, v0
  v_and_b32 {v(T+2)}, 15, v0
  v_bfe_u32 {v(T+3)}, v0, 5, 1
  v_lshlrev_b32 {v(vHalf)}, 4, {v(T+3)}
  v_lshl_add_u32 {v(cb)}, {v(T)}, 5, {v(vHalf)}
  v_add_u32 {v(cb)}, {v(cb)}, {v(T+2)}
  v_lshlrev_b32 {v(vTab)}, 13, {v(cb)}
  v_and_b32 {v(T+1)}, 63, v0
  v_and_b32 {v(vSlot)}, 31, v0
  v_mov_b64 {v(vZ,2)}, 0
  v_mov_b32 {v(v264)}, {TS}
  v_mov_b32 {v(vCtlN)}, {CTL}
  s_lshl_b32 s{sX}, s{sW}, 10
  s_add_u32 s{sX}, s{sX}, {S_OFF}
  v_lshl_add_u32 {v(vSrd)}, {v(T+1)}, 4, s{sX}
  v_bfe_u32 {v(T+6)}, v0, 2, 2
  v_lshlrev_b32 {v(vSst)}, 8, {v(T+6)}
  v_lshl_add_u32 {v(vSst)}, {v(T+3)}, 7, {v(vSst)}
  v_bfe_u32 {v(T+6)}, v0, 4, 1
  v_lshl_add_u32 {v(vSst)}, {v(T+6)}, 3, {v(vSst)}
  v_and_b32 {v(T+6)}, 3, v0
  v_lshl_add_u32 {v(vSst)}, {v(T+6)}, 1, {v(vSst)}
  v_add_u32 {v(vSst)}, s{sX}, {v(vSst)}
  v_mov_b32 {v(vOne)}, 1
  v_mov_b32 {v(vOOB)}, 0x80000000
  v_mov_b32 {v(vMsk)}, 0x7ffffffc
  v_mul_u32_u24 {v(vI6)}, 6, {v(vSlot)}
  v_add_u32 {v(vI1)}, 1, {v(vSlot)}
  v_lshlrev_b32 {v(vI4)}, 2, {v(vI1)}
  v_mov_b32 {v(T+6)}, {CH}
  v_mul_u32_u24 {v(cb)}, {v(cb)}, {v(T+6)}
  s_mul_i32 s{sX}, s{sW}, {NT*TS}
  s_add_u32 s{sX}, s{sX}, {BUFSZ}
  v_lshl_add_u32 {v(vRd)}, {v(vSlot)}, 3, s{sX}""")
    sRing = 84
    a(f"  v_lshrrev_b32 {v(vHalf)}, 1, {v(vHalf)}")
    STR = OPT["str"] and not DMA
    PM2 = OPT["pm2"] and not DMA
    if STR:
        a(f"""
  s_lshl_b32 s{sY}, s{sW}, 10
  s_add_u32 s{sY}, s{sY}, {S_OFF}
  v_bfe_u32 {v(T+6)}, v0, 2, 1
  v_xor_b32 {v(T+6)}, {v(T+6)}, {v(T+3)}
  v_lshl_add_u32 {v(vSst)}, {v(vSlot)}, 5, s{sY}
  v_lshl_add_u32 {v(vSst)}, {v(T+6)}, 4, {v(vSst)}
  v_and_b32 {v(T+6)}, 16, v0
  v_lshl_add_u32 {v(vSrd)}, {v(T+1)}, 3, s{sY}
  v_xor_b32 {v(vSrd)}, {v(vSrd)}, {v(T+6)}""")
    if DMA:
        a(f"""
  v_bfe_u32 {v(vSlot)}, v0, 1, 5
  v_lshl_add_u32 {v(vRd)}, {v(vSlot)}, 3, s{sX}
  v_and_b32 {v(T+3)}, 1, v0
  v_lshlrev_b32 {v(vHalf)}, 3, {v(T+3)}
  s_mul_i32 s{sY}, s{sW}, {WSTR}
  s_add_u32 s{sY}, s{sY}, {S_OFF}
  v_lshl_add_u32 {v(vSst)}, {v(T+1)}, 4, s{sY}
  v_lshl_add_u32 {v(vSrd)}, {v(T+1)}, 3, s{sY}""")
    a(f"""
  v_min_u32 {v(T+6)}, {NT-1}, {v(T+1)}
  v_mad_u32_u24 {v(vCntA)}, {v(T+6)}, {v(v264)}, s{sX}
  v_sub_u32 {v(vCarIdx)}, 511, v0
  v_lshlrev_b32 {v(vCarOff)}, 3, {v(vCarIdx)}
  v_cmp_eq_u32 vcc, 1, {v(T+3)}
  s_waitcnt lgkmcnt(0)
  s_lshl_b32 s{sX}, s{sCin}, 16
  s_and_b32 s{sCin}, s{sCin}, 0xffff0000
  v_mov_b32 {v(vFreq)}, s{sX}
  v_mov_b32 {v(T+6)}, s{sCin}
  v_cndmask_b32 {v(vFreq)}, {v(vFreq)}, {v(T+6)}, vcc
  v_mul_f32 {v(vFreq)}, 0.15915494, {v(vFreq)}
  s_mov_b32 s{sIt}, -1
  s_mov_b32 s{sIns}, 0
  s_mov_b32 s{sCarW}, 0
  s_mov_b32 s{sCarR}, {CARLIST}
  s_mul_i32 s{sEb}, s{sJ}, {EB}
  s_mul_i32 s{sX}, s{sW}, 200
  s_add_u32 s{sFl}, s{sEb}, {EB}
  s_add_u32 s{sEb}, s{sEb}, s{sX}
  s_add_u32 s{sRb}, s{sEb}, 200
  s_min_u32 s{sRb}, s{sRb}, s{sFl}
  s_min_u32 s{sRb}, s{sRb}, {E}
  s_lshl_b32 s{sRb}, s{sRb}, 5
  s_lshl_b32 s{sEb}, s{sEb}, 5
  s_add_u32 s{sEb2}, s{sEb}, 4096""")

    if OPT["tlb"]:
        sh = OPT["tlb"]
        srd(a, 28, sWS, sWS+1, None, FLGOFF + 8192)
        a(f"  v_lshlrev_b32 v249, {sh}, v0\n  buffer_load_dword v248, v249, s[28:31], 0 offen")
        srd(a, 28, 48, 49, None, E * 32)
        a(f"  buffer_load_dword v248, v249, s[28:31], 0 offen")
        srd(a, 28, 70, 71, None, E * 32)
        a(f"  buffer_load_dword v248, v249, s[28:31], 0 offen")
        vm.extend([("tlb", i) for i in range(3)])
    a(f"""
  s_cmp_ge_u32 s2, {NCH}
  s_cbranch_scc1 L_nochunk1""")
    vm.append(("flg", 0))
    arrive = f"""
  s_and_b32 s{sY}, s2, 15
  s_lshl_b32 s{sY}, s{sY}, 4
  v_lshlrev_b32 {v(PT)}, 8, v0
  buffer_atomic_add {v(vOne)}, {v(PT)}, {s(sDBG,4)}, s{sY} offen"""
    def hist(idx):
        if OPT["b5"]:
            for x, i in enumerate(idx): a(f"  v_cmp_le_u32 {s(72+2*x,2)}, s{sB5}, {v(I+i)}")
        for x, i in enumerate(idx): a(f"  v_mul_hi_u32_u24 {v(PT+x)}, s{sMJ}, {v(O+i)}")
        if OPT["rot"] == 2:
            for x, i in enumerate(idx): a(f"  v_lshrrev_b32 {v(PT+4+x)}, 5, {v(PT+x)}")
            for x, i in enumerate(idx): a(f"  v_mad_i32_i24 {v(PT+4+x)}, {v(PT+4+x)}, s{sB5}, {v(I+i)}")
            for x, i in enumerate(idx): a(f"  v_cmp_gt_u32 {s(72+2*x,2)}, {v(vL128)}, {v(PT+4+x)}")
            for x, i in enumerate(idx): a(f"  v_ashrrev_i32 {v(PT+4+x)}, 31, {v(PT+4+x)}")
            for x, i in enumerate(idx): a(f"  v_and_b32 {v(PT+4+x)}, {v(vL128)}, {v(PT+4+x)}")
            for x, i in enumerate(idx): a(f"  v_add3_u32 {v(PT+4+x)}, {v(PT+4+x)}, s{sB5}, {v(I+i)}")
            for x, i in enumerate(idx): a(f"  v_mul_hi_u32_u24 {v(PT+4+x)}, s{sMK}, {v(PT+4+x)}")
            for x, i in enumerate(idx): a(f"  v_cndmask_b32 {v(PT+4+x)}, {v(PT+4+x)}, 5, {s(72+2*x,2)}")
        elif OPT["rot"]:
            for x, i in enumerate(idx): a(f"  v_lshrrev_b32 {v(PT+4+x)}, 5, {v(PT+x)}")
            for x, i in enumerate(idx): a(f"  v_mad_i32_i24 {v(PT+4+x)}, {v(PT+4+x)}, s{sB5}, {v(I+i)}")
            for x, i in enumerate(idx): a(f"  v_add_u32 {v(PT+8+x)}, {E - E//8}, {v(PT+4+x)}")
            for x, i in enumerate(idx): a(f"  v_add_u32 {v(PT+4+x)}, s{sB5}, {v(PT+4+x)}")
            for x, i in enumerate(idx): a(f"  v_min_u32 {v(PT+4+x)}, {v(PT+4+x)}, {v(PT+8+x)}")
            for x, i in enumerate(idx): a(f"  v_mul_hi_u32_u24 {v(PT+4+x)}, s{sMK}, {v(PT+4+x)}")
        else:
            for x, i in enumerate(idx): a(f"  v_mul_hi_u32_u24 {v(PT+4+x)}, s{sMK}, {v(I+i)}")
        if OPT["b5"]:
            for x, i in enumerate(idx): a(f"  v_cndmask_b32 {v(PT+4+x)}, {v(PT+4+x)}, 5, {s(72+2*x,2)}")
        for x, i in enumerate(idx): a(f"  v_mad_i32_i24 {v(PT+8+x)}, {v(PT+x)}, s{sNEB}, {v(O+i)}")
        for x, i in enumerate(idx): a(f"  v_lshl_add_u32 {v(O+i)}, {v(PT+4+x)}, 8, {v(PT+x)}")
        for x, i in enumerate(idx): a(f"  v_lshlrev_b32 {v(O+i)}, 2, {v(O+i)}")
        for x, i in enumerate(idx): a(f"  ds_add_rtn_u32 {v(R+i)}, {v(O+i)}, {v(vOne)}")
        for x, i in enumerate(idx): a(f"  v_and_b32 {v(PT+x)}, 7, {v(PT+8+x)}")
        for x, i in enumerate(idx): a(f"  v_lshl_or_b32 {v(I+i)}, {v(I+i)}, 3, {v(PT+x)}")
        for x, i in enumerate(idx): a(f"  v_lshrrev_b32 {v(PT+8+x)}, 3, {v(PT+8+x)}")
        for x, i in enumerate(idx): a(f"  v_lshl_or_b32 {v(I+i)}, {v(I+i)}, 1, {v(vOOB)}")
        for x, i in enumerate(idx): a(f"  v_lshl_or_b32 {v(I+i)}, {v(PT+8+x)}, 23, {v(I+i)}")
    def prep(piece):
        Z = R + 24
        aW, aD, aS, aR, aN, gq = Z, Z + 1, Z + 2, Z + 3, Z + 4, Z + 5
        CEN = Z + 6; H = Z + 8; Y = Z + 16
        if piece == 0:
            a(f"""
  s_lshl_b32 s{sX}, s{sW}, 12
  s_add_u32 s{sX}, s{sX}, 8192
  v_and_b32 {v(gq)}, 63, v0
  v_lshl_add_u32 {v(aW)}, {v(gq)}, 3, s{sX}
  v_lshl_add_u32 {v(gq)}, {v(gq)}, 2, s{sX}
  ds_write_b64 {v(aW)}, {v(rDist,2)}
  ds_write_b64 {v(aW)}, {v(rSbf,2)} offset:512
  ds_write_b64 {v(aW)}, {v(rUp,2)} offset:1024
  ds_write_b32 {v(gq)}, {v(rRbf)} offset:1536
  ds_write_b64 {v(aW)}, {v(rDown,2)} offset:2048
  v_and_b32 {v(aD)}, 15, v0
  v_bfe_u32 {v(gq)}, v0, 4, 2
  v_lshl_add_u32 {v(aD)}, {v(aD)}, 1, s{sX}
  v_lshl_add_u32 {v(aS)}, {v(gq)}, 7, {v(aD)}
  v_lshl_add_u32 {v(aR)}, {v(gq)}, 6, {v(aD)}
  v_bfe_u32 {v(aN)}, v0, 5, 1
  v_lshl_add_u32 {v(aN)}, {v(aN)}, 8, {v(aD)}
  ds_read_u16 {v(WS0)}, {v(aS)} offset:512
  ds_read_u16 {v(WS1)}, {v(aS)} offset:{512+32}
  ds_read_u16 {v(Y)}, {v(aS)} offset:{512+64}
  ds_read_u16 {v(Y+1)}, {v(aS)} offset:{512+96}
  ds_read_u16 {v(WUP)}, {v(aS)} offset:1024
  ds_read_u16 {v(Y+2)}, {v(aS)} offset:{1024+32}
  ds_read_u16 {v(WUP+1)}, {v(aS)} offset:{1024+64}
  ds_read_u16 {v(Y+3)}, {v(aS)} offset:{1024+96}
  ds_read_u16 {v(WR)}, {v(aR)} offset:1536
  ds_read_u16 {v(Y+4)}, {v(aR)} offset:{1536+32}""")
            for r in range(4 if DMA else 8): a(f"  ds_read_u16 {v(WDK[r//2] if r % 2 == 0 else H + r//2)}, {v(aS if DMA else aN)} offset:{2048 + r*32}")
            for p in range(13): a(f"  ds_read_u16 {v(RBK[p])}, {v(aD)} offset:{p*32}")
            return
        if piece == 1:
            a(f"""
  v_mov_b32 {v(CEN+1)}, s56
  v_cmp_eq_u32 vcc, 1, {v(gq)}
  v_mov_b32 {v(CEN)}, s57
  v_cmp_eq_u32 {s(sT,2)}, 2, {v(gq)}
  v_cndmask_b32 {v(CEN+1)}, {v(CEN+1)}, {v(CEN)}, vcc
  v_mov_b32 {v(CEN)}, s58
  v_cmp_eq_u32 vcc, 3, {v(gq)}
  v_cndmask_b32 {v(CEN+1)}, {v(CEN+1)}, {v(CEN)}, {s(sT,2)}
  v_mov_b32 {v(CEN)}, s59
  v_cndmask_b32 {v(CEN+1)}, {v(CEN+1)}, {v(CEN)}, vcc
  v_lshlrev_b32 {v(CEN)}, 16, {v(CEN+1)}
  v_and_b32 {v(CEN+1)}, 0xffff0000, {v(CEN+1)}
  s_mov_b32 s56, 0xc1200000
  s_mov_b32 s57, 0xc1200000
  s_mov_b32 s58, 0x3fb8aa3b
  s_mov_b32 s59, 0x3fb8aa3b
  s_waitcnt lgkmcnt(0)
  v_lshl_or_b32 {v(WS0)}, {v(Y)}, 16, {v(WS0)}
  v_lshl_or_b32 {v(WS1)}, {v(Y+1)}, 16, {v(WS1)}
  v_lshl_or_b32 {v(WUP)}, {v(Y+2)}, 16, {v(WUP)}
  v_lshl_or_b32 {v(WUP+1)}, {v(Y+3)}, 16, {v(WUP+1)}
  v_lshl_or_b32 {v(WR)}, {v(Y+4)}, 16, {v(WR)}""")
            for r in range(2 if DMA else 4): a(f"  v_lshl_or_b32 {v(WDK[r])}, {v(H+r)}, 16, {v(WDK[r])}")
        ps = ([0,1,2], [3,4,5,6,7], [8,9,10,11,12])[piece - 1]
        tt = {p: H + 2 * (p - ps[0]) for p in ps}
        def rnd():
            for p in ps: a(f"  v_cvt_pk_bf16_f32 {v(tt[p])}, 0, {v(tt[p])}\n  v_cvt_pk_bf16_f32 {v(tt[p]+1)}, 0, {v(tt[p]+1)}")
        for p in ps: a(f"  v_lshlrev_b32 {v(tt[p])}, 16, {v(RBK[p])}")
        for p in ps: a(f"  v_pk_add_f32 {v(tt[p],2)}, {v(tt[p],2)}, {v(CEN,2)} op_sel_hi:[0,1] neg_lo:[0,1] neg_hi:[0,1]")
        rnd()
        for p in ps: a(f"  v_pk_mul_f32 {v(tt[p],2)}, {v(tt[p],2)}, {v(tt[p],2)}")
        rnd()
        for p in ps: a(f"  v_pk_mul_f32 {v(tt[p],2)}, {v(tt[p],2)}, s[56:57]")
        rnd()
        for p in ps: a(f"  v_pk_mul_f32 {v(tt[p],2)}, {v(tt[p],2)}, s[58:59]")
        for p in ps: a(f"  v_exp_f32 {v(tt[p])}, {v(tt[p])}\n  v_exp_f32 {v(tt[p]+1)}, {v(tt[p]+1)}")
        for p in ps: a(f"  v_cvt_pk_bf16_f32 {v(RBK[p])}, {v(tt[p])}, {v(tt[p]+1)}")
    na = 0
    for q in range(NR):
        wait_for(("p", q))
        if q == 0: stamp(a, 252, 40)
        if q == LA:
            a(arrive); vm.append(("arr", 0))
        if OPT["mtouch"] == 3 and q == OPT["mq"]:
            a(f"  buffer_load_dword v244, {v(vL128)}, {s(sMT,4)}, 0 offen"); vm.append(("m", 0))
        if q + LA < NR: ld_pair(q + LA)
        else:
            for _ in range(2):
                if na < OPT["apre"]: ld_ang(na); na += 1
        hist(list(range(4*q, 4*q + nrec(q))))
        if 1 <= q <= 4: prep(q - 1)
    stamp(a, 252, 41)
    X = v(PT+4)
    PR = A + 4
    assert OPT["apre"] <= 2
    a(f"""
  v_and_b32 {v(PT+8)}, 0x3f0, {v(vL16)}
  v_lshrrev_b32 {v(PT+12)}, 1, v0
  v_and_b32 {v(PT+13)}, 1, v0
  v_lshlrev_b32 {v(PT+12)}, 2, {v(PT+12)}
  v_lshl_add_u32 {v(PT+13)}, {v(PT+13)}, 12, {v(PT+12)}
  s_waitcnt lgkmcnt(0)
  s_barrier
  s_cmp_ge_u32 s{sW}, {K}
  s_cbranch_scc1 L_bin_s2
  ds_read_b128 {v(PT,4)}, {v(vL16)}""")
    for r in range(K - 1): a(f"  ds_read_b128 {v(PR+4*r,4)}, {v(PT+8)} offset:{r*1024}")
    for r in range(K - 1): a(f"  s_cmp_gt_u32 s{sW}, {r}\n  s_cselect_b32 s{72+r}, 1, 0")
    a(f"""
  s_waitcnt lgkmcnt({K-1})
  v_add_u32 {v(PT+5)}, {v(PT)}, {v(PT+1)}
  v_add_u32 {v(PT+6)}, {v(PT+5)}, {v(PT+2)}
  v_add_u32 {v(PT+7)}, {v(PT+6)}, {v(PT+3)}""")
    for r in range(K - 1):
        a(f"""
  s_waitcnt lgkmcnt({K-2-r})
  v_add3_u32 {v(PR+4*r)}, {v(PR+4*r)}, {v(PR+4*r+1)}, {v(PR+4*r+2)}
  v_add_u32 {v(PR+4*r)}, {v(PR+4*r)}, {v(PR+4*r+3)}""")
        if r == 0: a(f"  v_mul_u32_u24 {v(PT+9)}, s72, {v(PR)}")
        else: a(f"  v_mad_u32_u24 {v(PT+9)}, {v(PR+4*r)}, s{72+r}, {v(PT+9)}")
    a(f"  v_lshl_or_b32 {X}, {v(PT+9)}, 16, {v(PT+7)}")
    for sh in (1, 2, 4, 8):
        a(f"  s_nop 1\n  v_add_u32_dpp {X}, {X}, {X} row_shr:{sh} row_mask:0xf bank_mask:0xf bound_ctrl:0")
    a(f"  s_nop 1\n  v_add_u32_dpp {X}, {X}, {X} row_bcast:15 row_mask:0xa bank_mask:0xf")
    a(f"  s_nop 1\n  v_add_u32_dpp {X}, {X}, {X} row_bcast:31 row_mask:0xc bank_mask:0xf")
    a(f"""
  s_nop 0
  v_readlane_b32 s{sY}, {X}, 63
  v_sub_u32 {X}, {X}, {v(PT+7)}
  s_lshr_b32 s{sY}, s{sY}, 16
  v_add_u32 {X}, s{sY}, {X}
  v_add_u32 {v(PT+7)}, {X}, {v(PT+6)}
  v_add_u32 {v(PT+6)}, {X}, {v(PT+5)}
  v_add_u32 {v(PT+5)}, {X}, {v(PT)}
  v_lshl_or_b32 {v(PT)}, {X}, 16, {v(PT)}
  v_lshl_or_b32 {v(PT+1)}, {v(PT+5)}, 16, {v(PT+1)}
  v_lshl_or_b32 {v(PT+2)}, {v(PT+6)}, 16, {v(PT+2)}
  v_lshl_or_b32 {v(PT+3)}, {v(PT+7)}, 16, {v(PT+3)}
  ds_write_b128 {v(vL16)}, {v(PT,4)}
  s_waitcnt lgkmcnt(0)""")
    a.label("L_bin_s2")
    a(f"  s_lshl_b32 s{sY}, s2, 13\n  s_barrier")
    stamp(a, 252, 42)
    TB = PT + 8
    for k in range(4): a(f"  ds_read_b32 {v(TB+k)}, {v(PT+13)} offset:{k*1024}")
    NB = OPT["nb"]
    vDa, vDv, vRa = 245, 246, 247
    lda = f"  buffer_load_dword {v(vDv)}, {v(vDa)}, {s(sDBG,4)}, 0 offen sc1"
    cda = f"  v_cmp_gt_u32 vcc, 16, {v(vDv)}"
    ada = f"""
  s_lshl_b32 s{sX}, s{sW}, 16
  v_and_b32 {v(vDa)}, 15, v0
  v_lshl_add_u32 {v(vDa)}, {v(vDa)}, 4, s{sX}"""
    NRD = 15
    for i in range(10): a(f"  ds_read_u16 {v(O+i)}, {v(O+i)} offset:2")
    a("  s_waitcnt lgkmcnt(10)")
    for k in range(4): a(f"  v_alignbit_b32 {v(TB+k)}, {v(TB+k)}, {v(TB+k)}, 16")
    a(f"  buffer_store_dwordx4 {v(TB,4)}, {v(vL16)}, {s(sTW,4)}, s{sY} offen sc1")
    vm.append(("tab", 0))
    for i in range(10, NRD): a(f"  ds_read_u16 {v(O+i)}, {v(O+i)} offset:2")
    for _ in range(OPT["a0"]):
        if na < NR: ld_ang(na); na += 1
    a(f"  s_mov_b32 s{sB5}, {NB*8192 + 4}\n  s_mov_b32 s{sSo}, 0")
    a(ada)
    a(f"  v_add_u32 {v(vRa)}, {P1_REC}, {v(vL16)}")
    for g in range(10):
        idx = list(range(5*g, 5*g+5))
        if g == OPT["tg"]:
            wait_for(("tab", 0))
            a("  s_barrier")
            a(lda); vm.append(("lda", 0))
            a(f"  buffer_store_dword {v(vOne)}, {v(vFlg)}, {s(sFLG,4)}, 0 offen sc1"); vm.append(("flg", 1))
        for _ in range(OPT["ag"]):
            if na < NR: ld_ang(na); na += 1
        a(f"  s_waitcnt lgkmcnt({10 if OPT['wall'] else min(10, 45 - 5*g)})")
        for i in idx:
            if i + NRD < 50: a(f"  ds_read_u16 {v(O+i+NRD)}, {v(O+i+NRD)} offset:2")
        for i in idx: a(f"  v_add_u32 {v(O+i)}, {v(O+i)}, {v(R+i)}")
        for i in idx: a(f"  v_mad_u32_u24 {v(O+i)}, {v(O+i)}, {v(vSix)}, {v(vTwo)}")
        for x, i in enumerate(idx): a(f"  v_and_b32 {v(PT+x)}, 2, {v(O+i)}")
        for i in idx: a(f"  v_and_b32 {v(R+i)}, -4, {v(O+i)}")
        if OPT["wall"]:
            for i in idx: a(f"  ds_write_b32 {v(R+i)}, {v(I+i)} offset:{P1_REC}")
        for x, i in enumerate(idx): a(f"  v_lshl_add_u32 {v(O+i)}, {v(PT+x)}, 1, {v(O+i)}")
    assert na == NR
    if OPT["mtouch"] == 1:
        a(f"  buffer_load_dword v244, {v(vL128)}, {s(sMT,4)}, 0 offen"); vm.append(("m", 0))
    def put(q, cmp):
        idx = list(range(4*q, 4*q + nrec(q)))
        for x, i in enumerate(idx): a(f"  v_cmp_{cmp}_u32 {s(72+2*x,2)}, s{sB5}, {v(R+i)}")
        for x, i in enumerate(idx):
            op = "ds_write_b16_d16_hi" if (i & 1) else "ds_write_b16"
            a(f"""
  s_mov_b64 exec, {s(72+2*x,2)}
  {"" if OPT["wall"] else "ds_write_b32 %s, %s offset:%d" % (v(R+i), v(I+i), P1_REC)}
  {op} {v(O+i)}, {v(A + i//2)} offset:{P1_REC-2}""")
        a("  s_mov_b64 exec, -1")
    for q in range(NR):
        wait_for(("a", q))
        for r in range(nrec(q) // 2): a(f"  v_and_b32 {v(A+2*q+r)}, 0x7fff7fff, {v(A+2*q+r)}")
        if q == OPT["tq"] and OPT["tg"] < 0:
            assert q >= OPT["apre"]
            a("  s_barrier")
            a(lda); vm.append(("lda", 0))
            a(f"  buffer_store_dword {v(vOne)}, {v(vFlg)}, {s(sFLG,4)}, 0 offen sc1"); vm.append(("flg", 1))
            if OPT["mtouch"] == 2:
                a(f"  buffer_load_dword v244, {v(vL128)}, {s(sMT,4)}, 0 offen"); vm.append(("m", 0))
        put(q, "gt")
    a(f"  ds_read_u16 {v(vWo)}, {v(vZ)} offset:2050")
    a("  s_waitcnt lgkmcnt(0)\n  s_barrier")
    stamp(a, 252, 43)
    a(f"  v_readfirstlane_b32 s{sO2}, {v(vWo)}")
    free = [PT, PT + 4, PT + 8, O, I, R, O + 4, I + 4, R + 4]
    def erd(r): a(f"  ds_read_b128 {v(free[r],4)}, {v(vRa)} offset:{r*8192}")
    def est(r):
        a(f"  buffer_store_dwordx4 {v(free[r],4)}, {v(vL16)}, {s(sRW,4)}, s{sSo} offen sc1\n  s_add_u32 s{sSo}, s{sSo}, 8192")
        vm.append(("st", r))
    assert NB <= 8
    fad = f"""
  v_and_b32 {v(RK[0])}, 63, v0
  v_lshlrev_b32 {v(RK[0])}, 4, {v(RK[0])}
  s_and_b32 s{sCin}, s2, {OPT['nrep']-1}
  s_lshl_b32 s{sCin}, s{sCin}, 10"""
    if OPT["wall"]:
        free = [I + 4 * r for r in range(8)]
        for r in range(NB): erd(r)
        a(fad)
        a(f"  s_mov_b32 s{sO4}, 0\n  s_cmp_lg_u32 s{sW}, 0\n  s_cbranch_scc1 L_nofl")
        wait_for(("lda", 0))
        a(cda)
        a(f"  s_cbranch_vccnz L_nofl\n  s_mov_b32 s{sO4}, 1")
        a(f"  buffer_load_dwordx4 {v(PT,4)}, {v(RK[0])}, {s(sFLG,4)}, s{sCin} offen sc1")
        a.label("L_nofl")
        for r in range(3):
            a(f"  s_waitcnt lgkmcnt({NB - 1 - r})")
            est(r)
        a("  s_waitcnt lgkmcnt(0)")
        put(0, "le"); put(1, "le"); put(2, "le")
    else:
        for r in range(3): erd(r)
        for r in range(3):
            a(f"  s_waitcnt lgkmcnt({2 - r})")
            est(r)
        put(0, "le"); put(1, "le")
        for r in range(3, NB): erd(r)
        put(2, "le")
        a("  s_waitcnt lgkmcnt(0)")
    todo = list(range(3, NB))
    fad = f"""
  v_and_b32 {v(RK[0])}, 63, v0
  v_lshlrev_b32 {v(RK[0])}, 4, {v(RK[0])}
  s_and_b32 s{sCin}, s2, {OPT['nrep']-1}
  s_lshl_b32 s{sCin}, s{sCin}, 10"""
    for q in range(3, NR):
        for _ in range(OPT["ep"]):
            if todo: est(todo.pop(0))
        if q == OPT["sq"]:
            assert not todo
            a(f"""
  v_mov_b32 {v(vDum)}, 3
  s_waitcnt vmcnt(0)
  s_barrier
  s_cmp_gt_u32 s{sO2}, {NB*8192 // 6 - 2}
  s_cbranch_scc1 L_noearly
  buffer_store_dword {v(vDum)}, {v(vFlg)}, {s(sFLG,4)}, 0 offen sc1""")
            a.label("L_noearly")
        if q == OPT["fq"] and not OPT["wall"]:
            assert q >= 3
            a(fad)
            a(f"  s_mov_b32 s{sO4}, 0\n  s_cmp_lg_u32 s{sW}, 0\n  s_cbranch_scc1 L_nofl")
            wait_for(("lda", 0))
            a(cda)
            a(f"  s_cbranch_vccnz L_nofl\n  s_mov_b32 s{sO4}, 1")
            a(f"  buffer_load_dwordx4 {v(R+8,4)}, {v(RK[0])}, {s(sFLG,4)}, s{sCin} offen sc1")
            a.label("L_nofl")
        put(q, "le")
    assert not todo
    stamp(a, 252, 44)
    FP = Db
    def flag_load(dst, off): return f"  buffer_load_dwordx4 {v(dst,4)}, {v(off)}, {s(sFLG,4)}, s{sCin if dst == FP else sX} offen sc1"
    def flag_cond(dst, stage): return f"""
  v_min3_u32 {v(dst)}, {v(dst)}, {v(dst+1)}, {v(dst+2)}
  v_min_u32 {v(dst)}, {v(dst)}, {v(dst+3)}
  v_cmp_gt_u32 vcc, {stage}, {v(dst)}"""
    if OPT["wall"]: a(f"  s_cmp_lg_u32 s{sW}, 0\n  s_cbranch_scc1 L_polled_t\n  s_waitcnt vmcnt({NB})")
    else:
        if OPT["sq"] < 0: a("  s_waitcnt vmcnt(0)")
        else: assert OPT["fq"] < OPT["sq"]
        stamp(a, 252, 48)
        a(f"  s_cmp_lg_u32 s{sW}, 0\n  s_cbranch_scc1 L_polled_t")
    a(f"  s_cmp_eq_u32 s{sO4}, 0\n  s_cbranch_scc1 L_wait_a")
    a(flag_cond(PT if OPT["wall"] else R+8, 1))
    a("  s_cbranch_vccz L_polled_t\n  s_branch L_polled_a")
    a.label("L_nochunk1")
    if 40 <= OPT["cut"] <= 44: a("  s_endpgm")
    a("  s_waitcnt vmcnt(0)")
    a(arrive)
    for piece in range(4): prep(piece)
    a(ada)
    a(fad)
    a(f"  s_mov_b32 s{sO2}, 0\n  s_cmp_lg_u32 s{sW}, 0\n  s_cbranch_scc1 L_polled_t")
    if OPT["ncn"]:
        poll("a0", lda, cda, 64)
        poll("t0", flag_load(FP, RK[0]), flag_cond(FP, 1), OPT["ncn"])
        a(f"  s_sleep {OPT['ncn']}\n  s_branch L_polled_t")
    a.label("L_wait_a")
    poll("a", lda, cda, 64)
    poll("t", flag_load(FP, RK[0]), flag_cond(FP, 1), OPT["napt"])
    stamp(a, 252, 49)
    a(f"""
  s_lshl_b32 s{sX}, s{sJ}, 5
  s_add_u32 s{sX}, s{sX}, {TABOFF}""")
    srd(a, sTAB, sWS, sWS+1, f"s{sX}", (NCH - 1) * 8192 + 32)

    def state_update():
        a(f"""
  v_sub_u32 {v(rem)}, {v(rem)}, {v(rtot)}
  v_lshrrev_b32 {v(T)}, 16, {v(Q)}
  v_and_b32 {v(T+1)}, 0xffff, {v(Q)}
  v_min_u32 {v(vR0)}, 32, {v(nA)}
  v_cmp_ge_u32 vcc, 32, {v(nA)}
  v_sub_u32 {v(T+2)}, 32, {v(vR0)}
  v_add_u32 {v(vB6)}, {v(cb)}, {v(T+1)}
  v_min_u32 {v(T+2)}, {v(T)}, {v(T+2)}
  v_mul_u32_u24 {v(vB6)}, 6, {v(vB6)}
  v_add_u32 {v(rtot)}, {v(vR0)}, {v(T+2)}
  v_mad_i32_i24 {v(vB6)}, {v(vR0)}, -6, {v(vB6)}
  v_lshlrev_b32 {v(vRT4)}, 2, {v(rtot)}
  v_add_u32 {v(vA6)}, {v(cb)}, {v(sA)}
  v_mul_u32_u24 {v(vA6)}, 6, {v(vA6)}""")
    def state_update2():
        a(f"""
  v_add_u32 {v(sA)}, 32, {v(sA)}
  v_subrev_u32 {v(nA)}, 32, {v(nA)}
  v_add_u32 {v(T+1)}, {v(T+1)}, {v(T+2)}
  v_sub_u32 {v(T)}, {v(T)}, {v(T+2)}
  v_cndmask_b32 {v(sA)}, {v(sA)}, {v(T+1)}, vcc
  v_cndmask_b32 {v(nA)}, {v(nA)}, {v(T)}, vcc""")
        for i in range(K - 1):
            a(f"  v_cndmask_b32 {v(Q+i)}, {v(Q+i)}, {v(Q+i+1)}, vcc")
        a(f"  v_cndmask_b32 {v(Q+K-1)}, {v(Q+K-1)}, {v(vZ)}, vcc")
    def set_flag(tag):
        a(f"""
  v_cmp_lt_u32 vcc, 0, {v(rem)}
  s_cbranch_vccz L_noflag_{tag}
  ds_write_b32 {v(vCtlN)}, {v(vOne)} offset:4""")
        a.label(f"L_noflag_{tag}")

    bc = lambda u: f"row_newbcast:{u} row_mask:0xf bank_mask:0xf"
    def rec_load(u, t0):
        a(f"""
  v_sub_co_u32_dpp {v(t0)}, vcc, {v(vR0)}, {v(vI1)} {bc(u)}
  v_add_u32_dpp {v(t0)}, {v(vA6)}, {v(vI6)} {bc(u)}
  v_add_u32_dpp {v(t0+1)}, {v(vB6)}, {v(vI6)} {bc(u)}
  v_cndmask_b32 {v(t0)}, {v(t0)}, {v(t0+1)}, vcc
  v_sub_u32_dpp {v(t0+1)}, {v(vRT4)}, {v(vI4)} {bc(u)}
  v_bfi_b32 {v(t0)}, {v(vMsk)}, {v(t0)}, {v(t0+1)}
  buffer_load_dwordx2 {v(REC[u],2)}, {v(t0)}, {s(sREC,4)}, 0 offen{RPOL}""")

    SDWA = "dst_sel:WORD_1 dst_unused:UNUSED_PAD src0_sel:WORD_1 src1_sel:WORD_0"
    def ins1(u, thr, p):
        ta, rk, mk, w = TA[p], RK[p], sMk[p], WW[p]
        a(f"""
  v_cmp_gt_i32 vcc, 0, {v(REC[u])}
  v_min_i32 {v(w)}, {v(REC[u])}, {v(REC[u]+1)}
  v_cmp_gt_i32 {s(mk,2)}, {thr}, {v(w)}
  v_bfe_u32 {v(ta)}, {v(w)}, 23, 8
  v_cndmask_b32_sdwa {v(REC[u])}, {v(REC[u])}, {v(REC[u]+1)}, vcc {SDWA}
  v_mad_u32_u24 {v(ta)}, {v(ta)}, {v(v264)}, s{sIns}
  s_mov_b64 exec, {s(mk,2)}
  ds_add_rtn_u32 {v(rk)}, {v(ta)}, {v(vOne)}
  s_mov_b64 exec, -1""")

    def ins2(u, tag, p):
        ta, rk, mk, w = TA[p], RK[p], sMk[p], WW[p]
        lab = f"{tag}_{u}"
        a(f"""
  s_mov_b64 exec, {s(mk,2)}
  v_cmp_lt_u32 vcc, 31, {v(rk)}
  v_lshl_add_u32 {v(ta)}, {v(rk)}, 3, {v(ta)}
  s_cbranch_vccnz L_rare_{lab}""")
        a.label(f"L_back_{lab}")
        a(f"""
  ds_write2_b32 {v(ta)}, {v(REC[u])}, {v(w)} offset0:2 offset1:3
  s_mov_b64 exec, -1""")
        rare.append((lab, u, p))

    a(f"""
  v_add_u32 {v(PT+2)}, {P1_REC}, {v(vL16)}
  v_add_u32 {v(PT+3)}, {P1_REC + 8*8192}, {v(vL16)}
  v_add_u32 {v(PT+4)}, {P1_REC + 16*8192}, {v(vL16)}
  s_mov_b32 s{sSo}, {NB*8192}
  v_mov_b32 {v(vDum)}, 3
  s_waitcnt lgkmcnt(0)
  s_barrier""")
    stamp(a, 252, 45)
    NS = 19
    sdt = lambda r: (20 + r) % 25 if r < 8 else r + 1
    SD = lambda r: ACC[sdt(r)]
    gv = []
    def gwait(x, extra=""): a(f"  s_waitcnt vmcnt({len(gv) - 1 - gv.index(x)}){extra}")
    def rd(r): a(f"  ds_read_b128 {v(SD(r),4)}, {v(PT+2 + r//8)} offset:{(r%8)*8192}")
    def st(r, lst=None):
        a(f"  buffer_store_dwordx4 {v(SD(r),4)}, {v(vL16)}, {s(sRW,4)}, s{sSo} offen sc1\n  s_add_u32 s{sSo}, s{sSo}, 8192")
        if lst is not None: lst.append(("st", r))
    zero_acc = lambda t: a(f"  v_mov_b64 {v(ACC[t],2)}, 0\n  v_mov_b64 {v(ACC[t]+2,2)}, 0")
    flag3 = f"  buffer_store_dword {v(vDum)}, {v(vFlg)}, {s(sFLG,4)}, 0 offen sc1"
    N1, N3 = OPT["n1"], OPT["n3"]
    if not OPT["wall"] and OPT["sq"] < 0:
        a(f"  s_cmp_gt_u32 s{sO2}, {NB*8192 // 6 - 2}\n  s_cbranch_scc1 L_noearly")
        a(flag3)
        a.label("L_noearly")
    a(f"""
  buffer_load_dwordx4 {v(Q,4)}, {v(vTab)}, {s(sTAB,4)}, 0 offen sc1
  buffer_load_dwordx2 {v(Q+4,2)}, {v(vTab)}, {s(sTAB,4)}, 0 offen offset:16 sc1""")
    gv.extend([("tab", 0), ("tab", 1)])
    if cpf(1, 24): gv.append(("c", 1))
    for r in range(NB, NS): rd(r)
    nxt = NB + N1
    for r in range(NB, nxt):
        a(f"  s_waitcnt lgkmcnt({NS - 1 - r})")
        st(r, gv)
    a(f"""
  s_waitcnt lgkmcnt(0)
  s_cmp_gt_u32 s{sO2}, {NB*8192 // 6 - 2}
  s_cbranch_scc1 L_allfirst""")
    if OPT["wall"]: a(f"  s_waitcnt vmcnt({len(gv)})")
    a("  s_barrier")
    if OPT["wall"]: a(flag3)
    a.label("L_allfirst_back")
    stamp(a, 252, 46)
    pend = list(range(nxt, NS))
    keep = OPT["n3"]
    slot = [0]
    def st1(n=1):
        on = OPT["smask"] >> slot[0] & 1 or n > 1
        slot[0] += 1
        for _ in range(n):
            if on and len(pend) > keep: st(pend.pop(0), gv)
    st1()
    RBR, WD = Wa, Wa + 14
    if DMA:
        for p in range(14): a(f"  v_mov_b32 {v(RBR+p)}, {v(RBK[p]) if p < 13 else 0}")
        a(f"  v_mov_b32 {v(WD)}, {v(WDK[0])}\n  v_mov_b32 {v(WD+1)}, {v(WDK[1])}")
        st1()
    else:
        a(f"""
  s_mul_i32 s{sX}, s{sW}, 3584
  s_add_u32 s{sX}, s{sX}, {RB_OFF}
  v_and_b32 {v(T+8)}, 63, v0
  v_lshl_add_u32 {v(T+9)}, {v(T+8)}, 3, s{sX}
  v_bfe_u32 {v(T+8)}, v0, 4, 1
  v_cmp_eq_u32 vcc, 1, {v(T+8)}""")
        for p in range(14): a(f"  ds_write_b32 {v(T+9)}, {v(RBK[p] if p < 13 else vZ)} offset:{(p//2)*512 + (p%2)*4}")
        st1()
        for r in range(4):
            a(f"  v_cndmask_b32 {v(Wa+r)}, {v(WDK[r])}, {v(vZ)}, vcc")
            a(f"  v_cndmask_b32 {v(Wb+r)}, {v(vZ)}, {v(WDK[r])}, vcc")
    a(f"""
  v_mov_b32 {v(WS0+1)}, 0
  v_mov_b32 {v(WS1+1)}, 0
  v_mov_b32 {v(WR+1)}, 0
  v_mov_b32 {v(sA)}, 0
  v_mov_b32 {v(nA)}, 0
  v_mov_b32 {v(rtot)}, 0""")
    ZR = range(Wa + 16, Wa + 32, 2) if DMA else range(RING[0], RING[0] + 20, 2)
    for r in ZR: a(f"  v_mov_b64 {v(r,2)}, 0")
    st1()
    a(f"""
  s_mul_i32 s{sFl}, s{sJ}, {2*CARLIST}
  s_add_u32 s{sFl}, s{sFl}, {CAROFF}""")
    srd(a, sREC, sWS, sWS+1, None, NCH * CH * 6)
    a(f"  s_mov_b32 s{sM}, s48\n  s_or_b32 s{sM+1}, s49, 0x20000\n  s_mov_b32 s{sM+2}, {E*16}\n  s_mov_b32 s{sM+3}, 0x20000")
    srd(a, sCAR, sWS, sWS+1, f"s{sFl}", 2 * CARLIST)
    srd(a, sOUT, 70, 71, None, f"s{sRb}")
    srd(a, sMW, 48, 49, None, f"s{sRb}")
    for t in list(range(3, 9)) + [sdt(r) for r in range(NB)]: zero_acc(t)
    st1()
    a(f"""
  v_mov_b32 {v(vSent)}, {SENT}
  v_mov_b32 {v(T)}, 0
  v_mov_b32 {v(T+1)}, {v(vSent)}
  v_mov_b32 {v(T+2)}, 0
  v_mov_b32 {v(T+3)}, {v(vSent)}
  v_add_u32 {v(T+6)}, {7*8192}, {v(vL16)}""")
    for r in range(13):
        a(f"  ds_write_b128 {v(vL16 if r < 7 else T+6)}, {v(T,4)} offset:{(r%7)*8192}")
        if r % 5 == 4: st1()
    a(f"""
  v_and_b32 {v(T+6)}, 15, v0
  v_lshl_add_u32 {v(T+6)}, {v(T+6)}, 2, {v(vCtlN)}
  ds_write_b32 {v(T+6)}, {v(vZ)}
  ds_write_b128 {v(vSst if (DMA or STR) else vSrd)}, {v(ACC[3],4)}""")
    if DMA:
        for q in range(D): a(f"  ds_write_b128 {v(vSst)}, {v(ACC[3],4)} offset:{1024*(q+1)}")
    for q in range(D): a(f"  v_mov_b32 {v(SA[q])}, {v(vSst)}\n  v_mov_b32 {v(CC[q])}, 0")
    gwait(("tab", 1))
    a(f"  v_lshrrev_b32 {v(rem)}, 16, {v(Q)}")
    for i in range(1, K):
        a(f"  v_lshrrev_b32 {v(T+4)}, 16, {v(Q+i)}\n  v_add_u32 {v(rem)}, {v(rem)}, {v(T+4)}")
    state_update()
    for u in range(0, 16, 2):
        a(f"""
  v_add_u32_dpp {v(REC[u])}, {v(vB6)}, {v(vI6)} {bc(u)}
  v_sub_u32_dpp {v(REC[u]+1)}, {v(vRT4)}, {v(vI4)} {bc(u)}
  v_add_u32_dpp {v(REC[u+1])}, {v(vB6)}, {v(vI6)} {bc(u+1)}
  v_sub_u32_dpp {v(REC[u+1]+1)}, {v(vRT4)}, {v(vI4)} {bc(u+1)}
  v_bfi_b32 {v(REC[u])}, {v(vMsk)}, {v(REC[u])}, {v(REC[u]+1)}
  v_bfi_b32 {v(REC[u+1])}, {v(vMsk)}, {v(REC[u+1])}, {v(REC[u+1]+1)}""")
        if u == OPT["eb"]:
            a(f"  s_cmp_lg_u32 s{sW}, 0\n  s_cbranch_scc1 L_noeb")
            a(flag_load(FP, RK[0]))
            a.label("L_noeb")
            ebm = len(gv)
        if u % 4 == 2: st1()
    state_update2()
    state_update()
    state_update2()
    st1()
    st1(NS)
    a("  s_nop 0")
    nx3 = NS - len(pend)
    for r in range(NB, nx3): zero_acc(sdt(r))
    stamp(a, 252, 47)
    if OPT["pf0"] == 3:
        share = (OPT["wmain"] // 4 + 31) // 32
        a(f"""
  s_cmp_eq_u32 s{sW}, 0
  s_cbranch_scc1 L_nopf
  s_lshr_b32 s{sX}, s2, 3
  s_mul_i32 s{sX}, s{sX}, {share*128}
  v_lshlrev_b32 {v(TA[1])}, 7, v0
  buffer_load_dword {v(WW[1])}, {v(TA[1])}, {s(sM,4)}, s{sX} offen""")
        a.label("L_nopf")
    a(f"  s_cmp_lg_u32 s{sW}, 0\n  s_cbranch_scc1 L_polled_b")
    if OPT["eb"] >= 0:
        a(f"  s_waitcnt vmcnt({len(gv) - ebm})")
        a(flag_cond(FP, 2))
        a("  s_cbranch_vccz L_polled_b")
    poll("b", flag_load(FP, RK[0]), flag_cond(FP, 2), OPT["nap"])
    a("  s_waitcnt lgkmcnt(0)")
    a("  s_barrier")
    stamp(a, 252, 1)
    def pro_ld(us):
        for u in us:
            a(f"  buffer_load_dwordx2 {v(REC[u],2)}, {v(REC[u])}, {s(sREC,4)}, 0 offen{RPOL}")
            gv.append(("rec", u))
    NL0 = OPT["nl0"]
    pro_ld(range(NL0))
    NG = NS
    stamp(a, 252, 12)
    set_flag("pro")
    stamp(a, 252, 13)
    PTA = (lambda u: (list(range(Db, Sf + 4)) + [TA[0], TA[1], RK[1], WW[1]])[u]) if DMA else (lambda u: Da + u)
    PRK = (lambda u: Wa + 16 + u) if DMA else (lambda u: RING[0] + u)
    PMK = lambda u: sPM + 2 * (u % 8)
    slowg = []
    def pro_ins1(g):
        us = range(4*g, 4*g+4)
        gwait(("rec", 4*g+3))
        for u in us:
            a(f"""
  v_cmp_gt_i32 vcc, 0, {v(REC[u])}
  v_min_i32 {v(PTA(u))}, {v(REC[u])}, {v(REC[u]+1)}
  v_cmp_gt_i32 {s(PMK(u),2)}, 0, {v(PTA(u))}
  v_cndmask_b32_sdwa {v(REC[u])}, {v(REC[u])}, {v(REC[u]+1)}, vcc {SDWA}
  v_mov_b32 {v(REC[u]+1)}, {v(PTA(u))}""")
        for u in us: a(f"  v_bfe_u32 {v(PTA(u))}, {v(PTA(u))}, 23, 8")
        for u in us: a(f"  v_mul_u32_u24 {v(PTA(u))}, {v(PTA(u))}, {v(v264)}")
        for u in us: a(f"  s_mov_b64 exec, {s(PMK(u),2)}\n  ds_add_rtn_u32 {v(PRK(u))}, {v(PTA(u))}, {v(vOne)}")
        a("  s_mov_b64 exec, -1")
    def pro_ins2(g):
        us = list(range(4*g, 4*g+4))
        a(f"""
  v_max3_u32 {v(T)}, {v(PRK(us[0]))}, {v(PRK(us[1]))}, {v(PRK(us[2]))}
  v_max_u32 {v(T)}, {v(T)}, {v(PRK(us[3]))}
  v_cmp_lt_u32 vcc, 31, {v(T)}
  s_cbranch_vccz L_pfast_{g}
  v_cmp_lt_u32 vcc, 63, {v(T)}
  s_cbranch_vccnz L_pslow_{g}""")
        a.label(f"L_pback_{g}")
        for x, u in enumerate(us): a(f"  v_subrev_u32 {v(T+4+x)}, 31, {v(PRK(u))}")
        for x, u in enumerate(us): a(f"  s_mov_b64 exec, {s(PMK(u),2)}\n  ds_max_i32 {v(PTA(u))}, {v(T+4+x)} offset:{BUFSZ}")
        a(f"  s_mov_b64 exec, -1\n  ds_write_b32 {v(vCtlN)}, {v(vOne)} offset:4")
        for x, u in enumerate(us): a(f"  v_lshrrev_b32 {v(T+4+x)}, 5, {v(PRK(u))}")
        for x, u in enumerate(us): a(f"  v_mad_u32_u24 {v(PTA(u))}, {v(T+4+x)}, s{sThr}, {v(PTA(u))}")
        a.label(f"L_pfast_{g}")
        for u in us: a(f"  v_lshl_add_u32 {v(PTA(u))}, {v(PRK(u))}, 3, {v(PTA(u))}")
        for u in us: a(f"  s_mov_b64 exec, {s(PMK(u),2)}\n  ds_write_b64 {v(PTA(u))}, {v(REC[u],2)} offset:8")
        a("  s_mov_b64 exec, -1")
        slowg.append(g)
    a(f"  s_mov_b32 s{sThr}, {BUFSZ - 256}")
    left = list(range(nx3, NS))
    per = (len(left) + 3) // 4
    def some():
        for _ in range(per):
            if left: st(left.pop(0), gv)
    pro_ins1(0)
    stamp(a, 252, 3)
    pro_ld(range(NL0, 16))
    def pf():
        share = (OPT["wmain"] // 4 + 31) // 32
        a(f"""
  s_lshr_b32 s{sX}, s2, 3
  s_mul_i32 s{sX}, s{sX}, {share*128}
  v_lshlrev_b32 {v(TA[1])}, 7, v0
  buffer_load_dword {v(WW[1])}, {v(TA[1])}, {s(sM,4)}, s{sX} offen""")
        gv.append(("pf", 0))
    if OPT["pf0"] == 1:
        while left: st(left.pop(0), gv)
        pf()
    pro_ins1(1)
    some()
    a("  s_waitcnt lgkmcnt(0)")
    pro_ins2(0); some(); pro_ins1(2); pro_ins2(1); some(); pro_ins1(3); some()
    if OPT["pf0"] == 2: pf()
    stamp(a, 252, 8)
    a("  s_nop 0")
    for r in range(nx3, NS): zero_acc(sdt(r))
    a("  s_waitcnt lgkmcnt(0)")
    pro_ins2(2); pro_ins2(3)
    stamp(a, 252, 11)
    a(f"  v_cmp_ne_u32 vcc, 0, {v(vR0)}\n  s_or_b32 s85, vcc_lo, vcc_hi")
    if DMA:
        a(f"  s_mul_i32 s{sRing}, s{sW}, {WSTR}\n  s_add_u32 s{sRing}, s{sRing}, {S_OFF + 1024}")
        for r in range(P, Sf + 4, 2): a(f"  v_mov_b64 {v(r,2)}, 0")
    a("  s_branch L_turn2")
    def signal_all(tag, n):
        a(f"""
  v_mov_b32 {v(T+4)}, {CTL + 32}
  s_waitcnt vmcnt({n})
  s_mov_b64 exec, 1
  ds_add_rtn_u32 {v(T+5)}, {v(T+4)}, {v(vOne)}
  s_mov_b64 exec, -1
  v_and_b32 {v(T+6)}, 63, v0
  s_lshl_b32 s{sX}, s2, 2
  v_lshl_add_u32 {v(T+6)}, {v(T+6)}, 10, s{sX}
  v_mov_b32 {v(T+7)}, 4
  s_waitcnt lgkmcnt(0)
  v_readfirstlane_b32 s{sX}, {v(T+5)}
  s_cmp_lg_u32 s{sX}, 7
  s_cbranch_scc1 L_nosig_{tag}
  buffer_store_dword {v(T+7)}, {v(T+6)}, {s(sFLG,4)}, 0 offen sc1""")
        a.label(f"L_nosig_{tag}")

    INS0 = OPT["ins0"]
    def sread():
        if DMA or STR: tr(Sf, vSrd, 0)
        else: a(f"  ds_read_b128 {v(Sf,4)}, {v(vSrd)}")
    def cstage_head(q):
        a(f"  ds_write_b16 {v(SA[q])}, {v(CC[q])}")
        sread()
        a(f"  ds_write_b16 {v(SA[q])}, {v(vZ)}")
    def cstage_m1(q):
        a(f"""
  v_mfma_f32_16x16x32_bf16 {v(Da,4)}, {v(RING[q],4)}, {v(Wa,4)}, 0
  v_mfma_f32_16x16x32_bf16 {v(Db,4)}, {v(RING[q],4)}, {v(Wb,4)}, 0""")
    def cstage_cvt():
        a(f"""
  v_cvt_pk_bf16_f32 {v(P)}, {v(Da)}, {v(Da+1)}
  v_cvt_pk_bf16_f32 {v(P+1)}, {v(Da+2)}, {v(Da+3)}
  v_cvt_pk_bf16_f32 {v(P+2)}, {v(Db)}, {v(Db+1)}
  v_cvt_pk_bf16_f32 {v(P+3)}, {v(Db+2)}, {v(Db+3)}""")
    def cstage_m2(tc):
        a(f"  v_mfma_f32_16x16x32_bf16 {v(ACC[tc],4)}, {v(P,4)}, {v(Sf,4)}, {v(ACC[tc],4)}")
    def tr(dst, addr, off):
        a(f"  ds_read_b64_tr_b16 {v(dst,2)}, {v(addr)} offset:{off}\n  ds_read_b64_tr_b16 {v(dst+2,2)}, {v(addr)} offset:{off+512}")
    def fetch(q):
        a(f"  ds_write_b16 {v(SA[q])}, {v(CC[q])}")
        tr(Sf, vSrd, 0)
        a(f"  ds_write_b16 {v(SA[q])}, {v(vZ)}")
        tr(P, vSrd, 1024 * (q + 1))
    nds = [0]
    def step_top(t, reset=True):
        a(f"  ; ---- step {t}")
        nds[0] = len(a.lines)
        cstage_head(t % D)
        if t < NT - 1:
            a(f"  ds_read_b64 {v(RP[(t+1)&1],2)}, {v(vRd)} offset:{(t+1)*TS+8}")
        if reset and t < NT:
            a(f"  ds_write_b32 {v(vRd)}, {v(vSent)} offset:{t*TS+12}")
    assert not DMA
    def step_a(t, n):
        q = t % D
        rp = RP[t & 1]
        off, af, e = T + 1, T + 2, T + 3
        assert all(l.strip().startswith("ds_") for l in a.lines[nds[0]:])
        a(f"  s_waitcnt vmcnt({n}) lgkmcnt({len(a.lines) - nds[0]})")
        cstage_m1(q)
        mark = len(a.lines)
        if t < NT:
            a(f"""
  v_and_or_b32 {v(off)}, {v(rp+1)}, {v(vSent)}, {v(vHalf)}
  v_mul_f32 {v(af)}, {v(rp)}, {v(vFreq)}""")
            if not STR: a(f"  v_and_b32 {v(e)}, 14, {v(rp+1)}")
            a(f"""
  buffer_load_dwordx4 {v(RING[q],4)}, {v(off)}, {s(sM,4)}, 0 idxen
  v_cos_f32 {v(af)}, {v(af)}""")
            if STR: a(f"  v_and_or_b32 {v(SA[q])}, {v(rp+1)}, 14, {v(vSst)}")
            else: a(f"  v_lshl_add_u32 {v(SA[q])}, {v(e)}, 3, {v(vSst)}")
            a(f"  v_cvt_pk_bf16_f32 {v(CC[q])}, {v(af)}, {v(af)}")
        return mark
    def step_b(t, mark, reset=True):
        n = 0
        for l in a.lines[mark:]:
            if l.endswith(":") or l.strip().startswith(";"): continue
            n += 1
            if "s_cbranch" in l: break
        if n < 7: a(f"  s_nop {6 - n}")
        lg = (2 if t < NT-1 else 1) + (1 if reset and t < NT else 0)
        cstage_cvt()
        a(f"  s_waitcnt lgkmcnt({lg})\n  s_nop 0")
        cstage_m2((t - D) % NT)

    LD0 = INS0 - OPT["lead"]
    assert LD0 >= 0
    sTwo = 85
    order = []
    for t in range(NT):
        order.append(("W", t))
        order.append(("g", t))
        if t == 0: order.append(("rec", 16))
        if 0 <= t - LD0 < 16: order.append(("rec", t - LD0))
        order.append(("V", t))
    isop = lambda x: x[0] not in "WV"
    assert all(x[0] == "g" for x in order[order.index(("g", NT - D)):] if isop(x))
    def younger(target, at):
        n = len(order); i = order.index(target); cnt = 0
        j = (i + 1) % n
        while j != at:
            if isop(order[j]): cnt += 1
            j = (j + 1) % n
        return cnt
    RBH = 1
    def prio(tag, mask, t):
        cur = mask >> t & 1; prev = (mask >> (t - 1) & 1) if t else 0
        if cur and not prev:
            a(f"  s_cmp_lt_u32 s{sW}, 4\n  s_cbranch_scc1 L_{tag}prio{t}\n  s_setprio 1")
            a.label(f"L_{tag}prio{t}")
        if prev and not cur: a("  s_setprio 0")
    assert not OPT["lprio"] >> (NT - 1)
    def step0_extra():
        a(f"""
  v_cmp_gt_u32 vcc, s{sCin}, {v(vCarIdx)}
  s_add_u32 s{sX}, s{sIt}, 2
  s_and_b32 s{sX}, s{sX}, 3
  s_lshl_b32 s{sX}, s{sX}, 3
  s_add_u32 s{sX}, s{sX}, {CTL}
  v_mov_b32 {v(T+1)}, s{sX}
  ds_write_b64 {v(T+1)}, {v(vZ,2)}
  ds_write_b32 {v(vCntA)}, {v(vZ)}
  v_cndmask_b32 {v(T)}, {v(vOOB)}, {v(vCarOff)}, vcc
  buffer_load_dwordx2 {v(REC[16],2)}, {v(T)}, {s(sCAR,4)}, s{sCarR} offen sc1""")
    two = f"  v_cmp_ne_u32 vcc, 0, {v(vR0)}\n  s_or_b32 s{sTwo}, vcc_lo, vcc_hi"
    FC = Q_FC = REC[0]
    FO = REC[2]
    a(".p2align 6")
    a.label("L_loop")
    for t in range(NT):
        step_top(t)
        mk = step_a(t, younger(("g", (t - D) % NT), order.index(("W", t))))
        if t == 0: step0_extra()
        prio("lp", OPT["lprio"], t)
        ul = t - LD0
        if 0 <= ul < 16:
            a(f"""
  s_cmp_lg_u32 s{sTwo}, 0
  v_add_u32_dpp {v(T+4)}, {v(vB6)}, {v(vI6)} {bc(ul)}
  v_sub_u32_dpp {v(T+5)}, {v(vRT4)}, {v(vI4)} {bc(ul)}
  s_cbranch_scc1 L_two_{ul}""")
            a.label(f"L_two_back_{ul}")
            a(f"""
  v_bfi_b32 {v(T+4)}, {v(vMsk)}, {v(T+4)}, {v(T+5)}
  buffer_load_dwordx2 {v(REC[ul],2)}, {v(T+4)}, {s(sREC,4)}, 0 offen{RPOL}""")
        if ul == 16:
            a(f"""
  s_cmp_lg_u32 s{sThr}, 0
  s_cbranch_scc1 L_nostate
  s_cmp_eq_u32 s{sIt}, 0
  s_cbranch_scc1 L_borrow""")
            a.label("L_borrow_back")
            state_update(); state_update2()
            a(two)
            a.label("L_nostate")
            set_flag("lp")
        u1 = t - INS0; u2 = u1 - 1
        if 0 <= u2 < 17: ins2(u2, "lp", u2 & 1)
        if 0 <= u1 < 17:
            a(f"  s_waitcnt vmcnt({younger(('rec', u1), order.index(('V', t)))})")
            ins1(u1, f"s{sThr}" if u1 < 16 else "0", u1 & 1)
        if t == 2:
            a(f"  s_cmp_eq_u32 s{sIt}, 0\n  s_cbranch_scc1 L_sig")
            a.label("L_nosig_b0")
            nsig = sum(1 for x in order[:order.index(("V", t))] if isop(x))
        if t == INS0 + 18:
            a(f"  s_cmp_gt_u32 s{sCin}, 512\n  s_cbranch_scc1 L_slow_lp")
            a.label("L_slow_back_lp")
            a(f"  s_or_b32 s{sX}, s{sIt}, s{sW}\n  s_cbranch_scc0 L_ldc")
            a.label("L_ldc_back")
        step_b(t, mk)
    a(f"""
  s_waitcnt vmcnt({NT - (INS0 + 18)})
  s_or_b32 s{sX}, s{sIt}, s{sW}
  s_cbranch_scc0 L_chkc""")
    a.label("L_turn2")
    a(f"""
  v_mov_b32 {v(T)}, {v(vCtlN)}
  s_add_u32 s{sIt}, s{sIt}, 1
  s_add_u32 s{sX}, s{sIt}, 1
  s_and_b32 s{sX}, s{sX}, 3
  s_lshl_b32 s{sX}, s{sX}, 3
  s_add_u32 s{sX}, s{sX}, {CTL}
  v_mov_b32 {v(vCtlN)}, s{sX}
  s_sub_u32 s{sX}, s{sIns}, {BUFSZ}
  s_add_u32 s{sX}, s{sX}, s{sIns}
  v_add_u32 {v(vRd)}, s{sX}, {v(vRd)}
  v_add_u32 {v(vCntA)}, s{sX}, {v(vCntA)}
  s_sub_u32 s{sIns}, {BUFSZ}, s{sIns}
  s_mov_b32 s{sCarR}, s{sCarW}
  s_sub_u32 s{sCarW}, {CARLIST}, s{sCarW}
  s_waitcnt lgkmcnt(0)""")
    if OPT["stamp"] == 1:
        a(f"  s_lshl_b32 s90, s{sIt}, 1\n  s_add_u32 s90, s90, 16\n  s_min_u32 m0, s90, 36")
        stamp(a, 252, "m0")
        a("  s_add_u32 m0, m0, 1")
    a("  s_barrier")
    stamp(a, 252, "m0")
    a(f"""
  ds_read_b64 {v(T+2,2)}, {v(T)}
  ds_read_b64 {v(RP[0],2)}, {v(vRd)} offset:8
  s_waitcnt lgkmcnt(1)
  v_readfirstlane_b32 s{sCin}, {v(T+2)}
  v_readfirstlane_b32 s{sFl}, {v(T+3)}
  s_cmp_gt_u32 s{sCin}, 512
  s_cselect_b32 s{sThr}, 0x80000000, 0
  s_min_u32 s{sCin}, s{sCin}, {CARCAP}
  s_cmp_gt_u32 s{sCin}, 32
  s_cselect_b32 s{sFl}, 1, s{sFl}
  s_cmp_lt_u32 s{sIt}, {OPT['itcap']}
  s_cselect_b32 s{sFl}, s{sFl}, 0
  s_cmp_eq_u32 s{sIt}, {OPT["cut"] - 100 if OPT["cut"] >= 100 else -1}
  s_cbranch_scc1 L_end
  s_cmp_lg_u32 s{sFl}, 0
  s_cbranch_scc1 L_loop
  s_cmp_eq_u32 s{sIt}, 0
  s_cbranch_scc1 L_it0""")
    a.label("L_nosig_z")

    RBv = RBR if DMA else Q
    assert vRT4 - Q + 1 >= 14
    R0 = REC[0]
    G0, G1, RR, U = R0, R0 + 4, R0 + 8, R0 + 12
    XS0, XS1, XR, AG = R0 + 16, R0 + 18, R0 + 20, R0 + 22
    MS = [R0 + 24 + 2 * i for i in range(5)]
    vMoff, vLin, vOw, vOr = vCarOff, vI6, vI1, vI4
    a(f"""
  v_and_b32 {v(T)}, 63, v0
  s_mul_i32 s{sX}, s{sW}, 3584
  s_add_u32 s{sX}, s{sX}, {RB_OFF}
  v_lshl_add_u32 {v(T+1)}, {v(T)}, 3, s{sX}
  v_lshlrev_b32 {v(vLin)}, 4, {v(T)}
  v_bfe_u32 {v(T+2)}, v0, 4, 2
  v_and_b32 {v(T+3)}, 15, v0
  v_lshlrev_b32 {v(T+2)}, 3, {v(T+2)}
  v_lshl_add_u32 {v(vMoff)}, {v(T+3)}, 5, {v(T+2)}
  s_mul_i32 s{sX}, s{sW}, 6400
  s_add_u32 s{sX}, s{sX}, s{sIns}
  s_add_u32 s{sX}, s{sX}, 15
  s_and_b32 s{sX}, s{sX}, -16
  v_add_u32 {v(vOw)}, s{sX}, {v(vMoff)}
  v_add_u32 {v(vOr)}, s{sX}, {v(vLin)}
  v_cmp_gt_u32 {s(sT,2)}, 8, {v(T+3)}""")
    for h in range(0 if DMA else 7):
        a(f"  ds_read_b64 {v(RBv+2*h,2)}, {v(T+1)} offset:{h*512}")
    if DMA: a(f"  s_mov_b32 s{sCnt[0]}, s{sX}")
    def s0(tl):
        x = ACC[tl]
        a(f"""
  v_cvt_pk_bf16_f32 {v(Da)}, {v(x)}, {v(x+1)}
  v_cvt_pk_bf16_f32 {v(Da+1)}, {v(x+2)}, {v(x+3)}
  s_nop 1
  v_mfma_f32_16x16x16_bf16 {v(x,4)}, {v(WD,2)}, {v(Da,2)}, 0""")
    fo = [("g", t - NT) for t in range(NT - D, NT)]
    def fwait(x): return len(fo) - 1 - fo.index(x)
    def s1(p):
        b = RBv + (p & ~1)
        w0, w1 = (WS0, WS1) if p % 2 == 0 else (XS0, XS1)
        a(f"""
  v_mfma_f32_16x16x16_bf16 {v(G0,4)}, {v(w0,2)}, {v(b,2)}, 0
  v_mfma_f32_16x16x16_bf16 {v(G1,4)}, {v(w1,2)}, {v(b,2)}, 0""")
    def s2(p):
        t0 = ACC[2*p]; t1 = ACC[2*p+1] if 2*p+1 < NT else ACC[2*p]
        for r in range(4): a(f"  v_mul_f32 {v(U+r)}, {v(t0+r)}, {v(G0+r)}")
        for r in range(4): a(f"  v_mul_f32_dpp {v(U+r)}, {v(t1+r)}, {v(G0+r)} row_ror:8 row_mask:0xf bank_mask:0xc")
        for r in range(4): a(f"  v_fmac_f32_dpp {v(U+r)}, {v(t0+r)}, {v(G1+r)} row_ror:8 row_mask:0xf bank_mask:0x3")
        for r in range(4): a(f"  v_fmac_f32_dpp {v(U+r)}, {v(t1+r)}, {v(G1+r)} quad_perm:[0,1,2,3] row_mask:0xf bank_mask:0xc")
        a(f"""
  v_cvt_pk_bf16_f32 {v(AG)}, {v(U)}, {v(U+1)}
  v_cvt_pk_bf16_f32 {v(AG+1)}, {v(U+2)}, {v(U+3)}
  v_mfma_f32_16x16x16_bf16 {v(RR,4)}, {v(WR if p % 2 == 0 else XR,2)}, {v(RBv + (p & ~1),2)}, 0""")
        if p + 1 < 13: s1(p + 1)
        else: a("  s_nop 0")
        a(f"  v_mfma_f32_16x16x16_bf16 {v(U,4)}, {v(WUP,2)}, {v(AG,2)}, 0")
    def s3(p):
        x = ACC[2*p]; m_ = MS[p % 5]
        a(f"""
  s_waitcnt vmcnt({fwait(("m", p))})
  v_lshlrev_b32 {v(x)}, 16, {v(m_)}
  v_and_b32 {v(x+1)}, 0xffff0000, {v(m_)}
  v_lshlrev_b32 {v(x+2)}, 16, {v(m_+1)}
  v_and_b32 {v(x+3)}, 0xffff0000, {v(m_+1)}""")
        if p == 12: a("  s_nop 2")
        a(f"""
  v_pk_fma_f32 {v(x,2)}, {v(U,2)}, {v(RR,2)}, {v(x,2)}
  v_pk_fma_f32 {v(x+2,2)}, {v(U+2,2)}, {v(RR+2,2)}, {v(x+2,2)}
  v_cvt_pk_bf16_f32 {v(x)}, {v(x)}, {v(x+1)}
  v_cvt_pk_bf16_f32 {v(x+1)}, {v(x+2)}, {v(x+3)}""")
        if p == 12: a(f"  s_mov_b64 exec, {s(sT,2)}")
        a(f"  ds_write_b64 {v(vOw)}, {v(x,2)} offset:{p*512}")
        if p == 12: a(f"  s_mov_b64 exec, -1")
        if p % 2 == 1 or p == 12:
            r = p // 2
            a(f"  ds_read_b128 {v(ACC[4*r+1 if r < 6 else 23],4)}, {v(vOr)} offset:{r*1024}")
    def s4(r):
        a(f"  buffer_store_dwordx4 {v(ACC[4*r+1 if r < 6 else 23],4)}, {v(vLin)}, {s(sOUT,4)}, s{sEb if r < 4 else sEb2} offen offset:{(r%4)*1024}{POL[OPT['opol']]}")
        fo.append(("st", r))
    xw = {}
    for t in range(NT + D + 2):
        def x3():
            a(f"  s_cmp_lg_u32 s{sCin}, 0\n  s_cbranch_scc1 L_x3")
            a.label("L_x3_back")
            xw[3] = len(fo) - xw[2]
        if t == 6 and not DMA: x3()
        if t < NT + D: step_top(t, False)
        else: a(f"  ; ---- tail {t}\n  s_waitcnt lgkmcnt(0)")
        if t < NT + D:
            mk = step_a(t, fwait(("g", t - D)))
            if t < NT: fo.append(("g", t))
        prio("fp", OPT["fprio"], t)
        if t in (0, 3):
            n = 1 if t == 0 else 2
            a(f"  s_cmp_lg_u32 s{sCin}, 0\n  s_cbranch_scc1 L_x{n}")
            a.label(f"L_x{n}_back")
            xw[n] = len(fo)
        if t == NT: stamp(a, 252, 4)
        if t == NT + D: stamp(a, 252, 5)
        if t == 1:
            a(f"""
  v_mov_b32 {v(XS0)}, 0
  v_mov_b32 {v(XS0+1)}, {v(WS0)}
  v_mov_b32 {v(XS1)}, 0
  v_mov_b32 {v(XS1+1)}, {v(WS1)}
  v_mov_b32 {v(XR)}, 0
  v_mov_b32 {v(XR+1)}, {v(WR)}""")
        if t == 5: s1(0)
        ts2 = {2*p+7 if p < 12 else 30: p for p in range(13)}
        if t - 2 in ts2 and (ts2[t-2] % 2 == 1): s4(ts2[t-2] // 2)
        if t - 1 in ts2: s3(ts2[t-1])
        if t in ts2: s2(ts2[t])
        if t % 2 == 1 and t // 2 < 13:
            p = t // 2
            a(f"  buffer_load_dwordx2 {v(MS[p%5],2)}, {v(vMoff)}, {s(sMW,4)}, s{sEb if p < 8 else sEb2} offen offset:{(p%8)*512}{POL[OPT['mpol']]}")
            fo.append(("m", p))
        if t < NT + D: step_b(t, mk, False)
        if t == NT + D - 1: a("  s_nop 3")
    a("  s_waitcnt lgkmcnt(0)")
    s4(6)
    stamp(a, 252, 6)
    if OPT["stamp"]: a("  s_waitcnt vmcnt(0)")
    stamp(a, 252, 7); stamp(a, 252, 63, "s_memrealtime")
    if OPT["stamp"] == 1: a(f"  v_writelane_b32 v252, s{sIt}, 61")
    stamp_out(a, 252, sWS, 8, STAMPOFF + 0x200000, 253)
    a.label("L_end")
    a("  s_endpgm")

    sSm, sS2 = sMk
    a.label("L_x1")
    a(f"""
  v_cmp_gt_u32 vcc, s{sCin}, {v(vSlot)}
  v_lshlrev_b32 {v(T)}, 3, {v(vSlot)}
  s_nop 0
  v_cndmask_b32 {v(T)}, {v(vOOB)}, {v(T)}, vcc
  buffer_load_dwordx2 {v(AG,2)}, {v(T)}, {s(sCAR,4)}, s{sCarR} offen sc1
  s_branch L_x1_back""")
    a.label("L_x2")
    a(f"""
  s_mul_i32 s{sX}, s{sW}, {NT}
  s_waitcnt vmcnt({xw[2] - xw[1]})
  v_min_i32 {v(U)}, {v(AG)}, {v(AG+1)}
  v_cmp_gt_i32 vcc, 0, {v(AG)}
  v_bfe_u32 {v(U+2)}, {v(U)}, 23, 8
  v_subrev_u32 {v(U+2)}, s{sX}, {v(U+2)}
  v_cndmask_b32_sdwa {v(U+1)}, {v(AG)}, {v(AG+1)}, vcc dst_sel:WORD_1 dst_unused:UNUSED_PAD src0_sel:WORD_1 src1_sel:WORD_0
  v_cmp_gt_i32 {s(sS2,2)}, 0, {v(U)}
  v_cmp_gt_u32 {s(sSm,2)}, {NT}, {v(U+2)}
  s_and_b64 vcc, {s(sSm,2)}, {s(sS2,2)}
  s_cselect_b32 s{sCin}, s{sCin}, 0
  s_cbranch_scc0 L_x2_back
  v_and_or_b32 {v(T)}, {v(U)}, {v(vSent)}, {v(vHalf)}
  v_mul_f32 {v(U+1)}, {v(U+1)}, {v(vFreq)}
  s_mov_b32 m0, s{sCnt[0]}
  v_cndmask_b32 {v(T)}, {v(vSent)}, {v(T)}, vcc
  buffer_load_dwordx4 {(v(T) + ", " + s(sM,4) + ", 0 idxen lds") if DMA else (v(RR,4) + ", " + v(T) + ", " + s(sM,4) + ", 0 idxen")}
  v_cndmask_b32 {v(U+2)}, {v(vOOB)}, {v(U+2)}, vcc
  v_cos_f32 {v(U+1)}, {v(U+1)}
  v_and_b32 {v(U+3)}, 14, {v(U)}
  v_lshl_add_u32 {v(U+3)}, {v(U+3)}, {0 if (DMA or STR) else 3}, {v(vSst)}
  v_cvt_pk_bf16_f32 {v(U+1)}, {v(U+1)}, {v(U+1)}
  s_branch L_x2_back""")
    a.label("L_x3")
    a(f"  s_waitcnt vmcnt({xw[3]})")
    if DMA:
        a(f"  v_lshrrev_b32 {v(T)}, 1, {v(vLin)}\n  v_add_u32 {v(T)}, s{sCnt[0]}, {v(T)}")
        tr(P, T, 0)
    else:
        a(f"""
  v_mfma_f32_16x16x32_bf16 {v(Da,4)}, {v(RR,4)}, {v(Wa,4)}, 0
  v_mfma_f32_16x16x32_bf16 {v(Db,4)}, {v(RR,4)}, {v(Wb,4)}, 0
  s_nop 6""")
        cstage_cvt()
    for t in range(NT):
        a(f"""
  v_cmp_eq_u32 vcc, {t}, {v(U+2)}
  s_cbranch_vccz L_x3_{t}
  s_mov_b64 exec, vcc
  ds_write_b16 {v(U+3)}, {v(U+1)}
  s_mov_b64 exec, -1""")
        sread()
        a(f"""
  s_mov_b64 exec, vcc
  ds_write_b16 {v(U+3)}, {v(vZ)}
  s_mov_b64 exec, -1
  s_waitcnt lgkmcnt(0)""")
        cstage_m2(t)
        a.label(f"L_x3_{t}")
    a("  s_branch L_x3_back")
    a.label("L_it0")
    signal_all("z0", 0)
    a("  s_branch L_nosig_z")
    a.label("L_sig")
    signal_all("b1", nsig)
    a("  s_branch L_nosig_b0")
    rep = f"  s_and_b32 s{sX}, s2, {OPT['nrep']-1}\n  s_lshl_b32 s{sX}, s{sX}, 10"
    a.label("L_ldc")
    a(f"  v_lshlrev_b32 {v(FO)}, 4, v0")
    a(rep)
    a(flag_load(FC, FO))
    a("  s_branch L_ldc_back")
    a.label("L_chkc")
    a(f"  s_waitcnt vmcnt({NT - 1 - (INS0 + 18)})")
    a(flag_cond(FC, 4))
    a("  s_cbranch_vccz L_turn2")
    a(rep)
    poll("c", flag_load(FC, FO), flag_cond(FC, 4), OPT["nap"])
    a("  s_branch L_turn2")
    a.label("L_borrow")
    QL = Q + OPT['keff'] - 3
    a(f"""
  v_lshrrev_b32 {v(T)}, 16, {v(QL)}
  v_cmp_eq_u32 vcc, 0, {v(nA)}
  v_subrev_u32 {v(T+1)}, {OPT['lim']}, {v(T)}
  v_and_b32 {v(T+2)}, 0xffff, {v(QL)}
  v_max_i32 {v(T+1)}, 0, {v(T+1)}
  v_cndmask_b32 {v(T+1)}, {v(vZ)}, {v(T+1)}, vcc
  v_add_u32 {v(T+2)}, {v(T+2)}, {v(T)}
  v_sub_u32 {v(T+2)}, {v(T+2)}, {v(T+1)}
  v_cndmask_b32 {v(sA)}, {v(sA)}, {v(T+2)}, vcc
  v_add_u32 {v(nA)}, {v(nA)}, {v(T+1)}
  v_lshlrev_b32 {v(T+1)}, 16, {v(T+1)}
  v_sub_u32 {v(QL)}, {v(QL)}, {v(T+1)}
  s_branch L_borrow_back""")
    for u in range(16):
        a.label(f"L_two_{u}")
        a(f"""
  v_sub_co_u32_dpp {v(T+6)}, vcc, {v(vR0)}, {v(vI1)} {bc(u)}
  v_add_u32_dpp {v(T+6)}, {v(vA6)}, {v(vI6)} {bc(u)}
  s_nop 0
  v_cndmask_b32 {v(T+4)}, {v(T+6)}, {v(T+4)}, vcc
  s_branch L_two_back_{u}""")
    a.label("L_allfirst")
    a(f"  s_mov_b32 s{sY}, s{sSo}")
    for r in range(NB + N1, NS): st(r)
    a(f"  s_mov_b32 s{sSo}, s{sY}\n  s_waitcnt vmcnt(0)\n  s_barrier\n{flag3}\n  s_branch L_allfirst_back")
    for g in slowg:
        a.label(f"L_pslow_{g}")
        for u in range(4*g, 4*g+4):
            a(f"""
  s_mov_b64 exec, {s(PMK(u),2)}
  v_cmp_lt_u32 vcc, 63, {v(PRK(u))}
  s_cbranch_vccz L_pskip_{u}
  s_andn2_b64 {s(PMK(u),2)}, {s(PMK(u),2)}, vcc
  s_mov_b64 exec, vcc
  ds_add_rtn_u32 {v(T+1)}, {v(vCtlN)}, {v(vOne)}
  s_waitcnt lgkmcnt(0)
  v_lshlrev_b32 {v(T+1)}, 3, {v(T+1)}
  buffer_store_dwordx2 {v(REC[u],2)}, {v(T+1)}, {s(sCAR,4)}, s{sCarW} offen
  s_waitcnt vmcnt(0)""")
            a.label(f"L_pskip_{u}")
        a(f"  s_mov_b64 exec, -1\n  s_branch L_pback_{g}")
    for tag in ("lp",):
        a.label(f"L_slow_{tag}")
        a(f"  s_mov_b32 s{sX}, 512")
        a.label(f"L_slow_loop_{tag}")
        a(f"""
  v_add_u32 {v(T+1)}, s{sX}, {v(vCarIdx)}
  v_cmp_gt_u32 vcc, s{sCin}, {v(T+1)}
  v_lshlrev_b32 {v(T+1)}, 3, {v(T+1)}
  s_nop 0
  v_cndmask_b32 {v(T+1)}, {v(vOOB)}, {v(T+1)}, vcc
  buffer_load_dwordx2 {v(REC[16],2)}, {v(T+1)}, {s(sCAR,4)}, s{sCarR} offen sc1
  s_waitcnt vmcnt(0)""")
        ins1(16, "0", 0)
        a("  s_waitcnt lgkmcnt(0)")
        ins2(16, "sl" + tag, 0)
        a(f"""
  s_add_u32 s{sX}, s{sX}, 512
  s_cmp_lt_u32 s{sX}, s{sCin}
  s_cbranch_scc1 L_slow_loop_{tag}
  s_waitcnt vmcnt(0)
  s_branch L_slow_back_{tag}""")
    for lab, u, p in rare:
        a.label(f"L_rare_{lab}")
        a(f"""
  s_mov_b64 exec, vcc
  ds_add_rtn_u32 {v(RK[p])}, {v(vCtlN)}, {v(vOne)}
  v_mov_b32 {v(REC[u]+1)}, {v(WW[p])}
  s_waitcnt lgkmcnt(0)
  v_lshlrev_b32 {v(RK[p])}, 3, {v(RK[p])}
  buffer_store_dwordx2 {v(REC[u],2)}, {v(RK[p])}, {s(sCAR,4)}, s{sCarW} offen
  s_andn2_b64 exec, {s(sMk[p],2)}, vcc
  s_branch L_back_{lab}""")
    a.label("L_code_end")
    return NV

def kd(name, nv, ns):
    nv4 = (nv + 3) // 4 * 4
    return f""".amdhsa_kernel {name}
  .amdhsa_next_free_vgpr {nv}
  .amdhsa_next_free_sgpr {ns}
  .amdhsa_accum_offset {nv4}
  .amdhsa_group_segment_fixed_size 0
  .amdhsa_kernarg_size 112
  .amdhsa_user_sgpr_count 2
  .amdhsa_user_sgpr_kernarg_segment_ptr 1
  .amdhsa_system_sgpr_workgroup_id_x 1
  .amdhsa_float_denorm_mode_32 3
.end_amdhsa_kernel
"""

def main():
    out = sys.argv[1]
    ref = open(f"cdna_kernels/{NAME}.s.ref").read().split("\n")
    head = [l for l in ref if l.startswith(";") and "@launch" not in l and "Override" not in l and "grid=ceil" not in l]
    a = Asm()
    a(".amdgcn_target \"amdgcn-amd-amdhsa--gfx950\"\n.text")
    a(f".globl {NAME}_kernel\n.type {NAME}_kernel,@function")
    nv = gen_p2(a)
    errs = a.check()
    for e in errs: print("HAZARD", e)
    txt = "\n".join(head) + "\n"
    kern = f"kernel={NAME}_kernel " if OPT["list"] else ""
    txt += f"; @launch {kern}grid=(256,1,1) block=(512,1,1) lds={P1_LDS}\n"
    if OPT["probe"] >= 0:
        txt += "; @launch kernel=probe_kernel grid=(1,1,1) block=(64,1,1) lds=0\n"
        a(f"""
.p2align 8
probe_kernel:
  s_cmp_ge_u32 s2, 1
  s_cbranch_scc1 P_end
  s_load_dwordx2 s[4:5], s[0:1], 96
  s_waitcnt lgkmcnt(0)
  s_load_dwordx8 s[8:15], s[4:5], 0
  s_memrealtime s[16:17]
  s_waitcnt lgkmcnt(0)
  s_not_b32 s8, s8
  s_sub_u32 s20, s{8 + OPT['probe']}, s8
  {"s_lshr_b32 s20, s%d, 4" % (8 + OPT['probe']) if OPT['probe'] in (5, 7) else "s_nop 0"}
  s_min_u32 s20, s20, 20000
P_loop:
  s_memrealtime s[18:19]
  s_waitcnt lgkmcnt(0)
  s_sub_u32 s21, s18, s16
  s_cmp_lt_u32 s21, s20
  s_cbranch_scc1 P_loop
P_end:
  s_endpgm""")
    txt += a.text()
    txt += ".section .rodata,\"a\"\n.p2align 6\n" + kd(NAME + "_kernel", 256, 102) + (".p2align 6\n" + kd("probe_kernel", 8, 32) if OPT["probe"] >= 0 else "")
    open(out, "w").write(txt)
    print("vgprs p2:", nv, "lines:", len(a.lines), "hazards:", len(errs))

main()
```

```python
import sys, os
sys.path.insert(0, os.path.dirname(__file__))
from asmlib import Asm

NAME = "gather_scatter__molecular_angular_gemnet__graph"
E = 400000
NCH, CH = 250, 25600
EB = 1568
K = 6
MJ = 2739138
TABOFF = 0x2800000
CAROFF = 0x3000000
CARCAP = 9216
CARLIST = CARCAP * 8
STAMPOFF = 0x6000000
FLGOFF = 0x2c00000
OPT = dict(gprio=0, str=0, uni=1, lead=3, pm2=1, eb=4, nrep=4, ncn=64, sq=-1, ep=1, bprio=0x1ff, dma=0, fix=1, dum=0, dumm=0, abl_rbf=0, tg=-1, wall=0, cpf=3, wsoff=0, mq=11, rot=0, pf0=0, a0=2, ag=2, early=0, adj=0, probe=-1, tlb=0, cut=-1, opol=1, mpol=0, tq=3, fq=10, keff=6, jid=0, fprio=0x3ffff, lprio=0xfff, napt=8, st0=1, stp=1, rb0=2, nap=8, list=1, nb=7, n1=2, n3=4, nl0=8, smask=0x555, arr=10, spin=60000, rec_pol=2, stamp=0, itcap=400000, ld_nt=7, st_pol=0, mtouch=0, la=4, apre=2, wmain=70000, b5=0, lim=24, nb2=7, ins0=4,
           abl_mfma=0, abl_s=0, abl_cos=0, abl_g=0)
for a in sys.argv[2:]:
    k, v = a.split("=")
    assert k in OPT, k
    OPT[k] = int(v, 0)
MK = -(-(1 << 32) // OPT["wmain"])
assert (399999 * MK) >> 32 <= 5

RPOL = ('', ' nt', ' sc1', ' sc0 sc1')[OPT['rec_pol']]

POL = ('', ' nt', ' sc1', ' sc0 sc1')

def v(i, n=1):
    return f"v{i}" if n == 1 else f"v[{i}:{i+n-1}]"
def s(i, n=1):
    return f"s{i}" if n == 1 else f"s[{i}:{i+n-1}]"

def stamp(a, vreg, lane, op="s_memtime"):
    if lane == OPT["cut"]: a("  s_endpgm")
    if not OPT["stamp"]: return
    if OPT["stamp"] == 2:
        mp = {62: (0, 1), 42: (1, 0), 45: (2, 0), 1: (3, 0), 11: (4, 0), 63: (6, 0)}
        if lane == 0:
            a("  s_memtime s[88:89]\n  s_waitcnt lgkmcnt(0)\n  s_mov_b32 s91, s88")
        if lane in (11, 7):
            a(f"  s_memtime s[88:89]\n  s_waitcnt lgkmcnt(0)\n  s_sub_u32 s88, s88, s91\n  v_writelane_b32 v{vreg}, s88, {5 if lane == 11 else 7}")
        if lane not in mp: return
        l, inv = mp[lane]
        a(f"  s_memrealtime s[88:89]\n  s_waitcnt lgkmcnt(0)")
        if inv: a("  s_not_b32 s88, s88")
        a(f"  v_writelane_b32 v{vreg}, s88, {l}")
        return
    a(f"  {op} s[88:89]\n  s_waitcnt lgkmcnt(0)\n  v_writelane_b32 v{vreg}, s88, {lane}")
def stamp_out(a, vreg, wslo, nwaves, base, tmp):
    if not OPT["stamp"]: return
    if OPT["stamp"] == 2:
        back = 512
        a(f"""
  s_load_dwordx2 s[90:91], s[0:1], 96
  s_waitcnt lgkmcnt(0)
  s_add_u32 s92, s90, {back}
  s_addc_u32 s93, s91, 0
  s_mov_b32 s94, 32
  s_mov_b32 s95, 0x20000
  v_lshlrev_b32 v{tmp}, 2, v0
  buffer_atomic_umax v{vreg}, v{tmp}, s[92:95], 0 offen""")
        return
    a(f"  s_mul_i32 s88, s2, {nwaves*256}\n  s_add_u32 s88, s88, {base}")
    srd(a, 92, wslo, wslo+1, "s88", nwaves*256)
    a(f"  v_lshlrev_b32 v{tmp}, 2, v0\n  buffer_store_dword v{vreg}, v{tmp}, s[92:95], 0 offen")

def srd(a, d, lo, hi, add, size):
    if add is None:
        a(f"  s_mov_b32 s{d}, s{lo}\n  s_mov_b32 s{d+1}, s{hi}")
    else:
        a(f"  s_add_u32 s{d}, s{lo}, {add}\n  s_addc_u32 s{d+1}, s{hi}, 0")
    a(f"  s_mov_b32 s{d+2}, {size}\n  s_mov_b32 s{d+3}, 0x20000")

P1_CNT, P1_SENT, P1_TMP, P1_REC = 0, 6144, 6160, 6272
P1_LDS = P1_REC + CH * 6

TS = 264
BUFSZ = 200 * TS
S_OFF = 13 * 8192
DMA = OPT["dma"]
WSTR = 6144 if DMA else 1024
CTL = S_OFF + 8 * WSTR
RB_OFF = CTL + 128
SENT = 0x7ffff0
LAG = 4 if DMA else 5
P2_LDS = RB_OFF + 8 * 3584
D = 5
NT = 25

class RA:
    def __init__(self, start): self.n = start
    def __call__(self, k=1, al=1):
        self.n = (self.n + al - 1) // al * al
        r = self.n; self.n += k
        return r

def gen_p2(a):
    ra = RA(1)
    vSlot, vHalf, vFreq, vSst, vSrd, vI6, vI1, vI4 = (ra() for _ in range(8))
    vRd, vCntA, vOne, vOOB, vCarOff, vCarIdx, v264, vMsk, vCtlN = (ra() for _ in range(9))
    vZ = ra(2, 2)
    Q = ra(6, 4)
    sA, nA, cb, rem, rtot, vA6, vB6, vR0, vRT4 = (ra() for _ in range(9))
    vCnt = ra()
    Wa = ra(4, 4); Wb = ra(4, 4)
    RING = [ra(4, 4) for _ in range(D)]
    Da = ra(4, 4); Db = ra(4, 4); P = ra(4, 4); Sf = ra(4, 4)
    ACC = [ra(4, 4) for _ in range(NT)]
    REC = [ra(2, 4 if i == 0 else 2) for i in range(17)]
    RP = [ra(2, 2), ra(2, 2)]
    T = ra(10, 2)
    TA = [ra(), ra()]; RK = [ra(), ra()]
    WS0 = ra(2, 2); WS1 = ra(2, 2); WR = ra(2, 2); WUP = ra(2, 2)
    CC = [ra() for _ in range(D)]; SA = [ra() for _ in range(D)]
    WW = [ra(), ra()]
    assert ra.n <= 252, ra.n
    NV = ra.n
    sM = 4; sREC = 8; sCAR = 12; sTAB = 16; sOUT = 20; sDIST = 24; sMW = 28
    sJ, sW, sIt, sThr, sIns, sCarW, sCarR, sRb, sCin, sX, sFl, sEb = range(32, 44)
    sCnt = [44, 45]
    sWS = 46
    sPM = 72
    sMk = [72, 74]; sT = 76; sC10 = 78; sCl2 = 80
    sEb2 = 3
    rare = []

    O, I, R, A = 36, 88, 140, 192
    PT = 218
    vFlg, vDum, vTab, vWo, vTwo = range(240, 245)
    vL8, vL4, vSix = WS0 + 1, WS1 + 1, WR + 1
    vL128 = 253
    vL16 = WW[0]
    rDist, rSbf, rUp, rDown, rRbf = A + 4, A + 6, A + 8, A + 10, A + 12
    RBK = [sA, nA, rem, rtot, vA6, vB6, vR0, vRT4, vCnt, 86, 87, 190, 191]
    WDK = [248, 249, WW[1], 217]
    assert Wa == 36 and T == PT
    vSent = vCnt
    sIO, sII, sAN, sMT, sTW, sDBG = 4, 8, 12, 16, 20, 24
    sFLG, sRW = 92, 96
    sMJ, sMK, sNEB, sB5, sO4, sO2 = range(80, 86)
    sY, sSo = 100, 101
    nto, nti, nta = (" nt" if OPT["ld_nt"] >> b & 1 else "" for b in range(3))
    NR = 13
    nrec = lambda q: 4 if q < 12 else 2
    vm = []
    def ld_pair(q):
        if q < 12:
            a(f"  buffer_load_dwordx4 {v(O+4*q,4)}, {v(vL16)}, {s(sIO,4)}, s{sO4} offen{nto}")
            a(f"  buffer_load_dwordx4 {v(I+4*q,4)}, {v(vL16)}, {s(sII,4)}, s{sO4} offen{nti}")
            a(f"  s_add_u32 s{sO4}, s{sO4}, 8192")
        else:
            a(f"  buffer_load_dwordx2 {v(O+48,2)}, {v(vL8)}, {s(sIO,4)}, s{sO4} offen{nto}")
            a(f"  buffer_load_dwordx2 {v(I+48,2)}, {v(vL8)}, {s(sII,4)}, s{sO4} offen{nti}")
        vm.extend([("o", q), ("p", q)])
    def ld_ang(q):
        if q < 12:
            a(f"  buffer_load_dwordx2 {v(A+2*q,2)}, {v(vL8)}, {s(sAN,4)}, s{sO2} offen{nta}")
            a(f"  s_add_u32 s{sO2}, s{sO2}, 4096")
        else: a(f"  buffer_load_dword {v(A+24)}, {v(vL4)}, {s(sAN,4)}, s{sO2} offen{nta}")
        vm.append(("a", q))
    def wait_for(x):
        a(f"  s_waitcnt vmcnt({len(vm) - 1 - vm.index(x)})")
    def poll(tag, load, cond, nap=4):
        a(f"  s_mov_b32 s{sY}, {OPT['spin']}")
        a.label(f"L_poll_{tag}")
        a(load)
        a("  s_waitcnt vmcnt(0)")
        a(cond)
        a(f"""
  s_cbranch_vccz L_polled_{tag}
  s_sleep {nap}
  s_sub_u32 s{sY}, s{sY}, 1
  s_cbranch_scc0 L_poll_{tag}""")
        a.label(f"L_polled_{tag}")

    a(".p2align 8")
    a.label(NAME + "_kernel")
    ncp = [0]
    def cpf(bit, q, first=False):
        if not OPT["cpf"] >> bit & 1: return False
        ncp[0] += 1
        a(f"  s_getpc_b64 s[{q}:{q+1}]")
        a.label(f"L_cp{ncp[0]}")
        a(f"""
  s_sub_u32 s{q}, s{q}, L_cp{ncp[0]}-{NAME}_kernel
  s_subb_u32 s{q+1}, s{q+1}, 0
  s_mov_b32 s{q+2}, L_code_end-{NAME}_kernel
  s_mov_b32 s{q+3}, 0x20000""")
        if first:
            a(f"""
  s_and_b32 s{sY}, s2, 0xf8
  s_lshl_b32 s{sY}, s{sY}, 4
  v_lshl_add_u32 v255, v0, 12, s{sY}""")
        a(f"  buffer_load_dword v254, v255, s[{q}:{q+3}], 0 offen")
        return True
    a(f"""
  s_cmp_ge_u32 s2, 256
  s_cbranch_scc1 L_end
  s_load_dwordx16 s[48:63], s[0:1], 0
  s_load_dwordx4 s[44:47], s[0:1], 96
  s_load_dwordx8 s[64:71], s[0:1], 64""")
    cpf(0, 28, True)
    a(f"""
  v_lshlrev_b32 {v(vL16)}, 4, v0
  s_min_u32 s{sY}, s2, {NCH-1}
  s_mul_i32 s{sX}, s{sY}, {CH*4}
  s_cmp_lt_u32 s2, {NCH}
  s_cselect_b32 s{sFl}, {CH*2}, 0
  s_lshl_b32 s{sIO+2}, s{sFl}, 1
  s_mov_b32 s{sII+2}, s{sIO+2}
  s_mov_b32 s{sIO+3}, 0x20000
  s_mov_b32 s{sII+3}, 0x20000
  s_mov_b32 s{sO4}, 0
  v_mov_b64 {v(PT,2)}, 0
  v_mov_b64 {v(PT+2,2)}, 0
  s_mov_b32 s{sO2}, 0
  ds_write_b128 {v(vL16)}, {v(PT,4)}
  v_lshrrev_b32 {v(T+8)}, 6, v0
  s_and_b32 s{sJ}, s2, 7
  s_lshl_b32 s{sJ}, s{sJ}, 5
  s_lshr_b32 s{sEb}, s2, 3
  s_add_u32 s{sJ}, s{sJ}, s{sEb}
  v_readfirstlane_b32 s{sW}, {v(T+8)}
  v_and_b32 {v(T+7)}, 63, v0
  v_lshlrev_b32 {v(T+6)}, 3, {v(T+7)}
  v_lshlrev_b32 {v(T+7)}, 2, {v(T+7)}
  s_mul_i32 s{sEb}, s{sJ}, {EB*2}
  s_mul_i32 s{sRb}, s{sW}, 400
  s_add_u32 s{sEb}, s{sEb}, s{sRb}
  s_waitcnt lgkmcnt(0)""")
    if OPT["stamp"] == 2: a("  v_mov_b32 v252, 0\n  s_nop 1")
    stamp(a, 252, 0); stamp(a, 252, 62, "s_memrealtime")
    a(f"""
  s_add_u32 s{sIO}, s52, s{sX}
  s_addc_u32 s{sIO+1}, s53, 0
  s_add_u32 s{sII}, s50, s{sX}
  s_addc_u32 s{sII+1}, s51, 0""")
    ld_pair(0)
    if OPT["wsoff"]: a(f"  s_add_u32 s{sWS}, s{sWS}, {OPT['wsoff'] << 20}\n  s_addc_u32 s{sWS+1}, s{sWS+1}, 0")
    srd(a, 28, 54, 55, None, E * 2)
    a(f"""
  buffer_load_dwordx2 {v(rDist,2)}, {v(T+6)}, s[28:31], s{sEb} offen
  global_load_dwordx2 {v(rSbf,2)}, {v(T+6)}, s[64:65]
  global_load_dwordx2 {v(rUp,2)}, {v(T+6)}, s[68:69]
  global_load_dwordx2 {v(rDown,2)}, {v(T+6)}, s[66:67]
  global_load_dword {v(rRbf)}, {v(T+7)}, s[62:63]""")
    vm.extend([("s", i) for i in range(5)])
    ld_pair(1)
    a("  s_barrier")
    LA = OPT["la"]
    for q in range(2, LA): ld_pair(q)
    a(f"  s_lshr_b32 s{sX}, s{sX}, 1")
    srd(a, sAN, 56, 57, f"s{sX}", f"s{sFl}")
    srd(a, sMT, 48, 49, f"s{sX}", f"s{sFl}")
    a(f"  s_mul_i32 s{sX}, s{sY}, {CH*6}\n  s_mul_i32 s{sFl}, s{sFl}, 3")
    srd(a, sRW, sWS, sWS+1, f"s{sX}", f"s{sFl}")
    srd(a, sTW, sWS, sWS+1, TABOFF, 256 * 8192)
    srd(a, sFLG, sWS, sWS+1, FLGOFF, OPT['nrep'] * 1024)
    srd(a, sDBG, 44, 45, None, 256)
    a(f"""
  s_lshl_b32 s{sX}, s2, 2
  v_lshl_add_u32 {v(vFlg)}, v0, 10, s{sX}
  s_cmp_lt_u32 s2, {NCH}
  s_cselect_b32 s{sX}, 0, 4
  v_mov_b32 {v(vDum)}, s{sX}
  buffer_store_dword {v(vDum)}, {v(vFlg)}, {s(sFLG,4)}, 0 offen sc1
  s_lshl_b32 s{sX}, s{sX}, 20
  v_or_b32 {v(vFlg)}, s{sX}, {v(vFlg)}
  s_load_dword s{sCin}, s[60:61], 0
  s_load_dwordx4 s[56:59], s[58:59], 0
  v_lshlrev_b32 {v(vL8)}, 3, v0
  v_lshlrev_b32 {v(vL4)}, 2, v0
  {'v_mov_b32 %s, %d' % (v(vL128), E//8) if OPT['rot'] == 2 else 'v_lshlrev_b32 %s, 7, v0' % v(vL128)}
  v_mov_b32 {v(vSix)}, 6
  v_mov_b32 {v(vTwo)}, 2
  s_mov_b32 s{sMJ}, {MJ}
  s_mov_b32 s{sMK}, {MK}
  s_mov_b32 s{sNEB}, {-EB & 0xffffffff}
  s_mov_b32 s{sB5}, {(-(E//8) & 0xffffffff) if OPT['rot'] else OPT['b5']}
  v_lshrrev_b32 {v(T)}, 6, v0
  v_and_b32 {v(T+2)}, 15, v0
  v_bfe_u32 {v(T+3)}, v0, 5, 1
  v_lshlrev_b32 {v(vHalf)}, 4, {v(T+3)}
  v_lshl_add_u32 {v(cb)}, {v(T)}, 5, {v(vHalf)}
  v_add_u32 {v(cb)}, {v(cb)}, {v(T+2)}
  v_lshlrev_b32 {v(vTab)}, 13, {v(cb)}
  v_and_b32 {v(T+1)}, 63, v0
  v_and_b32 {v(vSlot)}, 31, v0
  v_mov_b64 {v(vZ,2)}, 0
  v_mov_b32 {v(v264)}, {TS}
  v_mov_b32 {v(vCtlN)}, {CTL}
  s_lshl_b32 s{sX}, s{sW}, 10
  s_add_u32 s{sX}, s{sX}, {S_OFF}
  v_lshl_add_u32 {v(vSrd)}, {v(T+1)}, 4, s{sX}
  v_bfe_u32 {v(T+6)}, v0, 2, 2
  v_lshlrev_b32 {v(vSst)}, 8, {v(T+6)}
  v_lshl_add_u32 {v(vSst)}, {v(T+3)}, 7, {v(vSst)}
  v_bfe_u32 {v(T+6)}, v0, 4, 1
  v_lshl_add_u32 {v(vSst)}, {v(T+6)}, 3, {v(vSst)}
  v_and_b32 {v(T+6)}, 3, v0
  v_lshl_add_u32 {v(vSst)}, {v(T+6)}, 1, {v(vSst)}
  v_add_u32 {v(vSst)}, s{sX}, {v(vSst)}
  v_mov_b32 {v(vOne)}, 1
  v_mov_b32 {v(vOOB)}, 0x80000000
  v_mov_b32 {v(vMsk)}, 0x7ffffffc
  v_mul_u32_u24 {v(vI6)}, 6, {v(vSlot)}
  v_add_u32 {v(vI1)}, 1, {v(vSlot)}
  v_lshlrev_b32 {v(vI4)}, 2, {v(vI1)}
  v_mov_b32 {v(T+6)}, {CH}
  v_mul_u32_u24 {v(cb)}, {v(cb)}, {v(T+6)}
  s_mul_i32 s{sX}, s{sW}, {NT*TS}
  s_add_u32 s{sX}, s{sX}, {BUFSZ}
  v_lshl_add_u32 {v(vRd)}, {v(vSlot)}, 3, s{sX}""")
    sRing = 84
    a(f"  v_lshrrev_b32 {v(vHalf)}, 1, {v(vHalf)}")
    STR = OPT["str"] and not DMA
    PM2 = OPT["pm2"] and not DMA
    if STR:
        a(f"""
  s_lshl_b32 s{sY}, s{sW}, 10
  s_add_u32 s{sY}, s{sY}, {S_OFF}
  v_bfe_u32 {v(T+6)}, v0, 2, 1
  v_xor_b32 {v(T+6)}, {v(T+6)}, {v(T+3)}
  v_lshl_add_u32 {v(vSst)}, {v(vSlot)}, 5, s{sY}
  v_lshl_add_u32 {v(vSst)}, {v(T+6)}, 4, {v(vSst)}
  v_and_b32 {v(T+6)}, 16, v0
  v_lshl_add_u32 {v(vSrd)}, {v(T+1)}, 3, s{sY}
  v_xor_b32 {v(vSrd)}, {v(vSrd)}, {v(T+6)}""")
    if DMA:
        a(f"""
  v_bfe_u32 {v(vSlot)}, v0, 1, 5
  v_lshl_add_u32 {v(vRd)}, {v(vSlot)}, 3, s{sX}
  v_and_b32 {v(T+3)}, 1, v0
  v_lshlrev_b32 {v(vHalf)}, 3, {v(T+3)}
  s_mul_i32 s{sY}, s{sW}, {WSTR}
  s_add_u32 s{sY}, s{sY}, {S_OFF}
  v_lshl_add_u32 {v(vSst)}, {v(T+1)}, 4, s{sY}
  v_lshl_add_u32 {v(vSrd)}, {v(T+1)}, 3, s{sY}""")
    a(f"""
  v_min_u32 {v(T+6)}, {NT-1}, {v(T+1)}
  v_mad_u32_u24 {v(vCntA)}, {v(T+6)}, {v(v264)}, s{sX}
  v_sub_u32 {v(vCarIdx)}, 511, v0
  v_lshlrev_b32 {v(vCarOff)}, 3, {v(vCarIdx)}
  v_cmp_eq_u32 vcc, 1, {v(T+3)}
  s_waitcnt lgkmcnt(0)
  s_lshl_b32 s{sX}, s{sCin}, 16
  s_and_b32 s{sCin}, s{sCin}, 0xffff0000
  v_mov_b32 {v(vFreq)}, s{sX}
  v_mov_b32 {v(T+6)}, s{sCin}
  v_cndmask_b32 {v(vFreq)}, {v(vFreq)}, {v(T+6)}, vcc
  v_mul_f32 {v(vFreq)}, 0.15915494, {v(vFreq)}
  s_mov_b32 s{sIt}, -1
  s_mov_b32 s{sIns}, 0
  s_mov_b32 s{sCarW}, 0
  s_mov_b32 s{sCarR}, {CARLIST}
  s_mul_i32 s{sEb}, s{sJ}, {EB}
  s_mul_i32 s{sX}, s{sW}, 200
  s_add_u32 s{sFl}, s{sEb}, {EB}
  s_add_u32 s{sEb}, s{sEb}, s{sX}
  s_add_u32 s{sRb}, s{sEb}, 200
  s_min_u32 s{sRb}, s{sRb}, s{sFl}
  s_min_u32 s{sRb}, s{sRb}, {E}
  s_lshl_b32 s{sRb}, s{sRb}, 5
  s_lshl_b32 s{sEb}, s{sEb}, 5
  s_add_u32 s{sEb2}, s{sEb}, 4096""")

    if OPT["tlb"]:
        sh = OPT["tlb"]
        srd(a, 28, sWS, sWS+1, None, FLGOFF + 8192)
        a(f"  v_lshlrev_b32 v249, {sh}, v0\n  buffer_load_dword v248, v249, s[28:31], 0 offen")
        srd(a, 28, 48, 49, None, E * 32)
        a(f"  buffer_load_dword v248, v249, s[28:31], 0 offen")
        srd(a, 28, 70, 71, None, E * 32)
        a(f"  buffer_load_dword v248, v249, s[28:31], 0 offen")
        vm.extend([("tlb", i) for i in range(3)])
    a(f"""
  s_cmp_ge_u32 s2, {NCH}
  s_cbranch_scc1 L_nochunk1""")
    vm.append(("flg", 0))
    arrive = f"""
  s_and_b32 s{sY}, s2, 15
  s_lshl_b32 s{sY}, s{sY}, 4
  v_lshlrev_b32 {v(PT)}, 8, v0
  buffer_atomic_add {v(vOne)}, {v(PT)}, {s(sDBG,4)}, s{sY} offen"""
    def hist(idx):
        if OPT["b5"]:
            for x, i in enumerate(idx): a(f"  v_cmp_le_u32 {s(72+2*x,2)}, s{sB5}, {v(I+i)}")
        for x, i in enumerate(idx): a(f"  v_mul_hi_u32_u24 {v(PT+x)}, s{sMJ}, {v(O+i)}")
        if OPT["rot"] == 2:
            for x, i in enumerate(idx): a(f"  v_lshrrev_b32 {v(PT+4+x)}, 5, {v(PT+x)}")
            for x, i in enumerate(idx): a(f"  v_mad_i32_i24 {v(PT+4+x)}, {v(PT+4+x)}, s{sB5}, {v(I+i)}")
            for x, i in enumerate(idx): a(f"  v_cmp_gt_u32 {s(72+2*x,2)}, {v(vL128)}, {v(PT+4+x)}")
            for x, i in enumerate(idx): a(f"  v_ashrrev_i32 {v(PT+4+x)}, 31, {v(PT+4+x)}")
            for x, i in enumerate(idx): a(f"  v_and_b32 {v(PT+4+x)}, {v(vL128)}, {v(PT+4+x)}")
            for x, i in enumerate(idx): a(f"  v_add3_u32 {v(PT+4+x)}, {v(PT+4+x)}, s{sB5}, {v(I+i)}")
            for x, i in enumerate(idx): a(f"  v_mul_hi_u32_u24 {v(PT+4+x)}, s{sMK}, {v(PT+4+x)}")
            for x, i in enumerate(idx): a(f"  v_cndmask_b32 {v(PT+4+x)}, {v(PT+4+x)}, 5, {s(72+2*x,2)}")
        elif OPT["rot"]:
            for x, i in enumerate(idx): a(f"  v_lshrrev_b32 {v(PT+4+x)}, 5, {v(PT+x)}")
            for x, i in enumerate(idx): a(f"  v_mad_i32_i24 {v(PT+4+x)}, {v(PT+4+x)}, s{sB5}, {v(I+i)}")
            for x, i in enumerate(idx): a(f"  v_add_u32 {v(PT+8+x)}, {E - E//8}, {v(PT+4+x)}")
            for x, i in enumerate(idx): a(f"  v_add_u32 {v(PT+4+x)}, s{sB5}, {v(PT+4+x)}")
            for x, i in enumerate(idx): a(f"  v_min_u32 {v(PT+4+x)}, {v(PT+4+x)}, {v(PT+8+x)}")
            for x, i in enumerate(idx): a(f"  v_mul_hi_u32_u24 {v(PT+4+x)}, s{sMK}, {v(PT+4+x)}")
        else:
            for x, i in enumerate(idx): a(f"  v_mul_hi_u32_u24 {v(PT+4+x)}, s{sMK}, {v(I+i)}")
        if OPT["b5"]:
            for x, i in enumerate(idx): a(f"  v_cndmask_b32 {v(PT+4+x)}, {v(PT+4+x)}, 5, {s(72+2*x,2)}")
        for x, i in enumerate(idx): a(f"  v_mad_i32_i24 {v(PT+8+x)}, {v(PT+x)}, s{sNEB}, {v(O+i)}")
        for x, i in enumerate(idx): a(f"  v_lshl_add_u32 {v(O+i)}, {v(PT+4+x)}, 8, {v(PT+x)}")
        for x, i in enumerate(idx): a(f"  v_lshlrev_b32 {v(O+i)}, 2, {v(O+i)}")
        for x, i in enumerate(idx): a(f"  ds_add_rtn_u32 {v(R+i)}, {v(O+i)}, {v(vOne)}")
        for x, i in enumerate(idx): a(f"  v_and_b32 {v(PT+x)}, 7, {v(PT+8+x)}")
        for x, i in enumerate(idx): a(f"  v_lshl_or_b32 {v(I+i)}, {v(I+i)}, 3, {v(PT+x)}")
        for x, i in enumerate(idx): a(f"  v_lshrrev_b32 {v(PT+8+x)}, 3, {v(PT+8+x)}")
        for x, i in enumerate(idx): a(f"  v_lshl_or_b32 {v(I+i)}, {v(I+i)}, 1, {v(vOOB)}")
        for x, i in enumerate(idx): a(f"  v_lshl_or_b32 {v(I+i)}, {v(PT+8+x)}, 23, {v(I+i)}")
    def prep(piece):
        Z = R + 24
        aW, aD, aS, aR, aN, gq = Z, Z + 1, Z + 2, Z + 3, Z + 4, Z + 5
        CEN = Z + 6; H = Z + 8; Y = Z + 16
        if piece == 0:
            a(f"""
  s_lshl_b32 s{sX}, s{sW}, 12
  s_add_u32 s{sX}, s{sX}, 8192
  v_and_b32 {v(gq)}, 63, v0
  v_lshl_add_u32 {v(aW)}, {v(gq)}, 3, s{sX}
  v_lshl_add_u32 {v(gq)}, {v(gq)}, 2, s{sX}
  ds_write_b64 {v(aW)}, {v(rDist,2)}
  ds_write_b64 {v(aW)}, {v(rSbf,2)} offset:512
  ds_write_b64 {v(aW)}, {v(rUp,2)} offset:1024
  ds_write_b32 {v(gq)}, {v(rRbf)} offset:1536
  ds_write_b64 {v(aW)}, {v(rDown,2)} offset:2048
  v_and_b32 {v(aD)}, 15, v0
  v_bfe_u32 {v(gq)}, v0, 4, 2
  v_lshl_add_u32 {v(aD)}, {v(aD)}, 1, s{sX}
  v_lshl_add_u32 {v(aS)}, {v(gq)}, 7, {v(aD)}
  v_lshl_add_u32 {v(aR)}, {v(gq)}, 6, {v(aD)}
  v_bfe_u32 {v(aN)}, v0, 5, 1
  v_lshl_add_u32 {v(aN)}, {v(aN)}, 8, {v(aD)}
  ds_read_u16 {v(WS0)}, {v(aS)} offset:512
  ds_read_u16 {v(WS1)}, {v(aS)} offset:{512+32}
  ds_read_u16 {v(Y)}, {v(aS)} offset:{512+64}
  ds_read_u16 {v(Y+1)}, {v(aS)} offset:{512+96}
  ds_read_u16 {v(WUP)}, {v(aS)} offset:1024
  ds_read_u16 {v(Y+2)}, {v(aS)} offset:{1024+32}
  ds_read_u16 {v(WUP+1)}, {v(aS)} offset:{1024+64}
  ds_read_u16 {v(Y+3)}, {v(aS)} offset:{1024+96}
  ds_read_u16 {v(WR)}, {v(aR)} offset:1536
  ds_read_u16 {v(Y+4)}, {v(aR)} offset:{1536+32}""")
            for r in range(4 if DMA else 8): a(f"  ds_read_u16 {v(WDK[r//2] if r % 2 == 0 else H + r//2)}, {v(aS if DMA else aN)} offset:{2048 + r*32}")
            for p in range(13): a(f"  ds_read_u16 {v(RBK[p])}, {v(aD)} offset:{p*32}")
            return
        if piece == 1:
            a(f"""
  v_mov_b32 {v(CEN+1)}, s56
  v_cmp_eq_u32 vcc, 1, {v(gq)}
  v_mov_b32 {v(CEN)}, s57
  v_cmp_eq_u32 {s(sT,2)}, 2, {v(gq)}
  v_cndmask_b32 {v(CEN+1)}, {v(CEN+1)}, {v(CEN)}, vcc
  v_mov_b32 {v(CEN)}, s58
  v_cmp_eq_u32 vcc, 3, {v(gq)}
  v_cndmask_b32 {v(CEN+1)}, {v(CEN+1)}, {v(CEN)}, {s(sT,2)}
  v_mov_b32 {v(CEN)}, s59
  v_cndmask_b32 {v(CEN+1)}, {v(CEN+1)}, {v(CEN)}, vcc
  v_lshlrev_b32 {v(CEN)}, 16, {v(CEN+1)}
  v_and_b32 {v(CEN+1)}, 0xffff0000, {v(CEN+1)}
  s_mov_b32 s56, 0xc1200000
  s_mov_b32 s57, 0xc1200000
  s_mov_b32 s58, 0x3fb8aa3b
  s_mov_b32 s59, 0x3fb8aa3b
  s_waitcnt lgkmcnt(0)
  v_lshl_or_b32 {v(WS0)}, {v(Y)}, 16, {v(WS0)}
  v_lshl_or_b32 {v(WS1)}, {v(Y+1)}, 16, {v(WS1)}
  v_lshl_or_b32 {v(WUP)}, {v(Y+2)}, 16, {v(WUP)}
  v_lshl_or_b32 {v(WUP+1)}, {v(Y+3)}, 16, {v(WUP+1)}
  v_lshl_or_b32 {v(WR)}, {v(Y+4)}, 16, {v(WR)}""")
            for r in range(2 if DMA else 4): a(f"  v_lshl_or_b32 {v(WDK[r])}, {v(H+r)}, 16, {v(WDK[r])}")
        ps = ([0,1,2], [3,4,5,6,7], [8,9,10,11,12])[piece - 1]
        tt = {p: H + 2 * (p - ps[0]) for p in ps}
        def rnd():
            for p in ps: a(f"  v_cvt_pk_bf16_f32 {v(tt[p])}, 0, {v(tt[p])}\n  v_cvt_pk_bf16_f32 {v(tt[p]+1)}, 0, {v(tt[p]+1)}")
        for p in ps: a(f"  v_lshlrev_b32 {v(tt[p])}, 16, {v(RBK[p])}")
        for p in ps: a(f"  v_pk_add_f32 {v(tt[p],2)}, {v(tt[p],2)}, {v(CEN,2)} op_sel_hi:[0,1] neg_lo:[0,1] neg_hi:[0,1]")
        rnd()
        for p in ps: a(f"  v_pk_mul_f32 {v(tt[p],2)}, {v(tt[p],2)}, {v(tt[p],2)}")
        rnd()
        for p in ps: a(f"  v_pk_mul_f32 {v(tt[p],2)}, {v(tt[p],2)}, s[56:57]")
        rnd()
        for p in ps: a(f"  v_pk_mul_f32 {v(tt[p],2)}, {v(tt[p],2)}, s[58:59]")
        for p in ps: a(f"  v_exp_f32 {v(tt[p])}, {v(tt[p])}\n  v_exp_f32 {v(tt[p]+1)}, {v(tt[p]+1)}")
        for p in ps: a(f"  v_cvt_pk_bf16_f32 {v(RBK[p])}, {v(tt[p])}, {v(tt[p]+1)}")
    na = 0
    for q in range(NR):
        wait_for(("p", q))
        if q == 0: stamp(a, 252, 40)
        if q == LA:
            a(arrive); vm.append(("arr", 0))
        if OPT["mtouch"] == 3 and q == OPT["mq"]:
            a(f"  buffer_load_dword v244, {v(vL128)}, {s(sMT,4)}, 0 offen"); vm.append(("m", 0))
        if q + LA < NR: ld_pair(q + LA)
        else:
            for _ in range(2):
                if na < OPT["apre"]: ld_ang(na); na += 1
        hist(list(range(4*q, 4*q + nrec(q))))
        if 1 <= q <= 4: prep(q - 1)
    stamp(a, 252, 41)
    X = v(PT+4)
    PR = A + 4
    assert OPT["apre"] <= 2
    a(f"""
  v_and_b32 {v(PT+8)}, 0x3f0, {v(vL16)}
  v_lshrrev_b32 {v(PT+12)}, 1, v0
  v_and_b32 {v(PT+13)}, 1, v0
  v_lshlrev_b32 {v(PT+12)}, 2, {v(PT+12)}
  v_lshl_add_u32 {v(PT+13)}, {v(PT+13)}, 12, {v(PT+12)}
  s_waitcnt lgkmcnt(0)
  s_barrier
  s_cmp_ge_u32 s{sW}, {K}
  s_cbranch_scc1 L_bin_s2
  ds_read_b128 {v(PT,4)}, {v(vL16)}""")
    for r in range(K - 1): a(f"  ds_read_b128 {v(PR+4*r,4)}, {v(PT+8)} offset:{r*1024}")
    for r in range(K - 1): a(f"  s_cmp_gt_u32 s{sW}, {r}\n  s_cselect_b32 s{72+r}, 1, 0")
    a(f"""
  s_waitcnt lgkmcnt({K-1})
  v_add_u32 {v(PT+5)}, {v(PT)}, {v(PT+1)}
  v_add_u32 {v(PT+6)}, {v(PT+5)}, {v(PT+2)}
  v_add_u32 {v(PT+7)}, {v(PT+6)}, {v(PT+3)}""")
    for r in range(K - 1):
        a(f"""
  s_waitcnt lgkmcnt({K-2-r})
  v_add3_u32 {v(PR+4*r)}, {v(PR+4*r)}, {v(PR+4*r+1)}, {v(PR+4*r+2)}
  v_add_u32 {v(PR+4*r)}, {v(PR+4*r)}, {v(PR+4*r+3)}""")
        if r == 0: a(f"  v_mul_u32_u24 {v(PT+9)}, s72, {v(PR)}")
        else: a(f"  v_mad_u32_u24 {v(PT+9)}, {v(PR+4*r)}, s{72+r}, {v(PT+9)}")
    a(f"  v_lshl_or_b32 {X}, {v(PT+9)}, 16, {v(PT+7)}")
    for sh in (1, 2, 4, 8):
        a(f"  s_nop 1\n  v_add_u32_dpp {X}, {X}, {X} row_shr:{sh} row_mask:0xf bank_mask:0xf bound_ctrl:0")
    a(f"  s_nop 1\n  v_add_u32_dpp {X}, {X}, {X} row_bcast:15 row_mask:0xa bank_mask:0xf")
    a(f"  s_nop 1\n  v_add_u32_dpp {X}, {X}, {X} row_bcast:31 row_mask:0xc bank_mask:0xf")
    a(f"""
  s_nop 0
  v_readlane_b32 s{sY}, {X}, 63
  v_sub_u32 {X}, {X}, {v(PT+7)}
  s_lshr_b32 s{sY}, s{sY}, 16
  v_add_u32 {X}, s{sY}, {X}
  v_add_u32 {v(PT+7)}, {X}, {v(PT+6)}
  v_add_u32 {v(PT+6)}, {X}, {v(PT+5)}
  v_add_u32 {v(PT+5)}, {X}, {v(PT)}
  v_lshl_or_b32 {v(PT)}, {X}, 16, {v(PT)}
  v_lshl_or_b32 {v(PT+1)}, {v(PT+5)}, 16, {v(PT+1)}
  v_lshl_or_b32 {v(PT+2)}, {v(PT+6)}, 16, {v(PT+2)}
  v_lshl_or_b32 {v(PT+3)}, {v(PT+7)}, 16, {v(PT+3)}
  ds_write_b128 {v(vL16)}, {v(PT,4)}
  s_waitcnt lgkmcnt(0)""")
    a.label("L_bin_s2")
    a(f"  s_lshl_b32 s{sY}, s2, 13\n  s_barrier")
    stamp(a, 252, 42)
    TB = PT + 8
    for k in range(4): a(f"  ds_read_b32 {v(TB+k)}, {v(PT+13)} offset:{k*1024}")
    NB = OPT["nb"]
    vDa, vDv, vRa = 245, 246, 247
    lda = f"  buffer_load_dword {v(vDv)}, {v(vDa)}, {s(sDBG,4)}, 0 offen sc1"
    cda = f"  v_cmp_gt_u32 vcc, 16, {v(vDv)}"
    ada = f"""
  s_lshl_b32 s{sX}, s{sW}, 16
  v_and_b32 {v(vDa)}, 15, v0
  v_lshl_add_u32 {v(vDa)}, {v(vDa)}, 4, s{sX}"""
    NRD = 15
    for i in range(10): a(f"  ds_read_u16 {v(O+i)}, {v(O+i)} offset:2")
    a("  s_waitcnt lgkmcnt(10)")
    for k in range(4): a(f"  v_alignbit_b32 {v(TB+k)}, {v(TB+k)}, {v(TB+k)}, 16")
    a(f"  buffer_store_dwordx4 {v(TB,4)}, {v(vL16)}, {s(sTW,4)}, s{sY} offen sc1")
    vm.append(("tab", 0))
    for i in range(10, NRD): a(f"  ds_read_u16 {v(O+i)}, {v(O+i)} offset:2")
    for _ in range(OPT["a0"]):
        if na < NR: ld_ang(na); na += 1
    a(f"  s_mov_b32 s{sB5}, {NB*8192 + 4}\n  s_mov_b32 s{sSo}, 0")
    a(ada)
    a(f"  v_add_u32 {v(vRa)}, {P1_REC}, {v(vL16)}")
    for g in range(10):
        idx = list(range(5*g, 5*g+5))
        if g == OPT["tg"]:
            wait_for(("tab", 0))
            a("  s_barrier")
            a(lda); vm.append(("lda", 0))
            a(f"  buffer_store_dword {v(vOne)}, {v(vFlg)}, {s(sFLG,4)}, 0 offen sc1"); vm.append(("flg", 1))
        for _ in range(OPT["ag"]):
            if na < NR: ld_ang(na); na += 1
        a(f"  s_waitcnt lgkmcnt({10 if OPT['wall'] else min(10, 45 - 5*g)})")
        for i in idx:
            if i + NRD < 50: a(f"  ds_read_u16 {v(O+i+NRD)}, {v(O+i+NRD)} offset:2")
        for i in idx: a(f"  v_add_u32 {v(O+i)}, {v(O+i)}, {v(R+i)}")
        for i in idx: a(f"  v_mad_u32_u24 {v(O+i)}, {v(O+i)}, {v(vSix)}, {v(vTwo)}")
        for x, i in enumerate(idx): a(f"  v_and_b32 {v(PT+x)}, 2, {v(O+i)}")
        for i in idx: a(f"  v_and_b32 {v(R+i)}, -4, {v(O+i)}")
        if OPT["wall"]:
            for i in idx: a(f"  ds_write_b32 {v(R+i)}, {v(I+i)} offset:{P1_REC}")
        for x, i in enumerate(idx): a(f"  v_lshl_add_u32 {v(O+i)}, {v(PT+x)}, 1, {v(O+i)}")
    assert na == NR
    if OPT["mtouch"] == 1:
        a(f"  buffer_load_dword v244, {v(vL128)}, {s(sMT,4)}, 0 offen"); vm.append(("m", 0))
    def put(q, cmp):
        idx = list(range(4*q, 4*q + nrec(q)))
        for x, i in enumerate(idx): a(f"  v_cmp_{cmp}_u32 {s(72+2*x,2)}, s{sB5}, {v(R+i)}")
        for x, i in enumerate(idx):
            op = "ds_write_b16_d16_hi" if (i & 1) else "ds_write_b16"
            a(f"""
  s_mov_b64 exec, {s(72+2*x,2)}
  {"" if OPT["wall"] else "ds_write_b32 %s, %s offset:%d" % (v(R+i), v(I+i), P1_REC)}
  {op} {v(O+i)}, {v(A + i//2)} offset:{P1_REC-2}""")
        a("  s_mov_b64 exec, -1")
    for q in range(NR):
        wait_for(("a", q))
        for r in range(nrec(q) // 2): a(f"  v_and_b32 {v(A+2*q+r)}, 0x7fff7fff, {v(A+2*q+r)}")
        if q == OPT["tq"] and OPT["tg"] < 0:
            assert q >= OPT["apre"]
            a("  s_barrier")
            a(lda); vm.append(("lda", 0))
            a(f"  buffer_store_dword {v(vOne)}, {v(vFlg)}, {s(sFLG,4)}, 0 offen sc1"); vm.append(("flg", 1))
            if OPT["mtouch"] == 2:
                a(f"  buffer_load_dword v244, {v(vL128)}, {s(sMT,4)}, 0 offen"); vm.append(("m", 0))
        put(q, "gt")
    a(f"  ds_read_u16 {v(vWo)}, {v(vZ)} offset:2050")
    a("  s_waitcnt lgkmcnt(0)\n  s_barrier")
    stamp(a, 252, 43)
    a(f"  v_readfirstlane_b32 s{sO2}, {v(vWo)}")
    free = [PT, PT + 4, PT + 8, O, I, R, O + 4, I + 4, R + 4]
    def erd(r): a(f"  ds_read_b128 {v(free[r],4)}, {v(vRa)} offset:{r*8192}")
    def est(r):
        a(f"  buffer_store_dwordx4 {v(free[r],4)}, {v(vL16)}, {s(sRW,4)}, s{sSo} offen sc1\n  s_add_u32 s{sSo}, s{sSo}, 8192")
        vm.append(("st", r))
    assert NB <= 8
    fad = f"""
  v_and_b32 {v(RK[0])}, 63, v0
  v_lshlrev_b32 {v(RK[0])}, 4, {v(RK[0])}
  s_and_b32 s{sCin}, s2, {OPT['nrep']-1}
  s_lshl_b32 s{sCin}, s{sCin}, 10"""
    if OPT["wall"]:
        free = [I + 4 * r for r in range(8)]
        for r in range(NB): erd(r)
        a(fad)
        a(f"  s_mov_b32 s{sO4}, 0\n  s_cmp_lg_u32 s{sW}, 0\n  s_cbranch_scc1 L_nofl")
        wait_for(("lda", 0))
        a(cda)
        a(f"  s_cbranch_vccnz L_nofl\n  s_mov_b32 s{sO4}, 1")
        a(f"  buffer_load_dwordx4 {v(PT,4)}, {v(RK[0])}, {s(sFLG,4)}, s{sCin} offen sc1")
        a.label("L_nofl")
        for r in range(3):
            a(f"  s_waitcnt lgkmcnt({NB - 1 - r})")
            est(r)
        a("  s_waitcnt lgkmcnt(0)")
        put(0, "le"); put(1, "le"); put(2, "le")
    else:
        for r in range(3): erd(r)
        for r in range(3):
            a(f"  s_waitcnt lgkmcnt({2 - r})")
            est(r)
        put(0, "le"); put(1, "le")
        for r in range(3, NB): erd(r)
        put(2, "le")
        a("  s_waitcnt lgkmcnt(0)")
    todo = list(range(3, NB))
    fad = f"""
  v_and_b32 {v(RK[0])}, 63, v0
  v_lshlrev_b32 {v(RK[0])}, 4, {v(RK[0])}
  s_and_b32 s{sCin}, s2, {OPT['nrep']-1}
  s_lshl_b32 s{sCin}, s{sCin}, 10"""
    for q in range(3, NR):
        for _ in range(OPT["ep"]):
            if todo: est(todo.pop(0))
        if q == OPT["sq"]:
            assert not todo
            a(f"""
  v_mov_b32 {v(vDum)}, 3
  s_waitcnt vmcnt(0)
  s_barrier
  s_cmp_gt_u32 s{sO2}, {NB*8192 // 6 - 2}
  s_cbranch_scc1 L_noearly
  buffer_store_dword {v(vDum)}, {v(vFlg)}, {s(sFLG,4)}, 0 offen sc1""")
            a.label("L_noearly")
        if q == OPT["fq"] and not OPT["wall"]:
            assert q >= 3
            a(fad)
            a(f"  s_mov_b32 s{sO4}, 0\n  s_cmp_lg_u32 s{sW}, 0\n  s_cbranch_scc1 L_nofl")
            wait_for(("lda", 0))
            a(cda)
            a(f"  s_cbranch_vccnz L_nofl\n  s_mov_b32 s{sO4}, 1")
            a(f"  buffer_load_dwordx4 {v(R+8,4)}, {v(RK[0])}, {s(sFLG,4)}, s{sCin} offen sc1")
            a.label("L_nofl")
        put(q, "le")
    assert not todo
    stamp(a, 252, 44)
    FP = Db
    def flag_load(dst, off): return f"  buffer_load_dwordx4 {v(dst,4)}, {v(off)}, {s(sFLG,4)}, s{sCin if dst == FP else sX} offen sc1"
    def flag_cond(dst, stage): return f"""
  v_min3_u32 {v(dst)}, {v(dst)}, {v(dst+1)}, {v(dst+2)}
  v_min_u32 {v(dst)}, {v(dst)}, {v(dst+3)}
  v_cmp_gt_u32 vcc, {stage}, {v(dst)}"""
    if OPT["wall"]: a(f"  s_cmp_lg_u32 s{sW}, 0\n  s_cbranch_scc1 L_polled_t\n  s_waitcnt vmcnt({NB})")
    else:
        if OPT["sq"] < 0: a("  s_waitcnt vmcnt(0)")
        else: assert OPT["fq"] < OPT["sq"]
        stamp(a, 252, 48)
        a(f"  s_cmp_lg_u32 s{sW}, 0\n  s_cbranch_scc1 L_polled_t")
    a(f"  s_cmp_eq_u32 s{sO4}, 0\n  s_cbranch_scc1 L_wait_a")
    a(flag_cond(PT if OPT["wall"] else R+8, 1))
    a("  s_cbranch_vccz L_polled_t\n  s_branch L_polled_a")
    a.label("L_nochunk1")
    if 40 <= OPT["cut"] <= 44: a("  s_endpgm")
    a("  s_waitcnt vmcnt(0)")
    a(arrive)
    for piece in range(4): prep(piece)
    a(ada)
    a(fad)
    a(f"  s_mov_b32 s{sO2}, 0\n  s_cmp_lg_u32 s{sW}, 0\n  s_cbranch_scc1 L_polled_t")
    if OPT["ncn"]:
        poll("a0", lda, cda, 64)
        poll("t0", flag_load(FP, RK[0]), flag_cond(FP, 1), OPT["ncn"])
        a(f"  s_sleep {OPT['ncn']}\n  s_branch L_polled_t")
    a.label("L_wait_a")
    poll("a", lda, cda, 64)
    poll("t", flag_load(FP, RK[0]), flag_cond(FP, 1), OPT["napt"])
    stamp(a, 252, 49)
    a(f"""
  s_lshl_b32 s{sX}, s{sJ}, 5
  s_add_u32 s{sX}, s{sX}, {TABOFF}""")
    srd(a, sTAB, sWS, sWS+1, f"s{sX}", (NCH - 1) * 8192 + 32)

    def state_update():
        a(f"""
  v_sub_u32 {v(rem)}, {v(rem)}, {v(rtot)}
  v_lshrrev_b32 {v(T)}, 16, {v(Q)}
  v_and_b32 {v(T+1)}, 0xffff, {v(Q)}
  v_min_u32 {v(vR0)}, 32, {v(nA)}
  v_cmp_ge_u32 vcc, 32, {v(nA)}
  v_sub_u32 {v(T+2)}, 32, {v(vR0)}
  v_add_u32 {v(vB6)}, {v(cb)}, {v(T+1)}
  v_min_u32 {v(T+2)}, {v(T)}, {v(T+2)}
  v_mul_u32_u24 {v(vB6)}, 6, {v(vB6)}
  v_add_u32 {v(rtot)}, {v(vR0)}, {v(T+2)}
  v_mad_i32_i24 {v(vB6)}, {v(vR0)}, -6, {v(vB6)}
  v_lshlrev_b32 {v(vRT4)}, 2, {v(rtot)}
  v_add_u32 {v(vA6)}, {v(cb)}, {v(sA)}
  v_mul_u32_u24 {v(vA6)}, 6, {v(vA6)}""")
    def state_update2():
        a(f"""
  v_add_u32 {v(sA)}, 32, {v(sA)}
  v_subrev_u32 {v(nA)}, 32, {v(nA)}
  v_add_u32 {v(T+1)}, {v(T+1)}, {v(T+2)}
  v_sub_u32 {v(T)}, {v(T)}, {v(T+2)}
  v_cndmask_b32 {v(sA)}, {v(sA)}, {v(T+1)}, vcc
  v_cndmask_b32 {v(nA)}, {v(nA)}, {v(T)}, vcc""")
        for i in range(K - 1):
            a(f"  v_cndmask_b32 {v(Q+i)}, {v(Q+i)}, {v(Q+i+1)}, vcc")
        a(f"  v_cndmask_b32 {v(Q+K-1)}, {v(Q+K-1)}, {v(vZ)}, vcc")
    def set_flag(tag):
        a(f"""
  v_cmp_lt_u32 vcc, 0, {v(rem)}
  s_cbranch_vccz L_noflag_{tag}
  ds_write_b32 {v(vCtlN)}, {v(vOne)} offset:4""")
        a.label(f"L_noflag_{tag}")

    bc = lambda u: f"row_newbcast:{u} row_mask:0xf bank_mask:0xf"
    def rec_load(u, t0):
        a(f"""
  v_sub_co_u32_dpp {v(t0)}, vcc, {v(vR0)}, {v(vI1)} {bc(u)}
  v_add_u32_dpp {v(t0)}, {v(vA6)}, {v(vI6)} {bc(u)}
  v_add_u32_dpp {v(t0+1)}, {v(vB6)}, {v(vI6)} {bc(u)}
  v_cndmask_b32 {v(t0)}, {v(t0)}, {v(t0+1)}, vcc
  v_sub_u32_dpp {v(t0+1)}, {v(vRT4)}, {v(vI4)} {bc(u)}
  v_bfi_b32 {v(t0)}, {v(vMsk)}, {v(t0)}, {v(t0+1)}
  buffer_load_dwordx2 {v(REC[u],2)}, {v(t0)}, {s(sREC,4)}, 0 offen{RPOL}""")

    SDWA = "dst_sel:WORD_1 dst_unused:UNUSED_PAD src0_sel:WORD_1 src1_sel:WORD_0"
    def ins1(u, thr, p):
        ta, rk, mk, w = TA[p], RK[p], sMk[p], WW[p]
        a(f"""
  v_cmp_gt_i32 vcc, 0, {v(REC[u])}
  v_min_i32 {v(w)}, {v(REC[u])}, {v(REC[u]+1)}
  v_cmp_gt_i32 {s(mk,2)}, {thr}, {v(w)}
  v_bfe_u32 {v(ta)}, {v(w)}, 23, 8
  v_cndmask_b32_sdwa {v(REC[u])}, {v(REC[u])}, {v(REC[u]+1)}, vcc {SDWA}
  v_mad_u32_u24 {v(ta)}, {v(ta)}, {v(v264)}, s{sIns}
  s_mov_b64 exec, {s(mk,2)}
  ds_add_rtn_u32 {v(rk)}, {v(ta)}, {v(vOne)}
  s_mov_b64 exec, -1""")

    def ins2(u, tag, p):
        ta, rk, mk, w = TA[p], RK[p], sMk[p], WW[p]
        lab = f"{tag}_{u}"
        a(f"""
  s_mov_b64 exec, {s(mk,2)}
  v_cmp_lt_u32 vcc, 31, {v(rk)}
  v_lshl_add_u32 {v(ta)}, {v(rk)}, 3, {v(ta)}
  s_cbranch_vccnz L_rare_{lab}""")
        a.label(f"L_back_{lab}")
        a(f"""
  ds_write2_b32 {v(ta)}, {v(REC[u])}, {v(w)} offset0:2 offset1:3
  s_mov_b64 exec, -1""")
        rare.append((lab, u, p))

    a(f"""
  v_add_u32 {v(PT+2)}, {P1_REC}, {v(vL16)}
  v_add_u32 {v(PT+3)}, {P1_REC + 8*8192}, {v(vL16)}
  v_add_u32 {v(PT+4)}, {P1_REC + 16*8192}, {v(vL16)}
  s_mov_b32 s{sSo}, {NB*8192}
  v_mov_b32 {v(vDum)}, 3
  s_waitcnt lgkmcnt(0)
  s_barrier""")
    stamp(a, 252, 45)
    NS = 19
    sdt = lambda r: (20 + r) % 25 if r < 8 else r + 1
    SD = lambda r: ACC[sdt(r)]
    gv = []
    def gwait(x, extra=""): a(f"  s_waitcnt vmcnt({len(gv) - 1 - gv.index(x)}){extra}")
    def rd(r): a(f"  ds_read_b128 {v(SD(r),4)}, {v(PT+2 + r//8)} offset:{(r%8)*8192}")
    def st(r, lst=None):
        a(f"  buffer_store_dwordx4 {v(SD(r),4)}, {v(vL16)}, {s(sRW,4)}, s{sSo} offen sc1\n  s_add_u32 s{sSo}, s{sSo}, 8192")
        if lst is not None: lst.append(("st", r))
    zero_acc = lambda t: a(f"  v_mov_b64 {v(ACC[t],2)}, 0\n  v_mov_b64 {v(ACC[t]+2,2)}, 0")
    flag3 = f"  buffer_store_dword {v(vDum)}, {v(vFlg)}, {s(sFLG,4)}, 0 offen sc1"
    N1, N3 = OPT["n1"], OPT["n3"]
    if not OPT["wall"] and OPT["sq"] < 0:
        a(f"  s_cmp_gt_u32 s{sO2}, {NB*8192 // 6 - 2}\n  s_cbranch_scc1 L_noearly")
        a(flag3)
        a.label("L_noearly")
    a(f"""
  buffer_load_dwordx4 {v(Q,4)}, {v(vTab)}, {s(sTAB,4)}, 0 offen sc1
  buffer_load_dwordx2 {v(Q+4,2)}, {v(vTab)}, {s(sTAB,4)}, 0 offen offset:16 sc1""")
    gv.extend([("tab", 0), ("tab", 1)])
    if cpf(1, 24): gv.append(("c", 1))
    for r in range(NB, NS): rd(r)
    nxt = NB + N1
    for r in range(NB, nxt):
        a(f"  s_waitcnt lgkmcnt({NS - 1 - r})")
        st(r, gv)
    a(f"""
  s_waitcnt lgkmcnt(0)
  s_cmp_gt_u32 s{sO2}, {NB*8192 // 6 - 2}
  s_cbranch_scc1 L_allfirst""")
    if OPT["wall"]: a(f"  s_waitcnt vmcnt({len(gv)})")
    a("  s_barrier")
    if OPT["wall"]: a(flag3)
    a.label("L_allfirst_back")
    stamp(a, 252, 46)
    pend = list(range(nxt, NS))
    keep = OPT["n3"]
    slot = [0]
    def st1(n=1):
        on = OPT["smask"] >> slot[0] & 1 or n > 1
        slot[0] += 1
        for _ in range(n):
            if on and len(pend) > keep: st(pend.pop(0), gv)
    st1()
    RBR, WD = Wa, Wa + 14
    if DMA:
        for p in range(14): a(f"  v_mov_b32 {v(RBR+p)}, {v(RBK[p]) if p < 13 else 0}")
        a(f"  v_mov_b32 {v(WD)}, {v(WDK[0])}\n  v_mov_b32 {v(WD+1)}, {v(WDK[1])}")
        st1()
    else:
        a(f"""
  s_mul_i32 s{sX}, s{sW}, 3584
  s_add_u32 s{sX}, s{sX}, {RB_OFF}
  v_and_b32 {v(T+8)}, 63, v0
  v_lshl_add_u32 {v(T+9)}, {v(T+8)}, 3, s{sX}
  v_bfe_u32 {v(T+8)}, v0, 4, 1
  v_cmp_eq_u32 vcc, 1, {v(T+8)}""")
        for p in range(14): a(f"  ds_write_b32 {v(T+9)}, {v(RBK[p] if p < 13 else vZ)} offset:{(p//2)*512 + (p%2)*4}")
        st1()
        for r in range(4):
            a(f"  v_cndmask_b32 {v(Wa+r)}, {v(WDK[r])}, {v(vZ)}, vcc")
            a(f"  v_cndmask_b32 {v(Wb+r)}, {v(vZ)}, {v(WDK[r])}, vcc")
    a(f"""
  v_mov_b32 {v(WS0+1)}, 0
  v_mov_b32 {v(WS1+1)}, 0
  v_mov_b32 {v(WR+1)}, 0
  v_mov_b32 {v(sA)}, 0
  v_mov_b32 {v(nA)}, 0
  v_mov_b32 {v(rtot)}, 0""")
    ZR = range(Wa + 16, Wa + 32, 2) if DMA else range(RING[0], RING[0] + 20, 2)
    for r in ZR: a(f"  v_mov_b64 {v(r,2)}, 0")
    st1()
    a(f"""
  s_mul_i32 s{sFl}, s{sJ}, {2*CARLIST}
  s_add_u32 s{sFl}, s{sFl}, {CAROFF}""")
    srd(a, sREC, sWS, sWS+1, None, NCH * CH * 6)
    a(f"  s_mov_b32 s{sM}, s48\n  s_or_b32 s{sM+1}, s49, 0x20000\n  s_mov_b32 s{sM+2}, {E*16}\n  s_mov_b32 s{sM+3}, 0x20000")
    srd(a, sCAR, sWS, sWS+1, f"s{sFl}", 2 * CARLIST)
    srd(a, sOUT, 70, 71, None, f"s{sRb}")
    srd(a, sMW, 48, 49, None, f"s{sRb}")
    for t in list(range(3, 9)) + [sdt(r) for r in range(NB)]: zero_acc(t)
    st1()
    a(f"""
  v_mov_b32 {v(vSent)}, {SENT}
  v_mov_b32 {v(T)}, 0
  v_mov_b32 {v(T+1)}, {v(vSent)}
  v_mov_b32 {v(T+2)}, 0
  v_mov_b32 {v(T+3)}, {v(vSent)}
  v_add_u32 {v(T+6)}, {7*8192}, {v(vL16)}""")
    for r in range(13):
        a(f"  ds_write_b128 {v(vL16 if r < 7 else T+6)}, {v(T,4)} offset:{(r%7)*8192}")
        if r % 5 == 4: st1()
    a(f"""
  v_and_b32 {v(T+6)}, 15, v0
  v_lshl_add_u32 {v(T+6)}, {v(T+6)}, 2, {v(vCtlN)}
  ds_write_b32 {v(T+6)}, {v(vZ)}
  ds_write_b128 {v(vSst if (DMA or STR) else vSrd)}, {v(ACC[3],4)}""")
    if DMA:
        for q in range(D): a(f"  ds_write_b128 {v(vSst)}, {v(ACC[3],4)} offset:{1024*(q+1)}")
    for q in range(D): a(f"  v_mov_b32 {v(SA[q])}, {v(vSst)}\n  v_mov_b32 {v(CC[q])}, 0")
    gwait(("tab", 1))
    a(f"  v_lshrrev_b32 {v(rem)}, 16, {v(Q)}")
    for i in range(1, K):
        a(f"  v_lshrrev_b32 {v(T+4)}, 16, {v(Q+i)}\n  v_add_u32 {v(rem)}, {v(rem)}, {v(T+4)}")
    state_update()
    for u in range(0, 16, 2):
        a(f"""
  v_add_u32_dpp {v(REC[u])}, {v(vB6)}, {v(vI6)} {bc(u)}
  v_sub_u32_dpp {v(REC[u]+1)}, {v(vRT4)}, {v(vI4)} {bc(u)}
  v_add_u32_dpp {v(REC[u+1])}, {v(vB6)}, {v(vI6)} {bc(u+1)}
  v_sub_u32_dpp {v(REC[u+1]+1)}, {v(vRT4)}, {v(vI4)} {bc(u+1)}
  v_bfi_b32 {v(REC[u])}, {v(vMsk)}, {v(REC[u])}, {v(REC[u]+1)}
  v_bfi_b32 {v(REC[u+1])}, {v(vMsk)}, {v(REC[u+1])}, {v(REC[u+1]+1)}""")
        if u == OPT["eb"]:
            a(f"  s_cmp_lg_u32 s{sW}, 0\n  s_cbranch_scc1 L_noeb")
            a(flag_load(FP, RK[0]))
            a.label("L_noeb")
            ebm = len(gv)
        if u % 4 == 2: st1()
    state_update2()
    state_update()
    state_update2()
    st1()
    st1(NS)
    a("  s_nop 0")
    nx3 = NS - len(pend)
    for r in range(NB, nx3): zero_acc(sdt(r))
    stamp(a, 252, 47)
    if OPT["pf0"] == 3:
        share = (OPT["wmain"] // 4 + 31) // 32
        a(f"""
  s_cmp_eq_u32 s{sW}, 0
  s_cbranch_scc1 L_nopf
  s_lshr_b32 s{sX}, s2, 3
  s_mul_i32 s{sX}, s{sX}, {share*128}
  v_lshlrev_b32 {v(TA[1])}, 7, v0
  buffer_load_dword {v(WW[1])}, {v(TA[1])}, {s(sM,4)}, s{sX} offen""")
        a.label("L_nopf")
    a(f"  s_cmp_lg_u32 s{sW}, 0\n  s_cbranch_scc1 L_polled_b")
    if OPT["eb"] >= 0:
        a(f"  s_waitcnt vmcnt({len(gv) - ebm})")
        a(flag_cond(FP, 2))
        a("  s_cbranch_vccz L_polled_b")
    poll("b", flag_load(FP, RK[0]), flag_cond(FP, 2), OPT["nap"])
    a("  s_waitcnt lgkmcnt(0)")
    a("  s_barrier")
    stamp(a, 252, 1)
    def pro_ld(us):
        for u in us:
            a(f"  buffer_load_dwordx2 {v(REC[u],2)}, {v(REC[u])}, {s(sREC,4)}, 0 offen{RPOL}")
            gv.append(("rec", u))
    NL0 = OPT["nl0"]
    if OPT["gprio"]:
        a(f"  s_cmp_lt_u32 s{sW}, 4\n  s_cbranch_scc1 L_gp\n  s_setprio 1")
        a.label("L_gp")
    pro_ld(range(NL0))
    NG = NS
    stamp(a, 252, 12)
    set_flag("pro")
    stamp(a, 252, 13)
    PTA = (lambda u: (list(range(Db, Sf + 4)) + [TA[0], TA[1], RK[1], WW[1]])[u]) if DMA else (lambda u: Da + u)
    PRK = (lambda u: Wa + 16 + u) if DMA else (lambda u: RING[0] + u)
    PMK = lambda u: sPM + 2 * (u % 8)
    slowg = []
    def pro_ins1(g):
        us = range(4*g, 4*g+4)
        gwait(("rec", 4*g+3))
        for u in us:
            a(f"""
  v_cmp_gt_i32 vcc, 0, {v(REC[u])}
  v_min_i32 {v(PTA(u))}, {v(REC[u])}, {v(REC[u]+1)}
  v_cmp_gt_i32 {s(PMK(u),2)}, 0, {v(PTA(u))}
  v_cndmask_b32_sdwa {v(REC[u])}, {v(REC[u])}, {v(REC[u]+1)}, vcc {SDWA}
  v_mov_b32 {v(REC[u]+1)}, {v(PTA(u))}""")
        for u in us: a(f"  v_bfe_u32 {v(PTA(u))}, {v(PTA(u))}, 23, 8")
        for u in us: a(f"  v_mul_u32_u24 {v(PTA(u))}, {v(PTA(u))}, {v(v264)}")
        for u in us: a(f"  s_mov_b64 exec, {s(PMK(u),2)}\n  ds_add_rtn_u32 {v(PRK(u))}, {v(PTA(u))}, {v(vOne)}")
        a("  s_mov_b64 exec, -1")
    def pro_ins2(g):
        us = list(range(4*g, 4*g+4))
        a(f"""
  v_max3_u32 {v(T)}, {v(PRK(us[0]))}, {v(PRK(us[1]))}, {v(PRK(us[2]))}
  v_max_u32 {v(T)}, {v(T)}, {v(PRK(us[3]))}
  v_cmp_lt_u32 vcc, 31, {v(T)}
  s_cbranch_vccz L_pfast_{g}
  v_cmp_lt_u32 vcc, 63, {v(T)}
  s_cbranch_vccnz L_pslow_{g}""")
        a.label(f"L_pback_{g}")
        for x, u in enumerate(us): a(f"  v_subrev_u32 {v(T+4+x)}, 31, {v(PRK(u))}")
        for x, u in enumerate(us): a(f"  s_mov_b64 exec, {s(PMK(u),2)}\n  ds_max_i32 {v(PTA(u))}, {v(T+4+x)} offset:{BUFSZ}")
        a(f"  s_mov_b64 exec, -1\n  ds_write_b32 {v(vCtlN)}, {v(vOne)} offset:4")
        for x, u in enumerate(us): a(f"  v_lshrrev_b32 {v(T+4+x)}, 5, {v(PRK(u))}")
        for x, u in enumerate(us): a(f"  v_mad_u32_u24 {v(PTA(u))}, {v(T+4+x)}, s{sThr}, {v(PTA(u))}")
        a.label(f"L_pfast_{g}")
        for u in us: a(f"  v_lshl_add_u32 {v(PTA(u))}, {v(PRK(u))}, 3, {v(PTA(u))}")
        for u in us: a(f"  s_mov_b64 exec, {s(PMK(u),2)}\n  ds_write_b64 {v(PTA(u))}, {v(REC[u],2)} offset:8")
        a("  s_mov_b64 exec, -1")
        slowg.append(g)
    a(f"  s_mov_b32 s{sThr}, {BUFSZ - 256}")
    left = list(range(nx3, NS))
    per = (len(left) + 3) // 4
    def some():
        for _ in range(per):
            if left: st(left.pop(0), gv)
    pro_ins1(0)
    stamp(a, 252, 3)
    pro_ld(range(NL0, 16))
    def pf():
        share = (OPT["wmain"] // 4 + 31) // 32
        a(f"""
  s_lshr_b32 s{sX}, s2, 3
  s_mul_i32 s{sX}, s{sX}, {share*128}
  v_lshlrev_b32 {v(TA[1])}, 7, v0
  buffer_load_dword {v(WW[1])}, {v(TA[1])}, {s(sM,4)}, s{sX} offen""")
        gv.append(("pf", 0))
    if OPT["pf0"] == 1:
        while left: st(left.pop(0), gv)
        pf()
    pro_ins1(1)
    some()
    a("  s_waitcnt lgkmcnt(0)")
    if OPT["gprio"] == 1: a("  s_setprio 0")
    pro_ins2(0); some(); pro_ins1(2)
    if OPT["gprio"] == 2: a("  s_setprio 0")
    pro_ins2(1); some(); pro_ins1(3); some()
    if OPT["gprio"] == 3: a("  s_setprio 0")
    if OPT["pf0"] == 2: pf()
    stamp(a, 252, 8)
    a("  s_nop 0")
    for r in range(nx3, NS): zero_acc(sdt(r))
    a("  s_waitcnt lgkmcnt(0)")
    pro_ins2(2); pro_ins2(3)
    stamp(a, 252, 11)
    a(f"  v_cmp_ne_u32 vcc, 0, {v(vR0)}\n  s_or_b32 s85, vcc_lo, vcc_hi")
    if DMA:
        a(f"  s_mul_i32 s{sRing}, s{sW}, {WSTR}\n  s_add_u32 s{sRing}, s{sRing}, {S_OFF + 1024}")
        for r in range(P, Sf + 4, 2): a(f"  v_mov_b64 {v(r,2)}, 0")
    a("  s_branch L_turn2")
    def signal_all(tag, n):
        a(f"""
  v_mov_b32 {v(T+4)}, {CTL + 32}
  s_waitcnt vmcnt({n})
  s_mov_b64 exec, 1
  ds_add_rtn_u32 {v(T+5)}, {v(T+4)}, {v(vOne)}
  s_mov_b64 exec, -1
  v_and_b32 {v(T+6)}, 63, v0
  s_lshl_b32 s{sX}, s2, 2
  v_lshl_add_u32 {v(T+6)}, {v(T+6)}, 10, s{sX}
  v_mov_b32 {v(T+7)}, 4
  s_waitcnt lgkmcnt(0)
  v_readfirstlane_b32 s{sX}, {v(T+5)}
  s_cmp_lg_u32 s{sX}, 7
  s_cbranch_scc1 L_nosig_{tag}
  buffer_store_dword {v(T+7)}, {v(T+6)}, {s(sFLG,4)}, 0 offen sc1""")
        a.label(f"L_nosig_{tag}")

    INS0 = OPT["ins0"]
    def sread():
        if DMA or STR: tr(Sf, vSrd, 0)
        else: a(f"  ds_read_b128 {v(Sf,4)}, {v(vSrd)}")
    def cstage_head(q):
        a(f"  ds_write_b16 {v(SA[q])}, {v(CC[q])}")
        sread()
        a(f"  ds_write_b16 {v(SA[q])}, {v(vZ)}")
    def cstage_m1(q):
        a(f"""
  v_mfma_f32_16x16x32_bf16 {v(Da,4)}, {v(RING[q],4)}, {v(Wa,4)}, 0
  v_mfma_f32_16x16x32_bf16 {v(Db,4)}, {v(RING[q],4)}, {v(Wb,4)}, 0""")
    def cstage_cvt():
        a(f"""
  v_cvt_pk_bf16_f32 {v(P)}, {v(Da)}, {v(Da+1)}
  v_cvt_pk_bf16_f32 {v(P+1)}, {v(Da+2)}, {v(Da+3)}
  v_cvt_pk_bf16_f32 {v(P+2)}, {v(Db)}, {v(Db+1)}
  v_cvt_pk_bf16_f32 {v(P+3)}, {v(Db+2)}, {v(Db+3)}""")
    def cstage_m2(tc):
        a(f"  v_mfma_f32_16x16x32_bf16 {v(ACC[tc],4)}, {v(P,4)}, {v(Sf,4)}, {v(ACC[tc],4)}")
    def tr(dst, addr, off):
        a(f"  ds_read_b64_tr_b16 {v(dst,2)}, {v(addr)} offset:{off}\n  ds_read_b64_tr_b16 {v(dst+2,2)}, {v(addr)} offset:{off+512}")
    def fetch(q):
        a(f"  ds_write_b16 {v(SA[q])}, {v(CC[q])}")
        tr(Sf, vSrd, 0)
        a(f"  ds_write_b16 {v(SA[q])}, {v(vZ)}")
        tr(P, vSrd, 1024 * (q + 1))
    nds = [0]
    def step_top(t, reset=True):
        a(f"  ; ---- step {t}")
        nds[0] = len(a.lines)
        cstage_head(t % D)
        if t < NT - 1:
            a(f"  ds_read_b64 {v(RP[(t+1)&1],2)}, {v(vRd)} offset:{(t+1)*TS+8}")
        if reset and t < NT:
            a(f"  ds_write_b32 {v(vRd)}, {v(vSent)} offset:{t*TS+12}")
    assert not DMA
    def step_a(t, n):
        q = t % D
        rp = RP[t & 1]
        off, af, e = T + 1, T + 2, T + 3
        assert all(l.strip().startswith("ds_") for l in a.lines[nds[0]:])
        a(f"  s_waitcnt vmcnt({n}) lgkmcnt({len(a.lines) - nds[0]})")
        cstage_m1(q)
        mark = len(a.lines)
        if t < NT:
            a(f"""
  v_and_or_b32 {v(off)}, {v(rp+1)}, {v(vSent)}, {v(vHalf)}
  v_mul_f32 {v(af)}, {v(rp)}, {v(vFreq)}""")
            if not STR: a(f"  v_and_b32 {v(e)}, 14, {v(rp+1)}")
            a(f"""
  buffer_load_dwordx4 {v(RING[q],4)}, {v(off)}, {s(sM,4)}, 0 idxen
  v_cos_f32 {v(af)}, {v(af)}""")
            if STR: a(f"  v_and_or_b32 {v(SA[q])}, {v(rp+1)}, 14, {v(vSst)}")
            else: a(f"  v_lshl_add_u32 {v(SA[q])}, {v(e)}, 3, {v(vSst)}")
            a(f"  v_cvt_pk_bf16_f32 {v(CC[q])}, {v(af)}, {v(af)}")
        return mark
    def step_b(t, mark, reset=True):
        n = 0
        for l in a.lines[mark:]:
            if l.endswith(":") or l.strip().startswith(";"): continue
            n += 1
            if "s_cbranch" in l: break
        if n < 7: a(f"  s_nop {6 - n}")
        lg = (2 if t < NT-1 else 1) + (1 if reset and t < NT else 0)
        cstage_cvt()
        a(f"  s_waitcnt lgkmcnt({lg})\n  s_nop 0")
        cstage_m2((t - D) % NT)

    LD0 = INS0 - OPT["lead"]
    assert LD0 >= 0
    sTwo = 85
    order = []
    for t in range(NT):
        order.append(("W", t))
        order.append(("g", t))
        if t == 0: order.append(("rec", 16))
        if 0 <= t - LD0 < 16: order.append(("rec", t - LD0))
        order.append(("V", t))
    isop = lambda x: x[0] not in "WV"
    assert all(x[0] == "g" for x in order[order.index(("g", NT - D)):] if isop(x))
    def younger(target, at):
        n = len(order); i = order.index(target); cnt = 0
        j = (i + 1) % n
        while j != at:
            if isop(order[j]): cnt += 1
            j = (j + 1) % n
        return cnt
    RBH = 1
    def prio(tag, mask, t):
        cur = mask >> t & 1; prev = (mask >> (t - 1) & 1) if t else 0
        if cur and not prev:
            a(f"  s_cmp_lt_u32 s{sW}, 4\n  s_cbranch_scc1 L_{tag}prio{t}\n  s_setprio 1")
            a.label(f"L_{tag}prio{t}")
        if prev and not cur: a("  s_setprio 0")
    assert not OPT["lprio"] >> (NT - 1)
    def step0_extra():
        a(f"""
  v_cmp_gt_u32 vcc, s{sCin}, {v(vCarIdx)}
  s_add_u32 s{sX}, s{sIt}, 2
  s_and_b32 s{sX}, s{sX}, 3
  s_lshl_b32 s{sX}, s{sX}, 3
  s_add_u32 s{sX}, s{sX}, {CTL}
  v_mov_b32 {v(T+1)}, s{sX}
  ds_write_b64 {v(T+1)}, {v(vZ,2)}
  ds_write_b32 {v(vCntA)}, {v(vZ)}
  v_cndmask_b32 {v(T)}, {v(vOOB)}, {v(vCarOff)}, vcc
  buffer_load_dwordx2 {v(REC[16],2)}, {v(T)}, {s(sCAR,4)}, s{sCarR} offen sc1""")
    two = f"  v_cmp_ne_u32 vcc, 0, {v(vR0)}\n  s_or_b32 s{sTwo}, vcc_lo, vcc_hi"
    FC = Q_FC = REC[0]
    FO = REC[2]
    a(".p2align 6")
    a.label("L_loop")
    for t in range(NT):
        step_top(t)
        mk = step_a(t, younger(("g", (t - D) % NT), order.index(("W", t))))
        if t == 0: step0_extra()
        prio("lp", OPT["lprio"], t)
        ul = t - LD0
        if 0 <= ul < 16:
            a(f"""
  s_cmp_lg_u32 s{sTwo}, 0
  v_add_u32_dpp {v(T+4)}, {v(vB6)}, {v(vI6)} {bc(ul)}
  v_sub_u32_dpp {v(T+5)}, {v(vRT4)}, {v(vI4)} {bc(ul)}
  s_cbranch_scc1 L_two_{ul}""")
            a.label(f"L_two_back_{ul}")
            a(f"""
  v_bfi_b32 {v(T+4)}, {v(vMsk)}, {v(T+4)}, {v(T+5)}
  buffer_load_dwordx2 {v(REC[ul],2)}, {v(T+4)}, {s(sREC,4)}, 0 offen{RPOL}""")
        if ul == 16:
            a(f"""
  s_cmp_lg_u32 s{sThr}, 0
  s_cbranch_scc1 L_nostate
  s_cmp_eq_u32 s{sIt}, 0
  s_cbranch_scc1 L_borrow""")
            a.label("L_borrow_back")
            state_update(); state_update2()
            a(two)
            a.label("L_nostate")
            set_flag("lp")
        u1 = t - INS0; u2 = u1 - 1
        if 0 <= u2 < 17: ins2(u2, "lp", u2 & 1)
        if 0 <= u1 < 17:
            a(f"  s_waitcnt vmcnt({younger(('rec', u1), order.index(('V', t)))})")
            ins1(u1, f"s{sThr}" if u1 < 16 else "0", u1 & 1)
        if t == 2:
            a(f"  s_cmp_eq_u32 s{sIt}, 0\n  s_cbranch_scc1 L_sig")
            a.label("L_nosig_b0")
            nsig = sum(1 for x in order[:order.index(("V", t))] if isop(x))
        if t == INS0 + 18:
            a(f"  s_cmp_gt_u32 s{sCin}, 512\n  s_cbranch_scc1 L_slow_lp")
            a.label("L_slow_back_lp")
            a(f"  s_or_b32 s{sX}, s{sIt}, s{sW}\n  s_cbranch_scc0 L_ldc")
            a.label("L_ldc_back")
        step_b(t, mk)
    a(f"""
  s_waitcnt vmcnt({NT - (INS0 + 18)})
  s_or_b32 s{sX}, s{sIt}, s{sW}
  s_cbranch_scc0 L_chkc""")
    a.label("L_turn2")
    a(f"""
  v_mov_b32 {v(T)}, {v(vCtlN)}
  s_add_u32 s{sIt}, s{sIt}, 1
  s_add_u32 s{sX}, s{sIt}, 1
  s_and_b32 s{sX}, s{sX}, 3
  s_lshl_b32 s{sX}, s{sX}, 3
  s_add_u32 s{sX}, s{sX}, {CTL}
  v_mov_b32 {v(vCtlN)}, s{sX}
  s_sub_u32 s{sX}, s{sIns}, {BUFSZ}
  s_add_u32 s{sX}, s{sX}, s{sIns}
  v_add_u32 {v(vRd)}, s{sX}, {v(vRd)}
  v_add_u32 {v(vCntA)}, s{sX}, {v(vCntA)}
  s_sub_u32 s{sIns}, {BUFSZ}, s{sIns}
  s_mov_b32 s{sCarR}, s{sCarW}
  s_sub_u32 s{sCarW}, {CARLIST}, s{sCarW}
  s_waitcnt lgkmcnt(0)""")
    if OPT["stamp"] == 1:
        a(f"  s_lshl_b32 s90, s{sIt}, 1\n  s_add_u32 s90, s90, 16\n  s_min_u32 m0, s90, 36")
        stamp(a, 252, "m0")
        a("  s_add_u32 m0, m0, 1")
    a("  s_barrier")
    stamp(a, 252, "m0")
    a(f"""
  ds_read_b64 {v(T+2,2)}, {v(T)}
  ds_read_b64 {v(RP[0],2)}, {v(vRd)} offset:8
  s_waitcnt lgkmcnt(1)
  v_readfirstlane_b32 s{sCin}, {v(T+2)}
  v_readfirstlane_b32 s{sFl}, {v(T+3)}
  s_cmp_gt_u32 s{sCin}, 512
  s_cselect_b32 s{sThr}, 0x80000000, 0
  s_min_u32 s{sCin}, s{sCin}, {CARCAP}
  s_cmp_gt_u32 s{sCin}, 32
  s_cselect_b32 s{sFl}, 1, s{sFl}
  s_cmp_lt_u32 s{sIt}, {OPT['itcap']}
  s_cselect_b32 s{sFl}, s{sFl}, 0
  s_cmp_lg_u32 s{sFl}, 0
  s_cbranch_scc1 L_loop
  s_cmp_eq_u32 s{sIt}, 0
  s_cbranch_scc1 L_it0""")
    a.label("L_nosig_z")

    RBv = RBR if DMA else Q
    assert vRT4 - Q + 1 >= 14
    R0 = REC[0]
    G0, G1, RR, U = R0, R0 + 4, R0 + 8, R0 + 12
    XS0, XS1, XR, AG = R0 + 16, R0 + 18, R0 + 20, R0 + 22
    MS = [R0 + 24 + 2 * i for i in range(5)]
    vMoff, vLin, vOw, vOr = vCarOff, vI6, vI1, vI4
    a(f"""
  v_and_b32 {v(T)}, 63, v0
  s_mul_i32 s{sX}, s{sW}, 3584
  s_add_u32 s{sX}, s{sX}, {RB_OFF}
  v_lshl_add_u32 {v(T+1)}, {v(T)}, 3, s{sX}
  v_lshlrev_b32 {v(vLin)}, 4, {v(T)}
  v_bfe_u32 {v(T+2)}, v0, 4, 2
  v_and_b32 {v(T+3)}, 15, v0
  v_lshlrev_b32 {v(T+2)}, 3, {v(T+2)}
  v_lshl_add_u32 {v(vMoff)}, {v(T+3)}, 5, {v(T+2)}
  s_mul_i32 s{sX}, s{sW}, 6400
  s_add_u32 s{sX}, s{sX}, s{sIns}
  s_add_u32 s{sX}, s{sX}, 15
  s_and_b32 s{sX}, s{sX}, -16
  v_add_u32 {v(vOw)}, s{sX}, {v(vMoff)}
  v_add_u32 {v(vOr)}, s{sX}, {v(vLin)}
  v_cmp_gt_u32 {s(sT,2)}, 8, {v(T+3)}""")
    for h in range(0 if DMA else 7):
        a(f"  ds_read_b64 {v(RBv+2*h,2)}, {v(T+1)} offset:{h*512}")
    if DMA: a(f"  s_mov_b32 s{sCnt[0]}, s{sX}")
    def s0(tl):
        x = ACC[tl]
        a(f"""
  v_cvt_pk_bf16_f32 {v(Da)}, {v(x)}, {v(x+1)}
  v_cvt_pk_bf16_f32 {v(Da+1)}, {v(x+2)}, {v(x+3)}
  s_nop 1
  v_mfma_f32_16x16x16_bf16 {v(x,4)}, {v(WD,2)}, {v(Da,2)}, 0""")
    fo = [("g", t - NT) for t in range(NT - D, NT)]
    def fwait(x): return len(fo) - 1 - fo.index(x)
    def s1(p):
        b = RBv + (p & ~1)
        w0, w1 = (WS0, WS1) if p % 2 == 0 else (XS0, XS1)
        a(f"""
  v_mfma_f32_16x16x16_bf16 {v(G0,4)}, {v(w0,2)}, {v(b,2)}, 0
  v_mfma_f32_16x16x16_bf16 {v(G1,4)}, {v(w1,2)}, {v(b,2)}, 0""")
    def s2(p):
        t0 = ACC[2*p]; t1 = ACC[2*p+1] if 2*p+1 < NT else ACC[2*p]
        for r in range(4): a(f"  v_mul_f32 {v(U+r)}, {v(t0+r)}, {v(G0+r)}")
        for r in range(4): a(f"  v_mul_f32_dpp {v(U+r)}, {v(t1+r)}, {v(G0+r)} row_ror:8 row_mask:0xf bank_mask:0xc")
        for r in range(4): a(f"  v_fmac_f32_dpp {v(U+r)}, {v(t0+r)}, {v(G1+r)} row_ror:8 row_mask:0xf bank_mask:0x3")
        for r in range(4): a(f"  v_fmac_f32_dpp {v(U+r)}, {v(t1+r)}, {v(G1+r)} quad_perm:[0,1,2,3] row_mask:0xf bank_mask:0xc")
        a(f"""
  v_cvt_pk_bf16_f32 {v(AG)}, {v(U)}, {v(U+1)}
  v_cvt_pk_bf16_f32 {v(AG+1)}, {v(U+2)}, {v(U+3)}
  v_mfma_f32_16x16x16_bf16 {v(RR,4)}, {v(WR if p % 2 == 0 else XR,2)}, {v(RBv + (p & ~1),2)}, 0""")
        if p + 1 < 13: s1(p + 1)
        else: a("  s_nop 0")
        a(f"  v_mfma_f32_16x16x16_bf16 {v(U,4)}, {v(WUP,2)}, {v(AG,2)}, 0")
    def s3(p):
        x = ACC[2*p]; m_ = MS[p % 5]
        a(f"""
  s_waitcnt vmcnt({fwait(("m", p))})
  v_lshlrev_b32 {v(x)}, 16, {v(m_)}
  v_and_b32 {v(x+1)}, 0xffff0000, {v(m_)}
  v_lshlrev_b32 {v(x+2)}, 16, {v(m_+1)}
  v_and_b32 {v(x+3)}, 0xffff0000, {v(m_+1)}""")
        if p == 12: a("  s_nop 2")
        a(f"""
  v_pk_fma_f32 {v(x,2)}, {v(U,2)}, {v(RR,2)}, {v(x,2)}
  v_pk_fma_f32 {v(x+2,2)}, {v(U+2,2)}, {v(RR+2,2)}, {v(x+2,2)}
  v_cvt_pk_bf16_f32 {v(x)}, {v(x)}, {v(x+1)}
  v_cvt_pk_bf16_f32 {v(x+1)}, {v(x+2)}, {v(x+3)}""")
        if p == 12: a(f"  s_mov_b64 exec, {s(sT,2)}")
        a(f"  ds_write_b64 {v(vOw)}, {v(x,2)} offset:{p*512}")
        if p == 12: a(f"  s_mov_b64 exec, -1")
        if p % 2 == 1 or p == 12:
            r = p // 2
            a(f"  ds_read_b128 {v(ACC[4*r+1 if r < 6 else 23],4)}, {v(vOr)} offset:{r*1024}")
    def s4(r):
        a(f"  buffer_store_dwordx4 {v(ACC[4*r+1 if r < 6 else 23],4)}, {v(vLin)}, {s(sOUT,4)}, s{sEb if r < 4 else sEb2} offen offset:{(r%4)*1024}{POL[OPT['opol']]}")
        fo.append(("st", r))
    xw = {}
    for t in range(NT + D + 2):
        def x3():
            a(f"  s_cmp_lg_u32 s{sCin}, 0\n  s_cbranch_scc1 L_x3")
            a.label("L_x3_back")
            xw[3] = len(fo) - xw[2]
        if t == 6 and not DMA: x3()
        if t < NT + D: step_top(t, False)
        else: a(f"  ; ---- tail {t}\n  s_waitcnt lgkmcnt(0)")
        if t < NT + D:
            mk = step_a(t, fwait(("g", t - D)))
            if t < NT: fo.append(("g", t))
        prio("fp", OPT["fprio"], t)
        if t in (0, 3):
            n = 1 if t == 0 else 2
            a(f"  s_cmp_lg_u32 s{sCin}, 0\n  s_cbranch_scc1 L_x{n}")
            a.label(f"L_x{n}_back")
            xw[n] = len(fo)
        if t == NT: stamp(a, 252, 4)
        if t == NT + D: stamp(a, 252, 5)
        if t == 1:
            a(f"""
  v_mov_b32 {v(XS0)}, 0
  v_mov_b32 {v(XS0+1)}, {v(WS0)}
  v_mov_b32 {v(XS1)}, 0
  v_mov_b32 {v(XS1+1)}, {v(WS1)}
  v_mov_b32 {v(XR)}, 0
  v_mov_b32 {v(XR+1)}, {v(WR)}""")
        if t == 5: s1(0)
        ts2 = {2*p+7 if p < 12 else 30: p for p in range(13)}
        if t - 2 in ts2 and (ts2[t-2] % 2 == 1): s4(ts2[t-2] // 2)
        if t - 1 in ts2: s3(ts2[t-1])
        if t in ts2: s2(ts2[t])
        if t % 2 == 1 and t // 2 < 13:
            p = t // 2
            a(f"  buffer_load_dwordx2 {v(MS[p%5],2)}, {v(vMoff)}, {s(sMW,4)}, s{sEb if p < 8 else sEb2} offen offset:{(p%8)*512}{POL[OPT['mpol']]}")
            fo.append(("m", p))
        if t < NT + D: step_b(t, mk, False)
        if t == NT + D - 1: a("  s_nop 3")
    a("  s_waitcnt lgkmcnt(0)")
    s4(6)
    stamp(a, 252, 6)
    if OPT["stamp"]: a("  s_waitcnt vmcnt(0)")
    stamp(a, 252, 7); stamp(a, 252, 63, "s_memrealtime")
    if OPT["stamp"] == 1: a(f"  v_writelane_b32 v252, s{sIt}, 61")
    stamp_out(a, 252, sWS, 8, STAMPOFF + 0x200000, 253)
    a.label("L_end")
    a("  s_endpgm")

    sSm, sS2 = sMk
    a.label("L_x1")
    a(f"""
  v_cmp_gt_u32 vcc, s{sCin}, {v(vSlot)}
  v_lshlrev_b32 {v(T)}, 3, {v(vSlot)}
  s_nop 0
  v_cndmask_b32 {v(T)}, {v(vOOB)}, {v(T)}, vcc
  buffer_load_dwordx2 {v(AG,2)}, {v(T)}, {s(sCAR,4)}, s{sCarR} offen sc1
  s_branch L_x1_back""")
    a.label("L_x2")
    a(f"""
  s_mul_i32 s{sX}, s{sW}, {NT}
  s_waitcnt vmcnt({xw[2] - xw[1]})
  v_min_i32 {v(U)}, {v(AG)}, {v(AG+1)}
  v_cmp_gt_i32 vcc, 0, {v(AG)}
  v_bfe_u32 {v(U+2)}, {v(U)}, 23, 8
  v_subrev_u32 {v(U+2)}, s{sX}, {v(U+2)}
  v_cndmask_b32_sdwa {v(U+1)}, {v(AG)}, {v(AG+1)}, vcc dst_sel:WORD_1 dst_unused:UNUSED_PAD src0_sel:WORD_1 src1_sel:WORD_0
  v_cmp_gt_i32 {s(sS2,2)}, 0, {v(U)}
  v_cmp_gt_u32 {s(sSm,2)}, {NT}, {v(U+2)}
  s_and_b64 vcc, {s(sSm,2)}, {s(sS2,2)}
  s_cselect_b32 s{sCin}, s{sCin}, 0
  s_cbranch_scc0 L_x2_back
  v_and_or_b32 {v(T)}, {v(U)}, {v(vSent)}, {v(vHalf)}
  v_mul_f32 {v(U+1)}, {v(U+1)}, {v(vFreq)}
  s_mov_b32 m0, s{sCnt[0]}
  v_cndmask_b32 {v(T)}, {v(vSent)}, {v(T)}, vcc
  buffer_load_dwordx4 {(v(T) + ", " + s(sM,4) + ", 0 idxen lds") if DMA else (v(RR,4) + ", " + v(T) + ", " + s(sM,4) + ", 0 idxen")}
  v_cndmask_b32 {v(U+2)}, {v(vOOB)}, {v(U+2)}, vcc
  v_cos_f32 {v(U+1)}, {v(U+1)}
  v_and_b32 {v(U+3)}, 14, {v(U)}
  v_lshl_add_u32 {v(U+3)}, {v(U+3)}, {0 if (DMA or STR) else 3}, {v(vSst)}
  v_cvt_pk_bf16_f32 {v(U+1)}, {v(U+1)}, {v(U+1)}
  s_branch L_x2_back""")
    a.label("L_x3")
    a(f"  s_waitcnt vmcnt({xw[3]})")
    if DMA:
        a(f"  v_lshrrev_b32 {v(T)}, 1, {v(vLin)}\n  v_add_u32 {v(T)}, s{sCnt[0]}, {v(T)}")
        tr(P, T, 0)
    else:
        a(f"""
  v_mfma_f32_16x16x32_bf16 {v(Da,4)}, {v(RR,4)}, {v(Wa,4)}, 0
  v_mfma_f32_16x16x32_bf16 {v(Db,4)}, {v(RR,4)}, {v(Wb,4)}, 0
  s_nop 6""")
        cstage_cvt()
    for t in range(NT):
        a(f"""
  v_cmp_eq_u32 vcc, {t}, {v(U+2)}
  s_cbranch_vccz L_x3_{t}
  s_mov_b64 exec, vcc
  ds_write_b16 {v(U+3)}, {v(U+1)}
  s_mov_b64 exec, -1""")
        sread()
        a(f"""
  s_mov_b64 exec, vcc
  ds_write_b16 {v(U+3)}, {v(vZ)}
  s_mov_b64 exec, -1
  s_waitcnt lgkmcnt(0)""")
        cstage_m2(t)
        a.label(f"L_x3_{t}")
    a("  s_branch L_x3_back")
    a.label("L_it0")
    signal_all("z0", 0)
    a("  s_branch L_nosig_z")
    a.label("L_sig")
    signal_all("b1", nsig)
    a("  s_branch L_nosig_b0")
    rep = f"  s_and_b32 s{sX}, s2, {OPT['nrep']-1}\n  s_lshl_b32 s{sX}, s{sX}, 10"
    a.label("L_ldc")
    a(f"  v_lshlrev_b32 {v(FO)}, 4, v0")
    a(rep)
    a(flag_load(FC, FO))
    a("  s_branch L_ldc_back")
    a.label("L_chkc")
    a(f"  s_waitcnt vmcnt({NT - 1 - (INS0 + 18)})")
    a(flag_cond(FC, 4))
    a("  s_cbranch_vccz L_turn2")
    a(rep)
    poll("c", flag_load(FC, FO), flag_cond(FC, 4), OPT["nap"])
    a("  s_branch L_turn2")
    a.label("L_borrow")
    QL = Q + OPT['keff'] - 3
    a(f"""
  v_lshrrev_b32 {v(T)}, 16, {v(QL)}
  v_cmp_eq_u32 vcc, 0, {v(nA)}
  v_subrev_u32 {v(T+1)}, {OPT['lim']}, {v(T)}
  v_and_b32 {v(T+2)}, 0xffff, {v(QL)}
  v_max_i32 {v(T+1)}, 0, {v(T+1)}
  v_cndmask_b32 {v(T+1)}, {v(vZ)}, {v(T+1)}, vcc
  v_add_u32 {v(T+2)}, {v(T+2)}, {v(T)}
  v_sub_u32 {v(T+2)}, {v(T+2)}, {v(T+1)}
  v_cndmask_b32 {v(sA)}, {v(sA)}, {v(T+2)}, vcc
  v_add_u32 {v(nA)}, {v(nA)}, {v(T+1)}
  v_lshlrev_b32 {v(T+1)}, 16, {v(T+1)}
  v_sub_u32 {v(QL)}, {v(QL)}, {v(T+1)}
  s_branch L_borrow_back""")
    for u in range(16):
        a.label(f"L_two_{u}")
        a(f"""
  v_sub_co_u32_dpp {v(T+6)}, vcc, {v(vR0)}, {v(vI1)} {bc(u)}
  v_add_u32_dpp {v(T+6)}, {v(vA6)}, {v(vI6)} {bc(u)}
  s_nop 0
  v_cndmask_b32 {v(T+4)}, {v(T+6)}, {v(T+4)}, vcc
  s_branch L_two_back_{u}""")
    a.label("L_allfirst")
    a(f"  s_mov_b32 s{sY}, s{sSo}")
    for r in range(NB + N1, NS): st(r)
    a(f"  s_mov_b32 s{sSo}, s{sY}\n  s_waitcnt vmcnt(0)\n  s_barrier\n{flag3}\n  s_branch L_allfirst_back")
    for g in slowg:
        a.label(f"L_pslow_{g}")
        for u in range(4*g, 4*g+4):
            a(f"""
  s_mov_b64 exec, {s(PMK(u),2)}
  v_cmp_lt_u32 vcc, 63, {v(PRK(u))}
  s_cbranch_vccz L_pskip_{u}
  s_andn2_b64 {s(PMK(u),2)}, {s(PMK(u),2)}, vcc
  s_mov_b64 exec, vcc
  ds_add_rtn_u32 {v(T+1)}, {v(vCtlN)}, {v(vOne)}
  s_waitcnt lgkmcnt(0)
  v_lshlrev_b32 {v(T+1)}, 3, {v(T+1)}
  buffer_store_dwordx2 {v(REC[u],2)}, {v(T+1)}, {s(sCAR,4)}, s{sCarW} offen
  s_waitcnt vmcnt(0)""")
            a.label(f"L_pskip_{u}")
        a(f"  s_mov_b64 exec, -1\n  s_branch L_pback_{g}")
    for tag in ("lp",):
        a.label(f"L_slow_{tag}")
        a(f"  s_mov_b32 s{sX}, 512")
        a.label(f"L_slow_loop_{tag}")
        a(f"""
  v_add_u32 {v(T+1)}, s{sX}, {v(vCarIdx)}
  v_cmp_gt_u32 vcc, s{sCin}, {v(T+1)}
  v_lshlrev_b32 {v(T+1)}, 3, {v(T+1)}
  s_nop 0
  v_cndmask_b32 {v(T+1)}, {v(vOOB)}, {v(T+1)}, vcc
  buffer_load_dwordx2 {v(REC[16],2)}, {v(T+1)}, {s(sCAR,4)}, s{sCarR} offen sc1
  s_waitcnt vmcnt(0)""")
        ins1(16, "0", 0)
        a("  s_waitcnt lgkmcnt(0)")
        ins2(16, "sl" + tag, 0)
        a(f"""
  s_add_u32 s{sX}, s{sX}, 512
  s_cmp_lt_u32 s{sX}, s{sCin}
  s_cbranch_scc1 L_slow_loop_{tag}
  s_waitcnt vmcnt(0)
  s_branch L_slow_back_{tag}""")
    for lab, u, p in rare:
        a.label(f"L_rare_{lab}")
        a(f"""
  s_mov_b64 exec, vcc
  ds_add_rtn_u32 {v(RK[p])}, {v(vCtlN)}, {v(vOne)}
  v_mov_b32 {v(REC[u]+1)}, {v(WW[p])}
  s_waitcnt lgkmcnt(0)
  v_lshlrev_b32 {v(RK[p])}, 3, {v(RK[p])}
  buffer_store_dwordx2 {v(REC[u],2)}, {v(RK[p])}, {s(sCAR,4)}, s{sCarW} offen
  s_andn2_b64 exec, {s(sMk[p],2)}, vcc
  s_branch L_back_{lab}""")
    a.label("L_code_end")
    return NV

def kd(name, nv, ns):
    nv4 = (nv + 3) // 4 * 4
    return f""".amdhsa_kernel {name}
  .amdhsa_next_free_vgpr {nv}
  .amdhsa_next_free_sgpr {ns}
  .amdhsa_accum_offset {nv4}
  .amdhsa_group_segment_fixed_size 0
  .amdhsa_kernarg_size 112
  .amdhsa_user_sgpr_count 2
  .amdhsa_user_sgpr_kernarg_segment_ptr 1
  .amdhsa_system_sgpr_workgroup_id_x 1
  .amdhsa_float_denorm_mode_32 3
.end_amdhsa_kernel
"""

DOC = '; ---------------------------------------------------------------------------------------------\n;          in d_ws that every workgroup clears first; the zeroed d_debug counters confirm the clear).\n; ---------------------------------------------------------------------------------------------\n'

def main():
    out = sys.argv[1]
    ref = open(f"cdna_kernels/{NAME}.s.ref").read().split("\n")
    head = [l for l in ref if l.startswith(";") and "@launch" not in l and "Override" not in l and "grid=ceil" not in l]
    a = Asm()
    a(".amdgcn_target \"amdgcn-amd-amdhsa--gfx950\"\n.text")
    a(f".globl {NAME}_kernel\n.type {NAME}_kernel,@function")
    nv = gen_p2(a)
    errs = a.check()
    for e in errs: print("HAZARD", e)
    txt = "\n".join(head) + "\n"
    kern = f"kernel={NAME}_kernel " if OPT["list"] else ""
    txt += f"; @launch {kern}grid=(256,1,1) block=(512,1,1) lds={P1_LDS}\n"
    if OPT["probe"] >= 0:
        txt += "; @launch kernel=probe_kernel grid=(1,1,1) block=(64,1,1) lds=0\n"
        a(f"""
.p2align 8
probe_kernel:
  s_cmp_ge_u32 s2, 1
  s_cbranch_scc1 P_end
  s_load_dwordx2 s[4:5], s[0:1], 96
  s_waitcnt lgkmcnt(0)
  s_load_dwordx8 s[8:15], s[4:5], 0
  s_memrealtime s[16:17]
  s_waitcnt lgkmcnt(0)
  s_not_b32 s8, s8
  s_sub_u32 s20, s{8 + OPT['probe']}, s8
  {"s_lshr_b32 s20, s%d, 4" % (8 + OPT['probe']) if OPT['probe'] in (5, 7) else "s_nop 0"}
  s_min_u32 s20, s20, 20000
P_loop:
  s_memrealtime s[18:19]
  s_waitcnt lgkmcnt(0)
  s_sub_u32 s21, s18, s16
  s_cmp_lt_u32 s21, s20
  s_cbranch_scc1 P_loop
P_end:
  s_endpgm""")
    txt += DOC + a.text()
    txt += ".section .rodata,\"a\"\n.p2align 6\n" + kd(NAME + "_kernel", 256, 102) + (".p2align 6\n" + kd("probe_kernel", 8, 32) if OPT["probe"] >= 0 else "")
    open(out, "w").write(txt)
    print("vgprs p2:", nv, "lines:", len(a.lines), "hazards:", len(errs))

main()
```

```python
import sys, os
sys.path.insert(0, os.path.dirname(__file__))
from asmlib import Asm

NAME = "gather_scatter__molecular_angular_gemnet__graph"
E = 400000
NCH, CH = 250, 25600
EB = 1568
K = 6
MJ = 2739138
TABOFF = 0x2800000
CAROFF = 0x3000000
CARCAP = 9216
CARLIST = CARCAP * 8
STAMPOFF = 0x6000000
FLGOFF = 0x2c00000
OPT = dict(pw=0, mstep=18, late=0, mpf=0, gprio=0, str=0, uni=1, lead=3, pm2=1, eb=4, nrep=4, ncn=64, sq=-1, ep=1, bprio=0x1ff, dma=0, fix=1, dum=0, dumm=0, abl_rbf=0, tg=-1, wall=0, cpf=3, wsoff=0, mq=11, rot=0, pf0=0, a0=2, ag=2, early=0, adj=0, probe=-1, tlb=0, cut=-1, opol=1, mpol=0, tq=3, fq=10, keff=6, jid=0, fprio=0x3ffff, lprio=0xfff, napt=8, st0=1, stp=1, rb0=2, nap=8, list=1, nb=7, n1=2, n3=4, nl0=8, smask=0x555, arr=10, spin=60000, rec_pol=2, stamp=0, itcap=400000, ld_nt=7, st_pol=0, mtouch=0, la=4, apre=2, wmain=70000, b5=0, lim=24, nb2=7, ins0=4,
           abl_mfma=0, abl_s=0, abl_cos=0, abl_g=0)
for a in sys.argv[2:]:
    k, v = a.split("=")
    assert k in OPT, k
    OPT[k] = int(v, 0)
MK = -(-(1 << 32) // OPT["wmain"])
assert (399999 * MK) >> 32 <= 5

RPOL = ('', ' nt', ' sc1', ' sc0 sc1')[OPT['rec_pol']]

POL = ('', ' nt', ' sc1', ' sc0 sc1')

def v(i, n=1):
    return f"v{i}" if n == 1 else f"v[{i}:{i+n-1}]"
def s(i, n=1):
    return f"s{i}" if n == 1 else f"s[{i}:{i+n-1}]"

VST = 13
def stamp(a, vreg, lane, op="s_memtime"):
    vreg = VST
    if lane == OPT["cut"]: a("  s_endpgm")
    if not OPT["stamp"]: return
    if OPT["stamp"] == 2:
        mp = {62: (0, 1), 42: (1, 0), 45: (2, 0), 1: (3, 0), 11: (4, 0), 63: (6, 0)}
        if lane == 0:
            a("  s_memtime s[88:89]\n  s_waitcnt lgkmcnt(0)\n  s_mov_b32 s91, s88")
        if lane in (11, 7):
            a(f"  s_memtime s[88:89]\n  s_waitcnt lgkmcnt(0)\n  s_sub_u32 s88, s88, s91\n  v_writelane_b32 v{vreg}, s88, {5 if lane == 11 else 7}")
        if lane not in mp: return
        l, inv = mp[lane]
        a(f"  s_memrealtime s[88:89]\n  s_waitcnt lgkmcnt(0)")
        if inv: a("  s_not_b32 s88, s88")
        a(f"  v_writelane_b32 v{vreg}, s88, {l}")
        return
    a(f"  {op} s[88:89]\n  s_waitcnt lgkmcnt(0)\n  v_writelane_b32 v{vreg}, s88, {lane}")
def stamp_out(a, vreg, wslo, nwaves, base, tmp):
    vreg, tmp = VST, 218
    if not OPT["stamp"]: return
    if OPT["stamp"] == 2:
        back = 512
        a(f"""
  s_load_dwordx2 s[90:91], s[0:1], 96
  s_waitcnt lgkmcnt(0)
  s_add_u32 s92, s90, {back}
  s_addc_u32 s93, s91, 0
  s_mov_b32 s94, 32
  s_mov_b32 s95, 0x20000
  v_lshlrev_b32 v{tmp}, 2, v0
  buffer_atomic_umax v{vreg}, v{tmp}, s[92:95], 0 offen""")
        return
    a(f"  s_mul_i32 s88, s2, {nwaves*256}\n  s_add_u32 s88, s88, {base}")
    srd(a, 92, wslo, wslo+1, "s88", nwaves*256)
    a(f"  v_lshlrev_b32 v{tmp}, 2, v0\n  buffer_store_dword v{vreg}, v{tmp}, s[92:95], 0 offen")

def srd(a, d, lo, hi, add, size):
    if add is None:
        a(f"  s_mov_b32 s{d}, s{lo}\n  s_mov_b32 s{d+1}, s{hi}")
    else:
        a(f"  s_add_u32 s{d}, s{lo}, {add}\n  s_addc_u32 s{d+1}, s{hi}, 0")
    a(f"  s_mov_b32 s{d+2}, {size}\n  s_mov_b32 s{d+3}, 0x20000")

P1_CNT, P1_SENT, P1_TMP, P1_REC = 0, 6144, 6160, 6272
P1_LDS = P1_REC + CH * 6

TS = 264
BUFSZ = 200 * TS
S_OFF = 13 * 8192
DMA = OPT["dma"]
WSTR = 6144 if DMA else 1024
CTL = S_OFF + 8 * WSTR
RB_OFF = CTL + 128
SENT = 0x7ffff0
LAG = 4 if DMA else 5
P2_LDS = RB_OFF + 8 * 3584
D = 5
NT = 25

class RA:
    def __init__(self, start): self.n = start
    def __call__(self, k=1, al=1):
        self.n = (self.n + al - 1) // al * al
        r = self.n; self.n += k
        return r

def gen_p2(a):
    ra = RA(1)
    vSlot, vHalf, vFreq, vSst, vSrd, vI6, vI1, vI4 = (ra() for _ in range(8))
    vRd, vCntA, vOne, vOOB, vCarOff, vCarIdx, v264, vMsk, vCtlN = (ra() for _ in range(9))
    vZ = ra(2, 2)
    Q = ra(6, 4)
    sA, nA, cb, rem, rtot, vA6, vB6, vR0, vRT4 = (ra() for _ in range(9))
    vCnt = ra()
    Wa = ra(4, 4); Wb = ra(4, 4)
    RING = [ra(4, 4) for _ in range(D)]
    Da = ra(4, 4); Db = ra(4, 4); P = ra(4, 4); Sf = ra(4, 4)
    ACC = [ra(4, 4) for _ in range(NT)]
    REC = [ra(2, 4 if i == 0 else 2) for i in range(17)]
    RP = [ra(2, 2), ra(2, 2)]
    T = ra(10, 2)
    TA = [ra(), ra()]; RK = [ra(), ra()]
    WS0 = ra(2, 2); WS1 = ra(2, 2); WR = ra(2, 2); WUP = ra(2, 2)
    CC = [ra() for _ in range(D)]; SA = [ra() for _ in range(D)]
    WW = [ra(), ra()]
    assert ra.n <= 252, ra.n
    NV = ra.n
    sM = 4; sREC = 8; sCAR = 12; sTAB = 16; sOUT = 20; sDIST = 24; sMW = 28
    sJ, sW, sIt, sThr, sIns, sCarW, sCarR, sRb, sCin, sX, sFl, sEb = range(32, 44)
    sCnt = [44, 45]
    sWS = 46
    sPM = 72
    sMk = [72, 74]; sT = 76; sC10 = 78; sCl2 = 80
    sEb2 = 3
    rare = []

    O, I, R, A = 36, 88, 140, 192
    PT = 218
    vFlg, vDum, vTab, vWo, vTwo = range(240, 245)
    vL8, vL4, vSix = WS0 + 1, WS1 + 1, WR + 1
    vL128 = 253
    vL16 = WW[0]
    rDist, rSbf, rUp, rDown, rRbf = A + 4, A + 6, A + 8, A + 10, A + 12
    RBK = [sA, nA, rem, rtot, vA6, vB6, vR0, vRT4, vCnt, 86, 87, 190, 191]
    WDK = [248, 249, WW[1], 217]
    assert Wa == 36 and T == PT
    vSent = vCnt
    assert vCarOff == VST
    LR = lambda u: REC[u % 5] if u < 16 else REC[5]
    MM = REC[6:] + [252, 254]
    sIO, sII, sAN, sMT, sTW, sDBG = 4, 8, 12, 16, 20, 24
    sFLG, sRW = 92, 96
    sMJ, sMK, sNEB, sB5, sO4, sO2 = range(80, 86)
    sY, sSo = 100, 101
    nto, nti, nta = (" nt" if OPT["ld_nt"] >> b & 1 else "" for b in range(3))
    NR = 13
    nrec = lambda q: 4 if q < 12 else 2
    vm = []
    def ld_pair(q):
        if q < 12:
            a(f"  buffer_load_dwordx4 {v(O+4*q,4)}, {v(vL16)}, {s(sIO,4)}, s{sO4} offen{nto}")
            a(f"  buffer_load_dwordx4 {v(I+4*q,4)}, {v(vL16)}, {s(sII,4)}, s{sO4} offen{nti}")
            a(f"  s_add_u32 s{sO4}, s{sO4}, 8192")
        else:
            a(f"  buffer_load_dwordx2 {v(O+48,2)}, {v(vL8)}, {s(sIO,4)}, s{sO4} offen{nto}")
            a(f"  buffer_load_dwordx2 {v(I+48,2)}, {v(vL8)}, {s(sII,4)}, s{sO4} offen{nti}")
        vm.extend([("o", q), ("p", q)])
    def ld_ang(q):
        if q < 12:
            a(f"  buffer_load_dwordx2 {v(A+2*q,2)}, {v(vL8)}, {s(sAN,4)}, s{sO2} offen{nta}")
            a(f"  s_add_u32 s{sO2}, s{sO2}, 4096")
        else: a(f"  buffer_load_dword {v(A+24)}, {v(vL4)}, {s(sAN,4)}, s{sO2} offen{nta}")
        vm.append(("a", q))
    def wait_for(x):
        a(f"  s_waitcnt vmcnt({len(vm) - 1 - vm.index(x)})")
    def poll(tag, load, cond, nap=4):
        a(f"  s_mov_b32 s{sY}, {OPT['spin']}")
        a.label(f"L_poll_{tag}")
        a(load)
        a("  s_waitcnt vmcnt(0)")
        a(cond)
        a(f"""
  s_cbranch_vccz L_polled_{tag}
  s_sleep {nap}
  s_sub_u32 s{sY}, s{sY}, 1
  s_cbranch_scc0 L_poll_{tag}""")
        a.label(f"L_polled_{tag}")

    a(".p2align 8")
    a.label(NAME + "_kernel")
    ncp = [0]
    def cpf(bit, q, first=False):
        if not OPT["cpf"] >> bit & 1: return False
        ncp[0] += 1
        a(f"  s_getpc_b64 s[{q}:{q+1}]")
        a.label(f"L_cp{ncp[0]}")
        a(f"""
  s_sub_u32 s{q}, s{q}, L_cp{ncp[0]}-{NAME}_kernel
  s_subb_u32 s{q+1}, s{q+1}, 0
  s_mov_b32 s{q+2}, L_code_end-{NAME}_kernel
  s_mov_b32 s{q+3}, 0x20000""")
        if first:
            a(f"""
  s_and_b32 s{sY}, s2, 0xf8
  s_lshl_b32 s{sY}, s{sY}, 4
  v_lshl_add_u32 v255, v0, 12, s{sY}""")
        a(f"  buffer_load_dword v254, v255, s[{q}:{q+3}], 0 offen")
        return True
    a(f"""
  s_cmp_ge_u32 s2, 256
  s_cbranch_scc1 L_end
  s_load_dwordx16 s[48:63], s[0:1], 0
  s_load_dwordx4 s[44:47], s[0:1], 96
  s_load_dwordx8 s[64:71], s[0:1], 64""")
    cpf(0, 28, True)
    a(f"""
  v_lshlrev_b32 {v(vL16)}, 4, v0
  s_min_u32 s{sY}, s2, {NCH-1}
  s_mul_i32 s{sX}, s{sY}, {CH*4}
  s_cmp_lt_u32 s2, {NCH}
  s_cselect_b32 s{sFl}, {CH*2}, 0
  s_lshl_b32 s{sIO+2}, s{sFl}, 1
  s_mov_b32 s{sII+2}, s{sIO+2}
  s_mov_b32 s{sIO+3}, 0x20000
  s_mov_b32 s{sII+3}, 0x20000
  s_mov_b32 s{sO4}, 0
  v_mov_b64 {v(PT,2)}, 0
  v_mov_b64 {v(PT+2,2)}, 0
  s_mov_b32 s{sO2}, 0
  ds_write_b128 {v(vL16)}, {v(PT,4)}
  v_lshrrev_b32 {v(T+8)}, 6, v0
  s_and_b32 s{sJ}, s2, 7
  s_lshl_b32 s{sJ}, s{sJ}, 5
  s_lshr_b32 s{sEb}, s2, 3
  s_add_u32 s{sJ}, s{sJ}, s{sEb}
  v_readfirstlane_b32 s{sW}, {v(T+8)}
  v_and_b32 {v(T+7)}, 63, v0
  v_lshlrev_b32 {v(T+6)}, 3, {v(T+7)}
  v_lshlrev_b32 {v(T+7)}, 2, {v(T+7)}
  s_mul_i32 s{sEb}, s{sJ}, {EB*2}
  s_mul_i32 s{sRb}, s{sW}, 400
  s_add_u32 s{sEb}, s{sEb}, s{sRb}
  s_waitcnt lgkmcnt(0)""")
    if OPT["stamp"] == 2: a("  v_mov_b32 v13, 0\n  s_nop 1")
    stamp(a, 252, 0); stamp(a, 252, 62, "s_memrealtime")
    a(f"""
  s_add_u32 s{sIO}, s52, s{sX}
  s_addc_u32 s{sIO+1}, s53, 0
  s_add_u32 s{sII}, s50, s{sX}
  s_addc_u32 s{sII+1}, s51, 0""")
    ld_pair(0)
    if OPT["wsoff"]: a(f"  s_add_u32 s{sWS}, s{sWS}, {OPT['wsoff'] << 20}\n  s_addc_u32 s{sWS+1}, s{sWS+1}, 0")
    srd(a, 28, 54, 55, None, E * 2)
    a(f"""
  buffer_load_dwordx2 {v(rDist,2)}, {v(T+6)}, s[28:31], s{sEb} offen
  global_load_dwordx2 {v(rSbf,2)}, {v(T+6)}, s[64:65]
  global_load_dwordx2 {v(rUp,2)}, {v(T+6)}, s[68:69]
  global_load_dwordx2 {v(rDown,2)}, {v(T+6)}, s[66:67]
  global_load_dword {v(rRbf)}, {v(T+7)}, s[62:63]""")
    vm.extend([("s", i) for i in range(5)])
    ld_pair(1)
    a("  s_barrier")
    LA = OPT["la"]
    for q in range(2, LA): ld_pair(q)
    a(f"  s_lshr_b32 s{sX}, s{sX}, 1")
    srd(a, sAN, 56, 57, f"s{sX}", f"s{sFl}")
    srd(a, sMT, 48, 49, f"s{sX}", f"s{sFl}")
    a(f"  s_mul_i32 s{sX}, s{sY}, {CH*6}\n  s_mul_i32 s{sFl}, s{sFl}, 3")
    srd(a, sRW, sWS, sWS+1, f"s{sX}", f"s{sFl}")
    srd(a, sTW, sWS, sWS+1, TABOFF, 256 * 8192)
    srd(a, sFLG, sWS, sWS+1, FLGOFF, OPT['nrep'] * 1024)
    srd(a, sDBG, 44, 45, None, 256)
    a(f"""
  s_lshl_b32 s{sX}, s2, 2
  v_lshl_add_u32 {v(vFlg)}, v0, 10, s{sX}
  s_cmp_lt_u32 s2, {NCH}
  s_cselect_b32 s{sX}, 0, 4
  v_mov_b32 {v(vDum)}, s{sX}
  buffer_store_dword {v(vDum)}, {v(vFlg)}, {s(sFLG,4)}, 0 offen sc1
  s_lshl_b32 s{sX}, s{sX}, 20
  v_or_b32 {v(vFlg)}, s{sX}, {v(vFlg)}
  s_load_dword s{sCin}, s[60:61], 0
  s_load_dwordx4 s[56:59], s[58:59], 0
  v_lshlrev_b32 {v(vL8)}, 3, v0
  v_lshlrev_b32 {v(vL4)}, 2, v0
  {'v_mov_b32 %s, %d' % (v(vL128), E//8) if OPT['rot'] == 2 else 'v_lshlrev_b32 %s, 7, v0' % v(vL128)}
  v_mov_b32 {v(vSix)}, 6
  v_mov_b32 {v(vTwo)}, 2
  s_mov_b32 s{sMJ}, {MJ}
  s_mov_b32 s{sMK}, {MK}
  s_mov_b32 s{sNEB}, {-EB & 0xffffffff}
  s_mov_b32 s{sB5}, {(-(E//8) & 0xffffffff) if OPT['rot'] else OPT['b5']}
  v_lshrrev_b32 {v(T)}, 6, v0
  v_and_b32 {v(T+2)}, 15, v0
  v_bfe_u32 {v(T+3)}, v0, 5, 1
  v_lshlrev_b32 {v(vHalf)}, 4, {v(T+3)}
  v_lshl_add_u32 {v(cb)}, {v(T)}, 5, {v(vHalf)}
  v_add_u32 {v(cb)}, {v(cb)}, {v(T+2)}
  v_lshlrev_b32 {v(vTab)}, 13, {v(cb)}
  v_and_b32 {v(T+1)}, 63, v0
  v_and_b32 {v(vSlot)}, 31, v0
  v_mov_b64 {v(vZ,2)}, 0
  v_mov_b32 {v(v264)}, {TS}
  v_mov_b32 {v(vCtlN)}, {CTL}
  s_lshl_b32 s{sX}, s{sW}, 10
  s_add_u32 s{sX}, s{sX}, {S_OFF}
  v_lshl_add_u32 {v(vSrd)}, {v(T+1)}, 4, s{sX}
  v_bfe_u32 {v(T+6)}, v0, 2, 2
  v_lshlrev_b32 {v(vSst)}, 8, {v(T+6)}
  v_lshl_add_u32 {v(vSst)}, {v(T+3)}, 7, {v(vSst)}
  v_bfe_u32 {v(T+6)}, v0, 4, 1
  v_lshl_add_u32 {v(vSst)}, {v(T+6)}, 3, {v(vSst)}
  v_and_b32 {v(T+6)}, 3, v0
  v_lshl_add_u32 {v(vSst)}, {v(T+6)}, 1, {v(vSst)}
  v_add_u32 {v(vSst)}, s{sX}, {v(vSst)}
  v_mov_b32 {v(vOne)}, 1
  v_mov_b32 {v(vOOB)}, 0x80000000
  v_mov_b32 {v(vMsk)}, 0x7ffffffc
  v_mul_u32_u24 {v(vI6)}, 6, {v(vSlot)}
  v_add_u32 {v(vI1)}, 1, {v(vSlot)}
  v_lshlrev_b32 {v(vI4)}, 2, {v(vI1)}
  v_mov_b32 {v(T+6)}, {CH}
  v_mul_u32_u24 {v(cb)}, {v(cb)}, {v(T+6)}
  s_mul_i32 s{sX}, s{sW}, {NT*TS}
  s_add_u32 s{sX}, s{sX}, {BUFSZ}
  v_lshl_add_u32 {v(vRd)}, {v(vSlot)}, 3, s{sX}""")
    sRing = 84
    a(f"  v_lshrrev_b32 {v(vHalf)}, 1, {v(vHalf)}")
    STR = OPT["str"] and not DMA
    PM2 = OPT["pm2"] and not DMA
    if STR:
        a(f"""
  s_lshl_b32 s{sY}, s{sW}, 10
  s_add_u32 s{sY}, s{sY}, {S_OFF}
  v_bfe_u32 {v(T+6)}, v0, 2, 1
  v_xor_b32 {v(T+6)}, {v(T+6)}, {v(T+3)}
  v_lshl_add_u32 {v(vSst)}, {v(vSlot)}, 5, s{sY}
  v_lshl_add_u32 {v(vSst)}, {v(T+6)}, 4, {v(vSst)}
  v_and_b32 {v(T+6)}, 16, v0
  v_lshl_add_u32 {v(vSrd)}, {v(T+1)}, 3, s{sY}
  v_xor_b32 {v(vSrd)}, {v(vSrd)}, {v(T+6)}""")
    if DMA:
        a(f"""
  v_bfe_u32 {v(vSlot)}, v0, 1, 5
  v_lshl_add_u32 {v(vRd)}, {v(vSlot)}, 3, s{sX}
  v_and_b32 {v(T+3)}, 1, v0
  v_lshlrev_b32 {v(vHalf)}, 3, {v(T+3)}
  s_mul_i32 s{sY}, s{sW}, {WSTR}
  s_add_u32 s{sY}, s{sY}, {S_OFF}
  v_lshl_add_u32 {v(vSst)}, {v(T+1)}, 4, s{sY}
  v_lshl_add_u32 {v(vSrd)}, {v(T+1)}, 3, s{sY}""")
    a(f"""
  v_min_u32 {v(T+6)}, {NT-1}, {v(T+1)}
  v_mad_u32_u24 {v(vCntA)}, {v(T+6)}, {v(v264)}, s{sX}
  v_sub_u32 {v(vCarIdx)}, 511, v0
  v_cmp_eq_u32 vcc, 1, {v(T+3)}
  s_waitcnt lgkmcnt(0)
  s_lshl_b32 s{sX}, s{sCin}, 16
  s_and_b32 s{sCin}, s{sCin}, 0xffff0000
  v_mov_b32 {v(vFreq)}, s{sX}
  v_mov_b32 {v(T+6)}, s{sCin}
  v_cndmask_b32 {v(vFreq)}, {v(vFreq)}, {v(T+6)}, vcc
  v_mul_f32 {v(vFreq)}, 0.15915494, {v(vFreq)}
  s_mov_b32 s{sIt}, -1
  s_mov_b32 s{sIns}, 0
  s_mov_b32 s{sCarW}, 0
  s_mov_b32 s{sCarR}, {CARLIST}
  s_mul_i32 s{sEb}, s{sJ}, {EB}
  s_mul_i32 s{sX}, s{sW}, 200
  s_add_u32 s{sFl}, s{sEb}, {EB}
  s_add_u32 s{sEb}, s{sEb}, s{sX}
  s_add_u32 s{sRb}, s{sEb}, 200
  s_min_u32 s{sRb}, s{sRb}, s{sFl}
  s_min_u32 s{sRb}, s{sRb}, {E}
  s_lshl_b32 s{sRb}, s{sRb}, 5
  s_lshl_b32 s{sEb}, s{sEb}, 5
  s_add_u32 s{sEb2}, s{sEb}, 4096""")

    if OPT["tlb"]:
        sh = OPT["tlb"]
        srd(a, 28, sWS, sWS+1, None, FLGOFF + 8192)
        a(f"  v_lshlrev_b32 v249, {sh}, v0\n  buffer_load_dword v248, v249, s[28:31], 0 offen")
        srd(a, 28, 48, 49, None, E * 32)
        a(f"  buffer_load_dword v248, v249, s[28:31], 0 offen")
        srd(a, 28, 70, 71, None, E * 32)
        a(f"  buffer_load_dword v248, v249, s[28:31], 0 offen")
        vm.extend([("tlb", i) for i in range(3)])
    a(f"""
  s_cmp_ge_u32 s2, {NCH}
  s_cbranch_scc1 L_nochunk1""")
    vm.append(("flg", 0))
    arrive = f"""
  s_and_b32 s{sY}, s2, 15
  s_lshl_b32 s{sY}, s{sY}, 4
  v_lshlrev_b32 {v(PT)}, 8, v0
  buffer_atomic_add {v(vOne)}, {v(PT)}, {s(sDBG,4)}, s{sY} offen"""
    def hist(idx):
        if OPT["b5"]:
            for x, i in enumerate(idx): a(f"  v_cmp_le_u32 {s(72+2*x,2)}, s{sB5}, {v(I+i)}")
        for x, i in enumerate(idx): a(f"  v_mul_hi_u32_u24 {v(PT+x)}, s{sMJ}, {v(O+i)}")
        if OPT["rot"] == 2:
            for x, i in enumerate(idx): a(f"  v_lshrrev_b32 {v(PT+4+x)}, 5, {v(PT+x)}")
            for x, i in enumerate(idx): a(f"  v_mad_i32_i24 {v(PT+4+x)}, {v(PT+4+x)}, s{sB5}, {v(I+i)}")
            for x, i in enumerate(idx): a(f"  v_cmp_gt_u32 {s(72+2*x,2)}, {v(vL128)}, {v(PT+4+x)}")
            for x, i in enumerate(idx): a(f"  v_ashrrev_i32 {v(PT+4+x)}, 31, {v(PT+4+x)}")
            for x, i in enumerate(idx): a(f"  v_and_b32 {v(PT+4+x)}, {v(vL128)}, {v(PT+4+x)}")
            for x, i in enumerate(idx): a(f"  v_add3_u32 {v(PT+4+x)}, {v(PT+4+x)}, s{sB5}, {v(I+i)}")
            for x, i in enumerate(idx): a(f"  v_mul_hi_u32_u24 {v(PT+4+x)}, s{sMK}, {v(PT+4+x)}")
            for x, i in enumerate(idx): a(f"  v_cndmask_b32 {v(PT+4+x)}, {v(PT+4+x)}, 5, {s(72+2*x,2)}")
        elif OPT["rot"]:
            for x, i in enumerate(idx): a(f"  v_lshrrev_b32 {v(PT+4+x)}, 5, {v(PT+x)}")
            for x, i in enumerate(idx): a(f"  v_mad_i32_i24 {v(PT+4+x)}, {v(PT+4+x)}, s{sB5}, {v(I+i)}")
            for x, i in enumerate(idx): a(f"  v_add_u32 {v(PT+8+x)}, {E - E//8}, {v(PT+4+x)}")
            for x, i in enumerate(idx): a(f"  v_add_u32 {v(PT+4+x)}, s{sB5}, {v(PT+4+x)}")
            for x, i in enumerate(idx): a(f"  v_min_u32 {v(PT+4+x)}, {v(PT+4+x)}, {v(PT+8+x)}")
            for x, i in enumerate(idx): a(f"  v_mul_hi_u32_u24 {v(PT+4+x)}, s{sMK}, {v(PT+4+x)}")
        else:
            for x, i in enumerate(idx): a(f"  v_mul_hi_u32_u24 {v(PT+4+x)}, s{sMK}, {v(I+i)}")
        if OPT["b5"]:
            for x, i in enumerate(idx): a(f"  v_cndmask_b32 {v(PT+4+x)}, {v(PT+4+x)}, 5, {s(72+2*x,2)}")
        for x, i in enumerate(idx): a(f"  v_mad_i32_i24 {v(PT+8+x)}, {v(PT+x)}, s{sNEB}, {v(O+i)}")
        for x, i in enumerate(idx): a(f"  v_lshl_add_u32 {v(O+i)}, {v(PT+4+x)}, 8, {v(PT+x)}")
        for x, i in enumerate(idx): a(f"  v_lshlrev_b32 {v(O+i)}, 2, {v(O+i)}")
        for x, i in enumerate(idx): a(f"  ds_add_rtn_u32 {v(R+i)}, {v(O+i)}, {v(vOne)}")
        for x, i in enumerate(idx): a(f"  v_and_b32 {v(PT+x)}, 7, {v(PT+8+x)}")
        for x, i in enumerate(idx): a(f"  v_lshl_or_b32 {v(I+i)}, {v(I+i)}, 3, {v(PT+x)}")
        for x, i in enumerate(idx): a(f"  v_lshrrev_b32 {v(PT+8+x)}, 3, {v(PT+8+x)}")
        for x, i in enumerate(idx): a(f"  v_lshl_or_b32 {v(I+i)}, {v(I+i)}, 1, {v(vOOB)}")
        for x, i in enumerate(idx): a(f"  v_lshl_or_b32 {v(I+i)}, {v(PT+8+x)}, 23, {v(I+i)}")
    def prep(piece):
        Z = R + 24
        aW, aD, aS, aR, aN, gq = Z, Z + 1, Z + 2, Z + 3, Z + 4, Z + 5
        CEN = Z + 6; H = Z + 8; Y = Z + 16
        if piece == 0:
            a(f"""
  s_lshl_b32 s{sX}, s{sW}, 12
  s_add_u32 s{sX}, s{sX}, 8192
  v_and_b32 {v(gq)}, 63, v0
  v_lshl_add_u32 {v(aW)}, {v(gq)}, 3, s{sX}
  v_lshl_add_u32 {v(gq)}, {v(gq)}, 2, s{sX}
  ds_write_b64 {v(aW)}, {v(rDist,2)}
  ds_write_b64 {v(aW)}, {v(rSbf,2)} offset:512
  ds_write_b64 {v(aW)}, {v(rUp,2)} offset:1024
  ds_write_b32 {v(gq)}, {v(rRbf)} offset:1536
  ds_write_b64 {v(aW)}, {v(rDown,2)} offset:2048
  v_and_b32 {v(aD)}, 15, v0
  v_bfe_u32 {v(gq)}, v0, 4, 2
  v_lshl_add_u32 {v(aD)}, {v(aD)}, 1, s{sX}
  v_lshl_add_u32 {v(aS)}, {v(gq)}, 7, {v(aD)}
  v_lshl_add_u32 {v(aR)}, {v(gq)}, 6, {v(aD)}
  v_bfe_u32 {v(aN)}, v0, 5, 1
  v_lshl_add_u32 {v(aN)}, {v(aN)}, 8, {v(aD)}
  ds_read_u16 {v(WS0)}, {v(aS)} offset:512
  ds_read_u16 {v(WS1)}, {v(aS)} offset:{512+32}
  ds_read_u16 {v(Y)}, {v(aS)} offset:{512+64}
  ds_read_u16 {v(Y+1)}, {v(aS)} offset:{512+96}
  ds_read_u16 {v(WUP)}, {v(aS)} offset:1024
  ds_read_u16 {v(Y+2)}, {v(aS)} offset:{1024+32}
  ds_read_u16 {v(WUP+1)}, {v(aS)} offset:{1024+64}
  ds_read_u16 {v(Y+3)}, {v(aS)} offset:{1024+96}
  ds_read_u16 {v(WR)}, {v(aR)} offset:1536
  ds_read_u16 {v(Y+4)}, {v(aR)} offset:{1536+32}""")
            for r in range(4 if DMA else 8): a(f"  ds_read_u16 {v(WDK[r//2] if r % 2 == 0 else H + r//2)}, {v(aS if DMA else aN)} offset:{2048 + r*32}")
            for p in range(13): a(f"  ds_read_u16 {v(RBK[p])}, {v(aD)} offset:{p*32}")
            return
        if piece == 1:
            a(f"""
  v_mov_b32 {v(CEN+1)}, s56
  v_cmp_eq_u32 vcc, 1, {v(gq)}
  v_mov_b32 {v(CEN)}, s57
  v_cmp_eq_u32 {s(sT,2)}, 2, {v(gq)}
  v_cndmask_b32 {v(CEN+1)}, {v(CEN+1)}, {v(CEN)}, vcc
  v_mov_b32 {v(CEN)}, s58
  v_cmp_eq_u32 vcc, 3, {v(gq)}
  v_cndmask_b32 {v(CEN+1)}, {v(CEN+1)}, {v(CEN)}, {s(sT,2)}
  v_mov_b32 {v(CEN)}, s59
  v_cndmask_b32 {v(CEN+1)}, {v(CEN+1)}, {v(CEN)}, vcc
  v_lshlrev_b32 {v(CEN)}, 16, {v(CEN+1)}
  v_and_b32 {v(CEN+1)}, 0xffff0000, {v(CEN+1)}
  s_mov_b32 s56, 0xc1200000
  s_mov_b32 s57, 0xc1200000
  s_mov_b32 s58, 0x3fb8aa3b
  s_mov_b32 s59, 0x3fb8aa3b
  s_waitcnt lgkmcnt(0)
  v_lshl_or_b32 {v(WS0)}, {v(Y)}, 16, {v(WS0)}
  v_lshl_or_b32 {v(WS1)}, {v(Y+1)}, 16, {v(WS1)}
  v_lshl_or_b32 {v(WUP)}, {v(Y+2)}, 16, {v(WUP)}
  v_lshl_or_b32 {v(WUP+1)}, {v(Y+3)}, 16, {v(WUP+1)}
  v_lshl_or_b32 {v(WR)}, {v(Y+4)}, 16, {v(WR)}""")
            for r in range(2 if DMA else 4): a(f"  v_lshl_or_b32 {v(WDK[r])}, {v(H+r)}, 16, {v(WDK[r])}")
        ps = ([0,1,2], [3,4,5,6,7], [8,9,10,11,12])[piece - 1]
        tt = {p: H + 2 * (p - ps[0]) for p in ps}
        def rnd():
            for p in ps: a(f"  v_cvt_pk_bf16_f32 {v(tt[p])}, 0, {v(tt[p])}\n  v_cvt_pk_bf16_f32 {v(tt[p]+1)}, 0, {v(tt[p]+1)}")
        for p in ps: a(f"  v_lshlrev_b32 {v(tt[p])}, 16, {v(RBK[p])}")
        for p in ps: a(f"  v_pk_add_f32 {v(tt[p],2)}, {v(tt[p],2)}, {v(CEN,2)} op_sel_hi:[0,1] neg_lo:[0,1] neg_hi:[0,1]")
        rnd()
        for p in ps: a(f"  v_pk_mul_f32 {v(tt[p],2)}, {v(tt[p],2)}, {v(tt[p],2)}")
        rnd()
        for p in ps: a(f"  v_pk_mul_f32 {v(tt[p],2)}, {v(tt[p],2)}, s[56:57]")
        rnd()
        for p in ps: a(f"  v_pk_mul_f32 {v(tt[p],2)}, {v(tt[p],2)}, s[58:59]")
        for p in ps: a(f"  v_exp_f32 {v(tt[p])}, {v(tt[p])}\n  v_exp_f32 {v(tt[p]+1)}, {v(tt[p]+1)}")
        for p in ps: a(f"  v_cvt_pk_bf16_f32 {v(RBK[p])}, {v(tt[p])}, {v(tt[p]+1)}")
    na = 0
    for q in range(NR):
        wait_for(("p", q))
        if q == 0: stamp(a, 252, 40)
        if q == LA:
            a(arrive); vm.append(("arr", 0))
        if OPT["mtouch"] == 3 and q == OPT["mq"]:
            a(f"  buffer_load_dword v244, {v(vL128)}, {s(sMT,4)}, 0 offen"); vm.append(("m", 0))
        if q + LA < NR: ld_pair(q + LA)
        else:
            for _ in range(2):
                if na < OPT["apre"]: ld_ang(na); na += 1
        hist(list(range(4*q, 4*q + nrec(q))))
        if 1 <= q <= 4: prep(q - 1)
    stamp(a, 252, 41)
    X = v(PT+4)
    PR = A + 4
    assert OPT["apre"] <= 2
    a(f"""
  v_and_b32 {v(PT+8)}, 0x3f0, {v(vL16)}
  v_lshrrev_b32 {v(PT+12)}, 1, v0
  v_and_b32 {v(PT+13)}, 1, v0
  v_lshlrev_b32 {v(PT+12)}, 2, {v(PT+12)}
  v_lshl_add_u32 {v(PT+13)}, {v(PT+13)}, 12, {v(PT+12)}
  s_waitcnt lgkmcnt(0)
  s_barrier
  s_cmp_ge_u32 s{sW}, {K}
  s_cbranch_scc1 L_bin_s2
  ds_read_b128 {v(PT,4)}, {v(vL16)}""")
    for r in range(K - 1): a(f"  ds_read_b128 {v(PR+4*r,4)}, {v(PT+8)} offset:{r*1024}")
    for r in range(K - 1): a(f"  s_cmp_gt_u32 s{sW}, {r}\n  s_cselect_b32 s{72+r}, 1, 0")
    a(f"""
  s_waitcnt lgkmcnt({K-1})
  v_add_u32 {v(PT+5)}, {v(PT)}, {v(PT+1)}
  v_add_u32 {v(PT+6)}, {v(PT+5)}, {v(PT+2)}
  v_add_u32 {v(PT+7)}, {v(PT+6)}, {v(PT+3)}""")
    for r in range(K - 1):
        a(f"""
  s_waitcnt lgkmcnt({K-2-r})
  v_add3_u32 {v(PR+4*r)}, {v(PR+4*r)}, {v(PR+4*r+1)}, {v(PR+4*r+2)}
  v_add_u32 {v(PR+4*r)}, {v(PR+4*r)}, {v(PR+4*r+3)}""")
        if r == 0: a(f"  v_mul_u32_u24 {v(PT+9)}, s72, {v(PR)}")
        else: a(f"  v_mad_u32_u24 {v(PT+9)}, {v(PR+4*r)}, s{72+r}, {v(PT+9)}")
    a(f"  v_lshl_or_b32 {X}, {v(PT+9)}, 16, {v(PT+7)}")
    for sh in (1, 2, 4, 8):
        a(f"  s_nop 1\n  v_add_u32_dpp {X}, {X}, {X} row_shr:{sh} row_mask:0xf bank_mask:0xf bound_ctrl:0")
    a(f"  s_nop 1\n  v_add_u32_dpp {X}, {X}, {X} row_bcast:15 row_mask:0xa bank_mask:0xf")
    a(f"  s_nop 1\n  v_add_u32_dpp {X}, {X}, {X} row_bcast:31 row_mask:0xc bank_mask:0xf")
    a(f"""
  s_nop 0
  v_readlane_b32 s{sY}, {X}, 63
  v_sub_u32 {X}, {X}, {v(PT+7)}
  s_lshr_b32 s{sY}, s{sY}, 16
  v_add_u32 {X}, s{sY}, {X}
  v_add_u32 {v(PT+7)}, {X}, {v(PT+6)}
  v_add_u32 {v(PT+6)}, {X}, {v(PT+5)}
  v_add_u32 {v(PT+5)}, {X}, {v(PT)}
  v_lshl_or_b32 {v(PT)}, {X}, 16, {v(PT)}
  v_lshl_or_b32 {v(PT+1)}, {v(PT+5)}, 16, {v(PT+1)}
  v_lshl_or_b32 {v(PT+2)}, {v(PT+6)}, 16, {v(PT+2)}
  v_lshl_or_b32 {v(PT+3)}, {v(PT+7)}, 16, {v(PT+3)}
  ds_write_b128 {v(vL16)}, {v(PT,4)}
  s_waitcnt lgkmcnt(0)""")
    a.label("L_bin_s2")
    a(f"  s_lshl_b32 s{sY}, s2, 13\n  s_barrier")
    stamp(a, 252, 42)
    TB = PT + 8
    for k in range(4): a(f"  ds_read_b32 {v(TB+k)}, {v(PT+13)} offset:{k*1024}")
    NB = OPT["nb"]
    vDa, vDv, vRa = 245, 246, 247
    lda = f"  buffer_load_dword {v(vDv)}, {v(vDa)}, {s(sDBG,4)}, 0 offen sc1"
    cda = f"  v_cmp_gt_u32 vcc, 16, {v(vDv)}"
    ada = f"""
  s_lshl_b32 s{sX}, s{sW}, 16
  v_and_b32 {v(vDa)}, 15, v0
  v_lshl_add_u32 {v(vDa)}, {v(vDa)}, 4, s{sX}"""
    NRD = 15
    for i in range(10): a(f"  ds_read_u16 {v(O+i)}, {v(O+i)} offset:2")
    a("  s_waitcnt lgkmcnt(10)")
    for k in range(4): a(f"  v_alignbit_b32 {v(TB+k)}, {v(TB+k)}, {v(TB+k)}, 16")
    a(f"  buffer_store_dwordx4 {v(TB,4)}, {v(vL16)}, {s(sTW,4)}, s{sY} offen sc1")
    vm.append(("tab", 0))
    for i in range(10, NRD): a(f"  ds_read_u16 {v(O+i)}, {v(O+i)} offset:2")
    for _ in range(OPT["a0"]):
        if na < NR: ld_ang(na); na += 1
    a(f"  s_mov_b32 s{sB5}, {NB*8192 + 4}\n  s_mov_b32 s{sSo}, 0")
    a(ada)
    a(f"  v_add_u32 {v(vRa)}, {P1_REC}, {v(vL16)}")
    for g in range(10):
        idx = list(range(5*g, 5*g+5))
        if g == OPT["tg"]:
            wait_for(("tab", 0))
            a("  s_barrier")
            a(lda); vm.append(("lda", 0))
            a(f"  buffer_store_dword {v(vOne)}, {v(vFlg)}, {s(sFLG,4)}, 0 offen sc1"); vm.append(("flg", 1))
        for _ in range(OPT["ag"]):
            if na < NR: ld_ang(na); na += 1
        a(f"  s_waitcnt lgkmcnt({10 if OPT['wall'] else min(10, 45 - 5*g)})")
        for i in idx:
            if i + NRD < 50: a(f"  ds_read_u16 {v(O+i+NRD)}, {v(O+i+NRD)} offset:2")
        for i in idx: a(f"  v_add_u32 {v(O+i)}, {v(O+i)}, {v(R+i)}")
        for i in idx: a(f"  v_mad_u32_u24 {v(O+i)}, {v(O+i)}, {v(vSix)}, {v(vTwo)}")
        for x, i in enumerate(idx): a(f"  v_and_b32 {v(PT+x)}, 2, {v(O+i)}")
        for i in idx: a(f"  v_and_b32 {v(R+i)}, -4, {v(O+i)}")
        if OPT["wall"]:
            for i in idx: a(f"  ds_write_b32 {v(R+i)}, {v(I+i)} offset:{P1_REC}")
        for x, i in enumerate(idx): a(f"  v_lshl_add_u32 {v(O+i)}, {v(PT+x)}, 1, {v(O+i)}")
    assert na == NR
    if OPT["mtouch"] == 1:
        a(f"  buffer_load_dword v244, {v(vL128)}, {s(sMT,4)}, 0 offen"); vm.append(("m", 0))
    def put(q, cmp):
        idx = list(range(4*q, 4*q + nrec(q)))
        for x, i in enumerate(idx): a(f"  v_cmp_{cmp}_u32 {s(72+2*x,2)}, s{sB5}, {v(R+i)}")
        for x, i in enumerate(idx):
            op = "ds_write_b16_d16_hi" if (i & 1) else "ds_write_b16"
            a(f"""
  s_mov_b64 exec, {s(72+2*x,2)}
  {"" if OPT["wall"] else "ds_write_b32 %s, %s offset:%d" % (v(R+i), v(I+i), P1_REC)}
  {op} {v(O+i)}, {v(A + i//2)} offset:{P1_REC-2}""")
        a("  s_mov_b64 exec, -1")
    for q in range(NR):
        wait_for(("a", q))
        for r in range(nrec(q) // 2): a(f"  v_and_b32 {v(A+2*q+r)}, 0x7fff7fff, {v(A+2*q+r)}")
        if q == OPT["tq"] and OPT["tg"] < 0:
            assert q >= OPT["apre"]
            a("  s_barrier")
            a(lda); vm.append(("lda", 0))
            a(f"  buffer_store_dword {v(vOne)}, {v(vFlg)}, {s(sFLG,4)}, 0 offen sc1"); vm.append(("flg", 1))
            if OPT["mtouch"] == 2:
                a(f"  buffer_load_dword v244, {v(vL128)}, {s(sMT,4)}, 0 offen"); vm.append(("m", 0))
        put(q, "gt")
    a(f"  ds_read_u16 {v(vWo)}, {v(vZ)} offset:2050")
    a("  s_waitcnt lgkmcnt(0)\n  s_barrier")
    stamp(a, 252, 43)
    a(f"  v_readfirstlane_b32 s{sO2}, {v(vWo)}")
    free = [PT, PT + 4, PT + 8, O, I, R, O + 4, I + 4, R + 4]
    def erd(r): a(f"  ds_read_b128 {v(free[r],4)}, {v(vRa)} offset:{r*8192}")
    def est(r):
        a(f"  buffer_store_dwordx4 {v(free[r],4)}, {v(vL16)}, {s(sRW,4)}, s{sSo} offen sc1\n  s_add_u32 s{sSo}, s{sSo}, 8192")
        vm.append(("st", r))
    assert NB <= 8
    fad = f"""
  v_and_b32 {v(RK[0])}, 63, v0
  v_lshlrev_b32 {v(RK[0])}, 4, {v(RK[0])}
  s_and_b32 s{sCin}, s2, {OPT['nrep']-1}
  s_lshl_b32 s{sCin}, s{sCin}, 10"""
    if OPT["wall"]:
        free = [I + 4 * r for r in range(8)]
        for r in range(NB): erd(r)
        a(fad)
        a(f"  s_mov_b32 s{sO4}, 0\n  s_cmp_lg_u32 s{sW}, 0\n  s_cbranch_scc1 L_nofl")
        wait_for(("lda", 0))
        a(cda)
        a(f"  s_cbranch_vccnz L_nofl\n  s_mov_b32 s{sO4}, 1")
        a(f"  buffer_load_dwordx4 {v(PT,4)}, {v(RK[0])}, {s(sFLG,4)}, s{sCin} offen sc1")
        a.label("L_nofl")
        for r in range(3):
            a(f"  s_waitcnt lgkmcnt({NB - 1 - r})")
            est(r)
        a("  s_waitcnt lgkmcnt(0)")
        put(0, "le"); put(1, "le"); put(2, "le")
    else:
        for r in range(3): erd(r)
        for r in range(3):
            a(f"  s_waitcnt lgkmcnt({2 - r})")
            est(r)
        put(0, "le"); put(1, "le")
        for r in range(3, NB): erd(r)
        put(2, "le")
        a("  s_waitcnt lgkmcnt(0)")
    todo = list(range(3, NB))
    fad = f"""
  v_and_b32 {v(RK[0])}, 63, v0
  v_lshlrev_b32 {v(RK[0])}, 4, {v(RK[0])}
  s_and_b32 s{sCin}, s2, {OPT['nrep']-1}
  s_lshl_b32 s{sCin}, s{sCin}, 10"""
    for q in range(3, NR):
        for _ in range(OPT["ep"]):
            if todo: est(todo.pop(0))
        if q == OPT["sq"]:
            assert not todo
            a(f"""
  v_mov_b32 {v(vDum)}, 3
  s_waitcnt vmcnt(0)
  s_barrier
  s_cmp_gt_u32 s{sO2}, {NB*8192 // 6 - 2}
  s_cbranch_scc1 L_noearly
  buffer_store_dword {v(vDum)}, {v(vFlg)}, {s(sFLG,4)}, 0 offen sc1""")
            a.label("L_noearly")
        if q == OPT["fq"] and not OPT["wall"]:
            assert q >= 3
            a(fad)
            a(f"  s_mov_b32 s{sO4}, 0\n  s_cmp_lg_u32 s{sW}, 0\n  s_cbranch_scc1 L_nofl")
            wait_for(("lda", 0))
            a(cda)
            a(f"  s_cbranch_vccnz L_nofl\n  s_mov_b32 s{sO4}, 1")
            a(f"  buffer_load_dwordx4 {v(R+8,4)}, {v(RK[0])}, {s(sFLG,4)}, s{sCin} offen sc1")
            a.label("L_nofl")
        put(q, "le")
    assert not todo
    stamp(a, 252, 44)
    FP = Db
    def flag_load(dst, off): return f"  buffer_load_dwordx4 {v(dst,4)}, {v(off)}, {s(sFLG,4)}, s{sCin if dst == FP else sX} offen sc1"
    def flag_cond(dst, stage): return f"""
  v_min3_u32 {v(dst)}, {v(dst)}, {v(dst+1)}, {v(dst+2)}
  v_min_u32 {v(dst)}, {v(dst)}, {v(dst+3)}
  v_cmp_gt_u32 vcc, {stage}, {v(dst)}"""
    if OPT["wall"]: a(f"  s_cmp_lg_u32 s{sW}, 0\n  s_cbranch_scc1 L_polled_t\n  s_waitcnt vmcnt({NB})")
    else:
        if OPT["sq"] < 0: a("  s_waitcnt vmcnt(0)")
        else: assert OPT["fq"] < OPT["sq"]
        stamp(a, 252, 48)
        a(f"  s_cmp_lg_u32 s{sW}, 0\n  s_cbranch_scc1 L_polled_t")
    a(f"  s_cmp_eq_u32 s{sO4}, 0\n  s_cbranch_scc1 L_wait_a")
    a(flag_cond(PT if OPT["wall"] else R+8, 1))
    a("  s_cbranch_vccz L_polled_t\n  s_branch L_polled_a")
    a.label("L_nochunk1")
    if 40 <= OPT["cut"] <= 44: a("  s_endpgm")
    a("  s_waitcnt vmcnt(0)")
    a(arrive)
    if OPT["mpf"]:
        srd(a, sMT, 48, 49, None, E * 32)
        a(f"""
  s_sub_u32 s{sY}, s2, {NCH}
  s_lshl_b32 s{sY}, s{sY}, 16
  v_lshlrev_b32 {v(O)}, 7, v0""")
        for r in range(OPT["mpf"]):
            a(f"  buffer_load_dword v254, {v(O)}, {s(sMT,4)}, s{sY} offen\n  s_add_u32 s{sY}, s{sY}, {(256 - NCH) << 16}")
            if r == 1:
                for piece in range(4): prep(piece)
    else:
        for piece in range(4): prep(piece)
    a(ada)
    a(fad)
    a(f"  s_mov_b32 s{sO2}, 0\n  s_cmp_lg_u32 s{sW}, 0\n  s_cbranch_scc1 L_polled_t")
    if OPT["ncn"]:
        poll("a0", lda, cda, 64)
        poll("t0", flag_load(FP, RK[0]), flag_cond(FP, 1), OPT["ncn"])
        a(f"  s_sleep {OPT['ncn']}\n  s_branch L_polled_t")
    a.label("L_wait_a")
    poll("a", lda, cda, 64)
    poll("t", flag_load(FP, RK[0]), flag_cond(FP, 1), OPT["napt"])
    stamp(a, 252, 49)
    a(f"""
  s_lshl_b32 s{sX}, s{sJ}, 5
  s_add_u32 s{sX}, s{sX}, {TABOFF}""")
    srd(a, sTAB, sWS, sWS+1, f"s{sX}", (NCH - 1) * 8192 + 32)

    def state_update():
        a(f"""
  v_sub_u32 {v(rem)}, {v(rem)}, {v(rtot)}
  v_lshrrev_b32 {v(T)}, 16, {v(Q)}
  v_and_b32 {v(T+1)}, 0xffff, {v(Q)}
  v_min_u32 {v(vR0)}, 32, {v(nA)}
  v_cmp_ge_u32 vcc, 32, {v(nA)}
  v_sub_u32 {v(T+2)}, 32, {v(vR0)}
  v_add_u32 {v(vB6)}, {v(cb)}, {v(T+1)}
  v_min_u32 {v(T+2)}, {v(T)}, {v(T+2)}
  v_mul_u32_u24 {v(vB6)}, 6, {v(vB6)}
  v_add_u32 {v(rtot)}, {v(vR0)}, {v(T+2)}
  v_mad_i32_i24 {v(vB6)}, {v(vR0)}, -6, {v(vB6)}
  v_lshlrev_b32 {v(vRT4)}, 2, {v(rtot)}
  v_add_u32 {v(vA6)}, {v(cb)}, {v(sA)}
  v_mul_u32_u24 {v(vA6)}, 6, {v(vA6)}""")
    def state_update2():
        a(f"""
  v_add_u32 {v(sA)}, 32, {v(sA)}
  v_subrev_u32 {v(nA)}, 32, {v(nA)}
  v_add_u32 {v(T+1)}, {v(T+1)}, {v(T+2)}
  v_sub_u32 {v(T)}, {v(T)}, {v(T+2)}
  v_cndmask_b32 {v(sA)}, {v(sA)}, {v(T+1)}, vcc
  v_cndmask_b32 {v(nA)}, {v(nA)}, {v(T)}, vcc""")
        for i in range(K - 1):
            a(f"  v_cndmask_b32 {v(Q+i)}, {v(Q+i)}, {v(Q+i+1)}, vcc")
        a(f"  v_cndmask_b32 {v(Q+K-1)}, {v(Q+K-1)}, {v(vZ)}, vcc")
    def set_flag(tag):
        a(f"""
  v_cmp_lt_u32 vcc, 0, {v(rem)}
  s_cbranch_vccz L_noflag_{tag}
  ds_write_b32 {v(vCtlN)}, {v(vOne)} offset:4""")
        a.label(f"L_noflag_{tag}")

    bc = lambda u: f"row_newbcast:{u} row_mask:0xf bank_mask:0xf"
    def rec_load(u, t0):
        a(f"""
  v_sub_co_u32_dpp {v(t0)}, vcc, {v(vR0)}, {v(vI1)} {bc(u)}
  v_add_u32_dpp {v(t0)}, {v(vA6)}, {v(vI6)} {bc(u)}
  v_add_u32_dpp {v(t0+1)}, {v(vB6)}, {v(vI6)} {bc(u)}
  v_cndmask_b32 {v(t0)}, {v(t0)}, {v(t0+1)}, vcc
  v_sub_u32_dpp {v(t0+1)}, {v(vRT4)}, {v(vI4)} {bc(u)}
  v_bfi_b32 {v(t0)}, {v(vMsk)}, {v(t0)}, {v(t0+1)}
  buffer_load_dwordx2 {v(REC[u],2)}, {v(t0)}, {s(sREC,4)}, 0 offen{RPOL}""")

    SDWA = "dst_sel:WORD_1 dst_unused:UNUSED_PAD src0_sel:WORD_1 src1_sel:WORD_0"
    def ins1(u, thr, p):
        ta, rk, mk, w = TA[p], RK[p], sMk[p], WW[p]
        a(f"""
  v_cmp_gt_i32 vcc, 0, {v(LR(u))}
  v_min_i32 {v(w)}, {v(LR(u))}, {v(LR(u)+1)}
  v_cmp_gt_i32 {s(mk,2)}, {thr}, {v(w)}
  v_bfe_u32 {v(ta)}, {v(w)}, 23, 8
  v_cndmask_b32_sdwa {v(LR(u))}, {v(LR(u))}, {v(LR(u)+1)}, vcc {SDWA}
  v_mad_u32_u24 {v(ta)}, {v(ta)}, {v(v264)}, s{sIns}
  s_mov_b64 exec, {s(mk,2)}
  ds_add_rtn_u32 {v(rk)}, {v(ta)}, {v(vOne)}
  s_mov_b64 exec, -1""")

    def ins2(u, tag, p):
        ta, rk, mk, w = TA[p], RK[p], sMk[p], WW[p]
        lab = f"{tag}_{u}"
        a(f"""
  s_mov_b64 exec, {s(mk,2)}
  v_cmp_lt_u32 vcc, 31, {v(rk)}
  v_lshl_add_u32 {v(ta)}, {v(rk)}, 3, {v(ta)}
  s_cbranch_vccnz L_rare_{lab}""")
        a.label(f"L_back_{lab}")
        a(f"""
  ds_write2_b32 {v(ta)}, {v(LR(u))}, {v(w)} offset0:2 offset1:3
  s_mov_b64 exec, -1""")
        rare.append((lab, u, p))

    a(f"""
  v_add_u32 {v(PT+2)}, {P1_REC}, {v(vL16)}
  v_add_u32 {v(PT+3)}, {P1_REC + 8*8192}, {v(vL16)}
  v_add_u32 {v(PT+4)}, {P1_REC + 16*8192}, {v(vL16)}
  s_mov_b32 s{sSo}, {NB*8192}
  v_mov_b32 {v(vDum)}, 3
  s_waitcnt lgkmcnt(0)
  s_barrier""")
    stamp(a, 252, 45)
    NS = 19
    sdt = lambda r: (20 + r) % 25 if r < 8 else r + 1
    SD = lambda r: ACC[sdt(r)]
    gv = []
    def gwait(x, extra=""): a(f"  s_waitcnt vmcnt({len(gv) - 1 - gv.index(x)}){extra}")
    def rd(r): a(f"  ds_read_b128 {v(SD(r),4)}, {v(PT+2 + r//8)} offset:{(r%8)*8192}")
    def st(r, lst=None):
        a(f"  buffer_store_dwordx4 {v(SD(r),4)}, {v(vL16)}, {s(sRW,4)}, s{sSo} offen sc1\n  s_add_u32 s{sSo}, s{sSo}, 8192")
        if lst is not None: lst.append(("st", r))
    zero_acc = lambda t: a(f"  v_mov_b64 {v(ACC[t],2)}, 0\n  v_mov_b64 {v(ACC[t]+2,2)}, 0")
    flag3 = f"  buffer_store_dword {v(vDum)}, {v(vFlg)}, {s(sFLG,4)}, 0 offen sc1"
    N1, N3 = OPT["n1"], OPT["n3"]
    if not OPT["wall"] and OPT["sq"] < 0:
        a(f"  s_cmp_gt_u32 s{sO2}, {NB*8192 // 6 - 2}\n  s_cbranch_scc1 L_noearly")
        a(flag3)
        a.label("L_noearly")
    a(f"""
  buffer_load_dwordx4 {v(Q,4)}, {v(vTab)}, {s(sTAB,4)}, 0 offen sc1
  buffer_load_dwordx2 {v(Q+4,2)}, {v(vTab)}, {s(sTAB,4)}, 0 offen offset:16 sc1""")
    gv.extend([("tab", 0), ("tab", 1)])
    PW = OPT["pw"]
    if PW: a(f"  v_lshrrev_b32 {v(RK[0])}, 11, {v(vTab)}")
    own_ld = f"  buffer_load_dword {v(RK[1])}, {v(RK[0])}, {s(sFLG,4)}, s{sCin} offen sc1"
    own_cd = f"  v_cmp_gt_u32 vcc, 2, {v(RK[1])}"
    if cpf(1, 24): gv.append(("c", 1))
    for r in range(NB, NS): rd(r)
    nxt = NB + N1
    for r in range(NB, nxt):
        a(f"  s_waitcnt lgkmcnt({NS - 1 - r})")
        st(r, gv)
    a(f"""
  s_waitcnt lgkmcnt(0)
  s_cmp_gt_u32 s{sO2}, {NB*8192 // 6 - 2}
  s_cbranch_scc1 L_allfirst""")
    if OPT["wall"]: a(f"  s_waitcnt vmcnt({len(gv)})")
    a("  s_barrier")
    if OPT["wall"]: a(flag3)
    a.label("L_allfirst_back")
    stamp(a, 252, 46)
    pend = list(range(nxt, NS))
    keep = OPT["n3"]
    slot = [0]
    def st1(n=1):
        on = OPT["smask"] >> slot[0] & 1 or n > 1
        slot[0] += 1
        for _ in range(n):
            if on and len(pend) > keep: st(pend.pop(0), gv)
    st1()
    RBR, WD = Wa, Wa + 14
    if DMA:
        for p in range(14): a(f"  v_mov_b32 {v(RBR+p)}, {v(RBK[p]) if p < 13 else 0}")
        a(f"  v_mov_b32 {v(WD)}, {v(WDK[0])}\n  v_mov_b32 {v(WD+1)}, {v(WDK[1])}")
        st1()
    else:
        a(f"""
  s_mul_i32 s{sX}, s{sW}, 3584
  s_add_u32 s{sX}, s{sX}, {RB_OFF}
  v_and_b32 {v(T+8)}, 63, v0
  v_lshl_add_u32 {v(T+9)}, {v(T+8)}, 3, s{sX}
  v_bfe_u32 {v(T+8)}, v0, 4, 1
  v_cmp_eq_u32 vcc, 1, {v(T+8)}""")
        for p in range(14): a(f"  ds_write_b32 {v(T+9)}, {v(RBK[p] if p < 13 else vZ)} offset:{(p//2)*512 + (p%2)*4}")
        st1()
        for r in range(4):
            a(f"  v_cndmask_b32 {v(Wa+r)}, {v(WDK[r])}, {v(vZ)}, vcc")
            a(f"  v_cndmask_b32 {v(Wb+r)}, {v(vZ)}, {v(WDK[r])}, vcc")
    a(f"""
  v_mov_b32 {v(WS0+1)}, 0
  v_mov_b32 {v(WS1+1)}, 0
  v_mov_b32 {v(WR+1)}, 0
  v_mov_b32 {v(sA)}, 0
  v_mov_b32 {v(nA)}, 0
  v_mov_b32 {v(rtot)}, 0""")
    ZR = range(Wa + 16, Wa + 32, 2) if DMA else range(RING[0], RING[0] + 20, 2)
    for r in ZR: a(f"  v_mov_b64 {v(r,2)}, 0")
    st1()
    a(f"""
  s_mul_i32 s{sFl}, s{sJ}, {2*CARLIST}
  s_add_u32 s{sFl}, s{sFl}, {CAROFF}""")
    srd(a, sREC, sWS, sWS+1, None, NCH * CH * 6)
    a(f"  s_mov_b32 s{sM}, s48\n  s_or_b32 s{sM+1}, s49, 0x20000\n  s_mov_b32 s{sM+2}, {E*16}\n  s_mov_b32 s{sM+3}, 0x20000")
    srd(a, sCAR, sWS, sWS+1, f"s{sFl}", 2 * CARLIST)
    srd(a, sOUT, 70, 71, None, f"s{sRb}")
    srd(a, sMW, 48, 49, None, f"s{sRb}")
    for t in list(range(3, 9)) + [sdt(r) for r in range(NB)]: zero_acc(t)
    st1()
    a(f"""
  v_mov_b32 {v(vSent)}, {SENT}
  v_mov_b32 {v(T)}, 0
  v_mov_b32 {v(T+1)}, {v(vSent)}
  v_mov_b32 {v(T+2)}, 0
  v_mov_b32 {v(T+3)}, {v(vSent)}
  v_add_u32 {v(T+6)}, {7*8192}, {v(vL16)}""")
    for r in range(13):
        a(f"  ds_write_b128 {v(vL16 if r < 7 else T+6)}, {v(T,4)} offset:{(r%7)*8192}")
        if r % 5 == 4: st1()
    a(f"""
  v_and_b32 {v(T+6)}, 15, v0
  v_lshl_add_u32 {v(T+6)}, {v(T+6)}, 2, {v(vCtlN)}
  ds_write_b32 {v(T+6)}, {v(vZ)}
  ds_write_b128 {v(vSst if (DMA or STR) else vSrd)}, {v(ACC[3],4)}""")
    if DMA:
        for q in range(D): a(f"  ds_write_b128 {v(vSst)}, {v(ACC[3],4)} offset:{1024*(q+1)}")
    for q in range(D): a(f"  v_mov_b32 {v(SA[q])}, {v(vSst)}\n  v_mov_b32 {v(CC[q])}, 0")
    gwait(("tab", 1))
    a(f"  v_lshrrev_b32 {v(rem)}, 16, {v(Q)}")
    for i in range(1, K):
        a(f"  v_lshrrev_b32 {v(T+4)}, 16, {v(Q+i)}\n  v_add_u32 {v(rem)}, {v(rem)}, {v(T+4)}")
    state_update()
    for u in range(0, 16, 2):
        a(f"""
  v_add_u32_dpp {v(REC[u])}, {v(vB6)}, {v(vI6)} {bc(u)}
  v_sub_u32_dpp {v(REC[u]+1)}, {v(vRT4)}, {v(vI4)} {bc(u)}
  v_add_u32_dpp {v(REC[u+1])}, {v(vB6)}, {v(vI6)} {bc(u+1)}
  v_sub_u32_dpp {v(REC[u+1]+1)}, {v(vRT4)}, {v(vI4)} {bc(u+1)}
  v_bfi_b32 {v(REC[u])}, {v(vMsk)}, {v(REC[u])}, {v(REC[u]+1)}
  v_bfi_b32 {v(REC[u+1])}, {v(vMsk)}, {v(REC[u+1])}, {v(REC[u+1]+1)}""")
        if u == OPT["eb"] and PW:
            a(own_ld); gv.append(("own", 0))
        elif u == OPT["eb"]:
            a(f"  s_cmp_lg_u32 s{sW}, 0\n  s_cbranch_scc1 L_noeb")
            a(flag_load(FP, RK[0]))
            a.label("L_noeb")
            ebm = len(gv)
        if u % 4 == 2: st1()
    state_update2()
    state_update()
    state_update2()
    st1()
    st1(NS)
    a("  s_nop 0")
    nx3 = NS - len(pend)
    for r in range(NB, nx3): zero_acc(sdt(r))
    stamp(a, 252, 47)
    if OPT["pf0"] == 3:
        share = (OPT["wmain"] // 4 + 31) // 32
        a(f"""
  s_cmp_eq_u32 s{sW}, 0
  s_cbranch_scc1 L_nopf
  s_lshr_b32 s{sX}, s2, 3
  s_mul_i32 s{sX}, s{sX}, {share*128}
  v_lshlrev_b32 {v(TA[1])}, 7, v0
  buffer_load_dword {v(WW[1])}, {v(TA[1])}, {s(sM,4)}, s{sX} offen""")
        a.label("L_nopf")
    a(f"  s_mov_b32 s{sThr}, {BUFSZ - 256}")
    if PW:
        gwait(("own", 0))
        a(own_cd)
        a("  s_cbranch_vccnz L_gen")
    else:
        a(f"  s_cmp_lg_u32 s{sW}, 0\n  s_cbranch_scc1 L_polled_b")
        if OPT["eb"] >= 0:
            a(f"  s_waitcnt vmcnt({len(gv) - ebm})")
            a(flag_cond(FP, 2))
            a("  s_cbranch_vccz L_polled_b")
        poll("b", flag_load(FP, RK[0]), flag_cond(FP, 2), OPT["nap"])
        a("  s_waitcnt lgkmcnt(0)")
        a("  s_barrier")
        stamp(a, 252, 1)
    def pro_ld(us):
        for u in us:
            a(f"  buffer_load_dwordx2 {v(REC[u],2)}, {v(REC[u])}, {s(sREC,4)}, 0 offen{RPOL}")
            gv.append(("rec", u))
    NL0 = OPT["nl0"]
    if OPT["gprio"]:
        a(f"  s_cmp_lt_u32 s{sW}, 4\n  s_cbranch_scc1 L_gp\n  s_setprio 1")
        a.label("L_gp")
    pro_ld(range(NL0))
    if PW:
        a("  s_waitcnt lgkmcnt(0)\n  s_barrier")
        stamp(a, 252, 1)
    NG = NS
    stamp(a, 252, 12)
    set_flag("pro")
    stamp(a, 252, 13)
    PTA = (lambda u: (list(range(Db, Sf + 4)) + [TA[0], TA[1], RK[1], WW[1]])[u]) if DMA else (lambda u: Da + u)
    PRK = (lambda u: Wa + 16 + u) if DMA else (lambda u: RING[0] + u)
    PMK = lambda u: sPM + 2 * (u % 8)
    slowg = []
    def gins1(us, mk):
        for u in us:
            a(f"""
  v_cmp_gt_i32 vcc, 0, {v(REC[u])}
  v_min_i32 {v(PTA(u))}, {v(REC[u])}, {v(REC[u]+1)}
  v_cmp_gt_i32 {s(mk(u),2)}, 0, {v(PTA(u))}
  v_cndmask_b32_sdwa {v(REC[u])}, {v(REC[u])}, {v(REC[u]+1)}, vcc {SDWA}
  v_mov_b32 {v(REC[u]+1)}, {v(PTA(u))}""")
        for u in us: a(f"  v_bfe_u32 {v(PTA(u))}, {v(PTA(u))}, 23, 8")
        for u in us: a(f"  v_mul_u32_u24 {v(PTA(u))}, {v(PTA(u))}, {v(v264)}")
        for u in us: a(f"  s_mov_b64 exec, {s(mk(u),2)}\n  ds_add_rtn_u32 {v(PRK(u))}, {v(PTA(u))}, {v(vOne)}")
        a("  s_mov_b64 exec, -1")
    def gins2(us, mk, g):
        if len(us) == 4: a(f"  v_max3_u32 {v(T)}, {v(PRK(us[0]))}, {v(PRK(us[1]))}, {v(PRK(us[2]))}\n  v_max_u32 {v(T)}, {v(T)}, {v(PRK(us[3]))}")
        else: a(f"  v_max_u32 {v(T)}, {v(PRK(us[0]))}, {v(PRK(us[1]))}")
        a(f"""
  v_cmp_lt_u32 vcc, 31, {v(T)}
  s_cbranch_vccz L_pfast_{g}
  v_cmp_lt_u32 vcc, 63, {v(T)}
  s_cbranch_vccnz L_pslow_{g}""")
        a.label(f"L_pback_{g}")
        for x, u in enumerate(us): a(f"  v_subrev_u32 {v(T+4+x)}, 31, {v(PRK(u))}")
        for x, u in enumerate(us): a(f"  s_mov_b64 exec, {s(mk(u),2)}\n  ds_max_i32 {v(PTA(u))}, {v(T+4+x)} offset:{BUFSZ}")
        a(f"  s_mov_b64 exec, -1\n  ds_write_b32 {v(vCtlN)}, {v(vOne)} offset:4")
        for x, u in enumerate(us): a(f"  v_lshrrev_b32 {v(T+4+x)}, 5, {v(PRK(u))}")
        for x, u in enumerate(us): a(f"  v_mad_u32_u24 {v(PTA(u))}, {v(T+4+x)}, s{sThr}, {v(PTA(u))}")
        a.label(f"L_pfast_{g}")
        for u in us: a(f"  v_lshl_add_u32 {v(PTA(u))}, {v(PRK(u))}, 3, {v(PTA(u))}")
        for u in us: a(f"  s_mov_b64 exec, {s(mk(u),2)}\n  ds_write_b64 {v(PTA(u))}, {v(REC[u],2)} offset:8")
        a("  s_mov_b64 exec, -1")
        slowg.append((g, us, mk))
    def pro_ins1(g):
        gwait(("rec", 4*g+3))
        gins1(list(range(4*g, 4*g+4)), PMK)
    def pro_ins2(g): gins2(list(range(4*g, 4*g+4)), PMK, g)
    left = list(range(nx3, NS))
    per = (len(left) + 3) // 4
    def some():
        for _ in range(per):
            if left: st(left.pop(0), gv)
    pro_ins1(0)
    stamp(a, 252, 3)
    pro_ld(range(NL0, 16))
    def pf():
        share = (OPT["wmain"] // 4 + 31) // 32
        a(f"""
  s_lshr_b32 s{sX}, s2, 3
  s_mul_i32 s{sX}, s{sX}, {share*128}
  v_lshlrev_b32 {v(TA[1])}, 7, v0
  buffer_load_dword {v(WW[1])}, {v(TA[1])}, {s(sM,4)}, s{sX} offen""")
        gv.append(("pf", 0))
    if OPT["pf0"] == 1:
        while left: st(left.pop(0), gv)
        pf()
    pro_ins1(1)
    some()
    a("  s_waitcnt lgkmcnt(0)")
    if OPT["gprio"] == 1: a("  s_setprio 0")
    pro_ins2(0); some(); pro_ins1(2)
    if OPT["gprio"] == 2: a("  s_setprio 0")
    pro_ins2(1); some(); pro_ins1(3); some()
    if OPT["gprio"] == 3: a("  s_setprio 0")
    if OPT["pf0"] == 2: pf()
    stamp(a, 252, 8)
    a("  s_nop 0")
    for r in range(nx3, NS): zero_acc(sdt(r))
    a("  s_waitcnt lgkmcnt(0)")
    pro_ins2(2); pro_ins2(3)
    a.label("L_gen_done")
    stamp(a, 252, 11)
    a(f"  s_lshr_b32 s{sCnt[1]}, s{sEb}, 5\n  s_add_u32 s{sCnt[1]}, s{sCnt[1]}, 100\n  s_mul_hi_u32 s{sCnt[1]}, s{sCnt[1]}, {MK}")
    a(f"  v_cmp_ne_u32 vcc, 0, {v(vR0)}\n  s_or_b32 s85, vcc_lo, vcc_hi")
    if DMA:
        a(f"  s_mul_i32 s{sRing}, s{sW}, {WSTR}\n  s_add_u32 s{sRing}, s{sRing}, {S_OFF + 1024}")
        for r in range(P, Sf + 4, 2): a(f"  v_mov_b64 {v(r,2)}, 0")
    a("  s_branch L_turn2")
    def signal_all(tag, n):
        a(f"""
  v_mov_b32 {v(T+4)}, {CTL + 32}
  s_waitcnt vmcnt({n})
  s_mov_b64 exec, 1
  ds_add_rtn_u32 {v(T+5)}, {v(T+4)}, {v(vOne)}
  s_mov_b64 exec, -1
  v_and_b32 {v(T+6)}, 63, v0
  s_lshl_b32 s{sX}, s2, 2
  v_lshl_add_u32 {v(T+6)}, {v(T+6)}, 10, s{sX}
  v_mov_b32 {v(T+7)}, 4
  s_waitcnt lgkmcnt(0)
  v_readfirstlane_b32 s{sX}, {v(T+5)}
  s_cmp_lg_u32 s{sX}, 7
  s_cbranch_scc1 L_nosig_{tag}
  buffer_store_dword {v(T+7)}, {v(T+6)}, {s(sFLG,4)}, 0 offen sc1""")
        a.label(f"L_nosig_{tag}")

    INS0 = OPT["ins0"]
    def sread():
        if DMA or STR: tr(Sf, vSrd, 0)
        else: a(f"  ds_read_b128 {v(Sf,4)}, {v(vSrd)}")
    def cstage_head(q):
        a(f"  ds_write_b16 {v(SA[q])}, {v(CC[q])}")
        sread()
        a(f"  ds_write_b16 {v(SA[q])}, {v(vZ)}")
    def cstage_m1(q):
        a(f"""
  v_mfma_f32_16x16x32_bf16 {v(Da,4)}, {v(RING[q],4)}, {v(Wa,4)}, 0
  v_mfma_f32_16x16x32_bf16 {v(Db,4)}, {v(RING[q],4)}, {v(Wb,4)}, 0""")
    def cstage_cvt():
        a(f"""
  v_cvt_pk_bf16_f32 {v(P)}, {v(Da)}, {v(Da+1)}
  v_cvt_pk_bf16_f32 {v(P+1)}, {v(Da+2)}, {v(Da+3)}
  v_cvt_pk_bf16_f32 {v(P+2)}, {v(Db)}, {v(Db+1)}
  v_cvt_pk_bf16_f32 {v(P+3)}, {v(Db+2)}, {v(Db+3)}""")
    def cstage_m2(tc):
        a(f"  v_mfma_f32_16x16x32_bf16 {v(ACC[tc],4)}, {v(P,4)}, {v(Sf,4)}, {v(ACC[tc],4)}")
    def tr(dst, addr, off):
        a(f"  ds_read_b64_tr_b16 {v(dst,2)}, {v(addr)} offset:{off}\n  ds_read_b64_tr_b16 {v(dst+2,2)}, {v(addr)} offset:{off+512}")
    def fetch(q):
        a(f"  ds_write_b16 {v(SA[q])}, {v(CC[q])}")
        tr(Sf, vSrd, 0)
        a(f"  ds_write_b16 {v(SA[q])}, {v(vZ)}")
        tr(P, vSrd, 1024 * (q + 1))
    nds = [0]
    def step_top(t, reset=True):
        a(f"  ; ---- step {t}")
        nds[0] = len(a.lines)
        cstage_head(t % D)
        if t < NT - 1:
            a(f"  ds_read_b64 {v(RP[(t+1)&1],2)}, {v(vRd)} offset:{(t+1)*TS+8}")
        if reset and t < NT:
            a(f"  ds_write_b32 {v(vRd)}, {v(vSent)} offset:{t*TS+12}")
    assert not DMA
    def step_a(t, n):
        q = t % D
        rp = RP[t & 1]
        off, af, e = T + 1, T + 2, T + 3
        assert all(l.strip().startswith("ds_") for l in a.lines[nds[0]:])
        a(f"  s_waitcnt vmcnt({n}) lgkmcnt({len(a.lines) - nds[0]})")
        cstage_m1(q)
        mark = len(a.lines)
        if t < NT:
            a(f"""
  v_and_or_b32 {v(off)}, {v(rp+1)}, {v(vSent)}, {v(vHalf)}
  v_mul_f32 {v(af)}, {v(rp)}, {v(vFreq)}""")
            if not STR: a(f"  v_and_b32 {v(e)}, 14, {v(rp+1)}")
            a(f"""
  buffer_load_dwordx4 {v(RING[q],4)}, {v(off)}, {s(sM,4)}, 0 idxen
  v_cos_f32 {v(af)}, {v(af)}""")
            if STR: a(f"  v_and_or_b32 {v(SA[q])}, {v(rp+1)}, 14, {v(vSst)}")
            else: a(f"  v_lshl_add_u32 {v(SA[q])}, {v(e)}, 3, {v(vSst)}")
            a(f"  v_cvt_pk_bf16_f32 {v(CC[q])}, {v(af)}, {v(af)}")
        return mark
    def step_b(t, mark, reset=True):
        n = 0
        for l in a.lines[mark:]:
            if l.endswith(":") or l.strip().startswith(";"): continue
            n += 1
            if "s_cbranch" in l: break
        if n < 7: a(f"  s_nop {6 - n}")
        lg = (2 if t < NT-1 else 1) + (1 if reset and t < NT else 0)
        cstage_cvt()
        a(f"  s_waitcnt lgkmcnt({lg})\n  s_nop 0")
        cstage_m2((t - D) % NT)

    LD0 = INS0 - OPT["lead"]
    assert LD0 >= 0 and OPT['lead'] <= 3
    sKo = sCnt[1]
    sTwo = 85
    order = []
    for t in range(NT):
        order.append(("W", t))
        order.append(("g", t))
        if t == 0: order.append(("rec", 16))
        if 0 <= t - LD0 < 16: order.append(("rec", t - LD0))
        order.append(("V", t))
    isop = lambda x: x[0] not in "WV"
    assert all(x[0] == "g" for x in order[order.index(("g", NT - D)):] if isop(x))
    def younger(target, at):
        n = len(order); i = order.index(target); cnt = 0
        j = (i + 1) % n
        while j != at:
            if isop(order[j]): cnt += 1
            j = (j + 1) % n
        return cnt
    RBH = 1
    def prio(tag, mask, t):
        cur = mask >> t & 1; prev = (mask >> (t - 1) & 1) if t else 0
        if cur and not prev:
            a(f"  s_cmp_lt_u32 s{sW}, 4\n  s_cbranch_scc1 L_{tag}prio{t}\n  s_setprio 1")
            a.label(f"L_{tag}prio{t}")
        if prev and not cur: a("  s_setprio 0")
    assert not OPT["lprio"] >> (NT - 1)
    def step0_extra():
        a(f"""
  v_cmp_gt_u32 vcc, s{sCin}, {v(vCarIdx)}
  s_add_u32 s{sX}, s{sIt}, 2
  s_and_b32 s{sX}, s{sX}, 3
  s_lshl_b32 s{sX}, s{sX}, 3
  s_add_u32 s{sX}, s{sX}, {CTL}
  v_mov_b32 {v(T+1)}, s{sX}
  ds_write_b64 {v(T+1)}, {v(vZ,2)}
  ds_write_b32 {v(vCntA)}, {v(vZ)}
  v_lshlrev_b32 {v(T)}, 3, {v(vCarIdx)}
  v_cndmask_b32 {v(T)}, {v(vOOB)}, {v(T)}, vcc
  buffer_load_dwordx2 {v(LR(16),2)}, {v(T)}, {s(sCAR,4)}, s{sCarR} offen sc1""")
    two = f"  v_cmp_ne_u32 vcc, 0, {v(vR0)}\n  s_or_b32 s{sTwo}, vcc_lo, vcc_hi"
    FC = Q_FC = REC[0]
    FO = REC[2]
    a(".p2align 6")
    a.label("L_loop")
    for t in range(NT):
        step_top(t)
        mk = step_a(t, younger(("g", (t - D) % NT), order.index(("W", t))))
        if t == 0: step0_extra()
        prio("lp", OPT["lprio"], t)
        ul = t - LD0
        if 0 <= ul < 16:
            a(f"""
  s_cmp_lg_u32 s{sTwo}, 0
  v_add_u32_dpp {v(T+4)}, {v(vB6)}, {v(vI6)} {bc(ul)}
  v_sub_u32_dpp {v(T+5)}, {v(vRT4)}, {v(vI4)} {bc(ul)}
  s_cbranch_scc1 L_two_{ul}""")
            a.label(f"L_two_back_{ul}")
            a(f"""
  v_bfi_b32 {v(T+4)}, {v(vMsk)}, {v(T+4)}, {v(T+5)}
  buffer_load_dwordx2 {v(LR(ul),2)}, {v(T+4)}, {s(sREC,4)}, 0 offen{RPOL}""")
        if ul == 16:
            a(f"""
  s_cmp_lg_u32 s{sThr}, 0
  s_cbranch_scc1 L_nostate
  s_cmp_eq_u32 s{sIt}, 0
  s_cbranch_scc1 L_borrow""")
            a.label("L_borrow_back")
            state_update(); state_update2()
            a(two)
            a.label("L_nostate")
            set_flag("lp")
        u1 = t - INS0; u2 = u1 - 1
        if 0 <= u2 < 17: ins2(u2, "lp", u2 & 1)
        if 0 <= u1 < 17:
            a(f"  s_waitcnt vmcnt({younger(('rec', u1), order.index(('V', t)))})")
            ins1(u1, f"s{sThr}" if u1 < 16 else "0", u1 & 1)
        if t == 2:
            a(f"  s_cmp_eq_u32 s{sIt}, 0\n  s_cbranch_scc1 L_sig")
            a.label("L_nosig_b0")
            nsig = sum(1 for x in order[:order.index(("V", t))] if isop(x))
        if t == INS0 + 18:
            a(f"  s_cmp_gt_u32 s{sCin}, 512\n  s_cbranch_scc1 L_slow_lp")
            a.label("L_slow_back_lp")
            a(f"  s_or_b32 s{sX}, s{sIt}, s{sW}\n  s_cbranch_scc0 L_ldc")
            a.label("L_ldc_back")
        if t == OPT["mstep"]:
            a(f"  s_cmp_eq_u32 s{sIt}, s{sKo}\n  s_cbranch_scc1 L_mld")
            a.label("L_mld_back1")
        step_b(t, mk)
    a(f"""
  s_waitcnt vmcnt({NT - (INS0 + 18)})
  s_or_b32 s{sX}, s{sIt}, s{sW}
  s_cbranch_scc0 L_chkc""")
    a.label("L_turn2")
    a(f"""
  v_mov_b32 {v(T)}, {v(vCtlN)}
  s_add_u32 s{sIt}, s{sIt}, 1
  s_add_u32 s{sX}, s{sIt}, 1
  s_and_b32 s{sX}, s{sX}, 3
  s_lshl_b32 s{sX}, s{sX}, 3
  s_add_u32 s{sX}, s{sX}, {CTL}
  v_mov_b32 {v(vCtlN)}, s{sX}
  s_sub_u32 s{sX}, s{sIns}, {BUFSZ}
  s_add_u32 s{sX}, s{sX}, s{sIns}
  v_add_u32 {v(vRd)}, s{sX}, {v(vRd)}
  v_add_u32 {v(vCntA)}, s{sX}, {v(vCntA)}
  s_sub_u32 s{sIns}, {BUFSZ}, s{sIns}
  s_mov_b32 s{sCarR}, s{sCarW}
  s_sub_u32 s{sCarW}, {CARLIST}, s{sCarW}
  s_waitcnt lgkmcnt(0)""")
    if OPT["stamp"] == 1:
        a(f"  s_lshl_b32 s90, s{sIt}, 1\n  s_add_u32 s90, s90, 16\n  s_min_u32 m0, s90, 36")
        stamp(a, 252, "m0")
        a("  s_add_u32 m0, m0, 1")
    a("  s_barrier")
    stamp(a, 252, "m0")
    a(f"""
  ds_read_b64 {v(T+2,2)}, {v(T)}
  ds_read_b64 {v(RP[0],2)}, {v(vRd)} offset:8
  s_waitcnt lgkmcnt(1)
  v_readfirstlane_b32 s{sCin}, {v(T+2)}
  v_readfirstlane_b32 s{sFl}, {v(T+3)}
  s_cmp_gt_u32 s{sCin}, 512
  s_cselect_b32 s{sThr}, 0x80000000, 0
  s_min_u32 s{sCin}, s{sCin}, {CARCAP}
  s_cmp_gt_u32 s{sCin}, 32
  s_cselect_b32 s{sFl}, 1, s{sFl}
  s_cmp_lt_u32 s{sIt}, {OPT['itcap']}
  s_cselect_b32 s{sFl}, s{sFl}, 0
  s_cmp_lg_u32 s{sFl}, 0
  s_cbranch_scc1 L_loop
  s_cmp_eq_u32 s{sIt}, 0
  s_cbranch_scc1 L_it0""")
    a.label("L_nosig_z")

    RBv = RBR if DMA else Q
    assert vRT4 - Q + 1 >= 14
    R0 = REC[0]
    G0, G1, RR, U = R0, R0 + 4, R0 + 8, T + 4
    XS0, XS1, XR, AG = T + 8, T + 10, T + 12, WW[0]
    assert RK[1] == T + 13 and WW[0] % 2 == 0
    vMoff, vLin, vOw, vOr = vCarIdx, vI6, vI1, vI4
    a(f"""
  v_and_b32 {v(T)}, 63, v0
  s_mul_i32 s{sX}, s{sW}, 3584
  s_add_u32 s{sX}, s{sX}, {RB_OFF}
  v_lshl_add_u32 {v(T+1)}, {v(T)}, 3, s{sX}
  v_lshlrev_b32 {v(vLin)}, 4, {v(T)}
  v_bfe_u32 {v(T+2)}, v0, 4, 2
  v_and_b32 {v(T+3)}, 15, v0
  v_lshlrev_b32 {v(T+2)}, 3, {v(T+2)}
  v_lshl_add_u32 {v(vMoff)}, {v(T+3)}, 5, {v(T+2)}
  s_mul_i32 s{sX}, s{sW}, 6400
  s_add_u32 s{sX}, s{sX}, s{sIns}
  s_add_u32 s{sX}, s{sX}, 15
  s_and_b32 s{sX}, s{sX}, -16
  v_add_u32 {v(vOw)}, s{sX}, {v(vMoff)}
  v_add_u32 {v(vOr)}, s{sX}, {v(vLin)}
  v_cmp_gt_u32 {s(sT,2)}, 8, {v(T+3)}""")
    for h in range(0 if DMA else 7):
        a(f"  ds_read_b64 {v(RBv+2*h,2)}, {v(T+1)} offset:{h*512}")
    if DMA: a(f"  s_mov_b32 s{sCnt[0]}, s{sX}")
    def s0(tl):
        x = ACC[tl]
        a(f"""
  v_cvt_pk_bf16_f32 {v(Da)}, {v(x)}, {v(x+1)}
  v_cvt_pk_bf16_f32 {v(Da+1)}, {v(x+2)}, {v(x+3)}
  s_nop 1
  v_mfma_f32_16x16x16_bf16 {v(x,4)}, {v(WD,2)}, {v(Da,2)}, 0""")
    fo = [("g", t - NT) for t in range(NT - D, NT)]
    def fwait(x): return len(fo) - 1 - fo.index(x)
    def s1(p):
        b = RBv + (p & ~1)
        w0, w1 = (WS0, WS1) if p % 2 == 0 else (XS0, XS1)
        a(f"""
  v_mfma_f32_16x16x16_bf16 {v(G0,4)}, {v(w0,2)}, {v(b,2)}, 0
  v_mfma_f32_16x16x16_bf16 {v(G1,4)}, {v(w1,2)}, {v(b,2)}, 0""")
    def s2(p):
        t0 = ACC[2*p]; t1 = ACC[2*p+1] if 2*p+1 < NT else ACC[2*p]
        for r in range(4): a(f"  v_mul_f32 {v(U+r)}, {v(t0+r)}, {v(G0+r)}")
        for r in range(4): a(f"  v_mul_f32_dpp {v(U+r)}, {v(t1+r)}, {v(G0+r)} row_ror:8 row_mask:0xf bank_mask:0xc")
        for r in range(4): a(f"  v_fmac_f32_dpp {v(U+r)}, {v(t0+r)}, {v(G1+r)} row_ror:8 row_mask:0xf bank_mask:0x3")
        for r in range(4): a(f"  v_fmac_f32_dpp {v(U+r)}, {v(t1+r)}, {v(G1+r)} quad_perm:[0,1,2,3] row_mask:0xf bank_mask:0xc")
        a(f"""
  v_cvt_pk_bf16_f32 {v(AG)}, {v(U)}, {v(U+1)}
  v_cvt_pk_bf16_f32 {v(AG+1)}, {v(U+2)}, {v(U+3)}
  v_mfma_f32_16x16x16_bf16 {v(RR,4)}, {v(WR if p % 2 == 0 else XR,2)}, {v(RBv + (p & ~1),2)}, 0""")
        if p + 1 < 13: s1(p + 1)
        else: a("  s_nop 0")
        a(f"  v_mfma_f32_16x16x16_bf16 {v(U,4)}, {v(WUP,2)}, {v(AG,2)}, 0")
    def s3(p):
        x = ACC[2*p]; m_ = MM[p]
        a(f"""
  v_lshlrev_b32 {v(x)}, 16, {v(m_)}
  v_and_b32 {v(x+1)}, 0xffff0000, {v(m_)}
  v_lshlrev_b32 {v(x+2)}, 16, {v(m_+1)}
  v_and_b32 {v(x+3)}, 0xffff0000, {v(m_+1)}""")
        if p == 12: a("  s_nop 3")
        a(f"""
  v_pk_fma_f32 {v(x,2)}, {v(U,2)}, {v(RR,2)}, {v(x,2)}
  v_pk_fma_f32 {v(x+2,2)}, {v(U+2,2)}, {v(RR+2,2)}, {v(x+2,2)}
  v_cvt_pk_bf16_f32 {v(x)}, {v(x)}, {v(x+1)}
  v_cvt_pk_bf16_f32 {v(x+1)}, {v(x+2)}, {v(x+3)}""")
        if p == 12: a(f"  s_mov_b64 exec, {s(sT,2)}")
        a(f"  ds_write_b64 {v(vOw)}, {v(x,2)} offset:{p*512}")
        if p == 12: a(f"  s_mov_b64 exec, -1")
        if p % 2 == 1 or p == 12:
            r = p // 2
            a(f"  ds_read_b128 {v(ACC[4*r+1 if r < 6 else 23],4)}, {v(vOr)} offset:{r*1024}")
    def s4(r):
        a(f"  buffer_store_dwordx4 {v(ACC[4*r+1 if r < 6 else 23],4)}, {v(vLin)}, {s(sOUT,4)}, s{sEb if r < 4 else sEb2} offen offset:{(r%4)*1024}{POL[OPT['opol']]}")
        fo.append(("st", r))
    xw = {}
    ready = []
    for t in range(NT + D + 2):
        def x3():
            a(f"  s_cmp_lg_u32 s{sCin}, 0\n  s_cbranch_scc1 L_x3")
            a.label("L_x3_back")
            xw[3] = len(fo) - xw[2]
        if t == 6 and not DMA: x3()
        if t < NT + D: step_top(t, False)
        else: a(f"  ; ---- tail {t}\n  s_waitcnt lgkmcnt(0)")
        if t < NT + D:
            mk = step_a(t, fwait(("g", t - D)))
            if t < NT: fo.append(("g", t))
        prio("fp", OPT["fprio"], t)
        if t in (0, 3):
            n = 1 if t == 0 else 2
            a(f"  s_cmp_lg_u32 s{sCin}, 0\n  s_cbranch_scc1 L_x{n}")
            a.label(f"L_x{n}_back")
            xw[n] = len(fo)
        if t == NT: stamp(a, 252, 4)
        if t == NT + D: stamp(a, 252, 5)
        if t == 1:
            a(f"""
  v_mov_b32 {v(XS0)}, 0
  v_mov_b32 {v(XS0+1)}, {v(WS0)}
  v_mov_b32 {v(XS1)}, 0
  v_mov_b32 {v(XS1+1)}, {v(WS1)}
  v_mov_b32 {v(XR)}, 0
  v_mov_b32 {v(XR+1)}, {v(WR)}""")
        if t == 5: s1(0)
        ts2 = {2*p+7 if p < 12 else 30: p for p in range(13)}
        if t - 2 in ts2 and (ts2[t-2] % 2 == 1): ready.append(ts2[t-2] // 2)
        if t >= OPT["late"]:
            while ready: s4(ready.pop(0))
        if t - 1 in ts2: s3(ts2[t-1])
        if t in ts2: s2(ts2[t])
        if t == 2:
            a(f"  s_cmp_ge_u32 s{sKo}, s{sIt}\n  s_mov_b32 s{sKo}, -1\n  s_cbranch_scc1 L_mld")
            a.label("L_mld_back2")
        if t < NT + D: step_b(t, mk, False)
        if t == NT + D - 1: a("  s_nop 3")
    a("  s_waitcnt lgkmcnt(0)")
    s4(6)
    stamp(a, 252, 6)
    if OPT["stamp"]: a("  s_waitcnt vmcnt(0)")
    stamp(a, 252, 7); stamp(a, 252, 63, "s_memrealtime")
    if OPT["stamp"] == 1: a(f"  v_writelane_b32 v13, s{sIt}, 61")
    stamp_out(a, 252, sWS, 8, STAMPOFF + 0x200000, 253)
    a.label("L_end")
    a("  s_endpgm")

    sSm, sS2 = sMk
    a.label("L_x1")
    a(f"""
  v_cmp_gt_u32 vcc, s{sCin}, {v(vSlot)}
  v_lshlrev_b32 {v(T)}, 3, {v(vSlot)}
  s_nop 0
  v_cndmask_b32 {v(T)}, {v(vOOB)}, {v(T)}, vcc
  buffer_load_dwordx2 {v(AG,2)}, {v(T)}, {s(sCAR,4)}, s{sCarR} offen sc1
  s_branch L_x1_back""")
    a.label("L_x2")
    a(f"""
  s_mul_i32 s{sX}, s{sW}, {NT}
  s_waitcnt vmcnt({xw[2] - xw[1]})
  v_min_i32 {v(U)}, {v(AG)}, {v(AG+1)}
  v_cmp_gt_i32 vcc, 0, {v(AG)}
  v_bfe_u32 {v(U+2)}, {v(U)}, 23, 8
  v_subrev_u32 {v(U+2)}, s{sX}, {v(U+2)}
  v_cndmask_b32_sdwa {v(U+1)}, {v(AG)}, {v(AG+1)}, vcc dst_sel:WORD_1 dst_unused:UNUSED_PAD src0_sel:WORD_1 src1_sel:WORD_0
  v_cmp_gt_i32 {s(sS2,2)}, 0, {v(U)}
  v_cmp_gt_u32 {s(sSm,2)}, {NT}, {v(U+2)}
  s_and_b64 vcc, {s(sSm,2)}, {s(sS2,2)}
  s_cselect_b32 s{sCin}, s{sCin}, 0
  s_cbranch_scc0 L_x2_back
  v_and_or_b32 {v(T)}, {v(U)}, {v(vSent)}, {v(vHalf)}
  v_mul_f32 {v(U+1)}, {v(U+1)}, {v(vFreq)}
  s_mov_b32 m0, s{sCnt[0]}
  v_cndmask_b32 {v(T)}, {v(vSent)}, {v(T)}, vcc
  buffer_load_dwordx4 {(v(T) + ", " + s(sM,4) + ", 0 idxen lds") if DMA else (v(RR,4) + ", " + v(T) + ", " + s(sM,4) + ", 0 idxen")}
  v_cndmask_b32 {v(U+2)}, {v(vOOB)}, {v(U+2)}, vcc
  v_cos_f32 {v(U+1)}, {v(U+1)}
  v_and_b32 {v(U+3)}, 14, {v(U)}
  v_lshl_add_u32 {v(U+3)}, {v(U+3)}, {0 if (DMA or STR) else 3}, {v(vSst)}
  v_cvt_pk_bf16_f32 {v(U+1)}, {v(U+1)}, {v(U+1)}
  s_branch L_x2_back""")
    a.label("L_x3")
    a(f"  s_waitcnt vmcnt({xw[3]})")
    if DMA:
        a(f"  v_lshrrev_b32 {v(T)}, 1, {v(vLin)}\n  v_add_u32 {v(T)}, s{sCnt[0]}, {v(T)}")
        tr(P, T, 0)
    else:
        a(f"""
  v_mfma_f32_16x16x32_bf16 {v(Da,4)}, {v(RR,4)}, {v(Wa,4)}, 0
  v_mfma_f32_16x16x32_bf16 {v(Db,4)}, {v(RR,4)}, {v(Wb,4)}, 0
  s_nop 6""")
        cstage_cvt()
    for t in range(NT):
        a(f"""
  v_cmp_eq_u32 vcc, {t}, {v(U+2)}
  s_cbranch_vccz L_x3_{t}
  s_mov_b64 exec, vcc
  ds_write_b16 {v(U+3)}, {v(U+1)}
  s_mov_b64 exec, -1""")
        sread()
        a(f"""
  s_mov_b64 exec, vcc
  ds_write_b16 {v(U+3)}, {v(vZ)}
  s_mov_b64 exec, -1
  s_waitcnt lgkmcnt(0)""")
        cstage_m2(t)
        a.label(f"L_x3_{t}")
    a("  s_branch L_x3_back")
    a.label("L_mld")
    a(f"""
  v_bfe_u32 {v(T)}, v0, 4, 2
  v_and_b32 {v(T+1)}, 15, v0
  v_lshlrev_b32 {v(T)}, 3, {v(T)}
  v_lshl_add_u32 {v(T)}, {v(T+1)}, 5, {v(T)}""")
    for p in range(13):
        a(f"  buffer_load_dwordx2 {v(MM[p],2)}, {v(T)}, {s(sMW,4)}, s{sEb if p < 8 else sEb2} offen offset:{(p%8)*512}")
    a(f"  s_cmp_eq_u32 s{sKo}, -1\n  s_cbranch_scc1 L_mld_back2\n  s_branch L_mld_back1")
    a.label("L_it0")
    signal_all("z0", 0)
    a("  s_branch L_nosig_z")
    a.label("L_sig")
    signal_all("b1", nsig)
    a("  s_branch L_nosig_b0")
    rep = f"  s_and_b32 s{sX}, s2, {OPT['nrep']-1}\n  s_lshl_b32 s{sX}, s{sX}, 10"
    a.label("L_ldc")
    a(f"  v_lshlrev_b32 {v(FO)}, 4, v0")
    a(rep)
    a(flag_load(FC, FO))
    a("  s_branch L_ldc_back")
    a.label("L_chkc")
    a(f"  s_waitcnt vmcnt({NT - 1 - (INS0 + 18)})")
    a(flag_cond(FC, 4))
    a("  s_cbranch_vccz L_turn2")
    a(rep)
    poll("c", flag_load(FC, FO), flag_cond(FC, 4), OPT["nap"])
    a("  s_branch L_turn2")
    a.label("L_borrow")
    QL = Q + OPT['keff'] - 3
    a(f"""
  v_lshrrev_b32 {v(T)}, 16, {v(QL)}
  v_cmp_eq_u32 vcc, 0, {v(nA)}
  v_subrev_u32 {v(T+1)}, {OPT['lim']}, {v(T)}
  v_and_b32 {v(T+2)}, 0xffff, {v(QL)}
  v_max_i32 {v(T+1)}, 0, {v(T+1)}
  v_cndmask_b32 {v(T+1)}, {v(vZ)}, {v(T+1)}, vcc
  v_add_u32 {v(T+2)}, {v(T+2)}, {v(T)}
  v_sub_u32 {v(T+2)}, {v(T+2)}, {v(T+1)}
  v_cndmask_b32 {v(sA)}, {v(sA)}, {v(T+2)}, vcc
  v_add_u32 {v(nA)}, {v(nA)}, {v(T+1)}
  v_lshlrev_b32 {v(T+1)}, 16, {v(T+1)}
  v_sub_u32 {v(QL)}, {v(QL)}, {v(T+1)}
  s_branch L_borrow_back""")
    for u in range(16):
        a.label(f"L_two_{u}")
        a(f"""
  v_sub_co_u32_dpp {v(T+6)}, vcc, {v(vR0)}, {v(vI1)} {bc(u)}
  v_add_u32_dpp {v(T+6)}, {v(vA6)}, {v(vI6)} {bc(u)}
  s_nop 0
  v_cndmask_b32 {v(T+4)}, {v(T+6)}, {v(T+4)}, vcc
  s_branch L_two_back_{u}""")
    a.label("L_allfirst")
    a(f"  s_mov_b32 s{sY}, s{sSo}")
    for r in range(NB + N1, NS): st(r)
    a(f"  s_mov_b32 s{sSo}, s{sY}\n  s_waitcnt vmcnt(0)\n  s_barrier\n{flag3}\n  s_branch L_allfirst_back")
    if PW:
        sDone, sNew = 76, 77
        mk2 = lambda u: 72 + 2 * (u // 8)
        a.label("L_gen")
        a(f"  s_mov_b64 s[78:79], vcc")
        for r in range(nx3, NS): st(r)
        a(f"  s_mov_b32 s{sDone}, 0\n  s_mov_b32 s{sY}, {OPT['spin']}")
        for r in range(nx3, NS): zero_acc(sdt(r))
        a("  s_waitcnt lgkmcnt(0)\n  s_barrier")
        stamp(a, 252, 1)
        set_flag("gen")
        a("  s_mov_b64 vcc, s[78:79]")
        a.label("L_gen_loop")
        a(f"""
  s_or_b32 s{sNew}, vcc_lo, vcc_hi
  s_lshr_b32 s{sX}, s{sNew}, 8
  s_or_b32 s{sNew}, s{sNew}, s{sX}
  s_or_b32 s{sNew}, s{sNew}, s{sDone}
  s_andn2_b32 s{sNew}, 0xff, s{sNew}
  s_cbranch_scc1 L_gen_take
  s_sleep {OPT['nap']}""")
        a(own_ld)
        a("  s_waitcnt vmcnt(0)")
        a(own_cd)
        a(f"""
  s_sub_u32 s{sY}, s{sY}, 1
  s_cbranch_scc0 L_gen_loop
  s_mov_b64 vcc, 0
  s_branch L_gen_loop""")
        a.label("L_gen_take")
        def each(stage, fn):
            for x in range(8):
                a(f"  s_bitcmp1_b32 s{sNew}, {x}\n  s_cbranch_scc0 L_gen_{stage}{x}")
                fn(x, [x, x + 8])
                a.label(f"L_gen_{stage}{x}")
        each("a", lambda x, us: [a(f"  buffer_load_dwordx2 {v(REC[u],2)}, {v(REC[u])}, {s(sREC,4)}, 0 offen{RPOL}") for u in us])
        a("  s_waitcnt vmcnt(0)")
        a(own_ld)
        each("b", lambda x, us: gins1(us, mk2))
        a("  s_waitcnt lgkmcnt(0)")
        def third(x, us):
            for u in us: a(f"  v_cmp_gt_i32 {s(mk2(u),2)}, 0, {v(REC[u]+1)}")
            gins2(us, mk2, f"g{x}")
        each("c", third)
        a(f"""
  s_or_b32 s{sDone}, s{sDone}, s{sNew}
  s_waitcnt vmcnt(0)
  s_cmp_eq_u32 s{sDone}, 0xff
  s_cbranch_scc1 L_gen_done""")
        a(own_cd)
        a("  s_branch L_gen_loop")
    for g, us, mk in slowg:
        a.label(f"L_pslow_{g}")
        for u in us:
            a(f"""
  s_mov_b64 exec, {s(mk(u),2)}
  v_cmp_lt_u32 vcc, 63, {v(PRK(u))}
  s_cbranch_vccz L_pskip_{g}_{u}
  s_andn2_b64 {s(mk(u),2)}, {s(mk(u),2)}, vcc
  s_mov_b64 exec, vcc
  ds_add_rtn_u32 {v(T+1)}, {v(vCtlN)}, {v(vOne)}
  s_waitcnt lgkmcnt(0)
  v_lshlrev_b32 {v(T+1)}, 3, {v(T+1)}
  buffer_store_dwordx2 {v(REC[u],2)}, {v(T+1)}, {s(sCAR,4)}, s{sCarW} offen
  s_waitcnt vmcnt(0)""")
            a.label(f"L_pskip_{g}_{u}")
        a(f"  s_mov_b64 exec, -1\n  s_branch L_pback_{g}")
    for tag in ("lp",):
        a.label(f"L_slow_{tag}")
        a(f"  s_mov_b32 s{sX}, 512")
        a.label(f"L_slow_loop_{tag}")
        a(f"""
  v_add_u32 {v(T+1)}, s{sX}, {v(vCarIdx)}
  v_cmp_gt_u32 vcc, s{sCin}, {v(T+1)}
  v_lshlrev_b32 {v(T+1)}, 3, {v(T+1)}
  s_nop 0
  v_cndmask_b32 {v(T+1)}, {v(vOOB)}, {v(T+1)}, vcc
  buffer_load_dwordx2 {v(LR(16),2)}, {v(T+1)}, {s(sCAR,4)}, s{sCarR} offen sc1
  s_waitcnt vmcnt(0)""")
        ins1(16, "0", 0)
        a("  s_waitcnt lgkmcnt(0)")
        ins2(16, "sl" + tag, 0)
        a(f"""
  s_add_u32 s{sX}, s{sX}, 512
  s_cmp_lt_u32 s{sX}, s{sCin}
  s_cbranch_scc1 L_slow_loop_{tag}
  s_waitcnt vmcnt(0)
  s_branch L_slow_back_{tag}""")
    for lab, u, p in rare:
        a.label(f"L_rare_{lab}")
        a(f"""
  s_mov_b64 exec, vcc
  ds_add_rtn_u32 {v(RK[p])}, {v(vCtlN)}, {v(vOne)}
  v_mov_b32 {v(LR(u)+1)}, {v(WW[p])}
  s_waitcnt lgkmcnt(0)
  v_lshlrev_b32 {v(RK[p])}, 3, {v(RK[p])}
  buffer_store_dwordx2 {v(LR(u),2)}, {v(RK[p])}, {s(sCAR,4)}, s{sCarW} offen
  s_andn2_b64 exec, {s(sMk[p],2)}, vcc
  s_branch L_back_{lab}""")
    a.label("L_code_end")
    return NV

def kd(name, nv, ns):
    nv4 = (nv + 3) // 4 * 4
    return f""".amdhsa_kernel {name}
  .amdhsa_next_free_vgpr {nv}
  .amdhsa_next_free_sgpr {ns}
  .amdhsa_accum_offset {nv4}
  .amdhsa_group_segment_fixed_size 0
  .amdhsa_kernarg_size 112
  .amdhsa_user_sgpr_count 2
  .amdhsa_user_sgpr_kernarg_segment_ptr 1
  .amdhsa_system_sgpr_workgroup_id_x 1
  .amdhsa_float_denorm_mode_32 3
.end_amdhsa_kernel
"""

DOC = '; ---------------------------------------------------------------------------------------------\n;          in d_ws that every workgroup clears first; the zeroed d_debug counters confirm the clear).\n; ---------------------------------------------------------------------------------------------\n'

def main():
    out = sys.argv[1]
    ref = open(f"cdna_kernels/{NAME}.s.ref").read().split("\n")
    head = [l for l in ref if l.startswith(";") and "@launch" not in l and "Override" not in l and "grid=ceil" not in l]
    a = Asm()
    a(".amdgcn_target \"amdgcn-amd-amdhsa--gfx950\"\n.text")
    a(f".globl {NAME}_kernel\n.type {NAME}_kernel,@function")
    nv = gen_p2(a)
    errs = a.check()
    for e in errs: print("HAZARD", e)
    txt = "\n".join(head) + "\n"
    kern = f"kernel={NAME}_kernel " if OPT["list"] else ""
    txt += f"; @launch {kern}grid=(256,1,1) block=(512,1,1) lds={P1_LDS}\n"
    if OPT["probe"] >= 0:
        txt += "; @launch kernel=probe_kernel grid=(1,1,1) block=(64,1,1) lds=0\n"
        a(f"""
.p2align 8
probe_kernel:
  s_cmp_ge_u32 s2, 1
  s_cbranch_scc1 P_end
  s_load_dwordx2 s[4:5], s[0:1], 96
  s_waitcnt lgkmcnt(0)
  s_load_dwordx8 s[8:15], s[4:5], 0
  s_memrealtime s[16:17]
  s_waitcnt lgkmcnt(0)
  s_not_b32 s8, s8
  s_sub_u32 s20, s{8 + OPT['probe']}, s8
  {"s_lshr_b32 s20, s%d, 4" % (8 + OPT['probe']) if OPT['probe'] in (5, 7) else "s_nop 0"}
  s_min_u32 s20, s20, 20000
P_loop:
  s_memrealtime s[18:19]
  s_waitcnt lgkmcnt(0)
  s_sub_u32 s21, s18, s16
  s_cmp_lt_u32 s21, s20
  s_cbranch_scc1 P_loop
P_end:
  s_endpgm""")
    txt += DOC + a.text()
    txt += ".section .rodata,\"a\"\n.p2align 6\n" + kd(NAME + "_kernel", 256, 102) + (".p2align 6\n" + kd("probe_kernel", 8, 32) if OPT["probe"] >= 0 else "")
    open(out, "w").write(txt)
    print("vgprs p2:", nv, "lines:", len(a.lines), "hazards:", len(errs))

main()
```

```python
import sys, os
sys.path.insert(0, os.path.dirname(__file__))
from asmlib import Asm

NAME = "gather_scatter__molecular_angular_gemnet__graph"
E = 400000
NCH, CH = 250, 25600
EB = 1568
K = 6
MJ = 2739138
TABOFF = 0x2800000
CAROFF = 0x3000000
CARCAP = 9216
CARLIST = CARCAP * 8
STAMPOFF = 0x6000000
FLGOFF = 0x2c00000
OPT = dict(soft=0, ta=21, dsh=0, pw=0, mstep=18, late=0, mpf=0, gprio=0, str=0, uni=1, lead=2, pm2=1, eb=4, nrep=4, ncn=64, sq=-1, ep=1, bprio=0x1ff, dma=0, fix=1, dum=0, dumm=0, abl_rbf=0, tg=-1, wall=0, cpf=3, wsoff=0, mq=11, rot=0, pf0=0, a0=2, ag=2, early=0, adj=0, probe=-1, tlb=0, cut=-1, opol=1, mpol=0, tq=3, fq=10, keff=6, jid=0, fprio=0x3ffff, lprio=0xfff, napt=8, st0=1, stp=1, rb0=2, nap=8, list=1, nb=7, n1=2, n3=4, nl0=8, smask=0x555, arr=10, spin=60000, rec_pol=2, stamp=0, itcap=400000, ld_nt=7, st_pol=0, mtouch=0, la=4, apre=2, wmain=70000, b5=0, lim=24, nb2=7, ins0=2,
           abl_mfma=0, abl_s=0, abl_cos=0, abl_g=0)
for a in sys.argv[2:]:
    k, v = a.split("=")
    assert k in OPT, k
    OPT[k] = int(v, 0)
MK = -(-(1 << 32) // OPT["wmain"])
assert (399999 * MK) >> 32 <= 5

RPOL = ('', ' nt', ' sc1', ' sc0 sc1')[OPT['rec_pol']]

POL = ('', ' nt', ' sc1', ' sc0 sc1')

def v(i, n=1):
    return f"v{i}" if n == 1 else f"v[{i}:{i+n-1}]"
def s(i, n=1):
    return f"s{i}" if n == 1 else f"s[{i}:{i+n-1}]"

VST = 13
def stamp(a, vreg, lane, op="s_memtime"):
    vreg = VST
    if lane == OPT["cut"]: a("  s_endpgm")
    if not OPT["stamp"]: return
    if OPT["stamp"] == 2:
        mp = {62: (0, 1), 42: (1, 0), 45: (2, 0), 1: (3, 0), 11: (4, 0), 63: (6, 0)}
        if lane == 0:
            a("  s_memtime s[88:89]\n  s_waitcnt lgkmcnt(0)\n  s_mov_b32 s91, s88")
        if lane in (11, 7):
            a(f"  s_memtime s[88:89]\n  s_waitcnt lgkmcnt(0)\n  s_sub_u32 s88, s88, s91\n  v_writelane_b32 v{vreg}, s88, {5 if lane == 11 else 7}")
        if lane not in mp: return
        l, inv = mp[lane]
        a(f"  s_memrealtime s[88:89]\n  s_waitcnt lgkmcnt(0)")
        if inv: a("  s_not_b32 s88, s88")
        a(f"  v_writelane_b32 v{vreg}, s88, {l}")
        return
    a(f"  {op} s[88:89]\n  s_waitcnt lgkmcnt(0)\n  v_writelane_b32 v{vreg}, s88, {lane}")
def stamp_out(a, vreg, wslo, nwaves, base, tmp):
    vreg, tmp = VST, 218
    if not OPT["stamp"]: return
    if OPT["stamp"] == 2:
        back = 512
        a(f"""
  s_load_dwordx2 s[90:91], s[0:1], 96
  s_waitcnt lgkmcnt(0)
  s_add_u32 s92, s90, {back}
  s_addc_u32 s93, s91, 0
  s_mov_b32 s94, 32
  s_mov_b32 s95, 0x20000
  v_lshlrev_b32 v{tmp}, 2, v0
  buffer_atomic_umax v{vreg}, v{tmp}, s[92:95], 0 offen""")
        return
    a(f"  s_mul_i32 s88, s2, {nwaves*256}\n  s_add_u32 s88, s88, {base}")
    srd(a, 92, wslo, wslo+1, "s88", nwaves*256)
    a(f"  v_lshlrev_b32 v{tmp}, 2, v0\n  buffer_store_dword v{vreg}, v{tmp}, s[92:95], 0 offen")

def srd(a, d, lo, hi, add, size):
    if add is None:
        a(f"  s_mov_b32 s{d}, s{lo}\n  s_mov_b32 s{d+1}, s{hi}")
    else:
        a(f"  s_add_u32 s{d}, s{lo}, {add}\n  s_addc_u32 s{d+1}, s{hi}, 0")
    a(f"  s_mov_b32 s{d+2}, {size}\n  s_mov_b32 s{d+3}, 0x20000")

P1_CNT, P1_SENT, P1_TMP, P1_REC = 0, 6144, 6160, 6272
P1_LDS = P1_REC + CH * 6

TS = 264
BUFSZ = 200 * TS
S_OFF = 13 * 8192
DMA = OPT["dma"]
WSTR = 6144 if DMA else 1024
CTL = S_OFF + 8 * WSTR
RB_OFF = CTL + 128
SENT = 0x7ffff0
LAG = 4 if DMA else 5
P2_LDS = RB_OFF + 8 * 3584
D = 5
NT = 25

class RA:
    def __init__(self, start): self.n = start
    def __call__(self, k=1, al=1):
        self.n = (self.n + al - 1) // al * al
        r = self.n; self.n += k
        return r

def gen_p2(a):
    ra = RA(1)
    vSlot, vHalf, vFreq, vSst, vSrd, vI6, vI1, vI4 = (ra() for _ in range(8))
    vRd, vCntA, vOne, vOOB, vCarOff, vCarIdx, v264, vMsk, vCtlN = (ra() for _ in range(9))
    vZ = ra(2, 2)
    Q = ra(6, 4)
    sA, nA, cb, rem, rtot, vA6, vB6, vR0, vRT4 = (ra() for _ in range(9))
    vCnt = ra()
    Wa = ra(4, 4); Wb = ra(4, 4)
    RING = [ra(4, 4) for _ in range(D)]
    Da = ra(4, 4); Db = ra(4, 4); P = ra(4, 4); Sf = ra(4, 4)
    ACC = [ra(4, 4) for _ in range(NT)]
    REC = [ra(2, 4 if i == 0 else 2) for i in range(17)]
    RP = [ra(2, 2), ra(2, 2)]
    T = ra(10, 2)
    TA = [ra(), ra()]; RK = [ra(), ra()]
    WS0 = ra(2, 2); WS1 = ra(2, 2); WR = ra(2, 2); WUP = ra(2, 2)
    CC = [ra() for _ in range(D)]; SA = [ra() for _ in range(D)]
    WW = [ra(), ra()]
    assert ra.n <= 252, ra.n
    NV = ra.n
    sM = 4; sREC = 8; sCAR = 12; sTAB = 16; sOUT = 20; sDIST = 24; sMW = 28
    sJ, sW, sIt, sThr, sIns, sCarW, sCarR, sRb, sCin, sX, sFl, sEb = range(32, 44)
    sCnt = [44, 45]
    sWS = 46
    sPM = 72
    sMk = [72, 74]; sT = 76; sC10 = 78; sCl2 = 80
    sEb2 = 3
    rare = []

    O, I, R, A = 36, 88, 140, 192
    PT = 218
    vFlg, vDum, vTab, vWo, vTwo = range(240, 245)
    vL8, vL4, vSix = WS0 + 1, WS1 + 1, WR + 1
    vL128 = 253
    vL16 = WW[0]
    rDist, rSbf, rUp, rDown, rRbf = A + 4, A + 6, A + 8, A + 10, A + 12
    RBK = [sA, nA, rem, rtot, vA6, vB6, vR0, vRT4, vCnt, 86, 87, 190, 191]
    WDK = [248, 249, WW[1], 217]
    assert Wa == 36 and T == PT
    vSent = vCnt
    assert vCarOff == VST
    LR = lambda u: REC[u % 5] if u < 16 else REC[5]
    MM = REC[6:] + [252, 254]
    sIO, sII, sAN, sMT, sTW, sDBG = 4, 8, 12, 16, 20, 24
    sFLG, sRW = 92, 96
    sMJ, sMK, sNEB, sB5, sO4, sO2 = range(80, 86)
    sY, sSo = 100, 101
    nto, nti, nta = (" nt" if OPT["ld_nt"] >> b & 1 else "" for b in range(3))
    NR = 13
    nrec = lambda q: 4 if q < 12 else 2
    vm = []
    def ld_pair(q):
        if q < 12:
            a(f"  buffer_load_dwordx4 {v(O+4*q,4)}, {v(vL16)}, {s(sIO,4)}, s{sO4} offen{nto}")
            a(f"  buffer_load_dwordx4 {v(I+4*q,4)}, {v(vL16)}, {s(sII,4)}, s{sO4} offen{nti}")
            a(f"  s_add_u32 s{sO4}, s{sO4}, 8192")
        else:
            a(f"  buffer_load_dwordx2 {v(O+48,2)}, {v(vL8)}, {s(sIO,4)}, s{sO4} offen{nto}")
            a(f"  buffer_load_dwordx2 {v(I+48,2)}, {v(vL8)}, {s(sII,4)}, s{sO4} offen{nti}")
        vm.extend([("o", q), ("p", q)])
    def ld_ang(q):
        if q < 12:
            a(f"  buffer_load_dwordx2 {v(A+2*q,2)}, {v(vL8)}, {s(sAN,4)}, s{sO2} offen{nta}")
            a(f"  s_add_u32 s{sO2}, s{sO2}, 4096")
        else: a(f"  buffer_load_dword {v(A+24)}, {v(vL4)}, {s(sAN,4)}, s{sO2} offen{nta}")
        vm.append(("a", q))
    def wait_for(x):
        a(f"  s_waitcnt vmcnt({len(vm) - 1 - vm.index(x)})")
    def poll(tag, load, cond, nap=4):
        a(f"  s_mov_b32 s{sY}, {OPT['spin']}")
        a.label(f"L_poll_{tag}")
        a(load)
        a("  s_waitcnt vmcnt(0)")
        a(cond)
        a(f"""
  s_cbranch_vccz L_polled_{tag}
  s_sleep {nap}
  s_sub_u32 s{sY}, s{sY}, 1
  s_cbranch_scc0 L_poll_{tag}""")
        a.label(f"L_polled_{tag}")

    a(".p2align 8")
    a.label(NAME + "_kernel")
    ncp = [0]
    def cpf(bit, q, first=False):
        if not OPT["cpf"] >> bit & 1: return False
        ncp[0] += 1
        a(f"  s_getpc_b64 s[{q}:{q+1}]")
        a.label(f"L_cp{ncp[0]}")
        a(f"""
  s_sub_u32 s{q}, s{q}, L_cp{ncp[0]}-{NAME}_kernel
  s_subb_u32 s{q+1}, s{q+1}, 0
  s_mov_b32 s{q+2}, L_code_end-{NAME}_kernel
  s_mov_b32 s{q+3}, 0x20000""")
        if first:
            a(f"""
  s_and_b32 s{sY}, s2, 0xf8
  s_lshl_b32 s{sY}, s{sY}, 4
  v_lshl_add_u32 v255, v0, 12, s{sY}""")
        a(f"  buffer_load_dword v254, v255, s[{q}:{q+3}], 0 offen")
        return True
    a(f"""
  s_cmp_ge_u32 s2, 256
  s_cbranch_scc1 L_end
  s_load_dwordx16 s[48:63], s[0:1], 0
  s_load_dwordx4 s[44:47], s[0:1], 96
  s_load_dwordx8 s[64:71], s[0:1], 64""")
    cpf(0, 28, True)
    a(f"""
  v_lshlrev_b32 {v(vL16)}, 4, v0
  s_min_u32 s{sY}, s2, {NCH-1}
  s_mul_i32 s{sX}, s{sY}, {CH*4}
  s_cmp_lt_u32 s2, {NCH}
  s_cselect_b32 s{sFl}, {CH*2}, 0
  s_lshl_b32 s{sIO+2}, s{sFl}, 1
  s_mov_b32 s{sII+2}, s{sIO+2}
  s_mov_b32 s{sIO+3}, 0x20000
  s_mov_b32 s{sII+3}, 0x20000
  s_mov_b32 s{sO4}, 0
  v_mov_b64 {v(PT,2)}, 0
  v_mov_b64 {v(PT+2,2)}, 0
  s_mov_b32 s{sO2}, 0
  ds_write_b128 {v(vL16)}, {v(PT,4)}
  v_lshrrev_b32 {v(T+8)}, 6, v0
  s_and_b32 s{sJ}, s2, 7
  s_lshl_b32 s{sJ}, s{sJ}, 5
  s_lshr_b32 s{sEb}, s2, 3
  s_add_u32 s{sJ}, s{sJ}, s{sEb}
  v_readfirstlane_b32 s{sW}, {v(T+8)}
  v_and_b32 {v(T+7)}, 63, v0
  v_lshlrev_b32 {v(T+6)}, 3, {v(T+7)}
  v_lshlrev_b32 {v(T+7)}, 2, {v(T+7)}
  s_mul_i32 s{sEb}, s{sJ}, {EB*2}
  s_mul_i32 s{sRb}, s{sW}, 400
  s_add_u32 s{sEb}, s{sEb}, s{sRb}
  s_waitcnt lgkmcnt(0)""")
    if OPT["stamp"] == 2: a("  v_mov_b32 v13, 0\n  s_nop 1")
    stamp(a, 252, 0); stamp(a, 252, 62, "s_memrealtime")
    a(f"""
  s_add_u32 s{sIO}, s52, s{sX}
  s_addc_u32 s{sIO+1}, s53, 0
  s_add_u32 s{sII}, s50, s{sX}
  s_addc_u32 s{sII+1}, s51, 0""")
    ld_pair(0)
    if OPT["wsoff"]: a(f"  s_add_u32 s{sWS}, s{sWS}, {OPT['wsoff'] << 20}\n  s_addc_u32 s{sWS+1}, s{sWS+1}, 0")
    srd(a, 28, 54, 55, None, E * 2)
    a(f"""
  buffer_load_dwordx2 {v(rDist,2)}, {v(T+6)}, s[28:31], s{sEb} offen
  global_load_dwordx2 {v(rSbf,2)}, {v(T+6)}, s[64:65]
  global_load_dwordx2 {v(rUp,2)}, {v(T+6)}, s[68:69]
  global_load_dwordx2 {v(rDown,2)}, {v(T+6)}, s[66:67]
  global_load_dword {v(rRbf)}, {v(T+7)}, s[62:63]""")
    vm.extend([("s", i) for i in range(5)])
    ld_pair(1)
    a("  s_barrier")
    LA = OPT["la"]
    for q in range(2, LA): ld_pair(q)
    a(f"  s_lshr_b32 s{sX}, s{sX}, 1")
    srd(a, sAN, 56, 57, f"s{sX}", f"s{sFl}")
    srd(a, sMT, 48, 49, f"s{sX}", f"s{sFl}")
    a(f"  s_mul_i32 s{sX}, s{sY}, {CH*6}\n  s_mul_i32 s{sFl}, s{sFl}, 3")
    srd(a, sRW, sWS, sWS+1, f"s{sX}", f"s{sFl}")
    srd(a, sTW, sWS, sWS+1, TABOFF, 256 * 8192)
    srd(a, sFLG, sWS, sWS+1, FLGOFF, OPT['nrep'] * 1024)
    srd(a, sDBG, 44, 45, None, 256)
    a(f"""
  s_lshl_b32 s{sX}, s2, 2
  v_lshl_add_u32 {v(vFlg)}, v0, 10, s{sX}
  s_cmp_lt_u32 s2, {NCH}
  s_cselect_b32 s{sX}, 0, 4
  v_mov_b32 {v(vDum)}, s{sX}
  buffer_store_dword {v(vDum)}, {v(vFlg)}, {s(sFLG,4)}, 0 offen sc1
  s_lshl_b32 s{sX}, s{sX}, 20
  v_or_b32 {v(vFlg)}, s{sX}, {v(vFlg)}
  s_load_dword s{sCin}, s[60:61], 0
  s_load_dwordx4 s[56:59], s[58:59], 0
  v_lshlrev_b32 {v(vL8)}, 3, v0
  v_lshlrev_b32 {v(vL4)}, 2, v0
  {'v_mov_b32 %s, %d' % (v(vL128), E//8) if OPT['rot'] == 2 else 'v_lshlrev_b32 %s, 7, v0' % v(vL128)}
  v_mov_b32 {v(vSix)}, 6
  v_mov_b32 {v(vTwo)}, 2
  s_mov_b32 s{sMJ}, {MJ}
  s_mov_b32 s{sMK}, {MK}
  s_mov_b32 s{sNEB}, {-EB & 0xffffffff}
  s_mov_b32 s{sB5}, {(-(E//8) & 0xffffffff) if OPT['rot'] else OPT['b5']}
  v_lshrrev_b32 {v(T)}, 6, v0
  v_and_b32 {v(T+2)}, 15, v0
  v_bfe_u32 {v(T+3)}, v0, 5, 1
  v_lshlrev_b32 {v(vHalf)}, 4, {v(T+3)}
  v_lshl_add_u32 {v(cb)}, {v(T)}, 5, {v(vHalf)}
  v_add_u32 {v(cb)}, {v(cb)}, {v(T+2)}
  v_lshlrev_b32 {v(vTab)}, 13, {v(cb)}
  v_and_b32 {v(T+1)}, 63, v0
  v_and_b32 {v(vSlot)}, 31, v0
  v_mov_b64 {v(vZ,2)}, 0
  v_mov_b32 {v(v264)}, {TS}
  v_mov_b32 {v(vCtlN)}, {CTL}
  s_lshl_b32 s{sX}, s{sW}, 10
  s_add_u32 s{sX}, s{sX}, {S_OFF}
  v_lshl_add_u32 {v(vSrd)}, {v(T+1)}, 4, s{sX}
  v_bfe_u32 {v(T+6)}, v0, 2, 2
  v_lshlrev_b32 {v(vSst)}, 8, {v(T+6)}
  v_lshl_add_u32 {v(vSst)}, {v(T+3)}, 7, {v(vSst)}
  v_bfe_u32 {v(T+6)}, v0, 4, 1
  v_lshl_add_u32 {v(vSst)}, {v(T+6)}, 3, {v(vSst)}
  v_and_b32 {v(T+6)}, 3, v0
  v_lshl_add_u32 {v(vSst)}, {v(T+6)}, 1, {v(vSst)}
  v_add_u32 {v(vSst)}, s{sX}, {v(vSst)}
  v_mov_b32 {v(vOne)}, 1
  v_mov_b32 {v(vOOB)}, 0x80000000
  v_mov_b32 {v(vMsk)}, 0x7ffffffc
  v_mul_u32_u24 {v(vI6)}, 6, {v(vSlot)}
  v_add_u32 {v(vI1)}, 1, {v(vSlot)}
  v_lshlrev_b32 {v(vI4)}, 2, {v(vI1)}
  v_mov_b32 {v(T+6)}, {CH}
  v_mul_u32_u24 {v(cb)}, {v(cb)}, {v(T+6)}
  s_mul_i32 s{sX}, s{sW}, {NT*TS}
  s_add_u32 s{sX}, s{sX}, {BUFSZ}
  v_lshl_add_u32 {v(vRd)}, {v(vSlot)}, 3, s{sX}""")
    sRing = 84
    a(f"  v_lshrrev_b32 {v(vHalf)}, 1, {v(vHalf)}")
    STR = OPT["str"] and not DMA
    PM2 = OPT["pm2"] and not DMA
    if STR:
        a(f"""
  s_lshl_b32 s{sY}, s{sW}, 10
  s_add_u32 s{sY}, s{sY}, {S_OFF}
  v_bfe_u32 {v(T+6)}, v0, 2, 1
  v_xor_b32 {v(T+6)}, {v(T+6)}, {v(T+3)}
  v_lshl_add_u32 {v(vSst)}, {v(vSlot)}, 5, s{sY}
  v_lshl_add_u32 {v(vSst)}, {v(T+6)}, 4, {v(vSst)}
  v_and_b32 {v(T+6)}, 16, v0
  v_lshl_add_u32 {v(vSrd)}, {v(T+1)}, 3, s{sY}
  v_xor_b32 {v(vSrd)}, {v(vSrd)}, {v(T+6)}""")
    if DMA:
        a(f"""
  v_bfe_u32 {v(vSlot)}, v0, 1, 5
  v_lshl_add_u32 {v(vRd)}, {v(vSlot)}, 3, s{sX}
  v_and_b32 {v(T+3)}, 1, v0
  v_lshlrev_b32 {v(vHalf)}, 3, {v(T+3)}
  s_mul_i32 s{sY}, s{sW}, {WSTR}
  s_add_u32 s{sY}, s{sY}, {S_OFF}
  v_lshl_add_u32 {v(vSst)}, {v(T+1)}, 4, s{sY}
  v_lshl_add_u32 {v(vSrd)}, {v(T+1)}, 3, s{sY}""")
    a(f"""
  v_min_u32 {v(T+6)}, {NT-1}, {v(T+1)}
  v_mad_u32_u24 {v(vCntA)}, {v(T+6)}, {v(v264)}, s{sX}
  v_sub_u32 {v(vCarIdx)}, 511, v0
  v_cmp_eq_u32 vcc, 1, {v(T+3)}
  s_waitcnt lgkmcnt(0)
  s_lshl_b32 s{sX}, s{sCin}, 16
  s_and_b32 s{sCin}, s{sCin}, 0xffff0000
  v_mov_b32 {v(vFreq)}, s{sX}
  v_mov_b32 {v(T+6)}, s{sCin}
  v_cndmask_b32 {v(vFreq)}, {v(vFreq)}, {v(T+6)}, vcc
  v_mul_f32 {v(vFreq)}, 0.15915494, {v(vFreq)}
  s_mov_b32 s{sIt}, -1
  s_mov_b32 s{sIns}, 0
  s_mov_b32 s{sCarW}, 0
  s_mov_b32 s{sCarR}, {CARLIST}
  s_mul_i32 s{sEb}, s{sJ}, {EB}
  s_mul_i32 s{sX}, s{sW}, 200
  s_add_u32 s{sFl}, s{sEb}, {EB}
  s_add_u32 s{sEb}, s{sEb}, s{sX}
  s_add_u32 s{sRb}, s{sEb}, 200
  s_min_u32 s{sRb}, s{sRb}, s{sFl}
  s_min_u32 s{sRb}, s{sRb}, {E}
  s_lshl_b32 s{sRb}, s{sRb}, 5
  s_lshl_b32 s{sEb}, s{sEb}, 5
  s_add_u32 s{sEb2}, s{sEb}, 4096""")

    if OPT["tlb"]:
        sh = OPT["tlb"]
        srd(a, 28, sWS, sWS+1, None, FLGOFF + 8192)
        a(f"  v_lshlrev_b32 v249, {sh}, v0\n  buffer_load_dword v248, v249, s[28:31], 0 offen")
        srd(a, 28, 48, 49, None, E * 32)
        a(f"  buffer_load_dword v248, v249, s[28:31], 0 offen")
        srd(a, 28, 70, 71, None, E * 32)
        a(f"  buffer_load_dword v248, v249, s[28:31], 0 offen")
        vm.extend([("tlb", i) for i in range(3)])
    a(f"""
  s_cmp_ge_u32 s2, {NCH}
  s_cbranch_scc1 L_nochunk1""")
    vm.append(("flg", 0))
    arrive = f"""
  s_and_b32 s{sY}, s2, 15
  s_lshl_b32 s{sY}, s{sY}, 4
  v_lshlrev_b32 {v(PT)}, 8, v0
  buffer_atomic_add {v(vOne)}, {v(PT)}, {s(sDBG,4)}, s{sY} offen"""
    def hist(idx):
        if OPT["b5"]:
            for x, i in enumerate(idx): a(f"  v_cmp_le_u32 {s(72+2*x,2)}, s{sB5}, {v(I+i)}")
        for x, i in enumerate(idx): a(f"  v_mul_hi_u32_u24 {v(PT+x)}, s{sMJ}, {v(O+i)}")
        if OPT["rot"] == 2:
            for x, i in enumerate(idx): a(f"  v_lshrrev_b32 {v(PT+4+x)}, 5, {v(PT+x)}")
            for x, i in enumerate(idx): a(f"  v_mad_i32_i24 {v(PT+4+x)}, {v(PT+4+x)}, s{sB5}, {v(I+i)}")
            for x, i in enumerate(idx): a(f"  v_cmp_gt_u32 {s(72+2*x,2)}, {v(vL128)}, {v(PT+4+x)}")
            for x, i in enumerate(idx): a(f"  v_ashrrev_i32 {v(PT+4+x)}, 31, {v(PT+4+x)}")
            for x, i in enumerate(idx): a(f"  v_and_b32 {v(PT+4+x)}, {v(vL128)}, {v(PT+4+x)}")
            for x, i in enumerate(idx): a(f"  v_add3_u32 {v(PT+4+x)}, {v(PT+4+x)}, s{sB5}, {v(I+i)}")
            for x, i in enumerate(idx): a(f"  v_mul_hi_u32_u24 {v(PT+4+x)}, s{sMK}, {v(PT+4+x)}")
            for x, i in enumerate(idx): a(f"  v_cndmask_b32 {v(PT+4+x)}, {v(PT+4+x)}, 5, {s(72+2*x,2)}")
        elif OPT["rot"]:
            for x, i in enumerate(idx): a(f"  v_lshrrev_b32 {v(PT+4+x)}, 5, {v(PT+x)}")
            for x, i in enumerate(idx): a(f"  v_mad_i32_i24 {v(PT+4+x)}, {v(PT+4+x)}, s{sB5}, {v(I+i)}")
            for x, i in enumerate(idx): a(f"  v_add_u32 {v(PT+8+x)}, {E - E//8}, {v(PT+4+x)}")
            for x, i in enumerate(idx): a(f"  v_add_u32 {v(PT+4+x)}, s{sB5}, {v(PT+4+x)}")
            for x, i in enumerate(idx): a(f"  v_min_u32 {v(PT+4+x)}, {v(PT+4+x)}, {v(PT+8+x)}")
            for x, i in enumerate(idx): a(f"  v_mul_hi_u32_u24 {v(PT+4+x)}, s{sMK}, {v(PT+4+x)}")
        else:
            for x, i in enumerate(idx): a(f"  v_mul_hi_u32_u24 {v(PT+4+x)}, s{sMK}, {v(I+i)}")
        if OPT["b5"]:
            for x, i in enumerate(idx): a(f"  v_cndmask_b32 {v(PT+4+x)}, {v(PT+4+x)}, 5, {s(72+2*x,2)}")
        for x, i in enumerate(idx): a(f"  v_mad_i32_i24 {v(PT+8+x)}, {v(PT+x)}, s{sNEB}, {v(O+i)}")
        for x, i in enumerate(idx): a(f"  v_lshl_add_u32 {v(O+i)}, {v(PT+4+x)}, 8, {v(PT+x)}")
        for x, i in enumerate(idx): a(f"  v_lshlrev_b32 {v(O+i)}, 2, {v(O+i)}")
        for x, i in enumerate(idx): a(f"  ds_add_rtn_u32 {v(R+i)}, {v(O+i)}, {v(vOne)}")
        for x, i in enumerate(idx): a(f"  v_and_b32 {v(PT+x)}, 7, {v(PT+8+x)}")
        for x, i in enumerate(idx): a(f"  v_lshl_or_b32 {v(I+i)}, {v(I+i)}, 3, {v(PT+x)}")
        for x, i in enumerate(idx): a(f"  v_lshrrev_b32 {v(PT+8+x)}, 3, {v(PT+8+x)}")
        for x, i in enumerate(idx): a(f"  v_lshl_or_b32 {v(I+i)}, {v(I+i)}, 1, {v(vOOB)}")
        for x, i in enumerate(idx): a(f"  v_lshl_or_b32 {v(I+i)}, {v(PT+8+x)}, 23, {v(I+i)}")
    def prep(piece):
        Z = R + 24
        aW, aD, aS, aR, aN, gq = Z, Z + 1, Z + 2, Z + 3, Z + 4, Z + 5
        CEN = Z + 6; H = Z + 8; Y = Z + 16
        if piece == 0:
            a(f"""
  s_lshl_b32 s{sX}, s{sW}, 12
  s_add_u32 s{sX}, s{sX}, 8192
  v_and_b32 {v(gq)}, 63, v0
  v_lshl_add_u32 {v(aW)}, {v(gq)}, 3, s{sX}
  v_lshl_add_u32 {v(gq)}, {v(gq)}, 2, s{sX}
  ds_write_b64 {v(aW)}, {v(rDist,2)}
  ds_write_b64 {v(aW)}, {v(rSbf,2)} offset:512
  ds_write_b64 {v(aW)}, {v(rUp,2)} offset:1024
  ds_write_b32 {v(gq)}, {v(rRbf)} offset:1536
  ds_write_b64 {v(aW)}, {v(rDown,2)} offset:2048
  v_and_b32 {v(aD)}, 15, v0
  v_bfe_u32 {v(gq)}, v0, 4, 2
  v_lshl_add_u32 {v(aD)}, {v(aD)}, 1, s{sX}
  v_lshl_add_u32 {v(aS)}, {v(gq)}, 7, {v(aD)}
  v_lshl_add_u32 {v(aR)}, {v(gq)}, 6, {v(aD)}
  v_bfe_u32 {v(aN)}, v0, 5, 1
  v_lshl_add_u32 {v(aN)}, {v(aN)}, 8, {v(aD)}
  ds_read_u16 {v(WS0)}, {v(aS)} offset:512
  ds_read_u16 {v(WS1)}, {v(aS)} offset:{512+32}
  ds_read_u16 {v(Y)}, {v(aS)} offset:{512+64}
  ds_read_u16 {v(Y+1)}, {v(aS)} offset:{512+96}
  ds_read_u16 {v(WUP)}, {v(aS)} offset:1024
  ds_read_u16 {v(Y+2)}, {v(aS)} offset:{1024+32}
  ds_read_u16 {v(WUP+1)}, {v(aS)} offset:{1024+64}
  ds_read_u16 {v(Y+3)}, {v(aS)} offset:{1024+96}
  ds_read_u16 {v(WR)}, {v(aR)} offset:1536
  ds_read_u16 {v(Y+4)}, {v(aR)} offset:{1536+32}""")
            for r in range(4 if DMA else 8): a(f"  ds_read_u16 {v(WDK[r//2] if r % 2 == 0 else H + r//2)}, {v(aS if DMA else aN)} offset:{2048 + r*32}")
            for p in range(13): a(f"  ds_read_u16 {v(RBK[p])}, {v(aD)} offset:{p*32}")
            return
        if piece == 1:
            a(f"""
  v_mov_b32 {v(CEN+1)}, s56
  v_cmp_eq_u32 vcc, 1, {v(gq)}
  v_mov_b32 {v(CEN)}, s57
  v_cmp_eq_u32 {s(sT,2)}, 2, {v(gq)}
  v_cndmask_b32 {v(CEN+1)}, {v(CEN+1)}, {v(CEN)}, vcc
  v_mov_b32 {v(CEN)}, s58
  v_cmp_eq_u32 vcc, 3, {v(gq)}
  v_cndmask_b32 {v(CEN+1)}, {v(CEN+1)}, {v(CEN)}, {s(sT,2)}
  v_mov_b32 {v(CEN)}, s59
  v_cndmask_b32 {v(CEN+1)}, {v(CEN+1)}, {v(CEN)}, vcc
  v_lshlrev_b32 {v(CEN)}, 16, {v(CEN+1)}
  v_and_b32 {v(CEN+1)}, 0xffff0000, {v(CEN+1)}
  s_mov_b32 s56, 0xc1200000
  s_mov_b32 s57, 0xc1200000
  s_mov_b32 s58, 0x3fb8aa3b
  s_mov_b32 s59, 0x3fb8aa3b
  s_waitcnt lgkmcnt(0)
  v_lshl_or_b32 {v(WS0)}, {v(Y)}, 16, {v(WS0)}
  v_lshl_or_b32 {v(WS1)}, {v(Y+1)}, 16, {v(WS1)}
  v_lshl_or_b32 {v(WUP)}, {v(Y+2)}, 16, {v(WUP)}
  v_lshl_or_b32 {v(WUP+1)}, {v(Y+3)}, 16, {v(WUP+1)}
  v_lshl_or_b32 {v(WR)}, {v(Y+4)}, 16, {v(WR)}""")
            for r in range(2 if DMA else 4): a(f"  v_lshl_or_b32 {v(WDK[r])}, {v(H+r)}, 16, {v(WDK[r])}")
        ps = ([0,1,2], [3,4,5,6,7], [8,9,10,11,12])[piece - 1]
        tt = {p: H + 2 * (p - ps[0]) for p in ps}
        def rnd():
            for p in ps: a(f"  v_cvt_pk_bf16_f32 {v(tt[p])}, 0, {v(tt[p])}\n  v_cvt_pk_bf16_f32 {v(tt[p]+1)}, 0, {v(tt[p]+1)}")
        for p in ps: a(f"  v_lshlrev_b32 {v(tt[p])}, 16, {v(RBK[p])}")
        for p in ps: a(f"  v_pk_add_f32 {v(tt[p],2)}, {v(tt[p],2)}, {v(CEN,2)} op_sel_hi:[0,1] neg_lo:[0,1] neg_hi:[0,1]")
        rnd()
        for p in ps: a(f"  v_pk_mul_f32 {v(tt[p],2)}, {v(tt[p],2)}, {v(tt[p],2)}")
        rnd()
        for p in ps: a(f"  v_pk_mul_f32 {v(tt[p],2)}, {v(tt[p],2)}, s[56:57]")
        rnd()
        for p in ps: a(f"  v_pk_mul_f32 {v(tt[p],2)}, {v(tt[p],2)}, s[58:59]")
        for p in ps: a(f"  v_exp_f32 {v(tt[p])}, {v(tt[p])}\n  v_exp_f32 {v(tt[p]+1)}, {v(tt[p]+1)}")
        for p in ps: a(f"  v_cvt_pk_bf16_f32 {v(RBK[p])}, {v(tt[p])}, {v(tt[p]+1)}")
    na = 0
    for q in range(NR):
        wait_for(("p", q))
        if q == 0: stamp(a, 252, 40)
        if q == LA:
            a(arrive); vm.append(("arr", 0))
        if OPT["mtouch"] == 3 and q == OPT["mq"]:
            a(f"  buffer_load_dword v244, {v(vL128)}, {s(sMT,4)}, 0 offen"); vm.append(("m", 0))
        if q + LA < NR: ld_pair(q + LA)
        else:
            for _ in range(2):
                if na < OPT["apre"]: ld_ang(na); na += 1
        hist(list(range(4*q, 4*q + nrec(q))))
        if 1 <= q <= 4: prep(q - 1)
    stamp(a, 252, 41)
    X = v(PT+4)
    PR = A + 4
    assert OPT["apre"] <= 2
    a(f"""
  v_and_b32 {v(PT+8)}, 0x3f0, {v(vL16)}
  v_lshrrev_b32 {v(PT+12)}, 1, v0
  v_and_b32 {v(PT+13)}, 1, v0
  v_lshlrev_b32 {v(PT+12)}, 2, {v(PT+12)}
  v_lshl_add_u32 {v(PT+13)}, {v(PT+13)}, 12, {v(PT+12)}
  s_waitcnt lgkmcnt(0)
  s_barrier
  s_cmp_ge_u32 s{sW}, {K}
  s_cbranch_scc1 L_bin_s2
  ds_read_b128 {v(PT,4)}, {v(vL16)}""")
    for r in range(K - 1): a(f"  ds_read_b128 {v(PR+4*r,4)}, {v(PT+8)} offset:{r*1024}")
    for r in range(K - 1): a(f"  s_cmp_gt_u32 s{sW}, {r}\n  s_cselect_b32 s{72+r}, 1, 0")
    a(f"""
  s_waitcnt lgkmcnt({K-1})
  v_add_u32 {v(PT+5)}, {v(PT)}, {v(PT+1)}
  v_add_u32 {v(PT+6)}, {v(PT+5)}, {v(PT+2)}
  v_add_u32 {v(PT+7)}, {v(PT+6)}, {v(PT+3)}""")
    for r in range(K - 1):
        a(f"""
  s_waitcnt lgkmcnt({K-2-r})
  v_add3_u32 {v(PR+4*r)}, {v(PR+4*r)}, {v(PR+4*r+1)}, {v(PR+4*r+2)}
  v_add_u32 {v(PR+4*r)}, {v(PR+4*r)}, {v(PR+4*r+3)}""")
        if r == 0: a(f"  v_mul_u32_u24 {v(PT+9)}, s72, {v(PR)}")
        else: a(f"  v_mad_u32_u24 {v(PT+9)}, {v(PR+4*r)}, s{72+r}, {v(PT+9)}")
    a(f"  v_lshl_or_b32 {X}, {v(PT+9)}, 16, {v(PT+7)}")
    for sh in (1, 2, 4, 8):
        a(f"  s_nop 1\n  v_add_u32_dpp {X}, {X}, {X} row_shr:{sh} row_mask:0xf bank_mask:0xf bound_ctrl:0")
    a(f"  s_nop 1\n  v_add_u32_dpp {X}, {X}, {X} row_bcast:15 row_mask:0xa bank_mask:0xf")
    a(f"  s_nop 1\n  v_add_u32_dpp {X}, {X}, {X} row_bcast:31 row_mask:0xc bank_mask:0xf")
    a(f"""
  s_nop 0
  v_readlane_b32 s{sY}, {X}, 63
  v_sub_u32 {X}, {X}, {v(PT+7)}
  s_lshr_b32 s{sY}, s{sY}, 16
  v_add_u32 {X}, s{sY}, {X}
  v_add_u32 {v(PT+7)}, {X}, {v(PT+6)}
  v_add_u32 {v(PT+6)}, {X}, {v(PT+5)}
  v_add_u32 {v(PT+5)}, {X}, {v(PT)}
  v_lshl_or_b32 {v(PT)}, {X}, 16, {v(PT)}
  v_lshl_or_b32 {v(PT+1)}, {v(PT+5)}, 16, {v(PT+1)}
  v_lshl_or_b32 {v(PT+2)}, {v(PT+6)}, 16, {v(PT+2)}
  v_lshl_or_b32 {v(PT+3)}, {v(PT+7)}, 16, {v(PT+3)}
  ds_write_b128 {v(vL16)}, {v(PT,4)}
  s_waitcnt lgkmcnt(0)""")
    a.label("L_bin_s2")
    a(f"  s_lshl_b32 s{sY}, s2, 13\n  s_barrier")
    stamp(a, 252, 42)
    TB = PT + 8
    for k in range(4): a(f"  ds_read_b32 {v(TB+k)}, {v(PT+13)} offset:{k*1024}")
    NB = OPT["nb"]
    vDa, vDv, vRa = 245, 246, 247
    lda = f"  buffer_load_dword {v(vDv)}, {v(vDa)}, {s(sDBG,4)}, 0 offen sc1"
    cda = f"  v_cmp_gt_u32 vcc, 16, {v(vDv)}"
    ada = f"""
  s_lshl_b32 s{sX}, s{sW}, 16
  v_and_b32 {v(vDa)}, 15, v0
  v_lshl_add_u32 {v(vDa)}, {v(vDa)}, 4, s{sX}"""
    NRD = 15
    for i in range(10): a(f"  ds_read_u16 {v(O+i)}, {v(O+i)} offset:2")
    a("  s_waitcnt lgkmcnt(10)")
    for k in range(4): a(f"  v_alignbit_b32 {v(TB+k)}, {v(TB+k)}, {v(TB+k)}, 16")
    a(f"  buffer_store_dwordx4 {v(TB,4)}, {v(vL16)}, {s(sTW,4)}, s{sY} offen sc1")
    vm.append(("tab", 0))
    for i in range(10, NRD): a(f"  ds_read_u16 {v(O+i)}, {v(O+i)} offset:2")
    for _ in range(OPT["a0"]):
        if na < NR: ld_ang(na); na += 1
    a(f"  s_mov_b32 s{sB5}, {NB*8192 + 4}\n  s_mov_b32 s{sSo}, 0")
    a(ada)
    a(f"  v_add_u32 {v(vRa)}, {P1_REC}, {v(vL16)}")
    for g in range(10):
        idx = list(range(5*g, 5*g+5))
        if g == OPT["tg"]:
            wait_for(("tab", 0))
            a("  s_barrier")
            a(lda); vm.append(("lda", 0))
            a(f"  buffer_store_dword {v(vOne)}, {v(vFlg)}, {s(sFLG,4)}, 0 offen sc1"); vm.append(("flg", 1))
        for _ in range(OPT["ag"]):
            if na < NR: ld_ang(na); na += 1
        a(f"  s_waitcnt lgkmcnt({10 if OPT['wall'] else min(10, 45 - 5*g)})")
        for i in idx:
            if i + NRD < 50: a(f"  ds_read_u16 {v(O+i+NRD)}, {v(O+i+NRD)} offset:2")
        for i in idx: a(f"  v_add_u32 {v(O+i)}, {v(O+i)}, {v(R+i)}")
        for i in idx: a(f"  v_mad_u32_u24 {v(O+i)}, {v(O+i)}, {v(vSix)}, {v(vTwo)}")
        for x, i in enumerate(idx): a(f"  v_and_b32 {v(PT+x)}, 2, {v(O+i)}")
        for i in idx: a(f"  v_and_b32 {v(R+i)}, -4, {v(O+i)}")
        if OPT["wall"]:
            for i in idx: a(f"  ds_write_b32 {v(R+i)}, {v(I+i)} offset:{P1_REC}")
        for x, i in enumerate(idx): a(f"  v_lshl_add_u32 {v(O+i)}, {v(PT+x)}, 1, {v(O+i)}")
    assert na == NR
    if OPT["mtouch"] == 1:
        a(f"  buffer_load_dword v244, {v(vL128)}, {s(sMT,4)}, 0 offen"); vm.append(("m", 0))
    def put(q, cmp):
        idx = list(range(4*q, 4*q + nrec(q)))
        for x, i in enumerate(idx): a(f"  v_cmp_{cmp}_u32 {s(72+2*x,2)}, s{sB5}, {v(R+i)}")
        for x, i in enumerate(idx):
            op = "ds_write_b16_d16_hi" if (i & 1) else "ds_write_b16"
            a(f"""
  s_mov_b64 exec, {s(72+2*x,2)}
  {"" if OPT["wall"] else "ds_write_b32 %s, %s offset:%d" % (v(R+i), v(I+i), P1_REC)}
  {op} {v(O+i)}, {v(A + i//2)} offset:{P1_REC-2}""")
        a("  s_mov_b64 exec, -1")
    for q in range(NR):
        wait_for(("a", q))
        for r in range(nrec(q) // 2): a(f"  v_and_b32 {v(A+2*q+r)}, 0x7fff7fff, {v(A+2*q+r)}")
        if q == OPT["tq"] and OPT["tg"] < 0:
            assert q >= OPT["apre"]
            a("  s_barrier")
            a(lda); vm.append(("lda", 0))
            a(f"  buffer_store_dword {v(vOne)}, {v(vFlg)}, {s(sFLG,4)}, 0 offen sc1"); vm.append(("flg", 1))
            if OPT["mtouch"] == 2:
                a(f"  buffer_load_dword v244, {v(vL128)}, {s(sMT,4)}, 0 offen"); vm.append(("m", 0))
        put(q, "gt")
    a(f"  ds_read_u16 {v(vWo)}, {v(vZ)} offset:2050")
    a("  s_waitcnt lgkmcnt(0)\n  s_barrier")
    stamp(a, 252, 43)
    a(f"  v_readfirstlane_b32 s{sO2}, {v(vWo)}")
    free = [PT, PT + 4, PT + 8, O, I, R, O + 4, I + 4, R + 4]
    def erd(r): a(f"  ds_read_b128 {v(free[r],4)}, {v(vRa)} offset:{r*8192}")
    def est(r):
        a(f"  buffer_store_dwordx4 {v(free[r],4)}, {v(vL16)}, {s(sRW,4)}, s{sSo} offen sc1\n  s_add_u32 s{sSo}, s{sSo}, 8192")
        vm.append(("st", r))
    assert NB <= 8
    fad = f"""
  v_and_b32 {v(RK[0])}, 63, v0
  v_lshlrev_b32 {v(RK[0])}, 4, {v(RK[0])}
  s_and_b32 s{sCin}, s2, {OPT['nrep']-1}
  s_lshl_b32 s{sCin}, s{sCin}, 10"""
    if OPT["wall"]:
        free = [I + 4 * r for r in range(8)]
        for r in range(NB): erd(r)
        a(fad)
        a(f"  s_mov_b32 s{sO4}, 0\n  s_cmp_lg_u32 s{sW}, 0\n  s_cbranch_scc1 L_nofl")
        wait_for(("lda", 0))
        a(cda)
        a(f"  s_cbranch_vccnz L_nofl\n  s_mov_b32 s{sO4}, 1")
        a(f"  buffer_load_dwordx4 {v(PT,4)}, {v(RK[0])}, {s(sFLG,4)}, s{sCin} offen sc1")
        a.label("L_nofl")
        for r in range(3):
            a(f"  s_waitcnt lgkmcnt({NB - 1 - r})")
            est(r)
        a("  s_waitcnt lgkmcnt(0)")
        put(0, "le"); put(1, "le"); put(2, "le")
    else:
        for r in range(3): erd(r)
        for r in range(3):
            a(f"  s_waitcnt lgkmcnt({2 - r})")
            est(r)
        put(0, "le"); put(1, "le")
        for r in range(3, NB): erd(r)
        put(2, "le")
        a("  s_waitcnt lgkmcnt(0)")
    todo = list(range(3, NB))
    fad = f"""
  v_and_b32 {v(RK[0])}, 63, v0
  v_lshlrev_b32 {v(RK[0])}, 4, {v(RK[0])}
  s_and_b32 s{sCin}, s2, {OPT['nrep']-1}
  s_lshl_b32 s{sCin}, s{sCin}, 10"""
    for q in range(3, NR):
        for _ in range(OPT["ep"]):
            if todo: est(todo.pop(0))
        if q == OPT["sq"]:
            assert not todo
            a(f"""
  v_mov_b32 {v(vDum)}, 3
  s_waitcnt vmcnt(0)
  s_barrier
  s_cmp_gt_u32 s{sO2}, {NB*8192 // 6 - 2}
  s_cbranch_scc1 L_noearly
  buffer_store_dword {v(vDum)}, {v(vFlg)}, {s(sFLG,4)}, 0 offen sc1""")
            a.label("L_noearly")
        if q == OPT["fq"] and not OPT["wall"]:
            assert q >= 3
            a(fad)
            a(f"  s_mov_b32 s{sO4}, 0\n  s_cmp_lg_u32 s{sW}, 0\n  s_cbranch_scc1 L_nofl")
            wait_for(("lda", 0))
            a(cda)
            a(f"  s_cbranch_vccnz L_nofl\n  s_mov_b32 s{sO4}, 1")
            a(f"  buffer_load_dwordx4 {v(R+8,4)}, {v(RK[0])}, {s(sFLG,4)}, s{sCin} offen sc1")
            a.label("L_nofl")
        put(q, "le")
    assert not todo
    stamp(a, 252, 44)
    FP = Db
    def flag_load(dst, off): return f"  buffer_load_dwordx4 {v(dst,4)}, {v(off)}, {s(sFLG,4)}, s{sCin if dst == FP else sX} offen sc1"
    def flag_cond(dst, stage): return f"""
  v_min3_u32 {v(dst)}, {v(dst)}, {v(dst+1)}, {v(dst+2)}
  v_min_u32 {v(dst)}, {v(dst)}, {v(dst+3)}
  v_cmp_gt_u32 vcc, {stage}, {v(dst)}"""
    if OPT["wall"]: a(f"  s_cmp_lg_u32 s{sW}, 0\n  s_cbranch_scc1 L_polled_t\n  s_waitcnt vmcnt({NB})")
    else:
        if OPT["sq"] < 0: a("  s_waitcnt vmcnt(0)")
        else: assert OPT["fq"] < OPT["sq"]
        stamp(a, 252, 48)
        a(f"  s_cmp_lg_u32 s{sW}, 0\n  s_cbranch_scc1 L_polled_t")
    a(f"  s_cmp_eq_u32 s{sO4}, 0\n  s_cbranch_scc1 L_wait_a")
    a(flag_cond(PT if OPT["wall"] else R+8, 1))
    a("  s_cbranch_vccz L_polled_t\n  s_branch L_polled_a")
    a.label("L_nochunk1")
    if 40 <= OPT["cut"] <= 44: a("  s_endpgm")
    a("  s_waitcnt vmcnt(0)")
    a(arrive)
    if OPT["mpf"]:
        srd(a, sMT, 48, 49, None, E * 32)
        a(f"""
  s_sub_u32 s{sY}, s2, {NCH}
  s_lshl_b32 s{sY}, s{sY}, 16
  v_lshlrev_b32 {v(O)}, 7, v0""")
        for r in range(OPT["mpf"]):
            a(f"  buffer_load_dword v254, {v(O)}, {s(sMT,4)}, s{sY} offen\n  s_add_u32 s{sY}, s{sY}, {(256 - NCH) << 16}")
            if r == 1:
                for piece in range(4): prep(piece)
    else:
        for piece in range(4): prep(piece)
    a(ada)
    a(fad)
    a(f"  s_mov_b32 s{sO2}, 0\n  s_cmp_lg_u32 s{sW}, 0\n  s_cbranch_scc1 L_polled_t")
    if OPT["ncn"]:
        poll("a0", lda, cda, 64)
        poll("t0", flag_load(FP, RK[0]), flag_cond(FP, 1), OPT["ncn"])
        a(f"  s_sleep {OPT['ncn']}\n  s_branch L_polled_t")
    a.label("L_wait_a")
    poll("a", lda, cda, 64)
    poll("t", flag_load(FP, RK[0]), flag_cond(FP, 1), OPT["napt"])
    stamp(a, 252, 49)
    a(f"""
  s_lshl_b32 s{sX}, s{sJ}, 5
  s_add_u32 s{sX}, s{sX}, {TABOFF}""")
    srd(a, sTAB, sWS, sWS+1, f"s{sX}", (NCH - 1) * 8192 + 32)

    def state_update():
        a(f"""
  v_sub_u32 {v(rem)}, {v(rem)}, {v(rtot)}
  v_lshrrev_b32 {v(T)}, 16, {v(Q)}
  v_and_b32 {v(T+1)}, 0xffff, {v(Q)}
  v_min_u32 {v(vR0)}, 32, {v(nA)}
  v_cmp_ge_u32 vcc, 32, {v(nA)}
  v_sub_u32 {v(T+2)}, 32, {v(vR0)}
  v_add_u32 {v(vB6)}, {v(cb)}, {v(T+1)}
  v_min_u32 {v(T+2)}, {v(T)}, {v(T+2)}
  v_mul_u32_u24 {v(vB6)}, 6, {v(vB6)}
  v_add_u32 {v(rtot)}, {v(vR0)}, {v(T+2)}
  v_mad_i32_i24 {v(vB6)}, {v(vR0)}, -6, {v(vB6)}
  v_lshlrev_b32 {v(vRT4)}, 2, {v(rtot)}
  v_add_u32 {v(vA6)}, {v(cb)}, {v(sA)}
  v_mul_u32_u24 {v(vA6)}, 6, {v(vA6)}""")
    def state_update2():
        a(f"""
  v_add_u32 {v(sA)}, 32, {v(sA)}
  v_subrev_u32 {v(nA)}, 32, {v(nA)}
  v_add_u32 {v(T+1)}, {v(T+1)}, {v(T+2)}
  v_sub_u32 {v(T)}, {v(T)}, {v(T+2)}
  v_cndmask_b32 {v(sA)}, {v(sA)}, {v(T+1)}, vcc
  v_cndmask_b32 {v(nA)}, {v(nA)}, {v(T)}, vcc""")
        for i in range(K - 1):
            a(f"  v_cndmask_b32 {v(Q+i)}, {v(Q+i)}, {v(Q+i+1)}, vcc")
        a(f"  v_cndmask_b32 {v(Q+K-1)}, {v(Q+K-1)}, {v(vZ)}, vcc")
    def set_flag(tag):
        a(f"""
  v_cmp_lt_u32 vcc, 0, {v(rem)}
  s_cbranch_vccz L_noflag_{tag}
  ds_write_b32 {v(vCtlN)}, {v(vOne)} offset:4""")
        a.label(f"L_noflag_{tag}")

    bc = lambda u: f"row_newbcast:{u} row_mask:0xf bank_mask:0xf"
    def rec_load(u, t0):
        a(f"""
  v_sub_co_u32_dpp {v(t0)}, vcc, {v(vR0)}, {v(vI1)} {bc(u)}
  v_add_u32_dpp {v(t0)}, {v(vA6)}, {v(vI6)} {bc(u)}
  v_add_u32_dpp {v(t0+1)}, {v(vB6)}, {v(vI6)} {bc(u)}
  v_cndmask_b32 {v(t0)}, {v(t0)}, {v(t0+1)}, vcc
  v_sub_u32_dpp {v(t0+1)}, {v(vRT4)}, {v(vI4)} {bc(u)}
  v_bfi_b32 {v(t0)}, {v(vMsk)}, {v(t0)}, {v(t0+1)}
  buffer_load_dwordx2 {v(REC[u],2)}, {v(t0)}, {s(sREC,4)}, 0 offen{RPOL}""")

    SDWA = "dst_sel:WORD_1 dst_unused:UNUSED_PAD src0_sel:WORD_1 src1_sel:WORD_0"
    def ins1(u, thr, p):
        ta, rk, mk, w = TA[p], RK[p], sMk[p], WW[p]
        a(f"""
  v_cmp_gt_i32 vcc, 0, {v(LR(u))}
  v_min_i32 {v(w)}, {v(LR(u))}, {v(LR(u)+1)}
  v_cmp_gt_i32 {s(mk,2)}, {thr}, {v(w)}
  v_bfe_u32 {v(ta)}, {v(w)}, 23, 8
  v_cndmask_b32_sdwa {v(LR(u))}, {v(LR(u))}, {v(LR(u)+1)}, vcc {SDWA}
  v_mad_u32_u24 {v(ta)}, {v(ta)}, {v(v264)}, s{sIns}
  s_mov_b64 exec, {s(mk,2)}
  ds_add_rtn_u32 {v(rk)}, {v(ta)}, {v(vOne)}
  s_mov_b64 exec, -1""")

    def ins2(u, tag, p):
        ta, rk, mk, w = TA[p], RK[p], sMk[p], WW[p]
        lab = f"{tag}_{u}"
        a(f"""
  s_mov_b64 exec, {s(mk,2)}
  v_cmp_lt_u32 vcc, 31, {v(rk)}
  v_lshl_add_u32 {v(ta)}, {v(rk)}, 3, {v(ta)}
  s_cbranch_vccnz L_rare_{lab}""")
        a.label(f"L_back_{lab}")
        a(f"""
  ds_write2_b32 {v(ta)}, {v(LR(u))}, {v(w)} offset0:2 offset1:3
  s_mov_b64 exec, -1""")
        rare.append((lab, u, p))

    a(f"""
  v_add_u32 {v(PT+2)}, {P1_REC}, {v(vL16)}
  v_add_u32 {v(PT+3)}, {P1_REC + 8*8192}, {v(vL16)}
  v_add_u32 {v(PT+4)}, {P1_REC + 16*8192}, {v(vL16)}
  s_mov_b32 s{sSo}, {NB*8192}
  v_mov_b32 {v(vDum)}, 3
  s_waitcnt lgkmcnt(0)
  s_barrier""")
    stamp(a, 252, 45)
    NS = 19
    sdt = lambda r: (20 + r) % 25 if r < 8 else r + 1
    SD = lambda r: ACC[sdt(r)]
    gv = []
    def gwait(x, extra=""): a(f"  s_waitcnt vmcnt({len(gv) - 1 - gv.index(x)}){extra}")
    def rd(r): a(f"  ds_read_b128 {v(SD(r),4)}, {v(PT+2 + r//8)} offset:{(r%8)*8192}")
    def st(r, lst=None):
        a(f"  buffer_store_dwordx4 {v(SD(r),4)}, {v(vL16)}, {s(sRW,4)}, s{sSo} offen sc1\n  s_add_u32 s{sSo}, s{sSo}, 8192")
        if lst is not None: lst.append(("st", r))
    zero_acc = lambda t: a(f"  v_mov_b64 {v(ACC[t],2)}, 0\n  v_mov_b64 {v(ACC[t]+2,2)}, 0")
    flag3 = f"  buffer_store_dword {v(vDum)}, {v(vFlg)}, {s(sFLG,4)}, 0 offen sc1"
    N1, N3 = OPT["n1"], OPT["n3"]
    if not OPT["wall"] and OPT["sq"] < 0:
        a(f"  s_cmp_gt_u32 s{sO2}, {NB*8192 // 6 - 2}\n  s_cbranch_scc1 L_noearly")
        a(flag3)
        a.label("L_noearly")
    a(f"""
  buffer_load_dwordx4 {v(Q,4)}, {v(vTab)}, {s(sTAB,4)}, 0 offen sc1
  buffer_load_dwordx2 {v(Q+4,2)}, {v(vTab)}, {s(sTAB,4)}, 0 offen offset:16 sc1""")
    gv.extend([("tab", 0), ("tab", 1)])
    PW = OPT["pw"]
    if PW: a(f"  v_lshrrev_b32 {v(RK[0])}, 11, {v(vTab)}")
    own_ld = f"  buffer_load_dword {v(RK[1])}, {v(RK[0])}, {s(sFLG,4)}, s{sCin} offen sc1"
    own_cd = f"  v_cmp_gt_u32 vcc, 2, {v(RK[1])}"
    if cpf(1, 24): gv.append(("c", 1))
    for r in range(NB, NS): rd(r)
    nxt = NB + N1
    for r in range(NB, nxt):
        a(f"  s_waitcnt lgkmcnt({NS - 1 - r})")
        st(r, gv)
    a(f"""
  s_waitcnt lgkmcnt(0)
  s_cmp_gt_u32 s{sO2}, {NB*8192 // 6 - 2}
  s_cbranch_scc1 L_allfirst""")
    if OPT["wall"]: a(f"  s_waitcnt vmcnt({len(gv)})")
    a("  s_barrier")
    if OPT["wall"]: a(flag3)
    a.label("L_allfirst_back")
    stamp(a, 252, 46)
    pend = list(range(nxt, NS))
    keep = OPT["n3"]
    slot = [0]
    def st1(n=1):
        on = OPT["smask"] >> slot[0] & 1 or n > 1
        slot[0] += 1
        for _ in range(n):
            if on and len(pend) > keep: st(pend.pop(0), gv)
    st1()
    RBR, WD = Wa, Wa + 14
    if DMA:
        for p in range(14): a(f"  v_mov_b32 {v(RBR+p)}, {v(RBK[p]) if p < 13 else 0}")
        a(f"  v_mov_b32 {v(WD)}, {v(WDK[0])}\n  v_mov_b32 {v(WD+1)}, {v(WDK[1])}")
        st1()
    else:
        a(f"""
  s_mul_i32 s{sX}, s{sW}, 3584
  s_add_u32 s{sX}, s{sX}, {RB_OFF}
  v_and_b32 {v(T+8)}, 63, v0
  v_lshl_add_u32 {v(T+9)}, {v(T+8)}, 3, s{sX}
  v_bfe_u32 {v(T+8)}, v0, 4, 1
  v_cmp_eq_u32 vcc, 1, {v(T+8)}""")
        for p in range(14): a(f"  ds_write_b32 {v(T+9)}, {v(RBK[p] if p < 13 else vZ)} offset:{(p//2)*512 + (p%2)*4}")
        st1()
        for r in range(4):
            a(f"  v_cndmask_b32 {v(Wa+r)}, {v(WDK[r])}, {v(vZ)}, vcc")
            a(f"  v_cndmask_b32 {v(Wb+r)}, {v(vZ)}, {v(WDK[r])}, vcc")
    a(f"""
  v_mov_b32 {v(WS0+1)}, 0
  v_mov_b32 {v(WS1+1)}, 0
  v_mov_b32 {v(WR+1)}, 0
  v_mov_b32 {v(sA)}, 0
  v_mov_b32 {v(nA)}, 0
  v_mov_b32 {v(rtot)}, 0""")
    ZR = range(Wa + 16, Wa + 32, 2) if DMA else range(RING[0], RING[0] + 20, 2)
    for r in ZR: a(f"  v_mov_b64 {v(r,2)}, 0")
    st1()
    a(f"""
  s_mul_i32 s{sFl}, s{sJ}, {2*CARLIST}
  s_add_u32 s{sFl}, s{sFl}, {CAROFF}""")
    srd(a, sREC, sWS, sWS+1, None, NCH * CH * 6)
    a(f"  s_mov_b32 s{sM}, s48\n  s_or_b32 s{sM+1}, s49, 0x20000\n  s_mov_b32 s{sM+2}, {E*16}\n  s_mov_b32 s{sM+3}, 0x20000")
    srd(a, sCAR, sWS, sWS+1, f"s{sFl}", 2 * CARLIST)
    srd(a, sOUT, 70, 71, None, f"s{sRb}")
    srd(a, sMW, 48, 49, None, f"s{sRb}")
    for t in list(range(3, 9)) + [sdt(r) for r in range(NB)]: zero_acc(t)
    st1()
    a(f"""
  v_mov_b32 {v(vSent)}, {SENT}
  v_mov_b32 {v(T)}, 0
  v_mov_b32 {v(T+1)}, {v(vSent)}
  v_mov_b32 {v(T+2)}, 0
  v_mov_b32 {v(T+3)}, {v(vSent)}
  v_add_u32 {v(T+6)}, {7*8192}, {v(vL16)}""")
    for r in range(13):
        a(f"  ds_write_b128 {v(vL16 if r < 7 else T+6)}, {v(T,4)} offset:{(r%7)*8192}")
        if r % 5 == 4: st1()
    a(f"""
  v_and_b32 {v(T+6)}, 15, v0
  v_lshl_add_u32 {v(T+6)}, {v(T+6)}, 2, {v(vCtlN)}
  ds_write_b32 {v(T+6)}, {v(vZ)}
  ds_write_b128 {v(vSst if (DMA or STR) else vSrd)}, {v(ACC[3],4)}""")
    if DMA:
        for q in range(D): a(f"  ds_write_b128 {v(vSst)}, {v(ACC[3],4)} offset:{1024*(q+1)}")
    for q in range(D): a(f"  v_mov_b32 {v(SA[q])}, {v(vSst)}\n  v_mov_b32 {v(CC[q])}, 0")
    gwait(("tab", 1))
    a(f"  v_lshrrev_b32 {v(rem)}, 16, {v(Q)}")
    for i in range(1, K):
        a(f"  v_lshrrev_b32 {v(T+4)}, 16, {v(Q+i)}\n  v_add_u32 {v(rem)}, {v(rem)}, {v(T+4)}")
    state_update()
    for u in range(0, 16, 2):
        a(f"""
  v_add_u32_dpp {v(REC[u])}, {v(vB6)}, {v(vI6)} {bc(u)}
  v_sub_u32_dpp {v(REC[u]+1)}, {v(vRT4)}, {v(vI4)} {bc(u)}
  v_add_u32_dpp {v(REC[u+1])}, {v(vB6)}, {v(vI6)} {bc(u+1)}
  v_sub_u32_dpp {v(REC[u+1]+1)}, {v(vRT4)}, {v(vI4)} {bc(u+1)}
  v_bfi_b32 {v(REC[u])}, {v(vMsk)}, {v(REC[u])}, {v(REC[u]+1)}
  v_bfi_b32 {v(REC[u+1])}, {v(vMsk)}, {v(REC[u+1])}, {v(REC[u+1]+1)}""")
        if u == OPT["eb"] and PW:
            a(own_ld); gv.append(("own", 0))
        elif u == OPT["eb"]:
            a(f"  s_cmp_lg_u32 s{sW}, 0\n  s_cbranch_scc1 L_noeb")
            a(flag_load(FP, RK[0]))
            a.label("L_noeb")
            ebm = len(gv)
        if u % 4 == 2: st1()
    state_update2()
    state_update()
    state_update2()
    st1()
    st1(NS)
    a("  s_nop 0")
    nx3 = NS - len(pend)
    for r in range(NB, nx3): zero_acc(sdt(r))
    stamp(a, 252, 47)
    if OPT["pf0"] == 3:
        share = (OPT["wmain"] // 4 + 31) // 32
        a(f"""
  s_cmp_eq_u32 s{sW}, 0
  s_cbranch_scc1 L_nopf
  s_lshr_b32 s{sX}, s2, 3
  s_mul_i32 s{sX}, s{sX}, {share*128}
  v_lshlrev_b32 {v(TA[1])}, 7, v0
  buffer_load_dword {v(WW[1])}, {v(TA[1])}, {s(sM,4)}, s{sX} offen""")
        a.label("L_nopf")
    a(f"  s_mov_b32 s{sThr}, {BUFSZ - 256}")
    if PW:
        gwait(("own", 0))
        a(own_cd)
        a("  s_cbranch_vccnz L_gen")
    else:
        a(f"  s_cmp_lg_u32 s{sW}, 0\n  s_cbranch_scc1 L_polled_b")
        if OPT["eb"] >= 0:
            a(f"  s_waitcnt vmcnt({len(gv) - ebm})")
            a(flag_cond(FP, 2))
            a("  s_cbranch_vccz L_polled_b")
        poll("b", flag_load(FP, RK[0]), flag_cond(FP, 2), OPT["nap"])
        a("  s_waitcnt lgkmcnt(0)")
        a("  s_barrier")
        stamp(a, 252, 1)
    def pro_ld(us):
        for u in us:
            a(f"  buffer_load_dwordx2 {v(REC[u],2)}, {v(REC[u])}, {s(sREC,4)}, 0 offen{RPOL}")
            gv.append(("rec", u))
    NL0 = OPT["nl0"]
    if OPT["gprio"]:
        a(f"  s_cmp_lt_u32 s{sW}, 4\n  s_cbranch_scc1 L_gp\n  s_setprio 1")
        a.label("L_gp")
    pro_ld(range(NL0))
    if PW:
        a("  s_waitcnt lgkmcnt(0)\n  s_barrier")
        stamp(a, 252, 1)
    NG = NS
    stamp(a, 252, 12)
    set_flag("pro")
    stamp(a, 252, 13)
    PTA = (lambda u: (list(range(Db, Sf + 4)) + [TA[0], TA[1], RK[1], WW[1]])[u]) if DMA else (lambda u: Da + u)
    PRK = (lambda u: Wa + 16 + u) if DMA else (lambda u: RING[0] + u)
    PMK = lambda u: sPM + 2 * (u % 8)
    slowg = []
    def gins1(us, mk):
        for u in us:
            a(f"""
  v_cmp_gt_i32 vcc, 0, {v(REC[u])}
  v_min_i32 {v(PTA(u))}, {v(REC[u])}, {v(REC[u]+1)}
  v_cmp_gt_i32 {s(mk(u),2)}, 0, {v(PTA(u))}
  v_cndmask_b32_sdwa {v(REC[u])}, {v(REC[u])}, {v(REC[u]+1)}, vcc {SDWA}
  v_mov_b32 {v(REC[u]+1)}, {v(PTA(u))}""")
        for u in us: a(f"  v_bfe_u32 {v(PTA(u))}, {v(PTA(u))}, 23, 8")
        for u in us: a(f"  v_mul_u32_u24 {v(PTA(u))}, {v(PTA(u))}, {v(v264)}")
        for u in us: a(f"  s_mov_b64 exec, {s(mk(u),2)}\n  ds_add_rtn_u32 {v(PRK(u))}, {v(PTA(u))}, {v(vOne)}")
        a("  s_mov_b64 exec, -1")
    def gins2(us, mk, g):
        if len(us) == 4: a(f"  v_max3_u32 {v(T)}, {v(PRK(us[0]))}, {v(PRK(us[1]))}, {v(PRK(us[2]))}\n  v_max_u32 {v(T)}, {v(T)}, {v(PRK(us[3]))}")
        else: a(f"  v_max_u32 {v(T)}, {v(PRK(us[0]))}, {v(PRK(us[1]))}")
        a(f"""
  v_cmp_lt_u32 vcc, 31, {v(T)}
  s_cbranch_vccz L_pfast_{g}
  v_cmp_lt_u32 vcc, 63, {v(T)}
  s_cbranch_vccnz L_pslow_{g}""")
        a.label(f"L_pback_{g}")
        for x, u in enumerate(us): a(f"  v_subrev_u32 {v(T+4+x)}, 31, {v(PRK(u))}")
        for x, u in enumerate(us): a(f"  s_mov_b64 exec, {s(mk(u),2)}\n  ds_max_i32 {v(PTA(u))}, {v(T+4+x)} offset:{BUFSZ}")
        a(f"  s_mov_b64 exec, -1\n  ds_write_b32 {v(vCtlN)}, {v(vOne)} offset:4")
        for x, u in enumerate(us): a(f"  v_lshrrev_b32 {v(T+4+x)}, 5, {v(PRK(u))}")
        for x, u in enumerate(us): a(f"  v_mad_u32_u24 {v(PTA(u))}, {v(T+4+x)}, s{sThr}, {v(PTA(u))}")
        a.label(f"L_pfast_{g}")
        for u in us: a(f"  v_lshl_add_u32 {v(PTA(u))}, {v(PRK(u))}, 3, {v(PTA(u))}")
        for u in us: a(f"  s_mov_b64 exec, {s(mk(u),2)}\n  ds_write_b64 {v(PTA(u))}, {v(REC[u],2)} offset:8")
        a("  s_mov_b64 exec, -1")
        slowg.append((g, us, mk))
    def pro_ins1(g):
        gwait(("rec", 4*g+3))
        gins1(list(range(4*g, 4*g+4)), PMK)
    def pro_ins2(g): gins2(list(range(4*g, 4*g+4)), PMK, g)
    left = list(range(nx3, NS))
    per = (len(left) + 3) // 4
    def some():
        for _ in range(per):
            if left: st(left.pop(0), gv)
    pro_ins1(0)
    stamp(a, 252, 3)
    pro_ld(range(NL0, 16))
    def pf():
        share = (OPT["wmain"] // 4 + 31) // 32
        a(f"""
  s_lshr_b32 s{sX}, s2, 3
  s_mul_i32 s{sX}, s{sX}, {share*128}
  v_lshlrev_b32 {v(TA[1])}, 7, v0
  buffer_load_dword {v(WW[1])}, {v(TA[1])}, {s(sM,4)}, s{sX} offen""")
        gv.append(("pf", 0))
    if OPT["pf0"] == 1:
        while left: st(left.pop(0), gv)
        pf()
    pro_ins1(1)
    some()
    a("  s_waitcnt lgkmcnt(0)")
    if OPT["gprio"] == 1: a("  s_setprio 0")
    pro_ins2(0); some(); pro_ins1(2)
    if OPT["gprio"] == 2: a("  s_setprio 0")
    pro_ins2(1); some(); pro_ins1(3); some()
    if OPT["gprio"] == 3: a("  s_setprio 0")
    if OPT["pf0"] == 2: pf()
    stamp(a, 252, 8)
    a("  s_nop 0")
    for r in range(nx3, NS): zero_acc(sdt(r))
    a("  s_waitcnt lgkmcnt(0)")
    pro_ins2(2); pro_ins2(3)
    a.label("L_gen_done")
    stamp(a, 252, 11)
    a(f"  s_lshr_b32 s{sCnt[1]}, s{sEb}, 5\n  s_add_u32 s{sCnt[1]}, s{sCnt[1]}, 100\n  s_mul_hi_u32 s{sCnt[1]}, s{sCnt[1]}, {MK}")
    a(f"  v_cmp_ne_u32 vcc, 0, {v(vR0)}\n  s_or_b32 s85, vcc_lo, vcc_hi")
    if OPT["soft"]:
        a(f"""
  s_mov_b32 s82, 0
  s_mov_b32 s83, 0
  v_mov_b32 {v(T+9)}, {CTL + 40}
  s_mov_b64 exec, 1
  ds_add_u32 {v(T+9)}, {v(vOne)}
  ds_add_u32 {v(T+9)}, {v(vOne)} offset:4
  s_mov_b64 exec, -1""")
    if DMA:
        a(f"  s_mul_i32 s{sRing}, s{sW}, {WSTR}\n  s_add_u32 s{sRing}, s{sRing}, {S_OFF + 1024}")
        for r in range(P, Sf + 4, 2): a(f"  v_mov_b64 {v(r,2)}, 0")
    a("  s_branch L_turn2")
    def signal_all(tag, n):
        a(f"""
  v_mov_b32 {v(T+4)}, {CTL + 32}
  s_waitcnt vmcnt({n})
  s_mov_b64 exec, 1
  ds_add_rtn_u32 {v(T+5)}, {v(T+4)}, {v(vOne)}
  s_mov_b64 exec, -1
  v_and_b32 {v(T+6)}, 63, v0
  s_lshl_b32 s{sX}, s2, 2
  v_lshl_add_u32 {v(T+6)}, {v(T+6)}, 10, s{sX}
  v_mov_b32 {v(T+7)}, 4
  s_waitcnt lgkmcnt(0)
  v_readfirstlane_b32 s{sX}, {v(T+5)}
  s_cmp_lg_u32 s{sX}, 7
  s_cbranch_scc1 L_nosig_{tag}
  buffer_store_dword {v(T+7)}, {v(T+6)}, {s(sFLG,4)}, 0 offen sc1""")
        a.label(f"L_nosig_{tag}")

    INS0 = OPT["ins0"]
    def sread():
        if DMA or STR: tr(Sf, vSrd, 0)
        else: a(f"  ds_read_b128 {v(Sf,4)}, {v(vSrd)}")
    def cstage_head(q):
        a(f"  ds_write_b16 {v(SA[q])}, {v(CC[q])}")
        sread()
        a(f"  ds_write_b16 {v(SA[q])}, {v(vZ)}")
    def cstage_m1(q):
        a(f"""
  v_mfma_f32_16x16x32_bf16 {v(Da,4)}, {v(RING[q],4)}, {v(Wa,4)}, 0
  v_mfma_f32_16x16x32_bf16 {v(Db,4)}, {v(RING[q],4)}, {v(Wb,4)}, 0""")
    def cstage_cvt():
        a(f"""
  v_cvt_pk_bf16_f32 {v(P)}, {v(Da)}, {v(Da+1)}
  v_cvt_pk_bf16_f32 {v(P+1)}, {v(Da+2)}, {v(Da+3)}
  v_cvt_pk_bf16_f32 {v(P+2)}, {v(Db)}, {v(Db+1)}
  v_cvt_pk_bf16_f32 {v(P+3)}, {v(Db+2)}, {v(Db+3)}""")
    def cstage_m2(tc):
        a(f"  v_mfma_f32_16x16x32_bf16 {v(ACC[tc],4)}, {v(P,4)}, {v(Sf,4)}, {v(ACC[tc],4)}")
    def tr(dst, addr, off):
        a(f"  ds_read_b64_tr_b16 {v(dst,2)}, {v(addr)} offset:{off}\n  ds_read_b64_tr_b16 {v(dst+2,2)}, {v(addr)} offset:{off+512}")
    def fetch(q):
        a(f"  ds_write_b16 {v(SA[q])}, {v(CC[q])}")
        tr(Sf, vSrd, 0)
        a(f"  ds_write_b16 {v(SA[q])}, {v(vZ)}")
        tr(P, vSrd, 1024 * (q + 1))
    nds = [0]
    def step_top(t, reset=True):
        a(f"  ; ---- step {t}")
        nds[0] = len(a.lines)
        cstage_head(t % D)
        if t < NT - 1:
            a(f"  ds_read_b64 {v(RP[(t+1)&1],2)}, {v(vRd)} offset:{(t+1)*TS+8}")
        if reset and t < NT:
            a(f"  ds_write_b32 {v(vRd)}, {v(vSent)} offset:{t*TS+12}")
    assert not DMA
    def step_a(t, n):
        q = t % D
        rp = RP[t & 1]
        off, af, e = T + 1, T + 2, T + 3
        assert all(l.strip().startswith("ds_") for l in a.lines[nds[0]:])
        a(f"  s_waitcnt vmcnt({n}) lgkmcnt({len(a.lines) - nds[0]})")
        cstage_m1(q)
        mark = len(a.lines)
        if t < NT:
            a(f"""
  v_and_or_b32 {v(off)}, {v(rp+1)}, {v(vSent)}, {v(vHalf)}
  v_mul_f32 {v(af)}, {v(rp)}, {v(vFreq)}""")
            if not STR: a(f"  v_and_b32 {v(e)}, 14, {v(rp+1)}")
            a(f"""
  buffer_load_dwordx4 {v(RING[q],4)}, {v(off)}, {s(sM,4)}, 0 idxen
  v_cos_f32 {v(af)}, {v(af)}""")
            if STR: a(f"  v_and_or_b32 {v(SA[q])}, {v(rp+1)}, 14, {v(vSst)}")
            else: a(f"  v_lshl_add_u32 {v(SA[q])}, {v(e)}, 3, {v(vSst)}")
            a(f"  v_cvt_pk_bf16_f32 {v(CC[q])}, {v(af)}, {v(af)}")
        return mark
    def step_b(t, mark, reset=True):
        n = 0
        for l in a.lines[mark:]:
            if l.endswith(":") or l.strip().startswith(";"): continue
            n += 1
            if "s_cbranch" in l: break
        if n < 7: a(f"  s_nop {6 - n}")
        lg = (2 if t < NT-1 else 1) + (1 if reset and t < NT else 0)
        cstage_cvt()
        a(f"  s_waitcnt lgkmcnt({lg})\n  s_nop 0")
        cstage_m2((t - D) % NT)

    LD0 = INS0 - OPT["lead"]
    assert LD0 >= 0 and OPT['lead'] <= 3
    sKo = sCnt[1]
    sTwo = 85
    order = []
    for t in range(NT):
        order.append(("W", t))
        order.append(("g", t))
        if t == 0: order.append(("rec", 16))
        if 0 <= t - LD0 < 16: order.append(("rec", t - LD0))
        order.append(("V", t))
    isop = lambda x: x[0] not in "WV"
    assert all(x[0] == "g" for x in order[order.index(("g", NT - D)):] if isop(x))
    def younger(target, at):
        n = len(order); i = order.index(target); cnt = 0
        j = (i + 1) % n
        while j != at:
            if isop(order[j]): cnt += 1
            j = (j + 1) % n
        return cnt
    RBH = 1
    def prio(tag, mask, t):
        cur = mask >> t & 1; prev = (mask >> (t - 1) & 1) if t else 0
        if cur and not prev:
            a(f"  s_cmp_lt_u32 s{sW}, 4\n  s_cbranch_scc1 L_{tag}prio{t}\n  s_setprio 1")
            a.label(f"L_{tag}prio{t}")
        if prev and not cur: a("  s_setprio 0")
    assert not OPT["lprio"] >> (NT - 1)
    def step0_extra():
        a(f"""
  v_cmp_gt_u32 vcc, s{sCin}, {v(vCarIdx)}
  s_add_u32 s{sX}, s{sIt}, 2
  s_and_b32 s{sX}, s{sX}, 3
  s_lshl_b32 s{sX}, s{sX}, 3
  s_add_u32 s{sX}, s{sX}, {CTL}
  v_mov_b32 {v(T+1)}, s{sX}
  ds_write_b64 {v(T+1)}, {v(vZ,2)}
  ds_write_b32 {v(vCntA)}, {v(vZ)}
  v_lshlrev_b32 {v(T)}, 3, {v(vCarIdx)}
  v_cndmask_b32 {v(T)}, {v(vOOB)}, {v(T)}, vcc
  buffer_load_dwordx2 {v(LR(16),2)}, {v(T)}, {s(sCAR,4)}, s{sCarR} offen sc1""")
    SOFT = OPT["soft"]
    sTg, sDid = 82, 83
    def arrive2(off):
        a(f"""
  v_mov_b32 {v(T+9)}, {CTL + 40}
  s_mov_b64 exec, 1
  ds_add_u32 {v(T+9)}, {v(vOne)} offset:{off}
  s_mov_b64 exec, -1""")
    def bread(): a(f"  v_mov_b32 {v(T+9)}, {CTL + 40}\n  ds_read_b32 {v(T+8)}, {v(T+9)} offset:4")
    def bwait(tag):
        a(f"""
  v_readfirstlane_b32 s{sX}, {v(T+8)}
  s_cmp_lt_u32 s{sX}, s{sTg}
  s_cbranch_scc1 L_bspin_{tag}""")
        a.label(f"L_bok_{tag}")
    two = f"  v_cmp_ne_u32 vcc, 0, {v(vR0)}\n  s_or_b32 s{sTwo}, vcc_lo, vcc_hi"
    FC = Q_FC = REC[0]
    FO = REC[2]
    a(".p2align 6")
    a.label("L_loop")
    for t in range(NT):
        step_top(t)
        mk = step_a(t, younger(("g", (t - D + OPT["dsh"]) % NT), order.index(("W", t))))
        if t == 0: step0_extra()
        prio("lp", OPT["lprio"], t)
        ul = t - LD0
        if 0 <= ul < 16:
            a(f"""
  s_cmp_lg_u32 s{sTwo}, 0
  v_add_u32_dpp {v(T+4)}, {v(vB6)}, {v(vI6)} {bc(ul)}
  v_sub_u32_dpp {v(T+5)}, {v(vRT4)}, {v(vI4)} {bc(ul)}
  s_cbranch_scc1 L_two_{ul}""")
            a.label(f"L_two_back_{ul}")
            a(f"""
  v_bfi_b32 {v(T+4)}, {v(vMsk)}, {v(T+4)}, {v(T+5)}
  buffer_load_dwordx2 {v(LR(ul),2)}, {v(T+4)}, {s(sREC,4)}, 0 offen{RPOL}""")
        if ul == 16:
            a(f"""
  s_cmp_lg_u32 s{sThr}, 0
  s_cbranch_scc1 L_nostate
  s_cmp_eq_u32 s{sIt}, 0
  s_cbranch_scc1 L_borrow""")
            a.label("L_borrow_back")
            state_update(); state_update2()
            a(two)
            a.label("L_nostate")
            set_flag("lp")
        if SOFT and t == INS0 - 1: bread()
        if SOFT and t == INS0: bwait("lp")
        u1 = t - INS0; u2 = u1 - 1
        if 0 <= u2 < 17: ins2(u2, "lp", u2 & 1)
        if 0 <= u1 < 17:
            a(f"  s_waitcnt vmcnt({younger(('rec', u1), order.index(('V', t)))})")
            ins1(u1, f"s{sThr}" if u1 < 16 else "0", u1 & 1)
        if t == 2:
            a(f"  s_cmp_eq_u32 s{sIt}, 0\n  s_cbranch_scc1 L_sig")
            a.label("L_nosig_b0")
            nsig = sum(1 for x in order[:order.index(("V", t))] if isop(x))
        if t == INS0 + 18:
            a(f"  s_cmp_gt_u32 s{sCin}, 512\n  s_cbranch_scc1 L_slow_lp")
            a.label("L_slow_back_lp")
        TAR = OPT["ta"]
        TLD = INS0 + 17 if SOFT else INS0 + 18
        if t == TLD:
            a(f"  s_or_b32 s{sX}, s{sIt}, s{sW}\n  s_cbranch_scc0 L_ldc")
            a.label("L_ldc_back")
        if SOFT and t == TAR:
            assert TAR >= INS0 + 18
            a(f"  s_or_b32 s{sX}, s{sIt}, s{sW}\n  s_cselect_b32 s{sDid}, s{sDid}, 2\n  s_cmp_lg_u32 s{sDid}, 0\n  s_cbranch_scc1 L_chkc")
            a.label("L_arr_back")
            arrive2(0)
        if SOFT and t == NT - 1: arrive2(4)
        if t == OPT["mstep"]:
            a(f"  s_cmp_eq_u32 s{sIt}, s{sKo}\n  s_cbranch_scc1 L_mld")
            a.label("L_mld_back1")
        step_b(t, mk)
    if not SOFT: a(f"""
  s_waitcnt vmcnt({NT - (INS0 + 18)})
  s_or_b32 s{sX}, s{sIt}, s{sW}
  s_cbranch_scc0 L_chkc""")
    a.label("L_turn2")
    a(f"""
  v_mov_b32 {v(T)}, {v(vCtlN)}
  s_add_u32 s{sIt}, s{sIt}, 1
  s_add_u32 s{sX}, s{sIt}, 1
  s_and_b32 s{sX}, s{sX}, 3
  s_lshl_b32 s{sX}, s{sX}, 3
  s_add_u32 s{sX}, s{sX}, {CTL}
  v_mov_b32 {v(vCtlN)}, s{sX}
  s_sub_u32 s{sX}, s{sIns}, {BUFSZ}
  s_add_u32 s{sX}, s{sX}, s{sIns}
  v_add_u32 {v(vRd)}, s{sX}, {v(vRd)}
  v_add_u32 {v(vCntA)}, s{sX}, {v(vCntA)}
  s_sub_u32 s{sIns}, {BUFSZ}, s{sIns}
  s_mov_b32 s{sCarR}, s{sCarW}
  s_sub_u32 s{sCarW}, {CARLIST}, s{sCarW}""")
    a(f"  s_add_u32 s{sTg}, s{sTg}, 8\n  s_mov_b32 s81, 0x200000" if SOFT else "  s_waitcnt lgkmcnt(0)")
    if OPT["stamp"] == 1:
        a(f"  s_lshl_b32 s90, s{sIt}, 1\n  s_add_u32 s90, s90, 16\n  s_min_u32 m0, s90, 36")
        stamp(a, 252, "m0")
        a("  s_add_u32 m0, m0, 1")
    if SOFT:
        a.label("L_aspin")
        a(f"  ds_read_b32 {v(T+8)}, {v(T+9)}")
    else:
        a("  s_barrier")
        stamp(a, 252, "m0")
    a(f"""
  ds_read_b64 {v(T+2,2)}, {v(T)}
  ds_read_b64 {v(RP[0],2)}, {v(vRd)} offset:8
  s_waitcnt lgkmcnt(1)""")
    if SOFT:
        a(f"""
  v_readfirstlane_b32 s{sX}, {v(T+8)}
  s_cmp_lt_u32 s{sX}, s{sTg}
  s_cbranch_scc1 L_anap""")
        stamp(a, 252, "m0")
    a(f"""
  v_readfirstlane_b32 s{sCin}, {v(T+2)}
  v_readfirstlane_b32 s{sFl}, {v(T+3)}
  s_cmp_gt_u32 s{sCin}, 512
  s_cselect_b32 s{sThr}, 0x80000000, 0
  s_min_u32 s{sCin}, s{sCin}, {CARCAP}
  s_cmp_gt_u32 s{sCin}, 32
  s_cselect_b32 s{sFl}, 1, s{sFl}
  s_cmp_lt_u32 s{sIt}, {OPT['itcap']}
  s_cselect_b32 s{sFl}, s{sFl}, 0
  s_cmp_lg_u32 s{sFl}, 0
  s_cbranch_scc1 L_loop
  s_cmp_eq_u32 s{sIt}, 0
  s_cbranch_scc1 L_it0""")
    a.label("L_nosig_z")

    RBv = RBR if DMA else Q
    assert vRT4 - Q + 1 >= 14
    R0 = REC[0]
    G0, G1, RR, U = R0, R0 + 4, R0 + 8, T + 4
    XS0, XS1, XR, AG = T + 8, T + 10, T + 12, WW[0]
    assert RK[1] == T + 13 and WW[0] % 2 == 0
    vMoff, vLin, vOw, vOr = vCarIdx, vI6, vI1, vI4
    a(f"""
  v_and_b32 {v(T)}, 63, v0
  s_mul_i32 s{sX}, s{sW}, 3584
  s_add_u32 s{sX}, s{sX}, {RB_OFF}
  v_lshl_add_u32 {v(T+1)}, {v(T)}, 3, s{sX}
  v_lshlrev_b32 {v(vLin)}, 4, {v(T)}
  v_bfe_u32 {v(T+2)}, v0, 4, 2
  v_and_b32 {v(T+3)}, 15, v0
  v_lshlrev_b32 {v(T+2)}, 3, {v(T+2)}
  v_lshl_add_u32 {v(vMoff)}, {v(T+3)}, 5, {v(T+2)}
  s_mul_i32 s{sX}, s{sW}, 6400
  s_add_u32 s{sX}, s{sX}, s{sIns}
  s_add_u32 s{sX}, s{sX}, 15
  s_and_b32 s{sX}, s{sX}, -16
  v_add_u32 {v(vOw)}, s{sX}, {v(vMoff)}
  v_add_u32 {v(vOr)}, s{sX}, {v(vLin)}
  v_cmp_gt_u32 {s(sT,2)}, 8, {v(T+3)}""")
    for h in range(0 if DMA else 7):
        a(f"  ds_read_b64 {v(RBv+2*h,2)}, {v(T+1)} offset:{h*512}")
    if DMA: a(f"  s_mov_b32 s{sCnt[0]}, s{sX}")
    def s0(tl):
        x = ACC[tl]
        a(f"""
  v_cvt_pk_bf16_f32 {v(Da)}, {v(x)}, {v(x+1)}
  v_cvt_pk_bf16_f32 {v(Da+1)}, {v(x+2)}, {v(x+3)}
  s_nop 1
  v_mfma_f32_16x16x16_bf16 {v(x,4)}, {v(WD,2)}, {v(Da,2)}, 0""")
    fo = [("g", t - NT) for t in range(NT - D, NT)]
    def fwait(x): return len(fo) - 1 - fo.index(x)
    def s1(p):
        b = RBv + (p & ~1)
        w0, w1 = (WS0, WS1) if p % 2 == 0 else (XS0, XS1)
        a(f"""
  v_mfma_f32_16x16x16_bf16 {v(G0,4)}, {v(w0,2)}, {v(b,2)}, 0
  v_mfma_f32_16x16x16_bf16 {v(G1,4)}, {v(w1,2)}, {v(b,2)}, 0""")
    def s2(p):
        t0 = ACC[2*p]; t1 = ACC[2*p+1] if 2*p+1 < NT else ACC[2*p]
        for r in range(4): a(f"  v_mul_f32 {v(U+r)}, {v(t0+r)}, {v(G0+r)}")
        for r in range(4): a(f"  v_mul_f32_dpp {v(U+r)}, {v(t1+r)}, {v(G0+r)} row_ror:8 row_mask:0xf bank_mask:0xc")
        for r in range(4): a(f"  v_fmac_f32_dpp {v(U+r)}, {v(t0+r)}, {v(G1+r)} row_ror:8 row_mask:0xf bank_mask:0x3")
        for r in range(4): a(f"  v_fmac_f32_dpp {v(U+r)}, {v(t1+r)}, {v(G1+r)} quad_perm:[0,1,2,3] row_mask:0xf bank_mask:0xc")
        a(f"""
  v_cvt_pk_bf16_f32 {v(AG)}, {v(U)}, {v(U+1)}
  v_cvt_pk_bf16_f32 {v(AG+1)}, {v(U+2)}, {v(U+3)}
  v_mfma_f32_16x16x16_bf16 {v(RR,4)}, {v(WR if p % 2 == 0 else XR,2)}, {v(RBv + (p & ~1),2)}, 0""")
        if p + 1 < 13: s1(p + 1)
        else: a("  s_nop 0")
        a(f"  v_mfma_f32_16x16x16_bf16 {v(U,4)}, {v(WUP,2)}, {v(AG,2)}, 0")
    def s3(p):
        x = ACC[2*p]; m_ = MM[p]
        a(f"""
  v_lshlrev_b32 {v(x)}, 16, {v(m_)}
  v_and_b32 {v(x+1)}, 0xffff0000, {v(m_)}
  v_lshlrev_b32 {v(x+2)}, 16, {v(m_+1)}
  v_and_b32 {v(x+3)}, 0xffff0000, {v(m_+1)}""")
        if p == 12: a("  s_nop 3")
        a(f"""
  v_pk_fma_f32 {v(x,2)}, {v(U,2)}, {v(RR,2)}, {v(x,2)}
  v_pk_fma_f32 {v(x+2,2)}, {v(U+2,2)}, {v(RR+2,2)}, {v(x+2,2)}
  v_cvt_pk_bf16_f32 {v(x)}, {v(x)}, {v(x+1)}
  v_cvt_pk_bf16_f32 {v(x+1)}, {v(x+2)}, {v(x+3)}""")
        if p == 12: a(f"  s_mov_b64 exec, {s(sT,2)}")
        a(f"  ds_write_b64 {v(vOw)}, {v(x,2)} offset:{p*512}")
        if p == 12: a(f"  s_mov_b64 exec, -1")
        if p % 2 == 1 or p == 12:
            r = p // 2
            a(f"  ds_read_b128 {v(ACC[4*r+1 if r < 6 else 23],4)}, {v(vOr)} offset:{r*1024}")
    def s4(r):
        a(f"  buffer_store_dwordx4 {v(ACC[4*r+1 if r < 6 else 23],4)}, {v(vLin)}, {s(sOUT,4)}, s{sEb if r < 4 else sEb2} offen offset:{(r%4)*1024}{POL[OPT['opol']]}")
        fo.append(("st", r))
    xw = {}
    ready = []
    for t in range(NT + D + 2):
        def x3():
            a(f"  s_cmp_lg_u32 s{sCin}, 0\n  s_cbranch_scc1 L_x3")
            a.label("L_x3_back")
            xw[3] = len(fo) - xw[2]
        if t == 6 and not DMA: x3()
        if t < NT + D: step_top(t, False)
        else: a(f"  ; ---- tail {t}\n  s_waitcnt lgkmcnt(0)")
        if t < NT + D:
            mk = step_a(t, fwait(("g", t - D)))
            if t < NT: fo.append(("g", t))
        prio("fp", OPT["fprio"], t)
        if t in (0, 3):
            n = 1 if t == 0 else 2
            a(f"  s_cmp_lg_u32 s{sCin}, 0\n  s_cbranch_scc1 L_x{n}")
            a.label(f"L_x{n}_back")
            xw[n] = len(fo)
        if t == NT: stamp(a, 252, 4)
        if t == NT + D: stamp(a, 252, 5)
        if SOFT and t == 2: bread()
        if SOFT and t == 3: bwait("fin")
        if t == 4:
            a(f"""
  v_mov_b32 {v(XS0)}, 0
  v_mov_b32 {v(XS0+1)}, {v(WS0)}
  v_mov_b32 {v(XS1)}, 0
  v_mov_b32 {v(XS1+1)}, {v(WS1)}
  v_mov_b32 {v(XR)}, 0
  v_mov_b32 {v(XR+1)}, {v(WR)}""")
        if t == 5: s1(0)
        ts2 = {2*p+7 if p < 12 else 30: p for p in range(13)}
        if t - 2 in ts2 and (ts2[t-2] % 2 == 1): ready.append(ts2[t-2] // 2)
        if t >= OPT["late"]:
            while ready: s4(ready.pop(0))
        if t - 1 in ts2: s3(ts2[t-1])
        if t in ts2: s2(ts2[t])
        if t == 2:
            a(f"  s_cmp_ge_u32 s{sKo}, s{sIt}\n  s_mov_b32 s{sKo}, -1\n  s_cbranch_scc1 L_mld")
            a.label("L_mld_back2")
        if t < NT + D: step_b(t, mk, False)
        if t == NT + D - 1: a("  s_nop 3")
    a("  s_waitcnt lgkmcnt(0)")
    s4(6)
    stamp(a, 252, 6)
    if OPT["stamp"]: a("  s_waitcnt vmcnt(0)")
    stamp(a, 252, 7); stamp(a, 252, 63, "s_memrealtime")
    if OPT["stamp"] == 1: a(f"  v_writelane_b32 v13, s{sIt}, 61")
    stamp_out(a, 252, sWS, 8, STAMPOFF + 0x200000, 253)
    a.label("L_end")
    a("  s_endpgm")

    sSm, sS2 = sMk
    a.label("L_x1")
    a(f"""
  v_cmp_gt_u32 vcc, s{sCin}, {v(vSlot)}
  v_lshlrev_b32 {v(T)}, 3, {v(vSlot)}
  s_nop 0
  v_cndmask_b32 {v(T)}, {v(vOOB)}, {v(T)}, vcc
  buffer_load_dwordx2 {v(AG,2)}, {v(T)}, {s(sCAR,4)}, s{sCarR} offen sc1
  s_branch L_x1_back""")
    a.label("L_x2")
    a(f"""
  s_mul_i32 s{sX}, s{sW}, {NT}
  s_waitcnt vmcnt({xw[2] - xw[1]})
  v_min_i32 {v(U)}, {v(AG)}, {v(AG+1)}
  v_cmp_gt_i32 vcc, 0, {v(AG)}
  v_bfe_u32 {v(U+2)}, {v(U)}, 23, 8
  v_subrev_u32 {v(U+2)}, s{sX}, {v(U+2)}
  v_cndmask_b32_sdwa {v(U+1)}, {v(AG)}, {v(AG+1)}, vcc dst_sel:WORD_1 dst_unused:UNUSED_PAD src0_sel:WORD_1 src1_sel:WORD_0
  v_cmp_gt_i32 {s(sS2,2)}, 0, {v(U)}
  v_cmp_gt_u32 {s(sSm,2)}, {NT}, {v(U+2)}
  s_and_b64 vcc, {s(sSm,2)}, {s(sS2,2)}
  s_cselect_b32 s{sCin}, s{sCin}, 0
  s_cbranch_scc0 L_x2_back
  v_and_or_b32 {v(T)}, {v(U)}, {v(vSent)}, {v(vHalf)}
  v_mul_f32 {v(U+1)}, {v(U+1)}, {v(vFreq)}
  s_mov_b32 m0, s{sCnt[0]}
  v_cndmask_b32 {v(T)}, {v(vSent)}, {v(T)}, vcc
  buffer_load_dwordx4 {(v(T) + ", " + s(sM,4) + ", 0 idxen lds") if DMA else (v(RR,4) + ", " + v(T) + ", " + s(sM,4) + ", 0 idxen")}
  v_cndmask_b32 {v(U+2)}, {v(vOOB)}, {v(U+2)}, vcc
  v_cos_f32 {v(U+1)}, {v(U+1)}
  v_and_b32 {v(U+3)}, 14, {v(U)}
  v_lshl_add_u32 {v(U+3)}, {v(U+3)}, {0 if (DMA or STR) else 3}, {v(vSst)}
  v_cvt_pk_bf16_f32 {v(U+1)}, {v(U+1)}, {v(U+1)}
  s_branch L_x2_back""")
    a.label("L_x3")
    a(f"  s_waitcnt vmcnt({xw[3]})")
    if DMA:
        a(f"  v_lshrrev_b32 {v(T)}, 1, {v(vLin)}\n  v_add_u32 {v(T)}, s{sCnt[0]}, {v(T)}")
        tr(P, T, 0)
    else:
        a(f"""
  v_mfma_f32_16x16x32_bf16 {v(Da,4)}, {v(RR,4)}, {v(Wa,4)}, 0
  v_mfma_f32_16x16x32_bf16 {v(Db,4)}, {v(RR,4)}, {v(Wb,4)}, 0
  s_nop 6""")
        cstage_cvt()
    for t in range(NT):
        a(f"""
  v_cmp_eq_u32 vcc, {t}, {v(U+2)}
  s_cbranch_vccz L_x3_{t}
  s_mov_b64 exec, vcc
  ds_write_b16 {v(U+3)}, {v(U+1)}
  s_mov_b64 exec, -1""")
        sread()
        a(f"""
  s_mov_b64 exec, vcc
  ds_write_b16 {v(U+3)}, {v(vZ)}
  s_mov_b64 exec, -1
  s_waitcnt lgkmcnt(0)""")
        cstage_m2(t)
        a.label(f"L_x3_{t}")
    a("  s_branch L_x3_back")
    a.label("L_mld")
    a(f"""
  v_bfe_u32 {v(T)}, v0, 4, 2
  v_and_b32 {v(T+1)}, 15, v0
  v_lshlrev_b32 {v(T)}, 3, {v(T)}
  v_lshl_add_u32 {v(T)}, {v(T+1)}, 5, {v(T)}""")
    for p in range(13):
        a(f"  buffer_load_dwordx2 {v(MM[p],2)}, {v(T)}, {s(sMW,4)}, s{sEb if p < 8 else sEb2} offen offset:{(p%8)*512}")
    a(f"  s_cmp_eq_u32 s{sKo}, -1\n  s_cbranch_scc1 L_mld_back2\n  s_branch L_mld_back1")
    a.label("L_it0")
    signal_all("z0", 0)
    a("  s_branch L_nosig_z")
    a.label("L_sig")
    signal_all("b1", nsig)
    a("  s_branch L_nosig_b0")
    rep = f"  s_and_b32 s{sX}, s2, {OPT['nrep']-1}\n  s_lshl_b32 s{sX}, s{sX}, 10"
    a.label("L_ldc")
    a(f"  v_lshlrev_b32 {v(FO)}, 4, v0")
    a(rep)
    a(flag_load(FC, FO))
    a("  s_branch L_ldc_back")
    a.label("L_chkc")
    back = "L_arr_back" if OPT["soft"] else "L_turn2"
    if OPT["soft"]:
        a(f"""
  s_waitcnt vmcnt({TAR - TLD})
  s_cmp_eq_u32 s{sDid}, 1
  s_mov_b32 s{sDid}, 0
  s_cbranch_scc1 L_arr_back""")
    else: a(f"  s_waitcnt vmcnt({NT - 1 - (INS0 + 18)})")
    a(flag_cond(FC, 4))
    a(f"  s_cbranch_vccz {back}")
    a(rep)
    poll("c", flag_load(FC, FO), flag_cond(FC, 4), OPT["nap"])
    a(f"  s_branch {back}")
    if OPT["soft"]:
        a.label("L_anap")
        a("  s_sleep 1\n  s_sub_u32 s81, s81, 1\n  s_cbranch_scc0 L_aspin\n  s_endpgm")
        for tag in ("lp", "fin"):
            a.label(f"L_bspin_{tag}")
            a(f"""
  s_sleep 1
  s_sub_u32 s81, s81, 1
  s_cbranch_scc1 L_end
  ds_read_b32 {v(T+8)}, {v(T+9)} offset:4
  s_waitcnt lgkmcnt(0)
  v_readfirstlane_b32 s{sX}, {v(T+8)}
  s_cmp_lt_u32 s{sX}, s{sTg}
  s_cbranch_scc1 L_bspin_{tag}
  s_branch L_bok_{tag}""")
    a.label("L_borrow")
    QL = Q + OPT['keff'] - 3
    a(f"""
  v_lshrrev_b32 {v(T)}, 16, {v(QL)}
  v_cmp_eq_u32 vcc, 0, {v(nA)}
  v_subrev_u32 {v(T+1)}, {OPT['lim']}, {v(T)}
  v_and_b32 {v(T+2)}, 0xffff, {v(QL)}
  v_max_i32 {v(T+1)}, 0, {v(T+1)}
  v_cndmask_b32 {v(T+1)}, {v(vZ)}, {v(T+1)}, vcc
  v_add_u32 {v(T+2)}, {v(T+2)}, {v(T)}
  v_sub_u32 {v(T+2)}, {v(T+2)}, {v(T+1)}
  v_cndmask_b32 {v(sA)}, {v(sA)}, {v(T+2)}, vcc
  v_add_u32 {v(nA)}, {v(nA)}, {v(T+1)}
  v_lshlrev_b32 {v(T+1)}, 16, {v(T+1)}
  v_sub_u32 {v(QL)}, {v(QL)}, {v(T+1)}
  s_branch L_borrow_back""")
    for u in range(16):
        a.label(f"L_two_{u}")
        a(f"""
  v_sub_co_u32_dpp {v(T+6)}, vcc, {v(vR0)}, {v(vI1)} {bc(u)}
  v_add_u32_dpp {v(T+6)}, {v(vA6)}, {v(vI6)} {bc(u)}
  s_nop 0
  v_cndmask_b32 {v(T+4)}, {v(T+6)}, {v(T+4)}, vcc
  s_branch L_two_back_{u}""")
    a.label("L_allfirst")
    a(f"  s_mov_b32 s{sY}, s{sSo}")
    for r in range(NB + N1, NS): st(r)
    a(f"  s_mov_b32 s{sSo}, s{sY}\n  s_waitcnt vmcnt(0)\n  s_barrier\n{flag3}\n  s_branch L_allfirst_back")
    if PW:
        sDone, sNew = 76, 77
        mk2 = lambda u: 72 + 2 * (u // 8)
        a.label("L_gen")
        a(f"  s_mov_b64 s[78:79], vcc")
        for r in range(nx3, NS): st(r)
        a(f"  s_mov_b32 s{sDone}, 0\n  s_mov_b32 s{sY}, {OPT['spin']}")
        for r in range(nx3, NS): zero_acc(sdt(r))
        a("  s_waitcnt lgkmcnt(0)\n  s_barrier")
        stamp(a, 252, 1)
        set_flag("gen")
        a("  s_mov_b64 vcc, s[78:79]")
        a.label("L_gen_loop")
        a(f"""
  s_or_b32 s{sNew}, vcc_lo, vcc_hi
  s_lshr_b32 s{sX}, s{sNew}, 8
  s_or_b32 s{sNew}, s{sNew}, s{sX}
  s_or_b32 s{sNew}, s{sNew}, s{sDone}
  s_andn2_b32 s{sNew}, 0xff, s{sNew}
  s_cbranch_scc1 L_gen_take
  s_sleep {OPT['nap']}""")
        a(own_ld)
        a("  s_waitcnt vmcnt(0)")
        a(own_cd)
        a(f"""
  s_sub_u32 s{sY}, s{sY}, 1
  s_cbranch_scc0 L_gen_loop
  s_mov_b64 vcc, 0
  s_branch L_gen_loop""")
        a.label("L_gen_take")
        def each(stage, fn):
            for x in range(8):
                a(f"  s_bitcmp1_b32 s{sNew}, {x}\n  s_cbranch_scc0 L_gen_{stage}{x}")
                fn(x, [x, x + 8])
                a.label(f"L_gen_{stage}{x}")
        each("a", lambda x, us: [a(f"  buffer_load_dwordx2 {v(REC[u],2)}, {v(REC[u])}, {s(sREC,4)}, 0 offen{RPOL}") for u in us])
        a("  s_waitcnt vmcnt(0)")
        a(own_ld)
        each("b", lambda x, us: gins1(us, mk2))
        a("  s_waitcnt lgkmcnt(0)")
        def third(x, us):
            for u in us: a(f"  v_cmp_gt_i32 {s(mk2(u),2)}, 0, {v(REC[u]+1)}")
            gins2(us, mk2, f"g{x}")
        each("c", third)
        a(f"""
  s_or_b32 s{sDone}, s{sDone}, s{sNew}
  s_waitcnt vmcnt(0)
  s_cmp_eq_u32 s{sDone}, 0xff
  s_cbranch_scc1 L_gen_done""")
        a(own_cd)
        a("  s_branch L_gen_loop")
    for g, us, mk in slowg:
        a.label(f"L_pslow_{g}")
        for u in us:
            a(f"""
  s_mov_b64 exec, {s(mk(u),2)}
  v_cmp_lt_u32 vcc, 63, {v(PRK(u))}
  s_cbranch_vccz L_pskip_{g}_{u}
  s_andn2_b64 {s(mk(u),2)}, {s(mk(u),2)}, vcc
  s_mov_b64 exec, vcc
  ds_add_rtn_u32 {v(T+1)}, {v(vCtlN)}, {v(vOne)}
  s_waitcnt lgkmcnt(0)
  v_lshlrev_b32 {v(T+1)}, 3, {v(T+1)}
  buffer_store_dwordx2 {v(REC[u],2)}, {v(T+1)}, {s(sCAR,4)}, s{sCarW} offen
  s_waitcnt vmcnt(0)""")
            a.label(f"L_pskip_{g}_{u}")
        a(f"  s_mov_b64 exec, -1\n  s_branch L_pback_{g}")
    for tag in ("lp",):
        a.label(f"L_slow_{tag}")
        a(f"  s_mov_b32 s{sX}, 512")
        a.label(f"L_slow_loop_{tag}")
        a(f"""
  v_add_u32 {v(T+1)}, s{sX}, {v(vCarIdx)}
  v_cmp_gt_u32 vcc, s{sCin}, {v(T+1)}
  v_lshlrev_b32 {v(T+1)}, 3, {v(T+1)}
  s_nop 0
  v_cndmask_b32 {v(T+1)}, {v(vOOB)}, {v(T+1)}, vcc
  buffer_load_dwordx2 {v(LR(16),2)}, {v(T+1)}, {s(sCAR,4)}, s{sCarR} offen sc1
  s_waitcnt vmcnt(0)""")
        ins1(16, "0", 0)
        a("  s_waitcnt lgkmcnt(0)")
        ins2(16, "sl" + tag, 0)
        a(f"""
  s_add_u32 s{sX}, s{sX}, 512
  s_cmp_lt_u32 s{sX}, s{sCin}
  s_cbranch_scc1 L_slow_loop_{tag}
  s_waitcnt vmcnt(0)
  s_branch L_slow_back_{tag}""")
    for lab, u, p in rare:
        a.label(f"L_rare_{lab}")
        a(f"""
  s_mov_b64 exec, vcc
  ds_add_rtn_u32 {v(RK[p])}, {v(vCtlN)}, {v(vOne)}
  v_mov_b32 {v(LR(u)+1)}, {v(WW[p])}
  s_mov_b32 s83, 1
  s_waitcnt lgkmcnt(0)
  v_lshlrev_b32 {v(RK[p])}, 3, {v(RK[p])}
  buffer_store_dwordx2 {v(LR(u),2)}, {v(RK[p])}, {s(sCAR,4)}, s{sCarW} offen
  s_andn2_b64 exec, {s(sMk[p],2)}, vcc
  s_branch L_back_{lab}""")
    a.label("L_code_end")
    return NV

def kd(name, nv, ns):
    nv4 = (nv + 3) // 4 * 4
    return f""".amdhsa_kernel {name}
  .amdhsa_next_free_vgpr {nv}
  .amdhsa_next_free_sgpr {ns}
  .amdhsa_accum_offset {nv4}
  .amdhsa_group_segment_fixed_size 0
  .amdhsa_kernarg_size 112
  .amdhsa_user_sgpr_count 2
  .amdhsa_user_sgpr_kernarg_segment_ptr 1
  .amdhsa_system_sgpr_workgroup_id_x 1
  .amdhsa_float_denorm_mode_32 3
.end_amdhsa_kernel
"""

DOC = '; ---------------------------------------------------------------------------------------------\n;          in d_ws that every workgroup clears first; the zeroed d_debug counters confirm the clear).\n; ---------------------------------------------------------------------------------------------\n'

def main():
    out = sys.argv[1]
    ref = open(f"cdna_kernels/{NAME}.s.ref").read().split("\n")
    head = [l for l in ref if l.startswith(";") and "@launch" not in l and "Override" not in l and "grid=ceil" not in l]
    a = Asm()
    a(".amdgcn_target \"amdgcn-amd-amdhsa--gfx950\"\n.text")
    a(f".globl {NAME}_kernel\n.type {NAME}_kernel,@function")
    nv = gen_p2(a)
    errs = a.check()
    for e in errs: print("HAZARD", e)
    txt = "\n".join(head) + "\n"
    kern = f"kernel={NAME}_kernel " if OPT["list"] else ""
    txt += f"; @launch {kern}grid=(256,1,1) block=(512,1,1) lds={P1_LDS}\n"
    if OPT["probe"] >= 0:
        txt += "; @launch kernel=probe_kernel grid=(1,1,1) block=(64,1,1) lds=0\n"
        a(f"""
.p2align 8
probe_kernel:
  s_cmp_ge_u32 s2, 1
  s_cbranch_scc1 P_end
  s_load_dwordx2 s[4:5], s[0:1], 96
  s_waitcnt lgkmcnt(0)
  s_load_dwordx8 s[8:15], s[4:5], 0
  s_memrealtime s[16:17]
  s_waitcnt lgkmcnt(0)
  s_not_b32 s8, s8
  s_sub_u32 s20, s{8 + OPT['probe']}, s8
  {"s_lshr_b32 s20, s%d, 4" % (8 + OPT['probe']) if OPT['probe'] in (5, 7) else "s_nop 0"}
  s_min_u32 s20, s20, 20000
P_loop:
  s_memrealtime s[18:19]
  s_waitcnt lgkmcnt(0)
  s_sub_u32 s21, s18, s16
  s_cmp_lt_u32 s21, s20
  s_cbranch_scc1 P_loop
P_end:
  s_endpgm""")
    txt += DOC + a.text()
    txt += ".section .rodata,\"a\"\n.p2align 6\n" + kd(NAME + "_kernel", 256, 102) + (".p2align 6\n" + kd("probe_kernel", 8, 32) if OPT["probe"] >= 0 else "")
    open(out, "w").write(txt)
    print("vgprs p2:", nv, "lines:", len(a.lines), "hazards:", len(errs))

main()
```

```python
import sys, os
sys.path.insert(0, os.path.dirname(__file__))
from asmlib import Asm

NAME = "gather_scatter__molecular_angular_gemnet__graph"
E = 400000
NCH, CH = 250, 25600
EB = 1568
K = 6
MJ = 2739138
TABOFF = 0x2800000
CAROFF = 0x3000000
CARCAP = 9216
CARLIST = CARCAP * 8
STAMPOFF = 0x6000000
FLGOFF = 0x2c00000
OPT = dict(gi=5, soft=0, ta=21, dsh=0, pw=0, mstep=18, late=0, mpf=0, gprio=0, str=0, uni=1, lead=2, pm2=1, eb=4, nrep=4, ncn=64, sq=-1, ep=1, bprio=0x1ff, dma=0, fix=1, dum=0, dumm=0, abl_rbf=0, tg=-1, wall=0, cpf=3, wsoff=0, mq=11, rot=0, pf0=0, a0=2, ag=2, early=0, adj=0, probe=-1, tlb=0, cut=-1, opol=1, mpol=0, tq=3, fq=10, keff=6, jid=0, fprio=0x3ffff, lprio=0xfff, napt=8, st0=1, stp=1, rb0=2, nap=8, list=1, nb=7, n1=2, n3=4, nl0=8, smask=0x555, arr=10, spin=60000, rec_pol=2, stamp=0, itcap=400000, ld_nt=7, st_pol=0, mtouch=0, la=4, apre=2, wmain=70000, b5=0, lim=24, nb2=7, ins0=2,
           abl_mfma=0, abl_s=0, abl_cos=0, abl_g=0)
for a in sys.argv[2:]:
    k, v = a.split("=")
    assert k in OPT, k
    OPT[k] = int(v, 0)
MK = -(-(1 << 32) // OPT["wmain"])
assert (399999 * MK) >> 32 <= 5

RPOL = ('', ' nt', ' sc1', ' sc0 sc1')[OPT['rec_pol']]

POL = ('', ' nt', ' sc1', ' sc0 sc1')

def v(i, n=1):
    return f"v{i}" if n == 1 else f"v[{i}:{i+n-1}]"
def s(i, n=1):
    return f"s{i}" if n == 1 else f"s[{i}:{i+n-1}]"

VST = 13
def stamp(a, vreg, lane, op="s_memtime"):
    vreg = VST
    if lane == OPT["cut"]: a("  s_endpgm")
    if not OPT["stamp"]: return
    if OPT["stamp"] == 2:
        mp = {62: (0, 1), 42: (1, 0), 45: (2, 0), 1: (3, 0), 11: (4, 0), 63: (6, 0)}
        if lane == 0:
            a("  s_memtime s[88:89]\n  s_waitcnt lgkmcnt(0)\n  s_mov_b32 s91, s88")
        if lane in (11, 7):
            a(f"  s_memtime s[88:89]\n  s_waitcnt lgkmcnt(0)\n  s_sub_u32 s88, s88, s91\n  v_writelane_b32 v{vreg}, s88, {5 if lane == 11 else 7}")
        if lane not in mp: return
        l, inv = mp[lane]
        a(f"  s_memrealtime s[88:89]\n  s_waitcnt lgkmcnt(0)")
        if inv: a("  s_not_b32 s88, s88")
        a(f"  v_writelane_b32 v{vreg}, s88, {l}")
        return
    a(f"  {op} s[88:89]\n  s_waitcnt lgkmcnt(0)\n  v_writelane_b32 v{vreg}, s88, {lane}")
def stamp_out(a, vreg, wslo, nwaves, base, tmp):
    vreg, tmp = VST, 218
    if not OPT["stamp"]: return
    if OPT["stamp"] == 2:
        back = 512
        a(f"""
  s_load_dwordx2 s[90:91], s[0:1], 96
  s_waitcnt lgkmcnt(0)
  s_add_u32 s92, s90, {back}
  s_addc_u32 s93, s91, 0
  s_mov_b32 s94, 32
  s_mov_b32 s95, 0x20000
  v_lshlrev_b32 v{tmp}, 2, v0
  buffer_atomic_umax v{vreg}, v{tmp}, s[92:95], 0 offen""")
        return
    a(f"  s_mul_i32 s88, s2, {nwaves*256}\n  s_add_u32 s88, s88, {base}")
    srd(a, 92, wslo, wslo+1, "s88", nwaves*256)
    a(f"  v_lshlrev_b32 v{tmp}, 2, v0\n  buffer_store_dword v{vreg}, v{tmp}, s[92:95], 0 offen")

def srd(a, d, lo, hi, add, size):
    if add is None:
        a(f"  s_mov_b32 s{d}, s{lo}\n  s_mov_b32 s{d+1}, s{hi}")
    else:
        a(f"  s_add_u32 s{d}, s{lo}, {add}\n  s_addc_u32 s{d+1}, s{hi}, 0")
    a(f"  s_mov_b32 s{d+2}, {size}\n  s_mov_b32 s{d+3}, 0x20000")

P1_CNT, P1_SENT, P1_TMP, P1_REC = 0, 6144, 6160, 6272
P1_LDS = P1_REC + CH * 6

TS = 264
BUFSZ = 200 * TS
S_OFF = 13 * 8192
DMA = OPT["dma"]
WSTR = 6144 if DMA else 1024
CTL = S_OFF + 8 * WSTR
RB_OFF = CTL + 128
SENT = 0x7ffff0
LAG = 4 if DMA else 5
P2_LDS = RB_OFF + 8 * 3584
D = 5
NT = 25

class RA:
    def __init__(self, start): self.n = start
    def __call__(self, k=1, al=1):
        self.n = (self.n + al - 1) // al * al
        r = self.n; self.n += k
        return r

def gen_p2(a):
    ra = RA(1)
    vSlot, vHalf, vFreq, vSst, vSrd, vI6, vI1, vI4 = (ra() for _ in range(8))
    vRd, vCntA, vOne, vOOB, vCarOff, vCarIdx, v264, vMsk, vCtlN = (ra() for _ in range(9))
    vZ = ra(2, 2)
    Q = ra(6, 4)
    sA, nA, cb, rem, rtot, vA6, vB6, vR0, vRT4 = (ra() for _ in range(9))
    vCnt = ra()
    Wa = ra(4, 4); Wb = ra(4, 4)
    RING = [ra(4, 4) for _ in range(D)]
    Da = ra(4, 4); Db = ra(4, 4); P = ra(4, 4); Sf = ra(4, 4)
    ACC = [ra(4, 4) for _ in range(NT)]
    REC = [ra(2, 4 if i == 0 else 2) for i in range(17)]
    RP = [ra(2, 2), ra(2, 2)]
    T = ra(10, 2)
    TA = [ra(), ra()]; RK = [ra(), ra()]
    WS0 = ra(2, 2); WS1 = ra(2, 2); WR = ra(2, 2); WUP = ra(2, 2)
    CC = [ra() for _ in range(D)]; SA = [ra() for _ in range(D)]
    WW = [ra(), ra()]
    assert ra.n <= 252, ra.n
    NV = ra.n
    sM = 4; sREC = 8; sCAR = 12; sTAB = 16; sOUT = 20; sDIST = 24; sMW = 28
    sJ, sW, sIt, sThr, sIns, sCarW, sCarR, sRb, sCin, sX, sFl, sEb = range(32, 44)
    sCnt = [44, 45]
    sWS = 46
    sPM = 72
    sMk = [72, 74]; sT = 76; sC10 = 78; sCl2 = 80
    sEb2 = 3
    rare = []

    O, I, R, A = 36, 88, 140, 192
    PT = 218
    vFlg, vDum, vTab, vWo, vTwo = range(240, 245)
    vL8, vL4, vSix = WS0 + 1, WS1 + 1, WR + 1
    vL128 = 253
    vL16 = WW[0]
    rDist, rSbf, rUp, rDown, rRbf = A + 4, A + 6, A + 8, A + 10, A + 12
    RBK = [sA, nA, rem, rtot, vA6, vB6, vR0, vRT4, vCnt, 86, 87, 190, 191]
    WDK = [248, 249, WW[1], 217]
    assert Wa == 36 and T == PT
    vSent = vCnt
    assert vCarOff == VST
    LR = lambda u: REC[u % 3] if u < 16 else REC[5]
    NW = [REC[3], REC[4]]
    MM = REC[6:] + [252, 254]
    sIO, sII, sAN, sMT, sTW, sDBG = 4, 8, 12, 16, 20, 24
    sFLG, sRW = 92, 96
    sMJ, sMK, sNEB, sB5, sO4, sO2 = range(80, 86)
    sY, sSo = 100, 101
    nto, nti, nta = (" nt" if OPT["ld_nt"] >> b & 1 else "" for b in range(3))
    NR = 13
    nrec = lambda q: 4 if q < 12 else 2
    vm = []
    def ld_pair(q):
        if q < 12:
            a(f"  buffer_load_dwordx4 {v(O+4*q,4)}, {v(vL16)}, {s(sIO,4)}, s{sO4} offen{nto}")
            a(f"  buffer_load_dwordx4 {v(I+4*q,4)}, {v(vL16)}, {s(sII,4)}, s{sO4} offen{nti}")
            a(f"  s_add_u32 s{sO4}, s{sO4}, 8192")
        else:
            a(f"  buffer_load_dwordx2 {v(O+48,2)}, {v(vL8)}, {s(sIO,4)}, s{sO4} offen{nto}")
            a(f"  buffer_load_dwordx2 {v(I+48,2)}, {v(vL8)}, {s(sII,4)}, s{sO4} offen{nti}")
        vm.extend([("o", q), ("p", q)])
    def ld_ang(q):
        if q < 12:
            a(f"  buffer_load_dwordx2 {v(A+2*q,2)}, {v(vL8)}, {s(sAN,4)}, s{sO2} offen{nta}")
            a(f"  s_add_u32 s{sO2}, s{sO2}, 4096")
        else: a(f"  buffer_load_dword {v(A+24)}, {v(vL4)}, {s(sAN,4)}, s{sO2} offen{nta}")
        vm.append(("a", q))
    def wait_for(x):
        a(f"  s_waitcnt vmcnt({len(vm) - 1 - vm.index(x)})")
    def poll(tag, load, cond, nap=4):
        a(f"  s_mov_b32 s{sY}, {OPT['spin']}")
        a.label(f"L_poll_{tag}")
        a(load)
        a("  s_waitcnt vmcnt(0)")
        a(cond)
        a(f"""
  s_cbranch_vccz L_polled_{tag}
  s_sleep {nap}
  s_sub_u32 s{sY}, s{sY}, 1
  s_cbranch_scc0 L_poll_{tag}""")
        a.label(f"L_polled_{tag}")

    a(".p2align 8")
    a.label(NAME + "_kernel")
    ncp = [0]
    def cpf(bit, q, first=False):
        if not OPT["cpf"] >> bit & 1: return False
        ncp[0] += 1
        a(f"  s_getpc_b64 s[{q}:{q+1}]")
        a.label(f"L_cp{ncp[0]}")
        a(f"""
  s_sub_u32 s{q}, s{q}, L_cp{ncp[0]}-{NAME}_kernel
  s_subb_u32 s{q+1}, s{q+1}, 0
  s_mov_b32 s{q+2}, L_code_end-{NAME}_kernel
  s_mov_b32 s{q+3}, 0x20000""")
        if first:
            a(f"""
  s_and_b32 s{sY}, s2, 0xf8
  s_lshl_b32 s{sY}, s{sY}, 4
  v_lshl_add_u32 v255, v0, 12, s{sY}""")
        a(f"  buffer_load_dword v254, v255, s[{q}:{q+3}], 0 offen")
        return True
    a(f"""
  s_cmp_ge_u32 s2, 256
  s_cbranch_scc1 L_end
  s_load_dwordx16 s[48:63], s[0:1], 0
  s_load_dwordx4 s[44:47], s[0:1], 96
  s_load_dwordx8 s[64:71], s[0:1], 64""")
    cpf(0, 28, True)
    a(f"""
  v_lshlrev_b32 {v(vL16)}, 4, v0
  s_min_u32 s{sY}, s2, {NCH-1}
  s_mul_i32 s{sX}, s{sY}, {CH*4}
  s_cmp_lt_u32 s2, {NCH}
  s_cselect_b32 s{sFl}, {CH*2}, 0
  s_lshl_b32 s{sIO+2}, s{sFl}, 1
  s_mov_b32 s{sII+2}, s{sIO+2}
  s_mov_b32 s{sIO+3}, 0x20000
  s_mov_b32 s{sII+3}, 0x20000
  s_mov_b32 s{sO4}, 0
  v_mov_b64 {v(PT,2)}, 0
  v_mov_b64 {v(PT+2,2)}, 0
  s_mov_b32 s{sO2}, 0
  ds_write_b128 {v(vL16)}, {v(PT,4)}
  v_lshrrev_b32 {v(T+8)}, 6, v0
  s_and_b32 s{sJ}, s2, 7
  s_lshl_b32 s{sJ}, s{sJ}, 5
  s_lshr_b32 s{sEb}, s2, 3
  s_add_u32 s{sJ}, s{sJ}, s{sEb}
  v_readfirstlane_b32 s{sW}, {v(T+8)}
  v_and_b32 {v(T+7)}, 63, v0
  v_lshlrev_b32 {v(T+6)}, 3, {v(T+7)}
  v_lshlrev_b32 {v(T+7)}, 2, {v(T+7)}
  s_mul_i32 s{sEb}, s{sJ}, {EB*2}
  s_mul_i32 s{sRb}, s{sW}, 400
  s_add_u32 s{sEb}, s{sEb}, s{sRb}
  s_waitcnt lgkmcnt(0)""")
    if OPT["stamp"] == 2: a("  v_mov_b32 v13, 0\n  s_nop 1")
    stamp(a, 252, 0); stamp(a, 252, 62, "s_memrealtime")
    a(f"""
  s_add_u32 s{sIO}, s52, s{sX}
  s_addc_u32 s{sIO+1}, s53, 0
  s_add_u32 s{sII}, s50, s{sX}
  s_addc_u32 s{sII+1}, s51, 0""")
    ld_pair(0)
    if OPT["wsoff"]: a(f"  s_add_u32 s{sWS}, s{sWS}, {OPT['wsoff'] << 20}\n  s_addc_u32 s{sWS+1}, s{sWS+1}, 0")
    srd(a, 28, 54, 55, None, E * 2)
    a(f"""
  buffer_load_dwordx2 {v(rDist,2)}, {v(T+6)}, s[28:31], s{sEb} offen
  global_load_dwordx2 {v(rSbf,2)}, {v(T+6)}, s[64:65]
  global_load_dwordx2 {v(rUp,2)}, {v(T+6)}, s[68:69]
  global_load_dwordx2 {v(rDown,2)}, {v(T+6)}, s[66:67]
  global_load_dword {v(rRbf)}, {v(T+7)}, s[62:63]""")
    vm.extend([("s", i) for i in range(5)])
    ld_pair(1)
    a("  s_barrier")
    LA = OPT["la"]
    for q in range(2, LA): ld_pair(q)
    a(f"  s_lshr_b32 s{sX}, s{sX}, 1")
    srd(a, sAN, 56, 57, f"s{sX}", f"s{sFl}")
    srd(a, sMT, 48, 49, f"s{sX}", f"s{sFl}")
    a(f"  s_mul_i32 s{sX}, s{sY}, {CH*6}\n  s_mul_i32 s{sFl}, s{sFl}, 3")
    srd(a, sRW, sWS, sWS+1, f"s{sX}", f"s{sFl}")
    srd(a, sTW, sWS, sWS+1, TABOFF, 256 * 8192)
    srd(a, sFLG, sWS, sWS+1, FLGOFF, OPT['nrep'] * 1024)
    srd(a, sDBG, 44, 45, None, 256)
    a(f"""
  s_lshl_b32 s{sX}, s2, 2
  v_lshl_add_u32 {v(vFlg)}, v0, 10, s{sX}
  s_cmp_lt_u32 s2, {NCH}
  s_cselect_b32 s{sX}, 0, 4
  v_mov_b32 {v(vDum)}, s{sX}
  buffer_store_dword {v(vDum)}, {v(vFlg)}, {s(sFLG,4)}, 0 offen sc1
  s_lshl_b32 s{sX}, s{sX}, 20
  v_or_b32 {v(vFlg)}, s{sX}, {v(vFlg)}
  s_load_dword s{sCin}, s[60:61], 0
  s_load_dwordx4 s[56:59], s[58:59], 0
  v_lshlrev_b32 {v(vL8)}, 3, v0
  v_lshlrev_b32 {v(vL4)}, 2, v0
  {'v_mov_b32 %s, %d' % (v(vL128), E//8) if OPT['rot'] == 2 else 'v_lshlrev_b32 %s, 7, v0' % v(vL128)}
  v_mov_b32 {v(vSix)}, 6
  v_mov_b32 {v(vTwo)}, 2
  s_mov_b32 s{sMJ}, {MJ}
  s_mov_b32 s{sMK}, {MK}
  s_mov_b32 s{sNEB}, {-EB & 0xffffffff}
  s_mov_b32 s{sB5}, {(-(E//8) & 0xffffffff) if OPT['rot'] else OPT['b5']}
  v_lshrrev_b32 {v(T)}, 6, v0
  v_and_b32 {v(T+2)}, 15, v0
  v_bfe_u32 {v(T+3)}, v0, 5, 1
  v_lshlrev_b32 {v(vHalf)}, 4, {v(T+3)}
  v_lshl_add_u32 {v(cb)}, {v(T)}, 5, {v(vHalf)}
  v_add_u32 {v(cb)}, {v(cb)}, {v(T+2)}
  v_lshlrev_b32 {v(vTab)}, 13, {v(cb)}
  v_and_b32 {v(T+1)}, 63, v0
  v_and_b32 {v(vSlot)}, 31, v0
  v_mov_b64 {v(vZ,2)}, 0
  v_mov_b32 {v(v264)}, {TS}
  v_mov_b32 {v(vCtlN)}, {CTL}
  s_lshl_b32 s{sX}, s{sW}, 10
  s_add_u32 s{sX}, s{sX}, {S_OFF}
  v_lshl_add_u32 {v(vSrd)}, {v(T+1)}, 4, s{sX}
  v_bfe_u32 {v(T+6)}, v0, 2, 2
  v_lshlrev_b32 {v(vSst)}, 8, {v(T+6)}
  v_lshl_add_u32 {v(vSst)}, {v(T+3)}, 7, {v(vSst)}
  v_bfe_u32 {v(T+6)}, v0, 4, 1
  v_lshl_add_u32 {v(vSst)}, {v(T+6)}, 3, {v(vSst)}
  v_and_b32 {v(T+6)}, 3, v0
  v_lshl_add_u32 {v(vSst)}, {v(T+6)}, 1, {v(vSst)}
  v_add_u32 {v(vSst)}, s{sX}, {v(vSst)}
  v_mov_b32 {v(vOne)}, 1
  v_mov_b32 {v(vOOB)}, 0x80000000
  v_mov_b32 {v(vMsk)}, 0x7ffffffc
  v_mul_u32_u24 {v(vI6)}, 6, {v(vSlot)}
  v_add_u32 {v(vI1)}, 1, {v(vSlot)}
  v_lshlrev_b32 {v(vI4)}, 2, {v(vI1)}
  v_mov_b32 {v(T+6)}, {CH}
  v_mul_u32_u24 {v(cb)}, {v(cb)}, {v(T+6)}
  s_mul_i32 s{sX}, s{sW}, {NT*TS}
  s_add_u32 s{sX}, s{sX}, {BUFSZ}
  v_lshl_add_u32 {v(vRd)}, {v(vSlot)}, 3, s{sX}""")
    sRing = 84
    a(f"  v_lshrrev_b32 {v(vHalf)}, 1, {v(vHalf)}")
    STR = OPT["str"] and not DMA
    PM2 = OPT["pm2"] and not DMA
    if STR:
        a(f"""
  s_lshl_b32 s{sY}, s{sW}, 10
  s_add_u32 s{sY}, s{sY}, {S_OFF}
  v_bfe_u32 {v(T+6)}, v0, 2, 1
  v_xor_b32 {v(T+6)}, {v(T+6)}, {v(T+3)}
  v_lshl_add_u32 {v(vSst)}, {v(vSlot)}, 5, s{sY}
  v_lshl_add_u32 {v(vSst)}, {v(T+6)}, 4, {v(vSst)}
  v_and_b32 {v(T+6)}, 16, v0
  v_lshl_add_u32 {v(vSrd)}, {v(T+1)}, 3, s{sY}
  v_xor_b32 {v(vSrd)}, {v(vSrd)}, {v(T+6)}""")
    if DMA:
        a(f"""
  v_bfe_u32 {v(vSlot)}, v0, 1, 5
  v_lshl_add_u32 {v(vRd)}, {v(vSlot)}, 3, s{sX}
  v_and_b32 {v(T+3)}, 1, v0
  v_lshlrev_b32 {v(vHalf)}, 3, {v(T+3)}
  s_mul_i32 s{sY}, s{sW}, {WSTR}
  s_add_u32 s{sY}, s{sY}, {S_OFF}
  v_lshl_add_u32 {v(vSst)}, {v(T+1)}, 4, s{sY}
  v_lshl_add_u32 {v(vSrd)}, {v(T+1)}, 3, s{sY}""")
    a(f"""
  v_min_u32 {v(T+6)}, {NT-1}, {v(T+1)}
  v_mad_u32_u24 {v(vCntA)}, {v(T+6)}, {v(v264)}, s{sX}
  v_sub_u32 {v(vCarIdx)}, 511, v0
  v_cmp_eq_u32 vcc, 1, {v(T+3)}
  s_waitcnt lgkmcnt(0)
  s_lshl_b32 s{sX}, s{sCin}, 16
  s_and_b32 s{sCin}, s{sCin}, 0xffff0000
  v_mov_b32 {v(vFreq)}, s{sX}
  v_mov_b32 {v(T+6)}, s{sCin}
  v_cndmask_b32 {v(vFreq)}, {v(vFreq)}, {v(T+6)}, vcc
  v_mul_f32 {v(vFreq)}, 0.15915494, {v(vFreq)}
  s_mov_b32 s{sIt}, -1
  s_mov_b32 s{sIns}, 0
  s_mov_b32 s{sCarW}, 0
  s_mov_b32 s{sCarR}, {CARLIST}
  s_mul_i32 s{sEb}, s{sJ}, {EB}
  s_mul_i32 s{sX}, s{sW}, 200
  s_add_u32 s{sFl}, s{sEb}, {EB}
  s_add_u32 s{sEb}, s{sEb}, s{sX}
  s_add_u32 s{sRb}, s{sEb}, 200
  s_min_u32 s{sRb}, s{sRb}, s{sFl}
  s_min_u32 s{sRb}, s{sRb}, {E}
  s_lshl_b32 s{sRb}, s{sRb}, 5
  s_lshl_b32 s{sEb}, s{sEb}, 5
  s_add_u32 s{sEb2}, s{sEb}, 4096""")

    if OPT["tlb"]:
        sh = OPT["tlb"]
        srd(a, 28, sWS, sWS+1, None, FLGOFF + 8192)
        a(f"  v_lshlrev_b32 v249, {sh}, v0\n  buffer_load_dword v248, v249, s[28:31], 0 offen")
        srd(a, 28, 48, 49, None, E * 32)
        a(f"  buffer_load_dword v248, v249, s[28:31], 0 offen")
        srd(a, 28, 70, 71, None, E * 32)
        a(f"  buffer_load_dword v248, v249, s[28:31], 0 offen")
        vm.extend([("tlb", i) for i in range(3)])
    a(f"""
  s_cmp_ge_u32 s2, {NCH}
  s_cbranch_scc1 L_nochunk1""")
    vm.append(("flg", 0))
    arrive = f"""
  s_and_b32 s{sY}, s2, 15
  s_lshl_b32 s{sY}, s{sY}, 4
  v_lshlrev_b32 {v(PT)}, 8, v0
  buffer_atomic_add {v(vOne)}, {v(PT)}, {s(sDBG,4)}, s{sY} offen"""
    def hist(idx):
        if OPT["b5"]:
            for x, i in enumerate(idx): a(f"  v_cmp_le_u32 {s(72+2*x,2)}, s{sB5}, {v(I+i)}")
        for x, i in enumerate(idx): a(f"  v_mul_hi_u32_u24 {v(PT+x)}, s{sMJ}, {v(O+i)}")
        if OPT["rot"] == 2:
            for x, i in enumerate(idx): a(f"  v_lshrrev_b32 {v(PT+4+x)}, 5, {v(PT+x)}")
            for x, i in enumerate(idx): a(f"  v_mad_i32_i24 {v(PT+4+x)}, {v(PT+4+x)}, s{sB5}, {v(I+i)}")
            for x, i in enumerate(idx): a(f"  v_cmp_gt_u32 {s(72+2*x,2)}, {v(vL128)}, {v(PT+4+x)}")
            for x, i in enumerate(idx): a(f"  v_ashrrev_i32 {v(PT+4+x)}, 31, {v(PT+4+x)}")
            for x, i in enumerate(idx): a(f"  v_and_b32 {v(PT+4+x)}, {v(vL128)}, {v(PT+4+x)}")
            for x, i in enumerate(idx): a(f"  v_add3_u32 {v(PT+4+x)}, {v(PT+4+x)}, s{sB5}, {v(I+i)}")
            for x, i in enumerate(idx): a(f"  v_mul_hi_u32_u24 {v(PT+4+x)}, s{sMK}, {v(PT+4+x)}")
            for x, i in enumerate(idx): a(f"  v_cndmask_b32 {v(PT+4+x)}, {v(PT+4+x)}, 5, {s(72+2*x,2)}")
        elif OPT["rot"]:
            for x, i in enumerate(idx): a(f"  v_lshrrev_b32 {v(PT+4+x)}, 5, {v(PT+x)}")
            for x, i in enumerate(idx): a(f"  v_mad_i32_i24 {v(PT+4+x)}, {v(PT+4+x)}, s{sB5}, {v(I+i)}")
            for x, i in enumerate(idx): a(f"  v_add_u32 {v(PT+8+x)}, {E - E//8}, {v(PT+4+x)}")
            for x, i in enumerate(idx): a(f"  v_add_u32 {v(PT+4+x)}, s{sB5}, {v(PT+4+x)}")
            for x, i in enumerate(idx): a(f"  v_min_u32 {v(PT+4+x)}, {v(PT+4+x)}, {v(PT+8+x)}")
            for x, i in enumerate(idx): a(f"  v_mul_hi_u32_u24 {v(PT+4+x)}, s{sMK}, {v(PT+4+x)}")
        else:
            for x, i in enumerate(idx): a(f"  v_mul_hi_u32_u24 {v(PT+4+x)}, s{sMK}, {v(I+i)}")
        if OPT["b5"]:
            for x, i in enumerate(idx): a(f"  v_cndmask_b32 {v(PT+4+x)}, {v(PT+4+x)}, 5, {s(72+2*x,2)}")
        for x, i in enumerate(idx): a(f"  v_mad_i32_i24 {v(PT+8+x)}, {v(PT+x)}, s{sNEB}, {v(O+i)}")
        for x, i in enumerate(idx): a(f"  v_lshl_add_u32 {v(O+i)}, {v(PT+4+x)}, 8, {v(PT+x)}")
        for x, i in enumerate(idx): a(f"  v_lshlrev_b32 {v(O+i)}, 2, {v(O+i)}")
        for x, i in enumerate(idx): a(f"  ds_add_rtn_u32 {v(R+i)}, {v(O+i)}, {v(vOne)}")
        for x, i in enumerate(idx): a(f"  v_and_b32 {v(PT+x)}, 7, {v(PT+8+x)}")
        for x, i in enumerate(idx): a(f"  v_lshl_or_b32 {v(I+i)}, {v(I+i)}, 3, {v(PT+x)}")
        for x, i in enumerate(idx): a(f"  v_lshrrev_b32 {v(PT+8+x)}, 3, {v(PT+8+x)}")
        for x, i in enumerate(idx): a(f"  v_lshl_or_b32 {v(I+i)}, {v(I+i)}, 1, {v(vOOB)}")
        for x, i in enumerate(idx): a(f"  v_lshl_or_b32 {v(I+i)}, {v(PT+8+x)}, 23, {v(I+i)}")
    def prep(piece):
        Z = R + 24
        aW, aD, aS, aR, aN, gq = Z, Z + 1, Z + 2, Z + 3, Z + 4, Z + 5
        CEN = Z + 6; H = Z + 8; Y = Z + 16
        if piece == 0:
            a(f"""
  s_lshl_b32 s{sX}, s{sW}, 12
  s_add_u32 s{sX}, s{sX}, 8192
  v_and_b32 {v(gq)}, 63, v0
  v_lshl_add_u32 {v(aW)}, {v(gq)}, 3, s{sX}
  v_lshl_add_u32 {v(gq)}, {v(gq)}, 2, s{sX}
  ds_write_b64 {v(aW)}, {v(rDist,2)}
  ds_write_b64 {v(aW)}, {v(rSbf,2)} offset:512
  ds_write_b64 {v(aW)}, {v(rUp,2)} offset:1024
  ds_write_b32 {v(gq)}, {v(rRbf)} offset:1536
  ds_write_b64 {v(aW)}, {v(rDown,2)} offset:2048
  v_and_b32 {v(aD)}, 15, v0
  v_bfe_u32 {v(gq)}, v0, 4, 2
  v_lshl_add_u32 {v(aD)}, {v(aD)}, 1, s{sX}
  v_lshl_add_u32 {v(aS)}, {v(gq)}, 7, {v(aD)}
  v_lshl_add_u32 {v(aR)}, {v(gq)}, 6, {v(aD)}
  v_bfe_u32 {v(aN)}, v0, 5, 1
  v_lshl_add_u32 {v(aN)}, {v(aN)}, 8, {v(aD)}
  ds_read_u16 {v(WS0)}, {v(aS)} offset:512
  ds_read_u16 {v(WS1)}, {v(aS)} offset:{512+32}
  ds_read_u16 {v(Y)}, {v(aS)} offset:{512+64}
  ds_read_u16 {v(Y+1)}, {v(aS)} offset:{512+96}
  ds_read_u16 {v(WUP)}, {v(aS)} offset:1024
  ds_read_u16 {v(Y+2)}, {v(aS)} offset:{1024+32}
  ds_read_u16 {v(WUP+1)}, {v(aS)} offset:{1024+64}
  ds_read_u16 {v(Y+3)}, {v(aS)} offset:{1024+96}
  ds_read_u16 {v(WR)}, {v(aR)} offset:1536
  ds_read_u16 {v(Y+4)}, {v(aR)} offset:{1536+32}""")
            for r in range(4 if DMA else 8): a(f"  ds_read_u16 {v(WDK[r//2] if r % 2 == 0 else H + r//2)}, {v(aS if DMA else aN)} offset:{2048 + r*32}")
            for p in range(13): a(f"  ds_read_u16 {v(RBK[p])}, {v(aD)} offset:{p*32}")
            return
        if piece == 1:
            a(f"""
  v_mov_b32 {v(CEN+1)}, s56
  v_cmp_eq_u32 vcc, 1, {v(gq)}
  v_mov_b32 {v(CEN)}, s57
  v_cmp_eq_u32 {s(sT,2)}, 2, {v(gq)}
  v_cndmask_b32 {v(CEN+1)}, {v(CEN+1)}, {v(CEN)}, vcc
  v_mov_b32 {v(CEN)}, s58
  v_cmp_eq_u32 vcc, 3, {v(gq)}
  v_cndmask_b32 {v(CEN+1)}, {v(CEN+1)}, {v(CEN)}, {s(sT,2)}
  v_mov_b32 {v(CEN)}, s59
  v_cndmask_b32 {v(CEN+1)}, {v(CEN+1)}, {v(CEN)}, vcc
  v_lshlrev_b32 {v(CEN)}, 16, {v(CEN+1)}
  v_and_b32 {v(CEN+1)}, 0xffff0000, {v(CEN+1)}
  s_mov_b32 s56, 0xc1200000
  s_mov_b32 s57, 0xc1200000
  s_mov_b32 s58, 0x3fb8aa3b
  s_mov_b32 s59, 0x3fb8aa3b
  s_waitcnt lgkmcnt(0)
  v_lshl_or_b32 {v(WS0)}, {v(Y)}, 16, {v(WS0)}
  v_lshl_or_b32 {v(WS1)}, {v(Y+1)}, 16, {v(WS1)}
  v_lshl_or_b32 {v(WUP)}, {v(Y+2)}, 16, {v(WUP)}
  v_lshl_or_b32 {v(WUP+1)}, {v(Y+3)}, 16, {v(WUP+1)}
  v_lshl_or_b32 {v(WR)}, {v(Y+4)}, 16, {v(WR)}""")
            for r in range(2 if DMA else 4): a(f"  v_lshl_or_b32 {v(WDK[r])}, {v(H+r)}, 16, {v(WDK[r])}")
        ps = ([0,1,2], [3,4,5,6,7], [8,9,10,11,12])[piece - 1]
        tt = {p: H + 2 * (p - ps[0]) for p in ps}
        def rnd():
            for p in ps: a(f"  v_cvt_pk_bf16_f32 {v(tt[p])}, 0, {v(tt[p])}\n  v_cvt_pk_bf16_f32 {v(tt[p]+1)}, 0, {v(tt[p]+1)}")
        for p in ps: a(f"  v_lshlrev_b32 {v(tt[p])}, 16, {v(RBK[p])}")
        for p in ps: a(f"  v_pk_add_f32 {v(tt[p],2)}, {v(tt[p],2)}, {v(CEN,2)} op_sel_hi:[0,1] neg_lo:[0,1] neg_hi:[0,1]")
        rnd()
        for p in ps: a(f"  v_pk_mul_f32 {v(tt[p],2)}, {v(tt[p],2)}, {v(tt[p],2)}")
        rnd()
        for p in ps: a(f"  v_pk_mul_f32 {v(tt[p],2)}, {v(tt[p],2)}, s[56:57]")
        rnd()
        for p in ps: a(f"  v_pk_mul_f32 {v(tt[p],2)}, {v(tt[p],2)}, s[58:59]")
        for p in ps: a(f"  v_exp_f32 {v(tt[p])}, {v(tt[p])}\n  v_exp_f32 {v(tt[p]+1)}, {v(tt[p]+1)}")
        for p in ps: a(f"  v_cvt_pk_bf16_f32 {v(RBK[p])}, {v(tt[p])}, {v(tt[p]+1)}")
    na = 0
    for q in range(NR):
        wait_for(("p", q))
        if q == 0: stamp(a, 252, 40)
        if q == LA:
            a(arrive); vm.append(("arr", 0))
        if OPT["mtouch"] == 3 and q == OPT["mq"]:
            a(f"  buffer_load_dword v244, {v(vL128)}, {s(sMT,4)}, 0 offen"); vm.append(("m", 0))
        if q + LA < NR: ld_pair(q + LA)
        else:
            for _ in range(2):
                if na < OPT["apre"]: ld_ang(na); na += 1
        hist(list(range(4*q, 4*q + nrec(q))))
        if 1 <= q <= 4: prep(q - 1)
    stamp(a, 252, 41)
    X = v(PT+4)
    PR = A + 4
    assert OPT["apre"] <= 2
    a(f"""
  v_and_b32 {v(PT+8)}, 0x3f0, {v(vL16)}
  v_lshrrev_b32 {v(PT+12)}, 1, v0
  v_and_b32 {v(PT+13)}, 1, v0
  v_lshlrev_b32 {v(PT+12)}, 2, {v(PT+12)}
  v_lshl_add_u32 {v(PT+13)}, {v(PT+13)}, 12, {v(PT+12)}
  s_waitcnt lgkmcnt(0)
  s_barrier
  s_cmp_ge_u32 s{sW}, {K}
  s_cbranch_scc1 L_bin_s2
  ds_read_b128 {v(PT,4)}, {v(vL16)}""")
    for r in range(K - 1): a(f"  ds_read_b128 {v(PR+4*r,4)}, {v(PT+8)} offset:{r*1024}")
    for r in range(K - 1): a(f"  s_cmp_gt_u32 s{sW}, {r}\n  s_cselect_b32 s{72+r}, 1, 0")
    a(f"""
  s_waitcnt lgkmcnt({K-1})
  v_add_u32 {v(PT+5)}, {v(PT)}, {v(PT+1)}
  v_add_u32 {v(PT+6)}, {v(PT+5)}, {v(PT+2)}
  v_add_u32 {v(PT+7)}, {v(PT+6)}, {v(PT+3)}""")
    for r in range(K - 1):
        a(f"""
  s_waitcnt lgkmcnt({K-2-r})
  v_add3_u32 {v(PR+4*r)}, {v(PR+4*r)}, {v(PR+4*r+1)}, {v(PR+4*r+2)}
  v_add_u32 {v(PR+4*r)}, {v(PR+4*r)}, {v(PR+4*r+3)}""")
        if r == 0: a(f"  v_mul_u32_u24 {v(PT+9)}, s72, {v(PR)}")
        else: a(f"  v_mad_u32_u24 {v(PT+9)}, {v(PR+4*r)}, s{72+r}, {v(PT+9)}")
    a(f"  v_lshl_or_b32 {X}, {v(PT+9)}, 16, {v(PT+7)}")
    for sh in (1, 2, 4, 8):
        a(f"  s_nop 1\n  v_add_u32_dpp {X}, {X}, {X} row_shr:{sh} row_mask:0xf bank_mask:0xf bound_ctrl:0")
    a(f"  s_nop 1\n  v_add_u32_dpp {X}, {X}, {X} row_bcast:15 row_mask:0xa bank_mask:0xf")
    a(f"  s_nop 1\n  v_add_u32_dpp {X}, {X}, {X} row_bcast:31 row_mask:0xc bank_mask:0xf")
    a(f"""
  s_nop 0
  v_readlane_b32 s{sY}, {X}, 63
  v_sub_u32 {X}, {X}, {v(PT+7)}
  s_lshr_b32 s{sY}, s{sY}, 16
  v_add_u32 {X}, s{sY}, {X}
  v_add_u32 {v(PT+7)}, {X}, {v(PT+6)}
  v_add_u32 {v(PT+6)}, {X}, {v(PT+5)}
  v_add_u32 {v(PT+5)}, {X}, {v(PT)}
  v_lshl_or_b32 {v(PT)}, {X}, 16, {v(PT)}
  v_lshl_or_b32 {v(PT+1)}, {v(PT+5)}, 16, {v(PT+1)}
  v_lshl_or_b32 {v(PT+2)}, {v(PT+6)}, 16, {v(PT+2)}
  v_lshl_or_b32 {v(PT+3)}, {v(PT+7)}, 16, {v(PT+3)}
  ds_write_b128 {v(vL16)}, {v(PT,4)}
  s_waitcnt lgkmcnt(0)""")
    a.label("L_bin_s2")
    a(f"  s_lshl_b32 s{sY}, s2, 13\n  s_barrier")
    stamp(a, 252, 42)
    TB = PT + 8
    for k in range(4): a(f"  ds_read_b32 {v(TB+k)}, {v(PT+13)} offset:{k*1024}")
    NB = OPT["nb"]
    vDa, vDv, vRa = 245, 246, 247
    lda = f"  buffer_load_dword {v(vDv)}, {v(vDa)}, {s(sDBG,4)}, 0 offen sc1"
    cda = f"  v_cmp_gt_u32 vcc, 16, {v(vDv)}"
    ada = f"""
  s_lshl_b32 s{sX}, s{sW}, 16
  v_and_b32 {v(vDa)}, 15, v0
  v_lshl_add_u32 {v(vDa)}, {v(vDa)}, 4, s{sX}"""
    NRD = 15
    for i in range(10): a(f"  ds_read_u16 {v(O+i)}, {v(O+i)} offset:2")
    a("  s_waitcnt lgkmcnt(10)")
    for k in range(4): a(f"  v_alignbit_b32 {v(TB+k)}, {v(TB+k)}, {v(TB+k)}, 16")
    a(f"  buffer_store_dwordx4 {v(TB,4)}, {v(vL16)}, {s(sTW,4)}, s{sY} offen sc1")
    vm.append(("tab", 0))
    for i in range(10, NRD): a(f"  ds_read_u16 {v(O+i)}, {v(O+i)} offset:2")
    for _ in range(OPT["a0"]):
        if na < NR: ld_ang(na); na += 1
    a(f"  s_mov_b32 s{sB5}, {NB*8192 + 4}\n  s_mov_b32 s{sSo}, 0")
    a(ada)
    a(f"  v_add_u32 {v(vRa)}, {P1_REC}, {v(vL16)}")
    def put(q, cmp):
        idx = list(range(4*q, 4*q + nrec(q)))
        for x, i in enumerate(idx): a(f"  v_cmp_{cmp}_u32 {s(72+2*x,2)}, s{sB5}, {v(R+i)}")
        for x, i in enumerate(idx):
            op = "ds_write_b16_d16_hi" if (i & 1) else "ds_write_b16"
            a(f"""
  s_mov_b64 exec, {s(72+2*x,2)}
  ds_write_b32 {v(R+i)}, {v(I+i)} offset:{P1_REC}
  {op} {v(O+i)}, {v(A + i//2)} offset:{P1_REC-2}""")
        a("  s_mov_b64 exec, -1")
    def pos(g):
        idx = list(range(5*g, 5*g+5))
        for i in idx: a(f"  v_add_u32 {v(O+i)}, {v(O+i)}, {v(R+i)}")
        for i in idx: a(f"  v_mad_u32_u24 {v(O+i)}, {v(O+i)}, {v(vSix)}, {v(vTwo)}")
        for x, i in enumerate(idx): a(f"  v_and_b32 {v(PT+x)}, 2, {v(O+i)}")
        for i in idx: a(f"  v_and_b32 {v(R+i)}, -4, {v(O+i)}")
        for x, i in enumerate(idx): a(f"  v_lshl_add_u32 {v(O+i)}, {v(PT+x)}, 1, {v(O+i)}")
    def put1(q):
        wait_for(("a", q))
        for r in range(nrec(q) // 2): a(f"  v_and_b32 {v(A+2*q+r)}, 0x7fff7fff, {v(A+2*q+r)}")
        if q == OPT["tq"]:
            assert q >= OPT["apre"]
            a("  s_barrier")
            a(lda); vm.append(("lda", 0))
            a(f"  buffer_store_dword {v(vOne)}, {v(vFlg)}, {s(sFLG,4)}, 0 offen sc1"); vm.append(("flg", 1))
        put(q, "gt")
    GI = OPT["gi"]
    for g in range(7):
        for _ in range(OPT["ag"]):
            if na < NR: ld_ang(na); na += 1
        a("  s_waitcnt lgkmcnt(10)")
        for i in range(5*g, 5*g+5): a(f"  ds_read_u16 {v(O+i+NRD)}, {v(O+i+NRD)} offset:2")
        if g < GI: pos(g)
    assert na == NR
    for g in range(7, GI):
        a(f"  s_waitcnt lgkmcnt({45 - 5*g})")
        pos(g)
    gn = GI
    for q in range(NR):
        assert 4*q + nrec(q) <= 5*gn
        put1(q)
        if gn < 10:
            if gn == 7 or (q == 0 and gn > 7): a("  s_waitcnt lgkmcnt(0)")
            pos(gn); gn += 1
    a(f"  ds_read_u16 {v(vWo)}, {v(vZ)} offset:2050")
    a("  s_waitcnt lgkmcnt(0)\n  s_barrier")
    stamp(a, 252, 43)
    a(f"  v_readfirstlane_b32 s{sO2}, {v(vWo)}")
    free = [PT, PT + 4, PT + 8, O, I, R, O + 4, I + 4, R + 4]
    def erd(r): a(f"  ds_read_b128 {v(free[r],4)}, {v(vRa)} offset:{r*8192}")
    def est(r):
        a(f"  buffer_store_dwordx4 {v(free[r],4)}, {v(vL16)}, {s(sRW,4)}, s{sSo} offen sc1\n  s_add_u32 s{sSo}, s{sSo}, 8192")
        vm.append(("st", r))
    assert NB <= 8
    fad = f"""
  v_and_b32 {v(RK[0])}, 63, v0
  v_lshlrev_b32 {v(RK[0])}, 4, {v(RK[0])}
  s_and_b32 s{sCin}, s2, {OPT['nrep']-1}
  s_lshl_b32 s{sCin}, s{sCin}, 10"""
    if OPT["wall"]:
        free = [I + 4 * r for r in range(8)]
        for r in range(NB): erd(r)
        a(fad)
        a(f"  s_mov_b32 s{sO4}, 0\n  s_cmp_lg_u32 s{sW}, 0\n  s_cbranch_scc1 L_nofl")
        wait_for(("lda", 0))
        a(cda)
        a(f"  s_cbranch_vccnz L_nofl\n  s_mov_b32 s{sO4}, 1")
        a(f"  buffer_load_dwordx4 {v(PT,4)}, {v(RK[0])}, {s(sFLG,4)}, s{sCin} offen sc1")
        a.label("L_nofl")
        for r in range(3):
            a(f"  s_waitcnt lgkmcnt({NB - 1 - r})")
            est(r)
        a("  s_waitcnt lgkmcnt(0)")
        put(0, "le"); put(1, "le"); put(2, "le")
    else:
        for r in range(3): erd(r)
        for r in range(3):
            a(f"  s_waitcnt lgkmcnt({2 - r})")
            est(r)
        put(0, "le"); put(1, "le")
        for r in range(3, NB): erd(r)
        put(2, "le")
        a("  s_waitcnt lgkmcnt(0)")
    todo = list(range(3, NB))
    fad = f"""
  v_and_b32 {v(RK[0])}, 63, v0
  v_lshlrev_b32 {v(RK[0])}, 4, {v(RK[0])}
  s_and_b32 s{sCin}, s2, {OPT['nrep']-1}
  s_lshl_b32 s{sCin}, s{sCin}, 10"""
    for q in range(3, NR):
        for _ in range(OPT["ep"]):
            if todo: est(todo.pop(0))
        if q == OPT["sq"]:
            assert not todo
            a(f"""
  v_mov_b32 {v(vDum)}, 3
  s_waitcnt vmcnt(0)
  s_barrier
  s_cmp_gt_u32 s{sO2}, {NB*8192 // 6 - 2}
  s_cbranch_scc1 L_noearly
  buffer_store_dword {v(vDum)}, {v(vFlg)}, {s(sFLG,4)}, 0 offen sc1""")
            a.label("L_noearly")
        if q == OPT["fq"] and not OPT["wall"]:
            assert q >= 3
            a(fad)
            a(f"  s_mov_b32 s{sO4}, 0\n  s_cmp_lg_u32 s{sW}, 0\n  s_cbranch_scc1 L_nofl")
            wait_for(("lda", 0))
            a(cda)
            a(f"  s_cbranch_vccnz L_nofl\n  s_mov_b32 s{sO4}, 1")
            a(f"  buffer_load_dwordx4 {v(R+8,4)}, {v(RK[0])}, {s(sFLG,4)}, s{sCin} offen sc1")
            a.label("L_nofl")
        put(q, "le")
    assert not todo
    stamp(a, 252, 44)
    FP = Db
    def flag_load(dst, off): return f"  buffer_load_dwordx4 {v(dst,4)}, {v(off)}, {s(sFLG,4)}, s{sCin if dst == FP else sX} offen sc1"
    def flag_cond(dst, stage): return f"""
  v_min3_u32 {v(dst)}, {v(dst)}, {v(dst+1)}, {v(dst+2)}
  v_min_u32 {v(dst)}, {v(dst)}, {v(dst+3)}
  v_cmp_gt_u32 vcc, {stage}, {v(dst)}"""
    if OPT["wall"]: a(f"  s_cmp_lg_u32 s{sW}, 0\n  s_cbranch_scc1 L_polled_t\n  s_waitcnt vmcnt({NB})")
    else:
        if OPT["sq"] < 0: a("  s_waitcnt vmcnt(0)")
        else: assert OPT["fq"] < OPT["sq"]
        stamp(a, 252, 48)
        a(f"  s_cmp_lg_u32 s{sW}, 0\n  s_cbranch_scc1 L_polled_t")
    a(f"  s_cmp_eq_u32 s{sO4}, 0\n  s_cbranch_scc1 L_wait_a")
    a(flag_cond(PT if OPT["wall"] else R+8, 1))
    a("  s_cbranch_vccz L_polled_t\n  s_branch L_polled_a")
    a.label("L_nochunk1")
    if 40 <= OPT["cut"] <= 44: a("  s_endpgm")
    a("  s_waitcnt vmcnt(0)")
    a(arrive)
    if OPT["mpf"]:
        srd(a, sMT, 48, 49, None, E * 32)
        a(f"""
  s_sub_u32 s{sY}, s2, {NCH}
  s_lshl_b32 s{sY}, s{sY}, 16
  v_lshlrev_b32 {v(O)}, 7, v0""")
        for r in range(OPT["mpf"]):
            a(f"  buffer_load_dword v254, {v(O)}, {s(sMT,4)}, s{sY} offen\n  s_add_u32 s{sY}, s{sY}, {(256 - NCH) << 16}")
            if r == 1:
                for piece in range(4): prep(piece)
    else:
        for piece in range(4): prep(piece)
    a(ada)
    a(fad)
    a(f"  s_mov_b32 s{sO2}, 0\n  s_cmp_lg_u32 s{sW}, 0\n  s_cbranch_scc1 L_polled_t")
    if OPT["ncn"]:
        poll("a0", lda, cda, 64)
        poll("t0", flag_load(FP, RK[0]), flag_cond(FP, 1), OPT["ncn"])
        a(f"  s_sleep {OPT['ncn']}\n  s_branch L_polled_t")
    a.label("L_wait_a")
    poll("a", lda, cda, 64)
    poll("t", flag_load(FP, RK[0]), flag_cond(FP, 1), OPT["napt"])
    stamp(a, 252, 49)
    a(f"""
  s_lshl_b32 s{sX}, s{sJ}, 5
  s_add_u32 s{sX}, s{sX}, {TABOFF}""")
    srd(a, sTAB, sWS, sWS+1, f"s{sX}", (NCH - 1) * 8192 + 32)

    def state_update():
        a(f"""
  v_sub_u32 {v(rem)}, {v(rem)}, {v(rtot)}
  v_lshrrev_b32 {v(T)}, 16, {v(Q)}
  v_and_b32 {v(T+1)}, 0xffff, {v(Q)}
  v_min_u32 {v(vR0)}, 32, {v(nA)}
  v_cmp_ge_u32 vcc, 32, {v(nA)}
  v_sub_u32 {v(T+2)}, 32, {v(vR0)}
  v_add_u32 {v(vB6)}, {v(cb)}, {v(T+1)}
  v_min_u32 {v(T+2)}, {v(T)}, {v(T+2)}
  v_mul_u32_u24 {v(vB6)}, 6, {v(vB6)}
  v_add_u32 {v(rtot)}, {v(vR0)}, {v(T+2)}
  v_mad_i32_i24 {v(vB6)}, {v(vR0)}, -6, {v(vB6)}
  v_lshlrev_b32 {v(vRT4)}, 2, {v(rtot)}
  v_add_u32 {v(vA6)}, {v(cb)}, {v(sA)}
  v_mul_u32_u24 {v(vA6)}, 6, {v(vA6)}""")
    def state_update2():
        a(f"""
  v_add_u32 {v(sA)}, 32, {v(sA)}
  v_subrev_u32 {v(nA)}, 32, {v(nA)}
  v_add_u32 {v(T+1)}, {v(T+1)}, {v(T+2)}
  v_sub_u32 {v(T)}, {v(T)}, {v(T+2)}
  v_cndmask_b32 {v(sA)}, {v(sA)}, {v(T+1)}, vcc
  v_cndmask_b32 {v(nA)}, {v(nA)}, {v(T)}, vcc""")
        for i in range(K - 1):
            a(f"  v_cndmask_b32 {v(Q+i)}, {v(Q+i)}, {v(Q+i+1)}, vcc")
        a(f"  v_cndmask_b32 {v(Q+K-1)}, {v(Q+K-1)}, {v(vZ)}, vcc")
    def set_flag(tag):
        a(f"""
  v_cmp_lt_u32 vcc, 0, {v(rem)}
  s_cbranch_vccz L_noflag_{tag}
  ds_write_b32 {v(vCtlN)}, {v(vOne)} offset:4""")
        a.label(f"L_noflag_{tag}")

    bc = lambda u: f"row_newbcast:{u} row_mask:0xf bank_mask:0xf"
    def rec_load(u, t0):
        a(f"""
  v_sub_co_u32_dpp {v(t0)}, vcc, {v(vR0)}, {v(vI1)} {bc(u)}
  v_add_u32_dpp {v(t0)}, {v(vA6)}, {v(vI6)} {bc(u)}
  v_add_u32_dpp {v(t0+1)}, {v(vB6)}, {v(vI6)} {bc(u)}
  v_cndmask_b32 {v(t0)}, {v(t0)}, {v(t0+1)}, vcc
  v_sub_u32_dpp {v(t0+1)}, {v(vRT4)}, {v(vI4)} {bc(u)}
  v_bfi_b32 {v(t0)}, {v(vMsk)}, {v(t0)}, {v(t0+1)}
  buffer_load_dwordx2 {v(REC[u],2)}, {v(t0)}, {s(sREC,4)}, 0 offen{RPOL}""")

    SDWA = "dst_sel:WORD_1 dst_unused:UNUSED_PAD src0_sel:WORD_1 src1_sel:WORD_0"
    def ins1(u, thr, p):
        ta, rk, mk, w = TA[p], RK[p], sMk[p], NW[p] + 1
        a(f"""
  v_cmp_gt_i32 vcc, 0, {v(LR(u))}
  v_min_i32 {v(w)}, {v(LR(u))}, {v(LR(u)+1)}
  v_cmp_gt_i32 {s(mk,2)}, {thr}, {v(w)}
  v_bfe_u32 {v(ta)}, {v(w)}, 23, 8
  v_cndmask_b32_sdwa {v(NW[p])}, {v(LR(u))}, {v(LR(u)+1)}, vcc {SDWA}
  v_mad_u32_u24 {v(ta)}, {v(ta)}, {v(v264)}, s{sIns}
  s_mov_b64 exec, {s(mk,2)}
  ds_add_rtn_u32 {v(rk)}, {v(ta)}, {v(vOne)}
  s_mov_b64 exec, -1""")

    def ins2(u, tag, p):
        ta, rk, mk, w = TA[p], RK[p], sMk[p], NW[p] + 1
        lab = f"{tag}_{u}"
        a(f"""
  s_mov_b64 exec, {s(mk,2)}
  v_cmp_lt_u32 vcc, 31, {v(rk)}
  v_lshl_add_u32 {v(ta)}, {v(rk)}, 3, {v(ta)}
  s_cbranch_vccnz L_rare_{lab}""")
        a.label(f"L_back_{lab}")
        a(f"""
  ds_write_b64 {v(ta)}, {v(NW[p],2)} offset:8
  s_mov_b64 exec, -1""")
        rare.append((lab, u, p))

    a(f"""
  v_add_u32 {v(PT+2)}, {P1_REC}, {v(vL16)}
  v_add_u32 {v(PT+3)}, {P1_REC + 8*8192}, {v(vL16)}
  v_add_u32 {v(PT+4)}, {P1_REC + 16*8192}, {v(vL16)}
  s_mov_b32 s{sSo}, {NB*8192}
  v_mov_b32 {v(vDum)}, 3
  s_waitcnt lgkmcnt(0)
  s_barrier""")
    stamp(a, 252, 45)
    NS = 19
    sdt = lambda r: (20 + r) % 25 if r < 8 else r + 1
    SD = lambda r: ACC[sdt(r)]
    gv = []
    def gwait(x, extra=""): a(f"  s_waitcnt vmcnt({len(gv) - 1 - gv.index(x)}){extra}")
    def rd(r): a(f"  ds_read_b128 {v(SD(r),4)}, {v(PT+2 + r//8)} offset:{(r%8)*8192}")
    def st(r, lst=None):
        a(f"  buffer_store_dwordx4 {v(SD(r),4)}, {v(vL16)}, {s(sRW,4)}, s{sSo} offen sc1\n  s_add_u32 s{sSo}, s{sSo}, 8192")
        if lst is not None: lst.append(("st", r))
    zero_acc = lambda t: a(f"  v_mov_b64 {v(ACC[t],2)}, 0\n  v_mov_b64 {v(ACC[t]+2,2)}, 0")
    flag3 = f"  buffer_store_dword {v(vDum)}, {v(vFlg)}, {s(sFLG,4)}, 0 offen sc1"
    N1, N3 = OPT["n1"], OPT["n3"]
    if not OPT["wall"] and OPT["sq"] < 0:
        a(f"  s_cmp_gt_u32 s{sO2}, {NB*8192 // 6 - 2}\n  s_cbranch_scc1 L_noearly")
        a(flag3)
        a.label("L_noearly")
    a(f"""
  buffer_load_dwordx4 {v(Q,4)}, {v(vTab)}, {s(sTAB,4)}, 0 offen sc1
  buffer_load_dwordx2 {v(Q+4,2)}, {v(vTab)}, {s(sTAB,4)}, 0 offen offset:16 sc1""")
    gv.extend([("tab", 0), ("tab", 1)])
    PW = OPT["pw"]
    if PW: a(f"  v_lshrrev_b32 {v(RK[0])}, 11, {v(vTab)}")
    own_ld = f"  buffer_load_dword {v(RK[1])}, {v(RK[0])}, {s(sFLG,4)}, s{sCin} offen sc1"
    own_cd = f"  v_cmp_gt_u32 vcc, 2, {v(RK[1])}"
    if cpf(1, 24): gv.append(("c", 1))
    for r in range(NB, NS): rd(r)
    nxt = NB + N1
    for r in range(NB, nxt):
        a(f"  s_waitcnt lgkmcnt({NS - 1 - r})")
        st(r, gv)
    a(f"""
  s_waitcnt lgkmcnt(0)
  s_cmp_gt_u32 s{sO2}, {NB*8192 // 6 - 2}
  s_cbranch_scc1 L_allfirst""")
    if OPT["wall"]: a(f"  s_waitcnt vmcnt({len(gv)})")
    a("  s_barrier")
    if OPT["wall"]: a(flag3)
    a.label("L_allfirst_back")
    stamp(a, 252, 46)
    pend = list(range(nxt, NS))
    keep = OPT["n3"]
    slot = [0]
    def st1(n=1):
        on = OPT["smask"] >> slot[0] & 1 or n > 1
        slot[0] += 1
        for _ in range(n):
            if on and len(pend) > keep: st(pend.pop(0), gv)
    st1()
    RBR, WD = Wa, Wa + 14
    if DMA:
        for p in range(14): a(f"  v_mov_b32 {v(RBR+p)}, {v(RBK[p]) if p < 13 else 0}")
        a(f"  v_mov_b32 {v(WD)}, {v(WDK[0])}\n  v_mov_b32 {v(WD+1)}, {v(WDK[1])}")
        st1()
    else:
        a(f"""
  s_mul_i32 s{sX}, s{sW}, 3584
  s_add_u32 s{sX}, s{sX}, {RB_OFF}
  v_and_b32 {v(T+8)}, 63, v0
  v_lshl_add_u32 {v(T+9)}, {v(T+8)}, 3, s{sX}
  v_bfe_u32 {v(T+8)}, v0, 4, 1
  v_cmp_eq_u32 vcc, 1, {v(T+8)}""")
        for p in range(14): a(f"  ds_write_b32 {v(T+9)}, {v(RBK[p] if p < 13 else vZ)} offset:{(p//2)*512 + (p%2)*4}")
        st1()
        for r in range(4):
            a(f"  v_cndmask_b32 {v(Wa+r)}, {v(WDK[r])}, {v(vZ)}, vcc")
            a(f"  v_cndmask_b32 {v(Wb+r)}, {v(vZ)}, {v(WDK[r])}, vcc")
    a(f"""
  v_mov_b32 {v(WS0+1)}, 0
  v_mov_b32 {v(WS1+1)}, 0
  v_mov_b32 {v(WR+1)}, 0
  v_mov_b32 {v(sA)}, 0
  v_mov_b32 {v(nA)}, 0
  v_mov_b32 {v(rtot)}, 0""")
    ZR = range(Wa + 16, Wa + 32, 2) if DMA else range(RING[0], RING[0] + 20, 2)
    for r in ZR: a(f"  v_mov_b64 {v(r,2)}, 0")
    st1()
    a(f"""
  s_mul_i32 s{sFl}, s{sJ}, {2*CARLIST}
  s_add_u32 s{sFl}, s{sFl}, {CAROFF}""")
    srd(a, sREC, sWS, sWS+1, None, NCH * CH * 6)
    a(f"  s_mov_b32 s{sM}, s48\n  s_or_b32 s{sM+1}, s49, 0x20000\n  s_mov_b32 s{sM+2}, {E*16}\n  s_mov_b32 s{sM+3}, 0x20000")
    srd(a, sCAR, sWS, sWS+1, f"s{sFl}", 2 * CARLIST)
    srd(a, sOUT, 70, 71, None, f"s{sRb}")
    srd(a, sMW, 48, 49, None, f"s{sRb}")
    for t in list(range(3, 9)) + [sdt(r) for r in range(NB)]: zero_acc(t)
    st1()
    a(f"""
  v_mov_b32 {v(vSent)}, {SENT}
  v_mov_b32 {v(T)}, 0
  v_mov_b32 {v(T+1)}, {v(vSent)}
  v_mov_b32 {v(T+2)}, 0
  v_mov_b32 {v(T+3)}, {v(vSent)}
  v_add_u32 {v(T+6)}, {7*8192}, {v(vL16)}""")
    for r in range(13):
        a(f"  ds_write_b128 {v(vL16 if r < 7 else T+6)}, {v(T,4)} offset:{(r%7)*8192}")
        if r % 5 == 4: st1()
    a(f"""
  v_and_b32 {v(T+6)}, 15, v0
  v_lshl_add_u32 {v(T+6)}, {v(T+6)}, 2, {v(vCtlN)}
  ds_write_b32 {v(T+6)}, {v(vZ)}
  ds_write_b128 {v(vSst if (DMA or STR) else vSrd)}, {v(ACC[3],4)}""")
    if DMA:
        for q in range(D): a(f"  ds_write_b128 {v(vSst)}, {v(ACC[3],4)} offset:{1024*(q+1)}")
    for q in range(D): a(f"  v_mov_b32 {v(SA[q])}, {v(vSst)}\n  v_mov_b32 {v(CC[q])}, 0")
    gwait(("tab", 1))
    a(f"  v_lshrrev_b32 {v(rem)}, 16, {v(Q)}")
    for i in range(1, K):
        a(f"  v_lshrrev_b32 {v(T+4)}, 16, {v(Q+i)}\n  v_add_u32 {v(rem)}, {v(rem)}, {v(T+4)}")
    state_update()
    for u in range(0, 16, 2):
        a(f"""
  v_add_u32_dpp {v(REC[u])}, {v(vB6)}, {v(vI6)} {bc(u)}
  v_sub_u32_dpp {v(REC[u]+1)}, {v(vRT4)}, {v(vI4)} {bc(u)}
  v_add_u32_dpp {v(REC[u+1])}, {v(vB6)}, {v(vI6)} {bc(u+1)}
  v_sub_u32_dpp {v(REC[u+1]+1)}, {v(vRT4)}, {v(vI4)} {bc(u+1)}
  v_bfi_b32 {v(REC[u])}, {v(vMsk)}, {v(REC[u])}, {v(REC[u]+1)}
  v_bfi_b32 {v(REC[u+1])}, {v(vMsk)}, {v(REC[u+1])}, {v(REC[u+1]+1)}""")
        if u == OPT["eb"] and PW:
            a(own_ld); gv.append(("own", 0))
        elif u == OPT["eb"]:
            a(f"  s_cmp_lg_u32 s{sW}, 0\n  s_cbranch_scc1 L_noeb")
            a(flag_load(FP, RK[0]))
            a.label("L_noeb")
            ebm = len(gv)
        if u % 4 == 2: st1()
    state_update2()
    state_update()
    state_update2()
    st1()
    st1(NS)
    a("  s_nop 0")
    nx3 = NS - len(pend)
    for r in range(NB, nx3): zero_acc(sdt(r))
    stamp(a, 252, 47)
    if OPT["pf0"] == 3:
        share = (OPT["wmain"] // 4 + 31) // 32
        a(f"""
  s_cmp_eq_u32 s{sW}, 0
  s_cbranch_scc1 L_nopf
  s_lshr_b32 s{sX}, s2, 3
  s_mul_i32 s{sX}, s{sX}, {share*128}
  v_lshlrev_b32 {v(TA[1])}, 7, v0
  buffer_load_dword {v(WW[1])}, {v(TA[1])}, {s(sM,4)}, s{sX} offen""")
        a.label("L_nopf")
    a(f"  s_mov_b32 s{sThr}, {BUFSZ - 256}")
    if PW:
        gwait(("own", 0))
        a(own_cd)
        a("  s_cbranch_vccnz L_gen")
    else:
        a(f"  s_cmp_lg_u32 s{sW}, 0\n  s_cbranch_scc1 L_polled_b")
        if OPT["eb"] >= 0:
            a(f"  s_waitcnt vmcnt({len(gv) - ebm})")
            a(flag_cond(FP, 2))
            a("  s_cbranch_vccz L_polled_b")
        poll("b", flag_load(FP, RK[0]), flag_cond(FP, 2), OPT["nap"])
        a("  s_waitcnt lgkmcnt(0)")
        a("  s_barrier")
        stamp(a, 252, 1)
    def pro_ld(us):
        for u in us:
            a(f"  buffer_load_dwordx2 {v(REC[u],2)}, {v(REC[u])}, {s(sREC,4)}, 0 offen{RPOL}")
            gv.append(("rec", u))
    NL0 = OPT["nl0"]
    if OPT["gprio"]:
        a(f"  s_cmp_lt_u32 s{sW}, 4\n  s_cbranch_scc1 L_gp\n  s_setprio 1")
        a.label("L_gp")
    pro_ld(range(NL0))
    if PW:
        a("  s_waitcnt lgkmcnt(0)\n  s_barrier")
        stamp(a, 252, 1)
    NG = NS
    stamp(a, 252, 12)
    set_flag("pro")
    stamp(a, 252, 13)
    PTA = (lambda u: (list(range(Db, Sf + 4)) + [TA[0], TA[1], RK[1], WW[1]])[u]) if DMA else (lambda u: Da + u)
    PRK = (lambda u: Wa + 16 + u) if DMA else (lambda u: RING[0] + u)
    PMK = lambda u: sPM + 2 * (u % 8)
    slowg = []
    def gins1(us, mk):
        for u in us:
            a(f"""
  v_cmp_gt_i32 vcc, 0, {v(REC[u])}
  v_min_i32 {v(PTA(u))}, {v(REC[u])}, {v(REC[u]+1)}
  v_cmp_gt_i32 {s(mk(u),2)}, 0, {v(PTA(u))}
  v_cndmask_b32_sdwa {v(REC[u])}, {v(REC[u])}, {v(REC[u]+1)}, vcc {SDWA}
  v_mov_b32 {v(REC[u]+1)}, {v(PTA(u))}""")
        for u in us: a(f"  v_bfe_u32 {v(PTA(u))}, {v(PTA(u))}, 23, 8")
        for u in us: a(f"  v_mul_u32_u24 {v(PTA(u))}, {v(PTA(u))}, {v(v264)}")
        for u in us: a(f"  s_mov_b64 exec, {s(mk(u),2)}\n  ds_add_rtn_u32 {v(PRK(u))}, {v(PTA(u))}, {v(vOne)}")
        a("  s_mov_b64 exec, -1")
    def gins2(us, mk, g):
        if len(us) == 4: a(f"  v_max3_u32 {v(T)}, {v(PRK(us[0]))}, {v(PRK(us[1]))}, {v(PRK(us[2]))}\n  v_max_u32 {v(T)}, {v(T)}, {v(PRK(us[3]))}")
        else: a(f"  v_max_u32 {v(T)}, {v(PRK(us[0]))}, {v(PRK(us[1]))}")
        a(f"""
  v_cmp_lt_u32 vcc, 31, {v(T)}
  s_cbranch_vccz L_pfast_{g}
  v_cmp_lt_u32 vcc, 63, {v(T)}
  s_cbranch_vccnz L_pslow_{g}""")
        a.label(f"L_pback_{g}")
        for x, u in enumerate(us): a(f"  v_subrev_u32 {v(T+4+x)}, 31, {v(PRK(u))}")
        for x, u in enumerate(us): a(f"  s_mov_b64 exec, {s(mk(u),2)}\n  ds_max_i32 {v(PTA(u))}, {v(T+4+x)} offset:{BUFSZ}")
        a(f"  s_mov_b64 exec, -1\n  ds_write_b32 {v(vCtlN)}, {v(vOne)} offset:4")
        for x, u in enumerate(us): a(f"  v_lshrrev_b32 {v(T+4+x)}, 5, {v(PRK(u))}")
        for x, u in enumerate(us): a(f"  v_mad_u32_u24 {v(PTA(u))}, {v(T+4+x)}, s{sThr}, {v(PTA(u))}")
        a.label(f"L_pfast_{g}")
        for u in us: a(f"  v_lshl_add_u32 {v(PTA(u))}, {v(PRK(u))}, 3, {v(PTA(u))}")
        for u in us: a(f"  s_mov_b64 exec, {s(mk(u),2)}\n  ds_write_b64 {v(PTA(u))}, {v(REC[u],2)} offset:8")
        a("  s_mov_b64 exec, -1")
        slowg.append((g, us, mk))
    def pro_ins1(g):
        gwait(("rec", 4*g+3))
        gins1(list(range(4*g, 4*g+4)), PMK)
    def pro_ins2(g): gins2(list(range(4*g, 4*g+4)), PMK, g)
    left = list(range(nx3, NS))
    per = (len(left) + 3) // 4
    def some():
        for _ in range(per):
            if left: st(left.pop(0), gv)
    pro_ins1(0)
    stamp(a, 252, 3)
    pro_ld(range(NL0, 16))
    def pf():
        share = (OPT["wmain"] // 4 + 31) // 32
        a(f"""
  s_lshr_b32 s{sX}, s2, 3
  s_mul_i32 s{sX}, s{sX}, {share*128}
  v_lshlrev_b32 {v(TA[1])}, 7, v0
  buffer_load_dword {v(WW[1])}, {v(TA[1])}, {s(sM,4)}, s{sX} offen""")
        gv.append(("pf", 0))
    if OPT["pf0"] == 1:
        while left: st(left.pop(0), gv)
        pf()
    pro_ins1(1)
    some()
    a("  s_waitcnt lgkmcnt(0)")
    if OPT["gprio"] == 1: a("  s_setprio 0")
    pro_ins2(0); some(); pro_ins1(2)
    if OPT["gprio"] == 2: a("  s_setprio 0")
    pro_ins2(1); some(); pro_ins1(3); some()
    if OPT["gprio"] == 3: a("  s_setprio 0")
    if OPT["pf0"] == 2: pf()
    stamp(a, 252, 8)
    a("  s_nop 0")
    for r in range(nx3, NS): zero_acc(sdt(r))
    a("  s_waitcnt lgkmcnt(0)")
    pro_ins2(2); pro_ins2(3)
    a.label("L_gen_done")
    stamp(a, 252, 11)
    a(f"  s_lshr_b32 s{sCnt[1]}, s{sEb}, 5\n  s_add_u32 s{sCnt[1]}, s{sCnt[1]}, 100\n  s_mul_hi_u32 s{sCnt[1]}, s{sCnt[1]}, {MK}")
    a(f"  v_cmp_ne_u32 vcc, 0, {v(vR0)}\n  s_or_b32 s85, vcc_lo, vcc_hi")
    if OPT["soft"]:
        a(f"""
  s_mov_b32 s82, 0
  s_mov_b32 s83, 0
  v_mov_b32 {v(T+9)}, {CTL + 40}
  s_mov_b64 exec, 1
  ds_add_u32 {v(T+9)}, {v(vOne)}
  ds_add_u32 {v(T+9)}, {v(vOne)} offset:4
  s_mov_b64 exec, -1""")
    if DMA:
        a(f"  s_mul_i32 s{sRing}, s{sW}, {WSTR}\n  s_add_u32 s{sRing}, s{sRing}, {S_OFF + 1024}")
        for r in range(P, Sf + 4, 2): a(f"  v_mov_b64 {v(r,2)}, 0")
    a("  s_branch L_turn2")
    def signal_all(tag, n):
        a(f"""
  v_mov_b32 {v(T+4)}, {CTL + 32}
  s_waitcnt vmcnt({n})
  s_mov_b64 exec, 1
  ds_add_rtn_u32 {v(T+5)}, {v(T+4)}, {v(vOne)}
  s_mov_b64 exec, -1
  v_and_b32 {v(T+6)}, 63, v0
  s_lshl_b32 s{sX}, s2, 2
  v_lshl_add_u32 {v(T+6)}, {v(T+6)}, 10, s{sX}
  v_mov_b32 {v(T+7)}, 4
  s_waitcnt lgkmcnt(0)
  v_readfirstlane_b32 s{sX}, {v(T+5)}
  s_cmp_lg_u32 s{sX}, 7
  s_cbranch_scc1 L_nosig_{tag}
  buffer_store_dword {v(T+7)}, {v(T+6)}, {s(sFLG,4)}, 0 offen sc1""")
        a.label(f"L_nosig_{tag}")

    INS0 = OPT["ins0"]
    def sread():
        if DMA or STR: tr(Sf, vSrd, 0)
        else: a(f"  ds_read_b128 {v(Sf,4)}, {v(vSrd)}")
    def cstage_head(q):
        a(f"  ds_write_b16 {v(SA[q])}, {v(CC[q])}")
        sread()
        a(f"  ds_write_b16 {v(SA[q])}, {v(vZ)}")
    def cstage_m1(q):
        a(f"""
  v_mfma_f32_16x16x32_bf16 {v(Da,4)}, {v(RING[q],4)}, {v(Wa,4)}, 0
  v_mfma_f32_16x16x32_bf16 {v(Db,4)}, {v(RING[q],4)}, {v(Wb,4)}, 0""")
    def cstage_cvt():
        a(f"""
  v_cvt_pk_bf16_f32 {v(P)}, {v(Da)}, {v(Da+1)}
  v_cvt_pk_bf16_f32 {v(P+1)}, {v(Da+2)}, {v(Da+3)}
  v_cvt_pk_bf16_f32 {v(P+2)}, {v(Db)}, {v(Db+1)}
  v_cvt_pk_bf16_f32 {v(P+3)}, {v(Db+2)}, {v(Db+3)}""")
    def cstage_m2(tc):
        a(f"  v_mfma_f32_16x16x32_bf16 {v(ACC[tc],4)}, {v(P,4)}, {v(Sf,4)}, {v(ACC[tc],4)}")
    def tr(dst, addr, off):
        a(f"  ds_read_b64_tr_b16 {v(dst,2)}, {v(addr)} offset:{off}\n  ds_read_b64_tr_b16 {v(dst+2,2)}, {v(addr)} offset:{off+512}")
    def fetch(q):
        a(f"  ds_write_b16 {v(SA[q])}, {v(CC[q])}")
        tr(Sf, vSrd, 0)
        a(f"  ds_write_b16 {v(SA[q])}, {v(vZ)}")
        tr(P, vSrd, 1024 * (q + 1))
    nds = [0]
    def step_top(t, reset=True):
        a(f"  ; ---- step {t}")
        nds[0] = len(a.lines)
        cstage_head(t % D)
        if t < NT - 1:
            a(f"  ds_read_b64 {v(RP[(t+1)&1],2)}, {v(vRd)} offset:{(t+1)*TS+8}")
        if reset and t < NT:
            a(f"  ds_write_b32 {v(vRd)}, {v(vSent)} offset:{t*TS+12}")
    assert not DMA
    def step_a(t, n):
        q = t % D
        rp = RP[t & 1]
        off, af, e = T + 1, T + 2, T + 3
        assert all(l.strip().startswith("ds_") for l in a.lines[nds[0]:])
        a(f"  s_waitcnt vmcnt({n}) lgkmcnt({len(a.lines) - nds[0]})")
        cstage_m1(q)
        mark = len(a.lines)
        if t < NT:
            a(f"""
  v_and_or_b32 {v(off)}, {v(rp+1)}, {v(vSent)}, {v(vHalf)}
  v_mul_f32 {v(af)}, {v(rp)}, {v(vFreq)}""")
            if not STR: a(f"  v_and_b32 {v(e)}, 14, {v(rp+1)}")
            a(f"""
  buffer_load_dwordx4 {v(RING[q],4)}, {v(off)}, {s(sM,4)}, 0 idxen
  v_cos_f32 {v(af)}, {v(af)}""")
            if STR: a(f"  v_and_or_b32 {v(SA[q])}, {v(rp+1)}, 14, {v(vSst)}")
            else: a(f"  v_lshl_add_u32 {v(SA[q])}, {v(e)}, 3, {v(vSst)}")
            a(f"  v_cvt_pk_bf16_f32 {v(CC[q])}, {v(af)}, {v(af)}")
        return mark
    def step_b(t, mark, reset=True):
        n = 0
        for l in a.lines[mark:]:
            if l.endswith(":") or l.strip().startswith(";"): continue
            n += 1
            if "s_cbranch" in l: break
        if n < 7: a(f"  s_nop {6 - n}")
        lg = (2 if t < NT-1 else 1) + (1 if reset and t < NT else 0)
        cstage_cvt()
        a(f"  s_waitcnt lgkmcnt({lg})\n  s_nop 0")
        cstage_m2((t - D) % NT)

    LD0 = INS0 - OPT["lead"]
    assert LD0 >= 0 and OPT['lead'] <= 2
    sKo = sCnt[1]
    sTwo = 85
    order = []
    for t in range(NT):
        order.append(("W", t))
        order.append(("g", t))
        if t == 0: order.append(("rec", 16))
        if 0 <= t - LD0 < 16: order.append(("rec", t - LD0))
        order.append(("V", t))
    isop = lambda x: x[0] not in "WV"
    assert all(x[0] == "g" for x in order[order.index(("g", NT - D)):] if isop(x))
    def younger(target, at):
        n = len(order); i = order.index(target); cnt = 0
        j = (i + 1) % n
        while j != at:
            if isop(order[j]): cnt += 1
            j = (j + 1) % n
        return cnt
    RBH = 1
    def prio(tag, mask, t):
        cur = mask >> t & 1; prev = (mask >> (t - 1) & 1) if t else 0
        if cur and not prev:
            a(f"  s_cmp_lt_u32 s{sW}, 4\n  s_cbranch_scc1 L_{tag}prio{t}\n  s_setprio 1")
            a.label(f"L_{tag}prio{t}")
        if prev and not cur: a("  s_setprio 0")
    assert not OPT["lprio"] >> (NT - 1)
    def step0_extra():
        a(f"""
  v_cmp_gt_u32 vcc, s{sCin}, {v(vCarIdx)}
  s_add_u32 s{sX}, s{sIt}, 2
  s_and_b32 s{sX}, s{sX}, 3
  s_lshl_b32 s{sX}, s{sX}, 3
  s_add_u32 s{sX}, s{sX}, {CTL}
  v_mov_b32 {v(T+1)}, s{sX}
  ds_write_b64 {v(T+1)}, {v(vZ,2)}
  ds_write_b32 {v(vCntA)}, {v(vZ)}
  v_lshlrev_b32 {v(T)}, 3, {v(vCarIdx)}
  v_cndmask_b32 {v(T)}, {v(vOOB)}, {v(T)}, vcc
  buffer_load_dwordx2 {v(LR(16),2)}, {v(T)}, {s(sCAR,4)}, s{sCarR} offen sc1""")
    SOFT = OPT["soft"]
    sTg, sDid = 82, 83
    def arrive2(off):
        a(f"""
  v_mov_b32 {v(T+9)}, {CTL + 40}
  s_mov_b64 exec, 1
  ds_add_u32 {v(T+9)}, {v(vOne)} offset:{off}
  s_mov_b64 exec, -1""")
    def bread(): a(f"  v_mov_b32 {v(T+9)}, {CTL + 40}\n  ds_read_b32 {v(T+8)}, {v(T+9)} offset:4")
    def bwait(tag):
        a(f"""
  v_readfirstlane_b32 s{sX}, {v(T+8)}
  s_cmp_lt_u32 s{sX}, s{sTg}
  s_cbranch_scc1 L_bspin_{tag}""")
        a.label(f"L_bok_{tag}")
    two = f"  v_cmp_ne_u32 vcc, 0, {v(vR0)}\n  s_or_b32 s{sTwo}, vcc_lo, vcc_hi"
    FC = Q_FC = REC[0]
    FO = REC[2]
    a(".p2align 6")
    a.label("L_loop")
    for t in range(NT):
        step_top(t)
        mk = step_a(t, younger(("g", (t - D + OPT["dsh"]) % NT), order.index(("W", t))))
        if t == 0: step0_extra()
        prio("lp", OPT["lprio"], t)
        ul = t - LD0
        if 0 <= ul < 16:
            a(f"""
  s_cmp_lg_u32 s{sTwo}, 0
  v_add_u32_dpp {v(T+4)}, {v(vB6)}, {v(vI6)} {bc(ul)}
  v_sub_u32_dpp {v(T+5)}, {v(vRT4)}, {v(vI4)} {bc(ul)}
  s_cbranch_scc1 L_two_{ul}""")
            a.label(f"L_two_back_{ul}")
            a(f"""
  v_bfi_b32 {v(T+4)}, {v(vMsk)}, {v(T+4)}, {v(T+5)}
  buffer_load_dwordx2 {v(LR(ul),2)}, {v(T+4)}, {s(sREC,4)}, 0 offen{RPOL}""")
        if ul == 16:
            a(f"""
  s_cmp_lg_u32 s{sThr}, 0
  s_cbranch_scc1 L_nostate
  s_cmp_eq_u32 s{sIt}, 0
  s_cbranch_scc1 L_borrow""")
            a.label("L_borrow_back")
            state_update(); state_update2()
            a(two)
            a.label("L_nostate")
            set_flag("lp")
        if SOFT and t == INS0 - 1: bread()
        if SOFT and t == INS0: bwait("lp")
        u1 = t - INS0; u2 = u1 - 1
        if 0 <= u2 < 17: ins2(u2, "lp", u2 & 1)
        if 0 <= u1 < 17:
            a(f"  s_waitcnt vmcnt({younger(('rec', u1), order.index(('V', t)))})")
            ins1(u1, f"s{sThr}" if u1 < 16 else "0", u1 & 1)
        if t == 2:
            a(f"  s_cmp_eq_u32 s{sIt}, 0\n  s_cbranch_scc1 L_sig")
            a.label("L_nosig_b0")
            nsig = sum(1 for x in order[:order.index(("V", t))] if isop(x))
        if t == INS0 + 18:
            a(f"  s_cmp_gt_u32 s{sCin}, 512\n  s_cbranch_scc1 L_slow_lp")
            a.label("L_slow_back_lp")
        TAR = OPT["ta"]
        TLD = INS0 + 17 if SOFT else INS0 + 18
        if t == TLD:
            a(f"  s_or_b32 s{sX}, s{sIt}, s{sW}\n  s_cbranch_scc0 L_ldc")
            a.label("L_ldc_back")
        if SOFT and t == TAR:
            assert TAR >= INS0 + 18
            a(f"  s_or_b32 s{sX}, s{sIt}, s{sW}\n  s_cselect_b32 s{sDid}, s{sDid}, 2\n  s_cmp_lg_u32 s{sDid}, 0\n  s_cbranch_scc1 L_chkc")
            a.label("L_arr_back")
            arrive2(0)
        if SOFT and t == NT - 1: arrive2(4)
        if t == OPT["mstep"]:
            a(f"  s_cmp_eq_u32 s{sIt}, s{sKo}\n  s_cbranch_scc1 L_mld")
            a.label("L_mld_back1")
        step_b(t, mk)
    if not SOFT: a(f"""
  s_waitcnt vmcnt({NT - (INS0 + 18)})
  s_or_b32 s{sX}, s{sIt}, s{sW}
  s_cbranch_scc0 L_chkc""")
    a.label("L_turn2")
    a(f"""
  v_mov_b32 {v(T)}, {v(vCtlN)}
  s_add_u32 s{sIt}, s{sIt}, 1
  s_add_u32 s{sX}, s{sIt}, 1
  s_and_b32 s{sX}, s{sX}, 3
  s_lshl_b32 s{sX}, s{sX}, 3
  s_add_u32 s{sX}, s{sX}, {CTL}
  v_mov_b32 {v(vCtlN)}, s{sX}
  s_sub_u32 s{sX}, s{sIns}, {BUFSZ}
  s_add_u32 s{sX}, s{sX}, s{sIns}
  v_add_u32 {v(vRd)}, s{sX}, {v(vRd)}
  v_add_u32 {v(vCntA)}, s{sX}, {v(vCntA)}
  s_sub_u32 s{sIns}, {BUFSZ}, s{sIns}
  s_mov_b32 s{sCarR}, s{sCarW}
  s_sub_u32 s{sCarW}, {CARLIST}, s{sCarW}""")
    a(f"  s_add_u32 s{sTg}, s{sTg}, 8\n  s_mov_b32 s81, 0x200000" if SOFT else "  s_waitcnt lgkmcnt(0)")
    if OPT["stamp"] == 1:
        a(f"  s_lshl_b32 s90, s{sIt}, 1\n  s_add_u32 s90, s90, 16\n  s_min_u32 m0, s90, 36")
        stamp(a, 252, "m0")
        a("  s_add_u32 m0, m0, 1")
    if SOFT:
        a.label("L_aspin")
        a(f"  ds_read_b32 {v(T+8)}, {v(T+9)}")
    else:
        a("  s_barrier")
        stamp(a, 252, "m0")
    a(f"""
  ds_read_b64 {v(T+2,2)}, {v(T)}
  ds_read_b64 {v(RP[0],2)}, {v(vRd)} offset:8
  s_waitcnt lgkmcnt(1)""")
    if SOFT:
        a(f"""
  v_readfirstlane_b32 s{sX}, {v(T+8)}
  s_cmp_lt_u32 s{sX}, s{sTg}
  s_cbranch_scc1 L_anap""")
        stamp(a, 252, "m0")
    a(f"""
  v_readfirstlane_b32 s{sCin}, {v(T+2)}
  v_readfirstlane_b32 s{sFl}, {v(T+3)}
  s_cmp_gt_u32 s{sCin}, 512
  s_cselect_b32 s{sThr}, 0x80000000, 0
  s_min_u32 s{sCin}, s{sCin}, {CARCAP}
  s_cmp_gt_u32 s{sCin}, 32
  s_cselect_b32 s{sFl}, 1, s{sFl}
  s_cmp_lt_u32 s{sIt}, {OPT['itcap']}
  s_cselect_b32 s{sFl}, s{sFl}, 0
  s_cmp_lg_u32 s{sFl}, 0
  s_cbranch_scc1 L_loop
  s_cmp_eq_u32 s{sIt}, 0
  s_cbranch_scc1 L_it0""")
    a.label("L_nosig_z")

    RBv = RBR if DMA else Q
    assert vRT4 - Q + 1 >= 14
    R0 = REC[0]
    G0, G1, RR, U = R0, R0 + 4, R0 + 8, T + 4
    XS0, XS1, XR, AG = T + 8, T + 10, T + 12, WW[0]
    assert RK[1] == T + 13 and WW[0] % 2 == 0
    vMoff, vLin, vOw, vOr = vCarIdx, vI6, vI1, vI4
    a(f"""
  v_and_b32 {v(T)}, 63, v0
  s_mul_i32 s{sX}, s{sW}, 3584
  s_add_u32 s{sX}, s{sX}, {RB_OFF}
  v_lshl_add_u32 {v(T+1)}, {v(T)}, 3, s{sX}
  v_lshlrev_b32 {v(vLin)}, 4, {v(T)}
  v_bfe_u32 {v(T+2)}, v0, 4, 2
  v_and_b32 {v(T+3)}, 15, v0
  v_lshlrev_b32 {v(T+2)}, 3, {v(T+2)}
  v_lshl_add_u32 {v(vMoff)}, {v(T+3)}, 5, {v(T+2)}
  s_mul_i32 s{sX}, s{sW}, 6400
  s_add_u32 s{sX}, s{sX}, s{sIns}
  s_add_u32 s{sX}, s{sX}, 15
  s_and_b32 s{sX}, s{sX}, -16
  v_add_u32 {v(vOw)}, s{sX}, {v(vMoff)}
  v_add_u32 {v(vOr)}, s{sX}, {v(vLin)}
  v_cmp_gt_u32 {s(sT,2)}, 8, {v(T+3)}""")
    for h in range(0 if DMA else 7):
        a(f"  ds_read_b64 {v(RBv+2*h,2)}, {v(T+1)} offset:{h*512}")
    if DMA: a(f"  s_mov_b32 s{sCnt[0]}, s{sX}")
    def s0(tl):
        x = ACC[tl]
        a(f"""
  v_cvt_pk_bf16_f32 {v(Da)}, {v(x)}, {v(x+1)}
  v_cvt_pk_bf16_f32 {v(Da+1)}, {v(x+2)}, {v(x+3)}
  s_nop 1
  v_mfma_f32_16x16x16_bf16 {v(x,4)}, {v(WD,2)}, {v(Da,2)}, 0""")
    fo = [("g", t - NT) for t in range(NT - D, NT)]
    def fwait(x): return len(fo) - 1 - fo.index(x)
    def s1(p):
        b = RBv + (p & ~1)
        w0, w1 = (WS0, WS1) if p % 2 == 0 else (XS0, XS1)
        a(f"""
  v_mfma_f32_16x16x16_bf16 {v(G0,4)}, {v(w0,2)}, {v(b,2)}, 0
  v_mfma_f32_16x16x16_bf16 {v(G1,4)}, {v(w1,2)}, {v(b,2)}, 0""")
    def s2(p):
        t0 = ACC[2*p]; t1 = ACC[2*p+1] if 2*p+1 < NT else ACC[2*p]
        for r in range(4): a(f"  v_mul_f32 {v(U+r)}, {v(t0+r)}, {v(G0+r)}")
        for r in range(4): a(f"  v_mul_f32_dpp {v(U+r)}, {v(t1+r)}, {v(G0+r)} row_ror:8 row_mask:0xf bank_mask:0xc")
        for r in range(4): a(f"  v_fmac_f32_dpp {v(U+r)}, {v(t0+r)}, {v(G1+r)} row_ror:8 row_mask:0xf bank_mask:0x3")
        for r in range(4): a(f"  v_fmac_f32_dpp {v(U+r)}, {v(t1+r)}, {v(G1+r)} quad_perm:[0,1,2,3] row_mask:0xf bank_mask:0xc")
        a(f"""
  v_cvt_pk_bf16_f32 {v(AG)}, {v(U)}, {v(U+1)}
  v_cvt_pk_bf16_f32 {v(AG+1)}, {v(U+2)}, {v(U+3)}
  v_mfma_f32_16x16x16_bf16 {v(RR,4)}, {v(WR if p % 2 == 0 else XR,2)}, {v(RBv + (p & ~1),2)}, 0""")
        if p + 1 < 13: s1(p + 1)
        else: a("  s_nop 0")
        a(f"  v_mfma_f32_16x16x16_bf16 {v(U,4)}, {v(WUP,2)}, {v(AG,2)}, 0")
    def s3(p):
        x = ACC[2*p]; m_ = MM[p]
        a(f"""
  v_lshlrev_b32 {v(x)}, 16, {v(m_)}
  v_and_b32 {v(x+1)}, 0xffff0000, {v(m_)}
  v_lshlrev_b32 {v(x+2)}, 16, {v(m_+1)}
  v_and_b32 {v(x+3)}, 0xffff0000, {v(m_+1)}""")
        if p == 12: a("  s_nop 3")
        a(f"""
  v_pk_fma_f32 {v(x,2)}, {v(U,2)}, {v(RR,2)}, {v(x,2)}
  v_pk_fma_f32 {v(x+2,2)}, {v(U+2,2)}, {v(RR+2,2)}, {v(x+2,2)}
  v_cvt_pk_bf16_f32 {v(x)}, {v(x)}, {v(x+1)}
  v_cvt_pk_bf16_f32 {v(x+1)}, {v(x+2)}, {v(x+3)}""")
        if p == 12: a(f"  s_mov_b64 exec, {s(sT,2)}")
        a(f"  ds_write_b64 {v(vOw)}, {v(x,2)} offset:{p*512}")
        if p == 12: a(f"  s_mov_b64 exec, -1")
        if p % 2 == 1 or p == 12:
            r = p // 2
            a(f"  ds_read_b128 {v(ACC[4*r+1 if r < 6 else 23],4)}, {v(vOr)} offset:{r*1024}")
    def s4(r):
        a(f"  buffer_store_dwordx4 {v(ACC[4*r+1 if r < 6 else 23],4)}, {v(vLin)}, {s(sOUT,4)}, s{sEb if r < 4 else sEb2} offen offset:{(r%4)*1024}{POL[OPT['opol']]}")
        fo.append(("st", r))
    xw = {}
    ready = []
    for t in range(NT + D + 2):
        def x3():
            a(f"  s_cmp_lg_u32 s{sCin}, 0\n  s_cbranch_scc1 L_x3")
            a.label("L_x3_back")
            xw[3] = len(fo) - xw[2]
        if t == 6 and not DMA: x3()
        if t < NT + D: step_top(t, False)
        else: a(f"  ; ---- tail {t}\n  s_waitcnt lgkmcnt(0)")
        if t < NT + D:
            mk = step_a(t, fwait(("g", t - D)))
            if t < NT: fo.append(("g", t))
        prio("fp", OPT["fprio"], t)
        if t in (0, 3):
            n = 1 if t == 0 else 2
            a(f"  s_cmp_lg_u32 s{sCin}, 0\n  s_cbranch_scc1 L_x{n}")
            a.label(f"L_x{n}_back")
            xw[n] = len(fo)
        if t == NT: stamp(a, 252, 4)
        if t == NT + D: stamp(a, 252, 5)
        if SOFT and t == 2: bread()
        if SOFT and t == 3: bwait("fin")
        if t == 4:
            a(f"""
  v_mov_b32 {v(XS0)}, 0
  v_mov_b32 {v(XS0+1)}, {v(WS0)}
  v_mov_b32 {v(XS1)}, 0
  v_mov_b32 {v(XS1+1)}, {v(WS1)}
  v_mov_b32 {v(XR)}, 0
  v_mov_b32 {v(XR+1)}, {v(WR)}""")
        if t == 5: s1(0)
        ts2 = {2*p+7 if p < 12 else 30: p for p in range(13)}
        if t - 2 in ts2 and (ts2[t-2] % 2 == 1): ready.append(ts2[t-2] // 2)
        if t >= OPT["late"]:
            while ready: s4(ready.pop(0))
        if t - 1 in ts2: s3(ts2[t-1])
        if t in ts2: s2(ts2[t])
        if t == 2:
            a(f"  s_cmp_ge_u32 s{sKo}, s{sIt}\n  s_mov_b32 s{sKo}, -1\n  s_cbranch_scc1 L_mld")
            a.label("L_mld_back2")
        if t < NT + D: step_b(t, mk, False)
        if t == NT + D - 1: a("  s_nop 3")
    a("  s_waitcnt lgkmcnt(0)")
    s4(6)
    stamp(a, 252, 6)
    if OPT["stamp"]: a("  s_waitcnt vmcnt(0)")
    stamp(a, 252, 7); stamp(a, 252, 63, "s_memrealtime")
    if OPT["stamp"] == 1: a(f"  v_writelane_b32 v13, s{sIt}, 61")
    stamp_out(a, 252, sWS, 8, STAMPOFF + 0x200000, 253)
    a.label("L_end")
    a("  s_endpgm")

    sSm, sS2 = sMk
    a.label("L_x1")
    a(f"""
  v_cmp_gt_u32 vcc, s{sCin}, {v(vSlot)}
  v_lshlrev_b32 {v(T)}, 3, {v(vSlot)}
  s_nop 0
  v_cndmask_b32 {v(T)}, {v(vOOB)}, {v(T)}, vcc
  buffer_load_dwordx2 {v(AG,2)}, {v(T)}, {s(sCAR,4)}, s{sCarR} offen sc1
  s_branch L_x1_back""")
    a.label("L_x2")
    a(f"""
  s_mul_i32 s{sX}, s{sW}, {NT}
  s_waitcnt vmcnt({xw[2] - xw[1]})
  v_min_i32 {v(U)}, {v(AG)}, {v(AG+1)}
  v_cmp_gt_i32 vcc, 0, {v(AG)}
  v_bfe_u32 {v(U+2)}, {v(U)}, 23, 8
  v_subrev_u32 {v(U+2)}, s{sX}, {v(U+2)}
  v_cndmask_b32_sdwa {v(U+1)}, {v(AG)}, {v(AG+1)}, vcc dst_sel:WORD_1 dst_unused:UNUSED_PAD src0_sel:WORD_1 src1_sel:WORD_0
  v_cmp_gt_i32 {s(sS2,2)}, 0, {v(U)}
  v_cmp_gt_u32 {s(sSm,2)}, {NT}, {v(U+2)}
  s_and_b64 vcc, {s(sSm,2)}, {s(sS2,2)}
  s_cselect_b32 s{sCin}, s{sCin}, 0
  s_cbranch_scc0 L_x2_back
  v_and_or_b32 {v(T)}, {v(U)}, {v(vSent)}, {v(vHalf)}
  v_mul_f32 {v(U+1)}, {v(U+1)}, {v(vFreq)}
  s_mov_b32 m0, s{sCnt[0]}
  v_cndmask_b32 {v(T)}, {v(vSent)}, {v(T)}, vcc
  buffer_load_dwordx4 {(v(T) + ", " + s(sM,4) + ", 0 idxen lds") if DMA else (v(RR,4) + ", " + v(T) + ", " + s(sM,4) + ", 0 idxen")}
  v_cndmask_b32 {v(U+2)}, {v(vOOB)}, {v(U+2)}, vcc
  v_cos_f32 {v(U+1)}, {v(U+1)}
  v_and_b32 {v(U+3)}, 14, {v(U)}
  v_lshl_add_u32 {v(U+3)}, {v(U+3)}, {0 if (DMA or STR) else 3}, {v(vSst)}
  v_cvt_pk_bf16_f32 {v(U+1)}, {v(U+1)}, {v(U+1)}
  s_branch L_x2_back""")
    a.label("L_x3")
    a(f"  s_waitcnt vmcnt({xw[3]})")
    if DMA:
        a(f"  v_lshrrev_b32 {v(T)}, 1, {v(vLin)}\n  v_add_u32 {v(T)}, s{sCnt[0]}, {v(T)}")
        tr(P, T, 0)
    else:
        a(f"""
  v_mfma_f32_16x16x32_bf16 {v(Da,4)}, {v(RR,4)}, {v(Wa,4)}, 0
  v_mfma_f32_16x16x32_bf16 {v(Db,4)}, {v(RR,4)}, {v(Wb,4)}, 0
  s_nop 6""")
        cstage_cvt()
    for t in range(NT):
        a(f"""
  v_cmp_eq_u32 vcc, {t}, {v(U+2)}
  s_cbranch_vccz L_x3_{t}
  s_mov_b64 exec, vcc
  ds_write_b16 {v(U+3)}, {v(U+1)}
  s_mov_b64 exec, -1""")
        sread()
        a(f"""
  s_mov_b64 exec, vcc
  ds_write_b16 {v(U+3)}, {v(vZ)}
  s_mov_b64 exec, -1
  s_waitcnt lgkmcnt(0)""")
        cstage_m2(t)
        a.label(f"L_x3_{t}")
    a("  s_branch L_x3_back")
    a.label("L_mld")
    a(f"""
  v_bfe_u32 {v(T)}, v0, 4, 2
  v_and_b32 {v(T+1)}, 15, v0
  v_lshlrev_b32 {v(T)}, 3, {v(T)}
  v_lshl_add_u32 {v(T)}, {v(T+1)}, 5, {v(T)}""")
    for p in range(13):
        a(f"  buffer_load_dwordx2 {v(MM[p],2)}, {v(T)}, {s(sMW,4)}, s{sEb if p < 8 else sEb2} offen offset:{(p%8)*512}")
    a(f"  s_cmp_eq_u32 s{sKo}, -1\n  s_cbranch_scc1 L_mld_back2\n  s_branch L_mld_back1")
    a.label("L_it0")
    signal_all("z0", 0)
    a("  s_branch L_nosig_z")
    a.label("L_sig")
    signal_all("b1", nsig)
    a("  s_branch L_nosig_b0")
    rep = f"  s_and_b32 s{sX}, s2, {OPT['nrep']-1}\n  s_lshl_b32 s{sX}, s{sX}, 10"
    a.label("L_ldc")
    a(f"  v_lshlrev_b32 {v(FO)}, 4, v0")
    a(rep)
    a(flag_load(FC, FO))
    a("  s_branch L_ldc_back")
    a.label("L_chkc")
    back = "L_arr_back" if OPT["soft"] else "L_turn2"
    if OPT["soft"]:
        a(f"""
  s_waitcnt vmcnt({TAR - TLD})
  s_cmp_eq_u32 s{sDid}, 1
  s_mov_b32 s{sDid}, 0
  s_cbranch_scc1 L_arr_back""")
    else: a(f"  s_waitcnt vmcnt({NT - 1 - (INS0 + 18)})")
    a(flag_cond(FC, 4))
    a(f"  s_cbranch_vccz {back}")
    a(rep)
    poll("c", flag_load(FC, FO), flag_cond(FC, 4), OPT["nap"])
    a(f"  s_branch {back}")
    if OPT["soft"]:
        a.label("L_anap")
        a("  s_sleep 1\n  s_sub_u32 s81, s81, 1\n  s_cbranch_scc0 L_aspin\n  s_endpgm")
        for tag in ("lp", "fin"):
            a.label(f"L_bspin_{tag}")
            a(f"""
  s_sleep 1
  s_sub_u32 s81, s81, 1
  s_cbranch_scc1 L_end
  ds_read_b32 {v(T+8)}, {v(T+9)} offset:4
  s_waitcnt lgkmcnt(0)
  v_readfirstlane_b32 s{sX}, {v(T+8)}
  s_cmp_lt_u32 s{sX}, s{sTg}
  s_cbranch_scc1 L_bspin_{tag}
  s_branch L_bok_{tag}""")
    a.label("L_borrow")
    QL = Q + OPT['keff'] - 3
    a(f"""
  v_lshrrev_b32 {v(T)}, 16, {v(QL)}
  v_cmp_eq_u32 vcc, 0, {v(nA)}
  v_subrev_u32 {v(T+1)}, {OPT['lim']}, {v(T)}
  v_and_b32 {v(T+2)}, 0xffff, {v(QL)}
  v_max_i32 {v(T+1)}, 0, {v(T+1)}
  v_cndmask_b32 {v(T+1)}, {v(vZ)}, {v(T+1)}, vcc
  v_add_u32 {v(T+2)}, {v(T+2)}, {v(T)}
  v_sub_u32 {v(T+2)}, {v(T+2)}, {v(T+1)}
  v_cndmask_b32 {v(sA)}, {v(sA)}, {v(T+2)}, vcc
  v_add_u32 {v(nA)}, {v(nA)}, {v(T+1)}
  v_lshlrev_b32 {v(T+1)}, 16, {v(T+1)}
  v_sub_u32 {v(QL)}, {v(QL)}, {v(T+1)}
  s_branch L_borrow_back""")
    for u in range(16):
        a.label(f"L_two_{u}")
        a(f"""
  v_sub_co_u32_dpp {v(T+6)}, vcc, {v(vR0)}, {v(vI1)} {bc(u)}
  v_add_u32_dpp {v(T+6)}, {v(vA6)}, {v(vI6)} {bc(u)}
  s_nop 0
  v_cndmask_b32 {v(T+4)}, {v(T+6)}, {v(T+4)}, vcc
  s_branch L_two_back_{u}""")
    a.label("L_allfirst")
    a(f"  s_mov_b32 s{sY}, s{sSo}")
    for r in range(NB + N1, NS): st(r)
    a(f"  s_mov_b32 s{sSo}, s{sY}\n  s_waitcnt vmcnt(0)\n  s_barrier\n{flag3}\n  s_branch L_allfirst_back")
    if PW:
        sDone, sNew = 76, 77
        mk2 = lambda u: 72 + 2 * (u // 8)
        a.label("L_gen")
        a(f"  s_mov_b64 s[78:79], vcc")
        for r in range(nx3, NS): st(r)
        a(f"  s_mov_b32 s{sDone}, 0\n  s_mov_b32 s{sY}, {OPT['spin']}")
        for r in range(nx3, NS): zero_acc(sdt(r))
        a("  s_waitcnt lgkmcnt(0)\n  s_barrier")
        stamp(a, 252, 1)
        set_flag("gen")
        a("  s_mov_b64 vcc, s[78:79]")
        a.label("L_gen_loop")
        a(f"""
  s_or_b32 s{sNew}, vcc_lo, vcc_hi
  s_lshr_b32 s{sX}, s{sNew}, 8
  s_or_b32 s{sNew}, s{sNew}, s{sX}
  s_or_b32 s{sNew}, s{sNew}, s{sDone}
  s_andn2_b32 s{sNew}, 0xff, s{sNew}
  s_cbranch_scc1 L_gen_take
  s_sleep {OPT['nap']}""")
        a(own_ld)
        a("  s_waitcnt vmcnt(0)")
        a(own_cd)
        a(f"""
  s_sub_u32 s{sY}, s{sY}, 1
  s_cbranch_scc0 L_gen_loop
  s_mov_b64 vcc, 0
  s_branch L_gen_loop""")
        a.label("L_gen_take")
        def each(stage, fn):
            for x in range(8):
                a(f"  s_bitcmp1_b32 s{sNew}, {x}\n  s_cbranch_scc0 L_gen_{stage}{x}")
                fn(x, [x, x + 8])
                a.label(f"L_gen_{stage}{x}")
        each("a", lambda x, us: [a(f"  buffer_load_dwordx2 {v(REC[u],2)}, {v(REC[u])}, {s(sREC,4)}, 0 offen{RPOL}") for u in us])
        a("  s_waitcnt vmcnt(0)")
        a(own_ld)
        each("b", lambda x, us: gins1(us, mk2))
        a("  s_waitcnt lgkmcnt(0)")
        def third(x, us):
            for u in us: a(f"  v_cmp_gt_i32 {s(mk2(u),2)}, 0, {v(REC[u]+1)}")
            gins2(us, mk2, f"g{x}")
        each("c", third)
        a(f"""
  s_or_b32 s{sDone}, s{sDone}, s{sNew}
  s_waitcnt vmcnt(0)
  s_cmp_eq_u32 s{sDone}, 0xff
  s_cbranch_scc1 L_gen_done""")
        a(own_cd)
        a("  s_branch L_gen_loop")
    for g, us, mk in slowg:
        a.label(f"L_pslow_{g}")
        for u in us:
            a(f"""
  s_mov_b64 exec, {s(mk(u),2)}
  v_cmp_lt_u32 vcc, 63, {v(PRK(u))}
  s_cbranch_vccz L_pskip_{g}_{u}
  s_andn2_b64 {s(mk(u),2)}, {s(mk(u),2)}, vcc
  s_mov_b64 exec, vcc
  ds_add_rtn_u32 {v(T+1)}, {v(vCtlN)}, {v(vOne)}
  s_waitcnt lgkmcnt(0)
  v_lshlrev_b32 {v(T+1)}, 3, {v(T+1)}
  buffer_store_dwordx2 {v(REC[u],2)}, {v(T+1)}, {s(sCAR,4)}, s{sCarW} offen
  s_waitcnt vmcnt(0)""")
            a.label(f"L_pskip_{g}_{u}")
        a(f"  s_mov_b64 exec, -1\n  s_branch L_pback_{g}")
    for tag in ("lp",):
        a.label(f"L_slow_{tag}")
        a(f"  s_mov_b32 s{sX}, 512")
        a.label(f"L_slow_loop_{tag}")
        a(f"""
  v_add_u32 {v(T+1)}, s{sX}, {v(vCarIdx)}
  v_cmp_gt_u32 vcc, s{sCin}, {v(T+1)}
  v_lshlrev_b32 {v(T+1)}, 3, {v(T+1)}
  s_nop 0
  v_cndmask_b32 {v(T+1)}, {v(vOOB)}, {v(T+1)}, vcc
  buffer_load_dwordx2 {v(LR(16),2)}, {v(T+1)}, {s(sCAR,4)}, s{sCarR} offen sc1
  s_waitcnt vmcnt(0)""")
        ins1(16, "0", 0)
        a("  s_waitcnt lgkmcnt(0)")
        ins2(16, "sl" + tag, 0)
        a(f"""
  s_add_u32 s{sX}, s{sX}, 512
  s_cmp_lt_u32 s{sX}, s{sCin}
  s_cbranch_scc1 L_slow_loop_{tag}
  s_waitcnt vmcnt(0)
  s_branch L_slow_back_{tag}""")
    for lab, u, p in rare:
        a.label(f"L_rare_{lab}")
        a(f"""
  s_mov_b64 exec, vcc
  ds_add_rtn_u32 {v(RK[p])}, {v(vCtlN)}, {v(vOne)}
  s_mov_b32 s83, 1
  s_waitcnt lgkmcnt(0)
  v_lshlrev_b32 {v(RK[p])}, 3, {v(RK[p])}
  buffer_store_dwordx2 {v(NW[p],2)}, {v(RK[p])}, {s(sCAR,4)}, s{sCarW} offen
  s_andn2_b64 exec, {s(sMk[p],2)}, vcc
  s_branch L_back_{lab}""")
    a.label("L_code_end")
    return NV

def kd(name, nv, ns):
    nv4 = (nv + 3) // 4 * 4
    return f""".amdhsa_kernel {name}
  .amdhsa_next_free_vgpr {nv}
  .amdhsa_next_free_sgpr {ns}
  .amdhsa_accum_offset {nv4}
  .amdhsa_group_segment_fixed_size 0
  .amdhsa_kernarg_size 112
  .amdhsa_user_sgpr_count 2
  .amdhsa_user_sgpr_kernarg_segment_ptr 1
  .amdhsa_system_sgpr_workgroup_id_x 1
  .amdhsa_float_denorm_mode_32 3
.end_amdhsa_kernel
"""

DOC = '; ---------------------------------------------------------------------------------------------\n;          in d_ws that every workgroup clears first; the zeroed d_debug counters confirm the clear).\n; ---------------------------------------------------------------------------------------------\n'

def main():
    out = sys.argv[1]
    ref = open(f"cdna_kernels/{NAME}.s.ref").read().split("\n")
    head = [l for l in ref if l.startswith(";") and "@launch" not in l and "Override" not in l and "grid=ceil" not in l]
    a = Asm()
    a(".amdgcn_target \"amdgcn-amd-amdhsa--gfx950\"\n.text")
    a(f".globl {NAME}_kernel\n.type {NAME}_kernel,@function")
    nv = gen_p2(a)
    errs = a.check()
    for e in errs: print("HAZARD", e)
    txt = "\n".join(head) + "\n"
    kern = f"kernel={NAME}_kernel " if OPT["list"] else ""
    txt += f"; @launch {kern}grid=(256,1,1) block=(512,1,1) lds={P1_LDS}\n"
    if OPT["probe"] >= 0:
        txt += "; @launch kernel=probe_kernel grid=(1,1,1) block=(64,1,1) lds=0\n"
        a(f"""
.p2align 8
probe_kernel:
  s_cmp_ge_u32 s2, 1
  s_cbranch_scc1 P_end
  s_load_dwordx2 s[4:5], s[0:1], 96
  s_waitcnt lgkmcnt(0)
  s_load_dwordx8 s[8:15], s[4:5], 0
  s_memrealtime s[16:17]
  s_waitcnt lgkmcnt(0)
  s_not_b32 s8, s8
  s_sub_u32 s20, s{8 + OPT['probe']}, s8
  {"s_lshr_b32 s20, s%d, 4" % (8 + OPT['probe']) if OPT['probe'] in (5, 7) else "s_nop 0"}
  s_min_u32 s20, s20, 20000
P_loop:
  s_memrealtime s[18:19]
  s_waitcnt lgkmcnt(0)
  s_sub_u32 s21, s18, s16
  s_cmp_lt_u32 s21, s20
  s_cbranch_scc1 P_loop
P_end:
  s_endpgm""")
    txt += DOC + a.text()
    txt += ".section .rodata,\"a\"\n.p2align 6\n" + kd(NAME + "_kernel", 256, 102) + (".p2align 6\n" + kd("probe_kernel", 8, 32) if OPT["probe"] >= 0 else "")
    open(out, "w").write(txt)
    print("vgprs p2:", nv, "lines:", len(a.lines), "hazards:", len(errs))

main()
```

```python
import sys, os
sys.path.insert(0, os.path.dirname(__file__))
from asmlib import Asm

NAME = "gather_scatter__molecular_angular_gemnet__graph"
E = 400000
NCH, CH = 250, 25600
EB = 1568
K = 6
MJ = 2739138
TABOFF = 0x2800000
CAROFF = 0x3000000
CARCAP = 9216
CARLIST = CARCAP * 8
STAMPOFF = 0x6000000
FLGOFF = 0x2c00000
OPT = dict(kmax=5, nopre=0, dn=1, gi=10, soft=0, ta=21, dsh=0, pw=0, mstep=18, late=0, mpf=0, gprio=0, str=0, uni=1, lead=2, pm2=1, eb=4, nrep=4, ncn=64, sq=-1, ep=1, bprio=0x1ff, dma=0, fix=1, dum=0, dumm=0, abl_rbf=0, tg=-1, wall=0, cpf=3, wsoff=0, mq=11, rot=0, pf0=0, a0=2, ag=2, early=0, adj=0, probe=-1, tlb=0, cut=-1, opol=1, mpol=0, tq=3, fq=10, keff=6, jid=0, fprio=0x3ffff, lprio=0xfff, napt=8, st0=1, stp=1, rb0=2, nap=8, list=1, nb=7, n1=2, n3=4, nl0=8, smask=0x555, arr=10, spin=60000, rec_pol=2, stamp=0, itcap=400000, ld_nt=7, st_pol=0, mtouch=0, la=4, apre=2, wmain=70000, b5=0, lim=24, nb2=7, ins0=2,
           abl_mfma=0, abl_s=0, abl_cos=0, abl_g=0)
for a in sys.argv[2:]:
    k, v = a.split("=")
    assert k in OPT, k
    OPT[k] = int(v, 0)
MK = -(-(1 << 32) // OPT["wmain"])
assert (399999 * MK) >> 32 <= 5

RPOL = ('', ' nt', ' sc1', ' sc0 sc1')[OPT['rec_pol']]

POL = ('', ' nt', ' sc1', ' sc0 sc1')

def v(i, n=1):
    return f"v{i}" if n == 1 else f"v[{i}:{i+n-1}]"
def s(i, n=1):
    return f"s{i}" if n == 1 else f"s[{i}:{i+n-1}]"

VST = 13
def stamp(a, vreg, lane, op="s_memtime"):
    vreg = VST
    if lane == OPT["cut"]: a("  s_endpgm")
    if not OPT["stamp"]: return
    if OPT["stamp"] == 2:
        mp = {62: (0, 1), 42: (1, 0), 45: (2, 0), 1: (3, 0), 11: (4, 0), 63: (6, 0)}
        if lane == 0:
            a("  s_memtime s[88:89]\n  s_waitcnt lgkmcnt(0)\n  s_mov_b32 s91, s88")
        if lane in (11, 7):
            a(f"  s_memtime s[88:89]\n  s_waitcnt lgkmcnt(0)\n  s_sub_u32 s88, s88, s91\n  v_writelane_b32 v{vreg}, s88, {5 if lane == 11 else 7}")
        if lane not in mp: return
        l, inv = mp[lane]
        a(f"  s_memrealtime s[88:89]\n  s_waitcnt lgkmcnt(0)")
        if inv: a("  s_not_b32 s88, s88")
        a(f"  v_writelane_b32 v{vreg}, s88, {l}")
        return
    a(f"  {op} s[88:89]\n  s_waitcnt lgkmcnt(0)\n  v_writelane_b32 v{vreg}, s88, {lane}")
def stamp_out(a, vreg, wslo, nwaves, base, tmp):
    vreg, tmp = VST, 218
    if not OPT["stamp"]: return
    if OPT["stamp"] == 2:
        back = 512
        a(f"""
  s_load_dwordx2 s[90:91], s[0:1], 96
  s_waitcnt lgkmcnt(0)
  s_add_u32 s92, s90, {back}
  s_addc_u32 s93, s91, 0
  s_mov_b32 s94, 32
  s_mov_b32 s95, 0x20000
  v_lshlrev_b32 v{tmp}, 2, v0
  buffer_atomic_umax v{vreg}, v{tmp}, s[92:95], 0 offen""")
        return
    a(f"  s_mul_i32 s88, s2, {nwaves*256}\n  s_add_u32 s88, s88, {base}")
    srd(a, 92, wslo, wslo+1, "s88", nwaves*256)
    a(f"  v_lshlrev_b32 v{tmp}, 2, v0\n  buffer_store_dword v{vreg}, v{tmp}, s[92:95], 0 offen")

def srd(a, d, lo, hi, add, size):
    if add is None:
        a(f"  s_mov_b32 s{d}, s{lo}\n  s_mov_b32 s{d+1}, s{hi}")
    else:
        a(f"  s_add_u32 s{d}, s{lo}, {add}\n  s_addc_u32 s{d+1}, s{hi}, 0")
    a(f"  s_mov_b32 s{d+2}, {size}\n  s_mov_b32 s{d+3}, 0x20000")

P1_CNT, P1_SENT, P1_TMP, P1_REC = 0, 6144, 6160, 6272
P1_LDS = P1_REC + CH * 6

TS = 264
BUFSZ = 200 * TS
S_OFF = 13 * 8192
DMA = OPT["dma"]
WSTR = 6144 if DMA else 1024
CTL = S_OFF + 8 * WSTR
RB_OFF = CTL + 128
SENT = 0x7ffff0
LAG = 4 if DMA else 5
P2_LDS = RB_OFF + 8 * 3584
D = 5
NT = 25

class RA:
    def __init__(self, start): self.n = start
    def __call__(self, k=1, al=1):
        self.n = (self.n + al - 1) // al * al
        r = self.n; self.n += k
        return r

def gen_p2(a):
    ra = RA(1)
    vSlot, vHalf, vFreq, vSst, vSrd, vI6, vI1, vI4 = (ra() for _ in range(8))
    vRd, vCntA, vOne, vOOB, vCarOff, vCarIdx, v264, vMsk, vCtlN = (ra() for _ in range(9))
    vZ = ra(2, 2)
    Q = ra(6, 4)
    sA, nA, cb, rem, rtot, vA6, vB6, vR0, vRT4 = (ra() for _ in range(9))
    vCnt = ra()
    Wa = ra(4, 4); Wb = ra(4, 4)
    RING = [ra(4, 4) for _ in range(D)]
    Da = ra(4, 4); Db = ra(4, 4); P = ra(4, 4); Sf = ra(4, 4)
    ACC = [ra(4, 4) for _ in range(NT)]
    REC = [ra(2, 4 if i == 0 else 2) for i in range(17)]
    RP = [ra(2, 2), ra(2, 2)]
    T = ra(10, 2)
    TA = [ra(), ra()]; RK = [ra(), ra()]
    WS0 = ra(2, 2); WS1 = ra(2, 2); WR = ra(2, 2); WUP = ra(2, 2)
    CC = [ra() for _ in range(D)]; SA = [ra() for _ in range(D)]
    WW = [ra(), ra()]
    assert ra.n <= 252, ra.n
    NV = ra.n
    sM = 4; sREC = 8; sCAR = 12; sTAB = 16; sOUT = 20; sDIST = 24; sMW = 28
    sJ, sW, sIt, sThr, sIns, sCarW, sCarR, sRb, sCin, sX, sFl, sEb = range(32, 44)
    sCnt = [44, 45]
    sWS = 46
    sPM = 72
    sMk = [72, 74]; sT = 76; sC10 = 78; sCl2 = 80
    sEb2 = 3
    rare = []

    O, I, R, A = 36, 88, 140, 192
    PT = 218
    vFlg, vDum, vTab, vWo, vTwo = range(240, 245)
    vL8, vL4, vSix = WS0 + 1, WS1 + 1, WR + 1
    vL128 = 253
    vL16 = WW[0]
    rDist, rSbf, rUp, rDown, rRbf = A + 4, A + 6, A + 8, A + 10, A + 12
    RBK = [sA, nA, rem, rtot, vA6, vB6, vR0, vRT4, vCnt, 86, 87, 190, 191]
    WDK = [248, 249, WW[1], 217]
    assert Wa == 36 and T == PT
    vSent = vCnt
    assert vCarOff == VST
    DN = OPT["dn"]
    if DN == 1:
        LR = lambda u: REC[u % 3] if u < 16 else REC[5]
        NW = [REC[3], REC[4]]
        TA4, RK4 = TA, RK
    else:
        LR = lambda u: [REC[0], REC[1], REC[2], REC[6], REC[7], REC[8]][u % 6] if u < 16 else REC[5]
        NW = [REC[3], REC[4], REC[9], REC[10]]
        TA4, RK4 = TA + [REC[11], REC[11] + 1], RK + [REC[12], REC[12] + 1]
    sMk4 = [72, 74, 76, 78]
    MM = REC[6:] + [252, 254]
    sIO, sII, sAN, sMT, sTW, sDBG = 4, 8, 12, 16, 20, 24
    sFLG, sRW = 92, 96
    sMJ, sMK, sNEB, sB5, sO4, sO2 = range(80, 86)
    sY, sSo = 100, 101
    nto, nti, nta = (" nt" if OPT["ld_nt"] >> b & 1 else "" for b in range(3))
    NR = 13
    nrec = lambda q: 4 if q < 12 else 2
    vm = []
    def ld_pair(q):
        if q < 12:
            a(f"  buffer_load_dwordx4 {v(O+4*q,4)}, {v(vL16)}, {s(sIO,4)}, s{sO4} offen{nto}")
            a(f"  buffer_load_dwordx4 {v(I+4*q,4)}, {v(vL16)}, {s(sII,4)}, s{sO4} offen{nti}")
            a(f"  s_add_u32 s{sO4}, s{sO4}, 8192")
        else:
            a(f"  buffer_load_dwordx2 {v(O+48,2)}, {v(vL8)}, {s(sIO,4)}, s{sO4} offen{nto}")
            a(f"  buffer_load_dwordx2 {v(I+48,2)}, {v(vL8)}, {s(sII,4)}, s{sO4} offen{nti}")
        vm.extend([("o", q), ("p", q)])
    def ld_ang(q):
        if q < 12:
            a(f"  buffer_load_dwordx2 {v(A+2*q,2)}, {v(vL8)}, {s(sAN,4)}, s{sO2} offen{nta}")
            a(f"  s_add_u32 s{sO2}, s{sO2}, 4096")
        else: a(f"  buffer_load_dword {v(A+24)}, {v(vL4)}, {s(sAN,4)}, s{sO2} offen{nta}")
        vm.append(("a", q))
    def wait_for(x):
        a(f"  s_waitcnt vmcnt({len(vm) - 1 - vm.index(x)})")
    def poll(tag, load, cond, nap=4):
        a(f"  s_mov_b32 s{sY}, {OPT['spin']}")
        a.label(f"L_poll_{tag}")
        a(load)
        a("  s_waitcnt vmcnt(0)")
        a(cond)
        a(f"""
  s_cbranch_vccz L_polled_{tag}
  s_sleep {nap}
  s_sub_u32 s{sY}, s{sY}, 1
  s_cbranch_scc0 L_poll_{tag}""")
        a.label(f"L_polled_{tag}")

    a(".p2align 8")
    a.label(NAME + "_kernel")
    ncp = [0]
    def cpf(bit, q, first=False):
        if not OPT["cpf"] >> bit & 1: return False
        ncp[0] += 1
        a(f"  s_getpc_b64 s[{q}:{q+1}]")
        a.label(f"L_cp{ncp[0]}")
        a(f"""
  s_sub_u32 s{q}, s{q}, L_cp{ncp[0]}-{NAME}_kernel
  s_subb_u32 s{q+1}, s{q+1}, 0
  s_mov_b32 s{q+2}, L_code_end-{NAME}_kernel
  s_mov_b32 s{q+3}, 0x20000""")
        if first:
            a(f"""
  s_and_b32 s{sY}, s2, 0xf8
  s_lshl_b32 s{sY}, s{sY}, 4
  v_lshl_add_u32 v255, v0, 12, s{sY}""")
        a(f"  buffer_load_dword v254, v255, s[{q}:{q+3}], 0 offen")
        return True
    a(f"""
  s_cmp_ge_u32 s2, 256
  s_cbranch_scc1 L_end
  s_load_dwordx16 s[48:63], s[0:1], 0
  s_load_dwordx4 s[44:47], s[0:1], 96
  s_load_dwordx8 s[64:71], s[0:1], 64""")
    cpf(0, 28, True)
    a(f"""
  v_lshlrev_b32 {v(vL16)}, 4, v0
  s_min_u32 s{sY}, s2, {NCH-1}
  s_mul_i32 s{sX}, s{sY}, {CH*4}
  s_cmp_lt_u32 s2, {NCH}
  s_cselect_b32 s{sFl}, {CH*2}, 0
  s_lshl_b32 s{sIO+2}, s{sFl}, 1
  s_mov_b32 s{sII+2}, s{sIO+2}
  s_mov_b32 s{sIO+3}, 0x20000
  s_mov_b32 s{sII+3}, 0x20000
  s_mov_b32 s{sO4}, 0
  v_mov_b64 {v(PT,2)}, 0
  v_mov_b64 {v(PT+2,2)}, 0
  s_mov_b32 s{sO2}, 0
  ds_write_b128 {v(vL16)}, {v(PT,4)}
  v_lshrrev_b32 {v(T+8)}, 6, v0
  s_and_b32 s{sJ}, s2, 7
  s_lshl_b32 s{sJ}, s{sJ}, 5
  s_lshr_b32 s{sEb}, s2, 3
  s_add_u32 s{sJ}, s{sJ}, s{sEb}
  v_readfirstlane_b32 s{sW}, {v(T+8)}
  v_and_b32 {v(T+7)}, 63, v0
  v_lshlrev_b32 {v(T+6)}, 3, {v(T+7)}
  v_lshlrev_b32 {v(T+7)}, 2, {v(T+7)}
  s_mul_i32 s{sEb}, s{sJ}, {EB*2}
  s_mul_i32 s{sRb}, s{sW}, 400
  s_add_u32 s{sEb}, s{sEb}, s{sRb}
  s_waitcnt lgkmcnt(0)""")
    if OPT["stamp"] == 2: a("  v_mov_b32 v13, 0\n  s_nop 1")
    stamp(a, 252, 0); stamp(a, 252, 62, "s_memrealtime")
    a(f"""
  s_add_u32 s{sIO}, s52, s{sX}
  s_addc_u32 s{sIO+1}, s53, 0
  s_add_u32 s{sII}, s50, s{sX}
  s_addc_u32 s{sII+1}, s51, 0""")
    ld_pair(0)
    if OPT["wsoff"]: a(f"  s_add_u32 s{sWS}, s{sWS}, {OPT['wsoff'] << 20}\n  s_addc_u32 s{sWS+1}, s{sWS+1}, 0")
    srd(a, 28, 54, 55, None, E * 2)
    a(f"""
  buffer_load_dwordx2 {v(rDist,2)}, {v(T+6)}, s[28:31], s{sEb} offen
  global_load_dwordx2 {v(rSbf,2)}, {v(T+6)}, s[64:65]
  global_load_dwordx2 {v(rUp,2)}, {v(T+6)}, s[68:69]
  global_load_dwordx2 {v(rDown,2)}, {v(T+6)}, s[66:67]
  global_load_dword {v(rRbf)}, {v(T+7)}, s[62:63]""")
    vm.extend([("s", i) for i in range(5)])
    ld_pair(1)
    a("  s_barrier")
    LA = OPT["la"]
    for q in range(2, LA): ld_pair(q)
    a(f"  s_lshr_b32 s{sX}, s{sX}, 1")
    srd(a, sAN, 56, 57, f"s{sX}", f"s{sFl}")
    srd(a, sMT, 48, 49, f"s{sX}", f"s{sFl}")
    a(f"  s_mul_i32 s{sX}, s{sY}, {CH*6}\n  s_mul_i32 s{sFl}, s{sFl}, 3")
    srd(a, sRW, sWS, sWS+1, f"s{sX}", f"s{sFl}")
    srd(a, sTW, sWS, sWS+1, TABOFF, 256 * 8192)
    srd(a, sFLG, sWS, sWS+1, FLGOFF, OPT['nrep'] * 1024)
    srd(a, sDBG, 44, 45, None, 256)
    a(f"""
  s_lshl_b32 s{sX}, s2, 2
  v_lshl_add_u32 {v(vFlg)}, v0, 10, s{sX}
  s_cmp_lt_u32 s2, {NCH}
  s_cselect_b32 s{sX}, 0, 4
  v_mov_b32 {v(vDum)}, s{sX}
  buffer_store_dword {v(vDum)}, {v(vFlg)}, {s(sFLG,4)}, 0 offen sc1
  s_lshl_b32 s{sX}, s{sX}, 20
  v_or_b32 {v(vFlg)}, s{sX}, {v(vFlg)}
  s_load_dword s{sCin}, s[60:61], 0
  s_load_dwordx4 s[56:59], s[58:59], 0
  v_lshlrev_b32 {v(vL8)}, 3, v0
  v_lshlrev_b32 {v(vL4)}, 2, v0
  {'v_mov_b32 %s, %d' % (v(vL128), E//8) if OPT['rot'] == 2 else 'v_lshlrev_b32 %s, 7, v0' % v(vL128)}
  v_mov_b32 {v(vSix)}, 6
  v_mov_b32 {v(vTwo)}, 2
  s_mov_b32 s{sMJ}, {MJ}
  s_mov_b32 s{sMK}, {MK}
  s_mov_b32 s{sNEB}, {-EB & 0xffffffff}
  s_mov_b32 s{sB5}, {(-(E//8) & 0xffffffff) if OPT['rot'] else OPT['b5']}
  v_lshrrev_b32 {v(T)}, 6, v0
  v_and_b32 {v(T+2)}, 15, v0
  v_bfe_u32 {v(T+3)}, v0, 5, 1
  v_lshlrev_b32 {v(vHalf)}, 4, {v(T+3)}
  v_lshl_add_u32 {v(cb)}, {v(T)}, 5, {v(vHalf)}
  v_add_u32 {v(cb)}, {v(cb)}, {v(T+2)}
  v_lshlrev_b32 {v(vTab)}, 13, {v(cb)}
  v_and_b32 {v(T+1)}, 63, v0
  v_and_b32 {v(vSlot)}, 31, v0
  v_mov_b64 {v(vZ,2)}, 0
  v_mov_b32 {v(v264)}, {TS}
  v_mov_b32 {v(vCtlN)}, {CTL}
  s_lshl_b32 s{sX}, s{sW}, 10
  s_add_u32 s{sX}, s{sX}, {S_OFF}
  v_lshl_add_u32 {v(vSrd)}, {v(T+1)}, 4, s{sX}
  v_bfe_u32 {v(T+6)}, v0, 2, 2
  v_lshlrev_b32 {v(vSst)}, 8, {v(T+6)}
  v_lshl_add_u32 {v(vSst)}, {v(T+3)}, 7, {v(vSst)}
  v_bfe_u32 {v(T+6)}, v0, 4, 1
  v_lshl_add_u32 {v(vSst)}, {v(T+6)}, 3, {v(vSst)}
  v_and_b32 {v(T+6)}, 3, v0
  v_lshl_add_u32 {v(vSst)}, {v(T+6)}, 1, {v(vSst)}
  v_add_u32 {v(vSst)}, s{sX}, {v(vSst)}
  v_mov_b32 {v(vOne)}, 1
  v_mov_b32 {v(vOOB)}, 0x80000000
  v_mov_b32 {v(vMsk)}, 0x7ffffffc
  v_mul_u32_u24 {v(vI6)}, 6, {v(vSlot)}
  v_add_u32 {v(vI1)}, 1, {v(vSlot)}
  v_lshlrev_b32 {v(vI4)}, 2, {v(vI1)}
  v_mov_b32 {v(T+6)}, {CH}
  v_mul_u32_u24 {v(cb)}, {v(cb)}, {v(T+6)}
  s_mul_i32 s{sX}, s{sW}, {NT*TS}
  s_add_u32 s{sX}, s{sX}, {BUFSZ}
  v_lshl_add_u32 {v(vRd)}, {v(vSlot)}, 3, s{sX}""")
    sRing = 84
    a(f"  v_lshrrev_b32 {v(vHalf)}, 1, {v(vHalf)}")
    STR = OPT["str"] and not DMA
    PM2 = OPT["pm2"] and not DMA
    if STR:
        a(f"""
  s_lshl_b32 s{sY}, s{sW}, 10
  s_add_u32 s{sY}, s{sY}, {S_OFF}
  v_bfe_u32 {v(T+6)}, v0, 2, 1
  v_xor_b32 {v(T+6)}, {v(T+6)}, {v(T+3)}
  v_lshl_add_u32 {v(vSst)}, {v(vSlot)}, 5, s{sY}
  v_lshl_add_u32 {v(vSst)}, {v(T+6)}, 4, {v(vSst)}
  v_and_b32 {v(T+6)}, 16, v0
  v_lshl_add_u32 {v(vSrd)}, {v(T+1)}, 3, s{sY}
  v_xor_b32 {v(vSrd)}, {v(vSrd)}, {v(T+6)}""")
    if DMA:
        a(f"""
  v_bfe_u32 {v(vSlot)}, v0, 1, 5
  v_lshl_add_u32 {v(vRd)}, {v(vSlot)}, 3, s{sX}
  v_and_b32 {v(T+3)}, 1, v0
  v_lshlrev_b32 {v(vHalf)}, 3, {v(T+3)}
  s_mul_i32 s{sY}, s{sW}, {WSTR}
  s_add_u32 s{sY}, s{sY}, {S_OFF}
  v_lshl_add_u32 {v(vSst)}, {v(T+1)}, 4, s{sY}
  v_lshl_add_u32 {v(vSrd)}, {v(T+1)}, 3, s{sY}""")
    a(f"""
  v_min_u32 {v(T+6)}, {NT-1}, {v(T+1)}
  v_mad_u32_u24 {v(vCntA)}, {v(T+6)}, {v(v264)}, s{sX}
  v_sub_u32 {v(vCarIdx)}, 511, v0
  v_cmp_eq_u32 vcc, 1, {v(T+3)}
  s_waitcnt lgkmcnt(0)
  s_lshl_b32 s{sX}, s{sCin}, 16
  s_and_b32 s{sCin}, s{sCin}, 0xffff0000
  v_mov_b32 {v(vFreq)}, s{sX}
  v_mov_b32 {v(T+6)}, s{sCin}
  v_cndmask_b32 {v(vFreq)}, {v(vFreq)}, {v(T+6)}, vcc
  v_mul_f32 {v(vFreq)}, 0.15915494, {v(vFreq)}
  s_mov_b32 s{sIt}, -1
  s_mov_b32 s{sIns}, 0
  s_mov_b32 s{sCarW}, 0
  s_mov_b32 s{sCarR}, {CARLIST}
  s_mul_i32 s{sEb}, s{sJ}, {EB}
  s_mul_i32 s{sX}, s{sW}, 200
  s_add_u32 s{sFl}, s{sEb}, {EB}
  s_add_u32 s{sEb}, s{sEb}, s{sX}
  s_add_u32 s{sRb}, s{sEb}, 200
  s_min_u32 s{sRb}, s{sRb}, s{sFl}
  s_min_u32 s{sRb}, s{sRb}, {E}
  s_lshl_b32 s{sRb}, s{sRb}, 5
  s_lshl_b32 s{sEb}, s{sEb}, 5
  s_add_u32 s{sEb2}, s{sEb}, 4096""")

    if OPT["tlb"]:
        sh = OPT["tlb"]
        srd(a, 28, sWS, sWS+1, None, FLGOFF + 8192)
        a(f"  v_lshlrev_b32 v249, {sh}, v0\n  buffer_load_dword v248, v249, s[28:31], 0 offen")
        srd(a, 28, 48, 49, None, E * 32)
        a(f"  buffer_load_dword v248, v249, s[28:31], 0 offen")
        srd(a, 28, 70, 71, None, E * 32)
        a(f"  buffer_load_dword v248, v249, s[28:31], 0 offen")
        vm.extend([("tlb", i) for i in range(3)])
    a(f"""
  s_cmp_ge_u32 s2, {NCH}
  s_cbranch_scc1 L_nochunk1""")
    vm.append(("flg", 0))
    arrive = f"""
  s_and_b32 s{sY}, s2, 15
  s_lshl_b32 s{sY}, s{sY}, 4
  v_lshlrev_b32 {v(PT)}, 8, v0
  buffer_atomic_add {v(vOne)}, {v(PT)}, {s(sDBG,4)}, s{sY} offen"""
    def hist(idx):
        if OPT["b5"]:
            for x, i in enumerate(idx): a(f"  v_cmp_le_u32 {s(72+2*x,2)}, s{sB5}, {v(I+i)}")
        for x, i in enumerate(idx): a(f"  v_mul_hi_u32_u24 {v(PT+x)}, s{sMJ}, {v(O+i)}")
        if OPT["rot"] == 2:
            for x, i in enumerate(idx): a(f"  v_lshrrev_b32 {v(PT+4+x)}, 5, {v(PT+x)}")
            for x, i in enumerate(idx): a(f"  v_mad_i32_i24 {v(PT+4+x)}, {v(PT+4+x)}, s{sB5}, {v(I+i)}")
            for x, i in enumerate(idx): a(f"  v_cmp_gt_u32 {s(72+2*x,2)}, {v(vL128)}, {v(PT+4+x)}")
            for x, i in enumerate(idx): a(f"  v_ashrrev_i32 {v(PT+4+x)}, 31, {v(PT+4+x)}")
            for x, i in enumerate(idx): a(f"  v_and_b32 {v(PT+4+x)}, {v(vL128)}, {v(PT+4+x)}")
            for x, i in enumerate(idx): a(f"  v_add3_u32 {v(PT+4+x)}, {v(PT+4+x)}, s{sB5}, {v(I+i)}")
            for x, i in enumerate(idx): a(f"  v_mul_hi_u32_u24 {v(PT+4+x)}, s{sMK}, {v(PT+4+x)}")
            for x, i in enumerate(idx): a(f"  v_cndmask_b32 {v(PT+4+x)}, {v(PT+4+x)}, 5, {s(72+2*x,2)}")
        elif OPT["rot"]:
            for x, i in enumerate(idx): a(f"  v_lshrrev_b32 {v(PT+4+x)}, 5, {v(PT+x)}")
            for x, i in enumerate(idx): a(f"  v_mad_i32_i24 {v(PT+4+x)}, {v(PT+4+x)}, s{sB5}, {v(I+i)}")
            for x, i in enumerate(idx): a(f"  v_add_u32 {v(PT+8+x)}, {E - E//8}, {v(PT+4+x)}")
            for x, i in enumerate(idx): a(f"  v_add_u32 {v(PT+4+x)}, s{sB5}, {v(PT+4+x)}")
            for x, i in enumerate(idx): a(f"  v_min_u32 {v(PT+4+x)}, {v(PT+4+x)}, {v(PT+8+x)}")
            for x, i in enumerate(idx): a(f"  v_mul_hi_u32_u24 {v(PT+4+x)}, s{sMK}, {v(PT+4+x)}")
        else:
            for x, i in enumerate(idx): a(f"  v_mul_hi_u32_u24 {v(PT+4+x)}, s{sMK}, {v(I+i)}")
        if OPT["b5"]:
            for x, i in enumerate(idx): a(f"  v_cndmask_b32 {v(PT+4+x)}, {v(PT+4+x)}, 5, {s(72+2*x,2)}")
        for x, i in enumerate(idx): a(f"  v_mad_i32_i24 {v(PT+8+x)}, {v(PT+x)}, s{sNEB}, {v(O+i)}")
        for x, i in enumerate(idx): a(f"  v_lshl_add_u32 {v(O+i)}, {v(PT+4+x)}, 8, {v(PT+x)}")
        for x, i in enumerate(idx): a(f"  v_lshlrev_b32 {v(O+i)}, 2, {v(O+i)}")
        for x, i in enumerate(idx): a(f"  ds_add_rtn_u32 {v(R+i)}, {v(O+i)}, {v(vOne)}")
        for x, i in enumerate(idx): a(f"  v_and_b32 {v(PT+x)}, 7, {v(PT+8+x)}")
        for x, i in enumerate(idx): a(f"  v_lshl_or_b32 {v(I+i)}, {v(I+i)}, 3, {v(PT+x)}")
        for x, i in enumerate(idx): a(f"  v_lshrrev_b32 {v(PT+8+x)}, 3, {v(PT+8+x)}")
        for x, i in enumerate(idx): a(f"  v_lshl_or_b32 {v(I+i)}, {v(I+i)}, 1, {v(vOOB)}")
        for x, i in enumerate(idx): a(f"  v_lshl_or_b32 {v(I+i)}, {v(PT+8+x)}, 23, {v(I+i)}")
    def prep(piece):
        Z = R + 24
        aW, aD, aS, aR, aN, gq = Z, Z + 1, Z + 2, Z + 3, Z + 4, Z + 5
        CEN = Z + 6; H = Z + 8; Y = Z + 16
        if piece == 0:
            a(f"""
  s_lshl_b32 s{sX}, s{sW}, 12
  s_add_u32 s{sX}, s{sX}, 8192
  v_and_b32 {v(gq)}, 63, v0
  v_lshl_add_u32 {v(aW)}, {v(gq)}, 3, s{sX}
  v_lshl_add_u32 {v(gq)}, {v(gq)}, 2, s{sX}
  ds_write_b64 {v(aW)}, {v(rDist,2)}
  ds_write_b64 {v(aW)}, {v(rSbf,2)} offset:512
  ds_write_b64 {v(aW)}, {v(rUp,2)} offset:1024
  ds_write_b32 {v(gq)}, {v(rRbf)} offset:1536
  ds_write_b64 {v(aW)}, {v(rDown,2)} offset:2048
  v_and_b32 {v(aD)}, 15, v0
  v_bfe_u32 {v(gq)}, v0, 4, 2
  v_lshl_add_u32 {v(aD)}, {v(aD)}, 1, s{sX}
  v_lshl_add_u32 {v(aS)}, {v(gq)}, 7, {v(aD)}
  v_lshl_add_u32 {v(aR)}, {v(gq)}, 6, {v(aD)}
  v_bfe_u32 {v(aN)}, v0, 5, 1
  v_lshl_add_u32 {v(aN)}, {v(aN)}, 8, {v(aD)}
  ds_read_u16 {v(WS0)}, {v(aS)} offset:512
  ds_read_u16 {v(WS1)}, {v(aS)} offset:{512+32}
  ds_read_u16 {v(Y)}, {v(aS)} offset:{512+64}
  ds_read_u16 {v(Y+1)}, {v(aS)} offset:{512+96}
  ds_read_u16 {v(WUP)}, {v(aS)} offset:1024
  ds_read_u16 {v(Y+2)}, {v(aS)} offset:{1024+32}
  ds_read_u16 {v(WUP+1)}, {v(aS)} offset:{1024+64}
  ds_read_u16 {v(Y+3)}, {v(aS)} offset:{1024+96}
  ds_read_u16 {v(WR)}, {v(aR)} offset:1536
  ds_read_u16 {v(Y+4)}, {v(aR)} offset:{1536+32}""")
            for r in range(4 if DMA else 8): a(f"  ds_read_u16 {v(WDK[r//2] if r % 2 == 0 else H + r//2)}, {v(aS if DMA else aN)} offset:{2048 + r*32}")
            for p in range(13): a(f"  ds_read_u16 {v(RBK[p])}, {v(aD)} offset:{p*32}")
            return
        if piece == 1:
            a(f"""
  v_mov_b32 {v(CEN+1)}, s56
  v_cmp_eq_u32 vcc, 1, {v(gq)}
  v_mov_b32 {v(CEN)}, s57
  v_cmp_eq_u32 {s(sT,2)}, 2, {v(gq)}
  v_cndmask_b32 {v(CEN+1)}, {v(CEN+1)}, {v(CEN)}, vcc
  v_mov_b32 {v(CEN)}, s58
  v_cmp_eq_u32 vcc, 3, {v(gq)}
  v_cndmask_b32 {v(CEN+1)}, {v(CEN+1)}, {v(CEN)}, {s(sT,2)}
  v_mov_b32 {v(CEN)}, s59
  v_cndmask_b32 {v(CEN+1)}, {v(CEN+1)}, {v(CEN)}, vcc
  v_lshlrev_b32 {v(CEN)}, 16, {v(CEN+1)}
  v_and_b32 {v(CEN+1)}, 0xffff0000, {v(CEN+1)}
  s_mov_b32 s56, 0xc1200000
  s_mov_b32 s57, 0xc1200000
  s_mov_b32 s58, 0x3fb8aa3b
  s_mov_b32 s59, 0x3fb8aa3b
  s_waitcnt lgkmcnt(0)
  v_lshl_or_b32 {v(WS0)}, {v(Y)}, 16, {v(WS0)}
  v_lshl_or_b32 {v(WS1)}, {v(Y+1)}, 16, {v(WS1)}
  v_lshl_or_b32 {v(WUP)}, {v(Y+2)}, 16, {v(WUP)}
  v_lshl_or_b32 {v(WUP+1)}, {v(Y+3)}, 16, {v(WUP+1)}
  v_lshl_or_b32 {v(WR)}, {v(Y+4)}, 16, {v(WR)}""")
            for r in range(2 if DMA else 4): a(f"  v_lshl_or_b32 {v(WDK[r])}, {v(H+r)}, 16, {v(WDK[r])}")
        ps = ([0,1,2], [3,4,5,6,7], [8,9,10,11,12])[piece - 1]
        tt = {p: H + 2 * (p - ps[0]) for p in ps}
        def rnd():
            for p in ps: a(f"  v_cvt_pk_bf16_f32 {v(tt[p])}, 0, {v(tt[p])}\n  v_cvt_pk_bf16_f32 {v(tt[p]+1)}, 0, {v(tt[p]+1)}")
        for p in ps: a(f"  v_lshlrev_b32 {v(tt[p])}, 16, {v(RBK[p])}")
        for p in ps: a(f"  v_pk_add_f32 {v(tt[p],2)}, {v(tt[p],2)}, {v(CEN,2)} op_sel_hi:[0,1] neg_lo:[0,1] neg_hi:[0,1]")
        rnd()
        for p in ps: a(f"  v_pk_mul_f32 {v(tt[p],2)}, {v(tt[p],2)}, {v(tt[p],2)}")
        rnd()
        for p in ps: a(f"  v_pk_mul_f32 {v(tt[p],2)}, {v(tt[p],2)}, s[56:57]")
        rnd()
        for p in ps: a(f"  v_pk_mul_f32 {v(tt[p],2)}, {v(tt[p],2)}, s[58:59]")
        for p in ps: a(f"  v_exp_f32 {v(tt[p])}, {v(tt[p])}\n  v_exp_f32 {v(tt[p]+1)}, {v(tt[p]+1)}")
        for p in ps: a(f"  v_cvt_pk_bf16_f32 {v(RBK[p])}, {v(tt[p])}, {v(tt[p]+1)}")
    na = 0
    for q in range(NR):
        wait_for(("p", q))
        if q == 0: stamp(a, 252, 40)
        if q == LA:
            a(arrive); vm.append(("arr", 0))
        if OPT["mtouch"] == 3 and q == OPT["mq"]:
            a(f"  buffer_load_dword v244, {v(vL128)}, {s(sMT,4)}, 0 offen"); vm.append(("m", 0))
        if q + LA < NR: ld_pair(q + LA)
        else:
            for _ in range(2):
                if na < OPT["apre"]: ld_ang(na); na += 1
        hist(list(range(4*q, 4*q + nrec(q))))
        if 1 <= q <= 4: prep(q - 1)
    stamp(a, 252, 41)
    X = v(PT+4)
    PR = A + 4
    assert OPT["apre"] <= 2
    a(f"""
  v_and_b32 {v(PT+8)}, 0x3f0, {v(vL16)}
  v_lshrrev_b32 {v(PT+12)}, 1, v0
  v_and_b32 {v(PT+13)}, 1, v0
  v_lshlrev_b32 {v(PT+12)}, 2, {v(PT+12)}
  v_lshl_add_u32 {v(PT+13)}, {v(PT+13)}, 12, {v(PT+12)}
  s_waitcnt lgkmcnt(0)
  s_barrier
  s_cmp_ge_u32 s{sW}, {K}
  s_cbranch_scc1 L_bin_s2
  ds_read_b128 {v(PT,4)}, {v(vL16)}""")
    for r in range(K - 1): a(f"  ds_read_b128 {v(PR+4*r,4)}, {v(PT+8)} offset:{r*1024}")
    for r in range(K - 1): a(f"  s_cmp_gt_u32 s{sW}, {r}\n  s_cselect_b32 s{72+r}, 1, 0")
    a(f"""
  s_waitcnt lgkmcnt({K-1})
  v_add_u32 {v(PT+5)}, {v(PT)}, {v(PT+1)}
  v_add_u32 {v(PT+6)}, {v(PT+5)}, {v(PT+2)}
  v_add_u32 {v(PT+7)}, {v(PT+6)}, {v(PT+3)}""")
    for r in range(K - 1):
        a(f"""
  s_waitcnt lgkmcnt({K-2-r})
  v_add3_u32 {v(PR+4*r)}, {v(PR+4*r)}, {v(PR+4*r+1)}, {v(PR+4*r+2)}
  v_add_u32 {v(PR+4*r)}, {v(PR+4*r)}, {v(PR+4*r+3)}""")
        if r == 0: a(f"  v_mul_u32_u24 {v(PT+9)}, s72, {v(PR)}")
        else: a(f"  v_mad_u32_u24 {v(PT+9)}, {v(PR+4*r)}, s{72+r}, {v(PT+9)}")
    a(f"  v_lshl_or_b32 {X}, {v(PT+9)}, 16, {v(PT+7)}")
    for sh in (1, 2, 4, 8):
        a(f"  s_nop 1\n  v_add_u32_dpp {X}, {X}, {X} row_shr:{sh} row_mask:0xf bank_mask:0xf bound_ctrl:0")
    a(f"  s_nop 1\n  v_add_u32_dpp {X}, {X}, {X} row_bcast:15 row_mask:0xa bank_mask:0xf")
    a(f"  s_nop 1\n  v_add_u32_dpp {X}, {X}, {X} row_bcast:31 row_mask:0xc bank_mask:0xf")
    a(f"""
  s_nop 0
  v_readlane_b32 s{sY}, {X}, 63
  v_sub_u32 {X}, {X}, {v(PT+7)}
  s_lshr_b32 s{sY}, s{sY}, 16
  v_add_u32 {X}, s{sY}, {X}
  v_add_u32 {v(PT+7)}, {X}, {v(PT+6)}
  v_add_u32 {v(PT+6)}, {X}, {v(PT+5)}
  v_add_u32 {v(PT+5)}, {X}, {v(PT)}
  v_lshl_or_b32 {v(PT)}, {X}, 16, {v(PT)}
  v_lshl_or_b32 {v(PT+1)}, {v(PT+5)}, 16, {v(PT+1)}
  v_lshl_or_b32 {v(PT+2)}, {v(PT+6)}, 16, {v(PT+2)}
  v_lshl_or_b32 {v(PT+3)}, {v(PT+7)}, 16, {v(PT+3)}
  ds_write_b128 {v(vL16)}, {v(PT,4)}
  s_waitcnt lgkmcnt(0)""")
    a.label("L_bin_s2")
    a(f"  s_lshl_b32 s{sY}, s2, 13\n  s_barrier")
    stamp(a, 252, 42)
    TB = PT + 8
    for k in range(4): a(f"  ds_read_b32 {v(TB+k)}, {v(PT+13)} offset:{k*1024}")
    NB = OPT["nb"]
    vDa, vDv, vRa = 245, 246, 247
    lda = f"  buffer_load_dword {v(vDv)}, {v(vDa)}, {s(sDBG,4)}, 0 offen sc1"
    cda = f"  v_cmp_gt_u32 vcc, 16, {v(vDv)}"
    ada = f"""
  s_lshl_b32 s{sX}, s{sW}, 16
  v_and_b32 {v(vDa)}, 15, v0
  v_lshl_add_u32 {v(vDa)}, {v(vDa)}, 4, s{sX}"""
    NRD = 15
    for i in range(10): a(f"  ds_read_u16 {v(O+i)}, {v(O+i)} offset:2")
    a("  s_waitcnt lgkmcnt(10)")
    for k in range(4): a(f"  v_alignbit_b32 {v(TB+k)}, {v(TB+k)}, {v(TB+k)}, 16")
    a(f"  buffer_store_dwordx4 {v(TB,4)}, {v(vL16)}, {s(sTW,4)}, s{sY} offen sc1")
    vm.append(("tab", 0))
    for i in range(10, NRD): a(f"  ds_read_u16 {v(O+i)}, {v(O+i)} offset:2")
    for _ in range(OPT["a0"]):
        if na < NR: ld_ang(na); na += 1
    a(f"  s_mov_b32 s{sB5}, {NB*8192 + 4}\n  s_mov_b32 s{sSo}, 0")
    a(ada)
    a(f"  v_add_u32 {v(vRa)}, {P1_REC}, {v(vL16)}")
    def put(q, cmp):
        idx = list(range(4*q, 4*q + nrec(q)))
        for x, i in enumerate(idx): a(f"  v_cmp_{cmp}_u32 {s(72+2*x,2)}, s{sB5}, {v(R+i)}")
        for x, i in enumerate(idx):
            op = "ds_write_b16_d16_hi" if (i & 1) else "ds_write_b16"
            a(f"""
  s_mov_b64 exec, {s(72+2*x,2)}
  ds_write_b32 {v(R+i)}, {v(I+i)} offset:{P1_REC}
  {op} {v(O+i)}, {v(A + i//2)} offset:{P1_REC-2}""")
        a("  s_mov_b64 exec, -1")
    def pos(g):
        idx = list(range(5*g, 5*g+5))
        for i in idx: a(f"  v_add_u32 {v(O+i)}, {v(O+i)}, {v(R+i)}")
        for i in idx: a(f"  v_mad_u32_u24 {v(O+i)}, {v(O+i)}, {v(vSix)}, {v(vTwo)}")
        for x, i in enumerate(idx): a(f"  v_and_b32 {v(PT+x)}, 2, {v(O+i)}")
        for i in idx: a(f"  v_and_b32 {v(R+i)}, -4, {v(O+i)}")
        for x, i in enumerate(idx): a(f"  v_lshl_add_u32 {v(O+i)}, {v(PT+x)}, 1, {v(O+i)}")
    def put1(q):
        wait_for(("a", q))
        for r in range(nrec(q) // 2): a(f"  v_and_b32 {v(A+2*q+r)}, 0x7fff7fff, {v(A+2*q+r)}")
        if q == OPT["tq"]:
            assert q >= OPT["apre"]
            a("  s_barrier")
            a(lda); vm.append(("lda", 0))
            a(f"  buffer_store_dword {v(vOne)}, {v(vFlg)}, {s(sFLG,4)}, 0 offen sc1"); vm.append(("flg", 1))
        put(q, "gt")
    GI = OPT["gi"]
    for g in range(7):
        for _ in range(OPT["ag"]):
            if na < NR: ld_ang(na); na += 1
        a("  s_waitcnt lgkmcnt(10)")
        for i in range(5*g, 5*g+5): a(f"  ds_read_u16 {v(O+i+NRD)}, {v(O+i+NRD)} offset:2")
        if g < GI: pos(g)
    assert na == NR
    for g in range(7, GI):
        a(f"  s_waitcnt lgkmcnt({45 - 5*g})")
        pos(g)
    gn = GI
    for q in range(NR):
        assert 4*q + nrec(q) <= 5*gn
        put1(q)
        if gn < 10:
            if gn == 7 or (q == 0 and gn > 7): a("  s_waitcnt lgkmcnt(0)")
            pos(gn); gn += 1
    a(f"  ds_read_u16 {v(vWo)}, {v(vZ)} offset:2050")
    a("  s_waitcnt lgkmcnt(0)\n  s_barrier")
    stamp(a, 252, 43)
    a(f"  v_readfirstlane_b32 s{sO2}, {v(vWo)}")
    free = [PT, PT + 4, PT + 8, O, I, R, O + 4, I + 4, R + 4]
    def erd(r): a(f"  ds_read_b128 {v(free[r],4)}, {v(vRa)} offset:{r*8192}")
    def est(r):
        a(f"  buffer_store_dwordx4 {v(free[r],4)}, {v(vL16)}, {s(sRW,4)}, s{sSo} offen sc1\n  s_add_u32 s{sSo}, s{sSo}, 8192")
        vm.append(("st", r))
    assert NB <= 8
    fad = f"""
  v_and_b32 {v(RK[0])}, 63, v0
  v_lshlrev_b32 {v(RK[0])}, 4, {v(RK[0])}
  s_and_b32 s{sCin}, s2, {OPT['nrep']-1}
  s_lshl_b32 s{sCin}, s{sCin}, 10"""
    if OPT["wall"]:
        free = [I + 4 * r for r in range(8)]
        for r in range(NB): erd(r)
        a(fad)
        a(f"  s_mov_b32 s{sO4}, 0\n  s_cmp_lg_u32 s{sW}, 0\n  s_cbranch_scc1 L_nofl")
        wait_for(("lda", 0))
        a(cda)
        a(f"  s_cbranch_vccnz L_nofl\n  s_mov_b32 s{sO4}, 1")
        a(f"  buffer_load_dwordx4 {v(PT,4)}, {v(RK[0])}, {s(sFLG,4)}, s{sCin} offen sc1")
        a.label("L_nofl")
        for r in range(3):
            a(f"  s_waitcnt lgkmcnt({NB - 1 - r})")
            est(r)
        a("  s_waitcnt lgkmcnt(0)")
        put(0, "le"); put(1, "le"); put(2, "le")
    else:
        for r in range(3): erd(r)
        for r in range(3):
            a(f"  s_waitcnt lgkmcnt({2 - r})")
            est(r)
        put(0, "le"); put(1, "le")
        for r in range(3, NB): erd(r)
        put(2, "le")
        a("  s_waitcnt lgkmcnt(0)")
    todo = list(range(3, NB))
    fad = f"""
  v_and_b32 {v(RK[0])}, 63, v0
  v_lshlrev_b32 {v(RK[0])}, 4, {v(RK[0])}
  s_and_b32 s{sCin}, s2, {OPT['nrep']-1}
  s_lshl_b32 s{sCin}, s{sCin}, 10"""
    for q in range(3, NR):
        for _ in range(OPT["ep"]):
            if todo: est(todo.pop(0))
        if q == OPT["sq"]:
            assert not todo
            a(f"""
  v_mov_b32 {v(vDum)}, 3
  s_waitcnt vmcnt(0)
  s_barrier
  s_cmp_gt_u32 s{sO2}, {NB*8192 // 6 - 2}
  s_cbranch_scc1 L_noearly
  buffer_store_dword {v(vDum)}, {v(vFlg)}, {s(sFLG,4)}, 0 offen sc1""")
            a.label("L_noearly")
        if q == OPT["fq"] and not OPT["wall"]:
            assert q >= 3
            a(fad)
            a(f"  s_mov_b32 s{sO4}, 0\n  s_cmp_lg_u32 s{sW}, 0\n  s_cbranch_scc1 L_nofl")
            wait_for(("lda", 0))
            a(cda)
            a(f"  s_cbranch_vccnz L_nofl\n  s_mov_b32 s{sO4}, 1")
            a(f"  buffer_load_dwordx4 {v(R+8,4)}, {v(RK[0])}, {s(sFLG,4)}, s{sCin} offen sc1")
            a.label("L_nofl")
        put(q, "le")
    assert not todo
    stamp(a, 252, 44)
    FP = Db
    def flag_load(dst, off): return f"  buffer_load_dwordx4 {v(dst,4)}, {v(off)}, {s(sFLG,4)}, s{sCin if dst == FP else sX} offen sc1"
    def flag_cond(dst, stage): return f"""
  v_min3_u32 {v(dst)}, {v(dst)}, {v(dst+1)}, {v(dst+2)}
  v_min_u32 {v(dst)}, {v(dst)}, {v(dst+3)}
  v_cmp_gt_u32 vcc, {stage}, {v(dst)}"""
    if OPT["wall"]: a(f"  s_cmp_lg_u32 s{sW}, 0\n  s_cbranch_scc1 L_polled_t\n  s_waitcnt vmcnt({NB})")
    else:
        if OPT["sq"] < 0: a("  s_waitcnt vmcnt(0)")
        else: assert OPT["fq"] < OPT["sq"]
        stamp(a, 252, 48)
        a(f"  s_cmp_lg_u32 s{sW}, 0\n  s_cbranch_scc1 L_polled_t")
    a(f"  s_cmp_eq_u32 s{sO4}, 0\n  s_cbranch_scc1 L_wait_a")
    a(flag_cond(PT if OPT["wall"] else R+8, 1))
    a("  s_cbranch_vccz L_polled_t\n  s_branch L_polled_a")
    a.label("L_nochunk1")
    if 40 <= OPT["cut"] <= 44: a("  s_endpgm")
    a("  s_waitcnt vmcnt(0)")
    a(arrive)
    if OPT["mpf"]:
        srd(a, sMT, 48, 49, None, E * 32)
        a(f"""
  s_sub_u32 s{sY}, s2, {NCH}
  s_lshl_b32 s{sY}, s{sY}, 16
  v_lshlrev_b32 {v(O)}, 7, v0""")
        for r in range(OPT["mpf"]):
            a(f"  buffer_load_dword v254, {v(O)}, {s(sMT,4)}, s{sY} offen\n  s_add_u32 s{sY}, s{sY}, {(256 - NCH) << 16}")
            if r == 1:
                for piece in range(4): prep(piece)
    else:
        for piece in range(4): prep(piece)
    a(ada)
    a(fad)
    a(f"  s_mov_b32 s{sO2}, 0\n  s_cmp_lg_u32 s{sW}, 0\n  s_cbranch_scc1 L_polled_t")
    if OPT["ncn"]:
        poll("a0", lda, cda, 64)
        poll("t0", flag_load(FP, RK[0]), flag_cond(FP, 1), OPT["ncn"])
        a("  s_branch L_polled_t")
    a.label("L_wait_a")
    poll("a", lda, cda, 64)
    poll("t", flag_load(FP, RK[0]), flag_cond(FP, 1), OPT["napt"])
    stamp(a, 252, 49)
    a(f"""
  s_lshl_b32 s{sX}, s{sJ}, 5
  s_add_u32 s{sX}, s{sX}, {TABOFF}""")
    srd(a, sTAB, sWS, sWS+1, f"s{sX}", (NCH - 1) * 8192 + 32)

    def state_update():
        a(f"""
  v_sub_u32 {v(rem)}, {v(rem)}, {v(rtot)}
  v_lshrrev_b32 {v(T)}, 16, {v(Q)}
  v_and_b32 {v(T+1)}, 0xffff, {v(Q)}
  v_min_u32 {v(vR0)}, 32, {v(nA)}
  v_cmp_ge_u32 vcc, 32, {v(nA)}
  v_sub_u32 {v(T+2)}, 32, {v(vR0)}
  v_add_u32 {v(vB6)}, {v(cb)}, {v(T+1)}
  v_min_u32 {v(T+2)}, {v(T)}, {v(T+2)}
  v_mul_u32_u24 {v(vB6)}, 6, {v(vB6)}
  v_add_u32 {v(rtot)}, {v(vR0)}, {v(T+2)}
  v_mad_i32_i24 {v(vB6)}, {v(vR0)}, -6, {v(vB6)}
  v_lshlrev_b32 {v(vRT4)}, 2, {v(rtot)}
  v_add_u32 {v(vA6)}, {v(cb)}, {v(sA)}
  v_mul_u32_u24 {v(vA6)}, 6, {v(vA6)}""")
    def state_update2():
        a(f"""
  v_add_u32 {v(sA)}, 32, {v(sA)}
  v_subrev_u32 {v(nA)}, 32, {v(nA)}
  v_add_u32 {v(T+1)}, {v(T+1)}, {v(T+2)}
  v_sub_u32 {v(T)}, {v(T)}, {v(T+2)}
  v_cndmask_b32 {v(sA)}, {v(sA)}, {v(T+1)}, vcc
  v_cndmask_b32 {v(nA)}, {v(nA)}, {v(T)}, vcc""")
        for i in range(K - 1):
            a(f"  v_cndmask_b32 {v(Q+i)}, {v(Q+i)}, {v(Q+i+1)}, vcc")
        a(f"  v_cndmask_b32 {v(Q+K-1)}, {v(Q+K-1)}, {v(vZ)}, vcc")
    def set_flag(tag):
        a(f"""
  v_cmp_lt_u32 vcc, 0, {v(rem)}
  s_cbranch_vccz L_noflag_{tag}
  ds_write_b32 {v(vCtlN)}, {v(vOne)} offset:4""")
        a.label(f"L_noflag_{tag}")

    bc = lambda u: f"row_newbcast:{u} row_mask:0xf bank_mask:0xf"
    def rec_load(u, t0):
        a(f"""
  v_sub_co_u32_dpp {v(t0)}, vcc, {v(vR0)}, {v(vI1)} {bc(u)}
  v_add_u32_dpp {v(t0)}, {v(vA6)}, {v(vI6)} {bc(u)}
  v_add_u32_dpp {v(t0+1)}, {v(vB6)}, {v(vI6)} {bc(u)}
  v_cndmask_b32 {v(t0)}, {v(t0)}, {v(t0+1)}, vcc
  v_sub_u32_dpp {v(t0+1)}, {v(vRT4)}, {v(vI4)} {bc(u)}
  v_bfi_b32 {v(t0)}, {v(vMsk)}, {v(t0)}, {v(t0+1)}
  buffer_load_dwordx2 {v(REC[u],2)}, {v(t0)}, {s(sREC,4)}, 0 offen{RPOL}""")

    SDWA = "dst_sel:WORD_1 dst_unused:UNUSED_PAD src0_sel:WORD_1 src1_sel:WORD_0"
    def ins1(u, thr, p):
        ta, rk, mk, w = TA4[p], RK4[p], sMk4[p], NW[p] + 1
        a(f"""
  v_cmp_gt_i32 vcc, 0, {v(LR(u))}
  v_min_i32 {v(w)}, {v(LR(u))}, {v(LR(u)+1)}
  v_cmp_gt_i32 {s(mk,2)}, {thr}, {v(w)}
  v_bfe_u32 {v(ta)}, {v(w)}, 23, 8
  v_cndmask_b32_sdwa {v(NW[p])}, {v(LR(u))}, {v(LR(u)+1)}, vcc {SDWA}
  v_mad_u32_u24 {v(ta)}, {v(ta)}, {v(v264)}, s{sIns}
  s_mov_b64 exec, {s(mk,2)}
  ds_add_rtn_u32 {v(rk)}, {v(ta)}, {v(vOne)}
  s_mov_b64 exec, -1""")

    def ins2(u, tag, p):
        ta, rk, mk, w = TA4[p], RK4[p], sMk4[p], NW[p] + 1
        lab = f"{tag}_{u}"
        a(f"""
  s_mov_b64 exec, {s(mk,2)}
  v_cmp_lt_u32 vcc, 31, {v(rk)}
  v_lshl_add_u32 {v(ta)}, {v(rk)}, 3, {v(ta)}
  s_cbranch_vccnz L_rare_{lab}""")
        a.label(f"L_back_{lab}")
        a(f"""
  ds_write_b64 {v(ta)}, {v(NW[p],2)} offset:8
  s_mov_b64 exec, -1""")
        rare.append((lab, u, p))

    a(f"""
  v_add_u32 {v(PT+2)}, {P1_REC}, {v(vL16)}
  v_add_u32 {v(PT+3)}, {P1_REC + 8*8192}, {v(vL16)}
  v_add_u32 {v(PT+4)}, {P1_REC + 16*8192}, {v(vL16)}
  s_mov_b32 s{sSo}, {NB*8192}
  v_mov_b32 {v(vDum)}, 3
  s_waitcnt lgkmcnt(0)
  s_barrier""")
    stamp(a, 252, 45)
    NS = 19
    sdt = lambda r: (20 + r) % 25 if r < 8 else r + 1
    SD = lambda r: ACC[sdt(r)]
    gv = []
    def gwait(x, extra=""): a(f"  s_waitcnt vmcnt({len(gv) - 1 - gv.index(x)}){extra}")
    def rd(r): a(f"  ds_read_b128 {v(SD(r),4)}, {v(PT+2 + r//8)} offset:{(r%8)*8192}")
    def st(r, lst=None):
        a(f"  buffer_store_dwordx4 {v(SD(r),4)}, {v(vL16)}, {s(sRW,4)}, s{sSo} offen sc1\n  s_add_u32 s{sSo}, s{sSo}, 8192")
        if lst is not None: lst.append(("st", r))
    zero_acc = lambda t: a(f"  v_mov_b64 {v(ACC[t],2)}, 0\n  v_mov_b64 {v(ACC[t]+2,2)}, 0")
    flag3 = f"  buffer_store_dword {v(vDum)}, {v(vFlg)}, {s(sFLG,4)}, 0 offen sc1"
    N1, N3 = OPT["n1"], OPT["n3"]
    if not OPT["wall"] and OPT["sq"] < 0:
        a(f"  s_cmp_gt_u32 s{sO2}, {NB*8192 // 6 - 2}\n  s_cbranch_scc1 L_noearly")
        a(flag3)
        a.label("L_noearly")
    a(f"""
  buffer_load_dwordx4 {v(Q,4)}, {v(vTab)}, {s(sTAB,4)}, 0 offen sc1
  buffer_load_dwordx2 {v(Q+4,2)}, {v(vTab)}, {s(sTAB,4)}, 0 offen offset:16 sc1""")
    gv.extend([("tab", 0), ("tab", 1)])
    PW = OPT["pw"]
    if PW: a(f"  v_lshrrev_b32 {v(RK[0])}, 11, {v(vTab)}")
    own_ld = f"  buffer_load_dword {v(RK[1])}, {v(RK[0])}, {s(sFLG,4)}, s{sCin} offen sc1"
    own_cd = f"  v_cmp_gt_u32 vcc, 2, {v(RK[1])}"
    if cpf(1, 24): gv.append(("c", 1))
    for r in range(NB, NS): rd(r)
    nxt = NB + N1
    for r in range(NB, nxt):
        a(f"  s_waitcnt lgkmcnt({NS - 1 - r})")
        st(r, gv)
    a(f"""
  s_waitcnt lgkmcnt(0)
  s_cmp_gt_u32 s{sO2}, {NB*8192 // 6 - 2}
  s_cbranch_scc1 L_allfirst""")
    if OPT["wall"]: a(f"  s_waitcnt vmcnt({len(gv)})")
    a("  s_barrier")
    if OPT["wall"]: a(flag3)
    a.label("L_allfirst_back")
    stamp(a, 252, 46)
    pend = list(range(nxt, NS))
    keep = OPT["n3"]
    slot = [0]
    def st1(n=1):
        on = OPT["smask"] >> slot[0] & 1 or n > 1
        slot[0] += 1
        for _ in range(n):
            if on and len(pend) > keep: st(pend.pop(0), gv)
    st1()
    RBR, WD = Wa, Wa + 14
    if DMA:
        for p in range(14): a(f"  v_mov_b32 {v(RBR+p)}, {v(RBK[p]) if p < 13 else 0}")
        a(f"  v_mov_b32 {v(WD)}, {v(WDK[0])}\n  v_mov_b32 {v(WD+1)}, {v(WDK[1])}")
        st1()
    else:
        a(f"""
  s_mul_i32 s{sX}, s{sW}, 3584
  s_add_u32 s{sX}, s{sX}, {RB_OFF}
  v_and_b32 {v(T+8)}, 63, v0
  v_lshl_add_u32 {v(T+9)}, {v(T+8)}, 3, s{sX}
  v_bfe_u32 {v(T+8)}, v0, 4, 1
  v_cmp_eq_u32 vcc, 1, {v(T+8)}""")
        for p in range(14): a(f"  ds_write_b32 {v(T+9)}, {v(RBK[p] if p < 13 else vZ)} offset:{(p//2)*512 + (p%2)*4}")
        st1()
        for r in range(4):
            a(f"  v_cndmask_b32 {v(Wa+r)}, {v(WDK[r])}, {v(vZ)}, vcc")
            a(f"  v_cndmask_b32 {v(Wb+r)}, {v(vZ)}, {v(WDK[r])}, vcc")
    a(f"""
  v_mov_b32 {v(WS0+1)}, 0
  v_mov_b32 {v(WS1+1)}, 0
  v_mov_b32 {v(WR+1)}, 0
  v_mov_b32 {v(sA)}, 0
  v_mov_b32 {v(nA)}, 0
  v_mov_b32 {v(rtot)}, 0""")
    ZR = range(Wa + 16, Wa + 32, 2) if DMA else range(RING[0], RING[0] + 20, 2)
    for r in ZR: a(f"  v_mov_b64 {v(r,2)}, 0")
    st1()
    a(f"""
  s_mul_i32 s{sFl}, s{sJ}, {2*CARLIST}
  s_add_u32 s{sFl}, s{sFl}, {CAROFF}""")
    srd(a, sREC, sWS, sWS+1, None, NCH * CH * 6)
    a(f"  s_mov_b32 s{sM}, s48\n  s_or_b32 s{sM+1}, s49, 0x20000\n  s_mov_b32 s{sM+2}, {E*16}\n  s_mov_b32 s{sM+3}, 0x20000")
    srd(a, sCAR, sWS, sWS+1, f"s{sFl}", 2 * CARLIST)
    srd(a, sOUT, 70, 71, None, f"s{sRb}")
    srd(a, sMW, 48, 49, None, f"s{sRb}")
    for t in list(range(3, 9)) + [sdt(r) for r in range(NB)]: zero_acc(t)
    st1()
    a(f"""
  v_mov_b32 {v(vSent)}, {SENT}
  v_mov_b32 {v(T)}, 0
  v_mov_b32 {v(T+1)}, {v(vSent)}
  v_mov_b32 {v(T+2)}, 0
  v_mov_b32 {v(T+3)}, {v(vSent)}
  v_add_u32 {v(T+6)}, {7*8192}, {v(vL16)}""")
    for r in range(13):
        a(f"  ds_write_b128 {v(vL16 if r < 7 else T+6)}, {v(T,4)} offset:{(r%7)*8192}")
        if r % 5 == 4: st1()
    a(f"""
  v_and_b32 {v(T+6)}, 15, v0
  v_lshl_add_u32 {v(T+6)}, {v(T+6)}, 2, {v(vCtlN)}
  ds_write_b32 {v(T+6)}, {v(vZ)}
  ds_write_b128 {v(vSst if (DMA or STR) else vSrd)}, {v(ACC[3],4)}""")
    if DMA:
        for q in range(D): a(f"  ds_write_b128 {v(vSst)}, {v(ACC[3],4)} offset:{1024*(q+1)}")
    for q in range(D): a(f"  v_mov_b32 {v(SA[q])}, {v(vSst)}\n  v_mov_b32 {v(CC[q])}, 0")
    gwait(("tab", 1))
    a(f"  v_lshrrev_b32 {v(rem)}, 16, {v(Q)}")
    for i in range(1, K):
        a(f"  v_lshrrev_b32 {v(T+4)}, 16, {v(Q+i)}\n  v_add_u32 {v(rem)}, {v(rem)}, {v(T+4)}")
    state_update()
    for u in range(0, 16, 2):
        a(f"""
  v_add_u32_dpp {v(REC[u])}, {v(vB6)}, {v(vI6)} {bc(u)}
  v_sub_u32_dpp {v(REC[u]+1)}, {v(vRT4)}, {v(vI4)} {bc(u)}
  v_add_u32_dpp {v(REC[u+1])}, {v(vB6)}, {v(vI6)} {bc(u+1)}
  v_sub_u32_dpp {v(REC[u+1]+1)}, {v(vRT4)}, {v(vI4)} {bc(u+1)}
  v_bfi_b32 {v(REC[u])}, {v(vMsk)}, {v(REC[u])}, {v(REC[u]+1)}
  v_bfi_b32 {v(REC[u+1])}, {v(vMsk)}, {v(REC[u+1])}, {v(REC[u+1]+1)}""")
        if u == OPT["eb"] and PW:
            a(own_ld); gv.append(("own", 0))
        elif u == OPT["eb"]:
            a(f"  s_cmp_lg_u32 s{sW}, 0\n  s_cbranch_scc1 L_noeb")
            a(flag_load(FP, RK[0]))
            a.label("L_noeb")
            ebm = len(gv)
        if u % 4 == 2: st1()
    state_update2()
    state_update()
    state_update2()
    st1()
    st1(NS)
    a("  s_nop 0")
    nx3 = NS - len(pend)
    for r in range(NB, nx3): zero_acc(sdt(r))
    stamp(a, 252, 47)
    if OPT["pf0"] == 3:
        share = (OPT["wmain"] // 4 + 31) // 32
        a(f"""
  s_cmp_eq_u32 s{sW}, 0
  s_cbranch_scc1 L_nopf
  s_lshr_b32 s{sX}, s2, 3
  s_mul_i32 s{sX}, s{sX}, {share*128}
  v_lshlrev_b32 {v(TA[1])}, 7, v0
  buffer_load_dword {v(WW[1])}, {v(TA[1])}, {s(sM,4)}, s{sX} offen""")
        a.label("L_nopf")
    a(f"  s_mov_b32 s{sThr}, {BUFSZ - 256}")
    if PW:
        gwait(("own", 0))
        a(own_cd)
        a("  s_cbranch_vccnz L_gen")
    else:
        a(f"  s_cmp_lg_u32 s{sW}, 0\n  s_cbranch_scc1 L_polled_b")
        if OPT["eb"] >= 0:
            a(f"  s_waitcnt vmcnt({len(gv) - ebm})")
            a(flag_cond(FP, 2))
            a("  s_cbranch_vccz L_polled_b")
        poll("b", flag_load(FP, RK[0]), flag_cond(FP, 2), OPT["nap"])
        a("  s_waitcnt lgkmcnt(0)")
        a("  s_barrier")
        stamp(a, 252, 1)
    def pro_ld(us):
        for u in us:
            a(f"  buffer_load_dwordx2 {v(REC[u],2)}, {v(REC[u])}, {s(sREC,4)}, 0 offen{RPOL}")
            gv.append(("rec", u))
    NL0 = OPT["nl0"]
    if OPT["gprio"]:
        a(f"  s_cmp_lt_u32 s{sW}, 4\n  s_cbranch_scc1 L_gp\n  s_setprio 1")
        a.label("L_gp")
    pro_ld(range(NL0))
    if PW:
        a("  s_waitcnt lgkmcnt(0)\n  s_barrier")
        stamp(a, 252, 1)
    NG = NS
    stamp(a, 252, 12)
    set_flag("pro")
    stamp(a, 252, 13)
    PTA = (lambda u: (list(range(Db, Sf + 4)) + [TA[0], TA[1], RK[1], WW[1]])[u]) if DMA else (lambda u: Da + u)
    PRK = (lambda u: Wa + 16 + u) if DMA else (lambda u: RING[0] + u)
    PMK = lambda u: sPM + 2 * (u % 8)
    slowg = []
    def gins1(us, mk):
        for u in us:
            a(f"""
  v_cmp_gt_i32 vcc, 0, {v(REC[u])}
  v_min_i32 {v(PTA(u))}, {v(REC[u])}, {v(REC[u]+1)}
  v_cmp_gt_i32 {s(mk(u),2)}, 0, {v(PTA(u))}
  v_cndmask_b32_sdwa {v(REC[u])}, {v(REC[u])}, {v(REC[u]+1)}, vcc {SDWA}
  v_mov_b32 {v(REC[u]+1)}, {v(PTA(u))}""")
        for u in us: a(f"  v_bfe_u32 {v(PTA(u))}, {v(PTA(u))}, 23, 8")
        for u in us: a(f"  v_mul_u32_u24 {v(PTA(u))}, {v(PTA(u))}, {v(v264)}")
        for u in us: a(f"  s_mov_b64 exec, {s(mk(u),2)}\n  ds_add_rtn_u32 {v(PRK(u))}, {v(PTA(u))}, {v(vOne)}")
        a("  s_mov_b64 exec, -1")
    def gins2(us, mk, g):
        if len(us) == 4: a(f"  v_max3_u32 {v(T)}, {v(PRK(us[0]))}, {v(PRK(us[1]))}, {v(PRK(us[2]))}\n  v_max_u32 {v(T)}, {v(T)}, {v(PRK(us[3]))}")
        else: a(f"  v_max_u32 {v(T)}, {v(PRK(us[0]))}, {v(PRK(us[1]))}")
        a(f"""
  v_cmp_lt_u32 vcc, 31, {v(T)}
  s_cbranch_vccz L_pfast_{g}
  v_cmp_lt_u32 vcc, 63, {v(T)}
  s_cbranch_vccnz L_pslow_{g}""")
        a.label(f"L_pback_{g}")
        for x, u in enumerate(us): a(f"  v_subrev_u32 {v(T+4+x)}, 31, {v(PRK(u))}")
        for x, u in enumerate(us): a(f"  s_mov_b64 exec, {s(mk(u),2)}\n  ds_max_i32 {v(PTA(u))}, {v(T+4+x)} offset:{BUFSZ}")
        a(f"  s_mov_b64 exec, -1\n  ds_write_b32 {v(vCtlN)}, {v(vOne)} offset:4")
        for x, u in enumerate(us): a(f"  v_lshrrev_b32 {v(T+4+x)}, 5, {v(PRK(u))}")
        for x, u in enumerate(us): a(f"  v_mad_u32_u24 {v(PTA(u))}, {v(T+4+x)}, s{sThr}, {v(PTA(u))}")
        a.label(f"L_pfast_{g}")
        for u in us: a(f"  v_lshl_add_u32 {v(PTA(u))}, {v(PRK(u))}, 3, {v(PTA(u))}")
        for u in us: a(f"  s_mov_b64 exec, {s(mk(u),2)}\n  ds_write_b64 {v(PTA(u))}, {v(REC[u],2)} offset:8")
        a("  s_mov_b64 exec, -1")
        slowg.append((g, us, mk))
    def pro_ins1(g):
        gwait(("rec", 4*g+3))
        gins1(list(range(4*g, 4*g+4)), PMK)
    def pro_ins2(g): gins2(list(range(4*g, 4*g+4)), PMK, g)
    left = list(range(nx3, NS))
    per = (len(left) + 3) // 4
    def some():
        for _ in range(per):
            if left: st(left.pop(0), gv)
    pro_ins1(0)
    stamp(a, 252, 3)
    pro_ld(range(NL0, 16))
    def pf():
        share = (OPT["wmain"] // 4 + 31) // 32
        a(f"""
  s_lshr_b32 s{sX}, s2, 3
  s_mul_i32 s{sX}, s{sX}, {share*128}
  v_lshlrev_b32 {v(TA[1])}, 7, v0
  buffer_load_dword {v(WW[1])}, {v(TA[1])}, {s(sM,4)}, s{sX} offen""")
        gv.append(("pf", 0))
    if OPT["pf0"] == 1:
        while left: st(left.pop(0), gv)
        pf()
    pro_ins1(1)
    some()
    a("  s_waitcnt lgkmcnt(0)")
    if OPT["gprio"] == 1: a("  s_setprio 0")
    pro_ins2(0); some(); pro_ins1(2)
    if OPT["gprio"] == 2: a("  s_setprio 0")
    pro_ins2(1); some(); pro_ins1(3); some()
    if OPT["gprio"] == 3: a("  s_setprio 0")
    if OPT["pf0"] == 2: pf()
    stamp(a, 252, 8)
    a("  s_nop 0")
    for r in range(nx3, NS): zero_acc(sdt(r))
    a("  s_waitcnt lgkmcnt(0)")
    pro_ins2(2); pro_ins2(3)
    a.label("L_gen_done")
    stamp(a, 252, 11)
    a(f"  s_lshr_b32 s{sCnt[1]}, s{sEb}, 5\n  s_add_u32 s{sCnt[1]}, s{sCnt[1]}, 100\n  s_mul_hi_u32 s{sCnt[1]}, s{sCnt[1]}, {MK}")
    if OPT["kmax"] < 5: a(f"  s_min_u32 s{sCnt[1]}, s{sCnt[1]}, {OPT['kmax']}")
    if OPT["nopre"]: a(f"  s_mov_b32 s{sCnt[1]}, 0x7fffffff")
    a(f"  v_cmp_ne_u32 vcc, 0, {v(vR0)}\n  s_or_b32 s85, vcc_lo, vcc_hi")
    if OPT["soft"]:
        a(f"""
  s_mov_b32 s82, 0
  s_mov_b32 s83, 0
  v_mov_b32 {v(T+9)}, {CTL + 40}
  s_mov_b64 exec, 1
  ds_add_u32 {v(T+9)}, {v(vOne)}
  ds_add_u32 {v(T+9)}, {v(vOne)} offset:4
  s_mov_b64 exec, -1""")
    if DMA:
        a(f"  s_mul_i32 s{sRing}, s{sW}, {WSTR}\n  s_add_u32 s{sRing}, s{sRing}, {S_OFF + 1024}")
        for r in range(P, Sf + 4, 2): a(f"  v_mov_b64 {v(r,2)}, 0")
    a("  s_branch L_turn2")
    def signal_all(tag, n):
        a(f"""
  v_mov_b32 {v(T+4)}, {CTL + 32}
  s_waitcnt vmcnt({n})
  s_mov_b64 exec, 1
  ds_add_rtn_u32 {v(T+5)}, {v(T+4)}, {v(vOne)}
  s_mov_b64 exec, -1
  v_and_b32 {v(T+6)}, 63, v0
  s_lshl_b32 s{sX}, s2, 2
  v_lshl_add_u32 {v(T+6)}, {v(T+6)}, 10, s{sX}
  v_mov_b32 {v(T+7)}, 4
  s_waitcnt lgkmcnt(0)
  v_readfirstlane_b32 s{sX}, {v(T+5)}
  s_cmp_lg_u32 s{sX}, 7
  s_cbranch_scc1 L_nosig_{tag}
  buffer_store_dword {v(T+7)}, {v(T+6)}, {s(sFLG,4)}, 0 offen sc1""")
        a.label(f"L_nosig_{tag}")

    INS0 = OPT["ins0"]
    def sread():
        if DMA or STR: tr(Sf, vSrd, 0)
        else: a(f"  ds_read_b128 {v(Sf,4)}, {v(vSrd)}")
    def cstage_head(q):
        a(f"  ds_write_b16 {v(SA[q])}, {v(CC[q])}")
        sread()
        a(f"  ds_write_b16 {v(SA[q])}, {v(vZ)}")
    def cstage_m1(q):
        a(f"""
  v_mfma_f32_16x16x32_bf16 {v(Da,4)}, {v(RING[q],4)}, {v(Wa,4)}, 0
  v_mfma_f32_16x16x32_bf16 {v(Db,4)}, {v(RING[q],4)}, {v(Wb,4)}, 0""")
    def cstage_cvt():
        a(f"""
  v_cvt_pk_bf16_f32 {v(P)}, {v(Da)}, {v(Da+1)}
  v_cvt_pk_bf16_f32 {v(P+1)}, {v(Da+2)}, {v(Da+3)}
  v_cvt_pk_bf16_f32 {v(P+2)}, {v(Db)}, {v(Db+1)}
  v_cvt_pk_bf16_f32 {v(P+3)}, {v(Db+2)}, {v(Db+3)}""")
    def cstage_m2(tc):
        a(f"  v_mfma_f32_16x16x32_bf16 {v(ACC[tc],4)}, {v(P,4)}, {v(Sf,4)}, {v(ACC[tc],4)}")
    def tr(dst, addr, off):
        a(f"  ds_read_b64_tr_b16 {v(dst,2)}, {v(addr)} offset:{off}\n  ds_read_b64_tr_b16 {v(dst+2,2)}, {v(addr)} offset:{off+512}")
    def fetch(q):
        a(f"  ds_write_b16 {v(SA[q])}, {v(CC[q])}")
        tr(Sf, vSrd, 0)
        a(f"  ds_write_b16 {v(SA[q])}, {v(vZ)}")
        tr(P, vSrd, 1024 * (q + 1))
    nds = [0]
    def step_top(t, reset=True):
        a(f"  ; ---- step {t}")
        nds[0] = len(a.lines)
        cstage_head(t % D)
        if t < NT - 1:
            a(f"  ds_read_b64 {v(RP[(t+1)&1],2)}, {v(vRd)} offset:{(t+1)*TS+8}")
        if reset and t < NT:
            a(f"  ds_write_b32 {v(vRd)}, {v(vSent)} offset:{t*TS+12}")
    assert not DMA
    def step_a(t, n):
        q = t % D
        rp = RP[t & 1]
        off, af, e = T + 1, T + 2, T + 3
        assert all(l.strip().startswith("ds_") for l in a.lines[nds[0]:])
        a(f"  s_waitcnt vmcnt({n}) lgkmcnt({len(a.lines) - nds[0]})")
        cstage_m1(q)
        mark = len(a.lines)
        if t < NT:
            a(f"""
  v_and_or_b32 {v(off)}, {v(rp+1)}, {v(vSent)}, {v(vHalf)}
  v_mul_f32 {v(af)}, {v(rp)}, {v(vFreq)}""")
            if not STR: a(f"  v_and_b32 {v(e)}, 14, {v(rp+1)}")
            a(f"""
  buffer_load_dwordx4 {v(RING[q],4)}, {v(off)}, {s(sM,4)}, 0 idxen
  v_cos_f32 {v(af)}, {v(af)}""")
            if STR: a(f"  v_and_or_b32 {v(SA[q])}, {v(rp+1)}, 14, {v(vSst)}")
            else: a(f"  v_lshl_add_u32 {v(SA[q])}, {v(e)}, 3, {v(vSst)}")
            a(f"  v_cvt_pk_bf16_f32 {v(CC[q])}, {v(af)}, {v(af)}")
        return mark
    def step_b(t, mark, reset=True):
        n = 0
        for l in a.lines[mark:]:
            if l.endswith(":") or l.strip().startswith(";"): continue
            n += 1
            if "s_cbranch" in l: break
        if n < 7: a(f"  s_nop {6 - n}")
        lg = (2 if t < NT-1 else 1) + (1 if reset and t < NT else 0)
        cstage_cvt()
        a(f"  s_waitcnt lgkmcnt({lg})\n  s_nop 0")
        cstage_m2((t - D) % NT)

    LD0 = INS0 - OPT["lead"]
    assert LD0 >= 0 and OPT['lead'] <= 2
    sKo = sCnt[1]
    sTwo = 85
    sets = lambda x: [u for u in range(DN * x, DN * x + DN) if 0 <= u < 17]
    NX = (17 + DN - 1) // DN
    order = []
    for t in range(NT):
        order.append(("W", t))
        order.append(("g", t))
        if t == 0: order.append(("rec", 16))
        for u in sets(t - LD0):
            if u < 16: order.append(("rec", u))
        order.append(("V", t))
    isop = lambda x: x[0] not in "WV"
    assert all(x[0] == "g" for x in order[order.index(("g", NT - D)):] if isop(x))
    def younger(target, at):
        n = len(order); i = order.index(target); cnt = 0
        j = (i + 1) % n
        while j != at:
            if isop(order[j]): cnt += 1
            j = (j + 1) % n
        return cnt
    RBH = 1
    def prio(tag, mask, t):
        cur = mask >> t & 1; prev = (mask >> (t - 1) & 1) if t else 0
        if cur and not prev:
            a(f"  s_cmp_lt_u32 s{sW}, 4\n  s_cbranch_scc1 L_{tag}prio{t}\n  s_setprio 1")
            a.label(f"L_{tag}prio{t}")
        if prev and not cur: a("  s_setprio 0")
    assert not OPT["lprio"] >> (NT - 1)
    def step0_extra():
        a(f"""
  v_cmp_gt_u32 vcc, s{sCin}, {v(vCarIdx)}
  s_add_u32 s{sX}, s{sIt}, 2
  s_and_b32 s{sX}, s{sX}, 3
  s_lshl_b32 s{sX}, s{sX}, 3
  s_add_u32 s{sX}, s{sX}, {CTL}
  v_mov_b32 {v(T+1)}, s{sX}
  ds_write_b64 {v(T+1)}, {v(vZ,2)}
  ds_write_b32 {v(vCntA)}, {v(vZ)}
  v_lshlrev_b32 {v(T)}, 3, {v(vCarIdx)}
  v_cndmask_b32 {v(T)}, {v(vOOB)}, {v(T)}, vcc
  buffer_load_dwordx2 {v(LR(16),2)}, {v(T)}, {s(sCAR,4)}, s{sCarR} offen sc1""")
    SOFT = OPT["soft"]
    sTg, sDid = 82, 83
    def arrive2(off):
        a(f"""
  v_mov_b32 {v(T+9)}, {CTL + 40}
  s_mov_b64 exec, 1
  ds_add_u32 {v(T+9)}, {v(vOne)} offset:{off}
  s_mov_b64 exec, -1""")
    def bread(): a(f"  v_mov_b32 {v(T+9)}, {CTL + 40}\n  ds_read_b32 {v(T+8)}, {v(T+9)} offset:4")
    def bwait(tag):
        a(f"""
  v_readfirstlane_b32 s{sX}, {v(T+8)}
  s_cmp_lt_u32 s{sX}, s{sTg}
  s_cbranch_scc1 L_bspin_{tag}""")
        a.label(f"L_bok_{tag}")
    two = f"  v_cmp_ne_u32 vcc, 0, {v(vR0)}\n  s_or_b32 s{sTwo}, vcc_lo, vcc_hi"
    FC = Q_FC = REC[0]
    FO = REC[2]
    a(".p2align 6")
    a.label("L_loop")
    for t in range(NT):
        step_top(t)
        mk = step_a(t, younger(("g", (t - D + OPT["dsh"]) % NT), order.index(("W", t))))
        if t == 0: step0_extra()
        prio("lp", OPT["lprio"], t)
        for ul in sets(t - LD0):
            if ul == 16: continue
            a(f"""
  s_cmp_lg_u32 s{sTwo}, 0
  v_add_u32_dpp {v(T+4)}, {v(vB6)}, {v(vI6)} {bc(ul)}
  v_sub_u32_dpp {v(T+5)}, {v(vRT4)}, {v(vI4)} {bc(ul)}
  s_cbranch_scc1 L_two_{ul}""")
            a.label(f"L_two_back_{ul}")
            a(f"""
  v_bfi_b32 {v(T+4)}, {v(vMsk)}, {v(T+4)}, {v(T+5)}
  buffer_load_dwordx2 {v(LR(ul),2)}, {v(T+4)}, {s(sREC,4)}, 0 offen{RPOL}""")
        if t - LD0 == 16:
            a(f"""
  s_cmp_lg_u32 s{sThr}, 0
  s_cbranch_scc1 L_nostate
  s_cmp_eq_u32 s{sIt}, 0
  s_cbranch_scc1 L_borrow""")
            a.label("L_borrow_back")
            state_update(); state_update2()
            a(two)
            a.label("L_nostate")
            set_flag("lp")
        if SOFT and t == INS0 - 1: bread()
        if SOFT and t == INS0: bwait("lp")
        for u2 in sets(t - INS0 - 1): ins2(u2, "lp", u2 % (2 * DN))
        us = sets(t - INS0)
        if us: a(f"  s_waitcnt vmcnt({min(younger(('rec', u), order.index(('V', t))) for u in us)})")
        for u1 in us: ins1(u1, f"s{sThr}" if u1 < 16 else "0", u1 % (2 * DN))
        if t == 2:
            a(f"  s_cmp_eq_u32 s{sIt}, 0\n  s_cbranch_scc1 L_sig")
            a.label("L_nosig_b0")
            nsig = sum(1 for x in order[:order.index(("V", t))] if isop(x))
        if t == INS0 + 18:
            a(f"  s_cmp_gt_u32 s{sCin}, 512\n  s_cbranch_scc1 L_slow_lp")
            a.label("L_slow_back_lp")
        TAR = OPT["ta"]
        TLD = INS0 + 17 if SOFT else INS0 + 18
        if t == TLD:
            a(f"  s_or_b32 s{sX}, s{sIt}, s{sW}\n  s_cbranch_scc0 L_ldc")
            a.label("L_ldc_back")
        if SOFT and t == TAR:
            assert TAR >= INS0 + 18
            a(f"  s_or_b32 s{sX}, s{sIt}, s{sW}\n  s_cselect_b32 s{sDid}, s{sDid}, 2\n  s_cmp_lg_u32 s{sDid}, 0\n  s_cbranch_scc1 L_chkc")
            a.label("L_arr_back")
            arrive2(0)
        if SOFT and t == NT - 1: arrive2(4)
        if t == OPT["mstep"]:
            a(f"  s_cmp_eq_u32 s{sIt}, s{sKo}\n  s_cbranch_scc1 L_mld")
            a.label("L_mld_back1")
        step_b(t, mk)
    if not SOFT: a(f"""
  s_waitcnt vmcnt({NT - (INS0 + 18)})
  s_or_b32 s{sX}, s{sIt}, s{sW}
  s_cbranch_scc0 L_chkc""")
    a.label("L_turn2")
    a(f"""
  v_mov_b32 {v(T)}, {v(vCtlN)}
  s_add_u32 s{sIt}, s{sIt}, 1
  s_add_u32 s{sX}, s{sIt}, 1
  s_and_b32 s{sX}, s{sX}, 3
  s_lshl_b32 s{sX}, s{sX}, 3
  s_add_u32 s{sX}, s{sX}, {CTL}
  v_mov_b32 {v(vCtlN)}, s{sX}
  s_sub_u32 s{sX}, s{sIns}, {BUFSZ}
  s_add_u32 s{sX}, s{sX}, s{sIns}
  v_add_u32 {v(vRd)}, s{sX}, {v(vRd)}
  v_add_u32 {v(vCntA)}, s{sX}, {v(vCntA)}
  s_sub_u32 s{sIns}, {BUFSZ}, s{sIns}
  s_mov_b32 s{sCarR}, s{sCarW}
  s_sub_u32 s{sCarW}, {CARLIST}, s{sCarW}""")
    a(f"  s_add_u32 s{sTg}, s{sTg}, 8\n  s_mov_b32 s81, 0x200000" if SOFT else "  s_waitcnt lgkmcnt(0)")
    if OPT["stamp"] == 1:
        a(f"  s_lshl_b32 s90, s{sIt}, 1\n  s_add_u32 s90, s90, 16\n  s_min_u32 m0, s90, 36")
        stamp(a, 252, "m0")
        a("  s_add_u32 m0, m0, 1")
    if SOFT:
        a.label("L_aspin")
        a(f"  ds_read_b32 {v(T+8)}, {v(T+9)}")
    else:
        a("  s_barrier")
        stamp(a, 252, "m0")
    a(f"""
  ds_read_b64 {v(T+2,2)}, {v(T)}
  ds_read_b64 {v(RP[0],2)}, {v(vRd)} offset:8
  s_waitcnt lgkmcnt(1)""")
    if SOFT:
        a(f"""
  v_readfirstlane_b32 s{sX}, {v(T+8)}
  s_cmp_lt_u32 s{sX}, s{sTg}
  s_cbranch_scc1 L_anap""")
        stamp(a, 252, "m0")
    a(f"""
  v_readfirstlane_b32 s{sCin}, {v(T+2)}
  v_readfirstlane_b32 s{sFl}, {v(T+3)}
  s_cmp_gt_u32 s{sCin}, 512
  s_cselect_b32 s{sThr}, 0x80000000, 0
  s_min_u32 s{sCin}, s{sCin}, {CARCAP}
  s_cmp_gt_u32 s{sCin}, 32
  s_cselect_b32 s{sFl}, 1, s{sFl}
  s_cmp_lt_u32 s{sIt}, {OPT['itcap']}
  s_cselect_b32 s{sFl}, s{sFl}, 0
  s_cmp_lg_u32 s{sFl}, 0
  s_cbranch_scc1 L_loop
  s_cmp_eq_u32 s{sIt}, 0
  s_cbranch_scc1 L_it0""")
    a.label("L_nosig_z")

    RBv = RBR if DMA else Q
    assert vRT4 - Q + 1 >= 14
    R0 = REC[0]
    G0, G1, RR, U = R0, R0 + 4, R0 + 8, T + 4
    XS0, XS1, XR, AG = T + 8, T + 10, T + 12, WW[0]
    assert RK[1] == T + 13 and WW[0] % 2 == 0
    vMoff, vLin, vOw, vOr = vCarIdx, vI6, vI1, vI4
    a(f"""
  v_and_b32 {v(T)}, 63, v0
  s_mul_i32 s{sX}, s{sW}, 3584
  s_add_u32 s{sX}, s{sX}, {RB_OFF}
  v_lshl_add_u32 {v(T+1)}, {v(T)}, 3, s{sX}
  v_lshlrev_b32 {v(vLin)}, 4, {v(T)}
  v_bfe_u32 {v(T+2)}, v0, 4, 2
  v_and_b32 {v(T+3)}, 15, v0
  v_lshlrev_b32 {v(T+2)}, 3, {v(T+2)}
  v_lshl_add_u32 {v(vMoff)}, {v(T+3)}, 5, {v(T+2)}
  s_mul_i32 s{sX}, s{sW}, 6400
  s_add_u32 s{sX}, s{sX}, s{sIns}
  s_add_u32 s{sX}, s{sX}, 15
  s_and_b32 s{sX}, s{sX}, -16
  v_add_u32 {v(vOw)}, s{sX}, {v(vMoff)}
  v_add_u32 {v(vOr)}, s{sX}, {v(vLin)}
  v_cmp_gt_u32 {s(sT,2)}, 8, {v(T+3)}""")
    for h in range(0 if DMA else 7):
        a(f"  ds_read_b64 {v(RBv+2*h,2)}, {v(T+1)} offset:{h*512}")
    if DMA: a(f"  s_mov_b32 s{sCnt[0]}, s{sX}")
    def s0(tl):
        x = ACC[tl]
        a(f"""
  v_cvt_pk_bf16_f32 {v(Da)}, {v(x)}, {v(x+1)}
  v_cvt_pk_bf16_f32 {v(Da+1)}, {v(x+2)}, {v(x+3)}
  s_nop 1
  v_mfma_f32_16x16x16_bf16 {v(x,4)}, {v(WD,2)}, {v(Da,2)}, 0""")
    fo = [("g", t - NT) for t in range(NT - D, NT)]
    def fwait(x): return len(fo) - 1 - fo.index(x)
    def s1(p):
        b = RBv + (p & ~1)
        w0, w1 = (WS0, WS1) if p % 2 == 0 else (XS0, XS1)
        a(f"""
  v_mfma_f32_16x16x16_bf16 {v(G0,4)}, {v(w0,2)}, {v(b,2)}, 0
  v_mfma_f32_16x16x16_bf16 {v(G1,4)}, {v(w1,2)}, {v(b,2)}, 0""")
    def s2(p):
        t0 = ACC[2*p]; t1 = ACC[2*p+1] if 2*p+1 < NT else ACC[2*p]
        for r in range(4): a(f"  v_mul_f32 {v(U+r)}, {v(t0+r)}, {v(G0+r)}")
        for r in range(4): a(f"  v_mul_f32_dpp {v(U+r)}, {v(t1+r)}, {v(G0+r)} row_ror:8 row_mask:0xf bank_mask:0xc")
        for r in range(4): a(f"  v_fmac_f32_dpp {v(U+r)}, {v(t0+r)}, {v(G1+r)} row_ror:8 row_mask:0xf bank_mask:0x3")
        for r in range(4): a(f"  v_fmac_f32_dpp {v(U+r)}, {v(t1+r)}, {v(G1+r)} quad_perm:[0,1,2,3] row_mask:0xf bank_mask:0xc")
        a(f"""
  v_cvt_pk_bf16_f32 {v(AG)}, {v(U)}, {v(U+1)}
  v_cvt_pk_bf16_f32 {v(AG+1)}, {v(U+2)}, {v(U+3)}
  v_mfma_f32_16x16x16_bf16 {v(RR,4)}, {v(WR if p % 2 == 0 else XR,2)}, {v(RBv + (p & ~1),2)}, 0""")
        if p + 1 < 13: s1(p + 1)
        else: a("  s_nop 0")
        a(f"  v_mfma_f32_16x16x16_bf16 {v(U,4)}, {v(WUP,2)}, {v(AG,2)}, 0")
    def s3(p):
        x = ACC[2*p]; m_ = MM[p]
        a(f"""
  v_lshlrev_b32 {v(x)}, 16, {v(m_)}
  v_and_b32 {v(x+1)}, 0xffff0000, {v(m_)}
  v_lshlrev_b32 {v(x+2)}, 16, {v(m_+1)}
  v_and_b32 {v(x+3)}, 0xffff0000, {v(m_+1)}""")
        if p == 12: a("  s_nop 3")
        a(f"""
  v_pk_fma_f32 {v(x,2)}, {v(U,2)}, {v(RR,2)}, {v(x,2)}
  v_pk_fma_f32 {v(x+2,2)}, {v(U+2,2)}, {v(RR+2,2)}, {v(x+2,2)}
  v_cvt_pk_bf16_f32 {v(x)}, {v(x)}, {v(x+1)}
  v_cvt_pk_bf16_f32 {v(x+1)}, {v(x+2)}, {v(x+3)}""")
        if p == 12: a(f"  s_mov_b64 exec, {s(sT,2)}")
        a(f"  ds_write_b64 {v(vOw)}, {v(x,2)} offset:{p*512}")
        if p == 12: a(f"  s_mov_b64 exec, -1")
        if p % 2 == 1 or p == 12:
            r = p // 2
            a(f"  ds_read_b128 {v(ACC[4*r+1 if r < 6 else 23],4)}, {v(vOr)} offset:{r*1024}")
    def s4(r):
        a(f"  buffer_store_dwordx4 {v(ACC[4*r+1 if r < 6 else 23],4)}, {v(vLin)}, {s(sOUT,4)}, s{sEb if r < 4 else sEb2} offen offset:{(r%4)*1024}{POL[OPT['opol']]}")
        fo.append(("st", r))
    xw = {}
    ready = []
    for t in range(NT + D + 2):
        def x3():
            a(f"  s_cmp_lg_u32 s{sCin}, 0\n  s_cbranch_scc1 L_x3")
            a.label("L_x3_back")
            xw[3] = len(fo) - xw[2]
        if t == 6 and not DMA: x3()
        if t < NT + D: step_top(t, False)
        else: a(f"  ; ---- tail {t}\n  s_waitcnt lgkmcnt(0)")
        if t < NT + D:
            mk = step_a(t, fwait(("g", t - D)))
            if t < NT: fo.append(("g", t))
        prio("fp", OPT["fprio"], t)
        if t in (0, 3):
            n = 1 if t == 0 else 2
            a(f"  s_cmp_lg_u32 s{sCin}, 0\n  s_cbranch_scc1 L_x{n}")
            a.label(f"L_x{n}_back")
            xw[n] = len(fo)
        if t == NT: stamp(a, 252, 4)
        if t == NT + D: stamp(a, 252, 5)
        if SOFT and t == 2: bread()
        if SOFT and t == 3: bwait("fin")
        if t == 4:
            a(f"""
  v_mov_b32 {v(XS0)}, 0
  v_mov_b32 {v(XS0+1)}, {v(WS0)}
  v_mov_b32 {v(XS1)}, 0
  v_mov_b32 {v(XS1+1)}, {v(WS1)}
  v_mov_b32 {v(XR)}, 0
  v_mov_b32 {v(XR+1)}, {v(WR)}""")
        if t == 5: s1(0)
        ts2 = {2*p+7 if p < 12 else 30: p for p in range(13)}
        if t - 2 in ts2 and (ts2[t-2] % 2 == 1): ready.append(ts2[t-2] // 2)
        if t >= OPT["late"]:
            while ready: s4(ready.pop(0))
        if t - 1 in ts2: s3(ts2[t-1])
        if t in ts2: s2(ts2[t])
        if t == 2:
            a(f"  s_cmp_ge_u32 s{sKo}, s{sIt}\n  s_mov_b32 s{sKo}, -1\n  s_cbranch_scc1 L_mld")
            a.label("L_mld_back2")
        if t < NT + D: step_b(t, mk, False)
        if t == NT + D - 1: a("  s_nop 3")
    a("  s_waitcnt lgkmcnt(0)")
    s4(6)
    stamp(a, 252, 6)
    if OPT["stamp"]: a("  s_waitcnt vmcnt(0)")
    stamp(a, 252, 7); stamp(a, 252, 63, "s_memrealtime")
    if OPT["stamp"] == 1: a(f"  v_writelane_b32 v13, s{sIt}, 61")
    stamp_out(a, 252, sWS, 8, STAMPOFF + 0x200000, 253)
    a.label("L_end")
    a("  s_endpgm")

    sSm, sS2 = sMk
    a.label("L_x1")
    a(f"""
  v_cmp_gt_u32 vcc, s{sCin}, {v(vSlot)}
  v_lshlrev_b32 {v(T)}, 3, {v(vSlot)}
  s_nop 0
  v_cndmask_b32 {v(T)}, {v(vOOB)}, {v(T)}, vcc
  buffer_load_dwordx2 {v(AG,2)}, {v(T)}, {s(sCAR,4)}, s{sCarR} offen sc1
  s_branch L_x1_back""")
    a.label("L_x2")
    a(f"""
  s_mul_i32 s{sX}, s{sW}, {NT}
  s_waitcnt vmcnt({xw[2] - xw[1]})
  v_min_i32 {v(U)}, {v(AG)}, {v(AG+1)}
  v_cmp_gt_i32 vcc, 0, {v(AG)}
  v_bfe_u32 {v(U+2)}, {v(U)}, 23, 8
  v_subrev_u32 {v(U+2)}, s{sX}, {v(U+2)}
  v_cndmask_b32_sdwa {v(U+1)}, {v(AG)}, {v(AG+1)}, vcc dst_sel:WORD_1 dst_unused:UNUSED_PAD src0_sel:WORD_1 src1_sel:WORD_0
  v_cmp_gt_i32 {s(sS2,2)}, 0, {v(U)}
  v_cmp_gt_u32 {s(sSm,2)}, {NT}, {v(U+2)}
  s_and_b64 vcc, {s(sSm,2)}, {s(sS2,2)}
  s_cselect_b32 s{sCin}, s{sCin}, 0
  s_cbranch_scc0 L_x2_back
  v_and_or_b32 {v(T)}, {v(U)}, {v(vSent)}, {v(vHalf)}
  v_mul_f32 {v(U+1)}, {v(U+1)}, {v(vFreq)}
  s_mov_b32 m0, s{sCnt[0]}
  v_cndmask_b32 {v(T)}, {v(vSent)}, {v(T)}, vcc
  buffer_load_dwordx4 {(v(T) + ", " + s(sM,4) + ", 0 idxen lds") if DMA else (v(RR,4) + ", " + v(T) + ", " + s(sM,4) + ", 0 idxen")}
  v_cndmask_b32 {v(U+2)}, {v(vOOB)}, {v(U+2)}, vcc
  v_cos_f32 {v(U+1)}, {v(U+1)}
  v_and_b32 {v(U+3)}, 14, {v(U)}
  v_lshl_add_u32 {v(U+3)}, {v(U+3)}, {0 if (DMA or STR) else 3}, {v(vSst)}
  v_cvt_pk_bf16_f32 {v(U+1)}, {v(U+1)}, {v(U+1)}
  s_branch L_x2_back""")
    a.label("L_x3")
    a(f"  s_waitcnt vmcnt({xw[3]})")
    if DMA:
        a(f"  v_lshrrev_b32 {v(T)}, 1, {v(vLin)}\n  v_add_u32 {v(T)}, s{sCnt[0]}, {v(T)}")
        tr(P, T, 0)
    else:
        a(f"""
  v_mfma_f32_16x16x32_bf16 {v(Da,4)}, {v(RR,4)}, {v(Wa,4)}, 0
  v_mfma_f32_16x16x32_bf16 {v(Db,4)}, {v(RR,4)}, {v(Wb,4)}, 0
  s_nop 6""")
        cstage_cvt()
    for t in range(NT):
        a(f"""
  v_cmp_eq_u32 vcc, {t}, {v(U+2)}
  s_cbranch_vccz L_x3_{t}
  s_mov_b64 exec, vcc
  ds_write_b16 {v(U+3)}, {v(U+1)}
  s_mov_b64 exec, -1""")
        sread()
        a(f"""
  s_mov_b64 exec, vcc
  ds_write_b16 {v(U+3)}, {v(vZ)}
  s_mov_b64 exec, -1
  s_waitcnt lgkmcnt(0)""")
        cstage_m2(t)
        a.label(f"L_x3_{t}")
    a("  s_branch L_x3_back")
    a.label("L_mld")
    a(f"""
  v_bfe_u32 {v(T)}, v0, 4, 2
  v_and_b32 {v(T+1)}, 15, v0
  v_lshlrev_b32 {v(T)}, 3, {v(T)}
  v_lshl_add_u32 {v(T)}, {v(T+1)}, 5, {v(T)}""")
    for p in range(13):
        a(f"  buffer_load_dwordx2 {v(MM[p],2)}, {v(T)}, {s(sMW,4)}, s{sEb if p < 8 else sEb2} offen offset:{(p%8)*512}")
    a(f"  s_cmp_eq_u32 s{sKo}, -1\n  s_cbranch_scc1 L_mld_back2\n  s_branch L_mld_back1")
    a.label("L_it0")
    signal_all("z0", 0)
    a("  s_branch L_nosig_z")
    a.label("L_sig")
    signal_all("b1", nsig)
    a("  s_branch L_nosig_b0")
    rep = f"  s_and_b32 s{sX}, s2, {OPT['nrep']-1}\n  s_lshl_b32 s{sX}, s{sX}, 10"
    a.label("L_ldc")
    a(f"  v_lshlrev_b32 {v(FO)}, 4, v0")
    a(rep)
    a(flag_load(FC, FO))
    a("  s_branch L_ldc_back")
    a.label("L_chkc")
    back = "L_arr_back" if OPT["soft"] else "L_turn2"
    if OPT["soft"]:
        a(f"""
  s_waitcnt vmcnt({TAR - TLD})
  s_cmp_eq_u32 s{sDid}, 1
  s_mov_b32 s{sDid}, 0
  s_cbranch_scc1 L_arr_back""")
    else: a(f"  s_waitcnt vmcnt({NT - 1 - (INS0 + 18)})")
    a(flag_cond(FC, 4))
    a(f"  s_cbranch_vccz {back}")
    a(rep)
    poll("c", flag_load(FC, FO), flag_cond(FC, 4), OPT["nap"])
    a(f"  s_branch {back}")
    if OPT["soft"]:
        a.label("L_anap")
        a("  s_sleep 1\n  s_sub_u32 s81, s81, 1\n  s_cbranch_scc0 L_aspin\n  s_endpgm")
        for tag in ("lp", "fin"):
            a.label(f"L_bspin_{tag}")
            a(f"""
  s_sleep 1
  s_sub_u32 s81, s81, 1
  s_cbranch_scc1 L_end
  ds_read_b32 {v(T+8)}, {v(T+9)} offset:4
  s_waitcnt lgkmcnt(0)
  v_readfirstlane_b32 s{sX}, {v(T+8)}
  s_cmp_lt_u32 s{sX}, s{sTg}
  s_cbranch_scc1 L_bspin_{tag}
  s_branch L_bok_{tag}""")
    a.label("L_borrow")
    QL = Q + OPT['keff'] - 3
    a(f"""
  v_lshrrev_b32 {v(T)}, 16, {v(QL)}
  v_cmp_eq_u32 vcc, 0, {v(nA)}
  v_subrev_u32 {v(T+1)}, {OPT['lim']}, {v(T)}
  v_and_b32 {v(T+2)}, 0xffff, {v(QL)}
  v_max_i32 {v(T+1)}, 0, {v(T+1)}
  v_cndmask_b32 {v(T+1)}, {v(vZ)}, {v(T+1)}, vcc
  v_add_u32 {v(T+2)}, {v(T+2)}, {v(T)}
  v_sub_u32 {v(T+2)}, {v(T+2)}, {v(T+1)}
  v_cndmask_b32 {v(sA)}, {v(sA)}, {v(T+2)}, vcc
  v_add_u32 {v(nA)}, {v(nA)}, {v(T+1)}
  v_lshlrev_b32 {v(T+1)}, 16, {v(T+1)}
  v_sub_u32 {v(QL)}, {v(QL)}, {v(T+1)}
  s_branch L_borrow_back""")
    for u in range(16):
        a.label(f"L_two_{u}")
        a(f"""
  v_sub_co_u32_dpp {v(T+6)}, vcc, {v(vR0)}, {v(vI1)} {bc(u)}
  v_add_u32_dpp {v(T+6)}, {v(vA6)}, {v(vI6)} {bc(u)}
  s_nop 0
  v_cndmask_b32 {v(T+4)}, {v(T+6)}, {v(T+4)}, vcc
  s_branch L_two_back_{u}""")
    a.label("L_allfirst")
    a(f"  s_mov_b32 s{sY}, s{sSo}")
    for r in range(NB + N1, NS): st(r)
    a(f"  s_mov_b32 s{sSo}, s{sY}\n  s_waitcnt vmcnt(0)\n  s_barrier\n{flag3}\n  s_branch L_allfirst_back")
    if PW:
        sDone, sNew = 76, 77
        mk2 = lambda u: 72 + 2 * (u // 8)
        a.label("L_gen")
        a(f"  s_mov_b64 s[78:79], vcc")
        for r in range(nx3, NS): st(r)
        a(f"  s_mov_b32 s{sDone}, 0\n  s_mov_b32 s{sY}, {OPT['spin']}")
        for r in range(nx3, NS): zero_acc(sdt(r))
        a("  s_waitcnt lgkmcnt(0)\n  s_barrier")
        stamp(a, 252, 1)
        set_flag("gen")
        a("  s_mov_b64 vcc, s[78:79]")
        a.label("L_gen_loop")
        a(f"""
  s_or_b32 s{sNew}, vcc_lo, vcc_hi
  s_lshr_b32 s{sX}, s{sNew}, 8
  s_or_b32 s{sNew}, s{sNew}, s{sX}
  s_or_b32 s{sNew}, s{sNew}, s{sDone}
  s_andn2_b32 s{sNew}, 0xff, s{sNew}
  s_cbranch_scc1 L_gen_take
  s_sleep {OPT['nap']}""")
        a(own_ld)
        a("  s_waitcnt vmcnt(0)")
        a(own_cd)
        a(f"""
  s_sub_u32 s{sY}, s{sY}, 1
  s_cbranch_scc0 L_gen_loop
  s_mov_b64 vcc, 0
  s_branch L_gen_loop""")
        a.label("L_gen_take")
        def each(stage, fn):
            for x in range(8):
                a(f"  s_bitcmp1_b32 s{sNew}, {x}\n  s_cbranch_scc0 L_gen_{stage}{x}")
                fn(x, [x, x + 8])
                a.label(f"L_gen_{stage}{x}")
        each("a", lambda x, us: [a(f"  buffer_load_dwordx2 {v(REC[u],2)}, {v(REC[u])}, {s(sREC,4)}, 0 offen{RPOL}") for u in us])
        a("  s_waitcnt vmcnt(0)")
        a(own_ld)
        each("b", lambda x, us: gins1(us, mk2))
        a("  s_waitcnt lgkmcnt(0)")
        def third(x, us):
            for u in us: a(f"  v_cmp_gt_i32 {s(mk2(u),2)}, 0, {v(REC[u]+1)}")
            gins2(us, mk2, f"g{x}")
        each("c", third)
        a(f"""
  s_or_b32 s{sDone}, s{sDone}, s{sNew}
  s_waitcnt vmcnt(0)
  s_cmp_eq_u32 s{sDone}, 0xff
  s_cbranch_scc1 L_gen_done""")
        a(own_cd)
        a("  s_branch L_gen_loop")
    for g, us, mk in slowg:
        a.label(f"L_pslow_{g}")
        for u in us:
            a(f"""
  s_mov_b64 exec, {s(mk(u),2)}
  v_cmp_lt_u32 vcc, 63, {v(PRK(u))}
  s_cbranch_vccz L_pskip_{g}_{u}
  s_andn2_b64 {s(mk(u),2)}, {s(mk(u),2)}, vcc
  s_mov_b64 exec, vcc
  ds_add_rtn_u32 {v(T+1)}, {v(vCtlN)}, {v(vOne)}
  s_waitcnt lgkmcnt(0)
  v_lshlrev_b32 {v(T+1)}, 3, {v(T+1)}
  buffer_store_dwordx2 {v(REC[u],2)}, {v(T+1)}, {s(sCAR,4)}, s{sCarW} offen
  s_waitcnt vmcnt(0)""")
            a.label(f"L_pskip_{g}_{u}")
        a(f"  s_mov_b64 exec, -1\n  s_branch L_pback_{g}")
    for tag in ("lp",):
        a.label(f"L_slow_{tag}")
        a(f"  s_mov_b32 s{sX}, 512")
        a.label(f"L_slow_loop_{tag}")
        a(f"""
  v_add_u32 {v(T+1)}, s{sX}, {v(vCarIdx)}
  v_cmp_gt_u32 vcc, s{sCin}, {v(T+1)}
  v_lshlrev_b32 {v(T+1)}, 3, {v(T+1)}
  s_nop 0
  v_cndmask_b32 {v(T+1)}, {v(vOOB)}, {v(T+1)}, vcc
  buffer_load_dwordx2 {v(LR(16),2)}, {v(T+1)}, {s(sCAR,4)}, s{sCarR} offen sc1
  s_waitcnt vmcnt(0)""")
        ins1(16, "0", 0)
        a("  s_waitcnt lgkmcnt(0)")
        ins2(16, "sl" + tag, 0)
        a(f"""
  s_add_u32 s{sX}, s{sX}, 512
  s_cmp_lt_u32 s{sX}, s{sCin}
  s_cbranch_scc1 L_slow_loop_{tag}
  s_waitcnt vmcnt(0)
  s_branch L_slow_back_{tag}""")
    for lab, u, p in rare:
        a.label(f"L_rare_{lab}")
        a(f"""
  s_mov_b64 exec, vcc
  ds_add_rtn_u32 {v(RK4[p])}, {v(vCtlN)}, {v(vOne)}
  s_mov_b32 s83, 1
  s_waitcnt lgkmcnt(0)
  v_lshlrev_b32 {v(RK4[p])}, 3, {v(RK4[p])}
  buffer_store_dwordx2 {v(NW[p],2)}, {v(RK4[p])}, {s(sCAR,4)}, s{sCarW} offen
  s_andn2_b64 exec, {s(sMk4[p],2)}, vcc
  s_branch L_back_{lab}""")
    a.label("L_code_end")
    return NV

def kd(name, nv, ns):
    nv4 = (nv + 3) // 4 * 4
    return f""".amdhsa_kernel {name}
  .amdhsa_next_free_vgpr {nv}
  .amdhsa_next_free_sgpr {ns}
  .amdhsa_accum_offset {nv4}
  .amdhsa_group_segment_fixed_size 0
  .amdhsa_kernarg_size 112
  .amdhsa_user_sgpr_count 2
  .amdhsa_user_sgpr_kernarg_segment_ptr 1
  .amdhsa_system_sgpr_workgroup_id_x 1
  .amdhsa_float_denorm_mode_32 3
.end_amdhsa_kernel
"""

DOC = '; ---------------------------------------------------------------------------------------------\n;          in d_ws that every workgroup clears first; the zeroed d_debug counters confirm the clear).\n; ---------------------------------------------------------------------------------------------\n'

def main():
    out = sys.argv[1]
    ref = open(f"cdna_kernels/{NAME}.s.ref").read().split("\n")
    head = [l for l in ref if l.startswith(";") and "@launch" not in l and "Override" not in l and "grid=ceil" not in l]
    a = Asm()
    a(".amdgcn_target \"amdgcn-amd-amdhsa--gfx950\"\n.text")
    a(f".globl {NAME}_kernel\n.type {NAME}_kernel,@function")
    nv = gen_p2(a)
    errs = a.check()
    for e in errs: print("HAZARD", e)
    txt = "\n".join(head) + "\n"
    kern = f"kernel={NAME}_kernel " if OPT["list"] else ""
    txt += f"; @launch {kern}grid=(256,1,1) block=(512,1,1) lds={P1_LDS}\n"
    if OPT["probe"] >= 0:
        txt += "; @launch kernel=probe_kernel grid=(1,1,1) block=(64,1,1) lds=0\n"
        a(f"""
.p2align 8
probe_kernel:
  s_cmp_ge_u32 s2, 1
  s_cbranch_scc1 P_end
  s_load_dwordx2 s[4:5], s[0:1], 96
  s_waitcnt lgkmcnt(0)
  s_load_dwordx8 s[8:15], s[4:5], 0
  s_memrealtime s[16:17]
  s_waitcnt lgkmcnt(0)
  s_not_b32 s8, s8
  s_sub_u32 s20, s{8 + OPT['probe']}, s8
  {"s_lshr_b32 s20, s%d, 4" % (8 + OPT['probe']) if OPT['probe'] in (5, 7) else "s_nop 0"}
  s_min_u32 s20, s20, 20000
P_loop:
  s_memrealtime s[18:19]
  s_waitcnt lgkmcnt(0)
  s_sub_u32 s21, s18, s16
  s_cmp_lt_u32 s21, s20
  s_cbranch_scc1 P_loop
P_end:
  s_endpgm""")
    txt += DOC + a.text()
    txt += ".section .rodata,\"a\"\n.p2align 6\n" + kd(NAME + "_kernel", 256, 102) + (".p2align 6\n" + kd("probe_kernel", 8, 32) if OPT["probe"] >= 0 else "")
    open(out, "w").write(txt)
    print("vgprs p2:", nv, "lines:", len(a.lines), "hazards:", len(errs))

main()
```
